```python
import torch

def _softmax(x, axis=-1):
    return torch.softmax(x, dim=axis)
def _gelu(x):
    return torch.nn.functional.gelu(x, approximate="tanh")
def _silu(x):
    return torch.nn.functional.silu(x)
def _sigmoid(x):
    return torch.sigmoid(x)
def _layernorm(x, axis=-1, eps=1e-5):
    m = x.mean(dim=axis, keepdim=True)
    v = x.var(dim=axis, keepdim=True, unbiased=False)
    return (x - m) / torch.sqrt(v + eps)
def _scatter_add(tgt, idx, src, axis=0):
    return tgt.clone().index_add_(axis, idx, src)
def _segment_sum(src, seg, n):
    out = torch.zeros((n,) + src.shape[1:], dtype=src.dtype)
    return out.index_add_(0, seg, src)
def _pad(x, pw):
    flat = tuple(v for pair in reversed(pw) for v in pair)
    return torch.nn.functional.pad(x, flat)

kernel_name = 'sequential_preLN__softmax_full_mha__glu_gated_reglu__prompt'

def setup_inputs():

    _w = (lambda a: (lambda t: t.to(torch.bfloat16) if t.is_floating_point() else t)(torch.as_tensor(a)))
    def _A_setup():
        B, S, D = 1, 2048, 640
        return {
            "x": _w((lambda *s: torch.randn(*s, dtype=torch.bfloat16) * 0.05)(B, S, D)),
            "wqkv": _w((lambda *s: torch.randn(*s, dtype=torch.bfloat16) * 0.05)(D, 3 * D)),
            "wo": _w((lambda *s: torch.randn(*s, dtype=torch.bfloat16) * 0.05)(D, D)),
        }
    _A_in = _A_setup()

    def _B_setup():
        B, S, D, F = 1, 2048, 640, 1536
        return {
            "x": _w((lambda *s: torch.randn(*s, dtype=torch.bfloat16) * 0.05)(B, S, D)),
            "W_gate": _w((lambda *s: torch.randn(*s, dtype=torch.bfloat16) * 0.4)(D, F) * (2.0 / D) ** 0.5),
            "W_up": _w((lambda *s: torch.randn(*s, dtype=torch.bfloat16) * 0.4)(D, F) * (2.0 / D) ** 0.5),
            "W_down": _w((lambda *s: torch.randn(*s, dtype=torch.bfloat16) * 0.4)(F, D) * (1.0 / F) ** 0.5),
        }
    _B_in = _B_setup()

    return {
        "A_x": _A_in["x"],
        "A_wqkv": _A_in["wqkv"],
        "A_wo": _A_in["wo"],
        "B_x": _B_in["x"],
        "B_W_gate": _B_in["W_gate"],
        "B_W_up": _B_in["W_up"],
        "B_W_down": _B_in["W_down"],
    }

def reference(A_x, A_wqkv, A_wo, B_x, B_W_gate, B_W_up, B_W_down):
    def _A_ref(x, wqkv, wo):
        B, S, D = x.shape
        H = 32; Dh = D // H
        qkv = (lambda x, *d: x.permute(*d))((x @ wqkv).reshape(B, S, 3, H, Dh), 2, 0, 3, 1, 4)
        q, k, v = qkv[0], qkv[1], qkv[2]
        scale = Dh ** -0.5
        scores = torch.einsum("bhqd,bhkd->bhqk", q, k) * scale
        p = _softmax(scores, axis=-1)
        o = torch.einsum("bhqk,bhkd->bhqd", p, v)
        return (lambda x, *d: x.permute(*d))(o, 0, 2, 1, 3).reshape(B, S, D) @ wo

    def _B_ref(x, W_gate, W_up, W_down):
        gate = torch.einsum("bsd,df->bsf", x, W_gate)
        up = torch.einsum("bsd,df->bsf", x, W_up)
        gate = gate * (lambda x, dt: x.to(dt))(gate > 0, gate.dtype)
        h = gate * up
        return torch.einsum("bsf,fd->bsd", h, W_down)

    x = A_x
    h = x + _A_ref(_layernorm(x, axis=-1), A_wqkv, A_wo)
    h2 = h + _B_ref(_layernorm(h, axis=-1), B_W_gate, B_W_up, B_W_down)
    return h2
```

```python
import re

def v(n, k=1): return f"v{n}" if k == 1 else f"v[{n}:{n+k-1}]"
def a(n, k=1): return f"a{n}" if k == 1 else f"a[{n}:{n+k-1}]"
def s(n, k=1): return f"s{n}" if k == 1 else f"s[{n}:{n+k-1}]"

TRANS = ("v_exp_", "v_log_", "v_rcp_", "v_rsq_", "v_sqrt_", "v_sin_", "v_cos_")
_reg_re = re.compile(r"^(-|\|)?(?:abs\()?([vas])(?:(\d+)|\[(\d+):(\d+)\])\)?\|?$")

def regs_of(op):
    op = op.strip()
    if op == "vcc": return {("s", "vcc")}
    if op in ("vcc_lo", "vcc_hi"): return {("s", "vcc")}
    if op in ("exec", "exec_lo", "exec_hi"): return {("s", "exec")}
    if op == "m0": return {("s", "m0")}
    m = _reg_re.match(op)
    if not m: return set()
    t = m.group(2)
    if m.group(3) is not None: return {(t, int(m.group(3)))}
    return {(t, i) for i in range(int(m.group(4)), int(m.group(5)) + 1)}

def mfma_passes(op):
    if "4x4x4" in op: return 2
    if "16x16x32" in op or "16x16x16" in op: return 4
    if "32x32x16" in op or "32x32x8" in op: return 8
    raise ValueError(op)

class Ins:
    def __init__(self, text):
        self.text = text
        t = text.split(";")[0].strip()
        self.op = t.split()[0] if t else ""
        rest = t[len(self.op):].strip()
        ops = [x.strip() for x in rest.split(",")] if rest else []
        mods = []
        if ops:
            parts = ops[-1].split()
            ops[-1] = parts[0] if parts else ""
            mods = parts[1:]
        self.mods = mods
        op = self.op
        self.is_mfma = op.startswith("v_mfma")
        self.is_valu = op.startswith("v_") and not self.is_mfma
        self.is_trans = op.startswith(TRANS)
        self.is_dot = op.startswith("v_dot")
        self.is_vmem = op.startswith(("buffer_", "global_"))
        self.is_ds = op.startswith("ds_")
        self.is_salu = op.startswith("s_")
        self.is_dpp = "_dpp" in op or any(m.startswith(("row_", "quad_perm", "wave_")) for m in mods)
        self.is_perm = op.startswith("v_permlane")
        self.is_lds_dma = self.is_vmem and "lds" in mods
        self.states = 1
        if op == "s_nop": self.states = int(ops[0], 0) + 1
        R = [regs_of(o) for o in ops]
        self.w = set(); self.r = set(); self.srcc = set(); self.ab = set(); self.stdata = set()
        if self.is_mfma:
            self.w = R[0]; self.ab = R[1] | R[2]; self.srcc = R[3]; self.r = self.ab | self.srcc
            self.passes = mfma_passes(op)
        elif self.is_valu:
            if op == "v_nop": pass
            elif self.is_perm:
                self.w = R[0] | R[1]; self.r = R[0] | R[1]
            else:
                self.w = set(R[0]); rs = R[1:]
                if "_co_" in op or op.startswith(("v_div_scale", "v_mad_u64")):
                    self.w |= R[1]; rs = R[2:]
                for x in rs: self.r |= x
                if op.startswith(("v_fmac", "v_dot2c", "v_pk_fmac", "v_writelane")) or "UNUSED_PRESERVE" in t or self.is_dpp: self.r |= R[0]
                if op.startswith("v_cmpx"): self.w |= {("s", "exec")}
        elif self.is_vmem:
            if "_load" in op and not self.is_lds_dma:
                self.w = R[0]
                for x in R[1:]: self.r |= x
            else:
                for x in R: self.r |= x
                if self.is_lds_dma: self.r |= {("s", "m0")}
                if "store" in op and ("x3" in op or "x4" in op):
                    self.stdata = R[0] if op.startswith("buffer_") else R[1]
                if "atomic" in op and "sc0" in mods: self.w = R[0]
        elif self.is_ds:
            if op.startswith(("ds_read", "ds_bpermute", "ds_permute", "ds_swizzle")):
                self.w = R[0]
                for x in R[1:]: self.r |= x
            else:
                for x in R: self.r |= x
        elif self.is_salu:
            if op.startswith(("s_cmp", "s_cbranch", "s_branch", "s_waitcnt", "s_barrier", "s_nop", "s_setprio", "s_sleep", "s_endpgm", "s_bitcmp")):
                for x in R: self.r |= x
            else:
                if R: self.w = set(R[0])
                for x in R[1:]: self.r |= x
                if "saveexec" in op: self.w |= {("s", "exec")}

def isv(x): return x[0] in ("v", "a")

def need(p, c):
    n = 0
    pw_v = {x for x in p.w if isv(x)}
    pw_s = {x for x in p.w if x[0] == "s"}
    if p.is_valu:
        if c.is_mfma and (pw_v & c.r): n = max(n, 3 if p.is_dot else 2)
        if p.is_trans and (c.is_valu and not c.is_trans) and (pw_v & c.r): n = max(n, 1)
        if p.is_trans and (c.is_mfma) and (pw_v & c.r): n = max(n, 2)
        if c.is_perm and (pw_v & c.r): n = max(n, 2)
        if c.is_dpp and (pw_v & c.r): n = max(n, 2)
        if c.op.startswith(("v_readlane", "v_readfirstlane")) and (pw_v & c.r): n = max(n, 1)
        if c.is_vmem and (pw_s & c.r): n = max(n, 5)
        if c.is_valu and (pw_s & c.r):
            n = max(n, 4 if c.op.startswith(("v_readlane", "v_writelane")) else 2)
        if c.is_salu and (pw_s & c.r): n = max(n, 1)
        if ("s", "exec") in pw_s:
            if c.is_mfma or c.is_perm or c.op.startswith(("v_readlane", "v_readfirstlane", "v_writelane")): n = max(n, 4)
            if c.is_dpp: n = max(n, 5)
        if p.is_dot and (c.is_valu or c.is_vmem or c.is_ds) and (pw_v & (c.r | c.w)):
            if not (c.op == p.op): n = max(n, 3)
            else:
                n = max(n, 0)
        if "sdwa" in p.op and c.is_valu and (pw_v & (c.r | c.w)): n = max(n, 1)
    if p.is_mfma:
        k = {2: 0, 4: 1, 8: 2, 16: 3}[p.passes]
        if c.is_mfma:
            if pw_v & c.ab: n = max(n, [5, 8, 12, 20][k])
            if pw_v & c.srcc:
                if c.srcc == p.w and c.passes == p.passes: n = max(n, [2, 0, 0, 0][k])
                else: n = max(n, [4, 6, 10, 18][k])
            elif pw_v & c.w:
                n = max(n, [4, 6, 10, 18][k])
        elif (c.is_valu or c.is_vmem or c.is_ds) and (pw_v & (c.r | c.w)):
            n = max(n, [5, 8, 12, 20][k])
        if c.is_valu and (p.srcc & c.w): n = max(n, [1, 3, 7, 15][k])
    if p.stdata and (p.stdata & c.w): n = max(n, 2 if c.is_valu else 1)
    if p.is_salu and ("s", "m0") in pw_s and c.is_lds_dma: n = max(n, 1)
    return n

class Asm:
    def __init__(self):
        self.items = []
        self.uid = 0
    def __call__(self, text):
        for line in text.split("\n"):
            line = line.strip()
            if not line: continue
            if line.startswith(";"): self.items.append(("t", "    " + line))
            elif line.startswith("."): self.items.append(("t", line))
            elif line.endswith(":"): self.items.append(("l", line[:-1]))
            else: self.items.append(("i", Ins(line)))
    def label(self, name): self.items.append(("l", name))
    def newlabel(self, base):
        self.uid += 1
        return f"L_{base}_{self.uid}"
    def raw(self, text): self.items.append(("t", text))

    @staticmethod
    def _lack(hist, c):
        lack = 0; dist = 0
        for p in reversed(hist):
            nd = need(p, c)
            if nd > dist: lack = max(lack, nd - dist)
            dist += p.states
            if dist >= 20: break
        return lack

    def finalize(self):
        out = []; hist = []
        for kind, x in self.items:
            if kind == "i":
                lack = self._lack(hist, x)
                while lack > 0:
                    n = min(lack, 16)
                    nop = Ins(f"s_nop {n-1}")
                    out.append(("i", nop)); hist.append(nop); lack -= n
                out.append(("i", x)); hist.append(x)
                if x.op in ("s_branch", "s_endpgm"): hist = []
                hist = hist[-24:]
            else:
                out.append((kind, x))
        labels = {x: i for i, (k, x) in enumerate(out) if k == "l"}
        for i, (k, x) in enumerate(out):
            if k == "i" and x.op.startswith(("s_cbranch", "s_branch")):
                tgt = x.text.split()[1]
                if tgt not in labels: raise ValueError("unknown label " + tgt)
                h = []
                j = i
                while j >= 0 and len(h) < 24:
                    if out[j][0] == "i":
                        if j != i and out[j][1].op in ("s_branch", "s_endpgm"): break
                        h.insert(0, out[j][1])
                    j -= 1
                j = labels[tgt]; cnt = 0
                while j < len(out) and cnt < 20:
                    if out[j][0] == "i":
                        c = out[j][1]
                        lack = self._lack(h, c)
                        if lack > 0:
                            raise ValueError(f"hazard across branch '{x.text}' -> '{c.text}' lacks {lack}")
                        h.append(c); cnt += c.states
                        if c.op in ("s_branch", "s_endpgm"): break
                    j += 1
        lines = []
        for k, x in out:
            if k == "i": lines.append("    " + x.text)
            elif k == "l": lines.append(x + ":")
            else: lines.append(x)
        return "\n".join(lines) + "\n"

def kernel_desc(name, nvgpr, accum_offset, nsgpr=100):
    return f""".amdhsa_kernel {name}
  .amdhsa_next_free_vgpr {nvgpr}
  .amdhsa_next_free_sgpr {nsgpr}
  .amdhsa_accum_offset {accum_offset}
  .amdhsa_group_segment_fixed_size 0
  .amdhsa_kernarg_size 80
  .amdhsa_user_sgpr_count 2
  .amdhsa_user_sgpr_kernarg_segment_ptr 1
  .amdhsa_system_sgpr_workgroup_id_x 1
  .amdhsa_float_denorm_mode_32 3
  .amdhsa_float_denorm_mode_16_64 3
.end_amdhsa_kernel
"""
```

```python
from asmlib import *
WS_KV  = 0x0000000
WS_Q   = 0x0500000
WS_O   = 0x0A00000
WS_H   = 0x0C80000
WS_HID = 0x0F00000
WS_ST2 = 0x1500000
WS_SYNC= 0x1540000
WS_TS  = 0x1600000
WS_SIZE= 0x2000000
HEAD_STRIDE = 64 * 2560
X_BYTES = 2048 * 640 * 2
QSCALE = (20 ** -0.5) * 1.4426950408889634

import struct
def f2u(f): return struct.unpack("<I", struct.pack("<f", f))[0]
def fhex(f): return hex(f2u(f))

def srd(A, d, ptr, nbytes):
    if d != ptr:
        A(f"s_mov_b32 s{d}, s{ptr}")
        A(f"s_and_b32 s{d+1}, s{ptr+1}, 0xffff")
    else:
        A(f"s_and_b32 s{d+1}, s{d+1}, 0xffff")
    A(f"s_mov_b32 s{d+2}, {hex(nbytes)}")
    A(f"s_mov_b32 s{d+3}, 0x20000")

def kstart(A, name):
    A.raw(f".globl {name}\n.p2align 8\n.type {name},@function")
    A.label(name)

def stamp(A, cfg, idx, srd_ws, swave, vtmp, stmp):
    if not cfg.get("stamps"): return
    L = A.newlabel("ts")
    A("s_nop 15")
    A(f"s_cmp_lg_u32 s{swave}, 0")
    A(f"s_cbranch_scc1 {L}")
    A(f"s_memrealtime s[{stmp}:{stmp+1}]")
    A(f"s_memtime s[{stmp+4}:{stmp+5}]")
    A(f"s_lshl_b32 s{stmp+2}, s2, 8")
    A(f"s_add_u32 s{stmp+2}, s{stmp+2}, {hex(WS_TS + idx*8)}")
    A(f"s_waitcnt lgkmcnt(0)")
    A(f"v_mov_b32 v{vtmp}, s{stmp}")
    A(f"v_mov_b32 v{vtmp+1}, s{stmp+4}")
    A(f"v_mov_b32 v{vtmp+2}, s{stmp+2}")
    A(f"s_mov_b64 s[{stmp}:{stmp+1}], exec")
    A(f"s_mov_b64 exec, 1")
    A(f"buffer_store_dwordx2 v[{vtmp}:{vtmp+1}], v{vtmp+2}, s[{srd_ws}:{srd_ws+3}], 0 offen")
    A(f"s_mov_b64 exec, s[{stmp}:{stmp+1}]")
    A.label(L)
```

```python
from common import *

class AttnRegs:
    S = (16, 32); O = 48; P = 64; K1 = 72; K2 = 76; V1 = 80; V2 = 84; Q1 = 88; Q2 = 92
    KA = 1; K2A = 2; VA = 3; DA = 4; T = 8

def set_shift(A, R, m):
    t0, t1, t2 = R.T + 1, R.T + 2, R.T + 3
    A(f"v_cvt_pk_bf16_f32 v{t0}, -v{m}, -v{m}")
    A(f"v_and_b32 v{t0}, 0xffff0000, v{t0}")
    A(f"v_sub_f32 v{t1}, -v{m}, v{t0}")
    A(f"v_cvt_pk_bf16_f32 v{t2}, v{t0}, v{t1}")
    A(f"v_and_b32 v{t0}, 0xffff0000, v{t2}")
    A(f"v_sub_f32 v{t1}, v{t1}, v{t0}")
    A(f"v_cvt_pk_bf16_f32 v{t1}, v{t1}, 0")
    A(f"v_cmp_gt_u32 vcc, 32, v0")
    A(f"v_cndmask_b32 v{R.Q2+1}, v{t1}, v{t2}, vcc")

def max16(A, dst, S, first):
    if first:
        A(f"v_max3_f32 v{dst}, v{S}, v{S+1}, v{S+2}")
        A(f"v_max_f32 v{dst}, v{dst}, v{S+3}")
        rng = range(4, 16, 2)
    else:
        rng = range(0, 16, 2)
    for i in rng: A(f"v_max3_f32 v{dst}, v{dst}, v{S+i}, v{S+i+1}")

def xhalf_max(A, m, t):
    A(f"v_mov_b32 v{t}, v{m}")
    A(f"v_permlane32_swap_b32 v{m}, v{t}")
    A(f"v_max_f32 v{m}, v{m}, v{t}")

def gen_attn(A, cfg):
    name = "attn_kernel"
    kstart(A, name)
    R = AttnRegs
    SWS = 12
    sWAVE, sG, sHEAD, sKV, sT0, sT1, sT2, sC, sDM0, sDSRC, sDELTA, sSLOT = 16, 17, 18, 19, 20, 21, 22, 23, 24, 25, 26, 27
    sVMASK = 28
    sQT = 30
    T = R.T
    A("s_cmp_ge_u32 s2, 256")
    A("s_cbranch_scc1 L_attn_end")
    A("s_load_dwordx2 s[12:13], s[0:1], 72")
    A(f"v_lshrrev_b32 v{T}, 6, v0")
    A(f"v_and_b32 v0, 63, v0")
    A(f"v_readfirstlane_b32 s{sWAVE}, v{T}")
    A(f"s_and_b32 s{sG}, s2, 7")
    A(f"s_lshr_b32 s{sHEAD}, s2, 3")
    A(f"s_mul_i32 s{sKV}, s{sHEAD}, {HEAD_STRIDE}")
    A(f"s_lshl_b32 s{sQT}, s{sG}, 3")
    A(f"s_add_u32 s{sQT}, s{sQT}, s{sWAVE}")
    A(f"v_lshlrev_b32 v{R.DA}, 4, v0")
    A(f"v_mov_b32 v{R.KA}, v{R.DA}")
    A(f"v_and_b32 v{T}, 31, v0")
    A(f"v_lshrrev_b32 v{T+1}, 5, v0")
    A(f"v_lshlrev_b32 v{R.K2A}, 3, v{T}")
    A(f"v_lshl_add_u32 v{R.K2A}, v{T+1}, 2, v{R.K2A}")
    A(f"v_add_u32 v{R.K2A}, 1024, v{R.K2A}")
    A(f"s_lshl_b32 s{sDM0}, s{sWAVE}, 10")
    A(f"s_add_u32 s{sDSRC}, s{sKV}, s{sDM0}")
    A("s_waitcnt lgkmcnt(0)")
    srd(A, SWS, SWS, WS_SIZE)
    stamp(A, cfg, 3, SWS, sWAVE, T+4, 40)

    def dma_chunk(slot_sgpr_or_const):
        L = A.newlabel("dma")
        for j in range(3):
            if j == 2:
                A(f"s_cmp_ge_u32 s{sWAVE}, 4")
                A(f"s_cbranch_scc1 {L}")
            if isinstance(slot_sgpr_or_const, int):
                A(f"s_add_u32 m0, s{sDM0}, {slot_sgpr_or_const + j*8192}")
            else:
                A(f"s_add_u32 s{sT0}, s{sDM0}, {slot_sgpr_or_const}")
                A(f"s_add_u32 m0, s{sT0}, {j*8192}")
            A(f"s_add_u32 s{sT1}, s{sDSRC}, {j*8192}")
            A(f"buffer_load_dwordx4 v{R.DA}, s[{SWS}:{SWS+3}], s{sT1} offen lds")
        A.label(L)
        A(f"s_add_u32 s{sDSRC}, s{sDSRC}, 20480")
    dma_chunk(0)
    A(f"s_mul_i32 s{sT2}, s{sQT}, 2560")
    A(f"s_add_u32 s{sT2}, s{sT2}, s{sKV}")
    A(f"s_add_u32 s{sT2}, s{sT2}, {hex(WS_Q)}")
    A(f"buffer_load_dwordx4 {v(R.Q1,4)}, v{R.KA}, s[{SWS}:{SWS+3}], s{sT2} offen")
    A(f"buffer_load_dword v{R.Q2}, v{R.K2A}, s[{SWS}:{SWS+3}], s{sT2} offen")
    dma_chunk(20480)
    r, kh, aa, hf, b, i_, d1, d2 = T, T+1, T+2, T+3, T+4, T+5, T+6, T+7
    A(f"v_lshrrev_b32 v{aa}, 3, v{r}")
    A(f"v_bfe_u32 v{hf}, v{r}, 2, 1")
    A(f"v_and_b32 v{b}, 3, v{r}")
    A(f"v_lshl_add_u32 v{i_}, v{aa}, 2, v{b}")
    A(f"v_lshl_add_u32 v{d1}, v{hf}, 3, v{i_}")
    A(f"v_lshl_add_u32 v{d2}, v{hf}, 1, v{i_}")
    A(f"v_add_u32 v{d2}, 8, v{d2}")
    A(f"v_cmp_gt_u32 vcc, 8, v{i_}")
    A(f"v_cndmask_b32 v{d1}, v{d2}, v{d1}, vcc")
    A(f"v_min_u32 v{d1}, 19, v{d1}")
    A(f"v_mul_u32_u24 v{R.VA}, 320, v{kh}")
    A(f"v_lshl_add_u32 v{R.VA}, v{d1}, 4, v{R.VA}")
    A(f"v_add_u32 v{R.VA}, 1280, v{R.VA}")
    A(f"v_cmp_eq_u32 vcc, 10, v{i_}")
    A(f"v_mov_b32 v{d2}, 0x3f803f80")
    for k in range(8): A(f"v_cndmask_b32 v{R.V1+k}, 0, v{d2}, vcc")
    A(f"v_cmp_gt_u32 vcc, 32, v0")
    A(f"v_mov_b32 v{d1}, 0x3f80")
    A(f"v_cndmask_b32 v{R.K2+1}, v{d1}, v{d2}, vcc")
    A(f"v_mov_b32 v{R.Q2+1}, 0")
    for k in range(16): A(f"v_mov_b32 v{R.O+k}, 0")
    for k in range(4): A(f"v_mov_b32 v{R.P+4+k}, 0")
    A(f"s_mov_b32 s{sVMASK}, 0x0033ffff")
    A(f"s_mov_b32 s{sVMASK+1}, 0x0033ffff")
    A("s_waitcnt vmcnt(0)")
    A("s_barrier")
    S0 = R.S[0]
    A(f"ds_read_b128 {v(R.K1,4)}, v{R.KA}")
    A(f"ds_read_b32 v{R.K2}, v{R.K2A}")
    A("s_waitcnt lgkmcnt(0)")
    A(f"v_mfma_f32_32x32x16_bf16 {v(S0,16)}, {v(R.K1,4)}, {v(R.Q1,4)}, 0")
    A(f"v_mfma_f32_32x32x8_bf16 {v(S0,16)}, {v(R.K2,2)}, {v(R.Q2,2)}, {v(S0,16)}")
    max16(A, T, S0, True)
    xhalf_max(A, T, T+1)
    set_shift(A, R, T)
    A(f"v_mfma_f32_32x32x16_bf16 {v(S0,16)}, {v(R.K1,4)}, {v(R.Q1,4)}, 0")
    A(f"v_mfma_f32_32x32x8_bf16 {v(S0,16)}, {v(R.K2,2)}, {v(R.Q2,2)}, {v(S0,16)}")
    A(f"ds_read_b128 {v(R.K1,4)}, v{R.KA} offset:2560")
    A(f"ds_read_b32 v{R.K2}, v{R.K2A} offset:2560")
    A(f"s_mov_b64 exec, s[{sVMASK}:{sVMASK+1}]")
    A(f"ds_read_b128 {v(R.V2,4)}, v{R.VA} offset:640")
    A(f"ds_read_b128 {v(R.V1,4)}, v{R.VA}")
    A("s_mov_b64 exec, -1")
    A(f"s_mov_b32 s{sC}, 0")
    A(f"s_mov_b32 s{sSLOT}, 0")
    stamp(A, cfg, 4, SWS, sWAVE, T+4, 40)
    A("s_nop 7")
    A.raw(".p2align 6")
    A.label("L_attn_loop")
    for t in range(8):
        cur, nxt = R.S[t % 2], R.S[(t + 1) % 2]
        def E(i): A(f"v_exp_f32 v{cur+i}, v{cur+i}")
        def C(k): A(f"v_cvt_pk_bf16_f32 v{R.P+k}, v{cur+2*k}, v{cur+2*k+1}")
        if t == 6:
            A("s_waitcnt vmcnt(0)")
            A("s_barrier")
            A(f"s_movk_i32 s{sDELTA}, 20480")
            A(f"s_cmp_eq_u32 s{sSLOT}, 40960")
            A(f"s_cselect_b32 s{sDELTA}, -40960, s{sDELTA}")
            Ls = A.newlabel("nodma")
            A(f"s_cmp_ge_u32 s{sC}, 6")
            A(f"s_cbranch_scc1 {Ls}")
            A(f"s_cmp_eq_u32 s{sSLOT}, 0")
            A(f"s_cselect_b32 s{sT2}, 61440, s{sSLOT}")
            A(f"s_sub_u32 s{sT2}, s{sT2}, 20480")
            dma_chunk(f"s{sT2}")
            A.label(Ls)
            A(f"v_add_u32 v{R.KA}, s{sDELTA}, v{R.KA}")
            A(f"v_add_u32 v{R.K2A}, s{sDELTA}, v{R.K2A}")
        A("s_waitcnt lgkmcnt(2)")
        A(f"v_mfma_f32_32x32x16_bf16 {v(nxt,16)}, {v(R.K1,4)}, {v(R.Q1,4)}, 0")
        E(0); E(1); E(2); C(0); E(3)
        A("s_waitcnt lgkmcnt(0)")
        A(f"v_mfma_f32_32x32x16_bf16 {v(R.O,16)}, {v(R.V2,4)}, {v(R.P+4,4)}, {v(R.O,16)}")
        E(4); C(1); E(5); E(6); C(2); E(7)
        A(f"v_mfma_f32_32x32x8_bf16 {v(nxt,16)}, {v(R.K2,2)}, {v(R.Q2,2)}, {v(nxt,16)}")
        ko = ((t + 2) % 8) * 2560
        A(f"ds_read_b128 {v(R.K1,4)}, v{R.KA} offset:{ko}")
        A(f"ds_read_b32 v{R.K2}, v{R.K2A} offset:{ko}")
        E(8); C(3); E(9); E(10); C(4); E(11)
        A(f"v_mfma_f32_32x32x16_bf16 {v(R.O,16)}, {v(R.V1,4)}, {v(R.P,4)}, {v(R.O,16)}")
        A(f"s_mov_b64 exec, s[{sVMASK}:{sVMASK+1}]")
        A(f"ds_read_b128 {v(R.V2,4)}, v{R.VA} offset:{t*2560 + 640}")
        if t == 7: A(f"v_add_u32 v{R.VA}, s{sDELTA}, v{R.VA}")
        A(f"ds_read_b128 {v(R.V1,4)}, v{R.VA} offset:{((t+1)%8)*2560}")
        A("s_mov_b64 exec, -1")
        E(12); C(5); E(13); E(14); C(6); E(15)
        if t == 7:
            A(f"s_add_u32 s{sSLOT}, s{sSLOT}, s{sDELTA}")
            A(f"s_add_u32 s{sC}, s{sC}, 1")
            A(f"s_cmp_lt_u32 s{sC}, 8")
        else:
            A("s_nop 0")
        C(7)
    A("s_cbranch_scc1 L_attn_loop")
    A("s_waitcnt lgkmcnt(0)")
    A(f"v_mfma_f32_32x32x16_bf16 {v(R.O,16)}, {v(R.V2,4)}, {v(R.P+4,4)}, {v(R.O,16)}")
    stamp(A, cfg, 5, SWS, sWAVE, T+4, 40)
    A(f"v_mov_b32 v{T}, 0")
    for k in range(0, 10, 2): A(f"v_max3_f32 v{T}, v{T}, abs(v{R.O+k}), abs(v{R.O+k+1})")
    A(f"s_mov_b32 s{sT0}, {fhex(2.0**-40)}")
    A(f"s_mov_b32 s{sT1}, {fhex(2.0**64)}")
    A(f"s_mov_b32 s{sT2}, {fhex(2.0**127)}")
    A(f"v_cmp_le_f32 vcc, s{sT0}, v{R.O+10}")
    A(f"v_cmp_ge_f32 s[32:33], s{sT1}, v{R.O+10}")
    A(f"v_cmp_ge_f32 s[34:35], s{sT2}, v{T}")
    A(f"s_and_b64 vcc, vcc, s[32:33]")
    A(f"s_and_b64 vcc, vcc, s[34:35]")
    A(f"s_cmp_eq_u64 vcc, -1" if not cfg.get("force_slow") else "s_cmp_eq_u32 s2, -1")
    A("s_cbranch_scc0 L_attn_slow")
    A.label("L_attn_norm")
    A(f"v_rcp_f32 v{T}, v{R.O+10}")
    A(f"v_and_b32 v{T+1}, 15, v0")
    A(f"v_bfe_u32 v{T+2}, v0, 4, 1")
    A(f"v_lshrrev_b32 v{T+3}, 5, v0")
    A(f"v_lshlrev_b32 v{T+1}, 4, v{T+1}")
    A(f"v_mul_u32_u24 v{T+2}, {80*256}, v{T+2}")
    A(f"v_lshl_add_u32 v{T+1}, v{T+3}, 8, v{T+1}")
    A(f"v_add_u32 v{T+1}, v{T+1}, v{T+2}")
    A(f"s_mul_i32 s{sT0}, s{sQT}, {2*80*256}")
    A(f"s_lshr_b32 s{sT1}, s{sHEAD}, 3")
    A(f"s_mul_i32 s{sT1}, s{sT1}, {20*256}")
    A(f"s_add_u32 s{sT0}, s{sT0}, s{sT1}")
    A(f"s_add_u32 s{sT0}, s{sT0}, {hex(WS_O)}")
    A(f"s_and_b32 s{sT1}, s{sHEAD}, 7")
    A(f"s_lshl_b32 s{sT1}, s{sT1}, 9")
    A(f"s_add_u32 s{sT1}, s{sT1}, s{sT0}")
    A(f"s_bfe_u32 s{sT2}, s{sHEAD}, 0x10002")
    A(f"s_lshl_b32 s{sT2}, s{sT2}, 9")
    A(f"s_add_u32 s{sT0}, s{sT0}, s{sT2}")
    A(f"s_and_b32 s{sT2}, s{sHEAD}, 3")
    A(f"s_lshl_b32 s{sT2}, s{sT2}, 2")
    A(f"s_add_u32 s{sT0}, s{sT0}, s{sT2}")
    A(f"s_add_u32 s{sT0}, s{sT0}, {16*256}")
    for k in range(10): A(f"v_mul_f32 v{R.O+k}, v{T}, v{R.O+k}")
    for k in range(5): A(f"v_cvt_pk_bf16_f32 v{R.O+k}, v{R.O+2*k}, v{R.O+2*k+1}")
    A(f"buffer_store_dwordx4 {v(R.O,4)}, v{T+1}, s[{SWS}:{SWS+3}], s{sT1} offen")
    A(f"buffer_store_dword v{R.O+4}, v{T+1}, s[{SWS}:{SWS+3}], s{sT0} offen")
    stamp(A, cfg, 6, SWS, sWAVE, T+4, 40)
    A.label("L_attn_end")
    A("s_endpgm")

    A.label("L_attn_slow")
    A(f"v_subrev_u32 v{R.KA}, s{sSLOT}, v{R.KA}")
    A(f"v_subrev_u32 v{R.K2A}, s{sSLOT}, v{R.K2A}")
    A(f"s_mov_b64 exec, s[{sVMASK}:{sVMASK+1}]")
    A(f"v_subrev_u32 v{R.VA}, s{sSLOT}, v{R.VA}")
    A("s_mov_b64 exec, -1")
    A(f"v_mov_b32 v{R.Q2+1}, 0")
    A(f"v_mov_b32 v{T}, 0xff800000")
    A(f"s_mov_b32 s{sT0}, s{sKV}")
    A(f"s_add_u32 s{sT1}, s{sKV}, {HEAD_STRIDE}")
    A.label("L_attn_slow1")
    A(f"buffer_load_dwordx4 {v(R.K1,4)}, v{R.KA}, s[{SWS}:{SWS+3}], s{sT0} offen")
    A(f"buffer_load_dword v{R.K2}, v{R.K2A}, s[{SWS}:{SWS+3}], s{sT0} offen")
    A("s_waitcnt vmcnt(0)")
    A(f"v_mfma_f32_32x32x16_bf16 {v(S0,16)}, {v(R.K1,4)}, {v(R.Q1,4)}, 0")
    A(f"v_mfma_f32_32x32x8_bf16 {v(S0,16)}, {v(R.K2,2)}, {v(R.Q2,2)}, {v(S0,16)}")
    max16(A, T, S0, False)
    A(f"s_add_u32 s{sT0}, s{sT0}, 2560")
    A(f"s_cmp_lt_u32 s{sT0}, s{sT1}")
    A("s_cbranch_scc1 L_attn_slow1")
    xhalf_max(A, T, T+1)
    set_shift(A, R, T)
    for k in range(16): A(f"v_mov_b32 v{R.O+k}, 0")
    A(f"s_mov_b32 s{sT0}, s{sKV}")
    A.label("L_attn_slow2")
    A(f"buffer_load_dwordx4 {v(R.K1,4)}, v{R.KA}, s[{SWS}:{SWS+3}], s{sT0} offen")
    A(f"buffer_load_dword v{R.K2}, v{R.K2A}, s[{SWS}:{SWS+3}], s{sT0} offen")
    A(f"s_mov_b64 exec, s[{sVMASK}:{sVMASK+1}]")
    A(f"buffer_load_dwordx4 {v(R.V1,4)}, v{R.VA}, s[{SWS}:{SWS+3}], s{sT0} offen")
    A(f"buffer_load_dwordx4 {v(R.V2,4)}, v{R.VA}, s[{SWS}:{SWS+3}], s{sT0} offen offset:640")
    A("s_mov_b64 exec, -1")
    A("s_waitcnt vmcnt(0)")
    A(f"v_mfma_f32_32x32x16_bf16 {v(S0,16)}, {v(R.K1,4)}, {v(R.Q1,4)}, 0")
    A(f"v_mfma_f32_32x32x8_bf16 {v(S0,16)}, {v(R.K2,2)}, {v(R.Q2,2)}, {v(S0,16)}")
    for k in range(16): A(f"v_exp_f32 v{S0+k}, v{S0+k}")
    for k in range(8): A(f"v_cvt_pk_bf16_f32 v{R.P+k}, v{S0+2*k}, v{S0+2*k+1}")
    A(f"v_mfma_f32_32x32x16_bf16 {v(R.O,16)}, {v(R.V1,4)}, {v(R.P,4)}, {v(R.O,16)}")
    A(f"v_mfma_f32_32x32x16_bf16 {v(R.O,16)}, {v(R.V2,4)}, {v(R.P+4,4)}, {v(R.O,16)}")
    A(f"s_add_u32 s{sT0}, s{sT0}, 2560")
    A(f"s_cmp_lt_u32 s{sT0}, s{sT1}")
    A("s_nop 7")
    A("s_cbranch_scc1 L_attn_slow2")
    A("s_nop 7")
    A("s_branch L_attn_norm")
    return dict(name=name, grid=256, block=512, lds=61440, desc=kernel_desc(name, 96, 96))
```

```python
from common import *

def wg_decode(A, sG, sM, sWAVE, vt):
    A(f"v_lshrrev_b32 v{vt}, 6, v0")
    A(f"v_and_b32 v0, 63, v0")
    A(f"v_readfirstlane_b32 s{sWAVE}, v{vt}")
    A(f"s_and_b32 s{sG}, s2, 7")
    A(f"s_lshr_b32 s{sM}, s2, 3")

def voff_rows160(A, dst, t):
    for jj in range(5):
        A(f"v_add_u32 v{t}, {64*jj}, v0")
        A(f"v_mul_u32_u24 v{t+1}, 6554, v{t}")
        A(f"v_lshrrev_b32 v{t+1}, 16, v{t+1}")
        A(f"v_mul_u32_u24 v{dst+jj}, {1280-160}, v{t+1}")
        A(f"v_lshl_add_u32 v{dst+jj}, v{t}, 4, v{dst+jj}")

def final_reduce(A, cfg, P, isdown, R):
    sWAVE, sT0, sT1, sT2, sTOK16, sFG, SWS = R["sWAVE"], R["sT0"], R["sT1"], R["sT2"], R["sTOK16"], R["sFG"], R["SWS"]
    L16, T, D, RES = R["L16"], R["T"], R["D"], R["RES"]
    A(f"s_lshr_b32 s{sT0}, s{sWAVE}, 1")
    A(f"s_mul_i32 s{sT0}, s{sT0}, 5120")
    A(f"v_add_u32 v{T+1}, s{sT0}, v{L16}")
    A(f"s_and_b32 s{sT1}, s{sWAVE}, 1")
    A(f"s_lshl_b32 s{sT1}, s{sT1}, 11")
    A(f"v_add_u32 v{T}, s{sT1}, v{T+1}")
    A(f"v_add_u32 v{T+2}, {3*20480}, v{T}")
    A(f"v_add_u32 v{T+3}, {3*20480}, v{T+1}")
    A(f"v_add_u32 v{T+4}, {6*20480}, v{T}")
    A(f"v_add_u32 v{T+5}, {6*20480}, v{T+1}")
    A("s_waitcnt lgkmcnt(0)")
    A("s_barrier")
    for p in range(P):
        for e in range(2):
            A(f"ds_read_b128 {v(D+12*p+4*e,4)}, v{T+2*(p//3)} offset:{(p%3)*20480 + e*1024}")
        A(f"ds_read_b128 {v(D+12*p+8,4)}, v{T+1+2*(p//3)} offset:{(p%3)*20480 + 4096}")
    for p in range(1, P):
        A(f"s_waitcnt lgkmcnt({min(15, 3*(P-1-p))})")
        for i in range(12): A(f"v_add_f32 v{D+i}, v{D+i}, v{D+12*p+i}")
    A("s_waitcnt vmcnt(0)")
    for i in range(6):
        A(f"v_lshlrev_b32 v{T}, 16, v{RES+i}")
        A(f"v_and_b32 v{T+1}, 0xffff0000, v{RES+i}")
        A(f"v_add_f32 v{D+2*i}, v{D+2*i}, v{T}")
        A(f"v_add_f32 v{D+2*i+1}, v{D+2*i+1}, v{T+1}")
    for i in range(6): A(f"v_cvt_pk_bf16_f32 v{D+i}, v{D+2*i}, v{D+2*i+1}")

def addr_rowmajor(A, R, vp, vs):
    sWAVE, sT0, sT1, sT2, sTOK16, sFG, T = R["sWAVE"], R["sT0"], R["sT1"], R["sT2"], R["sTOK16"], R["sFG"], R["T"]
    A(f"v_and_b32 v{T}, 15, v0")
    A(f"v_lshrrev_b32 v{T+1}, 4, v0")
    A(f"v_mul_u32_u24 v{T}, 1280, v{T}")
    A(f"v_lshl_add_u32 v{vp}, v{T+1}, 4, v{T}")
    A(f"v_lshl_add_u32 v{vs}, v{T+1}, 3, v{T}")
    A(f"v_add_u32 v{vs}, 128, v{vs}")
    A(f"s_and_b32 s{sT0}, s{sWAVE}, 1")
    A(f"s_lshl_b32 s{sT0}, s{sT0}, 6")
    A(f"v_add_u32 v{vp}, s{sT0}, v{vp}")
    A(f"s_lshr_b32 s{sT0}, s{sWAVE}, 1")
    A(f"s_add_u32 s{sT0}, s{sT0}, s{sTOK16}")
    A(f"s_mul_i32 s{sT0}, s{sT0}, {16*1280}")
    A(f"s_mul_i32 s{sT1}, s{sFG}, 160")
    A(f"s_add_u32 s{sT0}, s{sT0}, s{sT1}")
    A(f"v_add_u32 v{vp}, s{sT0}, v{vp}")
    A(f"v_add_u32 v{vs}, s{sT0}, v{vs}")

def addr_H(A, R, vp, vs):
    sWAVE, sT0, sT1, sTOK16, sFG, T, L16 = R["sWAVE"], R["sT0"], R["sT1"], R["sTOK16"], R["sFG"], R["T"], R["L16"]
    A(f"s_lshr_b32 s{sT0}, s{sWAVE}, 1")
    A(f"s_add_u32 s{sT0}, s{sT0}, s{sTOK16}")
    A(f"s_mul_i32 s{sT0}, s{sT0}, {80*256}")
    A(f"s_mul_i32 s{sT1}, s{sFG}, 2560")
    A(f"s_add_u32 s{sT0}, s{sT0}, s{sT1}")
    A(f"s_add_u32 s{sT0}, s{sT0}, {hex(WS_H)}")
    A(f"v_and_b32 v{T}, 15, v0")
    A(f"v_lshlrev_b32 v{T}, 4, v{T}")
    A(f"v_lshrrev_b32 v{T+1}, 5, v0")
    A(f"v_lshl_add_u32 v{T}, v{T+1}, 8, v{T}")
    A(f"v_bfe_u32 v{T+1}, v0, 4, 1")
    A(f"v_lshl_add_u32 v{T}, v{T+1}, 3, v{T}")
    A(f"v_add_u32 v{T}, 2048, v{T}")
    A(f"v_add_u32 v{vs}, s{sT0}, v{T}")
    A(f"s_and_b32 s{sT1}, s{sWAVE}, 1")
    A(f"s_lshl_b32 s{sT1}, s{sT1}, 10")
    A(f"s_add_u32 s{sT0}, s{sT0}, s{sT1}")
    A(f"v_add_u32 v{vp}, s{sT0}, v{L16}")

def tile_col_imm(f):
    return (64 * (f // 2) + 8 * (f % 2)) if f < 4 else 128

def gen_wo(A, cfg):
    name = "wo_kernel"
    kstart(A, name)
    SX, SW, SWS = 4, 8, 12
    sWAVE, sG, sM, sFG, sTOK16, sT0, sT1, sT2, sKQ, sTH, sSRC, sM0 = 16, 17, 18, 19, 20, 21, 22, 23, 24, 25, 26, 27
    L16, VO, TRA, T = 1, 2, 8, 12
    vXP, vXS, vHP, vHS = 20, 21, 22, 23
    RES = 24
    AFR, BF, ACC = 32, 132, 172
    R = dict(sWAVE=sWAVE, sT0=sT0, sT1=sT1, sT2=sT2, sTOK16=sTOK16, sFG=sFG, SWS=SWS, L16=L16, T=T, D=AFR, RES=RES)
    A("s_cmp_ge_u32 s2, 256")
    A("s_cbranch_scc1 L_wo_end")
    A("s_load_dwordx2 s[4:5], s[0:1], 0")
    A("s_load_dwordx2 s[8:9], s[0:1], 16")
    A("s_load_dwordx2 s[12:13], s[0:1], 72")
    wg_decode(A, sG, sM, sWAVE, T)
    A(f"s_lshr_b32 s{sFG}, s{sM}, 2")
    A(f"s_and_b32 s{sT0}, s{sM}, 3")
    A(f"s_lshl_b32 s{sTOK16}, s{sG}, 4")
    A(f"s_lshl_b32 s{sT0}, s{sT0}, 2")
    A(f"s_add_u32 s{sTOK16}, s{sTOK16}, s{sT0}")
    A(f"s_and_b32 s{sKQ}, s{sWAVE}, 3")
    A(f"s_lshr_b32 s{sTH}, s{sWAVE}, 2")
    A(f"v_lshlrev_b32 v{L16}, 4, v0")
    voff_rows160(A, VO, T)
    A(f"s_mul_i32 s{sSRC}, s{sKQ}, {160*1280}")
    A(f"s_mul_i32 s{sT0}, s{sFG}, 160")
    A(f"s_add_u32 s{sSRC}, s{sSRC}, s{sT0}")
    A(f"s_mul_i32 s{sM0}, s{sKQ}, 25600")
    A("s_waitcnt lgkmcnt(0)")
    srd(A, SX, SX, X_BYTES); srd(A, SW, SW, 640 * 640 * 2); srd(A, SWS, SWS, WS_SIZE)
    stamp(A, cfg, 7, SWS, sWAVE, T, 40)
    A(f"s_mul_i32 s{sT1}, s{sTH}, {3*32*1280}")
    A(f"s_add_u32 s{sT1}, s{sT1}, s{sSRC}")
    A(f"s_mul_i32 s{sT2}, s{sTH}, {3*5120}")
    A(f"s_add_u32 s{sT2}, s{sT2}, s{sM0}")
    for b in range(2):
        for jj in range(5):
            A(f"s_add_u32 m0, s{sT2}, {b*5120 + jj*1024}")
            A(f"s_add_u32 s{sT0}, s{sT1}, {b*32*1280}")
            A(f"buffer_load_dwordx4 v{VO+jj}, s[{SW}:{SW+3}], s{sT0} offen lds")
    A(f"s_add_u32 s{sT0}, s{sSRC}, {2*32*1280}")
    A(f"s_cmp_eq_u32 s{sTH}, 0")
    A("s_cbranch_scc0 L_wo_b2")
    for jj in range(3):
        A(f"s_add_u32 m0, s{sM0}, {2*5120 + jj*1024}")
        A(f"buffer_load_dwordx4 v{VO+jj}, s[{SW}:{SW+3}], s{sT0} offen lds")
    A("s_branch L_wo_b3")
    A.label("L_wo_b2")
    for jj in range(3, 5):
        A(f"s_add_u32 m0, s{sM0}, {2*5120 + jj*1024}")
        A(f"buffer_load_dwordx4 v{VO+jj}, s[{SW}:{SW+3}], s{sT0} offen lds")
    A.label("L_wo_b3")
    A(f"s_lshl_b32 s{sT0}, s{sTH}, 1")
    A(f"s_add_u32 s{sT0}, s{sT0}, s{sTOK16}")
    A(f"s_mul_i32 s{sT0}, s{sT0}, {80*256}")
    A(f"s_mul_i32 s{sT1}, s{sKQ}, {20*256}")
    A(f"s_add_u32 s{sT0}, s{sT0}, s{sT1}")
    A(f"s_add_u32 s{sT0}, s{sT0}, {hex(WS_O)}")
    for i in range(2):
        for st in range(5):
            A(f"s_add_u32 s{sT1}, s{sT0}, {i*80*256 + st*1024}")
            A(f"buffer_load_dwordx4 {v(BF+20*i+4*st,4)}, v{L16}, s[{SWS}:{SWS+3}], s{sT1} offen sc1")
    addr_rowmajor(A, R, vXP, vXS)
    A(f"buffer_load_dwordx4 {v(RES,4)}, v{vXP}, s[{SX}:{SX+3}], 0 offen")
    A(f"buffer_load_dwordx2 {v(RES+4,2)}, v{vXS}, s[{SX}:{SX+3}], 0 offen")
    addr_H(A, R, vHP, vHS)
    g4h, g4l, rho, cc = T, T+1, T+2, T+3
    A(f"v_lshrrev_b32 v{g4h}, 5, v0")
    A(f"v_bfe_u32 v{g4l}, v0, 4, 1")
    A(f"v_bfe_u32 v{rho}, v0, 2, 2")
    A(f"v_and_b32 v{cc}, 3, v0")
    A(f"v_mul_u32_u24 v{T+4}, 20, v{g4h}")
    A(f"v_lshl_add_u32 v{T+4}, v{g4l}, 3, v{T+4}")
    A(f"v_add_u32 v{T+4}, v{T+4}, v{rho}")
    A(f"v_mul_u32_u24 v{T+4}, 160, v{T+4}")
    A(f"v_add_u32 v{T+4}, s{sM0}, v{T+4}")
    A(f"v_lshl_add_u32 v{TRA}, v{cc}, 4, v{T+4}")
    A(f"v_lshl_add_u32 v{TRA+1}, v{cc}, 3, v{T+4}")
    A(f"v_mul_u32_u24 v{T+4}, 80, v{g4h}")
    A(f"v_lshrrev_b32 v{T+5}, 1, v{rho}")
    A(f"v_mul_u32_u24 v{T+5}, 20, v{T+5}")
    A(f"v_add_u32 v{T+4}, v{T+4}, v{T+5}")
    A(f"v_lshl_add_u32 v{T+4}, v{g4l}, 1, v{T+4}")
    A(f"v_and_b32 v{T+5}, 1, v{rho}")
    A(f"v_add3_u32 v{T+4}, v{T+4}, v{T+5}, 16")
    A(f"v_mul_u32_u24 v{T+4}, 160, v{T+4}")
    A(f"v_add_u32 v{T+4}, s{sM0}, v{T+4}")
    A(f"v_lshl_add_u32 v{TRA+2}, v{cc}, 4, v{T+4}")
    A(f"v_lshl_add_u32 v{TRA+3}, v{cc}, 3, v{T+4}")
    A("s_waitcnt vmcnt(12)")
    A("s_barrier")
    for st in range(5):
        for f in range(5):
            for u in range(2):
                adr = TRA + (2 if st == 4 else 0) + (1 if f == 4 else 0)
                off = ((40 * u) if st == 4 else (40 * st + 4 * u)) * 160 + tile_col_imm(f)
                A(f"ds_read_b64_tr_b16 {v(AFR+20*st+4*f+2*u,2)}, v{adr} offset:{off}")
    A("s_waitcnt lgkmcnt(0)")
    A("s_barrier")
    A(f"s_lshl_b32 s{sT0}, s{sKQ}, 1")
    A(f"s_add_u32 s{sT0}, s{sT0}, s{sTH}")
    A(f"s_mul_i32 s{sT0}, s{sT0}, 10240")
    A(f"v_add_u32 v{T+6}, s{sT0}, v{L16}")
    for i in range(2):
        for st in range(5):
            A(f"s_waitcnt vmcnt({2 + 9 - (5*i+st)})")
            for f in range(5):
                acc = v(ACC + 20 * i + 4 * f, 4)
                A(f"v_mfma_f32_16x16x32_bf16 {acc}, {v(AFR+20*st+4*f,4)}, {v(BF+20*i+4*st,4)}, {acc if st else 0}")
            if i == 1:
                A(f"ds_write_b128 v{T+6}, {v(ACC+4*st,4)} offset:{st*1024}")
    for f in range(5):
        A(f"ds_write_b128 v{T+6}, {v(ACC+20+4*f,4)} offset:{5120 + f*1024}")
    stamp(A, cfg, 8, SWS, sWAVE, T, 40)
    final_reduce(A, cfg, 4, False, R)
    D = AFR
    A(f"buffer_store_dwordx4 {v(D,4)}, v{vHP}, s[{SWS}:{SWS+3}], 0 offen")
    A(f"s_and_b32 s{sT1}, s{sWAVE}, 1")
    A(f"s_cmp_eq_u32 s{sT1}, 0")
    A("s_cbranch_scc1 L_wo_s0")
    A(f"v_mov_b32 v{D+4}, 0")
    A(f"v_mov_b32 v{D+5}, 0")
    A("s_branch L_wo_s1")
    A.label("L_wo_s0")
    A(f"buffer_store_dwordx2 {v(D+4,2)}, v{vHS}, s[{SWS}:{SWS+3}], 0 offen")
    A.label("L_wo_s1")
    sm, sq = D + 8, D + 9
    A(f"v_mov_b32 v{T+2}, 0x3f803f80")
    A(f"v_mov_b32 v{sm}, 0")
    A(f"v_mov_b32 v{sq}, 0")
    for i in range(6):
        A(f"v_dot2_f32_bf16 v{sm}, v{D+i}, v{T+2}, v{sm}")
        A(f"v_dot2_f32_bf16 v{sq}, v{D+i}, v{D+i}, v{sq}")
    for op in ("v_permlane16_swap_b32", "v_permlane32_swap_b32"):
        for r in (sm, sq):
            A(f"v_mov_b32 v{T}, v{r}")
            A(f"{op} v{r}, v{T}")
            A(f"v_add_f32 v{r}, v{r}, v{T}")
    A(f"s_lshr_b32 s{sT0}, s{sWAVE}, 1")
    A(f"s_add_u32 s{sT0}, s{sT0}, s{sTOK16}")
    A(f"s_lshl_b32 s{sT0}, s{sT0}, 11")
    A(f"s_lshl_b32 s{sT2}, s{sFG}, 1")
    A(f"s_add_u32 s{sT2}, s{sT2}, s{sT1}")
    A(f"s_lshl_b32 s{sT2}, s{sT2}, 3")
    A(f"s_add_u32 s{sT0}, s{sT0}, s{sT2}")
    A(f"s_add_u32 s{sT0}, s{sT0}, {hex(WS_ST2)}")
    A(f"v_lshlrev_b32 v{T}, 7, v0")
    A("s_mov_b64 exec, 0xffff")
    A(f"buffer_store_dwordx2 {v(sm,2)}, v{T}, s[{SWS}:{SWS+3}], s{sT0} offen")
    A("s_mov_b64 exec, -1")
    stamp(A, cfg, 9, SWS, sWAVE, T+4, 40)
    A.label("L_wo_end")
    A("s_endpgm")
    return dict(name=name, grid=256, block=512, lds=102400, desc=kernel_desc(name, 216, 216))

def gen_down(A, cfg):
    name = "down_kernel"
    kstart(A, name)
    SO, SW, SWS = 4, 8, 12
    sWAVE, sG, sM, sFG, sTOK16, sT0, sT1, sT2, sSRC, sM0, sB = 16, 17, 18, 19, 20, 21, 22, 23, 26, 27, 28
    L16, VO, TRA, T = 1, 2, 8, 10
    vXP, vXS = 2, 3
    RES = 18
    BF, ACC = 24, 96
    R = dict(sWAVE=sWAVE, sT0=sT0, sT1=sT1, sT2=sT2, sTOK16=sTOK16, sFG=sFG, SWS=SWS, L16=L16, T=T, D=BF, RES=RES)
    A("s_cmp_ge_u32 s2, 256")
    A("s_cbranch_scc1 L_dn_end")
    A("s_load_dwordx2 s[4:5], s[0:1], 56")
    A("s_load_dwordx2 s[8:9], s[0:1], 48")
    A("s_load_dwordx2 s[12:13], s[0:1], 72")
    wg_decode(A, sG, sM, sWAVE, T)
    A(f"s_lshr_b32 s{sFG}, s{sM}, 2")
    A(f"s_and_b32 s{sT0}, s{sM}, 3")
    A(f"s_lshl_b32 s{sTOK16}, s{sG}, 4")
    A(f"s_lshl_b32 s{sT0}, s{sT0}, 2")
    A(f"s_add_u32 s{sTOK16}, s{sTOK16}, s{sT0}")
    A(f"v_lshlrev_b32 v{L16}, 4, v0")
    voff_rows160(A, VO, T)
    A(f"s_mul_i32 s{sSRC}, s{sWAVE}, {192*1280}")
    A(f"s_mul_i32 s{sT0}, s{sFG}, 160")
    A(f"s_add_u32 s{sSRC}, s{sSRC}, s{sT0}")
    A(f"s_mul_i32 s{sM0}, s{sWAVE}, 15360")
    A("s_waitcnt lgkmcnt(0)")
    srd(A, SO, SO, X_BYTES); srd(A, SW, SW, 1536 * 640 * 2); srd(A, SWS, SWS, WS_SIZE)
    stamp(A, cfg, 13, SWS, sWAVE, T, 40)
    def stage(rnd):
        for b in range(3):
            A(f"s_add_u32 s{sT0}, s{sSRC}, {(rnd*3+b)*32*1280}")
            for jj in range(5):
                A(f"s_add_u32 m0, s{sM0}, {b*5120 + jj*1024}")
                A(f"buffer_load_dwordx4 v{VO+jj}, s[{SW}:{SW+3}], s{sT0} offen lds")
    def trread(rnd):
        for b in range(3):
            for f in range(5):
                for u in range(2):
                    A(f"ds_read_b64_tr_b16 {a(20*(3*rnd+b)+4*f+2*u,2)}, v{TRA+(f==4)} offset:{(32*b+4*u)*160 + tile_col_imm(f)}")
    stage(0)
    A(f"v_lshrrev_b32 v{T}, 4, v0")
    A(f"v_bfe_u32 v{T+1}, v0, 2, 2")
    A(f"v_lshl_add_u32 v{T}, v{T}, 3, v{T+1}")
    A(f"v_mul_u32_u24 v{T}, 160, v{T}")
    A(f"v_add_u32 v{T}, s{sM0}, v{T}")
    A(f"v_and_b32 v{T+1}, 3, v0")
    A(f"v_lshl_add_u32 v{TRA}, v{T+1}, 4, v{T}")
    A(f"v_lshl_add_u32 v{TRA+1}, v{T+1}, 3, v{T}")
    A("s_waitcnt vmcnt(0)")
    trread(0)
    A("s_waitcnt lgkmcnt(0)")
    stage(1)
    A(f"s_mul_i32 s{sB}, s{sTOK16}, {192*256}")
    A(f"s_mul_i32 s{sT0}, s{sWAVE}, {24*256}")
    A(f"s_add_u32 s{sB}, s{sB}, s{sT0}")
    A(f"s_add_u32 s{sB}, s{sB}, {hex(WS_HID)}")
    def loadB(tt):
        for st in range(6):
            A(f"s_add_u32 s{sT1}, s{sB}, {tt*192*256 + st*1024}")
            A(f"buffer_load_dwordx4 {v(BF+24*(tt%3)+4*st,4)}, v{L16}, s[{SWS}:{SWS+3}], s{sT1} offen sc1")
    for tt in range(3): loadB(tt)
    A("s_waitcnt vmcnt(18)")
    trread(1)
    addr_H(A, R, vXP, vXS)
    A("s_waitcnt lgkmcnt(0)")
    A("s_barrier")
    stamp(A, cfg, 14, SWS, sWAVE, T, 40)
    A(f"s_mul_i32 s{sT0}, s{sWAVE}, 20480")
    A(f"v_add_u32 v{T+6}, s{sT0}, v{L16}")
    ex = 1 if cfg.get("stamps") else 0
    for tt in range(4):
        for st in range(6):
            if tt == 0: n = 17 - st
            else: n = 2 + 23 - (6 * tt + st)
            A(f"s_waitcnt vmcnt({n})")
            for f in range(5):
                acc = v(ACC + 20 * (tt % 2) + 4 * f, 4)
                A(f"v_mfma_f32_16x16x32_bf16 {acc}, {a(20*st+4*f,4)}, {v(BF+24*(tt%3)+4*st,4)}, {acc if st else 0}")
            if tt > 0 and st < 5:
                A(f"ds_write_b128 v{T+6}, {v(ACC+20*((tt-1)%2)+4*st,4)} offset:{(tt-1)*5120 + st*1024}")
        if tt == 0:
            loadB(3)
            A(f"buffer_load_dwordx4 {v(RES,4)}, v{vXP}, s[{SWS}:{SWS+3}], 0 offen sc1")
            A(f"buffer_load_dwordx2 {v(RES+4,2)}, v{vXS}, s[{SWS}:{SWS+3}], 0 offen sc1")
    for f in range(5):
        A(f"ds_write_b128 v{T+6}, {v(ACC+20+4*f,4)} offset:{3*5120 + f*1024}")
    addr_rowmajor(A, R, vXP, vXS)
    stamp(A, cfg, 15, SWS, sWAVE, T, 40)
    final_reduce(A, cfg, 8, True, R)
    D = BF
    A(f"buffer_store_dwordx4 {v(D,4)}, v{vXP}, s[{SO}:{SO+3}], 0 offen")
    A(f"s_and_b32 s{sT1}, s{sWAVE}, 1")
    A(f"s_cmp_eq_u32 s{sT1}, 0")
    A("s_cbranch_scc0 L_dn_s1")
    A(f"buffer_store_dwordx2 {v(D+4,2)}, v{vXS}, s[{SO}:{SO+3}], 0 offen")
    A.label("L_dn_s1")
    stamp(A, cfg, 16, SWS, sWAVE, T, 40)
    A.label("L_dn_end")
    A("s_endpgm")
    return dict(name=name, grid=256, block=512, lds=163840, desc=kernel_desc(name, 256, 136))

GU_SLOT = 24608
GU_UP = 12288 + 32
GU_MISC = 6 * GU_SLOT

def gen_gu(A, cfg):
    name = "gu_kernel"
    kstart(A, name)
    SG_, SU, SWS = 4, 8, 12
    sWAVE, sG, sM, sJ, sTOK16, sT0, sT1, sT2, sSRC, sM0, sB = 16, 17, 18, 19, 20, 21, 22, 23, 26, 27, 28
    VO, TRA, VB, T = 2, 5, 6, 8
    A("s_cmp_ge_u32 s2, 256")
    A("s_cbranch_scc1 L_gu_end")
    A("s_load_dwordx4 s[4:7], s[0:1], 32")
    A("s_load_dwordx2 s[12:13], s[0:1], 72")
    wg_decode(A, sG, sM, sWAVE, T)
    A(f"s_lshr_b32 s{sJ}, s{sM}, 2")
    A(f"s_lshl_b32 s{sJ}, s{sJ}, 1")
    A(f"s_and_b32 s{sT0}, s{sM}, 1")
    A(f"s_add_u32 s{sJ}, s{sJ}, s{sT0}")
    A(f"s_bfe_u32 s{sT0}, s{sM}, 0x10001")
    A(f"s_lshl_b32 s{sT0}, s{sT0}, 3")
    A(f"s_lshl_b32 s{sTOK16}, s{sG}, 4")
    A(f"s_add_u32 s{sTOK16}, s{sTOK16}, s{sT0}")
    G1, Gh, rho, c0, c1 = T, T+1, T+2, T+3, T+4
    A(f"v_bfe_u32 v{G1}, v0, 4, 1")
    A(f"v_lshrrev_b32 v{Gh}, 5, v0")
    A(f"v_bfe_u32 v{rho}, v0, 2, 2")
    A(f"v_and_b32 v{c0}, 1, v0")
    A(f"v_bfe_u32 v{c1}, v0, 1, 1")
    A(f"v_lshl_add_u32 v{TRA}, v{Gh}, 3, v{rho}")
    A(f"v_mul_u32_u24 v{TRA}, 192, v{TRA}")
    A(f"v_mul_u32_u24 v{c1}, {GU_UP}, v{c1}")
    A(f"v_add_u32 v{TRA}, v{TRA}, v{c1}")
    A(f"v_lshl_add_u32 v{TRA}, v{c0}, 4, v{TRA}")
    A(f"v_lshl_add_u32 v{TRA}, v{G1}, 3, v{TRA}")
    A("s_waitcnt lgkmcnt(0)")
    A("s_mov_b32 s8, s6")
    A("s_mov_b32 s9, s7")
    srd(A, SG_, SG_, 640 * 1536 * 2); srd(A, SU, SU, 640 * 1536 * 2); srd(A, SWS, SWS, WS_SIZE)
    stamp(A, cfg, 10, SWS, sWAVE, 204, 40)
    A(f"s_cmp_ge_u32 s{sWAVE}, 4")
    A("s_cbranch_scc1 L_gu_loader")

    ACC, AF, BF, ST = 16, 112, 160, 192
    NB = 8
    A(f"s_lshl_b32 s{sT0}, s{sWAVE}, 1")
    A(f"s_add_u32 s{sTOK16}, s{sTOK16}, s{sT0}")
    A(f"s_mul_i32 s{sB}, s{sTOK16}, {80*256}")
    A(f"s_add_u32 s{sB}, s{sB}, {hex(WS_H)}")
    A(f"v_and_b32 v{VB}, 15, v0")
    A(f"v_lshlrev_b32 v{VB}, 4, v{VB}")
    A(f"v_lshl_add_u32 v{VB}, v{Gh}, 8, v{VB}")
    A(f"v_mul_u32_u24 v{VB+1}, {192*256}, v{G1}")
    A(f"v_add_u32 v{VB+1}, v{VB+1}, v{VB}")
    A(f"v_mul_u32_u24 v{T+5}, {80*256}, v{G1}")
    A(f"v_add_u32 v{VB}, v{VB}, v{T+5}")
    A(f"v_and_b32 v{T+5}, 31, v0")
    A(f"v_lshlrev_b32 v{T+5}, 7, v{T+5}")
    A(f"v_lshl_add_u32 v{T+5}, v{Gh}, 6, v{T+5}")
    A(f"s_lshl_b32 s{sT0}, s{sTOK16}, 11")
    A(f"s_add_u32 s{sT0}, s{sT0}, {hex(WS_ST2)}")
    for i in range(4):
        A(f"buffer_load_dwordx4 {v(ST+4*i,4)}, v{T+5}, s[{SWS}:{SWS+3}], s{sT0} offen offset:{16*i} sc1")
    def loadB(st):
        if st % 8 == 0 and st: A(f"s_add_u32 s{sB}, s{sB}, 4096")
        A(f"buffer_load_dwordx4 {v(BF+4*(st%NB),4)}, v{VB}, s[{SWS}:{SWS+3}], s{sB} offen offset:{(st%8)*512} sc1")
    for st in range(NB): loadB(st)
    def trread(st, t0, t1):
        c, sl = divmod(st, 4)
        for t in range(t0, t1):
            for u in range(2):
                A(f"ds_read_b64_tr_b16 {v(AF+24*(st%2)+4*t+2*u,2)}, v{TRA} offset:{(16*sl+4*u)*192 + 32*t}")
    A("s_barrier")
    trread(0, 0, 6)
    for st in range(40):
        c, sl = divmod(st, 4)
        nxt = st + 1 < 40
        if sl == 3 and nxt:
            A("s_barrier")
            d = GU_SLOT if (c + 1) % 6 else -5 * GU_SLOT
            A(f"v_add_u32 v{TRA}, {d & 0xffffffff}, v{TRA}")
        A("s_waitcnt lgkmcnt(0)")
        A(f"s_waitcnt vmcnt({min(NB-1, 39-st)})")
        for t in range(6):
            acc = v(ACC + 16 * t, 16)
            A(f"v_mfma_f32_32x32x16_bf16 {acc}, {v(AF+24*(st%2)+4*t,4)}, {v(BF+4*(st%NB),4)}, {acc if st else 0}")
            if nxt: trread(st + 1, t, t + 1)
        if st + NB < 40: loadB(st + NB)
    stamp(A, cfg, 11, SWS, sWAVE, 2, 40)
    mean, rstd = T, T + 1
    for i in range(1, 8):
        A(f"v_add_f32 v{ST}, v{ST}, v{ST+2*i}")
        A(f"v_add_f32 v{ST+1}, v{ST+1}, v{ST+2*i+1}")
    for r in (ST, ST + 1):
        A(f"v_mov_b32 v{ST+2}, v{r}")
        A(f"v_permlane32_swap_b32 v{r}, v{ST+2}")
        A(f"v_add_f32 v{r}, v{r}, v{ST+2}")
    A(f"v_mul_f32 v{mean}, {fhex(1/640)}, v{ST}")
    A(f"v_mul_f32 v{rstd}, {fhex(1/640)}, v{ST+1}")
    A(f"v_fma_f32 v{rstd}, -v{mean}, v{mean}, v{rstd}")
    A(f"v_max_f32 v{rstd}, 0, v{rstd}")
    A(f"v_add_f32 v{rstd}, {fhex(1e-5)}, v{rstd}")
    A(f"v_rcp_f32 v{rstd}, v{rstd}")
    MB = BF
    A(f"v_cvt_pk_bf16_f32 v{MB}, -v{mean}, -v{mean}")
    A(f"v_and_b32 v{T+2}, 0xffff0000, v{MB}")
    A(f"v_sub_f32 v{T+2}, -v{mean}, v{T+2}")
    A(f"v_cvt_pk_bf16_f32 v{MB+1}, v{T+2}, 0")
    A(f"v_cmp_gt_u32 vcc, 32, v0")
    A(f"v_cndmask_b32 v{MB}, 0, v{MB}, vcc")
    A(f"v_cndmask_b32 v{MB+1}, 0, v{MB+1}, vcc")
    A(f"v_and_b32 v{T+2}, 31, v0")
    A(f"v_lshlrev_b32 v{T+2}, 4, v{T+2}")
    A(f"v_add_u32 v{T+2}, {GU_MISC}, v{T+2}")
    A("s_barrier")
    for t in range(6): A(f"ds_read_b128 {v(AF+4*t,4)}, v{T+2} offset:{512*t}")
    A(f"s_mul_i32 s{sB}, s{sTOK16}, {192*256}")
    A(f"s_mul_i32 s{sT0}, s{sJ}, {12*256}")
    A(f"s_add_u32 s{sB}, s{sB}, s{sT0}")
    A(f"s_add_u32 s{sB}, s{sB}, {hex(WS_HID)}")
    A("s_waitcnt lgkmcnt(0)")
    for t in range(6):
        cs = AF + 4 * t
        A(f"v_add_f32 v{cs}, v{cs}, v{cs+1}")
        A(f"v_add_f32 v{cs+2}, v{cs+2}, v{cs+3}")
        A(f"v_add_f32 v{cs}, v{cs}, v{cs+2}")
        A(f"v_cvt_pk_bf16_f32 v{cs+1}, v{cs}, v{cs}")
        A(f"v_and_b32 v{cs+1}, 0xffff0000, v{cs+1}")
        A(f"v_sub_f32 v{cs}, v{cs}, v{cs+1}")
        A(f"v_cvt_pk_bf16_f32 v{cs+2}, v{cs+1}, v{cs}")
        A(f"v_lshrrev_b32 v{cs+3}, 16, v{cs+1}")
        A(f"v_mfma_f32_32x32x8_bf16 {v(ACC+16*t,16)}, {v(cs+2,2)}, {v(MB,2)}, {v(ACC+16*t,16)}")
    for t in range(6):
        r = ACC + 16 * t
        for q in range(2):
            for b in range(4):
                A(f"v_max_f32 v{r+8*q+b}, 0, v{r+8*q+b}")
                A(f"v_mul_f32 v{r+8*q+4+b}, v{rstd}, v{r+8*q+4+b}")
            for b in range(4):
                A(f"v_mul_f32 v{r+8*q+b}, v{r+8*q+b}, v{r+8*q+4+b}")
        A(f"v_cvt_pk_bf16_f32 v{r}, v{r}, v{r+1}")
        A(f"v_cvt_pk_bf16_f32 v{r+1}, v{r+2}, v{r+3}")
        A(f"v_cvt_pk_bf16_f32 v{r+2}, v{r+8}, v{r+9}")
        A(f"v_cvt_pk_bf16_f32 v{r+3}, v{r+10}, v{r+11}")
        A(f"buffer_store_dwordx4 {v(r,4)}, v{VB+1}, s[{SWS}:{SWS+3}], s{sB} offen offset:{512*t}")
    stamp(A, cfg, 12, SWS, sWAVE, 2, 40)
    A("s_endpgm")

    A.label("L_gu_loader")
    CS, LF = 16, 32
    A(f"s_sub_u32 s{sWAVE}, s{sWAVE}, 4")
    for jj in range(3):
        A(f"v_add_u32 v{T}, {64*jj}, v0")
        A(f"v_mul_u32_u24 v{T+1}, 5462, v{T}")
        A(f"v_lshrrev_b32 v{T+1}, 16, v{T+1}")
        A(f"v_mul_u32_u24 v{VO+jj}, {3072-192}, v{T+1}")
        A(f"v_lshl_add_u32 v{VO+jj}, v{T}, 4, v{VO+jj}")
    A(f"s_mul_i32 s{sSRC}, s{sWAVE}, {16*3072}")
    A(f"s_mul_i32 s{sT0}, s{sJ}, 192")
    A(f"s_add_u32 s{sSRC}, s{sSRC}, s{sT0}")
    A(f"s_mul_i32 s{sM0}, s{sWAVE}, 3072")
    def dma(c):
        A(f"s_add_u32 s{sT0}, s{sSRC}, {c*64*3072}")
        for isup in range(2):
            sr = SU if isup else SG_
            for jj in range(3):
                A(f"s_add_u32 m0, s{sM0}, {(c%6)*GU_SLOT + isup*GU_UP + jj*1024}")
                A(f"buffer_load_dwordx4 v{VO+jj}, s[{sr}:{sr+3}], s{sT0} offen lds")
    for c in range(6): dma(c)
    for i in range(12): A(f"v_mov_b32 v{CS+i}, 0")
    A(f"v_add_u32 v{TRA}, s{sM0}, v{TRA}")
    issued = 6
    for c in range(10):
        A(f"s_waitcnt vmcnt({6*(issued-1-c)})")
        A("s_barrier")
        if c >= 2 and c + 4 < 10:
            dma(c + 4); issued += 1
        for t in range(6):
            for u in range(2):
                A(f"ds_read_b64_tr_b16 {v(LF+4*t+2*u,2)}, v{TRA} offset:{4*u*192 + 32*t}")
        d = GU_SLOT if (c + 1) % 6 else -5 * GU_SLOT
        A(f"v_add_u32 v{TRA}, {d & 0xffffffff}, v{TRA}")
        for t in range(6):
            A(f"s_waitcnt lgkmcnt({10-2*t})")
            for i in range(4):
                A(f"v_lshlrev_b32 v{LF+24}, 16, v{LF+4*t+i}")
                A(f"v_and_b32 v{LF+25}, 0xffff0000, v{LF+4*t+i}")
                A(f"v_pk_add_f32 {v(CS+2*t,2)}, {v(CS+2*t,2)}, {v(LF+24,2)}")
    A(f"v_and_b32 v{T+2}, 31, v0")
    A(f"v_lshlrev_b32 v{T+2}, 4, v{T+2}")
    A(f"s_lshl_b32 s{sT0}, s{sWAVE}, 2")
    A(f"s_add_u32 s{sT0}, s{sT0}, {GU_MISC}")
    A(f"v_add_u32 v{T+2}, s{sT0}, v{T+2}")
    for t in range(6):
        r = CS + 2 * t
        A(f"v_add_f32 v{r}, v{r}, v{r+1}")
        A(f"v_mov_b32 v{r+1}, v{r}")
        A(f"v_permlane32_swap_b32 v{r}, v{r+1}")
        A(f"v_add_f32 v{r}, v{r}, v{r+1}")
        A(f"ds_write_b32 v{T+2}, v{r} offset:{512*t}")
    A("s_waitcnt lgkmcnt(0)")
    A("s_barrier")
    A.label("L_gu_end")
    A("s_endpgm")
    return dict(name=name, grid=256, block=512, lds=GU_MISC + 3072, desc=kernel_desc(name, 208, 208))
```

```python
from common import *

def gen_qkv(A, cfg):
    name = "qkv_kernel"
    kstart(A, name)
    SX, SW, SWS = 4, 8, 12
    sWAVE, sTB, sFG, sXO, sXO2, sWO, sT0, sT1, sT2, sM0 = 16, 17, 18, 19, 20, 21, 22, 23, 24, 25
    sTILE = 26
    vXOFF, vWOFF = 1, 2
    vTR = 4
    vT = 8
    ACC, AF, XR = 16, 80, 112
    vSUM, vSQ, vCS = 224, 228, 232
    vONE = 236
    vADR = 240
    NRING = 7
    A("s_cmp_ge_u32 s2, 240")
    A("s_cbranch_scc1 L_qkv_end")
    A("s_load_dwordx4 s[4:7], s[0:1], 0")
    A("s_load_dwordx2 s[12:13], s[0:1], 72")
    A(f"v_lshrrev_b32 v{vT}, 6, v0")
    A(f"v_and_b32 v0, 63, v0")
    A(f"v_readfirstlane_b32 s{sWAVE}, v{vT}")
    A(f"s_and_b32 s{sT0}, s2, 7")
    A(f"s_lshr_b32 s{sT1}, s2, 3")
    A(f"s_lshr_b32 s{sT2}, s{sT0}, 2")
    A(f"s_mul_i32 s{sT2}, s{sT2}, 30")
    A(f"s_add_u32 s{sT1}, s{sT1}, s{sT2}")
    A(f"s_lshr_b32 s{sFG}, s{sT1}, 2")
    A(f"s_and_b32 s{sT1}, s{sT1}, 3")
    A(f"s_and_b32 s{sT0}, s{sT0}, 3")
    A(f"s_lshl_b32 s{sT0}, s{sT0}, 2")
    A(f"s_add_u32 s{sTB}, s{sT0}, s{sT1}")
    A(f"s_lshl_b32 s{sTILE}, s{sTB}, 2")
    A(f"s_add_u32 s{sTILE}, s{sTILE}, s{sWAVE}")
    A(f"s_mul_i32 s{sXO}, s{sTILE}, {32*1280}")
    A(f"s_add_u32 s{sXO2}, s{sXO}, {16*1280}")
    A(f"v_and_b32 v{vT}, 15, v0")
    A(f"v_lshrrev_b32 v{vT+1}, 4, v0")
    A(f"v_mul_u32_u24 v{vXOFF}, 1280, v{vT}")
    A(f"v_lshl_add_u32 v{vXOFF}, v{vT+1}, 4, v{vXOFF}")
    A(f"v_lshlrev_b32 v{vT+2}, 2, v{vT+1}")
    A(f"v_xor_b32 v{vT+2}, v{vT+2}, v{vT}")
    A(f"v_mul_u32_u24 v{vWOFF}, 3840, v{vT+1}")
    A(f"v_lshl_add_u32 v{vWOFF}, v{vT+2}, 4, v{vWOFF}")
    A(f"s_lshl_b32 s{sWO}, s{sFG}, 8")
    A(f"s_mul_i32 s{sT0}, s{sWAVE}, {16*3840}")
    A(f"s_add_u32 s{sWO}, s{sWO}, s{sT0}")
    A(f"s_lshl_b32 s{sM0}, s{sWAVE}, 12")
    A("s_waitcnt lgkmcnt(0)")
    A("s_mov_b32 s8, s6")
    A("s_mov_b32 s9, s7")
    srd(A, SX, SX, X_BYTES)
    srd(A, SW, SW, 640 * 1920 * 2)
    srd(A, SWS, SWS, WS_SIZE)
    stamp(A, cfg, 0, SWS, sWAVE, vT+4, 40)

    def issue_chunk(c):
        slot = XR + (c % NRING) * 16
        for j in range(4):
            A(f"s_add_u32 m0, s{sM0}, {c*16384 + j*1024}")
            A(f"s_add_u32 s{sT0}, s{sWO}, {(c*64 + 4*j) * 3840}")
            A(f"buffer_load_dwordx4 v{vWOFF}, s[{SW}:{SW+3}], s{sT0} offen lds")
        for kb in range(2):
            A(f"buffer_load_dwordx4 {v(slot+8*kb,4)}, v{vXOFF}, s[{SX}:{SX+3}], s{sXO} offen offset:{(2*c+kb)*64}")
            A(f"buffer_load_dwordx4 {v(slot+8*kb+4,4)}, v{vXOFF}, s[{SX}:{SX+3}], s{sXO2} offen offset:{(2*c+kb)*64}")
    for c in range(NRING): issue_chunk(c)

    rho, cc, g1, kh, base = vT, vT+1, vT+2, vT+3, vT+4
    A(f"v_bfe_u32 v{rho}, v0, 2, 2")
    A(f"v_and_b32 v{cc}, 3, v0")
    A(f"v_bfe_u32 v{g1}, v0, 4, 1")
    A(f"v_lshrrev_b32 v{kh}, 5, v0")
    A(f"v_lshl_add_u32 v{base}, v{kh}, 4, v{rho}")
    A(f"v_lshlrev_b32 v{base}, 8, v{base}")
    A(f"v_lshl_add_u32 v{base}, v{g1}, 5, v{base}")
    A(f"v_lshl_add_u32 v{base}, v{cc}, 3, v{base}")
    for j in range(4):
        A(f"s_add_u32 s{sT0}, s{sWAVE}, {j}")
        A(f"s_and_b32 s{sT0}, s{sT0}, 3")
        A(f"v_xor_b32 v{vTR+j}, s{sT0}, v{rho}")
        A(f"v_lshl_add_u32 v{vTR+j}, v{vTR+j}, 6, v{base}")
    for i in range(64): A(f"v_mov_b32 v{ACC+i}, 0")
    for i in range(12): A(f"v_mov_b32 v{vSUM+i}, 0")
    A(f"v_mov_b32 v{vONE}, 0x3f803f80")
    A(f"v_mov_b32 v{vONE+1}, 0x3f803f80")

    A(f"s_cmp_ge_u32 s{sFG}, 10")
    A("s_cbranch_scc1 L_qkv_V")

    def mainloop(isV):
        def trread(step, buf):
            c, f = divmod(step, 2)
            for j in range(4):
                for u in range(2):
                    off = ((c * 32 + 8 * f + 4 * u) * 256) % 65536
                    A(f"ds_read_b64_tr_b16 {v(AF+16*buf+4*j+2*u,2)}, v{vTR+j} offset:{off}")
        for c in range(10):
            n = 8 * (min(c + NRING - 1, 9) - c)
            A(f"s_waitcnt vmcnt({n})")
            A("s_barrier")
            if c in (4, 8):
                for j in range(4): A(f"v_add_u32 v{vTR+j}, 0x10000, v{vTR+j}")
            trread(4 * c, 0)
            slot = XR + (c % NRING) * 16
            for kb in range(2):
                for i in range(4):
                    A(f"v_permlane16_swap_b32 v{slot+8*kb+i}, v{slot+8*kb+4+i}")
            for i in range(8):
                A(f"v_mfma_f32_4x4x4_16b_bf16 {v(vSUM,4)}, {v(vONE,2)}, {v(slot+2*i,2)}, {v(vSUM,4)}")
                A(f"v_mfma_f32_4x4x4_16b_bf16 {v(vSQ,4)}, {v(slot+2*i,2)}, {v(slot+2*i,2)}, {v(vSQ,4)}")
            for st in range(4):
                buf = st % 2
                if st < 3:
                    trread(4 * c + st + 1, 1 - buf)
                    A("s_waitcnt lgkmcnt(8)")
                else:
                    A("s_waitcnt lgkmcnt(0)")
                xf = v(slot + 4 * st, 4)
                for j in range(4):
                    af = v(AF + 16 * buf + 4 * j, 4)
                    if isV: A(f"v_mfma_f32_32x32x16_bf16 {v(ACC+16*j,16)}, {xf}, {af}, {v(ACC+16*j,16)}")
                    else:   A(f"v_mfma_f32_32x32x16_bf16 {v(ACC+16*j,16)}, {af}, {xf}, {v(ACC+16*j,16)}")
                    if j in (1, 3):
                        u = j // 2
                        A(f"v_mfma_f32_4x4x4_16b_bf16 {v(vCS,4)}, {v(vONE,2)}, {v(AF+16*buf+2*u,2)}, {v(vCS,4)}")
            if c + NRING < 10: issue_chunk(c + NRING)

    def stats_and_correction(isV):
        mean, rstd, t0, t1, t2 = vT, vT+1, vT+2, vT+3, vT+4
        A(f"v_and_b32 v{t0}, 3, v0")
        A(f"v_cmp_eq_u32 vcc, 1, v{t0}")
        A(f"v_cndmask_b32 v{vSQ}, v{vSQ}, v{vSQ+1}, vcc")
        A(f"v_cmp_eq_u32 vcc, 2, v{t0}")
        A(f"v_cndmask_b32 v{vSQ}, v{vSQ}, v{vSQ+2}, vcc")
        A(f"v_cmp_eq_u32 vcc, 3, v{t0}")
        A(f"v_cndmask_b32 v{vSQ}, v{vSQ}, v{vSQ+3}, vcc")
        for r in (vSUM, vSQ, vCS):
            A(f"v_mov_b32 v{r+1}, v{r}")
            A(f"v_permlane32_swap_b32 v{r}, v{r+1}")
            A(f"v_add_f32 v{r}, v{r}, v{r+1}")
        A("s_barrier")
        A(f"v_and_b32 v{t0}, 31, v0")
        A(f"v_lshlrev_b32 v{t0}, 2, v{t0}")
        A(f"s_lshl_b32 s{sT0}, s{sWAVE}, 7")
        A(f"v_add_u32 v{t1}, s{sT0}, v{t0}")
        A(f"ds_write_b32 v{t1}, v{vCS}")
        A(f"v_mul_f32 v{mean}, {fhex(1/640)}, v{vSUM}")
        A(f"v_mul_f32 v{rstd}, {fhex(1/640)}, v{vSQ}")
        A(f"v_fma_f32 v{rstd}, -v{mean}, v{mean}, v{rstd}")
        A(f"v_max_f32 v{rstd}, 0, v{rstd}")
        A(f"v_add_f32 v{rstd}, {fhex(1e-5)}, v{rstd}")
        A(f"v_rsq_f32 v{rstd}, v{rstd}")
        if isV:
            A(f"ds_write_b32 v{t1}, v{rstd} offset:512")
        A("s_waitcnt lgkmcnt(0)")
        A("s_barrier")
        for j in range(4):
            A(f"s_add_u32 s{sT0}, s{sWAVE}, {j}")
            A(f"s_and_b32 s{sT0}, s{sT0}, 3")
            A(f"s_lshl_b32 s{sT0}, s{sT0}, 7")
            A(f"v_add_u32 v{t1}, s{sT0}, v{t0}")
            A(f"ds_read_b32 v{AF+4*j}, v{t1}")
        if isV:
            A(f"v_lshrrev_b32 v{t1}, 5, v0")
            A(f"v_lshlrev_b32 v{t1}, 4, v{t1}")
            A(f"s_lshl_b32 s{sT0}, s{sWAVE}, 7")
            A(f"v_add_u32 v{t1}, s{sT0}, v{t1}")
            for aa in range(4):
                A(f"ds_read_b128 {v(XR+4*aa,4)}, v{t1} offset:{512 + aa*32}")
        MB = AF + 16
        A(f"v_cvt_pk_bf16_f32 v{MB}, -v{mean}, -v{mean}")
        A(f"v_and_b32 v{t2}, 0xffff0000, v{MB}")
        A(f"v_sub_f32 v{t2}, -v{mean}, v{t2}")
        A(f"v_cvt_pk_bf16_f32 v{MB+1}, v{t2}, 0")
        A(f"v_cmp_gt_u32 vcc, 32, v0")
        A(f"v_cndmask_b32 v{MB}, 0, v{MB}, vcc")
        A(f"v_cndmask_b32 v{MB+1}, 0, v{MB+1}, vcc")
        A("s_waitcnt lgkmcnt(0)")
        for j in range(4):
            cs = AF + 4 * j
            A(f"v_cvt_pk_bf16_f32 v{cs+1}, v{cs}, v{cs}")
            A(f"v_and_b32 v{cs+1}, 0xffff0000, v{cs+1}")
            A(f"v_sub_f32 v{cs}, v{cs}, v{cs+1}")
            A(f"v_cvt_pk_bf16_f32 v{cs+2}, v{cs+1}, v{cs}")
            A(f"v_lshrrev_b32 v{cs+3}, 16, v{cs+1}")
        for j in range(4):
            cf = v(AF + 4 * j + 2, 2); mb = v(MB, 2)
            if isV: A(f"v_mfma_f32_32x32x8_bf16 {v(ACC+16*j,16)}, {mb}, {cf}, {v(ACC+16*j,16)}")
            else:   A(f"v_mfma_f32_32x32x8_bf16 {v(ACC+16*j,16)}, {cf}, {mb}, {v(ACC+16*j,16)}")

    t0, t1, t2, t3, tok16, tok8, half = vT, vT+1, vT+2, vT+3, vT+4, vT+5, vT+6
    sBASE, sQS = 27, 28
    A(f"s_cmp_ge_u32 s{sFG}, 5")
    A(f"s_cselect_b32 s{sT1}, 5, 0")
    A(f"s_cselect_b32 s{sBASE}, {hex(WS_KV)}, {hex(WS_Q)}")
    A(f"s_cselect_b32 s{sQS}, 1.0, {fhex(QSCALE)}")
    A(f"s_sub_u32 s{sT1}, s{sFG}, s{sT1}")
    A(f"s_lshl_b32 s{sT1}, s{sT1}, 5")
    A(f"s_mul_i32 s{sT2}, s{sTILE}, 2560")
    A(f"s_add_u32 s{sBASE}, s{sBASE}, s{sT2}")
    A(f"v_lshrrev_b32 v{half}, 5, v0")
    A(f"v_and_b32 v{tok8}, 31, v0")
    A(f"v_lshlrev_b32 v{tok16}, 4, v{tok8}")
    A(f"v_lshlrev_b32 v{tok8}, 3, v{tok8}")
    A(f"v_add_u32 v{tok8}, 1024, v{tok8}")
    A(f"s_mov_b32 s29, {HEAD_STRIDE}")
    for j in range(4):
        A(f"s_add_u32 s{sT0}, s{sWAVE}, {j}")
        A(f"s_and_b32 s{sT0}, s{sT0}, 3")
        A(f"s_lshl_b32 s{sT0}, s{sT0}, 3")
        A(f"s_add_u32 s{sT0}, s{sT0}, s{sT1}")
        for aa in range(4):
            d = vADR + 4 * j + aa
            A(f"s_add_u32 s{sT2}, s{sT0}, {2*aa}")
            A(f"v_add_u32 v{t0}, s{sT2}, v{half}")
            A(f"v_mul_u32_u24 v{t1}, 205, v{t0}")
            A(f"v_lshrrev_b32 v{t1}, 10, v{t1}")
            A(f"v_mul_u32_u24 v{t2}, 5, v{t1}")
            A(f"v_sub_u32 v{t0}, v{t0}, v{t2}")
            A(f"v_lshrrev_b32 v{t2}, 1, v{t0}")
            A(f"v_lshl_add_u32 v{t2}, v{t2}, 9, v{tok16}")
            A(f"v_and_b32 v{t3}, 1, v{t0}")
            A(f"v_lshl_add_u32 v{t2}, v{t3}, 3, v{t2}")
            A(f"v_cmp_eq_u32 vcc, 4, v{t0}")
            A(f"v_mul_lo_u32 v{t1}, s29, v{t1}")
            A(f"v_cndmask_b32 v{t2}, v{t2}, v{tok8}, vcc")
            A(f"v_add_u32 v{d}, v{t1}, v{t2}")
    mainloop(False)
    stamp(A, cfg, 1, SWS, sWAVE, vT+4, 40)
    stats_and_correction(False)
    A(f"v_mul_f32 v{vT+1}, s{sQS}, v{vT+1}")
    for j in range(4):
        for aa in range(4):
            r = ACC + 16 * j + 4 * aa
            for b in range(4): A(f"v_mul_f32 v{r+b}, v{vT+1}, v{r+b}")
            A(f"v_cvt_pk_bf16_f32 v{r}, v{r}, v{r+1}")
            A(f"v_cvt_pk_bf16_f32 v{r+1}, v{r+2}, v{r+3}")
            A(f"buffer_store_dwordx2 {v(r,2)}, v{vADR+4*j+aa}, s[{SWS}:{SWS+3}], s{sBASE} offen")
    A("s_branch L_qkv_fin")

    A.label("L_qkv_V")
    A(f"s_mul_i32 s{sBASE}, s{sTILE}, 2560")
    A(f"s_add_u32 s{sBASE}, s{sBASE}, {WS_KV + 1280}")
    A(f"s_sub_u32 s{sT1}, s{sFG}, 10")
    A(f"s_lshl_b32 s{sT1}, s{sT1}, 7")
    A(f"v_lshrrev_b32 v{half}, 5, v0")
    A(f"v_mul_u32_u24 v{half}, 320, v{half}")
    A(f"v_and_b32 v{tok8}, 31, v0")
    A(f"s_mov_b32 s29, {HEAD_STRIDE}")
    for j in range(4):
        A(f"s_add_u32 s{sT0}, s{sWAVE}, {j}")
        A(f"s_and_b32 s{sT0}, s{sT0}, 3")
        A(f"s_lshl_b32 s{sT0}, s{sT0}, 5")
        A(f"s_add_u32 s{sT0}, s{sT0}, s{sT1}")
        A(f"v_add_u32 v{t0}, s{sT0}, v{tok8}")
        A(f"v_mul_u32_u24 v{t1}, 3277, v{t0}")
        A(f"v_lshrrev_b32 v{t1}, 16, v{t1}")
        A(f"v_mul_u32_u24 v{t2}, 20, v{t1}")
        A(f"v_sub_u32 v{t0}, v{t0}, v{t2}")
        A(f"v_mul_lo_u32 v{t1}, s29, v{t1}")
        A(f"v_lshl_add_u32 v{t0}, v{t0}, 4, v{half}")
        A(f"v_add_u32 v{vADR+j}, v{t0}, v{t1}")
    mainloop(True)
    stamp(A, cfg, 1, SWS, sWAVE, vT+4, 40)
    stats_and_correction(True)
    for j in range(4):
        for mf in range(2):
            r = ACC + 16 * j + 8 * mf
            for b in range(8): A(f"v_mul_f32 v{r+b}, v{XR+8*mf+b}, v{r+b}")
            for b in range(4): A(f"v_cvt_pk_bf16_f32 v{r+b}, v{r+2*b}, v{r+2*b+1}")
            A(f"buffer_store_dwordx4 {v(r,4)}, v{vADR+j}, s[{SWS}:{SWS+3}], s{sBASE} offen offset:{mf*640}")
    A.label("L_qkv_fin")
    stamp(A, cfg, 2, SWS, sWAVE, vT+4, 40)
    A.label("L_qkv_end")
    A("s_endpgm")
    return dict(name=name, grid=240, block=256, lds=163840, desc=kernel_desc(name, 256, 256))
```

```python
import sys, json
from common import *
from k_qkv import gen_qkv
from k_attn import gen_attn
HEADER = open("sequential_preLN__softmax_full_mha__glu_gated_reglu__prompt.s.ref").read().split("; Override launch")[0]

def build(cfg, gens):
    A = Asm()
    ks = [g(A, cfg) for g in gens]
    body = A.finalize()
    out = HEADER
    for k in ks:
        out += f"; @launch kernel={k['name']} grid=({k['grid']},1,1) block=({k['block']},1,1) lds={k['lds']}\n"
    out += '.amdgcn_target "amdgcn-amd-amdhsa--gfx950"\n.text\n' + body
    out += '.section .rodata,"a"\n'
    for k in ks:
        out += ".p2align 6\n" + k["desc"]
    return out

if __name__ == "__main__":
    cfg = json.loads(sys.argv[2]) if len(sys.argv) > 2 else {}
    gens = [gen_qkv, gen_attn]
    try:
        from k_ffn import gen_wo, gen_gu, gen_down
        gens += [gen_wo, gen_gu, gen_down]
    except ImportError:
        pass
    open(sys.argv[1], "w").write(build(cfg, gens))
```

```python
from asmlib import *
WS_K   = 0x0000000
WS_Q   = 0x0280000
WS_V   = 0x0500000
WS_O   = 0x0780000
WS_H   = 0x0A00000
WS_HID = 0x0C80000
WS_WO  = 0x1280000
WS_WD  = 0x1380000
WS_ST2 = 0x1580000
WS_SYNC= 0x15C0000
WS_GF  = 0x15C0000 + 49152
WS_ST1 = 0x15E0000
WS_TS  = 0x1600000
WS_SIZE= 0x2000000
PAIR_STRIDE = 64 * 2560
VHEAD_STRIDE = 64 * 1280
X_BYTES = 2048 * 640 * 2
QSCALE = (20 ** -0.5) * 1.4426950408889634

import struct
def f2u(f): return struct.unpack("<I", struct.pack("<f", f))[0]
def fhex(f): return hex(f2u(f))

def srd(A, d, ptr, nbytes):
    if d != ptr:
        A(f"s_mov_b32 s{d}, s{ptr}")
        A(f"s_and_b32 s{d+1}, s{ptr+1}, 0xffff")
    else:
        A(f"s_and_b32 s{d+1}, s{d+1}, 0xffff")
    A(f"s_mov_b32 s{d+2}, {hex(nbytes)}")
    A(f"s_mov_b32 s{d+3}, 0x20000")

def kstart(A, name):
    A.raw(f".globl {name}\n.p2align 8\n.type {name},@function")
    A.label(name)

STAMP_S = 60
def stamp(A, cfg, i):
    if not cfg.get("stamps") and not (cfg.get("_k2") and i in cfg.get("diag", []) + [12] and cfg.get("diag")): return
    r = STAMP_S + 2 * i
    A(f"s_memrealtime s[{STAMP_S-4}:{STAMP_S-3}]")
    A(f"s_memtime s[{STAMP_S-2}:{STAMP_S-1}]")
    A("s_waitcnt lgkmcnt(0)")
    A(f"s_mov_b32 s{r}, s{STAMP_S-4}")
    A(f"s_mov_b32 s{r+1}, s{STAMP_S-2}")

def stamp_flush(A, cfg, n, base_idx, srd_ws, swave, wave):
    if not cfg.get("stamps"): return
    L = A.newlabel("ts")
    A("s_nop 15")
    A(f"s_cmp_lg_u32 s{swave}, {wave}")
    A(f"s_cbranch_scc1 {L}")
    t = STAMP_S - 4
    A(f"s_lshl_b32 s{t}, s2, 8")
    A(f"s_add_u32 s{t}, s{t}, {hex(WS_TS + base_idx*8)}")
    A("s_mov_b64 exec, 1")
    A("v_mov_b32 v0, 0")
    for i in range(n):
        A(f"v_mov_b32 v2, s{STAMP_S+2*i}")
        A(f"v_mov_b32 v3, s{STAMP_S+2*i+1}")
        A(f"buffer_store_dwordx2 v[2:3], v0, s[{srd_ws}:{srd_ws+3}], s{t} offen offset:{8*i}")
        A("s_nop 1")
    A.label(L)

def tile_col_imm(f):
    return (64 * (f // 2) + 8 * (f % 2)) if f < 4 else 128

def code_touch_setup(A, sp, target, backward=False):
    L = A.newlabel("pc")
    A(f"s_getpc_b64 s[{sp}:{sp+1}]")
    A.label(L)
    if backward:
        A(f"s_sub_u32 s{sp}, s{sp}, {L}-{target}")
        A(f"s_subb_u32 s{sp+1}, s{sp+1}, 0")
    else:
        A(f"s_add_u32 s{sp}, s{sp}, {target}-{L}")
        A(f"s_addc_u32 s{sp+1}, s{sp+1}, 0")
```

```python
from common import *

GU_SLOT = 24608
GU_UP = 12288 + 32
GU_MISC = 6 * GU_SLOT
KV_BASE = 3 * GU_SLOT
KV_SLOT = 20480
NV = 112

class R:
    S = (16, 32); O = 48; P = 64; K1 = 72; K2 = 76; V1 = 80; V2 = 84; Q1 = 88; Q2 = 92
    KA = 1; K2A = 2; VA = 3; L16 = 4; F2S = 5; L4 = 7; T = 8; TCH = 94
    GV = 96
    XRES = 100

SX, SWS, SG_, SU, SO = 4, 8, 12, 16, 20
sWAVE, sG, sM, sT0, sT1, sT2, sC, sDELTA, sSLOT, sQT = 24, 25, 26, 27, 28, 29, 30, 31, 32, 33
sVMASK = 34
sKSRC, sVSRC, sKBASE, sVBASE, sFG, sTOK16, sJ, sFAST, sWOSRC, sWDSRC, sGSRC, sGM0, sFLAG, sB, sXCC, sLW = 36, 37, 38, 39, 40, 41, 42, 43, 44, 45, 46, 47, 48, 49, 50, 51
sTMP = 52

def WD(step):
    return {0: 100, 1: 120, 2: 80, 3: 0, 4: 20, 5: 40}[step]
A_RES = 60

def set_shift(A, m):
    t0, t1, t2 = R.T + 1, R.T + 2, R.T + 3
    A(f"v_cvt_pk_bf16_f32 v{t0}, -v{m}, -v{m}")
    A(f"v_and_b32 v{t0}, 0xffff0000, v{t0}")
    A(f"v_sub_f32 v{t1}, -v{m}, v{t0}")
    A(f"v_cvt_pk_bf16_f32 v{t2}, v{t0}, v{t1}")
    A(f"v_and_b32 v{t0}, 0xffff0000, v{t2}")
    A(f"v_sub_f32 v{t1}, v{t1}, v{t0}")
    A(f"v_cvt_pk_bf16_f32 v{t1}, v{t1}, 0")
    A(f"v_cmp_gt_u32 vcc, 32, v0")
    A(f"v_cndmask_b32 v{R.Q2+1}, v{t1}, v{t2}, vcc")

def max16(A, dst, S, first):
    if first:
        A(f"v_max3_f32 v{dst}, v{S}, v{S+1}, v{S+2}")
        A(f"v_max_f32 v{dst}, v{dst}, v{S+3}")
        rng = range(4, 16, 2)
    else:
        rng = range(0, 16, 2)
    for i in rng: A(f"v_max3_f32 v{dst}, v{dst}, v{S+i}, v{S+i+1}")

def xhalf_max(A, m, t):
    A(f"v_mov_b32 v{t}, v{m}")
    A(f"v_permlane32_swap_b32 v{m}, v{t}")
    A(f"v_max_f32 v{m}, v{m}, v{t}")

def stores(A, lst):
    L1, L2 = A.newlabel("stf"), A.newlabel("ste")
    A(f"s_cmp_lg_u32 s{sFAST}, 0")
    A(f"s_cbranch_scc1 {L1}")
    for x in lst: A(x + (" sc1" if x.startswith("buffer_") else ""))
    A(f"s_branch {L2}")
    A.label(L1)
    for x in lst: A(x)
    A.label(L2)

def sync(A, idx, poller, half, nleft, between=None):
    T = R.T
    A(f"s_waitcnt vmcnt({nleft})")
    A("s_barrier")
    L, LP = A.newlabel("sy"), A.newlabel("poll")
    A(f"s_cmp_lg_u32 s{sWAVE}, {poller}")
    if between is not None:
        LB = A.newlabel("btw")
        A(f"s_cbranch_scc1 {LB}")
    else:
        A(f"s_cbranch_scc1 {L}")
    A(f"s_lshl_b32 s{sT0}, s{sM}, 2")
    A(f"s_add_u32 s{sT0}, s{sT0}, s{sFLAG}")
    A(f"v_mov_b32 v{T}, 1")
    A(f"v_mov_b32 v{T+1}, 0")
    A("s_mov_b64 exec, 1")
    stores(A, [f"buffer_store_dword v{T}, v{T+1}, s[{SWS}:{SWS+3}], s{sT0} offen offset:{idx*128}"])
    if half:
        A(f"s_and_b32 s{sT0}, s{sM}, 2")
        A(f"s_lshl_b32 s{sT0}, 0x33333333, s{sT0}")
        A(f"s_mov_b32 exec_lo, s{sT0}")
    else:
        A("s_mov_b32 exec_lo, -1")
    A(f"v_lshlrev_b32 v{T+1}, 2, v0")
    A(f"s_mov_b32 s{sT1}, 0")
    A.label(LP)
    A(f"buffer_load_dword v{T}, v{T+1}, s[{SWS}:{SWS+3}], s{sFLAG} offen offset:{idx*128} sc1")
    A(f"s_add_u32 s{sT1}, s{sT1}, 1")
    A("s_waitcnt vmcnt(0)")
    A(f"v_cmp_eq_u32 vcc, 0, v{T}")
    A(f"s_cmp_lt_u32 s{sT1}, 0x40000")
    A(f"s_cselect_b64 vcc, vcc, 0")
    A(f"s_cbranch_vccnz {LP}")
    A("s_mov_b64 exec, -1")
    if between is not None:
        A("s_barrier")
        between()
        A(f"s_branch {L}")
        A.label(LB)
        between()
        A("s_barrier")
        A.label(L)
    else:
        A.label(L)
        A("s_barrier")

def addr_rowmajor(A, vp, vs, T):
    A(f"v_and_b32 v{T}, 15, v0")
    A(f"v_lshrrev_b32 v{T+1}, 4, v0")
    A(f"v_mul_u32_u24 v{T}, 1280, v{T}")
    A(f"s_lshr_b32 s{sT0}, s{sWAVE}, 1")
    A(f"s_add_u32 s{sT0}, s{sT0}, s{sTOK16}")
    A(f"s_mul_i32 s{sT0}, s{sT0}, {16*1280}")
    A(f"s_mul_i32 s{sT1}, s{sFG}, 160")
    A(f"s_add_u32 s{sT0}, s{sT0}, s{sT1}")
    A(f"v_add_u32 v{T}, s{sT0}, v{T}")
    A(f"v_lshl_add_u32 v{vp}, v{T+1}, 4, v{T}")
    A(f"v_lshl_add_u32 v{vs}, v{T+1}, 3, v{T}")
    A(f"v_add_u32 v{vs}, 128, v{vs}")
    A(f"s_and_b32 s{sT0}, s{sWAVE}, 1")
    A(f"s_lshl_b32 s{sT0}, s{sT0}, 6")
    A(f"v_add_u32 v{vp}, s{sT0}, v{vp}")

def final_reduce(A, P, base, D, RES):
    T, L16 = R.T, R.L16
    A(f"s_lshr_b32 s{sT0}, s{sWAVE}, 1")
    A(f"s_mul_i32 s{sT0}, s{sT0}, 5120")
    A(f"s_add_u32 s{sT0}, s{sT0}, {base}")
    A(f"v_add_u32 v{T+1}, s{sT0}, v{L16}")
    A(f"s_and_b32 s{sT1}, s{sWAVE}, 1")
    A(f"s_lshl_b32 s{sT1}, s{sT1}, 11")
    A(f"v_add_u32 v{T}, s{sT1}, v{T+1}")
    A(f"v_add_u32 v{T+2}, {3*20480}, v{T}")
    A(f"v_add_u32 v{T+3}, {3*20480}, v{T+1}")
    if P > 6:
        A(f"v_add_u32 v{T+4}, {6*20480}, v{T}")
        A(f"v_add_u32 v{T+5}, {6*20480}, v{T+1}")
    A("s_waitcnt lgkmcnt(0)")
    A("s_barrier")
    for p in range(P):
        for e in range(2):
            A(f"ds_read_b128 {v(D+12*p+4*e,4)}, v{T+2*(p//3)} offset:{(p%3)*20480 + e*1024}")
        A(f"ds_read_b128 {v(D+12*p+8,4)}, v{T+1+2*(p//3)} offset:{(p%3)*20480 + 4096}")
    for p in range(1, P):
        A(f"s_waitcnt lgkmcnt({min(15, 3*(P-1-p))})")
        for i in range(0, 12, 2): A(f"v_pk_add_f32 {v(D+i,2)}, {v(D+i,2)}, {v(D+12*p+i,2)}")
    for i in range(6):
        A(f"v_lshlrev_b32 v{T}, 16, v{RES+i}")
        A(f"v_and_b32 v{T+1}, 0xffff0000, v{RES+i}")
        A(f"v_pk_add_f32 {v(D+2*i,2)}, {v(D+2*i,2)}, {v(T,2)}")
    for i in range(6): A(f"v_cvt_pk_bf16_f32 v{D+i}, v{D+2*i}, v{D+2*i+1}")

CFG = {}
def gu_dma_ops(c):
    ops = []
    for isup in range(2):
        sr = SU if isup else SG_
        for jj in range(3):
            ops.append([f"s_add_u32 m0, s{sGM0}, {(c%6)*GU_SLOT + isup*GU_UP + jj*1024}",
                        f"s_add_u32 s{sT0}, s{sGSRC}, {(3 if CFG.get('gu_same') else c)*64*3072}",
                        f"buffer_load_dwordx4 v{R.GV+jj}, s[{sr}:{sr+3}], s{sT0} offen lds"])
    return ops
def load_wd_ops(step):
    return [[f"s_add_u32 s{sT0}, s{sWDSRC}, {(2 if CFG.get('gu_same') else step)*5120 + f*1024}",
             f"buffer_load_dwordx4 {a(WD(step)+4*f,4)}, v{R.L16}, s[{SWS}:{SWS+3}], s{sT0} offen"] for f in range(5)]
def gu_dma(A, c, rows):
    A(f"s_add_u32 s{sT0}, s{sGSRC}, {c*64*3072}")
    for isup in range(2):
        sr = SU if isup else SG_
        for jj in range(3):
            A(f"s_add_u32 m0, s{sGM0}, {(c%6)*GU_SLOT + isup*GU_UP + jj*1024}")
            A(f"buffer_load_dwordx4 v{R.GV+jj}, s[{sr}:{sr+3}], s{sT0} offen lds")

def load_wd(A, step):
    for f in range(5):
        if f % 4 == 0: A(f"s_add_u32 s{sT0}, s{sWDSRC}, {step*5120 + f*1024}")
        A(f"buffer_load_dwordx4 {a(WD(step)+4*f,4)}, v{R.L16}, s[{SWS}:{SWS+3}], s{sT0} offen offset:{(f%4)*1024}")

def gen_main(A, cfg):
    name = "main_kernel"
    CFG.update(cfg)
    kstart(A, name)
    T = R.T
    A("s_cmp_ge_u32 s2, 256")
    A("s_cbranch_scc1 L_end")
    A(f"s_load_dwordx2 s[{SWS}:{SWS+1}], s[0:1], 72")
    A(f"s_load_dwordx2 s[{SX}:{SX+1}], s[0:1], 0")
    A(f"s_load_dwordx2 s[{SG_}:{SG_+1}], s[0:1], 32")
    A(f"s_load_dwordx2 s[{SU}:{SU+1}], s[0:1], 40")
    A(f"s_load_dwordx2 s[{SO}:{SO+1}], s[0:1], 56")
    stamp(A, cfg, 0)
    A(f"v_lshrrev_b32 v{T}, 6, v0")
    A(f"v_and_b32 v0, 63, v0")
    A(f"v_readfirstlane_b32 s{sWAVE}, v{T}")
    A(f"s_and_b32 s{sG}, s2, 7")
    A(f"s_lshr_b32 s{sM}, s2, 3")
    A(f"s_lshr_b32 s{sT0}, s{sM}, 1")
    A(f"s_mul_i32 s{sKBASE}, s{sT0}, {PAIR_STRIDE}")
    A(f"s_mul_i32 s{sVBASE}, s{sM}, {VHEAD_STRIDE}")
    A(f"s_add_u32 s{sVBASE}, s{sVBASE}, {hex(WS_V)}")
    A(f"s_lshl_b32 s{sQT}, s{sG}, 3")
    A(f"s_add_u32 s{sQT}, s{sQT}, s{sWAVE}")
    A(f"s_and_b32 s{sT1}, s{sM}, 1")
    A(f"v_lshlrev_b32 v{R.L16}, 4, v0")
    A(f"s_mul_i32 s{sT2}, s{sT1}, 1536")
    A(f"v_add_u32 v{R.F2S+1}, s{sT2}, v{R.L16}")
    A(f"v_and_b32 v{T}, 31, v0")
    A(f"v_lshrrev_b32 v{T+1}, 5, v0")
    A(f"v_lshlrev_b32 v{R.F2S}, 4, v{T}")
    A(f"v_lshl_add_u32 v{R.F2S}, v{T+1}, 2, v{R.F2S}")
    A(f"s_lshl_b32 s{sT1}, s{sT1}, 3")
    A(f"s_add_u32 s{sT1}, s{sT1}, 1024")
    A(f"v_add_u32 v{R.F2S}, s{sT1}, v{R.F2S}")
    A(f"s_mul_i32 s{sKSRC}, s{sWAVE}, 2560")
    A(f"s_add_u32 s{sKSRC}, s{sKSRC}, s{sKBASE}")
    A(f"s_mul_i32 s{sVSRC}, s{sWAVE}, 1280")
    A(f"s_mul_i32 s{sSLOT}, s{sWAVE}, 2560")
    A(f"v_lshlrev_b32 v{R.L4}, 2, v0")
    A(f"s_add_u32 s{sVSRC}, s{sVSRC}, s{sVBASE}")
    A("s_waitcnt lgkmcnt(0)")
    srd(A, SWS, SWS, WS_SIZE)
    KVF = cfg.get("kvflag", "")
    def kv_ops(c):
        lds = KV_BASE + (c % 3) * KV_SLOT
        return [
            [f"s_add_u32 m0, s{sSLOT}, {lds}", f"s_add_u32 s{sT0}, s{sKSRC}, {c*8*2560}",
             f"buffer_load_dwordx4 v{R.F2S+1}, s[{SWS}:{SWS+3}], s{sT0} offen {KVF} lds"],
            [f"s_add_u32 m0, s{sSLOT}, {lds+1024}", f"s_add_u32 s{sT0}, s{sKSRC}, {c*8*2560}",
             f"buffer_load_dword v{R.F2S}, s[{SWS}:{SWS+3}], s{sT0} offen {KVF} lds"],
            [f"s_add_u32 m0, s{sSLOT}, {lds+1280}", f"s_add_u32 s{sT0}, s{sVSRC}, {c*8*1280}",
             f"buffer_load_dwordx4 v{R.L16}, s[{SWS}:{SWS+3}], s{sT0} offen {KVF} lds"],
            [f"s_add_u32 m0, s{sSLOT}, {lds+2304}", f"s_add_u32 s{sT0}, s{sVSRC}, {c*8*1280+1024}",
             f"buffer_load_dword v{R.L4}, s[{SWS}:{SWS+3}], s{sT0} offen {KVF} lds"]]
    def emit(op):
        for x in op: A(x)
    A(f"s_mul_i32 s{sT2}, s{sQT}, 2560")
    A(f"s_add_u32 s{sT2}, s{sT2}, s{sKBASE}")
    A(f"s_add_u32 s{sT2}, s{sT2}, {hex(WS_Q)}")
    A(f"buffer_load_dwordx4 {v(R.Q1,4)}, v{R.F2S+1}, s[{SWS}:{SWS+3}], s{sT2} offen")
    A(f"buffer_load_dword v{R.Q2}, v{R.F2S}, s[{SWS}:{SWS+3}], s{sT2} offen")
    for op in kv_ops(0): emit(op)
    A(f"s_lshl_b32 s{sFLAG}, s{sG}, 10")
    A(f"s_add_u32 s{sFLAG}, s{sFLAG}, {hex(WS_SYNC)}")
    A(f"s_getreg_b32 s{sXCC}, hwreg(HW_REG_XCC_ID, 0, 3)")
    A(f"s_mul_i32 s{sXCC}, s{sXCC}, 6")
    A(f"s_lshr_b32 s{sFG}, s{sM}, 2")
    A(f"s_and_b32 s{sT0}, s{sM}, 3")
    A(f"s_lshl_b32 s{sTOK16}, s{sG}, 4")
    A(f"s_lshl_b32 s{sT0}, s{sT0}, 2")
    A(f"s_add_u32 s{sTOK16}, s{sTOK16}, s{sT0}")
    A(f"s_lshl_b32 s{sJ}, s{sFG}, 1")
    A(f"s_and_b32 s{sT0}, s{sM}, 1")
    A(f"s_add_u32 s{sJ}, s{sJ}, s{sT0}")
    A(f"s_and_b32 s{sLW}, s{sWAVE}, 3")
    A(f"s_mul_i32 s{sWOSRC}, s{sFG}, {20*5120}")
    A(f"s_mul_i32 s{sT0}, s{sLW}, {5*5120}")
    A(f"s_add_u32 s{sWOSRC}, s{sWOSRC}, s{sT0}")
    A(f"s_add_u32 s{sWOSRC}, s{sWOSRC}, {hex(WS_WO)}")
    A(f"s_mul_i32 s{sWDSRC}, s{sFG}, {48*5120}")
    A(f"s_mul_i32 s{sT0}, s{sWAVE}, {6*5120}")
    A(f"s_add_u32 s{sWDSRC}, s{sWDSRC}, s{sT0}")
    A(f"s_add_u32 s{sWDSRC}, s{sWDSRC}, {hex(WS_WD)}")
    A(f"s_mul_i32 s{sGSRC}, s{sLW}, {16*3072}")
    A(f"s_mul_i32 s{sT0}, s{sJ}, 192")
    A(f"s_add_u32 s{sGSRC}, s{sGSRC}, s{sT0}")
    A(f"s_mul_i32 s{sGM0}, s{sLW}, 3072")
    srd(A, SX, SX, X_BYTES); srd(A, SG_, SG_, 640 * 1536 * 2); srd(A, SU, SU, 640 * 1536 * 2); srd(A, SO, SO, X_BYTES)
    A(f"v_add_u32 v{R.KA}, {KV_BASE}, v{R.L16}")
    A(f"v_add_u32 v{R.K2A}, {KV_BASE + 1024}, v{R.L4}")
    r, kh, aa, hf, b, i_, d1, d2 = T, T+1, T+2, T+3, T+4, T+5, T+6, T+7
    A(f"v_lshrrev_b32 v{aa}, 3, v{r}")
    A(f"v_bfe_u32 v{hf}, v{r}, 2, 1")
    A(f"v_and_b32 v{b}, 3, v{r}")
    A(f"v_lshl_add_u32 v{i_}, v{aa}, 2, v{b}")
    A(f"v_lshl_add_u32 v{d1}, v{hf}, 3, v{i_}")
    A(f"v_lshl_add_u32 v{d2}, v{hf}, 1, v{i_}")
    A(f"v_add_u32 v{d2}, 8, v{d2}")
    A(f"v_cmp_gt_u32 vcc, 8, v{i_}")
    A(f"v_cndmask_b32 v{d1}, v{d2}, v{d1}, vcc")
    A(f"v_min_u32 v{d1}, 19, v{d1}")
    A(f"v_mul_u32_u24 v{R.VA}, 320, v{kh}")
    A(f"v_lshl_add_u32 v{R.VA}, v{d1}, 4, v{R.VA}")
    A(f"v_add_u32 v{R.VA}, {KV_BASE + 1280}, v{R.VA}")
    A(f"v_cmp_eq_u32 vcc, 10, v{i_}")
    A(f"v_mov_b32 v{d2}, 0x3f803f80")
    for k in range(8): A(f"v_cndmask_b32 v{R.V1+k}, 0, v{d2}, vcc")
    A(f"v_cmp_gt_u32 vcc, 32, v0")
    A(f"v_mov_b32 v{d1}, 0x3f80")
    A(f"v_cndmask_b32 v{R.K2+1}, v{d1}, v{d2}, vcc")
    A(f"v_mov_b32 v{R.Q2+1}, 0")
    for jj in range(3):
        A(f"v_add_u32 v{T}, {64*jj}, v0")
        A(f"v_mul_u32_u24 v{T+1}, 5462, v{T}")
        A(f"v_lshrrev_b32 v{T+1}, 16, v{T+1}")
        A(f"v_mul_u32_u24 v{R.GV+jj}, {3072-192}, v{T+1}")
        A(f"v_lshl_add_u32 v{R.GV+jj}, v{T}, 4, v{R.GV+jj}")
    A(f"s_mov_b32 s{sVMASK}, 0x0033ffff")
    A(f"s_mov_b32 s{sVMASK+1}, 0x0033ffff")
    A("s_waitcnt vmcnt(0)")
    A("s_barrier")
    S0 = R.S[0]
    A(f"ds_read_b128 {v(R.K1,4)}, v{R.KA}")
    A(f"ds_read_b32 v{R.K2}, v{R.K2A}")
    A(f"s_lshl_b64 s[{sTMP}:{sTMP+1}], 1, s{sXCC}")
    A(f"s_cmp_eq_u32 s{sWAVE}, 0")
    A(f"s_cselect_b64 s[{sTMP}:{sTMP+1}], s[{sTMP}:{sTMP+1}], 0")
    A(f"v_mov_b32 v{T+4}, s{sTMP}")
    A(f"v_mov_b32 v{T+5}, s{sTMP+1}")
    A(f"v_mov_b32 v{T+6}, 0")
    A(f"s_cbranch_scc0 L_noreg")
    A("s_mov_b64 exec, 1")
    A(f"buffer_atomic_add_x2 {v(T+4,2)}, v{T+6}, s[{SWS}:{SWS+3}], s{sFLAG} offen offset:512 sc1")
    A("s_mov_b64 exec, -1")
    A.label("L_noreg")
    pf = []
    def wo_op(i):
        return [f"s_add_u32 s{sT0}, s{sWOSRC}, {i*1024}", f"buffer_load_dwordx4 {a(4*i,4)}, v{R.L16}, s[{SWS}:{SWS+3}], s{sT0} offen"]
    def wd_op(i):
        return [f"s_add_u32 s{sT0}, s{sWDSRC}, {i*1024}", f"buffer_load_dwordx4 {a(100+4*i,4)}, v{R.L16}, s[{SWS}:{SWS+3}], s{sT0} offen"]
    def gu_op(c, jj):
        return [f"s_add_u32 s{sT0}, s{sGSRC}, {c*64*3072}", f"s_add_u32 m0, s{sB}, {c*GU_SLOT + jj*1024}", "s_nop 0",
                f"buffer_load_dwordx4 v{R.GV+jj}, s[{sTMP}:{sTMP+3}], s{sT0} offen lds"]
    for i in range(25): pf.append(wo_op(i))
    for i in range(10): pf.append(wd_op(i))
    for c in range(3):
        for jj in range(3): pf.append(gu_op(c, jj))
    A(f"s_cmp_ge_u32 s{sWAVE}, 4")
    A(f"s_cselect_b32 s{sTMP}, s{SU}, s{SG_}")
    A(f"s_cselect_b32 s{sTMP+1}, s{SU+1}, s{SG_+1}")
    A(f"s_mov_b32 s{sTMP+2}, {hex(640*1536*2)}")
    A(f"s_mov_b32 s{sTMP+3}, 0x20000")
    A(f"s_cselect_b32 s{sB}, {GU_UP}, 0")
    A(f"s_add_u32 s{sB}, s{sB}, s{sGM0}")
    addr_rowmajor(A, R.XRES + 6, R.XRES + 7, T + 4)
    pf.append([f"buffer_load_dwordx4 {v(R.XRES,4)}, v{R.XRES+6}, s[{SX}:{SX+3}], 0 offen"])
    pf.append([f"buffer_load_dwordx2 {v(R.XRES+4,2)}, v{R.XRES+7}, s[{SX}:{SX+3}], 0 offen"])
    xcc_ld = [f"v_mov_b32 v{R.XRES+10}, 0", f"buffer_load_dwordx2 {v(R.XRES+8,2)}, v{R.XRES+10}, s[{SWS}:{SWS+3}], s{sFLAG} offen offset:512 sc1"]
    A(f"s_lshl_b32 s{sT0}, s{sM}, 2")
    A(f"s_add_u32 s{sT0}, s{sT0}, s{sLW}")
    A(f"s_mul_i32 s{sT0}, s{sT0}, {12*128}")
    A(f"v_lshlrev_b32 v{R.TCH}, 7, v0")
    A(f"v_mov_b32 v{T+4}, 0x7f000000")
    A(f"v_cmp_gt_u32 vcc, 40, v0")
    A(f"v_cndmask_b32 v{R.TCH+1}, v{T+4}, v{R.TCH}, vcc")
    A(f"v_add_u32 v{R.TCH}, s{sT0}, v{R.TCH}")
    A(f"v_cmp_gt_u32 vcc, 12, v0")
    A(f"v_cndmask_b32 v{R.TCH}, v{T+4}, v{R.TCH}, vcc")
    A(f"s_and_b32 s{sC}, s{sM}, 3")
    A(f"s_mul_i32 s{sC}, s{sC}, 5120")
    A(f"s_add_u32 s{sC}, s{sC}, s{sWDSRC}")
    A(f"s_add_u32 s{sC}, s{sC}, {2*5120}")
    def gu_touch(c):
        return [f"s_mov_b32 s{sT0}, {c*64*3072}", f"buffer_load_dword v{R.XRES+11}, v{R.TCH}, s[{sTMP}:{sTMP+3}], s{sT0} offen"]
    wd_touch = [f"buffer_load_dword v{R.XRES+11}, v{R.TCH+1}, s[{SWS}:{SWS+3}], s{sC} offen"]
    sched = {t: [] for t in range(64)}
    vm = []
    for i, op in enumerate(kv_ops(1)): sched[i // 2].append(("kv1", op))
    for c in range(2, 8):
        for i, op in enumerate(kv_ops(c)): sched[8 * (c - 2) + 6 + i // 2].append((f"kv{c}", op))
    free = [t for t in range(2, 64) if t % 8 < 6]
    PF0 = cfg.get("pf_rate", 2)
    slots = [t for t in free for _ in range(PF0)]
    for i, op in enumerate(pf): sched[slots[i]].append(("pf", op))
    TT0 = cfg.get("touch0", 42)
    tl = [wd_touch] + [gu_touch(c) for c in range(9, 2, -1)]
    if cfg.get("notouch"): tl = []
    tfree = [t for t in free if t >= TT0]
    for i, op in enumerate(tl): sched[tfree[i * cfg.get("touch_step", 2)]].append(("pf", op))
    sched[58].append(("pf", xcc_ld))
    if cfg.get("otouch", 0):
        A(f"s_lshl_b32 s{sT0}, s{sG}, 5")
        A(f"s_add_u32 s{sT0}, s{sT0}, s{sM}")
        A(f"s_lshl_b32 s{sT0}, s{sT0}, 3")
        A(f"s_add_u32 s{sT0}, s{sT0}, s{sWAVE}")
        A(f"s_mul_i32 s{sT1}, s{sT0}, 1280")
        A(f"s_mul_i32 s{sT2}, s{sT0}, 3072")
        A(f"s_lshl_b32 s{sT0}, s{sT0}, 7")
        A(f"s_add_u32 s{sT0}, s{sT0}, {WS_ST2 - 44*128}")
        A(f"v_mov_b32 v{T+4}, s{sT0}")
        A(f"s_add_u32 s{sT2}, s{sT2}, {WS_HID - 20*128}")
        A(f"v_mov_b32 v{T+5}, s{sT2}")
        A(f"v_cmp_gt_u32 vcc, 44, v0")
        A(f"v_cndmask_b32 v{T+4}, v{T+4}, v{T+5}, vcc")
        A(f"s_add_u32 s{sT2}, s{sT1}, {WS_H - 10*128}")
        A(f"v_mov_b32 v{T+5}, s{sT2}")
        A(f"v_cmp_gt_u32 vcc, 20, v0")
        A(f"v_cndmask_b32 v{T+4}, v{T+4}, v{T+5}, vcc")
        A(f"s_add_u32 s{sT2}, s{sT1}, {WS_O}")
        A(f"v_mov_b32 v{T+5}, s{sT2}")
        A(f"v_cmp_gt_u32 vcc, 10, v0")
        A(f"v_cndmask_b32 v{T+4}, v{T+4}, v{T+5}, vcc")
        A(f"v_lshl_add_u32 v{T+4}, v0, 7, v{T+4}")
        A(f"v_mov_b32 v{T+5}, 0x7f000000")
        A(f"v_cmp_gt_u32 vcc, 45, v0")
        A(f"v_cndmask_b32 v78, v{T+5}, v{T+4}, vcc")
        sched[cfg["otouch"]].append(("pf", [f"buffer_load_dword v{R.XRES+11}, v78, s[{SWS}:{SWS+3}], 0 offen {cfg.get('otf','')}"]))
    if cfg.get("ctouch", 1):
        code_touch_setup(A, sDELTA - 1 + 58, "L_post_attn")
        A(f"s_lshl_b32 s{sT0}, s{sWAVE}, 12")
        A(f"v_and_b32 v{T+4}, 31, v0")
        A(f"v_lshlrev_b32 v{T+4}, 7, v{T+4}")
        A(f"v_add_u32 v{T+4}, s{sT0}, v{T+4}")
        A(f"v_min_u32 v{R.GV+3}, L_code_end-L_post_attn-4, v{T+4}")
        sched[cfg.get("ct_at", 57)].append(("pf", [f"global_load_dword v{R.XRES+11}, v{R.GV+3}, s[88:89]"]))
    A("s_waitcnt lgkmcnt(0)")
    A(f"v_mfma_f32_32x32x16_bf16 {v(S0,16)}, {v(R.K1,4)}, {v(R.Q1,4)}, 0")
    A(f"v_mfma_f32_32x32x8_bf16 {v(S0,16)}, {v(R.K2,2)}, {v(R.Q2,2)}, {v(S0,16)}")
    max16(A, T, S0, True)
    xhalf_max(A, T, T+1)
    set_shift(A, T)
    A(f"v_mfma_f32_32x32x16_bf16 {v(S0,16)}, {v(R.K1,4)}, {v(R.Q1,4)}, 0")
    A(f"v_mfma_f32_32x32x8_bf16 {v(S0,16)}, {v(R.K2,2)}, {v(R.Q2,2)}, {v(S0,16)}")
    def toff(t): return ((t // 8) % 3) * KV_SLOT + (t % 8) * 2560
    A(f"ds_read_b128 {v(R.K1,4)}, v{R.KA} offset:{toff(1)}")
    A(f"ds_read_b32 v{R.K2}, v{R.K2A} offset:{toff(1)}")
    A(f"s_mov_b64 exec, s[{sVMASK}:{sVMASK+1}]")
    A(f"ds_read_b128 {v(R.V1,4)}, v{R.VA}")
    A("s_mov_b64 exec, -1")
    stamp(A, cfg, 1)
    PRIO = cfg.get("prio", {6: 3, 2: 2, 4: 1, 5: 0})
    A("s_setprio 3")
    for t in range(64):
        cur, nxt = R.S[t % 2], R.S[(t + 1) % 2]
        def E(i): A(f"v_exp_f32 v{cur+i}, v{cur+i}")
        def C(k): A(f"v_cvt_pk_bf16_f32 v{R.P+k}, v{cur+2*k}, v{cur+2*k+1}")
        ops_t = list(sched[t])
        def V():
            if ops_t:
                tag, op = ops_t.pop(0); emit(op); vm.append(tag)
        if t % 8 == 6 and t < 56:
            tag = f"kv{t//8+1}"
            A(f"s_waitcnt vmcnt({len(vm) - 1 - max(i for i, x in enumerate(vm) if x == tag)})")
            A("s_barrier")
        if t < 56 and t % 8 in PRIO: A(f"s_setprio {PRIO[t % 8]}")
        if t >= 56 and (t - 2) % 8 in PRIO and t > 56: A(f"s_setprio {PRIO[(t - 2) % 8]}")
        if t < 63:
            A(f"s_waitcnt lgkmcnt({2 if t else 1})")
            A(f"v_mfma_f32_32x32x16_bf16 {v(nxt,16)}, {v(R.K1,4)}, {v(R.Q1,4)}, 0")
        E(0); E(1); V(); E(2); C(0); E(3)
        A("s_waitcnt lgkmcnt(0)")
        if t: A(f"v_mfma_f32_32x32x16_bf16 {v(R.O,16)}, {v(R.V2,4)}, {v(R.P+4,4)}, {v(R.O,16)}")
        E(4); C(1); E(5); V(); E(6); C(2); E(7)
        if t < 63: A(f"v_mfma_f32_32x32x8_bf16 {v(nxt,16)}, {v(R.K2,2)}, {v(R.Q2,2)}, {v(nxt,16)}")
        if t < 62:
            A(f"ds_read_b128 {v(R.K1,4)}, v{R.KA} offset:{toff(t+2)}")
            A(f"ds_read_b32 v{R.K2}, v{R.K2A} offset:{toff(t+2)}")
        E(8); C(3); E(9); V(); E(10); C(4); E(11)
        A(f"v_mfma_f32_32x32x16_bf16 {v(R.O,16)}, {v(R.V1,4)}, {v(R.P,4)}, {v(R.O,16) if t else 0}")
        A(f"s_mov_b64 exec, s[{sVMASK}:{sVMASK+1}]")
        A(f"ds_read_b128 {v(R.V2,4)}, v{R.VA} offset:{toff(t) + 640}")
        if t < 63: A(f"ds_read_b128 {v(R.V1,4)}, v{R.VA} offset:{toff(t+1)}")
        A("s_mov_b64 exec, -1")
        E(12); C(5); E(13); E(14); E(15); C(6); C(7)
        assert not ops_t
    A("s_waitcnt lgkmcnt(0)")
    A(f"v_mfma_f32_32x32x16_bf16 {v(R.O,16)}, {v(R.V2,4)}, {v(R.P+4,4)}, {v(R.O,16)}")
    A.label("L_post_attn")
    A("s_setprio 0")
    stamp(A, cfg, 2)
    A("s_waitcnt vmcnt(0)")
    A(f"v_readfirstlane_b32 s{sTMP}, v{R.XRES+8}")
    A(f"v_readfirstlane_b32 s{sTMP+1}, v{R.XRES+9}")
    A(f"v_and_b32 v{T+1}, 15, v0")
    A(f"v_bfe_u32 v{T+2}, v0, 4, 1")
    A(f"v_lshrrev_b32 v{T+3}, 5, v0")
    A(f"v_lshlrev_b32 v{T+1}, 4, v{T+1}")
    A(f"v_mul_u32_u24 v{T+2}, {80*256}, v{T+2}")
    A(f"v_lshl_add_u32 v{T+1}, v{T+3}, 8, v{T+1}")
    A(f"v_add_u32 v{T+7}, v{T+1}, v{T+2}")
    A(f"s_lshr_b64 s[{sTMP}:{sTMP+1}], s[{sTMP}:{sTMP+1}], s{sXCC}")
    A(f"s_and_b32 s{sFAST}, s{sTMP}, 63")
    A(f"s_cmp_eq_u32 s{sFAST}, 32")
    A(f"s_cselect_b32 s{sFAST}, {0 if cfg.get('noFast') else 1}, 0")
    A(f"v_mov_b32 v{T}, 0")
    for k in range(0, 10, 2): A(f"v_max3_f32 v{T}, v{T}, abs(v{R.O+k}), abs(v{R.O+k+1})")
    A(f"s_mov_b32 s{sT0}, {fhex(2.0**-40)}")
    A(f"s_mov_b32 s{sT1}, {fhex(2.0**64)}")
    A(f"s_mov_b32 s{sT2}, {fhex(2.0**127)}")
    A(f"v_cmp_le_f32 vcc, s{sT0}, v{R.O+10}")
    A(f"v_cmp_ge_f32 s[{sTMP}:{sTMP+1}], s{sT1}, v{R.O+10}")
    A(f"v_cmp_ge_f32 s[{sTMP+2}:{sTMP+3}], s{sT2}, v{T}")
    A(f"s_and_b64 vcc, vcc, s[{sTMP}:{sTMP+1}]")
    A(f"s_and_b64 vcc, vcc, s[{sTMP+2}:{sTMP+3}]")
    A(f"s_cmp_eq_u64 vcc, -1" if not cfg.get("force_slow") else "s_cmp_eq_u32 s2, -1")
    A("s_cbranch_scc0 L_attn_slow")
    A.label("L_attn_norm")
    A(f"v_rcp_f32 v{T}, v{R.O+10}")
    A(f"s_mul_i32 s{sT0}, s{sQT}, {2*80*256}")
    A(f"s_lshr_b32 s{sT1}, s{sM}, 3")
    A(f"s_mul_i32 s{sT1}, s{sT1}, {20*256}")
    A(f"s_add_u32 s{sT0}, s{sT0}, s{sT1}")
    A(f"s_add_u32 s{sT0}, s{sT0}, {hex(WS_O)}")
    A(f"s_and_b32 s{sT1}, s{sM}, 7")
    A(f"s_lshl_b32 s{sT1}, s{sT1}, 9")
    A(f"s_add_u32 s{sT1}, s{sT1}, s{sT0}")
    A(f"s_bfe_u32 s{sT2}, s{sM}, 0x10002")
    A(f"s_lshl_b32 s{sT2}, s{sT2}, 9")
    A(f"s_add_u32 s{sT0}, s{sT0}, s{sT2}")
    A(f"s_and_b32 s{sT2}, s{sM}, 3")
    A(f"s_lshl_b32 s{sT2}, s{sT2}, 2")
    A(f"s_add_u32 s{sT0}, s{sT0}, s{sT2}")
    A(f"s_add_u32 s{sT0}, s{sT0}, {16*256}")
    for k in range(10): A(f"v_mul_f32 v{R.O+k}, v{T}, v{R.O+k}")
    for k in range(5): A(f"v_cvt_pk_bf16_f32 v{R.O+k}, v{R.O+2*k}, v{R.O+2*k+1}")
    stores(A, [f"buffer_store_dwordx4 {v(R.O,4)}, v{T+7}, s[{SWS}:{SWS+3}], s{sT1} offen",
               f"buffer_store_dword v{R.O+4}, v{T+7}, s[{SWS}:{SWS+3}], s{sT0} offen"])

    BF, ACC = 16, 56
    vHP, vHS, vPW = 1, 2, 3
    A(f"s_lshr_b32 s{sT2}, s{sWAVE}, 2")
    A(f"s_lshl_b32 s{sB}, s{sT2}, 1")
    A(f"s_add_u32 s{sB}, s{sB}, s{sTOK16}")
    A(f"s_mul_i32 s{sB}, s{sB}, {80*256}")
    A(f"s_mul_i32 s{sT1}, s{sLW}, {20*256}")
    A(f"s_add_u32 s{sB}, s{sB}, s{sT1}")
    A(f"s_add_u32 s{sB}, s{sB}, {hex(WS_O)}")
    A(f"s_lshl_b32 s{sT0}, s{sLW}, 1")
    A(f"s_add_u32 s{sT0}, s{sT0}, s{sT2}")
    A(f"s_mul_i32 s{sT0}, s{sT0}, 10240")
    A(f"s_add_u32 s{sT0}, s{sT0}, {KV_BASE}")
    A(f"v_add_u32 v{vPW}, s{sT0}, v{R.L16}")
    A(f"s_lshr_b32 s{sT0}, s{sWAVE}, 1")
    A(f"s_add_u32 s{sT0}, s{sT0}, s{sTOK16}")
    A(f"s_mul_i32 s{sT0}, s{sT0}, {80*256}")
    A(f"s_mul_i32 s{sT1}, s{sFG}, 2560")
    A(f"s_add_u32 s{sT0}, s{sT0}, s{sT1}")
    A(f"s_add_u32 s{sT0}, s{sT0}, {hex(WS_H)}")
    A(f"v_bfe_u32 v{T+2}, v0, 4, 1")
    A(f"v_lshl_add_u32 v{T+1}, v{T+2}, 3, v{T+1}")
    A(f"v_add_u32 v{T+1}, 2048, v{T+1}")
    A(f"v_add_u32 v{vHS}, s{sT0}, v{T+1}")
    A(f"s_and_b32 s{sT1}, s{sWAVE}, 1")
    A(f"s_lshl_b32 s{sT1}, s{sT1}, 10")
    A(f"s_add_u32 s{sT0}, s{sT0}, s{sT1}")
    A(f"v_add_u32 v{vHP}, s{sT0}, v{R.L16}")
    stamp(A, cfg, 3)
    sync(A, 0, 0, False, 0)
    stamp(A, cfg, 4)
    for i in range(2):
        for st in range(5):
            if st % 4 == 0: A(f"s_add_u32 s{sT1}, s{sB}, {i*80*256 + st*1024}")
            A(f"buffer_load_dwordx4 {v(BF+20*i+4*st,4)}, v{R.L16}, s[{SWS}:{SWS+3}], s{sT1} offen offset:{(st%4)*1024} sc1")
    for i in range(2):
        for st in range(5):
            A(f"s_waitcnt vmcnt({9 - (5*i+st)})")
            for f in range(5):
                acc = v(ACC + 20 * i + 4 * f, 4)
                A(f"v_mfma_f32_16x16x32_bf16 {acc}, {a(20*st+4*f,4)}, {v(BF+20*i+4*st,4)}, {acc if st else 0}")
            if i == 1:
                A(f"ds_write_b128 v{vPW}, {v(ACC+4*st,4)} offset:{st*1024}")
    for f in range(5):
        A(f"ds_write_b128 v{vPW}, {v(ACC+20+4*f,4)} offset:{5120 + f*1024}")
    stamp(A, cfg, 5)
    D = 16
    final_reduce(A, 4, KV_BASE, D, R.XRES)
    for i in range(6): A(f"v_accvgpr_write_b32 a{A_RES+i}, v{D+i}")
    sm, sq = D + 8, D + 9
    A(f"s_and_b32 s{sT1}, s{sWAVE}, 1")
    A(f"s_cmp_eq_u32 s{sT1}, 0")
    A(f"s_cselect_b64 vcc, -1, 0")
    A(f"s_cselect_b32 s{sT2}, 0, {hex(WS_SIZE)}")
    A(f"v_mov_b32 v{T+2}, 0x3f803f80")
    A(f"v_cndmask_b32 v{D+6}, 0, v{D+4}, vcc")
    A(f"v_cndmask_b32 v{D+7}, 0, v{D+5}, vcc")
    A(f"v_dot2_f32_bf16 v{sm}, v{D}, v{T+2}, 0")
    A(f"v_dot2_f32_bf16 v{sq}, v{D}, v{D}, 0")
    for i in (1, 2, 3, 6, 7):
        A(f"v_dot2_f32_bf16 v{sm}, v{D+i}, v{T+2}, v{sm}")
        A(f"v_dot2_f32_bf16 v{sq}, v{D+i}, v{D+i}, v{sq}")
    for op in ("v_permlane16_swap_b32", "v_permlane32_swap_b32"):
        A(f"v_mov_b32 v{T}, v{sm}")
        A(f"v_mov_b32 v{T+1}, v{sq}")
        A(f"{op} v{sm}, v{T}")
        A(f"{op} v{sq}, v{T+1}")
        A(f"v_pk_add_f32 {v(sm,2)}, {v(sm,2)}, {v(T,2)}")
    A(f"s_lshr_b32 s{sT0}, s{sWAVE}, 1")
    A(f"s_add_u32 s{sT0}, s{sT0}, s{sTOK16}")
    A(f"s_lshl_b32 s{sT0}, s{sT0}, 11")
    A(f"s_lshl_b32 s{sB}, s{sFG}, 1")
    A(f"s_add_u32 s{sB}, s{sB}, s{sT1}")
    A(f"s_lshl_b32 s{sB}, s{sB}, 3")
    A(f"s_add_u32 s{sT0}, s{sT0}, s{sB}")
    A(f"s_add_u32 s{sT0}, s{sT0}, {hex(WS_ST2)}")
    A(f"v_lshlrev_b32 v{T}, 7, v0")
    stores(A, [f"buffer_store_dwordx4 {v(D,4)}, v{vHP}, s[{SWS}:{SWS+3}], 0 offen",
               f"buffer_store_dwordx2 {v(D+4,2)}, v{vHS}, s[{SWS}:{SWS+3}], s{sT2} offen",
               "s_mov_b64 exec, 0xffff",
               f"buffer_store_dwordx2 {v(sm,2)}, v{T}, s[{SWS}:{SWS+3}], s{sT0} offen",
               "s_mov_b64 exec, -1"])

    TRA, VB, VST, VS2 = 1, 2, 3, 5
    G1, Gh, rho, c0, c1 = T+2, T+3, T+4, T+5, T+6
    A(f"v_bfe_u32 v{G1}, v0, 4, 1")
    A(f"v_lshrrev_b32 v{Gh}, 5, v0")
    A(f"v_bfe_u32 v{rho}, v0, 2, 2")
    A(f"v_and_b32 v{c0}, 1, v0")
    A(f"v_bfe_u32 v{c1}, v0, 1, 1")
    A(f"v_lshl_add_u32 v{TRA}, v{Gh}, 3, v{rho}")
    A(f"v_mul_u32_u24 v{TRA}, 192, v{TRA}")
    A(f"v_mul_u32_u24 v{c1}, {GU_UP}, v{c1}")
    A(f"v_add_u32 v{TRA}, v{TRA}, v{c1}")
    A(f"v_lshl_add_u32 v{TRA}, v{c0}, 4, v{TRA}")
    A(f"v_lshl_add_u32 v{TRA}, v{G1}, 3, v{TRA}")
    A(f"s_cmp_ge_u32 s{sWAVE}, 4")
    A("s_cbranch_scc1 L_gu_loader")
    ACC, AF, BF, NB = 16, 0, 24, 8
    sGT = sQT
    A(f"s_and_b32 s{sGT}, s{sTOK16}, -8")
    A(f"s_lshl_b32 s{sT0}, s{sWAVE}, 1")
    A(f"s_add_u32 s{sGT}, s{sGT}, s{sT0}")
    A(f"s_mul_i32 s{sB}, s{sGT}, {80*256}")
    A(f"s_add_u32 s{sB}, s{sB}, {hex(WS_H)}")
    A(f"v_and_b32 v{VB}, 15, v0")
    A(f"v_lshlrev_b32 v{VB}, 4, v{VB}")
    A(f"v_lshl_add_u32 v{VB}, v{Gh}, 8, v{VB}")
    A(f"v_mul_u32_u24 v{VST}, {192*256}, v{G1}")
    A(f"v_add_u32 v{VST}, v{VST}, v{VB}")
    A(f"v_mul_u32_u24 v{c0}, {80*256}, v{G1}")
    A(f"v_add_u32 v{VB}, v{VB}, v{c0}")
    A(f"v_and_b32 v{VS2}, 31, v0")
    A(f"v_lshlrev_b32 v{VS2}, 7, v{VS2}")
    A(f"v_lshl_add_u32 v{VS2}, v{Gh}, 6, v{VS2}")
    def trread(st, t):
        sl = st % 4
        for u in range(2):
            A(f"ds_read_b64_tr_b16 {a(AF+4*t+2*u,2)}, v{TRA} offset:{(16*sl+4*u)*192 + 32*t}")
    for t in range(6): trread(0, t)
    stamp(A, cfg, 6)
    sync(A, 1, 0, True, 0)
    stamp(A, cfg, 7)
    def loadB(st):
        if st % 8 == 0 and st: A(f"s_add_u32 s{sB}, s{sB}, 4096")
        if cfg.get("gu_noloadb"): return
        A(f"buffer_load_dwordx4 {a(BF+4*(st%NB),4)}, v{VB}, s[{SWS}:{SWS+3}], s{sB} offen offset:{(st%8)*512} sc1")
    ops = []
    for st in range(NB): loadB(st); ops.append(st)
    ST = 66
    for st in range(40):
        c, sl = divmod(st, 4)
        nxt = st + 1 < 40
        if sl == 3 and nxt:
            A("s_barrier")
            d = GU_SLOT if (c + 1) % 6 else -5 * GU_SLOT
            A(f"v_add_u32 v{TRA}, {d & 0xffffffff}, v{TRA}")
        if not cfg.get("gu_nob"): A(f"s_waitcnt vmcnt({len(ops) - 1 - ops.index(st)})")
        for t in range(6):
            A(f"s_waitcnt lgkmcnt({10 if nxt or t == 0 else 10-2*t})")
            acc = v(ACC + 16 * t, 16)
            A(f"v_mfma_f32_32x32x16_bf16 {acc}, {a(AF+4*t,4)}, {a(BF+4*(st%NB),4)}, {acc if st else 0}")
            if nxt and not cfg.get("gu_notr"): trread(st + 1, t)
        if st + NB < 40: loadB(st + NB); ops.append(st + NB)
        if st == 8:
            load_wd(A, 2); ops += ["w"] * 5
        if st in (12, 20):
            A(f"s_lshl_b32 s{sT0}, s{sGT}, 11")
            A(f"s_add_u32 s{sT0}, s{sT0}, {hex(WS_ST2)}")
            for i in range(2):
                A(f"buffer_load_dwordx4 {v(T+4*i,4)}, v{VS2}, s[{SWS}:{SWS+3}], s{sT0} offen offset:{(32 if st == 20 else 0) + 16*i} sc1")
            ops += [f"s{st}"] * 2
        if st in (19, 27):
            A(f"s_waitcnt vmcnt({len(ops) - 1 - max(i for i, o in enumerate(ops) if o == f's{st-7}')})")
            A(f"v_pk_add_f32 {v(T,2)}, {v(T,2)}, {v(T+2,2)}")
            A(f"v_pk_add_f32 {v(T+4,2)}, {v(T+4,2)}, {v(T+6,2)}")
            if st == 19: A(f"v_pk_add_f32 {v(6,2)}, {v(T,2)}, {v(T+4,2)}")
            else:
                A(f"v_pk_add_f32 {v(T,2)}, {v(T,2)}, {v(T+4,2)}")
                A(f"v_pk_add_f32 {v(6,2)}, {v(6,2)}, {v(T,2)}")
        if st == 30:
            mean, rstd, MB = 6, 7, T
            A(f"v_mov_b32 v{T}, v6")
            A(f"v_mov_b32 v{T+1}, v7")
            A(f"v_permlane32_swap_b32 v6, v{T}")
            A(f"v_permlane32_swap_b32 v7, v{T+1}")
            A(f"v_pk_add_f32 {v(6,2)}, {v(6,2)}, {v(T,2)}")
            A(f"v_mul_f32 v{mean}, {fhex(1/640)}, v6")
            A(f"v_mul_f32 v{rstd}, {fhex(1/640)}, v7")
            A(f"v_fma_f32 v{rstd}, -v{mean}, v{mean}, v{rstd}")
            A(f"v_max_f32 v{rstd}, 0, v{rstd}")
            A(f"v_add_f32 v{rstd}, {fhex(1e-5)}, v{rstd}")
            A(f"v_rcp_f32 v{rstd}, v{rstd}")
        if st == 32:
            A(f"v_cvt_pk_bf16_f32 v{MB}, -v{mean}, -v{mean}")
            A(f"v_and_b32 v{T+2}, 0xffff0000, v{MB}")
            A(f"v_sub_f32 v{T+2}, -v{mean}, v{T+2}")
            A(f"v_cvt_pk_bf16_f32 v{MB+1}, v{T+2}, 0")
            A(f"v_cmp_gt_u32 vcc, 32, v0")
            A(f"v_cndmask_b32 v{MB}, 0, v{MB}, vcc")
            A(f"v_cndmask_b32 v{MB+1}, 0, v{MB+1}, vcc")
            A(f"v_and_b32 v{T+2}, 31, v0")
            A(f"v_lshlrev_b32 v{T+2}, 3, v{T+2}")
            A(f"v_add_u32 v{T+2}, {GU_MISC + 3072}, v{T+2}")
    stamp(A, cfg, 8)
    A("s_barrier")
    A("s_barrier")
    for t in range(6): A(f"ds_read_b64 {a(AF+2*t,2)}, v{T+2} offset:{256*t}")
    A(f"s_mul_i32 s{sB}, s{sGT}, {192*256}")
    A(f"s_mul_i32 s{sT0}, s{sJ}, {12*256}")
    A(f"s_add_u32 s{sB}, s{sB}, s{sT0}")
    A(f"s_add_u32 s{sB}, s{sB}, {hex(WS_HID)}")
    for t in range(6):
        A(f"s_waitcnt lgkmcnt({5-t})")
        A(f"v_mfma_f32_32x32x8_bf16 {v(ACC+16*t,16)}, {a(AF+2*t,2)}, {v(MB,2)}, {v(ACC+16*t,16)}")
    A(f"v_mov_b32 v6, v7")
    for t in range(6):
        r = ACC + 16 * t
        for q in range(2):
            for b in range(4): A(f"v_max_f32 v{r+8*q+b}, 0, v{r+8*q+b}")
            for b in (0, 2): A(f"v_pk_mul_f32 {v(r+8*q+4+b,2)}, {v(r+8*q+4+b,2)}, {v(6,2)}")
            for b in (0, 2): A(f"v_pk_mul_f32 {v(r+8*q+b,2)}, {v(r+8*q+b,2)}, {v(r+8*q+4+b,2)}")
        A(f"v_cvt_pk_bf16_f32 v{r}, v{r}, v{r+1}")
        A(f"v_cvt_pk_bf16_f32 v{r+1}, v{r+2}, v{r+3}")
        A(f"v_cvt_pk_bf16_f32 v{r+2}, v{r+8}, v{r+9}")
        A(f"v_cvt_pk_bf16_f32 v{r+3}, v{r+10}, v{r+11}")
        stores(A, [f"buffer_store_dwordx4 {v(r,4)}, v{VST}, s[{SWS}:{SWS+3}], s{sB} offen offset:{512*t}"])
    for stp in (3, 4, 5): load_wd(A, stp)
    stamp(A, cfg, 9)
    A("s_waitcnt vmcnt(15)")
    A("s_branch L_gu_done")

    A.label("L_gu_loader")
    CS, LF = 16, 32
    for i in range(12): A(f"v_mov_b32 v{CS+i}, 0")
    A(f"v_add_u32 v{TRA}, s{sGM0}, v{TRA}")
    A("s_waitcnt vmcnt(0)")
    A("s_barrier")
    gu_dma(A, 3, None)
    A("s_barrier")
    ops = [3] * 6
    for c in range(10):
        if c > 0:
            if c >= 3 and not cfg.get("gu_now"): A(f"s_waitcnt vmcnt({len(ops) - 1 - max(i for i, o in enumerate(ops) if o == c)})")
            A("s_barrier")
        if c + 4 < 10:
            vops = [] if cfg.get("gu_nodma") else gu_dma_ops(c + 4)
            ops += [c + 4] * 6
        else:
            vops = [] if cfg.get("gu_nowd") else load_wd_ops(c - 4)
            ops += ["w"] * 5
        if not cfg.get("gu_spread", 1):
            for op in vops: emit(op)
            vops = []
        for t in range(6):
            for u in range(2):
                A(f"ds_read_b64_tr_b16 {v(LF+4*t+2*u,2)}, v{TRA} offset:{4*u*192 + 32*t}")
        d = GU_SLOT if (c + 1) % 6 else -5 * GU_SLOT
        A(f"v_add_u32 v{TRA}, {d & 0xffffffff}, v{TRA}")
        for t in range(6):
            if vops: emit(vops.pop(0))
            A(f"s_waitcnt lgkmcnt({10-2*t})")
            for i in range(4):
                A(f"v_lshlrev_b32 v{LF+24}, 16, v{LF+4*t+i}")
                A(f"v_and_b32 v{LF+25}, 0xffff0000, v{LF+4*t+i}")
                A(f"v_add_f32 v{CS+2*t}, v{CS+2*t}, v{LF+24}")
                A(f"v_add_f32 v{CS+2*t+1}, v{CS+2*t+1}, v{LF+25}")
    A(f"v_and_b32 v{T+2}, 31, v0")
    A(f"v_lshlrev_b32 v{T+2}, 4, v{T+2}")
    A(f"s_lshl_b32 s{sT0}, s{sLW}, 2")
    A(f"s_add_u32 s{sT0}, s{sT0}, {GU_MISC}")
    A(f"v_add_u32 v{T+2}, s{sT0}, v{T+2}")
    for t in range(6):
        r = CS + 2 * t
        A(f"v_add_f32 v{r}, v{r}, v{r+1}")
        A(f"v_mov_b32 v{r+1}, v{r}")
        A(f"v_permlane32_swap_b32 v{r}, v{r+1}")
        A(f"v_add_f32 v{r}, v{r}, v{r+1}")
        A(f"ds_write_b32 v{T+2}, v{r} offset:{512*t}")
    A(f"s_lshl_b32 s{sT0}, s{sLW}, 6")
    A(f"v_add_u32 v{T+3}, s{sT0}, v0")
    A(f"v_min_u32 v{T+3}, 191, v{T+3}")
    A(f"v_lshlrev_b32 v{T+4}, 4, v{T+3}")
    A(f"v_add_u32 v{T+4}, {GU_MISC}, v{T+4}")
    A(f"v_lshlrev_b32 v{T+3}, 3, v{T+3}")
    A(f"v_add_u32 v{T+3}, {GU_MISC + 3072}, v{T+3}")
    A("s_waitcnt lgkmcnt(0)")
    A("s_barrier")
    cs = CS
    A(f"ds_read_b128 {v(cs,4)}, v{T+4}")
    A("s_waitcnt lgkmcnt(0)")
    A(f"v_add_f32 v{cs}, v{cs}, v{cs+1}")
    A(f"v_add_f32 v{cs+2}, v{cs+2}, v{cs+3}")
    A(f"v_add_f32 v{cs}, v{cs}, v{cs+2}")
    A(f"v_cvt_pk_bf16_f32 v{cs+1}, v{cs}, v{cs}")
    A(f"v_and_b32 v{cs+1}, 0xffff0000, v{cs+1}")
    A(f"v_sub_f32 v{cs}, v{cs}, v{cs+1}")
    A(f"v_cvt_pk_bf16_f32 v{cs+2}, v{cs+1}, v{cs}")
    A(f"v_lshrrev_b32 v{cs+3}, 16, v{cs+1}")
    A(f"ds_write_b64 v{T+3}, {v(cs+2,2)}")
    A("s_waitcnt lgkmcnt(0)")
    A("s_barrier")
    A.label("L_gu_done")

    BF, ACC, NBD = 16, 72, 14
    vXP, vXS, vPW = 1, 2, 3
    A(f"s_mul_i32 s{sB}, s{sTOK16}, {192*256}")
    A(f"s_mul_i32 s{sT0}, s{sWAVE}, {24*256}")
    A(f"s_add_u32 s{sB}, s{sB}, s{sT0}")
    A(f"s_add_u32 s{sB}, s{sB}, {hex(WS_HID)}")
    A(f"s_mul_i32 s{sT0}, s{sWAVE}, 20480")
    A(f"v_add_u32 v{vPW}, s{sT0}, v{R.L16}")
    sync(A, 2, 4, True, 63)
    stamp(A, cfg, 10)
    def loadBd(q):
        tt, st = divmod(q, 6)
        if st % 4 == 0: A(f"s_add_u32 s{sT1}, s{sB}, {tt*192*256 + st*1024}")
        A(f"buffer_load_dwordx4 {v(BF+4*(q%NBD),4)}, v{R.L16}, s[{SWS}:{SWS+3}], s{sT1} offen offset:{(st%4)*1024} sc1")
    for q in range(NBD): loadBd(q)
    issued = NBD
    for q in range(24):
        tt, st = divmod(q, 6)
        A(f"s_waitcnt vmcnt({issued - 1 - q})")
        for f in range(5):
            acc = v(ACC + 20 * (tt % 2) + 4 * f, 4)
            A(f"v_mfma_f32_16x16x32_bf16 {acc}, {a(WD(st)+4*f,4)}, {v(BF+4*(q%NBD),4)}, {acc if st else 0}")
        if issued < 24:
            loadBd(issued); issued += 1
        if tt > 0 and st < 5:
            A(f"ds_write_b128 v{vPW}, {v(ACC+20*((tt-1)%2)+4*st,4)} offset:{(tt-1)*5120 + st*1024}")
    addr_rowmajor(A, vXP, vXS, T)
    for f in range(5):
        A(f"ds_write_b128 v{vPW}, {v(ACC+20+4*f,4)} offset:{3*5120 + f*1024}")
    stamp(A, cfg, 11)
    D = 16
    T_ = R.T
    class _NoRes: pass
    final_reduce_down(A, D)
    A(f"s_and_b32 s{sT1}, s{sWAVE}, 1")
    A(f"s_cmp_eq_u32 s{sT1}, 0")
    A(f"s_cselect_b32 s{sT2}, 0, {hex(X_BYTES)}")
    A(f"buffer_store_dwordx4 {v(D,4)}, v{vXP}, s[{SO}:{SO+3}], 0 offen")
    A(f"buffer_store_dwordx2 {v(D+4,2)}, v{vXS}, s[{SO}:{SO+3}], s{sT2} offen")
    stamp(A, cfg, 12)
    stamp_flush(A, cfg, 13, 4, SWS, sWAVE, 0)
    A.label("L_end")
    A("s_endpgm")

    A.label("L_attn_slow")
    A(f"v_subrev_u32 v{R.VA}, {KV_BASE + 1280}, v{R.VA}")
    A(f"v_mov_b32 v{R.Q2+1}, 0")
    A(f"v_mov_b32 v{T}, 0xff800000")
    A(f"s_mov_b32 s{sT0}, s{sKBASE}")
    A(f"s_add_u32 s{sT1}, s{sKBASE}, {PAIR_STRIDE}")
    A.label("L_attn_slow1")
    A(f"buffer_load_dwordx4 {v(R.K1,4)}, v{R.F2S+1}, s[{SWS}:{SWS+3}], s{sT0} offen")
    A(f"buffer_load_dword v{R.K2}, v{R.F2S}, s[{SWS}:{SWS+3}], s{sT0} offen")
    A("s_waitcnt vmcnt(0)")
    A(f"v_mfma_f32_32x32x16_bf16 {v(S0,16)}, {v(R.K1,4)}, {v(R.Q1,4)}, 0")
    A(f"v_mfma_f32_32x32x8_bf16 {v(S0,16)}, {v(R.K2,2)}, {v(R.Q2,2)}, {v(S0,16)}")
    max16(A, T, S0, False)
    A(f"s_add_u32 s{sT0}, s{sT0}, 2560")
    A(f"s_cmp_lt_u32 s{sT0}, s{sT1}")
    A("s_cbranch_scc1 L_attn_slow1")
    A(f"v_mov_b32 v{R.KA}, v{T+1}")
    xhalf_max(A, T, T+1)
    set_shift(A, T)
    A(f"v_mov_b32 v{T+1}, v{R.KA}")
    for k in range(16): A(f"v_mov_b32 v{R.O+k}, 0")
    A(f"s_mov_b32 s{sT0}, s{sKBASE}")
    A(f"s_mov_b32 s{sT2}, s{sVBASE}")
    A.label("L_attn_slow2")
    A(f"buffer_load_dwordx4 {v(R.K1,4)}, v{R.F2S+1}, s[{SWS}:{SWS+3}], s{sT0} offen")
    A(f"buffer_load_dword v{R.K2}, v{R.F2S}, s[{SWS}:{SWS+3}], s{sT0} offen")
    A(f"s_mov_b64 exec, s[{sVMASK}:{sVMASK+1}]")
    A(f"buffer_load_dwordx4 {v(R.V1,4)}, v{R.VA}, s[{SWS}:{SWS+3}], s{sT2} offen")
    A(f"buffer_load_dwordx4 {v(R.V2,4)}, v{R.VA}, s[{SWS}:{SWS+3}], s{sT2} offen offset:640")
    A("s_mov_b64 exec, -1")
    A("s_waitcnt vmcnt(0)")
    A(f"v_mfma_f32_32x32x16_bf16 {v(S0,16)}, {v(R.K1,4)}, {v(R.Q1,4)}, 0")
    A(f"v_mfma_f32_32x32x8_bf16 {v(S0,16)}, {v(R.K2,2)}, {v(R.Q2,2)}, {v(S0,16)}")
    for k in range(16): A(f"v_exp_f32 v{S0+k}, v{S0+k}")
    for k in range(8): A(f"v_cvt_pk_bf16_f32 v{R.P+k}, v{S0+2*k}, v{S0+2*k+1}")
    A(f"v_mfma_f32_32x32x16_bf16 {v(R.O,16)}, {v(R.V1,4)}, {v(R.P,4)}, {v(R.O,16)}")
    A(f"v_mfma_f32_32x32x16_bf16 {v(R.O,16)}, {v(R.V2,4)}, {v(R.P+4,4)}, {v(R.O,16)}")
    A(f"s_add_u32 s{sT0}, s{sT0}, 2560")
    A(f"s_add_u32 s{sT2}, s{sT2}, 1280")
    A(f"s_cmp_lt_u32 s{sT0}, s{sT1}")
    A("s_nop 7")
    A("s_cbranch_scc1 L_attn_slow2")
    A("s_nop 7")
    A("s_branch L_attn_norm")
    A.label("L_code_end")
    return dict(name=name, grid=256, block=512, lds=163840, desc=kernel_desc(name, 256, NV))

def final_reduce_down(A, D):
    T, L16, P = R.T, R.L16, 8
    A(f"s_lshr_b32 s{sT0}, s{sWAVE}, 1")
    A(f"s_mul_i32 s{sT0}, s{sT0}, 5120")
    A(f"v_add_u32 v{T+1}, s{sT0}, v{L16}")
    A(f"s_and_b32 s{sT1}, s{sWAVE}, 1")
    A(f"s_lshl_b32 s{sT1}, s{sT1}, 11")
    A(f"v_add_u32 v{T}, s{sT1}, v{T+1}")
    A(f"v_add_u32 v{T+2}, {3*20480}, v{T}")
    A(f"v_add_u32 v{T+3}, {3*20480}, v{T+1}")
    A(f"v_add_u32 v{T+4}, {6*20480}, v{T}")
    A(f"v_add_u32 v{T+5}, {6*20480}, v{T+1}")
    A("s_waitcnt lgkmcnt(0)")
    A("s_barrier")
    for p in range(P):
        for e in range(2):
            A(f"ds_read_b128 {v(D+12*p+4*e,4)}, v{T+2*(p//3)} offset:{(p%3)*20480 + e*1024}")
        A(f"ds_read_b128 {v(D+12*p+8,4)}, v{T+1+2*(p//3)} offset:{(p%3)*20480 + 4096}")
    for p in range(1, P):
        A(f"s_waitcnt lgkmcnt({min(15, 3*(P-1-p))})")
        for i in range(0, 12, 2): A(f"v_pk_add_f32 {v(D+i,2)}, {v(D+i,2)}, {v(D+12*p+i,2)}")
    for i in range(6):
        A(f"v_accvgpr_read_b32 v{T+2}, a{A_RES+i}")
        A(f"v_lshlrev_b32 v{T}, 16, v{T+2}")
        A(f"v_and_b32 v{T+1}, 0xffff0000, v{T+2}")
        A(f"v_pk_add_f32 {v(D+2*i,2)}, {v(D+2*i,2)}, {v(T,2)}")
    for i in range(6): A(f"v_cvt_pk_bf16_f32 v{D+i}, v{D+2*i}, v{D+2*i+1}")
```

```python
from common import *

def gen_qkv(A, cfg):
    name = "qkv_kernel"
    kstart(A, name)
    SX, SW, SWS, SP, SD = 4, 8, 12, 36, 48
    sWAVE, sTB, sFG, sXO, sXLIM, sWO, sT0, sT1, sT2, sM0 = 16, 17, 18, 19, 20, 21, 22, 23, 24, 25
    sTILE, sBASE, sQS, sC0, sID = 26, 27, 28, 30, 31
    vTR = 4
    vT = 8
    SLOT = 32768
    CSL = SLOT
    STL = SLOT + 2048
    A("s_cmp_ge_u32 s2, 256")
    A("s_cbranch_scc1 L_qkv_end")
    A("s_load_dwordx4 s[4:7], s[0:1], 0")
    A("s_load_dwordx4 s[48:51], s[0:1], 64")
    A("s_load_dwordx2 s[32:33], s[0:1], 16")
    A("s_load_dwordx2 s[34:35], s[0:1], 48")
    stamp(A, cfg, 0)
    A(f"v_lshrrev_b32 v{vT}, 6, v0")
    A(f"s_cmp_lt_u32 s2, 16")
    A(f"v_readfirstlane_b32 s{sWAVE}, v{vT}")
    A("s_cbranch_scc1 L_qkv_helper")
    A(f"v_and_b32 v0, 63, v0")
    A(f"s_sub_u32 s{sID}, s2, 16")
    A(f"s_and_b32 s{sT0}, s{sID}, 7")
    A(f"s_lshr_b32 s{sT1}, s{sID}, 3")
    A(f"s_lshr_b32 s{sT2}, s{sT0}, 2")
    A(f"s_mul_i32 s{sT2}, s{sT2}, 30")
    A(f"s_add_u32 s{sT1}, s{sT1}, s{sT2}")
    A(f"s_lshr_b32 s{sFG}, s{sT1}, 2")
    A(f"s_and_b32 s{sT1}, s{sT1}, 3")
    A(f"s_and_b32 s{sT2}, s{sT0}, 3")
    A(f"s_lshl_b32 s{sT2}, s{sT2}, 2")
    A(f"s_add_u32 s{sTB}, s{sT2}, s{sT1}")
    A(f"s_cmp_ge_u32 s{sWAVE}, 4")
    A("s_cbranch_scc1 L_qkv_loader")

    def tr_addr(permuted, tiles):
        rho, cc, g1, kh, base = vT, vT+1, vT+2, vT+3, vT+4
        A(f"v_bfe_u32 v{rho}, v0, 2, 2")
        A(f"v_bfe_u32 v{g1}, v0, 4, 1")
        A(f"v_lshrrev_b32 v{kh}, 5, v0")
        A(f"v_lshl_add_u32 v{base}, v{kh}, 3, v{rho}")
        A(f"v_lshlrev_b32 v{base}, 8, v{base}")
        A(f"v_lshl_add_u32 v{base}, v{g1}, 5, v{base}")
        if permuted:
            A(f"v_and_b32 v{cc}, 1, v0")
            A(f"v_lshl_add_u32 v{base}, v{cc}, 4, v{base}")
            A(f"v_bfe_u32 v{cc}, v0, 1, 1")
            A(f"v_lshl_add_u32 v{base}, v{cc}, 3, v{base}")
        else:
            A(f"v_and_b32 v{cc}, 3, v0")
            A(f"v_lshl_add_u32 v{base}, v{cc}, 3, v{base}")
        for j, t in enumerate(tiles):
            A(f"v_xor_b32 v{vTR+j}, {t}, v{rho}")
            A(f"v_lshl_add_u32 v{vTR+j}, v{vTR+j}, 6, v{base}")
    def rebase(c):
        def base(c): return ((c % 5) // 2) * 2 * SLOT
        return (base(c) - base(c - 1) if c else 0), (c % 5) * SLOT - base(c)

    ACC, FR, vBA, vADR, vST = 16, 80, 112, 116, 120
    sFH2 = 29
    A(f"s_and_b32 s{sT0}, s{sWAVE}, 1")
    A(f"s_and_b32 s{sFH2}, s{sWAVE}, 2")
    sJ0, sJ1 = 44, 45
    A(f"s_mov_b32 s{sJ0}, s{sWAVE}")
    A(f"s_xor_b32 s{sJ1}, s{sWAVE}, 1")
    A(f"s_lshl_b32 s{sTILE}, s{sTB}, 1")
    A(f"s_add_u32 s{sTILE}, s{sTILE}, s{sT0}")
    A(f"s_lshl_b32 s{sTILE}, s{sTILE}, 1")
    A(f"s_lshl_b32 s{sT0}, s{sT0}, 13")
    A(f"s_add_u32 s{sT0}, s{sT0}, 16384")
    A(f"v_and_b32 v{vT}, 31, v0")
    A(f"v_lshrrev_b32 v{vT+1}, 5, v0")
    A(f"v_bfe_u32 v{vT+2}, v0, 1, 3")
    A(f"v_xor_b32 v{vT+1}, v{vT+1}, v{vT+2}")
    A(f"v_lshlrev_b32 v{vT}, 7, v{vT}")
    A(f"v_lshl_add_u32 v{vT}, v{vT+1}, 4, v{vT}")
    A(f"v_add_u32 v{vBA}, s{sT0}, v{vT}")
    for st in range(1, 4): A(f"v_xor_b32 v{vBA+st}, {32*st}, v{vBA}")
    A("s_waitcnt lgkmcnt(0)")
    srd(A, SWS, 50, WS_SIZE)
    srd(A, SD, SD, 256)
    CSA, ONE, MB, RS, vSA = 152, 168, 172, 176, 178
    for i in range(4): A(f"v_mov_b32 v{ONE+i}, 0x3f803f80")
    A(f"s_lshl_b32 s{sXO}, s{sTB}, 11")
    A(f"s_add_u32 s{sXO}, s{sXO}, {hex(WS_ST1)}")
    A(f"s_and_b32 s{sT0}, s{sWAVE}, 1")
    A(f"s_lshl_b32 s{sT0}, s{sT0}, 6")
    A(f"v_and_b32 v{vT}, 31, v0")
    A(f"v_add_u32 v{vT}, s{sT0}, v{vT}")
    A(f"v_lshlrev_b32 v{vSA}, 3, v{vT}")
    A(f"v_cmp_gt_u32 vcc, 32, v0")
    A(f"v_mov_b32 v{vT+1}, 0x7f000000")
    A(f"v_cndmask_b32 v{vSA}, v{vT+1}, v{vSA}, vcc")
    A(f"v_lshlrev_b32 v{vSA+1}, 2, v{vT}")
    A(f"v_lshrrev_b32 v{vT}, 5, v0")
    A(f"v_lshlrev_b32 v{vT}, 2, v{vT}")
    A(f"v_add_u32 v{vT}, s{sT0}, v{vT}")
    A(f"v_lshlrev_b32 v{vSA+2}, 2, v{vT}")
    A(f"v_mov_b32 v{vSA+3}, 0")
    A(f"s_lshl_b32 s{sXLIM}, s{sTB}, 2")
    A(f"s_cmp_ge_u32 s{sFG}, 10")
    A("s_cbranch_scc1 L_qkv_V")

    def mainloop(isV):
        q = []
        def reads(st):
            c, sl = divmod(st, 4)
            _, so = rebase(c)
            b = FR + 16 * (st % 2)
            out = []
            for u in range(2): out.append((f"ds_read_b64_tr_b16 {v(b+2*u,2)}, v{vTR} offset:{so + (16*sl+4*u)*256}", (st, "A0")))
            out.append((f"ds_read_b128 {v(b+8,4)}, v{vBA+sl} offset:{so}", (st, "B0")))
            out.append((f"ds_read_b128 {v(b+12,4)}, v{vBA+sl} offset:{so + 4096}", (st, "B1")))
            for u in range(2): out.append((f"ds_read_b64_tr_b16 {v(b+4+2*u,2)}, v{vTR+1} offset:{so + (16*sl+4*u)*256}", (st, "A1")))
            return out
        def issue(r): A(r[0]); q.append(r[1])
        def wait(tag): A(f"s_waitcnt lgkmcnt({len(q) - 1 - max(i for i, x in enumerate(q) if x == tag)})")
        A("s_barrier")
        for r in reads(0): issue(r)
        stamp(A, cfg, 1)
        for st in range(40):
            nxt = st + 1 < 40
            if st % 4 == 3 and nxt:
                A("s_barrier")
                if cfg.get("qts"): A(f"s_memtime s[{70+2*(st//4)}:{71+2*(st//4)}]")
                d, _ = rebase((st + 1) // 4)
                if d:
                    for r in (vTR, vTR + 1, vBA, vBA + 1, vBA + 2, vBA + 3): A(f"v_add_u32 v{r}, {d & 0xffffffff}, v{r}")
            rs = reads(st + 1) if nxt else []
            b = FR + 16 * (st % 2)
            for k, (i, j, tag, nr) in enumerate(((0, 0, "B0", 2), (1, 0, "B1", 2), (0, 1, "A1", 2), (1, 1, None, 0))):
                if tag: wait((st, tag))
                af = v(b + 4 * j, 4); xf = v(b + 8 + 4 * i, 4); acc = v(ACC + 32 * i + 16 * j, 16); c = acc if st else "0"
                if isV: A(f"v_mfma_f32_32x32x16_bf16 {acc}, {xf}, {af}, {c}")
                else:   A(f"v_mfma_f32_32x32x16_bf16 {acc}, {af}, {xf}, {c}")
                for _ in range(nr):
                    if rs: issue(rs.pop(0))
            A(f"v_mfma_f32_32x32x16_bf16 {v(CSA,16)}, {v(ONE,4)}, {v(b,4)}, {v(CSA,16) if st else 0}")
            if st == cfg.get("q_fl", 27):
                A(f"buffer_load_dword v{vT}, v{vSA+3}, s[{SD}:{SD+3}], s{sXLIM} offen sc1")
            if st == cfg.get("q_fc", 33):
                LP, LD = A.newlabel("qp"), A.newlabel("qd")
                A(f"s_mov_b32 s{sT1}, 0")
                A.label(LP)
                A("s_waitcnt vmcnt(0)")
                A(f"v_cmp_eq_u32 vcc, 0, v{vT}")
                A(f"s_add_u32 s{sT1}, s{sT1}, 1")
                A(f"s_cmp_lt_u32 s{sT1}, 0x40000")
                A(f"s_cselect_b64 vcc, vcc, 0")
                A(f"s_cbranch_vccz {LD}")
                A(f"buffer_load_dword v{vT}, v{vSA+3}, s[{SD}:{SD+3}], s{sXLIM} offen sc1")
                A(f"s_branch {LP}")
                A.label(LD)
                for i in range(2): A(f"buffer_load_dwordx2 {v(MB+2*i,2)}, v{vSA}, s[{SWS}:{SWS+3}], s{sXO} offen offset:{256*i} sc1")
                if isV:
                    for i in range(2):
                        for aa in range(4): A(f"buffer_load_dwordx4 {v(vST+16*i+4*aa,4)}, v{vSA+2}, s[{SWS}:{SWS+3}], s{sXO} offen offset:{1024 + 128*i + 32*aa} sc1")
                else:
                    for i in range(2): A(f"buffer_load_dword v{RS+i}, v{vSA+1}, s[{SWS}:{SWS+3}], s{sXO} offen offset:{1024 + 128*i} sc1")
        stamp(A, cfg, 2)

    def correction(isV):
        cs = CSA
        A(f"s_lshl_b32 s{sT0}, s{sJ0}, 9")
        A(f"s_lshl_b32 s{sT1}, s{sJ1}, 9")
        A(f"v_lshlrev_b32 v{vT}, 3, v0")
        A(f"v_add_u32 v{vT+1}, s{sT1}, v{vT}")
        A(f"v_add_u32 v{vT}, s{sT0}, v{vT}")
        A(f"v_cvt_pk_bf16_f32 v{cs+1}, v{cs}, v{cs}")
        A(f"v_and_b32 v{cs+1}, 0xffff0000, v{cs+1}")
        A(f"v_sub_f32 v{cs}, v{cs}, v{cs+1}")
        A(f"v_cvt_pk_bf16_f32 v{cs+2}, v{cs+1}, v{cs}")
        A(f"v_lshrrev_b32 v{cs+3}, 16, v{cs+1}")
        A(f"ds_write_b64 v{vT}, {v(cs+2,2)} offset:{CSL}")
        def corr(j, cf):
            for i in range(2):
                mb = v(MB + 2 * i, 2); acc = v(ACC + 32 * i + 16 * j, 16)
                if isV: A(f"v_mfma_f32_32x32x8_bf16 {acc}, {mb}, {cf}, {acc}")
                else:   A(f"v_mfma_f32_32x32x8_bf16 {acc}, {cf}, {mb}, {acc}")
        A("s_waitcnt vmcnt(0) lgkmcnt(0)")
        A("s_barrier")
        A(f"ds_read_b64 {v(cs+4,2)}, v{vT+1} offset:{CSL}")
        corr(0, v(cs + 2, 2))
        A("s_waitcnt lgkmcnt(0)")
        corr(1, v(cs + 4, 2))

    STF = cfg.get("qkv_st", "")
    tr_addr(True, (f"s{sJ0}", f"s{sJ1}"))
    t0, t1, t2, tok16, half = vT, vT+1, vT+2, vT+4, vT+6
    A(f"s_cmp_ge_u32 s{sFG}, 5")
    A(f"s_cselect_b32 s{sT1}, 5, 0")
    A(f"s_cselect_b32 s{sBASE}, {hex(WS_K)}, {hex(WS_Q)}")
    A(f"s_cselect_b32 s{sQS}, 1.0, {fhex(QSCALE)}")
    A(f"s_sub_u32 s{sT1}, s{sFG}, s{sT1}")
    A(f"s_lshl_b32 s{sT1}, s{sT1}, 4")
    A(f"s_mul_i32 s{sT2}, s{sTILE}, 2560")
    A(f"s_add_u32 s{sBASE}, s{sBASE}, s{sT2}")
    A(f"v_lshrrev_b32 v{half}, 5, v0")
    A(f"v_add_u32 v{half}, s{sT1}, v{half}")
    A(f"v_and_b32 v{tok16}, 31, v0")
    A(f"v_lshlrev_b32 v{tok16}, 4, v{tok16}")
    A(f"s_mov_b32 s{sT2}, {PAIR_STRIDE - 2560}")
    for q in range(4):
        A(f"s_lshl_b32 s{sT0}, s{sJ0 + q//2}, 2")
        A(f"s_add_u32 s{sT0}, s{sT0}, {2*(q%2)}")
        A(f"v_add_u32 v{t0}, s{sT0}, v{half}")
        A(f"v_mul_u32_u24 v{t1}, 205, v{t0}")
        A(f"v_lshrrev_b32 v{t1}, 10, v{t1}")
        A(f"v_mul_lo_u32 v{t1}, s{sT2}, v{t1}")
        A(f"v_lshl_add_u32 v{t0}, v{t0}, 9, v{tok16}")
        A(f"v_add_u32 v{vADR+q}, v{t0}, v{t1}")
    mainloop(False)
    correction(False)
    for i in range(2): A(f"v_mul_f32 v{RS+i}, s{sQS}, v{RS+i}")
    for j in range(2):
        for i in range(2):
            for sg in range(2):
                r = ACC + 32 * i + 16 * j + 8 * sg
                for b in range(8): A(f"v_mul_f32 v{r+b}, v{RS+i}, v{r+b}")
                for b in range(4): A(f"v_cvt_pk_bf16_f32 v{r+b}, v{r+2*b}, v{r+2*b+1}")
                A(f"buffer_store_dwordx4 {v(r,4)}, v{vADR+2*j+sg}, s[{SWS}:{SWS+3}], s{sBASE} offen offset:{2560*i} {STF}")
    A("s_branch L_qkv_fin")

    A.label("L_qkv_V")
    tr_addr(False, (f"s{sJ0}", f"s{sJ1}"))
    A(f"s_mul_i32 s{sBASE}, s{sTILE}, 1280")
    A(f"s_add_u32 s{sBASE}, s{sBASE}, {hex(WS_V)}")
    A(f"s_sub_u32 s{sT1}, s{sFG}, 10")
    A(f"s_lshl_b32 s{sT1}, s{sT1}, 7")
    A(f"v_lshrrev_b32 v{half}, 5, v0")
    A(f"v_mul_u32_u24 v{half}, 320, v{half}")
    A(f"v_and_b32 v{tok16}, 31, v0")
    A(f"v_add_u32 v{tok16}, s{sT1}, v{tok16}")
    A(f"s_mov_b32 s{sT2}, {VHEAD_STRIDE - 320}")
    for j in range(2):
        A(f"s_lshl_b32 s{sT0}, s{sJ0 + j}, 5")
        A(f"v_add_u32 v{t0}, s{sT0}, v{tok16}")
        A(f"v_mul_u32_u24 v{t1}, 3277, v{t0}")
        A(f"v_lshrrev_b32 v{t1}, 16, v{t1}")
        A(f"v_mul_lo_u32 v{t1}, s{sT2}, v{t1}")
        A(f"v_lshl_add_u32 v{t0}, v{t0}, 4, v{half}")
        A(f"v_add_u32 v{vADR+j}, v{t0}, v{t1}")
    mainloop(True)
    correction(True)
    for j in range(2):
        for i in range(2):
            for mf in range(2):
                r = ACC + 32 * i + 16 * j + 8 * mf
                for b in range(8): A(f"v_mul_f32 v{r+b}, v{vST+16*i+8*mf+b}, v{r+b}")
                for b in range(4): A(f"v_cvt_pk_bf16_f32 v{r+b}, v{r+2*b}, v{r+2*b+1}")
                A(f"buffer_store_dwordx4 {v(r,4)}, v{vADR+j}, s[{SWS}:{SWS+3}], s{sBASE} offen offset:{1280*i + mf*640} {STF}")
    A.label("L_qkv_fin")
    stamp(A, cfg, 3)
    if cfg.get("qts"):
        for c in range(9): A(f"s_mov_b32 s{71+2*c}, s{70+2*c}")
        A("s_mov_b32 s68, 0")
        A("s_mov_b32 s69, 0")
        stamp_flush(A, cfg, 14, 17, SWS, sWAVE, 0)
        A("s_mov_b64 exec, -1")
    stamp_flush(A, cfg, 4, 0, SWS, sWAVE, 0)
    A("s_endpgm")

    A.label("L_qkv_loader")
    vWOFF, vXOFF = 1, 72
    CS, LF, VO, PF, L16 = 16, 24, 44, 52, 2
    sU, sPSRC, sPDST, sPLDS, sWLIM = 40, 41, 42, 43, 44
    if cfg.get("rot", 1):
        A(f"s_lshl_b32 s{sT0}, s{sT0}, 2")
        A(f"s_lshr_b32 s{sC0}, 0x30858530, s{sT0}")
        A(f"s_and_b32 s{sC0}, s{sC0}, 15")
    else:
        A(f"s_mov_b32 s{sC0}, 0")
    A(f"s_sub_u32 s{sWAVE}, s{sWAVE}, 4")
    A(f"v_and_b32 v{vT}, 15, v0")
    A(f"v_lshrrev_b32 v{vT+1}, 4, v0")
    A(f"v_lshlrev_b32 v{vT+2}, 2, v{vT+1}")
    A(f"v_xor_b32 v{vT+2}, v{vT+2}, v{vT}")
    A(f"v_mul_u32_u24 v{vWOFF}, 3840, v{vT+1}")
    A(f"v_lshl_add_u32 v{vWOFF}, v{vT+2}, 4, v{vWOFF}")
    A(f"v_and_b32 v{vT}, 7, v0")
    A(f"v_xor_b32 v{vT}, v{vT}, v{vT+1}")
    A(f"v_lshrrev_b32 v{vT+2}, 3, v0")
    A(f"v_mul_u32_u24 v{vT+2}, 1280, v{vT+2}")
    A(f"v_lshl_add_u32 v{vXOFF}, v{vT}, 4, v{vT+2}")
    A(f"v_xor_b32 v{vXOFF+1}, 64, v{vXOFF}")
    A(f"s_lshl_b32 s{sWO}, s{sFG}, 8")
    A(f"s_mul_i32 s{sT0}, s{sWAVE}, {16*3840}")
    A(f"s_add_u32 s{sWO}, s{sWO}, s{sT0}")
    A(f"s_add_u32 s{sWLIM}, s{sWO}, {640*3840}")
    A(f"s_mul_i32 s{sT0}, s{sC0}, {64*3840}")
    A(f"s_add_u32 s{sWO}, s{sWO}, s{sT0}")
    A(f"s_lshl_b32 s{sXO}, s{sTB}, 2")
    A(f"s_add_u32 s{sXO}, s{sXO}, s{sWAVE}")
    A(f"s_mul_i32 s{sXO}, s{sXO}, {32*1280}")
    A(f"s_lshl_b32 s{sT0}, s{sC0}, 7")
    A(f"s_add_u32 s{sXO}, s{sXO}, s{sT0}")
    A(f"s_lshl_b32 s{sM0}, s{sWAVE}, 12")
    A("s_waitcnt lgkmcnt(0)")
    srd(A, SW, 6, 640 * 1920 * 2)
    srd(A, SX, SX, X_BYTES)
    def prep_setup():
        A(f"s_lshl_b32 s{sU}, s{sID}, 2")
        A(f"s_add_u32 s{sU}, s{sU}, s{sWAVE}")
        A(f"v_lshlrev_b32 v{L16}, 4, v0")
        A(f"s_lshl_b32 s{sPLDS}, s{sWAVE}, 13")
        for jj in range(5):
            A(f"v_add_u32 v{vT}, {64*jj}, v0")
            A(f"v_mul_u32_u24 v{PF+jj}, 6554, v{vT}")
            A(f"v_lshrrev_b32 v{PF+jj}, 16, v{PF+jj}")
            A(f"v_mul_u32_u24 v{vT+1}, 10, v{PF+jj}")
            A(f"v_sub_u32 v{vT}, v{vT}, v{vT+1}")
            A(f"v_lshlrev_b32 v{VO+jj}, 4, v{vT}")
        A(f"s_cmp_ge_u32 s{sU}, 384")
        A("s_cbranch_scc1 L_qkv_pwo")
        srd(A, SP, 34, 1536 * 640 * 2)
        A(f"s_mul_i32 s{sT0}, s{sU}, 1366")
        A(f"s_lshr_b32 s{sT0}, s{sT0}, 16")
        A(f"s_mul_i32 s{sT1}, s{sT0}, 48")
        A(f"s_sub_u32 s{sT1}, s{sU}, s{sT1}")
        A(f"s_mul_i32 s{sPSRC}, s{sT1}, {32*1280}")
        A(f"s_mul_i32 s{sT0}, s{sT0}, 160")
        A(f"s_add_u32 s{sPSRC}, s{sPSRC}, s{sT0}")
        A(f"s_mul_i32 s{sPDST}, s{sU}, 5120")
        A(f"s_add_u32 s{sPDST}, s{sPDST}, {hex(WS_WD)}")
        A("s_branch L_qkv_pgo")
        A.label("L_qkv_pwo")
        srd(A, SP, 32, 640 * 640 * 2)
        A(f"s_sub_u32 s{sU}, s{sU}, 384")
        A(f"s_mul_i32 s{sT0}, s{sU}, 3277")
        A(f"s_lshr_b32 s{sT0}, s{sT0}, 16")
        A(f"s_mul_i32 s{sT1}, s{sT0}, 20")
        A(f"s_sub_u32 s{sT1}, s{sU}, s{sT1}")
        A(f"s_mul_i32 s{sPSRC}, s{sT0}, 160")
        A(f"s_mul_i32 s{sT0}, s{sT1}, 205")
        A(f"s_lshr_b32 s{sT0}, s{sT0}, 10")
        A(f"s_mul_i32 s{sT2}, s{sT0}, 5")
        A(f"s_sub_u32 s{sT1}, s{sT1}, s{sT2}")
        A(f"s_mul_i32 s{sT0}, s{sT0}, {160*1280}")
        A(f"s_add_u32 s{sPSRC}, s{sPSRC}, s{sT0}")
        A(f"s_mul_i32 s{sPDST}, s{sU}, 5120")
        A(f"s_add_u32 s{sPDST}, s{sPDST}, {hex(WS_WO)}")
        A(f"s_cmp_ge_u32 s{sU}, 160")
        A(f"s_cselect_b32 s{sPDST}, {hex(WS_SIZE)}, s{sPDST}")
        A(f"s_cselect_b32 s{SP+2}, 0, s{SP+2}")
        A(f"s_cmp_eq_u32 s{sT1}, 4")
        A("s_cbranch_scc1 L_qkv_pleft")
        A(f"s_mul_i32 s{sT1}, s{sT1}, {40*1280}")
        A(f"s_add_u32 s{sPSRC}, s{sPSRC}, s{sT1}")
        for jj in range(5):
            A(f"v_lshrrev_b32 v{vT}, 4, v{PF+jj}")
            A(f"v_lshl_add_u32 v{PF+jj}, v{vT}, 2, v{PF+jj}")
        A("s_branch L_qkv_pgo")
        A.label("L_qkv_pleft")
        for jj in range(5):
            k = PF + jj
            A(f"v_lshrrev_b32 v{vT}, 4, v{k}")
            A(f"v_mul_u32_u24 v{vT}, 80, v{vT}")
            A(f"v_bfe_u32 v{vT+1}, v{k}, 1, 2")
            A(f"v_mul_u32_u24 v{vT+1}, 20, v{vT+1}")
            A(f"v_add3_u32 v{vT}, v{vT}, v{vT+1}, 16")
            A(f"v_bfe_u32 v{vT+1}, v{k}, 3, 1")
            A(f"v_lshl_add_u32 v{vT}, v{vT+1}, 1, v{vT}")
            A(f"v_and_b32 v{vT+1}, 1, v{k}")
            A(f"v_add_u32 v{k}, v{vT}, v{vT+1}")
        A.label("L_qkv_pgo")
        for jj in range(5):
            A(f"v_mul_u32_u24 v{vT}, 1280, v{PF+jj}")
            A(f"v_add_u32 v{VO+jj}, v{VO+jj}, v{vT}")
        A(f"v_lshrrev_b32 v{vT}, 4, v0")
        A(f"v_bfe_u32 v{vT+1}, v0, 2, 2")
        A(f"v_lshl_add_u32 v{vT}, v{vT}, 3, v{vT+1}")
        A(f"v_mul_u32_u24 v{vT}, 160, v{vT}")
        A(f"v_add_u32 v{vT}, s{sPLDS}, v{vT}")
        A(f"v_and_b32 v{vT+1}, 3, v0")
        A(f"v_lshl_add_u32 v{VO+5}, v{vT+1}, 4, v{vT}")
        A(f"v_lshl_add_u32 v{VO+6}, v{vT+1}, 3, v{vT}")
    def dma_ops(c):
        ops = []
        for j in range(4):
            ops.append([f"s_add_u32 m0, s{sM0}, {(c%5)*SLOT + j*1024}", f"s_add_u32 s{sT0}, s{sWO}, {4*j*3840}",
                        f"buffer_load_dwordx4 v{vWOFF}, s[{SW}:{SW+3}], s{sT0} offen lds"])
            ops.append([f"s_add_u32 m0, s{sM0}, {(c%5)*SLOT + 16384 + j*1024}", f"s_add_u32 s{sT0}, s{sXO}, {8*j*1280}",
                        f"buffer_load_dwordx4 v{vXOFF+(j%2)}, s[{SX}:{SX+3}], s{sT0} offen lds"])
        ops[-1] += [f"s_add_u32 s{sWO}, s{sWO}, {64*3840}", f"s_add_u32 s{sXO}, s{sXO}, 128",
                    f"s_cmp_eq_u32 s{sWO}, s{sWLIM}", f"s_cselect_b32 s{sT0}, {640*3840}, 0", f"s_cselect_b32 s{sT1}, 1280, 0",
                    f"s_sub_u32 s{sWO}, s{sWO}, s{sT0}", f"s_sub_u32 s{sXO}, s{sXO}, s{sT1}"]
        return ops
    def emit(op):
        for x in op:
            if cfg.get("q_nodma") and x.startswith("buffer_"): continue
            A(x)
    IW = cfg.get("iw", 2)
    for c in range(IW):
        for op in dma_ops(c): emit(op)
    srd(A, SWS, 50, WS_SIZE)
    prep_setup()
    ops = [("w", c) for c in range(IW) for _ in range(8)]
    nw = IW
    def wait_for(tag):
        last = max(i for i, o in enumerate(ops) if o == tag)
        A(f"s_waitcnt vmcnt({len(ops) - 1 - last})")
    for c in range(10):
        wait_for(("w", c))
        A("s_barrier")
        for _ in range(cfg.get("maxi", 2)):
            if nw < min(10, max(5 if c < 2 else 0, c + 4), c + cfg.get("lead", 4) + 1):
                for op in dma_ops(nw): emit(op)
                ops += [("w", nw)] * 8; nw += 1
        if c == 7:
            for jj in range(5):
                A(f"s_add_u32 m0, s{sPLDS}, {jj*1024}")
                A(f"buffer_load_dwordx4 v{VO+jj}, s[{SP}:{SP+3}], s{sPSRC} offen lds")
            ops += [("p", 0)] * 5
    A("s_barrier")
    A("s_waitcnt vmcnt(0)")
    for f in range(5):
        for u in range(2):
            A(f"ds_read_b64_tr_b16 {v(PF+4*f+2*u,2)}, v{VO+5+(f==4)} offset:{4*u*160 + tile_col_imm(f)}")
    A("s_waitcnt lgkmcnt(0)")
    for f in range(5):
        A(f"s_add_u32 s{sT0}, s{sPDST}, {f*1024}")
        A(f"buffer_store_dwordx4 {v(PF+4*f,4)}, v{L16}, s[{SWS}:{SWS+3}], s{sT0} offen {STF}")
    A("s_endpgm")

    A.label("L_qkv_helper")
    XD = 16
    A("s_load_dwordx4 s[40:43], s[0:1], 32")
    if cfg.get("ctouch", 1):
        code_touch_setup(A, 46, "qkv_kernel", True)
        A(f"v_lshlrev_b32 v{vT+1}, 7, v0")
        A(f"v_min_u32 v{vT+1}, L_code_end-qkv_kernel-4, v{vT+1}")
        A(f"global_load_dword v{vT+7}, v{vT+1}, s[46:47]")
    A(f"v_and_b32 v0, 63, v0")
    A(f"s_and_b32 s{sTB}, s2, 3")
    A(f"s_lshl_b32 s{sTB}, s{sTB}, 2")
    A(f"s_bfe_u32 s{sT0}, s2, 0x10002")
    A(f"s_lshl_b32 s{sT0}, s{sT0}, 1")
    A(f"s_add_u32 s{sTB}, s{sTB}, s{sT0}")
    A(f"s_lshr_b32 s{sT0}, s2, 3")
    A(f"s_add_u32 s{sTB}, s{sTB}, s{sT0}")
    A(f"s_lshl_b32 s{sXO}, s{sTB}, 3")
    A(f"s_add_u32 s{sXO}, s{sXO}, s{sWAVE}")
    A(f"s_mul_i32 s{sXO}, s{sXO}, {16*1280}")
    A(f"s_add_u32 s{sXLIM}, s{sXO}, {8*1280}")
    A(f"v_lshrrev_b32 v2, 3, v0")
    A(f"v_and_b32 v3, 7, v0")
    A(f"v_mul_u32_u24 v1, 1280, v2")
    A(f"v_lshl_add_u32 v1, v3, 4, v1")
    A("s_waitcnt lgkmcnt(0)")
    srd(A, SX, SX, X_BYTES)
    for g in range(2):
        for k in range(10):
            A(f"buffer_load_dwordx4 {v(XD+40*g+4*k,4)}, v1, s[{SX}:{SX+3}], s{sXLIM if g else sXO} offen offset:{128*k}")
    srd(A, SWS, 50, WS_SIZE)
    srd(A, SD, SD, 256)
    A(f"v_mov_b32 v4, 0x3f803f80")
    A(f"s_lshl_b32 s{sT0}, s{sWAVE}, 4")
    A(f"v_add_u32 v2, s{sT0}, v2")
    A(f"v_lshlrev_b32 v5, 3, v2")
    A(f"v_lshlrev_b32 v6, 2, v2")
    A(f"s_lshl_b32 s{sBASE}, s{sTB}, 11")
    A(f"s_add_u32 s{sBASE}, s{sBASE}, {hex(WS_ST1)}")
    A(f"s_mov_b32 s{sT1}, 0x01010101")
    for g in range(2):
        sm, sq = vT, vT + 1
        for k in range(10):
            A(f"s_waitcnt vmcnt({19 - (10*g+k) + (2 if g else 0)})")
            for i in range(4):
                r = XD + 40 * g + 4 * k + i
                first = (k == 0 and i == 0)
                A(f"v_dot2_f32_bf16 v{sm}, v{r}, v4, {0 if first else 'v%d' % sm}")
                A(f"v_dot2_f32_bf16 v{sq}, v{r}, v{r}, {0 if first else 'v%d' % sq}")
        for dpp in ("quad_perm:[1,0,3,2]", "quad_perm:[2,3,0,1]", "row_half_mirror"):
            A(f"v_add_f32_dpp v{sm}, v{sm}, v{sm} {dpp} row_mask:0xf bank_mask:0xf")
            A(f"v_add_f32_dpp v{sq}, v{sq}, v{sq} {dpp} row_mask:0xf bank_mask:0xf")
        A(f"v_mul_f32 v{sm}, {fhex(1/640)}, v{sm}")
        A(f"v_mul_f32 v{sq}, {fhex(1/640)}, v{sq}")
        A(f"v_fma_f32 v{sq}, -v{sm}, v{sm}, v{sq}")
        A(f"v_max_f32 v{sq}, 0, v{sq}")
        A(f"v_add_f32 v{sq}, {fhex(1e-5)}, v{sq}")
        A(f"v_rsq_f32 v{vT+4}, v{sq}")
        A(f"v_cvt_pk_bf16_f32 v{vT+2}, -v{sm}, -v{sm}")
        A(f"v_and_b32 v{vT+3}, 0xffff0000, v{vT+2}")
        A(f"v_sub_f32 v{vT+3}, -v{sm}, v{vT+3}")
        A(f"v_cvt_pk_bf16_f32 v{vT+3}, v{vT+3}, 0")
        A(f"s_mov_b32 exec_lo, s{sT1}")
        A(f"s_mov_b32 exec_hi, s{sT1}")
        A(f"buffer_store_dwordx2 {v(vT+2,2)}, v5, s[{SWS}:{SWS+3}], s{sBASE} offen offset:{64*g} sc1")
        A(f"buffer_store_dword v{vT+4}, v6, s[{SWS}:{SWS+3}], s{sBASE} offen offset:{1024 + 32*g} sc1")
        A("s_mov_b64 exec, -1")
    A("s_waitcnt vmcnt(0)")
    A("s_barrier")
    A(f"s_lshl_b32 s{sT0}, s{sTB}, 2")
    A(f"s_cmp_eq_u32 s{sWAVE}, 0")
    A(f"s_cselect_b32 s{sT0}, s{sT0}, 256")
    A(f"v_mov_b32 v2, 1")
    A(f"v_mov_b32 v3, 0")
    A("s_mov_b64 exec, 1")
    A(f"buffer_store_dword v2, v3, s[{SD}:{SD+3}], s{sT0} offen sc1")
    A("s_mov_b64 exec, -1")
    A(f"s_lshl_b32 s{sT0}, s{sWAVE}, 10")
    A(f"s_add_u32 s{sT0}, s{sT0}, {hex(WS_SYNC)}")
    A(f"s_cmp_eq_u32 s2, 0")
    A(f"s_cselect_b32 s{sT0}, s{sT0}, {hex(WS_SIZE)}")
    for i in range(4): A(f"v_mov_b32 v{XD+i}, 0")
    A(f"v_lshlrev_b32 v1, 4, v0")
    A(f"buffer_store_dwordx4 {v(XD,4)}, v1, s[{SWS}:{SWS+3}], s{sT0} offen")
    if cfg.get("gwarm", 0):
        srd(A, SW, 40, 640 * 1536 * 2)
        srd(A, SP, 42, 640 * 1536 * 2)
        A(f"s_lshl_b32 s{sT0}, s2, 3")
        A(f"s_add_u32 s{sT0}, s{sT0}, s{sWAVE}")
        A(f"s_mul_i32 s{sT0}, s{sT0}, {120*128}")
        A(f"s_add_u32 s{sT1}, s{sT0}, {60*128}")
        A(f"v_lshlrev_b32 v1, 7, v0")
        for sr in (SW, SP):
            for so in (sT0, sT1):
                A(f"buffer_load_dword v2, v1, s[{sr}:{sr+3}], s{so} offen")
    A.label("L_qkv_end")
    A("s_endpgm")
    return dict(name=name, grid=256, block=512, lds=163840, desc=kernel_desc(name, 184, 184))
```

```python
import sys, json
from common import *
from k_qkv import gen_qkv
from k_main import gen_main
HEADER = open("sequential_preLN__softmax_full_mha__glu_gated_reglu__prompt.s.ref").read().split("; Override launch")[0]

def build(cfg, gens):
    A = Asm()
    ks = [k for k in (g(A, cfg) for g in gens) if k]
    body = A.finalize()
    out = HEADER
    for k in ks:
        out += f"; @launch {'' if len(ks) == 1 else 'kernel=' + k['name'] + ' '}grid=({k['grid']},1,1) block=({k['block']},1,1) lds={k['lds']}\n"
    out += '.amdgcn_target "amdgcn-amd-amdhsa--gfx950"\n.text\n' + body
    out += '.section .rodata,"a"\n'
    for k in ks:
        out += ".p2align 6\n" + k["desc"]
    return out

if __name__ == "__main__":
    cfg = json.loads(sys.argv[2]) if len(sys.argv) > 2 else {}
    if "prio" in cfg: cfg["prio"] = {int(k): v for k, v in cfg["prio"].items()}
    if cfg.get("k1") == "h":
        from k_qkv_h import gen_qkv
    open(sys.argv[1], "w").write(build(cfg, [gen_qkv, gen_main]))
```

```python
from common import *

GU_SLOT = 24608
GU_UP = 12288 + 32
GU_MISC = 6 * GU_SLOT
PART_BASE = 3 * GU_SLOT
KV_SLOT = 20480
KV_BASE = 163840 - 3 * KV_SLOT
NV = 112

class R:
    S = (16, 32); O = 48; P = 64; K1 = 72; K2 = 76; V1 = 80; V2 = 84; Q1 = 88; Q2 = 92
    KA = 1; K2A = 2; VA = 3; L16 = 4; F2S = 5; L4 = 7; T = 8; TCH = 94
    GV = 96
    XRES = 100

SX, SWS, SG_, SU, SO = 4, 8, 12, 16, 20
sWAVE, sG, sM, sT0, sT1, sT2, sC, sDELTA, sSLOT, sQT = 24, 25, 26, 27, 28, 29, 30, 31, 32, 33
sVMASK = 34
sKSRC, sVSRC, sKBASE, sVBASE, sFG, sTOK16, sJ, sFAST, sWOSRC, sWDSRC, sGSRC, sGM0, sFLAG, sB, sXCC, sLW = 36, 37, 38, 39, 40, 41, 42, 43, 44, 45, 46, 47, 48, 49, 50, 51
sTMP = 52
SWO_, SWD_ = 92, 96
sSTG, sWDRAW, sTO = 86, 87, 90

def WD(step):
    return {0: 100, 1: 120, 2: 80, 3: 0, 4: 20, 5: 40}[step]
A_RES = 60

def set_shift(A, m):
    t0, t1, t2 = m + 1, m + 2, m + 3
    A(f"v_cvt_pk_bf16_f32 v{t0}, -v{m}, -v{m}")
    A(f"v_and_b32 v{t0}, 0xffff0000, v{t0}")
    A(f"v_sub_f32 v{t1}, -v{m}, v{t0}")
    A(f"v_cvt_pk_bf16_f32 v{t2}, v{t0}, v{t1}")
    A(f"v_and_b32 v{t0}, 0xffff0000, v{t2}")
    A(f"v_sub_f32 v{t1}, v{t1}, v{t0}")
    A(f"v_cvt_pk_bf16_f32 v{t1}, v{t1}, 0")
    A(f"v_cmp_gt_u32 vcc, 32, v0")
    A(f"v_cndmask_b32 v{R.Q2+1}, v{t1}, v{t2}, vcc")

def max16(A, dst, S, first):
    if first:
        A(f"v_max3_f32 v{dst}, v{S}, v{S+1}, v{S+2}")
        A(f"v_max_f32 v{dst}, v{dst}, v{S+3}")
        rng = range(4, 16, 2)
    else:
        rng = range(0, 16, 2)
    for i in rng: A(f"v_max3_f32 v{dst}, v{dst}, v{S+i}, v{S+i+1}")

def xhalf_max(A, m, t):
    A(f"v_mov_b32 v{t}, v{m}")
    A(f"v_permlane32_swap_b32 v{m}, v{t}")
    A(f"v_max_f32 v{m}, v{m}, v{t}")

def stores(A, lst):
    L1, L2 = A.newlabel("stf"), A.newlabel("ste")
    A(f"s_cmp_lg_u32 s{sFAST}, 0")
    A(f"s_cbranch_scc1 {L1}")
    for x in lst: A(x + (" sc1" if x.startswith("buffer_") else ""))
    A(f"s_branch {L2}")
    A.label(L1)
    for x in lst: A(x)
    A.label(L2)

def sync(A, idx, poller, half, nleft, between=None):
    T = R.T
    A(f"s_waitcnt vmcnt({nleft})")
    A("s_barrier")
    L, LP = A.newlabel("sy"), A.newlabel("poll")
    A(f"s_cmp_lg_u32 s{sWAVE}, {poller}")
    if between is not None:
        LB = A.newlabel("btw")
        A(f"s_cbranch_scc1 {LB}")
    else:
        A(f"s_cbranch_scc1 {L}")
    A(f"s_lshl_b32 s{sT0}, s{sM}, 2")
    A(f"s_add_u32 s{sT0}, s{sT0}, s{sFLAG}")
    A(f"v_mov_b32 v{T}, 1")
    A(f"v_mov_b32 v{T+1}, 0")
    A("s_mov_b64 exec, 1")
    stores(A, [f"buffer_store_dword v{T}, v{T+1}, s[{SWS}:{SWS+3}], s{sT0} offen offset:{idx*128}"])
    if half:
        A(f"s_and_b32 s{sT0}, s{sM}, 2")
        A(f"s_lshl_b32 s{sT0}, 0x33333333, s{sT0}")
        A(f"s_mov_b32 exec_lo, s{sT0}")
    else:
        A("s_mov_b32 exec_lo, -1")
    A(f"v_lshlrev_b32 v{T+1}, 2, v0")
    A(f"s_mov_b32 s{sT1}, 0")
    A.label(LP)
    A(f"buffer_load_dword v{T}, v{T+1}, s[{SWS}:{SWS+3}], s{sFLAG} offen offset:{idx*128} sc1")
    A(f"s_add_u32 s{sT1}, s{sT1}, 1")
    A("s_waitcnt vmcnt(0)")
    A(f"v_cmp_eq_u32 vcc, 0, v{T}")
    A(f"s_cmp_lt_u32 s{sT1}, 0x40000")
    A(f"s_cselect_b64 vcc, vcc, 0")
    A(f"s_cbranch_vccnz {LP}")
    A("s_mov_b64 exec, -1")
    if between is not None:
        A("s_barrier")
        between()
        A(f"s_branch {L}")
        A.label(LB)
        between()
        A("s_barrier")
        A.label(L)
    else:
        A.label(L)
        A("s_barrier")

def addr_rowmajor(A, vp, vs, T):
    A(f"v_and_b32 v{T}, 15, v0")
    A(f"v_lshrrev_b32 v{T+1}, 4, v0")
    A(f"v_mul_u32_u24 v{T}, 1280, v{T}")
    A(f"s_add_u32 s{sT0}, s{sLW}, s{sTOK16}")
    A(f"s_mul_i32 s{sT0}, s{sT0}, {16*1280}")
    A(f"s_mul_i32 s{sT1}, s{sFG}, 160")
    A(f"s_add_u32 s{sT0}, s{sT0}, s{sT1}")
    A(f"v_add_u32 v{T}, s{sT0}, v{T}")
    A(f"v_lshl_add_u32 v{vp}, v{T+1}, 4, v{T}")
    A(f"v_lshl_add_u32 v{vs}, v{T+1}, 3, v{T}")
    A(f"v_add_u32 v{vs}, 128, v{vs}")
    A(f"s_and_b32 s{sT0}, s{sWAVE}, 4")
    A(f"s_lshl_b32 s{sT0}, s{sT0}, 4")
    A(f"v_add_u32 v{vp}, s{sT0}, v{vp}")

def reduce_addr(A, P, base, RA):
    A(f"s_mul_i32 s{sT0}, s{sLW}, 5120")
    A(f"s_and_b32 s{sT1}, s{sWAVE}, 4")
    A(f"s_lshl_b32 s{sT1}, s{sT1}, 9")
    A(f"s_add_u32 s{sT0}, s{sT0}, s{sT1}")
    A(f"s_add_u32 s{sT0}, s{sT0}, {base}")
    A(f"v_add_u32 v{RA}, s{sT0}, v{R.L16}")
    for k in range(1, (P + 2) // 3): A(f"v_add_u32 v{RA+k}, {3*20480*k}, v{RA}")

def reduce_sum(A, P, D, RA, n):
    W = 4 * n
    for p in range(P):
        for e in range(n):
            A(f"ds_read_b128 {v(D+W*p+4*e,4)}, v{RA+p//3} offset:{(p%3)*20480 + (e*1024 if e < 2 else 4096)}")
    for p in range(1, P):
        A(f"s_waitcnt lgkmcnt({min(15, n*(P-1-p))})")
        for i in range(0, W, 2): A(f"v_pk_add_f32 {v(D+i,2)}, {v(D+i,2)}, {v(D+W*p+i,2)}")

CFG = {}
def gu_dma_ops(c):
    ops = []
    for isup in range(2):
        sr = SU if isup else SG_
        for jj in range(3):
            ops.append([f"s_add_u32 m0, s{sGM0}, {(c%6)*GU_SLOT + isup*GU_UP + jj*1024}",
                        f"s_add_u32 s{sT0}, s{sGSRC}, {(3 if CFG.get('gu_same') else c)*64*3072}",
                        f"buffer_load_dwordx4 v{R.GV+jj}, s[{sr}:{sr+3}], s{sT0} offen lds"])
    return ops
def load_wd_ops(step):
    return [[f"s_add_u32 s{sT0}, s{sWDSRC}, {step*5120 + f*1024}",
             f"buffer_load_dwordx4 {a(WD(step)+4*f,4)}, v{R.L16}, s[{SWS}:{SWS+3}], s{sT0} offen"] for f in range(5)]
def gu_dma(A, c, rows):
    A(f"s_add_u32 s{sT0}, s{sGSRC}, {c*64*3072}")
    for isup in range(2):
        sr = SU if isup else SG_
        for jj in range(3):
            A(f"s_add_u32 m0, s{sGM0}, {(c%6)*GU_SLOT + isup*GU_UP + jj*1024}")
            A(f"buffer_load_dwordx4 v{R.GV+jj}, s[{sr}:{sr+3}], s{sT0} offen lds")

def load_wd(A, step):
    for f in range(5):
        if f % 4 == 0: A(f"s_add_u32 s{sT0}, s{sWDSRC}, {step*5120 + f*1024}")
        A(f"buffer_load_dwordx4 {a(WD(step)+4*f,4)}, v{R.L16}, s[{SWS}:{SWS+3}], s{sT0} offen offset:{(f%4)*1024}")

def cfg_touch_plan(cfg, gu_touch, out_touch, wd_touch):
    plan = cfg.get("tplan", [[25,"hid0"],[28,"hid1"],[33,"hid2"],[36,"g9"],[41,"g8"],[43,"g7"],[45,"g6"],[48,"g5"],[50,"h"],[52,"g4"],[54,"o"],[55,"st"],[56,"g3"]])
    out = []
    for t, w in plan:
        if w[0] == "g": out.append((t, gu_touch(int(w[1]))))
        else: out.append((t, {"o": out_touch(WS_O, 1280), "h": out_touch(WS_H, 1280), "hid": out_touch(WS_HID, 3072), "st": out_touch(WS_ST2, 128), "wd": wd_touch,
                                 "hid0": out_touch(WS_HID, 3072, 0, 8), "hid1": out_touch(WS_HID, 3072, 8, 8), "hid2": out_touch(WS_HID, 3072, 16, 8)}[w]))
    return out

def gen_main(A, cfg):
    name = "main_kernel"
    CFG.update(cfg)
    kstart(A, name)
    T = R.T
    A("s_cmp_ge_u32 s2, 256")
    A("s_cbranch_scc1 L_end")
    A(f"s_load_dwordx2 s[{SWS}:{SWS+1}], s[0:1], 72")
    A(f"s_load_dwordx2 s[{SX}:{SX+1}], s[0:1], 0")
    A(f"s_load_dwordx2 s[{SG_}:{SG_+1}], s[0:1], 32")
    A(f"s_load_dwordx2 s[{SU}:{SU+1}], s[0:1], 40")
    A(f"s_load_dwordx2 s[{SO}:{SO+1}], s[0:1], 56")
    stamp(A, cfg, 0)
    A(f"v_lshrrev_b32 v{T}, 6, v0")
    A(f"v_and_b32 v0, 63, v0")
    A(f"v_readfirstlane_b32 s{sWAVE}, v{T}")
    A(f"s_and_b32 s{sG}, s2, 7")
    A(f"s_lshr_b32 s{sM}, s2, 3")
    A(f"s_lshr_b32 s{sT0}, s{sM}, 1")
    A(f"s_mul_i32 s{sKBASE}, s{sT0}, {PAIR_STRIDE}")
    A(f"s_mul_i32 s{sVBASE}, s{sM}, {VHEAD_STRIDE}")
    A(f"s_add_u32 s{sVBASE}, s{sVBASE}, {hex(WS_V)}")
    A(f"s_lshl_b32 s{sQT}, s{sG}, 3")
    A(f"s_add_u32 s{sQT}, s{sQT}, s{sWAVE}")
    A(f"s_and_b32 s{sT1}, s{sM}, 1")
    A(f"v_lshlrev_b32 v{R.L16}, 4, v0")
    A(f"s_mul_i32 s{sT2}, s{sT1}, 1536")
    A(f"v_add_u32 v{R.F2S+1}, s{sT2}, v{R.L16}")
    A(f"v_and_b32 v{T}, 31, v0")
    A(f"v_lshrrev_b32 v{T+1}, 5, v0")
    A(f"v_lshlrev_b32 v{R.F2S}, 4, v{T}")
    A(f"v_lshl_add_u32 v{R.F2S}, v{T+1}, 2, v{R.F2S}")
    A(f"s_lshl_b32 s{sT1}, s{sT1}, 3")
    A(f"s_add_u32 s{sT1}, s{sT1}, 1024")
    A(f"v_add_u32 v{R.F2S}, s{sT1}, v{R.F2S}")
    A(f"s_mul_i32 s{sKSRC}, s{sWAVE}, 2560")
    A(f"s_add_u32 s{sKSRC}, s{sKSRC}, s{sKBASE}")
    A(f"s_mul_i32 s{sVSRC}, s{sWAVE}, 1280")
    A(f"s_mul_i32 s{sSLOT}, s{sWAVE}, 2560")
    A(f"v_lshlrev_b32 v{R.L4}, 2, v0")
    A(f"s_add_u32 s{sVSRC}, s{sVSRC}, s{sVBASE}")
    A("s_waitcnt lgkmcnt(0)")
    srd(A, SWS, SWS, WS_SIZE)
    KVF = cfg.get("kvflag", "")
    def kv_ops(c):
        lds = KV_BASE + (c % 3) * KV_SLOT
        return [
            [f"s_add_u32 m0, s{sSLOT}, {lds}", f"s_add_u32 s{sT0}, s{sKSRC}, {c*8*2560}",
             f"buffer_load_dwordx4 v{R.F2S+1}, s[{SWS}:{SWS+3}], s{sT0} offen {KVF} lds"],
            [f"s_add_u32 m0, s{sSLOT}, {lds+1024}", f"s_add_u32 s{sT0}, s{sKSRC}, {c*8*2560}",
             f"buffer_load_dword v{R.F2S}, s[{SWS}:{SWS+3}], s{sT0} offen {KVF} lds"],
            [f"s_add_u32 m0, s{sSLOT}, {lds+1280}", f"s_add_u32 s{sT0}, s{sVSRC}, {c*8*1280}",
             f"buffer_load_dwordx4 v{R.L16}, s[{SWS}:{SWS+3}], s{sT0} offen {KVF} lds"],
            [f"s_add_u32 m0, s{sSLOT}, {lds+2304}", f"s_add_u32 s{sT0}, s{sVSRC}, {c*8*1280+1024}",
             f"buffer_load_dword v{R.L4}, s[{SWS}:{SWS+3}], s{sT0} offen {KVF} lds"]]
    def emit(op):
        for x in op: A(x)
    A(f"s_mul_i32 s{sT2}, s{sQT}, 2560")
    A(f"s_add_u32 s{sT2}, s{sT2}, s{sKBASE}")
    A(f"s_add_u32 s{sT2}, s{sT2}, {hex(WS_Q)}")
    A(f"buffer_load_dwordx4 {v(R.Q1,4)}, v{R.F2S+1}, s[{SWS}:{SWS+3}], s{sT2} offen")
    A(f"buffer_load_dword v{R.Q2}, v{R.F2S}, s[{SWS}:{SWS+3}], s{sT2} offen")
    for op in kv_ops(0): emit(op)
    A(f"s_lshl_b32 s{sFLAG}, s{sG}, 10")
    A(f"s_add_u32 s{sFLAG}, s{sFLAG}, {hex(WS_SYNC)}")
    A(f"s_getreg_b32 s{sXCC}, hwreg(HW_REG_XCC_ID, 0, 3)")
    A(f"s_mul_i32 s{sXCC}, s{sXCC}, 6")
    A(f"s_lshr_b32 s{sFG}, s{sM}, 2")
    A(f"s_and_b32 s{sT0}, s{sM}, 3")
    A(f"s_lshl_b32 s{sTOK16}, s{sG}, 4")
    A(f"s_lshl_b32 s{sT0}, s{sT0}, 2")
    A(f"s_add_u32 s{sTOK16}, s{sTOK16}, s{sT0}")
    A(f"s_lshl_b32 s{sJ}, s{sFG}, 1")
    A(f"s_and_b32 s{sT0}, s{sM}, 1")
    A(f"s_add_u32 s{sJ}, s{sJ}, s{sT0}")
    A(f"s_and_b32 s{sLW}, s{sWAVE}, 3")
    A(f"s_mul_i32 s{sWOSRC}, s{sFG}, {20*5120}")
    A(f"s_mul_i32 s{sT0}, s{sLW}, {5*5120}")
    A(f"s_add_u32 s{sWOSRC}, s{sWOSRC}, s{sT0}")
    A(f"s_add_u32 s{sWOSRC}, s{sWOSRC}, {hex(WS_WO)}")
    A(f"s_mul_i32 s{sWDSRC}, s{sFG}, {48*5120}")
    A(f"s_mul_i32 s{sT0}, s{sWAVE}, {6*5120}")
    A(f"s_add_u32 s{sWDSRC}, s{sWDSRC}, s{sT0}")
    A(f"s_add_u32 s{sWDSRC}, s{sWDSRC}, {hex(WS_WD)}")
    A(f"s_mul_i32 s{sGSRC}, s{sLW}, {16*3072}")
    A(f"s_mul_i32 s{sT0}, s{sJ}, 192")
    A(f"s_add_u32 s{sGSRC}, s{sGSRC}, s{sT0}")
    A(f"s_mul_i32 s{sGM0}, s{sLW}, 3072")
    srd(A, SX, SX, X_BYTES); srd(A, SG_, SG_, 640 * 1536 * 2); srd(A, SU, SU, 640 * 1536 * 2); srd(A, SO, SO, X_BYTES)
    A(f"v_add_u32 v{R.KA}, {KV_BASE}, v{R.L16}")
    A(f"v_add_u32 v{R.K2A}, {KV_BASE + 1024}, v{R.L4}")
    r, kh, aa, hf, b, i_, d1, d2 = T, T+1, T+2, T+3, T+4, T+5, T+6, T+7
    A(f"v_lshrrev_b32 v{aa}, 3, v{r}")
    A(f"v_bfe_u32 v{hf}, v{r}, 2, 1")
    A(f"v_and_b32 v{b}, 3, v{r}")
    A(f"v_lshl_add_u32 v{i_}, v{aa}, 2, v{b}")
    A(f"v_lshl_add_u32 v{d1}, v{hf}, 3, v{i_}")
    A(f"v_lshl_add_u32 v{d2}, v{hf}, 1, v{i_}")
    A(f"v_add_u32 v{d2}, 8, v{d2}")
    A(f"v_cmp_gt_u32 vcc, 8, v{i_}")
    A(f"v_cndmask_b32 v{d1}, v{d2}, v{d1}, vcc")
    A(f"v_min_u32 v{d1}, 19, v{d1}")
    A(f"v_mul_u32_u24 v{R.VA}, 320, v{kh}")
    A(f"v_lshl_add_u32 v{R.VA}, v{d1}, 4, v{R.VA}")
    A(f"v_add_u32 v{R.VA}, {KV_BASE + 1280}, v{R.VA}")
    A(f"v_cmp_eq_u32 vcc, 10, v{i_}")
    A(f"v_mov_b32 v{d2}, 0x3f803f80")
    for k in range(8): A(f"v_cndmask_b32 v{R.V1+k}, 0, v{d2}, vcc")
    A(f"v_cmp_gt_u32 vcc, 32, v0")
    A(f"v_mov_b32 v{d1}, 0x3f80")
    A(f"v_cndmask_b32 v{R.K2+1}, v{d1}, v{d2}, vcc")
    A(f"v_mov_b32 v{R.Q2+1}, 0")
    for jj in range(3):
        A(f"v_add_u32 v{T}, {64*jj}, v0")
        A(f"v_mul_u32_u24 v{T+1}, 5462, v{T}")
        A(f"v_lshrrev_b32 v{T+1}, 16, v{T+1}")
        A(f"v_mul_u32_u24 v{R.GV+jj}, {3072-192}, v{T+1}")
        A(f"v_lshl_add_u32 v{R.GV+jj}, v{T}, 4, v{R.GV+jj}")
    A(f"s_mov_b32 s{sVMASK}, 0x0033ffff")
    A(f"s_mov_b32 s{sVMASK+1}, 0x0033ffff")
    S0 = R.S[0]
    X = R.S[1]
    addr_rowmajor(A, R.XRES + 6, R.XRES + 7, X)
    A(f"v_lshlrev_b32 v{R.TCH}, 7, v0")
    A(f"v_mov_b32 v{R.TCH+1}, 0")
    A(f"s_lshl_b64 s[{sTMP}:{sTMP+1}], 1, s{sXCC}")
    A(f"v_mov_b32 v{R.XRES+8}, s{sTMP}")
    A(f"v_mov_b32 v{R.XRES+9}, s{sTMP+1}")
    A(f"s_cmp_ge_u32 s{sWAVE}, 4")
    A(f"s_cselect_b32 s{sTMP}, s{SU}, s{SG_}")
    A(f"s_cselect_b32 s{sTMP+1}, s{SU+1}, s{SG_+1}")
    A(f"s_mov_b32 s{sTMP+2}, {hex(640*1536*2)}")
    A(f"s_mov_b32 s{sTMP+3}, 0x20000")
    A(f"s_cselect_b32 s{sB}, {GU_UP}, 0")
    A(f"s_add_u32 s{sB}, s{sB}, s{sGM0}")
    A(f"s_and_b32 s{sC}, s{sM}, 3")
    A(f"s_lshl_b32 s{sDELTA}, s{sM}, 2")
    A(f"s_add_u32 s{sDELTA}, s{sDELTA}, s{sLW}")
    A(f"s_mul_i32 s{sDELTA}, s{sDELTA}, {12*128}")
    A(f"s_lshl_b32 s{sTO}, s{sG}, 5")
    A(f"s_add_u32 s{sTO}, s{sTO}, s{sM}")
    A(f"s_lshl_b32 s{sTO}, s{sTO}, 3")
    A(f"s_add_u32 s{sTO}, s{sTO}, s{sWAVE}")
    if cfg.get("ctouch", 1):
        code_touch_setup(A, 88, "L_post_attn")
        A(f"s_lshl_b32 s{sT0}, s{sWAVE}, 12")
        A(f"v_and_b32 v{X}, 31, v0")
        A(f"v_lshlrev_b32 v{X}, 7, v{X}")
        A(f"v_add_u32 v{X}, s{sT0}, v{X}")
        A(f"v_min_u32 v{R.GV+3}, L_code_end-L_post_attn-4, v{X}")

    JUNK = R.XRES + 11
    def gu_op(c, jj):
        return [f"s_add_u32 m0, s{sB}, {c*GU_SLOT + jj*1024}", f"s_add_u32 s{sT0}, s{sGSRC}, {c*64*3072}",
                f"buffer_load_dwordx4 v{R.GV+jj}, s[{sTMP}:{sTMP+3}], s{sT0} offen lds"]
    def touch(n, srd_, pre):
        return pre + [f"s_bfm_b64 exec, {n}, 0", f"buffer_load_dword v{JUNK}, v{R.TCH}, s[{srd_}:{srd_+3}], s{sT0} offen", "s_mov_b64 exec, -1"]
    def gu_touch(c): return touch(12, sTMP, [f"s_add_u32 s{sT0}, s{sDELTA}, {c*64*3072}"])
    def out_touch(base, nbytes, l0=0, n=None):
        return touch(n or nbytes // 128, SWS, [f"s_mul_i32 s{sT0}, s{sTO}, {nbytes}", f"s_add_u32 s{sT0}, s{sT0}, {hex(base + l0*128)}",
                                          f"s_cmp_lg_u32 s{sFAST}, 0", f"s_cselect_b32 s{sT0}, s{sT0}, {hex(WS_SIZE)}"])
    sched = {t: [] for t in range(64)}
    trs = {}
    misc = {}
    vm = []
    def put(t, tag, op):
        while len(sched[t]) >= 3: t += 1
        sched[t].append((tag, op)); return t
    for i, op in enumerate(kv_ops(1)): put(i // 2, "kv1", op)
    for c in range(2, 8):
        for i, op in enumerate(kv_ops(c)): put(8 * (c - 2) + 6 + i // 2, f"kv{c}", op)
    pf = []
    def frag_op(src, i, dst):
        pre = [f"s_add_u32 s{sSTG}, s{src}, {i*1024}"] if i % 4 == 0 else []
        return pre + [f"buffer_load_dwordx4 {a(dst+4*i,4)}, v{R.L16}, s[{SWS}:{SWS+3}], s{sSTG} offen offset:{(i%4)*1024}"]
    for c in range(3):
        for jj in range(3): pf.append(gu_op(c, jj))
    for i in range(10): pf.append(frag_op(sWDSRC, i, 100))
    for i in range(25): pf.append(frag_op(sWOSRC, i, 0))
    if cfg.get("nopf"): pf = []
    free = [t for t in range(2, 64) if t % 8 < 6]
    num, den = cfg.get("pf_rate", [1, 1])
    for i, op in enumerate(pf): put(free[i * den // num], "pf", op)
    put(0, "at", ["s_cmp_eq_u32 s%d, 0" % sWAVE, f"s_cselect_b32 s{sT0}, s{sFLAG}, {hex(WS_SIZE)}", "s_mov_b64 exec, 1",
                  f"buffer_atomic_add_x2 {v(R.XRES+8,2)}, v{R.TCH+1}, s[{SWS}:{SWS+3}], s{sT0} offen offset:512 sc1", "s_mov_b64 exec, -1"])
    put(12, "pf", [f"buffer_load_dwordx4 {v(R.XRES,4)}, v{R.XRES+6}, s[{SX}:{SX+3}], 0 offen"])
    put(16, "pf", [f"buffer_load_dwordx2 {v(R.XRES+4,2)}, v{R.XRES+7}, s[{SX}:{SX+3}], 0 offen"])
    put(cfg.get("xcc_ld", 10), "xcc", [f"buffer_load_dwordx2 {v(R.XRES+8,2)}, v{R.TCH+1}, s[{SWS}:{SWS+3}], s{sFLAG} offen offset:512 sc1"])
    misc[cfg.get('xcc_rd', 23)] = ("xcc", [f"v_readfirstlane_b32 s{sFAST-1}, v{R.XRES+8}" , f"v_readfirstlane_b32 s{sFAST}, v{R.XRES+9}"])
    wd_touch = touch(40, SWS, [f"s_mul_i32 s{sT0}, s{sC}, 5120", f"s_add_u32 s{sT0}, s{sT0}, s{sWDSRC}", f"s_add_u32 s{sT0}, s{sT0}, {2*5120}"])
    for t, op in cfg_touch_plan(cfg, gu_touch, out_touch, wd_touch): put(t, "pf", op)
    HIDT = None
    if cfg.get("tlb", 0) & 2:
        put(20, "pf", ["s_mov_b64 exec, 1", f"buffer_load_dword v{JUNK}, v{R.XRES+6}, s[{SO}:{SO+3}], 0 offen", "s_mov_b64 exec, -1"])
    if cfg.get("ctouch", 1):
        put(cfg.get("ct_at", 57), "pf", [f"global_load_dword v{JUNK}, v{R.GV+3}, s[88:89]"])

    A("s_waitcnt vmcnt(0)")
    A("s_barrier")
    A(f"ds_read_b128 {v(R.K1,4)}, v{R.KA}")
    A(f"ds_read_b32 v{R.K2}, v{R.K2A}")
    A("s_waitcnt lgkmcnt(0)")
    A(f"v_mfma_f32_32x32x16_bf16 {v(S0,16)}, {v(R.K1,4)}, {v(R.Q1,4)}, 0")
    A(f"v_mfma_f32_32x32x8_bf16 {v(S0,16)}, {v(R.K2,2)}, {v(R.Q2,2)}, {v(S0,16)}")
    max16(A, R.P, S0, True)
    xhalf_max(A, R.P, R.P+1)
    set_shift(A, R.P)
    A(f"v_mfma_f32_32x32x16_bf16 {v(S0,16)}, {v(R.K1,4)}, {v(R.Q1,4)}, 0")
    A(f"v_mfma_f32_32x32x8_bf16 {v(S0,16)}, {v(R.K2,2)}, {v(R.Q2,2)}, {v(S0,16)}")
    def toff(t): return ((t // 8) % 3) * KV_SLOT + (t % 8) * 2560
    A(f"ds_read_b128 {v(R.K1,4)}, v{R.KA} offset:{toff(1)}")
    A(f"ds_read_b32 v{R.K2}, v{R.K2A} offset:{toff(1)}")
    A(f"s_mov_b64 exec, s[{sVMASK}:{sVMASK+1}]")
    A(f"ds_read_b128 {v(R.V1,4)}, v{R.VA}")
    A("s_mov_b64 exec, -1")
    stamp(A, cfg, 1)
    PRIO = cfg.get("prio", {6: 3, 2: 2, 4: 1, 5: 0})
    A("s_setprio 3")
    def vwait(tag): A(f"s_waitcnt vmcnt({len(vm) - 1 - max(i for i, x in enumerate(vm) if x == tag)})")
    for t in range(64):
        cur, nxt = R.S[t % 2], R.S[(t + 1) % 2]
        def E(i): A(f"v_exp_f32 v{cur+i}, v{cur+i}")
        def C(k): A(f"v_cvt_pk_bf16_f32 v{R.P+k}, v{cur+2*k}, v{cur+2*k+1}")
        ops_t = list(sched[t])
        def V():
            if ops_t:
                tag, op = ops_t.pop(0); emit(op); vm.append(tag)
        tr = []
        if t in trs: tr = list(trs[t][1])
        def L(n):
            for _ in range(n):
                if tr: A(tr.pop(0))
        if t % 8 == 6 and t < 56:
            vwait(f"kv{t//8+1}")
            A("s_barrier")
        if cfg.get("ats") and t % 4 == 2 and 6 <= t < 50: A(f"s_memtime s[{64+2*((t-6)//4)}:{65+2*((t-6)//4)}]")
        if t < 56 and t % 8 in PRIO: A(f"s_setprio {PRIO[t % 8]}")
        if t >= 56 and (t - 2) % 8 in PRIO and t > 56: A(f"s_setprio {PRIO[(t - 2) % 8]}")
        if t < 63:
            A(f"s_waitcnt lgkmcnt({2 if t else 1})")
            A(f"v_mfma_f32_32x32x16_bf16 {v(nxt,16)}, {v(R.K1,4)}, {v(R.Q1,4)}, 0")
        E(0); E(1); V(); E(2); C(0); E(3)
        A("s_waitcnt lgkmcnt(0)")
        if t: A(f"v_mfma_f32_32x32x16_bf16 {v(R.O,16)}, {v(R.V2,4)}, {v(R.P+4,4)}, {v(R.O,16)}")
        if t in trs and trs[t][0]: vwait(trs[t][0])
        if t in misc:
            vwait(misc[t][0])
            A(f"s_mov_b32 s{sT1}, s{sFAST-1}")
            emit(misc[t][1])
            A(f"s_lshr_b64 s[{sFAST-1}:{sFAST}], s[{sFAST-1}:{sFAST}], s{sXCC}")
            A(f"s_and_b32 s{sFAST}, s{sFAST-1}, 63")
            A(f"s_mov_b32 s{sFAST-1}, s{sT1}")
            A(f"s_cmp_eq_u32 s{sFAST}, 32")
            A(f"s_cselect_b32 s{sFAST}, {0 if cfg.get('noFast') else 1}, 0")
        L(2); E(4); C(1); L(2); E(5); V(); E(6); L(1); C(2); E(7)
        if t < 63: A(f"v_mfma_f32_32x32x8_bf16 {v(nxt,16)}, {v(R.K2,2)}, {v(R.Q2,2)}, {v(nxt,16)}")
        if t < 62:
            A(f"ds_read_b128 {v(R.K1,4)}, v{R.KA} offset:{toff(t+2)}")
            A(f"ds_read_b32 v{R.K2}, v{R.K2A} offset:{toff(t+2)}")
        E(8); C(3); E(9); V(); E(10); C(4); E(11)
        A(f"v_mfma_f32_32x32x16_bf16 {v(R.O,16)}, {v(R.V1,4)}, {v(R.P,4)}, {v(R.O,16) if t else 0}")
        A(f"s_mov_b64 exec, s[{sVMASK}:{sVMASK+1}]")
        A(f"ds_read_b128 {v(R.V2,4)}, v{R.VA} offset:{toff(t) + 640}")
        if t < 63: A(f"ds_read_b128 {v(R.V1,4)}, v{R.VA} offset:{toff(t+1)}")
        A("s_mov_b64 exec, -1")
        E(12); C(5); E(13); E(14); E(15); C(6); C(7)
        assert not ops_t and not tr
    A("s_waitcnt lgkmcnt(0)")
    A(f"v_mfma_f32_32x32x16_bf16 {v(R.O,16)}, {v(R.V2,4)}, {v(R.P+4,4)}, {v(R.O,16)}")
    A.label("L_post_attn")
    if cfg.get("ats"):
        for c in range(11): A(f"s_sub_u32 s{65+2*c}, s{64+2*c}, s63")
        stamp_flush(A, cfg, 13, 17, SWS, sWAVE, 0)
        A("s_endpgm")
    A("s_setprio 0")
    stamp(A, cfg, 2)
    A(f"v_and_b32 v{T+1}, 15, v0")
    A(f"v_bfe_u32 v{T+2}, v0, 4, 1")
    A(f"v_lshrrev_b32 v{T+3}, 5, v0")
    A(f"v_lshlrev_b32 v{T+1}, 4, v{T+1}")
    A(f"v_mul_u32_u24 v{T+2}, {80*256}, v{T+2}")
    A(f"v_lshl_add_u32 v{T+1}, v{T+3}, 8, v{T+1}")
    A(f"v_add_u32 v{T+7}, v{T+1}, v{T+2}")
    A(f"v_mov_b32 v{T}, 0")
    for k in range(0, 10, 2): A(f"v_max3_f32 v{T}, v{T}, abs(v{R.O+k}), abs(v{R.O+k+1})")
    A(f"s_mov_b32 s{sT0}, {fhex(2.0**-40)}")
    A(f"s_mov_b32 s{sT1}, {fhex(2.0**64)}")
    A(f"s_mov_b32 s{sT2}, {fhex(2.0**127)}")
    A(f"v_cmp_le_f32 vcc, s{sT0}, v{R.O+10}")
    A(f"v_cmp_ge_f32 s[{sTMP}:{sTMP+1}], s{sT1}, v{R.O+10}")
    A(f"v_cmp_ge_f32 s[{sTMP+2}:{sTMP+3}], s{sT2}, v{T}")
    A(f"s_and_b64 vcc, vcc, s[{sTMP}:{sTMP+1}]")
    A(f"s_and_b64 vcc, vcc, s[{sTMP+2}:{sTMP+3}]")
    A(f"s_cmp_eq_u64 vcc, -1" if not cfg.get("force_slow") else "s_cmp_eq_u32 s2, -1")
    A("s_cbranch_scc0 L_attn_slow")
    A.label("L_attn_norm")
    A(f"v_rcp_f32 v{T}, v{R.O+10}")
    A(f"s_mul_i32 s{sT0}, s{sQT}, {2*80*256}")
    A(f"s_lshr_b32 s{sT1}, s{sM}, 3")
    A(f"s_mul_i32 s{sT1}, s{sT1}, {20*256}")
    A(f"s_add_u32 s{sT0}, s{sT0}, s{sT1}")
    A(f"s_add_u32 s{sT0}, s{sT0}, {hex(WS_O)}")
    A(f"s_and_b32 s{sT1}, s{sM}, 7")
    A(f"s_lshl_b32 s{sT1}, s{sT1}, 9")
    A(f"s_add_u32 s{sT1}, s{sT1}, s{sT0}")
    A(f"s_bfe_u32 s{sT2}, s{sM}, 0x10002")
    A(f"s_lshl_b32 s{sT2}, s{sT2}, 9")
    A(f"s_add_u32 s{sT0}, s{sT0}, s{sT2}")
    A(f"s_and_b32 s{sT2}, s{sM}, 3")
    A(f"s_lshl_b32 s{sT2}, s{sT2}, 2")
    A(f"s_add_u32 s{sT0}, s{sT0}, s{sT2}")
    A(f"s_add_u32 s{sT0}, s{sT0}, {16*256}")
    for k in range(10): A(f"v_mul_f32 v{R.O+k}, v{T}, v{R.O+k}")
    for k in range(5): A(f"v_cvt_pk_bf16_f32 v{R.O+k}, v{R.O+2*k}, v{R.O+2*k+1}")
    stores(A, [f"buffer_store_dwordx4 {v(R.O,4)}, v{T+7}, s[{SWS}:{SWS+3}], s{sT1} offen",
               f"buffer_store_dword v{R.O+4}, v{T+7}, s[{SWS}:{SWS+3}], s{sT0} offen"])

    BF, ACC = 16, 56
    vHP, vHS, vPW, RA = 1, 2, 3, 5
    A(f"s_lshr_b32 s{sT2}, s{sWAVE}, 2")
    A(f"s_lshl_b32 s{sB}, s{sT2}, 1")
    A(f"s_add_u32 s{sB}, s{sB}, s{sTOK16}")
    A(f"s_mul_i32 s{sB}, s{sB}, {80*256}")
    A(f"s_mul_i32 s{sT1}, s{sLW}, {20*256}")
    A(f"s_add_u32 s{sB}, s{sB}, s{sT1}")
    A(f"s_add_u32 s{sB}, s{sB}, {hex(WS_O)}")
    A(f"s_lshl_b32 s{sT0}, s{sLW}, 1")
    A(f"s_add_u32 s{sT0}, s{sT0}, s{sT2}")
    A(f"s_mul_i32 s{sT0}, s{sT0}, 10240")
    A(f"s_add_u32 s{sT0}, s{sT0}, {PART_BASE}")
    A(f"v_add_u32 v{vPW}, s{sT0}, v{R.L16}")
    A(f"s_add_u32 s{sT0}, s{sLW}, s{sTOK16}")
    A(f"s_lshl_b32 s{sC}, s{sT0}, 11")
    A(f"s_mul_i32 s{sT0}, s{sT0}, {80*256}")
    A(f"s_mul_i32 s{sT1}, s{sFG}, 2560")
    A(f"s_add_u32 s{sT0}, s{sT0}, s{sT1}")
    A(f"s_add_u32 s{sT0}, s{sT0}, {hex(WS_H)}")
    A(f"v_bfe_u32 v{T+2}, v0, 4, 1")
    A(f"v_lshl_add_u32 v{T+1}, v{T+2}, 3, v{T+1}")
    A(f"v_add_u32 v{T+1}, 2048, v{T+1}")
    A(f"v_add_u32 v{vHS}, s{sT0}, v{T+1}")
    A(f"s_lshl_b32 s{sT1}, s{sT2}, 10")
    A(f"s_add_u32 s{sT0}, s{sT0}, s{sT1}")
    A(f"v_add_u32 v{vHP}, s{sT0}, v{R.L16}")
    A(f"s_lshl_b32 s{sT1}, s{sFG}, 1")
    A(f"s_add_u32 s{sT1}, s{sT1}, s{sT2}")
    A(f"s_lshl_b32 s{sT1}, s{sT1}, 7")
    A(f"s_add_u32 s{sC}, s{sC}, s{sT1}")
    A(f"s_add_u32 s{sC}, s{sC}, {hex(WS_ST2)}")
    reduce_addr(A, 4, PART_BASE, RA)
    XF = 96 - 0
    stamp(A, cfg, 3)
    sync(A, 0, 0, False, 0)
    stamp(A, cfg, 4)
    for i in range(2):
        for st in range(5):
            if st % 4 == 0: A(f"s_add_u32 s{sT1}, s{sB}, {i*80*256 + st*1024}")
            A(f"buffer_load_dwordx4 {v(BF+20*i+4*st,4)}, v{R.L16}, s[{SWS}:{SWS+3}], s{sT1} offen offset:{(st%4)*1024} sc1")
    for i in range(2):
        for st in range(5):
            A(f"s_waitcnt vmcnt({9 - (5*i+st)})")
            for f in range(5):
                acc = v(ACC + 20 * i + 4 * f, 4)
                A(f"v_mfma_f32_16x16x32_bf16 {acc}, {a(20*st+4*f,4)}, {v(BF+20*i+4*st,4)}, {acc if st else 0}")
            if i == 1:
                A(f"ds_write_b128 v{vPW}, {v(ACC+4*st,4)} offset:{st*1024}")
    load_wd(A, 2)
    for f in range(5):
        A(f"ds_write_b128 v{vPW}, {v(ACC+20+4*f,4)} offset:{5120 + f*1024}")
    stamp(A, cfg, 5)
    D = 16
    TRA, VB, VST = 1, 2, 3
    G1, Gh, rho, c0, c1 = T+2, T+3, T+4, T+5, T+6
    def wo_tail(n):
        A("s_waitcnt lgkmcnt(0)")
        A("s_barrier")
        reduce_sum(A, 4, D, RA, n)
        for i in range(2 * n):
            A(f"v_lshlrev_b32 v{T}, 16, v{R.XRES+i}")
            A(f"v_and_b32 v{T+1}, 0xffff0000, v{R.XRES+i}")
            A(f"v_pk_add_f32 {v(D+2*i,2)}, {v(D+2*i,2)}, {v(T,2)}")
        for i in range(2 * n): A(f"v_cvt_pk_bf16_f32 v{D+i}, v{D+2*i}, v{D+2*i+1}")
        st = [f"buffer_store_dwordx4 {v(D,4)}, v{vHP}, s[{SWS}:{SWS+3}], 0 offen"]
        if n == 3: st.append(f"buffer_store_dwordx2 {v(D+4,2)}, v{vHS}, s[{SWS}:{SWS+3}], 0 offen")
        stores(A, st)
        sm, sq = D + 8, D + 9
        A(f"v_mov_b32 v{T+2}, 0x3f803f80")
        for i in range(2 * n):
            A(f"v_dot2_f32_bf16 v{sm}, v{D+i}, v{T+2}, {'v%d' % sm if i else 0}")
            A(f"v_dot2_f32_bf16 v{sq}, v{D+i}, v{D+i}, {'v%d' % sq if i else 0}")
        for i in range(2 * n): A(f"v_accvgpr_write_b32 a{A_RES+i}, v{D+i}")
        for op in ("v_permlane16_swap_b32", "v_permlane32_swap_b32"):
            A(f"v_mov_b32 v{T}, v{sm}")
            A(f"v_mov_b32 v{T+1}, v{sq}")
            A(f"{op} v{sm}, v{T}")
            A(f"{op} v{sq}, v{T+1}")
            A(f"v_pk_add_f32 {v(sm,2)}, {v(sm,2)}, {v(T,2)}")
        A(f"v_lshlrev_b32 v{T}, 3, v0")
        A("s_mov_b64 exec, 0xffff")
        stores(A, [f"buffer_store_dwordx2 {v(sm,2)}, v{T}, s[{SWS}:{SWS+3}], s{sC} offen"])
        A("s_mov_b64 exec, -1")
        A(f"v_bfe_u32 v{G1}, v0, 4, 1")
        A(f"v_lshrrev_b32 v{Gh}, 5, v0")
        A(f"v_bfe_u32 v{rho}, v0, 2, 2")
        A(f"v_and_b32 v{c0}, 1, v0")
        A(f"v_bfe_u32 v{c1}, v0, 1, 1")
        A(f"v_lshl_add_u32 v{TRA}, v{Gh}, 3, v{rho}")
        A(f"v_mul_u32_u24 v{TRA}, 192, v{TRA}")
        A(f"v_mul_u32_u24 v{c1}, {GU_UP}, v{c1}")
        A(f"v_add_u32 v{TRA}, v{TRA}, v{c1}")
        A(f"v_lshl_add_u32 v{TRA}, v{c0}, 4, v{TRA}")
        A(f"v_lshl_add_u32 v{TRA}, v{G1}, 3, v{TRA}")
    sGT = sQT
    A(f"s_and_b32 s{sGT}, s{sTOK16}, -8")
    A(f"s_lshl_b32 s{sT0}, s{sLW}, 1")
    A(f"s_add_u32 s{sGT}, s{sGT}, s{sT0}")
    A(f"s_cmp_ge_u32 s{sWAVE}, 4")
    A("s_cbranch_scc1 L_gu_loader")
    wo_tail(3)

    L_CF = GU_MISC
    L_MB = GU_MISC + 3072
    L_RS = GU_MISC + 4096
    ACC, AF, BF, NB = 16, 0, 24, 8
    CFA = 66
    MB = 6
    A(f"s_mul_i32 s{sB}, s{sGT}, {80*256}")
    A(f"s_add_u32 s{sB}, s{sB}, {hex(WS_H)}")
    A(f"v_and_b32 v{VB}, 15, v0")
    A(f"v_lshlrev_b32 v{VB}, 4, v{VB}")
    A(f"v_lshl_add_u32 v{VB}, v{Gh}, 8, v{VB}")
    A(f"v_mul_u32_u24 v{VST}, {192*256}, v{G1}")
    A(f"v_add_u32 v{VST}, v{VST}, v{VB}")
    A(f"v_mul_u32_u24 v{c0}, {80*256}, v{G1}")
    A(f"v_add_u32 v{VB}, v{VB}, v{c0}")
    def trread(st, t):
        sl = st % 4
        for u in range(2):
            A(f"ds_read_b64_tr_b16 {a(AF+4*t+2*u,2)}, v{TRA} offset:{(16*sl+4*u)*192 + 32*t}")
    for t in range(6): trread(0, t)
    A(f"v_lshlrev_b32 v{T+6}, 3, v0")
    A(f"v_add_u32 v{T+6}, {L_CF}, v{T+6}")
    A(f"v_and_b32 v{T+7}, 31, v0")
    A(f"v_lshlrev_b32 v{T+7}, 3, v{T+7}")
    A(f"s_lshl_b32 s{sT0}, s{sLW}, 8")
    A(f"s_add_u32 s{sT0}, s{sT0}, {L_MB}")
    A(f"v_add_u32 v{T+7}, s{sT0}, v{T+7}")
    stamp(A, cfg, 6)
    sync(A, 1, 0, True, 0)
    stamp(A, cfg, 7)
    if cfg.get("gts"): A("s_mov_b32 s90, s75")
    def loadB(st):
        if st % 8 == 0 and st: A(f"s_add_u32 s{sB}, s{sB}, 4096")
        if cfg.get("gu_noloadb"): return
        A(f"buffer_load_dwordx4 {a(BF+4*(st%NB),4)}, v{VB}, s[{SWS}:{SWS+3}], s{sB} offen offset:{(st%8)*512} sc1")
    for st in range(NB): loadB(st)
    lq = [(0, t) for t in range(6) for _ in range(2)]
    def lwait(tag): A(f"s_waitcnt lgkmcnt({min(15, len(lq) - 1 - max(i for i, x in enumerate(lq) if x == tag))})")
    for st in range(40):
        c, sl = divmod(st, 4)
        nxt = st + 1 < 40
        if sl == 3 and nxt:
            if cfg.get("gts") == 2: A(f"s_memtime s[{60+2*c}:{61+2*c}]")
            A("s_barrier")
            if cfg.get("gts") == 1: A(f"s_memtime s[{60+2*c}:{61+2*c}]")
            d = GU_SLOT if (c + 1) % 6 else -5 * GU_SLOT
            A(f"v_add_u32 v{TRA}, {d & 0xffffffff}, v{TRA}")
        A(f"s_waitcnt vmcnt({min(NB-1, 39-st)})")
        for t in range(6):
            lwait((st, t))
            acc = v(ACC + 16 * t, 16)
            A(f"v_mfma_f32_32x32x16_bf16 {acc}, {a(AF+4*t,4)}, {a(BF+4*(st%NB),4)}, {acc if st else 0}")
            if nxt: trread(st + 1, t); lq += [(st + 1, t)] * 2
            if st == 36:
                if t == 0:
                    A(f"ds_read_b64 {v(MB,2)}, v{T+7}"); lq.append("mb")
                A(f"ds_read_b64 {a(CFA+2*t,2)}, v{T+6} offset:{512*t}"); lq.append(("cf", t))
            if st == 38:
                A(f"v_mfma_f32_32x32x8_bf16 {acc}, {a(CFA+2*t,2)}, {v(MB,2)}, {acc}")
        if st + NB < 40: loadB(st + NB)
    if cfg.get("gts"):
        A("s_waitcnt lgkmcnt(0)")
        for c in range(9): A(f"s_sub_u32 s{91+c}, s{60+2*c}, s90")
    stamp(A, cfg, 8)
    A(f"s_mul_i32 s{sB}, s{sGT}, {192*256}")
    A(f"s_mul_i32 s{sT0}, s{sJ}, {12*256}")
    A(f"s_add_u32 s{sB}, s{sB}, s{sT0}")
    A(f"s_add_u32 s{sB}, s{sB}, {hex(WS_HID)}")
    def gu_epi(sc):
        for t in range(6):
            r = ACC + 16 * t
            for q in range(2):
                for b in range(4): A(f"v_max_f32 v{r+8*q+b}, 0, v{r+8*q+b}")
                for b in (0, 2): A(f"v_pk_mul_f32 {v(r+8*q+b,2)}, {v(r+8*q+b,2)}, {v(r+8*q+4+b,2)}")
            A(f"v_cvt_pk_bf16_f32 v{r}, v{r}, v{r+1}")
            A(f"v_cvt_pk_bf16_f32 v{r+1}, v{r+2}, v{r+3}")
            A(f"v_cvt_pk_bf16_f32 v{r+2}, v{r+8}, v{r+9}")
            A(f"v_cvt_pk_bf16_f32 v{r+3}, v{r+10}, v{r+11}")
            A(f"buffer_store_dwordx4 {v(r,4)}, v{VST}, s[{SWS}:{SWS+3}], s{sB} offen offset:{512*t} {sc}")
    A(f"s_cmp_lg_u32 s{sFAST}, 0")
    A("s_nop 4")
    A("s_cbranch_scc0 L_gu_epi_slow")
    gu_epi("")
    A.label("L_gu_epi_done")
    for stp in (3, 4, 5): load_wd(A, stp)
    stamp(A, cfg, 9)
    A("s_waitcnt vmcnt(15)")
    A("s_branch L_gu_done")
    A.label("L_gu_epi_slow")
    gu_epi("sc1")
    A("s_branch L_gu_epi_done")

    A.label("L_gu_loader")
    WDL = cfg.get("wdl", "late")
    if WDL == "early":
        for stp in (3, 4, 5): load_wd(A, stp)
    wo_tail(2)
    CS, LF, TRB, STV = 32, 40, 2, 72
    A(f"s_lshr_b32 s{sT0}, s{sLW}, 1")
    A(f"s_lshl_b32 s{sT0}, s{sT0}, 5")
    A(f"s_and_b32 s{sT1}, s{sLW}, 1")
    A(f"s_mul_i32 s{sT1}, s{sT1}, {32*192}")
    A(f"s_add_u32 s{sT0}, s{sT0}, s{sT1}")
    A(f"s_add_u32 s{sT0}, s{sT0}, 128")
    A(f"v_add_u32 v{TRB}, s{sT0}, v{TRA}")
    A(f"s_lshl_b32 s{sT0}, s{sLW}, 5")
    A(f"v_add_u32 v{TRA}, s{sT0}, v{TRA}")
    for i in range(4): A(f"v_mov_b32 v{CS+i}, 0")
    def colsum(c, vops):
        if cfg.get("gu_nocs"):
            while vops: emit(vops.pop(0))
            return
        for k in range(6):
            for u in range(2):
                if k < 4: A(f"ds_read_b64_tr_b16 {v(LF+4*k+2*u,2)}, v{TRA} offset:{(16*k+4*u)*192}")
                else:     A(f"ds_read_b64_tr_b16 {v(LF+4*k+2*u,2)}, v{TRB} offset:{(16*(k-4)+4*u)*192}")
        d = GU_SLOT if (c + 1) % 6 else -5 * GU_SLOT
        A(f"v_add_u32 v{TRA}, {d & 0xffffffff}, v{TRA}")
        A(f"v_add_u32 v{TRB}, {d & 0xffffffff}, v{TRB}")
        for k in range(6):
            if vops: emit(vops.pop(0))
            A(f"s_waitcnt lgkmcnt({10-2*k})")
            acc = CS + (2 if k >= 4 else 0)
            for i in range(0, 4, 2):
                A(f"v_lshlrev_b32 v{LF+24}, 16, v{LF+4*k+i}")
                A(f"v_and_b32 v{LF+25}, 0xffff0000, v{LF+4*k+i}")
                A(f"v_lshlrev_b32 v{LF+26}, 16, v{LF+4*k+i+1}")
                A(f"v_and_b32 v{LF+27}, 0xffff0000, v{LF+4*k+i+1}")
                A(f"v_add_f32 v{acc}, v{acc}, v{LF+24}")
                A(f"v_add_f32 v{acc+1}, v{acc+1}, v{LF+25}")
                A(f"v_add_f32 v{acc}, v{acc}, v{LF+26}")
                A(f"v_add_f32 v{acc+1}, v{acc+1}, v{LF+27}")
        while vops: emit(vops.pop(0))
    A(f"v_and_b32 v3, 15, v0")
    A(f"v_lshlrev_b32 v3, 3, v3")
    A(f"v_lshl_add_u32 v3, v{G1}, 11, v3")
    A(f"v_lshl_add_u32 v3, v{Gh}, 10, v3")
    A(f"s_lshl_b32 s{sB}, s{sGT}, 11")
    A(f"s_add_u32 s{sB}, s{sB}, {hex(WS_ST2)}")
    A("s_waitcnt vmcnt(0)")
    A("s_barrier")
    colsum(0, gu_dma_ops(3))
    A("s_barrier")
    ops = [3] * 6
    A(f"s_setprio {cfg.get('lprio', 3)}")
    for c in range(10):
        if c > 0:
            if 3 <= c + 1 < 10: A(f"s_waitcnt vmcnt({len(ops) - 1 - max(i for i, o in enumerate(ops) if o == c + 1)})")
            A("s_barrier")
        vops = []
        if c == 1:
            vops += [[f"buffer_load_dwordx2 {v(STV+2*i,2)}, v3, s[{SWS}:{SWS+3}], s{sB} offen offset:{128*i} sc1" for i in range(8)]]
            ops += ["st"] * 8
        if c + 4 < 10:
            vops += [] if cfg.get("gu_nodma") else gu_dma_ops(c + 4)
            ops += [c + 4] * 6
        if WDL == "late" and 6 <= c <= 8:
            vops += load_wd_ops(c - 3); ops += ["w"] * 5
        if c == 2 and HIDT is not None:
            vops += [HIDT]; ops += ["t"]
        if c < 9: colsum(c + 1, vops)
        if c == 5:
            for i in range(1, 8):
                A(f"v_add_f32 v{STV}, v{STV}, v{STV+2*i}")
                A(f"v_add_f32 v{STV+1}, v{STV+1}, v{STV+2*i+1}")
            for r in (STV, STV + 1):
                A(f"v_mov_b32 v{STV+2}, v{r}")
                A(f"v_permlane32_swap_b32 v{r}, v{STV+2}")
                A(f"v_add_f32 v{r}, v{r}, v{STV+2}")
            mean, rs = STV, STV + 1
            A(f"v_mul_f32 v{mean}, {fhex(1/640)}, v{mean}")
            A(f"v_mul_f32 v{rs}, {fhex(1/640)}, v{rs}")
            A(f"v_fma_f32 v{rs}, -v{mean}, v{mean}, v{rs}")
            A(f"v_max_f32 v{rs}, 0, v{rs}")
            A(f"v_add_f32 v{rs}, {fhex(1e-5)}, v{rs}")
            A(f"v_rcp_f32 v{rs}, v{rs}")
            A(f"v_cvt_pk_bf16_f32 v{STV+2}, -v{mean}, -v{mean}")
            A(f"v_and_b32 v{STV+3}, 0xffff0000, v{STV+2}")
            A(f"v_sub_f32 v{STV+3}, -v{mean}, v{STV+3}")
            A(f"v_cvt_pk_bf16_f32 v{STV+3}, v{STV+3}, 0")
            A(f"v_and_b32 v{STV+4}, 31, v0")
            A(f"s_lshl_b32 s{sT0}, s{sLW}, 5")
            A(f"v_add_u32 v{STV+4}, s{sT0}, v{STV+4}")
            A(f"v_lshlrev_b32 v{STV+5}, 3, v{STV+4}")
            A(f"v_lshlrev_b32 v{STV+4}, 2, v{STV+4}")
            A(f"v_add_u32 v{STV+5}, {L_MB}, v{STV+5}")
            A(f"v_add_u32 v{STV+4}, {L_RS}, v{STV+4}")
            A(f"ds_write_b64 v{STV+5}, {v(STV+2,2)}")
            A(f"ds_write_b32 v{STV+4}, v{rs}")
        if c == 8:
            A(f"v_add_f32 v{CS}, v{CS}, v{CS+1}")
            A(f"v_add_f32 v{CS+2}, v{CS+2}, v{CS+3}")
            A(f"v_mov_b32 v{CS+3}, v{CS+2}")
            A(f"v_permlane32_swap_b32 v{CS+2}, v{CS+3}")
            A(f"v_add_f32 v{CS+2}, v{CS+2}, v{CS+3}")
            for k, cs in ((0, CS), (1, CS + 2)):
                o = LF + 4 * k
                A(f"v_cvt_pk_bf16_f32 v{o+2}, v{cs}, v{cs}")
                A(f"v_and_b32 v{o+2}, 0xffff0000, v{o+2}")
                A(f"v_sub_f32 v{cs}, v{cs}, v{o+2}")
                A(f"v_cvt_pk_bf16_f32 v{o}, v{o+2}, v{cs}")
                A(f"v_lshrrev_b32 v{o+1}, 16, v{o+2}")
            A(f"s_lshl_b32 s{sT0}, s{sLW}, 9")
            A(f"s_add_u32 s{sT0}, s{sT0}, {L_CF}")
            A(f"v_lshlrev_b32 v{LF+8}, 3, v0")
            A(f"v_add_u32 v{LF+8}, s{sT0}, v{LF+8}")
            A(f"ds_write_b64 v{LF+8}, {v(LF,2)}")
            A(f"s_lshl_b32 s{sT0}, s{sLW}, 8")
            A(f"s_add_u32 s{sT0}, s{sT0}, {L_CF + 2048}")
            A(f"v_and_b32 v{LF+9}, 31, v0")
            A(f"v_lshlrev_b32 v{LF+9}, 3, v{LF+9}")
            A(f"v_add_u32 v{LF+9}, s{sT0}, v{LF+9}")
            A(f"ds_write_b64 v{LF+9}, {v(LF+4,2)}")
            A("s_waitcnt lgkmcnt(0)")
    A("s_setprio 0")
    A.label("L_gu_done")

    NBD = cfg.get("nbd", 6)
    BF, ACC = 16, 72
    vXP, vXS, vPW, RA, vRS = 1, 2, 3, 5, T + 7
    A(f"s_mul_i32 s{sB}, s{sTOK16}, {192*256}")
    A(f"s_mul_i32 s{sT0}, s{sWAVE}, {24*256}")
    A(f"s_add_u32 s{sB}, s{sB}, s{sT0}")
    A(f"s_add_u32 s{sB}, s{sB}, {hex(WS_HID)}")
    A(f"s_mul_i32 s{sT0}, s{sWAVE}, 20480")
    A(f"v_add_u32 v{vPW}, s{sT0}, v{R.L16}")
    A(f"s_and_b32 s{sT0}, s{sTOK16}, 7")
    A(f"s_add_u32 s{sT0}, s{sT0}, s{sLW}")
    A(f"s_lshl_b32 s{sT0}, s{sT0}, 6")
    A(f"s_add_u32 s{sT0}, s{sT0}, {L_RS}")
    A(f"v_and_b32 v{vRS}, 15, v0")
    A(f"v_lshlrev_b32 v{vRS}, 2, v{vRS}")
    A(f"v_add_u32 v{vRS}, s{sT0}, v{vRS}")
    A(f"ds_read_b32 v{vRS}, v{vRS}")
    addr_rowmajor(A, vXP, vXS, T)
    reduce_addr(A, 8, 0, RA)
    A("s_waitcnt lgkmcnt(0)")
    sync(A, 2, 4, True, 63)
    stamp(A, cfg, 10)
    def loadBd(q):
        tt, st = divmod(q, 6)
        if st % 4 == 0: A(f"s_add_u32 s{sT1}, s{sB}, {tt*192*256 + st*1024}")
        A(f"buffer_load_dwordx4 {v(BF+4*(q%NBD),4)}, v{R.L16}, s[{SWS}:{SWS+3}], s{sT1} offen offset:{(st%4)*1024} sc1")
    for q in range(NBD): loadBd(q)
    issued = NBD
    for q in range(24):
        tt, st = divmod(q, 6)
        A(f"s_waitcnt vmcnt({issued - 1 - q})")
        for f in range(5):
            acc = v(ACC + 20 * (tt % 2) + 4 * f, 4)
            A(f"v_mfma_f32_16x16x32_bf16 {acc}, {a(WD(st)+4*f,4)}, {v(BF+4*(q%NBD),4)}, {acc if st else 0}")
        if issued < 24:
            loadBd(issued); issued += 1
        if tt > 0 and st < 5:
            A(f"ds_write_b128 v{vPW}, {v(ACC+20*((tt-1)%2)+4*st,4)} offset:{(tt-1)*5120 + st*1024}")
    for f in range(5):
        A(f"ds_write_b128 v{vPW}, {v(ACC+20+4*f,4)} offset:{3*5120 + f*1024}")
    stamp(A, cfg, 11)
    def dn_tail(n):
        A("s_waitcnt lgkmcnt(0)")
        A("s_barrier")
        reduce_sum(A, 8, D, RA, n)
        for i in range(2 * n):
            A(f"v_accvgpr_read_b32 v{T+2}, a{A_RES+i}")
            A(f"v_lshlrev_b32 v{T}, 16, v{T+2}")
            A(f"v_and_b32 v{T+1}, 0xffff0000, v{T+2}")
            A(f"v_fma_f32 v{D+2*i}, v{D+2*i}, v{vRS}, v{T}")
            A(f"v_fma_f32 v{D+2*i+1}, v{D+2*i+1}, v{vRS}, v{T+1}")
            A(f"v_cvt_pk_bf16_f32 v{D+i}, v{D+2*i}, v{D+2*i+1}")
            if i == 3: A(f"buffer_store_dwordx4 {v(D,4)}, v{vXP}, s[{SO}:{SO+3}], 0 offen")
        if n == 3: A(f"buffer_store_dwordx2 {v(D+4,2)}, v{vXS}, s[{SO}:{SO+3}], 0 offen")
    A(f"s_cmp_ge_u32 s{sWAVE}, 4")
    A("s_cbranch_scc1 L_dn_b")
    dn_tail(3)
    A("s_branch L_dn_e")
    A.label("L_dn_b")
    dn_tail(2)
    A.label("L_dn_e")
    stamp(A, cfg, 12)
    if cfg.get("gts"):
        for c in range(9):
            A(f"s_mov_b32 s{60+2*c}, s{91+c}")
            A(f"s_mov_b32 s{61+2*c}, s{91+c}")
    stamp_flush(A, cfg, 13, 4, SWS, sWAVE, cfg.get('tswave', 0))
    A.label("L_end")
    A("s_endpgm")

    A.label("L_attn_slow")
    A(f"v_subrev_u32 v{R.VA}, {KV_BASE + 1280}, v{R.VA}")
    A(f"v_mov_b32 v{R.Q2+1}, 0")
    A(f"v_mov_b32 v{T}, 0xff800000")
    A(f"s_mov_b32 s{sT0}, s{sKBASE}")
    A(f"s_add_u32 s{sT1}, s{sKBASE}, {PAIR_STRIDE}")
    A.label("L_attn_slow1")
    A(f"buffer_load_dwordx4 {v(R.K1,4)}, v{R.F2S+1}, s[{SWS}:{SWS+3}], s{sT0} offen")
    A(f"buffer_load_dword v{R.K2}, v{R.F2S}, s[{SWS}:{SWS+3}], s{sT0} offen")
    A("s_waitcnt vmcnt(0)")
    A(f"v_mfma_f32_32x32x16_bf16 {v(S0,16)}, {v(R.K1,4)}, {v(R.Q1,4)}, 0")
    A(f"v_mfma_f32_32x32x8_bf16 {v(S0,16)}, {v(R.K2,2)}, {v(R.Q2,2)}, {v(S0,16)}")
    max16(A, T, S0, False)
    A(f"s_add_u32 s{sT0}, s{sT0}, 2560")
    A(f"s_cmp_lt_u32 s{sT0}, s{sT1}")
    A("s_cbranch_scc1 L_attn_slow1")
    A(f"v_mov_b32 v{R.KA}, v{T+1}")
    xhalf_max(A, T, T+1)
    set_shift(A, T)
    A(f"v_mov_b32 v{T+1}, v{R.KA}")
    for k in range(16): A(f"v_mov_b32 v{R.O+k}, 0")
    A(f"s_mov_b32 s{sT0}, s{sKBASE}")
    A(f"s_mov_b32 s{sT2}, s{sVBASE}")
    A.label("L_attn_slow2")
    A(f"buffer_load_dwordx4 {v(R.K1,4)}, v{R.F2S+1}, s[{SWS}:{SWS+3}], s{sT0} offen")
    A(f"buffer_load_dword v{R.K2}, v{R.F2S}, s[{SWS}:{SWS+3}], s{sT0} offen")
    A(f"s_mov_b64 exec, s[{sVMASK}:{sVMASK+1}]")
    A(f"buffer_load_dwordx4 {v(R.V1,4)}, v{R.VA}, s[{SWS}:{SWS+3}], s{sT2} offen")
    A(f"buffer_load_dwordx4 {v(R.V2,4)}, v{R.VA}, s[{SWS}:{SWS+3}], s{sT2} offen offset:640")
    A("s_mov_b64 exec, -1")
    A("s_waitcnt vmcnt(0)")
    A(f"v_mfma_f32_32x32x16_bf16 {v(S0,16)}, {v(R.K1,4)}, {v(R.Q1,4)}, 0")
    A(f"v_mfma_f32_32x32x8_bf16 {v(S0,16)}, {v(R.K2,2)}, {v(R.Q2,2)}, {v(S0,16)}")
    for k in range(16): A(f"v_exp_f32 v{S0+k}, v{S0+k}")
    for k in range(8): A(f"v_cvt_pk_bf16_f32 v{R.P+k}, v{S0+2*k}, v{S0+2*k+1}")
    A(f"v_mfma_f32_32x32x16_bf16 {v(R.O,16)}, {v(R.V1,4)}, {v(R.P,4)}, {v(R.O,16)}")
    A(f"v_mfma_f32_32x32x16_bf16 {v(R.O,16)}, {v(R.V2,4)}, {v(R.P+4,4)}, {v(R.O,16)}")
    A(f"s_add_u32 s{sT0}, s{sT0}, 2560")
    A(f"s_add_u32 s{sT2}, s{sT2}, 1280")
    A(f"s_cmp_lt_u32 s{sT0}, s{sT1}")
    A("s_nop 7")
    A("s_cbranch_scc1 L_attn_slow2")
    A("s_nop 7")
    A("s_branch L_attn_norm")
    A.label("L_code_end")
    return dict(name=name, grid=256, block=512, lds=163840, desc=kernel_desc(name, 256, NV))
```

```python
from common import *

def gen_qkv(A, cfg):
    name = "qkv_kernel"
    kstart(A, name)
    SX, SW, SWS, SP, SD = 4, 8, 12, 36, 48
    sWAVE, sTB, sFG, sXO, sXLIM, sWO, sT0, sT1, sT2, sM0 = 16, 17, 18, 19, 20, 21, 22, 23, 24, 25
    sTILE, sBASE, sQS, sC0, sID = 26, 27, 28, 30, 31
    vTR = 4
    vT = 8
    SLOT = 32768
    CSL = SLOT
    STL = SLOT + 2048
    A("s_cmp_ge_u32 s2, 256")
    A("s_cbranch_scc1 L_qkv_end")
    A("s_load_dwordx4 s[4:7], s[0:1], 0")
    A("s_load_dwordx4 s[48:51], s[0:1], 64")
    A("s_load_dwordx2 s[32:33], s[0:1], 16")
    A("s_load_dwordx2 s[34:35], s[0:1], 48")
    stamp(A, cfg, 0)
    A(f"v_lshrrev_b32 v{vT}, 6, v0")
    A(f"s_cmp_lt_u32 s2, 16")
    A(f"v_readfirstlane_b32 s{sWAVE}, v{vT}")
    A("s_cbranch_scc1 L_qkv_helper")
    A(f"v_and_b32 v0, 63, v0")
    A(f"s_sub_u32 s{sID}, s2, 16")
    A(f"s_and_b32 s{sT0}, s{sID}, 7")
    A(f"s_lshr_b32 s{sT1}, s{sID}, 3")
    A(f"s_lshr_b32 s{sT2}, s{sT0}, 2")
    A(f"s_mul_i32 s{sT2}, s{sT2}, 30")
    A(f"s_add_u32 s{sT1}, s{sT1}, s{sT2}")
    A(f"s_lshr_b32 s{sFG}, s{sT1}, 2")
    A(f"s_and_b32 s{sT1}, s{sT1}, 3")
    A(f"s_and_b32 s{sT2}, s{sT0}, 3")
    A(f"s_lshl_b32 s{sT2}, s{sT2}, 2")
    A(f"s_add_u32 s{sTB}, s{sT2}, s{sT1}")
    A(f"s_cmp_ge_u32 s{sWAVE}, 4")
    A("s_cbranch_scc1 L_qkv_loader")

    def tr_addr(permuted, tiles):
        rho, cc, g1, kh, base = vT, vT+1, vT+2, vT+3, vT+4
        A(f"v_bfe_u32 v{rho}, v0, 2, 2")
        A(f"v_bfe_u32 v{g1}, v0, 4, 1")
        A(f"v_lshrrev_b32 v{kh}, 5, v0")
        A(f"v_lshl_add_u32 v{base}, v{kh}, 3, v{rho}")
        A(f"v_lshlrev_b32 v{base}, 8, v{base}")
        A(f"v_lshl_add_u32 v{base}, v{g1}, 5, v{base}")
        if permuted:
            A(f"v_and_b32 v{cc}, 1, v0")
            A(f"v_lshl_add_u32 v{base}, v{cc}, 4, v{base}")
            A(f"v_bfe_u32 v{cc}, v0, 1, 1")
            A(f"v_lshl_add_u32 v{base}, v{cc}, 3, v{base}")
        else:
            A(f"v_and_b32 v{cc}, 3, v0")
            A(f"v_lshl_add_u32 v{base}, v{cc}, 3, v{base}")
        for j, t in enumerate(tiles):
            A(f"v_xor_b32 v{vTR+j}, {t}, v{rho}")
            A(f"v_lshl_add_u32 v{vTR+j}, v{vTR+j}, 6, v{base}")
    def rebase(c):
        def base(c): return ((c % 5) // 2) * 2 * SLOT
        return (base(c) - base(c - 1) if c else 0), (c % 5) * SLOT - base(c)

    ACC, FR, vBA, vADR, vST = 16, 80, 112, 116, 120
    sFH2 = 29
    A(f"s_and_b32 s{sT0}, s{sWAVE}, 1")
    A(f"s_and_b32 s{sFH2}, s{sWAVE}, 2")
    sJ0, sJ1 = 44, 45
    A(f"s_mov_b32 s{sJ0}, s{sWAVE}")
    A(f"s_xor_b32 s{sJ1}, s{sWAVE}, 1")
    A(f"s_lshl_b32 s{sTILE}, s{sTB}, 1")
    A(f"s_add_u32 s{sTILE}, s{sTILE}, s{sT0}")
    A(f"s_lshl_b32 s{sTILE}, s{sTILE}, 1")
    A(f"s_lshl_b32 s{sT0}, s{sT0}, 13")
    A(f"s_add_u32 s{sT0}, s{sT0}, 16384")
    A(f"v_and_b32 v{vT}, 31, v0")
    A(f"v_lshrrev_b32 v{vT+1}, 5, v0")
    A(f"v_bfe_u32 v{vT+2}, v0, 1, 3")
    A(f"v_xor_b32 v{vT+1}, v{vT+1}, v{vT+2}")
    A(f"v_lshlrev_b32 v{vT}, 7, v{vT}")
    A(f"v_lshl_add_u32 v{vT}, v{vT+1}, 4, v{vT}")
    A(f"v_add_u32 v{vBA}, s{sT0}, v{vT}")
    for st in range(1, 4): A(f"v_xor_b32 v{vBA+st}, {32*st}, v{vBA}")
    CSA, ONE, SEL, SF, SUM, SQ, vSB = 152, 160, 164, 168, 184, 192, 200
    MB, RS = 204, 208
    VO, PF, L16 = 120, 128, 2
    sU, sPSRC, sPDST, sPLDS = 40, 41, 42, 43
    def prep_setup():
        A(f"s_mul_i32 s{sU}, s{sWAVE}, 240")
        A(f"s_add_u32 s{sU}, s{sU}, s{sID}")
        A(f"v_lshlrev_b32 v{L16}, 4, v0")
        A(f"s_lshl_b32 s{sPLDS}, s{sWAVE}, 13")
        for jj in range(5):
            A(f"v_add_u32 v{vT}, {64*jj}, v0")
            A(f"v_mul_u32_u24 v{PF+jj}, 6554, v{vT}")
            A(f"v_lshrrev_b32 v{PF+jj}, 16, v{PF+jj}")
            A(f"v_mul_u32_u24 v{vT+1}, 10, v{PF+jj}")
            A(f"v_sub_u32 v{vT}, v{vT}, v{vT+1}")
            A(f"v_lshlrev_b32 v{VO+jj}, 4, v{vT}")
        A(f"s_cmp_ge_u32 s{sU}, 384")
        A("s_cbranch_scc1 L_qkv_pwo")
        srd(A, SP, 34, 1536 * 640 * 2)
        A(f"s_mul_i32 s{sT0}, s{sU}, 1366")
        A(f"s_lshr_b32 s{sT0}, s{sT0}, 16")
        A(f"s_mul_i32 s{sT1}, s{sT0}, 48")
        A(f"s_sub_u32 s{sT1}, s{sU}, s{sT1}")
        A(f"s_mul_i32 s{sPSRC}, s{sT1}, {32*1280}")
        A(f"s_mul_i32 s{sT0}, s{sT0}, 160")
        A(f"s_add_u32 s{sPSRC}, s{sPSRC}, s{sT0}")
        A(f"s_mul_i32 s{sPDST}, s{sU}, 5120")
        A(f"s_add_u32 s{sPDST}, s{sPDST}, {hex(WS_WD)}")
        A("s_branch L_qkv_pgo")
        A.label("L_qkv_pwo")
        srd(A, SP, 32, 640 * 640 * 2)
        A(f"s_sub_u32 s{sU}, s{sU}, 384")
        A(f"s_mul_i32 s{sT0}, s{sU}, 3277")
        A(f"s_lshr_b32 s{sT0}, s{sT0}, 16")
        A(f"s_mul_i32 s{sT1}, s{sT0}, 20")
        A(f"s_sub_u32 s{sT1}, s{sU}, s{sT1}")
        A(f"s_mul_i32 s{sPSRC}, s{sT0}, 160")
        A(f"s_mul_i32 s{sT0}, s{sT1}, 205")
        A(f"s_lshr_b32 s{sT0}, s{sT0}, 10")
        A(f"s_mul_i32 s{sT2}, s{sT0}, 5")
        A(f"s_sub_u32 s{sT1}, s{sT1}, s{sT2}")
        A(f"s_mul_i32 s{sT0}, s{sT0}, {160*1280}")
        A(f"s_add_u32 s{sPSRC}, s{sPSRC}, s{sT0}")
        A(f"s_mul_i32 s{sPDST}, s{sU}, 5120")
        A(f"s_add_u32 s{sPDST}, s{sPDST}, {hex(WS_WO)}")
        A(f"s_cmp_ge_u32 s{sU}, 160")
        A(f"s_cselect_b32 s{sPDST}, {hex(WS_SIZE)}, s{sPDST}")
        A(f"s_cselect_b32 s{SP+2}, 0, s{SP+2}")
        A(f"s_cmp_eq_u32 s{sT1}, 4")
        A("s_cbranch_scc1 L_qkv_pleft")
        A(f"s_mul_i32 s{sT1}, s{sT1}, {40*1280}")
        A(f"s_add_u32 s{sPSRC}, s{sPSRC}, s{sT1}")
        for jj in range(5):
            A(f"v_lshrrev_b32 v{vT}, 4, v{PF+jj}")
            A(f"v_lshl_add_u32 v{PF+jj}, v{vT}, 2, v{PF+jj}")
        A("s_branch L_qkv_pgo")
        A.label("L_qkv_pleft")
        for jj in range(5):
            k = PF + jj
            A(f"v_lshrrev_b32 v{vT}, 4, v{k}")
            A(f"v_mul_u32_u24 v{vT}, 80, v{vT}")
            A(f"v_bfe_u32 v{vT+1}, v{k}, 1, 2")
            A(f"v_mul_u32_u24 v{vT+1}, 20, v{vT+1}")
            A(f"v_add3_u32 v{vT}, v{vT}, v{vT+1}, 16")
            A(f"v_bfe_u32 v{vT+1}, v{k}, 3, 1")
            A(f"v_lshl_add_u32 v{vT}, v{vT+1}, 1, v{vT}")
            A(f"v_and_b32 v{vT+1}, 1, v{k}")
            A(f"v_add_u32 v{k}, v{vT}, v{vT+1}")
        A.label("L_qkv_pgo")
        for jj in range(5):
            A(f"v_mul_u32_u24 v{vT}, 1280, v{PF+jj}")
            A(f"v_add_u32 v{VO+jj}, v{VO+jj}, v{vT}")
        A(f"v_lshrrev_b32 v{vT}, 4, v0")
        A(f"v_bfe_u32 v{vT+1}, v0, 2, 2")
        A(f"v_lshl_add_u32 v{vT}, v{vT}, 3, v{vT+1}")
        A(f"v_mul_u32_u24 v{vT}, 160, v{vT}")
        A(f"v_add_u32 v{vT}, s{sPLDS}, v{vT}")
        A(f"v_and_b32 v{vT+1}, 3, v0")
        A(f"v_lshl_add_u32 v{VO+5}, v{vT+1}, 4, v{vT}")
        A(f"v_lshl_add_u32 v{VO+6}, v{vT+1}, 3, v{vT}")
    A("s_waitcnt lgkmcnt(0)")
    cfg = dict(cfg); cfg["q_prep"] = 100
    srd(A, SWS, 50, WS_SIZE)
    A(f"v_lshrrev_b32 v{vT}, 2, v0")
    A(f"v_xor_b32 v{vT}, v{vT}, v0")
    A(f"v_and_b32 v{vT}, 4, v{vT}")
    A(f"v_cmp_eq_u32 vcc, 0, v{vT}")
    for i in range(4): A(f"v_mov_b32 v{ONE+i}, 0x3f803f80")
    for i in range(4): A(f"v_cndmask_b32 v{SEL+i}, 0, v{ONE}, vcc")
    A(f"s_and_b32 s{sT0}, s{sWAVE}, 1")
    A(f"s_lshl_b32 s{sT0}, s{sT0}, 13")
    A(f"s_lshl_b32 s{sT1}, s{sFH2}, 11")
    A(f"s_add_u32 s{sT0}, s{sT0}, s{sT1}")
    A(f"s_add_u32 s{sT0}, s{sT0}, 16384")
    A(f"v_and_b32 v{vT}, 15, v0")
    A(f"v_lshrrev_b32 v{vT+1}, 4, v0")
    A(f"v_bfe_u32 v{vT+2}, v0, 1, 3")
    A(f"v_xor_b32 v{vT+1}, v{vT+1}, v{vT+2}")
    A(f"v_lshlrev_b32 v{vT}, 7, v{vT}")
    A(f"v_lshl_add_u32 v{vT}, v{vT+1}, 4, v{vT}")
    A(f"v_add_u32 v{vSB}, s{sT0}, v{vT}")
    A(f"v_xor_b32 v{vSB+1}, 64, v{vSB}")
    A(f"s_cmp_ge_u32 s{sFG}, 10")
    A("s_cbranch_scc1 L_qkv_V")

    STF = cfg.get("qkv_st", "sc1")
    def mainloop(isV):
        q = []
        def reads(st):
            c, sl = divmod(st, 4)
            _, so = rebase(c)
            b = FR + 16 * (st % 2)
            out = []
            for u in range(2): out.append((f"ds_read_b64_tr_b16 {v(b+2*u,2)}, v{vTR} offset:{so + (16*sl+4*u)*256}", (st, "A0")))
            out.append((f"ds_read_b128 {v(b+8,4)}, v{vBA+sl} offset:{so}", (st, "B0")))
            out.append((f"ds_read_b128 {v(b+12,4)}, v{vBA+sl} offset:{so + 4096}", (st, "B1")))
            for u in range(2): out.append((f"ds_read_b64_tr_b16 {v(b+4+2*u,2)}, v{vTR+1} offset:{so + (16*sl+4*u)*256}", (st, "A1")))
            out.append((f"ds_read_b128 {v(SF+4*(st%2),4)}, v{vSB+(sl>>1)} offset:{so + 2048*(st%2)}", (st, "S")))
            return out
        def issue(r): A(r[0]); q.append(r[1])
        def wait(tag): A(f"s_waitcnt lgkmcnt({len(q) - 1 - max(i for i, x in enumerate(q) if x == tag)})")
        A("s_barrier")
        for r in reads(0): issue(r)
        stamp(A, cfg, 1)
        for st in range(40):
            nxt = st + 1 < 40
            if st % 4 == 3 and nxt:
                A("s_barrier")
                if cfg.get("qts"): A(f"s_memtime s[{70+2*(st//4)}:{71+2*(st//4)}]")
                d, _ = rebase((st + 1) // 4)
                if d:
                    for r in (vTR, vTR + 1, vBA, vBA + 1, vBA + 2, vBA + 3, vSB, vSB + 1): A(f"v_add_u32 v{r}, {d & 0xffffffff}, v{r}")
            rs = reads(st + 1) if nxt else []
            b = FR + 16 * (st % 2)
            sf = v(SF + 4 * (st % 2), 4); su = v(SUM + 4 * (st % 2), 4); sq = v(SQ + 4 * (st % 2), 4)
            for k, (i, j, tag, nr) in enumerate(((0, 0, "B0", 2), (1, 0, "B1", 2), (0, 1, "S", 2), (1, 1, None, 1))):
                if tag: wait((st, tag))
                af = v(b + 4 * j, 4); xf = v(b + 8 + 4 * i, 4); acc = v(ACC + 32 * i + 16 * j, 16); c = acc if st else "0"
                if isV: A(f"v_mfma_f32_32x32x16_bf16 {acc}, {xf}, {af}, {c}")
                else:   A(f"v_mfma_f32_32x32x16_bf16 {acc}, {af}, {xf}, {c}")
                for _ in range(nr):
                    if rs: issue(rs.pop(0))
                if k == 1: A(f"v_mfma_f32_16x16x32_bf16 {v(CSA,4)}, {v(SEL,4)}, {v(b,4)}, {v(CSA,4) if st else 0}")
                if k == 2 and not cfg.get("q_nost"): A(f"v_mfma_f32_16x16x32_bf16 {su}, {v(ONE,4)}, {sf}, {su if st > 1 else 0}")
                if k == 3 and not cfg.get("q_nost"): A(f"v_mfma_f32_16x16x32_bf16 {sq}, {sf}, {sf}, {sq if st > 1 else 0}")
            if st == cfg.get("q_prep", 5):
                A("s_waitcnt vmcnt(0)")
                for f in range(5):
                    for u in range(2):
                        A(f"ds_read_b64_tr_b16 {v(PF+4*f+2*u,2)}, v{VO+5+(f==4)} offset:{4*u*160 + tile_col_imm(f)}"); q.append("p")
            if st == cfg.get("q_prep", 5) + 1:
                wait("p")
            if cfg.get("q_prep", 5) + 1 <= st <= cfg.get("q_prep", 5) + 5:
                f = st - cfg.get("q_prep", 5) - 1
                A(f"s_add_u32 s{sT0}, s{sPDST}, {f*1024}")
                A(f"buffer_store_dwordx4 {v(PF+4*f,4)}, v{L16}, s[{SWS}:{SWS+3}], s{sT0} offen {STF}")
        stamp(A, cfg, 2)

    def correction(isV):
        cs = CSA
        t0, t1, t2, t3 = vT, vT+1, vT+2, vT+3
        A(f"s_lshl_b32 s{sT0}, s{sJ0}, 9")
        A(f"s_lshl_b32 s{sT1}, s{sJ1}, 9")
        A(f"v_lshlrev_b32 v{t0}, 3, v0")
        A(f"v_add_u32 v{t1}, s{sT1}, v{t0}")
        A(f"v_add_u32 v{t0}, s{sT0}, v{t0}")
        A(f"v_cvt_pk_bf16_f32 v{cs+1}, v{cs}, v{cs}")
        A(f"v_and_b32 v{cs+1}, 0xffff0000, v{cs+1}")
        A(f"v_sub_f32 v{cs}, v{cs}, v{cs+1}")
        A(f"v_cvt_pk_bf16_f32 v{cs+2}, v{cs+1}, v{cs}")
        A(f"v_lshrrev_b32 v{cs+3}, 16, v{cs+1}")
        A(f"ds_write_b64 v{t0}, {v(cs+2,2)} offset:{CSL}")
        A(f"v_and_b32 v{t2}, 3, v0")
        for k in (1, 2, 3):
            A(f"v_cmp_eq_u32 vcc, {k}, v{t2}")
            for i in range(2): A(f"v_cndmask_b32 v{SQ+4*i}, v{SQ+4*i}, v{SQ+4*i+k}, vcc")
        A(f"s_and_b32 s{sT0}, s{sWAVE}, 1")
        A(f"s_lshl_b32 s{sT0}, s{sT0}, 6")
        A(f"s_lshl_b32 s{sT1}, s{sFH2}, 4")
        A(f"s_add_u32 s{sT1}, s{sT1}, s{sT0}")
        A(f"v_and_b32 v{t2}, 15, v0")
        A(f"v_add_u32 v{t2}, s{sT1}, v{t2}")
        A(f"v_lshlrev_b32 v{t3}, 2, v{t2}")
        A(f"v_lshlrev_b32 v{t2}, 3, v{t2}")
        for i in range(2):
            sm, sq = SUM + 4 * i, SQ + 4 * i
            A(f"v_mul_f32 v{sm}, {fhex(1/640)}, v{sm}")
            A(f"v_mul_f32 v{sq}, {fhex(1/640)}, v{sq}")
            A(f"v_fma_f32 v{sq}, -v{sm}, v{sm}, v{sq}")
            A(f"v_max_f32 v{sq}, 0, v{sq}")
            A(f"v_add_f32 v{sq}, {fhex(1e-5)}, v{sq}")
            A(f"v_rsq_f32 v{sq}, v{sq}")
            A(f"v_cvt_pk_bf16_f32 v{sm+2}, -v{sm}, -v{sm}")
            A(f"v_and_b32 v{sm+3}, 0xffff0000, v{sm+2}")
            A(f"v_sub_f32 v{sm+3}, -v{sm}, v{sm+3}")
            A(f"v_cvt_pk_bf16_f32 v{sm+3}, v{sm+3}, 0")
        A("s_mov_b32 exec_lo, 0x00f0000f")
        A("s_mov_b32 exec_hi, 0xf0000f00")
        for i in range(2):
            A(f"ds_write_b64 v{t2}, {v(SUM+4*i+2,2)} offset:{STL + 128*i}")
            A(f"ds_write_b32 v{t3}, v{SQ+4*i} offset:{STL + 1024 + 64*i}")
        A("s_mov_b64 exec, -1")
        A(f"v_and_b32 v{t2}, 31, v0")
        A(f"v_add_u32 v{t2}, s{sT0}, v{t2}")
        if isV:
            A(f"v_lshrrev_b32 v{t3}, 5, v0")
            A(f"v_lshlrev_b32 v{t3}, 2, v{t3}")
            A(f"v_add_u32 v{t3}, s{sT0}, v{t3}")
            A(f"v_lshlrev_b32 v{t3}, 2, v{t3}")
        else:
            A(f"v_lshlrev_b32 v{t3}, 2, v{t2}")
        A(f"v_lshlrev_b32 v{t2}, 3, v{t2}")
        A(f"v_cmp_gt_u32 vcc, 32, v0")
        A("s_waitcnt lgkmcnt(0)")
        A("s_barrier")
        for i in range(2): A(f"ds_read_b64 {v(MB+2*i,2)}, v{t2} offset:{STL + 256*i}")
        A(f"ds_read_b64 {v(cs+4,2)}, v{t1} offset:{CSL}")
        if isV:
            for i in range(2):
                for aa in range(4): A(f"ds_read_b128 {v(vST+16*i+4*aa,4)}, v{t3} offset:{STL + 1024 + 128*i + 32*aa}")
        else:
            for i in range(2): A(f"ds_read_b32 v{RS+i}, v{t3} offset:{STL + 1024 + 128*i}")
        A(f"s_waitcnt lgkmcnt({8 if isV else 2})")
        for k in range(4): A(f"v_cndmask_b32 v{MB+k}, 0, v{MB+k}, vcc")
        for j in range(2):
            cf = v(cs + 2 + 2 * j, 2)
            for i in range(2):
                mb = v(MB + 2 * i, 2); acc = v(ACC + 32 * i + 16 * j, 16)
                if isV: A(f"v_mfma_f32_32x32x8_bf16 {acc}, {mb}, {cf}, {acc}")
                else:   A(f"v_mfma_f32_32x32x8_bf16 {acc}, {cf}, {mb}, {acc}")
        A("s_waitcnt lgkmcnt(0)")

    tr_addr(True, (f"s{sJ0}", f"s{sJ1}"))
    t0, t1, t2, tok16, half = vT, vT+1, vT+2, vT+4, vT+6
    A(f"s_cmp_ge_u32 s{sFG}, 5")
    A(f"s_cselect_b32 s{sT1}, 5, 0")
    A(f"s_cselect_b32 s{sBASE}, {hex(WS_K)}, {hex(WS_Q)}")
    A(f"s_cselect_b32 s{sQS}, 1.0, {fhex(QSCALE)}")
    A(f"s_sub_u32 s{sT1}, s{sFG}, s{sT1}")
    A(f"s_lshl_b32 s{sT1}, s{sT1}, 4")
    A(f"s_mul_i32 s{sT2}, s{sTILE}, 2560")
    A(f"s_add_u32 s{sBASE}, s{sBASE}, s{sT2}")
    A(f"v_lshrrev_b32 v{half}, 5, v0")
    A(f"v_add_u32 v{half}, s{sT1}, v{half}")
    A(f"v_and_b32 v{tok16}, 31, v0")
    A(f"v_lshlrev_b32 v{tok16}, 4, v{tok16}")
    A(f"s_mov_b32 s{sT2}, {PAIR_STRIDE - 2560}")
    for q in range(4):
        A(f"s_lshl_b32 s{sT0}, s{sJ0 + q//2}, 2")
        A(f"s_add_u32 s{sT0}, s{sT0}, {2*(q%2)}")
        A(f"v_add_u32 v{t0}, s{sT0}, v{half}")
        A(f"v_mul_u32_u24 v{t1}, 205, v{t0}")
        A(f"v_lshrrev_b32 v{t1}, 10, v{t1}")
        A(f"v_mul_lo_u32 v{t1}, s{sT2}, v{t1}")
        A(f"v_lshl_add_u32 v{t0}, v{t0}, 9, v{tok16}")
        A(f"v_add_u32 v{vADR+q}, v{t0}, v{t1}")
    mainloop(False)
    correction(False)
    for i in range(2): A(f"v_mul_f32 v{RS+i}, s{sQS}, v{RS+i}")
    for j in range(2):
        for i in range(2):
            for sg in range(2):
                r = ACC + 32 * i + 16 * j + 8 * sg
                for b in range(8): A(f"v_mul_f32 v{r+b}, v{RS+i}, v{r+b}")
                for b in range(4): A(f"v_cvt_pk_bf16_f32 v{r+b}, v{r+2*b}, v{r+2*b+1}")
                A(f"buffer_store_dwordx4 {v(r,4)}, v{vADR+2*j+sg}, s[{SWS}:{SWS+3}], s{sBASE} offen offset:{2560*i} {STF}")
    A("s_branch L_qkv_fin")

    A.label("L_qkv_V")
    tr_addr(False, (f"s{sJ0}", f"s{sJ1}"))
    A(f"s_mul_i32 s{sBASE}, s{sTILE}, 1280")
    A(f"s_add_u32 s{sBASE}, s{sBASE}, {hex(WS_V)}")
    A(f"s_sub_u32 s{sT1}, s{sFG}, 10")
    A(f"s_lshl_b32 s{sT1}, s{sT1}, 7")
    A(f"v_lshrrev_b32 v{half}, 5, v0")
    A(f"v_mul_u32_u24 v{half}, 320, v{half}")
    A(f"v_and_b32 v{tok16}, 31, v0")
    A(f"v_add_u32 v{tok16}, s{sT1}, v{tok16}")
    A(f"s_mov_b32 s{sT2}, {VHEAD_STRIDE - 320}")
    for j in range(2):
        A(f"s_lshl_b32 s{sT0}, s{sJ0 + j}, 5")
        A(f"v_add_u32 v{t0}, s{sT0}, v{tok16}")
        A(f"v_mul_u32_u24 v{t1}, 3277, v{t0}")
        A(f"v_lshrrev_b32 v{t1}, 16, v{t1}")
        A(f"v_mul_lo_u32 v{t1}, s{sT2}, v{t1}")
        A(f"v_lshl_add_u32 v{t0}, v{t0}, 4, v{half}")
        A(f"v_add_u32 v{vADR+j}, v{t0}, v{t1}")
    mainloop(True)
    correction(True)
    for j in range(2):
        for i in range(2):
            for mf in range(2):
                r = ACC + 32 * i + 16 * j + 8 * mf
                for b in range(8): A(f"v_mul_f32 v{r+b}, v{vST+16*i+8*mf+b}, v{r+b}")
                for b in range(4): A(f"v_cvt_pk_bf16_f32 v{r+b}, v{r+2*b}, v{r+2*b+1}")
                A(f"buffer_store_dwordx4 {v(r,4)}, v{vADR+j}, s[{SWS}:{SWS+3}], s{sBASE} offen offset:{1280*i + mf*640} {STF}")
    A.label("L_qkv_fin")
    stamp(A, cfg, 3)
    if cfg.get("qts"):
        for c in range(9): A(f"s_mov_b32 s{71+2*c}, s{70+2*c}")
        A("s_mov_b32 s68, 0")
        A("s_mov_b32 s69, 0")
        stamp_flush(A, cfg, 14, 17, SWS, sWAVE, 0)
        A("s_mov_b64 exec, -1")
    stamp_flush(A, cfg, 4, 0, SWS, sWAVE, 0)
    A("s_endpgm")

    A.label("L_qkv_loader")
    vWOFF, vXOFF = 1, 72
    sWLIM = 44
    if cfg.get("rot", 1):
        A(f"s_lshl_b32 s{sT0}, s{sT0}, 2")
        A(f"s_lshr_b32 s{sC0}, 0x30858530, s{sT0}")
        A(f"s_and_b32 s{sC0}, s{sC0}, 15")
    else:
        A(f"s_mov_b32 s{sC0}, 0")
    A(f"s_sub_u32 s{sWAVE}, s{sWAVE}, 4")
    A(f"v_and_b32 v{vT}, 15, v0")
    A(f"v_lshrrev_b32 v{vT+1}, 4, v0")
    A(f"v_lshlrev_b32 v{vT+2}, 2, v{vT+1}")
    A(f"v_xor_b32 v{vT+2}, v{vT+2}, v{vT}")
    A(f"v_mul_u32_u24 v{vWOFF}, 3840, v{vT+1}")
    A(f"v_lshl_add_u32 v{vWOFF}, v{vT+2}, 4, v{vWOFF}")
    A(f"v_and_b32 v{vT}, 7, v0")
    A(f"v_xor_b32 v{vT}, v{vT}, v{vT+1}")
    A(f"v_lshrrev_b32 v{vT+2}, 3, v0")
    A(f"v_mul_u32_u24 v{vT+2}, 1280, v{vT+2}")
    A(f"v_lshl_add_u32 v{vXOFF}, v{vT}, 4, v{vT+2}")
    A(f"v_xor_b32 v{vXOFF+1}, 64, v{vXOFF}")
    A(f"s_lshl_b32 s{sWO}, s{sFG}, 8")
    A(f"s_mul_i32 s{sT0}, s{sWAVE}, {16*3840}")
    A(f"s_add_u32 s{sWO}, s{sWO}, s{sT0}")
    A(f"s_add_u32 s{sWLIM}, s{sWO}, {640*3840}")
    A(f"s_mul_i32 s{sT0}, s{sC0}, {64*3840}")
    A(f"s_add_u32 s{sWO}, s{sWO}, s{sT0}")
    A(f"s_lshl_b32 s{sXO}, s{sTB}, 2")
    A(f"s_add_u32 s{sXO}, s{sXO}, s{sWAVE}")
    A(f"s_mul_i32 s{sXO}, s{sXO}, {32*1280}")
    A(f"s_lshl_b32 s{sT0}, s{sC0}, 7")
    A(f"s_add_u32 s{sXO}, s{sXO}, s{sT0}")
    A(f"s_lshl_b32 s{sM0}, s{sWAVE}, 12")
    A("s_waitcnt lgkmcnt(0)")
    srd(A, SW, 6, 640 * 1920 * 2)
    srd(A, SX, SX, X_BYTES)
    def dma_ops(c):
        ops = []
        for j in range(4):
            ops.append([f"s_add_u32 m0, s{sM0}, {(c%5)*SLOT + j*1024}", f"s_add_u32 s{sT0}, s{sWO}, {4*j*3840}",
                        f"buffer_load_dwordx4 v{vWOFF}, s[{SW}:{SW+3}], s{sT0} offen lds"])
            ops.append([f"s_add_u32 m0, s{sM0}, {(c%5)*SLOT + 16384 + j*1024}", f"s_add_u32 s{sT0}, s{sXO}, {8*j*1280}",
                        f"buffer_load_dwordx4 v{vXOFF+(j%2)}, s[{SX}:{SX+3}], s{sT0} offen lds"])
        ops[-1] += [f"s_add_u32 s{sWO}, s{sWO}, {64*3840}", f"s_add_u32 s{sXO}, s{sXO}, 128",
                    f"s_cmp_eq_u32 s{sWO}, s{sWLIM}", f"s_cselect_b32 s{sT0}, {640*3840}, 0", f"s_cselect_b32 s{sT1}, 1280, 0",
                    f"s_sub_u32 s{sWO}, s{sWO}, s{sT0}", f"s_sub_u32 s{sXO}, s{sXO}, s{sT1}"]
        return ops
    def emit(op):
        for x in op:
            if cfg.get("q_nodma") and x.startswith("buffer_"): continue
            A(x)
    IW = cfg.get("iw", 2)
    for c in range(IW):
        for op in dma_ops(c): emit(op)
    srd(A, SWS, 50, WS_SIZE)
    prep_setup()
    ops = [("w", c) for c in range(IW) for _ in range(8)]
    nw = IW
    def wait_for(tag):
        last = max(i for i, o in enumerate(ops) if o == tag)
        A(f"s_waitcnt vmcnt({len(ops) - 1 - last})")
    for c in range(10):
        wait_for(("w", c))
        A("s_barrier")
        for k in range(2 if c in cfg.get("extra_at", []) else 1):
            if nw < 10 and nw <= max(c + 3, 4) and (nw != 4 or c >= 2 or not cfg.get('k1prep', 0)):
                for op in dma_ops(nw): emit(op)
                ops += [("w", nw)] * 8; nw += 1
        if c == 7:
            for jj in range(5):
                A(f"s_add_u32 m0, s{sPLDS}, {jj*1024}")
                A(f"buffer_load_dwordx4 v{VO+jj}, s[{SP}:{SP+3}], s{sPSRC} offen lds")
            ops += [("p", 0)] * 5
    if cfg.get("prep_late", 0): A("s_barrier")
    A("s_waitcnt vmcnt(0)")
    for f in range(5):
        for u in range(2):
            A(f"ds_read_b64_tr_b16 {v(PF+4*f+2*u,2)}, v{VO+5+(f==4)} offset:{4*u*160 + tile_col_imm(f)}")
    A("s_waitcnt lgkmcnt(0)")
    for f in range(5):
        A(f"s_add_u32 s{sT0}, s{sPDST}, {f*1024}")
        A(f"buffer_store_dwordx4 {v(PF+4*f,4)}, v{L16}, s[{SWS}:{SWS+3}], s{sT0} offen {STF}")
    A("s_endpgm")

    A.label("L_qkv_helper")
    XD = 16
    if cfg.get("ctouch", 1):
        code_touch_setup(A, 46, "qkv_kernel", True)
        A(f"v_lshlrev_b32 v{vT+1}, 7, v0")
        A(f"v_min_u32 v{vT+1}, L_code_end-qkv_kernel-4, v{vT+1}")
        A(f"global_load_dword v{vT+7}, v{vT+1}, s[46:47]")
    A(f"v_and_b32 v0, 63, v0")
    A("s_waitcnt lgkmcnt(0)")
    srd(A, SWS, 50, WS_SIZE)
    if cfg.get("ptouch", 1):
        srd(A, SP, 34, 1536 * 640 * 2)
        srd(A, SW, 32, 640 * 640 * 2)
        A(f"s_lshl_b32 s{sT0}, s2, 3")
        A(f"s_add_u32 s{sT0}, s{sT0}, s{sWAVE}")
        A(f"s_mul_i32 s{sT1}, s{sT0}, {50*128}")
        A(f"s_mul_i32 s{sT0}, s{sT0}, {120*128}")
        A(f"v_lshlrev_b32 v1, 7, v0")
        A("s_bfm_b64 exec, 60, 0")
        A(f"buffer_load_dword v2, v1, s[{SP}:{SP+3}], s{sT0} offen")
        A(f"s_add_u32 s{sT0}, s{sT0}, {60*128}")
        A(f"buffer_load_dword v2, v1, s[{SP}:{SP+3}], s{sT0} offen")
        A("s_bfm_b64 exec, 50, 0")
        A(f"buffer_load_dword v2, v1, s[{SW}:{SW+3}], s{sT1} offen")
        A("s_mov_b64 exec, -1")
    stamp(A, cfg, 1)
    stamp(A, cfg, 2)
    A(f"s_lshl_b32 s{sT0}, s{sWAVE}, 10")
    A(f"s_add_u32 s{sT0}, s{sT0}, {hex(WS_SYNC)}")
    A(f"s_cmp_eq_u32 s2, 0")
    A(f"s_cselect_b32 s{sT0}, s{sT0}, {hex(WS_SIZE)}")
    for i in range(4): A(f"v_mov_b32 v{XD+i}, 0")
    A(f"v_lshlrev_b32 v1, 4, v0")
    A(f"buffer_store_dwordx4 {v(XD,4)}, v1, s[{SWS}:{SWS+3}], s{sT0} offen")
    stamp(A, cfg, 3)
    stamp_flush(A, cfg, 4, 0, SWS, sWAVE, 0)
    A.label("L_qkv_end")
    A("s_endpgm")
    return dict(name=name, grid=256, block=512, lds=163840, desc=kernel_desc(name, 216, 216))
```

```python
from common import *

def gen_qkv(A, cfg):
    name = "qkv_kernel"
    kstart(A, name)
    SX, SW, SWS, SP, SD = 4, 8, 12, 36, 48
    sWAVE, sTB, sFG, sXO, sXLIM, sWO, sT0, sT1, sT2, sM0 = 16, 17, 18, 19, 20, 21, 22, 23, 24, 25
    sTILE, sBASE, sQS, sC0, sID = 26, 27, 28, 30, 31
    vTR = 4
    vT = 8
    SLOT = 32768
    CSL = SLOT
    STL = SLOT + 2048
    A("s_cmp_ge_u32 s2, 256")
    A("s_cbranch_scc1 L_qkv_end")
    A("s_load_dwordx4 s[4:7], s[0:1], 0")
    A("s_load_dwordx4 s[48:51], s[0:1], 64")
    A("s_load_dwordx2 s[32:33], s[0:1], 16")
    A("s_load_dwordx2 s[34:35], s[0:1], 48")
    stamp(A, cfg, 0)
    A(f"v_lshrrev_b32 v{vT}, 6, v0")
    A(f"s_cmp_lt_u32 s2, 16")
    A(f"v_readfirstlane_b32 s{sWAVE}, v{vT}")
    A("s_cbranch_scc1 L_qkv_helper")
    A(f"v_and_b32 v0, 63, v0")
    A(f"s_sub_u32 s{sID}, s2, 16")
    A(f"s_and_b32 s{sT0}, s{sID}, 7")
    A(f"s_lshr_b32 s{sT1}, s{sID}, 3")
    A(f"s_lshr_b32 s{sT2}, s{sT0}, 2")
    A(f"s_mul_i32 s{sT2}, s{sT2}, 30")
    A(f"s_add_u32 s{sT1}, s{sT1}, s{sT2}")
    A(f"s_lshr_b32 s{sFG}, s{sT1}, 2")
    A(f"s_and_b32 s{sT1}, s{sT1}, 3")
    A(f"s_and_b32 s{sT2}, s{sT0}, 3")
    A(f"s_lshl_b32 s{sT2}, s{sT2}, 2")
    A(f"s_add_u32 s{sTB}, s{sT2}, s{sT1}")
    A(f"s_cmp_ge_u32 s{sWAVE}, 4")
    A("s_cbranch_scc1 L_qkv_loader")

    def tr_addr(permuted, tiles):
        rho, cc, g1, kh, base = vT, vT+1, vT+2, vT+3, vT+4
        A(f"v_bfe_u32 v{rho}, v0, 2, 2")
        A(f"v_bfe_u32 v{g1}, v0, 4, 1")
        A(f"v_lshrrev_b32 v{kh}, 5, v0")
        A(f"v_lshl_add_u32 v{base}, v{kh}, 3, v{rho}")
        A(f"v_lshlrev_b32 v{base}, 8, v{base}")
        A(f"v_lshl_add_u32 v{base}, v{g1}, 5, v{base}")
        if permuted:
            A(f"v_and_b32 v{cc}, 1, v0")
            A(f"v_lshl_add_u32 v{base}, v{cc}, 4, v{base}")
            A(f"v_bfe_u32 v{cc}, v0, 1, 1")
            A(f"v_lshl_add_u32 v{base}, v{cc}, 3, v{base}")
        else:
            A(f"v_and_b32 v{cc}, 3, v0")
            A(f"v_lshl_add_u32 v{base}, v{cc}, 3, v{base}")
        for j, t in enumerate(tiles):
            A(f"v_xor_b32 v{vTR+j}, {t}, v{rho}")
            A(f"v_lshl_add_u32 v{vTR+j}, v{vTR+j}, 6, v{base}")
    def rebase(c):
        def base(c): return ((c % 5) // 2) * 2 * SLOT
        return (base(c) - base(c - 1) if c else 0), (c % 5) * SLOT - base(c)

    ACC, FR, vBA, vADR, vST = 16, 80, 112, 116, 120
    sFH2 = 29
    A(f"s_and_b32 s{sT0}, s{sWAVE}, 1")
    A(f"s_and_b32 s{sFH2}, s{sWAVE}, 2")
    sJ0, sJ1 = 44, 45
    A(f"s_mov_b32 s{sJ0}, s{sWAVE}")
    A(f"s_xor_b32 s{sJ1}, s{sWAVE}, 1")
    A(f"s_lshl_b32 s{sTILE}, s{sTB}, 1")
    A(f"s_add_u32 s{sTILE}, s{sTILE}, s{sT0}")
    A(f"s_lshl_b32 s{sTILE}, s{sTILE}, 1")
    A(f"s_lshl_b32 s{sT0}, s{sT0}, 13")
    A(f"s_add_u32 s{sT0}, s{sT0}, 16384")
    A(f"v_and_b32 v{vT}, 31, v0")
    A(f"v_lshrrev_b32 v{vT+1}, 5, v0")
    A(f"v_bfe_u32 v{vT+2}, v0, 1, 3")
    A(f"v_xor_b32 v{vT+1}, v{vT+1}, v{vT+2}")
    A(f"v_lshlrev_b32 v{vT}, 7, v{vT}")
    A(f"v_lshl_add_u32 v{vT}, v{vT+1}, 4, v{vT}")
    A(f"v_add_u32 v{vBA}, s{sT0}, v{vT}")
    for st in range(1, 4): A(f"v_xor_b32 v{vBA+st}, {32*st}, v{vBA}")
    A("s_waitcnt lgkmcnt(0)")
    srd(A, SWS, 50, WS_SIZE)
    srd(A, SD, SD, 256)
    CSA, ONE, MB, RS, vSA = 152, 168, 172, 176, 178
    A(f"v_lshrrev_b32 v{vT}, 2, v0")
    A(f"v_xor_b32 v{vT}, v{vT}, v0")
    A(f"v_and_b32 v{vT}, 4, v{vT}")
    A(f"v_cmp_eq_u32 vcc, 0, v{vT}")
    A(f"v_mov_b32 v{vT}, 0x3f803f80")
    for i in range(4): A(f"v_cndmask_b32 v{ONE+i}, 0, v{vT}, vcc")
    A(f"s_lshl_b32 s{sXO}, s{sTB}, 11")
    A(f"s_add_u32 s{sXO}, s{sXO}, {hex(WS_ST1)}")
    A(f"s_and_b32 s{sT0}, s{sWAVE}, 1")
    A(f"s_lshl_b32 s{sT0}, s{sT0}, 6")
    A(f"v_and_b32 v{vT}, 31, v0")
    A(f"v_add_u32 v{vT}, s{sT0}, v{vT}")
    A(f"v_lshlrev_b32 v{vSA}, 3, v{vT}")
    A(f"v_cmp_gt_u32 vcc, 32, v0")
    A(f"v_mov_b32 v{vT+1}, 0x7f000000")
    A(f"v_cndmask_b32 v{vSA}, v{vT+1}, v{vSA}, vcc")
    A(f"v_lshlrev_b32 v{vSA+1}, 2, v{vT}")
    A(f"v_lshrrev_b32 v{vT}, 5, v0")
    A(f"v_lshlrev_b32 v{vT}, 2, v{vT}")
    A(f"v_add_u32 v{vT}, s{sT0}, v{vT}")
    A(f"v_lshlrev_b32 v{vSA+2}, 2, v{vT}")
    A(f"v_mov_b32 v{vSA+3}, 0")
    A(f"s_lshl_b32 s{sXLIM}, s{sTB}, 2")
    A(f"s_cmp_ge_u32 s{sFG}, 10")
    A("s_cbranch_scc1 L_qkv_V")

    def mainloop(isV):
        q = []
        def reads(st):
            c, sl = divmod(st, 4)
            _, so = rebase(c)
            b = FR + 16 * (st % 2)
            out = []
            for u in range(2): out.append((f"ds_read_b64_tr_b16 {v(b+2*u,2)}, v{vTR} offset:{so + (16*sl+4*u)*256}", (st, "A0")))
            out.append((f"ds_read_b128 {v(b+8,4)}, v{vBA+sl} offset:{so}", (st, "B0")))
            out.append((f"ds_read_b128 {v(b+12,4)}, v{vBA+sl} offset:{so + 4096}", (st, "B1")))
            for u in range(2): out.append((f"ds_read_b64_tr_b16 {v(b+4+2*u,2)}, v{vTR+1} offset:{so + (16*sl+4*u)*256}", (st, "A1")))
            return out
        def issue(r): A(r[0]); q.append(r[1])
        def wait(tag): A(f"s_waitcnt lgkmcnt({len(q) - 1 - max(i for i, x in enumerate(q) if x == tag)})")
        A("s_barrier")
        for r in reads(0): issue(r)
        stamp(A, cfg, 1)
        for st in range(40):
            nxt = st + 1 < 40
            if st % 4 == 3 and nxt:
                A("s_barrier")
                if cfg.get("qts"): A(f"s_memtime s[{70+2*(st//4)}:{71+2*(st//4)}]")
                d, _ = rebase((st + 1) // 4)
                if d:
                    for r in (vTR, vTR + 1, vBA, vBA + 1, vBA + 2, vBA + 3): A(f"v_add_u32 v{r}, {d & 0xffffffff}, v{r}")
            rs = reads(st + 1) if nxt else []
            b = FR + 16 * (st % 2)
            for k, (i, j, tag, nr) in enumerate(((0, 0, "B0", 2), (1, 0, "B1", 2), (0, 1, "A1", 2), (1, 1, None, 0))):
                if tag: wait((st, tag))
                af = v(b + 4 * j, 4); xf = v(b + 8 + 4 * i, 4); acc = v(ACC + 32 * i + 16 * j, 16); c = acc if st else "0"
                if isV: A(f"v_mfma_f32_32x32x16_bf16 {acc}, {xf}, {af}, {c}")
                else:   A(f"v_mfma_f32_32x32x16_bf16 {acc}, {af}, {xf}, {c}")
                for _ in range(nr):
                    if rs: issue(rs.pop(0))
            A(f"v_mfma_f32_16x16x32_bf16 {v(CSA,4)}, {v(ONE,4)}, {v(b,4)}, {v(CSA,4) if st else 0}")
            if st == cfg.get("q_fl", 27):
                A(f"buffer_load_dword v{vT}, v{vSA+3}, s[{SD}:{SD+3}], s{sXLIM} offen sc1")
            if st == cfg.get("q_fc", 33):
                LP, LD = A.newlabel("qp"), A.newlabel("qd")
                A(f"s_mov_b32 s{sT1}, 0")
                A.label(LP)
                A("s_waitcnt vmcnt(0)")
                A(f"v_cmp_eq_u32 vcc, 0, v{vT}")
                A(f"s_add_u32 s{sT1}, s{sT1}, 1")
                A(f"s_cmp_lt_u32 s{sT1}, 0x40000")
                A(f"s_cselect_b64 vcc, vcc, 0")
                A(f"s_cbranch_vccz {LD}")
                A(f"buffer_load_dword v{vT}, v{vSA+3}, s[{SD}:{SD+3}], s{sXLIM} offen sc1")
                A(f"s_branch {LP}")
                A.label(LD)
                for i in range(2): A(f"buffer_load_dwordx2 {v(MB+2*i,2)}, v{vSA}, s[{SWS}:{SWS+3}], s{sXO} offen offset:{256*i} sc1")
                if isV:
                    for i in range(2):
                        for aa in range(4): A(f"buffer_load_dwordx4 {v(vST+16*i+4*aa,4)}, v{vSA+2}, s[{SWS}:{SWS+3}], s{sXO} offen offset:{1024 + 128*i + 32*aa} sc1")
                else:
                    for i in range(2): A(f"buffer_load_dword v{RS+i}, v{vSA+1}, s[{SWS}:{SWS+3}], s{sXO} offen offset:{1024 + 128*i} sc1")
        stamp(A, cfg, 2)

    def correction(isV):
        cs = CSA
        A(f"s_lshl_b32 s{sT0}, s{sJ0}, 9")
        A(f"s_lshl_b32 s{sT1}, s{sJ1}, 9")
        A(f"v_lshlrev_b32 v{vT}, 3, v0")
        A(f"v_add_u32 v{vT+1}, s{sT1}, v{vT}")
        A(f"v_add_u32 v{vT}, s{sT0}, v{vT}")
        A(f"v_cvt_pk_bf16_f32 v{cs+1}, v{cs}, v{cs}")
        A(f"v_and_b32 v{cs+1}, 0xffff0000, v{cs+1}")
        A(f"v_sub_f32 v{cs}, v{cs}, v{cs+1}")
        A(f"v_cvt_pk_bf16_f32 v{cs+2}, v{cs+1}, v{cs}")
        A(f"v_lshrrev_b32 v{cs+3}, 16, v{cs+1}")
        A(f"ds_write_b64 v{vT}, {v(cs+2,2)} offset:{CSL}")
        def corr(j, cf):
            for i in range(2):
                mb = v(MB + 2 * i, 2); acc = v(ACC + 32 * i + 16 * j, 16)
                if isV: A(f"v_mfma_f32_32x32x8_bf16 {acc}, {mb}, {cf}, {acc}")
                else:   A(f"v_mfma_f32_32x32x8_bf16 {acc}, {cf}, {mb}, {acc}")
        A("s_waitcnt vmcnt(0) lgkmcnt(0)")
        A("s_barrier")
        A(f"ds_read_b64 {v(cs+4,2)}, v{vT+1} offset:{CSL}")
        corr(0, v(cs + 2, 2))
        A("s_waitcnt lgkmcnt(0)")
        corr(1, v(cs + 4, 2))

    STF = cfg.get("qkv_st", "")
    tr_addr(True, (f"s{sJ0}", f"s{sJ1}"))
    t0, t1, t2, tok16, half = vT, vT+1, vT+2, vT+4, vT+6
    A(f"s_cmp_ge_u32 s{sFG}, 5")
    A(f"s_cselect_b32 s{sT1}, 5, 0")
    A(f"s_cselect_b32 s{sBASE}, {hex(WS_K)}, {hex(WS_Q)}")
    A(f"s_cselect_b32 s{sQS}, 1.0, {fhex(QSCALE)}")
    A(f"s_sub_u32 s{sT1}, s{sFG}, s{sT1}")
    A(f"s_lshl_b32 s{sT1}, s{sT1}, 4")
    A(f"s_mul_i32 s{sT2}, s{sTILE}, 2560")
    A(f"s_add_u32 s{sBASE}, s{sBASE}, s{sT2}")
    A(f"v_lshrrev_b32 v{half}, 5, v0")
    A(f"v_add_u32 v{half}, s{sT1}, v{half}")
    A(f"v_and_b32 v{tok16}, 31, v0")
    A(f"v_lshlrev_b32 v{tok16}, 4, v{tok16}")
    A(f"s_mov_b32 s{sT2}, {PAIR_STRIDE - 2560}")
    for q in range(4):
        A(f"s_lshl_b32 s{sT0}, s{sJ0 + q//2}, 2")
        A(f"s_add_u32 s{sT0}, s{sT0}, {2*(q%2)}")
        A(f"v_add_u32 v{t0}, s{sT0}, v{half}")
        A(f"v_mul_u32_u24 v{t1}, 205, v{t0}")
        A(f"v_lshrrev_b32 v{t1}, 10, v{t1}")
        A(f"v_mul_lo_u32 v{t1}, s{sT2}, v{t1}")
        A(f"v_lshl_add_u32 v{t0}, v{t0}, 9, v{tok16}")
        A(f"v_add_u32 v{vADR+q}, v{t0}, v{t1}")
    mainloop(False)
    correction(False)
    for i in range(2): A(f"v_mul_f32 v{RS+i}, s{sQS}, v{RS+i}")
    for j in range(2):
        for i in range(2):
            for sg in range(2):
                r = ACC + 32 * i + 16 * j + 8 * sg
                for b in range(8): A(f"v_mul_f32 v{r+b}, v{RS+i}, v{r+b}")
                for b in range(4): A(f"v_cvt_pk_bf16_f32 v{r+b}, v{r+2*b}, v{r+2*b+1}")
                A(f"buffer_store_dwordx4 {v(r,4)}, v{vADR+2*j+sg}, s[{SWS}:{SWS+3}], s{sBASE} offen offset:{2560*i} {STF}")
    A("s_branch L_qkv_fin")

    A.label("L_qkv_V")
    tr_addr(False, (f"s{sJ0}", f"s{sJ1}"))
    A(f"s_mul_i32 s{sBASE}, s{sTILE}, 1280")
    A(f"s_add_u32 s{sBASE}, s{sBASE}, {hex(WS_V)}")
    A(f"s_sub_u32 s{sT1}, s{sFG}, 10")
    A(f"s_lshl_b32 s{sT1}, s{sT1}, 7")
    A(f"v_lshrrev_b32 v{half}, 5, v0")
    A(f"v_mul_u32_u24 v{half}, 320, v{half}")
    A(f"v_and_b32 v{tok16}, 31, v0")
    A(f"v_add_u32 v{tok16}, s{sT1}, v{tok16}")
    A(f"s_mov_b32 s{sT2}, {VHEAD_STRIDE - 320}")
    for j in range(2):
        A(f"s_lshl_b32 s{sT0}, s{sJ0 + j}, 5")
        A(f"v_add_u32 v{t0}, s{sT0}, v{tok16}")
        A(f"v_mul_u32_u24 v{t1}, 3277, v{t0}")
        A(f"v_lshrrev_b32 v{t1}, 16, v{t1}")
        A(f"v_mul_lo_u32 v{t1}, s{sT2}, v{t1}")
        A(f"v_lshl_add_u32 v{t0}, v{t0}, 4, v{half}")
        A(f"v_add_u32 v{vADR+j}, v{t0}, v{t1}")
    mainloop(True)
    correction(True)
    for j in range(2):
        for i in range(2):
            for mf in range(2):
                r = ACC + 32 * i + 16 * j + 8 * mf
                for b in range(8): A(f"v_mul_f32 v{r+b}, v{vST+16*i+8*mf+b}, v{r+b}")
                for b in range(4): A(f"v_cvt_pk_bf16_f32 v{r+b}, v{r+2*b}, v{r+2*b+1}")
                A(f"buffer_store_dwordx4 {v(r,4)}, v{vADR+j}, s[{SWS}:{SWS+3}], s{sBASE} offen offset:{1280*i + mf*640} {STF}")
    A.label("L_qkv_fin")
    stamp(A, cfg, 3)
    if cfg.get("qts"):
        for c in range(9): A(f"s_mov_b32 s{71+2*c}, s{70+2*c}")
        A("s_mov_b32 s68, 0")
        A("s_mov_b32 s69, 0")
        stamp_flush(A, cfg, 14, 17, SWS, sWAVE, 0)
        A("s_mov_b64 exec, -1")
    stamp_flush(A, cfg, 4, 0, SWS, sWAVE, 0)
    A("s_endpgm")

    A.label("L_qkv_loader")
    vWOFF, vXOFF = 1, 72
    CS, LF, VO, PF, L16 = 16, 24, 44, 52, 2
    sU, sPSRC, sPDST, sPLDS, sWLIM = 40, 41, 42, 43, 44
    if cfg.get("rot", 1):
        A(f"s_lshl_b32 s{sT0}, s{sT0}, 2")
        A(f"s_lshr_b32 s{sC0}, 0x30858530, s{sT0}")
        A(f"s_and_b32 s{sC0}, s{sC0}, 15")
    else:
        A(f"s_mov_b32 s{sC0}, 0")
    A(f"s_sub_u32 s{sWAVE}, s{sWAVE}, 4")
    A(f"v_and_b32 v{vT}, 15, v0")
    A(f"v_lshrrev_b32 v{vT+1}, 4, v0")
    A(f"v_lshlrev_b32 v{vT+2}, 2, v{vT+1}")
    A(f"v_xor_b32 v{vT+2}, v{vT+2}, v{vT}")
    A(f"v_mul_u32_u24 v{vWOFF}, 3840, v{vT+1}")
    A(f"v_lshl_add_u32 v{vWOFF}, v{vT+2}, 4, v{vWOFF}")
    A(f"v_and_b32 v{vT}, 7, v0")
    A(f"v_xor_b32 v{vT}, v{vT}, v{vT+1}")
    A(f"v_lshrrev_b32 v{vT+2}, 3, v0")
    A(f"v_mul_u32_u24 v{vT+2}, 1280, v{vT+2}")
    A(f"v_lshl_add_u32 v{vXOFF}, v{vT}, 4, v{vT+2}")
    A(f"v_xor_b32 v{vXOFF+1}, 64, v{vXOFF}")
    A(f"s_lshl_b32 s{sWO}, s{sFG}, 8")
    A(f"s_mul_i32 s{sT0}, s{sWAVE}, {16*3840}")
    A(f"s_add_u32 s{sWO}, s{sWO}, s{sT0}")
    A(f"s_add_u32 s{sWLIM}, s{sWO}, {640*3840}")
    A(f"s_mul_i32 s{sT0}, s{sC0}, {64*3840}")
    A(f"s_add_u32 s{sWO}, s{sWO}, s{sT0}")
    A(f"s_lshl_b32 s{sXO}, s{sTB}, 2")
    A(f"s_add_u32 s{sXO}, s{sXO}, s{sWAVE}")
    A(f"s_mul_i32 s{sXO}, s{sXO}, {32*1280}")
    A(f"s_lshl_b32 s{sT0}, s{sC0}, 7")
    A(f"s_add_u32 s{sXO}, s{sXO}, s{sT0}")
    A(f"s_lshl_b32 s{sM0}, s{sWAVE}, 12")
    A("s_waitcnt lgkmcnt(0)")
    srd(A, SW, 6, 640 * 1920 * 2)
    srd(A, SX, SX, X_BYTES)
    def prep_setup():
        A(f"s_lshl_b32 s{sU}, s{sID}, 2")
        A(f"s_add_u32 s{sU}, s{sU}, s{sWAVE}")
        A(f"v_lshlrev_b32 v{L16}, 4, v0")
        A(f"s_lshl_b32 s{sPLDS}, s{sWAVE}, 13")
        for jj in range(5):
            A(f"v_add_u32 v{vT}, {64*jj}, v0")
            A(f"v_mul_u32_u24 v{PF+jj}, 6554, v{vT}")
            A(f"v_lshrrev_b32 v{PF+jj}, 16, v{PF+jj}")
            A(f"v_mul_u32_u24 v{vT+1}, 10, v{PF+jj}")
            A(f"v_sub_u32 v{vT}, v{vT}, v{vT+1}")
            A(f"v_lshlrev_b32 v{VO+jj}, 4, v{vT}")
        A(f"s_cmp_ge_u32 s{sU}, 384")
        A("s_cbranch_scc1 L_qkv_pwo")
        srd(A, SP, 34, 1536 * 640 * 2)
        A(f"s_mul_i32 s{sT0}, s{sU}, 1366")
        A(f"s_lshr_b32 s{sT0}, s{sT0}, 16")
        A(f"s_mul_i32 s{sT1}, s{sT0}, 48")
        A(f"s_sub_u32 s{sT1}, s{sU}, s{sT1}")
        A(f"s_mul_i32 s{sPSRC}, s{sT1}, {32*1280}")
        A(f"s_mul_i32 s{sT0}, s{sT0}, 160")
        A(f"s_add_u32 s{sPSRC}, s{sPSRC}, s{sT0}")
        A(f"s_mul_i32 s{sPDST}, s{sU}, 5120")
        A(f"s_add_u32 s{sPDST}, s{sPDST}, {hex(WS_WD)}")
        A("s_branch L_qkv_pgo")
        A.label("L_qkv_pwo")
        srd(A, SP, 32, 640 * 640 * 2)
        A(f"s_sub_u32 s{sU}, s{sU}, 384")
        A(f"s_mul_i32 s{sT0}, s{sU}, 3277")
        A(f"s_lshr_b32 s{sT0}, s{sT0}, 16")
        A(f"s_mul_i32 s{sT1}, s{sT0}, 20")
        A(f"s_sub_u32 s{sT1}, s{sU}, s{sT1}")
        A(f"s_mul_i32 s{sPSRC}, s{sT0}, 160")
        A(f"s_mul_i32 s{sT0}, s{sT1}, 205")
        A(f"s_lshr_b32 s{sT0}, s{sT0}, 10")
        A(f"s_mul_i32 s{sT2}, s{sT0}, 5")
        A(f"s_sub_u32 s{sT1}, s{sT1}, s{sT2}")
        A(f"s_mul_i32 s{sT0}, s{sT0}, {160*1280}")
        A(f"s_add_u32 s{sPSRC}, s{sPSRC}, s{sT0}")
        A(f"s_mul_i32 s{sPDST}, s{sU}, 5120")
        A(f"s_add_u32 s{sPDST}, s{sPDST}, {hex(WS_WO)}")
        A(f"s_cmp_ge_u32 s{sU}, 160")
        A(f"s_cselect_b32 s{sPDST}, {hex(WS_SIZE)}, s{sPDST}")
        A(f"s_cselect_b32 s{SP+2}, 0, s{SP+2}")
        A(f"s_cmp_eq_u32 s{sT1}, 4")
        A("s_cbranch_scc1 L_qkv_pleft")
        A(f"s_mul_i32 s{sT1}, s{sT1}, {40*1280}")
        A(f"s_add_u32 s{sPSRC}, s{sPSRC}, s{sT1}")
        for jj in range(5):
            A(f"v_lshrrev_b32 v{vT}, 4, v{PF+jj}")
            A(f"v_lshl_add_u32 v{PF+jj}, v{vT}, 2, v{PF+jj}")
        A("s_branch L_qkv_pgo")
        A.label("L_qkv_pleft")
        for jj in range(5):
            k = PF + jj
            A(f"v_lshrrev_b32 v{vT}, 4, v{k}")
            A(f"v_mul_u32_u24 v{vT}, 80, v{vT}")
            A(f"v_bfe_u32 v{vT+1}, v{k}, 1, 2")
            A(f"v_mul_u32_u24 v{vT+1}, 20, v{vT+1}")
            A(f"v_add3_u32 v{vT}, v{vT}, v{vT+1}, 16")
            A(f"v_bfe_u32 v{vT+1}, v{k}, 3, 1")
            A(f"v_lshl_add_u32 v{vT}, v{vT+1}, 1, v{vT}")
            A(f"v_and_b32 v{vT+1}, 1, v{k}")
            A(f"v_add_u32 v{k}, v{vT}, v{vT+1}")
        A.label("L_qkv_pgo")
        for jj in range(5):
            A(f"v_mul_u32_u24 v{vT}, 1280, v{PF+jj}")
            A(f"v_add_u32 v{VO+jj}, v{VO+jj}, v{vT}")
        A(f"v_lshrrev_b32 v{vT}, 4, v0")
        A(f"v_bfe_u32 v{vT+1}, v0, 2, 2")
        A(f"v_lshl_add_u32 v{vT}, v{vT}, 3, v{vT+1}")
        A(f"v_mul_u32_u24 v{vT}, 160, v{vT}")
        A(f"v_add_u32 v{vT}, s{sPLDS}, v{vT}")
        A(f"v_and_b32 v{vT+1}, 3, v0")
        A(f"v_lshl_add_u32 v{VO+5}, v{vT+1}, 4, v{vT}")
        A(f"v_lshl_add_u32 v{VO+6}, v{vT+1}, 3, v{vT}")
    def dma_ops(c):
        ops = []
        for j in range(4):
            ops.append([f"s_add_u32 m0, s{sM0}, {(c%5)*SLOT + j*1024}", f"s_add_u32 s{sT0}, s{sWO}, {4*j*3840}",
                        f"buffer_load_dwordx4 v{vWOFF}, s[{SW}:{SW+3}], s{sT0} offen lds"])
            ops.append([f"s_add_u32 m0, s{sM0}, {(c%5)*SLOT + 16384 + j*1024}", f"s_add_u32 s{sT0}, s{sXO}, {8*j*1280}",
                        f"buffer_load_dwordx4 v{vXOFF+(j%2)}, s[{SX}:{SX+3}], s{sT0} offen lds"])
        ops[-1] += [f"s_add_u32 s{sWO}, s{sWO}, {64*3840}", f"s_add_u32 s{sXO}, s{sXO}, 128",
                    f"s_cmp_eq_u32 s{sWO}, s{sWLIM}", f"s_cselect_b32 s{sT0}, {640*3840}, 0", f"s_cselect_b32 s{sT1}, 1280, 0",
                    f"s_sub_u32 s{sWO}, s{sWO}, s{sT0}", f"s_sub_u32 s{sXO}, s{sXO}, s{sT1}"]
        return ops
    def emit(op):
        for x in op:
            if cfg.get("q_nodma") and x.startswith("buffer_"): continue
            A(x)
    IW = cfg.get("iw", 2)
    for c in range(IW):
        for op in dma_ops(c): emit(op)
    srd(A, SWS, 50, WS_SIZE)
    ops = [("w", c) for c in range(IW) for _ in range(8)]
    nw = IW
    def wait_for(tag):
        last = max(i for i, o in enumerate(ops) if o == tag)
        A(f"s_waitcnt vmcnt({len(ops) - 1 - last})")
    for c in range(10):
        wait_for(("w", c))
        A("s_barrier")
        for _ in range(cfg.get("maxi", 2)):
            if nw < min(10, max(5 if c < 2 else 0, c + 4), c + cfg.get("lead", 4) + 1):
                for op in dma_ops(nw): emit(op)
                ops += [("w", nw)] * 8; nw += 1
        if False:
            for jj in range(5):
                A(f"s_add_u32 m0, s{sPLDS}, {jj*1024}")
                A(f"buffer_load_dwordx4 v{VO+jj}, s[{SP}:{SP+3}], s{sPSRC} offen lds")
            ops += [("p", 0)] * 5
    A("s_barrier")
    A("s_endpgm")

    A.label("L_qkv_helper")
    XD = 16
    A("s_load_dwordx4 s[40:43], s[0:1], 32")
    if cfg.get("ctouch", 1):
        code_touch_setup(A, 46, "qkv_kernel", True)
        A(f"v_lshlrev_b32 v{vT+1}, 7, v0")
        A(f"v_min_u32 v{vT+1}, L_code_end-qkv_kernel-4, v{vT+1}")
        A(f"global_load_dword v{vT+7}, v{vT+1}, s[46:47]")
    A(f"v_and_b32 v0, 63, v0")
    A(f"s_and_b32 s{sTB}, s2, 3")
    A(f"s_lshl_b32 s{sTB}, s{sTB}, 2")
    A(f"s_bfe_u32 s{sT0}, s2, 0x10002")
    A(f"s_lshl_b32 s{sT0}, s{sT0}, 1")
    A(f"s_add_u32 s{sTB}, s{sTB}, s{sT0}")
    A(f"s_lshr_b32 s{sT0}, s2, 3")
    A(f"s_add_u32 s{sTB}, s{sTB}, s{sT0}")
    A(f"s_lshl_b32 s{sXO}, s{sTB}, 3")
    A(f"s_add_u32 s{sXO}, s{sXO}, s{sWAVE}")
    A(f"s_mul_i32 s{sXO}, s{sXO}, {16*1280}")
    A(f"s_add_u32 s{sXLIM}, s{sXO}, {8*1280}")
    A(f"v_lshrrev_b32 v2, 3, v0")
    A(f"v_and_b32 v3, 7, v0")
    A(f"v_mul_u32_u24 v1, 1280, v2")
    A(f"v_lshl_add_u32 v1, v3, 4, v1")
    A("s_waitcnt lgkmcnt(0)")
    srd(A, SX, SX, X_BYTES)
    for g in range(2):
        for k in range(10):
            A(f"buffer_load_dwordx4 {v(XD+40*g+4*k,4)}, v1, s[{SX}:{SX+3}], s{sXLIM if g else sXO} offen offset:{128*k}")
    srd(A, SWS, 50, WS_SIZE)
    srd(A, SD, SD, 256)
    A(f"v_mov_b32 v4, 0x3f803f80")
    A(f"s_lshl_b32 s{sT0}, s{sWAVE}, 4")
    A(f"v_add_u32 v2, s{sT0}, v2")
    A(f"v_lshlrev_b32 v5, 3, v2")
    A(f"v_lshlrev_b32 v6, 2, v2")
    A(f"s_lshl_b32 s{sBASE}, s{sTB}, 11")
    A(f"s_add_u32 s{sBASE}, s{sBASE}, {hex(WS_ST1)}")
    A(f"s_mov_b32 s{sT1}, 0x01010101")
    for g in range(2):
        sm, sq = vT, vT + 1
        for k in range(10):
            A(f"s_waitcnt vmcnt({19 - (10*g+k) + (2 if g else 0)})")
            for i in range(4):
                r = XD + 40 * g + 4 * k + i
                first = (k == 0 and i == 0)
                A(f"v_dot2_f32_bf16 v{sm}, v{r}, v4, {0 if first else 'v%d' % sm}")
                A(f"v_dot2_f32_bf16 v{sq}, v{r}, v{r}, {0 if first else 'v%d' % sq}")
        for dpp in ("quad_perm:[1,0,3,2]", "quad_perm:[2,3,0,1]", "row_half_mirror"):
            A(f"v_add_f32_dpp v{sm}, v{sm}, v{sm} {dpp} row_mask:0xf bank_mask:0xf")
            A(f"v_add_f32_dpp v{sq}, v{sq}, v{sq} {dpp} row_mask:0xf bank_mask:0xf")
        A(f"v_mul_f32 v{sm}, {fhex(1/640)}, v{sm}")
        A(f"v_mul_f32 v{sq}, {fhex(1/640)}, v{sq}")
        A(f"v_fma_f32 v{sq}, -v{sm}, v{sm}, v{sq}")
        A(f"v_max_f32 v{sq}, 0, v{sq}")
        A(f"v_add_f32 v{sq}, {fhex(1e-5)}, v{sq}")
        A(f"v_rsq_f32 v{vT+4}, v{sq}")
        A(f"v_cvt_pk_bf16_f32 v{vT+2}, -v{sm}, -v{sm}")
        A(f"v_and_b32 v{vT+3}, 0xffff0000, v{vT+2}")
        A(f"v_sub_f32 v{vT+3}, -v{sm}, v{vT+3}")
        A(f"v_cvt_pk_bf16_f32 v{vT+3}, v{vT+3}, 0")
        A(f"s_mov_b32 exec_lo, s{sT1}")
        A(f"s_mov_b32 exec_hi, s{sT1}")
        A(f"buffer_store_dwordx2 {v(vT+2,2)}, v5, s[{SWS}:{SWS+3}], s{sBASE} offen offset:{64*g} sc1")
        A(f"buffer_store_dword v{vT+4}, v6, s[{SWS}:{SWS+3}], s{sBASE} offen offset:{1024 + 32*g} sc1")
        A("s_mov_b64 exec, -1")
    stamp(A, cfg, 1)
    A("s_waitcnt vmcnt(0)")
    A("s_barrier")
    stamp(A, cfg, 2)
    A(f"s_lshl_b32 s{sT0}, s{sTB}, 2")
    A(f"s_cmp_eq_u32 s{sWAVE}, 0")
    A(f"s_cselect_b32 s{sT0}, s{sT0}, 256")
    A(f"v_mov_b32 v2, 1")
    A(f"v_mov_b32 v3, 0")
    A("s_mov_b64 exec, 1")
    A(f"buffer_store_dword v2, v3, s[{SD}:{SD+3}], s{sT0} offen sc1")
    A("s_mov_b64 exec, -1")
    A(f"s_lshl_b32 s{sT0}, s{sWAVE}, 10")
    A(f"s_add_u32 s{sT0}, s{sT0}, {hex(WS_SYNC)}")
    A(f"s_cmp_eq_u32 s2, 0")
    A(f"s_cselect_b32 s{sT0}, s{sT0}, {hex(WS_SIZE)}")
    for i in range(4): A(f"v_mov_b32 v{XD+i}, 0")
    A(f"v_lshlrev_b32 v1, 4, v0")
    A(f"buffer_store_dwordx4 {v(XD,4)}, v1, s[{SWS}:{SWS+3}], s{sT0} offen")
    if cfg.get("gwarm", 0):
        srd(A, SW, 40, 640 * 1536 * 2)
        srd(A, SP, 42, 640 * 1536 * 2)
        A(f"s_lshl_b32 s{sT0}, s2, 3")
        A(f"s_add_u32 s{sT0}, s{sT0}, s{sWAVE}")
        A(f"s_mul_i32 s{sT0}, s{sT0}, {120*128}")
        A(f"s_add_u32 s{sT1}, s{sT0}, {60*128}")
        A(f"v_lshlrev_b32 v1, 7, v0")
        for sr in (SW, SP):
            for so in (sT0, sT1):
                A(f"buffer_load_dword v2, v1, s[{sr}:{sr+3}], s{so} offen")
    stamp(A, cfg, 3)
    stamp_flush(A, cfg, 4, 0, SWS, sWAVE, 0)
    A.label("L_qkv_end")
    A("s_endpgm")
    return dict(name=name, grid=256, block=512, lds=163840, desc=kernel_desc(name, 184, 184))
```

```python
from common import *

def gen_qkv(A, cfg):
    name = "qkv_kernel"
    kstart(A, name)
    SX, SW, SWS, SP, SD = 4, 8, 12, 36, 48
    sWAVE, sTB, sFG, sXO, sXLIM, sWO, sT0, sT1, sT2, sM0 = 16, 17, 18, 19, 20, 21, 22, 23, 24, 25
    sTILE, sBASE, sQS, sC0, sID = 26, 27, 28, 30, 31
    vTR = 4
    vT = 8
    SLOT = 32768
    CSL = SLOT
    STL = SLOT + 2048
    A("s_cmp_ge_u32 s2, 256")
    A("s_cbranch_scc1 L_qkv_end")
    A("s_load_dwordx4 s[4:7], s[0:1], 0")
    A("s_load_dwordx4 s[48:51], s[0:1], 64")
    A("s_load_dwordx2 s[32:33], s[0:1], 16")
    A("s_load_dwordx2 s[34:35], s[0:1], 48")
    stamp(A, cfg, 0)
    A(f"v_lshrrev_b32 v{vT}, 6, v0")
    A(f"s_cmp_lt_u32 s2, 16")
    A(f"v_readfirstlane_b32 s{sWAVE}, v{vT}")
    A("s_cbranch_scc1 L_qkv_helper")
    A(f"v_and_b32 v0, 63, v0")
    A(f"s_sub_u32 s{sID}, s2, 16")
    A(f"s_and_b32 s{sT0}, s{sID}, 7")
    A(f"s_lshr_b32 s{sT1}, s{sID}, 3")
    A(f"s_lshr_b32 s{sT2}, s{sT0}, 2")
    A(f"s_mul_i32 s{sT2}, s{sT2}, 30")
    A(f"s_add_u32 s{sT1}, s{sT1}, s{sT2}")
    A(f"s_lshr_b32 s{sFG}, s{sT1}, 2")
    A(f"s_and_b32 s{sT1}, s{sT1}, 3")
    A(f"s_and_b32 s{sT2}, s{sT0}, 3")
    A(f"s_lshl_b32 s{sT2}, s{sT2}, 2")
    A(f"s_add_u32 s{sTB}, s{sT2}, s{sT1}")
    A(f"s_cmp_ge_u32 s{sWAVE}, 4")
    A("s_cbranch_scc1 L_qkv_loader")

    def tr_addr(permuted, tiles):
        rho, cc, g1, kh, base = vT, vT+1, vT+2, vT+3, vT+4
        A(f"v_bfe_u32 v{rho}, v0, 2, 2")
        A(f"v_bfe_u32 v{g1}, v0, 4, 1")
        A(f"v_lshrrev_b32 v{kh}, 5, v0")
        A(f"v_lshl_add_u32 v{base}, v{kh}, 3, v{rho}")
        A(f"v_lshlrev_b32 v{base}, 8, v{base}")
        A(f"v_lshl_add_u32 v{base}, v{g1}, 5, v{base}")
        if permuted:
            A(f"v_and_b32 v{cc}, 1, v0")
            A(f"v_lshl_add_u32 v{base}, v{cc}, 4, v{base}")
            A(f"v_bfe_u32 v{cc}, v0, 1, 1")
            A(f"v_lshl_add_u32 v{base}, v{cc}, 3, v{base}")
        else:
            A(f"v_and_b32 v{cc}, 3, v0")
            A(f"v_lshl_add_u32 v{base}, v{cc}, 3, v{base}")
        for j, t in enumerate(tiles):
            A(f"v_xor_b32 v{vTR+j}, {t}, v{rho}")
            A(f"v_lshl_add_u32 v{vTR+j}, v{vTR+j}, 6, v{base}")
    def rebase(c):
        def base(c): return ((c % 5) // 2) * 2 * SLOT
        return (base(c) - base(c - 1) if c else 0), (c % 5) * SLOT - base(c)

    ACC, FR, vBA, vADR, vST = 16, 80, 112, 116, 120
    sFH2 = 29
    A(f"s_and_b32 s{sT0}, s{sWAVE}, 1")
    A(f"s_and_b32 s{sFH2}, s{sWAVE}, 2")
    sJ0, sJ1 = 44, 45
    A(f"s_mov_b32 s{sJ0}, s{sWAVE}")
    A(f"s_xor_b32 s{sJ1}, s{sWAVE}, 1")
    A(f"s_lshl_b32 s{sTILE}, s{sTB}, 1")
    A(f"s_add_u32 s{sTILE}, s{sTILE}, s{sT0}")
    A(f"s_lshl_b32 s{sTILE}, s{sTILE}, 1")
    A(f"s_lshl_b32 s{sT0}, s{sT0}, 13")
    A(f"s_add_u32 s{sT0}, s{sT0}, 16384")
    A(f"v_and_b32 v{vT}, 31, v0")
    A(f"v_lshrrev_b32 v{vT+1}, 5, v0")
    A(f"v_bfe_u32 v{vT+2}, v0, 1, 3")
    A(f"v_xor_b32 v{vT+1}, v{vT+1}, v{vT+2}")
    A(f"v_lshlrev_b32 v{vT}, 7, v{vT}")
    A(f"v_lshl_add_u32 v{vT}, v{vT+1}, 4, v{vT}")
    A(f"v_add_u32 v{vBA}, s{sT0}, v{vT}")
    for st in range(1, 4): A(f"v_xor_b32 v{vBA+st}, {32*st}, v{vBA}")
    CSA, ONE, SEL, SF, SUM, SQ, vSB = 152, 160, 164, 168, 184, 192, 200
    MB, RS = 204, 208
    VO, PF, L16 = 120, 128, 2
    sU, sPSRC, sPDST, sPLDS = 40, 41, 42, 43
    def prep_setup():
        A(f"s_mul_i32 s{sU}, s{sWAVE}, 240")
        A(f"s_add_u32 s{sU}, s{sU}, s{sID}")
        A(f"v_lshlrev_b32 v{L16}, 4, v0")
        A(f"s_lshl_b32 s{sPLDS}, s{sWAVE}, 13")
        for jj in range(5):
            A(f"v_add_u32 v{vT}, {64*jj}, v0")
            A(f"v_mul_u32_u24 v{PF+jj}, 6554, v{vT}")
            A(f"v_lshrrev_b32 v{PF+jj}, 16, v{PF+jj}")
            A(f"v_mul_u32_u24 v{vT+1}, 10, v{PF+jj}")
            A(f"v_sub_u32 v{vT}, v{vT}, v{vT+1}")
            A(f"v_lshlrev_b32 v{VO+jj}, 4, v{vT}")
        A(f"s_cmp_ge_u32 s{sU}, 384")
        A("s_cbranch_scc1 L_qkv_pwo")
        srd(A, SP, 34, 1536 * 640 * 2)
        A(f"s_mul_i32 s{sT0}, s{sU}, 1366")
        A(f"s_lshr_b32 s{sT0}, s{sT0}, 16")
        A(f"s_mul_i32 s{sT1}, s{sT0}, 48")
        A(f"s_sub_u32 s{sT1}, s{sU}, s{sT1}")
        A(f"s_mul_i32 s{sPSRC}, s{sT1}, {32*1280}")
        A(f"s_mul_i32 s{sT0}, s{sT0}, 160")
        A(f"s_add_u32 s{sPSRC}, s{sPSRC}, s{sT0}")
        A(f"s_mul_i32 s{sPDST}, s{sU}, 5120")
        A(f"s_add_u32 s{sPDST}, s{sPDST}, {hex(WS_WD)}")
        A("s_branch L_qkv_pgo")
        A.label("L_qkv_pwo")
        srd(A, SP, 32, 640 * 640 * 2)
        A(f"s_sub_u32 s{sU}, s{sU}, 384")
        A(f"s_mul_i32 s{sT0}, s{sU}, 3277")
        A(f"s_lshr_b32 s{sT0}, s{sT0}, 16")
        A(f"s_mul_i32 s{sT1}, s{sT0}, 20")
        A(f"s_sub_u32 s{sT1}, s{sU}, s{sT1}")
        A(f"s_mul_i32 s{sPSRC}, s{sT0}, 160")
        A(f"s_mul_i32 s{sT0}, s{sT1}, 205")
        A(f"s_lshr_b32 s{sT0}, s{sT0}, 10")
        A(f"s_mul_i32 s{sT2}, s{sT0}, 5")
        A(f"s_sub_u32 s{sT1}, s{sT1}, s{sT2}")
        A(f"s_mul_i32 s{sT0}, s{sT0}, {160*1280}")
        A(f"s_add_u32 s{sPSRC}, s{sPSRC}, s{sT0}")
        A(f"s_mul_i32 s{sPDST}, s{sU}, 5120")
        A(f"s_add_u32 s{sPDST}, s{sPDST}, {hex(WS_WO)}")
        A(f"s_cmp_ge_u32 s{sU}, 160")
        A(f"s_cselect_b32 s{sPDST}, {hex(WS_SIZE)}, s{sPDST}")
        A(f"s_cselect_b32 s{SP+2}, 0, s{SP+2}")
        A(f"s_cmp_eq_u32 s{sT1}, 4")
        A("s_cbranch_scc1 L_qkv_pleft")
        A(f"s_mul_i32 s{sT1}, s{sT1}, {40*1280}")
        A(f"s_add_u32 s{sPSRC}, s{sPSRC}, s{sT1}")
        for jj in range(5):
            A(f"v_lshrrev_b32 v{vT}, 4, v{PF+jj}")
            A(f"v_lshl_add_u32 v{PF+jj}, v{vT}, 2, v{PF+jj}")
        A("s_branch L_qkv_pgo")
        A.label("L_qkv_pleft")
        for jj in range(5):
            k = PF + jj
            A(f"v_lshrrev_b32 v{vT}, 4, v{k}")
            A(f"v_mul_u32_u24 v{vT}, 80, v{vT}")
            A(f"v_bfe_u32 v{vT+1}, v{k}, 1, 2")
            A(f"v_mul_u32_u24 v{vT+1}, 20, v{vT+1}")
            A(f"v_add3_u32 v{vT}, v{vT}, v{vT+1}, 16")
            A(f"v_bfe_u32 v{vT+1}, v{k}, 3, 1")
            A(f"v_lshl_add_u32 v{vT}, v{vT+1}, 1, v{vT}")
            A(f"v_and_b32 v{vT+1}, 1, v{k}")
            A(f"v_add_u32 v{k}, v{vT}, v{vT+1}")
        A.label("L_qkv_pgo")
        for jj in range(5):
            A(f"v_mul_u32_u24 v{vT}, 1280, v{PF+jj}")
            A(f"v_add_u32 v{VO+jj}, v{VO+jj}, v{vT}")
        A(f"v_lshrrev_b32 v{vT}, 4, v0")
        A(f"v_bfe_u32 v{vT+1}, v0, 2, 2")
        A(f"v_lshl_add_u32 v{vT}, v{vT}, 3, v{vT+1}")
        A(f"v_mul_u32_u24 v{vT}, 160, v{vT}")
        A(f"v_add_u32 v{vT}, s{sPLDS}, v{vT}")
        A(f"v_and_b32 v{vT+1}, 3, v0")
        A(f"v_lshl_add_u32 v{VO+5}, v{vT+1}, 4, v{vT}")
        A(f"v_lshl_add_u32 v{VO+6}, v{vT+1}, 3, v{vT}")
    A("s_waitcnt lgkmcnt(0)")
    cfg = dict(cfg); cfg["q_prep"] = 100
    srd(A, SWS, 50, WS_SIZE)
    A(f"v_lshrrev_b32 v{vT}, 2, v0")
    A(f"v_xor_b32 v{vT}, v{vT}, v0")
    A(f"v_and_b32 v{vT}, 4, v{vT}")
    A(f"v_cmp_eq_u32 vcc, 0, v{vT}")
    for i in range(4): A(f"v_mov_b32 v{ONE+i}, 0x3f803f80")
    for i in range(4): A(f"v_cndmask_b32 v{SEL+i}, 0, v{ONE}, vcc")
    A(f"s_and_b32 s{sT0}, s{sWAVE}, 1")
    A(f"s_lshl_b32 s{sT0}, s{sT0}, 13")
    A(f"s_lshl_b32 s{sT1}, s{sFH2}, 11")
    A(f"s_add_u32 s{sT0}, s{sT0}, s{sT1}")
    A(f"s_add_u32 s{sT0}, s{sT0}, 16384")
    A(f"v_and_b32 v{vT}, 15, v0")
    A(f"v_lshrrev_b32 v{vT+1}, 4, v0")
    A(f"v_bfe_u32 v{vT+2}, v0, 1, 3")
    A(f"v_xor_b32 v{vT+1}, v{vT+1}, v{vT+2}")
    A(f"v_lshlrev_b32 v{vT}, 7, v{vT}")
    A(f"v_lshl_add_u32 v{vT}, v{vT+1}, 4, v{vT}")
    A(f"v_add_u32 v{vSB}, s{sT0}, v{vT}")
    A(f"v_xor_b32 v{vSB+1}, 64, v{vSB}")
    A(f"s_cmp_ge_u32 s{sFG}, 10")
    A("s_cbranch_scc1 L_qkv_V")

    STF = cfg.get("qkv_st", "sc1")
    def mainloop(isV):
        q = []
        def reads(st):
            c, sl = divmod(st, 4)
            _, so = rebase(c)
            b = FR + 16 * (st % 2)
            out = []
            for u in range(2): out.append((f"ds_read_b64_tr_b16 {v(b+2*u,2)}, v{vTR} offset:{so + (16*sl+4*u)*256}", (st, "A0")))
            out.append((f"ds_read_b128 {v(b+8,4)}, v{vBA+sl} offset:{so}", (st, "B0")))
            out.append((f"ds_read_b128 {v(b+12,4)}, v{vBA+sl} offset:{so + 4096}", (st, "B1")))
            for u in range(2): out.append((f"ds_read_b64_tr_b16 {v(b+4+2*u,2)}, v{vTR+1} offset:{so + (16*sl+4*u)*256}", (st, "A1")))
            out.append((f"ds_read_b128 {v(SF+4*(st%2),4)}, v{vSB+(sl>>1)} offset:{so + 2048*(st%2)}", (st, "S")))
            return out
        def issue(r): A(r[0]); q.append(r[1])
        def wait(tag): A(f"s_waitcnt lgkmcnt({len(q) - 1 - max(i for i, x in enumerate(q) if x == tag)})")
        A("s_barrier")
        for r in reads(0): issue(r)
        stamp(A, cfg, 1)
        for st in range(40):
            nxt = st + 1 < 40
            if st % 4 == 3 and nxt:
                A("s_barrier")
                if cfg.get("qts"): A(f"s_memtime s[{70+2*(st//4)}:{71+2*(st//4)}]")
                d, _ = rebase((st + 1) // 4)
                if d:
                    for r in (vTR, vTR + 1, vBA, vBA + 1, vBA + 2, vBA + 3, vSB, vSB + 1): A(f"v_add_u32 v{r}, {d & 0xffffffff}, v{r}")
            rs = reads(st + 1) if nxt else []
            b = FR + 16 * (st % 2)
            sf = v(SF + 4 * (st % 2), 4); su = v(SUM + 4 * (st % 2), 4); sq = v(SQ + 4 * (st % 2), 4)
            for k, (i, j, tag, nr) in enumerate(((0, 0, "B0", 2), (1, 0, "B1", 2), (0, 1, "S", 2), (1, 1, None, 1))):
                if tag: wait((st, tag))
                af = v(b + 4 * j, 4); xf = v(b + 8 + 4 * i, 4); acc = v(ACC + 32 * i + 16 * j, 16); c = acc if st else "0"
                if isV: A(f"v_mfma_f32_32x32x16_bf16 {acc}, {xf}, {af}, {c}")
                else:   A(f"v_mfma_f32_32x32x16_bf16 {acc}, {af}, {xf}, {c}")
                for _ in range(nr):
                    if rs: issue(rs.pop(0))
                if k == 1: A(f"v_mfma_f32_16x16x32_bf16 {v(CSA,4)}, {v(SEL,4)}, {v(b,4)}, {v(CSA,4) if st else 0}")
                if k == 2 and not cfg.get("q_nost"): A(f"v_mfma_f32_16x16x32_bf16 {su}, {v(ONE,4)}, {sf}, {su if st > 1 else 0}")
                if k == 3 and not cfg.get("q_nost"): A(f"v_mfma_f32_16x16x32_bf16 {sq}, {sf}, {sf}, {sq if st > 1 else 0}")
            if st == cfg.get("q_prep", 5):
                A("s_waitcnt vmcnt(0)")
                for f in range(5):
                    for u in range(2):
                        A(f"ds_read_b64_tr_b16 {v(PF+4*f+2*u,2)}, v{VO+5+(f==4)} offset:{4*u*160 + tile_col_imm(f)}"); q.append("p")
            if st == cfg.get("q_prep", 5) + 1:
                wait("p")
            if cfg.get("q_prep", 5) + 1 <= st <= cfg.get("q_prep", 5) + 5:
                f = st - cfg.get("q_prep", 5) - 1
                A(f"s_add_u32 s{sT0}, s{sPDST}, {f*1024}")
                A(f"buffer_store_dwordx4 {v(PF+4*f,4)}, v{L16}, s[{SWS}:{SWS+3}], s{sT0} offen {STF}")
        stamp(A, cfg, 2)

    def correction(isV):
        cs = CSA
        t0, t1, t2, t3 = vT, vT+1, vT+2, vT+3
        A(f"s_lshl_b32 s{sT0}, s{sJ0}, 9")
        A(f"s_lshl_b32 s{sT1}, s{sJ1}, 9")
        A(f"v_lshlrev_b32 v{t0}, 3, v0")
        A(f"v_add_u32 v{t1}, s{sT1}, v{t0}")
        A(f"v_add_u32 v{t0}, s{sT0}, v{t0}")
        A(f"v_cvt_pk_bf16_f32 v{cs+1}, v{cs}, v{cs}")
        A(f"v_and_b32 v{cs+1}, 0xffff0000, v{cs+1}")
        A(f"v_sub_f32 v{cs}, v{cs}, v{cs+1}")
        A(f"v_cvt_pk_bf16_f32 v{cs+2}, v{cs+1}, v{cs}")
        A(f"v_lshrrev_b32 v{cs+3}, 16, v{cs+1}")
        A(f"ds_write_b64 v{t0}, {v(cs+2,2)} offset:{CSL}")
        A(f"v_and_b32 v{t2}, 3, v0")
        for k in (1, 2, 3):
            A(f"v_cmp_eq_u32 vcc, {k}, v{t2}")
            for i in range(2): A(f"v_cndmask_b32 v{SQ+4*i}, v{SQ+4*i}, v{SQ+4*i+k}, vcc")
        A(f"s_and_b32 s{sT0}, s{sWAVE}, 1")
        A(f"s_lshl_b32 s{sT0}, s{sT0}, 6")
        A(f"s_lshl_b32 s{sT1}, s{sFH2}, 4")
        A(f"s_add_u32 s{sT1}, s{sT1}, s{sT0}")
        A(f"v_and_b32 v{t2}, 15, v0")
        A(f"v_add_u32 v{t2}, s{sT1}, v{t2}")
        A(f"v_lshlrev_b32 v{t3}, 2, v{t2}")
        A(f"v_lshlrev_b32 v{t2}, 3, v{t2}")
        for i in range(2):
            sm, sq = SUM + 4 * i, SQ + 4 * i
            A(f"v_mul_f32 v{sm}, {fhex(1/640)}, v{sm}")
            A(f"v_mul_f32 v{sq}, {fhex(1/640)}, v{sq}")
            A(f"v_fma_f32 v{sq}, -v{sm}, v{sm}, v{sq}")
            A(f"v_max_f32 v{sq}, 0, v{sq}")
            A(f"v_add_f32 v{sq}, {fhex(1e-5)}, v{sq}")
            A(f"v_rsq_f32 v{sq}, v{sq}")
            A(f"v_cvt_pk_bf16_f32 v{sm+2}, -v{sm}, -v{sm}")
            A(f"v_and_b32 v{sm+3}, 0xffff0000, v{sm+2}")
            A(f"v_sub_f32 v{sm+3}, -v{sm}, v{sm+3}")
            A(f"v_cvt_pk_bf16_f32 v{sm+3}, v{sm+3}, 0")
        A("s_mov_b32 exec_lo, 0x00f0000f")
        A("s_mov_b32 exec_hi, 0xf0000f00")
        for i in range(2):
            A(f"ds_write_b64 v{t2}, {v(SUM+4*i+2,2)} offset:{STL + 128*i}")
            A(f"ds_write_b32 v{t3}, v{SQ+4*i} offset:{STL + 1024 + 64*i}")
        A("s_mov_b64 exec, -1")
        A(f"v_and_b32 v{t2}, 31, v0")
        A(f"v_add_u32 v{t2}, s{sT0}, v{t2}")
        if isV:
            A(f"v_lshrrev_b32 v{t3}, 5, v0")
            A(f"v_lshlrev_b32 v{t3}, 2, v{t3}")
            A(f"v_add_u32 v{t3}, s{sT0}, v{t3}")
            A(f"v_lshlrev_b32 v{t3}, 2, v{t3}")
        else:
            A(f"v_lshlrev_b32 v{t3}, 2, v{t2}")
        A(f"v_lshlrev_b32 v{t2}, 3, v{t2}")
        A(f"v_cmp_gt_u32 vcc, 32, v0")
        A("s_waitcnt lgkmcnt(0)")
        A("s_barrier")
        for i in range(2): A(f"ds_read_b64 {v(MB+2*i,2)}, v{t2} offset:{STL + 256*i}")
        A(f"ds_read_b64 {v(cs+4,2)}, v{t1} offset:{CSL}")
        if isV:
            for i in range(2):
                for aa in range(4): A(f"ds_read_b128 {v(vST+16*i+4*aa,4)}, v{t3} offset:{STL + 1024 + 128*i + 32*aa}")
        else:
            for i in range(2): A(f"ds_read_b32 v{RS+i}, v{t3} offset:{STL + 1024 + 128*i}")
        A(f"s_waitcnt lgkmcnt({8 if isV else 2})")
        for k in range(4): A(f"v_cndmask_b32 v{MB+k}, 0, v{MB+k}, vcc")
        for j in range(2):
            cf = v(cs + 2 + 2 * j, 2)
            for i in range(2):
                mb = v(MB + 2 * i, 2); acc = v(ACC + 32 * i + 16 * j, 16)
                if isV: A(f"v_mfma_f32_32x32x8_bf16 {acc}, {mb}, {cf}, {acc}")
                else:   A(f"v_mfma_f32_32x32x8_bf16 {acc}, {cf}, {mb}, {acc}")
        A("s_waitcnt lgkmcnt(0)")

    tr_addr(True, (f"s{sJ0}", f"s{sJ1}"))
    t0, t1, t2, tok16, half = vT, vT+1, vT+2, vT+4, vT+6
    A(f"s_cmp_ge_u32 s{sFG}, 5")
    A(f"s_cselect_b32 s{sT1}, 5, 0")
    A(f"s_cselect_b32 s{sBASE}, {hex(WS_K)}, {hex(WS_Q)}")
    A(f"s_cselect_b32 s{sQS}, 1.0, {fhex(QSCALE)}")
    A(f"s_sub_u32 s{sT1}, s{sFG}, s{sT1}")
    A(f"s_lshl_b32 s{sT1}, s{sT1}, 4")
    A(f"s_mul_i32 s{sT2}, s{sTILE}, 2560")
    A(f"s_add_u32 s{sBASE}, s{sBASE}, s{sT2}")
    A(f"v_lshrrev_b32 v{half}, 5, v0")
    A(f"v_add_u32 v{half}, s{sT1}, v{half}")
    A(f"v_and_b32 v{tok16}, 31, v0")
    A(f"v_lshlrev_b32 v{tok16}, 4, v{tok16}")
    A(f"s_mov_b32 s{sT2}, {PAIR_STRIDE - 2560}")
    for q in range(4):
        A(f"s_lshl_b32 s{sT0}, s{sJ0 + q//2}, 2")
        A(f"s_add_u32 s{sT0}, s{sT0}, {2*(q%2)}")
        A(f"v_add_u32 v{t0}, s{sT0}, v{half}")
        A(f"v_mul_u32_u24 v{t1}, 205, v{t0}")
        A(f"v_lshrrev_b32 v{t1}, 10, v{t1}")
        A(f"v_mul_lo_u32 v{t1}, s{sT2}, v{t1}")
        A(f"v_lshl_add_u32 v{t0}, v{t0}, 9, v{tok16}")
        A(f"v_add_u32 v{vADR+q}, v{t0}, v{t1}")
    if cfg.get("tlb", 0) & 1:
        A("s_mov_b32 exec_lo, 1")
        A("s_mov_b32 exec_hi, 1")
        for q in range(4): A(f"buffer_load_dword v{vT+7}, v{vADR+q}, s[{SWS}:{SWS+3}], s{sBASE} offen")
        A("s_mov_b64 exec, -1")
    mainloop(False)
    correction(False)
    for i in range(2): A(f"v_mul_f32 v{RS+i}, s{sQS}, v{RS+i}")
    for j in range(2):
        for i in range(2):
            for sg in range(2):
                r = ACC + 32 * i + 16 * j + 8 * sg
                for b in range(8): A(f"v_mul_f32 v{r+b}, v{RS+i}, v{r+b}")
                for b in range(4): A(f"v_cvt_pk_bf16_f32 v{r+b}, v{r+2*b}, v{r+2*b+1}")
                A(f"buffer_store_dwordx4 {v(r,4)}, v{vADR+2*j+sg}, s[{SWS}:{SWS+3}], s{sBASE} offen offset:{2560*i} {STF}")
    A("s_branch L_qkv_fin")

    A.label("L_qkv_V")
    tr_addr(False, (f"s{sJ0}", f"s{sJ1}"))
    A(f"s_mul_i32 s{sBASE}, s{sTILE}, 1280")
    A(f"s_add_u32 s{sBASE}, s{sBASE}, {hex(WS_V)}")
    A(f"s_sub_u32 s{sT1}, s{sFG}, 10")
    A(f"s_lshl_b32 s{sT1}, s{sT1}, 7")
    A(f"v_lshrrev_b32 v{half}, 5, v0")
    A(f"v_mul_u32_u24 v{half}, 320, v{half}")
    A(f"v_and_b32 v{tok16}, 31, v0")
    A(f"v_add_u32 v{tok16}, s{sT1}, v{tok16}")
    A(f"s_mov_b32 s{sT2}, {VHEAD_STRIDE - 320}")
    for j in range(2):
        A(f"s_lshl_b32 s{sT0}, s{sJ0 + j}, 5")
        A(f"v_add_u32 v{t0}, s{sT0}, v{tok16}")
        A(f"v_mul_u32_u24 v{t1}, 3277, v{t0}")
        A(f"v_lshrrev_b32 v{t1}, 16, v{t1}")
        A(f"v_mul_lo_u32 v{t1}, s{sT2}, v{t1}")
        A(f"v_lshl_add_u32 v{t0}, v{t0}, 4, v{half}")
        A(f"v_add_u32 v{vADR+j}, v{t0}, v{t1}")
    if cfg.get("tlb", 0) & 1:
        A("s_mov_b32 exec_lo, 0x80008001")
        A("s_mov_b32 exec_hi, 0")
        for q in range(2): A(f"buffer_load_dword v{vT+7}, v{vADR+q}, s[{SWS}:{SWS+3}], s{sBASE} offen")
        A("s_mov_b64 exec, -1")
    mainloop(True)
    correction(True)
    for j in range(2):
        for i in range(2):
            for mf in range(2):
                r = ACC + 32 * i + 16 * j + 8 * mf
                for b in range(8): A(f"v_mul_f32 v{r+b}, v{vST+16*i+8*mf+b}, v{r+b}")
                for b in range(4): A(f"v_cvt_pk_bf16_f32 v{r+b}, v{r+2*b}, v{r+2*b+1}")
                A(f"buffer_store_dwordx4 {v(r,4)}, v{vADR+j}, s[{SWS}:{SWS+3}], s{sBASE} offen offset:{1280*i + mf*640} {STF}")
    A.label("L_qkv_fin")
    stamp(A, cfg, 3)
    if cfg.get("qts"):
        for c in range(9): A(f"s_mov_b32 s{71+2*c}, s{70+2*c}")
        A("s_mov_b32 s68, 0")
        A("s_mov_b32 s69, 0")
        stamp_flush(A, cfg, 14, 17, SWS, sWAVE, 0)
        A("s_mov_b64 exec, -1")
    stamp_flush(A, cfg, 4, 0, SWS, sWAVE, 0)
    A("s_endpgm")

    A.label("L_qkv_loader")
    vWOFF, vXOFF = 1, 72
    sWLIM = 44
    if cfg.get("rot", 1):
        A(f"s_lshl_b32 s{sT0}, s{sT0}, 2")
        A(f"s_lshr_b32 s{sC0}, 0x30858530, s{sT0}")
        A(f"s_and_b32 s{sC0}, s{sC0}, 15")
    else:
        A(f"s_mov_b32 s{sC0}, 0")
    A(f"s_sub_u32 s{sWAVE}, s{sWAVE}, 4")
    A(f"v_and_b32 v{vT}, 15, v0")
    A(f"v_lshrrev_b32 v{vT+1}, 4, v0")
    A(f"v_lshlrev_b32 v{vT+2}, 2, v{vT+1}")
    A(f"v_xor_b32 v{vT+2}, v{vT+2}, v{vT}")
    A(f"v_mul_u32_u24 v{vWOFF}, 3840, v{vT+1}")
    A(f"v_lshl_add_u32 v{vWOFF}, v{vT+2}, 4, v{vWOFF}")
    A(f"v_and_b32 v{vT}, 7, v0")
    A(f"v_xor_b32 v{vT}, v{vT}, v{vT+1}")
    A(f"v_lshrrev_b32 v{vT+2}, 3, v0")
    A(f"v_mul_u32_u24 v{vT+2}, 1280, v{vT+2}")
    A(f"v_lshl_add_u32 v{vXOFF}, v{vT}, 4, v{vT+2}")
    A(f"v_xor_b32 v{vXOFF+1}, 64, v{vXOFF}")
    A(f"s_lshl_b32 s{sWO}, s{sFG}, 8")
    A(f"s_mul_i32 s{sT0}, s{sWAVE}, {16*3840}")
    A(f"s_add_u32 s{sWO}, s{sWO}, s{sT0}")
    A(f"s_add_u32 s{sWLIM}, s{sWO}, {640*3840}")
    A(f"s_mul_i32 s{sT0}, s{sC0}, {64*3840}")
    A(f"s_add_u32 s{sWO}, s{sWO}, s{sT0}")
    A(f"s_lshl_b32 s{sXO}, s{sTB}, 2")
    A(f"s_add_u32 s{sXO}, s{sXO}, s{sWAVE}")
    A(f"s_mul_i32 s{sXO}, s{sXO}, {32*1280}")
    A(f"s_lshl_b32 s{sT0}, s{sC0}, 7")
    A(f"s_add_u32 s{sXO}, s{sXO}, s{sT0}")
    A(f"s_lshl_b32 s{sM0}, s{sWAVE}, 12")
    A("s_waitcnt lgkmcnt(0)")
    srd(A, SW, 6, 640 * 1920 * 2)
    srd(A, SX, SX, X_BYTES)
    def dma_ops(c):
        ops = []
        for j in range(4):
            ops.append([f"s_add_u32 m0, s{sM0}, {(c%5)*SLOT + j*1024}", f"s_add_u32 s{sT0}, s{sWO}, {4*j*3840}",
                        f"buffer_load_dwordx4 v{vWOFF}, s[{SW}:{SW+3}], s{sT0} offen lds"])
            ops.append([f"s_add_u32 m0, s{sM0}, {(c%5)*SLOT + 16384 + j*1024}", f"s_add_u32 s{sT0}, s{sXO}, {8*j*1280}",
                        f"buffer_load_dwordx4 v{vXOFF+(j%2)}, s[{SX}:{SX+3}], s{sT0} offen lds"])
        ops[-1] += [f"s_add_u32 s{sWO}, s{sWO}, {64*3840}", f"s_add_u32 s{sXO}, s{sXO}, 128",
                    f"s_cmp_eq_u32 s{sWO}, s{sWLIM}", f"s_cselect_b32 s{sT0}, {640*3840}, 0", f"s_cselect_b32 s{sT1}, 1280, 0",
                    f"s_sub_u32 s{sWO}, s{sWO}, s{sT0}", f"s_sub_u32 s{sXO}, s{sXO}, s{sT1}"]
        return ops
    def emit(op):
        for x in op:
            if cfg.get("q_nodma") and x.startswith("buffer_"): continue
            A(x)
    IW = cfg.get("iw", 2)
    for c in range(IW):
        for op in dma_ops(c): emit(op)
    srd(A, SWS, 50, WS_SIZE)
    prep_setup()
    ops = [("w", c) for c in range(IW) for _ in range(8)]
    nw = IW
    def wait_for(tag):
        last = max(i for i, o in enumerate(ops) if o == tag)
        A(f"s_waitcnt vmcnt({len(ops) - 1 - last})")
    for c in range(10):
        wait_for(("w", c))
        A("s_barrier")
        for k in range(2 if c in cfg.get("extra_at", []) else 1):
            if nw < 10 and nw <= max(c + 3, 4) and (nw != 4 or c >= 2 or not cfg.get('k1prep', 0)):
                for op in dma_ops(nw): emit(op)
                ops += [("w", nw)] * 8; nw += 1
        if c == 7:
            for jj in range(5):
                A(f"s_add_u32 m0, s{sPLDS}, {jj*1024}")
                A(f"buffer_load_dwordx4 v{VO+jj}, s[{SP}:{SP+3}], s{sPSRC} offen lds")
            ops += [("p", 0)] * 5
    if cfg.get("prep_late", 0): A("s_barrier")
    A("s_waitcnt vmcnt(0)")
    for f in range(5):
        for u in range(2):
            A(f"ds_read_b64_tr_b16 {v(PF+4*f+2*u,2)}, v{VO+5+(f==4)} offset:{4*u*160 + tile_col_imm(f)}")
    A("s_waitcnt lgkmcnt(0)")
    for f in range(5):
        A(f"s_add_u32 s{sT0}, s{sPDST}, {f*1024}")
        A(f"buffer_store_dwordx4 {v(PF+4*f,4)}, v{L16}, s[{SWS}:{SWS+3}], s{sT0} offen {STF}")
    A("s_endpgm")

    A.label("L_qkv_helper")
    XD = 16
    if cfg.get("ctouch", 1):
        code_touch_setup(A, 46, "qkv_kernel", True)
        A(f"v_lshlrev_b32 v{vT+1}, 7, v0")
        A(f"v_min_u32 v{vT+1}, L_code_end-qkv_kernel-4, v{vT+1}")
        A(f"global_load_dword v{vT+7}, v{vT+1}, s[46:47]")
    A(f"v_and_b32 v0, 63, v0")
    A("s_waitcnt lgkmcnt(0)")
    srd(A, SWS, 50, WS_SIZE)
    if cfg.get("ptouch", 1):
        srd(A, SP, 34, 1536 * 640 * 2)
        srd(A, SW, 32, 640 * 640 * 2)
        A(f"s_lshl_b32 s{sT0}, s2, 3")
        A(f"s_add_u32 s{sT0}, s{sT0}, s{sWAVE}")
        A(f"s_mul_i32 s{sT1}, s{sT0}, {50*128}")
        A(f"s_mul_i32 s{sT0}, s{sT0}, {120*128}")
        A(f"v_lshlrev_b32 v1, 7, v0")
        A("s_bfm_b64 exec, 60, 0")
        A(f"buffer_load_dword v2, v1, s[{SP}:{SP+3}], s{sT0} offen")
        A(f"s_add_u32 s{sT0}, s{sT0}, {60*128}")
        A(f"buffer_load_dword v2, v1, s[{SP}:{SP+3}], s{sT0} offen")
        A("s_bfm_b64 exec, 50, 0")
        A(f"buffer_load_dword v2, v1, s[{SW}:{SW+3}], s{sT1} offen")
        A("s_mov_b64 exec, -1")
    stamp(A, cfg, 1)
    stamp(A, cfg, 2)
    A(f"s_lshl_b32 s{sT0}, s{sWAVE}, 10")
    A(f"s_add_u32 s{sT0}, s{sT0}, {hex(WS_SYNC)}")
    A(f"s_cmp_eq_u32 s2, 0")
    A(f"s_cselect_b32 s{sT0}, s{sT0}, {hex(WS_SIZE)}")
    for i in range(4): A(f"v_mov_b32 v{XD+i}, 0")
    A(f"v_lshlrev_b32 v1, 4, v0")
    A(f"buffer_store_dwordx4 {v(XD,4)}, v1, s[{SWS}:{SWS+3}], s{sT0} offen")
    stamp(A, cfg, 3)
    stamp_flush(A, cfg, 4, 0, SWS, sWAVE, 0)
    A.label("L_qkv_end")
    A("s_endpgm")
    return dict(name=name, grid=256, block=512, lds=163840, desc=kernel_desc(name, 216, 216))
```

```python
from common import *

GU_SLOT = 24608
GU_UP = 12288 + 32
GU_MISC = 6 * GU_SLOT
PART_BASE = 3 * GU_SLOT
KV_SLOT = 20480
KV_BASE = 163840 - 3 * KV_SLOT
NV = 112

class R:
    S = (16, 32); O = 48; P = 64; K1 = 72; K2 = 76; V1 = 80; V2 = 84; Q1 = 88; Q2 = 92
    KA = 1; K2A = 2; VA = 3; L16 = 4; F2S = 5; L4 = 7; T = 8; TCH = 94
    GV = 96
    XRES = 100

SX, SWS, SG_, SU, SO = 4, 8, 12, 16, 20
sWAVE, sG, sM, sT0, sT1, sT2, sC, sDELTA, sSLOT, sQT = 24, 25, 26, 27, 28, 29, 30, 31, 32, 33
sVMASK = 34
sKSRC, sVSRC, sKBASE, sVBASE, sFG, sTOK16, sJ, sFAST, sWOSRC, sWDSRC, sGSRC, sGM0, sFLAG, sB, sXCC, sLW = 36, 37, 38, 39, 40, 41, 42, 43, 44, 45, 46, 47, 48, 49, 50, 51
sTMP = 52
SWO_, SWD_ = 92, 96
sSTG, sWDRAW, sTO = 86, 87, 90

def WD(step):
    return {0: 100, 1: 120, 2: 80, 3: 0, 4: 20, 5: 40}[step]
A_RES = 60

def set_shift(A, m):
    t0, t1, t2 = m + 1, m + 2, m + 3
    A(f"v_cvt_pk_bf16_f32 v{t0}, -v{m}, -v{m}")
    A(f"v_and_b32 v{t0}, 0xffff0000, v{t0}")
    A(f"v_sub_f32 v{t1}, -v{m}, v{t0}")
    A(f"v_cvt_pk_bf16_f32 v{t2}, v{t0}, v{t1}")
    A(f"v_and_b32 v{t0}, 0xffff0000, v{t2}")
    A(f"v_sub_f32 v{t1}, v{t1}, v{t0}")
    A(f"v_cvt_pk_bf16_f32 v{t1}, v{t1}, 0")
    A(f"v_cmp_gt_u32 vcc, 32, v0")
    A(f"v_cndmask_b32 v{R.Q2+1}, v{t1}, v{t2}, vcc")

def max16(A, dst, S, first):
    if first:
        A(f"v_max3_f32 v{dst}, v{S}, v{S+1}, v{S+2}")
        A(f"v_max_f32 v{dst}, v{dst}, v{S+3}")
        rng = range(4, 16, 2)
    else:
        rng = range(0, 16, 2)
    for i in rng: A(f"v_max3_f32 v{dst}, v{dst}, v{S+i}, v{S+i+1}")

def xhalf_max(A, m, t):
    A(f"v_mov_b32 v{t}, v{m}")
    A(f"v_permlane32_swap_b32 v{m}, v{t}")
    A(f"v_max_f32 v{m}, v{m}, v{t}")

def stores(A, lst):
    L1, L2 = A.newlabel("stf"), A.newlabel("ste")
    A(f"s_cmp_lg_u32 s{sFAST}, 0")
    A(f"s_cbranch_scc1 {L1}")
    for x in lst: A(x + (" sc1" if x.startswith("buffer_") else ""))
    A(f"s_branch {L2}")
    A.label(L1)
    for x in lst: A(x)
    A.label(L2)

def sync(A, idx, poller, half, nleft, between=None):
    T = R.T
    A(f"s_waitcnt vmcnt({nleft})")
    A("s_barrier")
    L, LP = A.newlabel("sy"), A.newlabel("poll")
    A(f"s_cmp_lg_u32 s{sWAVE}, {poller}")
    if between is not None:
        LB = A.newlabel("btw")
        A(f"s_cbranch_scc1 {LB}")
    else:
        A(f"s_cbranch_scc1 {L}")
    A(f"s_lshl_b32 s{sT0}, s{sM}, 2")
    A(f"s_add_u32 s{sT0}, s{sT0}, s{sFLAG}")
    A(f"v_mov_b32 v{T}, 1")
    A(f"v_mov_b32 v{T+1}, 0")
    A("s_mov_b64 exec, 1")
    stores(A, [f"buffer_store_dword v{T}, v{T+1}, s[{SWS}:{SWS+3}], s{sT0} offen offset:{idx*128}"])
    if half:
        A(f"s_and_b32 s{sT0}, s{sM}, 2")
        A(f"s_lshl_b32 s{sT0}, 0x33333333, s{sT0}")
        A(f"s_mov_b32 exec_lo, s{sT0}")
    else:
        A("s_mov_b32 exec_lo, -1")
    A(f"v_lshlrev_b32 v{T+1}, 2, v0")
    A(f"s_mov_b32 s{sT1}, 0")
    A.label(LP)
    A(f"buffer_load_dword v{T}, v{T+1}, s[{SWS}:{SWS+3}], s{sFLAG} offen offset:{idx*128} sc1")
    A(f"s_add_u32 s{sT1}, s{sT1}, 1")
    A("s_waitcnt vmcnt(0)")
    A(f"v_cmp_eq_u32 vcc, 0, v{T}")
    A(f"s_cmp_lt_u32 s{sT1}, 0x40000")
    A(f"s_cselect_b64 vcc, vcc, 0")
    A(f"s_cbranch_vccnz {LP}")
    A("s_mov_b64 exec, -1")
    if between is not None:
        A("s_barrier")
        between()
        A(f"s_branch {L}")
        A.label(LB)
        between()
        A("s_barrier")
        A.label(L)
    else:
        A.label(L)
        A("s_barrier")

def addr_rowmajor(A, vp, vs, T):
    A(f"v_and_b32 v{T}, 15, v0")
    A(f"v_lshrrev_b32 v{T+1}, 4, v0")
    A(f"v_mul_u32_u24 v{T}, 1280, v{T}")
    A(f"s_add_u32 s{sT0}, s{sLW}, s{sTOK16}")
    A(f"s_mul_i32 s{sT0}, s{sT0}, {16*1280}")
    A(f"s_mul_i32 s{sT1}, s{sFG}, 160")
    A(f"s_add_u32 s{sT0}, s{sT0}, s{sT1}")
    A(f"v_add_u32 v{T}, s{sT0}, v{T}")
    A(f"v_lshl_add_u32 v{vp}, v{T+1}, 4, v{T}")
    A(f"v_lshl_add_u32 v{vs}, v{T+1}, 3, v{T}")
    A(f"v_add_u32 v{vs}, 128, v{vs}")
    A(f"s_and_b32 s{sT0}, s{sWAVE}, 4")
    A(f"s_lshl_b32 s{sT0}, s{sT0}, 4")
    A(f"v_add_u32 v{vp}, s{sT0}, v{vp}")

def reduce_addr(A, P, base, RA):
    A(f"s_mul_i32 s{sT0}, s{sLW}, 5120")
    A(f"s_and_b32 s{sT1}, s{sWAVE}, 4")
    A(f"s_lshl_b32 s{sT1}, s{sT1}, 9")
    A(f"s_add_u32 s{sT0}, s{sT0}, s{sT1}")
    A(f"s_add_u32 s{sT0}, s{sT0}, {base}")
    A(f"v_add_u32 v{RA}, s{sT0}, v{R.L16}")
    for k in range(1, (P + 2) // 3): A(f"v_add_u32 v{RA+k}, {3*20480*k}, v{RA}")

def reduce_sum(A, P, D, RA, n):
    W = 4 * n
    for p in range(P):
        for e in range(n):
            A(f"ds_read_b128 {v(D+W*p+4*e,4)}, v{RA+p//3} offset:{(p%3)*20480 + (e*1024 if e < 2 else 4096)}")
    for p in range(1, P):
        A(f"s_waitcnt lgkmcnt({min(15, n*(P-1-p))})")
        for i in range(0, W, 2): A(f"v_pk_add_f32 {v(D+i,2)}, {v(D+i,2)}, {v(D+W*p+i,2)}")

CFG = {}
def gu_dma_ops(c):
    ops = []
    for isup in range(2):
        sr = SU if isup else SG_
        for jj in range(3):
            ops.append([f"s_add_u32 m0, s{sGM0}, {(c%6)*GU_SLOT + isup*GU_UP + jj*1024}",
                        f"s_add_u32 s{sT0}, s{sGSRC}, {(3 if CFG.get('gu_same') else c)*64*3072}",
                        f"buffer_load_dwordx4 v{R.GV+jj}, s[{sr}:{sr+3}], s{sT0} offen lds"])
    return ops
def load_wd_ops(step):
    return [[f"s_add_u32 s{sT0}, s{sWDSRC}, {step*5120 + f*1024}",
             f"buffer_load_dwordx4 {a(WD(step)+4*f,4)}, v{R.L16}, s[{SWS}:{SWS+3}], s{sT0} offen"] for f in range(5)]
def gu_dma(A, c, rows):
    A(f"s_add_u32 s{sT0}, s{sGSRC}, {c*64*3072}")
    for isup in range(2):
        sr = SU if isup else SG_
        for jj in range(3):
            A(f"s_add_u32 m0, s{sGM0}, {(c%6)*GU_SLOT + isup*GU_UP + jj*1024}")
            A(f"buffer_load_dwordx4 v{R.GV+jj}, s[{sr}:{sr+3}], s{sT0} offen lds")

def load_wd(A, step):
    for f in range(5):
        if f % 4 == 0: A(f"s_add_u32 s{sT0}, s{sWDSRC}, {step*5120 + f*1024}")
        A(f"buffer_load_dwordx4 {a(WD(step)+4*f,4)}, v{R.L16}, s[{SWS}:{SWS+3}], s{sT0} offen offset:{(f%4)*1024}")

def cfg_touch_plan(cfg, gu_touch, out_touch, wd_touch):
    plan = cfg.get("tplan", [[25,"hid0"],[28,"hid1"],[33,"hid2"],[36,"g9"],[41,"g8"],[43,"g7"],[45,"g6"],[48,"g5"],[50,"h"],[52,"g4"],[54,"o"],[55,"st"],[56,"g3"]])
    out = []
    for t, w in plan:
        if w[0] == "g": out.append((t, gu_touch(int(w[1]))))
        else: out.append((t, {"o": out_touch(WS_O, 1280), "h": out_touch(WS_H, 1280), "hid": out_touch(WS_HID, 3072), "st": out_touch(WS_ST2, 128), "wd": wd_touch,
                                 "hid0": out_touch(WS_HID, 3072, 0, 8), "hid1": out_touch(WS_HID, 3072, 8, 8), "hid2": out_touch(WS_HID, 3072, 16, 8)}[w]))
    return out

def gen_main(A, cfg):
    name = "main_kernel"
    CFG.update(cfg)
    cfg = dict(cfg); cfg["_k2"] = 1
    kstart(A, name)
    T = R.T
    A("s_cmp_ge_u32 s2, 256")
    A("s_cbranch_scc1 L_end")
    A(f"s_load_dwordx2 s[{SWS}:{SWS+1}], s[0:1], 72")
    A(f"s_load_dwordx2 s[{SX}:{SX+1}], s[0:1], 0")
    A(f"s_load_dwordx2 s[{SG_}:{SG_+1}], s[0:1], 32")
    A(f"s_load_dwordx2 s[{SU}:{SU+1}], s[0:1], 40")
    A(f"s_load_dwordx2 s[{SO}:{SO+1}], s[0:1], 56")
    stamp(A, cfg, 0)
    A(f"v_lshrrev_b32 v{T}, 6, v0")
    A(f"v_and_b32 v0, 63, v0")
    A(f"v_readfirstlane_b32 s{sWAVE}, v{T}")
    A(f"s_and_b32 s{sG}, s2, 7")
    A(f"s_lshr_b32 s{sM}, s2, 3")
    A(f"s_lshr_b32 s{sT0}, s{sM}, 1")
    A(f"s_mul_i32 s{sKBASE}, s{sT0}, {PAIR_STRIDE}")
    A(f"s_mul_i32 s{sVBASE}, s{sM}, {VHEAD_STRIDE}")
    A(f"s_add_u32 s{sVBASE}, s{sVBASE}, {hex(WS_V)}")
    A(f"s_lshl_b32 s{sQT}, s{sG}, 3")
    A(f"s_add_u32 s{sQT}, s{sQT}, s{sWAVE}")
    A(f"s_and_b32 s{sT1}, s{sM}, 1")
    A(f"v_lshlrev_b32 v{R.L16}, 4, v0")
    A(f"s_mul_i32 s{sT2}, s{sT1}, 1536")
    A(f"v_add_u32 v{R.F2S+1}, s{sT2}, v{R.L16}")
    A(f"v_and_b32 v{T}, 31, v0")
    A(f"v_lshrrev_b32 v{T+1}, 5, v0")
    A(f"v_lshlrev_b32 v{R.F2S}, 4, v{T}")
    A(f"v_lshl_add_u32 v{R.F2S}, v{T+1}, 2, v{R.F2S}")
    A(f"s_lshl_b32 s{sT1}, s{sT1}, 3")
    A(f"s_add_u32 s{sT1}, s{sT1}, 1024")
    A(f"v_add_u32 v{R.F2S}, s{sT1}, v{R.F2S}")
    A(f"s_mul_i32 s{sKSRC}, s{sWAVE}, 2560")
    A(f"s_add_u32 s{sKSRC}, s{sKSRC}, s{sKBASE}")
    A(f"s_mul_i32 s{sVSRC}, s{sWAVE}, 1280")
    A(f"s_mul_i32 s{sSLOT}, s{sWAVE}, 2560")
    A(f"v_lshlrev_b32 v{R.L4}, 2, v0")
    A(f"s_add_u32 s{sVSRC}, s{sVSRC}, s{sVBASE}")
    A("s_waitcnt lgkmcnt(0)")
    srd(A, SWS, SWS, WS_SIZE)
    KVF = cfg.get("kvflag", "")
    def kv_ops(c):
        lds = KV_BASE + (c % 3) * KV_SLOT
        return [
            [f"s_add_u32 m0, s{sSLOT}, {lds}", f"s_add_u32 s{sT0}, s{sKSRC}, {c*8*2560}",
             f"buffer_load_dwordx4 v{R.F2S+1}, s[{SWS}:{SWS+3}], s{sT0} offen {KVF} lds"],
            [f"s_add_u32 m0, s{sSLOT}, {lds+1024}", f"s_add_u32 s{sT0}, s{sKSRC}, {c*8*2560}",
             f"buffer_load_dword v{R.F2S}, s[{SWS}:{SWS+3}], s{sT0} offen {KVF} lds"],
            [f"s_add_u32 m0, s{sSLOT}, {lds+1280}", f"s_add_u32 s{sT0}, s{sVSRC}, {c*8*1280}",
             f"buffer_load_dwordx4 v{R.L16}, s[{SWS}:{SWS+3}], s{sT0} offen {KVF} lds"],
            [f"s_add_u32 m0, s{sSLOT}, {lds+2304}", f"s_add_u32 s{sT0}, s{sVSRC}, {c*8*1280+1024}",
             f"buffer_load_dword v{R.L4}, s[{SWS}:{SWS+3}], s{sT0} offen {KVF} lds"]]
    def emit(op):
        for x in op: A(x)
    A(f"s_mul_i32 s{sT2}, s{sQT}, 2560")
    A(f"s_add_u32 s{sT2}, s{sT2}, s{sKBASE}")
    A(f"s_add_u32 s{sT2}, s{sT2}, {hex(WS_Q)}")
    A(f"buffer_load_dwordx4 {v(R.Q1,4)}, v{R.F2S+1}, s[{SWS}:{SWS+3}], s{sT2} offen")
    A(f"buffer_load_dword v{R.Q2}, v{R.F2S}, s[{SWS}:{SWS+3}], s{sT2} offen")
    for op in kv_ops(0): emit(op)
    A(f"s_lshl_b32 s{sFLAG}, s{sG}, 10")
    A(f"s_add_u32 s{sFLAG}, s{sFLAG}, {hex(WS_SYNC)}")
    A(f"s_getreg_b32 s{sXCC}, hwreg(HW_REG_XCC_ID, 0, 3)")
    A(f"s_mul_i32 s{sXCC}, s{sXCC}, 6")
    A(f"s_lshr_b32 s{sFG}, s{sM}, 2")
    A(f"s_and_b32 s{sT0}, s{sM}, 3")
    A(f"s_lshl_b32 s{sTOK16}, s{sG}, 4")
    A(f"s_lshl_b32 s{sT0}, s{sT0}, 2")
    A(f"s_add_u32 s{sTOK16}, s{sTOK16}, s{sT0}")
    A(f"s_lshl_b32 s{sJ}, s{sFG}, 1")
    A(f"s_and_b32 s{sT0}, s{sM}, 1")
    A(f"s_add_u32 s{sJ}, s{sJ}, s{sT0}")
    A(f"s_and_b32 s{sLW}, s{sWAVE}, 3")
    A(f"s_mul_i32 s{sWOSRC}, s{sFG}, {20*5120}")
    A(f"s_mul_i32 s{sT0}, s{sLW}, {5*5120}")
    A(f"s_add_u32 s{sWOSRC}, s{sWOSRC}, s{sT0}")
    A(f"s_add_u32 s{sWOSRC}, s{sWOSRC}, {hex(WS_WO)}")
    A(f"s_mul_i32 s{sWDSRC}, s{sFG}, {48*5120}")
    A(f"s_mul_i32 s{sT0}, s{sWAVE}, {6*5120}")
    A(f"s_add_u32 s{sWDSRC}, s{sWDSRC}, s{sT0}")
    A(f"s_add_u32 s{sWDSRC}, s{sWDSRC}, {hex(WS_WD)}")
    A(f"s_mul_i32 s{sGSRC}, s{sLW}, {16*3072}")
    A(f"s_mul_i32 s{sT0}, s{sJ}, 192")
    A(f"s_add_u32 s{sGSRC}, s{sGSRC}, s{sT0}")
    A(f"s_mul_i32 s{sGM0}, s{sLW}, 3072")
    srd(A, SX, SX, X_BYTES); srd(A, SG_, SG_, 640 * 1536 * 2); srd(A, SU, SU, 640 * 1536 * 2); srd(A, SO, SO, X_BYTES)
    A(f"v_add_u32 v{R.KA}, {KV_BASE}, v{R.L16}")
    A(f"v_add_u32 v{R.K2A}, {KV_BASE + 1024}, v{R.L4}")
    r, kh, aa, hf, b, i_, d1, d2 = T, T+1, T+2, T+3, T+4, T+5, T+6, T+7
    A(f"v_lshrrev_b32 v{aa}, 3, v{r}")
    A(f"v_bfe_u32 v{hf}, v{r}, 2, 1")
    A(f"v_and_b32 v{b}, 3, v{r}")
    A(f"v_lshl_add_u32 v{i_}, v{aa}, 2, v{b}")
    A(f"v_lshl_add_u32 v{d1}, v{hf}, 3, v{i_}")
    A(f"v_lshl_add_u32 v{d2}, v{hf}, 1, v{i_}")
    A(f"v_add_u32 v{d2}, 8, v{d2}")
    A(f"v_cmp_gt_u32 vcc, 8, v{i_}")
    A(f"v_cndmask_b32 v{d1}, v{d2}, v{d1}, vcc")
    A(f"v_min_u32 v{d1}, 19, v{d1}")
    A(f"v_mul_u32_u24 v{R.VA}, 320, v{kh}")
    A(f"v_lshl_add_u32 v{R.VA}, v{d1}, 4, v{R.VA}")
    A(f"v_add_u32 v{R.VA}, {KV_BASE + 1280}, v{R.VA}")
    A(f"v_cmp_eq_u32 vcc, 10, v{i_}")
    A(f"v_mov_b32 v{d2}, 0x3f803f80")
    for k in range(8): A(f"v_cndmask_b32 v{R.V1+k}, 0, v{d2}, vcc")
    A(f"v_cmp_gt_u32 vcc, 32, v0")
    A(f"v_mov_b32 v{d1}, 0x3f80")
    A(f"v_cndmask_b32 v{R.K2+1}, v{d1}, v{d2}, vcc")
    A(f"v_mov_b32 v{R.Q2+1}, 0")
    for jj in range(3):
        A(f"v_add_u32 v{T}, {64*jj}, v0")
        A(f"v_mul_u32_u24 v{T+1}, 5462, v{T}")
        A(f"v_lshrrev_b32 v{T+1}, 16, v{T+1}")
        A(f"v_mul_u32_u24 v{R.GV+jj}, {3072-192}, v{T+1}")
        A(f"v_lshl_add_u32 v{R.GV+jj}, v{T}, 4, v{R.GV+jj}")
    A(f"s_mov_b32 s{sVMASK}, 0x0033ffff")
    A(f"s_mov_b32 s{sVMASK+1}, 0x0033ffff")
    S0 = R.S[0]
    X = R.S[1]
    addr_rowmajor(A, R.XRES + 6, R.XRES + 7, X)
    A(f"v_lshlrev_b32 v{R.TCH}, 7, v0")
    A(f"v_mov_b32 v{R.TCH+1}, 0")
    A(f"s_lshl_b64 s[{sTMP}:{sTMP+1}], 1, s{sXCC}")
    A(f"v_mov_b32 v{R.XRES+8}, s{sTMP}")
    A(f"v_mov_b32 v{R.XRES+9}, s{sTMP+1}")
    A(f"s_cmp_ge_u32 s{sWAVE}, 4")
    A(f"s_cselect_b32 s{sTMP}, s{SU}, s{SG_}")
    A(f"s_cselect_b32 s{sTMP+1}, s{SU+1}, s{SG_+1}")
    A(f"s_mov_b32 s{sTMP+2}, {hex(640*1536*2)}")
    A(f"s_mov_b32 s{sTMP+3}, 0x20000")
    A(f"s_cselect_b32 s{sB}, {GU_UP}, 0")
    A(f"s_add_u32 s{sB}, s{sB}, s{sGM0}")
    A(f"s_and_b32 s{sC}, s{sM}, 3")
    A(f"s_lshl_b32 s{sDELTA}, s{sM}, 2")
    A(f"s_add_u32 s{sDELTA}, s{sDELTA}, s{sLW}")
    A(f"s_mul_i32 s{sDELTA}, s{sDELTA}, {12*128}")
    A(f"s_lshl_b32 s{sTO}, s{sG}, 5")
    A(f"s_add_u32 s{sTO}, s{sTO}, s{sM}")
    A(f"s_lshl_b32 s{sTO}, s{sTO}, 3")
    A(f"s_add_u32 s{sTO}, s{sTO}, s{sWAVE}")
    if cfg.get("ctouch", 1):
        code_touch_setup(A, 88, "L_post_attn")
        A(f"s_lshl_b32 s{sT0}, s{sWAVE}, 12")
        A(f"v_and_b32 v{X}, 31, v0")
        A(f"v_lshlrev_b32 v{X}, 7, v{X}")
        A(f"v_add_u32 v{X}, s{sT0}, v{X}")
        A(f"v_min_u32 v{R.GV+3}, L_code_end-L_post_attn-4, v{X}")

    JUNK = R.XRES + 11
    def gu_op(c, jj):
        return [f"s_add_u32 m0, s{sB}, {c*GU_SLOT + jj*1024}", f"s_add_u32 s{sT0}, s{sGSRC}, {c*64*3072}",
                f"buffer_load_dwordx4 v{R.GV+jj}, s[{sTMP}:{sTMP+3}], s{sT0} offen lds"]
    def touch(n, srd_, pre):
        return pre + [f"s_bfm_b64 exec, {n}, 0", f"buffer_load_dword v{JUNK}, v{R.TCH}, s[{srd_}:{srd_+3}], s{sT0} offen", "s_mov_b64 exec, -1"]
    def gu_touch(c): return touch(12, sTMP, [f"s_add_u32 s{sT0}, s{sDELTA}, {c*64*3072}"])
    def out_touch(base, nbytes, l0=0, n=None):
        return touch(n or nbytes // 128, SWS, [f"s_mul_i32 s{sT0}, s{sTO}, {nbytes}", f"s_add_u32 s{sT0}, s{sT0}, {hex(base + l0*128)}",
                                          f"s_cmp_lg_u32 s{sFAST}, 0", f"s_cselect_b32 s{sT0}, s{sT0}, {hex(WS_SIZE)}"])
    sched = {t: [] for t in range(64)}
    trs = {}
    misc = {}
    vm = []
    def put(t, tag, op):
        while len(sched[t]) >= 3: t += 1
        sched[t].append((tag, op)); return t
    for i, op in enumerate(kv_ops(1)): put(i // 2, "kv1", op)
    for c in range(2, 8):
        for i, op in enumerate(kv_ops(c)): put(8 * (c - 2) + 6 + i // 2, f"kv{c}", op)
    pf = []
    def frag_op(src, i, dst):
        pre = [f"s_add_u32 s{sSTG}, s{src}, {i*1024}"] if i % 4 == 0 else []
        return pre + [f"buffer_load_dwordx4 {a(dst+4*i,4)}, v{R.L16}, s[{SWS}:{SWS+3}], s{sSTG} offen offset:{(i%4)*1024}"]
    for c in range(3):
        for jj in range(3): pf.append(gu_op(c, jj))
    for i in range(10): pf.append(frag_op(sWDSRC, i, 100))
    for i in range(25): pf.append(frag_op(sWOSRC, i, 0))
    if cfg.get("nopf"): pf = []
    free = [t for t in range(2, 64) if t % 8 < 6]
    num, den = cfg.get("pf_rate", [1, 1])
    for i, op in enumerate(pf): put(free[i * den // num], "pf", op)
    put(0, "at", ["s_cmp_eq_u32 s%d, 0" % sWAVE, f"s_cselect_b32 s{sT0}, s{sFLAG}, {hex(WS_SIZE)}", "s_mov_b64 exec, 1",
                  f"buffer_atomic_add_x2 {v(R.XRES+8,2)}, v{R.TCH+1}, s[{SWS}:{SWS+3}], s{sT0} offen offset:512 sc1", "s_mov_b64 exec, -1"])
    put(12, "pf", [f"buffer_load_dwordx4 {v(R.XRES,4)}, v{R.XRES+6}, s[{SX}:{SX+3}], 0 offen"])
    put(16, "pf", [f"buffer_load_dwordx2 {v(R.XRES+4,2)}, v{R.XRES+7}, s[{SX}:{SX+3}], 0 offen"])
    put(cfg.get("xcc_ld", 10), "xcc", [f"buffer_load_dwordx2 {v(R.XRES+8,2)}, v{R.TCH+1}, s[{SWS}:{SWS+3}], s{sFLAG} offen offset:512 sc1"])
    misc[cfg.get('xcc_rd', 23)] = ("xcc", [f"v_readfirstlane_b32 s{sFAST-1}, v{R.XRES+8}" , f"v_readfirstlane_b32 s{sFAST}, v{R.XRES+9}"])
    wd_touch = touch(40, SWS, [f"s_mul_i32 s{sT0}, s{sC}, 5120", f"s_add_u32 s{sT0}, s{sT0}, s{sWDSRC}", f"s_add_u32 s{sT0}, s{sT0}, {2*5120}"])
    for t, op in cfg_touch_plan(cfg, gu_touch, out_touch, wd_touch): put(t, "pf", op)
    HIDT = None
    if cfg.get("tlb", 0) & 2:
        put(20, "pf", ["s_mov_b64 exec, 1", f"buffer_load_dword v{JUNK}, v{R.XRES+6}, s[{SO}:{SO+3}], 0 offen", "s_mov_b64 exec, -1"])
    if cfg.get("ctouch", 1):
        put(cfg.get("ct_at", 57), "pf", [f"global_load_dword v{JUNK}, v{R.GV+3}, s[88:89]"])

    A("s_waitcnt vmcnt(0)")
    A("s_barrier")
    A(f"ds_read_b128 {v(R.K1,4)}, v{R.KA}")
    A(f"ds_read_b32 v{R.K2}, v{R.K2A}")
    A("s_waitcnt lgkmcnt(0)")
    A(f"v_mfma_f32_32x32x16_bf16 {v(S0,16)}, {v(R.K1,4)}, {v(R.Q1,4)}, 0")
    A(f"v_mfma_f32_32x32x8_bf16 {v(S0,16)}, {v(R.K2,2)}, {v(R.Q2,2)}, {v(S0,16)}")
    max16(A, R.P, S0, True)
    xhalf_max(A, R.P, R.P+1)
    set_shift(A, R.P)
    A(f"v_mfma_f32_32x32x16_bf16 {v(S0,16)}, {v(R.K1,4)}, {v(R.Q1,4)}, 0")
    A(f"v_mfma_f32_32x32x8_bf16 {v(S0,16)}, {v(R.K2,2)}, {v(R.Q2,2)}, {v(S0,16)}")
    def toff(t): return ((t // 8) % 3) * KV_SLOT + (t % 8) * 2560
    A(f"ds_read_b128 {v(R.K1,4)}, v{R.KA} offset:{toff(1)}")
    A(f"ds_read_b32 v{R.K2}, v{R.K2A} offset:{toff(1)}")
    A(f"s_mov_b64 exec, s[{sVMASK}:{sVMASK+1}]")
    A(f"ds_read_b128 {v(R.V1,4)}, v{R.VA}")
    A("s_mov_b64 exec, -1")
    stamp(A, cfg, 1)
    PRIO = cfg.get("prio", {6: 3, 2: 2, 4: 1, 5: 0})
    A("s_setprio 3")
    def vwait(tag): A(f"s_waitcnt vmcnt({len(vm) - 1 - max(i for i, x in enumerate(vm) if x == tag)})")
    for t in range(64):
        cur, nxt = R.S[t % 2], R.S[(t + 1) % 2]
        def E(i): A(f"v_exp_f32 v{cur+i}, v{cur+i}")
        def C(k): A(f"v_cvt_pk_bf16_f32 v{R.P+k}, v{cur+2*k}, v{cur+2*k+1}")
        ops_t = list(sched[t])
        def V():
            if ops_t:
                tag, op = ops_t.pop(0); emit(op); vm.append(tag)
        tr = []
        if t in trs: tr = list(trs[t][1])
        def L(n):
            for _ in range(n):
                if tr: A(tr.pop(0))
        if t % 8 == 6 and t < 56:
            vwait(f"kv{t//8+1}")
            A("s_barrier")
        if cfg.get("ats") and t % 4 == 2 and 6 <= t < 50: A(f"s_memtime s[{64+2*((t-6)//4)}:{65+2*((t-6)//4)}]")
        if t < 56 and t % 8 in PRIO: A(f"s_setprio {PRIO[t % 8]}")
        if t >= 56 and (t - 2) % 8 in PRIO and t > 56: A(f"s_setprio {PRIO[(t - 2) % 8]}")
        if t < 63:
            A(f"s_waitcnt lgkmcnt({2 if t else 1})")
            A(f"v_mfma_f32_32x32x16_bf16 {v(nxt,16)}, {v(R.K1,4)}, {v(R.Q1,4)}, 0")
        E(0); E(1); V(); E(2); C(0); E(3)
        A("s_waitcnt lgkmcnt(0)")
        if t: A(f"v_mfma_f32_32x32x16_bf16 {v(R.O,16)}, {v(R.V2,4)}, {v(R.P+4,4)}, {v(R.O,16)}")
        if t in trs and trs[t][0]: vwait(trs[t][0])
        if t in misc:
            vwait(misc[t][0])
            A(f"s_mov_b32 s{sT1}, s{sFAST-1}")
            emit(misc[t][1])
            A(f"s_lshr_b64 s[{sFAST-1}:{sFAST}], s[{sFAST-1}:{sFAST}], s{sXCC}")
            A(f"s_and_b32 s{sFAST}, s{sFAST-1}, 63")
            A(f"s_mov_b32 s{sFAST-1}, s{sT1}")
            A(f"s_cmp_eq_u32 s{sFAST}, 32")
            A(f"s_cselect_b32 s{sFAST}, {0 if cfg.get('noFast') else 1}, 0")
        L(2); E(4); C(1); L(2); E(5); V(); E(6); L(1); C(2); E(7)
        if t < 63: A(f"v_mfma_f32_32x32x8_bf16 {v(nxt,16)}, {v(R.K2,2)}, {v(R.Q2,2)}, {v(nxt,16)}")
        if t < 62:
            A(f"ds_read_b128 {v(R.K1,4)}, v{R.KA} offset:{toff(t+2)}")
            A(f"ds_read_b32 v{R.K2}, v{R.K2A} offset:{toff(t+2)}")
        E(8); C(3); E(9); V(); E(10); C(4); E(11)
        A(f"v_mfma_f32_32x32x16_bf16 {v(R.O,16)}, {v(R.V1,4)}, {v(R.P,4)}, {v(R.O,16) if t else 0}")
        A(f"s_mov_b64 exec, s[{sVMASK}:{sVMASK+1}]")
        A(f"ds_read_b128 {v(R.V2,4)}, v{R.VA} offset:{toff(t) + 640}")
        if t < 63: A(f"ds_read_b128 {v(R.V1,4)}, v{R.VA} offset:{toff(t+1)}")
        A("s_mov_b64 exec, -1")
        E(12); C(5); E(13); E(14); E(15); C(6); C(7)
        assert not ops_t and not tr
    A("s_waitcnt lgkmcnt(0)")
    A(f"v_mfma_f32_32x32x16_bf16 {v(R.O,16)}, {v(R.V2,4)}, {v(R.P+4,4)}, {v(R.O,16)}")
    A.label("L_post_attn")
    if cfg.get("ats"):
        for c in range(11): A(f"s_sub_u32 s{65+2*c}, s{64+2*c}, s63")
        stamp_flush(A, cfg, 13, 17, SWS, sWAVE, 0)
        A("s_endpgm")
    A("s_setprio 0")
    stamp(A, cfg, 2)
    A(f"v_and_b32 v{T+1}, 15, v0")
    A(f"v_bfe_u32 v{T+2}, v0, 4, 1")
    A(f"v_lshrrev_b32 v{T+3}, 5, v0")
    A(f"v_lshlrev_b32 v{T+1}, 4, v{T+1}")
    A(f"v_mul_u32_u24 v{T+2}, {80*256}, v{T+2}")
    A(f"v_lshl_add_u32 v{T+1}, v{T+3}, 8, v{T+1}")
    A(f"v_add_u32 v{T+7}, v{T+1}, v{T+2}")
    A(f"v_mov_b32 v{T}, 0")
    for k in range(0, 10, 2): A(f"v_max3_f32 v{T}, v{T}, abs(v{R.O+k}), abs(v{R.O+k+1})")
    A(f"s_mov_b32 s{sT0}, {fhex(2.0**-40)}")
    A(f"s_mov_b32 s{sT1}, {fhex(2.0**64)}")
    A(f"s_mov_b32 s{sT2}, {fhex(2.0**127)}")
    A(f"v_cmp_le_f32 vcc, s{sT0}, v{R.O+10}")
    A(f"v_cmp_ge_f32 s[{sTMP}:{sTMP+1}], s{sT1}, v{R.O+10}")
    A(f"v_cmp_ge_f32 s[{sTMP+2}:{sTMP+3}], s{sT2}, v{T}")
    A(f"s_and_b64 vcc, vcc, s[{sTMP}:{sTMP+1}]")
    A(f"s_and_b64 vcc, vcc, s[{sTMP+2}:{sTMP+3}]")
    A(f"s_cmp_eq_u64 vcc, -1" if not cfg.get("force_slow") else "s_cmp_eq_u32 s2, -1")
    A("s_cbranch_scc0 L_attn_slow")
    A.label("L_attn_norm")
    A(f"v_rcp_f32 v{T}, v{R.O+10}")
    A(f"s_mul_i32 s{sT0}, s{sQT}, {2*80*256}")
    A(f"s_lshr_b32 s{sT1}, s{sM}, 3")
    A(f"s_mul_i32 s{sT1}, s{sT1}, {20*256}")
    A(f"s_add_u32 s{sT0}, s{sT0}, s{sT1}")
    A(f"s_add_u32 s{sT0}, s{sT0}, {hex(WS_O)}")
    A(f"s_and_b32 s{sT1}, s{sM}, 7")
    A(f"s_lshl_b32 s{sT1}, s{sT1}, 9")
    A(f"s_add_u32 s{sT1}, s{sT1}, s{sT0}")
    A(f"s_bfe_u32 s{sT2}, s{sM}, 0x10002")
    A(f"s_lshl_b32 s{sT2}, s{sT2}, 9")
    A(f"s_add_u32 s{sT0}, s{sT0}, s{sT2}")
    A(f"s_and_b32 s{sT2}, s{sM}, 3")
    A(f"s_lshl_b32 s{sT2}, s{sT2}, 2")
    A(f"s_add_u32 s{sT0}, s{sT0}, s{sT2}")
    A(f"s_add_u32 s{sT0}, s{sT0}, {16*256}")
    for k in range(10): A(f"v_mul_f32 v{R.O+k}, v{T}, v{R.O+k}")
    for k in range(5): A(f"v_cvt_pk_bf16_f32 v{R.O+k}, v{R.O+2*k}, v{R.O+2*k+1}")
    stores(A, [f"buffer_store_dwordx4 {v(R.O,4)}, v{T+7}, s[{SWS}:{SWS+3}], s{sT1} offen",
               f"buffer_store_dword v{R.O+4}, v{T+7}, s[{SWS}:{SWS+3}], s{sT0} offen"])

    BF, ACC = 16, 56
    vHP, vHS, vPW, RA = 1, 2, 3, 5
    A(f"s_lshr_b32 s{sT2}, s{sWAVE}, 2")
    A(f"s_lshl_b32 s{sB}, s{sT2}, 1")
    A(f"s_add_u32 s{sB}, s{sB}, s{sTOK16}")
    A(f"s_mul_i32 s{sB}, s{sB}, {80*256}")
    A(f"s_mul_i32 s{sT1}, s{sLW}, {20*256}")
    A(f"s_add_u32 s{sB}, s{sB}, s{sT1}")
    A(f"s_add_u32 s{sB}, s{sB}, {hex(WS_O)}")
    A(f"s_lshl_b32 s{sT0}, s{sLW}, 1")
    A(f"s_add_u32 s{sT0}, s{sT0}, s{sT2}")
    A(f"s_mul_i32 s{sT0}, s{sT0}, 10240")
    A(f"s_add_u32 s{sT0}, s{sT0}, {PART_BASE}")
    A(f"v_add_u32 v{vPW}, s{sT0}, v{R.L16}")
    A(f"s_add_u32 s{sT0}, s{sLW}, s{sTOK16}")
    A(f"s_lshl_b32 s{sC}, s{sT0}, 11")
    A(f"s_mul_i32 s{sT0}, s{sT0}, {80*256}")
    A(f"s_mul_i32 s{sT1}, s{sFG}, 2560")
    A(f"s_add_u32 s{sT0}, s{sT0}, s{sT1}")
    A(f"s_add_u32 s{sT0}, s{sT0}, {hex(WS_H)}")
    A(f"v_bfe_u32 v{T+2}, v0, 4, 1")
    A(f"v_lshl_add_u32 v{T+1}, v{T+2}, 3, v{T+1}")
    A(f"v_add_u32 v{T+1}, 2048, v{T+1}")
    A(f"v_add_u32 v{vHS}, s{sT0}, v{T+1}")
    A(f"s_lshl_b32 s{sT1}, s{sT2}, 10")
    A(f"s_add_u32 s{sT0}, s{sT0}, s{sT1}")
    A(f"v_add_u32 v{vHP}, s{sT0}, v{R.L16}")
    A(f"s_lshl_b32 s{sT1}, s{sFG}, 1")
    A(f"s_add_u32 s{sT1}, s{sT1}, s{sT2}")
    A(f"s_lshl_b32 s{sT1}, s{sT1}, 7")
    A(f"s_add_u32 s{sC}, s{sC}, s{sT1}")
    A(f"s_add_u32 s{sC}, s{sC}, {hex(WS_ST2)}")
    reduce_addr(A, 4, PART_BASE, RA)
    XF = 96 - 0
    stamp(A, cfg, 3)
    sync(A, 0, 0, False, 0)
    stamp(A, cfg, 4)
    for i in range(2):
        for st in range(5):
            if st % 4 == 0: A(f"s_add_u32 s{sT1}, s{sB}, {i*80*256 + st*1024}")
            A(f"buffer_load_dwordx4 {v(BF+20*i+4*st,4)}, v{R.L16}, s[{SWS}:{SWS+3}], s{sT1} offen offset:{(st%4)*1024} sc1")
    for i in range(2):
        for st in range(5):
            A(f"s_waitcnt vmcnt({9 - (5*i+st)})")
            for f in range(5):
                acc = v(ACC + 20 * i + 4 * f, 4)
                A(f"v_mfma_f32_16x16x32_bf16 {acc}, {a(20*st+4*f,4)}, {v(BF+20*i+4*st,4)}, {acc if st else 0}")
            if i == 1:
                A(f"ds_write_b128 v{vPW}, {v(ACC+4*st,4)} offset:{st*1024}")
    load_wd(A, 2)
    for f in range(5):
        A(f"ds_write_b128 v{vPW}, {v(ACC+20+4*f,4)} offset:{5120 + f*1024}")
    stamp(A, cfg, 5)
    D = 16
    TRA, VB, VST = 1, 2, 3
    G1, Gh, rho, c0, c1 = T+2, T+3, T+4, T+5, T+6
    def wo_tail(n):
        A("s_waitcnt lgkmcnt(0)")
        A("s_barrier")
        reduce_sum(A, 4, D, RA, n)
        for i in range(2 * n):
            A(f"v_lshlrev_b32 v{T}, 16, v{R.XRES+i}")
            A(f"v_and_b32 v{T+1}, 0xffff0000, v{R.XRES+i}")
            A(f"v_pk_add_f32 {v(D+2*i,2)}, {v(D+2*i,2)}, {v(T,2)}")
        for i in range(2 * n): A(f"v_cvt_pk_bf16_f32 v{D+i}, v{D+2*i}, v{D+2*i+1}")
        st = [f"buffer_store_dwordx4 {v(D,4)}, v{vHP}, s[{SWS}:{SWS+3}], 0 offen"]
        if n == 3: st.append(f"buffer_store_dwordx2 {v(D+4,2)}, v{vHS}, s[{SWS}:{SWS+3}], 0 offen")
        stores(A, st)
        sm, sq = D + 8, D + 9
        A(f"v_mov_b32 v{T+2}, 0x3f803f80")
        for i in range(2 * n):
            A(f"v_dot2_f32_bf16 v{sm}, v{D+i}, v{T+2}, {'v%d' % sm if i else 0}")
            A(f"v_dot2_f32_bf16 v{sq}, v{D+i}, v{D+i}, {'v%d' % sq if i else 0}")
        for i in range(2 * n): A(f"v_accvgpr_write_b32 a{A_RES+i}, v{D+i}")
        for op in ("v_permlane16_swap_b32", "v_permlane32_swap_b32"):
            A(f"v_mov_b32 v{T}, v{sm}")
            A(f"v_mov_b32 v{T+1}, v{sq}")
            A(f"{op} v{sm}, v{T}")
            A(f"{op} v{sq}, v{T+1}")
            A(f"v_pk_add_f32 {v(sm,2)}, {v(sm,2)}, {v(T,2)}")
        A(f"v_lshlrev_b32 v{T}, 3, v0")
        A("s_mov_b64 exec, 0xffff")
        stores(A, [f"buffer_store_dwordx2 {v(sm,2)}, v{T}, s[{SWS}:{SWS+3}], s{sC} offen"])
        A("s_mov_b64 exec, -1")
        A(f"v_bfe_u32 v{G1}, v0, 4, 1")
        A(f"v_lshrrev_b32 v{Gh}, 5, v0")
        A(f"v_bfe_u32 v{rho}, v0, 2, 2")
        A(f"v_and_b32 v{c0}, 1, v0")
        A(f"v_bfe_u32 v{c1}, v0, 1, 1")
        A(f"v_lshl_add_u32 v{TRA}, v{Gh}, 3, v{rho}")
        A(f"v_mul_u32_u24 v{TRA}, 192, v{TRA}")
        A(f"v_mul_u32_u24 v{c1}, {GU_UP}, v{c1}")
        A(f"v_add_u32 v{TRA}, v{TRA}, v{c1}")
        A(f"v_lshl_add_u32 v{TRA}, v{c0}, 4, v{TRA}")
        A(f"v_lshl_add_u32 v{TRA}, v{G1}, 3, v{TRA}")
    sGT = sQT
    A(f"s_and_b32 s{sGT}, s{sTOK16}, -8")
    A(f"s_lshl_b32 s{sT0}, s{sLW}, 1")
    A(f"s_add_u32 s{sGT}, s{sGT}, s{sT0}")
    A(f"s_cmp_ge_u32 s{sWAVE}, 4")
    A("s_cbranch_scc1 L_gu_loader")
    wo_tail(3)

    L_CF = GU_MISC
    L_MB = GU_MISC + 3072
    L_RS = GU_MISC + 4096
    ACC, AF, BF, NB = 16, 0, 24, 8
    CFA = 66
    MB = 6
    A(f"s_mul_i32 s{sB}, s{sGT}, {80*256}")
    A(f"s_add_u32 s{sB}, s{sB}, {hex(WS_H)}")
    A(f"v_and_b32 v{VB}, 15, v0")
    A(f"v_lshlrev_b32 v{VB}, 4, v{VB}")
    A(f"v_lshl_add_u32 v{VB}, v{Gh}, 8, v{VB}")
    A(f"v_mul_u32_u24 v{VST}, {192*256}, v{G1}")
    A(f"v_add_u32 v{VST}, v{VST}, v{VB}")
    A(f"v_mul_u32_u24 v{c0}, {80*256}, v{G1}")
    A(f"v_add_u32 v{VB}, v{VB}, v{c0}")
    def trread(st, t):
        sl = st % 4
        for u in range(2):
            A(f"ds_read_b64_tr_b16 {a(AF+4*t+2*u,2)}, v{TRA} offset:{(16*sl+4*u)*192 + 32*t}")
    for t in range(6): trread(0, t)
    A(f"v_lshlrev_b32 v{T+6}, 3, v0")
    A(f"v_add_u32 v{T+6}, {L_CF}, v{T+6}")
    A(f"v_and_b32 v{T+7}, 31, v0")
    A(f"v_lshlrev_b32 v{T+7}, 3, v{T+7}")
    A(f"s_lshl_b32 s{sT0}, s{sLW}, 8")
    A(f"s_add_u32 s{sT0}, s{sT0}, {L_MB}")
    A(f"v_add_u32 v{T+7}, s{sT0}, v{T+7}")
    stamp(A, cfg, 6)
    sync(A, 1, 0, True, 0)
    stamp(A, cfg, 7)
    if cfg.get("gts"): A("s_mov_b32 s90, s75")
    def loadB(st):
        if st % 8 == 0 and st: A(f"s_add_u32 s{sB}, s{sB}, 4096")
        if cfg.get("gu_noloadb"): return
        A(f"buffer_load_dwordx4 {a(BF+4*(st%NB),4)}, v{VB}, s[{SWS}:{SWS+3}], s{sB} offen offset:{(st%8)*512} sc1")
    for st in range(NB): loadB(st)
    lq = [(0, t) for t in range(6) for _ in range(2)]
    def lwait(tag): A(f"s_waitcnt lgkmcnt({min(15, len(lq) - 1 - max(i for i, x in enumerate(lq) if x == tag))})")
    for st in range(40):
        c, sl = divmod(st, 4)
        nxt = st + 1 < 40
        if sl == 3 and nxt:
            if cfg.get("gts") == 2: A(f"s_memtime s[{60+2*c}:{61+2*c}]")
            A("s_barrier")
            if cfg.get("gts") == 1: A(f"s_memtime s[{60+2*c}:{61+2*c}]")
            d = GU_SLOT if (c + 1) % 6 else -5 * GU_SLOT
            A(f"v_add_u32 v{TRA}, {d & 0xffffffff}, v{TRA}")
        A(f"s_waitcnt vmcnt({min(NB-1, 39-st)})")
        for t in range(6):
            lwait((st, t))
            acc = v(ACC + 16 * t, 16)
            A(f"v_mfma_f32_32x32x16_bf16 {acc}, {a(AF+4*t,4)}, {a(BF+4*(st%NB),4)}, {acc if st else 0}")
            if nxt: trread(st + 1, t); lq += [(st + 1, t)] * 2
            if st == 36:
                if t == 0:
                    A(f"ds_read_b64 {v(MB,2)}, v{T+7}"); lq.append("mb")
                A(f"ds_read_b64 {a(CFA+2*t,2)}, v{T+6} offset:{512*t}"); lq.append(("cf", t))
            if st == 38:
                A(f"v_mfma_f32_32x32x8_bf16 {acc}, {a(CFA+2*t,2)}, {v(MB,2)}, {acc}")
        if st + NB < 40: loadB(st + NB)
    if cfg.get("gts"):
        A("s_waitcnt lgkmcnt(0)")
        for c in range(9): A(f"s_sub_u32 s{91+c}, s{60+2*c}, s90")
    stamp(A, cfg, 8)
    A(f"s_mul_i32 s{sB}, s{sGT}, {192*256}")
    A(f"s_mul_i32 s{sT0}, s{sJ}, {12*256}")
    A(f"s_add_u32 s{sB}, s{sB}, s{sT0}")
    A(f"s_add_u32 s{sB}, s{sB}, {hex(WS_HID)}")
    def gu_epi(sc):
        for t in range(6):
            r = ACC + 16 * t
            for q in range(2):
                for b in range(4): A(f"v_max_f32 v{r+8*q+b}, 0, v{r+8*q+b}")
                for b in (0, 2): A(f"v_pk_mul_f32 {v(r+8*q+b,2)}, {v(r+8*q+b,2)}, {v(r+8*q+4+b,2)}")
            A(f"v_cvt_pk_bf16_f32 v{r}, v{r}, v{r+1}")
            A(f"v_cvt_pk_bf16_f32 v{r+1}, v{r+2}, v{r+3}")
            A(f"v_cvt_pk_bf16_f32 v{r+2}, v{r+8}, v{r+9}")
            A(f"v_cvt_pk_bf16_f32 v{r+3}, v{r+10}, v{r+11}")
            A(f"buffer_store_dwordx4 {v(r,4)}, v{VST}, s[{SWS}:{SWS+3}], s{sB} offen offset:{512*t} {sc}")
    A(f"s_cmp_lg_u32 s{sFAST}, 0")
    A("s_nop 4")
    A("s_cbranch_scc0 L_gu_epi_slow")
    gu_epi("")
    A.label("L_gu_epi_done")
    for stp in (3, 4, 5): load_wd(A, stp)
    stamp(A, cfg, 9)
    A("s_waitcnt vmcnt(15)")
    A("s_branch L_gu_done")
    A.label("L_gu_epi_slow")
    gu_epi("sc1")
    A("s_branch L_gu_epi_done")

    A.label("L_gu_loader")
    WDL = cfg.get("wdl", "late")
    if WDL == "early":
        for stp in (3, 4, 5): load_wd(A, stp)
    wo_tail(2)
    CS, LF, TRB, STV = 32, 40, 2, 72
    A(f"s_lshr_b32 s{sT0}, s{sLW}, 1")
    A(f"s_lshl_b32 s{sT0}, s{sT0}, 5")
    A(f"s_and_b32 s{sT1}, s{sLW}, 1")
    A(f"s_mul_i32 s{sT1}, s{sT1}, {32*192}")
    A(f"s_add_u32 s{sT0}, s{sT0}, s{sT1}")
    A(f"s_add_u32 s{sT0}, s{sT0}, 128")
    A(f"v_add_u32 v{TRB}, s{sT0}, v{TRA}")
    A(f"s_lshl_b32 s{sT0}, s{sLW}, 5")
    A(f"v_add_u32 v{TRA}, s{sT0}, v{TRA}")
    for i in range(4): A(f"v_mov_b32 v{CS+i}, 0")
    def colsum(c, vops):
        if cfg.get("gu_nocs"):
            while vops: emit(vops.pop(0))
            return
        for k in range(6):
            for u in range(2):
                if k < 4: A(f"ds_read_b64_tr_b16 {v(LF+4*k+2*u,2)}, v{TRA} offset:{(16*k+4*u)*192}")
                else:     A(f"ds_read_b64_tr_b16 {v(LF+4*k+2*u,2)}, v{TRB} offset:{(16*(k-4)+4*u)*192}")
        d = GU_SLOT if (c + 1) % 6 else -5 * GU_SLOT
        A(f"v_add_u32 v{TRA}, {d & 0xffffffff}, v{TRA}")
        A(f"v_add_u32 v{TRB}, {d & 0xffffffff}, v{TRB}")
        for k in range(6):
            if vops: emit(vops.pop(0))
            A(f"s_waitcnt lgkmcnt({10-2*k})")
            acc = CS + (2 if k >= 4 else 0)
            for i in range(0, 4, 2):
                A(f"v_lshlrev_b32 v{LF+24}, 16, v{LF+4*k+i}")
                A(f"v_and_b32 v{LF+25}, 0xffff0000, v{LF+4*k+i}")
                A(f"v_lshlrev_b32 v{LF+26}, 16, v{LF+4*k+i+1}")
                A(f"v_and_b32 v{LF+27}, 0xffff0000, v{LF+4*k+i+1}")
                A(f"v_add_f32 v{acc}, v{acc}, v{LF+24}")
                A(f"v_add_f32 v{acc+1}, v{acc+1}, v{LF+25}")
                A(f"v_add_f32 v{acc}, v{acc}, v{LF+26}")
                A(f"v_add_f32 v{acc+1}, v{acc+1}, v{LF+27}")
        while vops: emit(vops.pop(0))
    A(f"v_and_b32 v3, 15, v0")
    A(f"v_lshlrev_b32 v3, 3, v3")
    A(f"v_lshl_add_u32 v3, v{G1}, 11, v3")
    A(f"v_lshl_add_u32 v3, v{Gh}, 10, v3")
    A(f"s_lshl_b32 s{sB}, s{sGT}, 11")
    A(f"s_add_u32 s{sB}, s{sB}, {hex(WS_ST2)}")
    A("s_waitcnt vmcnt(0)")
    A("s_barrier")
    colsum(0, gu_dma_ops(3))
    A("s_barrier")
    ops = [3] * 6
    A(f"s_setprio {cfg.get('lprio', 3)}")
    for c in range(10):
        if c > 0:
            if 3 <= c + 1 < 10: A(f"s_waitcnt vmcnt({len(ops) - 1 - max(i for i, o in enumerate(ops) if o == c + 1)})")
            A("s_barrier")
        vops = []
        if c == 1:
            vops += [[f"buffer_load_dwordx2 {v(STV+2*i,2)}, v3, s[{SWS}:{SWS+3}], s{sB} offen offset:{128*i} sc1" for i in range(8)]]
            ops += ["st"] * 8
        if c + 4 < 10:
            vops += [] if cfg.get("gu_nodma") else gu_dma_ops(c + 4)
            ops += [c + 4] * 6
        if WDL == "late" and 6 <= c <= 8:
            vops += load_wd_ops(c - 3); ops += ["w"] * 5
        if c == 2 and HIDT is not None:
            vops += [HIDT]; ops += ["t"]
        if c < 9: colsum(c + 1, vops)
        if c == 5:
            for i in range(1, 8):
                A(f"v_add_f32 v{STV}, v{STV}, v{STV+2*i}")
                A(f"v_add_f32 v{STV+1}, v{STV+1}, v{STV+2*i+1}")
            for r in (STV, STV + 1):
                A(f"v_mov_b32 v{STV+2}, v{r}")
                A(f"v_permlane32_swap_b32 v{r}, v{STV+2}")
                A(f"v_add_f32 v{r}, v{r}, v{STV+2}")
            mean, rs = STV, STV + 1
            A(f"v_mul_f32 v{mean}, {fhex(1/640)}, v{mean}")
            A(f"v_mul_f32 v{rs}, {fhex(1/640)}, v{rs}")
            A(f"v_fma_f32 v{rs}, -v{mean}, v{mean}, v{rs}")
            A(f"v_max_f32 v{rs}, 0, v{rs}")
            A(f"v_add_f32 v{rs}, {fhex(1e-5)}, v{rs}")
            A(f"v_rcp_f32 v{rs}, v{rs}")
            A(f"v_cvt_pk_bf16_f32 v{STV+2}, -v{mean}, -v{mean}")
            A(f"v_and_b32 v{STV+3}, 0xffff0000, v{STV+2}")
            A(f"v_sub_f32 v{STV+3}, -v{mean}, v{STV+3}")
            A(f"v_cvt_pk_bf16_f32 v{STV+3}, v{STV+3}, 0")
            A(f"v_and_b32 v{STV+4}, 31, v0")
            A(f"s_lshl_b32 s{sT0}, s{sLW}, 5")
            A(f"v_add_u32 v{STV+4}, s{sT0}, v{STV+4}")
            A(f"v_lshlrev_b32 v{STV+5}, 3, v{STV+4}")
            A(f"v_lshlrev_b32 v{STV+4}, 2, v{STV+4}")
            A(f"v_add_u32 v{STV+5}, {L_MB}, v{STV+5}")
            A(f"v_add_u32 v{STV+4}, {L_RS}, v{STV+4}")
            A(f"ds_write_b64 v{STV+5}, {v(STV+2,2)}")
            A(f"ds_write_b32 v{STV+4}, v{rs}")
        if c == 8:
            A(f"v_add_f32 v{CS}, v{CS}, v{CS+1}")
            A(f"v_add_f32 v{CS+2}, v{CS+2}, v{CS+3}")
            A(f"v_mov_b32 v{CS+3}, v{CS+2}")
            A(f"v_permlane32_swap_b32 v{CS+2}, v{CS+3}")
            A(f"v_add_f32 v{CS+2}, v{CS+2}, v{CS+3}")
            for k, cs in ((0, CS), (1, CS + 2)):
                o = LF + 4 * k
                A(f"v_cvt_pk_bf16_f32 v{o+2}, v{cs}, v{cs}")
                A(f"v_and_b32 v{o+2}, 0xffff0000, v{o+2}")
                A(f"v_sub_f32 v{cs}, v{cs}, v{o+2}")
                A(f"v_cvt_pk_bf16_f32 v{o}, v{o+2}, v{cs}")
                A(f"v_lshrrev_b32 v{o+1}, 16, v{o+2}")
            A(f"s_lshl_b32 s{sT0}, s{sLW}, 9")
            A(f"s_add_u32 s{sT0}, s{sT0}, {L_CF}")
            A(f"v_lshlrev_b32 v{LF+8}, 3, v0")
            A(f"v_add_u32 v{LF+8}, s{sT0}, v{LF+8}")
            A(f"ds_write_b64 v{LF+8}, {v(LF,2)}")
            A(f"s_lshl_b32 s{sT0}, s{sLW}, 8")
            A(f"s_add_u32 s{sT0}, s{sT0}, {L_CF + 2048}")
            A(f"v_and_b32 v{LF+9}, 31, v0")
            A(f"v_lshlrev_b32 v{LF+9}, 3, v{LF+9}")
            A(f"v_add_u32 v{LF+9}, s{sT0}, v{LF+9}")
            A(f"ds_write_b64 v{LF+9}, {v(LF+4,2)}")
            A("s_waitcnt lgkmcnt(0)")
    A("s_setprio 0")
    A.label("L_gu_done")

    NBD = cfg.get("nbd", 6)
    BF, ACC = 16, 72
    vXP, vXS, vPW, RA, vRS = 1, 2, 3, 5, T + 7
    A(f"s_mul_i32 s{sB}, s{sTOK16}, {192*256}")
    A(f"s_mul_i32 s{sT0}, s{sWAVE}, {24*256}")
    A(f"s_add_u32 s{sB}, s{sB}, s{sT0}")
    A(f"s_add_u32 s{sB}, s{sB}, {hex(WS_HID)}")
    A(f"s_mul_i32 s{sT0}, s{sWAVE}, 20480")
    A(f"v_add_u32 v{vPW}, s{sT0}, v{R.L16}")
    A(f"s_and_b32 s{sT0}, s{sTOK16}, 7")
    A(f"s_add_u32 s{sT0}, s{sT0}, s{sLW}")
    A(f"s_lshl_b32 s{sT0}, s{sT0}, 6")
    A(f"s_add_u32 s{sT0}, s{sT0}, {L_RS}")
    A(f"v_and_b32 v{vRS}, 15, v0")
    A(f"v_lshlrev_b32 v{vRS}, 2, v{vRS}")
    A(f"v_add_u32 v{vRS}, s{sT0}, v{vRS}")
    A(f"ds_read_b32 v{vRS}, v{vRS}")
    addr_rowmajor(A, vXP, vXS, T)
    reduce_addr(A, 8, 0, RA)
    A("s_waitcnt lgkmcnt(0)")
    sync(A, 2, 4, True, 63)
    stamp(A, cfg, 10)
    def loadBd(q):
        tt, st = divmod(q, 6)
        if st % 4 == 0: A(f"s_add_u32 s{sT1}, s{sB}, {tt*192*256 + st*1024}")
        A(f"buffer_load_dwordx4 {v(BF+4*(q%NBD),4)}, v{R.L16}, s[{SWS}:{SWS+3}], s{sT1} offen offset:{(st%4)*1024} sc1")
    for q in range(NBD): loadBd(q)
    issued = NBD
    for q in range(24):
        tt, st = divmod(q, 6)
        A(f"s_waitcnt vmcnt({issued - 1 - q})")
        for f in range(5):
            acc = v(ACC + 20 * (tt % 2) + 4 * f, 4)
            A(f"v_mfma_f32_16x16x32_bf16 {acc}, {a(WD(st)+4*f,4)}, {v(BF+4*(q%NBD),4)}, {acc if st else 0}")
        if issued < 24:
            loadBd(issued); issued += 1
        if tt > 0 and st < 5:
            A(f"ds_write_b128 v{vPW}, {v(ACC+20*((tt-1)%2)+4*st,4)} offset:{(tt-1)*5120 + st*1024}")
    for f in range(5):
        A(f"ds_write_b128 v{vPW}, {v(ACC+20+4*f,4)} offset:{3*5120 + f*1024}")
    stamp(A, cfg, 11)
    def dn_tail(n):
        A("s_waitcnt lgkmcnt(0)")
        A("s_barrier")
        reduce_sum(A, 8, D, RA, n)
        for i in range(2 * n):
            A(f"v_accvgpr_read_b32 v{T+2}, a{A_RES+i}")
            A(f"v_lshlrev_b32 v{T}, 16, v{T+2}")
            A(f"v_and_b32 v{T+1}, 0xffff0000, v{T+2}")
            A(f"v_fma_f32 v{D+2*i}, v{D+2*i}, v{vRS}, v{T}")
            A(f"v_fma_f32 v{D+2*i+1}, v{D+2*i+1}, v{vRS}, v{T+1}")
            A(f"v_cvt_pk_bf16_f32 v{D+i}, v{D+2*i}, v{D+2*i+1}")
            if i == 3: A(f"buffer_store_dwordx4 {v(D,4)}, v{vXP}, s[{SO}:{SO+3}], 0 offen")
        if n == 3: A(f"buffer_store_dwordx2 {v(D+4,2)}, v{vXS}, s[{SO}:{SO+3}], 0 offen")
    A(f"s_cmp_ge_u32 s{sWAVE}, 4")
    A("s_cbranch_scc1 L_dn_b")
    dn_tail(3)
    A("s_branch L_dn_e")
    A.label("L_dn_b")
    dn_tail(2)
    A.label("L_dn_e")
    stamp(A, cfg, 12)
    if cfg.get("gts"):
        for c in range(9):
            A(f"s_mov_b32 s{60+2*c}, s{91+c}")
            A(f"s_mov_b32 s{61+2*c}, s{91+c}")
    stamp_flush(A, cfg, 13, 4, SWS, sWAVE, cfg.get('tswave', 0))
    if cfg.get("diag"):
        da, db = cfg["diag"]
        A("s_cmp_lg_u32 s2, 16")
        A("s_cbranch_scc1 L_end")
        A(f"s_cmp_lg_u32 s{sWAVE}, 0")
        A("s_cbranch_scc1 L_end")
        if da == -1:
            A("v_mov_b32 v1, 0")
            A(f"s_mov_b32 s{sT0}, {hex(WS_TS)}")
            A(f"buffer_load_dword v2, v1, s[{SWS}:{SWS+3}], s{sT0} offen")
            A("s_waitcnt vmcnt(0)")
            A(f"v_readfirstlane_b32 s{sT0}, v2")
        else:
            A(f"s_mov_b32 s{sT0}, s{60+2*da}")
        A(f"s_sub_u32 s{sT0}, s{60+2*db}, s{sT0}")
        A(f"s_min_u32 s{sT0}, s{sT0}, 20000")
        A(f"s_lshl_b32 s{sT0}, s{sT0}, 2")
        A(f"s_add_u32 s{sT0}, s{sT0}, s{60+2*12}")
        A.label("L_spin")
        A("s_memrealtime s[56:57]")
        A("s_waitcnt lgkmcnt(0)")
        A(f"s_sub_u32 s{sT1}, s56, s{sT0}")
        A(f"s_cmp_lt_i32 s{sT1}, 0")
        A("s_cbranch_scc1 L_spin")
    A.label("L_end")
    A("s_endpgm")

    A.label("L_attn_slow")
    A(f"v_subrev_u32 v{R.VA}, {KV_BASE + 1280}, v{R.VA}")
    A(f"v_mov_b32 v{R.Q2+1}, 0")
    A(f"v_mov_b32 v{T}, 0xff800000")
    A(f"s_mov_b32 s{sT0}, s{sKBASE}")
    A(f"s_add_u32 s{sT1}, s{sKBASE}, {PAIR_STRIDE}")
    A.label("L_attn_slow1")
    A(f"buffer_load_dwordx4 {v(R.K1,4)}, v{R.F2S+1}, s[{SWS}:{SWS+3}], s{sT0} offen")
    A(f"buffer_load_dword v{R.K2}, v{R.F2S}, s[{SWS}:{SWS+3}], s{sT0} offen")
    A("s_waitcnt vmcnt(0)")
    A(f"v_mfma_f32_32x32x16_bf16 {v(S0,16)}, {v(R.K1,4)}, {v(R.Q1,4)}, 0")
    A(f"v_mfma_f32_32x32x8_bf16 {v(S0,16)}, {v(R.K2,2)}, {v(R.Q2,2)}, {v(S0,16)}")
    max16(A, T, S0, False)
    A(f"s_add_u32 s{sT0}, s{sT0}, 2560")
    A(f"s_cmp_lt_u32 s{sT0}, s{sT1}")
    A("s_cbranch_scc1 L_attn_slow1")
    A(f"v_mov_b32 v{R.KA}, v{T+1}")
    xhalf_max(A, T, T+1)
    set_shift(A, T)
    A(f"v_mov_b32 v{T+1}, v{R.KA}")
    for k in range(16): A(f"v_mov_b32 v{R.O+k}, 0")
    A(f"s_mov_b32 s{sT0}, s{sKBASE}")
    A(f"s_mov_b32 s{sT2}, s{sVBASE}")
    A.label("L_attn_slow2")
    A(f"buffer_load_dwordx4 {v(R.K1,4)}, v{R.F2S+1}, s[{SWS}:{SWS+3}], s{sT0} offen")
    A(f"buffer_load_dword v{R.K2}, v{R.F2S}, s[{SWS}:{SWS+3}], s{sT0} offen")
    A(f"s_mov_b64 exec, s[{sVMASK}:{sVMASK+1}]")
    A(f"buffer_load_dwordx4 {v(R.V1,4)}, v{R.VA}, s[{SWS}:{SWS+3}], s{sT2} offen")
    A(f"buffer_load_dwordx4 {v(R.V2,4)}, v{R.VA}, s[{SWS}:{SWS+3}], s{sT2} offen offset:640")
    A("s_mov_b64 exec, -1")
    A("s_waitcnt vmcnt(0)")
    A(f"v_mfma_f32_32x32x16_bf16 {v(S0,16)}, {v(R.K1,4)}, {v(R.Q1,4)}, 0")
    A(f"v_mfma_f32_32x32x8_bf16 {v(S0,16)}, {v(R.K2,2)}, {v(R.Q2,2)}, {v(S0,16)}")
    for k in range(16): A(f"v_exp_f32 v{S0+k}, v{S0+k}")
    for k in range(8): A(f"v_cvt_pk_bf16_f32 v{R.P+k}, v{S0+2*k}, v{S0+2*k+1}")
    A(f"v_mfma_f32_32x32x16_bf16 {v(R.O,16)}, {v(R.V1,4)}, {v(R.P,4)}, {v(R.O,16)}")
    A(f"v_mfma_f32_32x32x16_bf16 {v(R.O,16)}, {v(R.V2,4)}, {v(R.P+4,4)}, {v(R.O,16)}")
    A(f"s_add_u32 s{sT0}, s{sT0}, 2560")
    A(f"s_add_u32 s{sT2}, s{sT2}, 1280")
    A(f"s_cmp_lt_u32 s{sT0}, s{sT1}")
    A("s_nop 7")
    A("s_cbranch_scc1 L_attn_slow2")
    A("s_nop 7")
    A("s_branch L_attn_norm")
    A.label("L_code_end")
    return dict(name=name, grid=256, block=512, lds=163840, desc=kernel_desc(name, 256, NV))
```

```python
from common import *

def gen_qkv(A, cfg):
    name = "qkv_kernel"
    kstart(A, name)
    SX, SW, SWS, SP, SD = 4, 8, 12, 36, 48
    sWAVE, sTB, sFG, sXO, sXLIM, sWO, sT0, sT1, sT2, sM0 = 16, 17, 18, 19, 20, 21, 22, 23, 24, 25
    sTILE, sBASE, sQS, sC0, sID = 26, 27, 28, 30, 31
    vTR = 4
    vT = 8
    SLOT = 32768
    CSL = SLOT
    STL = SLOT + 2048
    A("s_cmp_ge_u32 s2, 256")
    A("s_cbranch_scc1 L_qkv_end")
    A("s_load_dwordx4 s[4:7], s[0:1], 0")
    A("s_load_dwordx4 s[48:51], s[0:1], 64")
    A("s_load_dwordx2 s[32:33], s[0:1], 16")
    A("s_load_dwordx2 s[34:35], s[0:1], 48")
    stamp(A, cfg, 0)
    if cfg.get("diag"): A("s_memrealtime s[56:57]")
    A(f"v_lshrrev_b32 v{vT}, 6, v0")
    A(f"s_cmp_lt_u32 s2, 16")
    A(f"v_readfirstlane_b32 s{sWAVE}, v{vT}")
    A("s_cbranch_scc1 L_qkv_helper")
    A(f"v_and_b32 v0, 63, v0")
    A(f"s_sub_u32 s{sID}, s2, 16")
    A(f"s_and_b32 s{sT0}, s{sID}, 7")
    A(f"s_lshr_b32 s{sT1}, s{sID}, 3")
    A(f"s_lshr_b32 s{sT2}, s{sT0}, 2")
    A(f"s_mul_i32 s{sT2}, s{sT2}, 30")
    A(f"s_add_u32 s{sT1}, s{sT1}, s{sT2}")
    A(f"s_lshr_b32 s{sFG}, s{sT1}, 2")
    A(f"s_and_b32 s{sT1}, s{sT1}, 3")
    A(f"s_and_b32 s{sT2}, s{sT0}, 3")
    A(f"s_lshl_b32 s{sT2}, s{sT2}, 2")
    A(f"s_add_u32 s{sTB}, s{sT2}, s{sT1}")
    A(f"s_cmp_ge_u32 s{sWAVE}, 4")
    A("s_cbranch_scc1 L_qkv_loader")

    def tr_addr(permuted, tiles):
        rho, cc, g1, kh, base = vT, vT+1, vT+2, vT+3, vT+4
        A(f"v_bfe_u32 v{rho}, v0, 2, 2")
        A(f"v_bfe_u32 v{g1}, v0, 4, 1")
        A(f"v_lshrrev_b32 v{kh}, 5, v0")
        A(f"v_lshl_add_u32 v{base}, v{kh}, 3, v{rho}")
        A(f"v_lshlrev_b32 v{base}, 8, v{base}")
        A(f"v_lshl_add_u32 v{base}, v{g1}, 5, v{base}")
        if permuted:
            A(f"v_and_b32 v{cc}, 1, v0")
            A(f"v_lshl_add_u32 v{base}, v{cc}, 4, v{base}")
            A(f"v_bfe_u32 v{cc}, v0, 1, 1")
            A(f"v_lshl_add_u32 v{base}, v{cc}, 3, v{base}")
        else:
            A(f"v_and_b32 v{cc}, 3, v0")
            A(f"v_lshl_add_u32 v{base}, v{cc}, 3, v{base}")
        for j, t in enumerate(tiles):
            A(f"v_xor_b32 v{vTR+j}, {t}, v{rho}")
            A(f"v_lshl_add_u32 v{vTR+j}, v{vTR+j}, 6, v{base}")
    def rebase(c):
        def base(c): return ((c % 5) // 2) * 2 * SLOT
        return (base(c) - base(c - 1) if c else 0), (c % 5) * SLOT - base(c)

    ACC, FR, vBA, vADR, vST = 16, 80, 112, 116, 120
    sFH2 = 29
    A(f"s_and_b32 s{sT0}, s{sWAVE}, 1")
    A(f"s_and_b32 s{sFH2}, s{sWAVE}, 2")
    sJ0, sJ1 = 44, 45
    A(f"s_mov_b32 s{sJ0}, s{sWAVE}")
    A(f"s_xor_b32 s{sJ1}, s{sWAVE}, 1")
    A(f"s_lshl_b32 s{sTILE}, s{sTB}, 1")
    A(f"s_add_u32 s{sTILE}, s{sTILE}, s{sT0}")
    A(f"s_lshl_b32 s{sTILE}, s{sTILE}, 1")
    A(f"s_lshl_b32 s{sT0}, s{sT0}, 13")
    A(f"s_add_u32 s{sT0}, s{sT0}, 16384")
    A(f"v_and_b32 v{vT}, 31, v0")
    A(f"v_lshrrev_b32 v{vT+1}, 5, v0")
    A(f"v_bfe_u32 v{vT+2}, v0, 1, 3")
    A(f"v_xor_b32 v{vT+1}, v{vT+1}, v{vT+2}")
    A(f"v_lshlrev_b32 v{vT}, 7, v{vT}")
    A(f"v_lshl_add_u32 v{vT}, v{vT+1}, 4, v{vT}")
    A(f"v_add_u32 v{vBA}, s{sT0}, v{vT}")
    for st in range(1, 4): A(f"v_xor_b32 v{vBA+st}, {32*st}, v{vBA}")
    CSA, ONE, SEL, SF, SUM, SQ, vSB = 152, 160, 164, 168, 184, 192, 200
    MB, RS = 204, 208
    VO, PF, L16 = 120, 128, 2
    sU, sPSRC, sPDST, sPLDS = 40, 41, 42, 43
    def prep_setup():
        A(f"s_mul_i32 s{sU}, s{sWAVE}, 240")
        A(f"s_add_u32 s{sU}, s{sU}, s{sID}")
        A(f"v_lshlrev_b32 v{L16}, 4, v0")
        A(f"s_lshl_b32 s{sPLDS}, s{sWAVE}, 13")
        for jj in range(5):
            A(f"v_add_u32 v{vT}, {64*jj}, v0")
            A(f"v_mul_u32_u24 v{PF+jj}, 6554, v{vT}")
            A(f"v_lshrrev_b32 v{PF+jj}, 16, v{PF+jj}")
            A(f"v_mul_u32_u24 v{vT+1}, 10, v{PF+jj}")
            A(f"v_sub_u32 v{vT}, v{vT}, v{vT+1}")
            A(f"v_lshlrev_b32 v{VO+jj}, 4, v{vT}")
        A(f"s_cmp_ge_u32 s{sU}, 384")
        A("s_cbranch_scc1 L_qkv_pwo")
        srd(A, SP, 34, 1536 * 640 * 2)
        A(f"s_mul_i32 s{sT0}, s{sU}, 1366")
        A(f"s_lshr_b32 s{sT0}, s{sT0}, 16")
        A(f"s_mul_i32 s{sT1}, s{sT0}, 48")
        A(f"s_sub_u32 s{sT1}, s{sU}, s{sT1}")
        A(f"s_mul_i32 s{sPSRC}, s{sT1}, {32*1280}")
        A(f"s_mul_i32 s{sT0}, s{sT0}, 160")
        A(f"s_add_u32 s{sPSRC}, s{sPSRC}, s{sT0}")
        A(f"s_mul_i32 s{sPDST}, s{sU}, 5120")
        A(f"s_add_u32 s{sPDST}, s{sPDST}, {hex(WS_WD)}")
        A("s_branch L_qkv_pgo")
        A.label("L_qkv_pwo")
        srd(A, SP, 32, 640 * 640 * 2)
        A(f"s_sub_u32 s{sU}, s{sU}, 384")
        A(f"s_mul_i32 s{sT0}, s{sU}, 3277")
        A(f"s_lshr_b32 s{sT0}, s{sT0}, 16")
        A(f"s_mul_i32 s{sT1}, s{sT0}, 20")
        A(f"s_sub_u32 s{sT1}, s{sU}, s{sT1}")
        A(f"s_mul_i32 s{sPSRC}, s{sT0}, 160")
        A(f"s_mul_i32 s{sT0}, s{sT1}, 205")
        A(f"s_lshr_b32 s{sT0}, s{sT0}, 10")
        A(f"s_mul_i32 s{sT2}, s{sT0}, 5")
        A(f"s_sub_u32 s{sT1}, s{sT1}, s{sT2}")
        A(f"s_mul_i32 s{sT0}, s{sT0}, {160*1280}")
        A(f"s_add_u32 s{sPSRC}, s{sPSRC}, s{sT0}")
        A(f"s_mul_i32 s{sPDST}, s{sU}, 5120")
        A(f"s_add_u32 s{sPDST}, s{sPDST}, {hex(WS_WO)}")
        A(f"s_cmp_ge_u32 s{sU}, 160")
        A(f"s_cselect_b32 s{sPDST}, {hex(WS_SIZE)}, s{sPDST}")
        A(f"s_cselect_b32 s{SP+2}, 0, s{SP+2}")
        A(f"s_cmp_eq_u32 s{sT1}, 4")
        A("s_cbranch_scc1 L_qkv_pleft")
        A(f"s_mul_i32 s{sT1}, s{sT1}, {40*1280}")
        A(f"s_add_u32 s{sPSRC}, s{sPSRC}, s{sT1}")
        for jj in range(5):
            A(f"v_lshrrev_b32 v{vT}, 4, v{PF+jj}")
            A(f"v_lshl_add_u32 v{PF+jj}, v{vT}, 2, v{PF+jj}")
        A("s_branch L_qkv_pgo")
        A.label("L_qkv_pleft")
        for jj in range(5):
            k = PF + jj
            A(f"v_lshrrev_b32 v{vT}, 4, v{k}")
            A(f"v_mul_u32_u24 v{vT}, 80, v{vT}")
            A(f"v_bfe_u32 v{vT+1}, v{k}, 1, 2")
            A(f"v_mul_u32_u24 v{vT+1}, 20, v{vT+1}")
            A(f"v_add3_u32 v{vT}, v{vT}, v{vT+1}, 16")
            A(f"v_bfe_u32 v{vT+1}, v{k}, 3, 1")
            A(f"v_lshl_add_u32 v{vT}, v{vT+1}, 1, v{vT}")
            A(f"v_and_b32 v{vT+1}, 1, v{k}")
            A(f"v_add_u32 v{k}, v{vT}, v{vT+1}")
        A.label("L_qkv_pgo")
        for jj in range(5):
            A(f"v_mul_u32_u24 v{vT}, 1280, v{PF+jj}")
            A(f"v_add_u32 v{VO+jj}, v{VO+jj}, v{vT}")
        A(f"v_lshrrev_b32 v{vT}, 4, v0")
        A(f"v_bfe_u32 v{vT+1}, v0, 2, 2")
        A(f"v_lshl_add_u32 v{vT}, v{vT}, 3, v{vT+1}")
        A(f"v_mul_u32_u24 v{vT}, 160, v{vT}")
        A(f"v_add_u32 v{vT}, s{sPLDS}, v{vT}")
        A(f"v_and_b32 v{vT+1}, 3, v0")
        A(f"v_lshl_add_u32 v{VO+5}, v{vT+1}, 4, v{vT}")
        A(f"v_lshl_add_u32 v{VO+6}, v{vT+1}, 3, v{vT}")
    A("s_waitcnt lgkmcnt(0)")
    cfg = dict(cfg); cfg["q_prep"] = 100
    srd(A, SWS, 50, WS_SIZE)
    if cfg.get("diag"):
        A(f"s_cmp_eq_u32 s2, 16")
        A(f"s_mov_b32 s{sT0}, {hex(WS_TS)}")
        A(f"s_cselect_b32 s{sT0}, s{sT0}, {hex(WS_SIZE)}")
        A(f"v_mov_b32 v{vT}, s56")
        A(f"v_mov_b32 v{vT+1}, 0")
        A(f"buffer_store_dword v{vT}, v{vT+1}, s[{SWS}:{SWS+3}], s{sT0} offen")
    A(f"v_lshrrev_b32 v{vT}, 2, v0")
    A(f"v_xor_b32 v{vT}, v{vT}, v0")
    A(f"v_and_b32 v{vT}, 4, v{vT}")
    A(f"v_cmp_eq_u32 vcc, 0, v{vT}")
    for i in range(4): A(f"v_mov_b32 v{ONE+i}, 0x3f803f80")
    for i in range(4): A(f"v_cndmask_b32 v{SEL+i}, 0, v{ONE}, vcc")
    A(f"s_and_b32 s{sT0}, s{sWAVE}, 1")
    A(f"s_lshl_b32 s{sT0}, s{sT0}, 13")
    A(f"s_lshl_b32 s{sT1}, s{sFH2}, 11")
    A(f"s_add_u32 s{sT0}, s{sT0}, s{sT1}")
    A(f"s_add_u32 s{sT0}, s{sT0}, 16384")
    A(f"v_and_b32 v{vT}, 15, v0")
    A(f"v_lshrrev_b32 v{vT+1}, 4, v0")
    A(f"v_bfe_u32 v{vT+2}, v0, 1, 3")
    A(f"v_xor_b32 v{vT+1}, v{vT+1}, v{vT+2}")
    A(f"v_lshlrev_b32 v{vT}, 7, v{vT}")
    A(f"v_lshl_add_u32 v{vT}, v{vT+1}, 4, v{vT}")
    A(f"v_add_u32 v{vSB}, s{sT0}, v{vT}")
    A(f"v_xor_b32 v{vSB+1}, 64, v{vSB}")
    A(f"s_cmp_ge_u32 s{sFG}, 10")
    A("s_cbranch_scc1 L_qkv_V")

    STF = cfg.get("qkv_st", "sc1")
    def mainloop(isV):
        q = []
        def reads(st):
            c, sl = divmod(st, 4)
            _, so = rebase(c)
            b = FR + 16 * (st % 2)
            out = []
            for u in range(2): out.append((f"ds_read_b64_tr_b16 {v(b+2*u,2)}, v{vTR} offset:{so + (16*sl+4*u)*256}", (st, "A0")))
            out.append((f"ds_read_b128 {v(b+8,4)}, v{vBA+sl} offset:{so}", (st, "B0")))
            out.append((f"ds_read_b128 {v(b+12,4)}, v{vBA+sl} offset:{so + 4096}", (st, "B1")))
            for u in range(2): out.append((f"ds_read_b64_tr_b16 {v(b+4+2*u,2)}, v{vTR+1} offset:{so + (16*sl+4*u)*256}", (st, "A1")))
            out.append((f"ds_read_b128 {v(SF+4*(st%2),4)}, v{vSB+(sl>>1)} offset:{so + 2048*(st%2)}", (st, "S")))
            return out
        def issue(r): A(r[0]); q.append(r[1])
        def wait(tag): A(f"s_waitcnt lgkmcnt({len(q) - 1 - max(i for i, x in enumerate(q) if x == tag)})")
        A("s_barrier")
        for r in reads(0): issue(r)
        stamp(A, cfg, 1)
        for st in range(40):
            nxt = st + 1 < 40
            if st % 4 == 3 and nxt:
                A("s_barrier")
                if cfg.get("qts"): A(f"s_memtime s[{70+2*(st//4)}:{71+2*(st//4)}]")
                d, _ = rebase((st + 1) // 4)
                if d:
                    for r in (vTR, vTR + 1, vBA, vBA + 1, vBA + 2, vBA + 3, vSB, vSB + 1): A(f"v_add_u32 v{r}, {d & 0xffffffff}, v{r}")
            rs = reads(st + 1) if nxt else []
            b = FR + 16 * (st % 2)
            sf = v(SF + 4 * (st % 2), 4); su = v(SUM + 4 * (st % 2), 4); sq = v(SQ + 4 * (st % 2), 4)
            for k, (i, j, tag, nr) in enumerate(((0, 0, "B0", 2), (1, 0, "B1", 2), (0, 1, "S", 2), (1, 1, None, 1))):
                if tag: wait((st, tag))
                af = v(b + 4 * j, 4); xf = v(b + 8 + 4 * i, 4); acc = v(ACC + 32 * i + 16 * j, 16); c = acc if st else "0"
                if isV: A(f"v_mfma_f32_32x32x16_bf16 {acc}, {xf}, {af}, {c}")
                else:   A(f"v_mfma_f32_32x32x16_bf16 {acc}, {af}, {xf}, {c}")
                for _ in range(nr):
                    if rs: issue(rs.pop(0))
                if k == 1: A(f"v_mfma_f32_16x16x32_bf16 {v(CSA,4)}, {v(SEL,4)}, {v(b,4)}, {v(CSA,4) if st else 0}")
                if k == 2 and not cfg.get("q_nost"): A(f"v_mfma_f32_16x16x32_bf16 {su}, {v(ONE,4)}, {sf}, {su if st > 1 else 0}")
                if k == 3 and not cfg.get("q_nost"): A(f"v_mfma_f32_16x16x32_bf16 {sq}, {sf}, {sf}, {sq if st > 1 else 0}")
            if st == cfg.get("q_prep", 5):
                A("s_waitcnt vmcnt(0)")
                for f in range(5):
                    for u in range(2):
                        A(f"ds_read_b64_tr_b16 {v(PF+4*f+2*u,2)}, v{VO+5+(f==4)} offset:{4*u*160 + tile_col_imm(f)}"); q.append("p")
            if st == cfg.get("q_prep", 5) + 1:
                wait("p")
            if cfg.get("q_prep", 5) + 1 <= st <= cfg.get("q_prep", 5) + 5:
                f = st - cfg.get("q_prep", 5) - 1
                A(f"s_add_u32 s{sT0}, s{sPDST}, {f*1024}")
                A(f"buffer_store_dwordx4 {v(PF+4*f,4)}, v{L16}, s[{SWS}:{SWS+3}], s{sT0} offen {STF}")
        stamp(A, cfg, 2)

    def correction(isV):
        cs = CSA
        t0, t1, t2, t3 = vT, vT+1, vT+2, vT+3
        A(f"s_lshl_b32 s{sT0}, s{sJ0}, 9")
        A(f"s_lshl_b32 s{sT1}, s{sJ1}, 9")
        A(f"v_lshlrev_b32 v{t0}, 3, v0")
        A(f"v_add_u32 v{t1}, s{sT1}, v{t0}")
        A(f"v_add_u32 v{t0}, s{sT0}, v{t0}")
        A(f"v_cvt_pk_bf16_f32 v{cs+1}, v{cs}, v{cs}")
        A(f"v_and_b32 v{cs+1}, 0xffff0000, v{cs+1}")
        A(f"v_sub_f32 v{cs}, v{cs}, v{cs+1}")
        A(f"v_cvt_pk_bf16_f32 v{cs+2}, v{cs+1}, v{cs}")
        A(f"v_lshrrev_b32 v{cs+3}, 16, v{cs+1}")
        A(f"ds_write_b64 v{t0}, {v(cs+2,2)} offset:{CSL}")
        A(f"v_and_b32 v{t2}, 3, v0")
        for k in (1, 2, 3):
            A(f"v_cmp_eq_u32 vcc, {k}, v{t2}")
            for i in range(2): A(f"v_cndmask_b32 v{SQ+4*i}, v{SQ+4*i}, v{SQ+4*i+k}, vcc")
        A(f"s_and_b32 s{sT0}, s{sWAVE}, 1")
        A(f"s_lshl_b32 s{sT0}, s{sT0}, 6")
        A(f"s_lshl_b32 s{sT1}, s{sFH2}, 4")
        A(f"s_add_u32 s{sT1}, s{sT1}, s{sT0}")
        A(f"v_and_b32 v{t2}, 15, v0")
        A(f"v_add_u32 v{t2}, s{sT1}, v{t2}")
        A(f"v_lshlrev_b32 v{t3}, 2, v{t2}")
        A(f"v_lshlrev_b32 v{t2}, 3, v{t2}")
        for i in range(2):
            sm, sq = SUM + 4 * i, SQ + 4 * i
            A(f"v_mul_f32 v{sm}, {fhex(1/640)}, v{sm}")
            A(f"v_mul_f32 v{sq}, {fhex(1/640)}, v{sq}")
            A(f"v_fma_f32 v{sq}, -v{sm}, v{sm}, v{sq}")
            A(f"v_max_f32 v{sq}, 0, v{sq}")
            A(f"v_add_f32 v{sq}, {fhex(1e-5)}, v{sq}")
            A(f"v_rsq_f32 v{sq}, v{sq}")
            A(f"v_cvt_pk_bf16_f32 v{sm+2}, -v{sm}, -v{sm}")
            A(f"v_and_b32 v{sm+3}, 0xffff0000, v{sm+2}")
            A(f"v_sub_f32 v{sm+3}, -v{sm}, v{sm+3}")
            A(f"v_cvt_pk_bf16_f32 v{sm+3}, v{sm+3}, 0")
        A("s_mov_b32 exec_lo, 0x00f0000f")
        A("s_mov_b32 exec_hi, 0xf0000f00")
        for i in range(2):
            A(f"ds_write_b64 v{t2}, {v(SUM+4*i+2,2)} offset:{STL + 128*i}")
            A(f"ds_write_b32 v{t3}, v{SQ+4*i} offset:{STL + 1024 + 64*i}")
        A("s_mov_b64 exec, -1")
        A(f"v_and_b32 v{t2}, 31, v0")
        A(f"v_add_u32 v{t2}, s{sT0}, v{t2}")
        if isV:
            A(f"v_lshrrev_b32 v{t3}, 5, v0")
            A(f"v_lshlrev_b32 v{t3}, 2, v{t3}")
            A(f"v_add_u32 v{t3}, s{sT0}, v{t3}")
            A(f"v_lshlrev_b32 v{t3}, 2, v{t3}")
        else:
            A(f"v_lshlrev_b32 v{t3}, 2, v{t2}")
        A(f"v_lshlrev_b32 v{t2}, 3, v{t2}")
        A(f"v_cmp_gt_u32 vcc, 32, v0")
        A("s_waitcnt lgkmcnt(0)")
        A("s_barrier")
        for i in range(2): A(f"ds_read_b64 {v(MB+2*i,2)}, v{t2} offset:{STL + 256*i}")
        A(f"ds_read_b64 {v(cs+4,2)}, v{t1} offset:{CSL}")
        if isV:
            for i in range(2):
                for aa in range(4): A(f"ds_read_b128 {v(vST+16*i+4*aa,4)}, v{t3} offset:{STL + 1024 + 128*i + 32*aa}")
        else:
            for i in range(2): A(f"ds_read_b32 v{RS+i}, v{t3} offset:{STL + 1024 + 128*i}")
        A(f"s_waitcnt lgkmcnt({8 if isV else 2})")
        for k in range(4): A(f"v_cndmask_b32 v{MB+k}, 0, v{MB+k}, vcc")
        for j in range(2):
            cf = v(cs + 2 + 2 * j, 2)
            for i in range(2):
                mb = v(MB + 2 * i, 2); acc = v(ACC + 32 * i + 16 * j, 16)
                if isV: A(f"v_mfma_f32_32x32x8_bf16 {acc}, {mb}, {cf}, {acc}")
                else:   A(f"v_mfma_f32_32x32x8_bf16 {acc}, {cf}, {mb}, {acc}")
        A("s_waitcnt lgkmcnt(0)")

    tr_addr(True, (f"s{sJ0}", f"s{sJ1}"))
    t0, t1, t2, tok16, half = vT, vT+1, vT+2, vT+4, vT+6
    A(f"s_cmp_ge_u32 s{sFG}, 5")
    A(f"s_cselect_b32 s{sT1}, 5, 0")
    A(f"s_cselect_b32 s{sBASE}, {hex(WS_K)}, {hex(WS_Q)}")
    A(f"s_cselect_b32 s{sQS}, 1.0, {fhex(QSCALE)}")
    A(f"s_sub_u32 s{sT1}, s{sFG}, s{sT1}")
    A(f"s_lshl_b32 s{sT1}, s{sT1}, 4")
    A(f"s_mul_i32 s{sT2}, s{sTILE}, 2560")
    A(f"s_add_u32 s{sBASE}, s{sBASE}, s{sT2}")
    A(f"v_lshrrev_b32 v{half}, 5, v0")
    A(f"v_add_u32 v{half}, s{sT1}, v{half}")
    A(f"v_and_b32 v{tok16}, 31, v0")
    A(f"v_lshlrev_b32 v{tok16}, 4, v{tok16}")
    A(f"s_mov_b32 s{sT2}, {PAIR_STRIDE - 2560}")
    for q in range(4):
        A(f"s_lshl_b32 s{sT0}, s{sJ0 + q//2}, 2")
        A(f"s_add_u32 s{sT0}, s{sT0}, {2*(q%2)}")
        A(f"v_add_u32 v{t0}, s{sT0}, v{half}")
        A(f"v_mul_u32_u24 v{t1}, 205, v{t0}")
        A(f"v_lshrrev_b32 v{t1}, 10, v{t1}")
        A(f"v_mul_lo_u32 v{t1}, s{sT2}, v{t1}")
        A(f"v_lshl_add_u32 v{t0}, v{t0}, 9, v{tok16}")
        A(f"v_add_u32 v{vADR+q}, v{t0}, v{t1}")
    if cfg.get("tlb", 0) & 1:
        A("s_mov_b32 exec_lo, 1")
        A("s_mov_b32 exec_hi, 1")
        for q in range(4): A(f"buffer_load_dword v{vT+7}, v{vADR+q}, s[{SWS}:{SWS+3}], s{sBASE} offen")
        A("s_mov_b64 exec, -1")
    mainloop(False)
    correction(False)
    for i in range(2): A(f"v_mul_f32 v{RS+i}, s{sQS}, v{RS+i}")
    for j in range(2):
        for i in range(2):
            for sg in range(2):
                r = ACC + 32 * i + 16 * j + 8 * sg
                for b in range(8): A(f"v_mul_f32 v{r+b}, v{RS+i}, v{r+b}")
                for b in range(4): A(f"v_cvt_pk_bf16_f32 v{r+b}, v{r+2*b}, v{r+2*b+1}")
                A(f"buffer_store_dwordx4 {v(r,4)}, v{vADR+2*j+sg}, s[{SWS}:{SWS+3}], s{sBASE} offen offset:{2560*i} {STF}")
    A("s_branch L_qkv_fin")

    A.label("L_qkv_V")
    tr_addr(False, (f"s{sJ0}", f"s{sJ1}"))
    A(f"s_mul_i32 s{sBASE}, s{sTILE}, 1280")
    A(f"s_add_u32 s{sBASE}, s{sBASE}, {hex(WS_V)}")
    A(f"s_sub_u32 s{sT1}, s{sFG}, 10")
    A(f"s_lshl_b32 s{sT1}, s{sT1}, 7")
    A(f"v_lshrrev_b32 v{half}, 5, v0")
    A(f"v_mul_u32_u24 v{half}, 320, v{half}")
    A(f"v_and_b32 v{tok16}, 31, v0")
    A(f"v_add_u32 v{tok16}, s{sT1}, v{tok16}")
    A(f"s_mov_b32 s{sT2}, {VHEAD_STRIDE - 320}")
    for j in range(2):
        A(f"s_lshl_b32 s{sT0}, s{sJ0 + j}, 5")
        A(f"v_add_u32 v{t0}, s{sT0}, v{tok16}")
        A(f"v_mul_u32_u24 v{t1}, 3277, v{t0}")
        A(f"v_lshrrev_b32 v{t1}, 16, v{t1}")
        A(f"v_mul_lo_u32 v{t1}, s{sT2}, v{t1}")
        A(f"v_lshl_add_u32 v{t0}, v{t0}, 4, v{half}")
        A(f"v_add_u32 v{vADR+j}, v{t0}, v{t1}")
    if cfg.get("tlb", 0) & 1:
        A("s_mov_b32 exec_lo, 0x80008001")
        A("s_mov_b32 exec_hi, 0")
        for q in range(2): A(f"buffer_load_dword v{vT+7}, v{vADR+q}, s[{SWS}:{SWS+3}], s{sBASE} offen")
        A("s_mov_b64 exec, -1")
    mainloop(True)
    correction(True)
    for j in range(2):
        for i in range(2):
            for mf in range(2):
                r = ACC + 32 * i + 16 * j + 8 * mf
                for b in range(8): A(f"v_mul_f32 v{r+b}, v{vST+16*i+8*mf+b}, v{r+b}")
                for b in range(4): A(f"v_cvt_pk_bf16_f32 v{r+b}, v{r+2*b}, v{r+2*b+1}")
                A(f"buffer_store_dwordx4 {v(r,4)}, v{vADR+j}, s[{SWS}:{SWS+3}], s{sBASE} offen offset:{1280*i + mf*640} {STF}")
    A.label("L_qkv_fin")
    stamp(A, cfg, 3)
    if cfg.get("qts"):
        for c in range(9): A(f"s_mov_b32 s{71+2*c}, s{70+2*c}")
        A("s_mov_b32 s68, 0")
        A("s_mov_b32 s69, 0")
        stamp_flush(A, cfg, 14, 17, SWS, sWAVE, 0)
        A("s_mov_b64 exec, -1")
    stamp_flush(A, cfg, 4, 0, SWS, sWAVE, 0)
    A("s_endpgm")

    A.label("L_qkv_loader")
    vWOFF, vXOFF = 1, 72
    sWLIM = 44
    if cfg.get("rot", 1):
        A(f"s_lshl_b32 s{sT0}, s{sT0}, 2")
        A(f"s_lshr_b32 s{sC0}, 0x30858530, s{sT0}")
        A(f"s_and_b32 s{sC0}, s{sC0}, 15")
    else:
        A(f"s_mov_b32 s{sC0}, 0")
    A(f"s_sub_u32 s{sWAVE}, s{sWAVE}, 4")
    A(f"v_and_b32 v{vT}, 15, v0")
    A(f"v_lshrrev_b32 v{vT+1}, 4, v0")
    A(f"v_lshlrev_b32 v{vT+2}, 2, v{vT+1}")
    A(f"v_xor_b32 v{vT+2}, v{vT+2}, v{vT}")
    A(f"v_mul_u32_u24 v{vWOFF}, 3840, v{vT+1}")
    A(f"v_lshl_add_u32 v{vWOFF}, v{vT+2}, 4, v{vWOFF}")
    A(f"v_and_b32 v{vT}, 7, v0")
    A(f"v_xor_b32 v{vT}, v{vT}, v{vT+1}")
    A(f"v_lshrrev_b32 v{vT+2}, 3, v0")
    A(f"v_mul_u32_u24 v{vT+2}, 1280, v{vT+2}")
    A(f"v_lshl_add_u32 v{vXOFF}, v{vT}, 4, v{vT+2}")
    A(f"v_xor_b32 v{vXOFF+1}, 64, v{vXOFF}")
    A(f"s_lshl_b32 s{sWO}, s{sFG}, 8")
    A(f"s_mul_i32 s{sT0}, s{sWAVE}, {16*3840}")
    A(f"s_add_u32 s{sWO}, s{sWO}, s{sT0}")
    A(f"s_add_u32 s{sWLIM}, s{sWO}, {640*3840}")
    A(f"s_mul_i32 s{sT0}, s{sC0}, {64*3840}")
    A(f"s_add_u32 s{sWO}, s{sWO}, s{sT0}")
    A(f"s_lshl_b32 s{sXO}, s{sTB}, 2")
    A(f"s_add_u32 s{sXO}, s{sXO}, s{sWAVE}")
    A(f"s_mul_i32 s{sXO}, s{sXO}, {32*1280}")
    A(f"s_lshl_b32 s{sT0}, s{sC0}, 7")
    A(f"s_add_u32 s{sXO}, s{sXO}, s{sT0}")
    A(f"s_lshl_b32 s{sM0}, s{sWAVE}, 12")
    A("s_waitcnt lgkmcnt(0)")
    srd(A, SW, 6, 640 * 1920 * 2)
    srd(A, SX, SX, X_BYTES)
    def dma_ops(c):
        ops = []
        for j in range(4):
            ops.append([f"s_add_u32 m0, s{sM0}, {(c%5)*SLOT + j*1024}", f"s_add_u32 s{sT0}, s{sWO}, {4*j*3840}",
                        f"buffer_load_dwordx4 v{vWOFF}, s[{SW}:{SW+3}], s{sT0} offen lds"])
            ops.append([f"s_add_u32 m0, s{sM0}, {(c%5)*SLOT + 16384 + j*1024}", f"s_add_u32 s{sT0}, s{sXO}, {8*j*1280}",
                        f"buffer_load_dwordx4 v{vXOFF+(j%2)}, s[{SX}:{SX+3}], s{sT0} offen lds"])
        ops[-1] += [f"s_add_u32 s{sWO}, s{sWO}, {64*3840}", f"s_add_u32 s{sXO}, s{sXO}, 128",
                    f"s_cmp_eq_u32 s{sWO}, s{sWLIM}", f"s_cselect_b32 s{sT0}, {640*3840}, 0", f"s_cselect_b32 s{sT1}, 1280, 0",
                    f"s_sub_u32 s{sWO}, s{sWO}, s{sT0}", f"s_sub_u32 s{sXO}, s{sXO}, s{sT1}"]
        return ops
    def emit(op):
        for x in op:
            if cfg.get("q_nodma") and x.startswith("buffer_"): continue
            A(x)
    IW = cfg.get("iw", 2)
    for c in range(IW):
        for op in dma_ops(c): emit(op)
    srd(A, SWS, 50, WS_SIZE)
    prep_setup()
    ops = [("w", c) for c in range(IW) for _ in range(8)]
    nw = IW
    def wait_for(tag):
        last = max(i for i, o in enumerate(ops) if o == tag)
        A(f"s_waitcnt vmcnt({len(ops) - 1 - last})")
    for c in range(10):
        wait_for(("w", c))
        A("s_barrier")
        for k in range(2 if c in cfg.get("extra_at", []) else 1):
            if nw < 10 and nw <= max(c + 3, 4) and (nw != 4 or c >= 2 or not cfg.get('k1prep', 0)):
                for op in dma_ops(nw): emit(op)
                ops += [("w", nw)] * 8; nw += 1
        if c == 7:
            for jj in range(5):
                A(f"s_add_u32 m0, s{sPLDS}, {jj*1024}")
                A(f"buffer_load_dwordx4 v{VO+jj}, s[{SP}:{SP+3}], s{sPSRC} offen lds")
            ops += [("p", 0)] * 5
    if cfg.get("prep_late", 0): A("s_barrier")
    A("s_waitcnt vmcnt(0)")
    for f in range(5):
        for u in range(2):
            A(f"ds_read_b64_tr_b16 {v(PF+4*f+2*u,2)}, v{VO+5+(f==4)} offset:{4*u*160 + tile_col_imm(f)}")
    A("s_waitcnt lgkmcnt(0)")
    for f in range(5):
        A(f"s_add_u32 s{sT0}, s{sPDST}, {f*1024}")
        A(f"buffer_store_dwordx4 {v(PF+4*f,4)}, v{L16}, s[{SWS}:{SWS+3}], s{sT0} offen {STF}")
    A("s_endpgm")

    A.label("L_qkv_helper")
    XD = 16
    if cfg.get("ctouch", 1):
        code_touch_setup(A, 46, "qkv_kernel", True)
        A(f"v_lshlrev_b32 v{vT+1}, 7, v0")
        A(f"v_min_u32 v{vT+1}, L_code_end-qkv_kernel-4, v{vT+1}")
        A(f"global_load_dword v{vT+7}, v{vT+1}, s[46:47]")
    A(f"v_and_b32 v0, 63, v0")
    A("s_waitcnt lgkmcnt(0)")
    srd(A, SWS, 50, WS_SIZE)
    if cfg.get("ptouch", 1):
        srd(A, SP, 34, 1536 * 640 * 2)
        srd(A, SW, 32, 640 * 640 * 2)
        A(f"s_lshl_b32 s{sT0}, s2, 3")
        A(f"s_add_u32 s{sT0}, s{sT0}, s{sWAVE}")
        A(f"s_mul_i32 s{sT1}, s{sT0}, {50*128}")
        A(f"s_mul_i32 s{sT0}, s{sT0}, {120*128}")
        A(f"v_lshlrev_b32 v1, 7, v0")
        A("s_bfm_b64 exec, 60, 0")
        A(f"buffer_load_dword v2, v1, s[{SP}:{SP+3}], s{sT0} offen")
        A(f"s_add_u32 s{sT0}, s{sT0}, {60*128}")
        A(f"buffer_load_dword v2, v1, s[{SP}:{SP+3}], s{sT0} offen")
        A("s_bfm_b64 exec, 50, 0")
        A(f"buffer_load_dword v2, v1, s[{SW}:{SW+3}], s{sT1} offen")
        A("s_mov_b64 exec, -1")
    stamp(A, cfg, 1)
    stamp(A, cfg, 2)
    A(f"s_lshl_b32 s{sT0}, s{sWAVE}, 10")
    A(f"s_add_u32 s{sT0}, s{sT0}, {hex(WS_SYNC)}")
    A(f"s_cmp_eq_u32 s2, 0")
    A(f"s_cselect_b32 s{sT0}, s{sT0}, {hex(WS_SIZE)}")
    for i in range(4): A(f"v_mov_b32 v{XD+i}, 0")
    A(f"v_lshlrev_b32 v1, 4, v0")
    A(f"buffer_store_dwordx4 {v(XD,4)}, v1, s[{SWS}:{SWS+3}], s{sT0} offen")
    stamp(A, cfg, 3)
    stamp_flush(A, cfg, 4, 0, SWS, sWAVE, 0)
    A.label("L_qkv_end")
    A("s_endpgm")
    return dict(name=name, grid=256, block=512, lds=163840, desc=kernel_desc(name, 216, 216))
```

```python
from common import *

GU_SLOT = 24608
GU_UP = 12288 + 32
GU_MISC = 6 * GU_SLOT
NWS, H_BASE, NHS = 4, 4 * GU_SLOT, 3
PART_BASE = 3 * GU_SLOT
KV_SLOT = 20480
NKV = 4
KV_BASE = 163840 - NKV * KV_SLOT
NV = 112

class R:
    S = (16, 32); O = 48; P = 64; K1 = 72; K2 = 76; V1 = 80; V2 = 84; Q1 = 88; Q2 = 92
    KA = 1; K2A = 2; VA = 3; L16 = 4; F2S = 5; L4 = 7; T = 8; TCH = 94
    GV = 96
    XRES = 100

SX, SWS, SG_, SU, SO = 4, 8, 12, 16, 20
sWAVE, sG, sM, sT0, sT1, sT2, sC, sDELTA, sSLOT, sQT = 24, 25, 26, 27, 28, 29, 30, 31, 32, 33
sVMASK = 34
sKSRC, sVSRC, sKBASE, sVBASE, sFG, sTOK16, sJ, sFAST, sWOSRC, sWDSRC, sGSRC, sGM0, sFLAG, sB, sXCC, sLW = 36, 37, 38, 39, 40, 41, 42, 43, 44, 45, 46, 47, 48, 49, 50, 51
sTMP = 52
SWO_, SWD_ = 92, 96
sSTG, sWDRAW, sTO = 86, 87, 90

def WD(step, f, n=4):
    if step == 7: return v(40 + 4 * f, n)
    return a({0: 100, 1: 120, 2: 80, 3: 60, 4: 40, 5: 20, 6: 0}[step] + 4 * f, n)
def A_RES(i): return 140 + i if i < 4 else 56 + (i - 4)

def set_shift(A, m):
    t0, t1, t2 = m + 1, m + 2, m + 3
    A(f"v_cvt_pk_bf16_f32 v{t0}, -v{m}, -v{m}")
    A(f"v_and_b32 v{t0}, 0xffff0000, v{t0}")
    A(f"v_sub_f32 v{t1}, -v{m}, v{t0}")
    A(f"v_cvt_pk_bf16_f32 v{t2}, v{t0}, v{t1}")
    A(f"v_and_b32 v{t0}, 0xffff0000, v{t2}")
    A(f"v_sub_f32 v{t1}, v{t1}, v{t0}")
    A(f"v_cvt_pk_bf16_f32 v{t1}, v{t1}, 0")
    A(f"v_cmp_gt_u32 vcc, 32, v0")
    A(f"v_cndmask_b32 v{R.Q2+1}, v{t1}, v{t2}, vcc")

def max16(A, dst, S, first):
    if first:
        A(f"v_max3_f32 v{dst}, v{S}, v{S+1}, v{S+2}")
        A(f"v_max_f32 v{dst}, v{dst}, v{S+3}")
        rng = range(4, 16, 2)
    else:
        rng = range(0, 16, 2)
    for i in rng: A(f"v_max3_f32 v{dst}, v{dst}, v{S+i}, v{S+i+1}")

def xhalf_max(A, m, t):
    A(f"v_mov_b32 v{t}, v{m}")
    A(f"v_permlane32_swap_b32 v{m}, v{t}")
    A(f"v_max_f32 v{m}, v{m}, v{t}")

def stores(A, lst, data=True):
    if data and CFG.get("wt", 1):
        for x in lst: A(x + (" sc1" if x.startswith("buffer_") else ""))
        return
    L1, L2 = A.newlabel("stf"), A.newlabel("ste")
    A(f"s_cmp_lg_u32 s{sFAST}, 0")
    A(f"s_cbranch_scc1 {L1}")
    for x in lst: A(x + (" sc1" if x.startswith("buffer_") else ""))
    A(f"s_branch {L2}")
    A.label(L1)
    for x in lst: A(x)
    A.label(L2)

def sync(A, idx, poller, half, nleft, between=None):
    T = R.T
    A(f"s_waitcnt vmcnt({nleft})")
    A("s_barrier")
    L, LP = A.newlabel("sy"), A.newlabel("poll")
    A(f"s_cmp_lg_u32 s{sWAVE}, {poller}")
    if between is not None:
        LB = A.newlabel("btw")
        A(f"s_cbranch_scc1 {LB}")
    else:
        A(f"s_cbranch_scc1 {L}")
    A(f"s_lshl_b32 s{sT0}, s{sM}, 2")
    A(f"s_add_u32 s{sT0}, s{sT0}, s{sFLAG}")
    A(f"v_mov_b32 v{T}, 1")
    A(f"v_mov_b32 v{T+1}, 0")
    A("s_mov_b64 exec, 1")
    stores(A, [f"buffer_store_dword v{T}, v{T+1}, s[{SWS}:{SWS+3}], s{sT0} offen offset:{idx*128}"], data=False)
    if half:
        A(f"s_and_b32 s{sT0}, s{sM}, 2")
        A(f"s_lshl_b32 s{sT0}, 0x33333333, s{sT0}")
        A(f"s_mov_b32 exec_lo, s{sT0}")
    else:
        A("s_mov_b32 exec_lo, -1")
    A(f"v_lshlrev_b32 v{T+1}, 2, v0")
    A(f"s_mov_b32 s{sT1}, 0")
    A.label(LP)
    A(f"buffer_load_dword v{T}, v{T+1}, s[{SWS}:{SWS+3}], s{sFLAG} offen offset:{idx*128} sc1")
    A(f"s_add_u32 s{sT1}, s{sT1}, 1")
    A("s_waitcnt vmcnt(0)")
    A(f"v_cmp_eq_u32 vcc, 0, v{T}")
    A(f"s_cmp_lt_u32 s{sT1}, 0x40000")
    A(f"s_cselect_b64 vcc, vcc, 0")
    A(f"s_cbranch_vccnz {LP}")
    A("s_mov_b64 exec, -1")
    if between is not None:
        A("s_barrier")
        between()
        A(f"s_branch {L}")
        A.label(LB)
        between()
        A("s_barrier")
        A.label(L)
    else:
        A.label(L)
        A("s_barrier")

def addr_rowmajor(A, vp, vs, T):
    A(f"v_and_b32 v{T}, 15, v0")
    A(f"v_lshrrev_b32 v{T+1}, 4, v0")
    A(f"v_mul_u32_u24 v{T}, 1280, v{T}")
    A(f"s_add_u32 s{sT0}, s{sLW}, s{sTOK16}")
    A(f"s_mul_i32 s{sT0}, s{sT0}, {16*1280}")
    A(f"s_mul_i32 s{sT1}, s{sFG}, 160")
    A(f"s_add_u32 s{sT0}, s{sT0}, s{sT1}")
    A(f"v_add_u32 v{T}, s{sT0}, v{T}")
    A(f"v_lshl_add_u32 v{vp}, v{T+1}, 4, v{T}")
    A(f"v_lshl_add_u32 v{vs}, v{T+1}, 3, v{T}")
    A(f"v_add_u32 v{vs}, 128, v{vs}")
    A(f"s_and_b32 s{sT0}, s{sWAVE}, 4")
    A(f"s_lshl_b32 s{sT0}, s{sT0}, 4")
    A(f"v_add_u32 v{vp}, s{sT0}, v{vp}")

def reduce_addr(A, P, base, RA):
    A(f"s_mul_i32 s{sT0}, s{sLW}, 5120")
    A(f"s_and_b32 s{sT1}, s{sWAVE}, 4")
    A(f"s_lshl_b32 s{sT1}, s{sT1}, 9")
    A(f"s_add_u32 s{sT0}, s{sT0}, s{sT1}")
    A(f"s_add_u32 s{sT0}, s{sT0}, {base}")
    A(f"v_add_u32 v{RA}, s{sT0}, v{R.L16}")
    for k in range(1, (P + 2) // 3): A(f"v_add_u32 v{RA+k}, {3*20480*k}, v{RA}")

def reduce_sum(A, P, D, RA, n, mid=None):
    W = 4 * n
    for p in range(P):
        for e in range(n):
            A(f"ds_read_b128 {v(D+W*p+4*e,4)}, v{RA+p//3} offset:{(p%3)*20480 + (e*1024 if e < 2 else 4096)}")
    if mid: mid()
    for p in range(1, P):
        A(f"s_waitcnt lgkmcnt({min(15, n*(P-1-p))})")
        for i in range(0, W, 2): A(f"v_pk_add_f32 {v(D+i,2)}, {v(D+i,2)}, {v(D+W*p+i,2)}")

CFG = {}
def gu_dma_ops(c):
    ops = []
    for isup in range(2):
        sr = SU if isup else SG_
        for jj in range(3):
            ops.append([f"s_add_u32 m0, s{sGM0}, {(c%NWS)*GU_SLOT + isup*GU_UP + jj*1024}",
                        f"s_add_u32 s{sT0}, s{sGSRC}, {(3 if CFG.get('gu_same') else c)*64*3072}",
                        f"buffer_load_dwordx4 v{R.GV+jj}, s[{sr}:{sr+3}], s{sT0} offen lds"])
    return ops
def load_wd_ops(step):
    return [[f"s_add_u32 s{sT0}, s{sWDSRC}, {step*5120 + f*1024}",
             f"buffer_load_dwordx4 {WD(step, f)}, v{R.L16}, s[{SWS}:{SWS+3}], s{sT0} offen"] for f in range(5)]
def gu_dma(A, c, rows):
    A(f"s_add_u32 s{sT0}, s{sGSRC}, {c*64*3072}")
    for isup in range(2):
        sr = SU if isup else SG_
        for jj in range(3):
            A(f"s_add_u32 m0, s{sGM0}, {(c%NWS)*GU_SLOT + isup*GU_UP + jj*1024}")
            A(f"buffer_load_dwordx4 v{R.GV+jj}, s[{sr}:{sr+3}], s{sT0} offen lds")

def load_wd(A, step):
    for f in range(5):
        if f % 4 == 0: A(f"s_add_u32 s{sT0}, s{sWDSRC}, {step*5120 + f*1024}")
        A(f"buffer_load_dwordx4 {WD(step, f)}, v{R.L16}, s[{SWS}:{SWS+3}], s{sT0} offen offset:{(f%4)*1024}")

def cfg_touch_plan(cfg, gu_touch, out_touch, wd_touch, extra):
    plan = cfg.get("tplan", [[20,"gw"]])
    out = []
    for t, w in plan:
        if w in extra: out.append((t, extra[w]))
        elif w[0] == "g": out.append((t, gu_touch(int(w[1]))))
        else: out.append((t, {"o": out_touch(WS_O, 1280), "h": out_touch(WS_H, 1280), "hid": out_touch(WS_HID, 3072), "st": out_touch(WS_ST2, 128), "wd": wd_touch,
                                 "hid0": out_touch(WS_HID, 3072, 0, 8), "hid1": out_touch(WS_HID, 3072, 8, 8), "hid2": out_touch(WS_HID, 3072, 16, 8)}[w]))
    return out

def gen_main(A, cfg):
    name = "main_kernel"
    CFG.update(cfg)
    cfg = dict(cfg); cfg["_k2"] = 1
    kstart(A, name)
    T = R.T
    A("s_cmp_ge_u32 s2, 256")
    A("s_cbranch_scc1 L_end")
    A(f"s_load_dwordx2 s[{SWS}:{SWS+1}], s[0:1], 72")
    A(f"s_load_dwordx2 s[{SX}:{SX+1}], s[0:1], 0")
    A(f"s_load_dwordx2 s[{SG_}:{SG_+1}], s[0:1], 32")
    A(f"s_load_dwordx2 s[{SU}:{SU+1}], s[0:1], 40")
    A(f"s_load_dwordx2 s[{SO}:{SO+1}], s[0:1], 56")
    stamp(A, cfg, 0)
    A(f"v_lshrrev_b32 v{T}, 6, v0")
    A(f"v_and_b32 v0, 63, v0")
    A(f"v_readfirstlane_b32 s{sWAVE}, v{T}")
    A(f"s_and_b32 s{sG}, s2, 7")
    A(f"s_lshr_b32 s{sM}, s2, 3")
    A(f"s_lshr_b32 s{sT0}, s{sM}, 1")
    A(f"s_mul_i32 s{sKBASE}, s{sT0}, {PAIR_STRIDE}")
    A(f"s_mul_i32 s{sVBASE}, s{sM}, {VHEAD_STRIDE}")
    A(f"s_add_u32 s{sVBASE}, s{sVBASE}, {hex(WS_V)}")
    A(f"s_lshl_b32 s{sQT}, s{sG}, 3")
    A(f"s_add_u32 s{sQT}, s{sQT}, s{sWAVE}")
    A(f"s_and_b32 s{sT1}, s{sM}, 1")
    A(f"v_lshlrev_b32 v{R.L16}, 4, v0")
    A(f"s_mul_i32 s{sT2}, s{sT1}, 1536")
    A(f"v_add_u32 v{R.F2S+1}, s{sT2}, v{R.L16}")
    A(f"v_and_b32 v{T}, 31, v0")
    A(f"v_lshrrev_b32 v{T+1}, 5, v0")
    A(f"v_lshlrev_b32 v{R.F2S}, 4, v{T}")
    A(f"v_lshl_add_u32 v{R.F2S}, v{T+1}, 2, v{R.F2S}")
    A(f"s_lshl_b32 s{sT1}, s{sT1}, 3")
    A(f"s_add_u32 s{sT1}, s{sT1}, 1024")
    A(f"v_add_u32 v{R.F2S}, s{sT1}, v{R.F2S}")
    A(f"s_mul_i32 s{sKSRC}, s{sWAVE}, 2560")
    A(f"s_add_u32 s{sKSRC}, s{sKSRC}, s{sKBASE}")
    A(f"s_mul_i32 s{sVSRC}, s{sWAVE}, 1280")
    A(f"s_mul_i32 s{sSLOT}, s{sWAVE}, 2560")
    A(f"v_lshlrev_b32 v{R.L4}, 2, v0")
    A(f"s_add_u32 s{sVSRC}, s{sVSRC}, s{sVBASE}")
    A("s_waitcnt lgkmcnt(0)")
    srd(A, SWS, SWS, WS_SIZE)
    KVF = cfg.get("kvflag", "")
    def kv_ops(c):
        lds = KV_BASE + (c % NKV) * KV_SLOT
        return [
            [f"s_add_u32 m0, s{sSLOT}, {lds}", f"s_add_u32 s{sT0}, s{sKSRC}, {c*8*2560}",
             f"buffer_load_dwordx4 v{R.F2S+1}, s[{SWS}:{SWS+3}], s{sT0} offen {KVF} lds"],
            [f"s_add_u32 m0, s{sSLOT}, {lds+1024}", f"s_add_u32 s{sT0}, s{sKSRC}, {c*8*2560}",
             f"buffer_load_dword v{R.F2S}, s[{SWS}:{SWS+3}], s{sT0} offen {KVF} lds"],
            [f"s_add_u32 m0, s{sSLOT}, {lds+1280}", f"s_add_u32 s{sT0}, s{sVSRC}, {c*8*1280}",
             f"buffer_load_dwordx4 v{R.L16}, s[{SWS}:{SWS+3}], s{sT0} offen {KVF} lds"],
            [f"s_add_u32 m0, s{sSLOT}, {lds+2304}", f"s_add_u32 s{sT0}, s{sVSRC}, {c*8*1280+1024}",
             f"buffer_load_dword v{R.L4}, s[{SWS}:{SWS+3}], s{sT0} offen {KVF} lds"]]
    def emit(op):
        for x in op: A(x)
    A(f"s_mul_i32 s{sT2}, s{sQT}, 2560")
    A(f"s_add_u32 s{sT2}, s{sT2}, s{sKBASE}")
    A(f"s_add_u32 s{sT2}, s{sT2}, {hex(WS_Q)}")
    A(f"buffer_load_dwordx4 {v(R.Q1,4)}, v{R.F2S+1}, s[{SWS}:{SWS+3}], s{sT2} offen")
    A(f"buffer_load_dword v{R.Q2}, v{R.F2S}, s[{SWS}:{SWS+3}], s{sT2} offen")
    for op in kv_ops(0): emit(op)
    A(f"s_lshl_b32 s{sFLAG}, s{sG}, 10")
    A(f"s_add_u32 s{sFLAG}, s{sFLAG}, {hex(WS_SYNC)}")
    A(f"s_getreg_b32 s{sXCC}, hwreg(HW_REG_XCC_ID, 0, 3)")
    A(f"s_mul_i32 s{sXCC}, s{sXCC}, 6")
    A(f"s_lshr_b32 s{sFG}, s{sM}, 2")
    A(f"s_and_b32 s{sT0}, s{sM}, 3")
    A(f"s_lshl_b32 s{sTOK16}, s{sG}, 4")
    A(f"s_lshl_b32 s{sT0}, s{sT0}, 2")
    A(f"s_add_u32 s{sTOK16}, s{sTOK16}, s{sT0}")
    A(f"s_lshl_b32 s{sJ}, s{sFG}, 1")
    A(f"s_and_b32 s{sT0}, s{sM}, 1")
    A(f"s_add_u32 s{sJ}, s{sJ}, s{sT0}")
    A(f"s_and_b32 s{sLW}, s{sWAVE}, 3")
    A(f"s_mul_i32 s{sWOSRC}, s{sFG}, {20*5120}")
    A(f"s_mul_i32 s{sT0}, s{sLW}, {5*5120}")
    A(f"s_add_u32 s{sWOSRC}, s{sWOSRC}, s{sT0}")
    A(f"s_add_u32 s{sWOSRC}, s{sWOSRC}, {hex(WS_WO)}")
    A(f"s_mul_i32 s{sWDSRC}, s{sFG}, {48*5120}")
    A(f"s_mul_i32 s{sT0}, s{sLW}, 12")
    A(f"s_and_b32 s{sT1}, s{sWAVE}, 4")
    A(f"s_add_u32 s{sWDRAW}, s{sT0}, s{sT1}")
    A(f"s_mul_i32 s{sT0}, s{sWDRAW}, 5120")
    A(f"s_add_u32 s{sWDSRC}, s{sWDSRC}, s{sT0}")
    A(f"s_add_u32 s{sWDSRC}, s{sWDSRC}, {hex(WS_WD)}")
    A(f"s_mul_i32 s{sGSRC}, s{sLW}, {16*3072}")
    A(f"s_mul_i32 s{sT0}, s{sJ}, 192")
    A(f"s_add_u32 s{sGSRC}, s{sGSRC}, s{sT0}")
    A(f"s_mul_i32 s{sGM0}, s{sLW}, 3072")
    srd(A, SX, SX, X_BYTES); srd(A, SG_, SG_, 640 * 1536 * 2); srd(A, SU, SU, 640 * 1536 * 2); srd(A, SO, SO, X_BYTES)
    A(f"v_add_u32 v{R.KA}, {KV_BASE}, v{R.L16}")
    A(f"v_add_u32 v{R.K2A}, {KV_BASE + 1024}, v{R.L4}")
    r, kh, aa, hf, b, i_, d1, d2 = T, T+1, T+2, T+3, T+4, T+5, T+6, T+7
    A(f"v_lshrrev_b32 v{aa}, 3, v{r}")
    A(f"v_bfe_u32 v{hf}, v{r}, 2, 1")
    A(f"v_and_b32 v{b}, 3, v{r}")
    A(f"v_lshl_add_u32 v{i_}, v{aa}, 2, v{b}")
    A(f"v_lshl_add_u32 v{d1}, v{hf}, 3, v{i_}")
    A(f"v_lshl_add_u32 v{d2}, v{hf}, 1, v{i_}")
    A(f"v_add_u32 v{d2}, 8, v{d2}")
    A(f"v_cmp_gt_u32 vcc, 8, v{i_}")
    A(f"v_cndmask_b32 v{d1}, v{d2}, v{d1}, vcc")
    A(f"v_min_u32 v{d1}, 19, v{d1}")
    A(f"v_mul_u32_u24 v{R.VA}, 320, v{kh}")
    A(f"v_lshl_add_u32 v{R.VA}, v{d1}, 4, v{R.VA}")
    A(f"v_add_u32 v{R.VA}, {KV_BASE + 1280}, v{R.VA}")
    A(f"v_cmp_eq_u32 vcc, 10, v{i_}")
    A(f"v_mov_b32 v{d2}, 0x3f803f80")
    for k in range(8): A(f"v_cndmask_b32 v{R.V1+k}, 0, v{d2}, vcc")
    A(f"v_cmp_gt_u32 vcc, 32, v0")
    A(f"v_mov_b32 v{d1}, 0x3f80")
    A(f"v_cndmask_b32 v{R.K2+1}, v{d1}, v{d2}, vcc")
    A(f"v_mov_b32 v{R.Q2+1}, 0")
    for jj in range(3):
        A(f"v_add_u32 v{T}, {64*jj}, v0")
        A(f"v_mul_u32_u24 v{T+1}, 5462, v{T}")
        A(f"v_lshrrev_b32 v{T+1}, 16, v{T+1}")
        A(f"v_mul_u32_u24 v{R.GV+jj}, {3072-192}, v{T+1}")
        A(f"v_lshl_add_u32 v{R.GV+jj}, v{T}, 4, v{R.GV+jj}")
    A(f"s_mov_b32 s{sVMASK}, 0x0033ffff")
    A(f"s_mov_b32 s{sVMASK+1}, 0x0033ffff")
    S0 = R.S[0]
    X = R.S[1]
    addr_rowmajor(A, R.XRES + 6, R.XRES + 7, X)
    A(f"v_lshlrev_b32 v{R.TCH}, 7, v0")
    A(f"v_mov_b32 v{R.TCH+1}, 0")
    A(f"s_lshl_b64 s[{sTMP}:{sTMP+1}], 1, s{sXCC}")
    A(f"v_mov_b32 v{R.XRES+8}, s{sTMP}")
    A(f"v_mov_b32 v{R.XRES+9}, s{sTMP+1}")
    A(f"s_cmp_ge_u32 s{sWAVE}, 4")
    A(f"s_cselect_b32 s{sTMP}, s{SU}, s{SG_}")
    A(f"s_cselect_b32 s{sTMP+1}, s{SU+1}, s{SG_+1}")
    A(f"s_mov_b32 s{sTMP+2}, {hex(640*1536*2)}")
    A(f"s_mov_b32 s{sTMP+3}, 0x20000")
    A(f"s_cselect_b32 s{sB}, {GU_UP}, 0")
    A(f"s_add_u32 s{sB}, s{sB}, s{sGM0}")
    A(f"s_and_b32 s{sC}, s{sM}, 3")
    A(f"s_lshl_b32 s{sDELTA}, s{sM}, 2")
    A(f"s_add_u32 s{sDELTA}, s{sDELTA}, s{sLW}")
    A(f"s_mul_i32 s{sDELTA}, s{sDELTA}, {12*128}")
    A(f"s_lshl_b32 s{sTO}, s{sG}, 5")
    A(f"s_add_u32 s{sTO}, s{sTO}, s{sM}")
    A(f"s_lshl_b32 s{sTO}, s{sTO}, 3")
    A(f"s_add_u32 s{sTO}, s{sTO}, s{sWAVE}")
    if cfg.get("ctouch", 1):
        code_touch_setup(A, 88, "L_attn_code")
        A(f"s_and_b32 s{sT0}, s{sTO}, 255")
        A(f"s_lshl_b32 s{sT0}, s{sT0}, 7")
        A(f"v_lshlrev_b32 v{X}, 15, v0")
        A(f"v_add_u32 v{X}, s{sT0}, v{X}")
        A(f"v_min_u32 v{R.GV+3}, L_code_end-L_attn_code-4, v{X}")

    JUNK = R.XRES + 11
    def gu_op(c, jj):
        return [f"s_add_u32 m0, s{sB}, {c*GU_SLOT + jj*1024}", f"s_add_u32 s{sT0}, s{sGSRC}, {c*64*3072}",
                f"buffer_load_dwordx4 v{R.GV+jj}, s[{sTMP}:{sTMP+3}], s{sT0} offen lds"]
    def touch(n, srd_, pre):
        return pre + [f"s_bfm_b64 exec, {n}, 0", f"buffer_load_dword v{JUNK}, v{R.TCH}, s[{srd_}:{srd_+3}], s{sT0} offen", "s_mov_b64 exec, -1"]
    def gu_touch(c): return touch(12, sTMP, [f"s_add_u32 s{sT0}, s{sDELTA}, {c*64*3072}"])
    def out_touch(base, nbytes, l0=0, n=None):
        return touch(n or nbytes // 128, SWS, [f"s_mul_i32 s{sT0}, s{sTO}, {nbytes}", f"s_add_u32 s{sT0}, s{sT0}, {hex(base + l0*128)}",
                                          f"s_cmp_lg_u32 s{sFAST}, 0", f"s_cselect_b32 s{sT0}, s{sT0}, {hex(WS_SIZE)}"])
    sched = {t: [] for t in range(64)}
    trs = {}
    misc = {}
    vm = []
    def put(t, tag, op):
        while len(sched[t]) >= 3: t += 1
        sched[t].append((tag, op)); return t
    for i, op in enumerate(kv_ops(1)): put(i // 2, "kv1", op)
    for i, op in enumerate(kv_ops(2)): put(2 + i // 2, "kv2", op)
    for c in range(3, 8):
        for i, op in enumerate(kv_ops(c)): put(8 * (c - 3) + 6 + i // 2, f"kv{c}", op)
    pf = []
    def frag_op(src, i, dst):
        pre = [f"s_add_u32 s{sSTG}, s{src}, {i*1024}"] if i % 4 == 0 else []
        return pre + [f"buffer_load_dwordx4 {a(dst+4*i,4)}, v{R.L16}, s[{SWS}:{SWS+3}], s{sSTG} offen offset:{(i%4)*1024}"]
    for i in range(10): pf.append(frag_op(sWDSRC, i, 100))
    for i in range(25): pf.append(frag_op(sWOSRC, i, 0))
    for c in range(3):
        for jj in range(3): pf.append(gu_op(c, jj))
    if cfg.get("nopf"): pf = []
    free = [t for t in range(cfg.get('pf0', 6), 64) if t % 8 < cfg.get('pfm', 6) or t > 40]
    num, den = cfg.get("pf_rate", [1, 1])
    for i, op in enumerate(pf): put(free[i * den // num], "pf", op)
    put(0, "at", ["s_cmp_eq_u32 s%d, 0" % sWAVE, f"s_cselect_b32 s{sT0}, s{sFLAG}, {hex(WS_SIZE)}", "s_mov_b64 exec, 1",
                  f"buffer_atomic_add_x2 {v(R.XRES+8,2)}, v{R.TCH+1}, s[{SWS}:{SWS+3}], s{sT0} offen offset:512 sc1", "s_mov_b64 exec, -1"])
    put(12, "pf", [f"buffer_load_dwordx4 {v(R.XRES,4)}, v{R.XRES+6}, s[{SX}:{SX+3}], 0 offen"])
    put(16, "pf", [f"buffer_load_dwordx2 {v(R.XRES+4,2)}, v{R.XRES+7}, s[{SX}:{SX+3}], 0 offen"])
    put(cfg.get("xcc_ld", 10), "xcc", [f"buffer_load_dwordx2 {v(R.XRES+8,2)}, v{R.TCH+1}, s[{SWS}:{SWS+3}], s{sFLAG} offen offset:512 sc1"])
    misc[cfg.get('xcc_rd', 23)] = ("xcc", [f"v_readfirstlane_b32 s{sFAST-1}, v{R.XRES+8}" , f"v_readfirstlane_b32 s{sFAST}, v{R.XRES+9}"])
    gwarm = touch(15, sTMP, [f"s_lshr_b32 s{sT0}, s{sTO}, 3", f"s_lshl_b32 s{sT0}, s{sT0}, 2", f"s_add_u32 s{sT0}, s{sT0}, s{sLW}", f"s_mul_i32 s{sT0}, s{sT0}, {15*128}"])
    if cfg.get("gwarm_at", -1) >= 0: put(cfg.get("gwarm_at", -1), "pf", gwarm)
    wd01_touch = touch(20, SWS, [f"s_mul_i32 s{sT0}, s{sC}, 2560", f"s_add_u32 s{sT0}, s{sT0}, s{sWDSRC}"])
    wo_touch = touch(25, SWS, [f"s_lshr_b32 s{sT0}, s{sWAVE}, 2", f"s_lshl_b32 s{sT1}, s{sC}, 1", f"s_add_u32 s{sT0}, s{sT0}, s{sT1}",
                               f"s_mul_i32 s{sT0}, s{sT0}, 3200", f"s_add_u32 s{sT0}, s{sT0}, s{sWOSRC}"])
    gw2 = touch(6, sTMP, [f"s_lshr_b32 s{sT0}, s{sTO}, 3", f"s_lshl_b32 s{sT0}, s{sT0}, 2", f"s_add_u32 s{sT0}, s{sT0}, s{sLW}", f"s_mul_i32 s{sT0}, s{sT0}, {6*128}",
                          f"s_add_u32 s{sT0}, s{sT0}, {6*64*3072}"])
    def gwp(k, n):
        return touch(n, sTMP, [f"s_lshr_b32 s{sT0}, s{sTO}, 3", f"s_lshl_b32 s{sT0}, s{sT0}, 2", f"s_add_u32 s{sT0}, s{sT0}, s{sLW}", f"s_mul_i32 s{sT0}, s{sT0}, {n*128}",
                               f"s_add_u32 s{sT0}, s{sT0}, {k*n*1024*128}"])
    extra = {"p0": gwp(0, 5), "p1": gwp(1, 5), "p2": gwp(2, 5), "q0": gwp(0, 3), "q1": gwp(1, 3), "q2": gwp(2, 3), "q3": gwp(3, 3), "q4": gwp(4, 3), "wd01": wd01_touch, "wo": wo_touch, "gw2": gw2, "gw": gwarm}
    wd_touch = touch(40, SWS, [f"s_mul_i32 s{sT0}, s{sC}, 5120", f"s_add_u32 s{sT0}, s{sT0}, s{sWDSRC}", f"s_add_u32 s{sT0}, s{sT0}, {2*5120}"])
    for t, op in cfg_touch_plan(cfg, gu_touch, out_touch, wd_touch, extra): put(t, "pf", op)
    HIDT = None
    if cfg.get("tlb", 0) & 2:
        put(20, "pf", ["s_mov_b64 exec, 1", f"buffer_load_dword v{JUNK}, v{R.XRES+6}, s[{SO}:{SO+3}], 0 offen", "s_mov_b64 exec, -1"])
    if cfg.get("ctouch", 1):
        for t in cfg.get("ct_at", [1, 52]):
            put(t, "pf", ["s_mov_b64 exec, 3", f"global_load_dword v{JUNK}, v{R.GV+3}, s[88:89]", "s_mov_b64 exec, -1"])

    A("s_waitcnt vmcnt(0)")
    A("s_barrier")
    A(f"ds_read_b128 {v(R.K1,4)}, v{R.KA}")
    A(f"ds_read_b32 v{R.K2}, v{R.K2A}")
    A("s_waitcnt lgkmcnt(0)")
    A(f"v_mfma_f32_32x32x16_bf16 {v(S0,16)}, {v(R.K1,4)}, {v(R.Q1,4)}, 0")
    A(f"v_mfma_f32_32x32x8_bf16 {v(S0,16)}, {v(R.K2,2)}, {v(R.Q2,2)}, {v(S0,16)}")
    max16(A, R.P, S0, True)
    xhalf_max(A, R.P, R.P+1)
    set_shift(A, R.P)
    A(f"v_mfma_f32_32x32x16_bf16 {v(S0,16)}, {v(R.K1,4)}, {v(R.Q1,4)}, 0")
    A(f"v_mfma_f32_32x32x8_bf16 {v(S0,16)}, {v(R.K2,2)}, {v(R.Q2,2)}, {v(S0,16)}")
    def toff(t): return ((t // 8) % 2) * KV_SLOT + (t % 8) * 2560
    def tdelta(t): return (2 * KV_SLOT if (t // 8) % 4 == 2 else -2 * KV_SLOT) & 0xffffffff if t % 16 == 0 else 0
    A(f"ds_read_b128 {v(R.K1,4)}, v{R.KA} offset:{toff(1)}")
    A(f"ds_read_b32 v{R.K2}, v{R.K2A} offset:{toff(1)}")
    A(f"s_mov_b64 exec, s[{sVMASK}:{sVMASK+1}]")
    A(f"ds_read_b128 {v(R.V1,4)}, v{R.VA}")
    A("s_mov_b64 exec, -1")
    stamp(A, cfg, 1)
    PRIO = cfg.get("prio", {6: 3, 2: 2, 4: 1, 5: 0})
    A("s_setprio 3")
    A.label("L_attn_code")
    def vwait(tag): A(f"s_waitcnt vmcnt({len(vm) - 1 - max(i for i, x in enumerate(vm) if x == tag)})")
    for t in range(64):
        cur, nxt = R.S[t % 2], R.S[(t + 1) % 2]
        def E(i): A(f"v_exp_f32 v{cur+i}, v{cur+i}")
        def C(k): A(f"v_cvt_pk_bf16_f32 v{R.P+k}, v{cur+2*k}, v{cur+2*k+1}")
        ops_t = list(sched[t])
        def V():
            if ops_t:
                tag, op = ops_t.pop(0); emit(op); vm.append(tag)
        tr = []
        if t in trs: tr = list(trs[t][1])
        def L(n):
            for _ in range(n):
                if tr: A(tr.pop(0))
        if t % 8 == 6 and t < 56:
            vwait(f"kv{t//8+1}")
            A("s_barrier")
        if cfg.get("ats") and t % 8 == 6: A(f"s_memtime s[{64+2*(t//8)}:{65+2*(t//8)}]")
        if t < 56 and t % 8 in PRIO: A(f"s_setprio {PRIO[t % 8]}")
        if t >= 56 and (t - 2) % 8 in PRIO and t > 56: A(f"s_setprio {PRIO[(t - 2) % 8]}")
        if t < 63:
            A(f"s_waitcnt lgkmcnt({2 if t else 1})")
            A(f"v_mfma_f32_32x32x16_bf16 {v(nxt,16)}, {v(R.K1,4)}, {v(R.Q1,4)}, 0")
        E(0); E(1); V(); E(2); C(0); E(3)
        A("s_waitcnt lgkmcnt(0)")
        if t: A(f"v_mfma_f32_32x32x16_bf16 {v(R.O,16)}, {v(R.V2,4)}, {v(R.P+4,4)}, {v(R.O,16)}")
        if t in trs and trs[t][0]: vwait(trs[t][0])
        if t in misc:
            vwait(misc[t][0])
            A(f"s_mov_b32 s{sT1}, s{sFAST-1}")
            emit(misc[t][1])
            A(f"s_lshr_b64 s[{sFAST-1}:{sFAST}], s[{sFAST-1}:{sFAST}], s{sXCC}")
            A(f"s_and_b32 s{sFAST}, s{sFAST-1}, 63")
            A(f"s_mov_b32 s{sFAST-1}, s{sT1}")
            A(f"s_cmp_eq_u32 s{sFAST}, 32")
            A(f"s_cselect_b32 s{sFAST}, {0 if cfg.get('noFast') else 1}, 0")
        L(2); E(4); C(1); L(2); E(5); V(); E(6); L(1); C(2); E(7)
        if t < 63: A(f"v_mfma_f32_32x32x8_bf16 {v(nxt,16)}, {v(R.K2,2)}, {v(R.Q2,2)}, {v(nxt,16)}")
        if t < 62:
            if tdelta(t + 2):
                A(f"v_add_u32 v{R.KA}, {tdelta(t+2)}, v{R.KA}")
                A(f"v_add_u32 v{R.K2A}, {tdelta(t+2)}, v{R.K2A}")
            A(f"ds_read_b128 {v(R.K1,4)}, v{R.KA} offset:{toff(t+2)}")
            A(f"ds_read_b32 v{R.K2}, v{R.K2A} offset:{toff(t+2)}")
        E(8); C(3); E(9); V(); E(10); C(4); E(11)
        A(f"v_mfma_f32_32x32x16_bf16 {v(R.O,16)}, {v(R.V1,4)}, {v(R.P,4)}, {v(R.O,16) if t else 0}")
        A(f"s_mov_b64 exec, s[{sVMASK}:{sVMASK+1}]")
        A(f"ds_read_b128 {v(R.V2,4)}, v{R.VA} offset:{toff(t) + 640}")
        if t < 63:
            if tdelta(t + 1): A(f"v_add_u32 v{R.VA}, {tdelta(t+1)}, v{R.VA}")
            A(f"ds_read_b128 {v(R.V1,4)}, v{R.VA} offset:{toff(t+1)}")
        A("s_mov_b64 exec, -1")
        E(12); C(5); E(13); E(14); E(15); C(6); C(7)
        assert not ops_t and not tr
    A("s_waitcnt lgkmcnt(0)")
    A(f"v_mfma_f32_32x32x16_bf16 {v(R.O,16)}, {v(R.V2,4)}, {v(R.P+4,4)}, {v(R.O,16)}")
    A.label("L_post_attn")
    if cfg.get("ats"):
        for c in range(11): A(f"s_sub_u32 s{65+2*c}, s{64+2*c}, s63")
        A("v_mov_b32 v78, v0")
        A("v_mov_b32 v110, v2")
        A("v_mov_b32 v109, v3")
        stamp_flush(A, cfg, 13, 17, SWS, sWAVE, 0)
        A("s_mov_b64 exec, -1")
        A("v_mov_b32 v0, v78")
        A("v_mov_b32 v2, v110")
        A("v_mov_b32 v3, v109")
    A("s_setprio 0")
    stamp(A, cfg, 2)
    A(f"v_and_b32 v{T+1}, 15, v0")
    A(f"v_bfe_u32 v{T+2}, v0, 4, 1")
    A(f"v_lshrrev_b32 v{T+3}, 5, v0")
    A(f"v_lshlrev_b32 v{T+1}, 4, v{T+1}")
    A(f"v_mul_u32_u24 v{T+2}, {80*256}, v{T+2}")
    A(f"v_lshl_add_u32 v{T+1}, v{T+3}, 8, v{T+1}")
    A(f"v_add_u32 v{T+7}, v{T+1}, v{T+2}")
    A(f"v_mov_b32 v{T}, 0")
    for k in range(0, 10, 2): A(f"v_max3_f32 v{T}, v{T}, abs(v{R.O+k}), abs(v{R.O+k+1})")
    A(f"s_mov_b32 s{sT0}, {fhex(2.0**-40)}")
    A(f"s_mov_b32 s{sT1}, {fhex(2.0**64)}")
    A(f"s_mov_b32 s{sT2}, {fhex(2.0**127)}")
    A(f"v_cmp_le_f32 vcc, s{sT0}, v{R.O+10}")
    A(f"v_cmp_ge_f32 s[{sTMP}:{sTMP+1}], s{sT1}, v{R.O+10}")
    A(f"v_cmp_ge_f32 s[{sTMP+2}:{sTMP+3}], s{sT2}, v{T}")
    A(f"s_and_b64 vcc, vcc, s[{sTMP}:{sTMP+1}]")
    A(f"s_and_b64 vcc, vcc, s[{sTMP+2}:{sTMP+3}]")
    A(f"s_cmp_eq_u64 vcc, -1" if not cfg.get("force_slow") else "s_cmp_eq_u32 s2, -1")
    A("s_cbranch_scc0 L_attn_slow")
    A.label("L_attn_norm")
    A(f"v_rcp_f32 v{T}, v{R.O+10}")
    A(f"s_mul_i32 s{sT0}, s{sQT}, {2*80*256}")
    A(f"s_lshr_b32 s{sT1}, s{sM}, 3")
    A(f"s_mul_i32 s{sT1}, s{sT1}, {20*256}")
    A(f"s_add_u32 s{sT0}, s{sT0}, s{sT1}")
    A(f"s_add_u32 s{sT0}, s{sT0}, {hex(WS_O)}")
    A(f"s_and_b32 s{sT1}, s{sM}, 7")
    A(f"s_lshl_b32 s{sT1}, s{sT1}, 9")
    A(f"s_add_u32 s{sT1}, s{sT1}, s{sT0}")
    A(f"s_and_b32 s{sT2}, s{sM}, 7")
    A(f"s_lshl_b32 s{sT2}, s{sT2}, 7")
    A(f"s_add_u32 s{sT0}, s{sT0}, s{sT2}")
    A(f"s_add_u32 s{sT0}, s{sT0}, {16*256}")
    A(f"v_and_b32 v{T+4}, 15, v0")
    A(f"v_bfe_u32 v{T+5}, v0, 4, 1")
    A(f"v_mul_u32_u24 v{T+5}, {80*256}, v{T+5}")
    A(f"v_lshl_add_u32 v{T+6}, v{T+4}, 3, v{T+5}")
    for k in range(10): A(f"v_mul_f32 v{R.O+k}, v{T}, v{R.O+k}")
    for k in range(5): A(f"v_cvt_pk_bf16_f32 v{R.O+k}, v{R.O+2*k}, v{R.O+2*k+1}")
    A(f"v_mov_b32 v{R.O+5}, v{R.O+4}")
    A(f"v_permlane32_swap_b32 v{R.O+4}, v{R.O+5}")
    stores(A, [f"buffer_store_dwordx4 {v(R.O,4)}, v{T+7}, s[{SWS}:{SWS+3}], s{sT1} offen",
               "s_mov_b32 exec_hi, 0",
               f"buffer_store_dwordx2 {v(R.O+4,2)}, v{T+6}, s[{SWS}:{SWS+3}], s{sT0} offen",
               "s_mov_b32 exec_hi, -1"])
    A(f"v_lshrrev_b32 v{T+5}, 4, v0")
    A(f"v_lshlrev_b32 v{T+5}, 8, v{T+5}")
    A(f"v_lshl_add_u32 v7, v{T+4}, 3, v{T+5}")

    BF, ACC = 16, 56
    vHP, vHS, vPW, RA = 1, 2, 3, 5
    A(f"s_lshr_b32 s{sT2}, s{sWAVE}, 2")
    A(f"s_lshl_b32 s{sB}, s{sT2}, 1")
    A(f"s_add_u32 s{sB}, s{sB}, s{sTOK16}")
    A(f"s_mul_i32 s{sB}, s{sB}, {80*256}")
    A(f"s_mul_i32 s{sT1}, s{sLW}, {20*256}")
    A(f"s_add_u32 s{sB}, s{sB}, s{sT1}")
    A(f"s_add_u32 s{sB}, s{sB}, {hex(WS_O)}")
    A(f"s_lshl_b32 s{sT0}, s{sLW}, 1")
    A(f"s_add_u32 s{sT0}, s{sT0}, s{sT2}")
    A(f"s_mul_i32 s{sT0}, s{sT0}, 10240")
    A(f"s_add_u32 s{sT0}, s{sT0}, {PART_BASE}")
    A(f"v_add_u32 v{vPW}, s{sT0}, v{R.L16}")
    A(f"s_add_u32 s{sT0}, s{sLW}, s{sTOK16}")
    A(f"s_lshl_b32 s{sC}, s{sT0}, 11")
    A(f"s_mul_i32 s{sT0}, s{sT0}, {80*256}")
    A(f"s_mul_i32 s{sT1}, s{sFG}, 2560")
    A(f"s_add_u32 s{sT0}, s{sT0}, s{sT1}")
    A(f"s_add_u32 s{sT0}, s{sT0}, {hex(WS_H)}")
    A(f"v_add_u32 v{T+1}, 2048, v{T+1}")
    A(f"v_add_u32 v{vHS}, s{sT0}, v{T+1}")
    A(f"s_lshl_b32 s{sT1}, s{sT2}, 10")
    A(f"s_add_u32 s{sT0}, s{sT0}, s{sT1}")
    A(f"v_add_u32 v{vHP}, s{sT0}, v{R.L16}")
    A(f"s_lshl_b32 s{sT1}, s{sFG}, 1")
    A(f"s_add_u32 s{sT1}, s{sT1}, s{sT2}")
    A(f"s_lshl_b32 s{sT1}, s{sT1}, 7")
    A(f"s_add_u32 s{sC}, s{sC}, s{sT1}")
    A(f"s_add_u32 s{sC}, s{sC}, {hex(WS_ST2)}")
    reduce_addr(A, 4, PART_BASE, RA)
    XF = 96 - 0
    stamp(A, cfg, 3)
    sync(A, 0, 0, False, 0)
    stamp(A, cfg, 4)
    for i in range(2):
        for st in range(5):
            if st % 4 == 0: A(f"s_add_u32 s{sT1}, s{sB}, {i*80*256 + st*1024}")
            if st < 4: A(f"buffer_load_dwordx4 {v(BF+20*i+4*st,4)}, v{R.L16}, s[{SWS}:{SWS+3}], s{sT1} offen offset:{(st%4)*1024} sc1")
            else:
                for e in range(2): A(f"buffer_load_dwordx2 {v(BF+20*i+16+2*e,2)}, v7, s[{SWS}:{SWS+3}], s{sT1} offen offset:{128*e} sc1")
    for i in range(2):
        for st in range(5):
            A(f"s_waitcnt vmcnt({11 - (6*i + st + (st == 4))})")
            for f in range(5):
                acc = v(ACC + 20 * i + 4 * f, 4)
                A(f"v_mfma_f32_16x16x32_bf16 {acc}, {a(20*st+4*f,4)}, {v(BF+20*i+4*st,4)}, {acc if st else 0}")
            if i == 1:
                A(f"ds_write_b128 v{vPW}, {v(ACC+4*st,4)} offset:{st*1024}")
    load_wd(A, 2)
    for f in range(5):
        A(f"ds_write_b128 v{vPW}, {v(ACC+20+4*f,4)} offset:{5120 + f*1024}")
    stamp(A, cfg, 5)
    D = 16
    TRA, VB, VST = 1, 2, 3
    G1, Gh, rho, c0, c1 = T+2, T+3, T+4, T+5, T+6
    def wo_tail(n):
        A("s_waitcnt lgkmcnt(0)")
        A("s_barrier")
        reduce_sum(A, 4, D, RA, n, (lambda: load_wd(A, 3)) if n == 2 else None)
        for i in range(2 * n):
            A(f"v_lshlrev_b32 v{T}, 16, v{R.XRES+i}")
            A(f"v_and_b32 v{T+1}, 0xffff0000, v{R.XRES+i}")
            A(f"v_pk_add_f32 {v(D+2*i,2)}, {v(D+2*i,2)}, {v(T,2)}")
        for i in range(2 * n): A(f"v_cvt_pk_bf16_f32 v{D+i}, v{D+2*i}, v{D+2*i+1}")
        st = [f"buffer_store_dwordx4 {v(D,4)}, v{vHP}, s[{SWS}:{SWS+3}], 0 offen"]
        if n == 3:
            E = D + 12
            for i in range(4): A(f"v_mov_b32 v{E+i}, v{D+4+(i%2)}")
            A(f"v_permlane16_swap_b32 v{E}, v{E+2}")
            A(f"v_permlane16_swap_b32 v{E+1}, v{E+3}")
            st += ["s_mov_b32 exec_lo, 0xffff", "s_mov_b32 exec_hi, 0xffff",
                   f"buffer_store_dwordx4 {v(E,4)}, v{vHS}, s[{SWS}:{SWS+3}], 0 offen", "s_mov_b64 exec, -1"]
        stores(A, st)
        sm, sq = D + 8, D + 9
        A(f"v_mov_b32 v{T+2}, 0x3f803f80")
        for i in range(2 * n):
            A(f"v_dot2_f32_bf16 v{sm}, v{D+i}, v{T+2}, {'v%d' % sm if i else 0}")
            A(f"v_dot2_f32_bf16 v{sq}, v{D+i}, v{D+i}, {'v%d' % sq if i else 0}")
        for i in range(2 * n): A(f"v_accvgpr_write_b32 a{A_RES(i)}, v{D+i}")
        for op in ("v_permlane16_swap_b32", "v_permlane32_swap_b32"):
            A(f"v_mov_b32 v{T}, v{sm}")
            A(f"v_mov_b32 v{T+1}, v{sq}")
            A(f"{op} v{sm}, v{T}")
            A(f"{op} v{sq}, v{T+1}")
            A(f"v_pk_add_f32 {v(sm,2)}, {v(sm,2)}, {v(T,2)}")
        A(f"v_lshlrev_b32 v{T}, 3, v0")
        A("s_mov_b64 exec, 0xffff")
        stores(A, [f"buffer_store_dwordx2 {v(sm,2)}, v{T}, s[{SWS}:{SWS+3}], s{sC} offen"])
        A("s_mov_b64 exec, -1")
        A(f"v_bfe_u32 v{G1}, v0, 4, 1")
        A(f"v_lshrrev_b32 v{Gh}, 5, v0")
        A(f"v_bfe_u32 v{rho}, v0, 2, 2")
        A(f"v_and_b32 v{c0}, 1, v0")
        A(f"v_bfe_u32 v{c1}, v0, 1, 1")
        A(f"v_lshl_add_u32 v{TRA}, v{Gh}, 3, v{rho}")
        A(f"v_mul_u32_u24 v{TRA}, 192, v{TRA}")
        A(f"v_mul_u32_u24 v{c1}, {GU_UP}, v{c1}")
        A(f"v_add_u32 v{TRA}, v{TRA}, v{c1}")
        A(f"v_lshl_add_u32 v{TRA}, v{c0}, 4, v{TRA}")
        A(f"v_lshl_add_u32 v{TRA}, v{G1}, 3, v{TRA}")
    sGT = sQT
    A(f"s_and_b32 s{sGT}, s{sTOK16}, -8")
    A(f"s_lshl_b32 s{sT0}, s{sLW}, 1")
    A(f"s_add_u32 s{sGT}, s{sGT}, s{sT0}")
    sHSRC, sHM0 = sKBASE, sVBASE
    A(f"s_mul_i32 s{sHSRC}, s{sGT}, {80*256}")
    A(f"s_add_u32 s{sHSRC}, s{sHSRC}, {hex(WS_H)}")
    A(f"s_lshl_b32 s{sHM0}, s{sLW}, 12")
    def h_dma_ops(c):
        return [[f"s_add_u32 m0, s{sHM0}, {H_BASE + (c%NHS)*16384 + k*1024}", f"s_add_u32 s{sT0}, s{sHSRC}, {(k//2)*80*256 + c*2048 + (k%2)*1024}",
                 f"buffer_load_dwordx4 v{R.L16}, s[{SWS}:{SWS+3}], s{sT0} offen sc1 lds"] for k in range(4)]
    A(f"s_cmp_ge_u32 s{sWAVE}, 4")
    A("s_cbranch_scc1 L_gu_loader")
    wo_tail(3)

    L_CF = GU_MISC
    L_MB = GU_MISC + 3072
    L_RS = GU_MISC + 4096
    ACC, FR = 16, 0
    CFA = 0
    MB = T
    sTH, sFH = sKSRC, sVSRC
    A(f"s_and_b32 s{sTH}, s{sWAVE}, 1")
    A(f"s_lshr_b32 s{sFH}, s{sWAVE}, 1")
    A(f"s_mul_i32 s{sT0}, s{sFH}, 96")
    A(f"v_add_u32 v{TRA}, s{sT0}, v{TRA}")
    SEL, CSA = 40, 44
    A(f"v_lshrrev_b32 v{T}, 2, v0")
    A(f"v_xor_b32 v{T}, v{T}, v0")
    A(f"v_and_b32 v{T}, 4, v{T}")
    A(f"v_cmp_eq_u32 vcc, 0, v{T}")
    A(f"v_mov_b32 v{T}, 0x3f803f80")
    A(f"v_cndmask_b32 v{T}, 0, v{T}, vcc")
    for i in range(4): A(f"v_accvgpr_write_b32 a{SEL+i}, v{T}")
    TRH, VBH = 5, 6
    A(f"s_mul_i32 s{sT0}, s{sTH}, {32*192}")
    A(f"v_subrev_u32 v{TRH}, s{sT0}, v{TRA}")
    A(f"v_add_u32 v{TRA}, s{sT0}, v{TRA}")
    A(f"v_and_b32 v{VB}, 15, v0")
    A(f"v_lshlrev_b32 v{VB}, 4, v{VB}")
    A(f"v_lshl_add_u32 v{VB}, v{Gh}, 8, v{VB}")
    A(f"v_mul_u32_u24 v{VST}, {192*256}, v{G1}")
    A(f"v_add_u32 v{VST}, v{VST}, v{VB}")
    A(f"v_lshl_add_u32 v{VB}, v{G1}, 11, v{VB}")
    A(f"s_lshl_b32 s{sT0}, s{sTH}, 13")
    A(f"s_add_u32 s{sT0}, s{sT0}, {H_BASE}")
    A(f"v_add_u32 v{VB}, s{sT0}, v{VB}")
    A(f"s_lshl_b32 s{sT0}, s{sTH}, 10")
    A(f"v_subrev_u32 v{VBH}, s{sT0}, v{VB}")
    A(f"v_add_u32 v{VB}, s{sT0}, v{VB}")
    lq = []
    def gread(st, what):
        c, sl = divmod(st, 4)
        b = FR + 20 * (st % 2)
        if what[0] == "A":
            t = int(what[1])
            for u in range(2):
                A(f"ds_read_b64_tr_b16 {a(b+4*t+2*u,2)}, v{TRA if sl < 2 else TRH} offset:{(16*sl+4*u)*192 + 32*t}"); lq.append((st, what))
        else:
            i = int(what[1])
            A(f"ds_read_b128 {a(b+12+4*i,4)}, v{VB if sl < 2 else VBH} offset:{(c%NHS)*16384 + i*4096 + sl*512}"); lq.append((st, what))
    for w in ("A0", "A1", "A2"): gread(0, w)
    A(f"s_mul_i32 s{sT0}, s{sFH}, 1536")
    A(f"s_add_u32 s{sT0}, s{sT0}, {L_CF}")
    A(f"v_lshlrev_b32 v{T+6}, 3, v0")
    A(f"v_add_u32 v{T+6}, s{sT0}, v{T+6}")
    A(f"v_and_b32 v{T+7}, 31, v0")
    A(f"v_lshlrev_b32 v{T+7}, 3, v{T+7}")
    A(f"s_lshl_b32 s{sT0}, s{sTH}, 9")
    A(f"s_add_u32 s{sT0}, s{sT0}, {L_MB}")
    A(f"v_add_u32 v{T+7}, s{sT0}, v{T+7}")
    stamp(A, cfg, 6)
    sync(A, 1, 0, True, 0)
    stamp(A, cfg, 7)
    if cfg.get("gts"): A("s_mov_b32 s90, s75")
    for op in h_dma_ops(0)[:2]: emit(op)
    A("s_waitcnt vmcnt(0)")
    A("s_barrier")
    for w in ("B0", "B1"): gread(0, w)
    wd3 = load_wd_ops(3)
    def lwait(tag): A(f"s_waitcnt lgkmcnt({min(15, len(lq) - 1 - max(i for i, x in enumerate(lq) if x == tag))})")
    for st in range(40):
        c, sl = divmod(st, 4)
        nxt = st + 1 < 40
        bar = sl == 3 and nxt
        if bar:
            A("s_waitcnt lgkmcnt(0)")
            if cfg.get("gts") == 2: A(f"s_memtime s[{60+2*c}:{61+2*c}]")
            A("s_barrier")
            if cfg.get("gts") == 1: A(f"s_memtime s[{60+2*c}:{61+2*c}]")
            d = GU_SLOT if (c + 1) % NWS else -(NWS - 1) * GU_SLOT
            A(f"v_add_u32 v{TRA}, {d & 0xffffffff}, v{TRA}")
            A(f"v_add_u32 v{TRH}, {d & 0xffffffff}, v{TRH}")
        if st == 39:
            A("s_waitcnt lgkmcnt(0)")
            A("s_barrier")
            bar = True
            for k in range(3): A(f"ds_read_b64 {a(CFA+2*k,2)}, v{T+6} offset:{512*k}")
        b = FR + 20 * (st % 2)
        plan = ((0, 0, "B1", ("A0",)), (1, 0, None, ("B0", "B1")), (0, 1, "A2", ("A1",)), (1, 1, None, ("A2",)), (0, 2, None, ()), (1, 2, None, ()))
        for (i, t, wt_, rd) in plan:
            if wt_ and not bar and not (st == 0 and wt_ == "A2"): lwait((st, wt_))
            acc = v(ACC + 48 * i + 16 * t, 16)
            A(f"v_mfma_f32_32x32x16_bf16 {acc}, {a(b+4*t,4)}, {a(b+12+4*i,4)}, {acc if st else 0}")
            if nxt:
                for w in rd: gread(st + 1, w)
            if sl < 2 and i == 1 and not cfg.get("gu_nocs"):
                A(f"v_mfma_f32_16x16x32_bf16 {a(CSA+4*t,4)}, {a(SEL,4)}, {a(b+4*t,4)}, {a(CSA+4*t,4) if st else 0}")
            if st == 36 and t == 2:
                A(f"ds_read_b64 {v(MB+2*i,2)}, v{T+7} offset:{256*i}"); lq.append("mb")
            if st == 38 and i == 1:
                x = T + 4
                A(f"v_accvgpr_read_b32 v7, a{CSA+4*t}")
                A(f"v_cvt_pk_bf16_f32 v{x+1}, v7, v7")
                A(f"v_and_b32 v{x+1}, 0xffff0000, v{x+1}")
                A(f"v_sub_f32 v7, v7, v{x+1}")
                A(f"v_cvt_pk_bf16_f32 v{x}, v{x+1}, v7")
                A(f"v_lshrrev_b32 v{x+1}, 16, v{x+1}")
                A(f"ds_write_b64 v{TRA}, {v(x,2)} offset:{512*t}"); lq.append("w")
        if 28 <= st < 33: emit(wd3.pop(0))
        if st == 37:
            A(f"s_mul_i32 s{sT0}, s{sFH}, 1536")
            A(f"s_lshl_b32 s{sT1}, s{sTH}, 8")
            A(f"s_add_u32 s{sT0}, s{sT0}, s{sT1}")
            A(f"s_add_u32 s{sT0}, s{sT0}, {L_CF}")
            A(f"v_and_b32 v{TRA}, 31, v0")
            A(f"v_lshlrev_b32 v{TRA}, 3, v{TRA}")
            A(f"v_add_u32 v{TRA}, s{sT0}, v{TRA}")
    A("s_waitcnt lgkmcnt(0)")
    for t in range(3):
        for i in range(2):
            acc = v(ACC + 48 * i + 16 * t, 16)
            A(f"v_mfma_f32_32x32x8_bf16 {acc}, {a(CFA+2*t,2)}, {v(MB+2*i,2)}, {acc}")
    if cfg.get("gts"):
        A("s_waitcnt lgkmcnt(0)")
        for c in range(9): A(f"s_sub_u32 s{91+c}, s{60+2*c}, s90")
    stamp(A, cfg, 8)
    A(f"s_and_b32 s{sB}, s{sTOK16}, -8")
    A(f"s_lshl_b32 s{sT0}, s{sTH}, 2")
    A(f"s_add_u32 s{sB}, s{sB}, s{sT0}")
    A(f"s_mul_i32 s{sB}, s{sB}, {192*256}")
    A(f"s_mul_i32 s{sT0}, s{sJ}, {12*256}")
    A(f"s_add_u32 s{sB}, s{sB}, s{sT0}")
    A(f"s_mul_i32 s{sT0}, s{sFH}, {6*256}")
    A(f"s_add_u32 s{sB}, s{sB}, s{sT0}")
    A(f"s_add_u32 s{sB}, s{sB}, {hex(WS_HID)}")
    A(f"s_add_u32 s{sT2}, s{sB}, {2*192*256}")
    def gu_epi(sc):
        for (i, t) in ((0, 0), (1, 0), (0, 1), (1, 1), (0, 2), (1, 2)):
            r = ACC + 48 * i + 16 * t
            for q in range(2):
                for b in range(4): A(f"v_max_f32 v{r+8*q+b}, 0, v{r+8*q+b}")
                for b in (0, 2): A(f"v_pk_mul_f32 {v(r+8*q+b,2)}, {v(r+8*q+b,2)}, {v(r+8*q+4+b,2)}")
            A(f"v_cvt_pk_bf16_f32 v{r}, v{r}, v{r+1}")
            A(f"v_cvt_pk_bf16_f32 v{r+1}, v{r+2}, v{r+3}")
            A(f"v_cvt_pk_bf16_f32 v{r+2}, v{r+8}, v{r+9}")
            A(f"v_cvt_pk_bf16_f32 v{r+3}, v{r+10}, v{r+11}")
            A(f"buffer_store_dwordx4 {v(r,4)}, v{VST}, s[{SWS}:{SWS+3}], s{sT2 if i else sB} offen offset:{512*t} {sc}")
    if cfg.get("wt", 1):
        gu_epi("sc1")
    else:
        A(f"s_cmp_lg_u32 s{sFAST}, 0")
        A("s_nop 4")
        A("s_cbranch_scc0 L_gu_epi_slow")
        gu_epi("")
    A.label("L_gu_epi_done")
    stamp(A, cfg, 9)
    A("s_waitcnt vmcnt(0)")
    A("s_branch L_gu_done")
    if not cfg.get("wt", 1):
        A.label("L_gu_epi_slow")
        gu_epi("sc1")
        A("s_branch L_gu_epi_done")

    A.label("L_gu_loader")
    WDL = cfg.get("wdl", "late")
    wo_tail(2)
    STV = 72
    A(f"v_and_b32 v3, 15, v0")
    A(f"v_lshlrev_b32 v3, 3, v3")
    A(f"v_lshl_add_u32 v3, v{G1}, 11, v3")
    A(f"v_lshl_add_u32 v3, v{Gh}, 10, v3")
    A(f"s_lshl_b32 s{sB}, s{sGT}, 11")
    A(f"s_add_u32 s{sB}, s{sB}, {hex(WS_ST2)}")
    A("s_waitcnt vmcnt(0)")
    A("s_barrier")
    if cfg.get("w3early", 1):
        for op in gu_dma_ops(3): emit(op)
    A("s_barrier")
    ops = [("w", 3)] * 6 if cfg.get("w3early", 1) else []
    for op in h_dma_ops(0)[2:] + h_dma_ops(1): emit(op)
    ops += [("h", 0)] * 2 + [("h", 1)] * 4
    A(f"s_setprio {cfg.get('lprio', 0)}")
    for c in range(10):
        need = [("h", c)] + ([("w", c)] if c >= 3 else [])
        A(f"s_waitcnt vmcnt({len(ops) - 1 - max(i for i, o in enumerate(ops) if o in need)})")
        A("s_barrier")
        vops = []
        if c + 2 < 10:
            vops += h_dma_ops(c + 2); ops += [("h", c + 2)] * 4
        if c + 3 < 10 and (c > 0 or not cfg.get("w3early", 1)):
            vops += gu_dma_ops(c + 3); ops += [("w", c + 3)] * 6
        if c == 0:
            vops += [[f"buffer_load_dwordx2 {v(STV+2*i,2)}, v3, s[{SWS}:{SWS+3}], s{sB} offen offset:{128*i} sc1"] for i in range(8)]
            ops += ["st"] * 8
        for stp in {7: (4,), 8: (5, 6), 9: (7,)}.get(c, ()):
            vops += load_wd_ops(stp); ops += ["d"] * 5
        for op in vops: emit(op)
        if c == cfg.get('st_at', 7):
            for i in range(1, 8):
                A(f"v_add_f32 v{STV}, v{STV}, v{STV+2*i}")
                A(f"v_add_f32 v{STV+1}, v{STV+1}, v{STV+2*i+1}")
            for r in (STV, STV + 1):
                A(f"v_mov_b32 v{STV+2}, v{r}")
                A(f"v_permlane32_swap_b32 v{r}, v{STV+2}")
                A(f"v_add_f32 v{r}, v{r}, v{STV+2}")
            mean, rs = STV, STV + 1
            A(f"v_mul_f32 v{mean}, {fhex(1/640)}, v{mean}")
            A(f"v_mul_f32 v{rs}, {fhex(1/640)}, v{rs}")
            A(f"v_fma_f32 v{rs}, -v{mean}, v{mean}, v{rs}")
            A(f"v_max_f32 v{rs}, 0, v{rs}")
            A(f"v_add_f32 v{rs}, {fhex(1e-5)}, v{rs}")
            A(f"v_rcp_f32 v{rs}, v{rs}")
            A(f"v_cvt_pk_bf16_f32 v{STV+2}, -v{mean}, -v{mean}")
            A(f"v_and_b32 v{STV+3}, 0xffff0000, v{STV+2}")
            A(f"v_sub_f32 v{STV+3}, -v{mean}, v{STV+3}")
            A(f"v_cvt_pk_bf16_f32 v{STV+3}, v{STV+3}, 0")
            A(f"v_and_b32 v{STV+4}, 31, v0")
            A(f"s_lshl_b32 s{sT0}, s{sLW}, 5")
            A(f"v_add_u32 v{STV+4}, s{sT0}, v{STV+4}")
            A(f"v_lshlrev_b32 v{STV+5}, 3, v{STV+4}")
            A(f"v_lshlrev_b32 v{STV+4}, 2, v{STV+4}")
            A(f"v_add_u32 v{STV+5}, {L_MB}, v{STV+5}")
            A(f"v_add_u32 v{STV+4}, {L_RS}, v{STV+4}")
            A(f"ds_write_b64 v{STV+5}, {v(STV+2,2)}")
            A(f"ds_write_b32 v{STV+4}, v{rs}")
        if c == cfg.get('st_at', 7): A("s_waitcnt lgkmcnt(0)")
    A("s_barrier")
    if cfg.get("wbl2", 0) & 1:
        A(f"s_add_u32 s{sT0}, s{sM}, s{sWAVE}")
        A(f"s_cmp_lg_u32 s{sT0}, 4")
        A("s_cbranch_scc1 L_nowb1")
        A("buffer_wbl2 sc1")
        A.label("L_nowb1")
    A("s_setprio 0")
    A.label("L_gu_done")

    NBD = cfg.get("nbd", 6)
    BF, ACC = 16, 72
    vXP, vXS, vPW, RA, vRS = 1, 2, 3, 5, T + 7
    A(f"s_mul_i32 s{sB}, s{sTOK16}, {192*256}")
    A(f"s_lshl_b32 s{sT0}, s{sWDRAW}, 10")
    A(f"s_add_u32 s{sB}, s{sB}, s{sT0}")
    A(f"s_add_u32 s{sB}, s{sB}, {hex(WS_HID)}")
    A(f"s_mul_i32 s{sT0}, s{sWAVE}, 20480")
    A(f"v_add_u32 v{vPW}, s{sT0}, v{R.L16}")
    A(f"s_and_b32 s{sT0}, s{sTOK16}, 7")
    A(f"s_add_u32 s{sT0}, s{sT0}, s{sLW}")
    A(f"s_lshl_b32 s{sT0}, s{sT0}, 6")
    A(f"s_add_u32 s{sT0}, s{sT0}, {L_RS}")
    A(f"v_and_b32 v{vRS}, 15, v0")
    A(f"v_lshlrev_b32 v{vRS}, 2, v{vRS}")
    A(f"v_add_u32 v{vRS}, s{sT0}, v{vRS}")
    A(f"ds_read_b32 v{vRS}, v{vRS}")
    addr_rowmajor(A, vXP, vXS, T)
    reduce_addr(A, 8, 0, RA)
    A("s_waitcnt lgkmcnt(0)")
    sync(A, 2, 0, True, 63)
    stamp(A, cfg, 10)
    def dn_main(NS, NBD):
        def loadBd(q):
            tt, st = divmod(q, NS)
            if st % 4 == 0: A(f"s_add_u32 s{sT1}, s{sB}, {tt*192*256 + st*1024}")
            A(f"buffer_load_dwordx4 {v(BF+4*(q%NBD),4)}, v{R.L16}, s[{SWS}:{SWS+3}], s{sT1} offen offset:{(st%4)*1024} sc1")
        for q in range(NBD): loadBd(q)
        issued = NBD
        pend = []
        for q in range(4 * NS):
            tt, st = divmod(q, NS)
            A(f"s_waitcnt vmcnt({issued - 1 - q})")
            for f in range(5):
                acc = v(ACC + 20 * (tt % 2) + 4 * f, 4)
                A(f"v_mfma_f32_16x16x32_bf16 {acc}, {WD(st, f)}, {v(BF+4*(q%NBD),4)}, {acc if st else 0}")
            if issued < 4 * NS:
                loadBd(issued); issued += 1
            for _ in range(2 if NS == 4 else 1):
                if pend: A(pend.pop(0))
            if st == NS - 1:
                assert not pend
                pend = [f"ds_write_b128 v{vPW}, {v(ACC+20*(tt%2)+4*f,4)} offset:{tt*5120 + f*1024}" for f in range(5)]
        if NS == 4 and cfg.get("wbl2", 0) & 2:
            A(f"s_add_u32 s{sT0}, s{sM}, s{sWAVE}")
            A(f"s_cmp_lg_u32 s{sT0}, 0")
            A("s_nop 4")
            A("s_cbranch_scc1 L_nowb2")
            A("buffer_wbl2 sc1")
            A.label("L_nowb2")
        for x in pend: A(x)
        stamp(A, cfg, 11)
    def dn_tail(n):
        A("s_waitcnt lgkmcnt(0)")
        A("s_barrier")
        reduce_sum(A, 8, D, RA, n)
        for i in range(2 * n):
            A(f"v_accvgpr_read_b32 v{T+2}, a{A_RES(i)}")
            A(f"v_lshlrev_b32 v{T}, 16, v{T+2}")
            A(f"v_and_b32 v{T+1}, 0xffff0000, v{T+2}")
            A(f"v_fma_f32 v{D+2*i}, v{D+2*i}, v{vRS}, v{T}")
            A(f"v_fma_f32 v{D+2*i+1}, v{D+2*i+1}, v{vRS}, v{T+1}")
            A(f"v_cvt_pk_bf16_f32 v{D+i}, v{D+2*i}, v{D+2*i+1}")
            if i == 3: A(f"buffer_store_dwordx4 {v(D,4)}, v{vXP}, s[{SO}:{SO+3}], 0 offen {cfg.get('ost', '')}")
        if n == 3: A(f"buffer_store_dwordx2 {v(D+4,2)}, v{vXS}, s[{SO}:{SO+3}], 0 offen {cfg.get('ost', '')}")
    A(f"s_cmp_ge_u32 s{sWAVE}, 4")
    A("s_cbranch_scc1 L_dn_b")
    dn_main(4, cfg.get("nbd_c", 4))
    dn_tail(3)
    A("s_branch L_dn_e")
    A.label("L_dn_b")
    A(f"s_setprio {cfg.get('dprio', 1)}")
    dn_main(8, cfg.get("nbd_l", 6))
    dn_tail(2)
    A.label("L_dn_e")
    stamp(A, cfg, 12)
    if cfg.get("gts"):
        for c in range(9):
            A(f"s_mov_b32 s{60+2*c}, s{91+c}")
            A(f"s_mov_b32 s{61+2*c}, s{91+c}")
    stamp_flush(A, cfg, 13, 4, SWS, sWAVE, cfg.get('tswave', 0))
    if cfg.get("diag"):
        da, db = cfg["diag"]
        A("s_cmp_ge_u32 s2, 8" if cfg.get("fixed") else "s_cmp_lg_u32 s2, 16")
        A("s_cbranch_scc1 L_end")
        A(f"s_cmp_lg_u32 s{sWAVE}, 0")
        A("s_cbranch_scc1 L_end")
        if da == -1:
            A("v_mov_b32 v1, 0")
            A(f"s_mov_b32 s{sT0}, {hex(WS_TS)}")
            A(f"buffer_load_dword v2, v1, s[{SWS}:{SWS+3}], s{sT0} offen")
            A("s_waitcnt vmcnt(0)")
            A(f"v_readfirstlane_b32 s{sT0}, v2")
        else:
            A(f"s_mov_b32 s{sT0}, s{60+2*da}")
        if cfg.get("fixed"):
            A(f"s_add_u32 s{sT0}, s{sT0}, {cfg['fixed']}")
            if cfg.get("wb"):
                A("buffer_wbl2 sc1")
        else:
            A(f"s_sub_u32 s{sT0}, s{60+2*db}, s{sT0}")
            A(f"s_min_u32 s{sT0}, s{sT0}, 20000")
            A(f"s_lshl_b32 s{sT0}, s{sT0}, 2")
            A(f"s_add_u32 s{sT0}, s{sT0}, s{60+2*12}")
        A.label("L_spin")
        A("s_memrealtime s[56:57]")
        A("s_waitcnt lgkmcnt(0)")
        A(f"s_sub_u32 s{sT1}, s56, s{sT0}")
        A(f"s_cmp_lt_i32 s{sT1}, 0")
        A("s_cbranch_scc1 L_spin")
    A.label("L_end")
    A("s_endpgm")

    A.label("L_attn_slow")
    A(f"v_subrev_u32 v{R.VA}, {KV_BASE + 1280 + 2*KV_SLOT}, v{R.VA}")
    A(f"v_mov_b32 v{R.Q2+1}, 0")
    A(f"v_mov_b32 v{T}, 0xff800000")
    A(f"s_mov_b32 s{sT0}, s{sKBASE}")
    A(f"s_add_u32 s{sT1}, s{sKBASE}, {PAIR_STRIDE}")
    A.label("L_attn_slow1")
    A(f"buffer_load_dwordx4 {v(R.K1,4)}, v{R.F2S+1}, s[{SWS}:{SWS+3}], s{sT0} offen")
    A(f"buffer_load_dword v{R.K2}, v{R.F2S}, s[{SWS}:{SWS+3}], s{sT0} offen")
    A("s_waitcnt vmcnt(0)")
    A(f"v_mfma_f32_32x32x16_bf16 {v(S0,16)}, {v(R.K1,4)}, {v(R.Q1,4)}, 0")
    A(f"v_mfma_f32_32x32x8_bf16 {v(S0,16)}, {v(R.K2,2)}, {v(R.Q2,2)}, {v(S0,16)}")
    max16(A, T, S0, False)
    A(f"s_add_u32 s{sT0}, s{sT0}, 2560")
    A(f"s_cmp_lt_u32 s{sT0}, s{sT1}")
    A("s_cbranch_scc1 L_attn_slow1")
    A(f"v_mov_b32 v{R.KA}, v{T+1}")
    xhalf_max(A, T, T+1)
    set_shift(A, T)
    A(f"v_mov_b32 v{T+1}, v{R.KA}")
    for k in range(16): A(f"v_mov_b32 v{R.O+k}, 0")
    A(f"s_mov_b32 s{sT0}, s{sKBASE}")
    A(f"s_mov_b32 s{sT2}, s{sVBASE}")
    A.label("L_attn_slow2")
    A(f"buffer_load_dwordx4 {v(R.K1,4)}, v{R.F2S+1}, s[{SWS}:{SWS+3}], s{sT0} offen")
    A(f"buffer_load_dword v{R.K2}, v{R.F2S}, s[{SWS}:{SWS+3}], s{sT0} offen")
    A(f"s_mov_b64 exec, s[{sVMASK}:{sVMASK+1}]")
    A(f"buffer_load_dwordx4 {v(R.V1,4)}, v{R.VA}, s[{SWS}:{SWS+3}], s{sT2} offen")
    A(f"buffer_load_dwordx4 {v(R.V2,4)}, v{R.VA}, s[{SWS}:{SWS+3}], s{sT2} offen offset:640")
    A("s_mov_b64 exec, -1")
    A("s_waitcnt vmcnt(0)")
    A(f"v_mfma_f32_32x32x16_bf16 {v(S0,16)}, {v(R.K1,4)}, {v(R.Q1,4)}, 0")
    A(f"v_mfma_f32_32x32x8_bf16 {v(S0,16)}, {v(R.K2,2)}, {v(R.Q2,2)}, {v(S0,16)}")
    for k in range(16): A(f"v_exp_f32 v{S0+k}, v{S0+k}")
    for k in range(8): A(f"v_cvt_pk_bf16_f32 v{R.P+k}, v{S0+2*k}, v{S0+2*k+1}")
    A(f"v_mfma_f32_32x32x16_bf16 {v(R.O,16)}, {v(R.V1,4)}, {v(R.P,4)}, {v(R.O,16)}")
    A(f"v_mfma_f32_32x32x16_bf16 {v(R.O,16)}, {v(R.V2,4)}, {v(R.P+4,4)}, {v(R.O,16)}")
    A(f"s_add_u32 s{sT0}, s{sT0}, 2560")
    A(f"s_add_u32 s{sT2}, s{sT2}, 1280")
    A(f"s_cmp_lt_u32 s{sT0}, s{sT1}")
    A("s_nop 7")
    A("s_cbranch_scc1 L_attn_slow2")
    A("s_nop 7")
    A("s_branch L_attn_norm")
    A.label("L_code_end")
    return dict(name=name, grid=256, block=512, lds=163840, desc=kernel_desc(name, 256, NV))
```

```python
from common import *

def gen_qkv(A, cfg):
    name = "qkv_kernel"
    kstart(A, name)
    SX, SW, SWS, SP, SD = 4, 8, 12, 36, 48
    sWAVE, sTB, sFG, sXO, sXLIM, sWO, sT0, sT1, sT2, sM0 = 16, 17, 18, 19, 20, 21, 22, 23, 24, 25
    sTILE, sBASE, sQS, sC0, sID = 26, 27, 28, 30, 31
    vTR = 4
    vT = 8
    SLOT = 32768
    CSL = SLOT
    STL = SLOT + 2048
    A("s_cmp_ge_u32 s2, 256")
    A("s_cbranch_scc1 L_qkv_end")
    A("s_load_dwordx4 s[4:7], s[0:1], 0")
    A("s_load_dwordx4 s[48:51], s[0:1], 64")
    A("s_load_dwordx2 s[32:33], s[0:1], 16")
    A("s_load_dwordx2 s[34:35], s[0:1], 48")
    stamp(A, cfg, 0)
    if cfg.get("diag"): A("s_memrealtime s[56:57]")
    A(f"v_lshrrev_b32 v{vT}, 6, v0")
    A(f"s_cmp_lt_u32 s2, 16")
    A(f"v_readfirstlane_b32 s{sWAVE}, v{vT}")
    A("s_cbranch_scc1 L_qkv_helper")
    A(f"v_and_b32 v0, 63, v0")
    A(f"s_sub_u32 s{sID}, s2, 16")
    A(f"s_and_b32 s{sT0}, s{sID}, 7")
    A(f"s_lshr_b32 s{sT1}, s{sID}, 3")
    A(f"s_lshr_b32 s{sT2}, s{sT0}, 2")
    A(f"s_mul_i32 s{sT2}, s{sT2}, 30")
    A(f"s_add_u32 s{sT1}, s{sT1}, s{sT2}")
    A(f"s_lshr_b32 s{sFG}, s{sT1}, 2")
    A(f"s_and_b32 s{sT1}, s{sT1}, 3")
    A(f"s_and_b32 s{sT2}, s{sT0}, 3")
    A(f"s_lshl_b32 s{sT2}, s{sT2}, 2")
    A(f"s_add_u32 s{sTB}, s{sT2}, s{sT1}")
    A(f"s_cmp_ge_u32 s{sWAVE}, 4")
    A("s_cbranch_scc1 L_qkv_loader")

    def tr_addr(permuted, tiles):
        rho, cc, g1, kh, base = vT, vT+1, vT+2, vT+3, vT+4
        A(f"v_bfe_u32 v{rho}, v0, 2, 2")
        A(f"v_bfe_u32 v{g1}, v0, 4, 1")
        A(f"v_lshrrev_b32 v{kh}, 5, v0")
        A(f"v_lshl_add_u32 v{base}, v{kh}, 3, v{rho}")
        A(f"v_lshlrev_b32 v{base}, 8, v{base}")
        A(f"v_lshl_add_u32 v{base}, v{g1}, 5, v{base}")
        if permuted:
            A(f"v_and_b32 v{cc}, 1, v0")
            A(f"v_lshl_add_u32 v{base}, v{cc}, 4, v{base}")
            A(f"v_bfe_u32 v{cc}, v0, 1, 1")
            A(f"v_lshl_add_u32 v{base}, v{cc}, 3, v{base}")
        else:
            A(f"v_and_b32 v{cc}, 3, v0")
            A(f"v_lshl_add_u32 v{base}, v{cc}, 3, v{base}")
        for j, t in enumerate(tiles):
            A(f"v_xor_b32 v{vTR+j}, {t}, v{rho}")
            A(f"v_lshl_add_u32 v{vTR+j}, v{vTR+j}, 6, v{base}")
    def rebase(c):
        def base(c): return ((c % 5) // 2) * 2 * SLOT
        return (base(c) - base(c - 1) if c else 0), (c % 5) * SLOT - base(c)

    ACC, FR, vBA, vADR, vST = 16, 80, 112, 116, 120
    sFH2 = 29
    A(f"s_and_b32 s{sT0}, s{sWAVE}, 1")
    A(f"s_and_b32 s{sFH2}, s{sWAVE}, 2")
    sJ0, sJ1 = 44, 45
    A(f"s_mov_b32 s{sJ0}, s{sWAVE}")
    A(f"s_xor_b32 s{sJ1}, s{sWAVE}, 1")
    A(f"s_lshl_b32 s{sTILE}, s{sTB}, 1")
    A(f"s_add_u32 s{sTILE}, s{sTILE}, s{sT0}")
    A(f"s_lshl_b32 s{sTILE}, s{sTILE}, 1")
    A(f"s_lshl_b32 s{sT0}, s{sT0}, 13")
    A(f"s_add_u32 s{sT0}, s{sT0}, 16384")
    A(f"v_and_b32 v{vT}, 31, v0")
    A(f"v_lshrrev_b32 v{vT+1}, 5, v0")
    A(f"v_bfe_u32 v{vT+2}, v0, 1, 3")
    A(f"v_xor_b32 v{vT+1}, v{vT+1}, v{vT+2}")
    A(f"v_lshlrev_b32 v{vT}, 7, v{vT}")
    A(f"v_lshl_add_u32 v{vT}, v{vT+1}, 4, v{vT}")
    A(f"v_add_u32 v{vBA}, s{sT0}, v{vT}")
    for st in range(1, 4): A(f"v_xor_b32 v{vBA+st}, {32*st}, v{vBA}")
    CSA, ONE, SEL, SF, SUM, SQ, vSB = 152, 160, 164, 168, 184, 192, 200
    MB, RS = 204, 208
    VO, PF, L16 = 120, 128, 2
    sU, sPSRC, sPDST, sPLDS = 40, 41, 42, 43
    def prep_setup():
        A(f"s_mul_i32 s{sU}, s{sWAVE}, 240")
        A(f"s_add_u32 s{sU}, s{sU}, s{sID}")
        A(f"v_lshlrev_b32 v{L16}, 4, v0")
        A(f"s_lshl_b32 s{sPLDS}, s{sWAVE}, 13")
        for jj in range(5):
            A(f"v_add_u32 v{vT}, {64*jj}, v0")
            A(f"v_mul_u32_u24 v{PF+jj}, 6554, v{vT}")
            A(f"v_lshrrev_b32 v{PF+jj}, 16, v{PF+jj}")
            A(f"v_mul_u32_u24 v{vT+1}, 10, v{PF+jj}")
            A(f"v_sub_u32 v{vT}, v{vT}, v{vT+1}")
            A(f"v_lshlrev_b32 v{VO+jj}, 4, v{vT}")
        A(f"s_cmp_ge_u32 s{sU}, 384")
        A("s_cbranch_scc1 L_qkv_pwo")
        srd(A, SP, 34, 1536 * 640 * 2)
        A(f"s_mul_i32 s{sT0}, s{sU}, 1366")
        A(f"s_lshr_b32 s{sT0}, s{sT0}, 16")
        A(f"s_mul_i32 s{sT1}, s{sT0}, 48")
        A(f"s_sub_u32 s{sT1}, s{sU}, s{sT1}")
        A(f"s_mul_i32 s{sPSRC}, s{sT1}, {32*1280}")
        A(f"s_mul_i32 s{sT0}, s{sT0}, 160")
        A(f"s_add_u32 s{sPSRC}, s{sPSRC}, s{sT0}")
        A(f"s_mul_i32 s{sPDST}, s{sU}, 5120")
        A(f"s_add_u32 s{sPDST}, s{sPDST}, {hex(WS_WD)}")
        A("s_branch L_qkv_pgo")
        A.label("L_qkv_pwo")
        srd(A, SP, 32, 640 * 640 * 2)
        A(f"s_sub_u32 s{sU}, s{sU}, 384")
        A(f"s_mul_i32 s{sT0}, s{sU}, 3277")
        A(f"s_lshr_b32 s{sT0}, s{sT0}, 16")
        A(f"s_mul_i32 s{sT1}, s{sT0}, 20")
        A(f"s_sub_u32 s{sT1}, s{sU}, s{sT1}")
        A(f"s_mul_i32 s{sPSRC}, s{sT0}, 160")
        A(f"s_mul_i32 s{sT0}, s{sT1}, 205")
        A(f"s_lshr_b32 s{sT0}, s{sT0}, 10")
        A(f"s_mul_i32 s{sT2}, s{sT0}, 5")
        A(f"s_sub_u32 s{sT1}, s{sT1}, s{sT2}")
        A(f"s_mul_i32 s{sT0}, s{sT0}, {160*1280}")
        A(f"s_add_u32 s{sPSRC}, s{sPSRC}, s{sT0}")
        A(f"s_mul_i32 s{sPDST}, s{sU}, 5120")
        A(f"s_add_u32 s{sPDST}, s{sPDST}, {hex(WS_WO)}")
        A(f"s_cmp_ge_u32 s{sU}, 160")
        A(f"s_cselect_b32 s{sPDST}, {hex(WS_SIZE)}, s{sPDST}")
        A(f"s_cselect_b32 s{SP+2}, 0, s{SP+2}")
        A(f"s_cmp_eq_u32 s{sT1}, 4")
        A("s_cbranch_scc1 L_qkv_pleft")
        A(f"s_mul_i32 s{sT1}, s{sT1}, {40*1280}")
        A(f"s_add_u32 s{sPSRC}, s{sPSRC}, s{sT1}")
        for jj in range(5):
            A(f"v_lshrrev_b32 v{vT}, 4, v{PF+jj}")
            A(f"v_lshl_add_u32 v{PF+jj}, v{vT}, 2, v{PF+jj}")
        A("s_branch L_qkv_pgo")
        A.label("L_qkv_pleft")
        for jj in range(5):
            k = PF + jj
            A(f"v_lshrrev_b32 v{vT}, 2, v{k}")
            A(f"v_lshl_add_u32 v{k}, v{vT}, 4, v{k}")
            A(f"v_add_u32 v{k}, 16, v{k}")
        A.label("L_qkv_pgo")
        for jj in range(5):
            A(f"v_mul_u32_u24 v{vT}, 1280, v{PF+jj}")
            A(f"v_add_u32 v{VO+jj}, v{VO+jj}, v{vT}")
        A(f"v_lshrrev_b32 v{vT}, 4, v0")
        A(f"v_bfe_u32 v{vT+1}, v0, 2, 2")
        A(f"v_lshl_add_u32 v{vT}, v{vT}, 3, v{vT+1}")
        A(f"v_mul_u32_u24 v{vT}, 160, v{vT}")
        A(f"v_add_u32 v{vT}, s{sPLDS}, v{vT}")
        A(f"v_and_b32 v{vT+1}, 3, v0")
        A(f"v_lshl_add_u32 v{VO+5}, v{vT+1}, 4, v{vT}")
        A(f"v_lshl_add_u32 v{VO+6}, v{vT+1}, 3, v{vT}")
    A("s_waitcnt lgkmcnt(0)")
    cfg = dict(cfg); cfg["q_prep"] = 100
    srd(A, SWS, 50, WS_SIZE)
    if cfg.get("diag"):
        A(f"s_cmp_eq_u32 s2, 16")
        A(f"s_mov_b32 s{sT0}, {hex(WS_TS)}")
        A(f"s_cselect_b32 s{sT0}, s{sT0}, {hex(WS_SIZE)}")
        A(f"v_mov_b32 v{vT}, s56")
        A(f"v_mov_b32 v{vT+1}, 0")
        A(f"buffer_store_dword v{vT}, v{vT+1}, s[{SWS}:{SWS+3}], s{sT0} offen")
    A(f"v_lshrrev_b32 v{vT}, 2, v0")
    A(f"v_xor_b32 v{vT}, v{vT}, v0")
    A(f"v_and_b32 v{vT}, 4, v{vT}")
    A(f"v_cmp_eq_u32 vcc, 0, v{vT}")
    for i in range(4): A(f"v_mov_b32 v{ONE+i}, 0x3f803f80")
    for i in range(4): A(f"v_cndmask_b32 v{SEL+i}, 0, v{ONE}, vcc")
    A(f"s_and_b32 s{sT0}, s{sWAVE}, 1")
    A(f"s_lshl_b32 s{sT0}, s{sT0}, 13")
    A(f"s_lshl_b32 s{sT1}, s{sFH2}, 11")
    A(f"s_add_u32 s{sT0}, s{sT0}, s{sT1}")
    A(f"s_add_u32 s{sT0}, s{sT0}, 16384")
    A(f"v_and_b32 v{vT}, 15, v0")
    A(f"v_lshrrev_b32 v{vT+1}, 4, v0")
    A(f"v_bfe_u32 v{vT+2}, v0, 1, 3")
    A(f"v_xor_b32 v{vT+1}, v{vT+1}, v{vT+2}")
    A(f"v_lshlrev_b32 v{vT}, 7, v{vT}")
    A(f"v_lshl_add_u32 v{vT}, v{vT+1}, 4, v{vT}")
    A(f"v_add_u32 v{vSB}, s{sT0}, v{vT}")
    A(f"v_xor_b32 v{vSB+1}, 64, v{vSB}")
    A(f"s_cmp_ge_u32 s{sFG}, 10")
    A("s_cbranch_scc1 L_qkv_V")

    STF = cfg.get("qkv_st", "sc1")
    def mainloop(isV):
        q = []
        def reads(st):
            c, sl = divmod(st, 4)
            _, so = rebase(c)
            b = FR + 16 * (st % 2)
            out = []
            for u in range(2): out.append((f"ds_read_b64_tr_b16 {v(b+2*u,2)}, v{vTR} offset:{so + (16*sl+4*u)*256}", (st, "A0")))
            out.append((f"ds_read_b128 {v(b+8,4)}, v{vBA+sl} offset:{so}", (st, "B0")))
            out.append((f"ds_read_b128 {v(b+12,4)}, v{vBA+sl} offset:{so + 4096}", (st, "B1")))
            for u in range(2): out.append((f"ds_read_b64_tr_b16 {v(b+4+2*u,2)}, v{vTR+1} offset:{so + (16*sl+4*u)*256}", (st, "A1")))
            out.append((f"ds_read_b128 {v(SF+4*(st%2),4)}, v{vSB+(sl>>1)} offset:{so + 2048*(st%2)}", (st, "S")))
            return out
        def issue(r): A(r[0]); q.append(r[1])
        def wait(tag): A(f"s_waitcnt lgkmcnt({len(q) - 1 - max(i for i, x in enumerate(q) if x == tag)})")
        A("s_barrier")
        for r in reads(0): issue(r)
        stamp(A, cfg, 1)
        for st in range(40):
            nxt = st + 1 < 40
            if st % 4 == 3 and nxt:
                A("s_barrier")
                if cfg.get("qts"): A(f"s_memtime s[{70+2*(st//4)}:{71+2*(st//4)}]")
                d, _ = rebase((st + 1) // 4)
                if d:
                    for r in (vTR, vTR + 1, vBA, vBA + 1, vBA + 2, vBA + 3, vSB, vSB + 1): A(f"v_add_u32 v{r}, {d & 0xffffffff}, v{r}")
            rs = reads(st + 1) if nxt else []
            b = FR + 16 * (st % 2)
            sf = v(SF + 4 * (st % 2), 4); su = v(SUM + 4 * (st % 2), 4); sq = v(SQ + 4 * (st % 2), 4)
            for k, (i, j, tag, nr) in enumerate(((0, 0, "B0", 2), (1, 0, "B1", 2), (0, 1, "S", 2), (1, 1, None, 1))):
                if tag: wait((st, tag))
                af = v(b + 4 * j, 4); xf = v(b + 8 + 4 * i, 4); acc = v(ACC + 32 * i + 16 * j, 16); c = acc if st else "0"
                if isV: A(f"v_mfma_f32_32x32x16_bf16 {acc}, {xf}, {af}, {c}")
                else:   A(f"v_mfma_f32_32x32x16_bf16 {acc}, {af}, {xf}, {c}")
                for _ in range(nr):
                    if rs: issue(rs.pop(0))
                if k == 1: A(f"v_mfma_f32_16x16x32_bf16 {v(CSA,4)}, {v(SEL,4)}, {v(b,4)}, {v(CSA,4) if st else 0}")
                if k == 2 and not cfg.get("q_nost"): A(f"v_mfma_f32_16x16x32_bf16 {su}, {v(ONE,4)}, {sf}, {su if st > 1 else 0}")
                if k == 3 and not cfg.get("q_nost"): A(f"v_mfma_f32_16x16x32_bf16 {sq}, {sf}, {sf}, {sq if st > 1 else 0}")
            if st == cfg.get("q_prep", 5):
                A("s_waitcnt vmcnt(0)")
                for f in range(5):
                    for u in range(2):
                        A(f"ds_read_b64_tr_b16 {v(PF+4*f+2*u,2)}, v{VO+5+(f==4)} offset:{4*u*160 + tile_col_imm(f)}"); q.append("p")
            if st == cfg.get("q_prep", 5) + 1:
                wait("p")
            if cfg.get("q_prep", 5) + 1 <= st <= cfg.get("q_prep", 5) + 5:
                f = st - cfg.get("q_prep", 5) - 1
                A(f"s_add_u32 s{sT0}, s{sPDST}, {f*1024}")
                A(f"buffer_store_dwordx4 {v(PF+4*f,4)}, v{L16}, s[{SWS}:{SWS+3}], s{sT0} offen {STF}")
        stamp(A, cfg, 2)

    def correction(isV):
        cs = CSA
        t0, t1, t2, t3 = vT, vT+1, vT+2, vT+3
        A(f"s_lshl_b32 s{sT0}, s{sJ0}, 9")
        A(f"s_lshl_b32 s{sT1}, s{sJ1}, 9")
        A(f"v_lshlrev_b32 v{t0}, 3, v0")
        A(f"v_add_u32 v{t1}, s{sT1}, v{t0}")
        A(f"v_add_u32 v{t0}, s{sT0}, v{t0}")
        A(f"v_cvt_pk_bf16_f32 v{cs+1}, v{cs}, v{cs}")
        A(f"v_and_b32 v{cs+1}, 0xffff0000, v{cs+1}")
        A(f"v_sub_f32 v{cs}, v{cs}, v{cs+1}")
        A(f"v_cvt_pk_bf16_f32 v{cs+2}, v{cs+1}, v{cs}")
        A(f"v_lshrrev_b32 v{cs+3}, 16, v{cs+1}")
        A(f"ds_write_b64 v{t0}, {v(cs+2,2)} offset:{CSL}")
        A(f"v_and_b32 v{t2}, 3, v0")
        for k in (1, 2, 3):
            A(f"v_cmp_eq_u32 vcc, {k}, v{t2}")
            for i in range(2): A(f"v_cndmask_b32 v{SQ+4*i}, v{SQ+4*i}, v{SQ+4*i+k}, vcc")
        A(f"s_and_b32 s{sT0}, s{sWAVE}, 1")
        A(f"s_lshl_b32 s{sT0}, s{sT0}, 6")
        A(f"s_lshl_b32 s{sT1}, s{sFH2}, 4")
        A(f"s_add_u32 s{sT1}, s{sT1}, s{sT0}")
        A(f"v_and_b32 v{t2}, 15, v0")
        A(f"v_add_u32 v{t2}, s{sT1}, v{t2}")
        A(f"v_lshlrev_b32 v{t3}, 2, v{t2}")
        A(f"v_lshlrev_b32 v{t2}, 3, v{t2}")
        for i in range(2):
            sm, sq = SUM + 4 * i, SQ + 4 * i
            A(f"v_mul_f32 v{sm}, {fhex(1/640)}, v{sm}")
            A(f"v_mul_f32 v{sq}, {fhex(1/640)}, v{sq}")
            A(f"v_fma_f32 v{sq}, -v{sm}, v{sm}, v{sq}")
            A(f"v_max_f32 v{sq}, 0, v{sq}")
            A(f"v_add_f32 v{sq}, {fhex(1e-5)}, v{sq}")
            A(f"v_rsq_f32 v{sq}, v{sq}")
            A(f"v_cvt_pk_bf16_f32 v{sm+2}, -v{sm}, -v{sm}")
            A(f"v_and_b32 v{sm+3}, 0xffff0000, v{sm+2}")
            A(f"v_sub_f32 v{sm+3}, -v{sm}, v{sm+3}")
            A(f"v_cvt_pk_bf16_f32 v{sm+3}, v{sm+3}, 0")
        A("s_mov_b32 exec_lo, 0x00f0000f")
        A("s_mov_b32 exec_hi, 0xf0000f00")
        for i in range(2):
            A(f"ds_write_b64 v{t2}, {v(SUM+4*i+2,2)} offset:{STL + 128*i}")
            A(f"ds_write_b32 v{t3}, v{SQ+4*i} offset:{STL + 1024 + 64*i}")
        A("s_mov_b64 exec, -1")
        A(f"v_and_b32 v{t2}, 31, v0")
        A(f"v_add_u32 v{t2}, s{sT0}, v{t2}")
        if isV:
            A(f"v_lshrrev_b32 v{t3}, 5, v0")
            A(f"v_lshlrev_b32 v{t3}, 2, v{t3}")
            A(f"v_add_u32 v{t3}, s{sT0}, v{t3}")
            A(f"v_lshlrev_b32 v{t3}, 2, v{t3}")
        else:
            A(f"v_lshlrev_b32 v{t3}, 2, v{t2}")
        A(f"v_lshlrev_b32 v{t2}, 3, v{t2}")
        A(f"v_cmp_gt_u32 vcc, 32, v0")
        A("s_waitcnt lgkmcnt(0)")
        A("s_barrier")
        for i in range(2): A(f"ds_read_b64 {v(MB+2*i,2)}, v{t2} offset:{STL + 256*i}")
        A(f"ds_read_b64 {v(cs+4,2)}, v{t1} offset:{CSL}")
        if isV:
            for i in range(2):
                for aa in range(4): A(f"ds_read_b128 {v(vST+16*i+4*aa,4)}, v{t3} offset:{STL + 1024 + 128*i + 32*aa}")
        else:
            for i in range(2): A(f"ds_read_b32 v{RS+i}, v{t3} offset:{STL + 1024 + 128*i}")
        A(f"s_waitcnt lgkmcnt({8 if isV else 2})")
        for k in range(4): A(f"v_cndmask_b32 v{MB+k}, 0, v{MB+k}, vcc")
        for j in range(2):
            cf = v(cs + 2 + 2 * j, 2)
            for i in range(2):
                mb = v(MB + 2 * i, 2); acc = v(ACC + 32 * i + 16 * j, 16)
                if isV: A(f"v_mfma_f32_32x32x8_bf16 {acc}, {mb}, {cf}, {acc}")
                else:   A(f"v_mfma_f32_32x32x8_bf16 {acc}, {cf}, {mb}, {acc}")
        A("s_waitcnt lgkmcnt(0)")

    tr_addr(True, (f"s{sJ0}", f"s{sJ1}"))
    t0, t1, t2, tok16, half = vT, vT+1, vT+2, vT+4, vT+6
    A(f"s_cmp_ge_u32 s{sFG}, 5")
    A(f"s_cselect_b32 s{sT1}, 5, 0")
    A(f"s_cselect_b32 s{sBASE}, {hex(WS_K)}, {hex(WS_Q)}")
    A(f"s_cselect_b32 s{sQS}, 1.0, {fhex(QSCALE)}")
    A(f"s_sub_u32 s{sT1}, s{sFG}, s{sT1}")
    A(f"s_lshl_b32 s{sT1}, s{sT1}, 4")
    A(f"s_mul_i32 s{sT2}, s{sTILE}, 2560")
    A(f"s_add_u32 s{sBASE}, s{sBASE}, s{sT2}")
    A(f"v_lshrrev_b32 v{half}, 5, v0")
    A(f"v_add_u32 v{half}, s{sT1}, v{half}")
    A(f"v_and_b32 v{tok16}, 31, v0")
    A(f"v_lshlrev_b32 v{tok16}, 4, v{tok16}")
    A(f"s_mov_b32 s{sT2}, {PAIR_STRIDE - 2560}")
    for q in range(4):
        A(f"s_lshl_b32 s{sT0}, s{sJ0 + q//2}, 2")
        A(f"s_add_u32 s{sT0}, s{sT0}, {2*(q%2)}")
        A(f"v_add_u32 v{t0}, s{sT0}, v{half}")
        A(f"v_mul_u32_u24 v{t1}, 205, v{t0}")
        A(f"v_lshrrev_b32 v{t1}, 10, v{t1}")
        A(f"v_mul_lo_u32 v{t1}, s{sT2}, v{t1}")
        A(f"v_lshl_add_u32 v{t0}, v{t0}, 9, v{tok16}")
        A(f"v_add_u32 v{vADR+q}, v{t0}, v{t1}")
    if cfg.get("tlb", 1) & 1:
        A("s_mov_b32 exec_lo, 1")
        A("s_mov_b32 exec_hi, 1")
        for q in range(4): A(f"buffer_load_dword v{vT+7}, v{vADR+q}, s[{SWS}:{SWS+3}], s{sBASE} offen")
        A("s_mov_b64 exec, -1")
    mainloop(False)
    correction(False)
    for i in range(2): A(f"v_mul_f32 v{RS+i}, s{sQS}, v{RS+i}")
    for j in range(2):
        for i in range(2):
            for sg in range(2):
                r = ACC + 32 * i + 16 * j + 8 * sg
                for b in range(8): A(f"v_mul_f32 v{r+b}, v{RS+i}, v{r+b}")
                for b in range(4): A(f"v_cvt_pk_bf16_f32 v{r+b}, v{r+2*b}, v{r+2*b+1}")
                A(f"buffer_store_dwordx4 {v(r,4)}, v{vADR+2*j+sg}, s[{SWS}:{SWS+3}], s{sBASE} offen offset:{2560*i} {STF}")
    A("s_branch L_qkv_fin")

    A.label("L_qkv_V")
    tr_addr(False, (f"s{sJ0}", f"s{sJ1}"))
    A(f"s_mul_i32 s{sBASE}, s{sTILE}, 1280")
    A(f"s_add_u32 s{sBASE}, s{sBASE}, {hex(WS_V)}")
    A(f"s_sub_u32 s{sT1}, s{sFG}, 10")
    A(f"s_lshl_b32 s{sT1}, s{sT1}, 7")
    A(f"v_lshrrev_b32 v{half}, 5, v0")
    A(f"v_mul_u32_u24 v{half}, 320, v{half}")
    A(f"v_and_b32 v{tok16}, 31, v0")
    A(f"v_add_u32 v{tok16}, s{sT1}, v{tok16}")
    A(f"s_mov_b32 s{sT2}, {VHEAD_STRIDE - 320}")
    for j in range(2):
        A(f"s_lshl_b32 s{sT0}, s{sJ0 + j}, 5")
        A(f"v_add_u32 v{t0}, s{sT0}, v{tok16}")
        A(f"v_mul_u32_u24 v{t1}, 3277, v{t0}")
        A(f"v_lshrrev_b32 v{t1}, 16, v{t1}")
        A(f"v_mul_lo_u32 v{t1}, s{sT2}, v{t1}")
        A(f"v_lshl_add_u32 v{t0}, v{t0}, 4, v{half}")
        A(f"v_add_u32 v{vADR+j}, v{t0}, v{t1}")
    if cfg.get("tlb", 1) & 1:
        A("s_mov_b32 exec_lo, 0x80008001")
        A("s_mov_b32 exec_hi, 0")
        for q in range(2): A(f"buffer_load_dword v{vT+7}, v{vADR+q}, s[{SWS}:{SWS+3}], s{sBASE} offen")
        A("s_mov_b64 exec, -1")
    mainloop(True)
    correction(True)
    for j in range(2):
        for i in range(2):
            for mf in range(2):
                r = ACC + 32 * i + 16 * j + 8 * mf
                for b in range(8): A(f"v_mul_f32 v{r+b}, v{vST+16*i+8*mf+b}, v{r+b}")
                for b in range(4): A(f"v_cvt_pk_bf16_f32 v{r+b}, v{r+2*b}, v{r+2*b+1}")
                A(f"buffer_store_dwordx4 {v(r,4)}, v{vADR+j}, s[{SWS}:{SWS+3}], s{sBASE} offen offset:{1280*i + mf*640} {STF}")
    A.label("L_qkv_fin")
    stamp(A, cfg, 3)
    if cfg.get("qts"):
        for c in range(9): A(f"s_mov_b32 s{71+2*c}, s{70+2*c}")
        A("s_mov_b32 s68, 0")
        A("s_mov_b32 s69, 0")
        stamp_flush(A, cfg, 14, 17, SWS, sWAVE, 0)
        A("s_mov_b64 exec, -1")
    stamp_flush(A, cfg, 4, 0, SWS, sWAVE, 0)
    A("s_endpgm")

    A.label("L_qkv_loader")
    vWOFF, vXOFF = 1, 72
    sWLIM = 44
    if cfg.get("rot", 1):
        A(f"s_lshl_b32 s{sT0}, s{sT0}, 2")
        A(f"s_lshr_b32 s{sC0}, 0x30858530, s{sT0}")
        A(f"s_and_b32 s{sC0}, s{sC0}, 15")
    else:
        A(f"s_mov_b32 s{sC0}, 0")
    A(f"s_sub_u32 s{sWAVE}, s{sWAVE}, 4")
    A(f"v_and_b32 v{vT}, 15, v0")
    A(f"v_lshrrev_b32 v{vT+1}, 4, v0")
    A(f"v_lshlrev_b32 v{vT+2}, 2, v{vT+1}")
    A(f"v_xor_b32 v{vT+2}, v{vT+2}, v{vT}")
    A(f"v_mul_u32_u24 v{vWOFF}, 3840, v{vT+1}")
    A(f"v_lshl_add_u32 v{vWOFF}, v{vT+2}, 4, v{vWOFF}")
    A(f"v_and_b32 v{vT}, 7, v0")
    A(f"v_xor_b32 v{vT}, v{vT}, v{vT+1}")
    A(f"v_lshrrev_b32 v{vT+2}, 3, v0")
    A(f"v_mul_u32_u24 v{vT+2}, 1280, v{vT+2}")
    A(f"v_lshl_add_u32 v{vXOFF}, v{vT}, 4, v{vT+2}")
    A(f"v_xor_b32 v{vXOFF+1}, 64, v{vXOFF}")
    A(f"s_lshl_b32 s{sWO}, s{sFG}, 8")
    A(f"s_mul_i32 s{sT0}, s{sWAVE}, {16*3840}")
    A(f"s_add_u32 s{sWO}, s{sWO}, s{sT0}")
    A(f"s_add_u32 s{sWLIM}, s{sWO}, {640*3840}")
    A(f"s_mul_i32 s{sT0}, s{sC0}, {64*3840}")
    A(f"s_add_u32 s{sWO}, s{sWO}, s{sT0}")
    A(f"s_lshl_b32 s{sXO}, s{sTB}, 2")
    A(f"s_add_u32 s{sXO}, s{sXO}, s{sWAVE}")
    A(f"s_mul_i32 s{sXO}, s{sXO}, {32*1280}")
    A(f"s_lshl_b32 s{sT0}, s{sC0}, 7")
    A(f"s_add_u32 s{sXO}, s{sXO}, s{sT0}")
    A(f"s_lshl_b32 s{sM0}, s{sWAVE}, 12")
    A("s_waitcnt lgkmcnt(0)")
    srd(A, SW, 6, 640 * 1920 * 2)
    srd(A, SX, SX, X_BYTES)
    def dma_ops(c):
        ops = []
        for j in range(4):
            ops.append([f"s_add_u32 m0, s{sM0}, {(c%5)*SLOT + j*1024}", f"s_add_u32 s{sT0}, s{sWO}, {4*j*3840}",
                        f"buffer_load_dwordx4 v{vWOFF}, s[{SW}:{SW+3}], s{sT0} offen lds"])
            ops.append([f"s_add_u32 m0, s{sM0}, {(c%5)*SLOT + 16384 + j*1024}", f"s_add_u32 s{sT0}, s{sXO}, {8*j*1280}",
                        f"buffer_load_dwordx4 v{vXOFF+(j%2)}, s[{SX}:{SX+3}], s{sT0} offen lds"])
        ops[-1] += [f"s_add_u32 s{sWO}, s{sWO}, {64*3840}", f"s_add_u32 s{sXO}, s{sXO}, 128",
                    f"s_cmp_eq_u32 s{sWO}, s{sWLIM}", f"s_cselect_b32 s{sT0}, {640*3840}, 0", f"s_cselect_b32 s{sT1}, 1280, 0",
                    f"s_sub_u32 s{sWO}, s{sWO}, s{sT0}", f"s_sub_u32 s{sXO}, s{sXO}, s{sT1}"]
        return ops
    def emit(op):
        for x in op:
            if cfg.get("q_nodma") and x.startswith("buffer_"): continue
            A(x)
    IW = cfg.get("iw", 2)
    for c in range(IW):
        for op in dma_ops(c): emit(op)
    srd(A, SWS, 50, WS_SIZE)
    prep_setup()
    ops = [("w", c) for c in range(IW) for _ in range(8)]
    nw = IW
    def wait_for(tag):
        last = max(i for i, o in enumerate(ops) if o == tag)
        A(f"s_waitcnt vmcnt({len(ops) - 1 - last})")
    for c in range(10):
        wait_for(("w", c))
        A("s_barrier")
        for k in range(2 if c in cfg.get("extra_at", []) else 1):
            if nw < 10 and nw <= max(c + 3, 4) and (nw != 4 or c >= 2 or not cfg.get('k1prep', 0)):
                for op in dma_ops(nw): emit(op)
                ops += [("w", nw)] * 8; nw += 1
        if c == 7:
            for jj in range(5):
                A(f"s_add_u32 m0, s{sPLDS}, {jj*1024}")
                A(f"buffer_load_dwordx4 v{VO+jj}, s[{SP}:{SP+3}], s{sPSRC} offen lds")
            ops += [("p", 0)] * 5
    if cfg.get("prep_late", 0): A("s_barrier")
    A("s_waitcnt vmcnt(0)")
    for f in range(5):
        for u in range(2):
            A(f"ds_read_b64_tr_b16 {v(PF+4*f+2*u,2)}, v{VO+5+(f==4)} offset:{4*u*160 + tile_col_imm(f)}")
    A("s_waitcnt lgkmcnt(0)")
    for f in range(5):
        A(f"s_add_u32 s{sT0}, s{sPDST}, {f*1024}")
        A(f"buffer_store_dwordx4 {v(PF+4*f,4)}, v{L16}, s[{SWS}:{SWS+3}], s{sT0} offen {STF}")
    A("s_endpgm")

    A.label("L_qkv_helper")
    XD = 16
    if cfg.get("ctouch", 1):
        code_touch_setup(A, 46, "qkv_kernel", True)
        A(f"v_lshlrev_b32 v{vT+1}, 7, v0")
        A(f"v_min_u32 v{vT+1}, L_code_end-qkv_kernel-4, v{vT+1}")
        A(f"global_load_dword v{vT+7}, v{vT+1}, s[46:47]")
    A(f"v_and_b32 v0, 63, v0")
    A("s_waitcnt lgkmcnt(0)")
    srd(A, SWS, 50, WS_SIZE)
    if cfg.get("ptouch", 0):
        srd(A, SP, 34, 1536 * 640 * 2)
        srd(A, SW, 32, 640 * 640 * 2)
        A(f"s_lshl_b32 s{sT0}, s2, 3")
        A(f"s_add_u32 s{sT0}, s{sT0}, s{sWAVE}")
        A(f"s_mul_i32 s{sT1}, s{sT0}, {50*128}")
        A(f"s_mul_i32 s{sT0}, s{sT0}, {120*128}")
        A(f"v_lshlrev_b32 v1, 7, v0")
        A("s_bfm_b64 exec, 60, 0")
        A(f"buffer_load_dword v4, v1, s[{SP}:{SP+3}], s{sT0} offen")
        A(f"s_add_u32 s{sT0}, s{sT0}, {60*128}")
        A(f"buffer_load_dword v4, v1, s[{SP}:{SP+3}], s{sT0} offen")
        A("s_bfm_b64 exec, 50, 0")
        A(f"buffer_load_dword v4, v1, s[{SW}:{SW+3}], s{sT1} offen")
        A("s_mov_b64 exec, -1")
    if cfg.get("tlbw", 1):
        A("s_load_dwordx4 s[40:43], s[0:1], 32")
        A("s_load_dwordx2 s[52:53], s[0:1], 56")
        A(f"v_lshlrev_b32 v1, 18, v0")
        A(f"s_cmp_lg_u32 s{sWAVE}, 0")
        A("s_cbranch_scc1 L_qkv_notlb")
        A(f"buffer_load_dword v4, v1, s[{SWS}:{SWS+3}], 0 offen")
        A(f"s_mov_b32 s{sT0}, 0x1000000")
        A("s_bfm_b64 exec, 24, 0")
        A(f"buffer_load_dword v4, v1, s[{SWS}:{SWS+3}], s{sT0} offen")
        A("s_mov_b64 exec, -1")
        A("s_waitcnt lgkmcnt(0)")
        for p, nb in ((40, 640*1536*2), (42, 640*1536*2), (52, X_BYTES), (32, 640*640*2), (34, 640*1536*2)):
            srd(A, SP, p, nb)
            A(f"buffer_load_dword v4, v1, s[{SP}:{SP+3}], 0 offen")
        A.label("L_qkv_notlb")
        A("s_waitcnt lgkmcnt(0)")
    if cfg.get("gtouch", 0):
        A("s_load_dwordx4 s[40:43], s[0:1], 32")
        A(f"s_lshl_b32 s{sT0}, s2, 3")
        A(f"s_add_u32 s{sT0}, s{sT0}, s{sWAVE}")
        A(f"s_mul_i32 s{sT0}, s{sT0}, {120*128}")
        A(f"s_add_u32 s{sT1}, s{sT0}, {60*128}")
        A(f"v_lshlrev_b32 v1, 7, v0")
        A("s_waitcnt lgkmcnt(0)")
        srd(A, SP, 40, 1536 * 640 * 2)
        srd(A, SW, 42, 1536 * 640 * 2)
        if cfg["gtouch"] == 2: A("s_waitcnt vmcnt(0)")
        A("s_bfm_b64 exec, 60, 0")
        for sr in (SP, SW):
            for so in (sT0, sT1):
                A(f"buffer_load_dword v4, v1, s[{sr}:{sr+3}], s{so} offen")
        A("s_mov_b64 exec, -1")
    stamp(A, cfg, 1)
    stamp(A, cfg, 2)
    A(f"s_lshl_b32 s{sT0}, s{sWAVE}, 10")
    A(f"s_add_u32 s{sT0}, s{sT0}, {hex(WS_SYNC)}")
    A(f"s_cmp_eq_u32 s2, 0")
    A(f"s_cselect_b32 s{sT0}, s{sT0}, {hex(WS_SIZE)}")
    for i in range(4): A(f"v_mov_b32 v{XD+i}, 0")
    A(f"v_lshlrev_b32 v1, 4, v0")
    A(f"buffer_store_dwordx4 {v(XD,4)}, v1, s[{SWS}:{SWS+3}], s{sT0} offen")
    stamp(A, cfg, 3)
    stamp_flush(A, cfg, 4, 0, SWS, sWAVE, 0)
    A.label("L_qkv_end")
    A("s_endpgm")
    return dict(name=name, grid=256, block=512, lds=163840, desc=kernel_desc(name, 216, 216))
```

```python
from common import *

GU_SLOT = 24608
GU_UP = 12288 + 32
GU_MISC = 6 * GU_SLOT
NWS, H_BASE, NHS = 4, 4 * GU_SLOT, 3
PART_BASE = 4 * GU_SLOT
KV_SLOT = 20480
NKV = 3
KV_BASE = 163840 - NKV * KV_SLOT
NV = 112

class R:
    S = (16, 32); O = 48; P = 64; K1 = 72; K2 = 76; V1 = 80; V2 = 84; Q1 = 88; Q2 = 92
    KA = 1; K2A = 2; VA = 3; L16 = 4; F2S = 5; L4 = 7; T = 8; TCH = 94
    GV = 96
    XRES = 100

SX, SWS, SG_, SU, SO = 4, 8, 12, 16, 20
sWAVE, sG, sM, sT0, sT1, sT2, sC, sDELTA, sSLOT, sQT = 24, 25, 26, 27, 28, 29, 30, 31, 32, 33
sVMASK = 34
sKSRC, sVSRC, sKBASE, sVBASE, sFG, sTOK16, sJ, sFAST, sWOSRC, sWDSRC, sGSRC, sGM0, sFLAG, sB, sXCC, sLW = 36, 37, 38, 39, 40, 41, 42, 43, 44, 45, 46, 47, 48, 49, 50, 51
sTMP = 52
SWO_, SWD_ = 92, 96
sSTG, sWDRAW, sTO, sKQ, sB2 = 86, 87, 90, 95, 96

def WD(step, f, n=4):
    if step == 7: return v(40 + 4 * f, n)
    return a({0: 100, 1: 120, 2: 80, 3: 60, 4: 40, 5: 20, 6: 0}[step] + 4 * f, n)
def A_RES(i): return 140 + i if i < 4 else 56 + (i - 4)

def set_shift(A, m):
    t0, t1, t2 = m + 1, m + 2, m + 3
    A(f"v_cvt_pk_bf16_f32 v{t0}, -v{m}, -v{m}")
    A(f"v_and_b32 v{t0}, 0xffff0000, v{t0}")
    A(f"v_sub_f32 v{t1}, -v{m}, v{t0}")
    A(f"v_cvt_pk_bf16_f32 v{t2}, v{t0}, v{t1}")
    A(f"v_and_b32 v{t0}, 0xffff0000, v{t2}")
    A(f"v_sub_f32 v{t1}, v{t1}, v{t0}")
    A(f"v_cvt_pk_bf16_f32 v{t1}, v{t1}, 0")
    A(f"v_cmp_gt_u32 vcc, 32, v0")
    A(f"v_cndmask_b32 v{R.Q2+1}, v{t1}, v{t2}, vcc")

def max16(A, dst, S, first):
    if first:
        A(f"v_max3_f32 v{dst}, v{S}, v{S+1}, v{S+2}")
        A(f"v_max_f32 v{dst}, v{dst}, v{S+3}")
        rng = range(4, 16, 2)
    else:
        rng = range(0, 16, 2)
    for i in rng: A(f"v_max3_f32 v{dst}, v{dst}, v{S+i}, v{S+i+1}")

def xhalf_max(A, m, t):
    A(f"v_mov_b32 v{t}, v{m}")
    A(f"v_permlane32_swap_b32 v{m}, v{t}")
    A(f"v_max_f32 v{m}, v{m}, v{t}")

def stores(A, lst, data=True):
    if data and CFG.get("wt", 2) & 1:
        for x in lst: A(x + (" sc1" if x.startswith("buffer_") else ""))
        return
    L1, L2 = A.newlabel("stf"), A.newlabel("ste")
    A(f"s_cmp_lg_u32 s{sFAST}, 0")
    A(f"s_cbranch_scc1 {L1}")
    for x in lst: A(x + (" sc1" if x.startswith("buffer_") else ""))
    A(f"s_branch {L2}")
    A.label(L1)
    for x in lst: A(x)
    A.label(L2)

def readback(A, lst):
    if not CFG.get("rb", 0) & 1: return
    for mask, ops in lst:
        ops = [x + " sc1" for x in ops]
        A(f"s_mov_b32 exec_lo, {hex(mask & 0xffffffff)}")
        A(f"s_mov_b32 exec_hi, {hex(mask >> 32)}")
        for x in ops: A(x)
    A("s_mov_b64 exec, -1")

def sync(A, idx, poller, half, nleft, between=None, rb=None):
    T = R.T
    A(f"s_waitcnt vmcnt({nleft})")
    if rb: readback(A, rb)
    A("s_barrier")
    L, LP = A.newlabel("sy"), A.newlabel("poll")
    A(f"s_cmp_lg_u32 s{sWAVE}, {poller}")
    if between is not None:
        LB = A.newlabel("btw")
        A(f"s_cbranch_scc1 {LB}")
    else:
        A(f"s_cbranch_scc1 {L}")
    A(f"s_lshl_b32 s{sT0}, s{sM}, 2")
    A(f"s_add_u32 s{sT0}, s{sT0}, s{sFLAG}")
    A(f"v_mov_b32 v{T}, 1")
    A(f"v_mov_b32 v{T+1}, 0")
    A("s_mov_b64 exec, 1")
    stores(A, [f"buffer_store_dword v{T}, v{T+1}, s[{SWS}:{SWS+3}], s{sT0} offen offset:{idx*128}"], data=False)
    if half:
        A(f"s_and_b32 s{sT0}, s{sM}, 2")
        A(f"s_lshl_b32 s{sT0}, 0x33333333, s{sT0}")
        A(f"s_mov_b32 exec_lo, s{sT0}")
    else:
        A("s_mov_b32 exec_lo, -1")
    A(f"v_lshlrev_b32 v{T+1}, 2, v0")
    A(f"s_mov_b32 s{sT1}, 0")
    A.label(LP)
    A(f"buffer_load_dword v{T}, v{T+1}, s[{SWS}:{SWS+3}], s{sFLAG} offen offset:{idx*128} sc1")
    A(f"s_add_u32 s{sT1}, s{sT1}, 1")
    A("s_waitcnt vmcnt(0)")
    A(f"v_cmp_eq_u32 vcc, 0, v{T}")
    A(f"s_cmp_lt_u32 s{sT1}, 0x40000")
    A(f"s_cselect_b64 vcc, vcc, 0")
    A(f"s_cbranch_vccnz {LP}")
    A("s_mov_b64 exec, -1")
    if between is not None:
        A("s_barrier")
        between()
        A(f"s_branch {L}")
        A.label(LB)
        between()
        A("s_barrier")
        A.label(L)
    else:
        A.label(L)
        A("s_barrier")

def addr_rowmajor(A, vp, vs, T):
    A(f"v_and_b32 v{T}, 15, v0")
    A(f"v_lshrrev_b32 v{T+1}, 4, v0")
    A(f"v_mul_u32_u24 v{T}, 1280, v{T}")
    A(f"s_add_u32 s{sT0}, s{sLW}, s{sTOK16}")
    A(f"s_mul_i32 s{sT0}, s{sT0}, {16*1280}")
    A(f"s_mul_i32 s{sT1}, s{sFG}, 160")
    A(f"s_add_u32 s{sT0}, s{sT0}, s{sT1}")
    A(f"v_add_u32 v{T}, s{sT0}, v{T}")
    A(f"v_lshl_add_u32 v{vp}, v{T+1}, 4, v{T}")
    A(f"v_lshl_add_u32 v{vs}, v{T+1}, 3, v{T}")
    A(f"v_add_u32 v{vs}, 128, v{vs}")
    A(f"s_and_b32 s{sT0}, s{sWAVE}, 4")
    A(f"s_lshl_b32 s{sT0}, s{sT0}, 4")
    A(f"v_add_u32 v{vp}, s{sT0}, v{vp}")

def reduce_addr(A, P, base, RA):
    A(f"s_mul_i32 s{sT0}, s{sLW}, 5120")
    A(f"s_and_b32 s{sT1}, s{sWAVE}, 4")
    A(f"s_lshl_b32 s{sT1}, s{sT1}, 9")
    A(f"s_add_u32 s{sT0}, s{sT0}, s{sT1}")
    A(f"s_add_u32 s{sT0}, s{sT0}, {base}")
    A(f"v_add_u32 v{RA}, s{sT0}, v{R.L16}")
    for k in range(1, (P + 2) // 3): A(f"v_add_u32 v{RA+k}, {3*20480*k}, v{RA}")

def reduce_sum(A, P, D, RA, n, own, mid=None):
    W = 4 * n
    for p in range(P):
        for e in range(n):
            A(f"ds_read_b128 {v(D+W*p+4*e,4)}, v{RA+p//3} offset:{(p%3)*20480 + (e*1024 if e < 2 else 4096)}")
    if mid: mid()
    for p in range(P):
        A(f"s_waitcnt lgkmcnt({min(15, n*(P-1-p))})")
        for e in range(n):
            for i in (0, 2): A(f"v_pk_add_f32 {v(own[e]+i,2)}, {v(own[e]+i,2)}, {v(D+W*p+4*e+i,2)}")

CFG = {}
def gu_dma_ops(c):
    ops = []
    for isup in range(2):
        sr = SU if isup else SG_
        for jj in range(3):
            ops.append([f"s_add_u32 m0, s{sGM0}, {(c%NWS)*GU_SLOT + isup*GU_UP + jj*1024}",
                        f"s_add_u32 s{sT0}, s{sGSRC}, {(3 if CFG.get('gu_same') else c)*64*3072}",
                        f"buffer_load_dwordx4 v{R.GV+jj}, s[{sr}:{sr+3}], s{sT0} offen lds"])
    return ops
def load_wd_ops(step):
    return [[f"s_add_u32 s{sT0}, s{sWDSRC}, {step*5120 + f*1024}",
             f"buffer_load_dwordx4 {WD(step, f)}, v{R.L16}, s[{SWS}:{SWS+3}], s{sT0} offen"] for f in range(5)]
def gu_dma(A, c, rows):
    A(f"s_add_u32 s{sT0}, s{sGSRC}, {c*64*3072}")
    for isup in range(2):
        sr = SU if isup else SG_
        for jj in range(3):
            A(f"s_add_u32 m0, s{sGM0}, {(c%NWS)*GU_SLOT + isup*GU_UP + jj*1024}")
            A(f"buffer_load_dwordx4 v{R.GV+jj}, s[{sr}:{sr+3}], s{sT0} offen lds")

def load_wd(A, step):
    for f in range(5):
        if f % 4 == 0: A(f"s_add_u32 s{sT0}, s{sWDSRC}, {step*5120 + f*1024}")
        A(f"buffer_load_dwordx4 {WD(step, f)}, v{R.L16}, s[{SWS}:{SWS+3}], s{sT0} offen offset:{(f%4)*1024}")

def cfg_touch_plan(cfg, gu_touch, out_touch, wd_touch, extra):
    plan = cfg.get("tplan", [[20,"gw"],[42,"h"],[45,"o"],[50,"st"]])
    out = []
    for t, w in plan:
        if w in extra: out.append((t, extra[w]))
        elif w[0] == "g": out.append((t, gu_touch(int(w[1]))))
        else: out.append((t, {"o": out_touch(WS_O, 1280), "h": out_touch(WS_H, 1280), "hid": out_touch(WS_HID, 3072), "st": out_touch(WS_ST2, 128), "wd": wd_touch,
                                 "hid0": out_touch(WS_HID, 3072, 0, 8), "hid1": out_touch(WS_HID, 3072, 8, 8), "hid2": out_touch(WS_HID, 3072, 16, 8)}[w]))
    return out

def gen_main(A, cfg):
    name = "main_kernel"
    CFG.update(cfg)
    cfg = dict(cfg); cfg["_k2"] = 1
    kstart(A, name)
    T = R.T
    A("s_cmp_ge_u32 s2, 256")
    A("s_cbranch_scc1 L_end")
    A(f"s_load_dwordx2 s[{SWS}:{SWS+1}], s[0:1], 72")
    A(f"s_load_dwordx2 s[{SX}:{SX+1}], s[0:1], 0")
    A(f"s_load_dwordx2 s[{SG_}:{SG_+1}], s[0:1], 32")
    A(f"s_load_dwordx2 s[{SU}:{SU+1}], s[0:1], 40")
    A(f"s_load_dwordx2 s[{SO}:{SO+1}], s[0:1], 56")
    stamp(A, cfg, 0)
    A(f"v_lshrrev_b32 v{T}, 6, v0")
    A(f"v_and_b32 v0, 63, v0")
    A(f"v_readfirstlane_b32 s{sWAVE}, v{T}")
    A(f"s_and_b32 s{sG}, s2, 7")
    A(f"s_lshr_b32 s{sM}, s2, 3")
    A(f"s_lshr_b32 s{sT0}, s{sM}, 1")
    A(f"s_mul_i32 s{sKBASE}, s{sT0}, {PAIR_STRIDE}")
    A(f"s_mul_i32 s{sVBASE}, s{sM}, {VHEAD_STRIDE}")
    A(f"s_add_u32 s{sVBASE}, s{sVBASE}, {hex(WS_V)}")
    A(f"s_lshl_b32 s{sQT}, s{sG}, 3")
    A(f"s_add_u32 s{sQT}, s{sQT}, s{sWAVE}")
    A(f"s_and_b32 s{sT1}, s{sM}, 1")
    A(f"v_lshlrev_b32 v{R.L16}, 4, v0")
    A(f"s_mul_i32 s{sT2}, s{sT1}, 1536")
    A(f"v_add_u32 v{R.F2S+1}, s{sT2}, v{R.L16}")
    A(f"v_and_b32 v{T}, 31, v0")
    A(f"v_lshrrev_b32 v{T+1}, 5, v0")
    A(f"v_lshlrev_b32 v{R.F2S}, 4, v{T}")
    A(f"v_lshl_add_u32 v{R.F2S}, v{T+1}, 2, v{R.F2S}")
    A(f"s_lshl_b32 s{sT1}, s{sT1}, 3")
    A(f"s_add_u32 s{sT1}, s{sT1}, 1024")
    A(f"v_add_u32 v{R.F2S}, s{sT1}, v{R.F2S}")
    A(f"s_mul_i32 s{sKSRC}, s{sWAVE}, 2560")
    A(f"s_add_u32 s{sKSRC}, s{sKSRC}, s{sKBASE}")
    A(f"s_mul_i32 s{sVSRC}, s{sWAVE}, 1280")
    A(f"s_mul_i32 s{sSLOT}, s{sWAVE}, 2560")
    A(f"v_lshlrev_b32 v{R.L4}, 2, v0")
    A(f"s_add_u32 s{sVSRC}, s{sVSRC}, s{sVBASE}")
    A("s_waitcnt lgkmcnt(0)")
    srd(A, SWS, SWS, WS_SIZE)
    KVF = cfg.get("kvflag", "")
    def kv_ops(c):
        lds = KV_BASE + (c % NKV) * KV_SLOT
        return [
            [f"s_add_u32 m0, s{sSLOT}, {lds}", f"s_add_u32 s{sT0}, s{sKSRC}, {c*8*2560}",
             f"buffer_load_dwordx4 v{R.F2S+1}, s[{SWS}:{SWS+3}], s{sT0} offen {KVF} lds"],
            [f"s_add_u32 m0, s{sSLOT}, {lds+1024}", f"s_add_u32 s{sT0}, s{sKSRC}, {c*8*2560}",
             f"buffer_load_dword v{R.F2S}, s[{SWS}:{SWS+3}], s{sT0} offen {KVF} lds"],
            [f"s_add_u32 m0, s{sSLOT}, {lds+1280}", f"s_add_u32 s{sT0}, s{sVSRC}, {c*8*1280}",
             f"buffer_load_dwordx4 v{R.L16}, s[{SWS}:{SWS+3}], s{sT0} offen {KVF} lds"],
            [f"s_add_u32 m0, s{sSLOT}, {lds+2304}", f"s_add_u32 s{sT0}, s{sVSRC}, {c*8*1280+1024}",
             f"buffer_load_dword v{R.L4}, s[{SWS}:{SWS+3}], s{sT0} offen {KVF} lds"]]
    def emit(op):
        for x in op: A(x)
    A(f"s_mul_i32 s{sT2}, s{sQT}, 2560")
    A(f"s_add_u32 s{sT2}, s{sT2}, s{sKBASE}")
    A(f"s_add_u32 s{sT2}, s{sT2}, {hex(WS_Q)}")
    A(f"buffer_load_dwordx4 {v(R.Q1,4)}, v{R.F2S+1}, s[{SWS}:{SWS+3}], s{sT2} offen")
    A(f"buffer_load_dword v{R.Q2}, v{R.F2S}, s[{SWS}:{SWS+3}], s{sT2} offen")
    A(f"buffer_load_dwordx4 {v(R.K1,4)}, v{R.F2S+1}, s[{SWS}:{SWS+3}], s{sKBASE} offen")
    A(f"buffer_load_dword v{R.K2}, v{R.F2S}, s[{SWS}:{SWS+3}], s{sKBASE} offen")
    for op in kv_ops(0): emit(op)
    A(f"s_lshl_b32 s{sFLAG}, s{sG}, 10")
    A(f"s_add_u32 s{sFLAG}, s{sFLAG}, {hex(WS_SYNC)}")
    A(f"s_getreg_b32 s{sXCC}, hwreg(HW_REG_XCC_ID, 0, 3)")
    A(f"s_mul_i32 s{sXCC}, s{sXCC}, 6")
    A(f"s_lshr_b32 s{sFG}, s{sM}, 2")
    A(f"s_and_b32 s{sT0}, s{sM}, 3")
    A(f"s_lshl_b32 s{sTOK16}, s{sG}, 4")
    A(f"s_lshl_b32 s{sT0}, s{sT0}, 2")
    A(f"s_add_u32 s{sTOK16}, s{sTOK16}, s{sT0}")
    A(f"s_lshl_b32 s{sJ}, s{sFG}, 1")
    A(f"s_and_b32 s{sT0}, s{sM}, 1")
    A(f"s_add_u32 s{sJ}, s{sJ}, s{sT0}")
    A(f"s_and_b32 s{sLW}, s{sWAVE}, 3")
    A(f"s_mul_i32 s{sWOSRC}, s{sFG}, {20*5120}")
    A(f"s_and_b32 s{sKQ}, s{sLW}, 1")
    A(f"s_lshl_b32 s{sKQ}, s{sKQ}, 1")
    A(f"s_lshr_b32 s{sT0}, s{sWAVE}, 2")
    A(f"s_add_u32 s{sKQ}, s{sKQ}, s{sT0}")
    A(f"s_mul_i32 s{sT0}, s{sKQ}, {5*5120}")
    A(f"s_add_u32 s{sWOSRC}, s{sWOSRC}, s{sT0}")
    A(f"s_add_u32 s{sWOSRC}, s{sWOSRC}, {hex(WS_WO)}")
    A(f"s_mul_i32 s{sWDSRC}, s{sFG}, {48*5120}")
    A(f"s_mul_i32 s{sT0}, s{sLW}, 12")
    A(f"s_and_b32 s{sT1}, s{sWAVE}, 4")
    A(f"s_add_u32 s{sWDRAW}, s{sT0}, s{sT1}")
    A(f"s_mul_i32 s{sT0}, s{sWDRAW}, 5120")
    A(f"s_add_u32 s{sWDSRC}, s{sWDSRC}, s{sT0}")
    A(f"s_add_u32 s{sWDSRC}, s{sWDSRC}, {hex(WS_WD)}")
    A(f"s_mul_i32 s{sGSRC}, s{sLW}, {16*3072}")
    A(f"s_mul_i32 s{sT0}, s{sJ}, 192")
    A(f"s_add_u32 s{sGSRC}, s{sGSRC}, s{sT0}")
    A(f"s_mul_i32 s{sGM0}, s{sLW}, 3072")
    srd(A, SX, SX, X_BYTES); srd(A, SG_, SG_, 640 * 1536 * 2); srd(A, SU, SU, 640 * 1536 * 2); srd(A, SO, SO, X_BYTES)
    A(f"v_add_u32 v{R.KA}, {KV_BASE}, v{R.L16}")
    A(f"v_add_u32 v{R.K2A}, {KV_BASE + 1024}, v{R.L4}")
    r, kh, aa, hf, b, i_, d1, d2 = T, T+1, T+2, T+3, T+4, T+5, T+6, T+7
    A(f"v_lshrrev_b32 v{aa}, 3, v{r}")
    A(f"v_bfe_u32 v{hf}, v{r}, 2, 1")
    A(f"v_and_b32 v{b}, 3, v{r}")
    A(f"v_lshl_add_u32 v{i_}, v{aa}, 2, v{b}")
    A(f"v_lshl_add_u32 v{d1}, v{hf}, 3, v{i_}")
    A(f"v_lshl_add_u32 v{d2}, v{hf}, 1, v{i_}")
    A(f"v_add_u32 v{d2}, 8, v{d2}")
    A(f"v_cmp_gt_u32 vcc, 8, v{i_}")
    A(f"v_cndmask_b32 v{d1}, v{d2}, v{d1}, vcc")
    A(f"v_min_u32 v{d1}, 19, v{d1}")
    A(f"v_mul_u32_u24 v{R.VA}, 320, v{kh}")
    A(f"v_lshl_add_u32 v{R.VA}, v{d1}, 4, v{R.VA}")
    A(f"v_add_u32 v{R.VA}, {KV_BASE + 1280}, v{R.VA}")
    A(f"v_cmp_eq_u32 vcc, 10, v{i_}")
    A(f"v_mov_b32 v{d2}, 0x3f803f80")
    for k in range(8): A(f"v_cndmask_b32 v{R.V1+k}, 0, v{d2}, vcc")
    A(f"v_cmp_gt_u32 vcc, 32, v0")
    A(f"v_mov_b32 v{d1}, 0x3f80")
    A(f"v_cndmask_b32 v{R.K2+1}, v{d1}, v{d2}, vcc")
    A(f"v_mov_b32 v{R.Q2+1}, 0")
    for jj in range(3):
        A(f"v_add_u32 v{T}, {64*jj}, v0")
        A(f"v_mul_u32_u24 v{T+1}, 5462, v{T}")
        A(f"v_lshrrev_b32 v{T+1}, 16, v{T+1}")
        A(f"v_mul_u32_u24 v{R.GV+jj}, {3072-192}, v{T+1}")
        A(f"v_lshl_add_u32 v{R.GV+jj}, v{T}, 4, v{R.GV+jj}")
    A(f"s_mov_b32 s{sVMASK}, 0x0033ffff")
    A(f"s_mov_b32 s{sVMASK+1}, 0x0033ffff")
    S0 = R.S[0]
    X = R.S[1]
    addr_rowmajor(A, R.XRES + 6, R.XRES + 7, X)
    A(f"v_lshlrev_b32 v{R.TCH}, 7, v0")
    A(f"v_mov_b32 v{R.TCH+1}, 0")
    A(f"s_lshl_b64 s[{sTMP}:{sTMP+1}], 1, s{sXCC}")
    A(f"v_mov_b32 v{R.XRES+8}, s{sTMP}")
    A(f"v_mov_b32 v{R.XRES+9}, s{sTMP+1}")
    A(f"s_cmp_ge_u32 s{sWAVE}, 4")
    A(f"s_cselect_b32 s{sTMP}, s{SU}, s{SG_}")
    A(f"s_cselect_b32 s{sTMP+1}, s{SU+1}, s{SG_+1}")
    A(f"s_mov_b32 s{sTMP+2}, {hex(640*1536*2)}")
    A(f"s_mov_b32 s{sTMP+3}, 0x20000")
    A(f"s_cselect_b32 s{sB}, {GU_UP}, 0")
    A(f"s_add_u32 s{sB}, s{sB}, s{sGM0}")
    A(f"s_and_b32 s{sC}, s{sM}, 3")
    A(f"s_lshl_b32 s{sDELTA}, s{sM}, 2")
    A(f"s_add_u32 s{sDELTA}, s{sDELTA}, s{sLW}")
    A(f"s_mul_i32 s{sDELTA}, s{sDELTA}, {12*128}")
    A(f"s_lshl_b32 s{sTO}, s{sG}, 5")
    A(f"s_add_u32 s{sTO}, s{sTO}, s{sM}")
    A(f"s_lshl_b32 s{sTO}, s{sTO}, 3")
    A(f"s_add_u32 s{sTO}, s{sTO}, s{sWAVE}")
    if cfg.get("ctouch", 1):
        code_touch_setup(A, 88, "L_attn_code")
        A(f"s_and_b32 s{sT0}, s{sTO}, 255")
        A(f"s_lshl_b32 s{sT0}, s{sT0}, 7")
        A(f"v_lshlrev_b32 v{X}, 15, v0")
        A(f"v_add_u32 v{X}, s{sT0}, v{X}")
        A(f"v_min_u32 v{R.GV+3}, L_code_end-L_attn_code-4, v{X}")

    A(f"s_mul_i32 s{sT0}, s{sQT}, {2*80*256}")
    A(f"s_lshr_b32 s{sT1}, s{sM}, 3")
    A(f"s_mul_i32 s{sT1}, s{sT1}, {20*256}")
    A(f"s_add_u32 s{sT0}, s{sT0}, s{sT1}")
    A(f"s_add_u32 s{sT0}, s{sT0}, {hex(WS_O)}")
    A(f"s_and_b32 s{sT2}, s{sM}, 7")
    A(f"s_lshl_b32 s{sT1}, s{sT2}, 9")
    A(f"s_add_u32 s{sT1}, s{sT1}, s{sT0}")
    A(f"s_lshl_b32 s{sT2}, s{sT2}, 7")
    A(f"s_add_u32 s{sT0}, s{sT0}, s{sT2}")
    A(f"s_add_u32 s{sT0}, s{sT0}, {16*256}")
    A(f"v_and_b32 v{X}, 15, v0")
    A(f"v_bfe_u32 v{X+1}, v0, 4, 1")
    A(f"v_lshrrev_b32 v{X+2}, 5, v0")
    A(f"v_mul_u32_u24 v{X+1}, {80*256}, v{X+1}")
    A(f"v_lshl_add_u32 v{T+7}, v{X}, 3, v{X+1}")
    A(f"v_add_u32 v{T+7}, s{sT0}, v{T+7}")
    A(f"v_lshl_add_u32 v{T+6}, v{X}, 4, v{X+1}")
    A(f"v_lshl_add_u32 v{T+6}, v{X+2}, 8, v{T+6}")
    A(f"v_add_u32 v{T+6}, s{sT1}, v{T+6}")
    A(f"s_mov_b32 s92, {fhex(2.0**-40)}")
    A(f"s_mov_b32 s93, {fhex(2.0**64)}")
    A(f"s_mov_b32 s94, {fhex(2.0**127)}")
    JUNK = R.XRES + 11
    def gu_op(c, jj):
        return [f"s_add_u32 m0, s{sB}, {c*GU_SLOT + jj*1024}", f"s_add_u32 s{sT0}, s{sGSRC}, {c*64*3072}",
                f"buffer_load_dwordx4 v{R.GV+jj}, s[{sTMP}:{sTMP+3}], s{sT0} offen lds"]
    def touch(n, srd_, pre):
        return pre + [f"s_bfm_b64 exec, {n}, 0", f"buffer_load_dword v{JUNK}, v{R.TCH}, s[{srd_}:{srd_+3}], s{sT0} offen", "s_mov_b64 exec, -1"]
    def gu_touch(c): return touch(12, sTMP, [f"s_add_u32 s{sT0}, s{sDELTA}, {c*64*3072}"])
    def out_touch(base, nbytes, l0=0, n=None):
        return touch(n or nbytes // 128, SWS, [f"s_mul_i32 s{sT0}, s{sTO}, {nbytes}", f"s_add_u32 s{sT0}, s{sT0}, {hex(base + l0*128)}",
                                          f"s_cmp_lg_u32 s{sFAST}, 0", f"s_cselect_b32 s{sT0}, s{sT0}, {hex(WS_SIZE)}"])
    sched = {t: [] for t in range(64)}
    trs = {}
    misc = {}
    vm = []
    def put(t, tag, op):
        while len(sched[t]) >= 3: t += 1
        sched[t].append((tag, op)); return t
    for i, op in enumerate(kv_ops(1)): put(i // 2, "kv1", op)
    for c in range(2, 8):
        for i, op in enumerate(kv_ops(c)): put(8 * (c - 2) + 6 + i // 2, f"kv{c}", op)
    pf = []
    def frag_op(src, i, dst):
        pre = [f"s_add_u32 s{sSTG}, s{src}, {i*1024}"] if i % 4 == 0 else []
        return pre + [f"buffer_load_dwordx4 {a(dst+4*i,4)}, v{R.L16}, s[{SWS}:{SWS+3}], s{sSTG} offen offset:{(i%4)*1024}"]
    for i in range(10): pf.append(frag_op(sWDSRC, i, 100))
    for i in range(25): pf.append(frag_op(sWOSRC, i, 0))
    for c in range(4):
        for jj in range(3): pf.append(gu_op(c, jj))
    if cfg.get("nopf"): pf = []
    free = [t for t in range(cfg.get('pf0', 2), 64) if t % 8 < cfg.get('pfm', 6) or t > 48]
    num, den = cfg.get("pf_rate", [1, 1])
    for i, op in enumerate(pf): put(free[i * den // num], "pf", op)
    put(0, "at", ["s_cmp_eq_u32 s%d, 0" % sWAVE, f"s_cselect_b32 s{sT0}, s{sFLAG}, {hex(WS_SIZE)}", "s_mov_b64 exec, 1",
                  f"buffer_atomic_add_x2 {v(R.XRES+8,2)}, v{R.TCH+1}, s[{SWS}:{SWS+3}], s{sT0} offen offset:512 sc1", "s_mov_b64 exec, -1"])
    put(12, "pf", [f"buffer_load_dwordx4 {v(R.XRES,4)}, v{R.XRES+6}, s[{SX}:{SX+3}], 0 offen"])
    put(16, "pf", [f"buffer_load_dwordx2 {v(R.XRES+4,2)}, v{R.XRES+7}, s[{SX}:{SX+3}], 0 offen"])
    put(cfg.get("xcc_ld", 10), "xcc", [f"buffer_load_dwordx2 {v(R.XRES+8,2)}, v{R.TCH+1}, s[{SWS}:{SWS+3}], s{sFLAG} offen offset:512 sc1"])
    misc[cfg.get('xcc_rd', 23)] = ("xcc", [f"v_readfirstlane_b32 s{sFAST-1}, v{R.XRES+8}" , f"v_readfirstlane_b32 s{sFAST}, v{R.XRES+9}"])
    gwarm = touch(15, sTMP, [f"s_lshr_b32 s{sT0}, s{sTO}, 3", f"s_lshl_b32 s{sT0}, s{sT0}, 2", f"s_add_u32 s{sT0}, s{sT0}, s{sLW}", f"s_mul_i32 s{sT0}, s{sT0}, {15*128}"])
    if cfg.get("gwarm_at", -1) >= 0: put(cfg.get("gwarm_at", -1), "pf", gwarm)
    wd01_touch = touch(20, SWS, [f"s_mul_i32 s{sT0}, s{sC}, 2560", f"s_add_u32 s{sT0}, s{sT0}, s{sWDSRC}"])
    wo_touch = touch(25, SWS, [f"s_lshr_b32 s{sT0}, s{sWAVE}, 2", f"s_lshl_b32 s{sT1}, s{sC}, 1", f"s_add_u32 s{sT0}, s{sT0}, s{sT1}",
                               f"s_mul_i32 s{sT0}, s{sT0}, 3200", f"s_add_u32 s{sT0}, s{sT0}, s{sWOSRC}"])
    gw2 = touch(6, sTMP, [f"s_lshr_b32 s{sT0}, s{sTO}, 3", f"s_lshl_b32 s{sT0}, s{sT0}, 2", f"s_add_u32 s{sT0}, s{sT0}, s{sLW}", f"s_mul_i32 s{sT0}, s{sT0}, {6*128}",
                          f"s_add_u32 s{sT0}, s{sT0}, {6*64*3072}"])
    def gwp(k, n):
        return touch(n, sTMP, [f"s_lshr_b32 s{sT0}, s{sTO}, 3", f"s_lshl_b32 s{sT0}, s{sT0}, 2", f"s_add_u32 s{sT0}, s{sT0}, s{sLW}", f"s_mul_i32 s{sT0}, s{sT0}, {n*128}",
                               f"s_add_u32 s{sT0}, s{sT0}, {k*n*1024*128}"])
    extra = {"p0": gwp(0, 5), "p1": gwp(1, 5), "p2": gwp(2, 5), "q0": gwp(0, 3), "q1": gwp(1, 3), "q2": gwp(2, 3), "q3": gwp(3, 3), "q4": gwp(4, 3), "wd01": wd01_touch, "wo": wo_touch, "gw2": gw2, "gw": gwarm}
    def wdt(k): return touch(20, SWS, [f"s_lshl_b32 s{sT0}, s{sM}, 3", f"s_add_u32 s{sT0}, s{sT0}, s{sWAVE}", f"s_mul_i32 s{sT0}, s{sT0}, {60*128}", f"s_add_u32 s{sT0}, s{sT0}, {WS_WD + k*20*128}"])
    extra.update({"d0": wdt(0), "d1": wdt(1), "d2": wdt(2)})
    wd_touch = None
    for t, op in cfg_touch_plan(cfg, gu_touch, out_touch, wd_touch, extra): put(t, "pf", op)
    HIDT = None
    if cfg.get("tlb", 0) & 2:
        put(20, "pf", ["s_mov_b64 exec, 1", f"buffer_load_dword v{JUNK}, v{R.XRES+6}, s[{SO}:{SO+3}], 0 offen", "s_mov_b64 exec, -1"])
    if cfg.get("ctouch", 1):
        for t in cfg.get("ct_at", [1, 52]):
            put(t, "pf", ["s_mov_b64 exec, 3", f"global_load_dword v{JUNK}, v{R.GV+3}, s[88:89]", "s_mov_b64 exec, -1"])

    A("s_waitcnt vmcnt(4)")
    A(f"v_mfma_f32_32x32x16_bf16 {v(S0,16)}, {v(R.K1,4)}, {v(R.Q1,4)}, 0")
    A(f"v_mfma_f32_32x32x8_bf16 {v(S0,16)}, {v(R.K2,2)}, {v(R.Q2,2)}, {v(S0,16)}")
    max16(A, R.P, S0, True)
    xhalf_max(A, R.P, R.P+1)
    set_shift(A, R.P)
    A(f"v_mfma_f32_32x32x16_bf16 {v(S0,16)}, {v(R.K1,4)}, {v(R.Q1,4)}, 0")
    A(f"v_mfma_f32_32x32x8_bf16 {v(S0,16)}, {v(R.K2,2)}, {v(R.Q2,2)}, {v(S0,16)}")
    def toff(t): return ((t // 8) % 3) * KV_SLOT + (t % 8) * 2560
    def tdelta(t): return 0
    A("s_waitcnt vmcnt(0)")
    A("s_barrier")
    A(f"ds_read_b128 {v(R.K1,4)}, v{R.KA} offset:{toff(1)}")
    A(f"ds_read_b32 v{R.K2}, v{R.K2A} offset:{toff(1)}")
    A(f"s_mov_b64 exec, s[{sVMASK}:{sVMASK+1}]")
    A(f"ds_read_b128 {v(R.V1,4)}, v{R.VA}")
    A("s_mov_b64 exec, -1")
    stamp(A, cfg, 1)
    PRIO = cfg.get("prio", {6: 3, 2: 2, 4: 1, 5: 0})
    A("s_setprio 3")
    A.label("L_attn_code")
    def vwait(tag): A(f"s_waitcnt vmcnt({len(vm) - 1 - max(i for i, x in enumerate(vm) if x == tag)})")
    for t in range(64):
        cur, nxt = R.S[t % 2], R.S[(t + 1) % 2]
        def E(i): A(f"v_exp_f32 v{cur+i}, v{cur+i}")
        def C(k): A(f"v_cvt_pk_bf16_f32 v{R.P+k}, v{cur+2*k}, v{cur+2*k+1}")
        ops_t = list(sched[t])
        def V():
            if ops_t:
                tag, op = ops_t.pop(0); emit(op); vm.append(tag)
        tr = []
        if t in trs: tr = list(trs[t][1])
        def L(n):
            for _ in range(n):
                if tr: A(tr.pop(0))
        if t % 8 == 6 and t < 56:
            vwait(f"kv{t//8+1}")
            A("s_barrier")
        if cfg.get("ats") and t % 8 == 6: A(f"s_memtime s[{64+2*(t//8)}:{65+2*(t//8)}]")
        if t < 56 and t % 8 in PRIO: A(f"s_setprio {PRIO[t % 8]}")
        if t >= 56 and (t - 2) % 8 in PRIO and t > 56: A(f"s_setprio {PRIO[(t - 2) % 8]}")
        if t < 63:
            A(f"s_waitcnt lgkmcnt({2 if t else 1})")
            A(f"v_mfma_f32_32x32x16_bf16 {v(nxt,16)}, {v(R.K1,4)}, {v(R.Q1,4)}, 0")
        E(0); E(1); V(); E(2); C(0); E(3)
        A("s_waitcnt lgkmcnt(0)")
        if t: A(f"v_mfma_f32_32x32x16_bf16 {v(R.O,16)}, {v(R.V2,4)}, {v(R.P+4,4)}, {v(R.O,16)}")
        if t in trs and trs[t][0]: vwait(trs[t][0])
        if t in misc:
            vwait(misc[t][0])
            A(f"s_mov_b32 s{sT1}, s{sFAST-1}")
            emit(misc[t][1])
            A(f"s_lshr_b64 s[{sFAST-1}:{sFAST}], s[{sFAST-1}:{sFAST}], s{sXCC}")
            A(f"s_and_b32 s{sFAST}, s{sFAST-1}, 63")
            A(f"s_mov_b32 s{sFAST-1}, s{sT1}")
            A(f"s_cmp_eq_u32 s{sFAST}, 32")
            A(f"s_cselect_b32 s{sFAST}, {0 if cfg.get('noFast') else 1}, 0")
        L(2); E(4); C(1); L(2); E(5); V(); E(6); L(1); C(2); E(7)
        if t < 63: A(f"v_mfma_f32_32x32x8_bf16 {v(nxt,16)}, {v(R.K2,2)}, {v(R.Q2,2)}, {v(nxt,16)}")
        if t < 62:
            if tdelta(t + 2):
                A(f"v_add_u32 v{R.KA}, {tdelta(t+2)}, v{R.KA}")
                A(f"v_add_u32 v{R.K2A}, {tdelta(t+2)}, v{R.K2A}")
            A(f"ds_read_b128 {v(R.K1,4)}, v{R.KA} offset:{toff(t+2)}")
            A(f"ds_read_b32 v{R.K2}, v{R.K2A} offset:{toff(t+2)}")
        E(8); C(3); E(9); V(); E(10); C(4); E(11)
        A(f"v_mfma_f32_32x32x16_bf16 {v(R.O,16)}, {v(R.V1,4)}, {v(R.P,4)}, {v(R.O,16) if t else 0}")
        A(f"s_mov_b64 exec, s[{sVMASK}:{sVMASK+1}]")
        A(f"ds_read_b128 {v(R.V2,4)}, v{R.VA} offset:{toff(t) + 640}")
        if t < 63:
            if tdelta(t + 1): A(f"v_add_u32 v{R.VA}, {tdelta(t+1)}, v{R.VA}")
            A(f"ds_read_b128 {v(R.V1,4)}, v{R.VA} offset:{toff(t+1)}")
        A("s_mov_b64 exec, -1")
        E(12); C(5); E(13); E(14); E(15); C(6); C(7)
        assert not ops_t and not tr
    A("s_waitcnt lgkmcnt(0)")
    A(f"v_mfma_f32_32x32x16_bf16 {v(R.O,16)}, {v(R.V2,4)}, {v(R.P+4,4)}, {v(R.O,16)}")
    A.label("L_post_attn")
    if cfg.get("ats"):
        for c in range(11): A(f"s_sub_u32 s{65+2*c}, s{64+2*c}, s63")
        A("v_mov_b32 v78, v0")
        A("v_mov_b32 v110, v2")
        A("v_mov_b32 v109, v3")
        stamp_flush(A, cfg, 13, 17, SWS, sWAVE, 0)
        A("s_mov_b64 exec, -1")
        A("v_mov_b32 v0, v78")
        A("v_mov_b32 v2, v110")
        A("v_mov_b32 v3, v109")
    A("s_setprio 0")
    stamp(A, cfg, 2)
    N = R.S[0]
    A(f"v_rcp_f32 v{T}, v{R.O+10}")
    A(f"v_max3_f32 v{T+1}, abs(v{R.O}), abs(v{R.O+1}), abs(v{R.O+2})")
    A(f"v_cmp_le_f32 vcc, s92, v{R.O+10}")
    A(f"v_cmp_ge_f32 s[{sTMP}:{sTMP+1}], s93, v{R.O+10}")
    for k in (3, 5, 7): A(f"v_max3_f32 v{T+1}, v{T+1}, abs(v{R.O+k}), abs(v{R.O+k+1})")
    A(f"v_max_f32_e64 v{T+1}, v{T+1}, abs(v{R.O+9})")
    A(f"s_and_b64 vcc, vcc, s[{sTMP}:{sTMP+1}]")
    A(f"v_cmp_ge_f32 s[{sTMP+2}:{sTMP+3}], s94, v{T+1}")
    def norm():
        for k in (8, 9, 0, 1, 2, 3, 4, 5, 6, 7): A(f"v_mul_f32 v{N+k}, v{T}, v{R.O+k}")
    norm()
    A(f"s_and_b64 vcc, vcc, s[{sTMP+2}:{sTMP+3}]")
    A(f"s_cmp_eq_u64 vcc, -1" if not cfg.get("force_slow") else "s_cmp_eq_u32 s2, -1")
    A("s_cbranch_scc0 L_attn_slow")
    A.label("L_attn_norm")
    A(f"v_cvt_pk_bf16_f32 v{N+10}, v{N+8}, v{N+9}")
    A(f"v_cvt_pk_bf16_f32 v{N+11}, v{N+8}, v{N+9}")
    for k in range(4): A(f"v_cvt_pk_bf16_f32 v{N+k}, v{N+2*k}, v{N+2*k+1}")
    A(f"v_permlane32_swap_b32 v{N+10}, v{N+11}")
    stores(A, [f"buffer_store_dwordx4 {v(N,4)}, v{T+6}, s[{SWS}:{SWS+3}], 0 offen",
               "s_mov_b32 exec_hi, 0",
               f"buffer_store_dwordx2 {v(N+10,2)}, v{T+7}, s[{SWS}:{SWS+3}], 0 offen",
               "s_mov_b32 exec_hi, -1"])
    A(f"v_and_b32 v{T+4}, 15, v0")
    A(f"v_lshrrev_b32 v{T+3}, 5, v0")
    A(f"v_lshlrev_b32 v{T+1}, 4, v{T+4}")
    A(f"v_lshl_add_u32 v{T+1}, v{T+3}, 8, v{T+1}")
    A(f"v_lshrrev_b32 v{T+5}, 4, v0")
    A(f"v_lshlrev_b32 v{T+5}, 8, v{T+5}")
    A(f"v_lshl_add_u32 v7, v{T+4}, 3, v{T+5}")
    A(f"v_add_u32 v7, 4096, v7")

    BF, ACC = 16, 56
    vHP, vHS, vPW, RA = 108, 109, 3, 5
    A(f"s_lshr_b32 s{sT2}, s{sWAVE}, 2")
    A(f"s_mul_i32 s{sT1}, s{sKQ}, {20*256}")
    A(f"s_add_u32 s{sT1}, s{sT1}, {hex(WS_O)}")
    A(f"s_add_u32 s{sB2}, s{sLW}, s{sTOK16}")
    A(f"s_xor_b32 s{sB}, s{sB2}, 1")
    A(f"s_mul_i32 s{sB}, s{sB}, {80*256}")
    A(f"s_add_u32 s{sB}, s{sB}, s{sT1}")
    A(f"s_mul_i32 s{sB2}, s{sB2}, {80*256}")
    A(f"s_add_u32 s{sB2}, s{sB2}, s{sT1}")
    A(f"s_xor_b32 s{sT0}, s{sLW}, 1")
    A(f"s_mul_i32 s{sT0}, s{sT0}, 5120")
    A(f"s_add_u32 s{sT0}, s{sT0}, {PART_BASE}")
    A(f"v_add_u32 v{vPW}, s{sT0}, v{R.L16}")
    A(f"s_mul_i32 s{sT0}, s{sLW}, 5120")
    A(f"s_add_u32 s{sT0}, s{sT0}, {PART_BASE}")
    A(f"v_add_u32 v6, s{sT0}, v{R.L16}")
    A(f"s_add_u32 s{sT0}, s{sLW}, s{sTOK16}")
    A(f"s_lshl_b32 s{sC}, s{sT0}, 11")
    A(f"s_mul_i32 s{sT0}, s{sT0}, {80*256}")
    A(f"s_mul_i32 s{sT1}, s{sFG}, 2560")
    A(f"s_add_u32 s{sT0}, s{sT0}, s{sT1}")
    A(f"s_add_u32 s{sT0}, s{sT0}, {hex(WS_H)}")
    A(f"v_add_u32 v{T+1}, 2048, v{T+1}")
    A(f"v_add_u32 v{vHS}, s{sT0}, v{T+1}")
    A(f"s_lshl_b32 s{sT1}, s{sT2}, 10")
    A(f"s_add_u32 s{sT0}, s{sT0}, s{sT1}")
    A(f"v_add_u32 v{vHP}, s{sT0}, v{R.L16}")
    A(f"s_lshl_b32 s{sT1}, s{sFG}, 1")
    A(f"s_add_u32 s{sT1}, s{sT1}, s{sT2}")
    A(f"s_lshl_b32 s{sT1}, s{sT1}, 7")
    A(f"s_add_u32 s{sC}, s{sC}, s{sT1}")
    A(f"s_add_u32 s{sC}, s{sC}, {hex(WS_ST2)}")
    reduce_addr(A, 3, PART_BASE, RA)
    sGT = sQT
    A(f"s_and_b32 s{sGT}, s{sTOK16}, -8")
    A(f"s_lshl_b32 s{sT0}, s{sLW}, 1")
    A(f"s_add_u32 s{sGT}, s{sGT}, s{sT0}")
    sHSRC, sHM0 = sKBASE, sVBASE
    A(f"s_mul_i32 s{sHSRC}, s{sGT}, {80*256}")
    A(f"s_add_u32 s{sHSRC}, s{sHSRC}, {hex(WS_H)}")
    A(f"s_lshl_b32 s{sHM0}, s{sLW}, 12")
    stamp(A, cfg, 3)
    M8 = 0x0101010101010101
    sync(A, 0, 0, False, 0, rb=[(M8, [f"buffer_load_dword v{JUNK}, v{T+6}, s[{SWS}:{SWS+3}], 0 offen"]),
                                (0x00010001, [f"buffer_load_dword v{JUNK}, v{T+7}, s[{SWS}:{SWS+3}], 0 offen"])])
    stamp(A, cfg, 4)
    def wo_load(q, BF=BF):
        i, st = divmod(q, 5)
        if st < 4: A(f"buffer_load_dwordx4 {v(BF+20*i+4*st,4)}, v{R.L16}, s[{SWS}:{SWS+3}], s{sB2 if i else sB} offen offset:{st*1024} {cfg.get('wold', 'sc1')}")
        else:
            for e in range(2): A(f"buffer_load_dwordx2 {v(BF+20*i+16+2*e,2)}, v7, s[{SWS}:{SWS+3}], s{sB2 if i else sB} offen offset:{128*e} {cfg.get('wold', 'sc1')}")
        return [q] * (2 if st == 4 else 1)
    WL0 = cfg.get("wl0", 4)
    wq0 = []
    for q in range(WL0): wq0 += wo_load(q)
    if cfg.get("wts"): A("s_memtime s[72:73]")
    EW = cfg.get("ew", [4, 1])
    FSUB = lambda f: 1 if f in (2, 3) else 0
    def wo_main(sub, ACC=ACC, BF=BF, vPW=vPW):
        keep = [f for f in range(5) if FSUB(f) == sub]
        order = [f for f in range(5) if f not in keep] + keep
        wq = list(wq0); nq = WL0
        for i in range(2):
            for st in range(5):
                A(f"s_waitcnt vmcnt({len(wq) - 1 - max(k for k, x in enumerate(wq) if x == 5*i+st)})")
                for _ in range(cfg.get("wlr", 1)):
                    if nq < 10: wq += wo_load(nq); nq += 1
                if cfg.get("wts") and (5 * i + st) in (0, 2, 4, 5, 7, 9): A(f"s_memtime s[{74+2*(0,2,4,5,7,9).index(5*i+st)}:{75+2*(0,2,4,5,7,9).index(5*i+st)}]")
                for f in order:
                    acc = v(ACC + 20 * i + 4 * f, 4)
                    A(f"v_mfma_f32_16x16x32_bf16 {acc}, {a(20*st+4*f,4)}, {v(BF+20*i+4*st,4)}, {acc if st else 0}")
                if i == 1:
                    f = order[st]
                    A(f"ds_write_b128 v{vPW}, {v(ACC+4*f,4)} offset:{(1 if FSUB(f) == sub else 2)*20480 + f*1024}")
        for f in order:
            if f not in keep: A(f"ds_write_b128 v6, {v(ACC+20+4*f,4)} offset:{f*1024}")
        for op in (load_wd_ops(2) + load_wd_ops(3))[:EW[0]]: emit(op)
        stamp(A, cfg, 5)
        if cfg.get("wts"):
            for k in range(7): A(f"s_sub_u32 s{73+2*k}, s{72+2*k}, s69")
            A("s_sub_u32 s71, s71, s69")
            A("v_mov_b32 v110, v0")
            A("v_mov_b32 v1, v3")
            stamp_flush(A, cfg, 13, 17, SWS, sWAVE, cfg.get("tswave", 0))
            A("s_mov_b64 exec, -1")
            A("v_mov_b32 v0, v110")
            A("v_mov_b32 v3, v1")
        return [ACC + 20 + 4 * f for f in keep]
    D = 16
    TRA, VB, VST = 1, 2, 3
    G1, Gh, rho, c0, c1 = T+2, T+3, T+4, T+5, T+6
    def wo_tail(n):
        own = wo_main(3 - n)
        XF = 56
        A("s_waitcnt lgkmcnt(0)")
        A("s_barrier")
        def mid():
            for op in (load_wd_ops(2) + load_wd_ops(3))[EW[0]:EW[0]+EW[1]]: emit(op)
            for i in range(2 * n):
                A(f"v_lshlrev_b32 v{XF+2*i}, 16, v{R.XRES+i}")
                A(f"v_and_b32 v{XF+2*i+1}, 0xffff0000, v{R.XRES+i}")
            for i in range(2 * n): A(f"v_pk_add_f32 {v(own[i//2]+2*(i%2),2)}, {v(own[i//2]+2*(i%2),2)}, {v(XF+2*i,2)}")
            A(f"v_mov_b32 v{T+2}, 0x3f803f80")
            A(f"v_lshlrev_b32 v{T+3}, 3, v0")
        reduce_sum(A, 3, D, RA, n, own, mid)
        src = lambda i: own[i // 2] + 2 * (i % 2)
        for i in range(4): A(f"v_cvt_pk_bf16_f32 v{D+i}, v{src(i)}, v{src(i)+1}")
        stores(A, [f"buffer_store_dwordx4 {v(D,4)}, v{vHP}, s[{SWS}:{SWS+3}], 0 offen"])
        if n == 3:
            E = D + 12
            for i in range(4): A(f"v_cvt_pk_bf16_f32 v{E+i}, v{src(4+i%2)}, v{src(4+i%2)+1}")
            for i in (4, 5): A(f"v_cvt_pk_bf16_f32 v{D+i}, v{src(i)}, v{src(i)+1}")
            A(f"v_permlane16_swap_b32 v{E}, v{E+2}")
            A(f"v_permlane16_swap_b32 v{E+1}, v{E+3}")
            stores(A, ["s_mov_b32 exec_lo, 0xffff", "s_mov_b32 exec_hi, 0xffff",
                       f"buffer_store_dwordx4 {v(E,4)}, v{vHS}, s[{SWS}:{SWS+3}], 0 offen", "s_mov_b64 exec, -1"])
        sm, sq = D + 8, D + 9
        for i in range(2 * n):
            A(f"v_dot2_f32_bf16 v{sm}, v{D+i}, v{T+2}, {'v%d' % sm if i else 0}")
            A(f"v_dot2_f32_bf16 v{sq}, v{D+i}, v{D+i}, {'v%d' % sq if i else 0}")
        for i in range(3): A(f"v_accvgpr_write_b32 a{A_RES(i)}, v{D+i}")
        for op in ("v_permlane16_swap_b32", "v_permlane32_swap_b32"):
            A(f"v_mov_b32 v{T}, v{sm}")
            A(f"v_mov_b32 v{T+1}, v{sq}")
            A(f"{op} v{sm}, v{T}")
            A(f"{op} v{sq}, v{T+1}")
            A(f"v_pk_add_f32 {v(sm,2)}, {v(sm,2)}, {v(T,2)}")
        A("s_mov_b64 exec, 0xffff")
        stores(A, [f"buffer_store_dwordx2 {v(sm,2)}, v{T+3}, s[{SWS}:{SWS+3}], s{sC} offen"])
        A("s_mov_b64 exec, -1")
        for i in range(3, 2 * n): A(f"v_accvgpr_write_b32 a{A_RES(i)}, v{D+i}")
        A(f"v_bfe_u32 v{G1}, v0, 4, 1")
        A(f"v_lshrrev_b32 v{Gh}, 5, v0")
        A(f"v_bfe_u32 v{rho}, v0, 2, 2")
        A(f"v_and_b32 v{c0}, 1, v0")
        A(f"v_bfe_u32 v{c1}, v0, 1, 1")
        A(f"v_lshl_add_u32 v{TRA}, v{Gh}, 3, v{rho}")
        A(f"v_mul_u32_u24 v{TRA}, 192, v{TRA}")
        A(f"v_mul_u32_u24 v{c1}, {GU_UP}, v{c1}")
        A(f"v_add_u32 v{TRA}, v{TRA}, v{c1}")
        A(f"v_lshl_add_u32 v{TRA}, v{c0}, 4, v{TRA}")
        A(f"v_lshl_add_u32 v{TRA}, v{G1}, 3, v{TRA}")
    def h_dma_ops(c):
        return [[f"s_add_u32 m0, s{sHM0}, {H_BASE + (c%NHS)*16384 + k*1024}", f"s_add_u32 s{sT0}, s{sHSRC}, {(k//2)*80*256 + c*2048 + (k%2)*1024}",
                 f"buffer_load_dwordx4 v{R.L16}, s[{SWS}:{SWS+3}], s{sT0} offen sc1 lds"] for k in range(4)]
    A(f"s_cmp_ge_u32 s{sWAVE}, 4")
    A("s_cbranch_scc1 L_gu_loader")
    wo_tail(3)

    L_CF = GU_MISC
    L_MB = GU_MISC + 3072
    L_RS = GU_MISC + 4096
    ACC, FR = 16, 0
    CFA = 0
    MB = T
    sTH, sFH = sKSRC, sVSRC
    A(f"s_and_b32 s{sTH}, s{sWAVE}, 1")
    A(f"s_lshr_b32 s{sFH}, s{sWAVE}, 1")
    A(f"s_mul_i32 s{sT0}, s{sFH}, 96")
    A(f"v_add_u32 v{TRA}, s{sT0}, v{TRA}")
    SEL, CSA = 40, 44
    A(f"v_lshrrev_b32 v{T}, 2, v0")
    A(f"v_xor_b32 v{T}, v{T}, v0")
    A(f"v_and_b32 v{T}, 4, v{T}")
    A(f"v_cmp_eq_u32 vcc, 0, v{T}")
    A(f"v_mov_b32 v{T}, 0x3f803f80")
    A(f"v_cndmask_b32 v{T}, 0, v{T}, vcc")
    for i in range(4): A(f"v_accvgpr_write_b32 a{SEL+i}, v{T}")
    TRH, VBH = 5, 6
    A(f"s_mul_i32 s{sT0}, s{sTH}, {32*192}")
    A(f"v_subrev_u32 v{TRH}, s{sT0}, v{TRA}")
    A(f"v_add_u32 v{TRA}, s{sT0}, v{TRA}")
    A(f"v_and_b32 v{VB}, 15, v0")
    A(f"v_lshlrev_b32 v{VB}, 4, v{VB}")
    A(f"v_lshl_add_u32 v{VB}, v{Gh}, 8, v{VB}")
    A(f"v_mul_u32_u24 v{VST}, {192*256}, v{G1}")
    A(f"v_add_u32 v{VST}, v{VST}, v{VB}")
    A(f"v_lshl_add_u32 v{VB}, v{G1}, 11, v{VB}")
    A(f"s_lshl_b32 s{sT0}, s{sTH}, 13")
    A(f"s_add_u32 s{sT0}, s{sT0}, {H_BASE}")
    A(f"v_add_u32 v{VB}, s{sT0}, v{VB}")
    A(f"s_lshl_b32 s{sT0}, s{sTH}, 10")
    A(f"v_subrev_u32 v{VBH}, s{sT0}, v{VB}")
    A(f"v_add_u32 v{VB}, s{sT0}, v{VB}")
    lq = []
    def gread(st, what):
        c, sl = divmod(st, 4)
        b = FR + 20 * (st % 2)
        if what[0] == "A":
            t = int(what[1])
            for u in range(2):
                A(f"ds_read_b64_tr_b16 {a(b+4*t+2*u,2)}, v{TRA if sl < 2 else TRH} offset:{(16*sl+4*u)*192 + 32*t}"); lq.append((st, what))
        else:
            i = int(what[1])
            A(f"ds_read_b128 {a(b+12+4*i,4)}, v{VB if sl < 2 else VBH} offset:{(c%NHS)*16384 + i*4096 + sl*512}"); lq.append((st, what))
    for w in ("A0", "A1", "A2"): gread(0, w)
    A(f"s_mul_i32 s{sT0}, s{sFH}, 1536")
    A(f"s_add_u32 s{sT0}, s{sT0}, {L_CF}")
    A(f"v_lshlrev_b32 v{T+6}, 3, v0")
    A(f"v_add_u32 v{T+6}, s{sT0}, v{T+6}")
    A(f"v_and_b32 v{T+7}, 31, v0")
    A(f"v_lshlrev_b32 v{T+7}, 3, v{T+7}")
    A(f"s_lshl_b32 s{sT0}, s{sTH}, 9")
    A(f"s_add_u32 s{sT0}, s{sT0}, {L_MB}")
    A(f"v_add_u32 v{T+7}, s{sT0}, v{T+7}")
    stamp(A, cfg, 6)
    sync(A, 1, 0, True, 0, rb=[(M8, [f"buffer_load_dword v7, v{vHP}, s[{SWS}:{SWS+3}], 0 offen"]),
                               (0x0000010100000101, [f"buffer_load_dword v7, v{vHS}, s[{SWS}:{SWS+3}], 0 offen"])])
    stamp(A, cfg, 7)
    if cfg.get("gts"): A("s_mov_b32 s90, s75")
    for op in h_dma_ops(0)[:2]: emit(op)
    A("s_waitcnt vmcnt(0)")
    A("s_barrier")
    for w in ("B0", "B1"): gread(0, w)
    wd3 = (load_wd_ops(2) + load_wd_ops(3))[sum(EW):]
    def lwait(tag): A(f"s_waitcnt lgkmcnt({min(15, len(lq) - 1 - max(i for i, x in enumerate(lq) if x == tag))})")
    for st in range(40):
        c, sl = divmod(st, 4)
        nxt = st + 1 < 40
        bar = sl == 3 and nxt
        if bar:
            A("s_waitcnt lgkmcnt(0)")
            if cfg.get("gts") == 2: A(f"s_memtime s[{60+2*c}:{61+2*c}]")
            A("s_barrier")
            if cfg.get("gts") == 1: A(f"s_memtime s[{60+2*c}:{61+2*c}]")
            d = GU_SLOT if (c + 1) % NWS else -(NWS - 1) * GU_SLOT
            A(f"v_add_u32 v{TRA}, {d & 0xffffffff}, v{TRA}")
            A(f"v_add_u32 v{TRH}, {d & 0xffffffff}, v{TRH}")
        if st == 39:
            A("s_waitcnt lgkmcnt(0)")
            A("s_barrier")
            bar = True
            for k in range(3): A(f"ds_read_b64 {a(CFA+2*k,2)}, v{T+6} offset:{512*k}")
        b = FR + 20 * (st % 2)
        plan = ((0, 0, "B1", ("A0",)), (1, 0, None, ("B0", "B1")), (0, 1, "A2", ("A1",)), (1, 1, None, ("A2",)), (0, 2, None, ()), (1, 2, None, ()))
        for (i, t, wt_, rd) in plan:
            if wt_ and not bar and not (st == 0 and wt_ == "A2"): lwait((st, wt_))
            acc = v(ACC + 48 * i + 16 * t, 16)
            A(f"v_mfma_f32_32x32x16_bf16 {acc}, {a(b+4*t,4)}, {a(b+12+4*i,4)}, {acc if st else 0}")
            if nxt:
                for w in rd: gread(st + 1, w)
            if sl < 2 and i == 1 and not cfg.get("gu_nocs"):
                A(f"v_mfma_f32_16x16x32_bf16 {a(CSA+4*t,4)}, {a(SEL,4)}, {a(b+4*t,4)}, {a(CSA+4*t,4) if st else 0}")
            if st == 36 and t == 2:
                A(f"ds_read_b64 {v(MB+2*i,2)}, v{T+7} offset:{256*i}"); lq.append("mb")
            if st == 38 and i == 1:
                x = T + 4
                A(f"v_accvgpr_read_b32 v7, a{CSA+4*t}")
                A(f"v_cvt_pk_bf16_f32 v{x+1}, v7, v7")
                A(f"v_and_b32 v{x+1}, 0xffff0000, v{x+1}")
                A(f"v_sub_f32 v7, v7, v{x+1}")
                A(f"v_cvt_pk_bf16_f32 v{x}, v{x+1}, v7")
                A(f"v_lshrrev_b32 v{x+1}, 16, v{x+1}")
                A(f"ds_write_b64 v{TRA}, {v(x,2)} offset:{512*t}"); lq.append("w")
        if st >= cfg.get('cwd0', 30) and wd3: emit(wd3.pop(0))
        if st == 37:
            A(f"s_mul_i32 s{sT0}, s{sFH}, 1536")
            A(f"s_lshl_b32 s{sT1}, s{sTH}, 8")
            A(f"s_add_u32 s{sT0}, s{sT0}, s{sT1}")
            A(f"s_add_u32 s{sT0}, s{sT0}, {L_CF}")
            A(f"v_and_b32 v{TRA}, 31, v0")
            A(f"v_lshlrev_b32 v{TRA}, 3, v{TRA}")
            A(f"v_add_u32 v{TRA}, s{sT0}, v{TRA}")
    A("s_waitcnt lgkmcnt(0)")
    for t in range(3):
        for i in range(2):
            acc = v(ACC + 48 * i + 16 * t, 16)
            A(f"v_mfma_f32_32x32x8_bf16 {acc}, {a(CFA+2*t,2)}, {v(MB+2*i,2)}, {acc}")
    if cfg.get("gts"):
        A("s_waitcnt lgkmcnt(0)")
        for c in range(9): A(f"s_sub_u32 s{91+c}, s{60+2*c}, s90")
    stamp(A, cfg, 8)
    A(f"s_and_b32 s{sB}, s{sTOK16}, -8")
    A(f"s_lshl_b32 s{sT0}, s{sTH}, 2")
    A(f"s_add_u32 s{sB}, s{sB}, s{sT0}")
    A(f"s_mul_i32 s{sB}, s{sB}, {192*256}")
    A(f"s_mul_i32 s{sT0}, s{sJ}, {12*256}")
    A(f"s_add_u32 s{sB}, s{sB}, s{sT0}")
    A(f"s_mul_i32 s{sT0}, s{sFH}, {6*256}")
    A(f"s_add_u32 s{sB}, s{sB}, s{sT0}")
    A(f"s_add_u32 s{sB}, s{sB}, {hex(WS_HID)}")
    A(f"s_add_u32 s{sT2}, s{sB}, {2*192*256}")
    def gu_epi(sc):
        for (i, t) in ((0, 0), (1, 0), (0, 1), (1, 1), (0, 2), (1, 2)):
            r = ACC + 48 * i + 16 * t
            for q in range(2):
                for b in range(4): A(f"v_max_f32 v{r+8*q+b}, 0, v{r+8*q+b}")
                for b in (0, 2): A(f"v_pk_mul_f32 {v(r+8*q+b,2)}, {v(r+8*q+b,2)}, {v(r+8*q+4+b,2)}")
            A(f"v_cvt_pk_bf16_f32 v{r}, v{r}, v{r+1}")
            A(f"v_cvt_pk_bf16_f32 v{r+1}, v{r+2}, v{r+3}")
            A(f"v_cvt_pk_bf16_f32 v{r+2}, v{r+8}, v{r+9}")
            A(f"v_cvt_pk_bf16_f32 v{r+3}, v{r+10}, v{r+11}")
            A(f"buffer_store_dwordx4 {v(r,4)}, v{VST}, s[{SWS}:{SWS+3}], s{sT2 if i else sB} offen offset:{512*t} {sc}")
    if cfg.get("wt", 2) & 2:
        gu_epi("sc1")
    else:
        A(f"s_cmp_lg_u32 s{sFAST}, 0")
        A("s_nop 4")
        A("s_cbranch_scc0 L_gu_epi_slow")
        gu_epi("")
    A.label("L_gu_epi_done")
    stamp(A, cfg, 9)
    A("s_branch L_gu_done")
    if not cfg.get("wt", 2) & 2:
        A.label("L_gu_epi_slow")
        gu_epi("sc1")
        A("s_branch L_gu_epi_done")

    A.label("L_gu_loader")
    WDL = cfg.get("wdl", "late")
    wo_tail(2)
    STV = 72
    A(f"v_and_b32 v3, 15, v0")
    A(f"v_lshlrev_b32 v3, 3, v3")
    A(f"v_lshl_add_u32 v3, v{G1}, 11, v3")
    A(f"v_lshl_add_u32 v3, v{Gh}, 10, v3")
    A(f"s_lshl_b32 s{sB}, s{sGT}, 11")
    A(f"s_add_u32 s{sB}, s{sB}, {hex(WS_ST2)}")
    A("s_waitcnt vmcnt(0)")
    readback(A, [(M8, [f"buffer_load_dword v7, v{vHP}, s[{SWS}:{SWS+3}], 0 offen"])])
    A("s_barrier")
    wdl = [op for stp in range(2, 8) for op in load_wd_ops(stp)][sum(EW):]
    WPL = cfg.get("wpl", [0,0,0,0,0,0,0,0,8,9,8])
    assert sum(WPL) == 30 - sum(EW)
    for _ in range(WPL[0]): emit(wdl.pop(0))

    A("s_barrier")
    ops = []
    for op in h_dma_ops(0)[2:] + h_dma_ops(1): emit(op)
    ops += [("h", 0)] * 2 + [("h", 1)] * 4
    if cfg.get("st_ld", 0) == -1:
        for i in range(8): A(f"buffer_load_dwordx2 {v(STV+2*i,2)}, v3, s[{SWS}:{SWS+3}], s{sB} offen offset:{128*i} sc1")
        ops += ["st"] * 8
    A(f"s_setprio {cfg.get('lprio', 0)}")
    for c in range(10):
        need = [("h", c)] + ([("w", c)] if c >= 4 else [])
        A(f"s_waitcnt vmcnt({len(ops) - 1 - max(i for i, o in enumerate(ops) if o in need)})")
        A("s_barrier")
        vops = []
        if c + 2 < 10:
            vops += h_dma_ops(c + 2); ops += [("h", c + 2)] * 4
        if c + 3 < 10 and c > 0:
            vops += gu_dma_ops(c + 3); ops += [("w", c + 3)] * 6
        if c == cfg.get("st_ld", 0):
            vops += [[f"buffer_load_dwordx2 {v(STV+2*i,2)}, v3, s[{SWS}:{SWS+3}], s{sB} offen offset:{128*i} sc1"] for i in range(8)]
            ops += ["st"] * 8
        for _ in range(WPL[c + 1]):
            vops.append(wdl.pop(0)); ops.append("d")
        for op in vops: emit(op)
        if c == cfg.get('st_at', 3):
            A(f"s_waitcnt vmcnt({len(ops) - 1 - max(i for i, o in enumerate(ops) if o == 'st')})")
            A(f"s_setprio {cfg.get('sprio', 3)}")
            for i in range(1, 8):
                A(f"v_add_f32 v{STV}, v{STV}, v{STV+2*i}")
                A(f"v_add_f32 v{STV+1}, v{STV+1}, v{STV+2*i+1}")
            for r in (STV, STV + 1):
                A(f"v_mov_b32 v{STV+2}, v{r}")
                A(f"v_permlane32_swap_b32 v{r}, v{STV+2}")
                A(f"v_add_f32 v{r}, v{r}, v{STV+2}")
            mean, rs = STV, STV + 1
            A(f"v_mul_f32 v{mean}, {fhex(1/640)}, v{mean}")
            A(f"v_mul_f32 v{rs}, {fhex(1/640)}, v{rs}")
            A(f"v_fma_f32 v{rs}, -v{mean}, v{mean}, v{rs}")
            A(f"v_max_f32 v{rs}, 0, v{rs}")
            A(f"v_add_f32 v{rs}, {fhex(1e-5)}, v{rs}")
            A(f"v_rcp_f32 v{rs}, v{rs}")
            A(f"v_cvt_pk_bf16_f32 v{STV+2}, -v{mean}, -v{mean}")
            A(f"v_and_b32 v{STV+3}, 0xffff0000, v{STV+2}")
            A(f"v_sub_f32 v{STV+3}, -v{mean}, v{STV+3}")
            A(f"v_cvt_pk_bf16_f32 v{STV+3}, v{STV+3}, 0")
            A(f"v_and_b32 v{STV+4}, 31, v0")
            A(f"s_lshl_b32 s{sT0}, s{sLW}, 5")
            A(f"v_add_u32 v{STV+4}, s{sT0}, v{STV+4}")
            A(f"v_lshlrev_b32 v{STV+5}, 3, v{STV+4}")
            A(f"v_lshlrev_b32 v{STV+4}, 2, v{STV+4}")
            A(f"v_add_u32 v{STV+5}, {L_MB}, v{STV+5}")
            A(f"v_add_u32 v{STV+4}, {L_RS}, v{STV+4}")
            A(f"ds_write_b64 v{STV+5}, {v(STV+2,2)}")
            A(f"ds_write_b32 v{STV+4}, v{rs}")
            A("s_setprio 0")
        if c == cfg.get('st_at', 3): A("s_waitcnt lgkmcnt(0)")
    A("s_barrier")
    if cfg.get("wbl2", 0) & 1:
        A(f"s_add_u32 s{sT0}, s{sM}, s{sWAVE}")
        A(f"s_cmp_lg_u32 s{sT0}, 4")
        A("s_cbranch_scc1 L_nowb1")
        A("buffer_wbl2 sc1")
        A.label("L_nowb1")
    A("s_setprio 0")
    A.label("L_gu_done")

    NBD = cfg.get("nbd", 6)
    BF, ACC = 16, 72
    vXP, vXS, RA, vRS = 1, 2, 5, T + 7
    sBT = (sKSRC, sVSRC, sKBASE, sVBASE)
    vPW = (T + 2, T + 3, T + 4, None, T + 5, T + 6, T, T + 1)
    A(f"s_lshl_b32 s{sT1}, s{sWDRAW}, 10")
    A(f"s_add_u32 s{sT1}, s{sT1}, {hex(WS_HID)}")
    for k in range(4):
        A(f"s_xor_b32 s{sT0}, s{sLW}, {3-k}")
        A(f"s_add_u32 s{sBT[k]}, s{sT0}, s{sTOK16}")
        A(f"s_mul_i32 s{sBT[k]}, s{sBT[k]}, {192*256}")
        A(f"s_add_u32 s{sBT[k]}, s{sBT[k]}, s{sT1}")
        A(f"s_mul_i32 s{sT0}, s{sT0}, 5120")
        A(f"s_add_u32 s{sT0}, s{sT0}, {(6-k)*20480}")
        if k < 2:
            A(f"v_add_u32 v{vPW[4+k]}, s{sT0}, v{R.L16}")
            A(f"v_subrev_u32 v{vPW[k]}, {4*20480}, v{vPW[4+k]}")
        else:
            A(f"s_mov_b32 s{97+k-2}, s{sT0}")
    A(f"s_and_b32 s{sT0}, s{sTOK16}, 7")
    A(f"s_add_u32 s{sT0}, s{sT0}, s{sLW}")
    A(f"s_lshl_b32 s{sT0}, s{sT0}, 6")
    A(f"s_add_u32 s{sT0}, s{sT0}, {L_RS}")
    A(f"v_and_b32 v{vRS}, 15, v0")
    A(f"v_lshlrev_b32 v{vRS}, 2, v{vRS}")
    A(f"v_add_u32 v{vRS}, s{sT0}, v{vRS}")
    A(f"ds_read_b32 v{vRS}, v{vRS}")
    addr_rowmajor(A, vXP, vXS, T)
    reduce_addr(A, 7, 0, RA)
    A("s_waitcnt lgkmcnt(0)")
    A(f"s_cmp_ge_u32 s{sWAVE}, 4")
    A("s_cbranch_scc1 L_dn_nw")
    if cfg.get("rb", 0) & 2:
        A("s_mov_b32 exec_lo, 0x01010101")
        A("s_mov_b32 exec_hi, 0x01010101")
        nrb = cfg.get("nrb", 6)
        for k, (i, t) in enumerate(((0, 0), (1, 0), (0, 1), (1, 1), (0, 2), (1, 2))):
            if k < nrb:
                A("s_waitcnt vmcnt(5)")
                A(f"buffer_load_dword v59, v{VST}, s[{SWS}:{SWS+3}], s{sT2 if i else sB} offen offset:{512*t} sc1")
        if nrb < 6: A(f"s_waitcnt vmcnt({nrb})")
        A("s_mov_b64 exec, -1")
    else:
        A("s_waitcnt vmcnt(0)")
    A.label("L_dn_nw")
    sync(A, 2, 0, True, 63)
    stamp(A, cfg, 10)
    BSL = lambda i: 16 + 4 * i if i < 6 else 60 + 4 * (i - 6)
    def dn_main(NS, NBD, sub):
        keep = [f for f in range(5) if FSUB(f) == sub]
        order = [f for f in range(5) if f not in keep] + keep
        def loadBd(q):
            k, st = divmod(q, NS)
            if st == 4: A(f"s_add_u32 s{sBT[k]}, s{sBT[k]}, 4096")
            A(f"buffer_load_dwordx4 {v(BSL(q%NBD),4)}, v{R.L16}, s[{SWS}:{SWS+3}], s{sBT[k]} offen offset:{(st%4)*1024} sc1")
        NI = min(NBD, cfg.get("nbi", 4))
        for q in range(NI): loadBd(q)
        issued = NI
        A(f"v_add_u32 v{vPW[6]}, s97, v{R.L16}")
        A(f"v_subrev_u32 v{vPW[2]}, {4*20480}, v{vPW[6]}")
        A(f"v_add_u32 v{vPW[7]}, s98, v{R.L16}")
        for q in range(NI, NBD): loadBd(q)
        issued = NBD
        pend = []
        for q in range(4 * NS):
            k, st = divmod(q, NS)
            A(f"s_waitcnt vmcnt({issued - 1 - q})")
            for f in order:
                acc = v(ACC + 20 * (k % 2) + 4 * f, 4)
                A(f"v_mfma_f32_16x16x32_bf16 {acc}, {WD(st, f)}, {v(BSL(q%NBD),4)}, {acc if st else 0}")
            if issued < 4 * NS:
                loadBd(issued); issued += 1
            for _ in range(2 if NS == 4 else 1):
                if pend: A(pend.pop(0))
            if st == NS - 1:
                assert not pend
                pend = [f"ds_write_b128 v{vPW[k if f in keep else 4+k]}, {v(ACC+20*(k%2)+4*f,4)} offset:{f*1024}" for f in order if k < 3 or f not in keep]
        for x in pend: A(x)
        stamp(A, cfg, 11)
        return [ACC + 20 + 4 * f for f in keep]
    def dn_tail(n, own):
        DD = 8
        A(f"v_mov_b32 v3, v{vRS}")
        A("s_waitcnt lgkmcnt(0)")
        A("s_barrier")
        reduce_sum(A, 7, DD, RA, n, own)
        for i in range(2 * n):
            r = own[i // 2] + 2 * (i % 2)
            A(f"v_accvgpr_read_b32 v{T+2}, a{A_RES(i)}")
            A(f"v_lshlrev_b32 v{T}, 16, v{T+2}")
            A(f"v_and_b32 v{T+1}, 0xffff0000, v{T+2}")
            A(f"v_fma_f32 v{r}, v{r}, v3, v{T}")
            A(f"v_fma_f32 v{r+1}, v{r+1}, v3, v{T+1}")
            A(f"v_cvt_pk_bf16_f32 v{D+i}, v{r}, v{r+1}")
            if i == 3: A(f"buffer_store_dwordx4 {v(D,4)}, v{vXP}, s[{SO}:{SO+3}], 0 offen {cfg.get('ost', '')}")
        if n == 3: A(f"buffer_store_dwordx2 {v(D+4,2)}, v{vXS}, s[{SO}:{SO+3}], 0 offen {cfg.get('ost', '')}")
    A(f"s_cmp_ge_u32 s{sWAVE}, 4")
    A("s_cbranch_scc1 L_dn_b")
    dn_tail(3, dn_main(4, cfg.get("nbd_c", 5), 0))
    A("s_branch L_dn_e")
    A.label("L_dn_b")
    A(f"s_setprio {cfg.get('dprio', 1)}")
    dn_tail(2, dn_main(8, cfg.get("nbd_l", 8), 1))
    A.label("L_dn_e")
    stamp(A, cfg, 12)
    if cfg.get("gts"):
        for c in range(9):
            A(f"s_mov_b32 s{60+2*c}, s{91+c}")
            A(f"s_mov_b32 s{61+2*c}, s{91+c}")
    stamp_flush(A, cfg, 13, 4, SWS, sWAVE, cfg.get('tswave', 0))
    if cfg.get("diag"):
        da, db = cfg["diag"]
        A("s_cmp_ge_u32 s2, 8" if cfg.get("fixed") else "s_cmp_lg_u32 s2, 16")
        A("s_cbranch_scc1 L_end")
        A(f"s_cmp_lg_u32 s{sWAVE}, 0")
        A("s_cbranch_scc1 L_end")
        if da == -1:
            A("v_mov_b32 v1, 0")
            A(f"s_mov_b32 s{sT0}, {hex(WS_TS)}")
            A(f"buffer_load_dword v2, v1, s[{SWS}:{SWS+3}], s{sT0} offen")
            A("s_waitcnt vmcnt(0)")
            A(f"v_readfirstlane_b32 s{sT0}, v2")
        else:
            A(f"s_mov_b32 s{sT0}, s{60+2*da}")
        if cfg.get("fixed"):
            A(f"s_add_u32 s{sT0}, s{sT0}, {cfg['fixed']}")
            if cfg.get("wb"):
                A("buffer_wbl2 sc1")
        else:
            A(f"s_sub_u32 s{sT0}, s{60+2*db}, s{sT0}")
            A(f"s_min_u32 s{sT0}, s{sT0}, 20000")
            A(f"s_lshl_b32 s{sT0}, s{sT0}, 2")
            A(f"s_add_u32 s{sT0}, s{sT0}, s{60+2*12}")
        A.label("L_spin")
        A("s_memrealtime s[56:57]")
        A("s_waitcnt lgkmcnt(0)")
        A(f"s_sub_u32 s{sT1}, s56, s{sT0}")
        A(f"s_cmp_lt_i32 s{sT1}, 0")
        A("s_cbranch_scc1 L_spin")
    A.label("L_end")
    A("s_endpgm")

    A.label("L_attn_slow")
    A(f"v_subrev_u32 v{R.VA}, {KV_BASE + 1280}, v{R.VA}")
    A(f"v_mov_b32 v{R.Q2+1}, 0")
    A(f"v_mov_b32 v{T}, 0xff800000")
    A(f"s_mov_b32 s{sT0}, s{sKBASE}")
    A(f"s_add_u32 s{sT1}, s{sKBASE}, {PAIR_STRIDE}")
    A.label("L_attn_slow1")
    A(f"buffer_load_dwordx4 {v(R.K1,4)}, v{R.F2S+1}, s[{SWS}:{SWS+3}], s{sT0} offen")
    A(f"buffer_load_dword v{R.K2}, v{R.F2S}, s[{SWS}:{SWS+3}], s{sT0} offen")
    A("s_waitcnt vmcnt(0)")
    A(f"v_mfma_f32_32x32x16_bf16 {v(S0,16)}, {v(R.K1,4)}, {v(R.Q1,4)}, 0")
    A(f"v_mfma_f32_32x32x8_bf16 {v(S0,16)}, {v(R.K2,2)}, {v(R.Q2,2)}, {v(S0,16)}")
    max16(A, T, S0, False)
    A(f"s_add_u32 s{sT0}, s{sT0}, 2560")
    A(f"s_cmp_lt_u32 s{sT0}, s{sT1}")
    A("s_cbranch_scc1 L_attn_slow1")
    xhalf_max(A, T, T+1)
    set_shift(A, T)
    for k in range(16): A(f"v_mov_b32 v{R.O+k}, 0")
    A(f"s_mov_b32 s{sT0}, s{sKBASE}")
    A(f"s_mov_b32 s{sT2}, s{sVBASE}")
    A.label("L_attn_slow2")
    A(f"buffer_load_dwordx4 {v(R.K1,4)}, v{R.F2S+1}, s[{SWS}:{SWS+3}], s{sT0} offen")
    A(f"buffer_load_dword v{R.K2}, v{R.F2S}, s[{SWS}:{SWS+3}], s{sT0} offen")
    A(f"s_mov_b64 exec, s[{sVMASK}:{sVMASK+1}]")
    A(f"buffer_load_dwordx4 {v(R.V1,4)}, v{R.VA}, s[{SWS}:{SWS+3}], s{sT2} offen")
    A(f"buffer_load_dwordx4 {v(R.V2,4)}, v{R.VA}, s[{SWS}:{SWS+3}], s{sT2} offen offset:640")
    A("s_mov_b64 exec, -1")
    A("s_waitcnt vmcnt(0)")
    A(f"v_mfma_f32_32x32x16_bf16 {v(S0,16)}, {v(R.K1,4)}, {v(R.Q1,4)}, 0")
    A(f"v_mfma_f32_32x32x8_bf16 {v(S0,16)}, {v(R.K2,2)}, {v(R.Q2,2)}, {v(S0,16)}")
    for k in range(16): A(f"v_exp_f32 v{S0+k}, v{S0+k}")
    for k in range(8): A(f"v_cvt_pk_bf16_f32 v{R.P+k}, v{S0+2*k}, v{S0+2*k+1}")
    A(f"v_mfma_f32_32x32x16_bf16 {v(R.O,16)}, {v(R.V1,4)}, {v(R.P,4)}, {v(R.O,16)}")
    A(f"v_mfma_f32_32x32x16_bf16 {v(R.O,16)}, {v(R.V2,4)}, {v(R.P+4,4)}, {v(R.O,16)}")
    A(f"s_add_u32 s{sT0}, s{sT0}, 2560")
    A(f"s_add_u32 s{sT2}, s{sT2}, 1280")
    A(f"s_cmp_lt_u32 s{sT0}, s{sT1}")
    A("s_nop 7")
    A("s_cbranch_scc1 L_attn_slow2")
    A(f"v_rcp_f32 v{T}, v{R.O+10}")
    norm()
    A("s_nop 1")
    A("s_branch L_attn_norm")
    A.label("L_code_end")
    return dict(name=name, grid=256, block=512, lds=163840, desc=kernel_desc(name, 256, NV))
```

```python
from common import *

def gen_qkv(A, cfg):
    name = "qkv_kernel"
    kstart(A, name)
    SX, SW, SWS, SP, SD = 4, 8, 12, 36, 48
    sWAVE, sTB, sFG, sXO, sXLIM, sWO, sT0, sT1, sT2, sM0 = 16, 17, 18, 19, 20, 21, 22, 23, 24, 25
    sTILE, sBASE, sQS, sC0, sID = 26, 27, 28, 30, 31
    vTR = 4
    vT = 8
    SLOT = 32768
    CSL = SLOT
    STL = SLOT + 2048
    A("s_cmp_ge_u32 s2, 256")
    A("s_cbranch_scc1 L_qkv_end")
    A("s_load_dwordx4 s[4:7], s[0:1], 0")
    A("s_load_dwordx4 s[48:51], s[0:1], 64")
    A("s_load_dwordx2 s[32:33], s[0:1], 16")
    A("s_load_dwordx2 s[34:35], s[0:1], 48")
    stamp(A, cfg, 0)
    if cfg.get("diag"): A("s_memrealtime s[56:57]")
    A(f"v_lshrrev_b32 v{vT}, 6, v0")
    A(f"s_cmp_lt_u32 s2, 16")
    A(f"v_readfirstlane_b32 s{sWAVE}, v{vT}")
    A("s_cbranch_scc1 L_qkv_helper")
    A(f"v_and_b32 v0, 63, v0")
    A(f"s_sub_u32 s{sID}, s2, 16")
    A(f"s_and_b32 s{sT0}, s{sID}, 7")
    A(f"s_lshr_b32 s{sT1}, s{sID}, 3")
    A(f"s_lshr_b32 s{sT2}, s{sT0}, 2")
    A(f"s_mul_i32 s{sT2}, s{sT2}, 30")
    A(f"s_add_u32 s{sT1}, s{sT1}, s{sT2}")
    A(f"s_lshr_b32 s{sFG}, s{sT1}, 2")
    A(f"s_and_b32 s{sT1}, s{sT1}, 3")
    A(f"s_and_b32 s{sT2}, s{sT0}, 3")
    A(f"s_lshl_b32 s{sT2}, s{sT2}, 2")
    A(f"s_add_u32 s{sTB}, s{sT2}, s{sT1}")
    A(f"s_cmp_ge_u32 s{sWAVE}, 4")
    A("s_cbranch_scc1 L_qkv_loader")

    def tr_addr(permuted, tiles):
        rho, cc, g1, kh, base = vT, vT+1, vT+2, vT+3, vT+4
        A(f"v_bfe_u32 v{rho}, v0, 2, 2")
        A(f"v_bfe_u32 v{g1}, v0, 4, 1")
        A(f"v_lshrrev_b32 v{kh}, 5, v0")
        A(f"v_lshl_add_u32 v{base}, v{kh}, 3, v{rho}")
        A(f"v_lshlrev_b32 v{base}, 8, v{base}")
        A(f"v_lshl_add_u32 v{base}, v{g1}, 5, v{base}")
        if permuted:
            A(f"v_and_b32 v{cc}, 1, v0")
            A(f"v_lshl_add_u32 v{base}, v{cc}, 4, v{base}")
            A(f"v_bfe_u32 v{cc}, v0, 1, 1")
            A(f"v_lshl_add_u32 v{base}, v{cc}, 3, v{base}")
        else:
            A(f"v_and_b32 v{cc}, 3, v0")
            A(f"v_lshl_add_u32 v{base}, v{cc}, 3, v{base}")
        for j, t in enumerate(tiles):
            A(f"v_xor_b32 v{vTR+j}, {t}, v{rho}")
            A(f"v_lshl_add_u32 v{vTR+j}, v{vTR+j}, 6, v{base}")
    def rebase(c):
        def base(c): return ((c % 5) // 2) * 2 * SLOT
        return (base(c) - base(c - 1) if c else 0), (c % 5) * SLOT - base(c)

    ACC, FR, vBA, vADR, vST = 16, 80, 112, 116, 120
    sFH2 = 29
    A(f"s_and_b32 s{sT0}, s{sWAVE}, 1")
    A(f"s_and_b32 s{sFH2}, s{sWAVE}, 2")
    sJ0, sJ1 = 44, 45
    A(f"s_mov_b32 s{sJ0}, s{sWAVE}")
    A(f"s_xor_b32 s{sJ1}, s{sWAVE}, 1")
    A(f"s_lshl_b32 s{sTILE}, s{sTB}, 1")
    A(f"s_add_u32 s{sTILE}, s{sTILE}, s{sT0}")
    A(f"s_lshl_b32 s{sTILE}, s{sTILE}, 1")
    A(f"s_lshl_b32 s{sT0}, s{sT0}, 13")
    A(f"s_add_u32 s{sT0}, s{sT0}, 16384")
    A(f"v_and_b32 v{vT}, 31, v0")
    A(f"v_lshrrev_b32 v{vT+1}, 5, v0")
    A(f"v_bfe_u32 v{vT+2}, v0, 1, 3")
    A(f"v_xor_b32 v{vT+1}, v{vT+1}, v{vT+2}")
    A(f"v_lshlrev_b32 v{vT}, 7, v{vT}")
    A(f"v_lshl_add_u32 v{vT}, v{vT+1}, 4, v{vT}")
    A(f"v_add_u32 v{vBA}, s{sT0}, v{vT}")
    for st in range(1, 4): A(f"v_xor_b32 v{vBA+st}, {32*st}, v{vBA}")
    CSA, ONE, SEL, SF, SUM, SQ, vSB = 152, 160, 164, 168, 184, 192, 200
    MB, RS = 204, 208
    VO, PF, L16 = 120, 128, 2
    sU, sPSRC, sPDST, sPLDS = 40, 41, 42, 43
    def prep_setup():
        A(f"s_mul_i32 s{sU}, s{sWAVE}, 240")
        A(f"s_add_u32 s{sU}, s{sU}, s{sID}")
        A(f"v_lshlrev_b32 v{L16}, 4, v0")
        A(f"s_lshl_b32 s{sPLDS}, s{sWAVE}, 13")
        for jj in range(5):
            A(f"v_add_u32 v{vT}, {64*jj}, v0")
            A(f"v_mul_u32_u24 v{PF+jj}, 6554, v{vT}")
            A(f"v_lshrrev_b32 v{PF+jj}, 16, v{PF+jj}")
            A(f"v_mul_u32_u24 v{vT+1}, 10, v{PF+jj}")
            A(f"v_sub_u32 v{vT}, v{vT}, v{vT+1}")
            A(f"v_lshlrev_b32 v{VO+jj}, 4, v{vT}")
        A(f"s_cmp_ge_u32 s{sU}, 384")
        A("s_cbranch_scc1 L_qkv_pwo")
        srd(A, SP, 34, 1536 * 640 * 2)
        A(f"s_mul_i32 s{sT0}, s{sU}, 1366")
        A(f"s_lshr_b32 s{sT0}, s{sT0}, 16")
        A(f"s_mul_i32 s{sT1}, s{sT0}, 48")
        A(f"s_sub_u32 s{sT1}, s{sU}, s{sT1}")
        A(f"s_mul_i32 s{sPSRC}, s{sT1}, {32*1280}")
        A(f"s_mul_i32 s{sT0}, s{sT0}, 160")
        A(f"s_add_u32 s{sPSRC}, s{sPSRC}, s{sT0}")
        A(f"s_mul_i32 s{sPDST}, s{sU}, 5120")
        A(f"s_add_u32 s{sPDST}, s{sPDST}, {hex(WS_WD)}")
        A("s_branch L_qkv_pgo")
        A.label("L_qkv_pwo")
        srd(A, SP, 32, 640 * 640 * 2)
        A(f"s_sub_u32 s{sU}, s{sU}, 384")
        A(f"s_mul_i32 s{sT0}, s{sU}, 3277")
        A(f"s_lshr_b32 s{sT0}, s{sT0}, 16")
        A(f"s_mul_i32 s{sT1}, s{sT0}, 20")
        A(f"s_sub_u32 s{sT1}, s{sU}, s{sT1}")
        A(f"s_mul_i32 s{sPSRC}, s{sT0}, 160")
        A(f"s_mul_i32 s{sT0}, s{sT1}, 205")
        A(f"s_lshr_b32 s{sT0}, s{sT0}, 10")
        A(f"s_mul_i32 s{sT2}, s{sT0}, 5")
        A(f"s_sub_u32 s{sT1}, s{sT1}, s{sT2}")
        A(f"s_mul_i32 s{sT0}, s{sT0}, {160*1280}")
        A(f"s_add_u32 s{sPSRC}, s{sPSRC}, s{sT0}")
        A(f"s_mul_i32 s{sPDST}, s{sU}, 5120")
        A(f"s_add_u32 s{sPDST}, s{sPDST}, {hex(WS_WO)}")
        A(f"s_cmp_ge_u32 s{sU}, 160")
        A(f"s_cselect_b32 s{sPDST}, {hex(WS_SIZE)}, s{sPDST}")
        A(f"s_cselect_b32 s{SP+2}, 0, s{SP+2}")
        A(f"s_cmp_eq_u32 s{sT1}, 4")
        A("s_cbranch_scc1 L_qkv_pleft")
        A(f"s_mul_i32 s{sT1}, s{sT1}, {40*1280}")
        A(f"s_add_u32 s{sPSRC}, s{sPSRC}, s{sT1}")
        for jj in range(5):
            A(f"v_lshrrev_b32 v{vT}, 4, v{PF+jj}")
            A(f"v_lshl_add_u32 v{PF+jj}, v{vT}, 2, v{PF+jj}")
        A("s_branch L_qkv_pgo")
        A.label("L_qkv_pleft")
        for jj in range(5):
            k = PF + jj
            A(f"v_lshrrev_b32 v{vT}, 2, v{k}")
            A(f"v_lshl_add_u32 v{k}, v{vT}, 4, v{k}")
            A(f"v_add_u32 v{k}, 16, v{k}")
        A.label("L_qkv_pgo")
        for jj in range(5):
            A(f"v_mul_u32_u24 v{vT}, 1280, v{PF+jj}")
            A(f"v_add_u32 v{VO+jj}, v{VO+jj}, v{vT}")
        A(f"v_lshrrev_b32 v{vT}, 4, v0")
        A(f"v_bfe_u32 v{vT+1}, v0, 2, 2")
        A(f"v_lshl_add_u32 v{vT}, v{vT}, 3, v{vT+1}")
        A(f"v_mul_u32_u24 v{vT}, 160, v{vT}")
        A(f"v_add_u32 v{vT}, s{sPLDS}, v{vT}")
        A(f"v_and_b32 v{vT+1}, 3, v0")
        A(f"v_lshl_add_u32 v{VO+5}, v{vT+1}, 4, v{vT}")
        A(f"v_lshl_add_u32 v{VO+6}, v{vT+1}, 3, v{vT}")
    A("s_waitcnt lgkmcnt(0)")
    cfg = dict(cfg); cfg["q_prep"] = 100
    srd(A, SWS, 50, WS_SIZE)
    if cfg.get("diag"):
        A(f"s_cmp_eq_u32 s2, 16")
        A(f"s_mov_b32 s{sT0}, {hex(WS_TS)}")
        A(f"s_cselect_b32 s{sT0}, s{sT0}, {hex(WS_SIZE)}")
        A(f"v_mov_b32 v{vT}, s56")
        A(f"v_mov_b32 v{vT+1}, 0")
        A(f"buffer_store_dword v{vT}, v{vT+1}, s[{SWS}:{SWS+3}], s{sT0} offen")
    A(f"v_lshrrev_b32 v{vT}, 2, v0")
    A(f"v_xor_b32 v{vT}, v{vT}, v0")
    A(f"v_and_b32 v{vT}, 4, v{vT}")
    A(f"v_cmp_eq_u32 vcc, 0, v{vT}")
    for i in range(4): A(f"v_mov_b32 v{ONE+i}, 0x3f803f80")
    for i in range(4): A(f"v_cndmask_b32 v{SEL+i}, 0, v{ONE}, vcc")
    A(f"s_and_b32 s{sT0}, s{sWAVE}, 1")
    A(f"s_lshl_b32 s{sT0}, s{sT0}, 13")
    A(f"s_lshl_b32 s{sT1}, s{sFH2}, 11")
    A(f"s_add_u32 s{sT0}, s{sT0}, s{sT1}")
    A(f"s_add_u32 s{sT0}, s{sT0}, 16384")
    A(f"v_and_b32 v{vT}, 15, v0")
    A(f"v_lshrrev_b32 v{vT+1}, 4, v0")
    A(f"v_bfe_u32 v{vT+2}, v0, 1, 3")
    A(f"v_xor_b32 v{vT+1}, v{vT+1}, v{vT+2}")
    A(f"v_lshlrev_b32 v{vT}, 7, v{vT}")
    A(f"v_lshl_add_u32 v{vT}, v{vT+1}, 4, v{vT}")
    A(f"v_add_u32 v{vSB}, s{sT0}, v{vT}")
    A(f"v_xor_b32 v{vSB+1}, 64, v{vSB}")
    HS = cfg.get("hstat", 0)
    vSA = SUM
    if HS:
        srd(A, SD, SD, 256)
        A(f"s_lshl_b32 s{sXO}, s{sTB}, 11")
        A(f"s_add_u32 s{sXO}, s{sXO}, {hex(WS_ST1)}")
        A(f"s_and_b32 s{sT0}, s{sWAVE}, 1")
        A(f"s_lshl_b32 s{sT0}, s{sT0}, 6")
        A(f"v_and_b32 v{vT}, 31, v0")
        A(f"v_add_u32 v{vT}, s{sT0}, v{vT}")
        A(f"v_lshlrev_b32 v{vSA}, 3, v{vT}")
        A(f"v_cmp_gt_u32 vcc, 32, v0")
        A(f"v_mov_b32 v{vT+1}, 0x7f000000")
        A(f"v_cndmask_b32 v{vSA}, v{vT+1}, v{vSA}, vcc")
        A(f"v_lshlrev_b32 v{vSA+1}, 2, v{vT}")
        A(f"v_lshrrev_b32 v{vT}, 5, v0")
        A(f"v_lshlrev_b32 v{vT}, 2, v{vT}")
        A(f"v_add_u32 v{vT}, s{sT0}, v{vT}")
        A(f"v_lshlrev_b32 v{vSA+2}, 2, v{vT}")
        A(f"v_mov_b32 v{vSA+3}, 0")
        A(f"s_lshl_b32 s{sXLIM}, s{sTB}, 4")
    A(f"s_cmp_ge_u32 s{sFG}, 10")
    A("s_cbranch_scc1 L_qkv_V")

    STF = cfg.get("qkv_st", "sc1")
    def mainloop(isV):
        q = []
        def reads(st):
            c, sl = divmod(st, 4)
            _, so = rebase(c)
            b = FR + 16 * (st % 2)
            out = []
            for u in range(2): out.append((f"ds_read_b64_tr_b16 {v(b+2*u,2)}, v{vTR} offset:{so + (16*sl+4*u)*256}", (st, "A0")))
            out.append((f"ds_read_b128 {v(b+8,4)}, v{vBA+sl} offset:{so}", (st, "B0")))
            out.append((f"ds_read_b128 {v(b+12,4)}, v{vBA+sl} offset:{so + 4096}", (st, "B1")))
            for u in range(2): out.append((f"ds_read_b64_tr_b16 {v(b+4+2*u,2)}, v{vTR+1} offset:{so + (16*sl+4*u)*256}", (st, "A1")))
            if not HS: out.append((f"ds_read_b128 {v(SF+4*(st%2),4)}, v{vSB+(sl>>1)} offset:{so + 2048*(st%2)}", (st, "S")))
            return out
        def issue(r): A(r[0]); q.append(r[1])
        def wait(tag): A(f"s_waitcnt lgkmcnt({len(q) - 1 - max(i for i, x in enumerate(q) if x == tag)})")
        A("s_barrier")
        for r in reads(0): issue(r)
        stamp(A, cfg, 1)
        for st in range(40):
            nxt = st + 1 < 40
            if st % 4 == 3 and nxt:
                A("s_barrier")
                if cfg.get("qts"): A(f"s_memtime s[{70+2*(st//4)}:{71+2*(st//4)}]")
                d, _ = rebase((st + 1) // 4)
                if d:
                    for r in (vTR, vTR + 1, vBA, vBA + 1, vBA + 2, vBA + 3, vSB, vSB + 1): A(f"v_add_u32 v{r}, {d & 0xffffffff}, v{r}")
            rs = reads(st + 1) if nxt else []
            b = FR + 16 * (st % 2)
            sf = v(SF + 4 * (st % 2), 4); su = v(SUM + 4 * (st % 2), 4); sq = v(SQ + 4 * (st % 2), 4)
            for k, (i, j, tag, nr) in enumerate(((0, 0, "B0", 2), (1, 0, "B1", 2), (0, 1, "A1" if HS else "S", 2), (1, 1, None, 1))):
                if tag: wait((st, tag))
                af = v(b + 4 * j, 4); xf = v(b + 8 + 4 * i, 4); acc = v(ACC + 32 * i + 16 * j, 16); c = acc if st else "0"
                if isV: A(f"v_mfma_f32_32x32x16_bf16 {acc}, {xf}, {af}, {c}")
                else:   A(f"v_mfma_f32_32x32x16_bf16 {acc}, {af}, {xf}, {c}")
                for _ in range(nr):
                    if rs: issue(rs.pop(0))
                if k == 1: A(f"v_mfma_f32_16x16x32_bf16 {v(CSA,4)}, {v(SEL,4)}, {v(b,4)}, {v(CSA,4) if st else 0}")
                if k == 2 and not HS: A(f"v_mfma_f32_16x16x32_bf16 {su}, {v(ONE,4)}, {sf}, {su if st > 1 else 0}")
                if k == 3 and not HS: A(f"v_mfma_f32_16x16x32_bf16 {sq}, {sf}, {sf}, {sq if st > 1 else 0}")
            if HS and st == cfg.get("q_fl", 30):
                A(f"buffer_load_dword v{vT}, v{vSA+3}, s[{SD}:{SD+3}], s{sXLIM} offen sc1")
            if HS and st == cfg.get("q_fc", 35):
                LP, LD = A.newlabel("qp"), A.newlabel("qd")
                A(f"s_mov_b32 s{sT1}, 0")
                A.label(LP)
                A("s_waitcnt vmcnt(0)")
                A(f"v_cmp_eq_u32 vcc, 0, v{vT}")
                A(f"s_add_u32 s{sT1}, s{sT1}, 1")
                A(f"s_cmp_lt_u32 s{sT1}, 0x40000")
                A(f"s_cselect_b64 vcc, vcc, 0")
                A(f"s_cbranch_vccz {LD}")
                A(f"buffer_load_dword v{vT}, v{vSA+3}, s[{SD}:{SD+3}], s{sXLIM} offen sc1")
                A(f"s_branch {LP}")
                A.label(LD)
                for i in range(2): A(f"buffer_load_dwordx2 {v(MB+2*i,2)}, v{vSA}, s[{SWS}:{SWS+3}], s{sXO} offen offset:{256*i} sc1")
                if isV:
                    for i in range(2):
                        for aa in range(4): A(f"buffer_load_dwordx4 {v(vST+16*i+4*aa,4)}, v{vSA+2}, s[{SWS}:{SWS+3}], s{sXO} offen offset:{1024 + 128*i + 32*aa} sc1")
                else:
                    for i in range(2): A(f"buffer_load_dword v{RS+i}, v{vSA+1}, s[{SWS}:{SWS+3}], s{sXO} offen offset:{1024 + 128*i} sc1")
            if st == cfg.get("q_prep", 5):
                A("s_waitcnt vmcnt(0)")
                for f in range(5):
                    for u in range(2):
                        A(f"ds_read_b64_tr_b16 {v(PF+4*f+2*u,2)}, v{VO+5+(f==4)} offset:{4*u*160 + tile_col_imm(f)}"); q.append("p")
            if st == cfg.get("q_prep", 5) + 1:
                wait("p")
            if cfg.get("q_prep", 5) + 1 <= st <= cfg.get("q_prep", 5) + 5:
                f = st - cfg.get("q_prep", 5) - 1
                A(f"s_add_u32 s{sT0}, s{sPDST}, {f*1024}")
                A(f"buffer_store_dwordx4 {v(PF+4*f,4)}, v{L16}, s[{SWS}:{SWS+3}], s{sT0} offen {STF}")
        stamp(A, cfg, 2)

    def correction(isV):
        cs = CSA
        t0, t1, t2, t3 = vT, vT+1, vT+2, vT+3
        A(f"s_lshl_b32 s{sT0}, s{sJ0}, 9")
        A(f"s_lshl_b32 s{sT1}, s{sJ1}, 9")
        A(f"v_lshlrev_b32 v{t0}, 3, v0")
        A(f"v_add_u32 v{t1}, s{sT1}, v{t0}")
        A(f"v_add_u32 v{t0}, s{sT0}, v{t0}")
        A(f"v_cvt_pk_bf16_f32 v{cs+1}, v{cs}, v{cs}")
        A(f"v_and_b32 v{cs+1}, 0xffff0000, v{cs+1}")
        A(f"v_sub_f32 v{cs}, v{cs}, v{cs+1}")
        A(f"v_cvt_pk_bf16_f32 v{cs+2}, v{cs+1}, v{cs}")
        A(f"v_lshrrev_b32 v{cs+3}, 16, v{cs+1}")
        A(f"ds_write_b64 v{t0}, {v(cs+2,2)} offset:{CSL}")
        if HS:
            def corr(j, cf):
                for i in range(2):
                    mb = v(MB + 2 * i, 2); acc = v(ACC + 32 * i + 16 * j, 16)
                    if isV: A(f"v_mfma_f32_32x32x8_bf16 {acc}, {mb}, {cf}, {acc}")
                    else:   A(f"v_mfma_f32_32x32x8_bf16 {acc}, {cf}, {mb}, {acc}")
            A("s_waitcnt vmcnt(0) lgkmcnt(0)")
            A("s_barrier")
            A(f"ds_read_b64 {v(cs+4,2)}, v{t1} offset:{CSL}")
            corr(0, v(cs + 2, 2))
            A("s_waitcnt lgkmcnt(0)")
            corr(1, v(cs + 4, 2))
            return
        A(f"v_and_b32 v{t2}, 3, v0")
        for k in (1, 2, 3):
            A(f"v_cmp_eq_u32 vcc, {k}, v{t2}")
            for i in range(2): A(f"v_cndmask_b32 v{SQ+4*i}, v{SQ+4*i}, v{SQ+4*i+k}, vcc")
        A(f"s_and_b32 s{sT0}, s{sWAVE}, 1")
        A(f"s_lshl_b32 s{sT0}, s{sT0}, 6")
        A(f"s_lshl_b32 s{sT1}, s{sFH2}, 4")
        A(f"s_add_u32 s{sT1}, s{sT1}, s{sT0}")
        A(f"v_and_b32 v{t2}, 15, v0")
        A(f"v_add_u32 v{t2}, s{sT1}, v{t2}")
        A(f"v_lshlrev_b32 v{t3}, 2, v{t2}")
        A(f"v_lshlrev_b32 v{t2}, 3, v{t2}")
        for i in range(2):
            sm, sq = SUM + 4 * i, SQ + 4 * i
            A(f"v_mul_f32 v{sm}, {fhex(1/640)}, v{sm}")
            A(f"v_mul_f32 v{sq}, {fhex(1/640)}, v{sq}")
            A(f"v_fma_f32 v{sq}, -v{sm}, v{sm}, v{sq}")
            A(f"v_max_f32 v{sq}, 0, v{sq}")
            A(f"v_add_f32 v{sq}, {fhex(1e-5)}, v{sq}")
            A(f"v_rsq_f32 v{sq}, v{sq}")
            A(f"v_cvt_pk_bf16_f32 v{sm+2}, -v{sm}, -v{sm}")
            A(f"v_and_b32 v{sm+3}, 0xffff0000, v{sm+2}")
            A(f"v_sub_f32 v{sm+3}, -v{sm}, v{sm+3}")
            A(f"v_cvt_pk_bf16_f32 v{sm+3}, v{sm+3}, 0")
        A("s_mov_b32 exec_lo, 0x00f0000f")
        A("s_mov_b32 exec_hi, 0xf0000f00")
        for i in range(2):
            A(f"ds_write_b64 v{t2}, {v(SUM+4*i+2,2)} offset:{STL + 128*i}")
            A(f"ds_write_b32 v{t3}, v{SQ+4*i} offset:{STL + 1024 + 64*i}")
        A("s_mov_b64 exec, -1")
        A(f"v_and_b32 v{t2}, 31, v0")
        A(f"v_add_u32 v{t2}, s{sT0}, v{t2}")
        if isV:
            A(f"v_lshrrev_b32 v{t3}, 5, v0")
            A(f"v_lshlrev_b32 v{t3}, 2, v{t3}")
            A(f"v_add_u32 v{t3}, s{sT0}, v{t3}")
            A(f"v_lshlrev_b32 v{t3}, 2, v{t3}")
        else:
            A(f"v_lshlrev_b32 v{t3}, 2, v{t2}")
        A(f"v_lshlrev_b32 v{t2}, 3, v{t2}")
        A(f"v_cmp_gt_u32 vcc, 32, v0")
        A("s_waitcnt lgkmcnt(0)")
        A("s_barrier")
        for i in range(2): A(f"ds_read_b64 {v(MB+2*i,2)}, v{t2} offset:{STL + 256*i}")
        A(f"ds_read_b64 {v(cs+4,2)}, v{t1} offset:{CSL}")
        if isV:
            for i in range(2):
                for aa in range(4): A(f"ds_read_b128 {v(vST+16*i+4*aa,4)}, v{t3} offset:{STL + 1024 + 128*i + 32*aa}")
        else:
            for i in range(2): A(f"ds_read_b32 v{RS+i}, v{t3} offset:{STL + 1024 + 128*i}")
        A(f"s_waitcnt lgkmcnt({8 if isV else 2})")
        for k in range(4): A(f"v_cndmask_b32 v{MB+k}, 0, v{MB+k}, vcc")
        for j in range(2):
            cf = v(cs + 2 + 2 * j, 2)
            for i in range(2):
                mb = v(MB + 2 * i, 2); acc = v(ACC + 32 * i + 16 * j, 16)
                if isV: A(f"v_mfma_f32_32x32x8_bf16 {acc}, {mb}, {cf}, {acc}")
                else:   A(f"v_mfma_f32_32x32x8_bf16 {acc}, {cf}, {mb}, {acc}")
        A("s_waitcnt lgkmcnt(0)")

    tr_addr(True, (f"s{sJ0}", f"s{sJ1}"))
    t0, t1, t2, tok16, half = vT, vT+1, vT+2, vT+4, vT+6
    A(f"s_cmp_ge_u32 s{sFG}, 5")
    A(f"s_cselect_b32 s{sT1}, 5, 0")
    A(f"s_cselect_b32 s{sBASE}, {hex(WS_K)}, {hex(WS_Q)}")
    A(f"s_cselect_b32 s{sQS}, 1.0, {fhex(QSCALE)}")
    A(f"s_sub_u32 s{sT1}, s{sFG}, s{sT1}")
    A(f"s_lshl_b32 s{sT1}, s{sT1}, 4")
    A(f"s_mul_i32 s{sT2}, s{sTILE}, 2560")
    A(f"s_add_u32 s{sBASE}, s{sBASE}, s{sT2}")
    A(f"v_lshrrev_b32 v{half}, 5, v0")
    A(f"v_add_u32 v{half}, s{sT1}, v{half}")
    A(f"v_and_b32 v{tok16}, 31, v0")
    A(f"v_lshlrev_b32 v{tok16}, 4, v{tok16}")
    A(f"s_mov_b32 s{sT2}, {PAIR_STRIDE - 2560}")
    for q in range(4):
        A(f"s_lshl_b32 s{sT0}, s{sJ0 + q//2}, 2")
        A(f"s_add_u32 s{sT0}, s{sT0}, {2*(q%2)}")
        A(f"v_add_u32 v{t0}, s{sT0}, v{half}")
        A(f"v_mul_u32_u24 v{t1}, 205, v{t0}")
        A(f"v_lshrrev_b32 v{t1}, 10, v{t1}")
        A(f"v_mul_lo_u32 v{t1}, s{sT2}, v{t1}")
        A(f"v_lshl_add_u32 v{t0}, v{t0}, 9, v{tok16}")
        A(f"v_add_u32 v{vADR+q}, v{t0}, v{t1}")
    if cfg.get("tlb", 1) & 1:
        A("s_mov_b32 exec_lo, 1")
        A("s_mov_b32 exec_hi, 1")
        for q in range(4): A(f"buffer_load_dword v{vT+7}, v{vADR+q}, s[{SWS}:{SWS+3}], s{sBASE} offen")
        A("s_mov_b64 exec, -1")
    mainloop(False)
    correction(False)
    for i in (1, 0):
        A(f"v_mul_f32 v{RS+2*i}, s{sQS}, v{RS+i}")
        A(f"v_mov_b32 v{RS+2*i+1}, v{RS+2*i}")
    for j in range(2):
        for i in range(2):
            for sg in range(2):
                r = ACC + 32 * i + 16 * j + 8 * sg
                for b in range(0, 8, 2): A(f"v_pk_mul_f32 {v(r+b,2)}, {v(r+b,2)}, {v(RS+2*i,2)}")
                for b in range(4): A(f"v_cvt_pk_bf16_f32 v{r+b}, v{r+2*b}, v{r+2*b+1}")
                A(f"buffer_store_dwordx4 {v(r,4)}, v{vADR+2*j+sg}, s[{SWS}:{SWS+3}], s{sBASE} offen offset:{2560*i} {STF}")
    A("s_branch L_qkv_fin")

    A.label("L_qkv_V")
    tr_addr(False, (f"s{sJ0}", f"s{sJ1}"))
    A(f"s_mul_i32 s{sBASE}, s{sTILE}, 1280")
    A(f"s_add_u32 s{sBASE}, s{sBASE}, {hex(WS_V)}")
    A(f"s_sub_u32 s{sT1}, s{sFG}, 10")
    A(f"s_lshl_b32 s{sT1}, s{sT1}, 7")
    A(f"v_lshrrev_b32 v{half}, 5, v0")
    A(f"v_mul_u32_u24 v{half}, 320, v{half}")
    A(f"v_and_b32 v{tok16}, 31, v0")
    A(f"v_add_u32 v{tok16}, s{sT1}, v{tok16}")
    A(f"s_mov_b32 s{sT2}, {VHEAD_STRIDE - 320}")
    for j in range(2):
        A(f"s_lshl_b32 s{sT0}, s{sJ0 + j}, 5")
        A(f"v_add_u32 v{t0}, s{sT0}, v{tok16}")
        A(f"v_mul_u32_u24 v{t1}, 3277, v{t0}")
        A(f"v_lshrrev_b32 v{t1}, 16, v{t1}")
        A(f"v_mul_lo_u32 v{t1}, s{sT2}, v{t1}")
        A(f"v_lshl_add_u32 v{t0}, v{t0}, 4, v{half}")
        A(f"v_add_u32 v{vADR+j}, v{t0}, v{t1}")
    if cfg.get("tlb", 1) & 1:
        A("s_mov_b32 exec_lo, 0x80008001")
        A("s_mov_b32 exec_hi, 0")
        for q in range(2): A(f"buffer_load_dword v{vT+7}, v{vADR+q}, s[{SWS}:{SWS+3}], s{sBASE} offen")
        A("s_mov_b64 exec, -1")
    mainloop(True)
    correction(True)
    for j in range(2):
        for i in range(2):
            for mf in range(2):
                r = ACC + 32 * i + 16 * j + 8 * mf
                for b in range(0, 8, 2): A(f"v_pk_mul_f32 {v(r+b,2)}, {v(r+b,2)}, {v(vST+16*i+8*mf+b,2)}")
                for b in range(4): A(f"v_cvt_pk_bf16_f32 v{r+b}, v{r+2*b}, v{r+2*b+1}")
                A(f"buffer_store_dwordx4 {v(r,4)}, v{vADR+j}, s[{SWS}:{SWS+3}], s{sBASE} offen offset:{1280*i + mf*640} {STF}")
    A.label("L_qkv_fin")
    stamp(A, cfg, 3)
    if cfg.get("qts"):
        for c in range(9): A(f"s_mov_b32 s{71+2*c}, s{70+2*c}")
        A("s_mov_b32 s68, 0")
        A("s_mov_b32 s69, 0")
        stamp_flush(A, cfg, 14, 17, SWS, sWAVE, 0)
        A("s_mov_b64 exec, -1")
    stamp_flush(A, cfg, 4, 0, SWS, sWAVE, 0)
    A("s_endpgm")

    A.label("L_qkv_loader")
    vWOFF, vXOFF = 1, 72
    sWLIM = 44
    if cfg.get("rot", 1):
        A(f"s_lshl_b32 s{sT0}, s{sT0}, 2")
        A(f"s_lshr_b32 s{sC0}, 0x30858530, s{sT0}")
        A(f"s_and_b32 s{sC0}, s{sC0}, 15")
        if cfg.get("rab", [1, 1]):
            ra, rb = cfg.get("rab", [1, 1])
            A(f"s_and_b32 s{sT0}, s{sTB}, 3")
            A(f"s_mul_i32 s{sT0}, s{sT0}, {ra}")
            A(f"s_add_u32 s{sC0}, s{sC0}, s{sT0}")
            A(f"s_and_b32 s{sT0}, s{sFG}, {cfg.get('rmask', 3)}")
            A(f"s_mul_i32 s{sT0}, s{sT0}, {rb}")
            A(f"s_add_u32 s{sC0}, s{sC0}, s{sT0}")
            A(f"s_mul_i32 s{sT0}, s{sC0}, 6554")
            A(f"s_lshr_b32 s{sT0}, s{sT0}, 16")
            A(f"s_mul_i32 s{sT0}, s{sT0}, 10")
            A(f"s_sub_u32 s{sC0}, s{sC0}, s{sT0}")
    else:
        A(f"s_mov_b32 s{sC0}, 0")
    A(f"s_sub_u32 s{sWAVE}, s{sWAVE}, 4")
    A(f"v_and_b32 v{vT}, 15, v0")
    A(f"v_lshrrev_b32 v{vT+1}, 4, v0")
    A(f"v_lshlrev_b32 v{vT+2}, 2, v{vT+1}")
    A(f"v_xor_b32 v{vT+2}, v{vT+2}, v{vT}")
    A(f"v_mul_u32_u24 v{vWOFF}, 3840, v{vT+1}")
    A(f"v_lshl_add_u32 v{vWOFF}, v{vT+2}, 4, v{vWOFF}")
    A(f"v_and_b32 v{vT}, 7, v0")
    A(f"v_xor_b32 v{vT}, v{vT}, v{vT+1}")
    A(f"v_lshrrev_b32 v{vT+2}, 3, v0")
    A(f"v_mul_u32_u24 v{vT+2}, 1280, v{vT+2}")
    A(f"v_lshl_add_u32 v{vXOFF}, v{vT}, 4, v{vT+2}")
    A(f"v_xor_b32 v{vXOFF+1}, 64, v{vXOFF}")
    A(f"s_lshl_b32 s{sWO}, s{sFG}, 8")
    A(f"s_mul_i32 s{sT0}, s{sWAVE}, {16*3840}")
    A(f"s_add_u32 s{sWO}, s{sWO}, s{sT0}")
    A(f"s_add_u32 s{sWLIM}, s{sWO}, {640*3840}")
    A(f"s_mul_i32 s{sT0}, s{sC0}, {64*3840}")
    A(f"s_add_u32 s{sWO}, s{sWO}, s{sT0}")
    A(f"s_lshl_b32 s{sXO}, s{sTB}, 2")
    A(f"s_add_u32 s{sXO}, s{sXO}, s{sWAVE}")
    A(f"s_mul_i32 s{sXO}, s{sXO}, {32*1280}")
    A(f"s_lshl_b32 s{sT0}, s{sC0}, 7")
    A(f"s_add_u32 s{sXO}, s{sXO}, s{sT0}")
    A(f"s_lshl_b32 s{sM0}, s{sWAVE}, 12")
    A("s_waitcnt lgkmcnt(0)")
    srd(A, SW, 6, 640 * 1920 * 2)
    srd(A, SX, SX, X_BYTES)
    def dma_ops(c):
        ops = []
        for j in range(4):
            ops.append([f"s_add_u32 m0, s{sM0}, {(c%5)*SLOT + j*1024}", f"s_add_u32 s{sT0}, s{sWO}, {4*j*3840}",
                        f"buffer_load_dwordx4 v{vWOFF}, s[{SW}:{SW+3}], s{sT0} offen lds"])
            ops.append([f"s_add_u32 m0, s{sM0}, {(c%5)*SLOT + 16384 + j*1024}", f"s_add_u32 s{sT0}, s{sXO}, {8*j*1280}",
                        f"buffer_load_dwordx4 v{vXOFF+(j%2)}, s[{SX}:{SX+3}], s{sT0} offen lds"])
        ops[-1] += [f"s_add_u32 s{sWO}, s{sWO}, {64*3840}", f"s_add_u32 s{sXO}, s{sXO}, 128",
                    f"s_cmp_eq_u32 s{sWO}, s{sWLIM}", f"s_cselect_b32 s{sT0}, {640*3840}, 0", f"s_cselect_b32 s{sT1}, 1280, 0",
                    f"s_sub_u32 s{sWO}, s{sWO}, s{sT0}", f"s_sub_u32 s{sXO}, s{sXO}, s{sT1}"]
        return ops
    def emit(op):
        for x in op:
            if cfg.get("q_nodma") and x.startswith("buffer_"): continue
            A(x)
    IW = cfg.get("iw", 2)
    for c in range(IW):
        for op in dma_ops(c): emit(op)
    srd(A, SWS, 50, WS_SIZE)
    prep_setup()
    ops = [("w", c) for c in range(IW) for _ in range(8)]
    nw = IW
    def wait_for(tag):
        last = max(i for i, o in enumerate(ops) if o == tag)
        A(f"s_waitcnt vmcnt({len(ops) - 1 - last})")
    for c in range(10):
        wait_for(("w", c))
        A("s_barrier")
        for k in range(2 if c in cfg.get("extra_at", []) else 1):
            if nw < 10 and nw <= max(c + 3, 4) and (nw != 4 or c >= 2 or not cfg.get('k1prep', 0)):
                for op in dma_ops(nw): emit(op)
                ops += [("w", nw)] * 8; nw += 1
        if c == 7:
            for jj in range(5):
                A(f"s_add_u32 m0, s{sPLDS}, {jj*1024}")
                A(f"buffer_load_dwordx4 v{VO+jj}, s[{SP}:{SP+3}], s{sPSRC} offen lds")
            ops += [("p", 0)] * 5
    if cfg.get("prep_late", 0): A("s_barrier")
    A("s_waitcnt vmcnt(0)")
    for f in range(5):
        for u in range(2):
            A(f"ds_read_b64_tr_b16 {v(PF+4*f+2*u,2)}, v{VO+5+(f==4)} offset:{4*u*160 + tile_col_imm(f)}")
    A("s_waitcnt lgkmcnt(0)")
    for f in range(5):
        A(f"s_add_u32 s{sT0}, s{sPDST}, {f*1024}")
        A(f"buffer_store_dwordx4 {v(PF+4*f,4)}, v{L16}, s[{SWS}:{SWS+3}], s{sT0} offen {STF}")
    A("s_endpgm")

    A.label("L_qkv_helper")
    XD = 16
    if cfg.get("ctouch", 1):
        code_touch_setup(A, 46, "qkv_kernel", True)
        A(f"v_lshlrev_b32 v{vT+1}, 7, v0")
        A(f"v_min_u32 v{vT+1}, L_code_end-qkv_kernel-4, v{vT+1}")
        A(f"global_load_dword v{vT+7}, v{vT+1}, s[46:47]")
    A(f"v_and_b32 v0, 63, v0")
    if HS:
        A(f"s_and_b32 s{sTB}, s2, 3")
        A(f"s_lshl_b32 s{sTB}, s{sTB}, 2")
        A(f"s_bfe_u32 s{sT0}, s2, 0x10002")
        A(f"s_lshl_b32 s{sT0}, s{sT0}, 1")
        A(f"s_add_u32 s{sTB}, s{sTB}, s{sT0}")
        A(f"s_lshr_b32 s{sT0}, s2, 3")
        A(f"s_add_u32 s{sTB}, s{sTB}, s{sT0}")
        A(f"s_lshl_b32 s{sXO}, s{sTB}, 3")
        A(f"s_add_u32 s{sXO}, s{sXO}, s{sWAVE}")
        A(f"s_mul_i32 s{sXO}, s{sXO}, {16*1280}")
        A(f"s_add_u32 s{sXLIM}, s{sXO}, {8*1280}")
        A(f"v_lshrrev_b32 v2, 3, v0")
        A(f"v_and_b32 v3, 7, v0")
        A(f"v_mul_u32_u24 v1, 1280, v2")
        A(f"v_lshl_add_u32 v1, v3, 4, v1")
        A("s_waitcnt lgkmcnt(0)")
        srd(A, SX, SX, X_BYTES)
        for g in range(2):
            for k in range(10):
                A(f"buffer_load_dwordx4 {v(XD+40*g+4*k,4)}, v1, s[{SX}:{SX+3}], s{sXLIM if g else sXO} offen offset:{128*k}")
        srd(A, SWS, 50, WS_SIZE)
        srd(A, SD, SD, 256)
        A(f"v_mov_b32 v4, 0x3f803f80")
        A(f"s_lshl_b32 s{sT0}, s{sWAVE}, 4")
        A(f"v_add_u32 v2, s{sT0}, v2")
        A(f"v_lshlrev_b32 v5, 3, v2")
        A(f"v_lshlrev_b32 v6, 2, v2")
        A(f"s_lshl_b32 s{sBASE}, s{sTB}, 11")
        A(f"s_add_u32 s{sBASE}, s{sBASE}, {hex(WS_ST1)}")
        A(f"s_mov_b32 s{sT1}, 0x01010101")
        for g in range(2):
            sm, sq = vT, vT + 1
            for k in range(10):
                A(f"s_waitcnt vmcnt({19 - (10*g+k) + (2 if g else 0)})")
                for i in range(4):
                    r = XD + 40 * g + 4 * k + i
                    first = (k == 0 and i == 0)
                    A(f"v_dot2_f32_bf16 v{sm}, v{r}, v4, {0 if first else 'v%d' % sm}")
                    A(f"v_dot2_f32_bf16 v{sq}, v{r}, v{r}, {0 if first else 'v%d' % sq}")
            for dpp in ("quad_perm:[1,0,3,2]", "quad_perm:[2,3,0,1]", "row_half_mirror"):
                A(f"v_add_f32_dpp v{sm}, v{sm}, v{sm} {dpp} row_mask:0xf bank_mask:0xf")
                A(f"v_add_f32_dpp v{sq}, v{sq}, v{sq} {dpp} row_mask:0xf bank_mask:0xf")
            A(f"v_mul_f32 v{sm}, {fhex(1/640)}, v{sm}")
            A(f"v_mul_f32 v{sq}, {fhex(1/640)}, v{sq}")
            A(f"v_fma_f32 v{sq}, -v{sm}, v{sm}, v{sq}")
            A(f"v_max_f32 v{sq}, 0, v{sq}")
            A(f"v_add_f32 v{sq}, {fhex(1e-5)}, v{sq}")
            A(f"v_rsq_f32 v{vT+4}, v{sq}")
            A(f"v_cvt_pk_bf16_f32 v{vT+2}, -v{sm}, -v{sm}")
            A(f"v_and_b32 v{vT+3}, 0xffff0000, v{vT+2}")
            A(f"v_sub_f32 v{vT+3}, -v{sm}, v{vT+3}")
            A(f"v_cvt_pk_bf16_f32 v{vT+3}, v{vT+3}, 0")
            A(f"s_mov_b32 exec_lo, s{sT1}")
            A(f"s_mov_b32 exec_hi, s{sT1}")
            A(f"buffer_store_dwordx2 {v(vT+2,2)}, v5, s[{SWS}:{SWS+3}], s{sBASE} offen offset:{64*g} sc1")
            A(f"buffer_store_dword v{vT+4}, v6, s[{SWS}:{SWS+3}], s{sBASE} offen offset:{1024 + 32*g} sc1")
            A("s_mov_b64 exec, -1")
        pass
        A("s_waitcnt vmcnt(0)")
        A("s_barrier")
        pass
        A(f"s_lshl_b32 s{sT0}, s{sTB}, 4")
        A(f"s_cmp_eq_u32 s{sWAVE}, 0")
        A(f"s_cselect_b32 s{sT0}, s{sT0}, 256")
        A(f"v_mov_b32 v2, 1")
        A(f"v_mov_b32 v3, 0")
        A("s_mov_b64 exec, 1")
        A(f"buffer_store_dword v2, v3, s[{SD}:{SD+3}], s{sT0} offen sc1")
        A("s_mov_b64 exec, -1")
    else:
        A("s_waitcnt lgkmcnt(0)")
        srd(A, SWS, 50, WS_SIZE)
    if cfg.get("ptouch", 0):
        srd(A, SP, 34, 1536 * 640 * 2)
        srd(A, SW, 32, 640 * 640 * 2)
        A(f"s_lshl_b32 s{sT0}, s2, 3")
        A(f"s_add_u32 s{sT0}, s{sT0}, s{sWAVE}")
        A(f"s_mul_i32 s{sT1}, s{sT0}, {50*128}")
        A(f"s_mul_i32 s{sT0}, s{sT0}, {120*128}")
        A(f"v_lshlrev_b32 v1, 7, v0")
        A("s_bfm_b64 exec, 60, 0")
        A(f"buffer_load_dword v4, v1, s[{SP}:{SP+3}], s{sT0} offen")
        A(f"s_add_u32 s{sT0}, s{sT0}, {60*128}")
        A(f"buffer_load_dword v4, v1, s[{SP}:{SP+3}], s{sT0} offen")
        A("s_bfm_b64 exec, 50, 0")
        A(f"buffer_load_dword v4, v1, s[{SW}:{SW+3}], s{sT1} offen")
        A("s_mov_b64 exec, -1")
    if cfg.get("tlbw", 1):
        A("s_load_dwordx4 s[40:43], s[0:1], 32")
        A("s_load_dwordx2 s[52:53], s[0:1], 56")
        A(f"v_lshlrev_b32 v1, 18, v0")
        A(f"s_cmp_lg_u32 s{sWAVE}, 0")
        A("s_cbranch_scc1 L_qkv_notlb")
        A(f"buffer_load_dword v4, v1, s[{SWS}:{SWS+3}], 0 offen")
        A(f"s_mov_b32 s{sT0}, 0x1000000")
        A("s_bfm_b64 exec, 24, 0")
        A(f"buffer_load_dword v4, v1, s[{SWS}:{SWS+3}], s{sT0} offen")
        A("s_mov_b64 exec, -1")
        A("s_waitcnt lgkmcnt(0)")
        for p, nb in ((40, 640*1536*2), (42, 640*1536*2), (52, X_BYTES), (32, 640*640*2), (34, 640*1536*2)):
            srd(A, SP, p, nb)
            A(f"buffer_load_dword v4, v1, s[{SP}:{SP+3}], 0 offen")
        A.label("L_qkv_notlb")
        A("s_waitcnt lgkmcnt(0)")
    if cfg.get("gtouch", 0):
        A("s_load_dwordx4 s[40:43], s[0:1], 32")
        A(f"s_lshl_b32 s{sT0}, s2, 3")
        A(f"s_add_u32 s{sT0}, s{sT0}, s{sWAVE}")
        A(f"s_mul_i32 s{sT0}, s{sT0}, {120*128}")
        A(f"s_add_u32 s{sT1}, s{sT0}, {60*128}")
        A(f"v_lshlrev_b32 v1, 7, v0")
        A("s_waitcnt lgkmcnt(0)")
        srd(A, SP, 40, 1536 * 640 * 2)
        srd(A, SW, 42, 1536 * 640 * 2)
        if cfg["gtouch"] == 2: A("s_waitcnt vmcnt(0)")
        A("s_bfm_b64 exec, 60, 0")
        for sr in (SP, SW):
            for so in (sT0, sT1):
                A(f"buffer_load_dword v4, v1, s[{sr}:{sr+3}], s{so} offen")
        A("s_mov_b64 exec, -1")
    stamp(A, cfg, 1)
    stamp(A, cfg, 2)
    if cfg.get("zfill", 0):
        for i in range(4): A(f"v_mov_b32 v{XD+i}, 0")
        A(f"v_lshlrev_b32 v1, 4, v0")
        A(f"s_lshl_b32 s{sT0}, s2, 3")
        A(f"s_add_u32 s{sT0}, s{sT0}, s{sWAVE}")
        A(f"s_lshl_b32 s{sT1}, s{sT0}, 11")
        A(f"s_add_u32 s{sT1}, s{sT1}, {hex(WS_ST2)}")
        A(f"s_mul_i32 s{sT0}, s{sT0}, 40960")
        A(f"s_add_u32 s{sT0}, s{sT0}, {hex(WS_O)}")
        for k in range(40):
            if k % 4 == 0 and k: A(f"s_add_u32 s{sT0}, s{sT0}, 4096")
            A(f"buffer_store_dwordx4 {v(XD,4)}, v1, s[{SWS}:{SWS+3}], s{sT0} offen offset:{(k%4)*1024} sc1")
        for k in range(2): A(f"buffer_store_dwordx4 {v(XD,4)}, v1, s[{SWS}:{SWS+3}], s{sT1} offen offset:{k*1024} sc1")
    A(f"s_lshl_b32 s{sT0}, s{sWAVE}, 10")
    A(f"s_add_u32 s{sT0}, s{sT0}, {hex(WS_SYNC)}")
    A(f"s_cmp_eq_u32 s2, 0")
    A(f"s_cselect_b32 s{sT0}, s{sT0}, {hex(WS_SIZE)}")
    for i in range(4): A(f"v_mov_b32 v{XD+i}, 0")
    A(f"v_lshlrev_b32 v1, 4, v0")
    A(f"buffer_store_dwordx4 {v(XD,4)}, v1, s[{SWS}:{SWS+3}], s{sT0} offen")
    stamp(A, cfg, 3)
    stamp_flush(A, cfg, 4, 0, SWS, sWAVE, 0)
    A.label("L_qkv_end")
    A("s_endpgm")
    return dict(name=name, grid=256, block=512, lds=163840, desc=kernel_desc(name, 216, 216))
```

```python
from common import *

GU_SLOT = 24608
GU_UP = 12288 + 32
GU_MISC = 6 * GU_SLOT
NWS, H_BASE, NHS = 4, 4 * GU_SLOT, 3
PART_BASE = 4 * GU_SLOT
KV_SLOT = 20480
NKV = 3
KV_BASE = 163840 - NKV * KV_SLOT
NV = 112

class R:
    S = (16, 32); O = 48; P = 64; K1 = 72; K2 = 76; V1 = 80; V2 = 84; Q1 = 88; Q2 = 92
    KA = 1; K2A = 2; VA = 3; L16 = 4; F2S = 5; L4 = 7; T = 8; TCH = 94
    GV = 96
    XRES = 100

SX, SWS, SG_, SU, SO = 4, 8, 12, 16, 20
sWAVE, sG, sM, sT0, sT1, sT2, sC, sDELTA, sSLOT, sQT = 24, 25, 26, 27, 28, 29, 30, 31, 32, 33
sVMASK = 34
sKSRC, sVSRC, sKBASE, sVBASE, sFG, sTOK16, sJ, sFAST, sWOSRC, sWDSRC, sGSRC, sGM0, sFLAG, sB, sXCC, sLW = 36, 37, 38, 39, 40, 41, 42, 43, 44, 45, 46, 47, 48, 49, 50, 51
sTMP = 52
SWO_, SWD_ = 92, 96
sSTG, sWDRAW, sTO, sKQ, sB2, sGLIM, sC0 = 86, 87, 90, 95, 96, 99, 91
sHD, sKLIM, sFL0 = 97, 98, 100

def WD(step, f, n=4):
    if step == 7: return v(40 + 4 * f, n)
    return a({0: 100, 1: 120, 2: 80, 3: 60, 4: 40, 5: 20, 6: 0}[step] + 4 * f, n)
def A_RES(i): return 140 + i if i < 4 else 56 + (i - 4)

def set_shift(A, m):
    t0, t1, t2 = m + 1, m + 2, m + 3
    A(f"v_cvt_pk_bf16_f32 v{t0}, -v{m}, -v{m}")
    A(f"v_and_b32 v{t0}, 0xffff0000, v{t0}")
    A(f"v_sub_f32 v{t1}, -v{m}, v{t0}")
    A(f"v_cvt_pk_bf16_f32 v{t2}, v{t0}, v{t1}")
    A(f"v_and_b32 v{t0}, 0xffff0000, v{t2}")
    A(f"v_sub_f32 v{t1}, v{t1}, v{t0}")
    A(f"v_cvt_pk_bf16_f32 v{t1}, v{t1}, 0")
    A(f"v_cmp_gt_u32 vcc, 32, v0")
    A(f"v_cndmask_b32 v{R.Q2+1}, v{t1}, v{t2}, vcc")

def max16(A, dst, S, first):
    if first:
        A(f"v_max3_f32 v{dst}, v{S}, v{S+1}, v{S+2}")
        A(f"v_max_f32 v{dst}, v{dst}, v{S+3}")
        rng = range(4, 16, 2)
    else:
        rng = range(0, 16, 2)
    for i in rng: A(f"v_max3_f32 v{dst}, v{dst}, v{S+i}, v{S+i+1}")

def xhalf_max(A, m, t):
    A(f"v_mov_b32 v{t}, v{m}")
    A(f"v_permlane32_swap_b32 v{m}, v{t}")
    A(f"v_max_f32 v{m}, v{m}, v{t}")

def stores(A, lst, data=True):
    if data and CFG.get("wt", 3) & 1:
        for x in lst: A(x + (" sc1" if x.startswith("buffer_") else ""))
        return
    L1, L2 = A.newlabel("stf"), A.newlabel("ste")
    A(f"s_cmp_lg_u32 s{sFAST}, 0")
    A(f"s_cbranch_scc1 {L1}")
    for x in lst: A(x + (" sc1" if x.startswith("buffer_") else ""))
    A(f"s_branch {L2}")
    A.label(L1)
    for x in lst: A(x)
    A.label(L2)

def readback(A, lst):
    if not CFG.get("rb", 0) & 1: return
    for mask, ops in lst:
        ops = [x + " sc1" for x in ops]
        A(f"s_mov_b32 exec_lo, {hex(mask & 0xffffffff)}")
        A(f"s_mov_b32 exec_hi, {hex(mask >> 32)}")
        for x in ops: A(x)
    A("s_mov_b64 exec, -1")

def sync(A, idx, poller, half, nleft, between=None, rb=None):
    T = R.T
    A(f"s_waitcnt vmcnt({nleft})")
    if rb: readback(A, rb)
    A("s_barrier")
    L, LP = A.newlabel("sy"), A.newlabel("poll")
    A(f"s_cmp_lg_u32 s{sWAVE}, {poller}")
    if between is not None:
        LB = A.newlabel("btw")
        A(f"s_cbranch_scc1 {LB}")
    else:
        A(f"s_cbranch_scc1 {L}")
    A(f"s_lshl_b32 s{sT0}, s{sM}, 2")
    A(f"s_add_u32 s{sT0}, s{sT0}, s{sFLAG}")
    A(f"v_mov_b32 v{T}, 1")
    A(f"v_mov_b32 v{T+1}, 0")
    A("s_mov_b64 exec, 1")
    if idx == 0 and CFG.get("hp", 1):
        A(f"buffer_store_dword v{T}, v{T+1}, s[{SWS}:{SWS+3}], s{sFL0} offen sc1")
    else:
        stores(A, [f"buffer_store_dword v{T}, v{T+1}, s[{SWS}:{SWS+3}], s{sT0} offen offset:{idx*128}"], data=False)
    if half:
        A(f"s_and_b32 s{sT0}, s{sM}, 2")
        A(f"s_lshl_b32 s{sT0}, 0x33333333, s{sT0}")
        A(f"s_mov_b32 exec_lo, s{sT0}")
    else:
        A("s_mov_b32 exec_lo, -1")
    X0 = idx == 0 and CFG.get("hp", 1)
    L32 = X0 and CFG.get("l32", 1)
    A(f"v_lshlrev_b32 v{T+1}, {7 if L32 else 2}, v0")
    A(f"s_mov_b32 s{sT1}, 0")
    if L32:
        A(f"s_lshl_b32 s{sT0}, s{sG}, 12")
        A(f"s_add_u32 s{sT0}, s{sT0}, {hex(WS_SYNC + 8192)}")
    A.label(LP)
    sl = CFG.get("sl0", 4) if X0 else CFG.get("sl1", 0)
    if sl: A(f"s_sleep {sl}")
    if L32: A(f"buffer_load_dword v{T}, v{T+1}, s[{SWS}:{SWS+3}], s{sT0} offen sc1")
    else: A(f"buffer_load_dword v{T}, v{T+1}, s[{SWS}:{SWS+3}], s{sFLAG} offen offset:{idx*128} sc1")
    A(f"s_add_u32 s{sT1}, s{sT1}, 1")
    A("s_waitcnt vmcnt(0)")
    A(f"v_cmp_eq_u32 vcc, 0, v{T}")
    A(f"s_cmp_lt_u32 s{sT1}, 0x40000")
    A(f"s_cselect_b64 vcc, vcc, 0")
    A(f"s_cbranch_vccnz {LP}")
    A("s_mov_b64 exec, -1")
    if between is not None:
        A("s_barrier")
        between()
        A(f"s_branch {L}")
        A.label(LB)
        between()
        A("s_barrier")
        A.label(L)
    else:
        A.label(L)
        A("s_barrier")

def addr_rowmajor(A, vp, vs, T):
    A(f"v_and_b32 v{T}, 15, v0")
    A(f"v_lshrrev_b32 v{T+1}, 4, v0")
    A(f"v_mul_u32_u24 v{T}, 1280, v{T}")
    A(f"s_add_u32 s{sT0}, s{sLW}, s{sTOK16}")
    A(f"s_mul_i32 s{sT0}, s{sT0}, {16*1280}")
    A(f"s_mul_i32 s{sT1}, s{sFG}, 160")
    A(f"s_add_u32 s{sT0}, s{sT0}, s{sT1}")
    A(f"v_add_u32 v{T}, s{sT0}, v{T}")
    A(f"v_lshl_add_u32 v{vp}, v{T+1}, 4, v{T}")
    A(f"v_lshl_add_u32 v{vs}, v{T+1}, 3, v{T}")
    A(f"v_add_u32 v{vs}, 128, v{vs}")
    A(f"s_and_b32 s{sT0}, s{sWAVE}, 4")
    A(f"s_lshl_b32 s{sT0}, s{sT0}, 4")
    A(f"v_add_u32 v{vp}, s{sT0}, v{vp}")

def reduce_addr(A, P, base, RA):
    A(f"s_mul_i32 s{sT0}, s{sLW}, 5120")
    A(f"s_and_b32 s{sT1}, s{sWAVE}, 4")
    A(f"s_lshl_b32 s{sT1}, s{sT1}, 9")
    A(f"s_add_u32 s{sT0}, s{sT0}, s{sT1}")
    A(f"s_add_u32 s{sT0}, s{sT0}, {base}")
    A(f"v_add_u32 v{RA}, s{sT0}, v{R.L16}")
    for k in range(1, (P + 2) // 3): A(f"v_add_u32 v{RA+k}, {3*20480*k}, v{RA}")

def reduce_sum(A, P, D, RA, n, own, mid=None):
    W = 4 * n
    for p in range(P):
        for e in range(n):
            A(f"ds_read_b128 {v(D+W*p+4*e,4)}, v{RA+p//3} offset:{(p%3)*20480 + (e*1024 if e < 2 else 4096)}")
    if mid: mid()
    for p in range(P):
        A(f"s_waitcnt lgkmcnt({min(15, n*(P-1-p))})")
        for e in range(n):
            for i in (0, 2): A(f"v_pk_add_f32 {v(own[e]+i,2)}, {v(own[e]+i,2)}, {v(D+W*p+4*e+i,2)}")

CFG = {}
def gu_dma_ops(c):
    ops = []
    for isup in range(2):
        sr = SU if isup else SG_
        for jj in range(3):
            ops.append([f"s_add_u32 m0, s{sGM0}, {(c%NWS)*GU_SLOT + isup*GU_UP + jj*1024}",
                        "s_nop 0",
                        f"buffer_load_dwordx4 v{R.GV+jj}, s[{sr}:{sr+3}], s{sGSRC} offen lds"])
    ops[-1] += [f"s_add_u32 s{sGSRC}, s{sGSRC}, {64*3072}", f"s_cmp_eq_u32 s{sGSRC}, s{sGLIM}", f"s_cselect_b32 s{sT0}, {640*3072}, 0", f"s_sub_u32 s{sGSRC}, s{sGSRC}, s{sT0}"]
    return ops
def load_wd_ops(step):
    return [[f"s_add_u32 s{sT0}, s{sWDSRC}, {step*5120 + f*1024}",
             f"buffer_load_dwordx4 {WD(step, f)}, v{R.L16}, s[{SWS}:{SWS+3}], s{sT0} offen"] for f in range(5)]
def gu_dma(A, c, rows):
    A(f"s_add_u32 s{sT0}, s{sGSRC}, {c*64*3072}")
    for isup in range(2):
        sr = SU if isup else SG_
        for jj in range(3):
            A(f"s_add_u32 m0, s{sGM0}, {(c%NWS)*GU_SLOT + isup*GU_UP + jj*1024}")
            A(f"buffer_load_dwordx4 v{R.GV+jj}, s[{sr}:{sr+3}], s{sT0} offen lds")

def load_wd(A, step):
    for f in range(5):
        if f % 4 == 0: A(f"s_add_u32 s{sT0}, s{sWDSRC}, {step*5120 + f*1024}")
        A(f"buffer_load_dwordx4 {WD(step, f)}, v{R.L16}, s[{SWS}:{SWS+3}], s{sT0} offen offset:{(f%4)*1024}")

def cfg_touch_plan(cfg, gu_touch, out_touch, wd_touch, extra):
    plan = cfg.get("tplan", [[20,"gw"]])
    out = []
    for t, w in plan:
        if w in extra: out.append((t, extra[w]))
        elif w[0] == "g": out.append((t, gu_touch(int(w[1]))))
        else: out.append((t, {"o": out_touch(WS_O, 1280), "h": out_touch(WS_H, 1280), "hid": out_touch(WS_HID, 3072), "st": out_touch(WS_ST2, 128), "wd": wd_touch,
                                 "hid0": out_touch(WS_HID, 3072, 0, 8), "hid1": out_touch(WS_HID, 3072, 8, 8), "hid2": out_touch(WS_HID, 3072, 16, 8)}[w]))
    return out

def gen_main(A, cfg):
    name = "main_kernel"
    CFG.update(cfg)
    cfg = dict(cfg); cfg["_k2"] = 1
    kstart(A, name)
    T = R.T
    A("s_cmp_ge_u32 s2, 256")
    A("s_cbranch_scc1 L_end")
    A(f"s_load_dwordx2 s[{SWS}:{SWS+1}], s[0:1], 72")
    A(f"s_load_dwordx2 s[{SX}:{SX+1}], s[0:1], 0")
    A(f"s_load_dwordx2 s[{SG_}:{SG_+1}], s[0:1], 32")
    A(f"s_load_dwordx2 s[{SU}:{SU+1}], s[0:1], 40")
    A(f"s_load_dwordx2 s[{SO}:{SO+1}], s[0:1], 56")
    stamp(A, cfg, 0)
    A(f"v_lshrrev_b32 v{T}, 6, v0")
    A(f"v_and_b32 v0, 63, v0")
    A(f"v_readfirstlane_b32 s{sWAVE}, v{T}")
    A(f"s_and_b32 s{sG}, s2, 7")
    A(f"s_lshr_b32 s{sM}, s2, 3")
    HP = cfg.get("hp", 1)
    if HP:
        A(f"s_lshl_b32 s{sHD}, s{sG}, 2")
        A(f"s_lshr_b32 s{sT0}, s{sM}, 3")
        A(f"s_add_u32 s{sHD}, s{sHD}, s{sT0}")
        A(f"s_and_b32 s{sFL0}, s{sM}, 7")
    else:
        A(f"s_mov_b32 s{sHD}, s{sM}")
        A(f"s_mov_b32 s{sFL0}, s{sG}")
    A(f"s_lshr_b32 s{sT0}, s{sHD}, 1")
    A(f"s_mul_i32 s{sKBASE}, s{sT0}, {PAIR_STRIDE}")
    A(f"s_mul_i32 s{sVBASE}, s{sHD}, {VHEAD_STRIDE}")
    A(f"s_add_u32 s{sVBASE}, s{sVBASE}, {hex(WS_V)}")
    A(f"s_lshl_b32 s{sQT}, s{sFL0}, 3")
    A(f"s_add_u32 s{sQT}, s{sQT}, s{sWAVE}")
    A(f"s_and_b32 s{sT1}, s{sHD}, 1")
    A(f"v_lshlrev_b32 v{R.L16}, 4, v0")
    A(f"s_mul_i32 s{sT2}, s{sT1}, 1536")
    A(f"v_add_u32 v{R.F2S+1}, s{sT2}, v{R.L16}")
    A(f"v_and_b32 v{T}, 31, v0")
    A(f"v_lshrrev_b32 v{T+1}, 5, v0")
    A(f"v_lshlrev_b32 v{R.F2S}, 4, v{T}")
    A(f"v_lshl_add_u32 v{R.F2S}, v{T+1}, 2, v{R.F2S}")
    A(f"s_lshl_b32 s{sT1}, s{sT1}, 3")
    A(f"s_add_u32 s{sT1}, s{sT1}, 1024")
    A(f"v_add_u32 v{R.F2S}, s{sT1}, v{R.F2S}")
    A(f"s_mul_i32 s{sKSRC}, s{sWAVE}, 2560")
    A(f"s_add_u32 s{sKSRC}, s{sKSRC}, s{sKBASE}")
    A(f"s_mul_i32 s{sVSRC}, s{sWAVE}, 1280")
    A(f"s_mul_i32 s{sSLOT}, s{sWAVE}, 2560")
    A(f"v_lshlrev_b32 v{R.L4}, 2, v0")
    A(f"s_add_u32 s{sVSRC}, s{sVSRC}, s{sVBASE}")
    A(f"s_add_u32 s{sKLIM}, s{sKSRC}, {PAIR_STRIDE}")
    A(f"s_mul_i32 s{sT0}, s{sFL0}, {8*1280 if HP and cfg.get('krot', 0) else 0}")
    A(f"s_add_u32 s{sVSRC}, s{sVSRC}, s{sT0}")
    A(f"s_lshl_b32 s{sT0}, s{sT0}, 1")
    A(f"s_add_u32 s{sKSRC}, s{sKSRC}, s{sT0}")
    A(f"s_add_u32 s{sB2}, s{sKBASE}, s{sT0}")
    A("s_waitcnt lgkmcnt(0)")
    srd(A, SWS, SWS, WS_SIZE)
    KVF = cfg.get("kvflag", "")
    def kv_ops(c):
        lds = KV_BASE + (c % NKV) * KV_SLOT
        return [
            [f"s_add_u32 m0, s{sSLOT}, {lds}", "s_nop 0",
             f"buffer_load_dwordx4 v{R.F2S+1}, s[{SWS}:{SWS+3}], s{sKSRC} offen {KVF} lds"],
            [f"s_add_u32 m0, s{sSLOT}, {lds+1024}", "s_nop 0",
             f"buffer_load_dword v{R.F2S}, s[{SWS}:{SWS+3}], s{sKSRC} offen {KVF} lds"],
            [f"s_add_u32 m0, s{sSLOT}, {lds+1280}", f"s_add_u32 s{sKSRC}, s{sKSRC}, {8*2560}",
             f"buffer_load_dwordx4 v{R.L16}, s[{SWS}:{SWS+3}], s{sVSRC} offen {KVF} lds"],
            [f"s_add_u32 m0, s{sSLOT}, {lds+2304}", f"s_add_u32 s{sT0}, s{sVSRC}, 1024",
             f"buffer_load_dword v{R.L4}, s[{SWS}:{SWS+3}], s{sT0} offen {KVF} lds",
             f"s_add_u32 s{sVSRC}, s{sVSRC}, {8*1280}"] +
            ([f"s_cmp_eq_u32 s{sKSRC}, s{sKLIM}", f"s_cselect_b32 s{sT0}, {VHEAD_STRIDE}, 0", f"s_sub_u32 s{sVSRC}, s{sVSRC}, s{sT0}",
              f"s_lshl_b32 s{sT0}, s{sT0}, 1", f"s_sub_u32 s{sKSRC}, s{sKSRC}, s{sT0}"] if HP and cfg.get('krot', 0) else [])]
    def emit(op):
        for x in op: A(x)
    A(f"s_mul_i32 s{sT2}, s{sQT}, 2560")
    A(f"s_add_u32 s{sT2}, s{sT2}, s{sKBASE}")
    A(f"s_add_u32 s{sT2}, s{sT2}, {hex(WS_Q)}")
    A(f"buffer_load_dwordx4 {v(R.Q1,4)}, v{R.F2S+1}, s[{SWS}:{SWS+3}], s{sT2} offen")
    A(f"buffer_load_dword v{R.Q2}, v{R.F2S}, s[{SWS}:{SWS+3}], s{sT2} offen")
    A(f"buffer_load_dwordx4 {v(R.K1,4)}, v{R.F2S+1}, s[{SWS}:{SWS+3}], s{sB2} offen")
    A(f"buffer_load_dword v{R.K2}, v{R.F2S}, s[{SWS}:{SWS+3}], s{sB2} offen")
    PSP = cfg.get("psplit", 3)
    if PSP:
        A(f"s_cmp_ge_u32 s{sWAVE}, {PSP}")
        A("s_cbranch_scc1 L_p0")
    for op in kv_ops(0): emit(op)
    A.label("L_p0")
    A(f"s_lshl_b32 s{sFLAG}, s{sG}, 10")
    A(f"s_add_u32 s{sFLAG}, s{sFLAG}, {hex(WS_SYNC)}")
    A(f"s_getreg_b32 s{sXCC}, hwreg(HW_REG_XCC_ID, 0, 3)")
    A(f"s_mul_i32 s{sXCC}, s{sXCC}, 6")
    A(f"s_lshr_b32 s{sFG}, s{sM}, 2")
    A(f"s_and_b32 s{sT0}, s{sM}, 3")
    A(f"s_lshl_b32 s{sTOK16}, s{sG}, 4")
    A(f"s_lshl_b32 s{sT0}, s{sT0}, 2")
    A(f"s_add_u32 s{sTOK16}, s{sTOK16}, s{sT0}")
    A(f"s_lshl_b32 s{sJ}, s{sFG}, 1")
    A(f"s_and_b32 s{sT0}, s{sM}, 1")
    A(f"s_add_u32 s{sJ}, s{sJ}, s{sT0}")
    A(f"s_and_b32 s{sLW}, s{sWAVE}, 3")
    A(f"s_mul_i32 s{sWOSRC}, s{sFG}, {20*5120}")
    A(f"s_and_b32 s{sKQ}, s{sLW}, 1")
    A(f"s_lshl_b32 s{sKQ}, s{sKQ}, 1")
    A(f"s_lshr_b32 s{sT0}, s{sWAVE}, 2")
    A(f"s_add_u32 s{sKQ}, s{sKQ}, s{sT0}")
    if cfg.get("stag", 3) & 1:
        A(f"s_and_b32 s{sT0}, s{sFG}, 1")
        A(f"s_lshl_b32 s{sT0}, s{sT0}, 1")
        A(f"s_xor_b32 s{sKQ}, s{sKQ}, s{sT0}")
    A(f"s_mul_i32 s{sT0}, s{sKQ}, {5*5120}")
    A(f"s_add_u32 s{sWOSRC}, s{sWOSRC}, s{sT0}")
    A(f"s_add_u32 s{sWOSRC}, s{sWOSRC}, {hex(WS_WO)}")
    A(f"s_mul_i32 s{sWDSRC}, s{sFG}, {48*5120}")
    A(f"s_and_b32 s{sT0}, s{sFG}, {3 if cfg.get('stag', 3) & 2 else 0}")
    A(f"s_xor_b32 s{sT0}, s{sT0}, s{sLW}")
    A(f"s_mul_i32 s{sT0}, s{sT0}, 12")
    A(f"s_and_b32 s{sT1}, s{sWAVE}, 4")
    A(f"s_add_u32 s{sWDRAW}, s{sT0}, s{sT1}")
    A(f"s_mul_i32 s{sT0}, s{sWDRAW}, 5120")
    A(f"s_add_u32 s{sWDSRC}, s{sWDSRC}, s{sT0}")
    A(f"s_add_u32 s{sWDSRC}, s{sWDSRC}, {hex(WS_WD)}")
    A(f"s_mul_i32 s{sGSRC}, s{sLW}, {16*3072}")
    A(f"s_mul_i32 s{sT0}, s{sJ}, 192")
    A(f"s_add_u32 s{sGSRC}, s{sGSRC}, s{sT0}")
    A(f"s_mul_i32 s{sGM0}, s{sLW}, 3072")
    if cfg.get("stag", 3) & 4:
        A(f"s_bfe_u32 s{sT0}, s{sM}, 0x10001")
        A(f"s_mul_i32 s{sT0}, s{sT0}, {cfg.get('gth', 5)}")
        A(f"s_mul_i32 s{sC0}, s{sJ}, {cfg.get('gja', 1)}")
        A(f"s_add_u32 s{sC0}, s{sC0}, s{sT0}")
        A(f"s_mul_i32 s{sT0}, s{sC0}, 6554")
        A(f"s_lshr_b32 s{sT0}, s{sT0}, 16")
        A(f"s_mul_i32 s{sT0}, s{sT0}, 10")
        A(f"s_sub_u32 s{sC0}, s{sC0}, s{sT0}")
    else:
        A(f"s_mov_b32 s{sC0}, 0")
    A(f"s_add_u32 s{sGLIM}, s{sGSRC}, {640*3072}")
    A(f"s_mul_i32 s{sT0}, s{sC0}, {64*3072}")
    A(f"s_add_u32 s{sGSRC}, s{sGSRC}, s{sT0}")
    srd(A, SX, SX, X_BYTES); srd(A, SG_, SG_, 640 * 1536 * 2); srd(A, SU, SU, 640 * 1536 * 2); srd(A, SO, SO, X_BYTES)
    A(f"v_add_u32 v{R.KA}, {KV_BASE}, v{R.L16}")
    A(f"v_add_u32 v{R.K2A}, {KV_BASE + 1024}, v{R.L4}")
    r, kh, aa, hf, b, i_, d1, d2 = T, T+1, T+2, T+3, T+4, T+5, T+6, T+7
    A(f"v_lshrrev_b32 v{aa}, 3, v{r}")
    A(f"v_bfe_u32 v{hf}, v{r}, 2, 1")
    A(f"v_and_b32 v{b}, 3, v{r}")
    A(f"v_lshl_add_u32 v{i_}, v{aa}, 2, v{b}")
    A(f"v_lshl_add_u32 v{d1}, v{hf}, 3, v{i_}")
    A(f"v_lshl_add_u32 v{d2}, v{hf}, 1, v{i_}")
    A(f"v_add_u32 v{d2}, 8, v{d2}")
    A(f"v_cmp_gt_u32 vcc, 8, v{i_}")
    A(f"v_cndmask_b32 v{d1}, v{d2}, v{d1}, vcc")
    A(f"v_min_u32 v{d1}, 19, v{d1}")
    A(f"v_mul_u32_u24 v{R.VA}, 320, v{kh}")
    A(f"v_lshl_add_u32 v{R.VA}, v{d1}, 4, v{R.VA}")
    A(f"v_add_u32 v{R.VA}, {KV_BASE + 1280}, v{R.VA}")
    A(f"v_cmp_eq_u32 vcc, 10, v{i_}")
    A(f"v_mov_b32 v{d2}, 0x3f803f80")
    for k in range(8): A(f"v_cndmask_b32 v{R.V1+k}, 0, v{d2}, vcc")
    A(f"v_cmp_gt_u32 vcc, 32, v0")
    A(f"v_mov_b32 v{d1}, 0x3f80")
    A(f"v_cndmask_b32 v{R.K2+1}, v{d1}, v{d2}, vcc")
    A(f"v_mov_b32 v{R.Q2+1}, 0")
    for jj in range(3):
        A(f"v_add_u32 v{T}, {64*jj}, v0")
        A(f"v_mul_u32_u24 v{T+1}, 5462, v{T}")
        A(f"v_lshrrev_b32 v{T+1}, 16, v{T+1}")
        A(f"v_mul_u32_u24 v{R.GV+jj}, {3072-192}, v{T+1}")
        A(f"v_lshl_add_u32 v{R.GV+jj}, v{T}, 4, v{R.GV+jj}")
    A(f"s_mov_b32 s{sVMASK}, 0x0033ffff")
    A(f"s_mov_b32 s{sVMASK+1}, 0x0033ffff")
    S0 = R.S[0]
    X = R.S[1]
    addr_rowmajor(A, R.XRES + 6, R.XRES + 7, X)
    A(f"v_lshlrev_b32 v{R.TCH}, 7, v0")
    A(f"v_mov_b32 v{R.TCH+1}, 0")
    A(f"s_lshl_b64 s[{sTMP}:{sTMP+1}], 1, s{sXCC}")
    A(f"v_mov_b32 v{R.XRES+8}, s{sTMP}")
    A(f"v_mov_b32 v{R.XRES+9}, s{sTMP+1}")
    A(f"s_cmp_ge_u32 s{sWAVE}, 4")
    A(f"s_cselect_b32 s{sTMP}, s{SU}, s{SG_}")
    A(f"s_cselect_b32 s{sTMP+1}, s{SU+1}, s{SG_+1}")
    A(f"s_mov_b32 s{sTMP+2}, {hex(640*1536*2)}")
    A(f"s_mov_b32 s{sTMP+3}, 0x20000")
    A(f"s_cselect_b32 s{sB}, {GU_UP}, 0")
    A(f"s_add_u32 s{sB}, s{sB}, s{sGM0}")
    A(f"s_and_b32 s{sC}, s{sM}, 3")
    A(f"s_lshl_b32 s{sDELTA}, s{sM}, 2")
    A(f"s_add_u32 s{sDELTA}, s{sDELTA}, s{sLW}")
    A(f"s_mul_i32 s{sDELTA}, s{sDELTA}, {12*128}")
    A(f"s_lshl_b32 s{sTO}, s{sG}, 5")
    A(f"s_add_u32 s{sTO}, s{sTO}, s{sM}")
    A(f"s_lshl_b32 s{sTO}, s{sTO}, 3")
    A(f"s_add_u32 s{sTO}, s{sTO}, s{sWAVE}")
    if cfg.get("ctouch", 1):
        code_touch_setup(A, 88, "L_attn_code")
        A(f"s_and_b32 s{sT0}, s{sTO}, 255")
        A(f"s_lshl_b32 s{sT0}, s{sT0}, 7")
        A(f"v_lshlrev_b32 v{X}, 15, v0")
        A(f"v_add_u32 v{X}, s{sT0}, v{X}")
        A(f"v_min_u32 v{R.GV+3}, L_code_end-L_attn_code-4, v{X}")

    A(f"s_mul_i32 s{sT0}, s{sQT}, {2*80*256}")
    A(f"s_lshr_b32 s{sT1}, s{sHD}, 3")
    A(f"s_mul_i32 s{sT1}, s{sT1}, {20*256}")
    A(f"s_add_u32 s{sT0}, s{sT0}, s{sT1}")
    A(f"s_add_u32 s{sT0}, s{sT0}, {hex(WS_O)}")
    L32 = cfg.get("l32", 1)
    A(f"s_lshl_b32 s{sFL0}, s{sFL0}, {12 if L32 else 10}")
    A(f"s_lshl_b32 s{sT2}, s{sHD}, {7 if L32 else 2}")
    A(f"s_add_u32 s{sFL0}, s{sFL0}, s{sT2}")
    A(f"s_add_u32 s{sFL0}, s{sFL0}, {hex(WS_SYNC + (8192 if L32 else 0))}")
    A(f"s_and_b32 s{sT2}, s{sHD}, 7")
    A(f"s_lshl_b32 s{sT1}, s{sT2}, 9")
    A(f"s_add_u32 s{sT1}, s{sT1}, s{sT0}")
    A(f"s_lshl_b32 s{sT2}, s{sT2}, 7")
    A(f"s_add_u32 s{sT0}, s{sT0}, s{sT2}")
    A(f"s_add_u32 s{sT0}, s{sT0}, {16*256}")
    A(f"v_and_b32 v{X}, 15, v0")
    A(f"v_bfe_u32 v{X+1}, v0, 4, 1")
    A(f"v_lshrrev_b32 v{X+2}, 5, v0")
    A(f"v_mul_u32_u24 v{X+1}, {80*256}, v{X+1}")
    A(f"v_lshl_add_u32 v{T+7}, v{X}, 3, v{X+1}")
    A(f"v_add_u32 v{T+7}, s{sT0}, v{T+7}")
    A(f"v_lshl_add_u32 v{T+6}, v{X}, 4, v{X+1}")
    A(f"v_lshl_add_u32 v{T+6}, v{X+2}, 8, v{T+6}")
    A(f"v_add_u32 v{T+6}, s{sT1}, v{T+6}")
    A(f"s_mov_b32 s92, {fhex(2.0**-40)}")
    A(f"s_mov_b32 s93, {fhex(2.0**64)}")
    A(f"s_mov_b32 s94, {fhex(2.0**127)}")
    JUNK = R.XRES + 11
    def gu_op(c, jj):
        return [f"s_add_u32 m0, s{sB}, {c*GU_SLOT + jj*1024}", "s_nop 0",
                f"buffer_load_dwordx4 v{R.GV+jj}, s[{sTMP}:{sTMP+3}], s{sGSRC} offen lds"] + ([f"s_add_u32 s{sGSRC}, s{sGSRC}, {64*3072}", f"s_cmp_eq_u32 s{sGSRC}, s{sGLIM}", f"s_cselect_b32 s{sT0}, {640*3072}, 0", f"s_sub_u32 s{sGSRC}, s{sGSRC}, s{sT0}"] if jj == 2 else [])
    def touch(n, srd_, pre):
        return pre + [f"s_bfm_b64 exec, {n}, 0", f"buffer_load_dword v{JUNK}, v{R.TCH}, s[{srd_}:{srd_+3}], s{sT0} offen", "s_mov_b64 exec, -1"]
    def gu_touch(c): return touch(12, sTMP, [f"s_add_u32 s{sT0}, s{sDELTA}, {c*64*3072}"])
    def out_touch(base, nbytes, l0=0, n=None):
        return touch(n or nbytes // 128, SWS, [f"s_mul_i32 s{sT0}, s{sTO}, {nbytes}", f"s_add_u32 s{sT0}, s{sT0}, {hex(base + l0*128)}",
                                          f"s_cmp_lg_u32 s{sFAST}, 0", f"s_cselect_b32 s{sT0}, s{sT0}, {hex(WS_SIZE)}"])
    sched = {t: [] for t in range(64)}
    trs = {}
    misc = {}
    vm = []
    def put(t, tag, op):
        while len(sched[t]) >= 3: t += 1
        sched[t].append((tag, op)); return t
    for i, op in enumerate(kv_ops(1)): put(i // 2, "kv1", op)
    for c in range(2, 8):
        for i, op in enumerate(kv_ops(c)): put(8 * (c - 2) + 6 + i // 2, f"kv{c}", op)
    pf = []
    def frag_op(src, i, dst):
        pre = [f"s_add_u32 s{sSTG}, s{src}, {i*1024}"] if i % 4 == 0 else []
        return pre + [f"buffer_load_dwordx4 {a(dst+4*i,4)}, v{R.L16}, s[{SWS}:{SWS+3}], s{sSTG} offen offset:{(i%4)*1024}"]
    for i in range(10): pf.append(frag_op(sWDSRC, i, 100))
    for i in range(25): pf.append(frag_op(sWOSRC, i, 0))
    for c in range(4):
        for jj in range(3): pf.append(gu_op(c, jj))
    if cfg.get("nopf"): pf = []
    free = [t for t in range(cfg.get('pf0', 2), 64) if t % 8 < cfg.get('pfm', 6) or t > 48]
    num, den = cfg.get("pf_rate", [1, 1])
    for i, op in enumerate(pf): put(free[i * den // num], "pf", op)
    put(0, "at", ["s_cmp_eq_u32 s%d, 0" % sWAVE, f"s_cselect_b32 s{sT0}, s{sFLAG}, {hex(WS_SIZE)}", "s_mov_b64 exec, 1",
                  f"buffer_atomic_add_x2 {v(R.XRES+8,2)}, v{R.TCH+1}, s[{SWS}:{SWS+3}], s{sT0} offen offset:512 sc1", "s_mov_b64 exec, -1"])
    put(12, "pf", [f"buffer_load_dwordx4 {v(R.XRES,4)}, v{R.XRES+6}, s[{SX}:{SX+3}], 0 offen"])
    put(16, "pf", [f"buffer_load_dwordx2 {v(R.XRES+4,2)}, v{R.XRES+7}, s[{SX}:{SX+3}], 0 offen"])
    put(cfg.get("xcc_ld", 10), "xcc", [f"buffer_load_dwordx2 {v(R.XRES+8,2)}, v{R.TCH+1}, s[{SWS}:{SWS+3}], s{sFLAG} offen offset:512 sc1"])
    misc[cfg.get('xcc_rd', 23)] = ("xcc", [f"v_readfirstlane_b32 s{sFAST-1}, v{R.XRES+8}" , f"v_readfirstlane_b32 s{sFAST}, v{R.XRES+9}"])
    gwarm = touch(15, sTMP, [f"s_lshr_b32 s{sT0}, s{sTO}, 3", f"s_lshl_b32 s{sT0}, s{sT0}, 2", f"s_add_u32 s{sT0}, s{sT0}, s{sLW}", f"s_mul_i32 s{sT0}, s{sT0}, {15*128}"])
    if cfg.get("gwarm_at", -1) >= 0: put(cfg.get("gwarm_at", -1), "pf", gwarm)
    wd01_touch = touch(20, SWS, [f"s_mul_i32 s{sT0}, s{sC}, 2560", f"s_add_u32 s{sT0}, s{sT0}, s{sWDSRC}"])
    wo_touch = touch(25, SWS, [f"s_lshr_b32 s{sT0}, s{sWAVE}, 2", f"s_lshl_b32 s{sT1}, s{sC}, 1", f"s_add_u32 s{sT0}, s{sT0}, s{sT1}",
                               f"s_mul_i32 s{sT0}, s{sT0}, 3200", f"s_add_u32 s{sT0}, s{sT0}, s{sWOSRC}"])
    gw2 = touch(6, sTMP, [f"s_lshr_b32 s{sT0}, s{sTO}, 3", f"s_lshl_b32 s{sT0}, s{sT0}, 2", f"s_add_u32 s{sT0}, s{sT0}, s{sLW}", f"s_mul_i32 s{sT0}, s{sT0}, {6*128}",
                          f"s_add_u32 s{sT0}, s{sT0}, {6*64*3072}"])
    def gwp(k, n):
        return touch(n, sTMP, [f"s_lshr_b32 s{sT0}, s{sTO}, 3", f"s_lshl_b32 s{sT0}, s{sT0}, 2", f"s_add_u32 s{sT0}, s{sT0}, s{sLW}", f"s_mul_i32 s{sT0}, s{sT0}, {n*128}",
                               f"s_add_u32 s{sT0}, s{sT0}, {k*n*1024*128}"])
    extra = {"p0": gwp(0, 5), "p1": gwp(1, 5), "p2": gwp(2, 5), "q0": gwp(0, 3), "q1": gwp(1, 3), "q2": gwp(2, 3), "q3": gwp(3, 3), "q4": gwp(4, 3), "wd01": wd01_touch, "wo": wo_touch, "gw2": gw2, "gw": gwarm}
    def wdt(k): return touch(20, SWS, [f"s_lshl_b32 s{sT0}, s{sM}, 3", f"s_add_u32 s{sT0}, s{sT0}, s{sWAVE}", f"s_mul_i32 s{sT0}, s{sT0}, {60*128}", f"s_add_u32 s{sT0}, s{sT0}, {WS_WD + k*20*128}"])
    extra.update({"d0": wdt(0), "d1": wdt(1), "d2": wdt(2)})
    wd_touch = None
    for t, op in cfg_touch_plan(cfg, gu_touch, out_touch, wd_touch, extra): put(t, "pf", op)
    HIDT = None
    if cfg.get("tlb", 0) & 2:
        put(20, "pf", ["s_mov_b64 exec, 1", f"buffer_load_dword v{JUNK}, v{R.XRES+6}, s[{SO}:{SO+3}], 0 offen", "s_mov_b64 exec, -1"])
    if cfg.get("ctouch", 1):
        for t in cfg.get("ct_at", [1, 52]):
            put(t, "pf", ["s_mov_b64 exec, 3", f"global_load_dword v{JUNK}, v{R.GV+3}, s[88:89]", "s_mov_b64 exec, -1"])

    if PSP:
        A(f"s_cmp_lt_u32 s{sWAVE}, {PSP}")
        A("s_cbranch_scc1 L_p1")
        A("s_waitcnt vmcnt(0)")
        for op in kv_ops(0): emit(op)
        A.label("L_p1")
    A("s_waitcnt vmcnt(4)")
    A(f"v_mfma_f32_32x32x16_bf16 {v(S0,16)}, {v(R.K1,4)}, {v(R.Q1,4)}, 0")
    A(f"v_mfma_f32_32x32x8_bf16 {v(S0,16)}, {v(R.K2,2)}, {v(R.Q2,2)}, {v(S0,16)}")
    max16(A, R.P, S0, True)
    xhalf_max(A, R.P, R.P+1)
    set_shift(A, R.P)
    A(f"v_mfma_f32_32x32x16_bf16 {v(S0,16)}, {v(R.K1,4)}, {v(R.Q1,4)}, 0")
    A(f"v_mfma_f32_32x32x8_bf16 {v(S0,16)}, {v(R.K2,2)}, {v(R.Q2,2)}, {v(S0,16)}")
    def toff(t): return ((t // 8) % 3) * KV_SLOT + (t % 8) * 2560
    def tdelta(t): return 0
    if PSP:
        A(f"s_cmp_ge_u32 s{sWAVE}, {PSP}")
        A("s_nop 1")
        A("s_cbranch_scc1 L_p2")
    A("s_waitcnt vmcnt(0)")
    A.label("L_p2")
    A("s_barrier")
    vm += ["kv0"] * 4
    A(f"ds_read_b128 {v(R.K1,4)}, v{R.KA} offset:{toff(1)}")
    A(f"ds_read_b32 v{R.K2}, v{R.K2A} offset:{toff(1)}")
    A(f"s_mov_b64 exec, s[{sVMASK}:{sVMASK+1}]")
    A(f"ds_read_b128 {v(R.V1,4)}, v{R.VA}")
    A("s_mov_b64 exec, -1")
    stamp(A, cfg, 1)
    PRIO = cfg.get("prio", {6: 3, 2: 2, 4: 1, 5: 0})
    A("s_setprio 3")
    A.label("L_attn_code")
    def vwait(tag): A(f"s_waitcnt vmcnt({len(vm) - 1 - max(i for i, x in enumerate(vm) if x == tag)})")
    for t in range(64):
        cur, nxt = R.S[t % 2], R.S[(t + 1) % 2]
        def E(i): A(f"v_exp_f32 v{cur+i}, v{cur+i}")
        def C(k): A(f"v_cvt_pk_bf16_f32 v{R.P+k}, v{cur+2*k}, v{cur+2*k+1}")
        ops_t = list(sched[t])
        def V():
            if ops_t:
                tag, op = ops_t.pop(0); emit(op); vm.append(tag)
        tr = []
        if t in trs: tr = list(trs[t][1])
        def L(n):
            for _ in range(n):
                if tr: A(tr.pop(0))
        if PSP and t == PSP - 2:
            vwait("kv0")
            A("s_barrier")
        if t % 8 == 6 and t < 56:
            vwait(f"kv{t//8+1}")
            A("s_barrier")
        if cfg.get("ats") and t % 8 == 6: A(f"s_memtime s[{64+2*(t//8)}:{65+2*(t//8)}]")
        if t < 56 and t % 8 in PRIO: A(f"s_setprio {PRIO[t % 8]}")
        if t >= 56 and (t - 2) % 8 in PRIO and t > 56: A(f"s_setprio {PRIO[(t - 2) % 8]}")
        if t < 63:
            A(f"s_waitcnt lgkmcnt({2 if t else 1})")
            A(f"v_mfma_f32_32x32x16_bf16 {v(nxt,16)}, {v(R.K1,4)}, {v(R.Q1,4)}, 0")
        E(0); E(1); V(); E(2); C(0); E(3)
        A("s_waitcnt lgkmcnt(0)")
        if t: A(f"v_mfma_f32_32x32x16_bf16 {v(R.O,16)}, {v(R.V2,4)}, {v(R.P+4,4)}, {v(R.O,16)}")
        if t in trs and trs[t][0]: vwait(trs[t][0])
        if t in misc:
            vwait(misc[t][0])
            A(f"s_mov_b32 s{sT1}, s{sFAST-1}")
            emit(misc[t][1])
            A(f"s_lshr_b64 s[{sFAST-1}:{sFAST}], s[{sFAST-1}:{sFAST}], s{sXCC}")
            A(f"s_and_b32 s{sFAST}, s{sFAST-1}, 63")
            A(f"s_mov_b32 s{sFAST-1}, s{sT1}")
            A(f"s_cmp_eq_u32 s{sFAST}, 32")
            A(f"s_cselect_b32 s{sFAST}, {0 if cfg.get('noFast') else 1}, 0")
        L(2); E(4); C(1); L(2); E(5); V(); E(6); L(1); C(2); E(7)
        if t < 63: A(f"v_mfma_f32_32x32x8_bf16 {v(nxt,16)}, {v(R.K2,2)}, {v(R.Q2,2)}, {v(nxt,16)}")
        if t < 62:
            if tdelta(t + 2):
                A(f"v_add_u32 v{R.KA}, {tdelta(t+2)}, v{R.KA}")
                A(f"v_add_u32 v{R.K2A}, {tdelta(t+2)}, v{R.K2A}")
            A(f"ds_read_b128 {v(R.K1,4)}, v{R.KA} offset:{toff(t+2)}")
            A(f"ds_read_b32 v{R.K2}, v{R.K2A} offset:{toff(t+2)}")
        E(8); C(3); E(9); V(); E(10); C(4); E(11)
        A(f"v_mfma_f32_32x32x16_bf16 {v(R.O,16)}, {v(R.V1,4)}, {v(R.P,4)}, {v(R.O,16) if t else 0}")
        A(f"s_mov_b64 exec, s[{sVMASK}:{sVMASK+1}]")
        A(f"ds_read_b128 {v(R.V2,4)}, v{R.VA} offset:{toff(t) + 640}")
        if t < 63:
            if tdelta(t + 1): A(f"v_add_u32 v{R.VA}, {tdelta(t+1)}, v{R.VA}")
            A(f"ds_read_b128 {v(R.V1,4)}, v{R.VA} offset:{toff(t+1)}")
        A("s_mov_b64 exec, -1")
        E(12); C(5); E(13); E(14); E(15); C(6); C(7)
        assert not ops_t and not tr
    A("s_waitcnt lgkmcnt(0)")
    A(f"v_mfma_f32_32x32x16_bf16 {v(R.O,16)}, {v(R.V2,4)}, {v(R.P+4,4)}, {v(R.O,16)}")
    A.label("L_post_attn")
    if cfg.get("ats"):
        for c in range(11): A(f"s_sub_u32 s{65+2*c}, s{64+2*c}, s63")
        A("v_mov_b32 v78, v0")
        A("v_mov_b32 v110, v2")
        A("v_mov_b32 v109, v3")
        stamp_flush(A, cfg, 13, 17, SWS, sWAVE, 0)
        A("s_mov_b64 exec, -1")
        A("v_mov_b32 v0, v78")
        A("v_mov_b32 v2, v110")
        A("v_mov_b32 v3, v109")
    A("s_setprio 0")
    stamp(A, cfg, 2)
    N = R.S[0]
    A(f"v_rcp_f32 v{T}, v{R.O+10}")
    A(f"v_max3_f32 v{T+1}, abs(v{R.O}), abs(v{R.O+1}), abs(v{R.O+2})")
    A(f"v_cmp_le_f32 vcc, s92, v{R.O+10}")
    A(f"v_cmp_ge_f32 s[{sTMP}:{sTMP+1}], s93, v{R.O+10}")
    for k in (3, 5, 7): A(f"v_max3_f32 v{T+1}, v{T+1}, abs(v{R.O+k}), abs(v{R.O+k+1})")
    A(f"v_max_f32_e64 v{T+1}, v{T+1}, abs(v{R.O+9})")
    A(f"s_and_b64 vcc, vcc, s[{sTMP}:{sTMP+1}]")
    A(f"v_cmp_ge_f32 s[{sTMP+2}:{sTMP+3}], s94, v{T+1}")
    def norm():
        for k in (8, 9, 0, 1, 2, 3, 4, 5, 6, 7): A(f"v_mul_f32 v{N+k}, v{T}, v{R.O+k}")
    norm()
    A(f"s_and_b64 vcc, vcc, s[{sTMP+2}:{sTMP+3}]")
    A(f"s_cmp_eq_u64 vcc, -1" if not cfg.get("force_slow") else "s_cmp_eq_u32 s2, -1")
    A("s_cbranch_scc0 L_attn_slow")
    A.label("L_attn_norm")
    A(f"v_cvt_pk_bf16_f32 v{N+10}, v{N+8}, v{N+9}")
    A(f"v_cvt_pk_bf16_f32 v{N+11}, v{N+8}, v{N+9}")
    for k in range(4): A(f"v_cvt_pk_bf16_f32 v{N+k}, v{N+2*k}, v{N+2*k+1}")
    A(f"v_permlane32_swap_b32 v{N+10}, v{N+11}")
    stores(A, [f"buffer_store_dwordx4 {v(N,4)}, v{T+6}, s[{SWS}:{SWS+3}], 0 offen",
               "s_mov_b32 exec_hi, 0",
               f"buffer_store_dwordx2 {v(N+10,2)}, v{T+7}, s[{SWS}:{SWS+3}], 0 offen",
               "s_mov_b32 exec_hi, -1"])
    A(f"v_and_b32 v{T+4}, 15, v0")
    A(f"v_lshrrev_b32 v{T+3}, 5, v0")
    A(f"v_lshlrev_b32 v{T+1}, 4, v{T+4}")
    A(f"v_lshl_add_u32 v{T+1}, v{T+3}, 8, v{T+1}")
    A(f"v_lshrrev_b32 v{T+5}, 4, v0")
    A(f"v_lshlrev_b32 v{T+5}, 8, v{T+5}")
    A(f"v_lshl_add_u32 v7, v{T+4}, 3, v{T+5}")
    A(f"v_add_u32 v7, 4096, v7")

    BF, ACC = 16, 56
    vHP, vHS, vPW, RA = 108, 109, 3, 5
    A(f"s_lshr_b32 s{sT2}, s{sWAVE}, 2")
    A(f"s_mul_i32 s{sT1}, s{sKQ}, {20*256}")
    A(f"s_add_u32 s{sT1}, s{sT1}, {hex(WS_O)}")
    A(f"s_add_u32 s{sB2}, s{sLW}, s{sTOK16}")
    A(f"s_xor_b32 s{sB}, s{sB2}, 1")
    A(f"s_mul_i32 s{sB}, s{sB}, {80*256}")
    A(f"s_add_u32 s{sB}, s{sB}, s{sT1}")
    A(f"s_mul_i32 s{sB2}, s{sB2}, {80*256}")
    A(f"s_add_u32 s{sB2}, s{sB2}, s{sT1}")
    A(f"s_xor_b32 s{sT0}, s{sLW}, 1")
    A(f"s_mul_i32 s{sT0}, s{sT0}, 5120")
    A(f"s_add_u32 s{sT0}, s{sT0}, {PART_BASE}")
    A(f"v_add_u32 v{vPW}, s{sT0}, v{R.L16}")
    A(f"s_mul_i32 s{sT0}, s{sLW}, 5120")
    A(f"s_add_u32 s{sT0}, s{sT0}, {PART_BASE}")
    A(f"v_add_u32 v6, s{sT0}, v{R.L16}")
    A(f"s_add_u32 s{sT0}, s{sLW}, s{sTOK16}")
    A(f"s_lshl_b32 s{sC}, s{sT0}, 11")
    A(f"s_mul_i32 s{sT0}, s{sT0}, {80*256}")
    A(f"s_mul_i32 s{sT1}, s{sFG}, 2560")
    A(f"s_add_u32 s{sT0}, s{sT0}, s{sT1}")
    A(f"s_add_u32 s{sT0}, s{sT0}, {hex(WS_H)}")
    A(f"v_add_u32 v{T+1}, 2048, v{T+1}")
    A(f"v_add_u32 v{vHS}, s{sT0}, v{T+1}")
    A(f"s_lshl_b32 s{sT1}, s{sT2}, 10")
    A(f"s_add_u32 s{sT0}, s{sT0}, s{sT1}")
    A(f"v_add_u32 v{vHP}, s{sT0}, v{R.L16}")
    A(f"s_lshl_b32 s{sT1}, s{sFG}, 1")
    A(f"s_add_u32 s{sT1}, s{sT1}, s{sT2}")
    A(f"s_lshl_b32 s{sT1}, s{sT1}, 7")
    A(f"s_add_u32 s{sC}, s{sC}, s{sT1}")
    A(f"s_add_u32 s{sC}, s{sC}, {hex(WS_ST2)}")
    reduce_addr(A, 3, PART_BASE, RA)
    sGT = sQT
    A(f"s_and_b32 s{sGT}, s{sTOK16}, -8")
    A(f"s_lshl_b32 s{sT0}, s{sLW}, 1")
    A(f"s_add_u32 s{sGT}, s{sGT}, s{sT0}")
    sHSRC, sHM0 = sKBASE, sVBASE
    A(f"s_mul_i32 s{sHSRC}, s{sGT}, {80*256}")
    A(f"s_add_u32 s{sHSRC}, s{sHSRC}, {hex(WS_H)}")
    A(f"s_lshl_b32 s{sHM0}, s{sLW}, 12")
    A(f"s_add_u32 s{sTO}, s{sHSRC}, {80*256}")
    A(f"s_lshl_b32 s{sT0}, s{sC0}, 11")
    A(f"s_add_u32 s{sHSRC}, s{sHSRC}, s{sT0}")
    stamp(A, cfg, 3)
    M8 = 0x0101010101010101
    sync(A, 0, 0, False, 0, rb=[(M8, [f"buffer_load_dword v{JUNK}, v{T+6}, s[{SWS}:{SWS+3}], 0 offen"]),
                                (0x00010001, [f"buffer_load_dword v{JUNK}, v{T+7}, s[{SWS}:{SWS+3}], 0 offen"])])
    stamp(A, cfg, 4)
    def wo_load(q, BF=BF):
        i, st = divmod(q, 5)
        if st < 4: A(f"buffer_load_dwordx4 {v(BF+20*i+4*st,4)}, v{R.L16}, s[{SWS}:{SWS+3}], s{sB2 if i else sB} offen offset:{st*1024} {cfg.get('wold', 'sc1')}")
        else:
            for e in range(2): A(f"buffer_load_dwordx2 {v(BF+20*i+16+2*e,2)}, v7, s[{SWS}:{SWS+3}], s{sB2 if i else sB} offen offset:{128*e} {cfg.get('wold', 'sc1')}")
        return [q] * (2 if st == 4 else 1)
    WL0 = cfg.get("wl0", 4)
    wq0 = []
    for q in range(WL0): wq0 += wo_load(q)
    if cfg.get("wts"): A("s_memtime s[72:73]")
    EW = cfg.get("ew", [4, 1, 0])
    FSUB = lambda f: 1 if f in (2, 3) else 0
    def wo_main(sub, ACC=ACC, BF=BF, vPW=vPW):
        keep = [f for f in range(5) if FSUB(f) == sub]
        order = [f for f in range(5) if f not in keep] + keep
        wq = list(wq0); nq = WL0
        for i in range(2):
            for st in range(5):
                A(f"s_waitcnt vmcnt({len(wq) - 1 - max(k for k, x in enumerate(wq) if x == 5*i+st)})")
                for _ in range(cfg.get("wlr", 1)):
                    if nq < 10: wq += wo_load(nq); nq += 1
                if cfg.get("wts") and (5 * i + st) in (0, 2, 4, 5, 7, 9): A(f"s_memtime s[{74+2*(0,2,4,5,7,9).index(5*i+st)}:{75+2*(0,2,4,5,7,9).index(5*i+st)}]")
                for f in order:
                    acc = v(ACC + 20 * i + 4 * f, 4)
                    A(f"v_mfma_f32_16x16x32_bf16 {acc}, {a(20*st+4*f,4)}, {v(BF+20*i+4*st,4)}, {acc if st else 0}")
                if i == 1:
                    f = order[st]
                    A(f"ds_write_b128 v{vPW}, {v(ACC+4*f,4)} offset:{(1 if FSUB(f) == sub else 2)*20480 + f*1024}")
        for f in order:
            if f not in keep: A(f"ds_write_b128 v6, {v(ACC+20+4*f,4)} offset:{f*1024}")
        for op in (load_wd_ops(2) + load_wd_ops(3))[:EW[0]]: emit(op)
        stamp(A, cfg, 5)
        if cfg.get("wts"):
            for k in range(7): A(f"s_sub_u32 s{73+2*k}, s{72+2*k}, s69")
            A("s_sub_u32 s71, s71, s69")
            A("v_mov_b32 v110, v0")
            A("v_mov_b32 v1, v3")
            stamp_flush(A, cfg, 13, 17, SWS, sWAVE, cfg.get("tswave", 0))
            A("s_mov_b64 exec, -1")
            A("v_mov_b32 v0, v110")
            A("v_mov_b32 v3, v1")
        return [ACC + 20 + 4 * f for f in keep]
    D = 16
    TRA, VB, VST = 1, 2, 3
    G1, Gh, rho, c0, c1 = T+2, T+3, T+4, T+5, T+6
    def wo_tail(n):
        own = wo_main(3 - n)
        XF = 56
        A("s_waitcnt lgkmcnt(0)")
        A("s_barrier")
        def mid():
            for op in (load_wd_ops(2) + load_wd_ops(3))[EW[0]:EW[0]+EW[1]]: emit(op)
            for i in range(2 * n):
                A(f"v_lshlrev_b32 v{XF+2*i}, 16, v{R.XRES+i}")
                A(f"v_and_b32 v{XF+2*i+1}, 0xffff0000, v{R.XRES+i}")
            for i in range(2 * n): A(f"v_pk_add_f32 {v(own[i//2]+2*(i%2),2)}, {v(own[i//2]+2*(i%2),2)}, {v(XF+2*i,2)}")
            A(f"v_mov_b32 v{T+2}, 0x3f803f80")
            A(f"v_lshlrev_b32 v{T+3}, 3, v0")
        reduce_sum(A, 3, D, RA, n, own, mid)
        src = lambda i: own[i // 2] + 2 * (i % 2)
        for i in range(4): A(f"v_cvt_pk_bf16_f32 v{D+i}, v{src(i)}, v{src(i)+1}")
        stores(A, [f"buffer_store_dwordx4 {v(D,4)}, v{vHP}, s[{SWS}:{SWS+3}], 0 offen"])
        if n == 3:
            E = D + 12
            for i in range(4): A(f"v_cvt_pk_bf16_f32 v{E+i}, v{src(4+i%2)}, v{src(4+i%2)+1}")
            for i in (4, 5): A(f"v_cvt_pk_bf16_f32 v{D+i}, v{src(i)}, v{src(i)+1}")
            A(f"v_permlane16_swap_b32 v{E}, v{E+2}")
            A(f"v_permlane16_swap_b32 v{E+1}, v{E+3}")
            stores(A, ["s_mov_b32 exec_lo, 0xffff", "s_mov_b32 exec_hi, 0xffff",
                       f"buffer_store_dwordx4 {v(E,4)}, v{vHS}, s[{SWS}:{SWS+3}], 0 offen", "s_mov_b64 exec, -1"])
        sm, sq = D + 8, D + 9
        for i in range(2 * n):
            A(f"v_dot2_f32_bf16 v{sm}, v{D+i}, v{T+2}, {'v%d' % sm if i else 0}")
            A(f"v_dot2_f32_bf16 v{sq}, v{D+i}, v{D+i}, {'v%d' % sq if i else 0}")
        for i in range(3): A(f"v_accvgpr_write_b32 a{A_RES(i)}, v{D+i}")
        for op in ("v_permlane16_swap_b32", "v_permlane32_swap_b32"):
            A(f"v_mov_b32 v{T}, v{sm}")
            A(f"v_mov_b32 v{T+1}, v{sq}")
            A(f"{op} v{sm}, v{T}")
            A(f"{op} v{sq}, v{T+1}")
            A(f"v_pk_add_f32 {v(sm,2)}, {v(sm,2)}, {v(T,2)}")
        A("s_mov_b64 exec, 0xffff")
        stores(A, [f"buffer_store_dwordx2 {v(sm,2)}, v{T+3}, s[{SWS}:{SWS+3}], s{sC} offen"])
        A("s_mov_b64 exec, -1")
        for op in (load_wd_ops(2) + load_wd_ops(3))[EW[0]+EW[1]:sum(EW)]: emit(op)
        for i in range(3, 2 * n): A(f"v_accvgpr_write_b32 a{A_RES(i)}, v{D+i}")
        A(f"v_bfe_u32 v{G1}, v0, 4, 1")
        A(f"v_lshrrev_b32 v{Gh}, 5, v0")
        A(f"v_bfe_u32 v{rho}, v0, 2, 2")
        A(f"v_and_b32 v{c0}, 1, v0")
        A(f"v_bfe_u32 v{c1}, v0, 1, 1")
        A(f"v_lshl_add_u32 v{TRA}, v{Gh}, 3, v{rho}")
        A(f"v_mul_u32_u24 v{TRA}, 192, v{TRA}")
        A(f"v_mul_u32_u24 v{c1}, {GU_UP}, v{c1}")
        A(f"v_add_u32 v{TRA}, v{TRA}, v{c1}")
        A(f"v_lshl_add_u32 v{TRA}, v{c0}, 4, v{TRA}")
        A(f"v_lshl_add_u32 v{TRA}, v{G1}, 3, v{TRA}")
    def h_dma_ops(c):
        return [[f"s_add_u32 m0, s{sHM0}, {H_BASE + (c%NHS)*16384 + k*1024}", f"s_add_u32 s{sT0}, s{sHSRC}, {(k//2)*80*256 + (k%2)*1024}",
                 f"buffer_load_dwordx4 v{R.L16}, s[{SWS}:{SWS+3}], s{sT0} offen sc1 lds"] +
                ([f"s_add_u32 s{sHSRC}, s{sHSRC}, 2048", f"s_cmp_eq_u32 s{sHSRC}, s{sTO}", f"s_cselect_b32 s{sT0}, {80*256}, 0",
                  f"s_sub_u32 s{sHSRC}, s{sHSRC}, s{sT0}"] if k == 3 else []) for k in range(4)]
    A(f"s_cmp_ge_u32 s{sWAVE}, 4")
    A("s_cbranch_scc1 L_gu_loader")
    wo_tail(3)

    L_CF = GU_MISC
    L_MB = GU_MISC + 3072
    L_RS = GU_MISC + 4096
    ACC, FR = 16, 0
    CFA = 0
    MB = T
    sTH, sFH = sKSRC, sVSRC
    A(f"s_and_b32 s{sTH}, s{sWAVE}, 1")
    A(f"s_lshr_b32 s{sFH}, s{sWAVE}, 1")
    A(f"s_mul_i32 s{sT0}, s{sFH}, 96")
    A(f"v_add_u32 v{TRA}, s{sT0}, v{TRA}")
    SEL, CSA = 40, 44
    A(f"v_lshrrev_b32 v{T}, 2, v0")
    A(f"v_xor_b32 v{T}, v{T}, v0")
    A(f"v_and_b32 v{T}, 4, v{T}")
    A(f"v_cmp_eq_u32 vcc, 0, v{T}")
    A(f"v_mov_b32 v{T}, 0x3f803f80")
    A(f"v_cndmask_b32 v{T}, 0, v{T}, vcc")
    for i in range(4): A(f"v_accvgpr_write_b32 a{SEL+i}, v{T}")
    TRH, VBH = 5, 6
    A(f"s_mul_i32 s{sT0}, s{sTH}, {32*192}")
    A(f"v_subrev_u32 v{TRH}, s{sT0}, v{TRA}")
    A(f"v_add_u32 v{TRA}, s{sT0}, v{TRA}")
    A(f"v_and_b32 v{VB}, 15, v0")
    A(f"v_lshlrev_b32 v{VB}, 4, v{VB}")
    A(f"v_lshl_add_u32 v{VB}, v{Gh}, 8, v{VB}")
    A(f"v_mul_u32_u24 v{VST}, {192*256}, v{G1}")
    A(f"v_add_u32 v{VST}, v{VST}, v{VB}")
    A(f"v_lshl_add_u32 v{VB}, v{G1}, 11, v{VB}")
    A(f"s_lshl_b32 s{sT0}, s{sTH}, 13")
    A(f"s_add_u32 s{sT0}, s{sT0}, {H_BASE}")
    A(f"v_add_u32 v{VB}, s{sT0}, v{VB}")
    A(f"s_lshl_b32 s{sT0}, s{sTH}, 10")
    A(f"v_subrev_u32 v{VBH}, s{sT0}, v{VB}")
    A(f"v_add_u32 v{VB}, s{sT0}, v{VB}")
    lq = []
    def gread(st, what):
        c, sl = divmod(st, 4)
        b = FR + 20 * (st % 2)
        if what[0] == "A":
            t = int(what[1])
            for u in range(2):
                A(f"ds_read_b64_tr_b16 {a(b+4*t+2*u,2)}, v{TRA if sl < 2 else TRH} offset:{(16*sl+4*u)*192 + 32*t}"); lq.append((st, what))
        else:
            i = int(what[1])
            A(f"ds_read_b128 {a(b+12+4*i,4)}, v{VB if sl < 2 else VBH} offset:{(c%NHS)*16384 + i*4096 + sl*512}"); lq.append((st, what))
    for w in ("A0", "A1", "A2"): gread(0, w)
    A(f"s_mul_i32 s{sT0}, s{sFH}, 1536")
    A(f"s_add_u32 s{sT0}, s{sT0}, {L_CF}")
    A(f"v_lshlrev_b32 v{T+6}, 3, v0")
    A(f"v_add_u32 v{T+6}, s{sT0}, v{T+6}")
    A(f"v_and_b32 v{T+7}, 31, v0")
    A(f"v_lshlrev_b32 v{T+7}, 3, v{T+7}")
    A(f"s_lshl_b32 s{sT0}, s{sTH}, 9")
    A(f"s_add_u32 s{sT0}, s{sT0}, {L_MB}")
    A(f"v_add_u32 v{T+7}, s{sT0}, v{T+7}")
    stamp(A, cfg, 6)
    sync(A, 1, 0, True, EW[2], rb=[(M8, [f"buffer_load_dword v7, v{vHP}, s[{SWS}:{SWS+3}], 0 offen"]),
                               (0x0000010100000101, [f"buffer_load_dword v7, v{vHS}, s[{SWS}:{SWS+3}], 0 offen"])])
    stamp(A, cfg, 7)
    if cfg.get("gts"): A("s_mov_b32 s90, s75")
    for op in h_dma_ops(0)[:2]: emit(op)
    A("s_waitcnt vmcnt(0)")
    A("s_barrier")
    for w in ("B0", "B1"): gread(0, w)
    wd3 = (load_wd_ops(2) + load_wd_ops(3))[sum(EW):]
    def lwait(tag): A(f"s_waitcnt lgkmcnt({min(15, len(lq) - 1 - max(i for i, x in enumerate(lq) if x == tag))})")
    for st in range(40):
        c, sl = divmod(st, 4)
        nxt = st + 1 < 40
        bar = sl == 3 and nxt
        if bar:
            A("s_waitcnt lgkmcnt(0)")
            if cfg.get("gts") == 2: A(f"s_memtime s[{60+2*c}:{61+2*c}]")
            A("s_barrier")
            if cfg.get("gts") == 1: A(f"s_memtime s[{60+2*c}:{61+2*c}]")
            d = GU_SLOT if (c + 1) % NWS else -(NWS - 1) * GU_SLOT
            A(f"v_add_u32 v{TRA}, {d & 0xffffffff}, v{TRA}")
            A(f"v_add_u32 v{TRH}, {d & 0xffffffff}, v{TRH}")
        if st == 39:
            A("s_waitcnt lgkmcnt(0)")
            A("s_barrier")
            bar = True
            for k in range(3): A(f"ds_read_b64 {a(CFA+2*k,2)}, v{T+6} offset:{512*k}")
        b = FR + 20 * (st % 2)
        plan = ((0, 0, "B1", ("A0",)), (1, 0, None, ("B0", "B1")), (0, 1, "A2", ("A1",)), (1, 1, None, ("A2",)), (0, 2, None, ()), (1, 2, None, ()))
        for (i, t, wt_, rd) in plan:
            if wt_ and not bar and not (st == 0 and wt_ == "A2"): lwait((st, wt_))
            acc = v(ACC + 48 * i + 16 * t, 16)
            if cfg.get("x16"):
                r0 = ACC + 48 * i + 16 * t + 8 * (st % 2)
                A(f"v_mfma_f32_16x16x32_bf16 {v(r0,4)}, {a(b+4*t,4)}, {a(b+12+4*i,4)}, {v(r0,4) if st > 1 else 0}")
                if nxt:
                    for w in rd[:1]: gread(st + 1, w)
                A(f"v_mfma_f32_16x16x32_bf16 {v(r0+4,4)}, {a(b+4*((t+1)%3),4)}, {a(b+12+4*(1-i),4)}, {v(r0+4,4) if st > 1 else 0}")
                if nxt:
                    for w in rd[1:]: gread(st + 1, w)
            else:
                A(f"v_mfma_f32_32x32x16_bf16 {acc}, {a(b+4*t,4)}, {a(b+12+4*i,4)}, {acc if st else 0}")
                if nxt:
                    for w in rd: gread(st + 1, w)
            if sl < 2 and i == 1 and not cfg.get("gu_nocs"):
                A(f"v_mfma_f32_16x16x32_bf16 {a(CSA+4*t,4)}, {a(SEL,4)}, {a(b+4*t,4)}, {a(CSA+4*t,4) if st else 0}")
            if st == 36 and t == 2:
                A(f"ds_read_b64 {v(MB+2*i,2)}, v{T+7} offset:{256*i}"); lq.append("mb")
            if st == 38 and i == 1:
                x = T + 4
                A(f"v_accvgpr_read_b32 v7, a{CSA+4*t}")
                A(f"v_cvt_pk_bf16_f32 v{x+1}, v7, v7")
                A(f"v_and_b32 v{x+1}, 0xffff0000, v{x+1}")
                A(f"v_sub_f32 v7, v7, v{x+1}")
                A(f"v_cvt_pk_bf16_f32 v{x}, v{x+1}, v7")
                A(f"v_lshrrev_b32 v{x+1}, 16, v{x+1}")
                A(f"ds_write_b64 v{TRA}, {v(x,2)} offset:{512*t}"); lq.append("w")
        if st >= cfg.get('cwd0', 30) and wd3: emit(wd3.pop(0))
        if st == 37:
            A(f"s_mul_i32 s{sT0}, s{sFH}, 1536")
            A(f"s_lshl_b32 s{sT1}, s{sTH}, 8")
            A(f"s_add_u32 s{sT0}, s{sT0}, s{sT1}")
            A(f"s_add_u32 s{sT0}, s{sT0}, {L_CF}")
            A(f"v_and_b32 v{TRA}, 31, v0")
            A(f"v_lshlrev_b32 v{TRA}, 3, v{TRA}")
            A(f"v_add_u32 v{TRA}, s{sT0}, v{TRA}")
    A("s_waitcnt lgkmcnt(0)")
    for t in range(3):
        for i in range(2):
            acc = v(ACC + 48 * i + 16 * t, 16)
            A(f"v_mfma_f32_32x32x8_bf16 {acc}, {a(CFA+2*t,2)}, {v(MB+2*i,2)}, {acc}")
    if cfg.get("gts"):
        A("s_waitcnt lgkmcnt(0)")
        for c in range(9): A(f"s_sub_u32 s{(91,92,93,94,95,96,86,88,89)[c]}, s{60+2*c}, s90")
    stamp(A, cfg, 8)
    A(f"s_and_b32 s{sB}, s{sTOK16}, -8")
    A(f"s_lshl_b32 s{sT0}, s{sTH}, 2")
    A(f"s_add_u32 s{sB}, s{sB}, s{sT0}")
    A(f"s_mul_i32 s{sB}, s{sB}, {192*256}")
    A(f"s_mul_i32 s{sT0}, s{sJ}, {12*256}")
    A(f"s_add_u32 s{sB}, s{sB}, s{sT0}")
    A(f"s_mul_i32 s{sT0}, s{sFH}, {6*256}")
    A(f"s_add_u32 s{sB}, s{sB}, s{sT0}")
    A(f"s_add_u32 s{sB}, s{sB}, {hex(WS_HID)}")
    A(f"s_add_u32 s{sT2}, s{sB}, {2*192*256}")
    def gu_epi(sc):
        for (i, t) in ((0, 0), (1, 0), (0, 1), (1, 1), (0, 2), (1, 2)):
            r = ACC + 48 * i + 16 * t
            for q in range(2):
                for b in range(4): A(f"v_max_f32 v{r+8*q+b}, 0, v{r+8*q+b}")
                for b in (0, 2): A(f"v_pk_mul_f32 {v(r+8*q+b,2)}, {v(r+8*q+b,2)}, {v(r+8*q+4+b,2)}")
            A(f"v_cvt_pk_bf16_f32 v{r}, v{r}, v{r+1}")
            A(f"v_cvt_pk_bf16_f32 v{r+1}, v{r+2}, v{r+3}")
            A(f"v_cvt_pk_bf16_f32 v{r+2}, v{r+8}, v{r+9}")
            A(f"v_cvt_pk_bf16_f32 v{r+3}, v{r+10}, v{r+11}")
            A(f"buffer_store_dwordx4 {v(r,4)}, v{VST}, s[{SWS}:{SWS+3}], s{sT2 if i else sB} offen offset:{512*t} {sc}")
    if cfg.get("wt", 3) & 2:
        gu_epi("sc1")
    else:
        A(f"s_cmp_lg_u32 s{sFAST}, 0")
        A("s_nop 4")
        A("s_cbranch_scc0 L_gu_epi_slow")
        gu_epi("")
    A.label("L_gu_epi_done")
    stamp(A, cfg, 9)
    A("s_branch L_gu_done")
    if not cfg.get("wt", 3) & 2:
        A.label("L_gu_epi_slow")
        gu_epi("sc1")
        A("s_branch L_gu_epi_done")

    A.label("L_gu_loader")
    WDL = cfg.get("wdl", "late")
    wo_tail(2)
    STV = 72
    A(f"v_and_b32 v3, 15, v0")
    A(f"v_lshlrev_b32 v3, 3, v3")
    A(f"v_lshl_add_u32 v3, v{G1}, 11, v3")
    A(f"v_lshl_add_u32 v3, v{Gh}, 10, v3")
    A(f"s_lshl_b32 s{sB}, s{sGT}, 11")
    A(f"s_add_u32 s{sB}, s{sB}, {hex(WS_ST2)}")
    A(f"s_waitcnt vmcnt({EW[2]})")
    readback(A, [(M8, [f"buffer_load_dword v7, v{vHP}, s[{SWS}:{SWS+3}], 0 offen"])])
    A("s_barrier")
    wdl = [op for stp in range(2, 8) for op in load_wd_ops(stp)][sum(EW):]
    WPL = cfg.get("wpl", [0,0,0,0,0,0,0,0,5,6,8,6])
    assert sum(WPL) == 30 - sum(EW)
    for _ in range(WPL[0]): emit(wdl.pop(0))

    A("s_barrier")
    ops = []
    for op in h_dma_ops(0)[2:] + h_dma_ops(1): emit(op)
    ops += [("h", 0)] * 2 + [("h", 1)] * 4
    if cfg.get("st_ld", 0) == -1:
        for i in range(8): A(f"buffer_load_dwordx2 {v(STV+2*i,2)}, v3, s[{SWS}:{SWS+3}], s{sB} offen offset:{128*i} sc1")
        ops += ["st"] * 8
    A(f"s_setprio {cfg.get('lprio', 0)}")
    for c in range(10):
        need = [("h", c)] + ([("w", c)] if c >= 4 else [])
        A(f"s_waitcnt vmcnt({len(ops) - 1 - max(i for i, o in enumerate(ops) if o in need)})")
        A("s_barrier")
        vops = []
        if c + 2 < 10:
            vops += h_dma_ops(c + 2); ops += [("h", c + 2)] * 4
        if c + 3 < 10 and c > 0:
            vops += gu_dma_ops(c + 3); ops += [("w", c + 3)] * 6
        if c == cfg.get("st_ld", 0):
            vops += [[f"buffer_load_dwordx2 {v(STV+2*i,2)}, v3, s[{SWS}:{SWS+3}], s{sB} offen offset:{128*i} sc1"] for i in range(8)]
            ops += ["st"] * 8
        for _ in range(WPL[c + 1]):
            vops.append(wdl.pop(0)); ops.append("d")
        for op in vops:
            if cfg.get("noadv"): op = op[:3]
            if cfg.get("nowdl") and "a[" in op[-1] + op[1]: continue
            emit(op)
        if c == cfg.get('st_at', 8):
            A(f"s_waitcnt vmcnt({min(63, len(ops) - 1 - max(i for i, o in enumerate(ops) if o == 'st'))})")
            A(f"s_setprio {cfg.get('sprio', 3)}")
            for i in range(1, 8):
                A(f"v_add_f32 v{STV}, v{STV}, v{STV+2*i}")
                A(f"v_add_f32 v{STV+1}, v{STV+1}, v{STV+2*i+1}")
            for r in (STV, STV + 1):
                A(f"v_mov_b32 v{STV+2}, v{r}")
                A(f"v_permlane32_swap_b32 v{r}, v{STV+2}")
                A(f"v_add_f32 v{r}, v{r}, v{STV+2}")
            mean, rs = STV, STV + 1
            A(f"v_mul_f32 v{mean}, {fhex(1/640)}, v{mean}")
            A(f"v_mul_f32 v{rs}, {fhex(1/640)}, v{rs}")
            A(f"v_fma_f32 v{rs}, -v{mean}, v{mean}, v{rs}")
            A(f"v_max_f32 v{rs}, 0, v{rs}")
            A(f"v_add_f32 v{rs}, {fhex(1e-5)}, v{rs}")
            A(f"v_rcp_f32 v{rs}, v{rs}")
            A(f"v_cvt_pk_bf16_f32 v{STV+2}, -v{mean}, -v{mean}")
            A(f"v_and_b32 v{STV+3}, 0xffff0000, v{STV+2}")
            A(f"v_sub_f32 v{STV+3}, -v{mean}, v{STV+3}")
            A(f"v_cvt_pk_bf16_f32 v{STV+3}, v{STV+3}, 0")
            A(f"v_and_b32 v{STV+4}, 31, v0")
            A(f"s_lshl_b32 s{sT0}, s{sLW}, 5")
            A(f"v_add_u32 v{STV+4}, s{sT0}, v{STV+4}")
            A(f"v_lshlrev_b32 v{STV+5}, 3, v{STV+4}")
            A(f"v_lshlrev_b32 v{STV+4}, 2, v{STV+4}")
            A(f"v_add_u32 v{STV+5}, {L_MB}, v{STV+5}")
            A(f"v_add_u32 v{STV+4}, {L_RS}, v{STV+4}")
            A(f"ds_write_b64 v{STV+5}, {v(STV+2,2)}")
            A(f"ds_write_b32 v{STV+4}, v{rs}")
            A("s_setprio 0")
        if c == cfg.get('st_at', 8): A("s_waitcnt lgkmcnt(0)")
    A("s_barrier")
    for op in wdl: emit(op)
    if cfg.get("wbl2", 0) & 1:
        A(f"s_add_u32 s{sT0}, s{sM}, s{sWAVE}")
        A(f"s_cmp_lg_u32 s{sT0}, 4")
        A("s_cbranch_scc1 L_nowb1")
        A("buffer_wbl2 sc1")
        A.label("L_nowb1")
    A("s_setprio 0")
    A.label("L_gu_done")

    NBD = cfg.get("nbd", 6)
    BF, ACC = 16, 72
    vXP, vXS, RA, vRS = 1, 2, 5, T + 7
    sBT = (sKSRC, sVSRC, sKBASE, sVBASE)
    vPW = (T + 2, T + 3, T + 4, None, T + 5, T + 6, T, T + 1)
    A(f"s_lshl_b32 s{sT1}, s{sWDRAW}, 10")
    A(f"s_add_u32 s{sT1}, s{sT1}, {hex(WS_HID)}")
    for k in range(4):
        A(f"s_xor_b32 s{sT0}, s{sLW}, {3-k}")
        A(f"s_add_u32 s{sBT[k]}, s{sT0}, s{sTOK16}")
        A(f"s_mul_i32 s{sBT[k]}, s{sBT[k]}, {192*256}")
        A(f"s_add_u32 s{sBT[k]}, s{sBT[k]}, s{sT1}")
        A(f"s_mul_i32 s{sT0}, s{sT0}, 5120")
        A(f"s_add_u32 s{sT0}, s{sT0}, {(6-k)*20480}")
        if k < 2:
            A(f"v_add_u32 v{vPW[4+k]}, s{sT0}, v{R.L16}")
            A(f"v_subrev_u32 v{vPW[k]}, {4*20480}, v{vPW[4+k]}")
        else:
            A(f"s_mov_b32 s{97+k-2}, s{sT0}")
    A(f"s_and_b32 s{sT0}, s{sTOK16}, 7")
    A(f"s_add_u32 s{sT0}, s{sT0}, s{sLW}")
    A(f"s_lshl_b32 s{sT0}, s{sT0}, 6")
    A(f"s_add_u32 s{sT0}, s{sT0}, {L_RS}")
    A(f"v_and_b32 v{vRS}, 15, v0")
    A(f"v_lshlrev_b32 v{vRS}, 2, v{vRS}")
    A(f"v_add_u32 v{vRS}, s{sT0}, v{vRS}")
    A(f"ds_read_b32 v{vRS}, v{vRS}")
    addr_rowmajor(A, vXP, vXS, T)
    reduce_addr(A, 7, 0, RA)
    A("s_waitcnt lgkmcnt(0)")
    A(f"s_cmp_ge_u32 s{sWAVE}, 4")
    A("s_cbranch_scc1 L_dn_nw")
    if cfg.get("rb", 0) & 2:
        A("s_mov_b32 exec_lo, 0x01010101")
        A("s_mov_b32 exec_hi, 0x01010101")
        nrb = cfg.get("nrb", 6)
        for k, (i, t) in enumerate(((0, 0), (1, 0), (0, 1), (1, 1), (0, 2), (1, 2))):
            if k < nrb:
                A("s_waitcnt vmcnt(5)")
                A(f"buffer_load_dword v59, v{VST}, s[{SWS}:{SWS+3}], s{sT2 if i else sB} offen offset:{512*t} sc1")
        if nrb < 6: A(f"s_waitcnt vmcnt({nrb})")
        A("s_mov_b64 exec, -1")
    else:
        A("s_waitcnt vmcnt(0)")
    A.label("L_dn_nw")
    sync(A, 2, 0, True, 63)
    stamp(A, cfg, 10)
    BSL = lambda i: 16 + 4 * i if i < 6 else 60 + 4 * (i - 6)
    def dn_main(NS, NBD, sub):
        keep = [f for f in range(5) if FSUB(f) == sub]
        order = [f for f in range(5) if f not in keep] + keep
        def loadBd(q):
            k, st = divmod(q, NS)
            if st == 4: A(f"s_add_u32 s{sBT[k]}, s{sBT[k]}, 4096")
            A(f"buffer_load_dwordx4 {v(BSL(q%NBD),4)}, v{R.L16}, s[{SWS}:{SWS+3}], s{sBT[k]} offen offset:{(st%4)*1024} sc1")
        NI = min(NBD, cfg.get("nbi", 4))
        for q in range(NI): loadBd(q)
        issued = NI
        A(f"v_add_u32 v{vPW[6]}, s97, v{R.L16}")
        A(f"v_subrev_u32 v{vPW[2]}, {4*20480}, v{vPW[6]}")
        A(f"v_add_u32 v{vPW[7]}, s98, v{R.L16}")
        for q in range(NI, NBD): loadBd(q)
        issued = NBD
        pend = []
        for q in range(4 * NS):
            k, st = divmod(q, NS)
            A(f"s_waitcnt vmcnt({issued - 1 - q})")
            for f in order:
                acc = v(ACC + 20 * (k % 2) + 4 * f, 4)
                A(f"v_mfma_f32_16x16x32_bf16 {acc}, {WD(st, f)}, {v(BSL(q%NBD),4)}, {acc if st else 0}")
            if issued < 4 * NS:
                loadBd(issued); issued += 1
            for _ in range(2 if NS == 4 else 1):
                if pend: A(pend.pop(0))
            if st == NS - 1:
                assert not pend
                pend = [f"ds_write_b128 v{vPW[k if f in keep else 4+k]}, {v(ACC+20*(k%2)+4*f,4)} offset:{f*1024}" for f in order if k < 3 or f not in keep]
        for x in pend: A(x)
        stamp(A, cfg, 11)
        return [ACC + 20 + 4 * f for f in keep]
    def dn_tail(n, own):
        DD = 8
        A(f"v_mov_b32 v3, v{vRS}")
        A("s_waitcnt lgkmcnt(0)")
        A("s_barrier")
        reduce_sum(A, 7, DD, RA, n, own)
        for i in range(2 * n):
            r = own[i // 2] + 2 * (i % 2)
            A(f"v_accvgpr_read_b32 v{T+2}, a{A_RES(i)}")
            A(f"v_lshlrev_b32 v{T}, 16, v{T+2}")
            A(f"v_and_b32 v{T+1}, 0xffff0000, v{T+2}")
            A(f"v_fma_f32 v{r}, v{r}, v3, v{T}")
            A(f"v_fma_f32 v{r+1}, v{r+1}, v3, v{T+1}")
            A(f"v_cvt_pk_bf16_f32 v{D+i}, v{r}, v{r+1}")
            if i == 3: A(f"buffer_store_dwordx4 {v(D,4)}, v{vXP}, s[{SO}:{SO+3}], 0 offen {cfg.get('ost', '')}")
        if n == 3: A(f"buffer_store_dwordx2 {v(D+4,2)}, v{vXS}, s[{SO}:{SO+3}], 0 offen {cfg.get('ost', '')}")
    A(f"s_cmp_ge_u32 s{sWAVE}, 4")
    A("s_cbranch_scc1 L_dn_b")
    dn_tail(3, dn_main(4, cfg.get("nbd_c", 5), 0))
    A("s_branch L_dn_e")
    A.label("L_dn_b")
    A(f"s_setprio {cfg.get('dprio', 1)}")
    dn_tail(2, dn_main(8, cfg.get("nbd_l", 8), 1))
    A.label("L_dn_e")
    stamp(A, cfg, 12)
    if cfg.get("gts"):
        for c in range(9):
            A(f"s_mov_b32 s{60+2*c}, s{(91,92,93,94,95,96,86,88,89)[c]}")
            A(f"s_mov_b32 s{61+2*c}, s{(91,92,93,94,95,96,86,88,89)[c]}")
    stamp_flush(A, cfg, 13, 4, SWS, sWAVE, cfg.get('tswave', 0))
    if cfg.get("diag"):
        da, db = cfg["diag"]
        A("s_cmp_ge_u32 s2, 8" if cfg.get("fixed") else "s_cmp_lg_u32 s2, 16")
        A("s_cbranch_scc1 L_end")
        A(f"s_cmp_lg_u32 s{sWAVE}, 0")
        A("s_cbranch_scc1 L_end")
        if da == -1:
            A("v_mov_b32 v1, 0")
            A(f"s_mov_b32 s{sT0}, {hex(WS_TS)}")
            A(f"buffer_load_dword v2, v1, s[{SWS}:{SWS+3}], s{sT0} offen")
            A("s_waitcnt vmcnt(0)")
            A(f"v_readfirstlane_b32 s{sT0}, v2")
        else:
            A(f"s_mov_b32 s{sT0}, s{60+2*da}")
        if cfg.get("fixed"):
            A(f"s_add_u32 s{sT0}, s{sT0}, {cfg['fixed']}")
            if cfg.get("wb"):
                A("buffer_wbl2 sc1")
        else:
            A(f"s_sub_u32 s{sT0}, s{60+2*db}, s{sT0}")
            A(f"s_min_u32 s{sT0}, s{sT0}, 20000")
            A(f"s_lshl_b32 s{sT0}, s{sT0}, 2")
            A(f"s_add_u32 s{sT0}, s{sT0}, s{60+2*12}")
        A.label("L_spin")
        A("s_memrealtime s[56:57]")
        A("s_waitcnt lgkmcnt(0)")
        A(f"s_sub_u32 s{sT1}, s56, s{sT0}")
        A(f"s_cmp_lt_i32 s{sT1}, 0")
        A("s_cbranch_scc1 L_spin")
    A.label("L_end")
    A("s_endpgm")

    A.label("L_attn_slow")
    A(f"v_subrev_u32 v{R.VA}, {KV_BASE + 1280}, v{R.VA}")
    A(f"v_mov_b32 v{R.Q2+1}, 0")
    A(f"v_mov_b32 v{T}, 0xff800000")
    A(f"s_mov_b32 s{sT0}, s{sKBASE}")
    A(f"s_add_u32 s{sT1}, s{sKBASE}, {PAIR_STRIDE}")
    A.label("L_attn_slow1")
    A(f"buffer_load_dwordx4 {v(R.K1,4)}, v{R.F2S+1}, s[{SWS}:{SWS+3}], s{sT0} offen")
    A(f"buffer_load_dword v{R.K2}, v{R.F2S}, s[{SWS}:{SWS+3}], s{sT0} offen")
    A("s_waitcnt vmcnt(0)")
    A(f"v_mfma_f32_32x32x16_bf16 {v(S0,16)}, {v(R.K1,4)}, {v(R.Q1,4)}, 0")
    A(f"v_mfma_f32_32x32x8_bf16 {v(S0,16)}, {v(R.K2,2)}, {v(R.Q2,2)}, {v(S0,16)}")
    max16(A, T, S0, False)
    A(f"s_add_u32 s{sT0}, s{sT0}, 2560")
    A(f"s_cmp_lt_u32 s{sT0}, s{sT1}")
    A("s_cbranch_scc1 L_attn_slow1")
    xhalf_max(A, T, T+1)
    set_shift(A, T)
    for k in range(16): A(f"v_mov_b32 v{R.O+k}, 0")
    A(f"s_mov_b32 s{sT0}, s{sKBASE}")
    A(f"s_mov_b32 s{sT2}, s{sVBASE}")
    A.label("L_attn_slow2")
    A(f"buffer_load_dwordx4 {v(R.K1,4)}, v{R.F2S+1}, s[{SWS}:{SWS+3}], s{sT0} offen")
    A(f"buffer_load_dword v{R.K2}, v{R.F2S}, s[{SWS}:{SWS+3}], s{sT0} offen")
    A(f"s_mov_b64 exec, s[{sVMASK}:{sVMASK+1}]")
    A(f"buffer_load_dwordx4 {v(R.V1,4)}, v{R.VA}, s[{SWS}:{SWS+3}], s{sT2} offen")
    A(f"buffer_load_dwordx4 {v(R.V2,4)}, v{R.VA}, s[{SWS}:{SWS+3}], s{sT2} offen offset:640")
    A("s_mov_b64 exec, -1")
    A("s_waitcnt vmcnt(0)")
    A(f"v_mfma_f32_32x32x16_bf16 {v(S0,16)}, {v(R.K1,4)}, {v(R.Q1,4)}, 0")
    A(f"v_mfma_f32_32x32x8_bf16 {v(S0,16)}, {v(R.K2,2)}, {v(R.Q2,2)}, {v(S0,16)}")
    for k in range(16): A(f"v_exp_f32 v{S0+k}, v{S0+k}")
    for k in range(8): A(f"v_cvt_pk_bf16_f32 v{R.P+k}, v{S0+2*k}, v{S0+2*k+1}")
    A(f"v_mfma_f32_32x32x16_bf16 {v(R.O,16)}, {v(R.V1,4)}, {v(R.P,4)}, {v(R.O,16)}")
    A(f"v_mfma_f32_32x32x16_bf16 {v(R.O,16)}, {v(R.V2,4)}, {v(R.P+4,4)}, {v(R.O,16)}")
    A(f"s_add_u32 s{sT0}, s{sT0}, 2560")
    A(f"s_add_u32 s{sT2}, s{sT2}, 1280")
    A(f"s_cmp_lt_u32 s{sT0}, s{sT1}")
    A("s_nop 7")
    A("s_cbranch_scc1 L_attn_slow2")
    A(f"v_rcp_f32 v{T}, v{R.O+10}")
    norm()
    A("s_nop 1")
    A("s_branch L_attn_norm")
    A.label("L_code_end")
    return dict(name=name, grid=256, block=512, lds=163840, desc=kernel_desc(name, 256, NV, 102))
```

```python
from common import *

def gen_qkv(A, cfg):
    name = "qkv_kernel"
    kstart(A, name)
    SX, SW, SWS, SP, SD = 4, 8, 12, 36, 48
    sWAVE, sTB, sFG, sXO, sXLIM, sWO, sT0, sT1, sT2, sM0 = 16, 17, 18, 19, 20, 21, 22, 23, 24, 25
    sTILE, sBASE, sQS, sC0, sID = 26, 27, 28, 30, 31
    vTR = 4
    vT = 8
    SLOT = 32768
    CSL = SLOT
    STL = SLOT + 2048
    A("s_cmp_ge_u32 s2, 256")
    A("s_cbranch_scc1 L_qkv_end")
    A("s_load_dwordx4 s[4:7], s[0:1], 0")
    A("s_load_dwordx4 s[48:51], s[0:1], 64")
    A("s_load_dwordx2 s[32:33], s[0:1], 16")
    A("s_load_dwordx2 s[34:35], s[0:1], 48")
    stamp(A, cfg, 0)
    if cfg.get("diag"): A("s_memrealtime s[56:57]")
    A(f"v_lshrrev_b32 v{vT}, 6, v0")
    A(f"s_cmp_lt_u32 s2, 16")
    A(f"v_readfirstlane_b32 s{sWAVE}, v{vT}")
    A("s_cbranch_scc1 L_qkv_helper")
    A(f"v_and_b32 v0, 63, v0")
    A(f"s_sub_u32 s{sID}, s2, 16")
    A(f"s_and_b32 s{sT0}, s{sID}, 7")
    A(f"s_lshr_b32 s{sT1}, s{sID}, 3")
    A(f"s_lshr_b32 s{sT2}, s{sT0}, 2")
    A(f"s_mul_i32 s{sT2}, s{sT2}, 30")
    A(f"s_add_u32 s{sT1}, s{sT1}, s{sT2}")
    A(f"s_lshr_b32 s{sFG}, s{sT1}, 2")
    A(f"s_and_b32 s{sT1}, s{sT1}, 3")
    A(f"s_and_b32 s{sT2}, s{sT0}, 3")
    A(f"s_lshl_b32 s{sT2}, s{sT2}, 2")
    A(f"s_add_u32 s{sTB}, s{sT2}, s{sT1}")
    A(f"s_cmp_ge_u32 s{sWAVE}, 4")
    if cfg.get("ctouch", 2) == 2:
        A("s_cbranch_scc1 L_qkv_noct")
        code_touch_setup(A, 46, "qkv_kernel", True)
        A(f"s_lshr_b32 s{sT1}, s{sID}, 3")
        A(f"s_lshl_b32 s{sT1}, s{sT1}, 2")
        A(f"s_add_u32 s{sT1}, s{sT1}, s{sWAVE}")
        A(f"s_lshl_b32 s{sT1}, s{sT1}, 7")
        A(f"v_mul_u32_u24 v{vT+1}, {120*128}, v0")
        A(f"v_add_u32 v{vT+1}, s{sT1}, v{vT+1}")
        A(f"v_min_u32 v{vT+1}, L_code_end-qkv_kernel-4, v{vT+1}")
        A("s_mov_b64 exec, 31")
        A(f"global_load_dword v{vT+7}, v{vT+1}, s[46:47]")
        A("s_mov_b64 exec, -1")
        A("s_branch L_qkv_compute")
        A.label("L_qkv_noct")
        i_split = len(A.items)
        A.label("L_qkv_compute")
    elif cfg.get("lfirst", 1):
        A("s_cbranch_scc0 L_qkv_compute")
        i_split = len(A.items)
        A.label("L_qkv_compute")
    else:
        A("s_cbranch_scc1 L_qkv_loader")

    def tr_addr(permuted, tiles):
        rho, cc, g1, kh, base = vT, vT+1, vT+2, vT+3, vT+4
        A(f"v_bfe_u32 v{rho}, v0, 2, 2")
        A(f"v_bfe_u32 v{g1}, v0, 4, 1")
        A(f"v_lshrrev_b32 v{kh}, 5, v0")
        A(f"v_lshl_add_u32 v{base}, v{kh}, 3, v{rho}")
        A(f"v_lshlrev_b32 v{base}, 8, v{base}")
        A(f"v_lshl_add_u32 v{base}, v{g1}, 5, v{base}")
        if permuted:
            A(f"v_and_b32 v{cc}, 1, v0")
            A(f"v_lshl_add_u32 v{base}, v{cc}, 4, v{base}")
            A(f"v_bfe_u32 v{cc}, v0, 1, 1")
            A(f"v_lshl_add_u32 v{base}, v{cc}, 3, v{base}")
        else:
            A(f"v_and_b32 v{cc}, 3, v0")
            A(f"v_lshl_add_u32 v{base}, v{cc}, 3, v{base}")
        for j, t in enumerate(tiles):
            A(f"v_xor_b32 v{vTR+j}, {t}, v{rho}")
            A(f"v_lshl_add_u32 v{vTR+j}, v{vTR+j}, 6, v{base}")
    def rebase(c):
        def base(c): return ((c % 5) // 2) * 2 * SLOT
        return (base(c) - base(c - 1) if c else 0), (c % 5) * SLOT - base(c)

    ACC, FR, vBA, vADR, vST = 16, 80, 112, 116, 120
    sFH2 = 29
    A(f"s_and_b32 s{sT0}, s{sWAVE}, 1")
    A(f"s_and_b32 s{sFH2}, s{sWAVE}, 2")
    sJ0, sJ1 = 44, 45
    A(f"s_mov_b32 s{sJ0}, s{sWAVE}")
    A(f"s_xor_b32 s{sJ1}, s{sWAVE}, 1")
    A(f"s_lshl_b32 s{sTILE}, s{sTB}, 1")
    A(f"s_add_u32 s{sTILE}, s{sTILE}, s{sT0}")
    A(f"s_lshl_b32 s{sTILE}, s{sTILE}, 1")
    A(f"s_lshl_b32 s{sT0}, s{sT0}, 13")
    A(f"s_add_u32 s{sT0}, s{sT0}, 16384")
    A(f"v_and_b32 v{vT}, 31, v0")
    A(f"v_lshrrev_b32 v{vT+1}, 5, v0")
    A(f"v_bfe_u32 v{vT+2}, v0, 1, 3")
    A(f"v_xor_b32 v{vT+1}, v{vT+1}, v{vT+2}")
    A(f"v_lshlrev_b32 v{vT}, 7, v{vT}")
    A(f"v_lshl_add_u32 v{vT}, v{vT+1}, 4, v{vT}")
    A(f"v_add_u32 v{vBA}, s{sT0}, v{vT}")
    for st in range(1, 4): A(f"v_xor_b32 v{vBA+st}, {32*st}, v{vBA}")
    CSA, ONE, SEL, SF, SUM, SQ, vSB = 152, 160, 164, 168, 184, 192, 200
    MB, RS = 204, 208
    VO, PF, L16 = 120, 128, 2
    sU, sPSRC, sPDST, sPLDS = 40, 41, 42, 43
    def prep_setup():
        A(f"s_mul_i32 s{sU}, s{sWAVE}, 240")
        A(f"s_add_u32 s{sU}, s{sU}, s{sID}")
        A(f"v_lshlrev_b32 v{L16}, 4, v0")
        A(f"s_lshl_b32 s{sPLDS}, s{sWAVE}, 13")
        for jj in range(5):
            A(f"v_add_u32 v{vT}, {64*jj}, v0")
            A(f"v_mul_u32_u24 v{PF+jj}, 6554, v{vT}")
            A(f"v_lshrrev_b32 v{PF+jj}, 16, v{PF+jj}")
            A(f"v_mul_u32_u24 v{vT+1}, 10, v{PF+jj}")
            A(f"v_sub_u32 v{vT}, v{vT}, v{vT+1}")
            A(f"v_lshlrev_b32 v{VO+jj}, 4, v{vT}")
        A(f"s_cmp_ge_u32 s{sU}, 384")
        A("s_cbranch_scc1 L_qkv_pwo")
        srd(A, SP, 34, 1536 * 640 * 2)
        A(f"s_mul_i32 s{sT0}, s{sU}, 1366")
        A(f"s_lshr_b32 s{sT0}, s{sT0}, 16")
        A(f"s_mul_i32 s{sT1}, s{sT0}, 48")
        A(f"s_sub_u32 s{sT1}, s{sU}, s{sT1}")
        A(f"s_mul_i32 s{sPSRC}, s{sT1}, {32*1280}")
        A(f"s_mul_i32 s{sT0}, s{sT0}, 160")
        A(f"s_add_u32 s{sPSRC}, s{sPSRC}, s{sT0}")
        A(f"s_mul_i32 s{sPDST}, s{sU}, 5120")
        A(f"s_add_u32 s{sPDST}, s{sPDST}, {hex(WS_WD)}")
        A("s_branch L_qkv_pgo")
        A.label("L_qkv_pwo")
        srd(A, SP, 32, 640 * 640 * 2)
        A(f"s_sub_u32 s{sU}, s{sU}, 384")
        A(f"s_mul_i32 s{sT0}, s{sU}, 3277")
        A(f"s_lshr_b32 s{sT0}, s{sT0}, 16")
        A(f"s_mul_i32 s{sT1}, s{sT0}, 20")
        A(f"s_sub_u32 s{sT1}, s{sU}, s{sT1}")
        A(f"s_mul_i32 s{sPSRC}, s{sT0}, 160")
        A(f"s_mul_i32 s{sT0}, s{sT1}, 205")
        A(f"s_lshr_b32 s{sT0}, s{sT0}, 10")
        A(f"s_mul_i32 s{sT2}, s{sT0}, 5")
        A(f"s_sub_u32 s{sT1}, s{sT1}, s{sT2}")
        A(f"s_mul_i32 s{sT0}, s{sT0}, {160*1280}")
        A(f"s_add_u32 s{sPSRC}, s{sPSRC}, s{sT0}")
        A(f"s_mul_i32 s{sPDST}, s{sU}, 5120")
        A(f"s_add_u32 s{sPDST}, s{sPDST}, {hex(WS_WO)}")
        A(f"s_cmp_ge_u32 s{sU}, 160")
        A(f"s_cselect_b32 s{sPDST}, {hex(WS_SIZE)}, s{sPDST}")
        A(f"s_cselect_b32 s{SP+2}, 0, s{SP+2}")
        A(f"s_cmp_eq_u32 s{sT1}, 4")
        A("s_cbranch_scc1 L_qkv_pleft")
        A(f"s_mul_i32 s{sT1}, s{sT1}, {40*1280}")
        A(f"s_add_u32 s{sPSRC}, s{sPSRC}, s{sT1}")
        for jj in range(5):
            A(f"v_lshrrev_b32 v{vT}, 4, v{PF+jj}")
            A(f"v_lshl_add_u32 v{PF+jj}, v{vT}, 2, v{PF+jj}")
        A("s_branch L_qkv_pgo")
        A.label("L_qkv_pleft")
        for jj in range(5):
            k = PF + jj
            A(f"v_lshrrev_b32 v{vT}, 2, v{k}")
            A(f"v_lshl_add_u32 v{k}, v{vT}, 4, v{k}")
            A(f"v_add_u32 v{k}, 16, v{k}")
        A.label("L_qkv_pgo")
        for jj in range(5):
            A(f"v_mul_u32_u24 v{vT}, 1280, v{PF+jj}")
            A(f"v_add_u32 v{VO+jj}, v{VO+jj}, v{vT}")
        A(f"v_lshrrev_b32 v{vT}, 4, v0")
        A(f"v_bfe_u32 v{vT+1}, v0, 2, 2")
        A(f"v_lshl_add_u32 v{vT}, v{vT}, 3, v{vT+1}")
        A(f"v_mul_u32_u24 v{vT}, 160, v{vT}")
        A(f"v_add_u32 v{vT}, s{sPLDS}, v{vT}")
        A(f"v_and_b32 v{vT+1}, 3, v0")
        A(f"v_lshl_add_u32 v{VO+5}, v{vT+1}, 4, v{vT}")
        A(f"v_lshl_add_u32 v{VO+6}, v{vT+1}, 3, v{vT}")
    A("s_waitcnt lgkmcnt(0)")
    cfg = dict(cfg); cfg["q_prep"] = 100
    srd(A, SWS, 50, WS_SIZE)
    if cfg.get("diag"):
        A(f"s_cmp_eq_u32 s2, 16")
        A(f"s_mov_b32 s{sT0}, {hex(WS_TS)}")
        A(f"s_cselect_b32 s{sT0}, s{sT0}, {hex(WS_SIZE)}")
        A(f"v_mov_b32 v{vT}, s56")
        A(f"v_mov_b32 v{vT+1}, 0")
        A(f"buffer_store_dword v{vT}, v{vT+1}, s[{SWS}:{SWS+3}], s{sT0} offen")
    A(f"v_lshrrev_b32 v{vT}, 2, v0")
    A(f"v_xor_b32 v{vT}, v{vT}, v0")
    A(f"v_and_b32 v{vT}, 4, v{vT}")
    A(f"v_cmp_eq_u32 vcc, 0, v{vT}")
    for i in range(4): A(f"v_mov_b32 v{ONE+i}, 0x3f803f80")
    for i in range(4): A(f"v_cndmask_b32 v{SEL+i}, 0, v{ONE}, vcc")
    A(f"s_and_b32 s{sT0}, s{sWAVE}, 1")
    A(f"s_lshl_b32 s{sT0}, s{sT0}, 13")
    A(f"s_lshl_b32 s{sT1}, s{sFH2}, 11")
    A(f"s_add_u32 s{sT0}, s{sT0}, s{sT1}")
    A(f"s_add_u32 s{sT0}, s{sT0}, 16384")
    A(f"v_and_b32 v{vT}, 15, v0")
    A(f"v_lshrrev_b32 v{vT+1}, 4, v0")
    A(f"v_bfe_u32 v{vT+2}, v0, 1, 3")
    A(f"v_xor_b32 v{vT+1}, v{vT+1}, v{vT+2}")
    A(f"v_lshlrev_b32 v{vT}, 7, v{vT}")
    A(f"v_lshl_add_u32 v{vT}, v{vT+1}, 4, v{vT}")
    A(f"v_add_u32 v{vSB}, s{sT0}, v{vT}")
    A(f"v_xor_b32 v{vSB+1}, 64, v{vSB}")
    HS = cfg.get("hstat", 1)
    vSA = SUM
    if HS:
        srd(A, SD, SD, 256)
        A(f"s_lshl_b32 s{sXO}, s{sTB}, 11")
        A(f"s_add_u32 s{sXO}, s{sXO}, {hex(WS_ST1)}")
        A(f"s_and_b32 s{sT0}, s{sWAVE}, 1")
        A(f"s_lshl_b32 s{sT0}, s{sT0}, 6")
        A(f"v_and_b32 v{vT}, 31, v0")
        A(f"v_add_u32 v{vT}, s{sT0}, v{vT}")
        A(f"v_lshlrev_b32 v{vSA}, 3, v{vT}")
        A(f"v_cmp_gt_u32 vcc, 32, v0")
        A(f"v_mov_b32 v{vT+1}, 0x7f000000")
        A(f"v_cndmask_b32 v{vSA}, v{vT+1}, v{vSA}, vcc")
        A(f"v_lshlrev_b32 v{vSA+1}, 2, v{vT}")
        A(f"v_lshrrev_b32 v{vT}, 5, v0")
        A(f"v_lshlrev_b32 v{vT}, 2, v{vT}")
        A(f"v_add_u32 v{vT}, s{sT0}, v{vT}")
        A(f"v_lshlrev_b32 v{vSA+2}, 2, v{vT}")
        A(f"v_mov_b32 v{vSA+3}, 0")
        A(f"s_lshl_b32 s{sXLIM}, s{sTB}, 4")
    A(f"s_cmp_ge_u32 s{sFG}, 10")
    A("s_cbranch_scc1 L_qkv_V")

    STF = cfg.get("qkv_st", "sc1")
    def mainloop(isV):
        q = []
        def reads(st):
            c, sl = divmod(st, 4)
            _, so = rebase(c)
            b = FR + 16 * (st % 2)
            out = []
            for u in range(2): out.append((f"ds_read_b64_tr_b16 {v(b+2*u,2)}, v{vTR} offset:{so + (16*sl+4*u)*256}", (st, "A0")))
            out.append((f"ds_read_b128 {v(b+8,4)}, v{vBA+sl} offset:{so}", (st, "B0")))
            out.append((f"ds_read_b128 {v(b+12,4)}, v{vBA+sl} offset:{so + 4096}", (st, "B1")))
            for u in range(2): out.append((f"ds_read_b64_tr_b16 {v(b+4+2*u,2)}, v{vTR+1} offset:{so + (16*sl+4*u)*256}", (st, "A1")))
            if not HS: out.append((f"ds_read_b128 {v(SF+4*(st%2),4)}, v{vSB+(sl>>1)} offset:{so + 2048*(st%2)}", (st, "S")))
            return out
        def issue(r): A(r[0]); q.append(r[1])
        def wait(tag): A(f"s_waitcnt lgkmcnt({len(q) - 1 - max(i for i, x in enumerate(q) if x == tag)})")
        A("s_barrier")
        for r in reads(0): issue(r)
        stamp(A, cfg, 1)
        for st in range(40):
            nxt = st + 1 < 40
            if st % 4 == 3 and nxt:
                A("s_barrier")
                if cfg.get("qts"): A(f"s_memtime s[{70+2*(st//4)}:{71+2*(st//4)}]")
                d, _ = rebase((st + 1) // 4)
                if d:
                    for r in (vTR, vTR + 1, vBA, vBA + 1, vBA + 2, vBA + 3, vSB, vSB + 1): A(f"v_add_u32 v{r}, {d & 0xffffffff}, v{r}")
            rs = reads(st + 1) if nxt else []
            b = FR + 16 * (st % 2)
            sf = v(SF + 4 * (st % 2), 4); su = v(SUM + 4 * (st % 2), 4); sq = v(SQ + 4 * (st % 2), 4)
            for k, (i, j, tag, nr) in enumerate(((0, 0, "B0", 2), (1, 0, "B1", 2), (0, 1, "A1" if HS else "S", 2), (1, 1, None, 1))):
                if tag: wait((st, tag))
                af = v(b + 4 * j, 4); xf = v(b + 8 + 4 * i, 4); acc = v(ACC + 32 * i + 16 * j, 16); c = acc if st else "0"
                if isV: A(f"v_mfma_f32_32x32x16_bf16 {acc}, {xf}, {af}, {c}")
                else:   A(f"v_mfma_f32_32x32x16_bf16 {acc}, {af}, {xf}, {c}")
                for _ in range(nr):
                    if rs: issue(rs.pop(0))
                if k == 1: A(f"v_mfma_f32_16x16x32_bf16 {v(CSA,4)}, {v(SEL,4)}, {v(b,4)}, {v(CSA,4) if st else 0}")
                if k == 2 and not HS: A(f"v_mfma_f32_16x16x32_bf16 {su}, {v(ONE,4)}, {sf}, {su if st > 1 else 0}")
                if k == 3 and not HS: A(f"v_mfma_f32_16x16x32_bf16 {sq}, {sf}, {sf}, {sq if st > 1 else 0}")
            if HS and st == cfg.get("q_fl", 31):
                A(f"buffer_load_dword v{vT}, v{vSA+3}, s[{SD}:{SD+3}], s{sXLIM} offen sc1")
            if HS and st == cfg.get("q_fc", 36):
                LP, LD = A.newlabel("qp"), A.newlabel("qd")
                A(f"s_mov_b32 s{sT1}, 0")
                A.label(LP)
                A("s_waitcnt vmcnt(0)")
                A(f"v_cmp_eq_u32 vcc, 0, v{vT}")
                A(f"s_add_u32 s{sT1}, s{sT1}, 1")
                A(f"s_cmp_lt_u32 s{sT1}, 0x40000")
                A(f"s_cselect_b64 vcc, vcc, 0")
                A(f"s_cbranch_vccz {LD}")
                A(f"buffer_load_dword v{vT}, v{vSA+3}, s[{SD}:{SD+3}], s{sXLIM} offen sc1")
                A(f"s_branch {LP}")
                A.label(LD)
                for i in range(2): A(f"buffer_load_dwordx2 {v(MB+2*i,2)}, v{vSA}, s[{SWS}:{SWS+3}], s{sXO} offen offset:{256*i} sc1")
                if isV:
                    for i in range(2):
                        for aa in range(4): A(f"buffer_load_dwordx4 {v(vST+16*i+4*aa,4)}, v{vSA+2}, s[{SWS}:{SWS+3}], s{sXO} offen offset:{1024 + 128*i + 32*aa} sc1")
                else:
                    for i in range(2): A(f"buffer_load_dword v{RS+i}, v{vSA+1}, s[{SWS}:{SWS+3}], s{sXO} offen offset:{1024 + 128*i} sc1")
            if st == cfg.get("q_prep", 5):
                A("s_waitcnt vmcnt(0)")
                for f in range(5):
                    for u in range(2):
                        A(f"ds_read_b64_tr_b16 {v(PF+4*f+2*u,2)}, v{VO+5+(f==4)} offset:{4*u*160 + tile_col_imm(f)}"); q.append("p")
            if st == cfg.get("q_prep", 5) + 1:
                wait("p")
            if cfg.get("q_prep", 5) + 1 <= st <= cfg.get("q_prep", 5) + 5:
                f = st - cfg.get("q_prep", 5) - 1
                A(f"s_add_u32 s{sT0}, s{sPDST}, {f*1024}")
                A(f"buffer_store_dwordx4 {v(PF+4*f,4)}, v{L16}, s[{SWS}:{SWS+3}], s{sT0} offen {STF}")
        stamp(A, cfg, 2)

    def correction(isV):
        cs = CSA
        t0, t1, t2, t3 = vT, vT+1, vT+2, vT+3
        A(f"s_lshl_b32 s{sT0}, s{sJ0}, 9")
        A(f"s_lshl_b32 s{sT1}, s{sJ1}, 9")
        A(f"v_lshlrev_b32 v{t0}, 3, v0")
        A(f"v_add_u32 v{t1}, s{sT1}, v{t0}")
        A(f"v_add_u32 v{t0}, s{sT0}, v{t0}")
        A(f"v_cvt_pk_bf16_f32 v{cs+1}, v{cs}, v{cs}")
        A(f"v_and_b32 v{cs+1}, 0xffff0000, v{cs+1}")
        A(f"v_sub_f32 v{cs}, v{cs}, v{cs+1}")
        A(f"v_cvt_pk_bf16_f32 v{cs+2}, v{cs+1}, v{cs}")
        A(f"v_lshrrev_b32 v{cs+3}, 16, v{cs+1}")
        A(f"ds_write_b64 v{t0}, {v(cs+2,2)} offset:{CSL}")
        if HS:
            def corr(j, cf):
                for i in range(2):
                    mb = v(MB + 2 * i, 2); acc = v(ACC + 32 * i + 16 * j, 16)
                    if isV: A(f"v_mfma_f32_32x32x8_bf16 {acc}, {mb}, {cf}, {acc}")
                    else:   A(f"v_mfma_f32_32x32x8_bf16 {acc}, {cf}, {mb}, {acc}")
            A("s_waitcnt vmcnt(0) lgkmcnt(0)")
            A("s_barrier")
            A(f"ds_read_b64 {v(cs+4,2)}, v{t1} offset:{CSL}")
            corr(0, v(cs + 2, 2))
            A("s_waitcnt lgkmcnt(0)")
            corr(1, v(cs + 4, 2))
            return
        A(f"v_and_b32 v{t2}, 3, v0")
        for k in (1, 2, 3):
            A(f"v_cmp_eq_u32 vcc, {k}, v{t2}")
            for i in range(2): A(f"v_cndmask_b32 v{SQ+4*i}, v{SQ+4*i}, v{SQ+4*i+k}, vcc")
        A(f"s_and_b32 s{sT0}, s{sWAVE}, 1")
        A(f"s_lshl_b32 s{sT0}, s{sT0}, 6")
        A(f"s_lshl_b32 s{sT1}, s{sFH2}, 4")
        A(f"s_add_u32 s{sT1}, s{sT1}, s{sT0}")
        A(f"v_and_b32 v{t2}, 15, v0")
        A(f"v_add_u32 v{t2}, s{sT1}, v{t2}")
        A(f"v_lshlrev_b32 v{t3}, 2, v{t2}")
        A(f"v_lshlrev_b32 v{t2}, 3, v{t2}")
        for i in range(2):
            sm, sq = SUM + 4 * i, SQ + 4 * i
            A(f"v_mul_f32 v{sm}, {fhex(1/640)}, v{sm}")
            A(f"v_mul_f32 v{sq}, {fhex(1/640)}, v{sq}")
            A(f"v_fma_f32 v{sq}, -v{sm}, v{sm}, v{sq}")
            A(f"v_max_f32 v{sq}, 0, v{sq}")
            A(f"v_add_f32 v{sq}, {fhex(1e-5)}, v{sq}")
            A(f"v_rsq_f32 v{sq}, v{sq}")
            A(f"v_cvt_pk_bf16_f32 v{sm+2}, -v{sm}, -v{sm}")
            A(f"v_and_b32 v{sm+3}, 0xffff0000, v{sm+2}")
            A(f"v_sub_f32 v{sm+3}, -v{sm}, v{sm+3}")
            A(f"v_cvt_pk_bf16_f32 v{sm+3}, v{sm+3}, 0")
        A("s_mov_b32 exec_lo, 0x00f0000f")
        A("s_mov_b32 exec_hi, 0xf0000f00")
        for i in range(2):
            A(f"ds_write_b64 v{t2}, {v(SUM+4*i+2,2)} offset:{STL + 128*i}")
            A(f"ds_write_b32 v{t3}, v{SQ+4*i} offset:{STL + 1024 + 64*i}")
        A("s_mov_b64 exec, -1")
        A(f"v_and_b32 v{t2}, 31, v0")
        A(f"v_add_u32 v{t2}, s{sT0}, v{t2}")
        if isV:
            A(f"v_lshrrev_b32 v{t3}, 5, v0")
            A(f"v_lshlrev_b32 v{t3}, 2, v{t3}")
            A(f"v_add_u32 v{t3}, s{sT0}, v{t3}")
            A(f"v_lshlrev_b32 v{t3}, 2, v{t3}")
        else:
            A(f"v_lshlrev_b32 v{t3}, 2, v{t2}")
        A(f"v_lshlrev_b32 v{t2}, 3, v{t2}")
        A(f"v_cmp_gt_u32 vcc, 32, v0")
        A("s_waitcnt lgkmcnt(0)")
        A("s_barrier")
        for i in range(2): A(f"ds_read_b64 {v(MB+2*i,2)}, v{t2} offset:{STL + 256*i}")
        A(f"ds_read_b64 {v(cs+4,2)}, v{t1} offset:{CSL}")
        if isV:
            for i in range(2):
                for aa in range(4): A(f"ds_read_b128 {v(vST+16*i+4*aa,4)}, v{t3} offset:{STL + 1024 + 128*i + 32*aa}")
        else:
            for i in range(2): A(f"ds_read_b32 v{RS+i}, v{t3} offset:{STL + 1024 + 128*i}")
        A(f"s_waitcnt lgkmcnt({8 if isV else 2})")
        for k in range(4): A(f"v_cndmask_b32 v{MB+k}, 0, v{MB+k}, vcc")
        for j in range(2):
            cf = v(cs + 2 + 2 * j, 2)
            for i in range(2):
                mb = v(MB + 2 * i, 2); acc = v(ACC + 32 * i + 16 * j, 16)
                if isV: A(f"v_mfma_f32_32x32x8_bf16 {acc}, {mb}, {cf}, {acc}")
                else:   A(f"v_mfma_f32_32x32x8_bf16 {acc}, {cf}, {mb}, {acc}")
        A("s_waitcnt lgkmcnt(0)")

    tr_addr(True, (f"s{sJ0}", f"s{sJ1}"))
    t0, t1, t2, tok16, half = vT, vT+1, vT+2, vT+4, vT+6
    A(f"s_cmp_ge_u32 s{sFG}, 5")
    A(f"s_cselect_b32 s{sT1}, 5, 0")
    A(f"s_cselect_b32 s{sBASE}, {hex(WS_K)}, {hex(WS_Q)}")
    A(f"s_cselect_b32 s{sQS}, 1.0, {fhex(QSCALE)}")
    A(f"s_sub_u32 s{sT1}, s{sFG}, s{sT1}")
    A(f"s_lshl_b32 s{sT1}, s{sT1}, 4")
    A(f"s_mul_i32 s{sT2}, s{sTILE}, 2560")
    A(f"s_add_u32 s{sBASE}, s{sBASE}, s{sT2}")
    A(f"v_lshrrev_b32 v{half}, 5, v0")
    A(f"v_add_u32 v{half}, s{sT1}, v{half}")
    A(f"v_and_b32 v{tok16}, 31, v0")
    A(f"v_lshlrev_b32 v{tok16}, 4, v{tok16}")
    A(f"s_mov_b32 s{sT2}, {PAIR_STRIDE - 2560}")
    for q in range(4):
        A(f"s_lshl_b32 s{sT0}, s{sJ0 + q//2}, 2")
        A(f"s_add_u32 s{sT0}, s{sT0}, {2*(q%2)}")
        A(f"v_add_u32 v{t0}, s{sT0}, v{half}")
        A(f"v_mul_u32_u24 v{t1}, 205, v{t0}")
        A(f"v_lshrrev_b32 v{t1}, 10, v{t1}")
        A(f"v_mul_lo_u32 v{t1}, s{sT2}, v{t1}")
        A(f"v_lshl_add_u32 v{t0}, v{t0}, 9, v{tok16}")
        A(f"v_add_u32 v{vADR+q}, v{t0}, v{t1}")
    if cfg.get("tlb", 0) & 1:
        A("s_mov_b32 exec_lo, 1")
        A("s_mov_b32 exec_hi, 1")
        for q in range(4): A(f"buffer_load_dword v{vT+7}, v{vADR+q}, s[{SWS}:{SWS+3}], s{sBASE} offen")
        A("s_mov_b64 exec, -1")
    mainloop(False)
    correction(False)
    for i in (1, 0):
        A(f"v_mul_f32 v{RS+2*i}, s{sQS}, v{RS+i}")
        A(f"v_mov_b32 v{RS+2*i+1}, v{RS+2*i}")
    for j in range(2):
        for i in range(2):
            for sg in range(2):
                r = ACC + 32 * i + 16 * j + 8 * sg
                for b in range(0, 8, 2): A(f"v_pk_mul_f32 {v(r+b,2)}, {v(r+b,2)}, {v(RS+2*i,2)}")
                for b in range(4): A(f"v_cvt_pk_bf16_f32 v{r+b}, v{r+2*b}, v{r+2*b+1}")
                A(f"buffer_store_dwordx4 {v(r,4)}, v{vADR+2*j+sg}, s[{SWS}:{SWS+3}], s{sBASE} offen offset:{2560*i} {STF}")
    A("s_branch L_qkv_fin")

    A.label("L_qkv_V")
    tr_addr(False, (f"s{sJ0}", f"s{sJ1}"))
    A(f"s_mul_i32 s{sBASE}, s{sTILE}, 1280")
    A(f"s_add_u32 s{sBASE}, s{sBASE}, {hex(WS_V)}")
    A(f"s_sub_u32 s{sT1}, s{sFG}, 10")
    A(f"s_lshl_b32 s{sT1}, s{sT1}, 7")
    A(f"v_lshrrev_b32 v{half}, 5, v0")
    A(f"v_mul_u32_u24 v{half}, 320, v{half}")
    A(f"v_and_b32 v{tok16}, 31, v0")
    A(f"v_add_u32 v{tok16}, s{sT1}, v{tok16}")
    A(f"s_mov_b32 s{sT2}, {VHEAD_STRIDE - 320}")
    for j in range(2):
        A(f"s_lshl_b32 s{sT0}, s{sJ0 + j}, 5")
        A(f"v_add_u32 v{t0}, s{sT0}, v{tok16}")
        A(f"v_mul_u32_u24 v{t1}, 3277, v{t0}")
        A(f"v_lshrrev_b32 v{t1}, 16, v{t1}")
        A(f"v_mul_lo_u32 v{t1}, s{sT2}, v{t1}")
        A(f"v_lshl_add_u32 v{t0}, v{t0}, 4, v{half}")
        A(f"v_add_u32 v{vADR+j}, v{t0}, v{t1}")
    if cfg.get("tlb", 0) & 1:
        A("s_mov_b32 exec_lo, 0x80008001")
        A("s_mov_b32 exec_hi, 0")
        for q in range(2): A(f"buffer_load_dword v{vT+7}, v{vADR+q}, s[{SWS}:{SWS+3}], s{sBASE} offen")
        A("s_mov_b64 exec, -1")
    mainloop(True)
    correction(True)
    for j in range(2):
        for i in range(2):
            for mf in range(2):
                r = ACC + 32 * i + 16 * j + 8 * mf
                for b in range(0, 8, 2): A(f"v_pk_mul_f32 {v(r+b,2)}, {v(r+b,2)}, {v(vST+16*i+8*mf+b,2)}")
                for b in range(4): A(f"v_cvt_pk_bf16_f32 v{r+b}, v{r+2*b}, v{r+2*b+1}")
                A(f"buffer_store_dwordx4 {v(r,4)}, v{vADR+j}, s[{SWS}:{SWS+3}], s{sBASE} offen offset:{1280*i + mf*640} {STF}")
    A.label("L_qkv_fin")
    stamp(A, cfg, 3)
    if cfg.get("qts"):
        for c in range(9): A(f"s_mov_b32 s{71+2*c}, s{70+2*c}")
        A("s_mov_b32 s68, 0")
        A("s_mov_b32 s69, 0")
        stamp_flush(A, cfg, 14, 17, SWS, sWAVE, 0)
        A("s_mov_b64 exec, -1")
    stamp_flush(A, cfg, 4, 0, SWS, sWAVE, 0)
    A("s_endpgm")

    i_l0 = len(A.items)
    A.label("L_qkv_loader")
    vWOFF, vXOFF = 1, 72
    sWLIM = 44
    if cfg.get("rot", 1):
        A(f"s_lshl_b32 s{sT0}, s{sT0}, 2")
        A(f"s_lshr_b32 s{sC0}, 0x30858530, s{sT0}")
        A(f"s_and_b32 s{sC0}, s{sC0}, 15")
        if cfg.get("rab", [1, 1]):
            ra, rb = cfg.get("rab", [1, 1])
            A(f"s_and_b32 s{sT0}, s{sTB}, 3")
            A(f"s_mul_i32 s{sT0}, s{sT0}, {ra}")
            A(f"s_add_u32 s{sC0}, s{sC0}, s{sT0}")
            A(f"s_and_b32 s{sT0}, s{sFG}, {cfg.get('rmask', 3)}")
            A(f"s_mul_i32 s{sT0}, s{sT0}, {rb}")
            A(f"s_add_u32 s{sC0}, s{sC0}, s{sT0}")
            A(f"s_mul_i32 s{sT0}, s{sC0}, 6554")
            A(f"s_lshr_b32 s{sT0}, s{sT0}, 16")
            A(f"s_mul_i32 s{sT0}, s{sT0}, 10")
            A(f"s_sub_u32 s{sC0}, s{sC0}, s{sT0}")
    else:
        A(f"s_mov_b32 s{sC0}, 0")
    A(f"s_sub_u32 s{sWAVE}, s{sWAVE}, 4")
    A(f"v_and_b32 v{vT}, 15, v0")
    A(f"v_lshrrev_b32 v{vT+1}, 4, v0")
    A(f"v_lshlrev_b32 v{vT+2}, 2, v{vT+1}")
    A(f"v_xor_b32 v{vT+2}, v{vT+2}, v{vT}")
    A(f"v_mul_u32_u24 v{vWOFF}, 3840, v{vT+1}")
    A(f"v_lshl_add_u32 v{vWOFF}, v{vT+2}, 4, v{vWOFF}")
    A(f"v_and_b32 v{vT}, 7, v0")
    A(f"v_xor_b32 v{vT}, v{vT}, v{vT+1}")
    A(f"v_lshrrev_b32 v{vT+2}, 3, v0")
    A(f"v_mul_u32_u24 v{vT+2}, 1280, v{vT+2}")
    A(f"v_lshl_add_u32 v{vXOFF}, v{vT}, 4, v{vT+2}")
    A(f"v_xor_b32 v{vXOFF+1}, 64, v{vXOFF}")
    A(f"s_lshl_b32 s{sWO}, s{sFG}, 8")
    A(f"s_mul_i32 s{sT0}, s{sWAVE}, {16*3840}")
    A(f"s_add_u32 s{sWO}, s{sWO}, s{sT0}")
    A(f"s_add_u32 s{sWLIM}, s{sWO}, {640*3840}")
    A(f"s_mul_i32 s{sT0}, s{sC0}, {64*3840}")
    A(f"s_add_u32 s{sWO}, s{sWO}, s{sT0}")
    A(f"s_lshl_b32 s{sXO}, s{sTB}, 2")
    A(f"s_add_u32 s{sXO}, s{sXO}, s{sWAVE}")
    A(f"s_mul_i32 s{sXO}, s{sXO}, {32*1280}")
    A(f"s_lshl_b32 s{sT0}, s{sC0}, 7")
    A(f"s_add_u32 s{sXO}, s{sXO}, s{sT0}")
    A(f"s_lshl_b32 s{sM0}, s{sWAVE}, 12")
    A("s_waitcnt lgkmcnt(0)")
    srd(A, SW, 6, 640 * 1920 * 2)
    srd(A, SX, SX, X_BYTES)
    def dma_ops(c):
        ops = []
        for j in range(4):
            ops.append([f"s_add_u32 m0, s{sM0}, {(c%5)*SLOT + j*1024}", f"s_add_u32 s{sT0}, s{sWO}, {4*j*3840}",
                        f"buffer_load_dwordx4 v{vWOFF}, s[{SW}:{SW+3}], s{sT0} offen lds"])
            ops.append([f"s_add_u32 m0, s{sM0}, {(c%5)*SLOT + 16384 + j*1024}", f"s_add_u32 s{sT0}, s{sXO}, {8*j*1280}",
                        f"buffer_load_dwordx4 v{vXOFF+(j%2)}, s[{SX}:{SX+3}], s{sT0} offen lds"])
        ops[-1] += [f"s_add_u32 s{sWO}, s{sWO}, {64*3840}", f"s_add_u32 s{sXO}, s{sXO}, 128",
                    f"s_cmp_eq_u32 s{sWO}, s{sWLIM}", f"s_cselect_b32 s{sT0}, {640*3840}, 0", f"s_cselect_b32 s{sT1}, 1280, 0",
                    f"s_sub_u32 s{sWO}, s{sWO}, s{sT0}", f"s_sub_u32 s{sXO}, s{sXO}, s{sT1}"]
        return ops
    def emit(op):
        for x in op:
            if cfg.get("q_nodma") and x.startswith("buffer_"): continue
            A(x)
    IW = cfg.get("iw", 2)
    for c in range(IW):
        for op in dma_ops(c): emit(op)
    srd(A, SWS, 50, WS_SIZE)
    prep_setup()
    ops = [("w", c) for c in range(IW) for _ in range(8)]
    nw = IW
    def wait_for(tag):
        last = max(i for i, o in enumerate(ops) if o == tag)
        A(f"s_waitcnt vmcnt({len(ops) - 1 - last})")
    for c in range(10):
        wait_for(("w", c))
        A("s_barrier")
        for k in range(2 if c in cfg.get("extra_at", []) else 1):
            if nw < 10 and nw <= max(c + 3, 4) and (nw != 4 or c >= 2 or not cfg.get('k1prep', 0)):
                for op in dma_ops(nw): emit(op)
                ops += [("w", nw)] * 8; nw += 1
        if c == 7:
            for jj in range(5):
                A(f"s_add_u32 m0, s{sPLDS}, {jj*1024}")
                A(f"buffer_load_dwordx4 v{VO+jj}, s[{SP}:{SP+3}], s{sPSRC} offen lds")
            ops += [("p", 0)] * 5
    if cfg.get("prep_late", 1): A("s_barrier")
    A("s_waitcnt vmcnt(0)")
    for f in range(5):
        for u in range(2):
            A(f"ds_read_b64_tr_b16 {v(PF+4*f+2*u,2)}, v{VO+5+(f==4)} offset:{4*u*160 + tile_col_imm(f)}")
    A("s_waitcnt lgkmcnt(0)")
    for f in range(5):
        A(f"s_add_u32 s{sT0}, s{sPDST}, {f*1024}")
        A(f"buffer_store_dwordx4 {v(PF+4*f,4)}, v{L16}, s[{SWS}:{SWS+3}], s{sT0} offen {STF}")
    A("s_endpgm")

    if cfg.get("lfirst", 1):
        seg = A.items[i_l0:]
        del A.items[i_l0:]
        A.items[i_split:i_split] = seg
    A.label("L_qkv_helper")
    XD = 16
    if cfg.get("ctouch", 2) == 1:
        code_touch_setup(A, 46, "qkv_kernel", True)
        A(f"v_lshlrev_b32 v{vT+1}, 7, v0")
        A(f"v_min_u32 v{vT+1}, L_code_end-qkv_kernel-4, v{vT+1}")
        A(f"global_load_dword v{vT+7}, v{vT+1}, s[46:47]")
    A(f"v_and_b32 v0, 63, v0")
    if HS:
        A(f"s_and_b32 s{sTB}, s2, 3")
        A(f"s_lshl_b32 s{sTB}, s{sTB}, 2")
        A(f"s_bfe_u32 s{sT0}, s2, 0x10002")
        A(f"s_lshl_b32 s{sT0}, s{sT0}, 1")
        A(f"s_add_u32 s{sTB}, s{sTB}, s{sT0}")
        A(f"s_lshr_b32 s{sT0}, s2, 3")
        A(f"s_add_u32 s{sTB}, s{sTB}, s{sT0}")
        A(f"s_lshl_b32 s{sXO}, s{sTB}, 3")
        A(f"s_add_u32 s{sXO}, s{sXO}, s{sWAVE}")
        A(f"s_mul_i32 s{sXO}, s{sXO}, {16*1280}")
        A(f"s_add_u32 s{sXLIM}, s{sXO}, {8*1280}")
        A(f"v_lshrrev_b32 v2, 3, v0")
        A(f"v_and_b32 v3, 7, v0")
        A(f"v_mul_u32_u24 v1, 1280, v2")
        A(f"v_lshl_add_u32 v1, v3, 4, v1")
        A("s_waitcnt lgkmcnt(0)")
        srd(A, SX, SX, X_BYTES)
        for g in range(2):
            for k in range(10):
                A(f"buffer_load_dwordx4 {v(XD+40*g+4*k,4)}, v1, s[{SX}:{SX+3}], s{sXLIM if g else sXO} offen offset:{128*k}")
        srd(A, SWS, 50, WS_SIZE)
        srd(A, SD, SD, 256)
        A(f"v_mov_b32 v4, 0x3f803f80")
        A(f"s_lshl_b32 s{sT0}, s{sWAVE}, 4")
        A(f"v_add_u32 v2, s{sT0}, v2")
        A(f"v_lshlrev_b32 v5, 3, v2")
        A(f"v_lshlrev_b32 v6, 2, v2")
        A(f"s_lshl_b32 s{sBASE}, s{sTB}, 11")
        A(f"s_add_u32 s{sBASE}, s{sBASE}, {hex(WS_ST1)}")
        A(f"s_mov_b32 s{sT1}, 0x01010101")
        for g in range(2):
            sm, sq = vT, vT + 1
            for k in range(10):
                A(f"s_waitcnt vmcnt({19 - (10*g+k) + (2 if g else 0)})")
                for i in range(4):
                    r = XD + 40 * g + 4 * k + i
                    first = (k == 0 and i == 0)
                    A(f"v_dot2_f32_bf16 v{sm}, v{r}, v4, {0 if first else 'v%d' % sm}")
                    A(f"v_dot2_f32_bf16 v{sq}, v{r}, v{r}, {0 if first else 'v%d' % sq}")
            for dpp in ("quad_perm:[1,0,3,2]", "quad_perm:[2,3,0,1]", "row_half_mirror"):
                A(f"v_add_f32_dpp v{sm}, v{sm}, v{sm} {dpp} row_mask:0xf bank_mask:0xf")
                A(f"v_add_f32_dpp v{sq}, v{sq}, v{sq} {dpp} row_mask:0xf bank_mask:0xf")
            A(f"v_mul_f32 v{sm}, {fhex(1/640)}, v{sm}")
            A(f"v_mul_f32 v{sq}, {fhex(1/640)}, v{sq}")
            A(f"v_fma_f32 v{sq}, -v{sm}, v{sm}, v{sq}")
            A(f"v_max_f32 v{sq}, 0, v{sq}")
            A(f"v_add_f32 v{sq}, {fhex(1e-5)}, v{sq}")
            A(f"v_rsq_f32 v{vT+4}, v{sq}")
            A(f"v_cvt_pk_bf16_f32 v{vT+2}, -v{sm}, -v{sm}")
            A(f"v_and_b32 v{vT+3}, 0xffff0000, v{vT+2}")
            A(f"v_sub_f32 v{vT+3}, -v{sm}, v{vT+3}")
            A(f"v_cvt_pk_bf16_f32 v{vT+3}, v{vT+3}, 0")
            A(f"s_mov_b32 exec_lo, s{sT1}")
            A(f"s_mov_b32 exec_hi, s{sT1}")
            A(f"buffer_store_dwordx2 {v(vT+2,2)}, v5, s[{SWS}:{SWS+3}], s{sBASE} offen offset:{64*g} sc1")
            A(f"buffer_store_dword v{vT+4}, v6, s[{SWS}:{SWS+3}], s{sBASE} offen offset:{1024 + 32*g} sc1")
            A("s_mov_b64 exec, -1")
        pass
        A("s_waitcnt vmcnt(0)")
        A("s_barrier")
        pass
        A(f"s_lshl_b32 s{sT0}, s{sTB}, 4")
        A(f"s_cmp_eq_u32 s{sWAVE}, 0")
        A(f"s_cselect_b32 s{sT0}, s{sT0}, 256")
        A(f"v_mov_b32 v2, 1")
        A(f"v_mov_b32 v3, 0")
        A("s_mov_b64 exec, 1")
        A(f"buffer_store_dword v2, v3, s[{SD}:{SD+3}], s{sT0} offen sc1")
        A("s_mov_b64 exec, -1")
    else:
        A("s_waitcnt lgkmcnt(0)")
        srd(A, SWS, 50, WS_SIZE)
    if cfg.get("ptouch", 0):
        srd(A, SP, 34, 1536 * 640 * 2)
        srd(A, SW, 32, 640 * 640 * 2)
        A(f"s_lshl_b32 s{sT0}, s2, 3")
        A(f"s_add_u32 s{sT0}, s{sT0}, s{sWAVE}")
        A(f"s_mul_i32 s{sT1}, s{sT0}, {50*128}")
        A(f"s_mul_i32 s{sT0}, s{sT0}, {120*128}")
        A(f"v_lshlrev_b32 v1, 7, v0")
        A("s_bfm_b64 exec, 60, 0")
        A(f"buffer_load_dword v4, v1, s[{SP}:{SP+3}], s{sT0} offen")
        A(f"s_add_u32 s{sT0}, s{sT0}, {60*128}")
        A(f"buffer_load_dword v4, v1, s[{SP}:{SP+3}], s{sT0} offen")
        A("s_bfm_b64 exec, 50, 0")
        A(f"buffer_load_dword v4, v1, s[{SW}:{SW+3}], s{sT1} offen")
        A("s_mov_b64 exec, -1")
    if cfg.get("tlbw", 1):
        A("s_load_dwordx4 s[40:43], s[0:1], 32")
        A("s_load_dwordx2 s[52:53], s[0:1], 56")
        A(f"v_lshlrev_b32 v1, 18, v0")
        A(f"s_cmp_lg_u32 s{sWAVE}, 0")
        A("s_cbranch_scc1 L_qkv_notlb")
        A(f"buffer_load_dword v4, v1, s[{SWS}:{SWS+3}], 0 offen")
        A(f"s_mov_b32 s{sT0}, 0x1000000")
        A("s_bfm_b64 exec, 24, 0")
        A(f"buffer_load_dword v4, v1, s[{SWS}:{SWS+3}], s{sT0} offen")
        A("s_mov_b64 exec, -1")
        A("s_waitcnt lgkmcnt(0)")
        for p, nb in ((40, 640*1536*2), (42, 640*1536*2), (52, X_BYTES), (32, 640*640*2), (34, 640*1536*2)):
            srd(A, SP, p, nb)
            A(f"buffer_load_dword v4, v1, s[{SP}:{SP+3}], 0 offen")
        A.label("L_qkv_notlb")
        A("s_waitcnt lgkmcnt(0)")
    if cfg.get("gtouch", 0):
        A("s_load_dwordx4 s[40:43], s[0:1], 32")
        A(f"s_lshl_b32 s{sT0}, s2, 3")
        A(f"s_add_u32 s{sT0}, s{sT0}, s{sWAVE}")
        A(f"s_mul_i32 s{sT0}, s{sT0}, {120*128}")
        A(f"s_add_u32 s{sT1}, s{sT0}, {60*128}")
        A(f"v_lshlrev_b32 v1, 7, v0")
        A("s_waitcnt lgkmcnt(0)")
        srd(A, SP, 40, 1536 * 640 * 2)
        srd(A, SW, 42, 1536 * 640 * 2)
        if cfg["gtouch"] == 2: A("s_waitcnt vmcnt(0)")
        A("s_bfm_b64 exec, 60, 0")
        for sr in (SP, SW):
            for so in (sT0, sT1):
                A(f"buffer_load_dword v4, v1, s[{sr}:{sr+3}], s{so} offen")
        A("s_mov_b64 exec, -1")
    stamp(A, cfg, 1)
    stamp(A, cfg, 2)
    if cfg.get("zfill", 0):
        for i in range(4): A(f"v_mov_b32 v{XD+i}, 0")
        A(f"v_lshlrev_b32 v1, 4, v0")
        A(f"s_lshl_b32 s{sT0}, s2, 3")
        A(f"s_add_u32 s{sT0}, s{sT0}, s{sWAVE}")
        A(f"s_lshl_b32 s{sT1}, s{sT0}, 11")
        A(f"s_add_u32 s{sT1}, s{sT1}, {hex(WS_ST2)}")
        A(f"s_mul_i32 s{sT0}, s{sT0}, 40960")
        A(f"s_add_u32 s{sT0}, s{sT0}, {hex(WS_O)}")
        for k in range(40):
            if k % 4 == 0 and k: A(f"s_add_u32 s{sT0}, s{sT0}, 4096")
            A(f"buffer_store_dwordx4 {v(XD,4)}, v1, s[{SWS}:{SWS+3}], s{sT0} offen offset:{(k%4)*1024} sc1")
        for k in range(2): A(f"buffer_store_dwordx4 {v(XD,4)}, v1, s[{SWS}:{SWS+3}], s{sT1} offen offset:{k*1024} sc1")
    A(f"s_lshl_b32 s{sT0}, s{sWAVE}, 10")
    A(f"s_lshl_b32 s{sT1}, s2, 13")
    A(f"s_add_u32 s{sT0}, s{sT0}, s{sT1}")
    A(f"s_add_u32 s{sT0}, s{sT0}, {hex(WS_SYNC)}")
    A(f"s_cmp_lt_u32 s2, 5")
    A(f"s_cselect_b32 s{sT0}, s{sT0}, {hex(WS_SIZE)}")
    for i in range(4): A(f"v_mov_b32 v{XD+i}, 0")
    A(f"v_lshlrev_b32 v1, 4, v0")
    A(f"buffer_store_dwordx4 {v(XD,4)}, v1, s[{SWS}:{SWS+3}], s{sT0} offen")
    stamp(A, cfg, 3)
    stamp_flush(A, cfg, 4, 0, SWS, sWAVE, 0)
    A.label("L_qkv_end")
    A("s_endpgm")
    return dict(name=name, grid=256, block=512, lds=163840, desc=kernel_desc(name, 216, 216))
```

```python
from common import *

GU_SLOT = 24608
GU_UP = 12288 + 32
GU_MISC = 6 * GU_SLOT
NWS, H_BASE, NHS = 4, 4 * GU_SLOT, 3
PART_BASE = 4 * GU_SLOT
KV_SLOT = 20480
NKV = 3
KV_BASE = 163840 - NKV * KV_SLOT
NV = 112

class R:
    S = (16, 32); O = 48; P = 64; K1 = 72; K2 = 76; V1 = 80; V2 = 84; Q1 = 88; Q2 = 92
    KA = 1; K2A = 2; VA = 3; L16 = 4; F2S = 5; L4 = 7; T = 8; TCH = 94
    GV = 96
    XRES = 100

SX, SWS, SG_, SU, SO = 4, 8, 12, 16, 20
sWAVE, sG, sM, sT0, sT1, sT2, sC, sDELTA, sSLOT, sQT = 24, 25, 26, 27, 28, 29, 30, 31, 32, 33
sVMASK = 34
sKSRC, sVSRC, sKBASE, sVBASE, sFG, sTOK16, sJ, sFAST, sWOSRC, sWDSRC, sGSRC, sGM0, sFLAG, sB, sXCC, sLW = 36, 37, 38, 39, 40, 41, 42, 43, 44, 45, 46, 47, 48, 49, 50, 51
sTMP = 52
SWO_, SWD_ = 92, 96
sSTG, sWDRAW, sTO, sKQ, sB2 = 86, 87, 90, 95, 96

def WD(step, f, n=4):
    if step == 7: return v(40 + 4 * f, n)
    return a({0: 100, 1: 120, 2: 80, 3: 60, 4: 40, 5: 20, 6: 0}[step] + 4 * f, n)
def A_RES(i): return 140 + i if i < 4 else 56 + (i - 4)

def set_shift(A, m):
    t0, t1, t2 = m + 1, m + 2, m + 3
    A(f"v_cvt_pk_bf16_f32 v{t0}, -v{m}, -v{m}")
    A(f"v_and_b32 v{t0}, 0xffff0000, v{t0}")
    A(f"v_sub_f32 v{t1}, -v{m}, v{t0}")
    A(f"v_cvt_pk_bf16_f32 v{t2}, v{t0}, v{t1}")
    A(f"v_and_b32 v{t0}, 0xffff0000, v{t2}")
    A(f"v_sub_f32 v{t1}, v{t1}, v{t0}")
    A(f"v_cvt_pk_bf16_f32 v{t1}, v{t1}, 0")
    A(f"v_cmp_gt_u32 vcc, 32, v0")
    A(f"v_cndmask_b32 v{R.Q2+1}, v{t1}, v{t2}, vcc")

def max16(A, dst, S, first):
    if first:
        A(f"v_max3_f32 v{dst}, v{S}, v{S+1}, v{S+2}")
        A(f"v_max_f32 v{dst}, v{dst}, v{S+3}")
        rng = range(4, 16, 2)
    else:
        rng = range(0, 16, 2)
    for i in rng: A(f"v_max3_f32 v{dst}, v{dst}, v{S+i}, v{S+i+1}")

def xhalf_max(A, m, t):
    A(f"v_mov_b32 v{t}, v{m}")
    A(f"v_permlane32_swap_b32 v{m}, v{t}")
    A(f"v_max_f32 v{m}, v{m}, v{t}")

def stores(A, lst, data=True):
    if data and CFG.get("wt", 3) & 1:
        for x in lst: A(x + (" sc1" if x.startswith("buffer_") else ""))
        return
    L1, L2 = A.newlabel("stf"), A.newlabel("ste")
    A(f"s_cmp_lg_u32 s{sFAST}, 0")
    A(f"s_cbranch_scc1 {L1}")
    for x in lst: A(x + (" sc1" if x.startswith("buffer_") else ""))
    A(f"s_branch {L2}")
    A.label(L1)
    for x in lst: A(x)
    A.label(L2)

def readback(A, lst):
    if not CFG.get("rb", 0) & 1: return
    for mask, ops in lst:
        ops = [x + " sc1" for x in ops]
        A(f"s_mov_b32 exec_lo, {hex(mask & 0xffffffff)}")
        A(f"s_mov_b32 exec_hi, {hex(mask >> 32)}")
        for x in ops: A(x)
    A("s_mov_b64 exec, -1")

def sync(A, idx, poller, half, nleft, between=None, rb=None):
    T = R.T
    A(f"s_waitcnt vmcnt({nleft})")
    if rb: readback(A, rb)
    A("s_barrier")
    L, LP = A.newlabel("sy"), A.newlabel("poll")
    A(f"s_cmp_lg_u32 s{sWAVE}, {poller}")
    if between is not None:
        LB = A.newlabel("btw")
        A(f"s_cbranch_scc1 {LB}")
    else:
        A(f"s_cbranch_scc1 {L}")
    A(f"s_lshl_b32 s{sT0}, s{sM}, 2")
    A(f"s_add_u32 s{sT0}, s{sT0}, s{sFLAG}")
    A(f"v_mov_b32 v{T}, 1")
    A(f"v_mov_b32 v{T+1}, 0")
    A("s_mov_b64 exec, 1")
    stores(A, [f"buffer_store_dword v{T}, v{T+1}, s[{SWS}:{SWS+3}], s{sT0} offen offset:{idx*128}"], data=False)
    if half:
        A(f"s_and_b32 s{sT0}, s{sM}, 2")
        A(f"s_lshl_b32 s{sT0}, 0x33333333, s{sT0}")
        A(f"s_mov_b32 exec_lo, s{sT0}")
    else:
        A("s_mov_b32 exec_lo, -1")
    A(f"v_lshlrev_b32 v{T+1}, 2, v0")
    A(f"s_mov_b32 s{sT1}, 0")
    A.label(LP)
    A(f"buffer_load_dword v{T}, v{T+1}, s[{SWS}:{SWS+3}], s{sFLAG} offen offset:{idx*128} sc1")
    A(f"s_add_u32 s{sT1}, s{sT1}, 1")
    A("s_waitcnt vmcnt(0)")
    A(f"v_cmp_eq_u32 vcc, 0, v{T}")
    A(f"s_cmp_lt_u32 s{sT1}, 0x40000")
    A(f"s_cselect_b64 vcc, vcc, 0")
    A(f"s_cbranch_vccnz {LP}")
    A("s_mov_b64 exec, -1")
    if between is not None:
        A("s_barrier")
        between()
        A(f"s_branch {L}")
        A.label(LB)
        between()
        A("s_barrier")
        A.label(L)
    else:
        A.label(L)
        A("s_barrier")

def addr_rowmajor(A, vp, vs, T):
    A(f"v_and_b32 v{T}, 15, v0")
    A(f"v_lshrrev_b32 v{T+1}, 4, v0")
    A(f"v_mul_u32_u24 v{T}, 1280, v{T}")
    A(f"s_add_u32 s{sT0}, s{sLW}, s{sTOK16}")
    A(f"s_mul_i32 s{sT0}, s{sT0}, {16*1280}")
    A(f"s_mul_i32 s{sT1}, s{sFG}, 160")
    A(f"s_add_u32 s{sT0}, s{sT0}, s{sT1}")
    A(f"v_add_u32 v{T}, s{sT0}, v{T}")
    A(f"v_lshl_add_u32 v{vp}, v{T+1}, 4, v{T}")
    A(f"v_lshl_add_u32 v{vs}, v{T+1}, 3, v{T}")
    A(f"v_add_u32 v{vs}, 128, v{vs}")
    A(f"s_and_b32 s{sT0}, s{sWAVE}, 4")
    A(f"s_lshl_b32 s{sT0}, s{sT0}, 4")
    A(f"v_add_u32 v{vp}, s{sT0}, v{vp}")

def reduce_addr(A, P, base, RA):
    A(f"s_mul_i32 s{sT0}, s{sLW}, 5120")
    A(f"s_and_b32 s{sT1}, s{sWAVE}, 4")
    A(f"s_lshl_b32 s{sT1}, s{sT1}, 9")
    A(f"s_add_u32 s{sT0}, s{sT0}, s{sT1}")
    A(f"s_add_u32 s{sT0}, s{sT0}, {base}")
    A(f"v_add_u32 v{RA}, s{sT0}, v{R.L16}")
    for k in range(1, (P + 2) // 3): A(f"v_add_u32 v{RA+k}, {3*20480*k}, v{RA}")

def reduce_sum(A, P, D, RA, n, own, mid=None):
    W = 4 * n
    for p in range(P):
        for e in range(n):
            A(f"ds_read_b128 {v(D+W*p+4*e,4)}, v{RA+p//3} offset:{(p%3)*20480 + (e*1024 if e < 2 else 4096)}")
    if mid: mid()
    for p in range(P):
        A(f"s_waitcnt lgkmcnt({min(15, n*(P-1-p))})")
        for e in range(n):
            for i in (0, 2): A(f"v_pk_add_f32 {v(own[e]+i,2)}, {v(own[e]+i,2)}, {v(D+W*p+4*e+i,2)}")

CFG = {}
def gu_dma_ops(c):
    ops = []
    for isup in range(2):
        sr = SU if isup else SG_
        for jj in range(3):
            ops.append([f"s_add_u32 m0, s{sGM0}, {(c%NWS)*GU_SLOT + isup*GU_UP + jj*1024}",
                        f"s_add_u32 s{sT0}, s{sGSRC}, {(3 if CFG.get('gu_same') else c)*64*3072}",
                        f"buffer_load_dwordx4 v{R.GV+jj}, s[{sr}:{sr+3}], s{sT0} offen lds"])
    return ops
def load_wd_ops(step):
    return [[f"s_add_u32 s{sT0}, s{sWDSRC}, {step*5120 + f*1024}",
             f"buffer_load_dwordx4 {WD(step, f)}, v{R.L16}, s[{SWS}:{SWS+3}], s{sT0} offen"] for f in range(5)]
def gu_dma(A, c, rows):
    A(f"s_add_u32 s{sT0}, s{sGSRC}, {c*64*3072}")
    for isup in range(2):
        sr = SU if isup else SG_
        for jj in range(3):
            A(f"s_add_u32 m0, s{sGM0}, {(c%NWS)*GU_SLOT + isup*GU_UP + jj*1024}")
            A(f"buffer_load_dwordx4 v{R.GV+jj}, s[{sr}:{sr+3}], s{sT0} offen lds")

def load_wd(A, step):
    for f in range(5):
        if f % 4 == 0: A(f"s_add_u32 s{sT0}, s{sWDSRC}, {step*5120 + f*1024}")
        A(f"buffer_load_dwordx4 {WD(step, f)}, v{R.L16}, s[{SWS}:{SWS+3}], s{sT0} offen offset:{(f%4)*1024}")

def cfg_touch_plan(cfg, gu_touch, out_touch, wd_touch, extra):
    plan = cfg.get("tplan", [[20,"gw"]])
    out = []
    for t, w in plan:
        if w in extra: out.append((t, extra[w]))
        elif w[0] == "g": out.append((t, gu_touch(int(w[1]))))
        else: out.append((t, {"o": out_touch(WS_O, 1280), "h": out_touch(WS_H, 1280), "hid": out_touch(WS_HID, 3072), "st": out_touch(WS_ST2, 128), "wd": wd_touch,
                                 "hid0": out_touch(WS_HID, 3072, 0, 8), "hid1": out_touch(WS_HID, 3072, 8, 8), "hid2": out_touch(WS_HID, 3072, 16, 8)}[w]))
    return out

def gen_main(A, cfg):
    name = "main_kernel"
    CFG.update(cfg)
    cfg = dict(cfg); cfg["_k2"] = 1
    kstart(A, name)
    T = R.T
    A("s_cmp_ge_u32 s2, 256")
    A("s_cbranch_scc1 L_end")
    A(f"s_load_dwordx2 s[{SWS}:{SWS+1}], s[0:1], 72")
    A(f"s_load_dwordx2 s[{SX}:{SX+1}], s[0:1], 0")
    A(f"s_load_dwordx2 s[{SG_}:{SG_+1}], s[0:1], 32")
    A(f"s_load_dwordx2 s[{SU}:{SU+1}], s[0:1], 40")
    A(f"s_load_dwordx2 s[{SO}:{SO+1}], s[0:1], 56")
    stamp(A, cfg, 0)
    A(f"v_lshrrev_b32 v{T}, 6, v0")
    A(f"v_and_b32 v0, 63, v0")
    A(f"v_readfirstlane_b32 s{sWAVE}, v{T}")
    A(f"s_and_b32 s{sG}, s2, 7")
    A(f"s_lshr_b32 s{sM}, s2, 3")
    A(f"s_lshr_b32 s{sT0}, s{sM}, 1")
    A(f"s_mul_i32 s{sKBASE}, s{sT0}, {PAIR_STRIDE}")
    A(f"s_mul_i32 s{sVBASE}, s{sM}, {VHEAD_STRIDE}")
    A(f"s_add_u32 s{sVBASE}, s{sVBASE}, {hex(WS_V)}")
    A(f"s_lshl_b32 s{sQT}, s{sG}, 3")
    A(f"s_add_u32 s{sQT}, s{sQT}, s{sWAVE}")
    A(f"s_and_b32 s{sT1}, s{sM}, 1")
    A(f"v_lshlrev_b32 v{R.L16}, 4, v0")
    A(f"s_mul_i32 s{sT2}, s{sT1}, 1536")
    A(f"v_add_u32 v{R.F2S+1}, s{sT2}, v{R.L16}")
    A(f"v_and_b32 v{T}, 31, v0")
    A(f"v_lshrrev_b32 v{T+1}, 5, v0")
    A(f"v_lshlrev_b32 v{R.F2S}, 4, v{T}")
    A(f"v_lshl_add_u32 v{R.F2S}, v{T+1}, 2, v{R.F2S}")
    A(f"s_lshl_b32 s{sT1}, s{sT1}, 3")
    A(f"s_add_u32 s{sT1}, s{sT1}, 1024")
    A(f"v_add_u32 v{R.F2S}, s{sT1}, v{R.F2S}")
    A(f"s_mul_i32 s{sKSRC}, s{sWAVE}, 2560")
    A(f"s_add_u32 s{sKSRC}, s{sKSRC}, s{sKBASE}")
    A(f"s_mul_i32 s{sVSRC}, s{sWAVE}, 1280")
    A(f"s_mul_i32 s{sSLOT}, s{sWAVE}, 2560")
    A(f"v_lshlrev_b32 v{R.L4}, 2, v0")
    A(f"s_add_u32 s{sVSRC}, s{sVSRC}, s{sVBASE}")
    A("s_waitcnt lgkmcnt(0)")
    srd(A, SWS, SWS, WS_SIZE)
    KVF = cfg.get("kvflag", "")
    def kv_ops(c):
        lds = KV_BASE + (c % NKV) * KV_SLOT
        return [
            [f"s_add_u32 m0, s{sSLOT}, {lds}", f"s_add_u32 s{sT0}, s{sKSRC}, {c*8*2560}",
             f"buffer_load_dwordx4 v{R.F2S+1}, s[{SWS}:{SWS+3}], s{sT0} offen {KVF} lds"],
            [f"s_add_u32 m0, s{sSLOT}, {lds+1024}", f"s_add_u32 s{sT0}, s{sKSRC}, {c*8*2560}",
             f"buffer_load_dword v{R.F2S}, s[{SWS}:{SWS+3}], s{sT0} offen {KVF} lds"],
            [f"s_add_u32 m0, s{sSLOT}, {lds+1280}", f"s_add_u32 s{sT0}, s{sVSRC}, {c*8*1280}",
             f"buffer_load_dwordx4 v{R.L16}, s[{SWS}:{SWS+3}], s{sT0} offen {KVF} lds"],
            [f"s_add_u32 m0, s{sSLOT}, {lds+2304}", f"s_add_u32 s{sT0}, s{sVSRC}, {c*8*1280+1024}",
             f"buffer_load_dword v{R.L4}, s[{SWS}:{SWS+3}], s{sT0} offen {KVF} lds"]]
    def emit(op):
        for x in op: A(x)
    A(f"s_mul_i32 s{sT2}, s{sQT}, 2560")
    A(f"s_add_u32 s{sT2}, s{sT2}, s{sKBASE}")
    A(f"s_add_u32 s{sT2}, s{sT2}, {hex(WS_Q)}")
    A(f"buffer_load_dwordx4 {v(R.Q1,4)}, v{R.F2S+1}, s[{SWS}:{SWS+3}], s{sT2} offen")
    A(f"buffer_load_dword v{R.Q2}, v{R.F2S}, s[{SWS}:{SWS+3}], s{sT2} offen")
    A(f"buffer_load_dwordx4 {v(R.K1,4)}, v{R.F2S+1}, s[{SWS}:{SWS+3}], s{sKBASE} offen")
    A(f"buffer_load_dword v{R.K2}, v{R.F2S}, s[{SWS}:{SWS+3}], s{sKBASE} offen")
    for op in kv_ops(0): emit(op)
    A(f"s_lshl_b32 s{sFLAG}, s{sG}, 10")
    A(f"s_add_u32 s{sFLAG}, s{sFLAG}, {hex(WS_SYNC)}")
    A(f"s_getreg_b32 s{sXCC}, hwreg(HW_REG_XCC_ID, 0, 3)")
    A(f"s_mul_i32 s{sXCC}, s{sXCC}, 6")
    A(f"s_lshr_b32 s{sFG}, s{sM}, 2")
    A(f"s_and_b32 s{sT0}, s{sM}, 3")
    A(f"s_lshl_b32 s{sTOK16}, s{sG}, 4")
    A(f"s_lshl_b32 s{sT0}, s{sT0}, 2")
    A(f"s_add_u32 s{sTOK16}, s{sTOK16}, s{sT0}")
    A(f"s_lshl_b32 s{sJ}, s{sFG}, 1")
    A(f"s_and_b32 s{sT0}, s{sM}, 1")
    A(f"s_add_u32 s{sJ}, s{sJ}, s{sT0}")
    A(f"s_and_b32 s{sLW}, s{sWAVE}, 3")
    A(f"s_mul_i32 s{sWOSRC}, s{sFG}, {20*5120}")
    A(f"s_and_b32 s{sKQ}, s{sLW}, 1")
    A(f"s_lshl_b32 s{sKQ}, s{sKQ}, 1")
    A(f"s_lshr_b32 s{sT0}, s{sWAVE}, 2")
    A(f"s_add_u32 s{sKQ}, s{sKQ}, s{sT0}")
    A(f"s_mul_i32 s{sT0}, s{sKQ}, {5*5120}")
    A(f"s_add_u32 s{sWOSRC}, s{sWOSRC}, s{sT0}")
    A(f"s_add_u32 s{sWOSRC}, s{sWOSRC}, {hex(WS_WO)}")
    A(f"s_mul_i32 s{sWDSRC}, s{sFG}, {48*5120}")
    A(f"s_mul_i32 s{sT0}, s{sLW}, 12")
    A(f"s_and_b32 s{sT1}, s{sWAVE}, 4")
    A(f"s_add_u32 s{sWDRAW}, s{sT0}, s{sT1}")
    A(f"s_mul_i32 s{sT0}, s{sWDRAW}, 5120")
    A(f"s_add_u32 s{sWDSRC}, s{sWDSRC}, s{sT0}")
    A(f"s_add_u32 s{sWDSRC}, s{sWDSRC}, {hex(WS_WD)}")
    A(f"s_mul_i32 s{sGSRC}, s{sLW}, {16*3072}")
    A(f"s_mul_i32 s{sT0}, s{sJ}, 192")
    A(f"s_add_u32 s{sGSRC}, s{sGSRC}, s{sT0}")
    A(f"s_mul_i32 s{sGM0}, s{sLW}, 3072")
    srd(A, SX, SX, X_BYTES); srd(A, SG_, SG_, 640 * 1536 * 2); srd(A, SU, SU, 640 * 1536 * 2); srd(A, SO, SO, X_BYTES)
    A(f"v_add_u32 v{R.KA}, {KV_BASE}, v{R.L16}")
    A(f"v_add_u32 v{R.K2A}, {KV_BASE + 1024}, v{R.L4}")
    r, kh, aa, hf, b, i_, d1, d2 = T, T+1, T+2, T+3, T+4, T+5, T+6, T+7
    A(f"v_lshrrev_b32 v{aa}, 3, v{r}")
    A(f"v_bfe_u32 v{hf}, v{r}, 2, 1")
    A(f"v_and_b32 v{b}, 3, v{r}")
    A(f"v_lshl_add_u32 v{i_}, v{aa}, 2, v{b}")
    A(f"v_lshl_add_u32 v{d1}, v{hf}, 3, v{i_}")
    A(f"v_lshl_add_u32 v{d2}, v{hf}, 1, v{i_}")
    A(f"v_add_u32 v{d2}, 8, v{d2}")
    A(f"v_cmp_gt_u32 vcc, 8, v{i_}")
    A(f"v_cndmask_b32 v{d1}, v{d2}, v{d1}, vcc")
    A(f"v_min_u32 v{d1}, 19, v{d1}")
    A(f"v_mul_u32_u24 v{R.VA}, 320, v{kh}")
    A(f"v_lshl_add_u32 v{R.VA}, v{d1}, 4, v{R.VA}")
    A(f"v_add_u32 v{R.VA}, {KV_BASE + 1280}, v{R.VA}")
    A(f"v_cmp_eq_u32 vcc, 10, v{i_}")
    A(f"v_mov_b32 v{d2}, 0x3f803f80")
    for k in range(8): A(f"v_cndmask_b32 v{R.V1+k}, 0, v{d2}, vcc")
    A(f"v_cmp_gt_u32 vcc, 32, v0")
    A(f"v_mov_b32 v{d1}, 0x3f80")
    A(f"v_cndmask_b32 v{R.K2+1}, v{d1}, v{d2}, vcc")
    A(f"v_mov_b32 v{R.Q2+1}, 0")
    for jj in range(3):
        A(f"v_add_u32 v{T}, {64*jj}, v0")
        A(f"v_mul_u32_u24 v{T+1}, 5462, v{T}")
        A(f"v_lshrrev_b32 v{T+1}, 16, v{T+1}")
        A(f"v_mul_u32_u24 v{R.GV+jj}, {3072-192}, v{T+1}")
        A(f"v_lshl_add_u32 v{R.GV+jj}, v{T}, 4, v{R.GV+jj}")
    A(f"s_mov_b32 s{sVMASK}, 0x0033ffff")
    A(f"s_mov_b32 s{sVMASK+1}, 0x0033ffff")
    S0 = R.S[0]
    X = R.S[1]
    addr_rowmajor(A, R.XRES + 6, R.XRES + 7, X)
    A(f"v_lshlrev_b32 v{R.TCH}, 7, v0")
    A(f"v_mov_b32 v{R.TCH+1}, 0")
    A(f"s_lshl_b64 s[{sTMP}:{sTMP+1}], 1, s{sXCC}")
    A(f"v_mov_b32 v{R.XRES+8}, s{sTMP}")
    A(f"v_mov_b32 v{R.XRES+9}, s{sTMP+1}")
    A(f"s_cmp_ge_u32 s{sWAVE}, 4")
    A(f"s_cselect_b32 s{sTMP}, s{SU}, s{SG_}")
    A(f"s_cselect_b32 s{sTMP+1}, s{SU+1}, s{SG_+1}")
    A(f"s_mov_b32 s{sTMP+2}, {hex(640*1536*2)}")
    A(f"s_mov_b32 s{sTMP+3}, 0x20000")
    A(f"s_cselect_b32 s{sB}, {GU_UP}, 0")
    A(f"s_add_u32 s{sB}, s{sB}, s{sGM0}")
    A(f"s_and_b32 s{sC}, s{sM}, 3")
    A(f"s_lshl_b32 s{sDELTA}, s{sM}, 2")
    A(f"s_add_u32 s{sDELTA}, s{sDELTA}, s{sLW}")
    A(f"s_mul_i32 s{sDELTA}, s{sDELTA}, {12*128}")
    A(f"s_lshl_b32 s{sTO}, s{sG}, 5")
    A(f"s_add_u32 s{sTO}, s{sTO}, s{sM}")
    A(f"s_lshl_b32 s{sTO}, s{sTO}, 3")
    A(f"s_add_u32 s{sTO}, s{sTO}, s{sWAVE}")
    if cfg.get("ctouch", 1):
        code_touch_setup(A, 88, "L_attn_code")
        A(f"s_and_b32 s{sT0}, s{sTO}, 255")
        A(f"s_lshl_b32 s{sT0}, s{sT0}, 7")
        A(f"v_lshlrev_b32 v{X}, 15, v0")
        A(f"v_add_u32 v{X}, s{sT0}, v{X}")
        A(f"v_min_u32 v{R.GV+3}, L_code_end-L_attn_code-4, v{X}")

    A(f"s_mul_i32 s{sT0}, s{sQT}, {2*80*256}")
    A(f"s_lshr_b32 s{sT1}, s{sM}, 3")
    A(f"s_mul_i32 s{sT1}, s{sT1}, {20*256}")
    A(f"s_add_u32 s{sT0}, s{sT0}, s{sT1}")
    A(f"s_add_u32 s{sT0}, s{sT0}, {hex(WS_O)}")
    A(f"s_and_b32 s{sT2}, s{sM}, 7")
    A(f"s_lshl_b32 s{sT1}, s{sT2}, 9")
    A(f"s_add_u32 s{sT1}, s{sT1}, s{sT0}")
    A(f"s_lshl_b32 s{sT2}, s{sT2}, 7")
    A(f"s_add_u32 s{sT0}, s{sT0}, s{sT2}")
    A(f"s_add_u32 s{sT0}, s{sT0}, {16*256}")
    A(f"v_and_b32 v{X}, 15, v0")
    A(f"v_bfe_u32 v{X+1}, v0, 4, 1")
    A(f"v_lshrrev_b32 v{X+2}, 5, v0")
    A(f"v_mul_u32_u24 v{X+1}, {80*256}, v{X+1}")
    A(f"v_lshl_add_u32 v{T+7}, v{X}, 3, v{X+1}")
    A(f"v_add_u32 v{T+7}, s{sT0}, v{T+7}")
    A(f"v_lshl_add_u32 v{T+6}, v{X}, 4, v{X+1}")
    A(f"v_lshl_add_u32 v{T+6}, v{X+2}, 8, v{T+6}")
    A(f"v_add_u32 v{T+6}, s{sT1}, v{T+6}")
    A(f"s_mov_b32 s92, {fhex(2.0**-40)}")
    A(f"s_mov_b32 s93, {fhex(2.0**64)}")
    A(f"s_mov_b32 s94, {fhex(2.0**127)}")
    JUNK = R.XRES + 11
    def gu_op(c, jj):
        return [f"s_add_u32 m0, s{sB}, {c*GU_SLOT + jj*1024}", f"s_add_u32 s{sT0}, s{sGSRC}, {c*64*3072}",
                f"buffer_load_dwordx4 v{R.GV+jj}, s[{sTMP}:{sTMP+3}], s{sT0} offen lds"]
    def touch(n, srd_, pre):
        return pre + [f"s_bfm_b64 exec, {n}, 0", f"buffer_load_dword v{JUNK}, v{R.TCH}, s[{srd_}:{srd_+3}], s{sT0} offen", "s_mov_b64 exec, -1"]
    def gu_touch(c): return touch(12, sTMP, [f"s_add_u32 s{sT0}, s{sDELTA}, {c*64*3072}"])
    def out_touch(base, nbytes, l0=0, n=None):
        return touch(n or nbytes // 128, SWS, [f"s_mul_i32 s{sT0}, s{sTO}, {nbytes}", f"s_add_u32 s{sT0}, s{sT0}, {hex(base + l0*128)}",
                                          f"s_cmp_lg_u32 s{sFAST}, 0", f"s_cselect_b32 s{sT0}, s{sT0}, {hex(WS_SIZE)}"])
    sched = {t: [] for t in range(64)}
    trs = {}
    misc = {}
    vm = []
    def put(t, tag, op):
        while len(sched[t]) >= 3: t += 1
        sched[t].append((tag, op)); return t
    for i, op in enumerate(kv_ops(1)): put(i // 2, "kv1", op)
    for c in range(2, 8):
        for i, op in enumerate(kv_ops(c)): put(8 * (c - 2) + 6 + i // 2, f"kv{c}", op)
    pf = []
    def frag_op(src, i, dst):
        pre = [f"s_add_u32 s{sSTG}, s{src}, {i*1024}"] if i % 4 == 0 else []
        return pre + [f"buffer_load_dwordx4 {a(dst+4*i,4)}, v{R.L16}, s[{SWS}:{SWS+3}], s{sSTG} offen offset:{(i%4)*1024}"]
    for i in range(10): pf.append(frag_op(sWDSRC, i, 100))
    for i in range(25): pf.append(frag_op(sWOSRC, i, 0))
    for c in range(4):
        for jj in range(3): pf.append(gu_op(c, jj))
    if cfg.get("nopf"): pf = []
    free = [t for t in range(cfg.get('pf0', 2), 64) if t % 8 < cfg.get('pfm', 6) or t > 48]
    num, den = cfg.get("pf_rate", [1, 1])
    for i, op in enumerate(pf): put(free[i * den // num], "pf", op)
    put(0, "at", ["s_cmp_eq_u32 s%d, 0" % sWAVE, f"s_cselect_b32 s{sT0}, s{sFLAG}, {hex(WS_SIZE)}", "s_mov_b64 exec, 1",
                  f"buffer_atomic_add_x2 {v(R.XRES+8,2)}, v{R.TCH+1}, s[{SWS}:{SWS+3}], s{sT0} offen offset:512 sc1", "s_mov_b64 exec, -1"])
    put(12, "pf", [f"buffer_load_dwordx4 {v(R.XRES,4)}, v{R.XRES+6}, s[{SX}:{SX+3}], 0 offen"])
    put(16, "pf", [f"buffer_load_dwordx2 {v(R.XRES+4,2)}, v{R.XRES+7}, s[{SX}:{SX+3}], 0 offen"])
    put(cfg.get("xcc_ld", 10), "xcc", [f"buffer_load_dwordx2 {v(R.XRES+8,2)}, v{R.TCH+1}, s[{SWS}:{SWS+3}], s{sFLAG} offen offset:512 sc1"])
    misc[cfg.get('xcc_rd', 23)] = ("xcc", [f"v_readfirstlane_b32 s{sFAST-1}, v{R.XRES+8}" , f"v_readfirstlane_b32 s{sFAST}, v{R.XRES+9}"])
    gwarm = touch(15, sTMP, [f"s_lshr_b32 s{sT0}, s{sTO}, 3", f"s_lshl_b32 s{sT0}, s{sT0}, 2", f"s_add_u32 s{sT0}, s{sT0}, s{sLW}", f"s_mul_i32 s{sT0}, s{sT0}, {15*128}"])
    if cfg.get("gwarm_at", -1) >= 0: put(cfg.get("gwarm_at", -1), "pf", gwarm)
    wd01_touch = touch(20, SWS, [f"s_mul_i32 s{sT0}, s{sC}, 2560", f"s_add_u32 s{sT0}, s{sT0}, s{sWDSRC}"])
    wo_touch = touch(25, SWS, [f"s_lshr_b32 s{sT0}, s{sWAVE}, 2", f"s_lshl_b32 s{sT1}, s{sC}, 1", f"s_add_u32 s{sT0}, s{sT0}, s{sT1}",
                               f"s_mul_i32 s{sT0}, s{sT0}, 3200", f"s_add_u32 s{sT0}, s{sT0}, s{sWOSRC}"])
    gw2 = touch(6, sTMP, [f"s_lshr_b32 s{sT0}, s{sTO}, 3", f"s_lshl_b32 s{sT0}, s{sT0}, 2", f"s_add_u32 s{sT0}, s{sT0}, s{sLW}", f"s_mul_i32 s{sT0}, s{sT0}, {6*128}",
                          f"s_add_u32 s{sT0}, s{sT0}, {6*64*3072}"])
    def gwp(k, n):
        return touch(n, sTMP, [f"s_lshr_b32 s{sT0}, s{sTO}, 3", f"s_lshl_b32 s{sT0}, s{sT0}, 2", f"s_add_u32 s{sT0}, s{sT0}, s{sLW}", f"s_mul_i32 s{sT0}, s{sT0}, {n*128}",
                               f"s_add_u32 s{sT0}, s{sT0}, {k*n*1024*128}"])
    extra = {"p0": gwp(0, 5), "p1": gwp(1, 5), "p2": gwp(2, 5), "q0": gwp(0, 3), "q1": gwp(1, 3), "q2": gwp(2, 3), "q3": gwp(3, 3), "q4": gwp(4, 3), "wd01": wd01_touch, "wo": wo_touch, "gw2": gw2, "gw": gwarm}
    def wdt(k): return touch(20, SWS, [f"s_lshl_b32 s{sT0}, s{sM}, 3", f"s_add_u32 s{sT0}, s{sT0}, s{sWAVE}", f"s_mul_i32 s{sT0}, s{sT0}, {60*128}", f"s_add_u32 s{sT0}, s{sT0}, {WS_WD + k*20*128}"])
    extra.update({"d0": wdt(0), "d1": wdt(1), "d2": wdt(2)})
    wd_touch = None
    for t, op in cfg_touch_plan(cfg, gu_touch, out_touch, wd_touch, extra): put(t, "pf", op)
    HIDT = None
    if cfg.get("tlb", 0) & 2:
        put(20, "pf", ["s_mov_b64 exec, 1", f"buffer_load_dword v{JUNK}, v{R.XRES+6}, s[{SO}:{SO+3}], 0 offen", "s_mov_b64 exec, -1"])
    if cfg.get("ctouch", 1):
        for t in cfg.get("ct_at", [1, 52]):
            put(t, "pf", ["s_mov_b64 exec, 3", f"global_load_dword v{JUNK}, v{R.GV+3}, s[88:89]", "s_mov_b64 exec, -1"])

    A("s_waitcnt vmcnt(4)")
    A(f"v_mfma_f32_32x32x16_bf16 {v(S0,16)}, {v(R.K1,4)}, {v(R.Q1,4)}, 0")
    A(f"v_mfma_f32_32x32x8_bf16 {v(S0,16)}, {v(R.K2,2)}, {v(R.Q2,2)}, {v(S0,16)}")
    max16(A, R.P, S0, True)
    xhalf_max(A, R.P, R.P+1)
    set_shift(A, R.P)
    A(f"v_mfma_f32_32x32x16_bf16 {v(S0,16)}, {v(R.K1,4)}, {v(R.Q1,4)}, 0")
    A(f"v_mfma_f32_32x32x8_bf16 {v(S0,16)}, {v(R.K2,2)}, {v(R.Q2,2)}, {v(S0,16)}")
    def toff(t): return ((t // 8) % 3) * KV_SLOT + (t % 8) * 2560
    def tdelta(t): return 0
    A("s_waitcnt vmcnt(0)")
    A("s_barrier")
    A(f"ds_read_b128 {v(R.K1,4)}, v{R.KA} offset:{toff(1)}")
    A(f"ds_read_b32 v{R.K2}, v{R.K2A} offset:{toff(1)}")
    A(f"s_mov_b64 exec, s[{sVMASK}:{sVMASK+1}]")
    A(f"ds_read_b128 {v(R.V1,4)}, v{R.VA}")
    A("s_mov_b64 exec, -1")
    stamp(A, cfg, 1)
    PRIO = cfg.get("prio", {6: 3, 2: 2, 4: 1, 5: 0})
    A("s_setprio 3")
    A.label("L_attn_code")
    def vwait(tag): A(f"s_waitcnt vmcnt({len(vm) - 1 - max(i for i, x in enumerate(vm) if x == tag)})")
    for t in range(64):
        cur, nxt = R.S[t % 2], R.S[(t + 1) % 2]
        def E(i): A(f"v_exp_f32 v{cur+i}, v{cur+i}")
        def C(k): A(f"v_cvt_pk_bf16_f32 v{R.P+k}, v{cur+2*k}, v{cur+2*k+1}")
        ops_t = list(sched[t])
        def V():
            if ops_t:
                tag, op = ops_t.pop(0); emit(op); vm.append(tag)
        tr = []
        if t in trs: tr = list(trs[t][1])
        def L(n):
            for _ in range(n):
                if tr: A(tr.pop(0))
        if t % 8 == 6 and t < 56:
            vwait(f"kv{t//8+1}")
            A("s_barrier")
        if cfg.get("ats") and t % 8 == 6: A(f"s_memtime s[{64+2*(t//8)}:{65+2*(t//8)}]")
        if t < 56 and t % 8 in PRIO: A(f"s_setprio {PRIO[t % 8]}")
        if t >= 56 and (t - 2) % 8 in PRIO and t > 56: A(f"s_setprio {PRIO[(t - 2) % 8]}")
        if t < 63:
            A(f"s_waitcnt lgkmcnt({2 if t else 1})")
            A(f"v_mfma_f32_32x32x16_bf16 {v(nxt,16)}, {v(R.K1,4)}, {v(R.Q1,4)}, 0")
        E(0); E(1); V(); E(2); C(0); E(3)
        A("s_waitcnt lgkmcnt(0)")
        if t: A(f"v_mfma_f32_32x32x16_bf16 {v(R.O,16)}, {v(R.V2,4)}, {v(R.P+4,4)}, {v(R.O,16)}")
        if t in trs and trs[t][0]: vwait(trs[t][0])
        if t in misc:
            vwait(misc[t][0])
            A(f"s_mov_b32 s{sT1}, s{sFAST-1}")
            emit(misc[t][1])
            A(f"s_lshr_b64 s[{sFAST-1}:{sFAST}], s[{sFAST-1}:{sFAST}], s{sXCC}")
            A(f"s_and_b32 s{sFAST}, s{sFAST-1}, 63")
            A(f"s_mov_b32 s{sFAST-1}, s{sT1}")
            A(f"s_cmp_eq_u32 s{sFAST}, 32")
            A(f"s_cselect_b32 s{sFAST}, {0 if cfg.get('noFast') else 1}, 0")
        L(2); E(4); C(1); L(2); E(5); V(); E(6); L(1); C(2); E(7)
        if t < 63: A(f"v_mfma_f32_32x32x8_bf16 {v(nxt,16)}, {v(R.K2,2)}, {v(R.Q2,2)}, {v(nxt,16)}")
        if t < 62:
            if tdelta(t + 2):
                A(f"v_add_u32 v{R.KA}, {tdelta(t+2)}, v{R.KA}")
                A(f"v_add_u32 v{R.K2A}, {tdelta(t+2)}, v{R.K2A}")
            A(f"ds_read_b128 {v(R.K1,4)}, v{R.KA} offset:{toff(t+2)}")
            A(f"ds_read_b32 v{R.K2}, v{R.K2A} offset:{toff(t+2)}")
        E(8); C(3); E(9); V(); E(10); C(4); E(11)
        A(f"v_mfma_f32_32x32x16_bf16 {v(R.O,16)}, {v(R.V1,4)}, {v(R.P,4)}, {v(R.O,16) if t else 0}")
        A(f"s_mov_b64 exec, s[{sVMASK}:{sVMASK+1}]")
        A(f"ds_read_b128 {v(R.V2,4)}, v{R.VA} offset:{toff(t) + 640}")
        if t < 63:
            if tdelta(t + 1): A(f"v_add_u32 v{R.VA}, {tdelta(t+1)}, v{R.VA}")
            A(f"ds_read_b128 {v(R.V1,4)}, v{R.VA} offset:{toff(t+1)}")
        A("s_mov_b64 exec, -1")
        E(12); C(5); E(13); E(14); E(15); C(6); C(7)
        assert not ops_t and not tr
    A("s_waitcnt lgkmcnt(0)")
    A(f"v_mfma_f32_32x32x16_bf16 {v(R.O,16)}, {v(R.V2,4)}, {v(R.P+4,4)}, {v(R.O,16)}")
    A.label("L_post_attn")
    if cfg.get("ats"):
        for c in range(11): A(f"s_sub_u32 s{65+2*c}, s{64+2*c}, s63")
        A("v_mov_b32 v78, v0")
        A("v_mov_b32 v110, v2")
        A("v_mov_b32 v109, v3")
        stamp_flush(A, cfg, 13, 17, SWS, sWAVE, 0)
        A("s_mov_b64 exec, -1")
        A("v_mov_b32 v0, v78")
        A("v_mov_b32 v2, v110")
        A("v_mov_b32 v3, v109")
    A("s_setprio 0")
    stamp(A, cfg, 2)
    N = R.S[0]
    A(f"v_rcp_f32 v{T}, v{R.O+10}")
    A(f"v_max3_f32 v{T+1}, abs(v{R.O}), abs(v{R.O+1}), abs(v{R.O+2})")
    A(f"v_cmp_le_f32 vcc, s92, v{R.O+10}")
    A(f"v_cmp_ge_f32 s[{sTMP}:{sTMP+1}], s93, v{R.O+10}")
    for k in (3, 5, 7): A(f"v_max3_f32 v{T+1}, v{T+1}, abs(v{R.O+k}), abs(v{R.O+k+1})")
    A(f"v_max_f32_e64 v{T+1}, v{T+1}, abs(v{R.O+9})")
    A(f"s_and_b64 vcc, vcc, s[{sTMP}:{sTMP+1}]")
    A(f"v_cmp_ge_f32 s[{sTMP+2}:{sTMP+3}], s94, v{T+1}")
    def norm():
        for k in (8, 9, 0, 1, 2, 3, 4, 5, 6, 7): A(f"v_mul_f32 v{N+k}, v{T}, v{R.O+k}")
    norm()
    A(f"s_and_b64 vcc, vcc, s[{sTMP+2}:{sTMP+3}]")
    A(f"s_cmp_eq_u64 vcc, -1" if not cfg.get("force_slow") else "s_cmp_eq_u32 s2, -1")
    A("s_cbranch_scc0 L_attn_slow")
    A.label("L_attn_norm")
    A(f"v_cvt_pk_bf16_f32 v{N+10}, v{N+8}, v{N+9}")
    A(f"v_cvt_pk_bf16_f32 v{N+11}, v{N+8}, v{N+9}")
    for k in range(4): A(f"v_cvt_pk_bf16_f32 v{N+k}, v{N+2*k}, v{N+2*k+1}")
    A(f"v_permlane32_swap_b32 v{N+10}, v{N+11}")
    stores(A, [f"buffer_store_dwordx4 {v(N,4)}, v{T+6}, s[{SWS}:{SWS+3}], 0 offen",
               "s_mov_b32 exec_hi, 0",
               f"buffer_store_dwordx2 {v(N+10,2)}, v{T+7}, s[{SWS}:{SWS+3}], 0 offen",
               "s_mov_b32 exec_hi, -1"])
    A(f"v_and_b32 v{T+4}, 15, v0")
    A(f"v_lshrrev_b32 v{T+3}, 5, v0")
    A(f"v_lshlrev_b32 v{T+1}, 4, v{T+4}")
    A(f"v_lshl_add_u32 v{T+1}, v{T+3}, 8, v{T+1}")
    A(f"v_lshrrev_b32 v{T+5}, 4, v0")
    A(f"v_lshlrev_b32 v{T+5}, 8, v{T+5}")
    A(f"v_lshl_add_u32 v7, v{T+4}, 3, v{T+5}")
    A(f"v_add_u32 v7, 4096, v7")

    BF, ACC = 16, 56
    vHP, vHS, vPW, RA = 108, 109, 3, 5
    A(f"s_lshr_b32 s{sT2}, s{sWAVE}, 2")
    A(f"s_mul_i32 s{sT1}, s{sKQ}, {20*256}")
    A(f"s_add_u32 s{sT1}, s{sT1}, {hex(WS_O)}")
    A(f"s_add_u32 s{sB2}, s{sLW}, s{sTOK16}")
    A(f"s_xor_b32 s{sB}, s{sB2}, 1")
    A(f"s_mul_i32 s{sB}, s{sB}, {80*256}")
    A(f"s_add_u32 s{sB}, s{sB}, s{sT1}")
    A(f"s_mul_i32 s{sB2}, s{sB2}, {80*256}")
    A(f"s_add_u32 s{sB2}, s{sB2}, s{sT1}")
    A(f"s_xor_b32 s{sT0}, s{sLW}, 1")
    A(f"s_mul_i32 s{sT0}, s{sT0}, 5120")
    A(f"s_add_u32 s{sT0}, s{sT0}, {PART_BASE}")
    A(f"v_add_u32 v{vPW}, s{sT0}, v{R.L16}")
    A(f"s_mul_i32 s{sT0}, s{sLW}, 5120")
    A(f"s_add_u32 s{sT0}, s{sT0}, {PART_BASE}")
    A(f"v_add_u32 v6, s{sT0}, v{R.L16}")
    A(f"s_add_u32 s{sT0}, s{sLW}, s{sTOK16}")
    A(f"s_lshl_b32 s{sC}, s{sT0}, 11")
    A(f"s_mul_i32 s{sT0}, s{sT0}, {80*256}")
    A(f"s_mul_i32 s{sT1}, s{sFG}, 2560")
    A(f"s_add_u32 s{sT0}, s{sT0}, s{sT1}")
    A(f"s_add_u32 s{sT0}, s{sT0}, {hex(WS_H)}")
    A(f"v_add_u32 v{T+1}, 2048, v{T+1}")
    A(f"v_add_u32 v{vHS}, s{sT0}, v{T+1}")
    A(f"s_lshl_b32 s{sT1}, s{sT2}, 10")
    A(f"s_add_u32 s{sT0}, s{sT0}, s{sT1}")
    A(f"v_add_u32 v{vHP}, s{sT0}, v{R.L16}")
    A(f"s_lshl_b32 s{sT1}, s{sFG}, 1")
    A(f"s_add_u32 s{sT1}, s{sT1}, s{sT2}")
    A(f"s_lshl_b32 s{sT1}, s{sT1}, 7")
    A(f"s_add_u32 s{sC}, s{sC}, s{sT1}")
    A(f"s_add_u32 s{sC}, s{sC}, {hex(WS_ST2)}")
    reduce_addr(A, 3, PART_BASE, RA)
    sGT = sQT
    A(f"s_and_b32 s{sGT}, s{sTOK16}, -8")
    A(f"s_lshl_b32 s{sT0}, s{sLW}, 1")
    A(f"s_add_u32 s{sGT}, s{sGT}, s{sT0}")
    sHSRC, sHM0 = sKBASE, sVBASE
    A(f"s_mul_i32 s{sHSRC}, s{sGT}, {80*256}")
    A(f"s_add_u32 s{sHSRC}, s{sHSRC}, {hex(WS_H)}")
    A(f"s_lshl_b32 s{sHM0}, s{sLW}, 12")
    stamp(A, cfg, 3)
    M8 = 0x0101010101010101
    sync(A, 0, 0, False, 0, rb=[(M8, [f"buffer_load_dword v{JUNK}, v{T+6}, s[{SWS}:{SWS+3}], 0 offen"]),
                                (0x00010001, [f"buffer_load_dword v{JUNK}, v{T+7}, s[{SWS}:{SWS+3}], 0 offen"])])
    stamp(A, cfg, 4)
    def wo_load(q, BF=BF):
        i, st = divmod(q, 5)
        if st < 4: A(f"buffer_load_dwordx4 {v(BF+20*i+4*st,4)}, v{R.L16}, s[{SWS}:{SWS+3}], s{sB2 if i else sB} offen offset:{st*1024} {cfg.get('wold', 'sc1')}")
        else:
            for e in range(2): A(f"buffer_load_dwordx2 {v(BF+20*i+16+2*e,2)}, v7, s[{SWS}:{SWS+3}], s{sB2 if i else sB} offen offset:{128*e} {cfg.get('wold', 'sc1')}")
        return [q] * (2 if st == 4 else 1)
    WL0 = cfg.get("wl0", 4)
    wq0 = []
    for q in range(WL0): wq0 += wo_load(q)
    if cfg.get("wts"): A("s_memtime s[72:73]")
    EW = cfg.get("ew", [4, 1])
    FSUB = lambda f: 1 if f in (2, 3) else 0
    def wo_main(sub, ACC=ACC, BF=BF, vPW=vPW):
        keep = [f for f in range(5) if FSUB(f) == sub]
        order = [f for f in range(5) if f not in keep] + keep
        wq = list(wq0); nq = WL0
        for i in range(2):
            for st in range(5):
                A(f"s_waitcnt vmcnt({len(wq) - 1 - max(k for k, x in enumerate(wq) if x == 5*i+st)})")
                for _ in range(cfg.get("wlr", 1)):
                    if nq < 10: wq += wo_load(nq); nq += 1
                if cfg.get("wts") and (5 * i + st) in (0, 2, 4, 5, 7, 9): A(f"s_memtime s[{74+2*(0,2,4,5,7,9).index(5*i+st)}:{75+2*(0,2,4,5,7,9).index(5*i+st)}]")
                for f in order:
                    acc = v(ACC + 20 * i + 4 * f, 4)
                    A(f"v_mfma_f32_16x16x32_bf16 {acc}, {a(20*st+4*f,4)}, {v(BF+20*i+4*st,4)}, {acc if st else 0}")
                if i == 1:
                    f = order[st]
                    A(f"ds_write_b128 v{vPW}, {v(ACC+4*f,4)} offset:{(1 if FSUB(f) == sub else 2)*20480 + f*1024}")
        for f in order:
            if f not in keep: A(f"ds_write_b128 v6, {v(ACC+20+4*f,4)} offset:{f*1024}")
        for op in (load_wd_ops(2) + load_wd_ops(3))[:EW[0]]: emit(op)
        stamp(A, cfg, 5)
        if cfg.get("wts"):
            for k in range(7): A(f"s_sub_u32 s{73+2*k}, s{72+2*k}, s69")
            A("s_sub_u32 s71, s71, s69")
            A("v_mov_b32 v110, v0")
            A("v_mov_b32 v1, v3")
            stamp_flush(A, cfg, 13, 17, SWS, sWAVE, cfg.get("tswave", 0))
            A("s_mov_b64 exec, -1")
            A("v_mov_b32 v0, v110")
            A("v_mov_b32 v3, v1")
        return [ACC + 20 + 4 * f for f in keep]
    D = 16
    TRA, VB, VST = 1, 2, 3
    G1, Gh, rho, c0, c1 = T+2, T+3, T+4, T+5, T+6
    def wo_tail(n):
        own = wo_main(3 - n)
        XF = 56
        A("s_waitcnt lgkmcnt(0)")
        A("s_barrier")
        def mid():
            for op in (load_wd_ops(2) + load_wd_ops(3))[EW[0]:EW[0]+EW[1]]: emit(op)
            for i in range(2 * n):
                A(f"v_lshlrev_b32 v{XF+2*i}, 16, v{R.XRES+i}")
                A(f"v_and_b32 v{XF+2*i+1}, 0xffff0000, v{R.XRES+i}")
            for i in range(2 * n): A(f"v_pk_add_f32 {v(own[i//2]+2*(i%2),2)}, {v(own[i//2]+2*(i%2),2)}, {v(XF+2*i,2)}")
            A(f"v_mov_b32 v{T+2}, 0x3f803f80")
            A(f"v_lshlrev_b32 v{T+3}, 3, v0")
        reduce_sum(A, 3, D, RA, n, own, mid)
        src = lambda i: own[i // 2] + 2 * (i % 2)
        for i in range(4): A(f"v_cvt_pk_bf16_f32 v{D+i}, v{src(i)}, v{src(i)+1}")
        stores(A, [f"buffer_store_dwordx4 {v(D,4)}, v{vHP}, s[{SWS}:{SWS+3}], 0 offen"])
        if n == 3:
            E = D + 12
            for i in range(4): A(f"v_cvt_pk_bf16_f32 v{E+i}, v{src(4+i%2)}, v{src(4+i%2)+1}")
            for i in (4, 5): A(f"v_cvt_pk_bf16_f32 v{D+i}, v{src(i)}, v{src(i)+1}")
            A(f"v_permlane16_swap_b32 v{E}, v{E+2}")
            A(f"v_permlane16_swap_b32 v{E+1}, v{E+3}")
            stores(A, ["s_mov_b32 exec_lo, 0xffff", "s_mov_b32 exec_hi, 0xffff",
                       f"buffer_store_dwordx4 {v(E,4)}, v{vHS}, s[{SWS}:{SWS+3}], 0 offen", "s_mov_b64 exec, -1"])
        sm, sq = D + 8, D + 9
        for i in range(2 * n):
            A(f"v_dot2_f32_bf16 v{sm}, v{D+i}, v{T+2}, {'v%d' % sm if i else 0}")
            A(f"v_dot2_f32_bf16 v{sq}, v{D+i}, v{D+i}, {'v%d' % sq if i else 0}")
        for i in range(3): A(f"v_accvgpr_write_b32 a{A_RES(i)}, v{D+i}")
        for op in ("v_permlane16_swap_b32", "v_permlane32_swap_b32"):
            A(f"v_mov_b32 v{T}, v{sm}")
            A(f"v_mov_b32 v{T+1}, v{sq}")
            A(f"{op} v{sm}, v{T}")
            A(f"{op} v{sq}, v{T+1}")
            A(f"v_pk_add_f32 {v(sm,2)}, {v(sm,2)}, {v(T,2)}")
        A("s_mov_b64 exec, 0xffff")
        stores(A, [f"buffer_store_dwordx2 {v(sm,2)}, v{T+3}, s[{SWS}:{SWS+3}], s{sC} offen"])
        A("s_mov_b64 exec, -1")
        for i in range(3, 2 * n): A(f"v_accvgpr_write_b32 a{A_RES(i)}, v{D+i}")
        A(f"v_bfe_u32 v{G1}, v0, 4, 1")
        A(f"v_lshrrev_b32 v{Gh}, 5, v0")
        A(f"v_bfe_u32 v{rho}, v0, 2, 2")
        A(f"v_and_b32 v{c0}, 1, v0")
        A(f"v_bfe_u32 v{c1}, v0, 1, 1")
        A(f"v_lshl_add_u32 v{TRA}, v{Gh}, 3, v{rho}")
        A(f"v_mul_u32_u24 v{TRA}, 192, v{TRA}")
        A(f"v_mul_u32_u24 v{c1}, {GU_UP}, v{c1}")
        A(f"v_add_u32 v{TRA}, v{TRA}, v{c1}")
        A(f"v_lshl_add_u32 v{TRA}, v{c0}, 4, v{TRA}")
        A(f"v_lshl_add_u32 v{TRA}, v{G1}, 3, v{TRA}")
    def h_dma_ops(c):
        return [[f"s_add_u32 m0, s{sHM0}, {H_BASE + (c%NHS)*16384 + k*1024}", f"s_add_u32 s{sT0}, s{sHSRC}, {(k//2)*80*256 + c*2048 + (k%2)*1024}",
                 f"buffer_load_dwordx4 v{R.L16}, s[{SWS}:{SWS+3}], s{sT0} offen sc1 lds"] for k in range(4)]
    A(f"s_cmp_ge_u32 s{sWAVE}, 4")
    A("s_cbranch_scc1 L_gu_loader")
    wo_tail(3)

    L_CF = GU_MISC
    L_MB = GU_MISC + 3072
    L_RS = GU_MISC + 4096
    ACC, FR = 16, 0
    CFA = 0
    MB = T
    sTH, sFH = sKSRC, sVSRC
    A(f"s_and_b32 s{sTH}, s{sWAVE}, 1")
    A(f"s_lshr_b32 s{sFH}, s{sWAVE}, 1")
    A(f"s_mul_i32 s{sT0}, s{sFH}, 96")
    A(f"v_add_u32 v{TRA}, s{sT0}, v{TRA}")
    SEL, CSA = 40, 44
    A(f"v_lshrrev_b32 v{T}, 2, v0")
    A(f"v_xor_b32 v{T}, v{T}, v0")
    A(f"v_and_b32 v{T}, 4, v{T}")
    A(f"v_cmp_eq_u32 vcc, 0, v{T}")
    A(f"v_mov_b32 v{T}, 0x3f803f80")
    A(f"v_cndmask_b32 v{T}, 0, v{T}, vcc")
    for i in range(4): A(f"v_accvgpr_write_b32 a{SEL+i}, v{T}")
    TRH, VBH = 5, 6
    A(f"s_mul_i32 s{sT0}, s{sTH}, {32*192}")
    A(f"v_subrev_u32 v{TRH}, s{sT0}, v{TRA}")
    A(f"v_add_u32 v{TRA}, s{sT0}, v{TRA}")
    A(f"v_and_b32 v{VB}, 15, v0")
    A(f"v_lshlrev_b32 v{VB}, 4, v{VB}")
    A(f"v_lshl_add_u32 v{VB}, v{Gh}, 8, v{VB}")
    A(f"v_mul_u32_u24 v{VST}, {192*256}, v{G1}")
    A(f"v_add_u32 v{VST}, v{VST}, v{VB}")
    A(f"v_lshl_add_u32 v{VB}, v{G1}, 11, v{VB}")
    A(f"s_lshl_b32 s{sT0}, s{sTH}, 13")
    A(f"s_add_u32 s{sT0}, s{sT0}, {H_BASE}")
    A(f"v_add_u32 v{VB}, s{sT0}, v{VB}")
    A(f"s_lshl_b32 s{sT0}, s{sTH}, 10")
    A(f"v_subrev_u32 v{VBH}, s{sT0}, v{VB}")
    A(f"v_add_u32 v{VB}, s{sT0}, v{VB}")
    lq = []
    def gread(st, what):
        c, sl = divmod(st, 4)
        b = FR + 20 * (st % 2)
        if what[0] == "A":
            t = int(what[1])
            for u in range(2):
                A(f"ds_read_b64_tr_b16 {a(b+4*t+2*u,2)}, v{TRA if sl < 2 else TRH} offset:{(16*sl+4*u)*192 + 32*t}"); lq.append((st, what))
        else:
            i = int(what[1])
            A(f"ds_read_b128 {a(b+12+4*i,4)}, v{VB if sl < 2 else VBH} offset:{(c%NHS)*16384 + i*4096 + sl*512}"); lq.append((st, what))
    for w in ("A0", "A1", "A2"): gread(0, w)
    A(f"s_mul_i32 s{sT0}, s{sFH}, 1536")
    A(f"s_add_u32 s{sT0}, s{sT0}, {L_CF}")
    A(f"v_lshlrev_b32 v{T+6}, 3, v0")
    A(f"v_add_u32 v{T+6}, s{sT0}, v{T+6}")
    A(f"v_and_b32 v{T+7}, 31, v0")
    A(f"v_lshlrev_b32 v{T+7}, 3, v{T+7}")
    A(f"s_lshl_b32 s{sT0}, s{sTH}, 9")
    A(f"s_add_u32 s{sT0}, s{sT0}, {L_MB}")
    A(f"v_add_u32 v{T+7}, s{sT0}, v{T+7}")
    stamp(A, cfg, 6)
    sync(A, 1, 0, True, 0, rb=[(M8, [f"buffer_load_dword v7, v{vHP}, s[{SWS}:{SWS+3}], 0 offen"]),
                               (0x0000010100000101, [f"buffer_load_dword v7, v{vHS}, s[{SWS}:{SWS+3}], 0 offen"])])
    stamp(A, cfg, 7)
    if cfg.get("gts"): A("s_mov_b32 s90, s75")
    for op in h_dma_ops(0)[:2]: emit(op)
    A("s_waitcnt vmcnt(0)")
    A("s_barrier")
    for w in ("B0", "B1"): gread(0, w)
    wd3 = (load_wd_ops(2) + load_wd_ops(3))[sum(EW):]
    def lwait(tag): A(f"s_waitcnt lgkmcnt({min(15, len(lq) - 1 - max(i for i, x in enumerate(lq) if x == tag))})")
    for st in range(40):
        c, sl = divmod(st, 4)
        nxt = st + 1 < 40
        bar = sl == 3 and nxt
        if bar:
            A("s_waitcnt lgkmcnt(0)")
            if cfg.get("gts") == 2: A(f"s_memtime s[{60+2*c}:{61+2*c}]")
            A("s_barrier")
            if cfg.get("gts") == 1: A(f"s_memtime s[{60+2*c}:{61+2*c}]")
            d = GU_SLOT if (c + 1) % NWS else -(NWS - 1) * GU_SLOT
            A(f"v_add_u32 v{TRA}, {d & 0xffffffff}, v{TRA}")
            A(f"v_add_u32 v{TRH}, {d & 0xffffffff}, v{TRH}")
        if st == 39:
            A("s_waitcnt lgkmcnt(0)")
            A("s_barrier")
            bar = True
            for k in range(3): A(f"ds_read_b64 {a(CFA+2*k,2)}, v{T+6} offset:{512*k}")
        b = FR + 20 * (st % 2)
        plan = ((0, 0, "B1", ("A0",)), (1, 0, None, ("B0", "B1")), (0, 1, "A2", ("A1",)), (1, 1, None, ("A2",)), (0, 2, None, ()), (1, 2, None, ()))
        for (i, t, wt_, rd) in plan:
            if wt_ and not bar and not (st == 0 and wt_ == "A2"): lwait((st, wt_))
            acc = v(ACC + 48 * i + 16 * t, 16)
            if cfg.get("x16"):
                r0 = ACC + 48 * i + 16 * t + 8 * (st % 2)
                A(f"v_mfma_f32_16x16x32_bf16 {v(r0,4)}, {a(b+4*t,4)}, {a(b+12+4*i,4)}, {v(r0,4) if st > 1 else 0}")
                if nxt:
                    for w in rd[:1]: gread(st + 1, w)
                A(f"v_mfma_f32_16x16x32_bf16 {v(r0+4,4)}, {a(b+4*((t+1)%3),4)}, {a(b+12+4*(1-i),4)}, {v(r0+4,4) if st > 1 else 0}")
                if nxt:
                    for w in rd[1:]: gread(st + 1, w)
            else:
                A(f"v_mfma_f32_32x32x16_bf16 {acc}, {a(b+4*t,4)}, {a(b+12+4*i,4)}, {acc if st else 0}")
                if nxt:
                    for w in rd: gread(st + 1, w)
            if sl < 2 and i == 1 and not cfg.get("gu_nocs"):
                A(f"v_mfma_f32_16x16x32_bf16 {a(CSA+4*t,4)}, {a(SEL,4)}, {a(b+4*t,4)}, {a(CSA+4*t,4) if st else 0}")
            if st == 36 and t == 2:
                A(f"ds_read_b64 {v(MB+2*i,2)}, v{T+7} offset:{256*i}"); lq.append("mb")
            if st == 38 and i == 1:
                x = T + 4
                A(f"v_accvgpr_read_b32 v7, a{CSA+4*t}")
                A(f"v_cvt_pk_bf16_f32 v{x+1}, v7, v7")
                A(f"v_and_b32 v{x+1}, 0xffff0000, v{x+1}")
                A(f"v_sub_f32 v7, v7, v{x+1}")
                A(f"v_cvt_pk_bf16_f32 v{x}, v{x+1}, v7")
                A(f"v_lshrrev_b32 v{x+1}, 16, v{x+1}")
                A(f"ds_write_b64 v{TRA}, {v(x,2)} offset:{512*t}"); lq.append("w")
        if st >= cfg.get('cwd0', 30) and wd3: emit(wd3.pop(0))
        if st == 37:
            A(f"s_mul_i32 s{sT0}, s{sFH}, 1536")
            A(f"s_lshl_b32 s{sT1}, s{sTH}, 8")
            A(f"s_add_u32 s{sT0}, s{sT0}, s{sT1}")
            A(f"s_add_u32 s{sT0}, s{sT0}, {L_CF}")
            A(f"v_and_b32 v{TRA}, 31, v0")
            A(f"v_lshlrev_b32 v{TRA}, 3, v{TRA}")
            A(f"v_add_u32 v{TRA}, s{sT0}, v{TRA}")
    A("s_waitcnt lgkmcnt(0)")
    for t in range(3):
        for i in range(2):
            acc = v(ACC + 48 * i + 16 * t, 16)
            A(f"v_mfma_f32_32x32x8_bf16 {acc}, {a(CFA+2*t,2)}, {v(MB+2*i,2)}, {acc}")
    if cfg.get("gts"):
        A("s_waitcnt lgkmcnt(0)")
        for c in range(9): A(f"s_sub_u32 s{91+c}, s{60+2*c}, s90")
    stamp(A, cfg, 8)
    A(f"s_and_b32 s{sB}, s{sTOK16}, -8")
    A(f"s_lshl_b32 s{sT0}, s{sTH}, 2")
    A(f"s_add_u32 s{sB}, s{sB}, s{sT0}")
    A(f"s_mul_i32 s{sB}, s{sB}, {192*256}")
    A(f"s_mul_i32 s{sT0}, s{sJ}, {12*256}")
    A(f"s_add_u32 s{sB}, s{sB}, s{sT0}")
    A(f"s_mul_i32 s{sT0}, s{sFH}, {6*256}")
    A(f"s_add_u32 s{sB}, s{sB}, s{sT0}")
    A(f"s_add_u32 s{sB}, s{sB}, {hex(WS_HID)}")
    A(f"s_add_u32 s{sT2}, s{sB}, {2*192*256}")
    def gu_epi(sc):
        for (i, t) in ((0, 0), (1, 0), (0, 1), (1, 1), (0, 2), (1, 2)):
            r = ACC + 48 * i + 16 * t
            for q in range(2):
                for b in range(4): A(f"v_max_f32 v{r+8*q+b}, 0, v{r+8*q+b}")
                for b in (0, 2): A(f"v_pk_mul_f32 {v(r+8*q+b,2)}, {v(r+8*q+b,2)}, {v(r+8*q+4+b,2)}")
            A(f"v_cvt_pk_bf16_f32 v{r}, v{r}, v{r+1}")
            A(f"v_cvt_pk_bf16_f32 v{r+1}, v{r+2}, v{r+3}")
            A(f"v_cvt_pk_bf16_f32 v{r+2}, v{r+8}, v{r+9}")
            A(f"v_cvt_pk_bf16_f32 v{r+3}, v{r+10}, v{r+11}")
            A(f"buffer_store_dwordx4 {v(r,4)}, v{VST}, s[{SWS}:{SWS+3}], s{sT2 if i else sB} offen offset:{512*t} {sc}")
    if cfg.get("wt", 3) & 2:
        gu_epi("sc1")
    else:
        A(f"s_cmp_lg_u32 s{sFAST}, 0")
        A("s_nop 4")
        A("s_cbranch_scc0 L_gu_epi_slow")
        gu_epi("")
    A.label("L_gu_epi_done")
    stamp(A, cfg, 9)
    A("s_branch L_gu_done")
    if not cfg.get("wt", 3) & 2:
        A.label("L_gu_epi_slow")
        gu_epi("sc1")
        A("s_branch L_gu_epi_done")

    A.label("L_gu_loader")
    WDL = cfg.get("wdl", "late")
    wo_tail(2)
    STV = 72
    A(f"v_and_b32 v3, 15, v0")
    A(f"v_lshlrev_b32 v3, 3, v3")
    A(f"v_lshl_add_u32 v3, v{G1}, 11, v3")
    A(f"v_lshl_add_u32 v3, v{Gh}, 10, v3")
    A(f"s_lshl_b32 s{sB}, s{sGT}, 11")
    A(f"s_add_u32 s{sB}, s{sB}, {hex(WS_ST2)}")
    A("s_waitcnt vmcnt(0)")
    readback(A, [(M8, [f"buffer_load_dword v7, v{vHP}, s[{SWS}:{SWS+3}], 0 offen"])])
    A("s_barrier")
    wdl = [op for stp in range(2, 8) for op in load_wd_ops(stp)][sum(EW):]
    WPL = cfg.get("wpl", [0,0,0,0,0,0,0,0,8,9,8])
    assert sum(WPL) == 30 - sum(EW)
    for _ in range(WPL[0]): emit(wdl.pop(0))

    A("s_barrier")
    ops = []
    for op in h_dma_ops(0)[2:] + h_dma_ops(1): emit(op)
    ops += [("h", 0)] * 2 + [("h", 1)] * 4
    if cfg.get("st_ld", 0) == -1:
        for i in range(8): A(f"buffer_load_dwordx2 {v(STV+2*i,2)}, v3, s[{SWS}:{SWS+3}], s{sB} offen offset:{128*i} sc1")
        ops += ["st"] * 8
    A(f"s_setprio {cfg.get('lprio', 0)}")
    for c in range(10):
        need = [("h", c)] + ([("w", c)] if c >= 4 else [])
        A(f"s_waitcnt vmcnt({len(ops) - 1 - max(i for i, o in enumerate(ops) if o in need)})")
        A("s_barrier")
        vops = []
        if c + 2 < 10:
            vops += h_dma_ops(c + 2); ops += [("h", c + 2)] * 4
        if c + 3 < 10 and c > 0:
            vops += gu_dma_ops(c + 3); ops += [("w", c + 3)] * 6
        if c == cfg.get("st_ld", 0):
            vops += [[f"buffer_load_dwordx2 {v(STV+2*i,2)}, v3, s[{SWS}:{SWS+3}], s{sB} offen offset:{128*i} sc1"] for i in range(8)]
            ops += ["st"] * 8
        for _ in range(WPL[c + 1]):
            vops.append(wdl.pop(0)); ops.append("d")
        for op in vops: emit(op)
        if c == cfg.get('st_at', 3):
            A(f"s_waitcnt vmcnt({len(ops) - 1 - max(i for i, o in enumerate(ops) if o == 'st')})")
            A(f"s_setprio {cfg.get('sprio', 3)}")
            for i in range(1, 8):
                A(f"v_add_f32 v{STV}, v{STV}, v{STV+2*i}")
                A(f"v_add_f32 v{STV+1}, v{STV+1}, v{STV+2*i+1}")
            for r in (STV, STV + 1):
                A(f"v_mov_b32 v{STV+2}, v{r}")
                A(f"v_permlane32_swap_b32 v{r}, v{STV+2}")
                A(f"v_add_f32 v{r}, v{r}, v{STV+2}")
            mean, rs = STV, STV + 1
            A(f"v_mul_f32 v{mean}, {fhex(1/640)}, v{mean}")
            A(f"v_mul_f32 v{rs}, {fhex(1/640)}, v{rs}")
            A(f"v_fma_f32 v{rs}, -v{mean}, v{mean}, v{rs}")
            A(f"v_max_f32 v{rs}, 0, v{rs}")
            A(f"v_add_f32 v{rs}, {fhex(1e-5)}, v{rs}")
            A(f"v_rcp_f32 v{rs}, v{rs}")
            A(f"v_cvt_pk_bf16_f32 v{STV+2}, -v{mean}, -v{mean}")
            A(f"v_and_b32 v{STV+3}, 0xffff0000, v{STV+2}")
            A(f"v_sub_f32 v{STV+3}, -v{mean}, v{STV+3}")
            A(f"v_cvt_pk_bf16_f32 v{STV+3}, v{STV+3}, 0")
            A(f"v_and_b32 v{STV+4}, 31, v0")
            A(f"s_lshl_b32 s{sT0}, s{sLW}, 5")
            A(f"v_add_u32 v{STV+4}, s{sT0}, v{STV+4}")
            A(f"v_lshlrev_b32 v{STV+5}, 3, v{STV+4}")
            A(f"v_lshlrev_b32 v{STV+4}, 2, v{STV+4}")
            A(f"v_add_u32 v{STV+5}, {L_MB}, v{STV+5}")
            A(f"v_add_u32 v{STV+4}, {L_RS}, v{STV+4}")
            A(f"ds_write_b64 v{STV+5}, {v(STV+2,2)}")
            A(f"ds_write_b32 v{STV+4}, v{rs}")
            A("s_setprio 0")
        if c == cfg.get('st_at', 3): A("s_waitcnt lgkmcnt(0)")
    A("s_barrier")
    if cfg.get("wbl2", 0) & 1:
        A(f"s_add_u32 s{sT0}, s{sM}, s{sWAVE}")
        A(f"s_cmp_lg_u32 s{sT0}, 4")
        A("s_cbranch_scc1 L_nowb1")
        A("buffer_wbl2 sc1")
        A.label("L_nowb1")
    A("s_setprio 0")
    A.label("L_gu_done")

    NBD = cfg.get("nbd", 6)
    BF, ACC = 16, 72
    vXP, vXS, RA, vRS = 1, 2, 5, T + 7
    sBT = (sKSRC, sVSRC, sKBASE, sVBASE)
    vPW = (T + 2, T + 3, T + 4, None, T + 5, T + 6, T, T + 1)
    A(f"s_lshl_b32 s{sT1}, s{sWDRAW}, 10")
    A(f"s_add_u32 s{sT1}, s{sT1}, {hex(WS_HID)}")
    for k in range(4):
        A(f"s_xor_b32 s{sT0}, s{sLW}, {3-k}")
        A(f"s_add_u32 s{sBT[k]}, s{sT0}, s{sTOK16}")
        A(f"s_mul_i32 s{sBT[k]}, s{sBT[k]}, {192*256}")
        A(f"s_add_u32 s{sBT[k]}, s{sBT[k]}, s{sT1}")
        A(f"s_mul_i32 s{sT0}, s{sT0}, 5120")
        A(f"s_add_u32 s{sT0}, s{sT0}, {(6-k)*20480}")
        if k < 2:
            A(f"v_add_u32 v{vPW[4+k]}, s{sT0}, v{R.L16}")
            A(f"v_subrev_u32 v{vPW[k]}, {4*20480}, v{vPW[4+k]}")
        else:
            A(f"s_mov_b32 s{97+k-2}, s{sT0}")
    A(f"s_and_b32 s{sT0}, s{sTOK16}, 7")
    A(f"s_add_u32 s{sT0}, s{sT0}, s{sLW}")
    A(f"s_lshl_b32 s{sT0}, s{sT0}, 6")
    A(f"s_add_u32 s{sT0}, s{sT0}, {L_RS}")
    A(f"v_and_b32 v{vRS}, 15, v0")
    A(f"v_lshlrev_b32 v{vRS}, 2, v{vRS}")
    A(f"v_add_u32 v{vRS}, s{sT0}, v{vRS}")
    A(f"ds_read_b32 v{vRS}, v{vRS}")
    addr_rowmajor(A, vXP, vXS, T)
    reduce_addr(A, 7, 0, RA)
    A("s_waitcnt lgkmcnt(0)")
    A(f"s_cmp_ge_u32 s{sWAVE}, 4")
    A("s_cbranch_scc1 L_dn_nw")
    if cfg.get("rb", 0) & 2:
        A("s_mov_b32 exec_lo, 0x01010101")
        A("s_mov_b32 exec_hi, 0x01010101")
        nrb = cfg.get("nrb", 6)
        for k, (i, t) in enumerate(((0, 0), (1, 0), (0, 1), (1, 1), (0, 2), (1, 2))):
            if k < nrb:
                A("s_waitcnt vmcnt(5)")
                A(f"buffer_load_dword v59, v{VST}, s[{SWS}:{SWS+3}], s{sT2 if i else sB} offen offset:{512*t} sc1")
        if nrb < 6: A(f"s_waitcnt vmcnt({nrb})")
        A("s_mov_b64 exec, -1")
    else:
        A("s_waitcnt vmcnt(0)")
    A.label("L_dn_nw")
    sync(A, 2, 0, True, 63)
    stamp(A, cfg, 10)
    BSL = lambda i: 16 + 4 * i if i < 6 else 60 + 4 * (i - 6)
    def dn_main(NS, NBD, sub):
        keep = [f for f in range(5) if FSUB(f) == sub]
        order = [f for f in range(5) if f not in keep] + keep
        def loadBd(q):
            k, st = divmod(q, NS)
            if st == 4: A(f"s_add_u32 s{sBT[k]}, s{sBT[k]}, 4096")
            A(f"buffer_load_dwordx4 {v(BSL(q%NBD),4)}, v{R.L16}, s[{SWS}:{SWS+3}], s{sBT[k]} offen offset:{(st%4)*1024} sc1")
        NI = min(NBD, cfg.get("nbi", 4))
        for q in range(NI): loadBd(q)
        issued = NI
        A(f"v_add_u32 v{vPW[6]}, s97, v{R.L16}")
        A(f"v_subrev_u32 v{vPW[2]}, {4*20480}, v{vPW[6]}")
        A(f"v_add_u32 v{vPW[7]}, s98, v{R.L16}")
        for q in range(NI, NBD): loadBd(q)
        issued = NBD
        pend = []
        for q in range(4 * NS):
            k, st = divmod(q, NS)
            A(f"s_waitcnt vmcnt({issued - 1 - q})")
            for f in order:
                acc = v(ACC + 20 * (k % 2) + 4 * f, 4)
                A(f"v_mfma_f32_16x16x32_bf16 {acc}, {WD(st, f)}, {v(BSL(q%NBD),4)}, {acc if st else 0}")
            if issued < 4 * NS:
                loadBd(issued); issued += 1
            for _ in range(2 if NS == 4 else 1):
                if pend: A(pend.pop(0))
            if st == NS - 1:
                assert not pend
                pend = [f"ds_write_b128 v{vPW[k if f in keep else 4+k]}, {v(ACC+20*(k%2)+4*f,4)} offset:{f*1024}" for f in order if k < 3 or f not in keep]
        for x in pend: A(x)
        stamp(A, cfg, 11)
        return [ACC + 20 + 4 * f for f in keep]
    def dn_tail(n, own):
        DD = 8
        A(f"v_mov_b32 v3, v{vRS}")
        A("s_waitcnt lgkmcnt(0)")
        A("s_barrier")
        reduce_sum(A, 7, DD, RA, n, own)
        for i in range(2 * n):
            r = own[i // 2] + 2 * (i % 2)
            A(f"v_accvgpr_read_b32 v{T+2}, a{A_RES(i)}")
            A(f"v_lshlrev_b32 v{T}, 16, v{T+2}")
            A(f"v_and_b32 v{T+1}, 0xffff0000, v{T+2}")
            A(f"v_fma_f32 v{r}, v{r}, v3, v{T}")
            A(f"v_fma_f32 v{r+1}, v{r+1}, v3, v{T+1}")
            A(f"v_cvt_pk_bf16_f32 v{D+i}, v{r}, v{r+1}")
            if i == 3: A(f"buffer_store_dwordx4 {v(D,4)}, v{vXP}, s[{SO}:{SO+3}], 0 offen {cfg.get('ost', '')}")
        if n == 3: A(f"buffer_store_dwordx2 {v(D+4,2)}, v{vXS}, s[{SO}:{SO+3}], 0 offen {cfg.get('ost', '')}")
    A(f"s_cmp_ge_u32 s{sWAVE}, 4")
    A("s_cbranch_scc1 L_dn_b")
    dn_tail(3, dn_main(4, cfg.get("nbd_c", 5), 0))
    A("s_branch L_dn_e")
    A.label("L_dn_b")
    A(f"s_setprio {cfg.get('dprio', 1)}")
    dn_tail(2, dn_main(8, cfg.get("nbd_l", 8), 1))
    A.label("L_dn_e")
    stamp(A, cfg, 12)
    if cfg.get("gts"):
        for c in range(9):
            A(f"s_mov_b32 s{60+2*c}, s{91+c}")
            A(f"s_mov_b32 s{61+2*c}, s{91+c}")
    stamp_flush(A, cfg, 13, 4, SWS, sWAVE, cfg.get('tswave', 0))
    if cfg.get("diag"):
        da, db = cfg["diag"]
        A("s_cmp_ge_u32 s2, 8" if cfg.get("fixed") else "s_cmp_lg_u32 s2, 16")
        A("s_cbranch_scc1 L_end")
        A(f"s_cmp_lg_u32 s{sWAVE}, 0")
        A("s_cbranch_scc1 L_end")
        if da == -1:
            A("v_mov_b32 v1, 0")
            A(f"s_mov_b32 s{sT0}, {hex(WS_TS)}")
            A(f"buffer_load_dword v2, v1, s[{SWS}:{SWS+3}], s{sT0} offen")
            A("s_waitcnt vmcnt(0)")
            A(f"v_readfirstlane_b32 s{sT0}, v2")
        else:
            A(f"s_mov_b32 s{sT0}, s{60+2*da}")
        if cfg.get("fixed"):
            A(f"s_add_u32 s{sT0}, s{sT0}, {cfg['fixed']}")
            if cfg.get("wb"):
                A("buffer_wbl2 sc1")
        else:
            A(f"s_sub_u32 s{sT0}, s{60+2*db}, s{sT0}")
            A(f"s_min_u32 s{sT0}, s{sT0}, 20000")
            A(f"s_lshl_b32 s{sT0}, s{sT0}, 2")
            A(f"s_add_u32 s{sT0}, s{sT0}, s{60+2*12}")
        A.label("L_spin")
        A("s_memrealtime s[56:57]")
        A("s_waitcnt lgkmcnt(0)")
        A(f"s_sub_u32 s{sT1}, s56, s{sT0}")
        A(f"s_cmp_lt_i32 s{sT1}, 0")
        A("s_cbranch_scc1 L_spin")
    A.label("L_end")
    A("s_endpgm")

    A.label("L_attn_slow")
    A(f"v_subrev_u32 v{R.VA}, {KV_BASE + 1280}, v{R.VA}")
    A(f"v_mov_b32 v{R.Q2+1}, 0")
    A(f"v_mov_b32 v{T}, 0xff800000")
    A(f"s_mov_b32 s{sT0}, s{sKBASE}")
    A(f"s_add_u32 s{sT1}, s{sKBASE}, {PAIR_STRIDE}")
    A.label("L_attn_slow1")
    A(f"buffer_load_dwordx4 {v(R.K1,4)}, v{R.F2S+1}, s[{SWS}:{SWS+3}], s{sT0} offen")
    A(f"buffer_load_dword v{R.K2}, v{R.F2S}, s[{SWS}:{SWS+3}], s{sT0} offen")
    A("s_waitcnt vmcnt(0)")
    A(f"v_mfma_f32_32x32x16_bf16 {v(S0,16)}, {v(R.K1,4)}, {v(R.Q1,4)}, 0")
    A(f"v_mfma_f32_32x32x8_bf16 {v(S0,16)}, {v(R.K2,2)}, {v(R.Q2,2)}, {v(S0,16)}")
    max16(A, T, S0, False)
    A(f"s_add_u32 s{sT0}, s{sT0}, 2560")
    A(f"s_cmp_lt_u32 s{sT0}, s{sT1}")
    A("s_cbranch_scc1 L_attn_slow1")
    xhalf_max(A, T, T+1)
    set_shift(A, T)
    for k in range(16): A(f"v_mov_b32 v{R.O+k}, 0")
    A(f"s_mov_b32 s{sT0}, s{sKBASE}")
    A(f"s_mov_b32 s{sT2}, s{sVBASE}")
    A.label("L_attn_slow2")
    A(f"buffer_load_dwordx4 {v(R.K1,4)}, v{R.F2S+1}, s[{SWS}:{SWS+3}], s{sT0} offen")
    A(f"buffer_load_dword v{R.K2}, v{R.F2S}, s[{SWS}:{SWS+3}], s{sT0} offen")
    A(f"s_mov_b64 exec, s[{sVMASK}:{sVMASK+1}]")
    A(f"buffer_load_dwordx4 {v(R.V1,4)}, v{R.VA}, s[{SWS}:{SWS+3}], s{sT2} offen")
    A(f"buffer_load_dwordx4 {v(R.V2,4)}, v{R.VA}, s[{SWS}:{SWS+3}], s{sT2} offen offset:640")
    A("s_mov_b64 exec, -1")
    A("s_waitcnt vmcnt(0)")
    A(f"v_mfma_f32_32x32x16_bf16 {v(S0,16)}, {v(R.K1,4)}, {v(R.Q1,4)}, 0")
    A(f"v_mfma_f32_32x32x8_bf16 {v(S0,16)}, {v(R.K2,2)}, {v(R.Q2,2)}, {v(S0,16)}")
    for k in range(16): A(f"v_exp_f32 v{S0+k}, v{S0+k}")
    for k in range(8): A(f"v_cvt_pk_bf16_f32 v{R.P+k}, v{S0+2*k}, v{S0+2*k+1}")
    A(f"v_mfma_f32_32x32x16_bf16 {v(R.O,16)}, {v(R.V1,4)}, {v(R.P,4)}, {v(R.O,16)}")
    A(f"v_mfma_f32_32x32x16_bf16 {v(R.O,16)}, {v(R.V2,4)}, {v(R.P+4,4)}, {v(R.O,16)}")
    A(f"s_add_u32 s{sT0}, s{sT0}, 2560")
    A(f"s_add_u32 s{sT2}, s{sT2}, 1280")
    A(f"s_cmp_lt_u32 s{sT0}, s{sT1}")
    A("s_nop 7")
    A("s_cbranch_scc1 L_attn_slow2")
    A(f"v_rcp_f32 v{T}, v{R.O+10}")
    norm()
    A("s_nop 1")
    A("s_branch L_attn_norm")
    A.label("L_code_end")
    return dict(name=name, grid=256, block=512, lds=163840, desc=kernel_desc(name, 256, NV))
```

```python
from common import *

def gen_qkv(A, cfg):
    name = "qkv_kernel"
    kstart(A, name)
    SX, SW, SWS, SP, SD = 4, 8, 12, 36, 48
    sWAVE, sTB, sFG, sXO, sXLIM, sWO, sT0, sT1, sT2, sM0 = 16, 17, 18, 19, 20, 21, 22, 23, 24, 25
    sTILE, sBASE, sQS, sC0, sID = 26, 27, 28, 30, 31
    vTR = 4
    vT = 8
    SLOT = 32768
    CSL = SLOT
    STL = SLOT + 2048
    A("s_cmp_ge_u32 s2, 256")
    A("s_cbranch_scc1 L_qkv_end")
    A("s_load_dwordx4 s[4:7], s[0:1], 0")
    A("s_load_dwordx4 s[48:51], s[0:1], 64")
    A("s_load_dwordx2 s[32:33], s[0:1], 16")
    A("s_load_dwordx2 s[34:35], s[0:1], 48")
    stamp(A, cfg, 0)
    if cfg.get("diag"): A("s_memrealtime s[56:57]")
    A(f"v_lshrrev_b32 v{vT}, 6, v0")
    A(f"s_cmp_lt_u32 s2, 16")
    A(f"v_readfirstlane_b32 s{sWAVE}, v{vT}")
    A("s_cbranch_scc1 L_qkv_helper")
    A(f"v_and_b32 v0, 63, v0")
    A(f"s_sub_u32 s{sID}, s2, 16")
    A(f"s_and_b32 s{sT0}, s{sID}, 7")
    A(f"s_lshr_b32 s{sT1}, s{sID}, 3")
    A(f"s_lshr_b32 s{sT2}, s{sT0}, 2")
    A(f"s_mul_i32 s{sT2}, s{sT2}, 30")
    A(f"s_add_u32 s{sT1}, s{sT1}, s{sT2}")
    A(f"s_lshr_b32 s{sFG}, s{sT1}, 2")
    A(f"s_and_b32 s{sT1}, s{sT1}, 3")
    A(f"s_and_b32 s{sT2}, s{sT0}, 3")
    A(f"s_lshl_b32 s{sT2}, s{sT2}, 2")
    A(f"s_add_u32 s{sTB}, s{sT2}, s{sT1}")
    A(f"s_cmp_ge_u32 s{sWAVE}, 4")
    A("s_cbranch_scc1 L_qkv_loader")

    def tr_addr(permuted, tiles):
        rho, cc, g1, kh, base = vT, vT+1, vT+2, vT+3, vT+4
        A(f"v_bfe_u32 v{rho}, v0, 2, 2")
        A(f"v_bfe_u32 v{g1}, v0, 4, 1")
        A(f"v_lshrrev_b32 v{kh}, 5, v0")
        A(f"v_lshl_add_u32 v{base}, v{kh}, 3, v{rho}")
        A(f"v_lshlrev_b32 v{base}, 8, v{base}")
        A(f"v_lshl_add_u32 v{base}, v{g1}, 5, v{base}")
        if permuted:
            A(f"v_and_b32 v{cc}, 1, v0")
            A(f"v_lshl_add_u32 v{base}, v{cc}, 4, v{base}")
            A(f"v_bfe_u32 v{cc}, v0, 1, 1")
            A(f"v_lshl_add_u32 v{base}, v{cc}, 3, v{base}")
        else:
            A(f"v_and_b32 v{cc}, 3, v0")
            A(f"v_lshl_add_u32 v{base}, v{cc}, 3, v{base}")
        for j, t in enumerate(tiles):
            A(f"v_xor_b32 v{vTR+j}, {t}, v{rho}")
            A(f"v_lshl_add_u32 v{vTR+j}, v{vTR+j}, 6, v{base}")
    def rebase(c):
        def base(c): return ((c % 5) // 2) * 2 * SLOT
        return (base(c) - base(c - 1) if c else 0), (c % 5) * SLOT - base(c)

    ACC, FR, vBA, vADR, vST = 16, 80, 112, 116, 120
    sFH2 = 29
    A(f"s_and_b32 s{sT0}, s{sWAVE}, 1")
    A(f"s_and_b32 s{sFH2}, s{sWAVE}, 2")
    sJ0, sJ1 = 44, 45
    A(f"s_mov_b32 s{sJ0}, s{sWAVE}")
    A(f"s_xor_b32 s{sJ1}, s{sWAVE}, 1")
    A(f"s_lshl_b32 s{sTILE}, s{sTB}, 1")
    A(f"s_add_u32 s{sTILE}, s{sTILE}, s{sT0}")
    A(f"s_lshl_b32 s{sTILE}, s{sTILE}, 1")
    A(f"s_lshl_b32 s{sT0}, s{sT0}, 13")
    A(f"s_add_u32 s{sT0}, s{sT0}, 16384")
    A(f"v_and_b32 v{vT}, 31, v0")
    A(f"v_lshrrev_b32 v{vT+1}, 5, v0")
    A(f"v_bfe_u32 v{vT+2}, v0, 1, 3")
    A(f"v_xor_b32 v{vT+1}, v{vT+1}, v{vT+2}")
    A(f"v_lshlrev_b32 v{vT}, 7, v{vT}")
    A(f"v_lshl_add_u32 v{vT}, v{vT+1}, 4, v{vT}")
    A(f"v_add_u32 v{vBA}, s{sT0}, v{vT}")
    for st in range(1, 4): A(f"v_xor_b32 v{vBA+st}, {32*st}, v{vBA}")
    CSA, ONE, SEL, SF, SUM, SQ, vSB = 152, 160, 164, 168, 184, 192, 200
    MB, RS = 204, 208
    VO, PF, L16 = 120, 128, 2
    sU, sPSRC, sPDST, sPLDS = 40, 41, 42, 43
    def prep_setup():
        A(f"s_mul_i32 s{sU}, s{sWAVE}, 240")
        A(f"s_add_u32 s{sU}, s{sU}, s{sID}")
        A(f"v_lshlrev_b32 v{L16}, 4, v0")
        A(f"s_lshl_b32 s{sPLDS}, s{sWAVE}, 13")
        for jj in range(5):
            A(f"v_add_u32 v{vT}, {64*jj}, v0")
            A(f"v_mul_u32_u24 v{PF+jj}, 6554, v{vT}")
            A(f"v_lshrrev_b32 v{PF+jj}, 16, v{PF+jj}")
            A(f"v_mul_u32_u24 v{vT+1}, 10, v{PF+jj}")
            A(f"v_sub_u32 v{vT}, v{vT}, v{vT+1}")
            A(f"v_lshlrev_b32 v{VO+jj}, 4, v{vT}")
        A(f"s_cmp_ge_u32 s{sU}, 384")
        A("s_cbranch_scc1 L_qkv_pwo")
        srd(A, SP, 34, 1536 * 640 * 2)
        A(f"s_mul_i32 s{sT0}, s{sU}, 1366")
        A(f"s_lshr_b32 s{sT0}, s{sT0}, 16")
        A(f"s_mul_i32 s{sT1}, s{sT0}, 48")
        A(f"s_sub_u32 s{sT1}, s{sU}, s{sT1}")
        A(f"s_mul_i32 s{sPSRC}, s{sT1}, {32*1280}")
        A(f"s_mul_i32 s{sT0}, s{sT0}, 160")
        A(f"s_add_u32 s{sPSRC}, s{sPSRC}, s{sT0}")
        A(f"s_mul_i32 s{sPDST}, s{sU}, 5120")
        A(f"s_add_u32 s{sPDST}, s{sPDST}, {hex(WS_WD)}")
        A("s_branch L_qkv_pgo")
        A.label("L_qkv_pwo")
        srd(A, SP, 32, 640 * 640 * 2)
        A(f"s_sub_u32 s{sU}, s{sU}, 384")
        A(f"s_mul_i32 s{sT0}, s{sU}, 3277")
        A(f"s_lshr_b32 s{sT0}, s{sT0}, 16")
        A(f"s_mul_i32 s{sT1}, s{sT0}, 20")
        A(f"s_sub_u32 s{sT1}, s{sU}, s{sT1}")
        A(f"s_mul_i32 s{sPSRC}, s{sT0}, 160")
        A(f"s_mul_i32 s{sT0}, s{sT1}, 205")
        A(f"s_lshr_b32 s{sT0}, s{sT0}, 10")
        A(f"s_mul_i32 s{sT2}, s{sT0}, 5")
        A(f"s_sub_u32 s{sT1}, s{sT1}, s{sT2}")
        A(f"s_mul_i32 s{sT0}, s{sT0}, {160*1280}")
        A(f"s_add_u32 s{sPSRC}, s{sPSRC}, s{sT0}")
        A(f"s_mul_i32 s{sPDST}, s{sU}, 5120")
        A(f"s_add_u32 s{sPDST}, s{sPDST}, {hex(WS_WO)}")
        A(f"s_cmp_ge_u32 s{sU}, 160")
        A(f"s_cselect_b32 s{sPDST}, {hex(WS_SIZE)}, s{sPDST}")
        A(f"s_cselect_b32 s{SP+2}, 0, s{SP+2}")
        A(f"s_cmp_eq_u32 s{sT1}, 4")
        A("s_cbranch_scc1 L_qkv_pleft")
        A(f"s_mul_i32 s{sT1}, s{sT1}, {40*1280}")
        A(f"s_add_u32 s{sPSRC}, s{sPSRC}, s{sT1}")
        for jj in range(5):
            A(f"v_lshrrev_b32 v{vT}, 4, v{PF+jj}")
            A(f"v_lshl_add_u32 v{PF+jj}, v{vT}, 2, v{PF+jj}")
        A("s_branch L_qkv_pgo")
        A.label("L_qkv_pleft")
        for jj in range(5):
            k = PF + jj
            A(f"v_lshrrev_b32 v{vT}, 2, v{k}")
            A(f"v_lshl_add_u32 v{k}, v{vT}, 4, v{k}")
            A(f"v_add_u32 v{k}, 16, v{k}")
        A.label("L_qkv_pgo")
        for jj in range(5):
            A(f"v_mul_u32_u24 v{vT}, 1280, v{PF+jj}")
            A(f"v_add_u32 v{VO+jj}, v{VO+jj}, v{vT}")
        A(f"v_lshrrev_b32 v{vT}, 4, v0")
        A(f"v_bfe_u32 v{vT+1}, v0, 2, 2")
        A(f"v_lshl_add_u32 v{vT}, v{vT}, 3, v{vT+1}")
        A(f"v_mul_u32_u24 v{vT}, 160, v{vT}")
        A(f"v_add_u32 v{vT}, s{sPLDS}, v{vT}")
        A(f"v_and_b32 v{vT+1}, 3, v0")
        A(f"v_lshl_add_u32 v{VO+5}, v{vT+1}, 4, v{vT}")
        A(f"v_lshl_add_u32 v{VO+6}, v{vT+1}, 3, v{vT}")
    A("s_waitcnt lgkmcnt(0)")
    cfg = dict(cfg); cfg["q_prep"] = 100
    srd(A, SWS, 50, WS_SIZE)
    if cfg.get("diag"):
        A(f"s_cmp_eq_u32 s2, 16")
        A(f"s_mov_b32 s{sT0}, {hex(WS_TS)}")
        A(f"s_cselect_b32 s{sT0}, s{sT0}, {hex(WS_SIZE)}")
        A(f"v_mov_b32 v{vT}, s56")
        A(f"v_mov_b32 v{vT+1}, 0")
        A(f"buffer_store_dword v{vT}, v{vT+1}, s[{SWS}:{SWS+3}], s{sT0} offen")
    A(f"v_lshrrev_b32 v{vT}, 2, v0")
    A(f"v_xor_b32 v{vT}, v{vT}, v0")
    A(f"v_and_b32 v{vT}, 4, v{vT}")
    A(f"v_cmp_eq_u32 vcc, 0, v{vT}")
    for i in range(4): A(f"v_mov_b32 v{ONE+i}, 0x3f803f80")
    for i in range(4): A(f"v_cndmask_b32 v{SEL+i}, 0, v{ONE}, vcc")
    A(f"s_and_b32 s{sT0}, s{sWAVE}, 1")
    A(f"s_lshl_b32 s{sT0}, s{sT0}, 13")
    A(f"s_lshl_b32 s{sT1}, s{sFH2}, 11")
    A(f"s_add_u32 s{sT0}, s{sT0}, s{sT1}")
    A(f"s_add_u32 s{sT0}, s{sT0}, 16384")
    A(f"v_and_b32 v{vT}, 15, v0")
    A(f"v_lshrrev_b32 v{vT+1}, 4, v0")
    A(f"v_bfe_u32 v{vT+2}, v0, 1, 3")
    A(f"v_xor_b32 v{vT+1}, v{vT+1}, v{vT+2}")
    A(f"v_lshlrev_b32 v{vT}, 7, v{vT}")
    A(f"v_lshl_add_u32 v{vT}, v{vT+1}, 4, v{vT}")
    A(f"v_add_u32 v{vSB}, s{sT0}, v{vT}")
    A(f"v_xor_b32 v{vSB+1}, 64, v{vSB}")
    HS = cfg.get("hstat", 1)
    vSA = SUM
    if HS:
        srd(A, SD, SD, 256)
        A(f"s_lshl_b32 s{sXO}, s{sTB}, 11")
        A(f"s_add_u32 s{sXO}, s{sXO}, {hex(WS_ST1)}")
        A(f"s_and_b32 s{sT0}, s{sWAVE}, 1")
        A(f"s_lshl_b32 s{sT0}, s{sT0}, 6")
        A(f"v_and_b32 v{vT}, 31, v0")
        A(f"v_add_u32 v{vT}, s{sT0}, v{vT}")
        A(f"v_lshlrev_b32 v{vSA}, 3, v{vT}")
        A(f"v_cmp_gt_u32 vcc, 32, v0")
        A(f"v_mov_b32 v{vT+1}, 0x7f000000")
        A(f"v_cndmask_b32 v{vSA}, v{vT+1}, v{vSA}, vcc")
        A(f"v_lshlrev_b32 v{vSA+1}, 2, v{vT}")
        A(f"v_lshrrev_b32 v{vT}, 5, v0")
        A(f"v_lshlrev_b32 v{vT}, 2, v{vT}")
        A(f"v_add_u32 v{vT}, s{sT0}, v{vT}")
        A(f"v_lshlrev_b32 v{vSA+2}, 2, v{vT}")
        A(f"v_mov_b32 v{vSA+3}, 0")
        A(f"s_lshl_b32 s{sXLIM}, s{sTB}, 4")
    A(f"s_cmp_ge_u32 s{sFG}, 10")
    A("s_cbranch_scc1 L_qkv_V")

    STF = cfg.get("qkv_st", "sc1")
    def mainloop(isV):
        q = []
        def reads(st):
            c, sl = divmod(st, 4)
            _, so = rebase(c)
            b = FR + 16 * (st % 2)
            out = []
            for u in range(2): out.append((f"ds_read_b64_tr_b16 {v(b+2*u,2)}, v{vTR} offset:{so + (16*sl+4*u)*256}", (st, "A0")))
            out.append((f"ds_read_b128 {v(b+8,4)}, v{vBA+sl} offset:{so}", (st, "B0")))
            out.append((f"ds_read_b128 {v(b+12,4)}, v{vBA+sl} offset:{so + 4096}", (st, "B1")))
            for u in range(2): out.append((f"ds_read_b64_tr_b16 {v(b+4+2*u,2)}, v{vTR+1} offset:{so + (16*sl+4*u)*256}", (st, "A1")))
            if not HS: out.append((f"ds_read_b128 {v(SF+4*(st%2),4)}, v{vSB+(sl>>1)} offset:{so + 2048*(st%2)}", (st, "S")))
            return out
        def issue(r): A(r[0]); q.append(r[1])
        def wait(tag): A(f"s_waitcnt lgkmcnt({len(q) - 1 - max(i for i, x in enumerate(q) if x == tag)})")
        A("s_barrier")
        for r in reads(0): issue(r)
        stamp(A, cfg, 1)
        for st in range(40):
            nxt = st + 1 < 40
            if st % 4 == 3 and nxt:
                A("s_barrier")
                if cfg.get("qts"): A(f"s_memtime s[{70+2*(st//4)}:{71+2*(st//4)}]")
                d, _ = rebase((st + 1) // 4)
                if d:
                    for r in (vTR, vTR + 1, vBA, vBA + 1, vBA + 2, vBA + 3, vSB, vSB + 1): A(f"v_add_u32 v{r}, {d & 0xffffffff}, v{r}")
            rs = reads(st + 1) if nxt else []
            b = FR + 16 * (st % 2)
            sf = v(SF + 4 * (st % 2), 4); su = v(SUM + 4 * (st % 2), 4); sq = v(SQ + 4 * (st % 2), 4)
            for k, (i, j, tag, nr) in enumerate(((0, 0, "B0", 2), (1, 0, "B1", 2), (0, 1, "A1" if HS else "S", 2), (1, 1, None, 1))):
                if tag: wait((st, tag))
                af = v(b + 4 * j, 4); xf = v(b + 8 + 4 * i, 4); acc = v(ACC + 32 * i + 16 * j, 16); c = acc if st else "0"
                if isV: A(f"v_mfma_f32_32x32x16_bf16 {acc}, {xf}, {af}, {c}")
                else:   A(f"v_mfma_f32_32x32x16_bf16 {acc}, {af}, {xf}, {c}")
                for _ in range(nr):
                    if rs: issue(rs.pop(0))
                if k == 1: A(f"v_mfma_f32_16x16x32_bf16 {v(CSA,4)}, {v(SEL,4)}, {v(b,4)}, {v(CSA,4) if st else 0}")
                if k == 2 and not HS: A(f"v_mfma_f32_16x16x32_bf16 {su}, {v(ONE,4)}, {sf}, {su if st > 1 else 0}")
                if k == 3 and not HS: A(f"v_mfma_f32_16x16x32_bf16 {sq}, {sf}, {sf}, {sq if st > 1 else 0}")
            if HS and st == cfg.get("q_fl", 35):
                A(f"buffer_load_dword v{vT}, v{vSA+3}, s[{SD}:{SD+3}], s{sXLIM} offen sc1")
            if HS and st == cfg.get("q_fc", 39):
                LP, LD = A.newlabel("qp"), A.newlabel("qd")
                A(f"s_mov_b32 s{sT1}, 0")
                A.label(LP)
                A("s_waitcnt vmcnt(0)")
                A(f"v_cmp_eq_u32 vcc, 0, v{vT}")
                A(f"s_add_u32 s{sT1}, s{sT1}, 1")
                A(f"s_cmp_lt_u32 s{sT1}, 0x40000")
                A(f"s_cselect_b64 vcc, vcc, 0")
                A(f"s_cbranch_vccz {LD}")
                A(f"buffer_load_dword v{vT}, v{vSA+3}, s[{SD}:{SD+3}], s{sXLIM} offen sc1")
                A(f"s_branch {LP}")
                A.label(LD)
                for i in range(2): A(f"buffer_load_dwordx2 {v(MB+2*i,2)}, v{vSA}, s[{SWS}:{SWS+3}], s{sXO} offen offset:{256*i} sc1")
                if isV:
                    for i in range(2):
                        for aa in range(4): A(f"buffer_load_dwordx4 {v(vST+16*i+4*aa,4)}, v{vSA+2}, s[{SWS}:{SWS+3}], s{sXO} offen offset:{1024 + 128*i + 32*aa} sc1")
                else:
                    for i in range(2): A(f"buffer_load_dword v{RS+i}, v{vSA+1}, s[{SWS}:{SWS+3}], s{sXO} offen offset:{1024 + 128*i} sc1")
            if st == cfg.get("q_prep", 5):
                A("s_waitcnt vmcnt(0)")
                for f in range(5):
                    for u in range(2):
                        A(f"ds_read_b64_tr_b16 {v(PF+4*f+2*u,2)}, v{VO+5+(f==4)} offset:{4*u*160 + tile_col_imm(f)}"); q.append("p")
            if st == cfg.get("q_prep", 5) + 1:
                wait("p")
            if cfg.get("q_prep", 5) + 1 <= st <= cfg.get("q_prep", 5) + 5:
                f = st - cfg.get("q_prep", 5) - 1
                A(f"s_add_u32 s{sT0}, s{sPDST}, {f*1024}")
                A(f"buffer_store_dwordx4 {v(PF+4*f,4)}, v{L16}, s[{SWS}:{SWS+3}], s{sT0} offen {STF}")
        stamp(A, cfg, 2)

    def correction(isV):
        cs = CSA
        t0, t1, t2, t3 = vT, vT+1, vT+2, vT+3
        A(f"s_lshl_b32 s{sT0}, s{sJ0}, 9")
        A(f"s_lshl_b32 s{sT1}, s{sJ1}, 9")
        A(f"v_lshlrev_b32 v{t0}, 3, v0")
        A(f"v_add_u32 v{t1}, s{sT1}, v{t0}")
        A(f"v_add_u32 v{t0}, s{sT0}, v{t0}")
        A(f"v_cvt_pk_bf16_f32 v{cs+1}, v{cs}, v{cs}")
        A(f"v_and_b32 v{cs+1}, 0xffff0000, v{cs+1}")
        A(f"v_sub_f32 v{cs}, v{cs}, v{cs+1}")
        A(f"v_cvt_pk_bf16_f32 v{cs+2}, v{cs+1}, v{cs}")
        A(f"v_lshrrev_b32 v{cs+3}, 16, v{cs+1}")
        A(f"ds_write_b64 v{t0}, {v(cs+2,2)} offset:{CSL}")
        if HS:
            def corr(j, cf):
                for i in range(2):
                    mb = v(MB + 2 * i, 2); acc = v(ACC + 32 * i + 16 * j, 16)
                    if isV: A(f"v_mfma_f32_32x32x8_bf16 {acc}, {mb}, {cf}, {acc}")
                    else:   A(f"v_mfma_f32_32x32x8_bf16 {acc}, {cf}, {mb}, {acc}")
            A("s_waitcnt vmcnt(0) lgkmcnt(0)")
            A("s_barrier")
            A(f"ds_read_b64 {v(cs+4,2)}, v{t1} offset:{CSL}")
            corr(0, v(cs + 2, 2))
            A("s_waitcnt lgkmcnt(0)")
            corr(1, v(cs + 4, 2))
            return
        A(f"v_and_b32 v{t2}, 3, v0")
        for k in (1, 2, 3):
            A(f"v_cmp_eq_u32 vcc, {k}, v{t2}")
            for i in range(2): A(f"v_cndmask_b32 v{SQ+4*i}, v{SQ+4*i}, v{SQ+4*i+k}, vcc")
        A(f"s_and_b32 s{sT0}, s{sWAVE}, 1")
        A(f"s_lshl_b32 s{sT0}, s{sT0}, 6")
        A(f"s_lshl_b32 s{sT1}, s{sFH2}, 4")
        A(f"s_add_u32 s{sT1}, s{sT1}, s{sT0}")
        A(f"v_and_b32 v{t2}, 15, v0")
        A(f"v_add_u32 v{t2}, s{sT1}, v{t2}")
        A(f"v_lshlrev_b32 v{t3}, 2, v{t2}")
        A(f"v_lshlrev_b32 v{t2}, 3, v{t2}")
        for i in range(2):
            sm, sq = SUM + 4 * i, SQ + 4 * i
            A(f"v_mul_f32 v{sm}, {fhex(1/640)}, v{sm}")
            A(f"v_mul_f32 v{sq}, {fhex(1/640)}, v{sq}")
            A(f"v_fma_f32 v{sq}, -v{sm}, v{sm}, v{sq}")
            A(f"v_max_f32 v{sq}, 0, v{sq}")
            A(f"v_add_f32 v{sq}, {fhex(1e-5)}, v{sq}")
            A(f"v_rsq_f32 v{sq}, v{sq}")
            A(f"v_cvt_pk_bf16_f32 v{sm+2}, -v{sm}, -v{sm}")
            A(f"v_and_b32 v{sm+3}, 0xffff0000, v{sm+2}")
            A(f"v_sub_f32 v{sm+3}, -v{sm}, v{sm+3}")
            A(f"v_cvt_pk_bf16_f32 v{sm+3}, v{sm+3}, 0")
        A("s_mov_b32 exec_lo, 0x00f0000f")
        A("s_mov_b32 exec_hi, 0xf0000f00")
        for i in range(2):
            A(f"ds_write_b64 v{t2}, {v(SUM+4*i+2,2)} offset:{STL + 128*i}")
            A(f"ds_write_b32 v{t3}, v{SQ+4*i} offset:{STL + 1024 + 64*i}")
        A("s_mov_b64 exec, -1")
        A(f"v_and_b32 v{t2}, 31, v0")
        A(f"v_add_u32 v{t2}, s{sT0}, v{t2}")
        if isV:
            A(f"v_lshrrev_b32 v{t3}, 5, v0")
            A(f"v_lshlrev_b32 v{t3}, 2, v{t3}")
            A(f"v_add_u32 v{t3}, s{sT0}, v{t3}")
            A(f"v_lshlrev_b32 v{t3}, 2, v{t3}")
        else:
            A(f"v_lshlrev_b32 v{t3}, 2, v{t2}")
        A(f"v_lshlrev_b32 v{t2}, 3, v{t2}")
        A(f"v_cmp_gt_u32 vcc, 32, v0")
        A("s_waitcnt lgkmcnt(0)")
        A("s_barrier")
        for i in range(2): A(f"ds_read_b64 {v(MB+2*i,2)}, v{t2} offset:{STL + 256*i}")
        A(f"ds_read_b64 {v(cs+4,2)}, v{t1} offset:{CSL}")
        if isV:
            for i in range(2):
                for aa in range(4): A(f"ds_read_b128 {v(vST+16*i+4*aa,4)}, v{t3} offset:{STL + 1024 + 128*i + 32*aa}")
        else:
            for i in range(2): A(f"ds_read_b32 v{RS+i}, v{t3} offset:{STL + 1024 + 128*i}")
        A(f"s_waitcnt lgkmcnt({8 if isV else 2})")
        for k in range(4): A(f"v_cndmask_b32 v{MB+k}, 0, v{MB+k}, vcc")
        for j in range(2):
            cf = v(cs + 2 + 2 * j, 2)
            for i in range(2):
                mb = v(MB + 2 * i, 2); acc = v(ACC + 32 * i + 16 * j, 16)
                if isV: A(f"v_mfma_f32_32x32x8_bf16 {acc}, {mb}, {cf}, {acc}")
                else:   A(f"v_mfma_f32_32x32x8_bf16 {acc}, {cf}, {mb}, {acc}")
        A("s_waitcnt lgkmcnt(0)")

    tr_addr(True, (f"s{sJ0}", f"s{sJ1}"))
    t0, t1, t2, tok16, half = vT, vT+1, vT+2, vT+4, vT+6
    A(f"s_cmp_ge_u32 s{sFG}, 5")
    A(f"s_cselect_b32 s{sT1}, 5, 0")
    A(f"s_cselect_b32 s{sBASE}, {hex(WS_K)}, {hex(WS_Q)}")
    A(f"s_cselect_b32 s{sQS}, 1.0, {fhex(QSCALE)}")
    A(f"s_sub_u32 s{sT1}, s{sFG}, s{sT1}")
    A(f"s_lshl_b32 s{sT1}, s{sT1}, 4")
    A(f"s_mul_i32 s{sT2}, s{sTILE}, 2560")
    A(f"s_add_u32 s{sBASE}, s{sBASE}, s{sT2}")
    A(f"v_lshrrev_b32 v{half}, 5, v0")
    A(f"v_add_u32 v{half}, s{sT1}, v{half}")
    A(f"v_and_b32 v{tok16}, 31, v0")
    A(f"v_lshlrev_b32 v{tok16}, 4, v{tok16}")
    A(f"s_mov_b32 s{sT2}, {PAIR_STRIDE - 2560}")
    for q in range(4):
        A(f"s_lshl_b32 s{sT0}, s{sJ0 + q//2}, 2")
        A(f"s_add_u32 s{sT0}, s{sT0}, {2*(q%2)}")
        A(f"v_add_u32 v{t0}, s{sT0}, v{half}")
        A(f"v_mul_u32_u24 v{t1}, 205, v{t0}")
        A(f"v_lshrrev_b32 v{t1}, 10, v{t1}")
        A(f"v_mul_lo_u32 v{t1}, s{sT2}, v{t1}")
        A(f"v_lshl_add_u32 v{t0}, v{t0}, 9, v{tok16}")
        A(f"v_add_u32 v{vADR+q}, v{t0}, v{t1}")
    if cfg.get("tlb", 1) & 1:
        A("s_mov_b32 exec_lo, 1")
        A("s_mov_b32 exec_hi, 1")
        for q in range(4): A(f"buffer_load_dword v{vT+7}, v{vADR+q}, s[{SWS}:{SWS+3}], s{sBASE} offen")
        A("s_mov_b64 exec, -1")
    mainloop(False)
    correction(False)
    for i in (1, 0):
        A(f"v_mul_f32 v{RS+2*i}, s{sQS}, v{RS+i}")
        A(f"v_mov_b32 v{RS+2*i+1}, v{RS+2*i}")
    for j in range(2):
        for i in range(2):
            for sg in range(2):
                r = ACC + 32 * i + 16 * j + 8 * sg
                for b in range(0, 8, 2): A(f"v_pk_mul_f32 {v(r+b,2)}, {v(r+b,2)}, {v(RS+2*i,2)}")
                for b in range(4): A(f"v_cvt_pk_bf16_f32 v{r+b}, v{r+2*b}, v{r+2*b+1}")
                A(f"buffer_store_dwordx4 {v(r,4)}, v{vADR+2*j+sg}, s[{SWS}:{SWS+3}], s{sBASE} offen offset:{2560*i} {STF}")
    A("s_branch L_qkv_fin")

    A.label("L_qkv_V")
    tr_addr(False, (f"s{sJ0}", f"s{sJ1}"))
    A(f"s_mul_i32 s{sBASE}, s{sTILE}, 1280")
    A(f"s_add_u32 s{sBASE}, s{sBASE}, {hex(WS_V)}")
    A(f"s_sub_u32 s{sT1}, s{sFG}, 10")
    A(f"s_lshl_b32 s{sT1}, s{sT1}, 7")
    A(f"v_lshrrev_b32 v{half}, 5, v0")
    A(f"v_mul_u32_u24 v{half}, 320, v{half}")
    A(f"v_and_b32 v{tok16}, 31, v0")
    A(f"v_add_u32 v{tok16}, s{sT1}, v{tok16}")
    A(f"s_mov_b32 s{sT2}, {VHEAD_STRIDE - 320}")
    for j in range(2):
        A(f"s_lshl_b32 s{sT0}, s{sJ0 + j}, 5")
        A(f"v_add_u32 v{t0}, s{sT0}, v{tok16}")
        A(f"v_mul_u32_u24 v{t1}, 3277, v{t0}")
        A(f"v_lshrrev_b32 v{t1}, 16, v{t1}")
        A(f"v_mul_lo_u32 v{t1}, s{sT2}, v{t1}")
        A(f"v_lshl_add_u32 v{t0}, v{t0}, 4, v{half}")
        A(f"v_add_u32 v{vADR+j}, v{t0}, v{t1}")
    if cfg.get("tlb", 1) & 1:
        A("s_mov_b32 exec_lo, 0x80008001")
        A("s_mov_b32 exec_hi, 0")
        for q in range(2): A(f"buffer_load_dword v{vT+7}, v{vADR+q}, s[{SWS}:{SWS+3}], s{sBASE} offen")
        A("s_mov_b64 exec, -1")
    mainloop(True)
    correction(True)
    for j in range(2):
        for i in range(2):
            for mf in range(2):
                r = ACC + 32 * i + 16 * j + 8 * mf
                for b in range(0, 8, 2): A(f"v_pk_mul_f32 {v(r+b,2)}, {v(r+b,2)}, {v(vST+16*i+8*mf+b,2)}")
                for b in range(4): A(f"v_cvt_pk_bf16_f32 v{r+b}, v{r+2*b}, v{r+2*b+1}")
                A(f"buffer_store_dwordx4 {v(r,4)}, v{vADR+j}, s[{SWS}:{SWS+3}], s{sBASE} offen offset:{1280*i + mf*640} {STF}")
    A.label("L_qkv_fin")
    stamp(A, cfg, 3)
    if cfg.get("qts"):
        for c in range(9): A(f"s_mov_b32 s{71+2*c}, s{70+2*c}")
        A("s_mov_b32 s68, 0")
        A("s_mov_b32 s69, 0")
        stamp_flush(A, cfg, 14, 17, SWS, sWAVE, 0)
        A("s_mov_b64 exec, -1")
    stamp_flush(A, cfg, 4, 0, SWS, sWAVE, 0)
    A("s_endpgm")

    A.label("L_qkv_loader")
    vWOFF, vXOFF = 1, 72
    sWLIM = 44
    if cfg.get("rot", 1):
        A(f"s_lshl_b32 s{sT0}, s{sT0}, 2")
        A(f"s_lshr_b32 s{sC0}, 0x30858530, s{sT0}")
        A(f"s_and_b32 s{sC0}, s{sC0}, 15")
        if cfg.get("rab", [1, 1]):
            ra, rb = cfg.get("rab", [1, 1])
            A(f"s_and_b32 s{sT0}, s{sTB}, 3")
            A(f"s_mul_i32 s{sT0}, s{sT0}, {ra}")
            A(f"s_add_u32 s{sC0}, s{sC0}, s{sT0}")
            A(f"s_and_b32 s{sT0}, s{sFG}, {cfg.get('rmask', 3)}")
            A(f"s_mul_i32 s{sT0}, s{sT0}, {rb}")
            A(f"s_add_u32 s{sC0}, s{sC0}, s{sT0}")
            A(f"s_mul_i32 s{sT0}, s{sC0}, 6554")
            A(f"s_lshr_b32 s{sT0}, s{sT0}, 16")
            A(f"s_mul_i32 s{sT0}, s{sT0}, 10")
            A(f"s_sub_u32 s{sC0}, s{sC0}, s{sT0}")
    else:
        A(f"s_mov_b32 s{sC0}, 0")
    A(f"s_sub_u32 s{sWAVE}, s{sWAVE}, 4")
    A(f"v_and_b32 v{vT}, 15, v0")
    A(f"v_lshrrev_b32 v{vT+1}, 4, v0")
    A(f"v_lshlrev_b32 v{vT+2}, 2, v{vT+1}")
    A(f"v_xor_b32 v{vT+2}, v{vT+2}, v{vT}")
    A(f"v_mul_u32_u24 v{vWOFF}, 3840, v{vT+1}")
    A(f"v_lshl_add_u32 v{vWOFF}, v{vT+2}, 4, v{vWOFF}")
    A(f"v_and_b32 v{vT}, 7, v0")
    A(f"v_xor_b32 v{vT}, v{vT}, v{vT+1}")
    A(f"v_lshrrev_b32 v{vT+2}, 3, v0")
    A(f"v_mul_u32_u24 v{vT+2}, 1280, v{vT+2}")
    A(f"v_lshl_add_u32 v{vXOFF}, v{vT}, 4, v{vT+2}")
    A(f"v_xor_b32 v{vXOFF+1}, 64, v{vXOFF}")
    A(f"s_lshl_b32 s{sWO}, s{sFG}, 8")
    A(f"s_mul_i32 s{sT0}, s{sWAVE}, {16*3840}")
    A(f"s_add_u32 s{sWO}, s{sWO}, s{sT0}")
    A(f"s_add_u32 s{sWLIM}, s{sWO}, {640*3840}")
    A(f"s_mul_i32 s{sT0}, s{sC0}, {64*3840}")
    A(f"s_add_u32 s{sWO}, s{sWO}, s{sT0}")
    A(f"s_lshl_b32 s{sXO}, s{sTB}, 2")
    A(f"s_add_u32 s{sXO}, s{sXO}, s{sWAVE}")
    A(f"s_mul_i32 s{sXO}, s{sXO}, {32*1280}")
    A(f"s_lshl_b32 s{sT0}, s{sC0}, 7")
    A(f"s_add_u32 s{sXO}, s{sXO}, s{sT0}")
    A(f"s_lshl_b32 s{sM0}, s{sWAVE}, 12")
    A("s_waitcnt lgkmcnt(0)")
    srd(A, SW, 6, 640 * 1920 * 2)
    srd(A, SX, SX, X_BYTES)
    def dma_ops(c):
        ops = []
        for j in range(4):
            ops.append([f"s_add_u32 m0, s{sM0}, {(c%5)*SLOT + j*1024}", f"s_add_u32 s{sT0}, s{sWO}, {4*j*3840}",
                        f"buffer_load_dwordx4 v{vWOFF}, s[{SW}:{SW+3}], s{sT0} offen lds"])
            ops.append([f"s_add_u32 m0, s{sM0}, {(c%5)*SLOT + 16384 + j*1024}", f"s_add_u32 s{sT0}, s{sXO}, {8*j*1280}",
                        f"buffer_load_dwordx4 v{vXOFF+(j%2)}, s[{SX}:{SX+3}], s{sT0} offen lds"])
        ops[-1] += [f"s_add_u32 s{sWO}, s{sWO}, {64*3840}", f"s_add_u32 s{sXO}, s{sXO}, 128",
                    f"s_cmp_eq_u32 s{sWO}, s{sWLIM}", f"s_cselect_b32 s{sT0}, {640*3840}, 0", f"s_cselect_b32 s{sT1}, 1280, 0",
                    f"s_sub_u32 s{sWO}, s{sWO}, s{sT0}", f"s_sub_u32 s{sXO}, s{sXO}, s{sT1}"]
        return ops
    def emit(op):
        for x in op:
            if cfg.get("q_nodma") and x.startswith("buffer_"): continue
            A(x)
    IW = cfg.get("iw", 2)
    for c in range(IW):
        for op in dma_ops(c): emit(op)
    srd(A, SWS, 50, WS_SIZE)
    prep_setup()
    ops = [("w", c) for c in range(IW) for _ in range(8)]
    nw = IW
    def wait_for(tag):
        last = max(i for i, o in enumerate(ops) if o == tag)
        A(f"s_waitcnt vmcnt({len(ops) - 1 - last})")
    for c in range(10):
        wait_for(("w", c))
        A("s_barrier")
        for k in range(2 if c in cfg.get("extra_at", []) else 1):
            if nw < 10 and nw <= max(c + 3, 4) and (nw != 4 or c >= 2 or not cfg.get('k1prep', 0)):
                for op in dma_ops(nw): emit(op)
                ops += [("w", nw)] * 8; nw += 1
        if c == 7:
            for jj in range(5):
                A(f"s_add_u32 m0, s{sPLDS}, {jj*1024}")
                A(f"buffer_load_dwordx4 v{VO+jj}, s[{SP}:{SP+3}], s{sPSRC} offen lds")
            ops += [("p", 0)] * 5
    if cfg.get("prep_late", 1): A("s_barrier")
    A("s_waitcnt vmcnt(0)")
    for f in range(5):
        for u in range(2):
            A(f"ds_read_b64_tr_b16 {v(PF+4*f+2*u,2)}, v{VO+5+(f==4)} offset:{4*u*160 + tile_col_imm(f)}")
    A("s_waitcnt lgkmcnt(0)")
    for f in range(5):
        A(f"s_add_u32 s{sT0}, s{sPDST}, {f*1024}")
        A(f"buffer_store_dwordx4 {v(PF+4*f,4)}, v{L16}, s[{SWS}:{SWS+3}], s{sT0} offen {STF}")
    A("s_endpgm")

    A.label("L_qkv_helper")
    XD = 16
    if cfg.get("ctouch", 1):
        code_touch_setup(A, 46, "qkv_kernel", True)
        A(f"v_lshlrev_b32 v{vT+1}, 7, v0")
        A(f"v_min_u32 v{vT+1}, L_code_end-qkv_kernel-4, v{vT+1}")
        A(f"global_load_dword v{vT+7}, v{vT+1}, s[46:47]")
    A(f"v_and_b32 v0, 63, v0")
    if HS:
        A(f"s_and_b32 s{sTB}, s2, 3")
        A(f"s_lshl_b32 s{sTB}, s{sTB}, 2")
        A(f"s_bfe_u32 s{sT0}, s2, 0x10002")
        A(f"s_lshl_b32 s{sT0}, s{sT0}, 1")
        A(f"s_add_u32 s{sTB}, s{sTB}, s{sT0}")
        A(f"s_lshr_b32 s{sT0}, s2, 3")
        A(f"s_add_u32 s{sTB}, s{sTB}, s{sT0}")
        A(f"s_lshl_b32 s{sXO}, s{sTB}, 3")
        A(f"s_add_u32 s{sXO}, s{sXO}, s{sWAVE}")
        A(f"s_mul_i32 s{sXO}, s{sXO}, {16*1280}")
        A(f"s_add_u32 s{sXLIM}, s{sXO}, {8*1280}")
        A(f"v_lshrrev_b32 v2, 3, v0")
        A(f"v_and_b32 v3, 7, v0")
        A(f"v_mul_u32_u24 v1, 1280, v2")
        A(f"v_lshl_add_u32 v1, v3, 4, v1")
        A("s_waitcnt lgkmcnt(0)")
        srd(A, SX, SX, X_BYTES)
        for g in range(2):
            for k in range(10):
                A(f"buffer_load_dwordx4 {v(XD+40*g+4*k,4)}, v1, s[{SX}:{SX+3}], s{sXLIM if g else sXO} offen offset:{128*k}")
        srd(A, SWS, 50, WS_SIZE)
        srd(A, SD, SD, 256)
        A(f"v_mov_b32 v4, 0x3f803f80")
        A(f"s_lshl_b32 s{sT0}, s{sWAVE}, 4")
        A(f"v_add_u32 v2, s{sT0}, v2")
        A(f"v_lshlrev_b32 v5, 3, v2")
        A(f"v_lshlrev_b32 v6, 2, v2")
        A(f"s_lshl_b32 s{sBASE}, s{sTB}, 11")
        A(f"s_add_u32 s{sBASE}, s{sBASE}, {hex(WS_ST1)}")
        A(f"s_mov_b32 s{sT1}, 0x01010101")
        for g in range(2):
            sm, sq = vT, vT + 1
            for k in range(10):
                A(f"s_waitcnt vmcnt({19 - (10*g+k) + (2 if g else 0)})")
                for i in range(4):
                    r = XD + 40 * g + 4 * k + i
                    first = (k == 0 and i == 0)
                    A(f"v_dot2_f32_bf16 v{sm}, v{r}, v4, {0 if first else 'v%d' % sm}")
                    A(f"v_dot2_f32_bf16 v{sq}, v{r}, v{r}, {0 if first else 'v%d' % sq}")
            for dpp in ("quad_perm:[1,0,3,2]", "quad_perm:[2,3,0,1]", "row_half_mirror"):
                A(f"v_add_f32_dpp v{sm}, v{sm}, v{sm} {dpp} row_mask:0xf bank_mask:0xf")
                A(f"v_add_f32_dpp v{sq}, v{sq}, v{sq} {dpp} row_mask:0xf bank_mask:0xf")
            A(f"v_mul_f32 v{sm}, {fhex(1/640)}, v{sm}")
            A(f"v_mul_f32 v{sq}, {fhex(1/640)}, v{sq}")
            A(f"v_fma_f32 v{sq}, -v{sm}, v{sm}, v{sq}")
            A(f"v_max_f32 v{sq}, 0, v{sq}")
            A(f"v_add_f32 v{sq}, {fhex(1e-5)}, v{sq}")
            A(f"v_rsq_f32 v{vT+4}, v{sq}")
            A(f"v_cvt_pk_bf16_f32 v{vT+2}, -v{sm}, -v{sm}")
            A(f"v_and_b32 v{vT+3}, 0xffff0000, v{vT+2}")
            A(f"v_sub_f32 v{vT+3}, -v{sm}, v{vT+3}")
            A(f"v_cvt_pk_bf16_f32 v{vT+3}, v{vT+3}, 0")
            A(f"s_mov_b32 exec_lo, s{sT1}")
            A(f"s_mov_b32 exec_hi, s{sT1}")
            A(f"buffer_store_dwordx2 {v(vT+2,2)}, v5, s[{SWS}:{SWS+3}], s{sBASE} offen offset:{64*g} sc1")
            A(f"buffer_store_dword v{vT+4}, v6, s[{SWS}:{SWS+3}], s{sBASE} offen offset:{1024 + 32*g} sc1")
            A("s_mov_b64 exec, -1")
        pass
        A("s_waitcnt vmcnt(0)")
        A("s_barrier")
        pass
        A(f"s_lshl_b32 s{sT0}, s{sTB}, 4")
        A(f"s_cmp_eq_u32 s{sWAVE}, 0")
        A(f"s_cselect_b32 s{sT0}, s{sT0}, 256")
        A(f"v_mov_b32 v2, 1")
        A(f"v_mov_b32 v3, 0")
        A("s_mov_b64 exec, 1")
        A(f"buffer_store_dword v2, v3, s[{SD}:{SD+3}], s{sT0} offen sc1")
        A("s_mov_b64 exec, -1")
    else:
        A("s_waitcnt lgkmcnt(0)")
        srd(A, SWS, 50, WS_SIZE)
    if cfg.get("ptouch", 0):
        srd(A, SP, 34, 1536 * 640 * 2)
        srd(A, SW, 32, 640 * 640 * 2)
        A(f"s_lshl_b32 s{sT0}, s2, 3")
        A(f"s_add_u32 s{sT0}, s{sT0}, s{sWAVE}")
        A(f"s_mul_i32 s{sT1}, s{sT0}, {50*128}")
        A(f"s_mul_i32 s{sT0}, s{sT0}, {120*128}")
        A(f"v_lshlrev_b32 v1, 7, v0")
        A("s_bfm_b64 exec, 60, 0")
        A(f"buffer_load_dword v4, v1, s[{SP}:{SP+3}], s{sT0} offen")
        A(f"s_add_u32 s{sT0}, s{sT0}, {60*128}")
        A(f"buffer_load_dword v4, v1, s[{SP}:{SP+3}], s{sT0} offen")
        A("s_bfm_b64 exec, 50, 0")
        A(f"buffer_load_dword v4, v1, s[{SW}:{SW+3}], s{sT1} offen")
        A("s_mov_b64 exec, -1")
    if cfg.get("tlbw", 1):
        A("s_load_dwordx4 s[40:43], s[0:1], 32")
        A("s_load_dwordx2 s[52:53], s[0:1], 56")
        A(f"v_lshlrev_b32 v1, 18, v0")
        A(f"s_cmp_lg_u32 s{sWAVE}, 0")
        A("s_cbranch_scc1 L_qkv_notlb")
        A(f"buffer_load_dword v4, v1, s[{SWS}:{SWS+3}], 0 offen")
        A(f"s_mov_b32 s{sT0}, 0x1000000")
        A("s_bfm_b64 exec, 24, 0")
        A(f"buffer_load_dword v4, v1, s[{SWS}:{SWS+3}], s{sT0} offen")
        A("s_mov_b64 exec, -1")
        A("s_waitcnt lgkmcnt(0)")
        for p, nb in ((40, 640*1536*2), (42, 640*1536*2), (52, X_BYTES), (32, 640*640*2), (34, 640*1536*2)):
            srd(A, SP, p, nb)
            A(f"buffer_load_dword v4, v1, s[{SP}:{SP+3}], 0 offen")
        A.label("L_qkv_notlb")
        A("s_waitcnt lgkmcnt(0)")
    if cfg.get("gtouch", 0):
        A("s_load_dwordx4 s[40:43], s[0:1], 32")
        A(f"s_lshl_b32 s{sT0}, s2, 3")
        A(f"s_add_u32 s{sT0}, s{sT0}, s{sWAVE}")
        A(f"s_mul_i32 s{sT0}, s{sT0}, {120*128}")
        A(f"s_add_u32 s{sT1}, s{sT0}, {60*128}")
        A(f"v_lshlrev_b32 v1, 7, v0")
        A("s_waitcnt lgkmcnt(0)")
        srd(A, SP, 40, 1536 * 640 * 2)
        srd(A, SW, 42, 1536 * 640 * 2)
        if cfg["gtouch"] == 2: A("s_waitcnt vmcnt(0)")
        A("s_bfm_b64 exec, 60, 0")
        for sr in (SP, SW):
            for so in (sT0, sT1):
                A(f"buffer_load_dword v4, v1, s[{sr}:{sr+3}], s{so} offen")
        A("s_mov_b64 exec, -1")
    stamp(A, cfg, 1)
    stamp(A, cfg, 2)
    if cfg.get("zfill", 0):
        for i in range(4): A(f"v_mov_b32 v{XD+i}, 0")
        A(f"v_lshlrev_b32 v1, 4, v0")
        A(f"s_lshl_b32 s{sT0}, s2, 3")
        A(f"s_add_u32 s{sT0}, s{sT0}, s{sWAVE}")
        A(f"s_lshl_b32 s{sT1}, s{sT0}, 11")
        A(f"s_add_u32 s{sT1}, s{sT1}, {hex(WS_ST2)}")
        A(f"s_mul_i32 s{sT0}, s{sT0}, 40960")
        A(f"s_add_u32 s{sT0}, s{sT0}, {hex(WS_O)}")
        for k in range(40):
            if k % 4 == 0 and k: A(f"s_add_u32 s{sT0}, s{sT0}, 4096")
            A(f"buffer_store_dwordx4 {v(XD,4)}, v1, s[{SWS}:{SWS+3}], s{sT0} offen offset:{(k%4)*1024} sc1")
        for k in range(2): A(f"buffer_store_dwordx4 {v(XD,4)}, v1, s[{SWS}:{SWS+3}], s{sT1} offen offset:{k*1024} sc1")
    A(f"s_lshl_b32 s{sT0}, s{sWAVE}, 10")
    A(f"s_add_u32 s{sT0}, s{sT0}, {hex(WS_SYNC)}")
    A(f"s_cmp_eq_u32 s2, 0")
    A(f"s_cselect_b32 s{sT0}, s{sT0}, {hex(WS_SIZE)}")
    for i in range(4): A(f"v_mov_b32 v{XD+i}, 0")
    A(f"v_lshlrev_b32 v1, 4, v0")
    A(f"buffer_store_dwordx4 {v(XD,4)}, v1, s[{SWS}:{SWS+3}], s{sT0} offen")
    stamp(A, cfg, 3)
    stamp_flush(A, cfg, 4, 0, SWS, sWAVE, 0)
    A.label("L_qkv_end")
    A("s_endpgm")
    return dict(name=name, grid=256, block=512, lds=163840, desc=kernel_desc(name, 216, 216))
```

```python
from common import *

GU_SLOT = 24608
GU_UP = 12288 + 32
GU_MISC = 6 * GU_SLOT
NWS, H_BASE, NHS = 4, 4 * GU_SLOT, 3
PART_BASE = 4 * GU_SLOT
KV_SLOT = 20480
NKV = 3
KV_BASE = 163840 - NKV * KV_SLOT
NV = 112

class R:
    S = (16, 32); O = 48; P = 64; K1 = 72; K2 = 76; V1 = 80; V2 = 84; Q1 = 88; Q2 = 92
    KA = 1; K2A = 2; VA = 3; L16 = 4; F2S = 5; L4 = 7; T = 8; TCH = 94
    GV = 96
    XRES = 100

SX, SWS, SG_, SU, SO = 4, 8, 12, 16, 20
sWAVE, sG, sM, sT0, sT1, sT2, sC, sDELTA, sSLOT, sQT = 24, 25, 26, 27, 28, 29, 30, 31, 32, 33
sVMASK = 34
sKSRC, sVSRC, sKBASE, sVBASE, sFG, sTOK16, sJ, sFAST, sWOSRC, sWDSRC, sGSRC, sGM0, sFLAG, sB, sXCC, sLW = 36, 37, 38, 39, 40, 41, 42, 43, 44, 45, 46, 47, 48, 49, 50, 51
sTMP = 52
SWO_, SWD_ = 92, 96
sSTG, sWDRAW, sTO, sKQ, sB2, sGLIM, sC0 = 86, 87, 90, 95, 96, 99, 91
sHD, sKLIM, sFL0 = 97, 98, 100

def WD(step, f, n=4):
    if step == 7: return v(40 + 4 * f, n)
    return a({0: 100, 1: 120, 2: 80, 3: 60, 4: 40, 5: 20, 6: 0}[step] + 4 * f, n)
def A_RES(i): return 140 + i if i < 4 else 56 + (i - 4)

def set_shift(A, m):
    t0, t1, t2 = m + 1, m + 2, m + 3
    A(f"v_cvt_pk_bf16_f32 v{t0}, -v{m}, -v{m}")
    A(f"v_and_b32 v{t0}, 0xffff0000, v{t0}")
    A(f"v_sub_f32 v{t1}, -v{m}, v{t0}")
    A(f"v_cvt_pk_bf16_f32 v{t2}, v{t0}, v{t1}")
    A(f"v_and_b32 v{t0}, 0xffff0000, v{t2}")
    A(f"v_sub_f32 v{t1}, v{t1}, v{t0}")
    A(f"v_cvt_pk_bf16_f32 v{t1}, v{t1}, 0")
    A(f"v_cmp_gt_u32 vcc, 32, v0")
    A(f"v_cndmask_b32 v{R.Q2+1}, v{t1}, v{t2}, vcc")

def max16(A, dst, S, first):
    if first:
        A(f"v_max3_f32 v{dst}, v{S}, v{S+1}, v{S+2}")
        A(f"v_max_f32 v{dst}, v{dst}, v{S+3}")
        rng = range(4, 16, 2)
    else:
        rng = range(0, 16, 2)
    for i in rng: A(f"v_max3_f32 v{dst}, v{dst}, v{S+i}, v{S+i+1}")

def xhalf_max(A, m, t):
    A(f"v_mov_b32 v{t}, v{m}")
    A(f"v_permlane32_swap_b32 v{m}, v{t}")
    A(f"v_max_f32 v{m}, v{m}, v{t}")

def stores(A, lst, data=True):
    if data == "O" and CFG.get("hp", 1) or data and CFG.get("wt", 3) & 1:
        for x in lst: A(x + (" sc1" if x.startswith("buffer_") else ""))
        return
    L1, L2 = A.newlabel("stf"), A.newlabel("ste")
    A(f"s_cmp_lg_u32 s{sFAST}, 0")
    A(f"s_cbranch_scc1 {L1}")
    for x in lst: A(x + (" sc1" if x.startswith("buffer_") else ""))
    A(f"s_branch {L2}")
    A.label(L1)
    for x in lst: A(x)
    A.label(L2)

def readback(A, lst):
    if not CFG.get("rb", 0) & 1: return
    for mask, ops in lst:
        ops = [x + " sc1" for x in ops]
        A(f"s_mov_b32 exec_lo, {hex(mask & 0xffffffff)}")
        A(f"s_mov_b32 exec_hi, {hex(mask >> 32)}")
        for x in ops: A(x)
    A("s_mov_b64 exec, -1")

def sync(A, idx, poller, half, nleft, between=None, rb=None):
    T = R.T
    A(f"s_waitcnt vmcnt({nleft})")
    if rb: readback(A, rb)
    A("s_barrier")
    L, LP = A.newlabel("sy"), A.newlabel("poll")
    A(f"s_cmp_lg_u32 s{sWAVE}, {poller}")
    if between is not None:
        LB = A.newlabel("btw")
        A(f"s_cbranch_scc1 {LB}")
    else:
        A(f"s_cbranch_scc1 {L}")
    A(f"s_lshl_b32 s{sT0}, s{sM}, 2")
    A(f"s_add_u32 s{sT0}, s{sT0}, s{sFLAG}")
    A(f"v_mov_b32 v{T}, 1")
    A(f"v_mov_b32 v{T+1}, 0")
    A("s_mov_b64 exec, 1")
    if idx == 0 and CFG.get("hp", 1):
        A(f"buffer_store_dword v{T}, v{T+1}, s[{SWS}:{SWS+3}], s{sFL0} offen sc1")
    else:
        stores(A, [f"buffer_store_dword v{T}, v{T+1}, s[{SWS}:{SWS+3}], s{sT0} offen offset:{idx*128}"], data=False)
    if half:
        A(f"s_and_b32 s{sT0}, s{sM}, 2")
        A(f"s_lshl_b32 s{sT0}, 0x33333333, s{sT0}")
        A(f"s_mov_b32 exec_lo, s{sT0}")
    else:
        A("s_mov_b32 exec_lo, -1")
    X0 = idx == 0 and CFG.get("hp", 1)
    L32 = X0 and CFG.get("l32", 1)
    A(f"v_lshlrev_b32 v{T+1}, {7 if L32 else 2}, v0")
    A(f"s_mov_b32 s{sT1}, 0")
    if L32:
        A(f"s_lshl_b32 s{sT0}, s{sG}, 12")
        A(f"s_add_u32 s{sT0}, s{sT0}, {hex(WS_SYNC + 8192)}")
    A.label(LP)
    sl = CFG.get("sl0", 4) if X0 else CFG.get("sl1", 0)
    if sl: A(f"s_sleep {sl}")
    if L32: A(f"buffer_load_dword v{T}, v{T+1}, s[{SWS}:{SWS+3}], s{sT0} offen sc1")
    else: A(f"buffer_load_dword v{T}, v{T+1}, s[{SWS}:{SWS+3}], s{sFLAG} offen offset:{idx*128} sc1")
    A(f"s_add_u32 s{sT1}, s{sT1}, 1")
    A("s_waitcnt vmcnt(0)")
    A(f"v_cmp_eq_u32 vcc, 0, v{T}")
    A(f"s_cmp_lt_u32 s{sT1}, 0x40000")
    A(f"s_cselect_b64 vcc, vcc, 0")
    A(f"s_cbranch_vccnz {LP}")
    A("s_mov_b64 exec, -1")
    if between is not None:
        A("s_barrier")
        between()
        A(f"s_branch {L}")
        A.label(LB)
        between()
        A("s_barrier")
        A.label(L)
    else:
        A.label(L)
        A("s_barrier")

def addr_rowmajor(A, vp, vs, T):
    A(f"v_and_b32 v{T}, 15, v0")
    A(f"v_lshrrev_b32 v{T+1}, 4, v0")
    A(f"v_mul_u32_u24 v{T}, 1280, v{T}")
    A(f"s_add_u32 s{sT0}, s{sLW}, s{sTOK16}")
    A(f"s_mul_i32 s{sT0}, s{sT0}, {16*1280}")
    A(f"s_mul_i32 s{sT1}, s{sFG}, 160")
    A(f"s_add_u32 s{sT0}, s{sT0}, s{sT1}")
    A(f"v_add_u32 v{T}, s{sT0}, v{T}")
    A(f"v_lshl_add_u32 v{vp}, v{T+1}, 4, v{T}")
    A(f"v_lshl_add_u32 v{vs}, v{T+1}, 3, v{T}")
    A(f"v_add_u32 v{vs}, 128, v{vs}")
    A(f"s_and_b32 s{sT0}, s{sWAVE}, 4")
    A(f"s_lshl_b32 s{sT0}, s{sT0}, 4")
    A(f"v_add_u32 v{vp}, s{sT0}, v{vp}")

def reduce_addr(A, P, base, RA):
    A(f"s_mul_i32 s{sT0}, s{sLW}, 5120")
    A(f"s_and_b32 s{sT1}, s{sWAVE}, 4")
    A(f"s_lshl_b32 s{sT1}, s{sT1}, 9")
    A(f"s_add_u32 s{sT0}, s{sT0}, s{sT1}")
    A(f"s_add_u32 s{sT0}, s{sT0}, {base}")
    A(f"v_add_u32 v{RA}, s{sT0}, v{R.L16}")
    for k in range(1, (P + 2) // 3): A(f"v_add_u32 v{RA+k}, {3*20480*k}, v{RA}")

def reduce_sum(A, P, D, RA, n, own, mid=None):
    W = 4 * n
    for p in range(P):
        for e in range(n):
            A(f"ds_read_b128 {v(D+W*p+4*e,4)}, v{RA+p//3} offset:{(p%3)*20480 + (e*1024 if e < 2 else 4096)}")
    if mid: mid()
    for p in range(P):
        A(f"s_waitcnt lgkmcnt({min(15, n*(P-1-p))})")
        for e in range(n):
            for i in (0, 2): A(f"v_pk_add_f32 {v(own[e]+i,2)}, {v(own[e]+i,2)}, {v(D+W*p+4*e+i,2)}")

CFG = {}
def gu_dma_ops(c):
    ops = []
    for isup in range(2):
        sr = SU if isup else SG_
        for jj in range(3):
            ops.append([f"s_add_u32 m0, s{sGM0}, {(c%NWS)*GU_SLOT + isup*GU_UP + jj*1024}",
                        "s_nop 0",
                        f"buffer_load_dwordx4 v{R.GV+jj}, s[{sr}:{sr+3}], s{sGSRC} offen lds"])
    ops[-1] += [f"s_add_u32 s{sGSRC}, s{sGSRC}, {64*3072}", f"s_cmp_eq_u32 s{sGSRC}, s{sGLIM}", f"s_cselect_b32 s{sT0}, {640*3072}, 0", f"s_sub_u32 s{sGSRC}, s{sGSRC}, s{sT0}"]
    return ops
def load_wd_ops(step):
    return [[f"s_add_u32 s{sT0}, s{sWDSRC}, {step*5120 + f*1024}",
             f"buffer_load_dwordx4 {WD(step, f)}, v{R.L16}, s[{SWS}:{SWS+3}], s{sT0} offen"] for f in range(5)]
def gu_dma(A, c, rows):
    A(f"s_add_u32 s{sT0}, s{sGSRC}, {c*64*3072}")
    for isup in range(2):
        sr = SU if isup else SG_
        for jj in range(3):
            A(f"s_add_u32 m0, s{sGM0}, {(c%NWS)*GU_SLOT + isup*GU_UP + jj*1024}")
            A(f"buffer_load_dwordx4 v{R.GV+jj}, s[{sr}:{sr+3}], s{sT0} offen lds")

def load_wd(A, step):
    for f in range(5):
        if f % 4 == 0: A(f"s_add_u32 s{sT0}, s{sWDSRC}, {step*5120 + f*1024}")
        A(f"buffer_load_dwordx4 {WD(step, f)}, v{R.L16}, s[{SWS}:{SWS+3}], s{sT0} offen offset:{(f%4)*1024}")

def cfg_touch_plan(cfg, gu_touch, out_touch, wd_touch, extra):
    plan = cfg.get("tplan", [[20,"gw"]])
    out = []
    for t, w in plan:
        if w in extra: out.append((t, extra[w]))
        elif w[0] == "g": out.append((t, gu_touch(int(w[1]))))
        else: out.append((t, {"o": out_touch(WS_O, 1280), "h": out_touch(WS_H, 1280), "hid": out_touch(WS_HID, 3072), "st": out_touch(WS_ST2, 128), "wd": wd_touch,
                                 "hid0": out_touch(WS_HID, 3072, 0, 8), "hid1": out_touch(WS_HID, 3072, 8, 8), "hid2": out_touch(WS_HID, 3072, 16, 8)}[w]))
    return out

def gen_main(A, cfg):
    name = "main_kernel"
    CFG.update(cfg)
    cfg = dict(cfg); cfg["_k2"] = 1
    kstart(A, name)
    T = R.T
    A("s_cmp_ge_u32 s2, 256")
    A("s_cbranch_scc1 L_end")
    A(f"s_load_dwordx2 s[{SWS}:{SWS+1}], s[0:1], 72")
    A(f"s_load_dwordx2 s[{SX}:{SX+1}], s[0:1], 0")
    A(f"s_load_dwordx2 s[{SG_}:{SG_+1}], s[0:1], 32")
    A(f"s_load_dwordx2 s[{SU}:{SU+1}], s[0:1], 40")
    A(f"s_load_dwordx2 s[{SO}:{SO+1}], s[0:1], 56")
    stamp(A, cfg, 0)
    A(f"v_lshrrev_b32 v{T}, 6, v0")
    A(f"v_and_b32 v0, 63, v0")
    A(f"v_readfirstlane_b32 s{sWAVE}, v{T}")
    A(f"s_and_b32 s{sG}, s2, 7")
    A(f"s_lshr_b32 s{sM}, s2, 3")
    HP = cfg.get("hp", 1)
    if HP:
        A(f"s_lshl_b32 s{sHD}, s{sG}, 2")
        A(f"s_lshr_b32 s{sT0}, s{sM}, 3")
        A(f"s_add_u32 s{sHD}, s{sHD}, s{sT0}")
        A(f"s_and_b32 s{sFL0}, s{sM}, 7")
    else:
        A(f"s_mov_b32 s{sHD}, s{sM}")
        A(f"s_mov_b32 s{sFL0}, s{sG}")
    A(f"s_lshr_b32 s{sT0}, s{sHD}, 1")
    A(f"s_mul_i32 s{sKBASE}, s{sT0}, {PAIR_STRIDE}")
    A(f"s_mul_i32 s{sVBASE}, s{sHD}, {VHEAD_STRIDE}")
    A(f"s_add_u32 s{sVBASE}, s{sVBASE}, {hex(WS_V)}")
    A(f"s_lshl_b32 s{sQT}, s{sFL0}, 3")
    A(f"s_add_u32 s{sQT}, s{sQT}, s{sWAVE}")
    A(f"s_and_b32 s{sT1}, s{sHD}, 1")
    A(f"v_lshlrev_b32 v{R.L16}, 4, v0")
    A(f"s_mul_i32 s{sT2}, s{sT1}, 1536")
    A(f"v_add_u32 v{R.F2S+1}, s{sT2}, v{R.L16}")
    A(f"v_and_b32 v{T}, 31, v0")
    A(f"v_lshrrev_b32 v{T+1}, 5, v0")
    A(f"v_lshlrev_b32 v{R.F2S}, 4, v{T}")
    A(f"v_lshl_add_u32 v{R.F2S}, v{T+1}, 2, v{R.F2S}")
    A(f"s_lshl_b32 s{sT1}, s{sT1}, 3")
    A(f"s_add_u32 s{sT1}, s{sT1}, 1024")
    A(f"v_add_u32 v{R.F2S}, s{sT1}, v{R.F2S}")
    A(f"s_mul_i32 s{sKSRC}, s{sWAVE}, 2560")
    A(f"s_add_u32 s{sKSRC}, s{sKSRC}, s{sKBASE}")
    A(f"s_mul_i32 s{sVSRC}, s{sWAVE}, 1280")
    A(f"s_mul_i32 s{sSLOT}, s{sWAVE}, 2560")
    A(f"v_lshlrev_b32 v{R.L4}, 2, v0")
    A(f"s_add_u32 s{sVSRC}, s{sVSRC}, s{sVBASE}")
    A(f"s_add_u32 s{sKLIM}, s{sKSRC}, {PAIR_STRIDE}")
    A(f"s_mul_i32 s{sT0}, s{sFL0}, {8*1280 if HP and cfg.get('krot', 0) else 0}")
    A(f"s_add_u32 s{sVSRC}, s{sVSRC}, s{sT0}")
    A(f"s_lshl_b32 s{sT0}, s{sT0}, 1")
    A(f"s_add_u32 s{sKSRC}, s{sKSRC}, s{sT0}")
    A(f"s_add_u32 s{sB2}, s{sKBASE}, s{sT0}")
    A("s_waitcnt lgkmcnt(0)")
    srd(A, SWS, SWS, WS_SIZE)
    KVF = cfg.get("kvflag", "")
    def kv_ops(c):
        lds = KV_BASE + (c % NKV) * KV_SLOT
        return [
            [f"s_add_u32 m0, s{sSLOT}, {lds}", "s_nop 0",
             f"buffer_load_dwordx4 v{R.F2S+1}, s[{SWS}:{SWS+3}], s{sKSRC} offen {KVF} lds"],
            [f"s_add_u32 m0, s{sSLOT}, {lds+1024}", "s_nop 0",
             f"buffer_load_dword v{R.F2S}, s[{SWS}:{SWS+3}], s{sKSRC} offen {KVF} lds"],
            [f"s_add_u32 m0, s{sSLOT}, {lds+1280}", f"s_add_u32 s{sKSRC}, s{sKSRC}, {8*2560}",
             f"buffer_load_dwordx4 v{R.L16}, s[{SWS}:{SWS+3}], s{sVSRC} offen {KVF} lds"],
            [f"s_add_u32 m0, s{sSLOT}, {lds+2304}", f"s_add_u32 s{sT0}, s{sVSRC}, 1024",
             f"buffer_load_dword v{R.L4}, s[{SWS}:{SWS+3}], s{sT0} offen {KVF} lds",
             f"s_add_u32 s{sVSRC}, s{sVSRC}, {8*1280}"] +
            ([f"s_cmp_eq_u32 s{sKSRC}, s{sKLIM}", f"s_cselect_b32 s{sT0}, {VHEAD_STRIDE}, 0", f"s_sub_u32 s{sVSRC}, s{sVSRC}, s{sT0}",
              f"s_lshl_b32 s{sT0}, s{sT0}, 1", f"s_sub_u32 s{sKSRC}, s{sKSRC}, s{sT0}"] if HP and cfg.get('krot', 0) else [])]
    def emit(op):
        for x in op: A(x)
    A(f"s_mul_i32 s{sT2}, s{sQT}, 2560")
    A(f"s_add_u32 s{sT2}, s{sT2}, s{sKBASE}")
    A(f"s_add_u32 s{sT2}, s{sT2}, {hex(WS_Q)}")
    A(f"buffer_load_dwordx4 {v(R.Q1,4)}, v{R.F2S+1}, s[{SWS}:{SWS+3}], s{sT2} offen")
    A(f"buffer_load_dword v{R.Q2}, v{R.F2S}, s[{SWS}:{SWS+3}], s{sT2} offen")
    A(f"buffer_load_dwordx4 {v(R.K1,4)}, v{R.F2S+1}, s[{SWS}:{SWS+3}], s{sB2} offen")
    A(f"buffer_load_dword v{R.K2}, v{R.F2S}, s[{SWS}:{SWS+3}], s{sB2} offen")
    PSP = cfg.get("psplit", 3)
    if PSP:
        A(f"s_cmp_ge_u32 s{sWAVE}, {PSP}")
        A("s_cbranch_scc1 L_p0")
    for op in kv_ops(0): emit(op)
    A.label("L_p0")
    A(f"s_lshl_b32 s{sFLAG}, s{sG}, 10")
    A(f"s_add_u32 s{sFLAG}, s{sFLAG}, {hex(WS_SYNC)}")
    A(f"s_getreg_b32 s{sXCC}, hwreg(HW_REG_XCC_ID, 0, 3)")
    A(f"s_mul_i32 s{sXCC}, s{sXCC}, 6")
    A(f"s_lshr_b32 s{sFG}, s{sM}, 2")
    A(f"s_and_b32 s{sT0}, s{sM}, 3")
    A(f"s_lshl_b32 s{sTOK16}, s{sG}, 4")
    A(f"s_lshl_b32 s{sT0}, s{sT0}, 2")
    A(f"s_add_u32 s{sTOK16}, s{sTOK16}, s{sT0}")
    A(f"s_lshl_b32 s{sJ}, s{sFG}, 1")
    A(f"s_and_b32 s{sT0}, s{sM}, 1")
    A(f"s_add_u32 s{sJ}, s{sJ}, s{sT0}")
    A(f"s_and_b32 s{sLW}, s{sWAVE}, 3")
    A(f"s_mul_i32 s{sWOSRC}, s{sFG}, {20*5120}")
    A(f"s_and_b32 s{sKQ}, s{sLW}, 1")
    A(f"s_lshl_b32 s{sKQ}, s{sKQ}, 1")
    A(f"s_lshr_b32 s{sT0}, s{sWAVE}, 2")
    A(f"s_add_u32 s{sKQ}, s{sKQ}, s{sT0}")
    if cfg.get("stag", 3) & 1:
        A(f"s_and_b32 s{sT0}, s{sFG}, 1")
        A(f"s_lshl_b32 s{sT0}, s{sT0}, 1")
        A(f"s_xor_b32 s{sKQ}, s{sKQ}, s{sT0}")
    A(f"s_mul_i32 s{sT0}, s{sKQ}, {5*5120}")
    A(f"s_add_u32 s{sWOSRC}, s{sWOSRC}, s{sT0}")
    A(f"s_add_u32 s{sWOSRC}, s{sWOSRC}, {hex(WS_WO)}")
    A(f"s_mul_i32 s{sWDSRC}, s{sFG}, {48*5120}")
    A(f"s_and_b32 s{sT0}, s{sFG}, {3 if cfg.get('stag', 3) & 2 else 0}")
    A(f"s_xor_b32 s{sT0}, s{sT0}, s{sLW}")
    A(f"s_mul_i32 s{sT0}, s{sT0}, 12")
    A(f"s_and_b32 s{sT1}, s{sWAVE}, 4")
    A(f"s_add_u32 s{sWDRAW}, s{sT0}, s{sT1}")
    A(f"s_mul_i32 s{sT0}, s{sWDRAW}, 5120")
    A(f"s_add_u32 s{sWDSRC}, s{sWDSRC}, s{sT0}")
    A(f"s_add_u32 s{sWDSRC}, s{sWDSRC}, {hex(WS_WD)}")
    A(f"s_mul_i32 s{sGSRC}, s{sLW}, {16*3072}")
    A(f"s_mul_i32 s{sT0}, s{sJ}, 192")
    A(f"s_add_u32 s{sGSRC}, s{sGSRC}, s{sT0}")
    A(f"s_mul_i32 s{sGM0}, s{sLW}, 3072")
    if cfg.get("stag", 3) & 4:
        A(f"s_bfe_u32 s{sT0}, s{sM}, 0x10001")
        A(f"s_mul_i32 s{sT0}, s{sT0}, {cfg.get('gth', 5)}")
        A(f"s_mul_i32 s{sC0}, s{sJ}, {cfg.get('gja', 1)}")
        A(f"s_add_u32 s{sC0}, s{sC0}, s{sT0}")
        A(f"s_mul_i32 s{sT0}, s{sC0}, 6554")
        A(f"s_lshr_b32 s{sT0}, s{sT0}, 16")
        A(f"s_mul_i32 s{sT0}, s{sT0}, 10")
        A(f"s_sub_u32 s{sC0}, s{sC0}, s{sT0}")
    else:
        A(f"s_mov_b32 s{sC0}, 0")
    A(f"s_add_u32 s{sGLIM}, s{sGSRC}, {640*3072}")
    A(f"s_mul_i32 s{sT0}, s{sC0}, {64*3072}")
    A(f"s_add_u32 s{sGSRC}, s{sGSRC}, s{sT0}")
    srd(A, SX, SX, X_BYTES); srd(A, SG_, SG_, 640 * 1536 * 2); srd(A, SU, SU, 640 * 1536 * 2); srd(A, SO, SO, X_BYTES)
    A(f"v_add_u32 v{R.KA}, {KV_BASE}, v{R.L16}")
    A(f"v_add_u32 v{R.K2A}, {KV_BASE + 1024}, v{R.L4}")
    r, kh, aa, hf, b, i_, d1, d2 = T, T+1, T+2, T+3, T+4, T+5, T+6, T+7
    A(f"v_lshrrev_b32 v{aa}, 3, v{r}")
    A(f"v_bfe_u32 v{hf}, v{r}, 2, 1")
    A(f"v_and_b32 v{b}, 3, v{r}")
    A(f"v_lshl_add_u32 v{i_}, v{aa}, 2, v{b}")
    A(f"v_lshl_add_u32 v{d1}, v{hf}, 3, v{i_}")
    A(f"v_lshl_add_u32 v{d2}, v{hf}, 1, v{i_}")
    A(f"v_add_u32 v{d2}, 8, v{d2}")
    A(f"v_cmp_gt_u32 vcc, 8, v{i_}")
    A(f"v_cndmask_b32 v{d1}, v{d2}, v{d1}, vcc")
    A(f"v_min_u32 v{d1}, 19, v{d1}")
    A(f"v_mul_u32_u24 v{R.VA}, 320, v{kh}")
    A(f"v_lshl_add_u32 v{R.VA}, v{d1}, 4, v{R.VA}")
    A(f"v_add_u32 v{R.VA}, {KV_BASE + 1280}, v{R.VA}")
    A(f"v_cmp_eq_u32 vcc, 10, v{i_}")
    A(f"v_mov_b32 v{d2}, 0x3f803f80")
    for k in range(8): A(f"v_cndmask_b32 v{R.V1+k}, 0, v{d2}, vcc")
    A(f"v_cmp_gt_u32 vcc, 32, v0")
    A(f"v_mov_b32 v{d1}, 0x3f80")
    A(f"v_cndmask_b32 v{R.K2+1}, v{d1}, v{d2}, vcc")
    A(f"v_mov_b32 v{R.Q2+1}, 0")
    for jj in range(3):
        A(f"v_add_u32 v{T}, {64*jj}, v0")
        A(f"v_mul_u32_u24 v{T+1}, 5462, v{T}")
        A(f"v_lshrrev_b32 v{T+1}, 16, v{T+1}")
        A(f"v_mul_u32_u24 v{R.GV+jj}, {3072-192}, v{T+1}")
        A(f"v_lshl_add_u32 v{R.GV+jj}, v{T}, 4, v{R.GV+jj}")
    A(f"s_mov_b32 s{sVMASK}, 0x0033ffff")
    A(f"s_mov_b32 s{sVMASK+1}, 0x0033ffff")
    S0 = R.S[0]
    X = R.S[1]
    addr_rowmajor(A, R.XRES + 6, R.XRES + 7, X)
    A(f"v_lshlrev_b32 v{R.TCH}, 7, v0")
    A(f"v_mov_b32 v{R.TCH+1}, 0")
    A(f"s_lshl_b64 s[{sTMP}:{sTMP+1}], 1, s{sXCC}")
    A(f"v_mov_b32 v{R.XRES+8}, s{sTMP}")
    A(f"v_mov_b32 v{R.XRES+9}, s{sTMP+1}")
    A(f"s_cmp_ge_u32 s{sWAVE}, 4")
    A(f"s_cselect_b32 s{sTMP}, s{SU}, s{SG_}")
    A(f"s_cselect_b32 s{sTMP+1}, s{SU+1}, s{SG_+1}")
    A(f"s_mov_b32 s{sTMP+2}, {hex(640*1536*2)}")
    A(f"s_mov_b32 s{sTMP+3}, 0x20000")
    A(f"s_cselect_b32 s{sB}, {GU_UP}, 0")
    A(f"s_add_u32 s{sB}, s{sB}, s{sGM0}")
    A(f"s_and_b32 s{sC}, s{sM}, 3")
    A(f"s_lshl_b32 s{sDELTA}, s{sM}, 2")
    A(f"s_add_u32 s{sDELTA}, s{sDELTA}, s{sLW}")
    A(f"s_mul_i32 s{sDELTA}, s{sDELTA}, {12*128}")
    A(f"s_lshl_b32 s{sTO}, s{sG}, 5")
    A(f"s_add_u32 s{sTO}, s{sTO}, s{sM}")
    A(f"s_lshl_b32 s{sTO}, s{sTO}, 3")
    A(f"s_add_u32 s{sTO}, s{sTO}, s{sWAVE}")
    if cfg.get("ctouch", 1):
        code_touch_setup(A, 88, "L_attn_code")
        A(f"s_and_b32 s{sT0}, s{sTO}, 255")
        A(f"s_lshl_b32 s{sT0}, s{sT0}, 7")
        A(f"v_lshlrev_b32 v{X}, 15, v0")
        A(f"v_add_u32 v{X}, s{sT0}, v{X}")
        A(f"v_min_u32 v{R.GV+3}, L_code_end-L_attn_code-4, v{X}")

    A(f"s_mul_i32 s{sT0}, s{sQT}, {2*80*256}")
    A(f"s_lshr_b32 s{sT1}, s{sHD}, 3")
    A(f"s_mul_i32 s{sT1}, s{sT1}, {20*256}")
    A(f"s_add_u32 s{sT0}, s{sT0}, s{sT1}")
    A(f"s_add_u32 s{sT0}, s{sT0}, {hex(WS_O)}")
    L32 = cfg.get("l32", 1)
    A(f"s_lshl_b32 s{sFL0}, s{sFL0}, {12 if L32 else 10}")
    A(f"s_lshl_b32 s{sT2}, s{sHD}, {7 if L32 else 2}")
    A(f"s_add_u32 s{sFL0}, s{sFL0}, s{sT2}")
    A(f"s_add_u32 s{sFL0}, s{sFL0}, {hex(WS_SYNC + (8192 if L32 else 0))}")
    A(f"s_and_b32 s{sT2}, s{sHD}, 7")
    A(f"s_lshl_b32 s{sT1}, s{sT2}, 9")
    A(f"s_add_u32 s{sT1}, s{sT1}, s{sT0}")
    A(f"s_lshl_b32 s{sT2}, s{sT2}, 7")
    A(f"s_add_u32 s{sT0}, s{sT0}, s{sT2}")
    A(f"s_add_u32 s{sT0}, s{sT0}, {16*256}")
    A(f"v_and_b32 v{X}, 15, v0")
    A(f"v_bfe_u32 v{X+1}, v0, 4, 1")
    A(f"v_lshrrev_b32 v{X+2}, 5, v0")
    A(f"v_mul_u32_u24 v{X+1}, {80*256}, v{X+1}")
    A(f"v_lshl_add_u32 v{T+7}, v{X}, 3, v{X+1}")
    A(f"v_add_u32 v{T+7}, s{sT0}, v{T+7}")
    A(f"v_lshl_add_u32 v{T+6}, v{X}, 4, v{X+1}")
    A(f"v_lshl_add_u32 v{T+6}, v{X+2}, 8, v{T+6}")
    A(f"v_add_u32 v{T+6}, s{sT1}, v{T+6}")
    A(f"s_mov_b32 s92, {fhex(2.0**-40)}")
    A(f"s_mov_b32 s93, {fhex(2.0**64)}")
    A(f"s_mov_b32 s94, {fhex(2.0**127)}")
    JUNK = R.XRES + 11
    def gu_op(c, jj):
        return [f"s_add_u32 m0, s{sB}, {c*GU_SLOT + jj*1024}", "s_nop 0",
                f"buffer_load_dwordx4 v{R.GV+jj}, s[{sTMP}:{sTMP+3}], s{sGSRC} offen lds"] + ([f"s_add_u32 s{sGSRC}, s{sGSRC}, {64*3072}", f"s_cmp_eq_u32 s{sGSRC}, s{sGLIM}", f"s_cselect_b32 s{sT0}, {640*3072}, 0", f"s_sub_u32 s{sGSRC}, s{sGSRC}, s{sT0}"] if jj == 2 else [])
    def touch(n, srd_, pre):
        return pre + [f"s_bfm_b64 exec, {n}, 0", f"buffer_load_dword v{JUNK}, v{R.TCH}, s[{srd_}:{srd_+3}], s{sT0} offen", "s_mov_b64 exec, -1"]
    def gu_touch(c): return touch(12, sTMP, [f"s_add_u32 s{sT0}, s{sDELTA}, {c*64*3072}"])
    def out_touch(base, nbytes, l0=0, n=None):
        return touch(n or nbytes // 128, SWS, [f"s_mul_i32 s{sT0}, s{sTO}, {nbytes}", f"s_add_u32 s{sT0}, s{sT0}, {hex(base + l0*128)}",
                                          f"s_cmp_lg_u32 s{sFAST}, 0", f"s_cselect_b32 s{sT0}, s{sT0}, {hex(WS_SIZE)}"])
    sched = {t: [] for t in range(64)}
    trs = {}
    misc = {}
    vm = []
    def put(t, tag, op):
        while len(sched[t]) >= 3: t += 1
        sched[t].append((tag, op)); return t
    for i, op in enumerate(kv_ops(1)): put(i // 2, "kv1", op)
    for c in range(2, 8):
        for i, op in enumerate(kv_ops(c)): put(8 * (c - 2) + 6 + i // 2, f"kv{c}", op)
    pf = []
    def frag_op(src, i, dst):
        pre = [f"s_add_u32 s{sSTG}, s{src}, {i*1024}"] if i % 4 == 0 else []
        return pre + [f"buffer_load_dwordx4 {a(dst+4*i,4)}, v{R.L16}, s[{SWS}:{SWS+3}], s{sSTG} offen offset:{(i%4)*1024}"]
    for i in range(10): pf.append(frag_op(sWDSRC, i, 100))
    for i in range(25): pf.append(frag_op(sWOSRC, i, 0))
    for c in range(4):
        for jj in range(3): pf.append(gu_op(c, jj))
    if cfg.get("nopf"): pf = []
    free = [t for t in range(cfg.get('pf0', 2), 64) if t % 8 < cfg.get('pfm', 6) or t > 48]
    num, den = cfg.get("pf_rate", [1, 1])
    for i, op in enumerate(pf): put(free[i * den // num], "pf", op)
    put(0, "at", ["s_cmp_eq_u32 s%d, 0" % sWAVE, f"s_cselect_b32 s{sT0}, s{sFLAG}, {hex(WS_SIZE)}", "s_mov_b64 exec, 1",
                  f"buffer_atomic_add_x2 {v(R.XRES+8,2)}, v{R.TCH+1}, s[{SWS}:{SWS+3}], s{sT0} offen offset:512 sc1", "s_mov_b64 exec, -1"])
    put(12, "pf", [f"buffer_load_dwordx4 {v(R.XRES,4)}, v{R.XRES+6}, s[{SX}:{SX+3}], 0 offen"])
    put(16, "pf", [f"buffer_load_dwordx2 {v(R.XRES+4,2)}, v{R.XRES+7}, s[{SX}:{SX+3}], 0 offen"])
    put(cfg.get("xcc_ld", 10), "xcc", [f"buffer_load_dwordx2 {v(R.XRES+8,2)}, v{R.TCH+1}, s[{SWS}:{SWS+3}], s{sFLAG} offen offset:512 sc1"])
    misc[cfg.get('xcc_rd', 23)] = ("xcc", [f"v_readfirstlane_b32 s{sFAST-1}, v{R.XRES+8}" , f"v_readfirstlane_b32 s{sFAST}, v{R.XRES+9}"])
    gwarm = touch(15, sTMP, [f"s_lshr_b32 s{sT0}, s{sTO}, 3", f"s_lshl_b32 s{sT0}, s{sT0}, 2", f"s_add_u32 s{sT0}, s{sT0}, s{sLW}", f"s_mul_i32 s{sT0}, s{sT0}, {15*128}"])
    if cfg.get("gwarm_at", -1) >= 0: put(cfg.get("gwarm_at", -1), "pf", gwarm)
    wd01_touch = touch(20, SWS, [f"s_mul_i32 s{sT0}, s{sC}, 2560", f"s_add_u32 s{sT0}, s{sT0}, s{sWDSRC}"])
    wo_touch = touch(25, SWS, [f"s_lshr_b32 s{sT0}, s{sWAVE}, 2", f"s_lshl_b32 s{sT1}, s{sC}, 1", f"s_add_u32 s{sT0}, s{sT0}, s{sT1}",
                               f"s_mul_i32 s{sT0}, s{sT0}, 3200", f"s_add_u32 s{sT0}, s{sT0}, s{sWOSRC}"])
    gw2 = touch(6, sTMP, [f"s_lshr_b32 s{sT0}, s{sTO}, 3", f"s_lshl_b32 s{sT0}, s{sT0}, 2", f"s_add_u32 s{sT0}, s{sT0}, s{sLW}", f"s_mul_i32 s{sT0}, s{sT0}, {6*128}",
                          f"s_add_u32 s{sT0}, s{sT0}, {6*64*3072}"])
    def gwp(k, n):
        return touch(n, sTMP, [f"s_lshr_b32 s{sT0}, s{sTO}, 3", f"s_lshl_b32 s{sT0}, s{sT0}, 2", f"s_add_u32 s{sT0}, s{sT0}, s{sLW}", f"s_mul_i32 s{sT0}, s{sT0}, {n*128}",
                               f"s_add_u32 s{sT0}, s{sT0}, {k*n*1024*128}"])
    extra = {"p0": gwp(0, 5), "p1": gwp(1, 5), "p2": gwp(2, 5), "q0": gwp(0, 3), "q1": gwp(1, 3), "q2": gwp(2, 3), "q3": gwp(3, 3), "q4": gwp(4, 3), "wd01": wd01_touch, "wo": wo_touch, "gw2": gw2, "gw": gwarm}
    def wdt(k): return touch(20, SWS, [f"s_lshl_b32 s{sT0}, s{sM}, 3", f"s_add_u32 s{sT0}, s{sT0}, s{sWAVE}", f"s_mul_i32 s{sT0}, s{sT0}, {60*128}", f"s_add_u32 s{sT0}, s{sT0}, {WS_WD + k*20*128}"])
    extra.update({"d0": wdt(0), "d1": wdt(1), "d2": wdt(2)})
    wd_touch = None
    for t, op in cfg_touch_plan(cfg, gu_touch, out_touch, wd_touch, extra): put(t, "pf", op)
    HIDT = None
    if cfg.get("tlb", 0) & 2:
        put(20, "pf", ["s_mov_b64 exec, 1", f"buffer_load_dword v{JUNK}, v{R.XRES+6}, s[{SO}:{SO+3}], 0 offen", "s_mov_b64 exec, -1"])
    if cfg.get("ctouch", 1):
        for t in cfg.get("ct_at", [1, 52]):
            put(t, "pf", ["s_mov_b64 exec, 3", f"global_load_dword v{JUNK}, v{R.GV+3}, s[88:89]", "s_mov_b64 exec, -1"])

    if PSP:
        A(f"s_cmp_lt_u32 s{sWAVE}, {PSP}")
        A("s_cbranch_scc1 L_p1")
        A("s_waitcnt vmcnt(0)")
        for op in kv_ops(0): emit(op)
        A.label("L_p1")
    A("s_waitcnt vmcnt(4)")
    A(f"v_mfma_f32_32x32x16_bf16 {v(S0,16)}, {v(R.K1,4)}, {v(R.Q1,4)}, 0")
    A(f"v_mfma_f32_32x32x8_bf16 {v(S0,16)}, {v(R.K2,2)}, {v(R.Q2,2)}, {v(S0,16)}")
    max16(A, R.P, S0, True)
    xhalf_max(A, R.P, R.P+1)
    set_shift(A, R.P)
    A(f"v_mfma_f32_32x32x16_bf16 {v(S0,16)}, {v(R.K1,4)}, {v(R.Q1,4)}, 0")
    A(f"v_mfma_f32_32x32x8_bf16 {v(S0,16)}, {v(R.K2,2)}, {v(R.Q2,2)}, {v(S0,16)}")
    def toff(t): return ((t // 8) % 3) * KV_SLOT + (t % 8) * 2560
    def tdelta(t): return 0
    if PSP:
        A(f"s_cmp_ge_u32 s{sWAVE}, {PSP}")
        A("s_nop 1")
        A("s_cbranch_scc1 L_p2")
    A("s_waitcnt vmcnt(0)")
    A.label("L_p2")
    A("s_barrier")
    vm += ["kv0"] * 4
    A(f"ds_read_b128 {v(R.K1,4)}, v{R.KA} offset:{toff(1)}")
    A(f"ds_read_b32 v{R.K2}, v{R.K2A} offset:{toff(1)}")
    A(f"s_mov_b64 exec, s[{sVMASK}:{sVMASK+1}]")
    A(f"ds_read_b128 {v(R.V1,4)}, v{R.VA}")
    A("s_mov_b64 exec, -1")
    stamp(A, cfg, 1)
    PRIO = cfg.get("prio", {6: 3, 2: 2, 4: 1, 5: 0})
    A("s_setprio 3")
    A.label("L_attn_code")
    def vwait(tag): A(f"s_waitcnt vmcnt({len(vm) - 1 - max(i for i, x in enumerate(vm) if x == tag)})")
    for t in range(64):
        cur, nxt = R.S[t % 2], R.S[(t + 1) % 2]
        def E(i): A(f"v_exp_f32 v{cur+i}, v{cur+i}")
        def C(k): A(f"v_cvt_pk_bf16_f32 v{R.P+k}, v{cur+2*k}, v{cur+2*k+1}")
        ops_t = list(sched[t])
        def V():
            if ops_t:
                tag, op = ops_t.pop(0); emit(op); vm.append(tag)
        tr = []
        if t in trs: tr = list(trs[t][1])
        def L(n):
            for _ in range(n):
                if tr: A(tr.pop(0))
        if PSP and t == PSP - 2:
            vwait("kv0")
            A("s_barrier")
        if t % 8 == 6 and t < 56:
            vwait(f"kv{t//8+1}")
            A("s_barrier")
        if cfg.get("ats") and t % 8 == 6: A(f"s_memtime s[{64+2*(t//8)}:{65+2*(t//8)}]")
        if t < 56 and t % 8 in PRIO: A(f"s_setprio {PRIO[t % 8]}")
        if t >= 56 and (t - 2) % 8 in PRIO and t > 56: A(f"s_setprio {PRIO[(t - 2) % 8]}")
        if t < 63:
            A(f"s_waitcnt lgkmcnt({2 if t else 1})")
            A(f"v_mfma_f32_32x32x16_bf16 {v(nxt,16)}, {v(R.K1,4)}, {v(R.Q1,4)}, 0")
        E(0); E(1); V(); E(2); C(0); E(3)
        A("s_waitcnt lgkmcnt(0)")
        if t: A(f"v_mfma_f32_32x32x16_bf16 {v(R.O,16)}, {v(R.V2,4)}, {v(R.P+4,4)}, {v(R.O,16)}")
        if t in trs and trs[t][0]: vwait(trs[t][0])
        if t in misc:
            vwait(misc[t][0])
            A(f"s_mov_b32 s{sT1}, s{sFAST-1}")
            emit(misc[t][1])
            A(f"s_lshr_b64 s[{sFAST-1}:{sFAST}], s[{sFAST-1}:{sFAST}], s{sXCC}")
            A(f"s_and_b32 s{sFAST}, s{sFAST-1}, 63")
            A(f"s_mov_b32 s{sFAST-1}, s{sT1}")
            A(f"s_cmp_eq_u32 s{sFAST}, 32")
            A(f"s_cselect_b32 s{sFAST}, {0 if cfg.get('noFast') else 1}, 0")
        L(2); E(4); C(1); L(2); E(5); V(); E(6); L(1); C(2); E(7)
        if t < 63: A(f"v_mfma_f32_32x32x8_bf16 {v(nxt,16)}, {v(R.K2,2)}, {v(R.Q2,2)}, {v(nxt,16)}")
        if t < 62:
            if tdelta(t + 2):
                A(f"v_add_u32 v{R.KA}, {tdelta(t+2)}, v{R.KA}")
                A(f"v_add_u32 v{R.K2A}, {tdelta(t+2)}, v{R.K2A}")
            A(f"ds_read_b128 {v(R.K1,4)}, v{R.KA} offset:{toff(t+2)}")
            A(f"ds_read_b32 v{R.K2}, v{R.K2A} offset:{toff(t+2)}")
        E(8); C(3); E(9); V(); E(10); C(4); E(11)
        A(f"v_mfma_f32_32x32x16_bf16 {v(R.O,16)}, {v(R.V1,4)}, {v(R.P,4)}, {v(R.O,16) if t else 0}")
        A(f"s_mov_b64 exec, s[{sVMASK}:{sVMASK+1}]")
        A(f"ds_read_b128 {v(R.V2,4)}, v{R.VA} offset:{toff(t) + 640}")
        if t < 63:
            if tdelta(t + 1): A(f"v_add_u32 v{R.VA}, {tdelta(t+1)}, v{R.VA}")
            A(f"ds_read_b128 {v(R.V1,4)}, v{R.VA} offset:{toff(t+1)}")
        A("s_mov_b64 exec, -1")
        E(12); C(5); E(13); E(14); E(15); C(6); C(7)
        assert not ops_t and not tr
    A("s_waitcnt lgkmcnt(0)")
    A(f"v_mfma_f32_32x32x16_bf16 {v(R.O,16)}, {v(R.V2,4)}, {v(R.P+4,4)}, {v(R.O,16)}")
    A.label("L_post_attn")
    if cfg.get("ats"):
        for c in range(11): A(f"s_sub_u32 s{65+2*c}, s{64+2*c}, s63")
        A("v_mov_b32 v78, v0")
        A("v_mov_b32 v110, v2")
        A("v_mov_b32 v109, v3")
        stamp_flush(A, cfg, 13, 17, SWS, sWAVE, 0)
        A("s_mov_b64 exec, -1")
        A("v_mov_b32 v0, v78")
        A("v_mov_b32 v2, v110")
        A("v_mov_b32 v3, v109")
    A("s_setprio 0")
    stamp(A, cfg, 2)
    N = R.S[0]
    A(f"v_rcp_f32 v{T}, v{R.O+10}")
    A(f"v_max3_f32 v{T+1}, abs(v{R.O}), abs(v{R.O+1}), abs(v{R.O+2})")
    A(f"v_cmp_le_f32 vcc, s92, v{R.O+10}")
    A(f"v_cmp_ge_f32 s[{sTMP}:{sTMP+1}], s93, v{R.O+10}")
    for k in (3, 5, 7): A(f"v_max3_f32 v{T+1}, v{T+1}, abs(v{R.O+k}), abs(v{R.O+k+1})")
    A(f"v_max_f32_e64 v{T+1}, v{T+1}, abs(v{R.O+9})")
    A(f"s_and_b64 vcc, vcc, s[{sTMP}:{sTMP+1}]")
    A(f"v_cmp_ge_f32 s[{sTMP+2}:{sTMP+3}], s94, v{T+1}")
    def norm():
        for k in (8, 9, 0, 1, 2, 3, 4, 5, 6, 7): A(f"v_mul_f32 v{N+k}, v{T}, v{R.O+k}")
    norm()
    A(f"s_and_b64 vcc, vcc, s[{sTMP+2}:{sTMP+3}]")
    A(f"s_cmp_eq_u64 vcc, -1" if not cfg.get("force_slow") else "s_cmp_eq_u32 s2, -1")
    A("s_cbranch_scc0 L_attn_slow")
    A.label("L_attn_norm")
    A(f"v_cvt_pk_bf16_f32 v{N+10}, v{N+8}, v{N+9}")
    A(f"v_cvt_pk_bf16_f32 v{N+11}, v{N+8}, v{N+9}")
    for k in range(4): A(f"v_cvt_pk_bf16_f32 v{N+k}, v{N+2*k}, v{N+2*k+1}")
    A(f"v_permlane32_swap_b32 v{N+10}, v{N+11}")
    stores(A, [f"buffer_store_dwordx4 {v(N,4)}, v{T+6}, s[{SWS}:{SWS+3}], 0 offen",
               "s_mov_b32 exec_hi, 0",
               f"buffer_store_dwordx2 {v(N+10,2)}, v{T+7}, s[{SWS}:{SWS+3}], 0 offen",
               "s_mov_b32 exec_hi, -1"], data="O")
    A(f"v_and_b32 v{T+4}, 15, v0")
    A(f"v_lshrrev_b32 v{T+3}, 5, v0")
    A(f"v_lshlrev_b32 v{T+1}, 4, v{T+4}")
    A(f"v_lshl_add_u32 v{T+1}, v{T+3}, 8, v{T+1}")
    A(f"v_lshrrev_b32 v{T+5}, 4, v0")
    A(f"v_lshlrev_b32 v{T+5}, 8, v{T+5}")
    A(f"v_lshl_add_u32 v7, v{T+4}, 3, v{T+5}")
    A(f"v_add_u32 v7, 4096, v7")

    BF, ACC = 16, 56
    vHP, vHS, vPW, RA = 108, 109, 3, 5
    A(f"s_lshr_b32 s{sT2}, s{sWAVE}, 2")
    A(f"s_mul_i32 s{sT1}, s{sKQ}, {20*256}")
    A(f"s_add_u32 s{sT1}, s{sT1}, {hex(WS_O)}")
    A(f"s_add_u32 s{sB2}, s{sLW}, s{sTOK16}")
    A(f"s_xor_b32 s{sB}, s{sB2}, 1")
    A(f"s_mul_i32 s{sB}, s{sB}, {80*256}")
    A(f"s_add_u32 s{sB}, s{sB}, s{sT1}")
    A(f"s_mul_i32 s{sB2}, s{sB2}, {80*256}")
    A(f"s_add_u32 s{sB2}, s{sB2}, s{sT1}")
    A(f"s_xor_b32 s{sT0}, s{sLW}, 1")
    A(f"s_mul_i32 s{sT0}, s{sT0}, 5120")
    A(f"s_add_u32 s{sT0}, s{sT0}, {PART_BASE}")
    A(f"v_add_u32 v{vPW}, s{sT0}, v{R.L16}")
    A(f"s_mul_i32 s{sT0}, s{sLW}, 5120")
    A(f"s_add_u32 s{sT0}, s{sT0}, {PART_BASE}")
    A(f"v_add_u32 v6, s{sT0}, v{R.L16}")
    A(f"s_add_u32 s{sT0}, s{sLW}, s{sTOK16}")
    A(f"s_lshl_b32 s{sC}, s{sT0}, 11")
    A(f"s_mul_i32 s{sT0}, s{sT0}, {80*256}")
    A(f"s_mul_i32 s{sT1}, s{sFG}, 2560")
    A(f"s_add_u32 s{sT0}, s{sT0}, s{sT1}")
    A(f"s_add_u32 s{sT0}, s{sT0}, {hex(WS_H)}")
    A(f"v_add_u32 v{T+1}, 2048, v{T+1}")
    A(f"v_add_u32 v{vHS}, s{sT0}, v{T+1}")
    A(f"s_lshl_b32 s{sT1}, s{sT2}, 10")
    A(f"s_add_u32 s{sT0}, s{sT0}, s{sT1}")
    A(f"v_add_u32 v{vHP}, s{sT0}, v{R.L16}")
    A(f"s_lshl_b32 s{sT1}, s{sFG}, 1")
    A(f"s_add_u32 s{sT1}, s{sT1}, s{sT2}")
    A(f"s_lshl_b32 s{sT1}, s{sT1}, 7")
    A(f"s_add_u32 s{sC}, s{sC}, s{sT1}")
    A(f"s_add_u32 s{sC}, s{sC}, {hex(WS_ST2)}")
    reduce_addr(A, 3, PART_BASE, RA)
    sGT = sQT
    A(f"s_and_b32 s{sGT}, s{sTOK16}, -8")
    A(f"s_lshl_b32 s{sT0}, s{sLW}, 1")
    A(f"s_add_u32 s{sGT}, s{sGT}, s{sT0}")
    sHSRC, sHM0 = sKBASE, sVBASE
    A(f"s_mul_i32 s{sHSRC}, s{sGT}, {80*256}")
    A(f"s_add_u32 s{sHSRC}, s{sHSRC}, {hex(WS_H)}")
    A(f"s_lshl_b32 s{sHM0}, s{sLW}, 12")
    A(f"s_add_u32 s{sTO}, s{sHSRC}, {80*256}")
    A(f"s_lshl_b32 s{sT0}, s{sC0}, 11")
    A(f"s_add_u32 s{sHSRC}, s{sHSRC}, s{sT0}")
    stamp(A, cfg, 3)
    M8 = 0x0101010101010101
    sync(A, 0, 0, False, 0, rb=[(M8, [f"buffer_load_dword v{JUNK}, v{T+6}, s[{SWS}:{SWS+3}], 0 offen"]),
                                (0x00010001, [f"buffer_load_dword v{JUNK}, v{T+7}, s[{SWS}:{SWS+3}], 0 offen"])])
    stamp(A, cfg, 4)
    def wo_load(q, BF=BF):
        i, st = divmod(q, 5)
        if st < 4: A(f"buffer_load_dwordx4 {v(BF+20*i+4*st,4)}, v{R.L16}, s[{SWS}:{SWS+3}], s{sB2 if i else sB} offen offset:{st*1024} {cfg.get('wold', 'sc1')}")
        else:
            for e in range(2): A(f"buffer_load_dwordx2 {v(BF+20*i+16+2*e,2)}, v7, s[{SWS}:{SWS+3}], s{sB2 if i else sB} offen offset:{128*e} {cfg.get('wold', 'sc1')}")
        return [q] * (2 if st == 4 else 1)
    WL0 = cfg.get("wl0", 4)
    wq0 = []
    for q in range(WL0): wq0 += wo_load(q)
    if cfg.get("wts"): A("s_memtime s[72:73]")
    EW = cfg.get("ew", [4, 1, 0])
    FSUB = lambda f: 1 if f in (2, 3) else 0
    def wo_main(sub, ACC=ACC, BF=BF, vPW=vPW):
        keep = [f for f in range(5) if FSUB(f) == sub]
        order = [f for f in range(5) if f not in keep] + keep
        wq = list(wq0); nq = WL0
        for i in range(2):
            for st in range(5):
                A(f"s_waitcnt vmcnt({len(wq) - 1 - max(k for k, x in enumerate(wq) if x == 5*i+st)})")
                for _ in range(cfg.get("wlr", 1)):
                    if nq < 10: wq += wo_load(nq); nq += 1
                if cfg.get("wts") and (5 * i + st) in (0, 2, 4, 5, 7, 9): A(f"s_memtime s[{74+2*(0,2,4,5,7,9).index(5*i+st)}:{75+2*(0,2,4,5,7,9).index(5*i+st)}]")
                for f in order:
                    acc = v(ACC + 20 * i + 4 * f, 4)
                    A(f"v_mfma_f32_16x16x32_bf16 {acc}, {a(20*st+4*f,4)}, {v(BF+20*i+4*st,4)}, {acc if st else 0}")
                if i == 1:
                    f = order[st]
                    A(f"ds_write_b128 v{vPW}, {v(ACC+4*f,4)} offset:{(1 if FSUB(f) == sub else 2)*20480 + f*1024}")
        for f in order:
            if f not in keep: A(f"ds_write_b128 v6, {v(ACC+20+4*f,4)} offset:{f*1024}")
        for op in (load_wd_ops(2) + load_wd_ops(3))[:EW[0]]: emit(op)
        stamp(A, cfg, 5)
        if cfg.get("wts"):
            for k in range(7): A(f"s_sub_u32 s{73+2*k}, s{72+2*k}, s69")
            A("s_sub_u32 s71, s71, s69")
            A("v_mov_b32 v110, v0")
            A("v_mov_b32 v1, v3")
            stamp_flush(A, cfg, 13, 17, SWS, sWAVE, cfg.get("tswave", 0))
            A("s_mov_b64 exec, -1")
            A("v_mov_b32 v0, v110")
            A("v_mov_b32 v3, v1")
        return [ACC + 20 + 4 * f for f in keep]
    D = 16
    TRA, VB, VST = 1, 2, 3
    G1, Gh, rho, c0, c1 = T+2, T+3, T+4, T+5, T+6
    def wo_tail(n):
        own = wo_main(3 - n)
        XF = 56
        A("s_waitcnt lgkmcnt(0)")
        A("s_barrier")
        def mid():
            for op in (load_wd_ops(2) + load_wd_ops(3))[EW[0]:EW[0]+EW[1]]: emit(op)
            for i in range(2 * n):
                A(f"v_lshlrev_b32 v{XF+2*i}, 16, v{R.XRES+i}")
                A(f"v_and_b32 v{XF+2*i+1}, 0xffff0000, v{R.XRES+i}")
            for i in range(2 * n): A(f"v_pk_add_f32 {v(own[i//2]+2*(i%2),2)}, {v(own[i//2]+2*(i%2),2)}, {v(XF+2*i,2)}")
            A(f"v_mov_b32 v{T+2}, 0x3f803f80")
            A(f"v_lshlrev_b32 v{T+3}, 3, v0")
        reduce_sum(A, 3, D, RA, n, own, mid)
        src = lambda i: own[i // 2] + 2 * (i % 2)
        for i in range(4): A(f"v_cvt_pk_bf16_f32 v{D+i}, v{src(i)}, v{src(i)+1}")
        stores(A, [f"buffer_store_dwordx4 {v(D,4)}, v{vHP}, s[{SWS}:{SWS+3}], 0 offen"])
        if n == 3:
            E = D + 12
            for i in range(4): A(f"v_cvt_pk_bf16_f32 v{E+i}, v{src(4+i%2)}, v{src(4+i%2)+1}")
            for i in (4, 5): A(f"v_cvt_pk_bf16_f32 v{D+i}, v{src(i)}, v{src(i)+1}")
            A(f"v_permlane16_swap_b32 v{E}, v{E+2}")
            A(f"v_permlane16_swap_b32 v{E+1}, v{E+3}")
            stores(A, ["s_mov_b32 exec_lo, 0xffff", "s_mov_b32 exec_hi, 0xffff",
                       f"buffer_store_dwordx4 {v(E,4)}, v{vHS}, s[{SWS}:{SWS+3}], 0 offen", "s_mov_b64 exec, -1"])
        sm, sq = D + 8, D + 9
        for i in range(2 * n):
            A(f"v_dot2_f32_bf16 v{sm}, v{D+i}, v{T+2}, {'v%d' % sm if i else 0}")
            A(f"v_dot2_f32_bf16 v{sq}, v{D+i}, v{D+i}, {'v%d' % sq if i else 0}")
        for i in range(3): A(f"v_accvgpr_write_b32 a{A_RES(i)}, v{D+i}")
        for op in ("v_permlane16_swap_b32", "v_permlane32_swap_b32"):
            A(f"v_mov_b32 v{T}, v{sm}")
            A(f"v_mov_b32 v{T+1}, v{sq}")
            A(f"{op} v{sm}, v{T}")
            A(f"{op} v{sq}, v{T+1}")
            A(f"v_pk_add_f32 {v(sm,2)}, {v(sm,2)}, {v(T,2)}")
        A("s_mov_b64 exec, 0xffff")
        stores(A, [f"buffer_store_dwordx2 {v(sm,2)}, v{T+3}, s[{SWS}:{SWS+3}], s{sC} offen"])
        A("s_mov_b64 exec, -1")
        for op in (load_wd_ops(2) + load_wd_ops(3))[EW[0]+EW[1]:sum(EW)]: emit(op)
        for i in range(3, 2 * n): A(f"v_accvgpr_write_b32 a{A_RES(i)}, v{D+i}")
        A(f"v_bfe_u32 v{G1}, v0, 4, 1")
        A(f"v_lshrrev_b32 v{Gh}, 5, v0")
        A(f"v_bfe_u32 v{rho}, v0, 2, 2")
        A(f"v_and_b32 v{c0}, 1, v0")
        A(f"v_bfe_u32 v{c1}, v0, 1, 1")
        A(f"v_lshl_add_u32 v{TRA}, v{Gh}, 3, v{rho}")
        A(f"v_mul_u32_u24 v{TRA}, 192, v{TRA}")
        A(f"v_mul_u32_u24 v{c1}, {GU_UP}, v{c1}")
        A(f"v_add_u32 v{TRA}, v{TRA}, v{c1}")
        A(f"v_lshl_add_u32 v{TRA}, v{c0}, 4, v{TRA}")
        A(f"v_lshl_add_u32 v{TRA}, v{G1}, 3, v{TRA}")
    def h_dma_ops(c):
        return [[f"s_add_u32 m0, s{sHM0}, {H_BASE + (c%NHS)*16384 + k*1024}", f"s_add_u32 s{sT0}, s{sHSRC}, {(k//2)*80*256 + (k%2)*1024}",
                 f"buffer_load_dwordx4 v{R.L16}, s[{SWS}:{SWS+3}], s{sT0} offen sc1 lds"] +
                ([f"s_add_u32 s{sHSRC}, s{sHSRC}, 2048", f"s_cmp_eq_u32 s{sHSRC}, s{sTO}", f"s_cselect_b32 s{sT0}, {80*256}, 0",
                  f"s_sub_u32 s{sHSRC}, s{sHSRC}, s{sT0}"] if k == 3 else []) for k in range(4)]
    A(f"s_cmp_ge_u32 s{sWAVE}, 4")
    A("s_cbranch_scc1 L_gu_loader")
    wo_tail(3)

    L_CF = GU_MISC
    L_MB = GU_MISC + 3072
    L_RS = GU_MISC + 4096
    ACC, FR = 16, 0
    CFA = 0
    MB = T
    sTH, sFH = sKSRC, sVSRC
    A(f"s_and_b32 s{sTH}, s{sWAVE}, 1")
    A(f"s_lshr_b32 s{sFH}, s{sWAVE}, 1")
    A(f"s_mul_i32 s{sT0}, s{sFH}, 96")
    A(f"v_add_u32 v{TRA}, s{sT0}, v{TRA}")
    SEL, CSA = 40, 44
    A(f"v_lshrrev_b32 v{T}, 2, v0")
    A(f"v_xor_b32 v{T}, v{T}, v0")
    A(f"v_and_b32 v{T}, 4, v{T}")
    A(f"v_cmp_eq_u32 vcc, 0, v{T}")
    A(f"v_mov_b32 v{T}, 0x3f803f80")
    A(f"v_cndmask_b32 v{T}, 0, v{T}, vcc")
    for i in range(4): A(f"v_accvgpr_write_b32 a{SEL+i}, v{T}")
    TRH, VBH = 5, 6
    A(f"s_mul_i32 s{sT0}, s{sTH}, {32*192}")
    A(f"v_subrev_u32 v{TRH}, s{sT0}, v{TRA}")
    A(f"v_add_u32 v{TRA}, s{sT0}, v{TRA}")
    A(f"v_and_b32 v{VB}, 15, v0")
    A(f"v_lshlrev_b32 v{VB}, 4, v{VB}")
    A(f"v_lshl_add_u32 v{VB}, v{Gh}, 8, v{VB}")
    A(f"v_mul_u32_u24 v{VST}, {192*256}, v{G1}")
    A(f"v_add_u32 v{VST}, v{VST}, v{VB}")
    A(f"v_lshl_add_u32 v{VB}, v{G1}, 11, v{VB}")
    A(f"s_lshl_b32 s{sT0}, s{sTH}, 13")
    A(f"s_add_u32 s{sT0}, s{sT0}, {H_BASE}")
    A(f"v_add_u32 v{VB}, s{sT0}, v{VB}")
    A(f"s_lshl_b32 s{sT0}, s{sTH}, 10")
    A(f"v_subrev_u32 v{VBH}, s{sT0}, v{VB}")
    A(f"v_add_u32 v{VB}, s{sT0}, v{VB}")
    lq = []
    def gread(st, what):
        c, sl = divmod(st, 4)
        b = FR + 20 * (st % 2)
        if what[0] == "A":
            t = int(what[1])
            for u in range(2):
                A(f"ds_read_b64_tr_b16 {a(b+4*t+2*u,2)}, v{TRA if sl < 2 else TRH} offset:{(16*sl+4*u)*192 + 32*t}"); lq.append((st, what))
        else:
            i = int(what[1])
            A(f"ds_read_b128 {a(b+12+4*i,4)}, v{VB if sl < 2 else VBH} offset:{(c%NHS)*16384 + i*4096 + sl*512}"); lq.append((st, what))
    for w in ("A0", "A1", "A2"): gread(0, w)
    A(f"s_mul_i32 s{sT0}, s{sFH}, 1536")
    A(f"s_add_u32 s{sT0}, s{sT0}, {L_CF}")
    A(f"v_lshlrev_b32 v{T+6}, 3, v0")
    A(f"v_add_u32 v{T+6}, s{sT0}, v{T+6}")
    A(f"v_and_b32 v{T+7}, 31, v0")
    A(f"v_lshlrev_b32 v{T+7}, 3, v{T+7}")
    A(f"s_lshl_b32 s{sT0}, s{sTH}, 9")
    A(f"s_add_u32 s{sT0}, s{sT0}, {L_MB}")
    A(f"v_add_u32 v{T+7}, s{sT0}, v{T+7}")
    stamp(A, cfg, 6)
    sync(A, 1, 0, True, EW[2], rb=[(M8, [f"buffer_load_dword v7, v{vHP}, s[{SWS}:{SWS+3}], 0 offen"]),
                               (0x0000010100000101, [f"buffer_load_dword v7, v{vHS}, s[{SWS}:{SWS+3}], 0 offen"])])
    stamp(A, cfg, 7)
    if cfg.get("gts"): A("s_mov_b32 s90, s75")
    for op in h_dma_ops(0)[:2]: emit(op)
    A("s_waitcnt vmcnt(0)")
    A("s_barrier")
    for w in ("B0", "B1"): gread(0, w)
    wd3 = (load_wd_ops(2) + load_wd_ops(3))[sum(EW):]
    def lwait(tag): A(f"s_waitcnt lgkmcnt({min(15, len(lq) - 1 - max(i for i, x in enumerate(lq) if x == tag))})")
    for st in range(40):
        c, sl = divmod(st, 4)
        nxt = st + 1 < 40
        bar = sl == 3 and nxt
        if bar:
            A("s_waitcnt lgkmcnt(0)")
            if cfg.get("gts") == 2: A(f"s_memtime s[{60+2*c}:{61+2*c}]")
            A("s_barrier")
            if cfg.get("gts") == 1: A(f"s_memtime s[{60+2*c}:{61+2*c}]")
            d = GU_SLOT if (c + 1) % NWS else -(NWS - 1) * GU_SLOT
            A(f"v_add_u32 v{TRA}, {d & 0xffffffff}, v{TRA}")
            A(f"v_add_u32 v{TRH}, {d & 0xffffffff}, v{TRH}")
        if st == 39:
            A("s_waitcnt lgkmcnt(0)")
            A("s_barrier")
            bar = True
            for k in range(3): A(f"ds_read_b64 {a(CFA+2*k,2)}, v{T+6} offset:{512*k}")
        b = FR + 20 * (st % 2)
        plan = ((0, 0, "B1", ("A0",)), (1, 0, None, ("B0", "B1")), (0, 1, "A2", ("A1",)), (1, 1, None, ("A2",)), (0, 2, None, ()), (1, 2, None, ()))
        for (i, t, wt_, rd) in plan:
            if wt_ and not bar and not (st == 0 and wt_ == "A2"): lwait((st, wt_))
            acc = v(ACC + 48 * i + 16 * t, 16)
            if cfg.get("x16"):
                r0 = ACC + 48 * i + 16 * t + 8 * (st % 2)
                A(f"v_mfma_f32_16x16x32_bf16 {v(r0,4)}, {a(b+4*t,4)}, {a(b+12+4*i,4)}, {v(r0,4) if st > 1 else 0}")
                if nxt:
                    for w in rd[:1]: gread(st + 1, w)
                A(f"v_mfma_f32_16x16x32_bf16 {v(r0+4,4)}, {a(b+4*((t+1)%3),4)}, {a(b+12+4*(1-i),4)}, {v(r0+4,4) if st > 1 else 0}")
                if nxt:
                    for w in rd[1:]: gread(st + 1, w)
            else:
                A(f"v_mfma_f32_32x32x16_bf16 {acc}, {a(b+4*t,4)}, {a(b+12+4*i,4)}, {acc if st else 0}")
                if nxt:
                    for w in rd: gread(st + 1, w)
            if sl < 2 and i == 1 and not cfg.get("gu_nocs"):
                A(f"v_mfma_f32_16x16x32_bf16 {a(CSA+4*t,4)}, {a(SEL,4)}, {a(b+4*t,4)}, {a(CSA+4*t,4) if st else 0}")
            if st == 36 and t == 2:
                A(f"ds_read_b64 {v(MB+2*i,2)}, v{T+7} offset:{256*i}"); lq.append("mb")
            if st == 38 and i == 1:
                x = T + 4
                A(f"v_accvgpr_read_b32 v7, a{CSA+4*t}")
                A(f"v_cvt_pk_bf16_f32 v{x+1}, v7, v7")
                A(f"v_and_b32 v{x+1}, 0xffff0000, v{x+1}")
                A(f"v_sub_f32 v7, v7, v{x+1}")
                A(f"v_cvt_pk_bf16_f32 v{x}, v{x+1}, v7")
                A(f"v_lshrrev_b32 v{x+1}, 16, v{x+1}")
                A(f"ds_write_b64 v{TRA}, {v(x,2)} offset:{512*t}"); lq.append("w")
        if st >= cfg.get('cwd0', 30) and wd3: emit(wd3.pop(0))
        if st == 37:
            A(f"s_mul_i32 s{sT0}, s{sFH}, 1536")
            A(f"s_lshl_b32 s{sT1}, s{sTH}, 8")
            A(f"s_add_u32 s{sT0}, s{sT0}, s{sT1}")
            A(f"s_add_u32 s{sT0}, s{sT0}, {L_CF}")
            A(f"v_and_b32 v{TRA}, 31, v0")
            A(f"v_lshlrev_b32 v{TRA}, 3, v{TRA}")
            A(f"v_add_u32 v{TRA}, s{sT0}, v{TRA}")
    A("s_waitcnt lgkmcnt(0)")
    for t in range(3):
        for i in range(2):
            acc = v(ACC + 48 * i + 16 * t, 16)
            A(f"v_mfma_f32_32x32x8_bf16 {acc}, {a(CFA+2*t,2)}, {v(MB+2*i,2)}, {acc}")
    if cfg.get("gts"):
        A("s_waitcnt lgkmcnt(0)")
        for c in range(9): A(f"s_sub_u32 s{(91,92,93,94,95,96,86,88,89)[c]}, s{60+2*c}, s90")
    stamp(A, cfg, 8)
    A(f"s_and_b32 s{sB}, s{sTOK16}, -8")
    A(f"s_lshl_b32 s{sT0}, s{sTH}, 2")
    A(f"s_add_u32 s{sB}, s{sB}, s{sT0}")
    A(f"s_mul_i32 s{sB}, s{sB}, {192*256}")
    A(f"s_mul_i32 s{sT0}, s{sJ}, {12*256}")
    A(f"s_add_u32 s{sB}, s{sB}, s{sT0}")
    A(f"s_mul_i32 s{sT0}, s{sFH}, {6*256}")
    A(f"s_add_u32 s{sB}, s{sB}, s{sT0}")
    A(f"s_add_u32 s{sB}, s{sB}, {hex(WS_HID)}")
    A(f"s_add_u32 s{sT2}, s{sB}, {2*192*256}")
    def gu_epi(sc):
        for (i, t) in ((0, 0), (1, 0), (0, 1), (1, 1), (0, 2), (1, 2)):
            r = ACC + 48 * i + 16 * t
            for q in range(2):
                for b in range(4): A(f"v_max_f32 v{r+8*q+b}, 0, v{r+8*q+b}")
                for b in (0, 2): A(f"v_pk_mul_f32 {v(r+8*q+b,2)}, {v(r+8*q+b,2)}, {v(r+8*q+4+b,2)}")
            A(f"v_cvt_pk_bf16_f32 v{r}, v{r}, v{r+1}")
            A(f"v_cvt_pk_bf16_f32 v{r+1}, v{r+2}, v{r+3}")
            A(f"v_cvt_pk_bf16_f32 v{r+2}, v{r+8}, v{r+9}")
            A(f"v_cvt_pk_bf16_f32 v{r+3}, v{r+10}, v{r+11}")
            A(f"buffer_store_dwordx4 {v(r,4)}, v{VST}, s[{SWS}:{SWS+3}], s{sT2 if i else sB} offen offset:{512*t} {sc}")
    if cfg.get("wt", 3) & 2:
        gu_epi("sc1")
    else:
        A(f"s_cmp_lg_u32 s{sFAST}, 0")
        A("s_nop 4")
        A("s_cbranch_scc0 L_gu_epi_slow")
        gu_epi("")
    A.label("L_gu_epi_done")
    stamp(A, cfg, 9)
    A("s_branch L_gu_done")
    if not cfg.get("wt", 3) & 2:
        A.label("L_gu_epi_slow")
        gu_epi("sc1")
        A("s_branch L_gu_epi_done")

    A.label("L_gu_loader")
    WDL = cfg.get("wdl", "late")
    wo_tail(2)
    STV = 72
    A(f"v_and_b32 v3, 15, v0")
    A(f"v_lshlrev_b32 v3, 3, v3")
    A(f"v_lshl_add_u32 v3, v{G1}, 11, v3")
    A(f"v_lshl_add_u32 v3, v{Gh}, 10, v3")
    A(f"s_lshl_b32 s{sB}, s{sGT}, 11")
    A(f"s_add_u32 s{sB}, s{sB}, {hex(WS_ST2)}")
    A(f"s_waitcnt vmcnt({EW[2]})")
    readback(A, [(M8, [f"buffer_load_dword v7, v{vHP}, s[{SWS}:{SWS+3}], 0 offen"])])
    A("s_barrier")
    wdl = [op for stp in range(2, 8) for op in load_wd_ops(stp)][sum(EW):]
    WPL = cfg.get("wpl", [0,0,0,0,0,0,0,0,5,6,8,6])
    assert sum(WPL) == 30 - sum(EW)
    for _ in range(WPL[0]): emit(wdl.pop(0))

    A("s_barrier")
    ops = []
    for op in h_dma_ops(0)[2:] + h_dma_ops(1): emit(op)
    ops += [("h", 0)] * 2 + [("h", 1)] * 4
    if cfg.get("st_ld", 0) == -1:
        for i in range(8): A(f"buffer_load_dwordx2 {v(STV+2*i,2)}, v3, s[{SWS}:{SWS+3}], s{sB} offen offset:{128*i} sc1")
        ops += ["st"] * 8
    A(f"s_setprio {cfg.get('lprio', 0)}")
    for c in range(10):
        need = [("h", c)] + ([("w", c)] if c >= 4 else [])
        A(f"s_waitcnt vmcnt({len(ops) - 1 - max(i for i, o in enumerate(ops) if o in need)})")
        A("s_barrier")
        vops = []
        if c + 2 < 10:
            vops += h_dma_ops(c + 2); ops += [("h", c + 2)] * 4
        if c + 3 < 10 and c > 0:
            vops += gu_dma_ops(c + 3); ops += [("w", c + 3)] * 6
        if c == cfg.get("st_ld", 0):
            vops += [[f"buffer_load_dwordx2 {v(STV+2*i,2)}, v3, s[{SWS}:{SWS+3}], s{sB} offen offset:{128*i} sc1"] for i in range(8)]
            ops += ["st"] * 8
        for _ in range(WPL[c + 1]):
            vops.append(wdl.pop(0)); ops.append("d")
        for op in vops:
            if cfg.get("noadv"): op = op[:3]
            if cfg.get("nowdl") and "a[" in op[-1] + op[1]: continue
            emit(op)
        if c == cfg.get('st_at', 8):
            A(f"s_waitcnt vmcnt({min(63, len(ops) - 1 - max(i for i, o in enumerate(ops) if o == 'st'))})")
            A(f"s_setprio {cfg.get('sprio', 3)}")
            for i in range(1, 8):
                A(f"v_add_f32 v{STV}, v{STV}, v{STV+2*i}")
                A(f"v_add_f32 v{STV+1}, v{STV+1}, v{STV+2*i+1}")
            for r in (STV, STV + 1):
                A(f"v_mov_b32 v{STV+2}, v{r}")
                A(f"v_permlane32_swap_b32 v{r}, v{STV+2}")
                A(f"v_add_f32 v{r}, v{r}, v{STV+2}")
            mean, rs = STV, STV + 1
            A(f"v_mul_f32 v{mean}, {fhex(1/640)}, v{mean}")
            A(f"v_mul_f32 v{rs}, {fhex(1/640)}, v{rs}")
            A(f"v_fma_f32 v{rs}, -v{mean}, v{mean}, v{rs}")
            A(f"v_max_f32 v{rs}, 0, v{rs}")
            A(f"v_add_f32 v{rs}, {fhex(1e-5)}, v{rs}")
            A(f"v_rcp_f32 v{rs}, v{rs}")
            A(f"v_cvt_pk_bf16_f32 v{STV+2}, -v{mean}, -v{mean}")
            A(f"v_and_b32 v{STV+3}, 0xffff0000, v{STV+2}")
            A(f"v_sub_f32 v{STV+3}, -v{mean}, v{STV+3}")
            A(f"v_cvt_pk_bf16_f32 v{STV+3}, v{STV+3}, 0")
            A(f"v_and_b32 v{STV+4}, 31, v0")
            A(f"s_lshl_b32 s{sT0}, s{sLW}, 5")
            A(f"v_add_u32 v{STV+4}, s{sT0}, v{STV+4}")
            A(f"v_lshlrev_b32 v{STV+5}, 3, v{STV+4}")
            A(f"v_lshlrev_b32 v{STV+4}, 2, v{STV+4}")
            A(f"v_add_u32 v{STV+5}, {L_MB}, v{STV+5}")
            A(f"v_add_u32 v{STV+4}, {L_RS}, v{STV+4}")
            A(f"ds_write_b64 v{STV+5}, {v(STV+2,2)}")
            A(f"ds_write_b32 v{STV+4}, v{rs}")
            A("s_setprio 0")
        if c == cfg.get('st_at', 8): A("s_waitcnt lgkmcnt(0)")
    A("s_barrier")
    for op in wdl: emit(op)
    if cfg.get("wbl2", 0) & 1:
        A(f"s_add_u32 s{sT0}, s{sM}, s{sWAVE}")
        A(f"s_cmp_lg_u32 s{sT0}, 4")
        A("s_cbranch_scc1 L_nowb1")
        A("buffer_wbl2 sc1")
        A.label("L_nowb1")
    A("s_setprio 0")
    A.label("L_gu_done")

    NBD = cfg.get("nbd", 6)
    BF, ACC = 16, 72
    vXP, vXS, RA, vRS = 1, 2, 5, T + 7
    sBT = (sKSRC, sVSRC, sKBASE, sVBASE)
    vPW = (T + 2, T + 3, T + 4, None, T + 5, T + 6, T, T + 1)
    A(f"s_lshl_b32 s{sT1}, s{sWDRAW}, 10")
    A(f"s_add_u32 s{sT1}, s{sT1}, {hex(WS_HID)}")
    for k in range(4):
        A(f"s_xor_b32 s{sT0}, s{sLW}, {3-k}")
        A(f"s_add_u32 s{sBT[k]}, s{sT0}, s{sTOK16}")
        A(f"s_mul_i32 s{sBT[k]}, s{sBT[k]}, {192*256}")
        A(f"s_add_u32 s{sBT[k]}, s{sBT[k]}, s{sT1}")
        A(f"s_mul_i32 s{sT0}, s{sT0}, 5120")
        A(f"s_add_u32 s{sT0}, s{sT0}, {(6-k)*20480}")
        if k < 2:
            A(f"v_add_u32 v{vPW[4+k]}, s{sT0}, v{R.L16}")
            A(f"v_subrev_u32 v{vPW[k]}, {4*20480}, v{vPW[4+k]}")
        else:
            A(f"s_mov_b32 s{97+k-2}, s{sT0}")
    A(f"s_and_b32 s{sT0}, s{sTOK16}, 7")
    A(f"s_add_u32 s{sT0}, s{sT0}, s{sLW}")
    A(f"s_lshl_b32 s{sT0}, s{sT0}, 6")
    A(f"s_add_u32 s{sT0}, s{sT0}, {L_RS}")
    A(f"v_and_b32 v{vRS}, 15, v0")
    A(f"v_lshlrev_b32 v{vRS}, 2, v{vRS}")
    A(f"v_add_u32 v{vRS}, s{sT0}, v{vRS}")
    A(f"ds_read_b32 v{vRS}, v{vRS}")
    addr_rowmajor(A, vXP, vXS, T)
    reduce_addr(A, 7, 0, RA)
    A("s_waitcnt lgkmcnt(0)")
    A(f"s_cmp_ge_u32 s{sWAVE}, 4")
    A("s_cbranch_scc1 L_dn_nw")
    if cfg.get("rb", 0) & 2:
        A("s_mov_b32 exec_lo, 0x01010101")
        A("s_mov_b32 exec_hi, 0x01010101")
        nrb = cfg.get("nrb", 6)
        for k, (i, t) in enumerate(((0, 0), (1, 0), (0, 1), (1, 1), (0, 2), (1, 2))):
            if k < nrb:
                A("s_waitcnt vmcnt(5)")
                A(f"buffer_load_dword v59, v{VST}, s[{SWS}:{SWS+3}], s{sT2 if i else sB} offen offset:{512*t} sc1")
        if nrb < 6: A(f"s_waitcnt vmcnt({nrb})")
        A("s_mov_b64 exec, -1")
    else:
        A("s_waitcnt vmcnt(0)")
    A.label("L_dn_nw")
    sync(A, 2, 0, True, 63)
    stamp(A, cfg, 10)
    BSL = lambda i: 16 + 4 * i if i < 6 else 60 + 4 * (i - 6)
    def dn_main(NS, NBD, sub):
        keep = [f for f in range(5) if FSUB(f) == sub]
        order = [f for f in range(5) if f not in keep] + keep
        def loadBd(q):
            k, st = divmod(q, NS)
            if st == 4: A(f"s_add_u32 s{sBT[k]}, s{sBT[k]}, 4096")
            A(f"buffer_load_dwordx4 {v(BSL(q%NBD),4)}, v{R.L16}, s[{SWS}:{SWS+3}], s{sBT[k]} offen offset:{(st%4)*1024} sc1")
        NI = min(NBD, cfg.get("nbi", 4))
        for q in range(NI): loadBd(q)
        issued = NI
        A(f"v_add_u32 v{vPW[6]}, s97, v{R.L16}")
        A(f"v_subrev_u32 v{vPW[2]}, {4*20480}, v{vPW[6]}")
        A(f"v_add_u32 v{vPW[7]}, s98, v{R.L16}")
        for q in range(NI, NBD): loadBd(q)
        issued = NBD
        pend = []
        for q in range(4 * NS):
            k, st = divmod(q, NS)
            A(f"s_waitcnt vmcnt({issued - 1 - q})")
            for f in order:
                acc = v(ACC + 20 * (k % 2) + 4 * f, 4)
                A(f"v_mfma_f32_16x16x32_bf16 {acc}, {WD(st, f)}, {v(BSL(q%NBD),4)}, {acc if st else 0}")
            if issued < 4 * NS:
                loadBd(issued); issued += 1
            for _ in range(2 if NS == 4 else 1):
                if pend: A(pend.pop(0))
            if st == NS - 1:
                assert not pend
                pend = [f"ds_write_b128 v{vPW[k if f in keep else 4+k]}, {v(ACC+20*(k%2)+4*f,4)} offset:{f*1024}" for f in order if k < 3 or f not in keep]
        for x in pend: A(x)
        stamp(A, cfg, 11)
        return [ACC + 20 + 4 * f for f in keep]
    def dn_tail(n, own):
        DD = 8
        A(f"v_mov_b32 v3, v{vRS}")
        A("s_waitcnt lgkmcnt(0)")
        A("s_barrier")
        reduce_sum(A, 7, DD, RA, n, own)
        for i in range(2 * n):
            r = own[i // 2] + 2 * (i % 2)
            A(f"v_accvgpr_read_b32 v{T+2}, a{A_RES(i)}")
            A(f"v_lshlrev_b32 v{T}, 16, v{T+2}")
            A(f"v_and_b32 v{T+1}, 0xffff0000, v{T+2}")
            A(f"v_fma_f32 v{r}, v{r}, v3, v{T}")
            A(f"v_fma_f32 v{r+1}, v{r+1}, v3, v{T+1}")
            A(f"v_cvt_pk_bf16_f32 v{D+i}, v{r}, v{r+1}")
            if i == 3: A(f"buffer_store_dwordx4 {v(D,4)}, v{vXP}, s[{SO}:{SO+3}], 0 offen {cfg.get('ost', '')}")
        if n == 3: A(f"buffer_store_dwordx2 {v(D+4,2)}, v{vXS}, s[{SO}:{SO+3}], 0 offen {cfg.get('ost', '')}")
    A(f"s_cmp_ge_u32 s{sWAVE}, 4")
    A("s_cbranch_scc1 L_dn_b")
    dn_tail(3, dn_main(4, cfg.get("nbd_c", 5), 0))
    A("s_branch L_dn_e")
    A.label("L_dn_b")
    A(f"s_setprio {cfg.get('dprio', 1)}")
    dn_tail(2, dn_main(8, cfg.get("nbd_l", 8), 1))
    A.label("L_dn_e")
    stamp(A, cfg, 12)
    if cfg.get("gts"):
        for c in range(9):
            A(f"s_mov_b32 s{60+2*c}, s{(91,92,93,94,95,96,86,88,89)[c]}")
            A(f"s_mov_b32 s{61+2*c}, s{(91,92,93,94,95,96,86,88,89)[c]}")
    stamp_flush(A, cfg, 13, 4, SWS, sWAVE, cfg.get('tswave', 0))
    if cfg.get("diag"):
        da, db = cfg["diag"]
        A("s_cmp_ge_u32 s2, 8" if cfg.get("fixed") else "s_cmp_lg_u32 s2, 16")
        A("s_cbranch_scc1 L_end")
        A(f"s_cmp_lg_u32 s{sWAVE}, 0")
        A("s_cbranch_scc1 L_end")
        if da == -1:
            A("v_mov_b32 v1, 0")
            A(f"s_mov_b32 s{sT0}, {hex(WS_TS)}")
            A(f"buffer_load_dword v2, v1, s[{SWS}:{SWS+3}], s{sT0} offen")
            A("s_waitcnt vmcnt(0)")
            A(f"v_readfirstlane_b32 s{sT0}, v2")
        else:
            A(f"s_mov_b32 s{sT0}, s{60+2*da}")
        if cfg.get("fixed"):
            A(f"s_add_u32 s{sT0}, s{sT0}, {cfg['fixed']}")
            if cfg.get("wb"):
                A("buffer_wbl2 sc1")
        else:
            A(f"s_sub_u32 s{sT0}, s{60+2*db}, s{sT0}")
            A(f"s_min_u32 s{sT0}, s{sT0}, 20000")
            A(f"s_lshl_b32 s{sT0}, s{sT0}, 2")
            A(f"s_add_u32 s{sT0}, s{sT0}, s{60+2*12}")
        A.label("L_spin")
        A("s_memrealtime s[56:57]")
        A("s_waitcnt lgkmcnt(0)")
        A(f"s_sub_u32 s{sT1}, s56, s{sT0}")
        A(f"s_cmp_lt_i32 s{sT1}, 0")
        A("s_cbranch_scc1 L_spin")
    A.label("L_end")
    A("s_endpgm")

    A.label("L_attn_slow")
    A(f"v_subrev_u32 v{R.VA}, {KV_BASE + 1280}, v{R.VA}")
    A(f"v_mov_b32 v{R.Q2+1}, 0")
    A(f"v_mov_b32 v{T}, 0xff800000")
    A(f"s_mov_b32 s{sT0}, s{sKBASE}")
    A(f"s_add_u32 s{sT1}, s{sKBASE}, {PAIR_STRIDE}")
    A.label("L_attn_slow1")
    A(f"buffer_load_dwordx4 {v(R.K1,4)}, v{R.F2S+1}, s[{SWS}:{SWS+3}], s{sT0} offen")
    A(f"buffer_load_dword v{R.K2}, v{R.F2S}, s[{SWS}:{SWS+3}], s{sT0} offen")
    A("s_waitcnt vmcnt(0)")
    A(f"v_mfma_f32_32x32x16_bf16 {v(S0,16)}, {v(R.K1,4)}, {v(R.Q1,4)}, 0")
    A(f"v_mfma_f32_32x32x8_bf16 {v(S0,16)}, {v(R.K2,2)}, {v(R.Q2,2)}, {v(S0,16)}")
    max16(A, T, S0, False)
    A(f"s_add_u32 s{sT0}, s{sT0}, 2560")
    A(f"s_cmp_lt_u32 s{sT0}, s{sT1}")
    A("s_cbranch_scc1 L_attn_slow1")
    xhalf_max(A, T, T+1)
    set_shift(A, T)
    for k in range(16): A(f"v_mov_b32 v{R.O+k}, 0")
    A(f"s_mov_b32 s{sT0}, s{sKBASE}")
    A(f"s_mov_b32 s{sT2}, s{sVBASE}")
    A.label("L_attn_slow2")
    A(f"buffer_load_dwordx4 {v(R.K1,4)}, v{R.F2S+1}, s[{SWS}:{SWS+3}], s{sT0} offen")
    A(f"buffer_load_dword v{R.K2}, v{R.F2S}, s[{SWS}:{SWS+3}], s{sT0} offen")
    A(f"s_mov_b64 exec, s[{sVMASK}:{sVMASK+1}]")
    A(f"buffer_load_dwordx4 {v(R.V1,4)}, v{R.VA}, s[{SWS}:{SWS+3}], s{sT2} offen")
    A(f"buffer_load_dwordx4 {v(R.V2,4)}, v{R.VA}, s[{SWS}:{SWS+3}], s{sT2} offen offset:640")
    A("s_mov_b64 exec, -1")
    A("s_waitcnt vmcnt(0)")
    A(f"v_mfma_f32_32x32x16_bf16 {v(S0,16)}, {v(R.K1,4)}, {v(R.Q1,4)}, 0")
    A(f"v_mfma_f32_32x32x8_bf16 {v(S0,16)}, {v(R.K2,2)}, {v(R.Q2,2)}, {v(S0,16)}")
    for k in range(16): A(f"v_exp_f32 v{S0+k}, v{S0+k}")
    for k in range(8): A(f"v_cvt_pk_bf16_f32 v{R.P+k}, v{S0+2*k}, v{S0+2*k+1}")
    A(f"v_mfma_f32_32x32x16_bf16 {v(R.O,16)}, {v(R.V1,4)}, {v(R.P,4)}, {v(R.O,16)}")
    A(f"v_mfma_f32_32x32x16_bf16 {v(R.O,16)}, {v(R.V2,4)}, {v(R.P+4,4)}, {v(R.O,16)}")
    A(f"s_add_u32 s{sT0}, s{sT0}, 2560")
    A(f"s_add_u32 s{sT2}, s{sT2}, 1280")
    A(f"s_cmp_lt_u32 s{sT0}, s{sT1}")
    A("s_nop 7")
    A("s_cbranch_scc1 L_attn_slow2")
    A(f"v_rcp_f32 v{T}, v{R.O+10}")
    norm()
    A("s_nop 1")
    A("s_branch L_attn_norm")
    A.label("L_code_end")
    return dict(name=name, grid=256, block=512, lds=163840, desc=kernel_desc(name, 256, NV, 102))
```

```python
from common import *

def gen_qkv(A, cfg):
    name = "qkv_kernel"
    kstart(A, name)
    SX, SW, SWS, SP, SD = 4, 8, 12, 36, 48
    sWAVE, sTB, sFG, sXO, sXLIM, sWO, sT0, sT1, sT2, sM0 = 16, 17, 18, 19, 20, 21, 22, 23, 24, 25
    sTILE, sBASE, sQS, sC0, sID = 26, 27, 28, 30, 31
    vTR = 4
    vT = 8
    SLOT = 32768
    CSL = SLOT
    STL = SLOT + 2048
    A("s_cmp_ge_u32 s2, 256")
    A("s_cbranch_scc1 L_qkv_end")
    A("s_load_dwordx4 s[4:7], s[0:1], 0")
    A("s_load_dwordx4 s[48:51], s[0:1], 64")
    A("s_load_dwordx2 s[32:33], s[0:1], 16")
    A("s_load_dwordx2 s[34:35], s[0:1], 48")
    stamp(A, cfg, 0)
    if cfg.get("diag"): A("s_memrealtime s[56:57]")
    A(f"v_lshrrev_b32 v{vT}, 6, v0")
    A(f"s_cmp_lt_u32 s2, 16")
    A(f"v_readfirstlane_b32 s{sWAVE}, v{vT}")
    A("s_cbranch_scc1 L_qkv_helper")
    A(f"v_and_b32 v0, 63, v0")
    A(f"s_sub_u32 s{sID}, s2, 16")
    A(f"s_and_b32 s{sT0}, s{sID}, 7")
    A(f"s_lshr_b32 s{sT1}, s{sID}, 3")
    A(f"s_lshr_b32 s{sT2}, s{sT0}, 2")
    A(f"s_mul_i32 s{sT2}, s{sT2}, 30")
    A(f"s_add_u32 s{sT1}, s{sT1}, s{sT2}")
    A(f"s_lshr_b32 s{sFG}, s{sT1}, 2")
    A(f"s_and_b32 s{sT1}, s{sT1}, 3")
    A(f"s_and_b32 s{sT2}, s{sT0}, 3")
    A(f"s_lshl_b32 s{sT2}, s{sT2}, 2")
    A(f"s_add_u32 s{sTB}, s{sT2}, s{sT1}")
    A(f"s_cmp_ge_u32 s{sWAVE}, 4")
    if cfg.get("ctouch", 2) == 2:
        A("s_cbranch_scc1 L_qkv_noct")
        code_touch_setup(A, 46, "qkv_kernel", True)
        A(f"s_lshr_b32 s{sT1}, s{sID}, 3")
        A(f"s_lshl_b32 s{sT1}, s{sT1}, 2")
        A(f"s_add_u32 s{sT1}, s{sT1}, s{sWAVE}")
        A(f"s_lshl_b32 s{sT1}, s{sT1}, 7")
        A(f"v_mul_u32_u24 v{vT+1}, {120*128}, v0")
        A(f"v_add_u32 v{vT+1}, s{sT1}, v{vT+1}")
        A(f"v_min_u32 v{vT+1}, L_code_end-qkv_kernel-4, v{vT+1}")
        A("s_mov_b64 exec, 31")
        A(f"global_load_dword v{vT+7}, v{vT+1}, s[46:47]")
        A("s_mov_b64 exec, -1")
        A("s_branch L_qkv_compute")
        A.label("L_qkv_noct")
        i_split = len(A.items)
        A.label("L_qkv_compute")
    elif cfg.get("lfirst", 1):
        A("s_cbranch_scc0 L_qkv_compute")
        i_split = len(A.items)
        A.label("L_qkv_compute")
    else:
        A("s_cbranch_scc1 L_qkv_loader")

    def tr_addr(permuted, tiles):
        rho, cc, g1, kh, base = vT, vT+1, vT+2, vT+3, vT+4
        A(f"v_bfe_u32 v{rho}, v0, 2, 2")
        A(f"v_bfe_u32 v{g1}, v0, 4, 1")
        A(f"v_lshrrev_b32 v{kh}, 5, v0")
        A(f"v_lshl_add_u32 v{base}, v{kh}, 3, v{rho}")
        A(f"v_lshlrev_b32 v{base}, 8, v{base}")
        A(f"v_lshl_add_u32 v{base}, v{g1}, 5, v{base}")
        if permuted:
            A(f"v_and_b32 v{cc}, 1, v0")
            A(f"v_lshl_add_u32 v{base}, v{cc}, 4, v{base}")
            A(f"v_bfe_u32 v{cc}, v0, 1, 1")
            A(f"v_lshl_add_u32 v{base}, v{cc}, 3, v{base}")
        else:
            A(f"v_and_b32 v{cc}, 3, v0")
            A(f"v_lshl_add_u32 v{base}, v{cc}, 3, v{base}")
        for j, t in enumerate(tiles):
            A(f"v_xor_b32 v{vTR+j}, {t}, v{rho}")
            A(f"v_lshl_add_u32 v{vTR+j}, v{vTR+j}, 6, v{base}")
    def rebase(c):
        def base(c): return ((c % 5) // 2) * 2 * SLOT
        return (base(c) - base(c - 1) if c else 0), (c % 5) * SLOT - base(c)

    ACC, FR, vBA, vADR, vST = 16, 80, 112, 116, 120
    sFH2 = 29
    A(f"s_and_b32 s{sT0}, s{sWAVE}, 1")
    A(f"s_and_b32 s{sFH2}, s{sWAVE}, 2")
    sJ0, sJ1 = 44, 45
    A(f"s_mov_b32 s{sJ0}, s{sWAVE}")
    A(f"s_xor_b32 s{sJ1}, s{sWAVE}, 1")
    A(f"s_lshl_b32 s{sTILE}, s{sTB}, 1")
    A(f"s_add_u32 s{sTILE}, s{sTILE}, s{sT0}")
    A(f"s_lshl_b32 s{sTILE}, s{sTILE}, 1")
    A(f"s_lshl_b32 s{sT0}, s{sT0}, 13")
    A(f"s_add_u32 s{sT0}, s{sT0}, 16384")
    A(f"v_and_b32 v{vT}, 31, v0")
    A(f"v_lshrrev_b32 v{vT+1}, 5, v0")
    A(f"v_bfe_u32 v{vT+2}, v0, 1, 3")
    A(f"v_xor_b32 v{vT+1}, v{vT+1}, v{vT+2}")
    A(f"v_lshlrev_b32 v{vT}, 7, v{vT}")
    A(f"v_lshl_add_u32 v{vT}, v{vT+1}, 4, v{vT}")
    A(f"v_add_u32 v{vBA}, s{sT0}, v{vT}")
    for st in range(1, 4): A(f"v_xor_b32 v{vBA+st}, {32*st}, v{vBA}")
    CSA, ONE, SEL, SF, SUM, SQ, vSB = 152, 160, 164, 168, 184, 192, 200
    MB, RS = 204, 208
    VO, PF, L16 = 120, 128, 2
    sU, sPSRC, sPDST, sPLDS = 40, 41, 42, 43
    def prep_setup():
        A(f"s_mul_i32 s{sU}, s{sWAVE}, 240")
        A(f"s_add_u32 s{sU}, s{sU}, s{sID}")
        A(f"v_lshlrev_b32 v{L16}, 4, v0")
        A(f"s_lshl_b32 s{sPLDS}, s{sWAVE}, 13")
        for jj in range(5):
            A(f"v_add_u32 v{vT}, {64*jj}, v0")
            A(f"v_mul_u32_u24 v{PF+jj}, 6554, v{vT}")
            A(f"v_lshrrev_b32 v{PF+jj}, 16, v{PF+jj}")
            A(f"v_mul_u32_u24 v{vT+1}, 10, v{PF+jj}")
            A(f"v_sub_u32 v{vT}, v{vT}, v{vT+1}")
            A(f"v_lshlrev_b32 v{VO+jj}, 4, v{vT}")
        A(f"s_cmp_ge_u32 s{sU}, 384")
        A("s_cbranch_scc1 L_qkv_pwo")
        srd(A, SP, 34, 1536 * 640 * 2)
        A(f"s_mul_i32 s{sT0}, s{sU}, 1366")
        A(f"s_lshr_b32 s{sT0}, s{sT0}, 16")
        A(f"s_mul_i32 s{sT1}, s{sT0}, 48")
        A(f"s_sub_u32 s{sT1}, s{sU}, s{sT1}")
        A(f"s_mul_i32 s{sPSRC}, s{sT1}, {32*1280}")
        A(f"s_mul_i32 s{sT0}, s{sT0}, 160")
        A(f"s_add_u32 s{sPSRC}, s{sPSRC}, s{sT0}")
        A(f"s_mul_i32 s{sPDST}, s{sU}, 5120")
        A(f"s_add_u32 s{sPDST}, s{sPDST}, {hex(WS_WD)}")
        A("s_branch L_qkv_pgo")
        A.label("L_qkv_pwo")
        srd(A, SP, 32, 640 * 640 * 2)
        A(f"s_sub_u32 s{sU}, s{sU}, 384")
        A(f"s_mul_i32 s{sT0}, s{sU}, 3277")
        A(f"s_lshr_b32 s{sT0}, s{sT0}, 16")
        A(f"s_mul_i32 s{sT1}, s{sT0}, 20")
        A(f"s_sub_u32 s{sT1}, s{sU}, s{sT1}")
        A(f"s_mul_i32 s{sPSRC}, s{sT0}, 160")
        A(f"s_mul_i32 s{sT0}, s{sT1}, 205")
        A(f"s_lshr_b32 s{sT0}, s{sT0}, 10")
        A(f"s_mul_i32 s{sT2}, s{sT0}, 5")
        A(f"s_sub_u32 s{sT1}, s{sT1}, s{sT2}")
        A(f"s_mul_i32 s{sT0}, s{sT0}, {160*1280}")
        A(f"s_add_u32 s{sPSRC}, s{sPSRC}, s{sT0}")
        A(f"s_mul_i32 s{sPDST}, s{sU}, 5120")
        A(f"s_add_u32 s{sPDST}, s{sPDST}, {hex(WS_WO)}")
        A(f"s_cmp_ge_u32 s{sU}, 160")
        A(f"s_cselect_b32 s{sPDST}, {hex(WS_SIZE)}, s{sPDST}")
        A(f"s_cselect_b32 s{SP+2}, 0, s{SP+2}")
        A(f"s_cmp_eq_u32 s{sT1}, 4")
        A("s_cbranch_scc1 L_qkv_pleft")
        A(f"s_mul_i32 s{sT1}, s{sT1}, {40*1280}")
        A(f"s_add_u32 s{sPSRC}, s{sPSRC}, s{sT1}")
        for jj in range(5):
            A(f"v_lshrrev_b32 v{vT}, 4, v{PF+jj}")
            A(f"v_lshl_add_u32 v{PF+jj}, v{vT}, 2, v{PF+jj}")
        A("s_branch L_qkv_pgo")
        A.label("L_qkv_pleft")
        for jj in range(5):
            k = PF + jj
            A(f"v_lshrrev_b32 v{vT}, 2, v{k}")
            A(f"v_lshl_add_u32 v{k}, v{vT}, 4, v{k}")
            A(f"v_add_u32 v{k}, 16, v{k}")
        A.label("L_qkv_pgo")
        for jj in range(5):
            A(f"v_mul_u32_u24 v{vT}, 1280, v{PF+jj}")
            A(f"v_add_u32 v{VO+jj}, v{VO+jj}, v{vT}")
        A(f"v_lshrrev_b32 v{vT}, 4, v0")
        A(f"v_bfe_u32 v{vT+1}, v0, 2, 2")
        A(f"v_lshl_add_u32 v{vT}, v{vT}, 3, v{vT+1}")
        A(f"v_mul_u32_u24 v{vT}, 160, v{vT}")
        A(f"v_add_u32 v{vT}, s{sPLDS}, v{vT}")
        A(f"v_and_b32 v{vT+1}, 3, v0")
        A(f"v_lshl_add_u32 v{VO+5}, v{vT+1}, 4, v{vT}")
        A(f"v_lshl_add_u32 v{VO+6}, v{vT+1}, 3, v{vT}")
    A("s_waitcnt lgkmcnt(0)")
    cfg = dict(cfg); cfg["q_prep"] = 100
    srd(A, SWS, 50, WS_SIZE)
    if cfg.get("diag"):
        A(f"s_cmp_eq_u32 s2, 16")
        A(f"s_mov_b32 s{sT0}, {hex(WS_TS)}")
        A(f"s_cselect_b32 s{sT0}, s{sT0}, {hex(WS_SIZE)}")
        A(f"v_mov_b32 v{vT}, s56")
        A(f"v_mov_b32 v{vT+1}, 0")
        A(f"buffer_store_dword v{vT}, v{vT+1}, s[{SWS}:{SWS+3}], s{sT0} offen")
    A(f"v_lshrrev_b32 v{vT}, 2, v0")
    A(f"v_xor_b32 v{vT}, v{vT}, v0")
    A(f"v_and_b32 v{vT}, 4, v{vT}")
    A(f"v_cmp_eq_u32 vcc, 0, v{vT}")
    for i in range(4): A(f"v_mov_b32 v{ONE+i}, 0x3f803f80")
    for i in range(4): A(f"v_cndmask_b32 v{SEL+i}, 0, v{ONE}, vcc")
    A(f"s_and_b32 s{sT0}, s{sWAVE}, 1")
    A(f"s_lshl_b32 s{sT0}, s{sT0}, 13")
    A(f"s_lshl_b32 s{sT1}, s{sFH2}, 11")
    A(f"s_add_u32 s{sT0}, s{sT0}, s{sT1}")
    A(f"s_add_u32 s{sT0}, s{sT0}, 16384")
    A(f"v_and_b32 v{vT}, 15, v0")
    A(f"v_lshrrev_b32 v{vT+1}, 4, v0")
    A(f"v_bfe_u32 v{vT+2}, v0, 1, 3")
    A(f"v_xor_b32 v{vT+1}, v{vT+1}, v{vT+2}")
    A(f"v_lshlrev_b32 v{vT}, 7, v{vT}")
    A(f"v_lshl_add_u32 v{vT}, v{vT+1}, 4, v{vT}")
    A(f"v_add_u32 v{vSB}, s{sT0}, v{vT}")
    A(f"v_xor_b32 v{vSB+1}, 64, v{vSB}")
    HS = cfg.get("hstat", 1)
    vSA = SUM
    if HS:
        srd(A, SD, SD, 256)
        A(f"s_lshl_b32 s{sXO}, s{sTB}, 11")
        A(f"s_add_u32 s{sXO}, s{sXO}, {hex(WS_ST1)}")
        A(f"s_and_b32 s{sT0}, s{sWAVE}, 1")
        A(f"s_lshl_b32 s{sT0}, s{sT0}, 6")
        A(f"v_and_b32 v{vT}, 31, v0")
        A(f"v_add_u32 v{vT}, s{sT0}, v{vT}")
        A(f"v_lshlrev_b32 v{vSA}, 3, v{vT}")
        A(f"v_cmp_gt_u32 vcc, 32, v0")
        A(f"v_mov_b32 v{vT+1}, 0x7f000000")
        A(f"v_cndmask_b32 v{vSA}, v{vT+1}, v{vSA}, vcc")
        A(f"v_lshlrev_b32 v{vSA+1}, 2, v{vT}")
        A(f"v_lshrrev_b32 v{vT}, 5, v0")
        A(f"v_lshlrev_b32 v{vT}, 2, v{vT}")
        A(f"v_add_u32 v{vT}, s{sT0}, v{vT}")
        A(f"v_lshlrev_b32 v{vSA+2}, 2, v{vT}")
        A(f"v_mov_b32 v{vSA+3}, 0")
        A(f"s_lshl_b32 s{sXLIM}, s{sTB}, 4")
    A(f"s_cmp_ge_u32 s{sFG}, 10")
    A("s_cbranch_scc1 L_qkv_V")

    STF = cfg.get("qkv_st", "sc1")
    def mainloop(isV):
        q = []
        def reads(st):
            c, sl = divmod(st, 4)
            _, so = rebase(c)
            b = FR + 16 * (st % 2)
            out = []
            for u in range(2): out.append((f"ds_read_b64_tr_b16 {v(b+2*u,2)}, v{vTR} offset:{so + (16*sl+4*u)*256}", (st, "A0")))
            out.append((f"ds_read_b128 {v(b+8,4)}, v{vBA+sl} offset:{so}", (st, "B0")))
            out.append((f"ds_read_b128 {v(b+12,4)}, v{vBA+sl} offset:{so + 4096}", (st, "B1")))
            for u in range(2): out.append((f"ds_read_b64_tr_b16 {v(b+4+2*u,2)}, v{vTR+1} offset:{so + (16*sl+4*u)*256}", (st, "A1")))
            if not HS: out.append((f"ds_read_b128 {v(SF+4*(st%2),4)}, v{vSB+(sl>>1)} offset:{so + 2048*(st%2)}", (st, "S")))
            return out
        def issue(r): A(r[0]); q.append(r[1])
        def wait(tag): A(f"s_waitcnt lgkmcnt({len(q) - 1 - max(i for i, x in enumerate(q) if x == tag)})")
        A("s_barrier")
        for r in reads(0): issue(r)
        stamp(A, cfg, 1)
        for st in range(40):
            nxt = st + 1 < 40
            if st % 4 == 3 and nxt:
                A("s_barrier")
                if cfg.get("qts"): A(f"s_memtime s[{70+2*(st//4)}:{71+2*(st//4)}]")
                d, _ = rebase((st + 1) // 4)
                if d:
                    for r in (vTR, vTR + 1, vBA, vBA + 1, vBA + 2, vBA + 3, vSB, vSB + 1): A(f"v_add_u32 v{r}, {d & 0xffffffff}, v{r}")
            rs = reads(st + 1) if nxt else []
            b = FR + 16 * (st % 2)
            sf = v(SF + 4 * (st % 2), 4); su = v(SUM + 4 * (st % 2), 4); sq = v(SQ + 4 * (st % 2), 4)
            for k, (i, j, tag, nr) in enumerate(((0, 0, "B0", 2), (1, 0, "B1", 2), (0, 1, "A1" if HS else "S", 2), (1, 1, None, 1))):
                if tag: wait((st, tag))
                af = v(b + 4 * j, 4); xf = v(b + 8 + 4 * i, 4); acc = v(ACC + 32 * i + 16 * j, 16); c = acc if st else "0"
                if cfg.get("qx16"):
                    r0 = ACC + 32 * i + 16 * j + 8 * (st % 2)
                    A(f"v_mfma_f32_16x16x32_bf16 {v(r0,4)}, {af}, {xf}, {v(r0,4) if st > 1 else 0}")
                    if rs and nr: issue(rs.pop(0))
                    A(f"v_mfma_f32_16x16x32_bf16 {v(r0+4,4)}, {xf}, {af}, {v(r0+4,4) if st > 1 else 0}")
                    if rs and nr > 1: issue(rs.pop(0))
                else:
                    if isV: A(f"v_mfma_f32_32x32x16_bf16 {acc}, {xf}, {af}, {c}")
                    else:   A(f"v_mfma_f32_32x32x16_bf16 {acc}, {af}, {xf}, {c}")
                    for _ in range(nr):
                        if rs: issue(rs.pop(0))
                if k == 1: A(f"v_mfma_f32_16x16x32_bf16 {v(CSA,4)}, {v(SEL,4)}, {v(b,4)}, {v(CSA,4) if st else 0}")
                if k == 2 and not HS: A(f"v_mfma_f32_16x16x32_bf16 {su}, {v(ONE,4)}, {sf}, {su if st > 1 else 0}")
                if k == 3 and not HS: A(f"v_mfma_f32_16x16x32_bf16 {sq}, {sf}, {sf}, {sq if st > 1 else 0}")
            if HS and st == cfg.get("q_fl", 31):
                A(f"buffer_load_dword v{vT}, v{vSA+3}, s[{SD}:{SD+3}], s{sXLIM} offen sc1")
            if HS and st == cfg.get("q_fc", 36):
                LP, LD = A.newlabel("qp"), A.newlabel("qd")
                A(f"s_mov_b32 s{sT1}, 0")
                A.label(LP)
                A("s_waitcnt vmcnt(0)")
                A(f"v_cmp_eq_u32 vcc, 0, v{vT}")
                A(f"s_add_u32 s{sT1}, s{sT1}, 1")
                A(f"s_cmp_lt_u32 s{sT1}, 0x40000")
                A(f"s_cselect_b64 vcc, vcc, 0")
                A(f"s_cbranch_vccz {LD}")
                A(f"buffer_load_dword v{vT}, v{vSA+3}, s[{SD}:{SD+3}], s{sXLIM} offen sc1")
                A(f"s_branch {LP}")
                A.label(LD)
                for i in range(2): A(f"buffer_load_dwordx2 {v(MB+2*i,2)}, v{vSA}, s[{SWS}:{SWS+3}], s{sXO} offen offset:{256*i} sc1")
                if isV:
                    for i in range(2):
                        for aa in range(4): A(f"buffer_load_dwordx4 {v(vST+16*i+4*aa,4)}, v{vSA+2}, s[{SWS}:{SWS+3}], s{sXO} offen offset:{1024 + 128*i + 32*aa} sc1")
                else:
                    for i in range(2): A(f"buffer_load_dword v{RS+i}, v{vSA+1}, s[{SWS}:{SWS+3}], s{sXO} offen offset:{1024 + 128*i} sc1")
            if st == cfg.get("q_prep", 5):
                A("s_waitcnt vmcnt(0)")
                for f in range(5):
                    for u in range(2):
                        A(f"ds_read_b64_tr_b16 {v(PF+4*f+2*u,2)}, v{VO+5+(f==4)} offset:{4*u*160 + tile_col_imm(f)}"); q.append("p")
            if st == cfg.get("q_prep", 5) + 1:
                wait("p")
            if cfg.get("q_prep", 5) + 1 <= st <= cfg.get("q_prep", 5) + 5:
                f = st - cfg.get("q_prep", 5) - 1
                A(f"s_add_u32 s{sT0}, s{sPDST}, {f*1024}")
                A(f"buffer_store_dwordx4 {v(PF+4*f,4)}, v{L16}, s[{SWS}:{SWS+3}], s{sT0} offen {STF}")
        stamp(A, cfg, 2)

    def correction(isV):
        cs = CSA
        t0, t1, t2, t3 = vT, vT+1, vT+2, vT+3
        A(f"s_lshl_b32 s{sT0}, s{sJ0}, 9")
        A(f"s_lshl_b32 s{sT1}, s{sJ1}, 9")
        A(f"v_lshlrev_b32 v{t0}, 3, v0")
        A(f"v_add_u32 v{t1}, s{sT1}, v{t0}")
        A(f"v_add_u32 v{t0}, s{sT0}, v{t0}")
        A(f"v_cvt_pk_bf16_f32 v{cs+1}, v{cs}, v{cs}")
        A(f"v_and_b32 v{cs+1}, 0xffff0000, v{cs+1}")
        A(f"v_sub_f32 v{cs}, v{cs}, v{cs+1}")
        A(f"v_cvt_pk_bf16_f32 v{cs+2}, v{cs+1}, v{cs}")
        A(f"v_lshrrev_b32 v{cs+3}, 16, v{cs+1}")
        A(f"ds_write_b64 v{t0}, {v(cs+2,2)} offset:{CSL}")
        if HS:
            def corr(j, cf):
                for i in range(2):
                    mb = v(MB + 2 * i, 2); acc = v(ACC + 32 * i + 16 * j, 16)
                    if isV: A(f"v_mfma_f32_32x32x8_bf16 {acc}, {mb}, {cf}, {acc}")
                    else:   A(f"v_mfma_f32_32x32x8_bf16 {acc}, {cf}, {mb}, {acc}")
            A("s_waitcnt vmcnt(0) lgkmcnt(0)")
            A("s_barrier")
            A(f"ds_read_b64 {v(cs+4,2)}, v{t1} offset:{CSL}")
            corr(0, v(cs + 2, 2))
            A("s_waitcnt lgkmcnt(0)")
            corr(1, v(cs + 4, 2))
            return
        A(f"v_and_b32 v{t2}, 3, v0")
        for k in (1, 2, 3):
            A(f"v_cmp_eq_u32 vcc, {k}, v{t2}")
            for i in range(2): A(f"v_cndmask_b32 v{SQ+4*i}, v{SQ+4*i}, v{SQ+4*i+k}, vcc")
        A(f"s_and_b32 s{sT0}, s{sWAVE}, 1")
        A(f"s_lshl_b32 s{sT0}, s{sT0}, 6")
        A(f"s_lshl_b32 s{sT1}, s{sFH2}, 4")
        A(f"s_add_u32 s{sT1}, s{sT1}, s{sT0}")
        A(f"v_and_b32 v{t2}, 15, v0")
        A(f"v_add_u32 v{t2}, s{sT1}, v{t2}")
        A(f"v_lshlrev_b32 v{t3}, 2, v{t2}")
        A(f"v_lshlrev_b32 v{t2}, 3, v{t2}")
        for i in range(2):
            sm, sq = SUM + 4 * i, SQ + 4 * i
            A(f"v_mul_f32 v{sm}, {fhex(1/640)}, v{sm}")
            A(f"v_mul_f32 v{sq}, {fhex(1/640)}, v{sq}")
            A(f"v_fma_f32 v{sq}, -v{sm}, v{sm}, v{sq}")
            A(f"v_max_f32 v{sq}, 0, v{sq}")
            A(f"v_add_f32 v{sq}, {fhex(1e-5)}, v{sq}")
            A(f"v_rsq_f32 v{sq}, v{sq}")
            A(f"v_cvt_pk_bf16_f32 v{sm+2}, -v{sm}, -v{sm}")
            A(f"v_and_b32 v{sm+3}, 0xffff0000, v{sm+2}")
            A(f"v_sub_f32 v{sm+3}, -v{sm}, v{sm+3}")
            A(f"v_cvt_pk_bf16_f32 v{sm+3}, v{sm+3}, 0")
        A("s_mov_b32 exec_lo, 0x00f0000f")
        A("s_mov_b32 exec_hi, 0xf0000f00")
        for i in range(2):
            A(f"ds_write_b64 v{t2}, {v(SUM+4*i+2,2)} offset:{STL + 128*i}")
            A(f"ds_write_b32 v{t3}, v{SQ+4*i} offset:{STL + 1024 + 64*i}")
        A("s_mov_b64 exec, -1")
        A(f"v_and_b32 v{t2}, 31, v0")
        A(f"v_add_u32 v{t2}, s{sT0}, v{t2}")
        if isV:
            A(f"v_lshrrev_b32 v{t3}, 5, v0")
            A(f"v_lshlrev_b32 v{t3}, 2, v{t3}")
            A(f"v_add_u32 v{t3}, s{sT0}, v{t3}")
            A(f"v_lshlrev_b32 v{t3}, 2, v{t3}")
        else:
            A(f"v_lshlrev_b32 v{t3}, 2, v{t2}")
        A(f"v_lshlrev_b32 v{t2}, 3, v{t2}")
        A(f"v_cmp_gt_u32 vcc, 32, v0")
        A("s_waitcnt lgkmcnt(0)")
        A("s_barrier")
        for i in range(2): A(f"ds_read_b64 {v(MB+2*i,2)}, v{t2} offset:{STL + 256*i}")
        A(f"ds_read_b64 {v(cs+4,2)}, v{t1} offset:{CSL}")
        if isV:
            for i in range(2):
                for aa in range(4): A(f"ds_read_b128 {v(vST+16*i+4*aa,4)}, v{t3} offset:{STL + 1024 + 128*i + 32*aa}")
        else:
            for i in range(2): A(f"ds_read_b32 v{RS+i}, v{t3} offset:{STL + 1024 + 128*i}")
        A(f"s_waitcnt lgkmcnt({8 if isV else 2})")
        for k in range(4): A(f"v_cndmask_b32 v{MB+k}, 0, v{MB+k}, vcc")
        for j in range(2):
            cf = v(cs + 2 + 2 * j, 2)
            for i in range(2):
                mb = v(MB + 2 * i, 2); acc = v(ACC + 32 * i + 16 * j, 16)
                if isV: A(f"v_mfma_f32_32x32x8_bf16 {acc}, {mb}, {cf}, {acc}")
                else:   A(f"v_mfma_f32_32x32x8_bf16 {acc}, {cf}, {mb}, {acc}")
        A("s_waitcnt lgkmcnt(0)")

    tr_addr(True, (f"s{sJ0}", f"s{sJ1}"))
    t0, t1, t2, tok16, half = vT, vT+1, vT+2, vT+4, vT+6
    A(f"s_cmp_ge_u32 s{sFG}, 5")
    A(f"s_cselect_b32 s{sT1}, 5, 0")
    A(f"s_cselect_b32 s{sBASE}, {hex(WS_K)}, {hex(WS_Q)}")
    A(f"s_cselect_b32 s{sQS}, 1.0, {fhex(QSCALE)}")
    A(f"s_sub_u32 s{sT1}, s{sFG}, s{sT1}")
    A(f"s_lshl_b32 s{sT1}, s{sT1}, 4")
    A(f"s_mul_i32 s{sT2}, s{sTILE}, 2560")
    A(f"s_add_u32 s{sBASE}, s{sBASE}, s{sT2}")
    A(f"v_lshrrev_b32 v{half}, 5, v0")
    A(f"v_add_u32 v{half}, s{sT1}, v{half}")
    A(f"v_and_b32 v{tok16}, 31, v0")
    A(f"v_lshlrev_b32 v{tok16}, 4, v{tok16}")
    A(f"s_mov_b32 s{sT2}, {PAIR_STRIDE - 2560}")
    for q in range(4):
        A(f"s_lshl_b32 s{sT0}, s{sJ0 + q//2}, 2")
        A(f"s_add_u32 s{sT0}, s{sT0}, {2*(q%2)}")
        A(f"v_add_u32 v{t0}, s{sT0}, v{half}")
        A(f"v_mul_u32_u24 v{t1}, 205, v{t0}")
        A(f"v_lshrrev_b32 v{t1}, 10, v{t1}")
        A(f"v_mul_lo_u32 v{t1}, s{sT2}, v{t1}")
        A(f"v_lshl_add_u32 v{t0}, v{t0}, 9, v{tok16}")
        A(f"v_add_u32 v{vADR+q}, v{t0}, v{t1}")
    if cfg.get("tlb", 0) & 1:
        A("s_mov_b32 exec_lo, 1")
        A("s_mov_b32 exec_hi, 1")
        for q in range(4): A(f"buffer_load_dword v{vT+7}, v{vADR+q}, s[{SWS}:{SWS+3}], s{sBASE} offen")
        A("s_mov_b64 exec, -1")
    mainloop(False)
    correction(False)
    for i in (1, 0):
        A(f"v_mul_f32 v{RS+2*i}, s{sQS}, v{RS+i}")
        A(f"v_mov_b32 v{RS+2*i+1}, v{RS+2*i}")
    for j in range(2):
        for i in range(2):
            for sg in range(2):
                r = ACC + 32 * i + 16 * j + 8 * sg
                for b in range(0, 8, 2): A(f"v_pk_mul_f32 {v(r+b,2)}, {v(r+b,2)}, {v(RS+2*i,2)}")
                for b in range(4): A(f"v_cvt_pk_bf16_f32 v{r+b}, v{r+2*b}, v{r+2*b+1}")
                A(f"buffer_store_dwordx4 {v(r,4)}, v{vADR+2*j+sg}, s[{SWS}:{SWS+3}], s{sBASE} offen offset:{2560*i} {STF}")
    A("s_branch L_qkv_fin")

    A.label("L_qkv_V")
    tr_addr(False, (f"s{sJ0}", f"s{sJ1}"))
    A(f"s_mul_i32 s{sBASE}, s{sTILE}, 1280")
    A(f"s_add_u32 s{sBASE}, s{sBASE}, {hex(WS_V)}")
    A(f"s_sub_u32 s{sT1}, s{sFG}, 10")
    A(f"s_lshl_b32 s{sT1}, s{sT1}, 7")
    A(f"v_lshrrev_b32 v{half}, 5, v0")
    A(f"v_mul_u32_u24 v{half}, 320, v{half}")
    A(f"v_and_b32 v{tok16}, 31, v0")
    A(f"v_add_u32 v{tok16}, s{sT1}, v{tok16}")
    A(f"s_mov_b32 s{sT2}, {VHEAD_STRIDE - 320}")
    for j in range(2):
        A(f"s_lshl_b32 s{sT0}, s{sJ0 + j}, 5")
        A(f"v_add_u32 v{t0}, s{sT0}, v{tok16}")
        A(f"v_mul_u32_u24 v{t1}, 3277, v{t0}")
        A(f"v_lshrrev_b32 v{t1}, 16, v{t1}")
        A(f"v_mul_lo_u32 v{t1}, s{sT2}, v{t1}")
        A(f"v_lshl_add_u32 v{t0}, v{t0}, 4, v{half}")
        A(f"v_add_u32 v{vADR+j}, v{t0}, v{t1}")
    if cfg.get("tlb", 0) & 1:
        A("s_mov_b32 exec_lo, 0x80008001")
        A("s_mov_b32 exec_hi, 0")
        for q in range(2): A(f"buffer_load_dword v{vT+7}, v{vADR+q}, s[{SWS}:{SWS+3}], s{sBASE} offen")
        A("s_mov_b64 exec, -1")
    mainloop(True)
    correction(True)
    for j in range(2):
        for i in range(2):
            for mf in range(2):
                r = ACC + 32 * i + 16 * j + 8 * mf
                for b in range(0, 8, 2): A(f"v_pk_mul_f32 {v(r+b,2)}, {v(r+b,2)}, {v(vST+16*i+8*mf+b,2)}")
                for b in range(4): A(f"v_cvt_pk_bf16_f32 v{r+b}, v{r+2*b}, v{r+2*b+1}")
                A(f"buffer_store_dwordx4 {v(r,4)}, v{vADR+j}, s[{SWS}:{SWS+3}], s{sBASE} offen offset:{1280*i + mf*640} {STF}")
    A.label("L_qkv_fin")
    stamp(A, cfg, 3)
    if cfg.get("qts"):
        for c in range(9): A(f"s_mov_b32 s{71+2*c}, s{70+2*c}")
        A("s_mov_b32 s68, 0")
        A("s_mov_b32 s69, 0")
        stamp_flush(A, cfg, 14, 17, SWS, sWAVE, 0)
        A("s_mov_b64 exec, -1")
    stamp_flush(A, cfg, 4, 0, SWS, sWAVE, 0)
    A("s_endpgm")

    i_l0 = len(A.items)
    A.label("L_qkv_loader")
    vWOFF, vXOFF = 1, 72
    sWLIM = 44
    if cfg.get("rot", 1):
        A(f"s_lshl_b32 s{sT0}, s{sT0}, 2")
        A(f"s_lshr_b32 s{sC0}, 0x30858530, s{sT0}")
        A(f"s_and_b32 s{sC0}, s{sC0}, 15")
        if cfg.get("rab", [0, 1]):
            ra, rb = cfg.get("rab", [0, 1])
            A(f"s_and_b32 s{sT0}, s{sTB}, 3")
            A(f"s_mul_i32 s{sT0}, s{sT0}, {ra}")
            A(f"s_add_u32 s{sC0}, s{sC0}, s{sT0}")
            A(f"s_and_b32 s{sT0}, s{sFG}, {cfg.get('rmask', 1)}")
            A(f"s_mul_i32 s{sT0}, s{sT0}, {rb}")
            A(f"s_add_u32 s{sC0}, s{sC0}, s{sT0}")
            A(f"s_mul_i32 s{sT0}, s{sC0}, 6554")
            A(f"s_lshr_b32 s{sT0}, s{sT0}, 16")
            A(f"s_mul_i32 s{sT0}, s{sT0}, 10")
            A(f"s_sub_u32 s{sC0}, s{sC0}, s{sT0}")
    else:
        A(f"s_mov_b32 s{sC0}, 0")
    A(f"s_sub_u32 s{sWAVE}, s{sWAVE}, 4")
    A(f"v_and_b32 v{vT}, 15, v0")
    A(f"v_lshrrev_b32 v{vT+1}, 4, v0")
    A(f"v_lshlrev_b32 v{vT+2}, 2, v{vT+1}")
    A(f"v_xor_b32 v{vT+2}, v{vT+2}, v{vT}")
    A(f"v_mul_u32_u24 v{vWOFF}, 3840, v{vT+1}")
    A(f"v_lshl_add_u32 v{vWOFF}, v{vT+2}, 4, v{vWOFF}")
    A(f"v_and_b32 v{vT}, 7, v0")
    A(f"v_xor_b32 v{vT}, v{vT}, v{vT+1}")
    A(f"v_lshrrev_b32 v{vT+2}, 3, v0")
    A(f"v_mul_u32_u24 v{vT+2}, 1280, v{vT+2}")
    A(f"v_lshl_add_u32 v{vXOFF}, v{vT}, 4, v{vT+2}")
    A(f"v_xor_b32 v{vXOFF+1}, 64, v{vXOFF}")
    A(f"s_lshl_b32 s{sWO}, s{sFG}, 8")
    A(f"s_mul_i32 s{sT0}, s{sWAVE}, {16*3840}")
    A(f"s_add_u32 s{sWO}, s{sWO}, s{sT0}")
    A(f"s_add_u32 s{sWLIM}, s{sWO}, {640*3840}")
    A(f"s_mul_i32 s{sT0}, s{sC0}, {64*3840}")
    A(f"s_add_u32 s{sWO}, s{sWO}, s{sT0}")
    A(f"s_lshl_b32 s{sXO}, s{sTB}, 2")
    A(f"s_add_u32 s{sXO}, s{sXO}, s{sWAVE}")
    A(f"s_mul_i32 s{sXO}, s{sXO}, {32*1280}")
    A(f"s_lshl_b32 s{sT0}, s{sC0}, 7")
    A(f"s_add_u32 s{sXO}, s{sXO}, s{sT0}")
    A(f"s_lshl_b32 s{sM0}, s{sWAVE}, 12")
    A("s_waitcnt lgkmcnt(0)")
    srd(A, SW, 6, 640 * 1920 * 2)
    srd(A, SX, SX, X_BYTES)
    def dma_ops(c):
        ops = []
        for j in range(4):
            ops.append([f"s_add_u32 m0, s{sM0}, {(c%5)*SLOT + j*1024}", f"s_add_u32 s{sT0}, s{sWO}, {4*j*3840}",
                        f"buffer_load_dwordx4 v{vWOFF}, s[{SW}:{SW+3}], s{sT0} offen lds"])
            ops.append([f"s_add_u32 m0, s{sM0}, {(c%5)*SLOT + 16384 + j*1024}", f"s_add_u32 s{sT0}, s{sXO}, {8*j*1280}",
                        f"buffer_load_dwordx4 v{vXOFF+(j%2)}, s[{SX}:{SX+3}], s{sT0} offen lds"])
        ops[-1] += [f"s_add_u32 s{sWO}, s{sWO}, {64*3840}", f"s_add_u32 s{sXO}, s{sXO}, 128",
                    f"s_cmp_eq_u32 s{sWO}, s{sWLIM}", f"s_cselect_b32 s{sT0}, {640*3840}, 0", f"s_cselect_b32 s{sT1}, 1280, 0",
                    f"s_sub_u32 s{sWO}, s{sWO}, s{sT0}", f"s_sub_u32 s{sXO}, s{sXO}, s{sT1}"]
        return ops
    def emit(op):
        for x in op:
            if cfg.get("q_nodma") and x.startswith("buffer_"): continue
            A(x)
    IW = cfg.get("iw", 2)
    for c in range(IW):
        for op in dma_ops(c): emit(op)
    srd(A, SWS, 50, WS_SIZE)
    prep_setup()
    ops = [("w", c) for c in range(IW) for _ in range(8)]
    nw = IW
    def wait_for(tag):
        last = max(i for i, o in enumerate(ops) if o == tag)
        A(f"s_waitcnt vmcnt({len(ops) - 1 - last})")
    for c in range(10):
        wait_for(("w", c))
        A("s_barrier")
        for k in range(2 if c in cfg.get("extra_at", []) else 1):
            if nw < 10 and nw <= max(c + 3, 4) and (nw != 4 or c >= 2 or not cfg.get('k1prep', 0)):
                for op in dma_ops(nw): emit(op)
                ops += [("w", nw)] * 8; nw += 1
        if c == 7:
            for jj in range(5):
                A(f"s_add_u32 m0, s{sPLDS}, {jj*1024}")
                A(f"buffer_load_dwordx4 v{VO+jj}, s[{SP}:{SP+3}], s{sPSRC} offen lds")
            ops += [("p", 0)] * 5
    if cfg.get("prep_late", 1): A("s_barrier")
    A("s_waitcnt vmcnt(0)")
    for f in range(5):
        for u in range(2):
            A(f"ds_read_b64_tr_b16 {v(PF+4*f+2*u,2)}, v{VO+5+(f==4)} offset:{4*u*160 + tile_col_imm(f)}")
    A("s_waitcnt lgkmcnt(0)")
    for f in range(5):
        A(f"s_add_u32 s{sT0}, s{sPDST}, {f*1024}")
        A(f"buffer_store_dwordx4 {v(PF+4*f,4)}, v{L16}, s[{SWS}:{SWS+3}], s{sT0} offen {STF}")
    A("s_endpgm")

    if cfg.get("lfirst", 1):
        seg = A.items[i_l0:]
        del A.items[i_l0:]
        A.items[i_split:i_split] = seg
    A.label("L_qkv_helper")
    XD = 16
    if cfg.get("ctouch", 2) == 1:
        code_touch_setup(A, 46, "qkv_kernel", True)
        A(f"v_lshlrev_b32 v{vT+1}, 7, v0")
        A(f"v_min_u32 v{vT+1}, L_code_end-qkv_kernel-4, v{vT+1}")
        A(f"global_load_dword v{vT+7}, v{vT+1}, s[46:47]")
    A(f"v_and_b32 v0, 63, v0")
    if HS:
        A(f"s_and_b32 s{sTB}, s2, 3")
        A(f"s_lshl_b32 s{sTB}, s{sTB}, 2")
        A(f"s_bfe_u32 s{sT0}, s2, 0x10002")
        A(f"s_lshl_b32 s{sT0}, s{sT0}, 1")
        A(f"s_add_u32 s{sTB}, s{sTB}, s{sT0}")
        A(f"s_lshr_b32 s{sT0}, s2, 3")
        A(f"s_add_u32 s{sTB}, s{sTB}, s{sT0}")
        A(f"s_lshl_b32 s{sXO}, s{sTB}, 3")
        A(f"s_add_u32 s{sXO}, s{sXO}, s{sWAVE}")
        A(f"s_mul_i32 s{sXO}, s{sXO}, {16*1280}")
        A(f"s_add_u32 s{sXLIM}, s{sXO}, {8*1280}")
        A(f"v_lshrrev_b32 v2, 3, v0")
        A(f"v_and_b32 v3, 7, v0")
        A(f"v_mul_u32_u24 v1, 1280, v2")
        A(f"v_lshl_add_u32 v1, v3, 4, v1")
        A("s_waitcnt lgkmcnt(0)")
        srd(A, SX, SX, X_BYTES)
        for g in range(2):
            for k in range(10):
                A(f"buffer_load_dwordx4 {v(XD+40*g+4*k,4)}, v1, s[{SX}:{SX+3}], s{sXLIM if g else sXO} offen offset:{128*k}")
        srd(A, SWS, 50, WS_SIZE)
        srd(A, SD, SD, 256)
        A(f"v_mov_b32 v4, 0x3f803f80")
        A(f"s_lshl_b32 s{sT0}, s{sWAVE}, 4")
        A(f"v_add_u32 v2, s{sT0}, v2")
        A(f"v_lshlrev_b32 v5, 3, v2")
        A(f"v_lshlrev_b32 v6, 2, v2")
        A(f"s_lshl_b32 s{sBASE}, s{sTB}, 11")
        A(f"s_add_u32 s{sBASE}, s{sBASE}, {hex(WS_ST1)}")
        A(f"s_mov_b32 s{sT1}, 0x01010101")
        for g in range(2):
            sm, sq = vT, vT + 1
            for k in range(10):
                A(f"s_waitcnt vmcnt({19 - (10*g+k) + (2 if g else 0)})")
                for i in range(4):
                    r = XD + 40 * g + 4 * k + i
                    first = (k == 0 and i == 0)
                    A(f"v_dot2_f32_bf16 v{sm}, v{r}, v4, {0 if first else 'v%d' % sm}")
                    A(f"v_dot2_f32_bf16 v{sq}, v{r}, v{r}, {0 if first else 'v%d' % sq}")
            for dpp in ("quad_perm:[1,0,3,2]", "quad_perm:[2,3,0,1]", "row_half_mirror"):
                A(f"v_add_f32_dpp v{sm}, v{sm}, v{sm} {dpp} row_mask:0xf bank_mask:0xf")
                A(f"v_add_f32_dpp v{sq}, v{sq}, v{sq} {dpp} row_mask:0xf bank_mask:0xf")
            A(f"v_mul_f32 v{sm}, {fhex(1/640)}, v{sm}")
            A(f"v_mul_f32 v{sq}, {fhex(1/640)}, v{sq}")
            A(f"v_fma_f32 v{sq}, -v{sm}, v{sm}, v{sq}")
            A(f"v_max_f32 v{sq}, 0, v{sq}")
            A(f"v_add_f32 v{sq}, {fhex(1e-5)}, v{sq}")
            A(f"v_rsq_f32 v{vT+4}, v{sq}")
            A(f"v_cvt_pk_bf16_f32 v{vT+2}, -v{sm}, -v{sm}")
            A(f"v_and_b32 v{vT+3}, 0xffff0000, v{vT+2}")
            A(f"v_sub_f32 v{vT+3}, -v{sm}, v{vT+3}")
            A(f"v_cvt_pk_bf16_f32 v{vT+3}, v{vT+3}, 0")
            A(f"s_mov_b32 exec_lo, s{sT1}")
            A(f"s_mov_b32 exec_hi, s{sT1}")
            A(f"buffer_store_dwordx2 {v(vT+2,2)}, v5, s[{SWS}:{SWS+3}], s{sBASE} offen offset:{64*g} sc1")
            A(f"buffer_store_dword v{vT+4}, v6, s[{SWS}:{SWS+3}], s{sBASE} offen offset:{1024 + 32*g} sc1")
            A("s_mov_b64 exec, -1")
        pass
        A("s_waitcnt vmcnt(0)")
        A("s_barrier")
        pass
        A(f"s_lshl_b32 s{sT0}, s{sTB}, 4")
        A(f"s_cmp_eq_u32 s{sWAVE}, 0")
        A(f"s_cselect_b32 s{sT0}, s{sT0}, 256")
        A(f"v_mov_b32 v2, 1")
        A(f"v_mov_b32 v3, 0")
        A("s_mov_b64 exec, 1")
        A(f"buffer_store_dword v2, v3, s[{SD}:{SD+3}], s{sT0} offen sc1")
        A("s_mov_b64 exec, -1")
    else:
        A("s_waitcnt lgkmcnt(0)")
        srd(A, SWS, 50, WS_SIZE)
    if cfg.get("ptouch", 0):
        srd(A, SP, 34, 1536 * 640 * 2)
        srd(A, SW, 32, 640 * 640 * 2)
        A(f"s_lshl_b32 s{sT0}, s2, 3")
        A(f"s_add_u32 s{sT0}, s{sT0}, s{sWAVE}")
        A(f"s_mul_i32 s{sT1}, s{sT0}, {50*128}")
        A(f"s_mul_i32 s{sT0}, s{sT0}, {120*128}")
        A(f"v_lshlrev_b32 v1, 7, v0")
        A("s_bfm_b64 exec, 60, 0")
        A(f"buffer_load_dword v4, v1, s[{SP}:{SP+3}], s{sT0} offen")
        A(f"s_add_u32 s{sT0}, s{sT0}, {60*128}")
        A(f"buffer_load_dword v4, v1, s[{SP}:{SP+3}], s{sT0} offen")
        A("s_bfm_b64 exec, 50, 0")
        A(f"buffer_load_dword v4, v1, s[{SW}:{SW+3}], s{sT1} offen")
        A("s_mov_b64 exec, -1")
    if cfg.get("tlbw", 1):
        A("s_load_dwordx4 s[40:43], s[0:1], 32")
        A("s_load_dwordx2 s[52:53], s[0:1], 56")
        A(f"v_lshlrev_b32 v1, 18, v0")
        A(f"s_cmp_lg_u32 s{sWAVE}, 0")
        A("s_cbranch_scc1 L_qkv_notlb")
        A(f"buffer_load_dword v4, v1, s[{SWS}:{SWS+3}], 0 offen")
        A(f"s_mov_b32 s{sT0}, 0x1000000")
        A("s_bfm_b64 exec, 24, 0")
        A(f"buffer_load_dword v4, v1, s[{SWS}:{SWS+3}], s{sT0} offen")
        A("s_mov_b64 exec, -1")
        A("s_waitcnt lgkmcnt(0)")
        for p, nb in ((40, 640*1536*2), (42, 640*1536*2), (52, X_BYTES), (32, 640*640*2), (34, 640*1536*2)):
            srd(A, SP, p, nb)
            A(f"buffer_load_dword v4, v1, s[{SP}:{SP+3}], 0 offen")
        A.label("L_qkv_notlb")
        A("s_waitcnt lgkmcnt(0)")
    if cfg.get("gtouch", 0):
        A("s_load_dwordx4 s[40:43], s[0:1], 32")
        A(f"s_lshl_b32 s{sT0}, s2, 3")
        A(f"s_add_u32 s{sT0}, s{sT0}, s{sWAVE}")
        A(f"s_mul_i32 s{sT0}, s{sT0}, {120*128}")
        A(f"s_add_u32 s{sT1}, s{sT0}, {60*128}")
        A(f"v_lshlrev_b32 v1, 7, v0")
        A("s_waitcnt lgkmcnt(0)")
        srd(A, SP, 40, 1536 * 640 * 2)
        srd(A, SW, 42, 1536 * 640 * 2)
        if cfg["gtouch"] == 2: A("s_waitcnt vmcnt(0)")
        A("s_bfm_b64 exec, 60, 0")
        for sr in (SP, SW):
            for so in (sT0, sT1):
                A(f"buffer_load_dword v4, v1, s[{sr}:{sr+3}], s{so} offen")
        A("s_mov_b64 exec, -1")
    stamp(A, cfg, 1)
    stamp(A, cfg, 2)
    if cfg.get("zfill", 0):
        for i in range(4): A(f"v_mov_b32 v{XD+i}, 0")
        A(f"v_lshlrev_b32 v1, 4, v0")
        A(f"s_lshl_b32 s{sT0}, s2, 3")
        A(f"s_add_u32 s{sT0}, s{sT0}, s{sWAVE}")
        A(f"s_lshl_b32 s{sT1}, s{sT0}, 11")
        A(f"s_add_u32 s{sT1}, s{sT1}, {hex(WS_ST2)}")
        A(f"s_mul_i32 s{sT0}, s{sT0}, 40960")
        A(f"s_add_u32 s{sT0}, s{sT0}, {hex(WS_O)}")
        for k in range(40):
            if k % 4 == 0 and k: A(f"s_add_u32 s{sT0}, s{sT0}, 4096")
            A(f"buffer_store_dwordx4 {v(XD,4)}, v1, s[{SWS}:{SWS+3}], s{sT0} offen offset:{(k%4)*1024} sc1")
        for k in range(2): A(f"buffer_store_dwordx4 {v(XD,4)}, v1, s[{SWS}:{SWS+3}], s{sT1} offen offset:{k*1024} sc1")
    A(f"s_lshl_b32 s{sT0}, s{sWAVE}, 10")
    A(f"s_lshl_b32 s{sT1}, s2, 13")
    A(f"s_add_u32 s{sT0}, s{sT0}, s{sT1}")
    A(f"s_add_u32 s{sT0}, s{sT0}, {hex(WS_SYNC)}")
    A(f"s_cmp_lt_u32 s2, 5")
    A(f"s_cselect_b32 s{sT0}, s{sT0}, {hex(WS_SIZE)}")
    for i in range(4): A(f"v_mov_b32 v{XD+i}, 0")
    A(f"v_lshlrev_b32 v1, 4, v0")
    A(f"buffer_store_dwordx4 {v(XD,4)}, v1, s[{SWS}:{SWS+3}], s{sT0} offen")
    stamp(A, cfg, 3)
    stamp_flush(A, cfg, 4, 0, SWS, sWAVE, 0)
    A.label("L_qkv_end")
    A("s_endpgm")
    return dict(name=name, grid=256, block=512, lds=163840, desc=kernel_desc(name, 216, 216))
```

```python
from common import *

GU_SLOT = 24608
GU_UP = 12288 + 32
GU_MISC = 6 * GU_SLOT
NWS, H_BASE, NHS = 4, 4 * GU_SLOT, 3
PART_BASE = 4 * GU_SLOT
KV_SLOT = 20480
NKV = 3
KV_BASE = 163840 - NKV * KV_SLOT
NV = 112

class R:
    S = (16, 32); O = 48; P = 64; K1 = 72; K2 = 76; V1 = 80; V2 = 84; Q1 = 88; Q2 = 92
    KA = 1; K2A = 2; VA = 3; L16 = 4; F2S = 5; L4 = 7; T = 8; TCH = 94
    GV = 96
    XRES = 100

SX, SWS, SG_, SU, SO = 4, 8, 12, 16, 20
sWAVE, sG, sM, sT0, sT1, sT2, sC, sDELTA, sSLOT, sQT = 24, 25, 26, 27, 28, 29, 30, 31, 32, 33
sVMASK = 34
sKSRC, sVSRC, sKBASE, sVBASE, sFG, sTOK16, sJ, sFAST, sWOSRC, sWDSRC, sGSRC, sGM0, sFLAG, sB, sXCC, sLW = 36, 37, 38, 39, 40, 41, 42, 43, 44, 45, 46, 47, 48, 49, 50, 51
sTMP = 52
SWO_, SWD_ = 92, 96
sSTG, sWDRAW, sTO, sKQ, sB2, sGLIM, sC0 = 86, 87, 90, 95, 96, 99, 91
sHD, sKLIM, sFL0 = 97, 98, 100

def WD(step, f, n=4):
    if step == 7: return v(40 + 4 * f, n)
    return a({0: 100, 1: 120, 2: 80, 3: 60, 4: 40, 5: 20, 6: 0}[step] + 4 * f, n)
def A_RES(i): return 140 + i if i < 4 else 56 + (i - 4)

def set_shift(A, m):
    t0, t1, t2 = m + 1, m + 2, m + 3
    A(f"v_cvt_pk_bf16_f32 v{t0}, -v{m}, -v{m}")
    A(f"v_and_b32 v{t0}, 0xffff0000, v{t0}")
    A(f"v_sub_f32 v{t1}, -v{m}, v{t0}")
    A(f"v_cvt_pk_bf16_f32 v{t2}, v{t0}, v{t1}")
    A(f"v_and_b32 v{t0}, 0xffff0000, v{t2}")
    A(f"v_sub_f32 v{t1}, v{t1}, v{t0}")
    A(f"v_cvt_pk_bf16_f32 v{t1}, v{t1}, 0")
    A(f"v_cmp_gt_u32 vcc, 32, v0")
    A(f"v_cndmask_b32 v{R.Q2+1}, v{t1}, v{t2}, vcc")

def max16(A, dst, S, first):
    if first:
        A(f"v_max3_f32 v{dst}, v{S}, v{S+1}, v{S+2}")
        A(f"v_max_f32 v{dst}, v{dst}, v{S+3}")
        rng = range(4, 16, 2)
    else:
        rng = range(0, 16, 2)
    for i in rng: A(f"v_max3_f32 v{dst}, v{dst}, v{S+i}, v{S+i+1}")

def xhalf_max(A, m, t):
    A(f"v_mov_b32 v{t}, v{m}")
    A(f"v_permlane32_swap_b32 v{m}, v{t}")
    A(f"v_max_f32 v{m}, v{m}, v{t}")

def stores(A, lst, data=True):
    if data == "O" and CFG.get("hp", 1) or data and CFG.get("wt", 2) & 1:
        for x in lst: A(x + (" sc1" if x.startswith("buffer_") else ""))
        return
    L1, L2 = A.newlabel("stf"), A.newlabel("ste")
    A(f"s_cmp_lg_u32 s{sFAST}, 0")
    A(f"s_cbranch_scc1 {L1}")
    for x in lst: A(x + (" sc1" if x.startswith("buffer_") else ""))
    A(f"s_branch {L2}")
    A.label(L1)
    for x in lst: A(x)
    A.label(L2)

def readback(A, lst):
    if not CFG.get("rb", 0) & 1: return
    for mask, ops in lst:
        ops = [x + " sc1" for x in ops]
        A(f"s_mov_b32 exec_lo, {hex(mask & 0xffffffff)}")
        A(f"s_mov_b32 exec_hi, {hex(mask >> 32)}")
        for x in ops: A(x)
    A("s_mov_b64 exec, -1")

def sync(A, idx, poller, half, nleft, between=None, rb=None):
    T = R.T
    A(f"s_waitcnt vmcnt({nleft})")
    if rb: readback(A, rb)
    A("s_barrier")
    L, LP = A.newlabel("sy"), A.newlabel("poll")
    A(f"s_cmp_lg_u32 s{sWAVE}, {poller}")
    if between is not None:
        LB = A.newlabel("btw")
        A(f"s_cbranch_scc1 {LB}")
    else:
        A(f"s_cbranch_scc1 {L}")
    A(f"s_lshl_b32 s{sT0}, s{sM}, 2")
    A(f"s_add_u32 s{sT0}, s{sT0}, s{sFLAG}")
    A(f"v_mov_b32 v{T}, 1")
    A(f"v_mov_b32 v{T+1}, 0")
    A("s_mov_b64 exec, 1")
    if idx == 0 and CFG.get("hp", 1):
        A(f"buffer_store_dword v{T}, v{T+1}, s[{SWS}:{SWS+3}], s{sFL0} offen sc1")
    else:
        stores(A, [f"buffer_store_dword v{T}, v{T+1}, s[{SWS}:{SWS+3}], s{sT0} offen offset:{idx*128}"], data=False)
    if half:
        A(f"s_and_b32 s{sT0}, s{sM}, 2")
        A(f"s_lshl_b32 s{sT0}, 0x33333333, s{sT0}")
        A(f"s_mov_b32 exec_lo, s{sT0}")
    else:
        A("s_mov_b32 exec_lo, -1")
    X0 = idx == 0 and CFG.get("hp", 1)
    L32 = X0 and CFG.get("l32", 1)
    A(f"v_lshlrev_b32 v{T+1}, {7 if L32 else 2}, v0")
    A(f"s_mov_b32 s{sT1}, 0")
    if L32:
        A(f"s_lshl_b32 s{sT0}, s{sG}, 12")
        A(f"s_add_u32 s{sT0}, s{sT0}, {hex(WS_SYNC + 8192)}")
    A.label(LP)
    sl = CFG.get("sl0", 4) if X0 else CFG.get("sl1", 0)
    if sl: A(f"s_sleep {sl}")
    if L32: A(f"buffer_load_dword v{T}, v{T+1}, s[{SWS}:{SWS+3}], s{sT0} offen sc1")
    else: A(f"buffer_load_dword v{T}, v{T+1}, s[{SWS}:{SWS+3}], s{sFLAG} offen offset:{idx*128} sc1")
    A(f"s_add_u32 s{sT1}, s{sT1}, 1")
    A("s_waitcnt vmcnt(0)")
    A(f"v_cmp_eq_u32 vcc, 0, v{T}")
    A(f"s_cmp_lt_u32 s{sT1}, 0x40000")
    A(f"s_cselect_b64 vcc, vcc, 0")
    A(f"s_cbranch_vccnz {LP}")
    A("s_mov_b64 exec, -1")
    if between is not None:
        A("s_barrier")
        between()
        A(f"s_branch {L}")
        A.label(LB)
        between()
        A("s_barrier")
        A.label(L)
    else:
        A.label(L)
        A("s_barrier")

def addr_rowmajor(A, vp, vs, T):
    A(f"v_and_b32 v{T}, 15, v0")
    A(f"v_lshrrev_b32 v{T+1}, 4, v0")
    A(f"v_mul_u32_u24 v{T}, 1280, v{T}")
    A(f"s_add_u32 s{sT0}, s{sLW}, s{sTOK16}")
    A(f"s_mul_i32 s{sT0}, s{sT0}, {16*1280}")
    A(f"s_mul_i32 s{sT1}, s{sFG}, 160")
    A(f"s_add_u32 s{sT0}, s{sT0}, s{sT1}")
    A(f"v_add_u32 v{T}, s{sT0}, v{T}")
    A(f"v_lshl_add_u32 v{vp}, v{T+1}, 4, v{T}")
    A(f"v_lshl_add_u32 v{vs}, v{T+1}, 3, v{T}")
    A(f"v_add_u32 v{vs}, 128, v{vs}")
    A(f"s_and_b32 s{sT0}, s{sWAVE}, 4")
    A(f"s_lshl_b32 s{sT0}, s{sT0}, 4")
    A(f"v_add_u32 v{vp}, s{sT0}, v{vp}")

def reduce_addr(A, P, base, RA):
    A(f"s_mul_i32 s{sT0}, s{sLW}, 5120")
    A(f"s_and_b32 s{sT1}, s{sWAVE}, 4")
    A(f"s_lshl_b32 s{sT1}, s{sT1}, 9")
    A(f"s_add_u32 s{sT0}, s{sT0}, s{sT1}")
    A(f"s_add_u32 s{sT0}, s{sT0}, {base}")
    A(f"v_add_u32 v{RA}, s{sT0}, v{R.L16}")
    for k in range(1, (P + 2) // 3): A(f"v_add_u32 v{RA+k}, {3*20480*k}, v{RA}")

def reduce_sum(A, P, D, RA, n, own, mid=None):
    W = 4 * n
    for p in range(P):
        for e in range(n):
            A(f"ds_read_b128 {v(D+W*p+4*e,4)}, v{RA+p//3} offset:{(p%3)*20480 + (e*1024 if e < 2 else 4096)}")
    if mid: mid()
    for p in range(P):
        A(f"s_waitcnt lgkmcnt({min(15, n*(P-1-p))})")
        for e in range(n):
            for i in (0, 2): A(f"v_pk_add_f32 {v(own[e]+i,2)}, {v(own[e]+i,2)}, {v(D+W*p+4*e+i,2)}")

CFG = {}
def gu_dma_ops(c):
    ops = []
    for isup in range(2):
        sr = SU if isup else SG_
        for jj in range(3):
            ops.append([f"s_add_u32 m0, s{sGM0}, {(c%NWS)*GU_SLOT + isup*GU_UP + jj*1024}",
                        "s_nop 0",
                        f"buffer_load_dwordx4 v{R.GV+jj}, s[{sr}:{sr+3}], s{sGSRC} offen lds"])
    ops[-1] += [f"s_add_u32 s{sGSRC}, s{sGSRC}, {64*3072}", f"s_cmp_eq_u32 s{sGSRC}, s{sGLIM}", f"s_cselect_b32 s{sT0}, {640*3072}, 0", f"s_sub_u32 s{sGSRC}, s{sGSRC}, s{sT0}"]
    return ops
def load_wd_ops(step):
    return [[f"s_add_u32 s{sT0}, s{sWDSRC}, {step*5120 + f*1024}",
             f"buffer_load_dwordx4 {WD(step, f)}, v{R.L16}, s[{SWS}:{SWS+3}], s{sT0} offen"] for f in range(5)]
def gu_dma(A, c, rows):
    A(f"s_add_u32 s{sT0}, s{sGSRC}, {c*64*3072}")
    for isup in range(2):
        sr = SU if isup else SG_
        for jj in range(3):
            A(f"s_add_u32 m0, s{sGM0}, {(c%NWS)*GU_SLOT + isup*GU_UP + jj*1024}")
            A(f"buffer_load_dwordx4 v{R.GV+jj}, s[{sr}:{sr+3}], s{sT0} offen lds")

def load_wd(A, step):
    for f in range(5):
        if f % 4 == 0: A(f"s_add_u32 s{sT0}, s{sWDSRC}, {step*5120 + f*1024}")
        A(f"buffer_load_dwordx4 {WD(step, f)}, v{R.L16}, s[{SWS}:{SWS+3}], s{sT0} offen offset:{(f%4)*1024}")

def cfg_touch_plan(cfg, gu_touch, out_touch, wd_touch, extra):
    plan = cfg.get("tplan", [[20,"gw"],[44,"h"],[50,"st"]])
    out = []
    for t, w in plan:
        if w in extra: out.append((t, extra[w]))
        elif w[0] == "g": out.append((t, gu_touch(int(w[1]))))
        else: out.append((t, {"o": out_touch(WS_O, 1280), "h": out_touch(WS_H, 1280), "hid": out_touch(WS_HID, 3072), "st": out_touch(WS_ST2, 128), "wd": wd_touch,
                                 "hid0": out_touch(WS_HID, 3072, 0, 8), "hid1": out_touch(WS_HID, 3072, 8, 8), "hid2": out_touch(WS_HID, 3072, 16, 8)}[w]))
    return out

def gen_main(A, cfg):
    name = "main_kernel"
    CFG.update(cfg)
    cfg = dict(cfg); cfg["_k2"] = 1
    kstart(A, name)
    T = R.T
    A("s_cmp_ge_u32 s2, 256")
    A("s_cbranch_scc1 L_end")
    A(f"s_load_dwordx2 s[{SWS}:{SWS+1}], s[0:1], 72")
    A(f"s_load_dwordx2 s[{SX}:{SX+1}], s[0:1], 0")
    A(f"s_load_dwordx2 s[{SG_}:{SG_+1}], s[0:1], 32")
    A(f"s_load_dwordx2 s[{SU}:{SU+1}], s[0:1], 40")
    A(f"s_load_dwordx2 s[{SO}:{SO+1}], s[0:1], 56")
    stamp(A, cfg, 0)
    A(f"v_lshrrev_b32 v{T}, 6, v0")
    A(f"v_and_b32 v0, 63, v0")
    A(f"v_readfirstlane_b32 s{sWAVE}, v{T}")
    A(f"s_and_b32 s{sG}, s2, 7")
    A(f"s_lshr_b32 s{sM}, s2, 3")
    HP = cfg.get("hp", 1)
    if HP:
        A(f"s_lshl_b32 s{sHD}, s{sG}, 2")
        A(f"s_lshr_b32 s{sT0}, s{sM}, 3")
        A(f"s_add_u32 s{sHD}, s{sHD}, s{sT0}")
        A(f"s_and_b32 s{sFL0}, s{sM}, 7")
    else:
        A(f"s_mov_b32 s{sHD}, s{sM}")
        A(f"s_mov_b32 s{sFL0}, s{sG}")
    A(f"s_lshr_b32 s{sT0}, s{sHD}, 1")
    A(f"s_mul_i32 s{sKBASE}, s{sT0}, {PAIR_STRIDE}")
    A(f"s_mul_i32 s{sVBASE}, s{sHD}, {VHEAD_STRIDE}")
    A(f"s_add_u32 s{sVBASE}, s{sVBASE}, {hex(WS_V)}")
    A(f"s_lshl_b32 s{sQT}, s{sFL0}, 3")
    A(f"s_add_u32 s{sQT}, s{sQT}, s{sWAVE}")
    A(f"s_and_b32 s{sT1}, s{sHD}, 1")
    A(f"v_lshlrev_b32 v{R.L16}, 4, v0")
    A(f"s_mul_i32 s{sT2}, s{sT1}, 1536")
    A(f"v_add_u32 v{R.F2S+1}, s{sT2}, v{R.L16}")
    A(f"v_and_b32 v{T}, 31, v0")
    A(f"v_lshrrev_b32 v{T+1}, 5, v0")
    A(f"v_lshlrev_b32 v{R.F2S}, 4, v{T}")
    A(f"v_lshl_add_u32 v{R.F2S}, v{T+1}, 2, v{R.F2S}")
    A(f"s_lshl_b32 s{sT1}, s{sT1}, 3")
    A(f"s_add_u32 s{sT1}, s{sT1}, 1024")
    A(f"v_add_u32 v{R.F2S}, s{sT1}, v{R.F2S}")
    A(f"s_mul_i32 s{sKSRC}, s{sWAVE}, 2560")
    A(f"s_add_u32 s{sKSRC}, s{sKSRC}, s{sKBASE}")
    A(f"s_mul_i32 s{sVSRC}, s{sWAVE}, 1280")
    A(f"s_mul_i32 s{sSLOT}, s{sWAVE}, 2560")
    A(f"v_lshlrev_b32 v{R.L4}, 2, v0")
    A(f"s_add_u32 s{sVSRC}, s{sVSRC}, s{sVBASE}")
    A(f"s_add_u32 s{sKLIM}, s{sKSRC}, {PAIR_STRIDE}")
    A(f"s_mul_i32 s{sT0}, s{sFL0}, {8*1280 if HP and cfg.get('krot', 0) else 0}")
    A(f"s_add_u32 s{sVSRC}, s{sVSRC}, s{sT0}")
    A(f"s_lshl_b32 s{sT0}, s{sT0}, 1")
    A(f"s_add_u32 s{sKSRC}, s{sKSRC}, s{sT0}")
    A(f"s_add_u32 s{sB2}, s{sKBASE}, s{sT0}")
    A("s_waitcnt lgkmcnt(0)")
    srd(A, SWS, SWS, WS_SIZE)
    KVF = cfg.get("kvflag", "")
    def kv_ops(c):
        lds = KV_BASE + (c % NKV) * KV_SLOT
        return [
            [f"s_add_u32 m0, s{sSLOT}, {lds}", "s_nop 0",
             f"buffer_load_dwordx4 v{R.F2S+1}, s[{SWS}:{SWS+3}], s{sKSRC} offen {KVF} lds"],
            [f"s_add_u32 m0, s{sSLOT}, {lds+1024}", "s_nop 0",
             f"buffer_load_dword v{R.F2S}, s[{SWS}:{SWS+3}], s{sKSRC} offen {KVF} lds"],
            [f"s_add_u32 m0, s{sSLOT}, {lds+1280}", f"s_add_u32 s{sKSRC}, s{sKSRC}, {8*2560}",
             f"buffer_load_dwordx4 v{R.L16}, s[{SWS}:{SWS+3}], s{sVSRC} offen {KVF} lds"],
            [f"s_add_u32 m0, s{sSLOT}, {lds+2304}", f"s_add_u32 s{sT0}, s{sVSRC}, 1024",
             f"buffer_load_dword v{R.L4}, s[{SWS}:{SWS+3}], s{sT0} offen {KVF} lds",
             f"s_add_u32 s{sVSRC}, s{sVSRC}, {8*1280}"] +
            ([f"s_cmp_eq_u32 s{sKSRC}, s{sKLIM}", f"s_cselect_b32 s{sT0}, {VHEAD_STRIDE}, 0", f"s_sub_u32 s{sVSRC}, s{sVSRC}, s{sT0}",
              f"s_lshl_b32 s{sT0}, s{sT0}, 1", f"s_sub_u32 s{sKSRC}, s{sKSRC}, s{sT0}"] if HP and cfg.get('krot', 0) else [])]
    def emit(op):
        for x in op: A(x)
    A(f"s_mul_i32 s{sT2}, s{sQT}, 2560")
    A(f"s_add_u32 s{sT2}, s{sT2}, s{sKBASE}")
    A(f"s_add_u32 s{sT2}, s{sT2}, {hex(WS_Q)}")
    A(f"buffer_load_dwordx4 {v(R.Q1,4)}, v{R.F2S+1}, s[{SWS}:{SWS+3}], s{sT2} offen")
    A(f"buffer_load_dword v{R.Q2}, v{R.F2S}, s[{SWS}:{SWS+3}], s{sT2} offen")
    A(f"buffer_load_dwordx4 {v(R.K1,4)}, v{R.F2S+1}, s[{SWS}:{SWS+3}], s{sB2} offen")
    A(f"buffer_load_dword v{R.K2}, v{R.F2S}, s[{SWS}:{SWS+3}], s{sB2} offen")
    PSP = cfg.get("psplit", 3)
    if PSP:
        A(f"s_cmp_ge_u32 s{sWAVE}, {PSP}")
        A("s_cbranch_scc1 L_p0")
    for op in kv_ops(0): emit(op)
    A.label("L_p0")
    A(f"s_lshl_b32 s{sFLAG}, s{sG}, 10")
    A(f"s_add_u32 s{sFLAG}, s{sFLAG}, {hex(WS_SYNC)}")
    A(f"s_getreg_b32 s{sXCC}, hwreg(HW_REG_XCC_ID, 0, 3)")
    A(f"s_mul_i32 s{sXCC}, s{sXCC}, 6")
    A(f"s_lshr_b32 s{sFG}, s{sM}, 2")
    A(f"s_and_b32 s{sT0}, s{sM}, 3")
    A(f"s_lshl_b32 s{sTOK16}, s{sG}, 4")
    A(f"s_lshl_b32 s{sT0}, s{sT0}, 2")
    A(f"s_add_u32 s{sTOK16}, s{sTOK16}, s{sT0}")
    A(f"s_lshl_b32 s{sJ}, s{sFG}, 1")
    A(f"s_and_b32 s{sT0}, s{sM}, 1")
    A(f"s_add_u32 s{sJ}, s{sJ}, s{sT0}")
    A(f"s_and_b32 s{sLW}, s{sWAVE}, 3")
    A(f"s_mul_i32 s{sWOSRC}, s{sFG}, {20*5120}")
    A(f"s_and_b32 s{sKQ}, s{sLW}, 1")
    A(f"s_lshl_b32 s{sKQ}, s{sKQ}, 1")
    A(f"s_lshr_b32 s{sT0}, s{sWAVE}, 2")
    A(f"s_add_u32 s{sKQ}, s{sKQ}, s{sT0}")
    if cfg.get("stag", 3) & 1:
        A(f"s_and_b32 s{sT0}, s{sFG}, 1")
        A(f"s_lshl_b32 s{sT0}, s{sT0}, 1")
        A(f"s_xor_b32 s{sKQ}, s{sKQ}, s{sT0}")
    A(f"s_mul_i32 s{sT0}, s{sKQ}, {5*5120}")
    A(f"s_add_u32 s{sWOSRC}, s{sWOSRC}, s{sT0}")
    A(f"s_add_u32 s{sWOSRC}, s{sWOSRC}, {hex(WS_WO)}")
    A(f"s_mul_i32 s{sWDSRC}, s{sFG}, {48*5120}")
    A(f"s_and_b32 s{sT0}, s{sFG}, {3 if cfg.get('stag', 3) & 2 else 0}")
    A(f"s_xor_b32 s{sT0}, s{sT0}, s{sLW}")
    A(f"s_mul_i32 s{sT0}, s{sT0}, 12")
    A(f"s_and_b32 s{sT1}, s{sWAVE}, 4")
    A(f"s_add_u32 s{sWDRAW}, s{sT0}, s{sT1}")
    A(f"s_mul_i32 s{sT0}, s{sWDRAW}, 5120")
    A(f"s_add_u32 s{sWDSRC}, s{sWDSRC}, s{sT0}")
    A(f"s_add_u32 s{sWDSRC}, s{sWDSRC}, {hex(WS_WD)}")
    A(f"s_mul_i32 s{sGSRC}, s{sLW}, {16*3072}")
    A(f"s_mul_i32 s{sT0}, s{sJ}, 192")
    A(f"s_add_u32 s{sGSRC}, s{sGSRC}, s{sT0}")
    A(f"s_mul_i32 s{sGM0}, s{sLW}, 3072")
    if cfg.get("stag", 3) & 4:
        A(f"s_bfe_u32 s{sT0}, s{sM}, 0x10001")
        A(f"s_mul_i32 s{sT0}, s{sT0}, {cfg.get('gth', 5)}")
        A(f"s_mul_i32 s{sC0}, s{sJ}, {cfg.get('gja', 1)}")
        A(f"s_add_u32 s{sC0}, s{sC0}, s{sT0}")
        A(f"s_mul_i32 s{sT0}, s{sC0}, 6554")
        A(f"s_lshr_b32 s{sT0}, s{sT0}, 16")
        A(f"s_mul_i32 s{sT0}, s{sT0}, 10")
        A(f"s_sub_u32 s{sC0}, s{sC0}, s{sT0}")
    else:
        A(f"s_mov_b32 s{sC0}, 0")
    A(f"s_add_u32 s{sGLIM}, s{sGSRC}, {640*3072}")
    A(f"s_mul_i32 s{sT0}, s{sC0}, {64*3072}")
    A(f"s_add_u32 s{sGSRC}, s{sGSRC}, s{sT0}")
    srd(A, SX, SX, X_BYTES); srd(A, SG_, SG_, 640 * 1536 * 2); srd(A, SU, SU, 640 * 1536 * 2); srd(A, SO, SO, X_BYTES)
    A(f"v_add_u32 v{R.KA}, {KV_BASE}, v{R.L16}")
    A(f"v_add_u32 v{R.K2A}, {KV_BASE + 1024}, v{R.L4}")
    r, kh, aa, hf, b, i_, d1, d2 = T, T+1, T+2, T+3, T+4, T+5, T+6, T+7
    A(f"v_lshrrev_b32 v{aa}, 3, v{r}")
    A(f"v_bfe_u32 v{hf}, v{r}, 2, 1")
    A(f"v_and_b32 v{b}, 3, v{r}")
    A(f"v_lshl_add_u32 v{i_}, v{aa}, 2, v{b}")
    A(f"v_lshl_add_u32 v{d1}, v{hf}, 3, v{i_}")
    A(f"v_lshl_add_u32 v{d2}, v{hf}, 1, v{i_}")
    A(f"v_add_u32 v{d2}, 8, v{d2}")
    A(f"v_cmp_gt_u32 vcc, 8, v{i_}")
    A(f"v_cndmask_b32 v{d1}, v{d2}, v{d1}, vcc")
    A(f"v_min_u32 v{d1}, 19, v{d1}")
    A(f"v_mul_u32_u24 v{R.VA}, 320, v{kh}")
    A(f"v_lshl_add_u32 v{R.VA}, v{d1}, 4, v{R.VA}")
    A(f"v_add_u32 v{R.VA}, {KV_BASE + 1280}, v{R.VA}")
    A(f"v_cmp_eq_u32 vcc, 10, v{i_}")
    A(f"v_mov_b32 v{d2}, 0x3f803f80")
    for k in range(8): A(f"v_cndmask_b32 v{R.V1+k}, 0, v{d2}, vcc")
    A(f"v_cmp_gt_u32 vcc, 32, v0")
    A(f"v_mov_b32 v{d1}, 0x3f80")
    A(f"v_cndmask_b32 v{R.K2+1}, v{d1}, v{d2}, vcc")
    A(f"v_mov_b32 v{R.Q2+1}, 0")
    for jj in range(3):
        A(f"v_add_u32 v{T}, {64*jj}, v0")
        A(f"v_mul_u32_u24 v{T+1}, 5462, v{T}")
        A(f"v_lshrrev_b32 v{T+1}, 16, v{T+1}")
        A(f"v_mul_u32_u24 v{R.GV+jj}, {3072-192}, v{T+1}")
        A(f"v_lshl_add_u32 v{R.GV+jj}, v{T}, 4, v{R.GV+jj}")
    A(f"s_mov_b32 s{sVMASK}, 0x0033ffff")
    A(f"s_mov_b32 s{sVMASK+1}, 0x0033ffff")
    S0 = R.S[0]
    X = R.S[1]
    addr_rowmajor(A, R.XRES + 6, R.XRES + 7, X)
    A(f"v_lshlrev_b32 v{R.TCH}, 7, v0")
    A(f"v_mov_b32 v{R.TCH+1}, 0")
    A(f"s_lshl_b64 s[{sTMP}:{sTMP+1}], 1, s{sXCC}")
    A(f"v_mov_b32 v{R.XRES+8}, s{sTMP}")
    A(f"v_mov_b32 v{R.XRES+9}, s{sTMP+1}")
    A(f"s_cmp_ge_u32 s{sWAVE}, 4")
    A(f"s_cselect_b32 s{sTMP}, s{SU}, s{SG_}")
    A(f"s_cselect_b32 s{sTMP+1}, s{SU+1}, s{SG_+1}")
    A(f"s_mov_b32 s{sTMP+2}, {hex(640*1536*2)}")
    A(f"s_mov_b32 s{sTMP+3}, 0x20000")
    A(f"s_cselect_b32 s{sB}, {GU_UP}, 0")
    A(f"s_add_u32 s{sB}, s{sB}, s{sGM0}")
    A(f"s_and_b32 s{sC}, s{sM}, 3")
    A(f"s_lshl_b32 s{sDELTA}, s{sM}, 2")
    A(f"s_add_u32 s{sDELTA}, s{sDELTA}, s{sLW}")
    A(f"s_mul_i32 s{sDELTA}, s{sDELTA}, {12*128}")
    A(f"s_lshl_b32 s{sTO}, s{sG}, 5")
    A(f"s_add_u32 s{sTO}, s{sTO}, s{sM}")
    A(f"s_lshl_b32 s{sTO}, s{sTO}, 3")
    A(f"s_add_u32 s{sTO}, s{sTO}, s{sWAVE}")
    if cfg.get("ctouch", 1):
        code_touch_setup(A, 88, "L_attn_code")
        A(f"s_and_b32 s{sT0}, s{sTO}, 255")
        A(f"s_lshl_b32 s{sT0}, s{sT0}, 7")
        A(f"v_lshlrev_b32 v{X}, 15, v0")
        A(f"v_add_u32 v{X}, s{sT0}, v{X}")
        A(f"v_min_u32 v{R.GV+3}, L_code_end-L_attn_code-4, v{X}")

    A(f"s_mul_i32 s{sT0}, s{sQT}, {2*80*256}")
    A(f"s_lshr_b32 s{sT1}, s{sHD}, 3")
    A(f"s_mul_i32 s{sT1}, s{sT1}, {20*256}")
    A(f"s_add_u32 s{sT0}, s{sT0}, s{sT1}")
    A(f"s_add_u32 s{sT0}, s{sT0}, {hex(WS_O)}")
    L32 = cfg.get("l32", 1)
    A(f"s_lshl_b32 s{sFL0}, s{sFL0}, {12 if L32 else 10}")
    A(f"s_lshl_b32 s{sT2}, s{sHD}, {7 if L32 else 2}")
    A(f"s_add_u32 s{sFL0}, s{sFL0}, s{sT2}")
    A(f"s_add_u32 s{sFL0}, s{sFL0}, {hex(WS_SYNC + (8192 if L32 else 0))}")
    A(f"s_and_b32 s{sT2}, s{sHD}, 7")
    A(f"s_lshl_b32 s{sT1}, s{sT2}, 9")
    A(f"s_add_u32 s{sT1}, s{sT1}, s{sT0}")
    A(f"s_lshl_b32 s{sT2}, s{sT2}, 7")
    A(f"s_add_u32 s{sT0}, s{sT0}, s{sT2}")
    A(f"s_add_u32 s{sT0}, s{sT0}, {16*256}")
    A(f"v_and_b32 v{X}, 15, v0")
    A(f"v_bfe_u32 v{X+1}, v0, 4, 1")
    A(f"v_lshrrev_b32 v{X+2}, 5, v0")
    A(f"v_mul_u32_u24 v{X+1}, {80*256}, v{X+1}")
    A(f"v_lshl_add_u32 v{T+7}, v{X}, 3, v{X+1}")
    A(f"v_add_u32 v{T+7}, s{sT0}, v{T+7}")
    A(f"v_lshl_add_u32 v{T+6}, v{X}, 4, v{X+1}")
    A(f"v_lshl_add_u32 v{T+6}, v{X+2}, 8, v{T+6}")
    A(f"v_add_u32 v{T+6}, s{sT1}, v{T+6}")
    A(f"s_mov_b32 s92, {fhex(2.0**-40)}")
    A(f"s_mov_b32 s93, {fhex(2.0**64)}")
    A(f"s_mov_b32 s94, {fhex(2.0**127)}")
    JUNK = R.XRES + 11
    def gu_op(c, jj):
        return [f"s_add_u32 m0, s{sB}, {c*GU_SLOT + jj*1024}", "s_nop 0",
                f"buffer_load_dwordx4 v{R.GV+jj}, s[{sTMP}:{sTMP+3}], s{sGSRC} offen lds"] + ([f"s_add_u32 s{sGSRC}, s{sGSRC}, {64*3072}", f"s_cmp_eq_u32 s{sGSRC}, s{sGLIM}", f"s_cselect_b32 s{sT0}, {640*3072}, 0", f"s_sub_u32 s{sGSRC}, s{sGSRC}, s{sT0}"] if jj == 2 else [])
    def touch(n, srd_, pre):
        return pre + [f"s_bfm_b64 exec, {n}, 0", f"buffer_load_dword v{JUNK}, v{R.TCH}, s[{srd_}:{srd_+3}], s{sT0} offen", "s_mov_b64 exec, -1"]
    def gu_touch(c): return touch(12, sTMP, [f"s_add_u32 s{sT0}, s{sDELTA}, {c*64*3072}"])
    def out_touch(base, nbytes, l0=0, n=None):
        return touch(n or nbytes // 128, SWS, [f"s_mul_i32 s{sT0}, s{sTO}, {nbytes}", f"s_add_u32 s{sT0}, s{sT0}, {hex(base + l0*128)}",
                                          f"s_cmp_lg_u32 s{sFAST}, 0", f"s_cselect_b32 s{sT0}, s{sT0}, {hex(WS_SIZE)}"])
    sched = {t: [] for t in range(64)}
    trs = {}
    misc = {}
    vm = []
    def put(t, tag, op):
        while len(sched[t]) >= 3: t += 1
        sched[t].append((tag, op)); return t
    for i, op in enumerate(kv_ops(1)): put(i // 2, "kv1", op)
    for c in range(2, 8):
        for i, op in enumerate(kv_ops(c)): put(8 * (c - 2) + 6 + i // 2, f"kv{c}", op)
    pf = []
    def frag_op(src, i, dst):
        pre = [f"s_add_u32 s{sSTG}, s{src}, {i*1024}"] if i % 4 == 0 else []
        return pre + [f"buffer_load_dwordx4 {a(dst+4*i,4)}, v{R.L16}, s[{SWS}:{SWS+3}], s{sSTG} offen offset:{(i%4)*1024}"]
    for i in range(10): pf.append(frag_op(sWDSRC, i, 100))
    for i in range(25): pf.append(frag_op(sWOSRC, i, 0))
    for c in range(4):
        for jj in range(3): pf.append(gu_op(c, jj))
    if cfg.get("nopf"): pf = []
    free = [t for t in range(cfg.get('pf0', 2), 64) if t % 8 < cfg.get('pfm', 6) or t > 48]
    num, den = cfg.get("pf_rate", [1, 1])
    for i, op in enumerate(pf): put(free[i * den // num], "pf", op)
    put(0, "at", ["s_cmp_eq_u32 s%d, 0" % sWAVE, f"s_cselect_b32 s{sT0}, s{sFLAG}, {hex(WS_SIZE)}", "s_mov_b64 exec, 1",
                  f"buffer_atomic_add_x2 {v(R.XRES+8,2)}, v{R.TCH+1}, s[{SWS}:{SWS+3}], s{sT0} offen offset:512 sc1", "s_mov_b64 exec, -1"])
    put(12, "pf", [f"buffer_load_dwordx4 {v(R.XRES,4)}, v{R.XRES+6}, s[{SX}:{SX+3}], 0 offen"])
    put(16, "pf", [f"buffer_load_dwordx2 {v(R.XRES+4,2)}, v{R.XRES+7}, s[{SX}:{SX+3}], 0 offen"])
    put(cfg.get("xcc_ld", 10), "xcc", [f"buffer_load_dwordx2 {v(R.XRES+8,2)}, v{R.TCH+1}, s[{SWS}:{SWS+3}], s{sFLAG} offen offset:512 sc1"])
    misc[cfg.get('xcc_rd', 23)] = ("xcc", [f"v_readfirstlane_b32 s{sFAST-1}, v{R.XRES+8}" , f"v_readfirstlane_b32 s{sFAST}, v{R.XRES+9}"])
    gwarm = touch(15, sTMP, [f"s_lshr_b32 s{sT0}, s{sTO}, 3", f"s_lshl_b32 s{sT0}, s{sT0}, 2", f"s_add_u32 s{sT0}, s{sT0}, s{sLW}", f"s_mul_i32 s{sT0}, s{sT0}, {15*128}"])
    if cfg.get("gwarm_at", -1) >= 0: put(cfg.get("gwarm_at", -1), "pf", gwarm)
    wd01_touch = touch(20, SWS, [f"s_mul_i32 s{sT0}, s{sC}, 2560", f"s_add_u32 s{sT0}, s{sT0}, s{sWDSRC}"])
    wo_touch = touch(25, SWS, [f"s_lshr_b32 s{sT0}, s{sWAVE}, 2", f"s_lshl_b32 s{sT1}, s{sC}, 1", f"s_add_u32 s{sT0}, s{sT0}, s{sT1}",
                               f"s_mul_i32 s{sT0}, s{sT0}, 3200", f"s_add_u32 s{sT0}, s{sT0}, s{sWOSRC}"])
    gw2 = touch(6, sTMP, [f"s_lshr_b32 s{sT0}, s{sTO}, 3", f"s_lshl_b32 s{sT0}, s{sT0}, 2", f"s_add_u32 s{sT0}, s{sT0}, s{sLW}", f"s_mul_i32 s{sT0}, s{sT0}, {6*128}",
                          f"s_add_u32 s{sT0}, s{sT0}, {6*64*3072}"])
    def gwp(k, n):
        return touch(n, sTMP, [f"s_lshr_b32 s{sT0}, s{sTO}, 3", f"s_lshl_b32 s{sT0}, s{sT0}, 2", f"s_add_u32 s{sT0}, s{sT0}, s{sLW}", f"s_mul_i32 s{sT0}, s{sT0}, {n*128}",
                               f"s_add_u32 s{sT0}, s{sT0}, {k*n*1024*128}"])
    extra = {"p0": gwp(0, 5), "p1": gwp(1, 5), "p2": gwp(2, 5), "q0": gwp(0, 3), "q1": gwp(1, 3), "q2": gwp(2, 3), "q3": gwp(3, 3), "q4": gwp(4, 3), "wd01": wd01_touch, "wo": wo_touch, "gw2": gw2, "gw": gwarm}
    def wdt(k): return touch(20, SWS, [f"s_lshl_b32 s{sT0}, s{sM}, 3", f"s_add_u32 s{sT0}, s{sT0}, s{sWAVE}", f"s_mul_i32 s{sT0}, s{sT0}, {60*128}", f"s_add_u32 s{sT0}, s{sT0}, {WS_WD + k*20*128}"])
    extra.update({"d0": wdt(0), "d1": wdt(1), "d2": wdt(2)})
    wd_touch = None
    for t, op in cfg_touch_plan(cfg, gu_touch, out_touch, wd_touch, extra): put(t, "pf", op)
    HIDT = None
    if cfg.get("tlb", 0) & 2:
        put(20, "pf", ["s_mov_b64 exec, 1", f"buffer_load_dword v{JUNK}, v{R.XRES+6}, s[{SO}:{SO+3}], 0 offen", "s_mov_b64 exec, -1"])
    if cfg.get("ctouch", 1):
        for t in cfg.get("ct_at", [1, 52]):
            put(t, "pf", ["s_mov_b64 exec, 3", f"global_load_dword v{JUNK}, v{R.GV+3}, s[88:89]", "s_mov_b64 exec, -1"])

    if PSP:
        A(f"s_cmp_lt_u32 s{sWAVE}, {PSP}")
        A("s_cbranch_scc1 L_p1")
        A("s_waitcnt vmcnt(0)")
        for op in kv_ops(0): emit(op)
        A.label("L_p1")
    A("s_waitcnt vmcnt(4)")
    A(f"v_mfma_f32_32x32x16_bf16 {v(S0,16)}, {v(R.K1,4)}, {v(R.Q1,4)}, 0")
    A(f"v_mfma_f32_32x32x8_bf16 {v(S0,16)}, {v(R.K2,2)}, {v(R.Q2,2)}, {v(S0,16)}")
    max16(A, R.P, S0, True)
    xhalf_max(A, R.P, R.P+1)
    set_shift(A, R.P)
    A(f"v_mfma_f32_32x32x16_bf16 {v(S0,16)}, {v(R.K1,4)}, {v(R.Q1,4)}, 0")
    A(f"v_mfma_f32_32x32x8_bf16 {v(S0,16)}, {v(R.K2,2)}, {v(R.Q2,2)}, {v(S0,16)}")
    def toff(t): return ((t // 8) % 3) * KV_SLOT + (t % 8) * 2560
    def tdelta(t): return 0
    if PSP:
        A(f"s_cmp_ge_u32 s{sWAVE}, {PSP}")
        A("s_nop 1")
        A("s_cbranch_scc1 L_p2")
    A("s_waitcnt vmcnt(0)")
    A.label("L_p2")
    A("s_barrier")
    vm += ["kv0"] * 4
    A(f"ds_read_b128 {v(R.K1,4)}, v{R.KA} offset:{toff(1)}")
    A(f"ds_read_b32 v{R.K2}, v{R.K2A} offset:{toff(1)}")
    A(f"s_mov_b64 exec, s[{sVMASK}:{sVMASK+1}]")
    A(f"ds_read_b128 {v(R.V1,4)}, v{R.VA}")
    A("s_mov_b64 exec, -1")
    stamp(A, cfg, 1)
    PRIO = cfg.get("prio", {6: 3, 2: 2, 4: 1, 5: 0})
    A("s_setprio 3")
    A.label("L_attn_code")
    def vwait(tag): A(f"s_waitcnt vmcnt({len(vm) - 1 - max(i for i, x in enumerate(vm) if x == tag)})")
    for t in range(64):
        cur, nxt = R.S[t % 2], R.S[(t + 1) % 2]
        def E(i): A(f"v_exp_f32 v{cur+i}, v{cur+i}")
        def C(k): A(f"v_cvt_pk_bf16_f32 v{R.P+k}, v{cur+2*k}, v{cur+2*k+1}")
        ops_t = list(sched[t])
        def V():
            if ops_t:
                tag, op = ops_t.pop(0); emit(op); vm.append(tag)
        tr = []
        if t in trs: tr = list(trs[t][1])
        def L(n):
            for _ in range(n):
                if tr: A(tr.pop(0))
        if PSP and t == PSP - 2:
            vwait("kv0")
            A("s_barrier")
        if t % 8 == 6 and t < 56:
            vwait(f"kv{t//8+1}")
            A("s_barrier")
        if cfg.get("ats") and t % 8 == 6: A(f"s_memtime s[{64+2*(t//8)}:{65+2*(t//8)}]")
        if t < 56 and t % 8 in PRIO: A(f"s_setprio {PRIO[t % 8]}")
        if t >= 56 and (t - 2) % 8 in PRIO and t > 56: A(f"s_setprio {PRIO[(t - 2) % 8]}")
        if t < 63:
            A(f"s_waitcnt lgkmcnt({2 if t else 1})")
            A(f"v_mfma_f32_32x32x16_bf16 {v(nxt,16)}, {v(R.K1,4)}, {v(R.Q1,4)}, 0")
        E(0); E(1); V(); E(2); C(0); E(3)
        A("s_waitcnt lgkmcnt(0)")
        if t: A(f"v_mfma_f32_32x32x16_bf16 {v(R.O,16)}, {v(R.V2,4)}, {v(R.P+4,4)}, {v(R.O,16)}")
        if t in trs and trs[t][0]: vwait(trs[t][0])
        if t in misc:
            vwait(misc[t][0])
            A(f"s_mov_b32 s{sT1}, s{sFAST-1}")
            emit(misc[t][1])
            A(f"s_lshr_b64 s[{sFAST-1}:{sFAST}], s[{sFAST-1}:{sFAST}], s{sXCC}")
            A(f"s_and_b32 s{sFAST}, s{sFAST-1}, 63")
            A(f"s_mov_b32 s{sFAST-1}, s{sT1}")
            A(f"s_cmp_eq_u32 s{sFAST}, 32")
            A(f"s_cselect_b32 s{sFAST}, {0 if cfg.get('noFast') else 1}, 0")
        L(2); E(4); C(1); L(2); E(5); V(); E(6); L(1); C(2); E(7)
        if t < 63: A(f"v_mfma_f32_32x32x8_bf16 {v(nxt,16)}, {v(R.K2,2)}, {v(R.Q2,2)}, {v(nxt,16)}")
        if t < 62:
            if tdelta(t + 2):
                A(f"v_add_u32 v{R.KA}, {tdelta(t+2)}, v{R.KA}")
                A(f"v_add_u32 v{R.K2A}, {tdelta(t+2)}, v{R.K2A}")
            A(f"ds_read_b128 {v(R.K1,4)}, v{R.KA} offset:{toff(t+2)}")
            A(f"ds_read_b32 v{R.K2}, v{R.K2A} offset:{toff(t+2)}")
        E(8); C(3); E(9); V(); E(10); C(4); E(11)
        A(f"v_mfma_f32_32x32x16_bf16 {v(R.O,16)}, {v(R.V1,4)}, {v(R.P,4)}, {v(R.O,16) if t else 0}")
        A(f"s_mov_b64 exec, s[{sVMASK}:{sVMASK+1}]")
        A(f"ds_read_b128 {v(R.V2,4)}, v{R.VA} offset:{toff(t) + 640}")
        if t < 63:
            if tdelta(t + 1): A(f"v_add_u32 v{R.VA}, {tdelta(t+1)}, v{R.VA}")
            A(f"ds_read_b128 {v(R.V1,4)}, v{R.VA} offset:{toff(t+1)}")
        A("s_mov_b64 exec, -1")
        E(12); C(5); E(13); E(14); E(15); C(6); C(7)
        assert not ops_t and not tr
    A("s_waitcnt lgkmcnt(0)")
    A(f"v_mfma_f32_32x32x16_bf16 {v(R.O,16)}, {v(R.V2,4)}, {v(R.P+4,4)}, {v(R.O,16)}")
    A.label("L_post_attn")
    if cfg.get("ats"):
        for c in range(11): A(f"s_sub_u32 s{65+2*c}, s{64+2*c}, s63")
        A("v_mov_b32 v78, v0")
        A("v_mov_b32 v110, v2")
        A("v_mov_b32 v109, v3")
        stamp_flush(A, cfg, 13, 17, SWS, sWAVE, 0)
        A("s_mov_b64 exec, -1")
        A("v_mov_b32 v0, v78")
        A("v_mov_b32 v2, v110")
        A("v_mov_b32 v3, v109")
    A("s_setprio 0")
    stamp(A, cfg, 2)
    N = R.S[0]
    A(f"v_rcp_f32 v{T}, v{R.O+10}")
    A(f"v_max3_f32 v{T+1}, abs(v{R.O}), abs(v{R.O+1}), abs(v{R.O+2})")
    A(f"v_cmp_le_f32 vcc, s92, v{R.O+10}")
    A(f"v_cmp_ge_f32 s[{sTMP}:{sTMP+1}], s93, v{R.O+10}")
    for k in (3, 5, 7): A(f"v_max3_f32 v{T+1}, v{T+1}, abs(v{R.O+k}), abs(v{R.O+k+1})")
    A(f"v_max_f32_e64 v{T+1}, v{T+1}, abs(v{R.O+9})")
    A(f"s_and_b64 vcc, vcc, s[{sTMP}:{sTMP+1}]")
    A(f"v_cmp_ge_f32 s[{sTMP+2}:{sTMP+3}], s94, v{T+1}")
    def norm():
        for k in (8, 9, 0, 1, 2, 3, 4, 5, 6, 7): A(f"v_mul_f32 v{N+k}, v{T}, v{R.O+k}")
    norm()
    A(f"s_and_b64 vcc, vcc, s[{sTMP+2}:{sTMP+3}]")
    A(f"s_cmp_eq_u64 vcc, -1" if not cfg.get("force_slow") else "s_cmp_eq_u32 s2, -1")
    A("s_cbranch_scc0 L_attn_slow")
    A.label("L_attn_norm")
    A(f"v_cvt_pk_bf16_f32 v{N+10}, v{N+8}, v{N+9}")
    A(f"v_cvt_pk_bf16_f32 v{N+11}, v{N+8}, v{N+9}")
    for k in range(4): A(f"v_cvt_pk_bf16_f32 v{N+k}, v{N+2*k}, v{N+2*k+1}")
    A(f"v_permlane32_swap_b32 v{N+10}, v{N+11}")
    stores(A, [f"buffer_store_dwordx4 {v(N,4)}, v{T+6}, s[{SWS}:{SWS+3}], 0 offen",
               "s_mov_b32 exec_hi, 0",
               f"buffer_store_dwordx2 {v(N+10,2)}, v{T+7}, s[{SWS}:{SWS+3}], 0 offen",
               "s_mov_b32 exec_hi, -1"], data="O")
    A(f"v_and_b32 v{T+4}, 15, v0")
    A(f"v_lshrrev_b32 v{T+3}, 5, v0")
    A(f"v_lshlrev_b32 v{T+1}, 4, v{T+4}")
    A(f"v_lshl_add_u32 v{T+1}, v{T+3}, 8, v{T+1}")
    A(f"v_lshrrev_b32 v{T+5}, 4, v0")
    A(f"v_lshlrev_b32 v{T+5}, 8, v{T+5}")
    A(f"v_lshl_add_u32 v7, v{T+4}, 3, v{T+5}")
    A(f"v_add_u32 v7, 4096, v7")

    BF, ACC = 16, 56
    vHP, vHS, vPW, RA = 108, 109, 3, 5
    A(f"s_lshr_b32 s{sT2}, s{sWAVE}, 2")
    A(f"s_mul_i32 s{sT1}, s{sKQ}, {20*256}")
    A(f"s_add_u32 s{sT1}, s{sT1}, {hex(WS_O)}")
    A(f"s_add_u32 s{sB2}, s{sLW}, s{sTOK16}")
    A(f"s_xor_b32 s{sB}, s{sB2}, 1")
    A(f"s_mul_i32 s{sB}, s{sB}, {80*256}")
    A(f"s_add_u32 s{sB}, s{sB}, s{sT1}")
    A(f"s_mul_i32 s{sB2}, s{sB2}, {80*256}")
    A(f"s_add_u32 s{sB2}, s{sB2}, s{sT1}")
    A(f"s_xor_b32 s{sT0}, s{sLW}, 1")
    A(f"s_mul_i32 s{sT0}, s{sT0}, 5120")
    A(f"s_add_u32 s{sT0}, s{sT0}, {PART_BASE}")
    A(f"v_add_u32 v{vPW}, s{sT0}, v{R.L16}")
    A(f"s_mul_i32 s{sT0}, s{sLW}, 5120")
    A(f"s_add_u32 s{sT0}, s{sT0}, {PART_BASE}")
    A(f"v_add_u32 v6, s{sT0}, v{R.L16}")
    A(f"s_add_u32 s{sT0}, s{sLW}, s{sTOK16}")
    A(f"s_lshl_b32 s{sC}, s{sT0}, 11")
    A(f"s_mul_i32 s{sT0}, s{sT0}, {80*256}")
    A(f"s_mul_i32 s{sT1}, s{sFG}, 2560")
    A(f"s_add_u32 s{sT0}, s{sT0}, s{sT1}")
    A(f"s_add_u32 s{sT0}, s{sT0}, {hex(WS_H)}")
    A(f"v_add_u32 v{T+1}, 2048, v{T+1}")
    A(f"v_add_u32 v{vHS}, s{sT0}, v{T+1}")
    A(f"s_lshl_b32 s{sT1}, s{sT2}, 10")
    A(f"s_add_u32 s{sT0}, s{sT0}, s{sT1}")
    A(f"v_add_u32 v{vHP}, s{sT0}, v{R.L16}")
    A(f"s_lshl_b32 s{sT1}, s{sFG}, 1")
    A(f"s_add_u32 s{sT1}, s{sT1}, s{sT2}")
    A(f"s_lshl_b32 s{sT1}, s{sT1}, 7")
    A(f"s_add_u32 s{sC}, s{sC}, s{sT1}")
    A(f"s_add_u32 s{sC}, s{sC}, {hex(WS_ST2)}")
    reduce_addr(A, 3, PART_BASE, RA)
    sGT = sQT
    A(f"s_and_b32 s{sGT}, s{sTOK16}, -8")
    A(f"s_lshl_b32 s{sT0}, s{sLW}, 1")
    A(f"s_add_u32 s{sGT}, s{sGT}, s{sT0}")
    sHSRC, sHM0 = sKBASE, sVBASE
    A(f"s_mul_i32 s{sHSRC}, s{sGT}, {80*256}")
    A(f"s_add_u32 s{sHSRC}, s{sHSRC}, {hex(WS_H)}")
    A(f"s_lshl_b32 s{sHM0}, s{sLW}, 12")
    A(f"s_add_u32 s{sTO}, s{sHSRC}, {80*256}")
    A(f"s_lshl_b32 s{sT0}, s{sC0}, 11")
    A(f"s_add_u32 s{sHSRC}, s{sHSRC}, s{sT0}")
    stamp(A, cfg, 3)
    M8 = 0x0101010101010101
    sync(A, 0, 0, False, 0, rb=[(M8, [f"buffer_load_dword v{JUNK}, v{T+6}, s[{SWS}:{SWS+3}], 0 offen"]),
                                (0x00010001, [f"buffer_load_dword v{JUNK}, v{T+7}, s[{SWS}:{SWS+3}], 0 offen"])])
    stamp(A, cfg, 4)
    def wo_load(q, BF=BF):
        i, st = divmod(q, 5)
        if st < 4: A(f"buffer_load_dwordx4 {v(BF+20*i+4*st,4)}, v{R.L16}, s[{SWS}:{SWS+3}], s{sB2 if i else sB} offen offset:{st*1024} {cfg.get('wold', 'sc1')}")
        else:
            for e in range(2): A(f"buffer_load_dwordx2 {v(BF+20*i+16+2*e,2)}, v7, s[{SWS}:{SWS+3}], s{sB2 if i else sB} offen offset:{128*e} {cfg.get('wold', 'sc1')}")
        return [q] * (2 if st == 4 else 1)
    WL0 = cfg.get("wl0", 4)
    wq0 = []
    for q in range(WL0): wq0 += wo_load(q)
    if cfg.get("wts"): A("s_memtime s[72:73]")
    EW = cfg.get("ew", [4, 1, 0])
    FSUB = lambda f: 1 if f in (2, 3) else 0
    def wo_main(sub, ACC=ACC, BF=BF, vPW=vPW):
        keep = [f for f in range(5) if FSUB(f) == sub]
        order = [f for f in range(5) if f not in keep] + keep
        wq = list(wq0); nq = WL0
        for i in range(2):
            for st in range(5):
                A(f"s_waitcnt vmcnt({len(wq) - 1 - max(k for k, x in enumerate(wq) if x == 5*i+st)})")
                for _ in range(cfg.get("wlr", 1)):
                    if nq < 10: wq += wo_load(nq); nq += 1
                if cfg.get("wts") and (5 * i + st) in (0, 2, 4, 5, 7, 9): A(f"s_memtime s[{74+2*(0,2,4,5,7,9).index(5*i+st)}:{75+2*(0,2,4,5,7,9).index(5*i+st)}]")
                for f in order:
                    acc = v(ACC + 20 * i + 4 * f, 4)
                    A(f"v_mfma_f32_16x16x32_bf16 {acc}, {a(20*st+4*f,4)}, {v(BF+20*i+4*st,4)}, {acc if st else 0}")
                if i == 1:
                    f = order[st]
                    A(f"ds_write_b128 v{vPW}, {v(ACC+4*f,4)} offset:{(1 if FSUB(f) == sub else 2)*20480 + f*1024}")
        for f in order:
            if f not in keep: A(f"ds_write_b128 v6, {v(ACC+20+4*f,4)} offset:{f*1024}")
        for op in (load_wd_ops(2) + load_wd_ops(3))[:EW[0]]: emit(op)
        stamp(A, cfg, 5)
        if cfg.get("wts"):
            for k in range(7): A(f"s_sub_u32 s{73+2*k}, s{72+2*k}, s69")
            A("s_sub_u32 s71, s71, s69")
            A("v_mov_b32 v110, v0")
            A("v_mov_b32 v1, v3")
            stamp_flush(A, cfg, 13, 17, SWS, sWAVE, cfg.get("tswave", 0))
            A("s_mov_b64 exec, -1")
            A("v_mov_b32 v0, v110")
            A("v_mov_b32 v3, v1")
        return [ACC + 20 + 4 * f for f in keep]
    D = 16
    TRA, VB, VST = 1, 2, 3
    G1, Gh, rho, c0, c1 = T+2, T+3, T+4, T+5, T+6
    def wo_tail(n):
        own = wo_main(3 - n)
        XF = 56
        A("s_waitcnt lgkmcnt(0)")
        A("s_barrier")
        def mid():
            for op in (load_wd_ops(2) + load_wd_ops(3))[EW[0]:EW[0]+EW[1]]: emit(op)
            for i in range(2 * n):
                A(f"v_lshlrev_b32 v{XF+2*i}, 16, v{R.XRES+i}")
                A(f"v_and_b32 v{XF+2*i+1}, 0xffff0000, v{R.XRES+i}")
            for i in range(2 * n): A(f"v_pk_add_f32 {v(own[i//2]+2*(i%2),2)}, {v(own[i//2]+2*(i%2),2)}, {v(XF+2*i,2)}")
            A(f"v_mov_b32 v{T+2}, 0x3f803f80")
            A(f"v_lshlrev_b32 v{T+3}, 3, v0")
        reduce_sum(A, 3, D, RA, n, own, mid)
        src = lambda i: own[i // 2] + 2 * (i % 2)
        for i in range(4): A(f"v_cvt_pk_bf16_f32 v{D+i}, v{src(i)}, v{src(i)+1}")
        stores(A, [f"buffer_store_dwordx4 {v(D,4)}, v{vHP}, s[{SWS}:{SWS+3}], 0 offen"])
        if n == 3:
            E = D + 12
            for i in range(4): A(f"v_cvt_pk_bf16_f32 v{E+i}, v{src(4+i%2)}, v{src(4+i%2)+1}")
            for i in (4, 5): A(f"v_cvt_pk_bf16_f32 v{D+i}, v{src(i)}, v{src(i)+1}")
            A(f"v_permlane16_swap_b32 v{E}, v{E+2}")
            A(f"v_permlane16_swap_b32 v{E+1}, v{E+3}")
            stores(A, ["s_mov_b32 exec_lo, 0xffff", "s_mov_b32 exec_hi, 0xffff",
                       f"buffer_store_dwordx4 {v(E,4)}, v{vHS}, s[{SWS}:{SWS+3}], 0 offen", "s_mov_b64 exec, -1"])
        sm, sq = D + 8, D + 9
        for i in range(2 * n):
            A(f"v_dot2_f32_bf16 v{sm}, v{D+i}, v{T+2}, {'v%d' % sm if i else 0}")
            A(f"v_dot2_f32_bf16 v{sq}, v{D+i}, v{D+i}, {'v%d' % sq if i else 0}")
        for i in range(3): A(f"v_accvgpr_write_b32 a{A_RES(i)}, v{D+i}")
        for op in ("v_permlane16_swap_b32", "v_permlane32_swap_b32"):
            A(f"v_mov_b32 v{T}, v{sm}")
            A(f"v_mov_b32 v{T+1}, v{sq}")
            A(f"{op} v{sm}, v{T}")
            A(f"{op} v{sq}, v{T+1}")
            A(f"v_pk_add_f32 {v(sm,2)}, {v(sm,2)}, {v(T,2)}")
        A("s_mov_b64 exec, 0xffff")
        stores(A, [f"buffer_store_dwordx2 {v(sm,2)}, v{T+3}, s[{SWS}:{SWS+3}], s{sC} offen"])
        A("s_mov_b64 exec, -1")
        for op in (load_wd_ops(2) + load_wd_ops(3))[EW[0]+EW[1]:sum(EW)]: emit(op)
        for i in range(3, 2 * n): A(f"v_accvgpr_write_b32 a{A_RES(i)}, v{D+i}")
        A(f"v_bfe_u32 v{G1}, v0, 4, 1")
        A(f"v_lshrrev_b32 v{Gh}, 5, v0")
        A(f"v_bfe_u32 v{rho}, v0, 2, 2")
        A(f"v_and_b32 v{c0}, 1, v0")
        A(f"v_bfe_u32 v{c1}, v0, 1, 1")
        A(f"v_lshl_add_u32 v{TRA}, v{Gh}, 3, v{rho}")
        A(f"v_mul_u32_u24 v{TRA}, 192, v{TRA}")
        A(f"v_mul_u32_u24 v{c1}, {GU_UP}, v{c1}")
        A(f"v_add_u32 v{TRA}, v{TRA}, v{c1}")
        A(f"v_lshl_add_u32 v{TRA}, v{c0}, 4, v{TRA}")
        A(f"v_lshl_add_u32 v{TRA}, v{G1}, 3, v{TRA}")
    def h_dma_ops(c):
        return [[f"s_add_u32 m0, s{sHM0}, {H_BASE + (c%NHS)*16384 + k*1024}", f"s_add_u32 s{sT0}, s{sHSRC}, {(k//2)*80*256 + (k%2)*1024}",
                 f"buffer_load_dwordx4 v{R.L16}, s[{SWS}:{SWS+3}], s{sT0} offen sc1 lds"] +
                ([f"s_add_u32 s{sHSRC}, s{sHSRC}, 2048", f"s_cmp_eq_u32 s{sHSRC}, s{sTO}", f"s_cselect_b32 s{sT0}, {80*256}, 0",
                  f"s_sub_u32 s{sHSRC}, s{sHSRC}, s{sT0}"] if k == 3 else []) for k in range(4)]
    A(f"s_cmp_ge_u32 s{sWAVE}, 4")
    A("s_cbranch_scc1 L_gu_loader")
    wo_tail(3)

    L_CF = GU_MISC
    L_MB = GU_MISC + 3072
    L_RS = GU_MISC + 4096
    ACC, FR = 16, 0
    CFA = 0
    MB = T
    sTH, sFH = sKSRC, sVSRC
    A(f"s_and_b32 s{sTH}, s{sWAVE}, 1")
    A(f"s_lshr_b32 s{sFH}, s{sWAVE}, 1")
    A(f"s_mul_i32 s{sT0}, s{sFH}, 96")
    A(f"v_add_u32 v{TRA}, s{sT0}, v{TRA}")
    SEL, CSA = 40, 44
    A(f"v_lshrrev_b32 v{T}, 2, v0")
    A(f"v_xor_b32 v{T}, v{T}, v0")
    A(f"v_and_b32 v{T}, 4, v{T}")
    A(f"v_cmp_eq_u32 vcc, 0, v{T}")
    A(f"v_mov_b32 v{T}, 0x3f803f80")
    A(f"v_cndmask_b32 v{T}, 0, v{T}, vcc")
    for i in range(4): A(f"v_accvgpr_write_b32 a{SEL+i}, v{T}")
    TRH, VBH = 5, 6
    A(f"s_mul_i32 s{sT0}, s{sTH}, {32*192}")
    A(f"v_subrev_u32 v{TRH}, s{sT0}, v{TRA}")
    A(f"v_add_u32 v{TRA}, s{sT0}, v{TRA}")
    A(f"v_and_b32 v{VB}, 15, v0")
    A(f"v_lshlrev_b32 v{VB}, 4, v{VB}")
    A(f"v_lshl_add_u32 v{VB}, v{Gh}, 8, v{VB}")
    A(f"v_mul_u32_u24 v{VST}, {192*256}, v{G1}")
    A(f"v_add_u32 v{VST}, v{VST}, v{VB}")
    A(f"v_lshl_add_u32 v{VB}, v{G1}, 11, v{VB}")
    A(f"s_lshl_b32 s{sT0}, s{sTH}, 13")
    A(f"s_add_u32 s{sT0}, s{sT0}, {H_BASE}")
    A(f"v_add_u32 v{VB}, s{sT0}, v{VB}")
    A(f"s_lshl_b32 s{sT0}, s{sTH}, 10")
    A(f"v_subrev_u32 v{VBH}, s{sT0}, v{VB}")
    A(f"v_add_u32 v{VB}, s{sT0}, v{VB}")
    lq = []
    def gread(st, what):
        c, sl = divmod(st, 4)
        b = FR + 20 * (st % 2)
        if what[0] == "A":
            t = int(what[1])
            for u in range(2):
                A(f"ds_read_b64_tr_b16 {a(b+4*t+2*u,2)}, v{TRA if sl < 2 else TRH} offset:{(16*sl+4*u)*192 + 32*t}"); lq.append((st, what))
        else:
            i = int(what[1])
            A(f"ds_read_b128 {a(b+12+4*i,4)}, v{VB if sl < 2 else VBH} offset:{(c%NHS)*16384 + i*4096 + sl*512}"); lq.append((st, what))
    for w in ("A0", "A1", "A2"): gread(0, w)
    A(f"s_mul_i32 s{sT0}, s{sFH}, 1536")
    A(f"s_add_u32 s{sT0}, s{sT0}, {L_CF}")
    A(f"v_lshlrev_b32 v{T+6}, 3, v0")
    A(f"v_add_u32 v{T+6}, s{sT0}, v{T+6}")
    A(f"v_and_b32 v{T+7}, 31, v0")
    A(f"v_lshlrev_b32 v{T+7}, 3, v{T+7}")
    A(f"s_lshl_b32 s{sT0}, s{sTH}, 9")
    A(f"s_add_u32 s{sT0}, s{sT0}, {L_MB}")
    A(f"v_add_u32 v{T+7}, s{sT0}, v{T+7}")
    stamp(A, cfg, 6)
    sync(A, 1, 0, True, EW[2], rb=[(M8, [f"buffer_load_dword v7, v{vHP}, s[{SWS}:{SWS+3}], 0 offen"]),
                               (0x0000010100000101, [f"buffer_load_dword v7, v{vHS}, s[{SWS}:{SWS+3}], 0 offen"])])
    stamp(A, cfg, 7)
    if cfg.get("gts"): A("s_mov_b32 s90, s75")
    for op in h_dma_ops(0)[:2]: emit(op)
    A("s_waitcnt vmcnt(0)")
    A("s_barrier")
    for w in ("B0", "B1"): gread(0, w)
    wd3 = (load_wd_ops(2) + load_wd_ops(3))[sum(EW):]
    def lwait(tag): A(f"s_waitcnt lgkmcnt({min(15, len(lq) - 1 - max(i for i, x in enumerate(lq) if x == tag))})")
    for st in range(40):
        c, sl = divmod(st, 4)
        nxt = st + 1 < 40
        bar = sl == 3 and nxt
        if bar:
            A("s_waitcnt lgkmcnt(0)")
            if cfg.get("gts") == 2: A(f"s_memtime s[{60+2*c}:{61+2*c}]")
            A("s_barrier")
            if cfg.get("gts") == 1: A(f"s_memtime s[{60+2*c}:{61+2*c}]")
            d = GU_SLOT if (c + 1) % NWS else -(NWS - 1) * GU_SLOT
            A(f"v_add_u32 v{TRA}, {d & 0xffffffff}, v{TRA}")
            A(f"v_add_u32 v{TRH}, {d & 0xffffffff}, v{TRH}")
        if st == 39:
            A("s_waitcnt lgkmcnt(0)")
            A("s_barrier")
            bar = True
            for k in range(3): A(f"ds_read_b64 {a(CFA+2*k,2)}, v{T+6} offset:{512*k}")
        b = FR + 20 * (st % 2)
        plan = ((0, 0, "B1", ("A0",)), (1, 0, None, ("B0", "B1")), (0, 1, "A2", ("A1",)), (1, 1, None, ("A2",)), (0, 2, None, ()), (1, 2, None, ()))
        for (i, t, wt_, rd) in plan:
            if wt_ and not bar and not (st == 0 and wt_ == "A2"): lwait((st, wt_))
            acc = v(ACC + 48 * i + 16 * t, 16)
            if cfg.get("x16"):
                r0 = ACC + 48 * i + 16 * t + 8 * (st % 2)
                A(f"v_mfma_f32_16x16x32_bf16 {v(r0,4)}, {a(b+4*t,4)}, {a(b+12+4*i,4)}, {v(r0,4) if st > 1 else 0}")
                if nxt:
                    for w in rd[:1]: gread(st + 1, w)
                A(f"v_mfma_f32_16x16x32_bf16 {v(r0+4,4)}, {a(b+4*((t+1)%3),4)}, {a(b+12+4*(1-i),4)}, {v(r0+4,4) if st > 1 else 0}")
                if nxt:
                    for w in rd[1:]: gread(st + 1, w)
            else:
                A(f"v_mfma_f32_32x32x16_bf16 {acc}, {a(b+4*t,4)}, {a(b+12+4*i,4)}, {acc if st else 0}")
                if nxt:
                    for w in rd: gread(st + 1, w)
            if sl < 2 and i == 1 and not cfg.get("gu_nocs"):
                A(f"v_mfma_f32_16x16x32_bf16 {a(CSA+4*t,4)}, {a(SEL,4)}, {a(b+4*t,4)}, {a(CSA+4*t,4) if st else 0}")
            if st == 36 and t == 2:
                A(f"ds_read_b64 {v(MB+2*i,2)}, v{T+7} offset:{256*i}"); lq.append("mb")
            if st == 38 and i == 1:
                x = T + 4
                A(f"v_accvgpr_read_b32 v7, a{CSA+4*t}")
                A(f"v_cvt_pk_bf16_f32 v{x+1}, v7, v7")
                A(f"v_and_b32 v{x+1}, 0xffff0000, v{x+1}")
                A(f"v_sub_f32 v7, v7, v{x+1}")
                A(f"v_cvt_pk_bf16_f32 v{x}, v{x+1}, v7")
                A(f"v_lshrrev_b32 v{x+1}, 16, v{x+1}")
                A(f"ds_write_b64 v{TRA}, {v(x,2)} offset:{512*t}"); lq.append("w")
        if st >= cfg.get('cwd0', 30) and wd3: emit(wd3.pop(0))
        if st == 37:
            A(f"s_mul_i32 s{sT0}, s{sFH}, 1536")
            A(f"s_lshl_b32 s{sT1}, s{sTH}, 8")
            A(f"s_add_u32 s{sT0}, s{sT0}, s{sT1}")
            A(f"s_add_u32 s{sT0}, s{sT0}, {L_CF}")
            A(f"v_and_b32 v{TRA}, 31, v0")
            A(f"v_lshlrev_b32 v{TRA}, 3, v{TRA}")
            A(f"v_add_u32 v{TRA}, s{sT0}, v{TRA}")
    A("s_waitcnt lgkmcnt(0)")
    for t in range(3):
        for i in range(2):
            acc = v(ACC + 48 * i + 16 * t, 16)
            A(f"v_mfma_f32_32x32x8_bf16 {acc}, {a(CFA+2*t,2)}, {v(MB+2*i,2)}, {acc}")
    if cfg.get("gts"):
        A("s_waitcnt lgkmcnt(0)")
        for c in range(9): A(f"s_sub_u32 s{(91,92,93,94,95,96,86,88,89)[c]}, s{60+2*c}, s90")
    stamp(A, cfg, 8)
    A(f"s_and_b32 s{sB}, s{sTOK16}, -8")
    A(f"s_lshl_b32 s{sT0}, s{sTH}, 2")
    A(f"s_add_u32 s{sB}, s{sB}, s{sT0}")
    A(f"s_mul_i32 s{sB}, s{sB}, {192*256}")
    A(f"s_mul_i32 s{sT0}, s{sJ}, {12*256}")
    A(f"s_add_u32 s{sB}, s{sB}, s{sT0}")
    A(f"s_mul_i32 s{sT0}, s{sFH}, {6*256}")
    A(f"s_add_u32 s{sB}, s{sB}, s{sT0}")
    A(f"s_add_u32 s{sB}, s{sB}, {hex(WS_HID)}")
    A(f"s_add_u32 s{sT2}, s{sB}, {2*192*256}")
    def gu_epi(sc):
        for (i, t) in ((0, 0), (1, 0), (0, 1), (1, 1), (0, 2), (1, 2)):
            r = ACC + 48 * i + 16 * t
            for q in range(2):
                for b in range(4): A(f"v_max_f32 v{r+8*q+b}, 0, v{r+8*q+b}")
                for b in (0, 2): A(f"v_pk_mul_f32 {v(r+8*q+b,2)}, {v(r+8*q+b,2)}, {v(r+8*q+4+b,2)}")
            A(f"v_cvt_pk_bf16_f32 v{r}, v{r}, v{r+1}")
            A(f"v_cvt_pk_bf16_f32 v{r+1}, v{r+2}, v{r+3}")
            A(f"v_cvt_pk_bf16_f32 v{r+2}, v{r+8}, v{r+9}")
            A(f"v_cvt_pk_bf16_f32 v{r+3}, v{r+10}, v{r+11}")
            A(f"buffer_store_dwordx4 {v(r,4)}, v{VST}, s[{SWS}:{SWS+3}], s{sT2 if i else sB} offen offset:{512*t} {sc}")
    if cfg.get("wt", 2) & 2:
        gu_epi("sc1")
    else:
        A(f"s_cmp_lg_u32 s{sFAST}, 0")
        A("s_nop 4")
        A("s_cbranch_scc0 L_gu_epi_slow")
        gu_epi("")
    A.label("L_gu_epi_done")
    stamp(A, cfg, 9)
    A("s_branch L_gu_done")
    if not cfg.get("wt", 2) & 2:
        A.label("L_gu_epi_slow")
        gu_epi("sc1")
        A("s_branch L_gu_epi_done")

    A.label("L_gu_loader")
    WDL = cfg.get("wdl", "late")
    wo_tail(2)
    STV = 72
    A(f"v_and_b32 v3, 15, v0")
    A(f"v_lshlrev_b32 v3, 3, v3")
    A(f"v_lshl_add_u32 v3, v{G1}, 11, v3")
    A(f"v_lshl_add_u32 v3, v{Gh}, 10, v3")
    A(f"s_lshl_b32 s{sB}, s{sGT}, 11")
    A(f"s_add_u32 s{sB}, s{sB}, {hex(WS_ST2)}")
    A(f"s_waitcnt vmcnt({EW[2]})")
    readback(A, [(M8, [f"buffer_load_dword v7, v{vHP}, s[{SWS}:{SWS+3}], 0 offen"])])
    A("s_barrier")
    wdl = [op for stp in range(2, 8) for op in load_wd_ops(stp)][sum(EW):]
    WPL = cfg.get("wpl", [0,0,0,0,0,0,0,0,5,6,8,6])
    assert sum(WPL) == 30 - sum(EW)
    for _ in range(WPL[0]): emit(wdl.pop(0))

    A("s_barrier")
    ops = []
    for op in h_dma_ops(0)[2:] + h_dma_ops(1): emit(op)
    ops += [("h", 0)] * 2 + [("h", 1)] * 4
    if cfg.get("st_ld", 0) == -1:
        for i in range(8): A(f"buffer_load_dwordx2 {v(STV+2*i,2)}, v3, s[{SWS}:{SWS+3}], s{sB} offen offset:{128*i} sc1")
        ops += ["st"] * 8
    A(f"s_setprio {cfg.get('lprio', 0)}")
    for c in range(10):
        need = [("h", c)] + ([("w", c)] if c >= 4 else [])
        A(f"s_waitcnt vmcnt({len(ops) - 1 - max(i for i, o in enumerate(ops) if o in need)})")
        A("s_barrier")
        vops = []
        if c + 2 < 10:
            vops += h_dma_ops(c + 2); ops += [("h", c + 2)] * 4
        if c + 3 < 10 and c > 0:
            vops += gu_dma_ops(c + 3); ops += [("w", c + 3)] * 6
        if c == cfg.get("st_ld", 0):
            vops += [[f"buffer_load_dwordx2 {v(STV+2*i,2)}, v3, s[{SWS}:{SWS+3}], s{sB} offen offset:{128*i} sc1"] for i in range(8)]
            ops += ["st"] * 8
        for _ in range(WPL[c + 1]):
            vops.append(wdl.pop(0)); ops.append("d")
        for op in vops:
            if cfg.get("noadv"): op = op[:3]
            if cfg.get("nowdl") and "a[" in op[-1] + op[1]: continue
            emit(op)
        if c == cfg.get('st_at', 8):
            A(f"s_waitcnt vmcnt({min(63, len(ops) - 1 - max(i for i, o in enumerate(ops) if o == 'st'))})")
            A(f"s_setprio {cfg.get('sprio', 3)}")
            for i in range(1, 8):
                A(f"v_add_f32 v{STV}, v{STV}, v{STV+2*i}")
                A(f"v_add_f32 v{STV+1}, v{STV+1}, v{STV+2*i+1}")
            for r in (STV, STV + 1):
                A(f"v_mov_b32 v{STV+2}, v{r}")
                A(f"v_permlane32_swap_b32 v{r}, v{STV+2}")
                A(f"v_add_f32 v{r}, v{r}, v{STV+2}")
            mean, rs = STV, STV + 1
            A(f"v_mul_f32 v{mean}, {fhex(1/640)}, v{mean}")
            A(f"v_mul_f32 v{rs}, {fhex(1/640)}, v{rs}")
            A(f"v_fma_f32 v{rs}, -v{mean}, v{mean}, v{rs}")
            A(f"v_max_f32 v{rs}, 0, v{rs}")
            A(f"v_add_f32 v{rs}, {fhex(1e-5)}, v{rs}")
            A(f"v_rcp_f32 v{rs}, v{rs}")
            A(f"v_cvt_pk_bf16_f32 v{STV+2}, -v{mean}, -v{mean}")
            A(f"v_and_b32 v{STV+3}, 0xffff0000, v{STV+2}")
            A(f"v_sub_f32 v{STV+3}, -v{mean}, v{STV+3}")
            A(f"v_cvt_pk_bf16_f32 v{STV+3}, v{STV+3}, 0")
            A(f"v_and_b32 v{STV+4}, 31, v0")
            A(f"s_lshl_b32 s{sT0}, s{sLW}, 5")
            A(f"v_add_u32 v{STV+4}, s{sT0}, v{STV+4}")
            A(f"v_lshlrev_b32 v{STV+5}, 3, v{STV+4}")
            A(f"v_lshlrev_b32 v{STV+4}, 2, v{STV+4}")
            A(f"v_add_u32 v{STV+5}, {L_MB}, v{STV+5}")
            A(f"v_add_u32 v{STV+4}, {L_RS}, v{STV+4}")
            A(f"ds_write_b64 v{STV+5}, {v(STV+2,2)}")
            A(f"ds_write_b32 v{STV+4}, v{rs}")
            A("s_setprio 0")
        if c == cfg.get('st_at', 8): A("s_waitcnt lgkmcnt(0)")
    A("s_barrier")
    for op in wdl: emit(op)
    if cfg.get("wbl2", 0) & 1:
        A(f"s_add_u32 s{sT0}, s{sM}, s{sWAVE}")
        A(f"s_cmp_lg_u32 s{sT0}, 4")
        A("s_cbranch_scc1 L_nowb1")
        A("buffer_wbl2 sc1")
        A.label("L_nowb1")
    A("s_setprio 0")
    A.label("L_gu_done")

    NBD = cfg.get("nbd", 6)
    BF, ACC = 16, 72
    vXP, vXS, RA, vRS = 1, 2, 5, T + 7
    sBT = (sKSRC, sVSRC, sKBASE, sVBASE)
    vPW = (T + 2, T + 3, T + 4, None, T + 5, T + 6, T, T + 1)
    A(f"s_lshl_b32 s{sT1}, s{sWDRAW}, 10")
    A(f"s_add_u32 s{sT1}, s{sT1}, {hex(WS_HID)}")
    for k in range(4):
        A(f"s_xor_b32 s{sT0}, s{sLW}, {3-k}")
        A(f"s_add_u32 s{sBT[k]}, s{sT0}, s{sTOK16}")
        A(f"s_mul_i32 s{sBT[k]}, s{sBT[k]}, {192*256}")
        A(f"s_add_u32 s{sBT[k]}, s{sBT[k]}, s{sT1}")
        A(f"s_mul_i32 s{sT0}, s{sT0}, 5120")
        A(f"s_add_u32 s{sT0}, s{sT0}, {(6-k)*20480}")
        if k < 2:
            A(f"v_add_u32 v{vPW[4+k]}, s{sT0}, v{R.L16}")
            A(f"v_subrev_u32 v{vPW[k]}, {4*20480}, v{vPW[4+k]}")
        else:
            A(f"s_mov_b32 s{97+k-2}, s{sT0}")
    A(f"s_and_b32 s{sT0}, s{sTOK16}, 7")
    A(f"s_add_u32 s{sT0}, s{sT0}, s{sLW}")
    A(f"s_lshl_b32 s{sT0}, s{sT0}, 6")
    A(f"s_add_u32 s{sT0}, s{sT0}, {L_RS}")
    A(f"v_and_b32 v{vRS}, 15, v0")
    A(f"v_lshlrev_b32 v{vRS}, 2, v{vRS}")
    A(f"v_add_u32 v{vRS}, s{sT0}, v{vRS}")
    A(f"ds_read_b32 v{vRS}, v{vRS}")
    addr_rowmajor(A, vXP, vXS, T)
    reduce_addr(A, 7, 0, RA)
    A("s_waitcnt lgkmcnt(0)")
    A(f"s_cmp_ge_u32 s{sWAVE}, 4")
    A("s_cbranch_scc1 L_dn_nw")
    if cfg.get("rb", 0) & 2:
        A("s_mov_b32 exec_lo, 0x01010101")
        A("s_mov_b32 exec_hi, 0x01010101")
        nrb = cfg.get("nrb", 6)
        for k, (i, t) in enumerate(((0, 0), (1, 0), (0, 1), (1, 1), (0, 2), (1, 2))):
            if k < nrb:
                A("s_waitcnt vmcnt(5)")
                A(f"buffer_load_dword v59, v{VST}, s[{SWS}:{SWS+3}], s{sT2 if i else sB} offen offset:{512*t} sc1")
        if nrb < 6: A(f"s_waitcnt vmcnt({nrb})")
        A("s_mov_b64 exec, -1")
    else:
        A("s_waitcnt vmcnt(0)")
    A.label("L_dn_nw")
    sync(A, 2, 0, True, 63)
    stamp(A, cfg, 10)
    BSL = lambda i: 16 + 4 * i if i < 6 else 60 + 4 * (i - 6)
    def dn_main(NS, NBD, sub):
        keep = [f for f in range(5) if FSUB(f) == sub]
        order = [f for f in range(5) if f not in keep] + keep
        def loadBd(q):
            k, st = divmod(q, NS)
            if st == 4: A(f"s_add_u32 s{sBT[k]}, s{sBT[k]}, 4096")
            A(f"buffer_load_dwordx4 {v(BSL(q%NBD),4)}, v{R.L16}, s[{SWS}:{SWS+3}], s{sBT[k]} offen offset:{(st%4)*1024} sc1")
        NI = min(NBD, cfg.get("nbi", 4))
        for q in range(NI): loadBd(q)
        issued = NI
        A(f"v_add_u32 v{vPW[6]}, s97, v{R.L16}")
        A(f"v_subrev_u32 v{vPW[2]}, {4*20480}, v{vPW[6]}")
        A(f"v_add_u32 v{vPW[7]}, s98, v{R.L16}")
        for q in range(NI, NBD): loadBd(q)
        issued = NBD
        pend = []
        for q in range(4 * NS):
            k, st = divmod(q, NS)
            A(f"s_waitcnt vmcnt({issued - 1 - q})")
            for f in order:
                acc = v(ACC + 20 * (k % 2) + 4 * f, 4)
                A(f"v_mfma_f32_16x16x32_bf16 {acc}, {WD(st, f)}, {v(BSL(q%NBD),4)}, {acc if st else 0}")
            if issued < 4 * NS:
                loadBd(issued); issued += 1
            for _ in range(2 if NS == 4 else 1):
                if pend: A(pend.pop(0))
            if st == NS - 1:
                assert not pend
                pend = [f"ds_write_b128 v{vPW[k if f in keep else 4+k]}, {v(ACC+20*(k%2)+4*f,4)} offset:{f*1024}" for f in order if k < 3 or f not in keep]
        for x in pend: A(x)
        stamp(A, cfg, 11)
        return [ACC + 20 + 4 * f for f in keep]
    def dn_tail(n, own):
        DD = 8
        A(f"v_mov_b32 v3, v{vRS}")
        A("s_waitcnt lgkmcnt(0)")
        A("s_barrier")
        reduce_sum(A, 7, DD, RA, n, own)
        for i in range(2 * n):
            r = own[i // 2] + 2 * (i % 2)
            A(f"v_accvgpr_read_b32 v{T+2}, a{A_RES(i)}")
            A(f"v_lshlrev_b32 v{T}, 16, v{T+2}")
            A(f"v_and_b32 v{T+1}, 0xffff0000, v{T+2}")
            A(f"v_fma_f32 v{r}, v{r}, v3, v{T}")
            A(f"v_fma_f32 v{r+1}, v{r+1}, v3, v{T+1}")
            A(f"v_cvt_pk_bf16_f32 v{D+i}, v{r}, v{r+1}")
            if i == 3: A(f"buffer_store_dwordx4 {v(D,4)}, v{vXP}, s[{SO}:{SO+3}], 0 offen {cfg.get('ost', '')}")
        if n == 3: A(f"buffer_store_dwordx2 {v(D+4,2)}, v{vXS}, s[{SO}:{SO+3}], 0 offen {cfg.get('ost', '')}")
    A(f"s_cmp_ge_u32 s{sWAVE}, 4")
    A("s_cbranch_scc1 L_dn_b")
    dn_tail(3, dn_main(4, cfg.get("nbd_c", 5), 0))
    A("s_branch L_dn_e")
    A.label("L_dn_b")
    A(f"s_setprio {cfg.get('dprio', 1)}")
    dn_tail(2, dn_main(8, cfg.get("nbd_l", 8), 1))
    A.label("L_dn_e")
    stamp(A, cfg, 12)
    if cfg.get("gts"):
        for c in range(9):
            A(f"s_mov_b32 s{60+2*c}, s{(91,92,93,94,95,96,86,88,89)[c]}")
            A(f"s_mov_b32 s{61+2*c}, s{(91,92,93,94,95,96,86,88,89)[c]}")
    stamp_flush(A, cfg, 13, 4, SWS, sWAVE, cfg.get('tswave', 0))
    if cfg.get("diag"):
        da, db = cfg["diag"]
        A("s_cmp_ge_u32 s2, 8" if cfg.get("fixed") else "s_cmp_lg_u32 s2, 16")
        A("s_cbranch_scc1 L_end")
        A(f"s_cmp_lg_u32 s{sWAVE}, 0")
        A("s_cbranch_scc1 L_end")
        if da == -1:
            A("v_mov_b32 v1, 0")
            A(f"s_mov_b32 s{sT0}, {hex(WS_TS)}")
            A(f"buffer_load_dword v2, v1, s[{SWS}:{SWS+3}], s{sT0} offen")
            A("s_waitcnt vmcnt(0)")
            A(f"v_readfirstlane_b32 s{sT0}, v2")
        else:
            A(f"s_mov_b32 s{sT0}, s{60+2*da}")
        if cfg.get("fixed"):
            A(f"s_add_u32 s{sT0}, s{sT0}, {cfg['fixed']}")
            if cfg.get("wb"):
                A("buffer_wbl2 sc1")
        else:
            A(f"s_sub_u32 s{sT0}, s{60+2*db}, s{sT0}")
            A(f"s_min_u32 s{sT0}, s{sT0}, 20000")
            A(f"s_lshl_b32 s{sT0}, s{sT0}, 2")
            A(f"s_add_u32 s{sT0}, s{sT0}, s{60+2*12}")
        A.label("L_spin")
        A("s_memrealtime s[56:57]")
        A("s_waitcnt lgkmcnt(0)")
        A(f"s_sub_u32 s{sT1}, s56, s{sT0}")
        A(f"s_cmp_lt_i32 s{sT1}, 0")
        A("s_cbranch_scc1 L_spin")
    A.label("L_end")
    A("s_endpgm")

    A.label("L_attn_slow")
    A(f"v_subrev_u32 v{R.VA}, {KV_BASE + 1280}, v{R.VA}")
    A(f"v_mov_b32 v{R.Q2+1}, 0")
    A(f"v_mov_b32 v{T}, 0xff800000")
    A(f"s_mov_b32 s{sT0}, s{sKBASE}")
    A(f"s_add_u32 s{sT1}, s{sKBASE}, {PAIR_STRIDE}")
    A.label("L_attn_slow1")
    A(f"buffer_load_dwordx4 {v(R.K1,4)}, v{R.F2S+1}, s[{SWS}:{SWS+3}], s{sT0} offen")
    A(f"buffer_load_dword v{R.K2}, v{R.F2S}, s[{SWS}:{SWS+3}], s{sT0} offen")
    A("s_waitcnt vmcnt(0)")
    A(f"v_mfma_f32_32x32x16_bf16 {v(S0,16)}, {v(R.K1,4)}, {v(R.Q1,4)}, 0")
    A(f"v_mfma_f32_32x32x8_bf16 {v(S0,16)}, {v(R.K2,2)}, {v(R.Q2,2)}, {v(S0,16)}")
    max16(A, T, S0, False)
    A(f"s_add_u32 s{sT0}, s{sT0}, 2560")
    A(f"s_cmp_lt_u32 s{sT0}, s{sT1}")
    A("s_cbranch_scc1 L_attn_slow1")
    xhalf_max(A, T, T+1)
    set_shift(A, T)
    for k in range(16): A(f"v_mov_b32 v{R.O+k}, 0")
    A(f"s_mov_b32 s{sT0}, s{sKBASE}")
    A(f"s_mov_b32 s{sT2}, s{sVBASE}")
    A.label("L_attn_slow2")
    A(f"buffer_load_dwordx4 {v(R.K1,4)}, v{R.F2S+1}, s[{SWS}:{SWS+3}], s{sT0} offen")
    A(f"buffer_load_dword v{R.K2}, v{R.F2S}, s[{SWS}:{SWS+3}], s{sT0} offen")
    A(f"s_mov_b64 exec, s[{sVMASK}:{sVMASK+1}]")
    A(f"buffer_load_dwordx4 {v(R.V1,4)}, v{R.VA}, s[{SWS}:{SWS+3}], s{sT2} offen")
    A(f"buffer_load_dwordx4 {v(R.V2,4)}, v{R.VA}, s[{SWS}:{SWS+3}], s{sT2} offen offset:640")
    A("s_mov_b64 exec, -1")
    A("s_waitcnt vmcnt(0)")
    A(f"v_mfma_f32_32x32x16_bf16 {v(S0,16)}, {v(R.K1,4)}, {v(R.Q1,4)}, 0")
    A(f"v_mfma_f32_32x32x8_bf16 {v(S0,16)}, {v(R.K2,2)}, {v(R.Q2,2)}, {v(S0,16)}")
    for k in range(16): A(f"v_exp_f32 v{S0+k}, v{S0+k}")
    for k in range(8): A(f"v_cvt_pk_bf16_f32 v{R.P+k}, v{S0+2*k}, v{S0+2*k+1}")
    A(f"v_mfma_f32_32x32x16_bf16 {v(R.O,16)}, {v(R.V1,4)}, {v(R.P,4)}, {v(R.O,16)}")
    A(f"v_mfma_f32_32x32x16_bf16 {v(R.O,16)}, {v(R.V2,4)}, {v(R.P+4,4)}, {v(R.O,16)}")
    A(f"s_add_u32 s{sT0}, s{sT0}, 2560")
    A(f"s_add_u32 s{sT2}, s{sT2}, 1280")
    A(f"s_cmp_lt_u32 s{sT0}, s{sT1}")
    A("s_nop 7")
    A("s_cbranch_scc1 L_attn_slow2")
    A(f"v_rcp_f32 v{T}, v{R.O+10}")
    norm()
    A("s_nop 1")
    A("s_branch L_attn_norm")
    A.label("L_code_end")
    return dict(name=name, grid=256, block=512, lds=163840, desc=kernel_desc(name, 256, NV, 102))
```

```python
from common import *

GU_SLOT = 24608
GU_UP = 12288 + 32
GU_MISC = 6 * GU_SLOT
NWS, H_BASE, NHS = 4, 4 * GU_SLOT, 3
PART_BASE = 4 * GU_SLOT
KV_SLOT = 20480
NKV = 3
KV_BASE = 163840 - NKV * KV_SLOT
NV = 112

class R:
    S = (16, 32); O = 48; P = 64; K1 = 72; K2 = 76; V1 = 80; V2 = 84; Q1 = 88; Q2 = 92
    KA = 1; K2A = 2; VA = 3; L16 = 4; F2S = 5; L4 = 7; T = 8; TCH = 94
    GV = 96
    XRES = 100

SX, SWS, SG_, SU, SO = 4, 8, 12, 16, 20
sWAVE, sG, sM, sT0, sT1, sT2, sC, sDELTA, sSLOT, sQT = 24, 25, 26, 27, 28, 29, 30, 31, 32, 33
sVMASK = 34
sKSRC, sVSRC, sKBASE, sVBASE, sFG, sTOK16, sJ, sFAST, sWOSRC, sWDSRC, sGSRC, sGM0, sFLAG, sB, sXCC, sLW = 36, 37, 38, 39, 40, 41, 42, 43, 44, 45, 46, 47, 48, 49, 50, 51
sTMP = 52
SWO_, SWD_ = 92, 96
sSTG, sWDRAW, sTO, sKQ, sB2, sGLIM, sC0 = 86, 87, 90, 95, 96, 99, 91
sHD, sKLIM, sFL0 = 97, 98, 100

def WD(step, f, n=4):
    if step == 7: return v(40 + 4 * f, n)
    return a({0: 100, 1: 120, 2: 80, 3: 60, 4: 40, 5: 20, 6: 0}[step] + 4 * f, n)
def A_RES(i): return 140 + i if i < 4 else 56 + (i - 4)

def set_shift(A, m):
    t0, t1, t2 = m + 1, m + 2, m + 3
    A(f"v_cvt_pk_bf16_f32 v{t0}, -v{m}, -v{m}")
    A(f"v_and_b32 v{t0}, 0xffff0000, v{t0}")
    A(f"v_sub_f32 v{t1}, -v{m}, v{t0}")
    A(f"v_cvt_pk_bf16_f32 v{t2}, v{t0}, v{t1}")
    A(f"v_and_b32 v{t0}, 0xffff0000, v{t2}")
    A(f"v_sub_f32 v{t1}, v{t1}, v{t0}")
    A(f"v_cvt_pk_bf16_f32 v{t1}, v{t1}, 0")
    A(f"v_cmp_gt_u32 vcc, 32, v0")
    A(f"v_cndmask_b32 v{R.Q2+1}, v{t1}, v{t2}, vcc")

def max16(A, dst, S, first):
    if first:
        A(f"v_max3_f32 v{dst}, v{S}, v{S+1}, v{S+2}")
        A(f"v_max_f32 v{dst}, v{dst}, v{S+3}")
        rng = range(4, 16, 2)
    else:
        rng = range(0, 16, 2)
    for i in rng: A(f"v_max3_f32 v{dst}, v{dst}, v{S+i}, v{S+i+1}")

def xhalf_max(A, m, t):
    A(f"v_mov_b32 v{t}, v{m}")
    A(f"v_permlane32_swap_b32 v{m}, v{t}")
    A(f"v_max_f32 v{m}, v{m}, v{t}")

def stores(A, lst, data=True):
    if data == "O" and CFG.get("hp", 1) or data and CFG.get("wt", 2) & 1:
        for x in lst: A(x + (" sc1" if x.startswith("buffer_") else ""))
        return
    L1, L2 = A.newlabel("stf"), A.newlabel("ste")
    A(f"s_cmp_lg_u32 s{sFAST}, 0")
    A(f"s_cbranch_scc1 {L1}")
    for x in lst: A(x + (" sc1" if x.startswith("buffer_") else ""))
    A(f"s_branch {L2}")
    A.label(L1)
    for x in lst: A(x)
    A.label(L2)

def readback(A, lst):
    if not CFG.get("rb", 0) & 1: return
    for mask, ops in lst:
        ops = [x + " sc1" for x in ops]
        A(f"s_mov_b32 exec_lo, {hex(mask & 0xffffffff)}")
        A(f"s_mov_b32 exec_hi, {hex(mask >> 32)}")
        for x in ops: A(x)
    A("s_mov_b64 exec, -1")

def sync(A, idx, poller, half, nleft, between=None, rb=None):
    T = R.T
    A(f"s_waitcnt vmcnt({nleft})")
    if rb: readback(A, rb)
    A("s_barrier")
    L, LP = A.newlabel("sy"), A.newlabel("poll")
    A(f"s_cmp_lg_u32 s{sWAVE}, {poller}")
    if between is not None:
        LB = A.newlabel("btw")
        A(f"s_cbranch_scc1 {LB}")
    else:
        A(f"s_cbranch_scc1 {L}")
    A(f"s_lshl_b32 s{sT0}, s{sM}, 2")
    A(f"s_add_u32 s{sT0}, s{sT0}, s{sFLAG}")
    A(f"v_mov_b32 v{T}, 1")
    A(f"v_mov_b32 v{T+1}, 0")
    A("s_mov_b64 exec, 1")
    if idx == 0 and CFG.get("hp", 1):
        A(f"buffer_store_dword v{T}, v{T+1}, s[{SWS}:{SWS+3}], s{sFL0} offen sc1")
    else:
        stores(A, [f"buffer_store_dword v{T}, v{T+1}, s[{SWS}:{SWS+3}], s{sT0} offen offset:{idx*128}"], data=False)
    if half:
        A(f"s_and_b32 s{sT0}, s{sM}, 2")
        A(f"s_lshl_b32 s{sT0}, 0x33333333, s{sT0}")
        A(f"s_mov_b32 exec_lo, s{sT0}")
    else:
        A("s_mov_b32 exec_lo, -1")
    X0 = idx == 0 and CFG.get("hp", 1)
    L32 = X0 and CFG.get("l32", 1)
    A(f"v_lshlrev_b32 v{T+1}, {7 if L32 else 2}, v0")
    A(f"s_mov_b32 s{sT1}, 0")
    if L32:
        A(f"s_lshl_b32 s{sT0}, s{sG}, 12")
        A(f"s_add_u32 s{sT0}, s{sT0}, {hex(WS_SYNC + 8192)}")
    A.label(LP)
    sl = CFG.get("sl0", 4) if X0 else CFG.get("sl1", 0)
    if sl: A(f"s_sleep {sl}")
    if L32: A(f"buffer_load_dword v{T}, v{T+1}, s[{SWS}:{SWS+3}], s{sT0} offen sc1")
    else: A(f"buffer_load_dword v{T}, v{T+1}, s[{SWS}:{SWS+3}], s{sFLAG} offen offset:{idx*128} sc1")
    A(f"s_add_u32 s{sT1}, s{sT1}, 1")
    A("s_waitcnt vmcnt(0)")
    A(f"v_cmp_eq_u32 vcc, 0, v{T}")
    A(f"s_cmp_lt_u32 s{sT1}, 0x40000")
    A(f"s_cselect_b64 vcc, vcc, 0")
    A(f"s_cbranch_vccnz {LP}")
    A("s_mov_b64 exec, -1")
    if between is not None:
        A("s_barrier")
        between()
        A(f"s_branch {L}")
        A.label(LB)
        between()
        A("s_barrier")
        A.label(L)
    else:
        A.label(L)
        A("s_barrier")

def addr_rowmajor(A, vp, vs, T):
    A(f"v_and_b32 v{T}, 15, v0")
    A(f"v_lshrrev_b32 v{T+1}, 4, v0")
    A(f"v_mul_u32_u24 v{T}, 1280, v{T}")
    A(f"s_add_u32 s{sT0}, s{sLW}, s{sTOK16}")
    A(f"s_mul_i32 s{sT0}, s{sT0}, {16*1280}")
    A(f"s_mul_i32 s{sT1}, s{sFG}, 160")
    A(f"s_add_u32 s{sT0}, s{sT0}, s{sT1}")
    A(f"v_add_u32 v{T}, s{sT0}, v{T}")
    A(f"v_lshl_add_u32 v{vp}, v{T+1}, 4, v{T}")
    A(f"v_lshl_add_u32 v{vs}, v{T+1}, 3, v{T}")
    A(f"v_add_u32 v{vs}, 128, v{vs}")
    A(f"s_and_b32 s{sT0}, s{sWAVE}, 4")
    A(f"s_lshl_b32 s{sT0}, s{sT0}, 4")
    A(f"v_add_u32 v{vp}, s{sT0}, v{vp}")

def reduce_addr(A, P, base, RA):
    A(f"s_mul_i32 s{sT0}, s{sLW}, 5120")
    A(f"s_and_b32 s{sT1}, s{sWAVE}, 4")
    A(f"s_lshl_b32 s{sT1}, s{sT1}, 9")
    A(f"s_add_u32 s{sT0}, s{sT0}, s{sT1}")
    A(f"s_add_u32 s{sT0}, s{sT0}, {base}")
    A(f"v_add_u32 v{RA}, s{sT0}, v{R.L16}")
    for k in range(1, (P + 2) // 3): A(f"v_add_u32 v{RA+k}, {3*20480*k}, v{RA}")

def reduce_sum(A, P, D, RA, n, own, mid=None):
    W = 4 * n
    for p in range(P):
        for e in range(n):
            A(f"ds_read_b128 {v(D+W*p+4*e,4)}, v{RA+p//3} offset:{(p%3)*20480 + (e*1024 if e < 2 else 4096)}")
    if mid: mid()
    for p in range(P):
        A(f"s_waitcnt lgkmcnt({min(15, n*(P-1-p))})")
        for e in range(n):
            for i in (0, 2): A(f"v_pk_add_f32 {v(own[e]+i,2)}, {v(own[e]+i,2)}, {v(D+W*p+4*e+i,2)}")

CFG = {}
def gu_dma_ops(c):
    ops = []
    for isup in range(2):
        sr = SU if isup else SG_
        for jj in range(3):
            ops.append([f"s_add_u32 m0, s{sGM0}, {(c%NWS)*GU_SLOT + isup*GU_UP + jj*1024}",
                        "s_nop 0",
                        f"buffer_load_dwordx4 v{R.GV+jj}, s[{sr}:{sr+3}], s{sGSRC} offen lds"])
    ops[-1] += [f"s_add_u32 s{sGSRC}, s{sGSRC}, {64*3072}", f"s_cmp_eq_u32 s{sGSRC}, s{sGLIM}", f"s_cselect_b32 s{sT0}, {640*3072}, 0", f"s_sub_u32 s{sGSRC}, s{sGSRC}, s{sT0}"]
    return ops
def load_wd_ops(step):
    return [[f"s_add_u32 s{sT0}, s{sWDSRC}, {step*5120 + f*1024}",
             f"buffer_load_dwordx4 {WD(step, f)}, v{R.L16}, s[{SWS}:{SWS+3}], s{sT0} offen"] for f in range(5)]
def gu_dma(A, c, rows):
    A(f"s_add_u32 s{sT0}, s{sGSRC}, {c*64*3072}")
    for isup in range(2):
        sr = SU if isup else SG_
        for jj in range(3):
            A(f"s_add_u32 m0, s{sGM0}, {(c%NWS)*GU_SLOT + isup*GU_UP + jj*1024}")
            A(f"buffer_load_dwordx4 v{R.GV+jj}, s[{sr}:{sr+3}], s{sT0} offen lds")

def load_wd(A, step):
    for f in range(5):
        if f % 4 == 0: A(f"s_add_u32 s{sT0}, s{sWDSRC}, {step*5120 + f*1024}")
        A(f"buffer_load_dwordx4 {WD(step, f)}, v{R.L16}, s[{SWS}:{SWS+3}], s{sT0} offen offset:{(f%4)*1024}")

def cfg_touch_plan(cfg, gu_touch, out_touch, wd_touch, extra):
    plan = cfg.get("tplan", [[20,"gw"],[44,"h"],[50,"st"]])
    out = []
    for t, w in plan:
        if w in extra: out.append((t, extra[w]))
        elif w[0] == "g": out.append((t, gu_touch(int(w[1]))))
        else: out.append((t, {"o": out_touch(WS_O, 1280), "h": out_touch(WS_H, 1280), "hid": out_touch(WS_HID, 3072), "st": out_touch(WS_ST2, 128), "wd": wd_touch,
                                 "hid0": out_touch(WS_HID, 3072, 0, 8), "hid1": out_touch(WS_HID, 3072, 8, 8), "hid2": out_touch(WS_HID, 3072, 16, 8)}[w]))
    return out

def gen_main(A, cfg):
    name = "main_kernel"
    CFG.update(cfg)
    cfg = dict(cfg); cfg["_k2"] = 1
    kstart(A, name)
    T = R.T
    A("s_cmp_ge_u32 s2, 256")
    A("s_cbranch_scc1 L_end")
    A(f"s_load_dwordx2 s[{SWS}:{SWS+1}], s[0:1], 72")
    A(f"s_load_dwordx2 s[{SX}:{SX+1}], s[0:1], 0")
    A(f"s_load_dwordx2 s[{SG_}:{SG_+1}], s[0:1], 32")
    A(f"s_load_dwordx2 s[{SU}:{SU+1}], s[0:1], 40")
    A(f"s_load_dwordx2 s[{SO}:{SO+1}], s[0:1], 56")
    stamp(A, cfg, 0)
    A(f"v_lshrrev_b32 v{T}, 6, v0")
    A(f"v_and_b32 v0, 63, v0")
    A(f"v_readfirstlane_b32 s{sWAVE}, v{T}")
    A(f"s_and_b32 s{sG}, s2, 7")
    A(f"s_lshr_b32 s{sM}, s2, 3")
    HP = cfg.get("hp", 1)
    if HP:
        A(f"s_lshl_b32 s{sHD}, s{sG}, 2")
        A(f"s_lshr_b32 s{sT0}, s{sM}, 3")
        A(f"s_add_u32 s{sHD}, s{sHD}, s{sT0}")
        A(f"s_and_b32 s{sFL0}, s{sM}, 7")
    else:
        A(f"s_mov_b32 s{sHD}, s{sM}")
        A(f"s_mov_b32 s{sFL0}, s{sG}")
    A(f"s_lshr_b32 s{sT0}, s{sHD}, 1")
    A(f"s_mul_i32 s{sKBASE}, s{sT0}, {PAIR_STRIDE}")
    A(f"s_mul_i32 s{sVBASE}, s{sHD}, {VHEAD_STRIDE}")
    A(f"s_add_u32 s{sVBASE}, s{sVBASE}, {hex(WS_V)}")
    A(f"s_lshl_b32 s{sQT}, s{sFL0}, 3")
    A(f"s_add_u32 s{sQT}, s{sQT}, s{sWAVE}")
    A(f"s_and_b32 s{sT1}, s{sHD}, 1")
    A(f"v_lshlrev_b32 v{R.L16}, 4, v0")
    A(f"s_mul_i32 s{sT2}, s{sT1}, 1536")
    A(f"v_add_u32 v{R.F2S+1}, s{sT2}, v{R.L16}")
    A(f"v_and_b32 v{T}, 31, v0")
    A(f"v_lshrrev_b32 v{T+1}, 5, v0")
    A(f"v_lshlrev_b32 v{R.F2S}, 4, v{T}")
    A(f"v_lshl_add_u32 v{R.F2S}, v{T+1}, 2, v{R.F2S}")
    A(f"s_lshl_b32 s{sT1}, s{sT1}, 3")
    A(f"s_add_u32 s{sT1}, s{sT1}, 1024")
    A(f"v_add_u32 v{R.F2S}, s{sT1}, v{R.F2S}")
    A(f"s_mul_i32 s{sKSRC}, s{sWAVE}, 2560")
    A(f"s_add_u32 s{sKSRC}, s{sKSRC}, s{sKBASE}")
    A(f"s_mul_i32 s{sVSRC}, s{sWAVE}, 1280")
    A(f"s_mul_i32 s{sSLOT}, s{sWAVE}, 2560")
    A(f"v_lshlrev_b32 v{R.L4}, 2, v0")
    A(f"s_add_u32 s{sVSRC}, s{sVSRC}, s{sVBASE}")
    A(f"s_add_u32 s{sKLIM}, s{sKSRC}, {PAIR_STRIDE}")
    A(f"s_mul_i32 s{sT0}, s{sFL0}, {8*1280 if HP and cfg.get('krot', 0) else 0}")
    A(f"s_add_u32 s{sVSRC}, s{sVSRC}, s{sT0}")
    A(f"s_lshl_b32 s{sT0}, s{sT0}, 1")
    A(f"s_add_u32 s{sKSRC}, s{sKSRC}, s{sT0}")
    A(f"s_add_u32 s{sB2}, s{sKBASE}, s{sT0}")
    A("s_waitcnt lgkmcnt(0)")
    srd(A, SWS, SWS, WS_SIZE)
    KVF = cfg.get("kvflag", "")
    def kv_ops(c):
        lds = KV_BASE + (c % NKV) * KV_SLOT
        return [
            [f"s_add_u32 m0, s{sSLOT}, {lds}", "s_nop 0",
             f"buffer_load_dwordx4 v{R.F2S+1}, s[{SWS}:{SWS+3}], s{sKSRC} offen {KVF} lds"],
            [f"s_add_u32 m0, s{sSLOT}, {lds+1024}", "s_nop 0",
             f"buffer_load_dword v{R.F2S}, s[{SWS}:{SWS+3}], s{sKSRC} offen {KVF} lds"],
            [f"s_add_u32 m0, s{sSLOT}, {lds+1280}", f"s_add_u32 s{sKSRC}, s{sKSRC}, {8*2560}",
             f"buffer_load_dwordx4 v{R.L16}, s[{SWS}:{SWS+3}], s{sVSRC} offen {KVF} lds"],
            [f"s_add_u32 m0, s{sSLOT}, {lds+2304}", f"s_add_u32 s{sT0}, s{sVSRC}, 1024",
             f"buffer_load_dword v{R.L4}, s[{SWS}:{SWS+3}], s{sT0} offen {KVF} lds",
             f"s_add_u32 s{sVSRC}, s{sVSRC}, {8*1280}"] +
            ([f"s_cmp_eq_u32 s{sKSRC}, s{sKLIM}", f"s_cselect_b32 s{sT0}, {VHEAD_STRIDE}, 0", f"s_sub_u32 s{sVSRC}, s{sVSRC}, s{sT0}",
              f"s_lshl_b32 s{sT0}, s{sT0}, 1", f"s_sub_u32 s{sKSRC}, s{sKSRC}, s{sT0}"] if HP and cfg.get('krot', 0) else [])]
    def emit(op):
        for x in op: A(x)
    A(f"s_mul_i32 s{sT2}, s{sQT}, 2560")
    A(f"s_add_u32 s{sT2}, s{sT2}, s{sKBASE}")
    A(f"s_add_u32 s{sT2}, s{sT2}, {hex(WS_Q)}")
    A(f"buffer_load_dwordx4 {v(R.Q1,4)}, v{R.F2S+1}, s[{SWS}:{SWS+3}], s{sT2} offen")
    A(f"buffer_load_dword v{R.Q2}, v{R.F2S}, s[{SWS}:{SWS+3}], s{sT2} offen")
    A(f"buffer_load_dwordx4 {v(R.K1,4)}, v{R.F2S+1}, s[{SWS}:{SWS+3}], s{sB2} offen")
    A(f"buffer_load_dword v{R.K2}, v{R.F2S}, s[{SWS}:{SWS+3}], s{sB2} offen")
    PSP = cfg.get("psplit", 3)
    if PSP:
        A(f"s_cmp_ge_u32 s{sWAVE}, {PSP}")
        A("s_cbranch_scc1 L_p0")
    for op in kv_ops(0): emit(op)
    A.label("L_p0")
    A(f"s_lshl_b32 s{sFLAG}, s{sG}, 10")
    A(f"s_add_u32 s{sFLAG}, s{sFLAG}, {hex(WS_SYNC)}")
    A(f"s_getreg_b32 s{sXCC}, hwreg(HW_REG_XCC_ID, 0, 3)")
    A(f"s_mul_i32 s{sXCC}, s{sXCC}, 6")
    A(f"s_lshr_b32 s{sFG}, s{sM}, 2")
    A(f"s_and_b32 s{sT0}, s{sM}, 3")
    A(f"s_lshl_b32 s{sTOK16}, s{sG}, 4")
    A(f"s_lshl_b32 s{sT0}, s{sT0}, 2")
    A(f"s_add_u32 s{sTOK16}, s{sTOK16}, s{sT0}")
    A(f"s_lshl_b32 s{sJ}, s{sFG}, 1")
    A(f"s_and_b32 s{sT0}, s{sM}, 1")
    A(f"s_add_u32 s{sJ}, s{sJ}, s{sT0}")
    A(f"s_and_b32 s{sLW}, s{sWAVE}, 3")
    A(f"s_mul_i32 s{sWOSRC}, s{sFG}, {20*5120}")
    A(f"s_and_b32 s{sKQ}, s{sLW}, 1")
    A(f"s_lshl_b32 s{sKQ}, s{sKQ}, 1")
    A(f"s_lshr_b32 s{sT0}, s{sWAVE}, 2")
    A(f"s_add_u32 s{sKQ}, s{sKQ}, s{sT0}")
    if cfg.get("stag", 3) & 1:
        A(f"s_and_b32 s{sT0}, s{sFG}, 1")
        A(f"s_lshl_b32 s{sT0}, s{sT0}, 1")
        A(f"s_xor_b32 s{sKQ}, s{sKQ}, s{sT0}")
    A(f"s_mul_i32 s{sT0}, s{sKQ}, {5*5120}")
    A(f"s_add_u32 s{sWOSRC}, s{sWOSRC}, s{sT0}")
    A(f"s_add_u32 s{sWOSRC}, s{sWOSRC}, {hex(WS_WO)}")
    A(f"s_mul_i32 s{sWDSRC}, s{sFG}, {48*5120}")
    A(f"s_and_b32 s{sT0}, s{sFG}, {3 if cfg.get('stag', 3) & 2 else 0}")
    A(f"s_xor_b32 s{sT0}, s{sT0}, s{sLW}")
    A(f"s_mul_i32 s{sT0}, s{sT0}, 12")
    A(f"s_and_b32 s{sT1}, s{sWAVE}, 4")
    A(f"s_add_u32 s{sWDRAW}, s{sT0}, s{sT1}")
    A(f"s_mul_i32 s{sT0}, s{sWDRAW}, 5120")
    A(f"s_add_u32 s{sWDSRC}, s{sWDSRC}, s{sT0}")
    A(f"s_add_u32 s{sWDSRC}, s{sWDSRC}, {hex(WS_WD)}")
    A(f"s_mul_i32 s{sGSRC}, s{sLW}, {16*3072}")
    A(f"s_mul_i32 s{sT0}, s{sJ}, 192")
    A(f"s_add_u32 s{sGSRC}, s{sGSRC}, s{sT0}")
    A(f"s_mul_i32 s{sGM0}, s{sLW}, 3072")
    if cfg.get("stag", 3) & 4:
        A(f"s_bfe_u32 s{sT0}, s{sM}, 0x10001")
        A(f"s_mul_i32 s{sT0}, s{sT0}, {cfg.get('gth', 5)}")
        A(f"s_mul_i32 s{sC0}, s{sJ}, {cfg.get('gja', 1)}")
        A(f"s_add_u32 s{sC0}, s{sC0}, s{sT0}")
        A(f"s_mul_i32 s{sT0}, s{sC0}, 6554")
        A(f"s_lshr_b32 s{sT0}, s{sT0}, 16")
        A(f"s_mul_i32 s{sT0}, s{sT0}, 10")
        A(f"s_sub_u32 s{sC0}, s{sC0}, s{sT0}")
    else:
        A(f"s_mov_b32 s{sC0}, 0")
    A(f"s_add_u32 s{sGLIM}, s{sGSRC}, {640*3072}")
    A(f"s_mul_i32 s{sT0}, s{sC0}, {64*3072}")
    A(f"s_add_u32 s{sGSRC}, s{sGSRC}, s{sT0}")
    srd(A, SX, SX, X_BYTES); srd(A, SG_, SG_, 640 * 1536 * 2); srd(A, SU, SU, 640 * 1536 * 2); srd(A, SO, SO, X_BYTES)
    A(f"v_add_u32 v{R.KA}, {KV_BASE}, v{R.L16}")
    A(f"v_add_u32 v{R.K2A}, {KV_BASE + 1024}, v{R.L4}")
    r, kh, aa, hf, b, i_, d1, d2 = T, T+1, T+2, T+3, T+4, T+5, T+6, T+7
    A(f"v_lshrrev_b32 v{aa}, 3, v{r}")
    A(f"v_bfe_u32 v{hf}, v{r}, 2, 1")
    A(f"v_and_b32 v{b}, 3, v{r}")
    A(f"v_lshl_add_u32 v{i_}, v{aa}, 2, v{b}")
    A(f"v_lshl_add_u32 v{d1}, v{hf}, 3, v{i_}")
    A(f"v_lshl_add_u32 v{d2}, v{hf}, 1, v{i_}")
    A(f"v_add_u32 v{d2}, 8, v{d2}")
    A(f"v_cmp_gt_u32 vcc, 8, v{i_}")
    A(f"v_cndmask_b32 v{d1}, v{d2}, v{d1}, vcc")
    A(f"v_min_u32 v{d1}, 19, v{d1}")
    A(f"v_mul_u32_u24 v{R.VA}, 320, v{kh}")
    A(f"v_lshl_add_u32 v{R.VA}, v{d1}, 4, v{R.VA}")
    A(f"v_add_u32 v{R.VA}, {KV_BASE + 1280}, v{R.VA}")
    A(f"v_cmp_eq_u32 vcc, 10, v{i_}")
    A(f"v_mov_b32 v{d2}, 0x3f803f80")
    for k in range(8): A(f"v_cndmask_b32 v{R.V1+k}, 0, v{d2}, vcc")
    A(f"v_cmp_gt_u32 vcc, 32, v0")
    A(f"v_mov_b32 v{d1}, 0x3f80")
    A(f"v_cndmask_b32 v{R.K2+1}, v{d1}, v{d2}, vcc")
    A(f"v_mov_b32 v{R.Q2+1}, 0")
    for jj in range(3):
        A(f"v_add_u32 v{T}, {64*jj}, v0")
        A(f"v_mul_u32_u24 v{T+1}, 5462, v{T}")
        A(f"v_lshrrev_b32 v{T+1}, 16, v{T+1}")
        A(f"v_mul_u32_u24 v{R.GV+jj}, {3072-192}, v{T+1}")
        A(f"v_lshl_add_u32 v{R.GV+jj}, v{T}, 4, v{R.GV+jj}")
    A(f"s_mov_b32 s{sVMASK}, 0x0033ffff")
    A(f"s_mov_b32 s{sVMASK+1}, 0x0033ffff")
    S0 = R.S[0]
    X = R.S[1]
    addr_rowmajor(A, R.XRES + 6, R.XRES + 7, X)
    A(f"v_lshlrev_b32 v{R.TCH}, 7, v0")
    A(f"v_mov_b32 v{R.TCH+1}, 0")
    A(f"s_lshl_b64 s[{sTMP}:{sTMP+1}], 1, s{sXCC}")
    A(f"v_mov_b32 v{R.XRES+8}, s{sTMP}")
    A(f"v_mov_b32 v{R.XRES+9}, s{sTMP+1}")
    A(f"s_cmp_ge_u32 s{sWAVE}, 4")
    A(f"s_cselect_b32 s{sTMP}, s{SU}, s{SG_}")
    A(f"s_cselect_b32 s{sTMP+1}, s{SU+1}, s{SG_+1}")
    A(f"s_mov_b32 s{sTMP+2}, {hex(640*1536*2)}")
    A(f"s_mov_b32 s{sTMP+3}, 0x20000")
    A(f"s_cselect_b32 s{sB}, {GU_UP}, 0")
    A(f"s_add_u32 s{sB}, s{sB}, s{sGM0}")
    A(f"s_and_b32 s{sC}, s{sM}, 3")
    A(f"s_lshl_b32 s{sDELTA}, s{sM}, 2")
    A(f"s_add_u32 s{sDELTA}, s{sDELTA}, s{sLW}")
    A(f"s_mul_i32 s{sDELTA}, s{sDELTA}, {12*128}")
    A(f"s_lshl_b32 s{sTO}, s{sG}, 5")
    A(f"s_add_u32 s{sTO}, s{sTO}, s{sM}")
    A(f"s_lshl_b32 s{sTO}, s{sTO}, 3")
    A(f"s_add_u32 s{sTO}, s{sTO}, s{sWAVE}")
    if cfg.get("ctouch", 1):
        code_touch_setup(A, 88, "L_attn_code")
        A(f"s_and_b32 s{sT0}, s{sTO}, 255")
        A(f"s_lshl_b32 s{sT0}, s{sT0}, 7")
        A(f"v_lshlrev_b32 v{X}, 15, v0")
        A(f"v_add_u32 v{X}, s{sT0}, v{X}")
        A(f"v_min_u32 v{R.GV+3}, L_code_end-L_attn_code-4, v{X}")

    A(f"s_mul_i32 s{sT0}, s{sQT}, {2*80*256}")
    A(f"s_lshr_b32 s{sT1}, s{sHD}, 3")
    A(f"s_mul_i32 s{sT1}, s{sT1}, {20*256}")
    A(f"s_add_u32 s{sT0}, s{sT0}, s{sT1}")
    A(f"s_add_u32 s{sT0}, s{sT0}, {hex(WS_O)}")
    L32 = cfg.get("l32", 1)
    A(f"s_lshl_b32 s{sFL0}, s{sFL0}, {12 if L32 else 10}")
    A(f"s_lshl_b32 s{sT2}, s{sHD}, {7 if L32 else 2}")
    A(f"s_add_u32 s{sFL0}, s{sFL0}, s{sT2}")
    A(f"s_add_u32 s{sFL0}, s{sFL0}, {hex(WS_SYNC + (8192 if L32 else 0))}")
    A(f"s_and_b32 s{sT2}, s{sHD}, 7")
    A(f"s_lshl_b32 s{sT1}, s{sT2}, 9")
    A(f"s_add_u32 s{sT1}, s{sT1}, s{sT0}")
    A(f"s_lshl_b32 s{sT2}, s{sT2}, 7")
    A(f"s_add_u32 s{sT0}, s{sT0}, s{sT2}")
    A(f"s_add_u32 s{sT0}, s{sT0}, {16*256}")
    A(f"v_and_b32 v{X}, 15, v0")
    A(f"v_bfe_u32 v{X+1}, v0, 4, 1")
    A(f"v_lshrrev_b32 v{X+2}, 5, v0")
    A(f"v_mul_u32_u24 v{X+1}, {80*256}, v{X+1}")
    A(f"v_lshl_add_u32 v{T+7}, v{X}, 3, v{X+1}")
    A(f"v_add_u32 v{T+7}, s{sT0}, v{T+7}")
    A(f"v_lshl_add_u32 v{T+6}, v{X}, 4, v{X+1}")
    A(f"v_lshl_add_u32 v{T+6}, v{X+2}, 8, v{T+6}")
    A(f"v_add_u32 v{T+6}, s{sT1}, v{T+6}")
    A(f"s_mov_b32 s92, {fhex(2.0**-40)}")
    A(f"s_mov_b32 s93, {fhex(2.0**64)}")
    A(f"s_mov_b32 s94, {fhex(2.0**127)}")
    JUNK = R.XRES + 11
    def gu_op(c, jj):
        return [f"s_add_u32 m0, s{sB}, {c*GU_SLOT + jj*1024}", "s_nop 0",
                f"buffer_load_dwordx4 v{R.GV+jj}, s[{sTMP}:{sTMP+3}], s{sGSRC} offen lds"] + ([f"s_add_u32 s{sGSRC}, s{sGSRC}, {64*3072}", f"s_cmp_eq_u32 s{sGSRC}, s{sGLIM}", f"s_cselect_b32 s{sT0}, {640*3072}, 0", f"s_sub_u32 s{sGSRC}, s{sGSRC}, s{sT0}"] if jj == 2 else [])
    def touch(n, srd_, pre):
        return pre + [f"s_bfm_b64 exec, {n}, 0", f"buffer_load_dword v{JUNK}, v{R.TCH}, s[{srd_}:{srd_+3}], s{sT0} offen", "s_mov_b64 exec, -1"]
    def gu_touch(c): return touch(12, sTMP, [f"s_add_u32 s{sT0}, s{sDELTA}, {c*64*3072}"])
    def out_touch(base, nbytes, l0=0, n=None):
        return touch(n or nbytes // 128, SWS, [f"s_mul_i32 s{sT0}, s{sTO}, {nbytes}", f"s_add_u32 s{sT0}, s{sT0}, {hex(base + l0*128)}",
                                          f"s_cmp_lg_u32 s{sFAST}, 0", f"s_cselect_b32 s{sT0}, s{sT0}, {hex(WS_SIZE)}"])
    sched = {t: [] for t in range(64)}
    trs = {}
    misc = {}
    vm = []
    def put(t, tag, op):
        while len(sched[t]) >= 3: t += 1
        sched[t].append((tag, op)); return t
    for i, op in enumerate(kv_ops(1)): put(i // 2, "kv1", op)
    for c in range(2, 8):
        for i, op in enumerate(kv_ops(c)): put(8 * (c - 2) + 6 + i // 2, f"kv{c}", op)
    pf = []
    def frag_op(src, i, dst):
        pre = [f"s_add_u32 s{sSTG}, s{src}, {i*1024}"] if i % 4 == 0 else []
        return pre + [f"buffer_load_dwordx4 {a(dst+4*i,4)}, v{R.L16}, s[{SWS}:{SWS+3}], s{sSTG} offen offset:{(i%4)*1024}"]
    for i in range(10): pf.append(frag_op(sWDSRC, i, 100))
    for i in range(25): pf.append(frag_op(sWOSRC, i, 0))
    for c in range(4):
        for jj in range(3): pf.append(gu_op(c, jj))
    if cfg.get("nopf"): pf = []
    free = [t for t in range(cfg.get('pf0', 2), 64) if t % 8 < cfg.get('pfm', 6) or t > 48]
    num, den = cfg.get("pf_rate", [1, 1])
    for i, op in enumerate(pf): put(free[i * den // num], "pf", op)
    put(0, "at", ["s_cmp_eq_u32 s%d, 0" % sWAVE, f"s_cselect_b32 s{sT0}, s{sFLAG}, {hex(WS_SIZE)}", "s_mov_b64 exec, 1",
                  f"buffer_atomic_add_x2 {v(R.XRES+8,2)}, v{R.TCH+1}, s[{SWS}:{SWS+3}], s{sT0} offen offset:512 sc1", "s_mov_b64 exec, -1"])
    put(12, "pf", [f"buffer_load_dwordx4 {v(R.XRES,4)}, v{R.XRES+6}, s[{SX}:{SX+3}], 0 offen"])
    put(16, "pf", [f"buffer_load_dwordx2 {v(R.XRES+4,2)}, v{R.XRES+7}, s[{SX}:{SX+3}], 0 offen"])
    put(cfg.get("xcc_ld", 10), "xcc", [f"buffer_load_dwordx2 {v(R.XRES+8,2)}, v{R.TCH+1}, s[{SWS}:{SWS+3}], s{sFLAG} offen offset:512 sc1"])
    misc[cfg.get('xcc_rd', 23)] = ("xcc", [f"v_readfirstlane_b32 s{sFAST-1}, v{R.XRES+8}" , f"v_readfirstlane_b32 s{sFAST}, v{R.XRES+9}"])
    gwarm = touch(15, sTMP, [f"s_lshr_b32 s{sT0}, s{sTO}, 3", f"s_lshl_b32 s{sT0}, s{sT0}, 2", f"s_add_u32 s{sT0}, s{sT0}, s{sLW}", f"s_mul_i32 s{sT0}, s{sT0}, {15*128}"])
    if cfg.get("gwarm_at", -1) >= 0: put(cfg.get("gwarm_at", -1), "pf", gwarm)
    wd01_touch = touch(20, SWS, [f"s_mul_i32 s{sT0}, s{sC}, 2560", f"s_add_u32 s{sT0}, s{sT0}, s{sWDSRC}"])
    wo_touch = touch(25, SWS, [f"s_lshr_b32 s{sT0}, s{sWAVE}, 2", f"s_lshl_b32 s{sT1}, s{sC}, 1", f"s_add_u32 s{sT0}, s{sT0}, s{sT1}",
                               f"s_mul_i32 s{sT0}, s{sT0}, 3200", f"s_add_u32 s{sT0}, s{sT0}, s{sWOSRC}"])
    gw2 = touch(6, sTMP, [f"s_lshr_b32 s{sT0}, s{sTO}, 3", f"s_lshl_b32 s{sT0}, s{sT0}, 2", f"s_add_u32 s{sT0}, s{sT0}, s{sLW}", f"s_mul_i32 s{sT0}, s{sT0}, {6*128}",
                          f"s_add_u32 s{sT0}, s{sT0}, {6*64*3072}"])
    def gwp(k, n):
        return touch(n, sTMP, [f"s_lshr_b32 s{sT0}, s{sTO}, 3", f"s_lshl_b32 s{sT0}, s{sT0}, 2", f"s_add_u32 s{sT0}, s{sT0}, s{sLW}", f"s_mul_i32 s{sT0}, s{sT0}, {n*128}",
                               f"s_add_u32 s{sT0}, s{sT0}, {k*n*1024*128}"])
    extra = {"p0": gwp(0, 5), "p1": gwp(1, 5), "p2": gwp(2, 5), "q0": gwp(0, 3), "q1": gwp(1, 3), "q2": gwp(2, 3), "q3": gwp(3, 3), "q4": gwp(4, 3), "wd01": wd01_touch, "wo": wo_touch, "gw2": gw2, "gw": gwarm}
    def wdt(k): return touch(20, SWS, [f"s_lshl_b32 s{sT0}, s{sM}, 3", f"s_add_u32 s{sT0}, s{sT0}, s{sWAVE}", f"s_mul_i32 s{sT0}, s{sT0}, {60*128}", f"s_add_u32 s{sT0}, s{sT0}, {WS_WD + k*20*128}"])
    extra.update({"d0": wdt(0), "d1": wdt(1), "d2": wdt(2)})
    wd_touch = None
    for t, op in cfg_touch_plan(cfg, gu_touch, out_touch, wd_touch, extra): put(t, "pf", op)
    HIDT = None
    if cfg.get("tlb", 0) & 2:
        put(20, "pf", ["s_mov_b64 exec, 1", f"buffer_load_dword v{JUNK}, v{R.XRES+6}, s[{SO}:{SO+3}], 0 offen", "s_mov_b64 exec, -1"])
    if cfg.get("ctouch", 1):
        for t in cfg.get("ct_at", [1, 52]):
            put(t, "pf", ["s_mov_b64 exec, 3", f"global_load_dword v{JUNK}, v{R.GV+3}, s[88:89]", "s_mov_b64 exec, -1"])

    if PSP:
        A(f"s_cmp_lt_u32 s{sWAVE}, {PSP}")
        A("s_cbranch_scc1 L_p1")
        A("s_waitcnt vmcnt(0)")
        for op in kv_ops(0): emit(op)
        A.label("L_p1")
    A("s_waitcnt vmcnt(4)")
    A(f"v_mfma_f32_32x32x16_bf16 {v(S0,16)}, {v(R.K1,4)}, {v(R.Q1,4)}, 0")
    A(f"v_mfma_f32_32x32x8_bf16 {v(S0,16)}, {v(R.K2,2)}, {v(R.Q2,2)}, {v(S0,16)}")
    max16(A, R.P, S0, True)
    xhalf_max(A, R.P, R.P+1)
    set_shift(A, R.P)
    A(f"v_mfma_f32_32x32x16_bf16 {v(S0,16)}, {v(R.K1,4)}, {v(R.Q1,4)}, 0")
    A(f"v_mfma_f32_32x32x8_bf16 {v(S0,16)}, {v(R.K2,2)}, {v(R.Q2,2)}, {v(S0,16)}")
    def toff(t): return ((t // 8) % 3) * KV_SLOT + (t % 8) * 2560
    def tdelta(t): return 0
    if PSP:
        A(f"s_cmp_ge_u32 s{sWAVE}, {PSP}")
        A("s_nop 1")
        A("s_cbranch_scc1 L_p2")
    A("s_waitcnt vmcnt(0)")
    A.label("L_p2")
    A("s_barrier")
    vm += ["kv0"] * 4
    A(f"ds_read_b128 {v(R.K1,4)}, v{R.KA} offset:{toff(1)}")
    A(f"ds_read_b32 v{R.K2}, v{R.K2A} offset:{toff(1)}")
    A(f"s_mov_b64 exec, s[{sVMASK}:{sVMASK+1}]")
    A(f"ds_read_b128 {v(R.V1,4)}, v{R.VA}")
    A("s_mov_b64 exec, -1")
    stamp(A, cfg, 1)
    PRIO = cfg.get("prio", {6: 3, 2: 2, 4: 1, 5: 0})
    A("s_setprio 3")
    A.label("L_attn_code")
    def vwait(tag): A(f"s_waitcnt vmcnt({len(vm) - 1 - max(i for i, x in enumerate(vm) if x == tag)})")
    for t in range(64):
        cur, nxt = R.S[t % 2], R.S[(t + 1) % 2]
        def E(i): A(f"v_exp_f32 v{cur+i}, v{cur+i}")
        def C(k): A(f"v_cvt_pk_bf16_f32 v{R.P+k}, v{cur+2*k}, v{cur+2*k+1}")
        ops_t = list(sched[t])
        def V():
            if ops_t:
                tag, op = ops_t.pop(0); emit(op); vm.append(tag)
        tr = []
        if t in trs: tr = list(trs[t][1])
        def L(n):
            for _ in range(n):
                if tr: A(tr.pop(0))
        if PSP and t == PSP - 2:
            vwait("kv0")
            A("s_barrier")
        if t % 8 == 6 and t < 56:
            vwait(f"kv{t//8+1}")
            A("s_barrier")
        if cfg.get("ats") and t % 8 == 6: A(f"s_memtime s[{64+2*(t//8)}:{65+2*(t//8)}]")
        if t < 56 and t % 8 in PRIO: A(f"s_setprio {PRIO[t % 8]}")
        if t >= 56 and (t - 2) % 8 in PRIO and t > 56: A(f"s_setprio {PRIO[(t - 2) % 8]}")
        if t < 63:
            A(f"s_waitcnt lgkmcnt({2 if t else 1})")
            A(f"v_mfma_f32_32x32x16_bf16 {v(nxt,16)}, {v(R.K1,4)}, {v(R.Q1,4)}, 0")
        E(0); E(1); V(); E(2); C(0); E(3)
        A("s_waitcnt lgkmcnt(0)")
        if t: A(f"v_mfma_f32_32x32x16_bf16 {v(R.O,16)}, {v(R.V2,4)}, {v(R.P+4,4)}, {v(R.O,16)}")
        if t in trs and trs[t][0]: vwait(trs[t][0])
        if t in misc:
            vwait(misc[t][0])
            A(f"s_mov_b32 s{sT1}, s{sFAST-1}")
            emit(misc[t][1])
            A(f"s_lshr_b64 s[{sFAST-1}:{sFAST}], s[{sFAST-1}:{sFAST}], s{sXCC}")
            A(f"s_and_b32 s{sFAST}, s{sFAST-1}, 63")
            A(f"s_mov_b32 s{sFAST-1}, s{sT1}")
            A(f"s_cmp_eq_u32 s{sFAST}, 32")
            A(f"s_cselect_b32 s{sFAST}, {0 if cfg.get('noFast') else 1}, 0")
        L(2); E(4); C(1); L(2); E(5); V(); E(6); L(1); C(2); E(7)
        if t < 63: A(f"v_mfma_f32_32x32x8_bf16 {v(nxt,16)}, {v(R.K2,2)}, {v(R.Q2,2)}, {v(nxt,16)}")
        if t < 62:
            if tdelta(t + 2):
                A(f"v_add_u32 v{R.KA}, {tdelta(t+2)}, v{R.KA}")
                A(f"v_add_u32 v{R.K2A}, {tdelta(t+2)}, v{R.K2A}")
            A(f"ds_read_b128 {v(R.K1,4)}, v{R.KA} offset:{toff(t+2)}")
            A(f"ds_read_b32 v{R.K2}, v{R.K2A} offset:{toff(t+2)}")
        E(8); C(3); E(9); V(); E(10); C(4); E(11)
        A(f"v_mfma_f32_32x32x16_bf16 {v(R.O,16)}, {v(R.V1,4)}, {v(R.P,4)}, {v(R.O,16) if t else 0}")
        A(f"s_mov_b64 exec, s[{sVMASK}:{sVMASK+1}]")
        A(f"ds_read_b128 {v(R.V2,4)}, v{R.VA} offset:{toff(t) + 640}")
        if t < 63:
            if tdelta(t + 1): A(f"v_add_u32 v{R.VA}, {tdelta(t+1)}, v{R.VA}")
            A(f"ds_read_b128 {v(R.V1,4)}, v{R.VA} offset:{toff(t+1)}")
        A("s_mov_b64 exec, -1")
        E(12); C(5); E(13); E(14); E(15); C(6); C(7)
        assert not ops_t and not tr
    A("s_waitcnt lgkmcnt(0)")
    A(f"v_mfma_f32_32x32x16_bf16 {v(R.O,16)}, {v(R.V2,4)}, {v(R.P+4,4)}, {v(R.O,16)}")
    A.label("L_post_attn")
    if cfg.get("ats"):
        for c in range(11): A(f"s_sub_u32 s{65+2*c}, s{64+2*c}, s63")
        A("v_mov_b32 v78, v0")
        A("v_mov_b32 v110, v2")
        A("v_mov_b32 v109, v3")
        stamp_flush(A, cfg, 13, 17, SWS, sWAVE, 0)
        A("s_mov_b64 exec, -1")
        A("v_mov_b32 v0, v78")
        A("v_mov_b32 v2, v110")
        A("v_mov_b32 v3, v109")
    A("s_setprio 0")
    stamp(A, cfg, 2)
    N = R.S[0]
    A(f"v_rcp_f32 v{T}, v{R.O+10}")
    A(f"v_max3_f32 v{T+1}, abs(v{R.O}), abs(v{R.O+1}), abs(v{R.O+2})")
    A(f"v_cmp_le_f32 vcc, s92, v{R.O+10}")
    A(f"v_cmp_ge_f32 s[{sTMP}:{sTMP+1}], s93, v{R.O+10}")
    for k in (3, 5, 7): A(f"v_max3_f32 v{T+1}, v{T+1}, abs(v{R.O+k}), abs(v{R.O+k+1})")
    A(f"v_max_f32_e64 v{T+1}, v{T+1}, abs(v{R.O+9})")
    A(f"s_and_b64 vcc, vcc, s[{sTMP}:{sTMP+1}]")
    A(f"v_cmp_ge_f32 s[{sTMP+2}:{sTMP+3}], s94, v{T+1}")
    def norm():
        for k in (8, 9, 0, 1, 2, 3, 4, 5, 6, 7): A(f"v_mul_f32 v{N+k}, v{T}, v{R.O+k}")
    norm()
    A(f"s_and_b64 vcc, vcc, s[{sTMP+2}:{sTMP+3}]")
    A(f"s_cmp_eq_u64 vcc, -1" if not cfg.get("force_slow") else "s_cmp_eq_u32 s2, -1")
    A("s_cbranch_scc0 L_attn_slow")
    A.label("L_attn_norm")
    A(f"v_cvt_pk_bf16_f32 v{N+10}, v{N+8}, v{N+9}")
    A(f"v_cvt_pk_bf16_f32 v{N+11}, v{N+8}, v{N+9}")
    for k in range(4): A(f"v_cvt_pk_bf16_f32 v{N+k}, v{N+2*k}, v{N+2*k+1}")
    A(f"v_permlane32_swap_b32 v{N+10}, v{N+11}")
    stores(A, [f"buffer_store_dwordx4 {v(N,4)}, v{T+6}, s[{SWS}:{SWS+3}], 0 offen",
               "s_mov_b32 exec_hi, 0",
               f"buffer_store_dwordx2 {v(N+10,2)}, v{T+7}, s[{SWS}:{SWS+3}], 0 offen",
               "s_mov_b32 exec_hi, -1"], data="O")
    A(f"v_and_b32 v{T+4}, 15, v0")
    A(f"v_lshrrev_b32 v{T+3}, 5, v0")
    A(f"v_lshlrev_b32 v{T+1}, 4, v{T+4}")
    A(f"v_lshl_add_u32 v{T+1}, v{T+3}, 8, v{T+1}")
    A(f"v_lshrrev_b32 v{T+5}, 4, v0")
    A(f"v_lshlrev_b32 v{T+5}, 8, v{T+5}")
    A(f"v_lshl_add_u32 v7, v{T+4}, 3, v{T+5}")
    A(f"v_add_u32 v7, 4096, v7")

    BF, ACC = 16, 56
    vHP, vHS, vPW, RA = 108, 109, 3, 5
    A(f"s_lshr_b32 s{sT2}, s{sWAVE}, 2")
    A(f"s_mul_i32 s{sT1}, s{sKQ}, {20*256}")
    A(f"s_add_u32 s{sT1}, s{sT1}, {hex(WS_O)}")
    A(f"s_add_u32 s{sB2}, s{sLW}, s{sTOK16}")
    A(f"s_xor_b32 s{sB}, s{sB2}, 1")
    A(f"s_mul_i32 s{sB}, s{sB}, {80*256}")
    A(f"s_add_u32 s{sB}, s{sB}, s{sT1}")
    A(f"s_mul_i32 s{sB2}, s{sB2}, {80*256}")
    A(f"s_add_u32 s{sB2}, s{sB2}, s{sT1}")
    A(f"s_xor_b32 s{sT0}, s{sLW}, 1")
    A(f"s_mul_i32 s{sT0}, s{sT0}, 5120")
    A(f"s_add_u32 s{sT0}, s{sT0}, {PART_BASE}")
    A(f"v_add_u32 v{vPW}, s{sT0}, v{R.L16}")
    A(f"s_mul_i32 s{sT0}, s{sLW}, 5120")
    A(f"s_add_u32 s{sT0}, s{sT0}, {PART_BASE}")
    A(f"v_add_u32 v6, s{sT0}, v{R.L16}")
    A(f"s_add_u32 s{sT0}, s{sLW}, s{sTOK16}")
    A(f"s_lshl_b32 s{sC}, s{sT0}, 11")
    A(f"s_mul_i32 s{sT0}, s{sT0}, {80*256}")
    A(f"s_mul_i32 s{sT1}, s{sFG}, 2560")
    A(f"s_add_u32 s{sT0}, s{sT0}, s{sT1}")
    A(f"s_add_u32 s{sT0}, s{sT0}, {hex(WS_H)}")
    A(f"v_add_u32 v{T+1}, 2048, v{T+1}")
    A(f"v_add_u32 v{vHS}, s{sT0}, v{T+1}")
    A(f"s_lshl_b32 s{sT1}, s{sT2}, 10")
    A(f"s_add_u32 s{sT0}, s{sT0}, s{sT1}")
    A(f"v_add_u32 v{vHP}, s{sT0}, v{R.L16}")
    A(f"s_lshl_b32 s{sT1}, s{sFG}, 1")
    A(f"s_add_u32 s{sT1}, s{sT1}, s{sT2}")
    A(f"s_lshl_b32 s{sT1}, s{sT1}, 7")
    A(f"s_add_u32 s{sC}, s{sC}, s{sT1}")
    A(f"s_add_u32 s{sC}, s{sC}, {hex(WS_ST2)}")
    reduce_addr(A, 3, PART_BASE, RA)
    sGT = sQT
    A(f"s_and_b32 s{sGT}, s{sTOK16}, -8")
    A(f"s_lshl_b32 s{sT0}, s{sLW}, 1")
    A(f"s_add_u32 s{sGT}, s{sGT}, s{sT0}")
    sHSRC, sHM0 = sKBASE, sVBASE
    A(f"s_mul_i32 s{sHSRC}, s{sGT}, {80*256}")
    A(f"s_add_u32 s{sHSRC}, s{sHSRC}, {hex(WS_H)}")
    A(f"s_lshl_b32 s{sHM0}, s{sLW}, 12")
    A(f"s_add_u32 s{sTO}, s{sHSRC}, {80*256}")
    A(f"s_lshl_b32 s{sT0}, s{sC0}, 11")
    A(f"s_add_u32 s{sHSRC}, s{sHSRC}, s{sT0}")
    stamp(A, cfg, 3)
    M8 = 0x0101010101010101
    sync(A, 0, 0, False, 0, rb=[(M8, [f"buffer_load_dword v{JUNK}, v{T+6}, s[{SWS}:{SWS+3}], 0 offen"]),
                                (0x00010001, [f"buffer_load_dword v{JUNK}, v{T+7}, s[{SWS}:{SWS+3}], 0 offen"])])
    stamp(A, cfg, 4)
    def wo_load(q, BF=BF):
        i, st = divmod(q, 5)
        if st < 4: A(f"buffer_load_dwordx4 {v(BF+20*i+4*st,4)}, v{R.L16}, s[{SWS}:{SWS+3}], s{sB2 if i else sB} offen offset:{st*1024} {cfg.get('wold', 'sc1')}")
        else:
            for e in range(2): A(f"buffer_load_dwordx2 {v(BF+20*i+16+2*e,2)}, v7, s[{SWS}:{SWS+3}], s{sB2 if i else sB} offen offset:{128*e} {cfg.get('wold', 'sc1')}")
        return [q] * (2 if st == 4 else 1)
    WL0 = cfg.get("wl0", 4)
    wq0 = []
    for q in range(WL0): wq0 += wo_load(q)
    if cfg.get("wts"): A("s_memtime s[72:73]")
    EW = cfg.get("ew", [4, 1, 0])
    FSUB = lambda f: 1 if f in (2, 3) else 0
    def wo_main(sub, ACC=ACC, BF=BF, vPW=vPW):
        keep = [f for f in range(5) if FSUB(f) == sub]
        order = [f for f in range(5) if f not in keep] + keep
        wq = list(wq0); nq = WL0
        for i in range(2):
            for st in range(5):
                A(f"s_waitcnt vmcnt({len(wq) - 1 - max(k for k, x in enumerate(wq) if x == 5*i+st)})")
                for _ in range(cfg.get("wlr", 1)):
                    if nq < 10: wq += wo_load(nq); nq += 1
                if cfg.get("wts") and (5 * i + st) in (0, 2, 4, 5, 7, 9): A(f"s_memtime s[{74+2*(0,2,4,5,7,9).index(5*i+st)}:{75+2*(0,2,4,5,7,9).index(5*i+st)}]")
                for f in order:
                    acc = v(ACC + 20 * i + 4 * f, 4)
                    A(f"v_mfma_f32_16x16x32_bf16 {acc}, {a(20*st+4*f,4)}, {v(BF+20*i+4*st,4)}, {acc if st else 0}")
                if i == 1:
                    f = order[st]
                    A(f"ds_write_b128 v{vPW}, {v(ACC+4*f,4)} offset:{(1 if FSUB(f) == sub else 2)*20480 + f*1024}")
        for f in order:
            if f not in keep: A(f"ds_write_b128 v6, {v(ACC+20+4*f,4)} offset:{f*1024}")
        for op in (load_wd_ops(2) + load_wd_ops(3))[:EW[0]]: emit(op)
        stamp(A, cfg, 5)
        if cfg.get("wts"):
            for k in range(7): A(f"s_sub_u32 s{73+2*k}, s{72+2*k}, s69")
            A("s_sub_u32 s71, s71, s69")
            A("v_mov_b32 v110, v0")
            A("v_mov_b32 v1, v3")
            stamp_flush(A, cfg, 13, 17, SWS, sWAVE, cfg.get("tswave", 0))
            A("s_mov_b64 exec, -1")
            A("v_mov_b32 v0, v110")
            A("v_mov_b32 v3, v1")
        return [ACC + 20 + 4 * f for f in keep]
    D = 16
    TRA, VB, VST = 1, 2, 3
    G1, Gh, rho, c0, c1 = T+2, T+3, T+4, T+5, T+6
    def wo_tail(n):
        own = wo_main(3 - n)
        XF = 56
        A("s_waitcnt lgkmcnt(0)")
        A("s_barrier")
        def mid():
            for op in (load_wd_ops(2) + load_wd_ops(3))[EW[0]:EW[0]+EW[1]]: emit(op)
            for i in range(2 * n):
                A(f"v_lshlrev_b32 v{XF+2*i}, 16, v{R.XRES+i}")
                A(f"v_and_b32 v{XF+2*i+1}, 0xffff0000, v{R.XRES+i}")
            for i in range(2 * n): A(f"v_pk_add_f32 {v(own[i//2]+2*(i%2),2)}, {v(own[i//2]+2*(i%2),2)}, {v(XF+2*i,2)}")
            A(f"v_mov_b32 v{T+2}, 0x3f803f80")
            A(f"v_lshlrev_b32 v{T+3}, 3, v0")
        reduce_sum(A, 3, D, RA, n, own, mid)
        src = lambda i: own[i // 2] + 2 * (i % 2)
        for i in range(4): A(f"v_cvt_pk_bf16_f32 v{D+i}, v{src(i)}, v{src(i)+1}")
        stores(A, [f"buffer_store_dwordx4 {v(D,4)}, v{vHP}, s[{SWS}:{SWS+3}], 0 offen"])
        if n == 3:
            E = D + 12
            for i in range(4): A(f"v_cvt_pk_bf16_f32 v{E+i}, v{src(4+i%2)}, v{src(4+i%2)+1}")
            for i in (4, 5): A(f"v_cvt_pk_bf16_f32 v{D+i}, v{src(i)}, v{src(i)+1}")
            A(f"v_permlane16_swap_b32 v{E}, v{E+2}")
            A(f"v_permlane16_swap_b32 v{E+1}, v{E+3}")
            stores(A, ["s_mov_b32 exec_lo, 0xffff", "s_mov_b32 exec_hi, 0xffff",
                       f"buffer_store_dwordx4 {v(E,4)}, v{vHS}, s[{SWS}:{SWS+3}], 0 offen", "s_mov_b64 exec, -1"])
        sm, sq = D + 8, D + 9
        for i in range(2 * n):
            A(f"v_dot2_f32_bf16 v{sm}, v{D+i}, v{T+2}, {'v%d' % sm if i else 0}")
            A(f"v_dot2_f32_bf16 v{sq}, v{D+i}, v{D+i}, {'v%d' % sq if i else 0}")
        for i in range(3): A(f"v_accvgpr_write_b32 a{A_RES(i)}, v{D+i}")
        for op in ("v_permlane16_swap_b32", "v_permlane32_swap_b32"):
            A(f"v_mov_b32 v{T}, v{sm}")
            A(f"v_mov_b32 v{T+1}, v{sq}")
            A(f"{op} v{sm}, v{T}")
            A(f"{op} v{sq}, v{T+1}")
            A(f"v_pk_add_f32 {v(sm,2)}, {v(sm,2)}, {v(T,2)}")
        A("s_mov_b64 exec, 0xffff")
        stores(A, [f"buffer_store_dwordx2 {v(sm,2)}, v{T+3}, s[{SWS}:{SWS+3}], s{sC} offen"])
        A("s_mov_b64 exec, -1")
        for op in (load_wd_ops(2) + load_wd_ops(3))[EW[0]+EW[1]:sum(EW)]: emit(op)
        for i in range(3, 2 * n): A(f"v_accvgpr_write_b32 a{A_RES(i)}, v{D+i}")
        A(f"v_bfe_u32 v{G1}, v0, 4, 1")
        A(f"v_lshrrev_b32 v{Gh}, 5, v0")
        A(f"v_bfe_u32 v{rho}, v0, 2, 2")
        A(f"v_and_b32 v{c0}, 1, v0")
        A(f"v_bfe_u32 v{c1}, v0, 1, 1")
        A(f"v_lshl_add_u32 v{TRA}, v{Gh}, 3, v{rho}")
        A(f"v_mul_u32_u24 v{TRA}, 192, v{TRA}")
        A(f"v_mul_u32_u24 v{c1}, {GU_UP}, v{c1}")
        A(f"v_add_u32 v{TRA}, v{TRA}, v{c1}")
        A(f"v_lshl_add_u32 v{TRA}, v{c0}, 4, v{TRA}")
        A(f"v_lshl_add_u32 v{TRA}, v{G1}, 3, v{TRA}")
    def h_dma_ops(c):
        return [[f"s_add_u32 m0, s{sHM0}, {H_BASE + (c%NHS)*16384 + k*1024}", f"s_add_u32 s{sT0}, s{sHSRC}, {(k//2)*80*256 + (k%2)*1024}",
                 f"buffer_load_dwordx4 v{R.L16}, s[{SWS}:{SWS+3}], s{sT0} offen sc1 lds"] +
                ([f"s_add_u32 s{sHSRC}, s{sHSRC}, 2048", f"s_cmp_eq_u32 s{sHSRC}, s{sTO}", f"s_cselect_b32 s{sT0}, {80*256}, 0",
                  f"s_sub_u32 s{sHSRC}, s{sHSRC}, s{sT0}"] if k == 3 else []) for k in range(4)]
    A(f"s_cmp_ge_u32 s{sWAVE}, 4")
    A("s_cbranch_scc1 L_gu_loader")
    wo_tail(3)

    L_CF = GU_MISC
    L_MB = GU_MISC + 3072
    L_RS = GU_MISC + 4096
    ACC, FR = 16, 0
    CFA = 0
    MB = T
    sTH, sFH = sKSRC, sVSRC
    A(f"s_and_b32 s{sTH}, s{sWAVE}, 1")
    A(f"s_lshr_b32 s{sFH}, s{sWAVE}, 1")
    A(f"s_mul_i32 s{sT0}, s{sFH}, 96")
    A(f"v_add_u32 v{TRA}, s{sT0}, v{TRA}")
    SEL, CSA = 40, 44
    A(f"v_lshrrev_b32 v{T}, 2, v0")
    A(f"v_xor_b32 v{T}, v{T}, v0")
    A(f"v_and_b32 v{T}, 4, v{T}")
    A(f"v_cmp_eq_u32 vcc, 0, v{T}")
    A(f"v_mov_b32 v{T}, 0x3f803f80")
    A(f"v_cndmask_b32 v{T}, 0, v{T}, vcc")
    for i in range(4): A(f"v_accvgpr_write_b32 a{SEL+i}, v{T}")
    TRH, VBH = 5, 6
    A(f"s_mul_i32 s{sT0}, s{sTH}, {32*192}")
    A(f"v_subrev_u32 v{TRH}, s{sT0}, v{TRA}")
    A(f"v_add_u32 v{TRA}, s{sT0}, v{TRA}")
    A(f"v_and_b32 v{VB}, 15, v0")
    A(f"v_lshlrev_b32 v{VB}, 4, v{VB}")
    A(f"v_lshl_add_u32 v{VB}, v{Gh}, 8, v{VB}")
    A(f"v_mul_u32_u24 v{VST}, {192*256}, v{G1}")
    A(f"v_add_u32 v{VST}, v{VST}, v{VB}")
    A(f"v_lshl_add_u32 v{VB}, v{G1}, 11, v{VB}")
    A(f"s_lshl_b32 s{sT0}, s{sTH}, 13")
    A(f"s_add_u32 s{sT0}, s{sT0}, {H_BASE}")
    A(f"v_add_u32 v{VB}, s{sT0}, v{VB}")
    A(f"s_lshl_b32 s{sT0}, s{sTH}, 10")
    A(f"v_subrev_u32 v{VBH}, s{sT0}, v{VB}")
    A(f"v_add_u32 v{VB}, s{sT0}, v{VB}")
    lq = []
    def gread(st, what):
        c, sl = divmod(st, 4)
        b = FR + 20 * (st % 2)
        if what[0] == "A":
            t = int(what[1])
            for u in range(2):
                A(f"ds_read_b64_tr_b16 {a(b+4*t+2*u,2)}, v{TRA if sl < 2 else TRH} offset:{(16*sl+4*u)*192 + 32*t}"); lq.append((st, what))
        else:
            i = int(what[1])
            A(f"ds_read_b128 {a(b+12+4*i,4)}, v{VB if sl < 2 else VBH} offset:{(c%NHS)*16384 + i*4096 + sl*512}"); lq.append((st, what))
    NPRE = cfg.get("npre", 0)
    if NPRE > 2: A(f"v_add_u32 v7, {2*GU_SLOT}, v{TRA}")
    units = [(c, sl) for c in range(NPRE) for sl in range(2)]
    def pre_read(k):
        c, sl = units[k]
        for t in range(3):
            for u in range(2):
                A(f"ds_read_b64_tr_b16 {a(FR+12*(k%3)+4*t+2*u,2)}, v{TRA if c < 2 else 7} offset:{(c%2)*GU_SLOT + (16*sl+4*u)*192 + 32*t}")
    for k in range(min(2, len(units))): pre_read(k)
    for k in range(len(units)):
        if k + 2 < len(units): pre_read(k + 2)
        A(f"s_waitcnt lgkmcnt({6 * min(2, len(units) - 1 - k)})")
        for t in range(3):
            A(f"v_mfma_f32_16x16x32_bf16 {a(CSA+4*t,4)}, {a(SEL,4)}, {a(FR+12*(k%3)+4*t,4)}, {a(CSA+4*t,4) if k else 0}")
    for w in ("A0", "A1", "A2"): gread(0, w)
    A(f"s_mul_i32 s{sT0}, s{sFH}, 1536")
    A(f"s_add_u32 s{sT0}, s{sT0}, {L_CF}")
    A(f"v_lshlrev_b32 v{T+6}, 3, v0")
    A(f"v_add_u32 v{T+6}, s{sT0}, v{T+6}")
    A(f"v_and_b32 v{T+7}, 31, v0")
    A(f"v_lshlrev_b32 v{T+7}, 3, v{T+7}")
    A(f"s_lshl_b32 s{sT0}, s{sTH}, 9")
    A(f"s_add_u32 s{sT0}, s{sT0}, {L_MB}")
    A(f"v_add_u32 v{T+7}, s{sT0}, v{T+7}")
    stamp(A, cfg, 6)
    sync(A, 1, 0, True, EW[2], rb=[(M8, [f"buffer_load_dword v7, v{vHP}, s[{SWS}:{SWS+3}], 0 offen"]),
                               (0x0000010100000101, [f"buffer_load_dword v7, v{vHS}, s[{SWS}:{SWS+3}], 0 offen"])])
    stamp(A, cfg, 7)
    if cfg.get("gts"): A("s_mov_b32 s90, s75")
    for op in h_dma_ops(0)[:2]: emit(op)
    A("s_waitcnt vmcnt(0)")
    A("s_barrier")
    for w in ("B0", "B1"): gread(0, w)
    wd3 = (load_wd_ops(2) + load_wd_ops(3))[sum(EW):]
    def lwait(tag): A(f"s_waitcnt lgkmcnt({min(15, len(lq) - 1 - max(i for i, x in enumerate(lq) if x == tag))})")
    for st in range(40):
        c, sl = divmod(st, 4)
        nxt = st + 1 < 40
        bar = sl == 3 and nxt
        if bar:
            A("s_waitcnt lgkmcnt(0)")
            if cfg.get("gts") == 2: A(f"s_memtime s[{60+2*c}:{61+2*c}]")
            A("s_barrier")
            if cfg.get("gts") == 1: A(f"s_memtime s[{60+2*c}:{61+2*c}]")
            d = GU_SLOT if (c + 1) % NWS else -(NWS - 1) * GU_SLOT
            A(f"v_add_u32 v{TRA}, {d & 0xffffffff}, v{TRA}")
            A(f"v_add_u32 v{TRH}, {d & 0xffffffff}, v{TRH}")
        if st == 39:
            A("s_waitcnt lgkmcnt(0)")
            A("s_barrier")
            bar = True
            for k in range(3): A(f"ds_read_b64 {a(CFA+2*k,2)}, v{T+6} offset:{512*k}")
        b = FR + 20 * (st % 2)
        plan = ((0, 0, "B1", ("A0",)), (1, 0, None, ("B0", "B1")), (0, 1, "A2", ("A1",)), (1, 1, None, ("A2",)), (0, 2, None, ()), (1, 2, None, ()))
        for (i, t, wt_, rd) in plan:
            if wt_ and not bar and not (st == 0 and wt_ == "A2"): lwait((st, wt_))
            acc = v(ACC + 48 * i + 16 * t, 16)
            if cfg.get("x16"):
                r0 = ACC + 48 * i + 16 * t + 8 * (st % 2)
                A(f"v_mfma_f32_16x16x32_bf16 {v(r0,4)}, {a(b+4*t,4)}, {a(b+12+4*i,4)}, {v(r0,4) if st > 1 else 0}")
                if nxt:
                    for w in rd[:1]: gread(st + 1, w)
                A(f"v_mfma_f32_16x16x32_bf16 {v(r0+4,4)}, {a(b+4*((t+1)%3),4)}, {a(b+12+4*(1-i),4)}, {v(r0+4,4) if st > 1 else 0}")
                if nxt:
                    for w in rd[1:]: gread(st + 1, w)
            else:
                A(f"v_mfma_f32_32x32x16_bf16 {acc}, {a(b+4*t,4)}, {a(b+12+4*i,4)}, {acc if st else 0}")
                if nxt:
                    for w in rd: gread(st + 1, w)
            if sl < 2 and i == 1 and c >= NPRE and not cfg.get("gu_nocs"):
                A(f"v_mfma_f32_16x16x32_bf16 {a(CSA+4*t,4)}, {a(SEL,4)}, {a(b+4*t,4)}, {a(CSA+4*t,4) if st else 0}")
            if st == 36 and t == 2:
                A(f"ds_read_b64 {v(MB+2*i,2)}, v{T+7} offset:{256*i}"); lq.append("mb")
            if st == 38 and i == 1:
                x = T + 4
                A(f"v_accvgpr_read_b32 v7, a{CSA+4*t}")
                A(f"v_cvt_pk_bf16_f32 v{x+1}, v7, v7")
                A(f"v_and_b32 v{x+1}, 0xffff0000, v{x+1}")
                A(f"v_sub_f32 v7, v7, v{x+1}")
                A(f"v_cvt_pk_bf16_f32 v{x}, v{x+1}, v7")
                A(f"v_lshrrev_b32 v{x+1}, 16, v{x+1}")
                A(f"ds_write_b64 v{TRA}, {v(x,2)} offset:{512*t}"); lq.append("w")
        if st >= cfg.get('cwd0', 30) and wd3: emit(wd3.pop(0))
        if st == 37:
            A(f"s_mul_i32 s{sT0}, s{sFH}, 1536")
            A(f"s_lshl_b32 s{sT1}, s{sTH}, 8")
            A(f"s_add_u32 s{sT0}, s{sT0}, s{sT1}")
            A(f"s_add_u32 s{sT0}, s{sT0}, {L_CF}")
            A(f"v_and_b32 v{TRA}, 31, v0")
            A(f"v_lshlrev_b32 v{TRA}, 3, v{TRA}")
            A(f"v_add_u32 v{TRA}, s{sT0}, v{TRA}")
    A("s_waitcnt lgkmcnt(0)")
    for t in range(3):
        for i in range(2):
            acc = v(ACC + 48 * i + 16 * t, 16)
            A(f"v_mfma_f32_32x32x8_bf16 {acc}, {a(CFA+2*t,2)}, {v(MB+2*i,2)}, {acc}")
    if cfg.get("gts"):
        A("s_waitcnt lgkmcnt(0)")
        for c in range(9): A(f"s_sub_u32 s{(91,92,93,94,95,96,86,88,89)[c]}, s{60+2*c}, s90")
    stamp(A, cfg, 8)
    A(f"s_and_b32 s{sB}, s{sTOK16}, -8")
    A(f"s_lshl_b32 s{sT0}, s{sTH}, 2")
    A(f"s_add_u32 s{sB}, s{sB}, s{sT0}")
    A(f"s_mul_i32 s{sB}, s{sB}, {192*256}")
    A(f"s_mul_i32 s{sT0}, s{sJ}, {12*256}")
    A(f"s_add_u32 s{sB}, s{sB}, s{sT0}")
    A(f"s_mul_i32 s{sT0}, s{sFH}, {6*256}")
    A(f"s_add_u32 s{sB}, s{sB}, s{sT0}")
    A(f"s_add_u32 s{sB}, s{sB}, {hex(WS_HID)}")
    A(f"s_add_u32 s{sT2}, s{sB}, {2*192*256}")
    def gu_epi(sc):
        for (i, t) in ((0, 0), (1, 0), (0, 1), (1, 1), (0, 2), (1, 2)):
            r = ACC + 48 * i + 16 * t
            for q in range(2):
                for b in range(4): A(f"v_max_f32 v{r+8*q+b}, 0, v{r+8*q+b}")
                for b in (0, 2): A(f"v_pk_mul_f32 {v(r+8*q+b,2)}, {v(r+8*q+b,2)}, {v(r+8*q+4+b,2)}")
            A(f"v_cvt_pk_bf16_f32 v{r}, v{r}, v{r+1}")
            A(f"v_cvt_pk_bf16_f32 v{r+1}, v{r+2}, v{r+3}")
            A(f"v_cvt_pk_bf16_f32 v{r+2}, v{r+8}, v{r+9}")
            A(f"v_cvt_pk_bf16_f32 v{r+3}, v{r+10}, v{r+11}")
            A(f"buffer_store_dwordx4 {v(r,4)}, v{VST}, s[{SWS}:{SWS+3}], s{sT2 if i else sB} offen offset:{512*t} {sc}")
    if cfg.get("wt", 2) & 2:
        gu_epi("sc1")
    else:
        A(f"s_cmp_lg_u32 s{sFAST}, 0")
        A("s_nop 4")
        A("s_cbranch_scc0 L_gu_epi_slow")
        gu_epi("")
    A.label("L_gu_epi_done")
    stamp(A, cfg, 9)
    A("s_branch L_gu_done")
    if not cfg.get("wt", 2) & 2:
        A.label("L_gu_epi_slow")
        gu_epi("sc1")
        A("s_branch L_gu_epi_done")

    A.label("L_gu_loader")
    WDL = cfg.get("wdl", "late")
    wo_tail(2)
    STV = 72
    A(f"v_and_b32 v3, 15, v0")
    A(f"v_lshlrev_b32 v3, 3, v3")
    A(f"v_lshl_add_u32 v3, v{G1}, 11, v3")
    A(f"v_lshl_add_u32 v3, v{Gh}, 10, v3")
    A(f"s_lshl_b32 s{sB}, s{sGT}, 11")
    A(f"s_add_u32 s{sB}, s{sB}, {hex(WS_ST2)}")
    A(f"s_waitcnt vmcnt({EW[2]})")
    readback(A, [(M8, [f"buffer_load_dword v7, v{vHP}, s[{SWS}:{SWS+3}], 0 offen"])])
    A("s_barrier")
    wdl = [op for stp in range(2, 8) for op in load_wd_ops(stp)][sum(EW):]
    WPL = cfg.get("wpl", [0,0,0,0,0,0,0,0,5,6,8,6])
    assert sum(WPL) == 30 - sum(EW)
    for _ in range(WPL[0]): emit(wdl.pop(0))

    A("s_barrier")
    ops = []
    for op in h_dma_ops(0)[2:] + h_dma_ops(1): emit(op)
    ops += [("h", 0)] * 2 + [("h", 1)] * 4
    if cfg.get("st_ld", 0) == -1:
        for i in range(8): A(f"buffer_load_dwordx2 {v(STV+2*i,2)}, v3, s[{SWS}:{SWS+3}], s{sB} offen offset:{128*i} sc1")
        ops += ["st"] * 8
    A(f"s_setprio {cfg.get('lprio', 0)}")
    for c in range(10):
        need = [("h", c)] + ([("w", c)] if c >= 4 else [])
        A(f"s_waitcnt vmcnt({len(ops) - 1 - max(i for i, o in enumerate(ops) if o in need)})")
        A("s_barrier")
        vops = []
        if c + 2 < 10:
            vops += h_dma_ops(c + 2); ops += [("h", c + 2)] * 4
        if c + 3 < 10 and c > 0:
            vops += gu_dma_ops(c + 3); ops += [("w", c + 3)] * 6
        if c == cfg.get("st_ld", 0):
            vops += [[f"buffer_load_dwordx2 {v(STV+2*i,2)}, v3, s[{SWS}:{SWS+3}], s{sB} offen offset:{128*i} sc1"] for i in range(8)]
            ops += ["st"] * 8
        for _ in range(WPL[c + 1]):
            vops.append(wdl.pop(0)); ops.append("d")
        for op in vops:
            if cfg.get("noadv"): op = op[:3]
            if cfg.get("nowdl") and "a[" in op[-1] + op[1]: continue
            emit(op)
        if c == cfg.get('st_at', 8):
            A(f"s_waitcnt vmcnt({min(63, len(ops) - 1 - max(i for i, o in enumerate(ops) if o == 'st'))})")
            A(f"s_setprio {cfg.get('sprio', 3)}")
            for i in range(1, 8):
                A(f"v_add_f32 v{STV}, v{STV}, v{STV+2*i}")
                A(f"v_add_f32 v{STV+1}, v{STV+1}, v{STV+2*i+1}")
            for r in (STV, STV + 1):
                A(f"v_mov_b32 v{STV+2}, v{r}")
                A(f"v_permlane32_swap_b32 v{r}, v{STV+2}")
                A(f"v_add_f32 v{r}, v{r}, v{STV+2}")
            mean, rs = STV, STV + 1
            A(f"v_mul_f32 v{mean}, {fhex(1/640)}, v{mean}")
            A(f"v_mul_f32 v{rs}, {fhex(1/640)}, v{rs}")
            A(f"v_fma_f32 v{rs}, -v{mean}, v{mean}, v{rs}")
            A(f"v_max_f32 v{rs}, 0, v{rs}")
            A(f"v_add_f32 v{rs}, {fhex(1e-5)}, v{rs}")
            A(f"v_rcp_f32 v{rs}, v{rs}")
            A(f"v_cvt_pk_bf16_f32 v{STV+2}, -v{mean}, -v{mean}")
            A(f"v_and_b32 v{STV+3}, 0xffff0000, v{STV+2}")
            A(f"v_sub_f32 v{STV+3}, -v{mean}, v{STV+3}")
            A(f"v_cvt_pk_bf16_f32 v{STV+3}, v{STV+3}, 0")
            A(f"v_and_b32 v{STV+4}, 31, v0")
            A(f"s_lshl_b32 s{sT0}, s{sLW}, 5")
            A(f"v_add_u32 v{STV+4}, s{sT0}, v{STV+4}")
            A(f"v_lshlrev_b32 v{STV+5}, 3, v{STV+4}")
            A(f"v_lshlrev_b32 v{STV+4}, 2, v{STV+4}")
            A(f"v_add_u32 v{STV+5}, {L_MB}, v{STV+5}")
            A(f"v_add_u32 v{STV+4}, {L_RS}, v{STV+4}")
            A(f"ds_write_b64 v{STV+5}, {v(STV+2,2)}")
            A(f"ds_write_b32 v{STV+4}, v{rs}")
            A("s_setprio 0")
        if c == cfg.get('st_at', 8): A("s_waitcnt lgkmcnt(0)")
    A("s_barrier")
    for op in wdl: emit(op)
    if cfg.get("wbl2", 0) & 1:
        A(f"s_add_u32 s{sT0}, s{sM}, s{sWAVE}")
        A(f"s_cmp_lg_u32 s{sT0}, 4")
        A("s_cbranch_scc1 L_nowb1")
        A("buffer_wbl2 sc1")
        A.label("L_nowb1")
    A("s_setprio 0")
    A.label("L_gu_done")

    NBD = cfg.get("nbd", 6)
    BF, ACC = 16, 72
    vXP, vXS, RA, vRS = 1, 2, 5, T + 7
    sBT = (sKSRC, sVSRC, sKBASE, sVBASE)
    vPW = (T + 2, T + 3, T + 4, None, T + 5, T + 6, T, T + 1)
    A(f"s_lshl_b32 s{sT1}, s{sWDRAW}, 10")
    A(f"s_add_u32 s{sT1}, s{sT1}, {hex(WS_HID)}")
    for k in range(4):
        A(f"s_xor_b32 s{sT0}, s{sLW}, {3-k}")
        A(f"s_add_u32 s{sBT[k]}, s{sT0}, s{sTOK16}")
        A(f"s_mul_i32 s{sBT[k]}, s{sBT[k]}, {192*256}")
        A(f"s_add_u32 s{sBT[k]}, s{sBT[k]}, s{sT1}")
        A(f"s_mul_i32 s{sT0}, s{sT0}, 5120")
        A(f"s_add_u32 s{sT0}, s{sT0}, {(6-k)*20480}")
        if k < 2:
            A(f"v_add_u32 v{vPW[4+k]}, s{sT0}, v{R.L16}")
            A(f"v_subrev_u32 v{vPW[k]}, {4*20480}, v{vPW[4+k]}")
        else:
            A(f"s_mov_b32 s{97+k-2}, s{sT0}")
    A(f"s_and_b32 s{sT0}, s{sTOK16}, 7")
    A(f"s_add_u32 s{sT0}, s{sT0}, s{sLW}")
    A(f"s_lshl_b32 s{sT0}, s{sT0}, 6")
    A(f"s_add_u32 s{sT0}, s{sT0}, {L_RS}")
    A(f"v_and_b32 v{vRS}, 15, v0")
    A(f"v_lshlrev_b32 v{vRS}, 2, v{vRS}")
    A(f"v_add_u32 v{vRS}, s{sT0}, v{vRS}")
    A(f"ds_read_b32 v{vRS}, v{vRS}")
    addr_rowmajor(A, vXP, vXS, T)
    reduce_addr(A, 7, 0, RA)
    A("s_waitcnt lgkmcnt(0)")
    A(f"s_cmp_ge_u32 s{sWAVE}, 4")
    A("s_cbranch_scc1 L_dn_nw")
    if cfg.get("rb", 0) & 2:
        A("s_mov_b32 exec_lo, 0x01010101")
        A("s_mov_b32 exec_hi, 0x01010101")
        nrb = cfg.get("nrb", 6)
        for k, (i, t) in enumerate(((0, 0), (1, 0), (0, 1), (1, 1), (0, 2), (1, 2))):
            if k < nrb:
                A("s_waitcnt vmcnt(5)")
                A(f"buffer_load_dword v59, v{VST}, s[{SWS}:{SWS+3}], s{sT2 if i else sB} offen offset:{512*t} sc1")
        if nrb < 6: A(f"s_waitcnt vmcnt({nrb})")
        A("s_mov_b64 exec, -1")
    else:
        A("s_waitcnt vmcnt(0)")
    A.label("L_dn_nw")
    sync(A, 2, 0, True, 63)
    stamp(A, cfg, 10)
    BSL = lambda i: 16 + 4 * i if i < 6 else 60 + 4 * (i - 6)
    def dn_main(NS, NBD, sub):
        keep = [f for f in range(5) if FSUB(f) == sub]
        order = [f for f in range(5) if f not in keep] + keep
        def loadBd(q):
            k, st = divmod(q, NS)
            if st == 4: A(f"s_add_u32 s{sBT[k]}, s{sBT[k]}, 4096")
            A(f"buffer_load_dwordx4 {v(BSL(q%NBD),4)}, v{R.L16}, s[{SWS}:{SWS+3}], s{sBT[k]} offen offset:{(st%4)*1024} sc1")
        NI = min(NBD, cfg.get("nbi", 4))
        for q in range(NI): loadBd(q)
        issued = NI
        A(f"v_add_u32 v{vPW[6]}, s97, v{R.L16}")
        A(f"v_subrev_u32 v{vPW[2]}, {4*20480}, v{vPW[6]}")
        A(f"v_add_u32 v{vPW[7]}, s98, v{R.L16}")
        for q in range(NI, NBD): loadBd(q)
        issued = NBD
        pend = []
        for q in range(4 * NS):
            k, st = divmod(q, NS)
            A(f"s_waitcnt vmcnt({issued - 1 - q})")
            for f in order:
                acc = v(ACC + 20 * (k % 2) + 4 * f, 4)
                A(f"v_mfma_f32_16x16x32_bf16 {acc}, {WD(st, f)}, {v(BSL(q%NBD),4)}, {acc if st else 0}")
            if issued < 4 * NS:
                loadBd(issued); issued += 1
            for _ in range(2 if NS == 4 else 1):
                if pend: A(pend.pop(0))
            if st == NS - 1:
                assert not pend
                pend = [f"ds_write_b128 v{vPW[k if f in keep else 4+k]}, {v(ACC+20*(k%2)+4*f,4)} offset:{f*1024}" for f in order if k < 3 or f not in keep]
        for x in pend: A(x)
        stamp(A, cfg, 11)
        return [ACC + 20 + 4 * f for f in keep]
    def dn_tail(n, own):
        DD = 8
        A(f"v_mov_b32 v3, v{vRS}")
        A("s_waitcnt lgkmcnt(0)")
        A("s_barrier")
        reduce_sum(A, 7, DD, RA, n, own)
        for i in range(2 * n):
            r = own[i // 2] + 2 * (i % 2)
            A(f"v_accvgpr_read_b32 v{T+2}, a{A_RES(i)}")
            A(f"v_lshlrev_b32 v{T}, 16, v{T+2}")
            A(f"v_and_b32 v{T+1}, 0xffff0000, v{T+2}")
            A(f"v_fma_f32 v{r}, v{r}, v3, v{T}")
            A(f"v_fma_f32 v{r+1}, v{r+1}, v3, v{T+1}")
            A(f"v_cvt_pk_bf16_f32 v{D+i}, v{r}, v{r+1}")
            if i == 3: A(f"buffer_store_dwordx4 {v(D,4)}, v{vXP}, s[{SO}:{SO+3}], 0 offen {cfg.get('ost', '')}")
        if n == 3: A(f"buffer_store_dwordx2 {v(D+4,2)}, v{vXS}, s[{SO}:{SO+3}], 0 offen {cfg.get('ost', '')}")
    A(f"s_cmp_ge_u32 s{sWAVE}, 4")
    A("s_cbranch_scc1 L_dn_b")
    dn_tail(3, dn_main(4, cfg.get("nbd_c", 5), 0))
    A("s_branch L_dn_e")
    A.label("L_dn_b")
    A(f"s_setprio {cfg.get('dprio', 1)}")
    dn_tail(2, dn_main(8, cfg.get("nbd_l", 8), 1))
    A.label("L_dn_e")
    stamp(A, cfg, 12)
    if cfg.get("gts"):
        for c in range(9):
            A(f"s_mov_b32 s{60+2*c}, s{(91,92,93,94,95,96,86,88,89)[c]}")
            A(f"s_mov_b32 s{61+2*c}, s{(91,92,93,94,95,96,86,88,89)[c]}")
    stamp_flush(A, cfg, 13, 4, SWS, sWAVE, cfg.get('tswave', 0))
    if cfg.get("diag"):
        da, db = cfg["diag"]
        A("s_cmp_ge_u32 s2, 8" if cfg.get("fixed") else "s_cmp_lg_u32 s2, 16")
        A("s_cbranch_scc1 L_end")
        A(f"s_cmp_lg_u32 s{sWAVE}, 0")
        A("s_cbranch_scc1 L_end")
        if da == -1:
            A("v_mov_b32 v1, 0")
            A(f"s_mov_b32 s{sT0}, {hex(WS_TS)}")
            A(f"buffer_load_dword v2, v1, s[{SWS}:{SWS+3}], s{sT0} offen")
            A("s_waitcnt vmcnt(0)")
            A(f"v_readfirstlane_b32 s{sT0}, v2")
        else:
            A(f"s_mov_b32 s{sT0}, s{60+2*da}")
        if cfg.get("fixed"):
            A(f"s_add_u32 s{sT0}, s{sT0}, {cfg['fixed']}")
            if cfg.get("wb"):
                A("buffer_wbl2 sc1")
        else:
            A(f"s_sub_u32 s{sT0}, s{60+2*db}, s{sT0}")
            A(f"s_min_u32 s{sT0}, s{sT0}, 20000")
            A(f"s_lshl_b32 s{sT0}, s{sT0}, 2")
            A(f"s_add_u32 s{sT0}, s{sT0}, s{60+2*12}")
        A.label("L_spin")
        A("s_memrealtime s[56:57]")
        A("s_waitcnt lgkmcnt(0)")
        A(f"s_sub_u32 s{sT1}, s56, s{sT0}")
        A(f"s_cmp_lt_i32 s{sT1}, 0")
        A("s_cbranch_scc1 L_spin")
    A.label("L_end")
    A("s_endpgm")

    A.label("L_attn_slow")
    A(f"v_subrev_u32 v{R.VA}, {KV_BASE + 1280}, v{R.VA}")
    A(f"v_mov_b32 v{R.Q2+1}, 0")
    A(f"v_mov_b32 v{T}, 0xff800000")
    A(f"s_mov_b32 s{sT0}, s{sKBASE}")
    A(f"s_add_u32 s{sT1}, s{sKBASE}, {PAIR_STRIDE}")
    A.label("L_attn_slow1")
    A(f"buffer_load_dwordx4 {v(R.K1,4)}, v{R.F2S+1}, s[{SWS}:{SWS+3}], s{sT0} offen")
    A(f"buffer_load_dword v{R.K2}, v{R.F2S}, s[{SWS}:{SWS+3}], s{sT0} offen")
    A("s_waitcnt vmcnt(0)")
    A(f"v_mfma_f32_32x32x16_bf16 {v(S0,16)}, {v(R.K1,4)}, {v(R.Q1,4)}, 0")
    A(f"v_mfma_f32_32x32x8_bf16 {v(S0,16)}, {v(R.K2,2)}, {v(R.Q2,2)}, {v(S0,16)}")
    max16(A, T, S0, False)
    A(f"s_add_u32 s{sT0}, s{sT0}, 2560")
    A(f"s_cmp_lt_u32 s{sT0}, s{sT1}")
    A("s_cbranch_scc1 L_attn_slow1")
    xhalf_max(A, T, T+1)
    set_shift(A, T)
    for k in range(16): A(f"v_mov_b32 v{R.O+k}, 0")
    A(f"s_mov_b32 s{sT0}, s{sKBASE}")
    A(f"s_mov_b32 s{sT2}, s{sVBASE}")
    A.label("L_attn_slow2")
    A(f"buffer_load_dwordx4 {v(R.K1,4)}, v{R.F2S+1}, s[{SWS}:{SWS+3}], s{sT0} offen")
    A(f"buffer_load_dword v{R.K2}, v{R.F2S}, s[{SWS}:{SWS+3}], s{sT0} offen")
    A(f"s_mov_b64 exec, s[{sVMASK}:{sVMASK+1}]")
    A(f"buffer_load_dwordx4 {v(R.V1,4)}, v{R.VA}, s[{SWS}:{SWS+3}], s{sT2} offen")
    A(f"buffer_load_dwordx4 {v(R.V2,4)}, v{R.VA}, s[{SWS}:{SWS+3}], s{sT2} offen offset:640")
    A("s_mov_b64 exec, -1")
    A("s_waitcnt vmcnt(0)")
    A(f"v_mfma_f32_32x32x16_bf16 {v(S0,16)}, {v(R.K1,4)}, {v(R.Q1,4)}, 0")
    A(f"v_mfma_f32_32x32x8_bf16 {v(S0,16)}, {v(R.K2,2)}, {v(R.Q2,2)}, {v(S0,16)}")
    for k in range(16): A(f"v_exp_f32 v{S0+k}, v{S0+k}")
    for k in range(8): A(f"v_cvt_pk_bf16_f32 v{R.P+k}, v{S0+2*k}, v{S0+2*k+1}")
    A(f"v_mfma_f32_32x32x16_bf16 {v(R.O,16)}, {v(R.V1,4)}, {v(R.P,4)}, {v(R.O,16)}")
    A(f"v_mfma_f32_32x32x16_bf16 {v(R.O,16)}, {v(R.V2,4)}, {v(R.P+4,4)}, {v(R.O,16)}")
    A(f"s_add_u32 s{sT0}, s{sT0}, 2560")
    A(f"s_add_u32 s{sT2}, s{sT2}, 1280")
    A(f"s_cmp_lt_u32 s{sT0}, s{sT1}")
    A("s_nop 7")
    A("s_cbranch_scc1 L_attn_slow2")
    A(f"v_rcp_f32 v{T}, v{R.O+10}")
    norm()
    A("s_nop 1")
    A("s_branch L_attn_norm")
    A.label("L_code_end")
    return dict(name=name, grid=256, block=512, lds=163840, desc=kernel_desc(name, 256, NV, 102))
```

```python
from common import *

def gen_qkv(A, cfg):
    name = "qkv_kernel"
    kstart(A, name)
    SX, SW, SWS, SP, SD = 4, 8, 12, 36, 48
    sWAVE, sTB, sFG, sXO, sXLIM, sWO, sT0, sT1, sT2, sM0 = 16, 17, 18, 19, 20, 21, 22, 23, 24, 25
    sTILE, sBASE, sQS, sC0, sID = 26, 27, 28, 30, 31
    vTR = 4
    vT = 8
    SLOT = 32768
    CSL = SLOT
    STL = SLOT + 2048
    A("s_cmp_ge_u32 s2, 256")
    A("s_cbranch_scc1 L_qkv_end")
    A("s_load_dwordx4 s[4:7], s[0:1], 0")
    A("s_load_dwordx4 s[48:51], s[0:1], 64")
    A("s_load_dwordx2 s[32:33], s[0:1], 16")
    A("s_load_dwordx2 s[34:35], s[0:1], 48")
    stamp(A, cfg, 0)
    if cfg.get("diag"): A("s_memrealtime s[56:57]")
    A(f"v_lshrrev_b32 v{vT}, 6, v0")
    A(f"s_cmp_lt_u32 s2, 16")
    A(f"v_readfirstlane_b32 s{sWAVE}, v{vT}")
    A("s_cbranch_scc1 L_qkv_helper")
    A(f"v_and_b32 v0, 63, v0")
    A(f"s_sub_u32 s{sID}, s2, 16")
    A(f"s_and_b32 s{sT0}, s{sID}, 7")
    A(f"s_lshr_b32 s{sT1}, s{sID}, 3")
    A(f"s_lshr_b32 s{sT2}, s{sT0}, 2")
    A(f"s_mul_i32 s{sT2}, s{sT2}, 30")
    A(f"s_add_u32 s{sT1}, s{sT1}, s{sT2}")
    A(f"s_lshr_b32 s{sFG}, s{sT1}, 2")
    A(f"s_and_b32 s{sT1}, s{sT1}, 3")
    A(f"s_and_b32 s{sT2}, s{sT0}, 3")
    A(f"s_lshl_b32 s{sT2}, s{sT2}, 2")
    A(f"s_add_u32 s{sTB}, s{sT2}, s{sT1}")
    A(f"s_cmp_ge_u32 s{sWAVE}, 4")
    if cfg.get("ctouch", 2) == 2:
        A("s_cbranch_scc1 L_qkv_noct")
        code_touch_setup(A, 46, "qkv_kernel", True)
        A(f"s_lshr_b32 s{sT1}, s{sID}, 3")
        A(f"s_lshl_b32 s{sT1}, s{sT1}, 2")
        A(f"s_add_u32 s{sT1}, s{sT1}, s{sWAVE}")
        A(f"s_lshl_b32 s{sT1}, s{sT1}, 7")
        A(f"v_mul_u32_u24 v{vT+1}, {120*128}, v0")
        A(f"v_add_u32 v{vT+1}, s{sT1}, v{vT+1}")
        A(f"v_min_u32 v{vT+1}, L_code_end-qkv_kernel-4, v{vT+1}")
        A("s_mov_b64 exec, 31")
        A(f"global_load_dword v{vT+7}, v{vT+1}, s[46:47]")
        A("s_mov_b64 exec, -1")
        A("s_branch L_qkv_compute")
        A.label("L_qkv_noct")
        i_split = len(A.items)
        A.label("L_qkv_compute")
    elif cfg.get("lfirst", 1):
        A("s_cbranch_scc0 L_qkv_compute")
        i_split = len(A.items)
        A.label("L_qkv_compute")
    else:
        A("s_cbranch_scc1 L_qkv_loader")

    def rebase(c):
        def base(c): return ((c % 5) // 2) * 2 * SLOT
        return (base(c) - base(c - 1) if c else 0), (c % 5) * SLOT - base(c)

    STF = cfg.get("qkv_st", "sc1")
    HS = 1
    ACC, vBA, vADR, vSA, MB, RS = 16, 2, 80, 84, 88, 96
    FR, ONE, CSA = 0, 64, 68
    VO, PF, L16 = 16, 24, 2
    sU, sPSRC, sPDST, sPLDS = 40, 41, 42, 43
    def prep_setup():
        A(f"s_mul_i32 s{sU}, s{sWAVE}, 240")
        A(f"s_add_u32 s{sU}, s{sU}, s{sID}")
        A(f"v_lshlrev_b32 v{L16}, 4, v0")
        A(f"s_lshl_b32 s{sPLDS}, s{sWAVE}, 13")
        for jj in range(5):
            A(f"v_add_u32 v{vT}, {64*jj}, v0")
            A(f"v_mul_u32_u24 v{PF+jj}, 6554, v{vT}")
            A(f"v_lshrrev_b32 v{PF+jj}, 16, v{PF+jj}")
            A(f"v_mul_u32_u24 v{vT+1}, 10, v{PF+jj}")
            A(f"v_sub_u32 v{vT}, v{vT}, v{vT+1}")
            A(f"v_lshlrev_b32 v{VO+jj}, 4, v{vT}")
        A(f"s_cmp_ge_u32 s{sU}, 384")
        A("s_cbranch_scc1 L_qkv_pwo")
        srd(A, SP, 34, 1536 * 640 * 2)
        A(f"s_mul_i32 s{sT0}, s{sU}, 1366")
        A(f"s_lshr_b32 s{sT0}, s{sT0}, 16")
        A(f"s_mul_i32 s{sT1}, s{sT0}, 48")
        A(f"s_sub_u32 s{sT1}, s{sU}, s{sT1}")
        A(f"s_mul_i32 s{sPSRC}, s{sT1}, {32*1280}")
        A(f"s_mul_i32 s{sT0}, s{sT0}, 160")
        A(f"s_add_u32 s{sPSRC}, s{sPSRC}, s{sT0}")
        A(f"s_mul_i32 s{sPDST}, s{sU}, 5120")
        A(f"s_add_u32 s{sPDST}, s{sPDST}, {hex(WS_WD)}")
        A("s_branch L_qkv_pgo")
        A.label("L_qkv_pwo")
        srd(A, SP, 32, 640 * 640 * 2)
        A(f"s_sub_u32 s{sU}, s{sU}, 384")
        A(f"s_mul_i32 s{sT0}, s{sU}, 3277")
        A(f"s_lshr_b32 s{sT0}, s{sT0}, 16")
        A(f"s_mul_i32 s{sT1}, s{sT0}, 20")
        A(f"s_sub_u32 s{sT1}, s{sU}, s{sT1}")
        A(f"s_mul_i32 s{sPSRC}, s{sT0}, 160")
        A(f"s_mul_i32 s{sT0}, s{sT1}, 205")
        A(f"s_lshr_b32 s{sT0}, s{sT0}, 10")
        A(f"s_mul_i32 s{sT2}, s{sT0}, 5")
        A(f"s_sub_u32 s{sT1}, s{sT1}, s{sT2}")
        A(f"s_mul_i32 s{sT0}, s{sT0}, {160*1280}")
        A(f"s_add_u32 s{sPSRC}, s{sPSRC}, s{sT0}")
        A(f"s_mul_i32 s{sPDST}, s{sU}, 5120")
        A(f"s_add_u32 s{sPDST}, s{sPDST}, {hex(WS_WO)}")
        A(f"s_cmp_ge_u32 s{sU}, 160")
        A(f"s_cselect_b32 s{sPDST}, {hex(WS_SIZE)}, s{sPDST}")
        A(f"s_cselect_b32 s{SP+2}, 0, s{SP+2}")
        A(f"s_cmp_eq_u32 s{sT1}, 4")
        A("s_cbranch_scc1 L_qkv_pleft")
        A(f"s_mul_i32 s{sT1}, s{sT1}, {40*1280}")
        A(f"s_add_u32 s{sPSRC}, s{sPSRC}, s{sT1}")
        for jj in range(5):
            A(f"v_lshrrev_b32 v{vT}, 4, v{PF+jj}")
            A(f"v_lshl_add_u32 v{PF+jj}, v{vT}, 2, v{PF+jj}")
        A("s_branch L_qkv_pgo")
        A.label("L_qkv_pleft")
        for jj in range(5):
            k = PF + jj
            A(f"v_lshrrev_b32 v{vT}, 2, v{k}")
            A(f"v_lshl_add_u32 v{k}, v{vT}, 4, v{k}")
            A(f"v_add_u32 v{k}, 16, v{k}")
        A.label("L_qkv_pgo")
        for jj in range(5):
            A(f"v_mul_u32_u24 v{vT}, 1280, v{PF+jj}")
            A(f"v_add_u32 v{VO+jj}, v{VO+jj}, v{vT}")
        A(f"v_lshrrev_b32 v{vT}, 4, v0")
        A(f"v_bfe_u32 v{vT+1}, v0, 2, 2")
        A(f"v_lshl_add_u32 v{vT}, v{vT}, 3, v{vT+1}")
        A(f"v_mul_u32_u24 v{vT}, 160, v{vT}")
        A(f"v_add_u32 v{vT}, s{sPLDS}, v{vT}")
        A(f"v_and_b32 v{vT+1}, 3, v0")
        A(f"v_lshl_add_u32 v{VO+5}, v{vT+1}, 4, v{vT}")
        A(f"v_lshl_add_u32 v{VO+6}, v{vT+1}, 3, v{vT}")
    sJ0, sJ1 = 44, 45
    A(f"s_and_b32 s{sT0}, s{sWAVE}, 1")
    A(f"s_mov_b32 s{sJ0}, s{sWAVE}")
    A(f"s_xor_b32 s{sJ1}, s{sWAVE}, 1")
    A(f"s_lshl_b32 s{sTILE}, s{sTB}, 1")
    A(f"s_add_u32 s{sTILE}, s{sTILE}, s{sT0}")
    A(f"s_lshl_b32 s{sTILE}, s{sTILE}, 1")
    l15, g4, rho, t0, t1, t2 = vT, vT+1, vT+2, vT+3, vT+4, vT+5
    A(f"v_and_b32 v{l15}, 15, v0")
    A(f"v_lshrrev_b32 v{g4}, 4, v0")
    A(f"v_bfe_u32 v{rho}, v0, 2, 2")
    A(f"s_lshl_b32 s{sT1}, s{sT0}, 13")
    A(f"s_add_u32 s{sT1}, s{sT1}, 16384")
    A(f"v_bfe_u32 v{t0}, v0, 1, 3")
    A(f"v_xor_b32 v{t0}, v{t0}, v{g4}")
    A(f"v_lshlrev_b32 v{t1}, 7, v{l15}")
    A(f"v_lshl_add_u32 v{t1}, v{t0}, 4, v{t1}")
    A(f"v_add_u32 v{vBA}, s{sT1}, v{t1}")
    A(f"v_xor_b32 v{vBA+1}, 64, v{vBA}")
    A(f"v_lshl_add_u32 v{t0}, v{g4}, 3, v{rho}")
    A(f"v_lshlrev_b32 v{t0}, 8, v{t0}")
    A(f"v_bfe_u32 v{t1}, v0, 4, 1")
    A(f"v_lshl_add_u32 v{t0}, v{t1}, 5, v{t0}")
    A(f"v_and_b32 v{t1}, 3, v0")
    A(f"v_lshl_add_u32 v{t0}, v{t1}, 3, v{t0}")
    for jj in range(2):
        A(f"v_xor_b32 v{vTR+2*jj}, s{sJ0+jj}, v{rho}")
        A(f"v_lshl_add_u32 v{vTR+2*jj}, v{vTR+2*jj}, 6, v{t0}")
        A(f"v_xor_b32 v{vTR+2*jj+1}, 32, v{vTR+2*jj}")
    A(f"v_mov_b32 v{t0}, 0x3f803f80")
    for i in range(4): A(f"v_accvgpr_write_b32 a{ONE+i}, v{t0}")
    A(f"s_lshl_b32 s{sXO}, s{sTB}, 11")
    A(f"s_add_u32 s{sXO}, s{sXO}, {hex(WS_ST1)}")
    A(f"s_lshl_b32 s{sT0}, s{sT0}, 6")
    A(f"v_add_u32 v{t0}, s{sT0}, v{l15}")
    A(f"v_lshlrev_b32 v{vSA}, 3, v{t0}")
    A(f"v_cmp_gt_u32 vcc, 16, v0")
    A(f"v_mov_b32 v{t1}, 0x7f000000")
    A(f"v_cndmask_b32 v{vSA}, v{t1}, v{vSA}, vcc")
    A(f"v_lshlrev_b32 v{vSA+1}, 2, v{t0}")
    A(f"v_lshlrev_b32 v{t0}, 2, v{g4}")
    A(f"v_add_u32 v{t0}, s{sT0}, v{t0}")
    A(f"v_lshlrev_b32 v{vSA+2}, 2, v{t0}")
    A(f"v_mov_b32 v{vSA+3}, 0")
    A(f"s_lshl_b32 s{sXLIM}, s{sTB}, 4")
    A("s_waitcnt lgkmcnt(0)")
    srd(A, SWS, 50, WS_SIZE)
    if cfg.get("diag"):
        A(f"s_cmp_eq_u32 s2, 16")
        A(f"s_mov_b32 s{sT0}, {hex(WS_TS)}")
        A(f"s_cselect_b32 s{sT0}, s{sT0}, {hex(WS_SIZE)}")
        A(f"v_mov_b32 v{t0}, s56")
        A(f"buffer_store_dword v{t0}, v{vSA+3}, s[{SWS}:{SWS+3}], s{sT0} offen")
    srd(A, SD, SD, 256)
    A(f"s_cmp_ge_u32 s{sFG}, 10")
    A("s_cbranch_scc1 L_qkv_V")

    def mainloop(isV):
        q = []
        def reads(st):
            c, kb = divmod(st, 2)
            _, so = rebase(c)
            b = FR + 32 * (st % 2)
            W = lambda j: [(f"ds_read_b64_tr_b16 {a(b+4*j+2*u,2)}, v{vTR+j} offset:{so + (32*kb+4*u)*256}", (st, f"W{j}")) for u in range(2)]
            X = lambda i: [(f"ds_read_b128 {a(b+16+4*i,4)}, v{vBA+kb} offset:{so + 2048*i}", (st, f"X{i}"))]
            return W(0) + X(0) + X(1) + X(2) + X(3) + W(1) + W(2) + W(3)
        def issue(r): A(r[0]); q.append(r[1])
        def wait(tag): A(f"s_waitcnt lgkmcnt({min(15, len(q) - 1 - max(i for i, x in enumerate(q) if x == tag))})")
        A("s_barrier")
        for r in reads(0): issue(r)
        stamp(A, cfg, 1)
        for st in range(20):
            nxt = st + 1 < 20
            if st % 2 == 1 and nxt:
                A("s_barrier")
                if cfg.get("qts"): A(f"s_memtime s[{70+2*(st//2)}:{71+2*(st//2)}]")
                d, _ = rebase((st + 1) // 2)
                if d:
                    for r in (vTR, vTR + 1, vTR + 2, vTR + 3, vBA, vBA + 1): A(f"v_add_u32 v{r}, {d & 0xffffffff}, v{r}")
            rs = reads(st + 1) if nxt else []
            b = FR + 32 * (st % 2)
            for j in range(4):
                if j == 0: wait((st, "X3"))
                if j == 1: wait((st, "W3"))
                for i in range(4):
                    wf = a(b + 4 * j, 4); xf = a(b + 16 + 4 * i, 4); acc = v(ACC + 16 * i + 4 * j, 4); c = acc if st else "0"
                    if isV: A(f"v_mfma_f32_16x16x32_bf16 {acc}, {xf}, {wf}, {c}")
                    else:   A(f"v_mfma_f32_16x16x32_bf16 {acc}, {wf}, {xf}, {c}")
                    if rs: issue(rs.pop(0))
                if j >= 2: A(f"v_mfma_f32_16x16x32_bf16 {a(CSA+4*(j-2),4)}, {a(ONE,4)}, {a(b+4*(j-2),4)}, {a(CSA+4*(j-2),4) if st else 0}")
            if st == cfg.get("q_fl", 14):
                A(f"buffer_load_dword v{vT}, v{vSA+3}, s[{SD}:{SD+3}], s{sXLIM} offen sc1")
            if st == cfg.get("q_fc", 18):
                LP, LD = A.newlabel("qp"), A.newlabel("qd")
                A(f"s_mov_b32 s{sT1}, 0")
                A.label(LP)
                A("s_waitcnt vmcnt(0)")
                A(f"v_cmp_eq_u32 vcc, 0, v{vT}")
                A(f"s_add_u32 s{sT1}, s{sT1}, 1")
                A(f"s_cmp_lt_u32 s{sT1}, 0x40000")
                A(f"s_cselect_b64 vcc, vcc, 0")
                A(f"s_cbranch_vccz {LD}")
                A("s_sleep 4")
                A(f"buffer_load_dword v{vT}, v{vSA+3}, s[{SD}:{SD+3}], s{sXLIM} offen sc1")
                A(f"s_branch {LP}")
                A.label(LD)
                for i in range(4): A(f"buffer_load_dwordx2 {v(MB+2*i,2)}, v{vSA}, s[{SWS}:{SWS+3}], s{sXO} offen offset:{128*i} sc1")
                for i in range(4):
                    if isV: A(f"buffer_load_dwordx4 {v(RS+4*i,4)}, v{vSA+2}, s[{SWS}:{SWS+3}], s{sXO} offen offset:{1024 + 64*i} sc1")
                    else:   A(f"buffer_load_dword v{RS+2*i}, v{vSA+1}, s[{SWS}:{SWS+3}], s{sXO} offen offset:{1024 + 64*i} sc1")
        stamp(A, cfg, 2)

    def correction(isV):
        CF = vT
        A(f"s_lshl_b32 s{sT0}, s{sJ0}, 10")
        A(f"s_lshl_b32 s{sT1}, s{sJ1}, 10")
        A(f"v_lshlrev_b32 v{vTR}, 4, v0")
        A(f"v_add_u32 v{vTR+1}, s{sT1}, v{vTR}")
        A(f"v_add_u32 v{vTR}, s{sT0}, v{vTR}")
        for e in range(2):
            cs, hi = vTR + 2, vTR + 3
            A(f"v_accvgpr_read_b32 v{cs}, a{CSA+4*e}")
            A(f"v_cvt_pk_bf16_f32 v{hi}, v{cs}, v{cs}")
            A(f"v_and_b32 v{hi}, 0xffff0000, v{hi}")
            A(f"v_sub_f32 v{cs}, v{cs}, v{hi}")
            A(f"v_cvt_pk_bf16_f32 v{CF+2*e}, v{hi}, v{cs}")
            A(f"v_lshrrev_b32 v{CF+2*e+1}, 16, v{hi}")
        A(f"ds_write_b128 v{vTR}, {v(CF,4)} offset:{CSL}")
        def corr(j):
            for i in range(4):
                mb = v(MB + 2 * i, 2); cf = v(CF + 2 * j, 2); acc = v(ACC + 16 * i + 4 * j, 4)
                if isV: A(f"v_mfma_f32_16x16x16_bf16 {acc}, {mb}, {cf}, {acc}")
                else:   A(f"v_mfma_f32_16x16x16_bf16 {acc}, {cf}, {mb}, {acc}")
        A("s_waitcnt vmcnt(0) lgkmcnt(0)")
        A("s_barrier")
        A(f"ds_read_b128 {v(CF+4,4)}, v{vTR+1} offset:{CSL}")
        corr(0); corr(1)
        A("s_waitcnt lgkmcnt(0)")
        corr(2); corr(3)

    A(f"s_cmp_ge_u32 s{sFG}, 5")
    A(f"s_cselect_b32 s{sT1}, 5, 0")
    A(f"s_cselect_b32 s{sBASE}, {hex(WS_K)}, {hex(WS_Q)}")
    A(f"s_cselect_b32 s{sQS}, 1.0, {fhex(QSCALE)}")
    A(f"s_sub_u32 s{sT1}, s{sFG}, s{sT1}")
    A(f"s_lshl_b32 s{sT1}, s{sT1}, 4")
    A(f"s_mul_i32 s{sT2}, s{sTILE}, 2560")
    A(f"s_add_u32 s{sBASE}, s{sBASE}, s{sT2}")
    A(f"v_bfe_u32 v{t2}, v0, 4, 1")
    A(f"v_lshrrev_b32 v{t0}, 5, v0")
    A(f"v_lshl_add_u32 v{t2}, v{t2}, 1, v{t0}")
    A(f"v_add_u32 v{t2}, s{sT1}, v{t2}")
    A(f"v_lshlrev_b32 v{l15}, 4, v{l15}")
    A(f"s_mov_b32 s{sT2}, {PAIR_STRIDE - 2560}")
    for jj in range(2):
        A(f"s_lshl_b32 s{sT0}, s{sJ0 + jj}, 2")
        A(f"v_add_u32 v{t0}, s{sT0}, v{t2}")
        A(f"v_mul_u32_u24 v{t1}, 205, v{t0}")
        A(f"v_lshrrev_b32 v{t1}, 10, v{t1}")
        A(f"v_mul_lo_u32 v{t1}, s{sT2}, v{t1}")
        A(f"v_lshl_add_u32 v{t0}, v{t0}, 9, v{l15}")
        A(f"v_add_u32 v{vADR+jj}, v{t0}, v{t1}")
    mainloop(False)
    correction(False)
    for i in range(4):
        A(f"v_mul_f32 v{RS+2*i}, s{sQS}, v{RS+2*i}")
        A(f"v_mov_b32 v{RS+2*i+1}, v{RS+2*i}")
    for jj in range(2):
        for i in range(4):
            r = ACC + 16 * i + 8 * jj
            for b in range(0, 8, 2): A(f"v_pk_mul_f32 {v(r+b,2)}, {v(r+b,2)}, {v(RS+2*i,2)}")
            for b in range(4): A(f"v_cvt_pk_bf16_f32 v{r+b}, v{r+2*b}, v{r+2*b+1}")
            if i or jj: A(pend)
            A(f"v_permlane16_swap_b32 v{r}, v{r+2}")
            A(f"v_permlane16_swap_b32 v{r+1}, v{r+3}")
            pend = f"buffer_store_dwordx4 {v(r,4)}, v{vADR+jj}, s[{SWS}:{SWS+3}], s{sBASE} offen offset:{2560*(i>>1) + 256*(i&1)} {STF}"
    A(pend)
    A("s_branch L_qkv_fin")

    A.label("L_qkv_V")
    A(f"s_mul_i32 s{sBASE}, s{sTILE}, 1280")
    A(f"s_add_u32 s{sBASE}, s{sBASE}, {hex(WS_V)}")
    A(f"s_sub_u32 s{sT1}, s{sFG}, 10")
    A(f"s_lshl_b32 s{sT1}, s{sT1}, 7")
    A(f"v_mul_u32_u24 v{t2}, 320, v{g4}")
    A(f"v_add_u32 v{l15}, s{sT1}, v{l15}")
    A(f"s_mov_b32 s{sT2}, {VHEAD_STRIDE - 320}")
    for j in range(4):
        A(f"s_lshl_b32 s{sT0}, s{sJ0 + j//2}, 5")
        A(f"s_add_u32 s{sT0}, s{sT0}, {16*(j%2)}")
        A(f"v_add_u32 v{t0}, s{sT0}, v{l15}")
        A(f"v_mul_u32_u24 v{t1}, 3277, v{t0}")
        A(f"v_lshrrev_b32 v{t1}, 16, v{t1}")
        A(f"v_mul_lo_u32 v{t1}, s{sT2}, v{t1}")
        A(f"v_lshl_add_u32 v{t0}, v{t0}, 4, v{t2}")
        A(f"v_add_u32 v{vADR+j}, v{t0}, v{t1}")
    mainloop(True)
    correction(True)
    for j in range(4):
        for m in range(2):
            r0, r1 = ACC + 32 * m + 4 * j, ACC + 32 * m + 16 + 4 * j
            for b in (0, 2):
                A(f"v_pk_mul_f32 {v(r0+b,2)}, {v(r0+b,2)}, {v(RS+8*m+b,2)}")
                A(f"v_pk_mul_f32 {v(r1+b,2)}, {v(r1+b,2)}, {v(RS+8*m+4+b,2)}")
            A(f"v_cvt_pk_bf16_f32 v{r0}, v{r0}, v{r0+1}")
            A(f"v_cvt_pk_bf16_f32 v{r0+1}, v{r0+2}, v{r0+3}")
            A(f"v_cvt_pk_bf16_f32 v{r0+2}, v{r1}, v{r1+1}")
            A(f"v_cvt_pk_bf16_f32 v{r0+3}, v{r1+2}, v{r1+3}")
            if j or m: A(pend)
            A(f"v_permlane32_swap_b32 v{r0}, v{r0+2}")
            A(f"v_permlane32_swap_b32 v{r0+1}, v{r0+3}")
            pend = f"buffer_store_dwordx4 {v(r0,4)}, v{vADR+j}, s[{SWS}:{SWS+3}], s{sBASE} offen offset:{1280*m} {STF}"
    A(pend)
    A.label("L_qkv_fin")
    if cfg.get("endwait"): A("s_waitcnt vmcnt(0)")
    stamp(A, cfg, 3)
    if cfg.get("qts"):
        for c in range(9): A(f"s_mov_b32 s{71+2*c}, s{70+2*c}")
        A("s_mov_b32 s68, 0")
        A("s_mov_b32 s69, 0")
        stamp_flush(A, cfg, 14, 17, SWS, sWAVE, 0)
        A("s_mov_b64 exec, -1")
    stamp_flush(A, cfg, 4, 0, SWS, sWAVE, 0)
    A("s_endpgm")

    i_l0 = len(A.items)
    A.label("L_qkv_loader")
    vWOFF, vXOFF = 4, 6
    sWLIM = 44
    if cfg.get("rot", 1):
        A(f"s_lshl_b32 s{sT0}, s{sT0}, 2")
        A(f"s_lshr_b32 s{sC0}, 0x30858530, s{sT0}")
        A(f"s_and_b32 s{sC0}, s{sC0}, 15")
        if cfg.get("rab", [0, 1]):
            ra, rb = cfg.get("rab", [0, 1])
            A(f"s_and_b32 s{sT0}, s{sTB}, 3")
            A(f"s_mul_i32 s{sT0}, s{sT0}, {ra}")
            A(f"s_add_u32 s{sC0}, s{sC0}, s{sT0}")
            A(f"s_and_b32 s{sT0}, s{sFG}, {cfg.get('rmask', 1)}")
            A(f"s_mul_i32 s{sT0}, s{sT0}, {rb}")
            A(f"s_add_u32 s{sC0}, s{sC0}, s{sT0}")
            A(f"s_mul_i32 s{sT0}, s{sC0}, 6554")
            A(f"s_lshr_b32 s{sT0}, s{sT0}, 16")
            A(f"s_mul_i32 s{sT0}, s{sT0}, 10")
            A(f"s_sub_u32 s{sC0}, s{sC0}, s{sT0}")
    else:
        A(f"s_mov_b32 s{sC0}, 0")
    A(f"s_sub_u32 s{sWAVE}, s{sWAVE}, 4")
    A(f"v_and_b32 v{vT}, 15, v0")
    A(f"v_lshrrev_b32 v{vT+1}, 4, v0")
    A(f"v_lshlrev_b32 v{vT+2}, 2, v{vT+1}")
    A(f"v_xor_b32 v{vT+2}, v{vT+2}, v{vT}")
    A(f"v_mul_u32_u24 v{vWOFF}, 3840, v{vT+1}")
    A(f"v_lshl_add_u32 v{vWOFF}, v{vT+2}, 4, v{vWOFF}")
    A(f"v_xor_b32 v{vWOFF+1}, 32, v{vWOFF}")
    A(f"v_and_b32 v{vT}, 7, v0")
    A(f"v_xor_b32 v{vT}, v{vT}, v{vT+1}")
    A(f"v_lshrrev_b32 v{vT+2}, 3, v0")
    A(f"v_mul_u32_u24 v{vT+2}, 1280, v{vT+2}")
    A(f"v_lshl_add_u32 v{vXOFF}, v{vT}, 4, v{vT+2}")
    A(f"v_xor_b32 v{vXOFF+1}, 64, v{vXOFF}")
    A(f"s_lshl_b32 s{sWO}, s{sFG}, 8")
    A(f"s_mul_i32 s{sT0}, s{sWAVE}, {16*3840}")
    A(f"s_add_u32 s{sWO}, s{sWO}, s{sT0}")
    A(f"s_add_u32 s{sWLIM}, s{sWO}, {640*3840}")
    A(f"s_mul_i32 s{sT0}, s{sC0}, {64*3840}")
    A(f"s_add_u32 s{sWO}, s{sWO}, s{sT0}")
    A(f"s_lshl_b32 s{sXO}, s{sTB}, 2")
    A(f"s_add_u32 s{sXO}, s{sXO}, s{sWAVE}")
    A(f"s_mul_i32 s{sXO}, s{sXO}, {32*1280}")
    A(f"s_lshl_b32 s{sT0}, s{sC0}, 7")
    A(f"s_add_u32 s{sXO}, s{sXO}, s{sT0}")
    A(f"s_lshl_b32 s{sM0}, s{sWAVE}, 12")
    A("s_waitcnt lgkmcnt(0)")
    srd(A, SW, 6, 640 * 1920 * 2)
    srd(A, SX, SX, X_BYTES)
    def dma_ops(c):
        ops = []
        for j in range(4):
            ops.append([f"s_add_u32 m0, s{sM0}, {(c%5)*SLOT + j*1024}", f"s_add_u32 s{sT0}, s{sWO}, {4*j*3840}",
                        f"buffer_load_dwordx4 v{vWOFF+(j>>1)}, s[{SW}:{SW+3}], s{sT0} offen lds"])
            ops.append([f"s_add_u32 m0, s{sM0}, {(c%5)*SLOT + 16384 + j*1024}", f"s_add_u32 s{sT0}, s{sXO}, {8*j*1280}",
                        f"buffer_load_dwordx4 v{vXOFF+(j%2)}, s[{SX}:{SX+3}], s{sT0} offen lds"])
        ops[-1] += [f"s_add_u32 s{sWO}, s{sWO}, {64*3840}", f"s_add_u32 s{sXO}, s{sXO}, 128",
                    f"s_cmp_eq_u32 s{sWO}, s{sWLIM}", f"s_cselect_b32 s{sT0}, {640*3840}, 0", f"s_cselect_b32 s{sT1}, 1280, 0",
                    f"s_sub_u32 s{sWO}, s{sWO}, s{sT0}", f"s_sub_u32 s{sXO}, s{sXO}, s{sT1}"]
        return ops
    def emit(op):
        for x in op:
            if cfg.get("q_nodma") and x.startswith("buffer_"): continue
            A(x)
    IW = cfg.get("iw", 2)
    for c in range(IW):
        for op in dma_ops(c): emit(op)
    srd(A, SWS, 50, WS_SIZE)
    prep_setup()
    ops = [("w", c) for c in range(IW) for _ in range(8)]
    nw = IW
    def wait_for(tag):
        last = max(i for i, o in enumerate(ops) if o == tag)
        A(f"s_waitcnt vmcnt({len(ops) - 1 - last})")
    for c in range(10):
        wait_for(("w", c))
        A("s_barrier")
        for k in range(2 if c in cfg.get("extra_at", []) else 1):
            if nw < 10 and nw <= max(c + 3, 4) and (nw != 4 or c >= 2 or not cfg.get('k1prep', 0)):
                for op in dma_ops(nw): emit(op)
                ops += [("w", nw)] * 8; nw += 1
        if c == cfg.get("prep_i", 7) and not cfg.get("noprep"):
            for jj in range(5):
                A(f"s_add_u32 m0, s{sPLDS}, {jj*1024}")
                A(f"buffer_load_dwordx4 v{VO+jj}, s[{SP}:{SP+3}], s{sPSRC} offen lds")
            ops += [("p", 0)] * 5
    if cfg.get("prep_late", 1): A("s_barrier")
    if cfg.get("noprep"): A("s_endpgm")
    A("s_waitcnt vmcnt(0)")
    for f in range(5):
        for u in range(2):
            A(f"ds_read_b64_tr_b16 {v(PF+4*f+2*u,2)}, v{VO+5+(f==4)} offset:{4*u*160 + tile_col_imm(f)}")
    A("s_waitcnt lgkmcnt(0)")
    for f in range(5):
        A(f"s_add_u32 s{sT0}, s{sPDST}, {f*1024}")
        A(f"buffer_store_dwordx4 {v(PF+4*f,4)}, v{L16}, s[{SWS}:{SWS+3}], s{sT0} offen {STF}")
    A("s_endpgm")

    if cfg.get("lfirst", 1):
        seg = A.items[i_l0:]
        del A.items[i_l0:]
        A.items[i_split:i_split] = seg
    A.label("L_qkv_helper")
    XD = 16
    if cfg.get("ctouch", 2) == 1:
        code_touch_setup(A, 46, "qkv_kernel", True)
        A(f"v_lshlrev_b32 v{vT+1}, 7, v0")
        A(f"v_min_u32 v{vT+1}, L_code_end-qkv_kernel-4, v{vT+1}")
        A(f"global_load_dword v{vT+7}, v{vT+1}, s[46:47]")
    A(f"v_and_b32 v0, 63, v0")
    if HS:
        A(f"s_and_b32 s{sTB}, s2, 3")
        A(f"s_lshl_b32 s{sTB}, s{sTB}, 2")
        A(f"s_bfe_u32 s{sT0}, s2, 0x10002")
        A(f"s_lshl_b32 s{sT0}, s{sT0}, 1")
        A(f"s_add_u32 s{sTB}, s{sTB}, s{sT0}")
        A(f"s_lshr_b32 s{sT0}, s2, 3")
        A(f"s_add_u32 s{sTB}, s{sTB}, s{sT0}")
        A(f"s_lshl_b32 s{sXO}, s{sTB}, 3")
        A(f"s_add_u32 s{sXO}, s{sXO}, s{sWAVE}")
        A(f"s_mul_i32 s{sXO}, s{sXO}, {16*1280}")
        A(f"s_add_u32 s{sXLIM}, s{sXO}, {8*1280}")
        A(f"v_lshrrev_b32 v2, 3, v0")
        A(f"v_and_b32 v3, 7, v0")
        A(f"v_mul_u32_u24 v1, 1280, v2")
        A(f"v_lshl_add_u32 v1, v3, 4, v1")
        A("s_waitcnt lgkmcnt(0)")
        srd(A, SX, SX, X_BYTES)
        for g in range(2):
            for k in range(10):
                A(f"buffer_load_dwordx4 {v(XD+40*g+4*k,4)}, v1, s[{SX}:{SX+3}], s{sXLIM if g else sXO} offen offset:{128*k}")
        srd(A, SWS, 50, WS_SIZE)
        srd(A, SD, SD, 256)
        A(f"v_mov_b32 v4, 0x3f803f80")
        A(f"s_lshl_b32 s{sT0}, s{sWAVE}, 4")
        A(f"v_add_u32 v2, s{sT0}, v2")
        A(f"v_lshlrev_b32 v5, 3, v2")
        A(f"v_lshlrev_b32 v6, 2, v2")
        A(f"s_lshl_b32 s{sBASE}, s{sTB}, 11")
        A(f"s_add_u32 s{sBASE}, s{sBASE}, {hex(WS_ST1)}")
        A(f"s_mov_b32 s{sT1}, 0x01010101")
        for g in range(2):
            sm, sq = vT, vT + 1
            for k in range(10):
                A(f"s_waitcnt vmcnt({19 - (10*g+k) + (2 if g else 0)})")
                for i in range(4):
                    r = XD + 40 * g + 4 * k + i
                    first = (k == 0 and i == 0)
                    A(f"v_dot2_f32_bf16 v{sm}, v{r}, v4, {0 if first else 'v%d' % sm}")
                    A(f"v_dot2_f32_bf16 v{sq}, v{r}, v{r}, {0 if first else 'v%d' % sq}")
            for dpp in ("quad_perm:[1,0,3,2]", "quad_perm:[2,3,0,1]", "row_half_mirror"):
                A(f"v_add_f32_dpp v{sm}, v{sm}, v{sm} {dpp} row_mask:0xf bank_mask:0xf")
                A(f"v_add_f32_dpp v{sq}, v{sq}, v{sq} {dpp} row_mask:0xf bank_mask:0xf")
            A(f"v_mul_f32 v{sm}, {fhex(1/640)}, v{sm}")
            A(f"v_mul_f32 v{sq}, {fhex(1/640)}, v{sq}")
            A(f"v_fma_f32 v{sq}, -v{sm}, v{sm}, v{sq}")
            A(f"v_max_f32 v{sq}, 0, v{sq}")
            A(f"v_add_f32 v{sq}, {fhex(1e-5)}, v{sq}")
            A(f"v_rsq_f32 v{vT+4}, v{sq}")
            A(f"v_cvt_pk_bf16_f32 v{vT+2}, -v{sm}, -v{sm}")
            A(f"v_and_b32 v{vT+3}, 0xffff0000, v{vT+2}")
            A(f"v_sub_f32 v{vT+3}, -v{sm}, v{vT+3}")
            A(f"v_cvt_pk_bf16_f32 v{vT+3}, v{vT+3}, 0")
            A(f"s_mov_b32 exec_lo, s{sT1}")
            A(f"s_mov_b32 exec_hi, s{sT1}")
            A(f"buffer_store_dwordx2 {v(vT+2,2)}, v5, s[{SWS}:{SWS+3}], s{sBASE} offen offset:{64*g} sc1")
            A(f"buffer_store_dword v{vT+4}, v6, s[{SWS}:{SWS+3}], s{sBASE} offen offset:{1024 + 32*g} sc1")
            A("s_mov_b64 exec, -1")
        pass
        A("s_waitcnt vmcnt(0)")
        A("s_barrier")
        pass
        A(f"s_lshl_b32 s{sT0}, s{sTB}, 4")
        A(f"s_cmp_eq_u32 s{sWAVE}, 0")
        A(f"s_cselect_b32 s{sT0}, s{sT0}, 256")
        A(f"v_mov_b32 v2, 1")
        A(f"v_mov_b32 v3, 0")
        A("s_mov_b64 exec, 1")
        A(f"buffer_store_dword v2, v3, s[{SD}:{SD+3}], s{sT0} offen sc1")
        A("s_mov_b64 exec, -1")
    else:
        A("s_waitcnt lgkmcnt(0)")
        srd(A, SWS, 50, WS_SIZE)
    if cfg.get("ptouch", 0):
        srd(A, SP, 34, 1536 * 640 * 2)
        srd(A, SW, 32, 640 * 640 * 2)
        A(f"s_lshl_b32 s{sT0}, s2, 3")
        A(f"s_add_u32 s{sT0}, s{sT0}, s{sWAVE}")
        A(f"s_mul_i32 s{sT1}, s{sT0}, {50*128}")
        A(f"s_mul_i32 s{sT0}, s{sT0}, {120*128}")
        A(f"v_lshlrev_b32 v1, 7, v0")
        A("s_bfm_b64 exec, 60, 0")
        A(f"buffer_load_dword v4, v1, s[{SP}:{SP+3}], s{sT0} offen")
        A(f"s_add_u32 s{sT0}, s{sT0}, {60*128}")
        A(f"buffer_load_dword v4, v1, s[{SP}:{SP+3}], s{sT0} offen")
        A("s_bfm_b64 exec, 50, 0")
        A(f"buffer_load_dword v4, v1, s[{SW}:{SW+3}], s{sT1} offen")
        A("s_mov_b64 exec, -1")
    if cfg.get("tlbw", 1):
        A("s_load_dwordx4 s[40:43], s[0:1], 32")
        A("s_load_dwordx2 s[52:53], s[0:1], 56")
        A(f"v_lshlrev_b32 v1, 18, v0")
        A(f"s_cmp_lg_u32 s{sWAVE}, 0")
        A("s_cbranch_scc1 L_qkv_notlb")
        A(f"buffer_load_dword v4, v1, s[{SWS}:{SWS+3}], 0 offen")
        A(f"s_mov_b32 s{sT0}, 0x1000000")
        A("s_bfm_b64 exec, 24, 0")
        A(f"buffer_load_dword v4, v1, s[{SWS}:{SWS+3}], s{sT0} offen")
        A("s_mov_b64 exec, -1")
        A("s_waitcnt lgkmcnt(0)")
        for p, nb in ((40, 640*1536*2), (42, 640*1536*2), (52, X_BYTES), (32, 640*640*2), (34, 640*1536*2)):
            srd(A, SP, p, nb)
            A(f"buffer_load_dword v4, v1, s[{SP}:{SP+3}], 0 offen")
        A.label("L_qkv_notlb")
        A("s_waitcnt lgkmcnt(0)")
    if cfg.get("gtouch", 0):
        A("s_load_dwordx4 s[40:43], s[0:1], 32")
        A(f"s_lshl_b32 s{sT0}, s2, 3")
        A(f"s_add_u32 s{sT0}, s{sT0}, s{sWAVE}")
        A(f"s_mul_i32 s{sT0}, s{sT0}, {120*128}")
        A(f"s_add_u32 s{sT1}, s{sT0}, {60*128}")
        A(f"v_lshlrev_b32 v1, 7, v0")
        A("s_waitcnt lgkmcnt(0)")
        srd(A, SP, 40, 1536 * 640 * 2)
        srd(A, SW, 42, 1536 * 640 * 2)
        if cfg["gtouch"] == 2: A("s_waitcnt vmcnt(0)")
        A("s_bfm_b64 exec, 60, 0")
        for sr in (SP, SW):
            for so in (sT0, sT1):
                A(f"buffer_load_dword v4, v1, s[{sr}:{sr+3}], s{so} offen")
        A("s_mov_b64 exec, -1")
    stamp(A, cfg, 1)
    stamp(A, cfg, 2)
    if cfg.get("zfill", 0):
        for i in range(4): A(f"v_mov_b32 v{XD+i}, 0")
        A(f"v_lshlrev_b32 v1, 4, v0")
        A(f"s_lshl_b32 s{sT0}, s2, 3")
        A(f"s_add_u32 s{sT0}, s{sT0}, s{sWAVE}")
        A(f"s_lshl_b32 s{sT1}, s{sT0}, 11")
        A(f"s_add_u32 s{sT1}, s{sT1}, {hex(WS_ST2)}")
        A(f"s_mul_i32 s{sT0}, s{sT0}, 40960")
        A(f"s_add_u32 s{sT0}, s{sT0}, {hex(WS_O)}")
        for k in range(40):
            if k % 4 == 0 and k: A(f"s_add_u32 s{sT0}, s{sT0}, 4096")
            A(f"buffer_store_dwordx4 {v(XD,4)}, v1, s[{SWS}:{SWS+3}], s{sT0} offen offset:{(k%4)*1024} sc1")
        for k in range(2): A(f"buffer_store_dwordx4 {v(XD,4)}, v1, s[{SWS}:{SWS+3}], s{sT1} offen offset:{k*1024} sc1")
    A(f"s_lshl_b32 s{sT0}, s{sWAVE}, 10")
    A(f"s_lshl_b32 s{sT1}, s2, 13")
    A(f"s_add_u32 s{sT0}, s{sT0}, s{sT1}")
    A(f"s_add_u32 s{sT0}, s{sT0}, {hex(WS_SYNC)}")
    A(f"s_cmp_lt_u32 s2, 5")
    A(f"s_cselect_b32 s{sT0}, s{sT0}, {hex(WS_SIZE)}")
    for i in range(4): A(f"v_mov_b32 v{XD+i}, 0")
    A(f"v_lshlrev_b32 v1, 4, v0")
    A(f"buffer_store_dwordx4 {v(XD,4)}, v1, s[{SWS}:{SWS+3}], s{sT0} offen")
    stamp(A, cfg, 3)
    stamp_flush(A, cfg, 4, 0, SWS, sWAVE, 0)
    A.label("L_qkv_end")
    A("s_endpgm")
    return dict(name=name, grid=256, block=512, lds=163840, desc=kernel_desc(name, 192, 112))
```

```python
from common import *

GU_SLOT = 24608
GU_UP = 12288 + 32
GU_MISC = 6 * GU_SLOT
NWS, H_BASE, NHS = 4, 4 * GU_SLOT, 3
PART_BASE = 4 * GU_SLOT
KV_SLOT = 20480
NKV = 3
KV_BASE = 163840 - NKV * KV_SLOT
NV = 112

class R:
    S = (16, 32); O = 48; P = 64; K1 = 72; K2 = 76; V1 = 80; V2 = 84; Q1 = 88; Q2 = 92
    KA = 1; K2A = 2; VA = 3; L16 = 4; F2S = 5; L4 = 7; T = 8; TCH = 94
    GV = 96
    XRES = 100

SX, SWS, SG_, SU, SO = 4, 8, 12, 16, 20
sWAVE, sG, sM, sT0, sT1, sT2, sC, sDELTA, sSLOT, sQT = 24, 25, 26, 27, 28, 29, 30, 31, 32, 33
sVMASK = 34
sKSRC, sVSRC, sKBASE, sVBASE, sFG, sTOK16, sJ, sFAST, sWOSRC, sWDSRC, sGSRC, sGM0, sFLAG, sB, sXCC, sLW = 36, 37, 38, 39, 40, 41, 42, 43, 44, 45, 46, 47, 48, 49, 50, 51
sTMP = 52
SWO_, SWD_ = 92, 96
sSTG, sWDRAW, sTO, sKQ, sB2, sGLIM, sC0 = 86, 87, 90, 95, 96, 99, 91
sHD, sKLIM, sFL0 = 97, 98, 100

def WD(step, f, n=4):
    if step == 7: return v(40 + 4 * f, n)
    return a({0: 100, 1: 120, 2: 80, 3: 60, 4: 40, 5: 20, 6: 0}[step] + 4 * f, n)
def A_RES(i): return 140 + i if i < 4 else 58 + (i - 4)

def set_shift(A, m):
    t0, t1, t2 = m + 1, m + 2, m + 3
    A(f"v_cvt_pk_bf16_f32 v{t0}, -v{m}, -v{m}")
    A(f"v_and_b32 v{t0}, 0xffff0000, v{t0}")
    A(f"v_sub_f32 v{t1}, -v{m}, v{t0}")
    A(f"v_cvt_pk_bf16_f32 v{t2}, v{t0}, v{t1}")
    A(f"v_and_b32 v{t0}, 0xffff0000, v{t2}")
    A(f"v_sub_f32 v{t1}, v{t1}, v{t0}")
    A(f"v_cvt_pk_bf16_f32 v{t1}, v{t1}, 0")
    A(f"v_cmp_gt_u32 vcc, 32, v0")
    A(f"v_cndmask_b32 v{R.Q2+1}, v{t1}, v{t2}, vcc")

def max16(A, dst, S, first):
    if first:
        A(f"v_max3_f32 v{dst}, v{S}, v{S+1}, v{S+2}")
        A(f"v_max_f32 v{dst}, v{dst}, v{S+3}")
        rng = range(4, 16, 2)
    else:
        rng = range(0, 16, 2)
    for i in rng: A(f"v_max3_f32 v{dst}, v{dst}, v{S+i}, v{S+i+1}")

def xhalf_max(A, m, t):
    A(f"v_mov_b32 v{t}, v{m}")
    A(f"v_permlane32_swap_b32 v{m}, v{t}")
    A(f"v_max_f32 v{m}, v{m}, v{t}")

def stores(A, lst, data=True):
    if data == "O" and CFG.get("hp", 1) or data and CFG.get("wt", 2) & 1:
        for x in lst: A(x + (" sc1" if x.startswith("buffer_") else ""))
        return
    L1, L2 = A.newlabel("stf"), A.newlabel("ste")
    A(f"s_cmp_lg_u32 s{sFAST}, 0")
    A(f"s_cbranch_scc1 {L1}")
    for x in lst: A(x + (" sc1" if x.startswith("buffer_") else ""))
    A(f"s_branch {L2}")
    A.label(L1)
    for x in lst: A(x)
    A.label(L2)

def readback(A, lst):
    if not CFG.get("rb", 0) & 1: return
    for mask, ops in lst:
        ops = [x + " sc1" for x in ops]
        A(f"s_mov_b32 exec_lo, {hex(mask & 0xffffffff)}")
        A(f"s_mov_b32 exec_hi, {hex(mask >> 32)}")
        for x in ops: A(x)
    A("s_mov_b64 exec, -1")

def sync(A, idx, poller, half, nleft, between=None, rb=None):
    T = R.T
    A(f"s_waitcnt vmcnt({nleft})")
    if rb: readback(A, rb)
    A("s_barrier")
    L, LP = A.newlabel("sy"), A.newlabel("poll")
    A(f"s_cmp_lg_u32 s{sWAVE}, {poller}")
    if between is not None:
        LB = A.newlabel("btw")
        A(f"s_cbranch_scc1 {LB}")
    else:
        A(f"s_cbranch_scc1 {L}")
    A(f"s_lshl_b32 s{sT0}, s{sM}, 2")
    A(f"s_add_u32 s{sT0}, s{sT0}, s{sFLAG}")
    A(f"v_mov_b32 v{T}, 1")
    A(f"v_mov_b32 v{T+1}, 0")
    A("s_mov_b64 exec, 1")
    if idx == 0 and CFG.get("hp", 1):
        A(f"buffer_store_dword v{T}, v{T+1}, s[{SWS}:{SWS+3}], s{sFL0} offen sc1")
    else:
        stores(A, [f"buffer_store_dword v{T}, v{T+1}, s[{SWS}:{SWS+3}], s{sT0} offen offset:{idx*128}"], data=False)
    if half:
        A(f"s_and_b32 s{sT0}, s{sM}, 2")
        A(f"s_lshl_b32 s{sT0}, 0x33333333, s{sT0}")
        A(f"s_mov_b32 exec_lo, s{sT0}")
    else:
        A("s_mov_b32 exec_lo, -1")
    X0 = idx == 0 and CFG.get("hp", 1)
    L32 = X0 and CFG.get("l32", 1)
    A(f"v_lshlrev_b32 v{T+1}, {7 if L32 else 2}, v0")
    A(f"s_mov_b32 s{sT1}, 0")
    if L32:
        A(f"s_lshl_b32 s{sT0}, s{sG}, 12")
        A(f"s_add_u32 s{sT0}, s{sT0}, {hex(WS_SYNC + 8192)}")
    A.label(LP)
    sl = CFG.get("sl0", 4) if X0 else CFG.get("sl1", 0)
    if sl: A(f"s_sleep {sl}")
    if L32: A(f"buffer_load_dword v{T}, v{T+1}, s[{SWS}:{SWS+3}], s{sT0} offen sc1")
    else: A(f"buffer_load_dword v{T}, v{T+1}, s[{SWS}:{SWS+3}], s{sFLAG} offen offset:{idx*128} sc1")
    A(f"s_add_u32 s{sT1}, s{sT1}, 1")
    A("s_waitcnt vmcnt(0)")
    A(f"v_cmp_eq_u32 vcc, 0, v{T}")
    A(f"s_cmp_lt_u32 s{sT1}, 0x40000")
    A(f"s_cselect_b64 vcc, vcc, 0")
    A(f"s_cbranch_vccnz {LP}")
    A("s_mov_b64 exec, -1")
    if between is not None:
        A("s_barrier")
        between()
        A(f"s_branch {L}")
        A.label(LB)
        between()
        A("s_barrier")
        A.label(L)
    else:
        A.label(L)
        A("s_barrier")

def addr_rowmajor(A, vp, vs, T):
    A(f"v_and_b32 v{T}, 15, v0")
    A(f"v_lshrrev_b32 v{T+1}, 4, v0")
    A(f"v_mul_u32_u24 v{T}, 1280, v{T}")
    A(f"s_add_u32 s{sT0}, s{sLW}, s{sTOK16}")
    A(f"s_mul_i32 s{sT0}, s{sT0}, {16*1280}")
    A(f"s_mul_i32 s{sT1}, s{sFG}, 160")
    A(f"s_add_u32 s{sT0}, s{sT0}, s{sT1}")
    A(f"v_add_u32 v{T}, s{sT0}, v{T}")
    A(f"v_lshl_add_u32 v{vp}, v{T+1}, 4, v{T}")
    A(f"v_lshl_add_u32 v{vs}, v{T+1}, 3, v{T}")
    A(f"v_add_u32 v{vs}, 128, v{vs}")
    A(f"s_and_b32 s{sT0}, s{sWAVE}, 4")
    A(f"s_lshl_b32 s{sT0}, s{sT0}, 4")
    A(f"v_add_u32 v{vp}, s{sT0}, v{vp}")

def reduce_addr(A, P, base, RA):
    A(f"s_mul_i32 s{sT0}, s{sLW}, 5120")
    A(f"s_and_b32 s{sT1}, s{sWAVE}, 4")
    A(f"s_lshl_b32 s{sT1}, s{sT1}, 9")
    A(f"s_add_u32 s{sT0}, s{sT0}, s{sT1}")
    A(f"s_add_u32 s{sT0}, s{sT0}, {base}")
    A(f"v_add_u32 v{RA}, s{sT0}, v{R.L16}")
    for k in range(1, (P + 2) // 3): A(f"v_add_u32 v{RA+k}, {3*20480*k}, v{RA}")

def reduce_sum(A, P, D, RA, n, own, mid=None):
    W = 4 * n
    for p in range(P):
        for e in range(n):
            A(f"ds_read_b128 {v(D+W*p+4*e,4)}, v{RA+p//3} offset:{(p%3)*20480 + (e*1024 if e < 2 else 4096)}")
    if mid: mid()
    for p in range(P):
        A(f"s_waitcnt lgkmcnt({min(15, n*(P-1-p))})")
        for e in range(n):
            for i in (0, 2): A(f"v_pk_add_f32 {v(own[e]+i,2)}, {v(own[e]+i,2)}, {v(D+W*p+4*e+i,2)}")

CFG = {}
def gu_dma_ops(c):
    ops = []
    for isup in range(2):
        sr = SU if isup else SG_
        for jj in range(3):
            ops.append([f"s_add_u32 m0, s{sGM0}, {(c%NWS)*GU_SLOT + isup*GU_UP + jj*1024}",
                        "s_nop 0",
                        f"buffer_load_dwordx4 v{R.GV+jj}, s[{sr}:{sr+3}], s{sGSRC} offen lds"])
    ops[-1] += [f"s_add_u32 s{sGSRC}, s{sGSRC}, {64*3072}", f"s_cmp_eq_u32 s{sGSRC}, s{sGLIM}", f"s_cselect_b32 s{sT0}, {640*3072}, 0", f"s_sub_u32 s{sGSRC}, s{sGSRC}, s{sT0}"]
    return ops
def load_wd_ops(step):
    return [[f"s_add_u32 s{sT0}, s{sWDSRC}, {step*5120 + f*1024}",
             f"buffer_load_dwordx4 {WD(step, f)}, v{R.L16}, s[{SWS}:{SWS+3}], s{sT0} offen"] for f in range(5)]
def gu_dma(A, c, rows):
    A(f"s_add_u32 s{sT0}, s{sGSRC}, {c*64*3072}")
    for isup in range(2):
        sr = SU if isup else SG_
        for jj in range(3):
            A(f"s_add_u32 m0, s{sGM0}, {(c%NWS)*GU_SLOT + isup*GU_UP + jj*1024}")
            A(f"buffer_load_dwordx4 v{R.GV+jj}, s[{sr}:{sr+3}], s{sT0} offen lds")

def load_wd(A, step):
    for f in range(5):
        if f % 4 == 0: A(f"s_add_u32 s{sT0}, s{sWDSRC}, {step*5120 + f*1024}")
        A(f"buffer_load_dwordx4 {WD(step, f)}, v{R.L16}, s[{SWS}:{SWS+3}], s{sT0} offen offset:{(f%4)*1024}")

def cfg_touch_plan(cfg, gu_touch, out_touch, wd_touch, extra):
    plan = cfg.get("tplan", [[20,"gw"],[44,"h"],[50,"st"]])
    out = []
    for t, w in plan:
        if w in extra: out.append((t, extra[w]))
        elif w[0] == "g": out.append((t, gu_touch(int(w[1]))))
        else: out.append((t, {"o": out_touch(WS_O, 1280), "h": out_touch(WS_H, 1280), "hid": out_touch(WS_HID, 3072), "st": out_touch(WS_ST2, 128), "wd": wd_touch,
                                 "hid0": out_touch(WS_HID, 3072, 0, 8), "hid1": out_touch(WS_HID, 3072, 8, 8), "hid2": out_touch(WS_HID, 3072, 16, 8)}[w]))
    return out

def gen_main(A, cfg):
    name = "main_kernel"
    CFG.update(cfg)
    cfg = dict(cfg); cfg["_k2"] = 1
    kstart(A, name)
    T = R.T
    A("s_cmp_ge_u32 s2, 256")
    A("s_cbranch_scc1 L_end")
    A(f"s_load_dwordx2 s[{SWS}:{SWS+1}], s[0:1], 72")
    A(f"s_load_dwordx2 s[{SX}:{SX+1}], s[0:1], 0")
    A(f"s_load_dwordx2 s[{SG_}:{SG_+1}], s[0:1], 32")
    A(f"s_load_dwordx2 s[{SU}:{SU+1}], s[0:1], 40")
    A(f"s_load_dwordx2 s[{SO}:{SO+1}], s[0:1], 56")
    stamp(A, cfg, 0)
    A(f"v_lshrrev_b32 v{T}, 6, v0")
    A(f"v_and_b32 v0, 63, v0")
    A(f"v_readfirstlane_b32 s{sWAVE}, v{T}")
    A(f"s_and_b32 s{sG}, s2, 7")
    A(f"s_lshr_b32 s{sM}, s2, 3")
    HP = cfg.get("hp", 1)
    if HP:
        A(f"s_lshl_b32 s{sHD}, s{sG}, 2")
        A(f"s_lshr_b32 s{sT0}, s{sM}, 3")
        A(f"s_add_u32 s{sHD}, s{sHD}, s{sT0}")
        A(f"s_and_b32 s{sFL0}, s{sM}, 7")
    else:
        A(f"s_mov_b32 s{sHD}, s{sM}")
        A(f"s_mov_b32 s{sFL0}, s{sG}")
    A(f"s_lshr_b32 s{sT0}, s{sHD}, 1")
    A(f"s_mul_i32 s{sKBASE}, s{sT0}, {PAIR_STRIDE}")
    A(f"s_mul_i32 s{sVBASE}, s{sHD}, {VHEAD_STRIDE}")
    A(f"s_add_u32 s{sVBASE}, s{sVBASE}, {hex(WS_V)}")
    A(f"s_lshl_b32 s{sQT}, s{sFL0}, 3")
    A(f"s_add_u32 s{sQT}, s{sQT}, s{sWAVE}")
    A(f"s_and_b32 s{sT1}, s{sHD}, 1")
    A(f"v_lshlrev_b32 v{R.L16}, 4, v0")
    A(f"s_mul_i32 s{sT2}, s{sT1}, 1536")
    A(f"v_add_u32 v{R.F2S+1}, s{sT2}, v{R.L16}")
    A(f"v_and_b32 v{T}, 31, v0")
    A(f"v_lshrrev_b32 v{T+1}, 5, v0")
    A(f"v_lshlrev_b32 v{R.F2S}, 4, v{T}")
    A(f"v_lshl_add_u32 v{R.F2S}, v{T+1}, 2, v{R.F2S}")
    A(f"s_lshl_b32 s{sT1}, s{sT1}, 3")
    A(f"s_add_u32 s{sT1}, s{sT1}, 1024")
    A(f"v_add_u32 v{R.F2S}, s{sT1}, v{R.F2S}")
    A(f"s_mul_i32 s{sKSRC}, s{sWAVE}, 2560")
    A(f"s_add_u32 s{sKSRC}, s{sKSRC}, s{sKBASE}")
    A(f"s_mul_i32 s{sVSRC}, s{sWAVE}, 1280")
    A(f"s_mul_i32 s{sSLOT}, s{sWAVE}, 2560")
    A(f"v_lshlrev_b32 v{R.L4}, 2, v0")
    A(f"s_add_u32 s{sVSRC}, s{sVSRC}, s{sVBASE}")
    A(f"s_add_u32 s{sKLIM}, s{sKSRC}, {PAIR_STRIDE}")
    A(f"s_mul_i32 s{sT0}, s{sFL0}, {8*1280 if HP and cfg.get('krot', 0) else 0}")
    A(f"s_add_u32 s{sVSRC}, s{sVSRC}, s{sT0}")
    A(f"s_lshl_b32 s{sT0}, s{sT0}, 1")
    A(f"s_add_u32 s{sKSRC}, s{sKSRC}, s{sT0}")
    A(f"s_add_u32 s{sB2}, s{sKBASE}, s{sT0}")
    A("s_waitcnt lgkmcnt(0)")
    srd(A, SWS, SWS, WS_SIZE)
    KVF = cfg.get("kvflag", "")
    def kv_ops(c):
        lds = KV_BASE + (c % NKV) * KV_SLOT
        return [
            [f"s_add_u32 m0, s{sSLOT}, {lds}", "s_nop 0",
             f"buffer_load_dwordx4 v{R.F2S+1}, s[{SWS}:{SWS+3}], s{sKSRC} offen {KVF} lds"],
            [f"s_add_u32 m0, s{sSLOT}, {lds+1024}", "s_nop 0",
             f"buffer_load_dword v{R.F2S}, s[{SWS}:{SWS+3}], s{sKSRC} offen {KVF} lds"],
            [f"s_add_u32 m0, s{sSLOT}, {lds+1280}", f"s_add_u32 s{sKSRC}, s{sKSRC}, {8*2560}",
             f"buffer_load_dwordx4 v{R.L16}, s[{SWS}:{SWS+3}], s{sVSRC} offen {KVF} lds"],
            [f"s_add_u32 m0, s{sSLOT}, {lds+2304}", f"s_add_u32 s{sT0}, s{sVSRC}, 1024",
             f"buffer_load_dword v{R.L4}, s[{SWS}:{SWS+3}], s{sT0} offen {KVF} lds",
             f"s_add_u32 s{sVSRC}, s{sVSRC}, {8*1280}"] +
            ([f"s_cmp_eq_u32 s{sKSRC}, s{sKLIM}", f"s_cselect_b32 s{sT0}, {VHEAD_STRIDE}, 0", f"s_sub_u32 s{sVSRC}, s{sVSRC}, s{sT0}",
              f"s_lshl_b32 s{sT0}, s{sT0}, 1", f"s_sub_u32 s{sKSRC}, s{sKSRC}, s{sT0}"] if HP and cfg.get('krot', 0) else [])]
    def emit(op):
        for x in op: A(x)
    A(f"s_mul_i32 s{sT2}, s{sQT}, 2560")
    A(f"s_add_u32 s{sT2}, s{sT2}, s{sKBASE}")
    A(f"s_add_u32 s{sT2}, s{sT2}, {hex(WS_Q)}")
    A(f"buffer_load_dwordx4 {v(R.Q1,4)}, v{R.F2S+1}, s[{SWS}:{SWS+3}], s{sT2} offen")
    A(f"buffer_load_dword v{R.Q2}, v{R.F2S}, s[{SWS}:{SWS+3}], s{sT2} offen")
    A(f"buffer_load_dwordx4 {v(R.K1,4)}, v{R.F2S+1}, s[{SWS}:{SWS+3}], s{sB2} offen")
    A(f"buffer_load_dword v{R.K2}, v{R.F2S}, s[{SWS}:{SWS+3}], s{sB2} offen")
    PSP = cfg.get("psplit", 3)
    if PSP:
        A(f"s_cmp_ge_u32 s{sWAVE}, {PSP}")
        A("s_cbranch_scc1 L_p0")
    for op in kv_ops(0): emit(op)
    A.label("L_p0")
    A(f"s_lshl_b32 s{sFLAG}, s{sG}, 10")
    A(f"s_add_u32 s{sFLAG}, s{sFLAG}, {hex(WS_SYNC)}")
    A(f"s_getreg_b32 s{sXCC}, hwreg(HW_REG_XCC_ID, 0, 3)")
    A(f"s_mul_i32 s{sXCC}, s{sXCC}, 6")
    A(f"s_lshr_b32 s{sFG}, s{sM}, 2")
    A(f"s_and_b32 s{sT0}, s{sM}, 3")
    A(f"s_lshl_b32 s{sTOK16}, s{sG}, 4")
    A(f"s_lshl_b32 s{sT0}, s{sT0}, 2")
    A(f"s_add_u32 s{sTOK16}, s{sTOK16}, s{sT0}")
    A(f"s_lshl_b32 s{sJ}, s{sFG}, 1")
    A(f"s_and_b32 s{sT0}, s{sM}, 1")
    A(f"s_add_u32 s{sJ}, s{sJ}, s{sT0}")
    A(f"s_and_b32 s{sLW}, s{sWAVE}, 3")
    A(f"s_mul_i32 s{sWOSRC}, s{sFG}, {20*5120}")
    A(f"s_and_b32 s{sKQ}, s{sLW}, 1")
    A(f"s_lshl_b32 s{sKQ}, s{sKQ}, 1")
    A(f"s_lshr_b32 s{sT0}, s{sWAVE}, 2")
    A(f"s_add_u32 s{sKQ}, s{sKQ}, s{sT0}")
    if cfg.get("stag", 3) & 1:
        A(f"s_and_b32 s{sT0}, s{sFG}, 1")
        A(f"s_lshl_b32 s{sT0}, s{sT0}, 1")
        A(f"s_xor_b32 s{sKQ}, s{sKQ}, s{sT0}")
    A(f"s_mul_i32 s{sT0}, s{sKQ}, {5*5120}")
    A(f"s_add_u32 s{sWOSRC}, s{sWOSRC}, s{sT0}")
    A(f"s_add_u32 s{sWOSRC}, s{sWOSRC}, {hex(WS_WO)}")
    A(f"s_mul_i32 s{sWDSRC}, s{sFG}, {48*5120}")
    A(f"s_and_b32 s{sT0}, s{sFG}, {3 if cfg.get('stag', 3) & 2 else 0}")
    A(f"s_xor_b32 s{sT0}, s{sT0}, s{sLW}")
    A(f"s_mul_i32 s{sT0}, s{sT0}, 12")
    A(f"s_and_b32 s{sT1}, s{sWAVE}, 4")
    A(f"s_add_u32 s{sWDRAW}, s{sT0}, s{sT1}")
    A(f"s_mul_i32 s{sT0}, s{sWDRAW}, 5120")
    A(f"s_add_u32 s{sWDSRC}, s{sWDSRC}, s{sT0}")
    A(f"s_add_u32 s{sWDSRC}, s{sWDSRC}, {hex(WS_WD)}")
    A(f"s_mul_i32 s{sGSRC}, s{sLW}, {16*3072}")
    A(f"s_mul_i32 s{sT0}, s{sJ}, 192")
    A(f"s_add_u32 s{sGSRC}, s{sGSRC}, s{sT0}")
    A(f"s_mul_i32 s{sGM0}, s{sLW}, 3072")
    if cfg.get("stag", 3) & 4:
        A(f"s_bfe_u32 s{sT0}, s{sM}, 0x10001")
        A(f"s_mul_i32 s{sT0}, s{sT0}, {cfg.get('gth', 5)}")
        A(f"s_mul_i32 s{sC0}, s{sJ}, {cfg.get('gja', 1)}")
        A(f"s_add_u32 s{sC0}, s{sC0}, s{sT0}")
        A(f"s_mul_i32 s{sT0}, s{sC0}, 6554")
        A(f"s_lshr_b32 s{sT0}, s{sT0}, 16")
        A(f"s_mul_i32 s{sT0}, s{sT0}, 10")
        A(f"s_sub_u32 s{sC0}, s{sC0}, s{sT0}")
    else:
        A(f"s_mov_b32 s{sC0}, 0")
    A(f"s_add_u32 s{sGLIM}, s{sGSRC}, {640*3072}")
    A(f"s_mul_i32 s{sT0}, s{sC0}, {64*3072}")
    A(f"s_add_u32 s{sGSRC}, s{sGSRC}, s{sT0}")
    srd(A, SX, SX, X_BYTES); srd(A, SG_, SG_, 640 * 1536 * 2); srd(A, SU, SU, 640 * 1536 * 2); srd(A, SO, SO, X_BYTES)
    A(f"v_add_u32 v{R.KA}, {KV_BASE}, v{R.L16}")
    A(f"v_add_u32 v{R.K2A}, {KV_BASE + 1024}, v{R.L4}")
    r, kh, aa, hf, b, i_, d1, d2 = T, T+1, T+2, T+3, T+4, T+5, T+6, T+7
    A(f"v_lshrrev_b32 v{aa}, 3, v{r}")
    A(f"v_bfe_u32 v{hf}, v{r}, 2, 1")
    A(f"v_and_b32 v{b}, 3, v{r}")
    A(f"v_lshl_add_u32 v{i_}, v{aa}, 2, v{b}")
    A(f"v_lshl_add_u32 v{d1}, v{hf}, 3, v{i_}")
    A(f"v_lshl_add_u32 v{d2}, v{hf}, 1, v{i_}")
    A(f"v_add_u32 v{d2}, 8, v{d2}")
    A(f"v_cmp_gt_u32 vcc, 8, v{i_}")
    A(f"v_cndmask_b32 v{d1}, v{d2}, v{d1}, vcc")
    A(f"v_min_u32 v{d1}, 19, v{d1}")
    A(f"v_mul_u32_u24 v{R.VA}, 320, v{kh}")
    A(f"v_lshl_add_u32 v{R.VA}, v{d1}, 4, v{R.VA}")
    A(f"v_add_u32 v{R.VA}, {KV_BASE + 1280}, v{R.VA}")
    A(f"v_cmp_eq_u32 vcc, 10, v{i_}")
    A(f"v_mov_b32 v{d2}, 0x3f803f80")
    for k in range(8): A(f"v_cndmask_b32 v{R.V1+k}, 0, v{d2}, vcc")
    A(f"v_cmp_gt_u32 vcc, 32, v0")
    A(f"v_mov_b32 v{d1}, 0x3f80")
    A(f"v_cndmask_b32 v{R.K2+1}, v{d1}, v{d2}, vcc")
    A(f"v_mov_b32 v{R.Q2+1}, 0")
    for jj in range(3):
        A(f"v_add_u32 v{T}, {64*jj}, v0")
        A(f"v_mul_u32_u24 v{T+1}, 5462, v{T}")
        A(f"v_lshrrev_b32 v{T+1}, 16, v{T+1}")
        A(f"v_mul_u32_u24 v{R.GV+jj}, {3072-192}, v{T+1}")
        A(f"v_lshl_add_u32 v{R.GV+jj}, v{T}, 4, v{R.GV+jj}")
        A(f"v_and_b32 v{T+1}, 8, v{T+1}")
        A(f"v_lshlrev_b32 v{T+1}, 2, v{T+1}")
        A(f"v_xor_b32 v{R.GV+jj}, v{R.GV+jj}, v{T+1}")
    A(f"s_mov_b32 s{sVMASK}, 0x0033ffff")
    A(f"s_mov_b32 s{sVMASK+1}, 0x0033ffff")
    S0 = R.S[0]
    X = R.S[1]
    addr_rowmajor(A, R.XRES + 6, R.XRES + 7, X)
    A(f"v_lshlrev_b32 v{R.TCH}, 7, v0")
    A(f"v_mov_b32 v{R.TCH+1}, 0")
    A(f"s_lshl_b64 s[{sTMP}:{sTMP+1}], 1, s{sXCC}")
    A(f"v_mov_b32 v{R.XRES+8}, s{sTMP}")
    A(f"v_mov_b32 v{R.XRES+9}, s{sTMP+1}")
    A(f"s_cmp_ge_u32 s{sWAVE}, 4")
    A(f"s_cselect_b32 s{sTMP}, s{SU}, s{SG_}")
    A(f"s_cselect_b32 s{sTMP+1}, s{SU+1}, s{SG_+1}")
    A(f"s_mov_b32 s{sTMP+2}, {hex(640*1536*2)}")
    A(f"s_mov_b32 s{sTMP+3}, 0x20000")
    A(f"s_cselect_b32 s{sB}, {GU_UP}, 0")
    A(f"s_add_u32 s{sB}, s{sB}, s{sGM0}")
    A(f"s_and_b32 s{sC}, s{sM}, 3")
    A(f"s_lshl_b32 s{sDELTA}, s{sM}, 2")
    A(f"s_add_u32 s{sDELTA}, s{sDELTA}, s{sLW}")
    A(f"s_mul_i32 s{sDELTA}, s{sDELTA}, {12*128}")
    A(f"s_lshl_b32 s{sTO}, s{sG}, 5")
    A(f"s_add_u32 s{sTO}, s{sTO}, s{sM}")
    A(f"s_lshl_b32 s{sTO}, s{sTO}, 3")
    A(f"s_add_u32 s{sTO}, s{sTO}, s{sWAVE}")
    if cfg.get("ctouch", 1):
        code_touch_setup(A, 88, "L_attn_code")
        A(f"s_and_b32 s{sT0}, s{sTO}, 255")
        A(f"s_lshl_b32 s{sT0}, s{sT0}, 7")
        A(f"v_lshlrev_b32 v{X}, 15, v0")
        A(f"v_add_u32 v{X}, s{sT0}, v{X}")
        A(f"v_min_u32 v{R.GV+3}, L_code_end-L_attn_code-4, v{X}")

    A(f"s_mul_i32 s{sT0}, s{sQT}, {2*80*256}")
    A(f"s_lshr_b32 s{sT1}, s{sHD}, 3")
    A(f"s_mul_i32 s{sT1}, s{sT1}, {20*256}")
    A(f"s_add_u32 s{sT0}, s{sT0}, s{sT1}")
    A(f"s_add_u32 s{sT0}, s{sT0}, {hex(WS_O)}")
    L32 = cfg.get("l32", 1)
    A(f"s_lshl_b32 s{sFL0}, s{sFL0}, {12 if L32 else 10}")
    A(f"s_lshl_b32 s{sT2}, s{sHD}, {7 if L32 else 2}")
    A(f"s_add_u32 s{sFL0}, s{sFL0}, s{sT2}")
    A(f"s_add_u32 s{sFL0}, s{sFL0}, {hex(WS_SYNC + (8192 if L32 else 0))}")
    A(f"s_and_b32 s{sT2}, s{sHD}, 7")
    A(f"s_lshl_b32 s{sT1}, s{sT2}, 9")
    A(f"s_add_u32 s{sT1}, s{sT1}, s{sT0}")
    A(f"s_lshl_b32 s{sT2}, s{sT2}, 7")
    A(f"s_add_u32 s{sT0}, s{sT0}, s{sT2}")
    A(f"s_add_u32 s{sT0}, s{sT0}, {16*256}")
    A(f"v_and_b32 v{X}, 15, v0")
    A(f"v_bfe_u32 v{X+1}, v0, 4, 1")
    A(f"v_lshrrev_b32 v{X+2}, 5, v0")
    A(f"v_mul_u32_u24 v{X+1}, {80*256}, v{X+1}")
    A(f"v_lshl_add_u32 v{T+7}, v{X}, 3, v{X+1}")
    A(f"v_add_u32 v{T+7}, s{sT0}, v{T+7}")
    A(f"v_lshl_add_u32 v{T+6}, v{X}, 4, v{X+1}")
    A(f"v_lshl_add_u32 v{T+6}, v{X+2}, 8, v{T+6}")
    A(f"v_add_u32 v{T+6}, s{sT1}, v{T+6}")
    A(f"s_mov_b32 s92, {fhex(2.0**-40)}")
    A(f"s_mov_b32 s93, {fhex(2.0**64)}")
    A(f"s_mov_b32 s94, {fhex(2.0**127)}")
    JUNK = R.XRES + 11
    def gu_op(c, jj):
        return [f"s_add_u32 m0, s{sB}, {c*GU_SLOT + jj*1024}", "s_nop 0",
                f"buffer_load_dwordx4 v{R.GV+jj}, s[{sTMP}:{sTMP+3}], s{sGSRC} offen lds"] + ([f"s_add_u32 s{sGSRC}, s{sGSRC}, {64*3072}", f"s_cmp_eq_u32 s{sGSRC}, s{sGLIM}", f"s_cselect_b32 s{sT0}, {640*3072}, 0", f"s_sub_u32 s{sGSRC}, s{sGSRC}, s{sT0}"] if jj == 2 else [])
    def touch(n, srd_, pre):
        return pre + [f"s_bfm_b64 exec, {n}, 0", f"buffer_load_dword v{JUNK}, v{R.TCH}, s[{srd_}:{srd_+3}], s{sT0} offen", "s_mov_b64 exec, -1"]
    def gu_touch(c): return touch(12, sTMP, [f"s_add_u32 s{sT0}, s{sDELTA}, {c*64*3072}"])
    def out_touch(base, nbytes, l0=0, n=None):
        return touch(n or nbytes // 128, SWS, [f"s_mul_i32 s{sT0}, s{sTO}, {nbytes}", f"s_add_u32 s{sT0}, s{sT0}, {hex(base + l0*128)}",
                                          f"s_cmp_lg_u32 s{sFAST}, 0", f"s_cselect_b32 s{sT0}, s{sT0}, {hex(WS_SIZE)}"])
    sched = {t: [] for t in range(64)}
    trs = {}
    misc = {}
    vm = []
    def put(t, tag, op):
        while len(sched[t]) >= 3: t += 1
        sched[t].append((tag, op)); return t
    for i, op in enumerate(kv_ops(1)): put(i // 2, "kv1", op)
    for c in range(2, 8):
        for i, op in enumerate(kv_ops(c)): put(8 * (c - 2) + 6 + i // 2, f"kv{c}", op)
    pf = []
    def frag_op(src, i, dst):
        pre = [f"s_add_u32 s{sSTG}, s{src}, {i*1024}"] if i % 4 == 0 else []
        return pre + [f"buffer_load_dwordx4 {a(dst+4*i,4)}, v{R.L16}, s[{SWS}:{SWS+3}], s{sSTG} offen offset:{(i%4)*1024}"]
    for i in range(10): pf.append(frag_op(sWDSRC, i, 100))
    for i in range(25): pf.append(frag_op(sWOSRC, i, 0))
    for c in range(4):
        for jj in range(3): pf.append(gu_op(c, jj))
    if cfg.get("nopf"): pf = []
    free = [t for t in range(cfg.get('pf0', 2), 64) if t % 8 < cfg.get('pfm', 6) or t > 48]
    num, den = cfg.get("pf_rate", [1, 1])
    for i, op in enumerate(pf): put(free[i * den // num], "pf", op)
    put(0, "at", ["s_cmp_eq_u32 s%d, 0" % sWAVE, f"s_cselect_b32 s{sT0}, s{sFLAG}, {hex(WS_SIZE)}", "s_mov_b64 exec, 1",
                  f"buffer_atomic_add_x2 {v(R.XRES+8,2)}, v{R.TCH+1}, s[{SWS}:{SWS+3}], s{sT0} offen offset:512 sc1", "s_mov_b64 exec, -1"])
    put(12, "pf", [f"buffer_load_dwordx4 {v(R.XRES,4)}, v{R.XRES+6}, s[{SX}:{SX+3}], 0 offen"])
    put(16, "pf", [f"buffer_load_dwordx2 {v(R.XRES+4,2)}, v{R.XRES+7}, s[{SX}:{SX+3}], 0 offen"])
    put(cfg.get("xcc_ld", 10), "xcc", [f"buffer_load_dwordx2 {v(R.XRES+8,2)}, v{R.TCH+1}, s[{SWS}:{SWS+3}], s{sFLAG} offen offset:512 sc1"])
    misc[cfg.get('xcc_rd', 23)] = ("xcc", [f"v_readfirstlane_b32 s{sFAST-1}, v{R.XRES+8}" , f"v_readfirstlane_b32 s{sFAST}, v{R.XRES+9}"])
    gwarm = touch(15, sTMP, [f"s_lshr_b32 s{sT0}, s{sTO}, 3", f"s_lshl_b32 s{sT0}, s{sT0}, 2", f"s_add_u32 s{sT0}, s{sT0}, s{sLW}", f"s_mul_i32 s{sT0}, s{sT0}, {15*128}"])
    if cfg.get("gwarm_at", -1) >= 0: put(cfg.get("gwarm_at", -1), "pf", gwarm)
    wd01_touch = touch(20, SWS, [f"s_mul_i32 s{sT0}, s{sC}, 2560", f"s_add_u32 s{sT0}, s{sT0}, s{sWDSRC}"])
    wo_touch = touch(25, SWS, [f"s_lshr_b32 s{sT0}, s{sWAVE}, 2", f"s_lshl_b32 s{sT1}, s{sC}, 1", f"s_add_u32 s{sT0}, s{sT0}, s{sT1}",
                               f"s_mul_i32 s{sT0}, s{sT0}, 3200", f"s_add_u32 s{sT0}, s{sT0}, s{sWOSRC}"])
    gw2 = touch(6, sTMP, [f"s_lshr_b32 s{sT0}, s{sTO}, 3", f"s_lshl_b32 s{sT0}, s{sT0}, 2", f"s_add_u32 s{sT0}, s{sT0}, s{sLW}", f"s_mul_i32 s{sT0}, s{sT0}, {6*128}",
                          f"s_add_u32 s{sT0}, s{sT0}, {6*64*3072}"])
    def gwp(k, n):
        return touch(n, sTMP, [f"s_lshr_b32 s{sT0}, s{sTO}, 3", f"s_lshl_b32 s{sT0}, s{sT0}, 2", f"s_add_u32 s{sT0}, s{sT0}, s{sLW}", f"s_mul_i32 s{sT0}, s{sT0}, {n*128}",
                               f"s_add_u32 s{sT0}, s{sT0}, {k*n*1024*128}"])
    extra = {"p0": gwp(0, 5), "p1": gwp(1, 5), "p2": gwp(2, 5), "q0": gwp(0, 3), "q1": gwp(1, 3), "q2": gwp(2, 3), "q3": gwp(3, 3), "q4": gwp(4, 3), "wd01": wd01_touch, "wo": wo_touch, "gw2": gw2, "gw": gwarm}
    def wdt(k): return touch(20, SWS, [f"s_lshl_b32 s{sT0}, s{sM}, 3", f"s_add_u32 s{sT0}, s{sT0}, s{sWAVE}", f"s_mul_i32 s{sT0}, s{sT0}, {60*128}", f"s_add_u32 s{sT0}, s{sT0}, {WS_WD + k*20*128}"])
    extra.update({"d0": wdt(0), "d1": wdt(1), "d2": wdt(2)})
    wd_touch = None
    for t, op in cfg_touch_plan(cfg, gu_touch, out_touch, wd_touch, extra): put(t, "pf", op)
    HIDT = None
    if cfg.get("tlb", 0) & 2:
        put(20, "pf", ["s_mov_b64 exec, 1", f"buffer_load_dword v{JUNK}, v{R.XRES+6}, s[{SO}:{SO+3}], 0 offen", "s_mov_b64 exec, -1"])
    if cfg.get("ctouch", 1):
        for t in cfg.get("ct_at", [1, 52]):
            put(t, "pf", ["s_mov_b64 exec, 3", f"global_load_dword v{JUNK}, v{R.GV+3}, s[88:89]", "s_mov_b64 exec, -1"])

    if PSP:
        A(f"s_cmp_lt_u32 s{sWAVE}, {PSP}")
        A("s_cbranch_scc1 L_p1")
        A("s_waitcnt vmcnt(0)")
        for op in kv_ops(0): emit(op)
        A.label("L_p1")
    A("s_waitcnt vmcnt(4)")
    A(f"v_mfma_f32_32x32x16_bf16 {v(S0,16)}, {v(R.K1,4)}, {v(R.Q1,4)}, 0")
    A(f"v_mfma_f32_32x32x8_bf16 {v(S0,16)}, {v(R.K2,2)}, {v(R.Q2,2)}, {v(S0,16)}")
    max16(A, R.P, S0, True)
    xhalf_max(A, R.P, R.P+1)
    set_shift(A, R.P)
    A(f"v_mfma_f32_32x32x16_bf16 {v(S0,16)}, {v(R.K1,4)}, {v(R.Q1,4)}, 0")
    A(f"v_mfma_f32_32x32x8_bf16 {v(S0,16)}, {v(R.K2,2)}, {v(R.Q2,2)}, {v(S0,16)}")
    def toff(t): return ((t // 8) % 3) * KV_SLOT + (t % 8) * 2560
    def tdelta(t): return 0
    if PSP:
        A(f"s_cmp_ge_u32 s{sWAVE}, {PSP}")
        A("s_nop 1")
        A("s_cbranch_scc1 L_p2")
    A("s_waitcnt vmcnt(0)")
    A.label("L_p2")
    A("s_barrier")
    vm += ["kv0"] * 4
    A(f"ds_read_b128 {v(R.K1,4)}, v{R.KA} offset:{toff(1)}")
    A(f"ds_read_b32 v{R.K2}, v{R.K2A} offset:{toff(1)}")
    A(f"s_mov_b64 exec, s[{sVMASK}:{sVMASK+1}]")
    A(f"ds_read_b128 {v(R.V1,4)}, v{R.VA}")
    A("s_mov_b64 exec, -1")
    stamp(A, cfg, 1)
    PRIO = cfg.get("prio", {6: 3, 2: 2, 4: 1, 5: 0})
    A("s_setprio 3")
    A.label("L_attn_code")
    def vwait(tag): A(f"s_waitcnt vmcnt({len(vm) - 1 - max(i for i, x in enumerate(vm) if x == tag)})")
    for t in range(64):
        cur, nxt = R.S[t % 2], R.S[(t + 1) % 2]
        def E(i): A(f"v_exp_f32 v{cur+i}, v{cur+i}")
        def C(k): A(f"v_cvt_pk_bf16_f32 v{R.P+k}, v{cur+2*k}, v{cur+2*k+1}")
        ops_t = list(sched[t])
        def V():
            if ops_t:
                tag, op = ops_t.pop(0); emit(op); vm.append(tag)
        tr = []
        if t in trs: tr = list(trs[t][1])
        def L(n):
            for _ in range(n):
                if tr: A(tr.pop(0))
        if PSP and t == PSP - 2:
            vwait("kv0")
            A("s_barrier")
        if t % 8 == 6 and t < 56:
            vwait(f"kv{t//8+1}")
            A("s_barrier")
        if cfg.get("ats") and t % 8 == 6: A(f"s_memtime s[{64+2*(t//8)}:{65+2*(t//8)}]")
        if t < 56 and t % 8 in PRIO: A(f"s_setprio {PRIO[t % 8]}")
        if t >= 56 and (t - 2) % 8 in PRIO and t > 56: A(f"s_setprio {PRIO[(t - 2) % 8]}")
        if t < 63:
            A(f"s_waitcnt lgkmcnt({2 if t else 1})")
            A(f"v_mfma_f32_32x32x16_bf16 {v(nxt,16)}, {v(R.K1,4)}, {v(R.Q1,4)}, 0")
        E(0); E(1); V(); E(2); C(0); E(3)
        A("s_waitcnt lgkmcnt(0)")
        if t: A(f"v_mfma_f32_32x32x16_bf16 {v(R.O,16)}, {v(R.V2,4)}, {v(R.P+4,4)}, {v(R.O,16)}")
        if t in trs and trs[t][0]: vwait(trs[t][0])
        if t in misc:
            vwait(misc[t][0])
            A(f"s_mov_b32 s{sT1}, s{sFAST-1}")
            emit(misc[t][1])
            A(f"s_lshr_b64 s[{sFAST-1}:{sFAST}], s[{sFAST-1}:{sFAST}], s{sXCC}")
            A(f"s_and_b32 s{sFAST}, s{sFAST-1}, 63")
            A(f"s_mov_b32 s{sFAST-1}, s{sT1}")
            A(f"s_cmp_eq_u32 s{sFAST}, 32")
            A(f"s_cselect_b32 s{sFAST}, {0 if cfg.get('noFast') else 1}, 0")
        L(2); E(4); C(1); L(2); E(5); V(); E(6); L(1); C(2); E(7)
        if t < 63: A(f"v_mfma_f32_32x32x8_bf16 {v(nxt,16)}, {v(R.K2,2)}, {v(R.Q2,2)}, {v(nxt,16)}")
        if t < 62:
            if tdelta(t + 2):
                A(f"v_add_u32 v{R.KA}, {tdelta(t+2)}, v{R.KA}")
                A(f"v_add_u32 v{R.K2A}, {tdelta(t+2)}, v{R.K2A}")
            A(f"ds_read_b128 {v(R.K1,4)}, v{R.KA} offset:{toff(t+2)}")
            A(f"ds_read_b32 v{R.K2}, v{R.K2A} offset:{toff(t+2)}")
        E(8); C(3); E(9); V(); E(10); C(4); E(11)
        A(f"v_mfma_f32_32x32x16_bf16 {v(R.O,16)}, {v(R.V1,4)}, {v(R.P,4)}, {v(R.O,16) if t else 0}")
        A(f"s_mov_b64 exec, s[{sVMASK}:{sVMASK+1}]")
        A(f"ds_read_b128 {v(R.V2,4)}, v{R.VA} offset:{toff(t) + 640}")
        if t < 63:
            if tdelta(t + 1): A(f"v_add_u32 v{R.VA}, {tdelta(t+1)}, v{R.VA}")
            A(f"ds_read_b128 {v(R.V1,4)}, v{R.VA} offset:{toff(t+1)}")
        A("s_mov_b64 exec, -1")
        E(12); C(5); E(13); E(14); E(15); C(6); C(7)
        assert not ops_t and not tr
    A("s_waitcnt lgkmcnt(0)")
    A(f"v_mfma_f32_32x32x16_bf16 {v(R.O,16)}, {v(R.V2,4)}, {v(R.P+4,4)}, {v(R.O,16)}")
    A.label("L_post_attn")
    if cfg.get("ats"):
        for c in range(11): A(f"s_sub_u32 s{65+2*c}, s{64+2*c}, s63")
        A("v_mov_b32 v78, v0")
        A("v_mov_b32 v110, v2")
        A("v_mov_b32 v109, v3")
        stamp_flush(A, cfg, 13, 17, SWS, sWAVE, 0)
        A("s_mov_b64 exec, -1")
        A("v_mov_b32 v0, v78")
        A("v_mov_b32 v2, v110")
        A("v_mov_b32 v3, v109")
    A("s_setprio 0")
    stamp(A, cfg, 2)
    N = R.S[0]
    A(f"v_rcp_f32 v{T}, v{R.O+10}")
    A(f"v_max3_f32 v{T+1}, abs(v{R.O}), abs(v{R.O+1}), abs(v{R.O+2})")
    A(f"v_cmp_le_f32 vcc, s92, v{R.O+10}")
    A(f"v_cmp_ge_f32 s[{sTMP}:{sTMP+1}], s93, v{R.O+10}")
    for k in (3, 5, 7): A(f"v_max3_f32 v{T+1}, v{T+1}, abs(v{R.O+k}), abs(v{R.O+k+1})")
    A(f"v_max_f32_e64 v{T+1}, v{T+1}, abs(v{R.O+9})")
    A(f"s_and_b64 vcc, vcc, s[{sTMP}:{sTMP+1}]")
    A(f"v_cmp_ge_f32 s[{sTMP+2}:{sTMP+3}], s94, v{T+1}")
    def norm():
        for k in (8, 9, 0, 1, 2, 3, 4, 5, 6, 7): A(f"v_mul_f32 v{N+k}, v{T}, v{R.O+k}")
    norm()
    A(f"s_and_b64 vcc, vcc, s[{sTMP+2}:{sTMP+3}]")
    A(f"s_cmp_eq_u64 vcc, -1" if not cfg.get("force_slow") else "s_cmp_eq_u32 s2, -1")
    A("s_cbranch_scc0 L_attn_slow")
    A.label("L_attn_norm")
    A(f"v_cvt_pk_bf16_f32 v{N+10}, v{N+8}, v{N+9}")
    A(f"v_cvt_pk_bf16_f32 v{N+11}, v{N+8}, v{N+9}")
    for k in range(4): A(f"v_cvt_pk_bf16_f32 v{N+k}, v{N+2*k}, v{N+2*k+1}")
    A(f"v_permlane32_swap_b32 v{N+10}, v{N+11}")
    stores(A, [f"buffer_store_dwordx4 {v(N,4)}, v{T+6}, s[{SWS}:{SWS+3}], 0 offen",
               "s_mov_b32 exec_hi, 0",
               f"buffer_store_dwordx2 {v(N+10,2)}, v{T+7}, s[{SWS}:{SWS+3}], 0 offen",
               "s_mov_b32 exec_hi, -1"], data="O")
    A(f"v_and_b32 v{T+4}, 15, v0")
    A(f"v_lshrrev_b32 v{T+3}, 5, v0")
    A(f"v_lshlrev_b32 v{T+1}, 4, v{T+4}")
    A(f"v_lshl_add_u32 v{T+1}, v{T+3}, 8, v{T+1}")
    A(f"v_lshrrev_b32 v{T+5}, 4, v0")
    A(f"v_lshlrev_b32 v{T+5}, 8, v{T+5}")
    A(f"v_lshl_add_u32 v7, v{T+4}, 3, v{T+5}")
    A(f"v_add_u32 v7, 4096, v7")

    BF, ACC = 16, 56
    vHP, vHS, vPW, RA = 108, 109, 3, 5
    A(f"s_lshr_b32 s{sT2}, s{sWAVE}, 2")
    A(f"s_mul_i32 s{sT1}, s{sKQ}, {20*256}")
    A(f"s_add_u32 s{sT1}, s{sT1}, {hex(WS_O)}")
    A(f"s_add_u32 s{sB2}, s{sLW}, s{sTOK16}")
    A(f"s_xor_b32 s{sB}, s{sB2}, 1")
    A(f"s_mul_i32 s{sB}, s{sB}, {80*256}")
    A(f"s_add_u32 s{sB}, s{sB}, s{sT1}")
    A(f"s_mul_i32 s{sB2}, s{sB2}, {80*256}")
    A(f"s_add_u32 s{sB2}, s{sB2}, s{sT1}")
    A(f"s_xor_b32 s{sT0}, s{sLW}, 1")
    A(f"s_mul_i32 s{sT0}, s{sT0}, 5120")
    A(f"s_add_u32 s{sT0}, s{sT0}, {PART_BASE}")
    A(f"v_add_u32 v{vPW}, s{sT0}, v{R.L16}")
    A(f"s_mul_i32 s{sT0}, s{sLW}, 5120")
    A(f"s_add_u32 s{sT0}, s{sT0}, {PART_BASE}")
    A(f"v_add_u32 v6, s{sT0}, v{R.L16}")
    A(f"s_add_u32 s{sT0}, s{sLW}, s{sTOK16}")
    A(f"s_lshl_b32 s{sC}, s{sT0}, 11")
    A(f"s_mul_i32 s{sT0}, s{sT0}, {80*256}")
    A(f"s_mul_i32 s{sT1}, s{sFG}, 2560")
    A(f"s_add_u32 s{sT0}, s{sT0}, s{sT1}")
    A(f"s_add_u32 s{sT0}, s{sT0}, {hex(WS_H)}")
    A(f"v_add_u32 v{T+1}, 2048, v{T+1}")
    A(f"v_add_u32 v{vHS}, s{sT0}, v{T+1}")
    A(f"s_lshl_b32 s{sT1}, s{sT2}, 10")
    A(f"s_add_u32 s{sT0}, s{sT0}, s{sT1}")
    A(f"v_add_u32 v{vHP}, s{sT0}, v{R.L16}")
    A(f"s_lshl_b32 s{sT1}, s{sFG}, 1")
    A(f"s_add_u32 s{sT1}, s{sT1}, s{sT2}")
    A(f"s_lshl_b32 s{sT1}, s{sT1}, 7")
    A(f"s_add_u32 s{sC}, s{sC}, s{sT1}")
    A(f"s_add_u32 s{sC}, s{sC}, {hex(WS_ST2)}")
    reduce_addr(A, 3, PART_BASE, RA)
    sGT = sQT
    A(f"s_and_b32 s{sGT}, s{sTOK16}, -8")
    A(f"s_lshl_b32 s{sT0}, s{sLW}, 1")
    A(f"s_add_u32 s{sGT}, s{sGT}, s{sT0}")
    sHSRC, sHM0 = sKBASE, sVBASE
    A(f"s_mul_i32 s{sHSRC}, s{sGT}, {80*256}")
    A(f"s_add_u32 s{sHSRC}, s{sHSRC}, {hex(WS_H)}")
    A(f"s_lshl_b32 s{sHM0}, s{sLW}, 12")
    A(f"s_add_u32 s{sTO}, s{sHSRC}, {80*256}")
    A(f"s_lshl_b32 s{sT0}, s{sC0}, 11")
    A(f"s_add_u32 s{sHSRC}, s{sHSRC}, s{sT0}")
    stamp(A, cfg, 3)
    M8 = 0x0101010101010101
    sync(A, 0, 0, False, 0, rb=[(M8, [f"buffer_load_dword v{JUNK}, v{T+6}, s[{SWS}:{SWS+3}], 0 offen"]),
                                (0x00010001, [f"buffer_load_dword v{JUNK}, v{T+7}, s[{SWS}:{SWS+3}], 0 offen"])])
    stamp(A, cfg, 4)
    def wo_load(q, BF=BF):
        i, st = divmod(q, 5)
        if st < 4: A(f"buffer_load_dwordx4 {v(BF+20*i+4*st,4)}, v{R.L16}, s[{SWS}:{SWS+3}], s{sB2 if i else sB} offen offset:{st*1024} {cfg.get('wold', 'sc1')}")
        else:
            for e in range(2): A(f"buffer_load_dwordx2 {v(BF+20*i+16+2*e,2)}, v7, s[{SWS}:{SWS+3}], s{sB2 if i else sB} offen offset:{128*e} {cfg.get('wold', 'sc1')}")
        return [q] * (2 if st == 4 else 1)
    WL0 = cfg.get("wl0", 4)
    wq0 = []
    for q in range(WL0): wq0 += wo_load(q)
    if cfg.get("wts"): A("s_memtime s[72:73]")
    EW = cfg.get("ew", [4, 1, 0])
    FSUB = lambda f: 1 if f in (2, 3) else 0
    def wo_main(sub, ACC=ACC, BF=BF, vPW=vPW):
        keep = [f for f in range(5) if FSUB(f) == sub]
        order = [f for f in range(5) if f not in keep] + keep
        wq = list(wq0); nq = WL0
        for i in range(2):
            for st in range(5):
                A(f"s_waitcnt vmcnt({len(wq) - 1 - max(k for k, x in enumerate(wq) if x == 5*i+st)})")
                for _ in range(cfg.get("wlr", 1)):
                    if nq < 10: wq += wo_load(nq); nq += 1
                if cfg.get("wts") and (5 * i + st) in (0, 2, 4, 5, 7, 9): A(f"s_memtime s[{74+2*(0,2,4,5,7,9).index(5*i+st)}:{75+2*(0,2,4,5,7,9).index(5*i+st)}]")
                for f in order:
                    acc = v(ACC + 20 * i + 4 * f, 4)
                    A(f"v_mfma_f32_16x16x32_bf16 {acc}, {a(20*st+4*f,4)}, {v(BF+20*i+4*st,4)}, {acc if st else 0}")
                if i == 1:
                    f = order[st]
                    A(f"ds_write_b128 v{vPW}, {v(ACC+4*f,4)} offset:{(1 if FSUB(f) == sub else 2)*20480 + f*1024}")
        for f in order:
            if f not in keep: A(f"ds_write_b128 v6, {v(ACC+20+4*f,4)} offset:{f*1024}")
        for op in (load_wd_ops(2) + load_wd_ops(3))[:EW[0]]: emit(op)
        stamp(A, cfg, 5)
        if cfg.get("wts"):
            for k in range(7): A(f"s_sub_u32 s{73+2*k}, s{72+2*k}, s69")
            A("s_sub_u32 s71, s71, s69")
            A("v_mov_b32 v110, v0")
            A("v_mov_b32 v1, v3")
            stamp_flush(A, cfg, 13, 17, SWS, sWAVE, cfg.get("tswave", 0))
            A("s_mov_b64 exec, -1")
            A("v_mov_b32 v0, v110")
            A("v_mov_b32 v3, v1")
        return [ACC + 20 + 4 * f for f in keep]
    D = 16
    TRA, VB, VST = 1, 2, 3
    G1, Gh, rho, c0, c1 = T+2, T+3, T+4, T+5, T+6
    def wo_tail(n):
        own = wo_main(3 - n)
        XF = 56
        A("s_waitcnt lgkmcnt(0)")
        A("s_barrier")
        def mid():
            for op in (load_wd_ops(2) + load_wd_ops(3))[EW[0]:EW[0]+EW[1]]: emit(op)
            for i in range(2 * n):
                A(f"v_lshlrev_b32 v{XF+2*i}, 16, v{R.XRES+i}")
                A(f"v_and_b32 v{XF+2*i+1}, 0xffff0000, v{R.XRES+i}")
            for i in range(2 * n): A(f"v_pk_add_f32 {v(own[i//2]+2*(i%2),2)}, {v(own[i//2]+2*(i%2),2)}, {v(XF+2*i,2)}")
            A(f"v_mov_b32 v{T+2}, 0x3f803f80")
            A(f"v_lshlrev_b32 v{T+3}, 3, v0")
        reduce_sum(A, 3, D, RA, n, own, mid)
        src = lambda i: own[i // 2] + 2 * (i % 2)
        for i in range(4): A(f"v_cvt_pk_bf16_f32 v{D+i}, v{src(i)}, v{src(i)+1}")
        stores(A, [f"buffer_store_dwordx4 {v(D,4)}, v{vHP}, s[{SWS}:{SWS+3}], 0 offen"])
        if n == 3:
            E = D + 12
            for i in range(4): A(f"v_cvt_pk_bf16_f32 v{E+i}, v{src(4+i%2)}, v{src(4+i%2)+1}")
            for i in (4, 5): A(f"v_cvt_pk_bf16_f32 v{D+i}, v{src(i)}, v{src(i)+1}")
            A(f"v_permlane16_swap_b32 v{E}, v{E+2}")
            A(f"v_permlane16_swap_b32 v{E+1}, v{E+3}")
            stores(A, ["s_mov_b32 exec_lo, 0xffff", "s_mov_b32 exec_hi, 0xffff",
                       f"buffer_store_dwordx4 {v(E,4)}, v{vHS}, s[{SWS}:{SWS+3}], 0 offen", "s_mov_b64 exec, -1"])
        sm, sq = D + 8, D + 9
        for i in range(2 * n):
            A(f"v_dot2_f32_bf16 v{sm}, v{D+i}, v{T+2}, {'v%d' % sm if i else 0}")
            A(f"v_dot2_f32_bf16 v{sq}, v{D+i}, v{D+i}, {'v%d' % sq if i else 0}")
        for i in range(3): A(f"v_accvgpr_write_b32 a{A_RES(i)}, v{D+i}")
        for op in ("v_permlane16_swap_b32", "v_permlane32_swap_b32"):
            A(f"v_mov_b32 v{T}, v{sm}")
            A(f"v_mov_b32 v{T+1}, v{sq}")
            A(f"{op} v{sm}, v{T}")
            A(f"{op} v{sq}, v{T+1}")
            A(f"v_pk_add_f32 {v(sm,2)}, {v(sm,2)}, {v(T,2)}")
        A("s_mov_b64 exec, 0xffff")
        stores(A, [f"buffer_store_dwordx2 {v(sm,2)}, v{T+3}, s[{SWS}:{SWS+3}], s{sC} offen"])
        A("s_mov_b64 exec, -1")
        for op in (load_wd_ops(2) + load_wd_ops(3))[EW[0]+EW[1]:sum(EW)]: emit(op)
        for i in range(3, 2 * n): A(f"v_accvgpr_write_b32 a{A_RES(i)}, v{D+i}")
        A(f"v_bfe_u32 v{G1}, v0, 4, 1")
        A(f"v_lshrrev_b32 v{Gh}, 5, v0")
    def h_dma_ops(c):
        return [[f"s_add_u32 m0, s{sHM0}, {H_BASE + (c%NHS)*16384 + k*1024}", f"s_add_u32 s{sT0}, s{sHSRC}, {(k//2)*80*256 + (k%2)*1024}",
                 f"buffer_load_dwordx4 v{R.L16}, s[{SWS}:{SWS+3}], s{sT0} offen sc1 lds"] +
                ([f"s_add_u32 s{sHSRC}, s{sHSRC}, 2048", f"s_cmp_eq_u32 s{sHSRC}, s{sTO}", f"s_cselect_b32 s{sT0}, {80*256}, 0",
                  f"s_sub_u32 s{sHSRC}, s{sHSRC}, s{sT0}"] if k == 3 else []) for k in range(4)]
    A(f"s_cmp_ge_u32 s{sWAVE}, 4")
    A("s_cbranch_scc1 L_gu_loader")
    wo_tail(3)

    L_CF = GU_MISC
    L_MB = GU_MISC + 3072
    L_RS = GU_MISC + 4096
    L_ZERO = GU_MISC + 4608
    ACC = 16
    HF, WF, ONE = 0, 32, 48
    CS = lambda j: 52 if j == 0 else 56 + 4 * j
    TR = (1, 2, 3)
    TRX, VB, VST = (5, 6, 7), T + 4, T + 6
    sTH, sFH = sKSRC, sVSRC
    A(f"s_and_b32 s{sTH}, s{sWAVE}, 1")
    A(f"s_lshr_b32 s{sFH}, s{sWAVE}, 1")
    A(f"v_lshrrev_b32 v{T}, 4, v0")
    A(f"v_bfe_u32 v{T+1}, v0, 2, 2")
    A(f"v_lshl_add_u32 v{T}, v{T}, 3, v{T+1}")
    A(f"v_mul_u32_u24 v{T}, 192, v{T}")
    A(f"v_and_b32 v{T+1}, 3, v0")
    A(f"v_lshl_add_u32 v{T}, v{T+1}, 3, v{T}")
    A(f"s_mul_i32 s{sT1}, s{sTH}, {32*192}")
    for jt in range(3):
        A(f"s_mul_i32 s{sT0}, s{sFH}, 3")
        A(f"s_add_u32 s{sT0}, s{sT0}, {jt}")
        A(f"v_xor_b32 v{T+1}, s{sT0}, v{G1}")
        A(f"v_lshl_add_u32 v{T+1}, v{T+1}, 5, v{T}")
        A(f"v_add_u32 v{TR[jt]}, s{sT1}, v{T+1}")
        A(f"v_subrev_u32 v{TRX[jt]}, s{sT1}, v{T+1}")
    A(f"v_mov_b32 v{T}, 0x3f803f80")
    for i in range(4): A(f"v_accvgpr_write_b32 a{ONE+i}, v{T}")
    A(f"s_mul_i32 s{sT0}, s{sTH}, {8192 + 1024}")
    A(f"s_add_u32 s{sT0}, s{sT0}, {H_BASE}")
    A(f"v_add_u32 v{VB}, s{sT0}, v{R.L16}")
    A(f"s_mul_i32 s{sT0}, s{sTH}, {8192 - 1024}")
    A(f"s_add_u32 s{sT0}, s{sT0}, {H_BASE}")
    A(f"v_add_u32 v{VB+1}, s{sT0}, v{R.L16}")
    A(f"v_and_b32 v{T}, 15, v0")
    A(f"v_lshlrev_b32 v{T}, 4, v{T}")
    A(f"v_lshl_add_u32 v{T}, v{Gh}, 8, v{T}")
    A(f"v_lshl_add_u32 v{VST}, v{G1}, 9, v{T}")
    A(f"v_mul_u32_u24 v{T+1}, {192*256}, v{G1}")
    A(f"v_add3_u32 v{VST+1}, v{T}, v{T+1}, 0")
    lq = []
    def wread(n, us=(0, 1)):
        st, j = divmod(n, 6)
        kb = st % 2
        for u in us:
            A(f"ds_read_b64_tr_b16 {a(WF+4*(n%4)+2*u,2)}, v{(TRX if kb else TR)[j//2]} offset:{(32*kb+4*u)*192 + (j%2)*GU_UP}"); lq.append(("W", n))
    def hread(st, i):
        c, kb = divmod(st, 2)
        A(f"ds_read_b128 {a(HF+16*(st%2)+4*i,4)}, v{VB+kb} offset:{(c%NHS)*16384 + i*2048 + kb*1024}"); lq.append(("H", st, i))
    for n in range(3): wread(n)
    stamp(A, cfg, 6)
    sync(A, 1, 0, True, EW[2], rb=[(M8, [f"buffer_load_dword v{T+2}, v{vHP}, s[{SWS}:{SWS+3}], 0 offen"]),
                               (0x0000010100000101, [f"buffer_load_dword v{T+2}, v{vHS}, s[{SWS}:{SWS+3}], 0 offen"])])
    stamp(A, cfg, 7)
    if cfg.get("gts"): A("s_mov_b32 s90, s75")
    for op in h_dma_ops(0)[:2]: emit(op)
    A("s_waitcnt vmcnt(0)")
    A("s_barrier")
    for i in range(4): hread(0, i)
    wd3 = (load_wd_ops(2) + load_wd_ops(3))[sum(EW):]
    assert sum(EW) == 5
    def lwait(tags): A(f"s_waitcnt lgkmcnt({min(15, len(lq) - 1 - max(i for i, x in enumerate(lq) if x in tags))})")
    CFA, MBA = HF, HF + 12
    valu = []
    LATE = cfg.get('wlate', 0)
    for st in range(20):
        c, kb = divmod(st, 2)
        for j in range(6):
            n = 6 * st + j
            bar = kb == 1 and j == 3 and st < 19
            if bar:
                if LATE: lwait([("W", n)])
                else: A("s_waitcnt lgkmcnt(0)")
                if cfg.get("gts") == 2: A(f"s_memtime s[{60+2*c}:{61+2*c}]")
                A("s_barrier")
                if cfg.get("gts") == 1: A(f"s_memtime s[{60+2*c}:{61+2*c}]")
                d = GU_SLOT if (c + 1) % NWS else -(NWS - 1) * GU_SLOT
                for r in TR: A(f"v_add_u32 v{r}, {d & 0xffffffff}, v{r}")
            elif LATE or not (kb == 1 and j > 3 and st < 19):
                lwait([("W", n)] + ([("H", st, 3)] if j == 0 else []))
            if kb == 0 and j == 0 and st:
                d = GU_SLOT if c % NWS else -(NWS - 1) * GU_SLOT
                for r in TRX: A(f"v_add_u32 v{r}, {d & 0xffffffff}, v{r}")
            ex = []
            if n + 3 < 120: ex += [lambda n=n: wread(n + 3, (0,)), lambda n=n: wread(n + 3, (1,))]
            if st < 19:
                hs = {0: {1: (0,), 2: (1,), 3: (2,), 4: (3,)}, 1: {3: (0, 1), 4: (2, 3)}}[kb].get(j, ())
                for i in hs: ex.append(lambda i=i: hread(st + 1, i))
            if st == 19 and j == 0:
                for jj in range(6):
                    x = T + 2 * (jj % 2); y = T + 4
                    valu += [f"v_accvgpr_read_b32 v{y}, a{CS(jj)}", f"v_cvt_pk_bf16_f32 v{x+1}, v{y}, v{y}", f"v_and_b32 v{x+1}, 0xffff0000, v{x+1}",
                             f"v_sub_f32 v{y}, v{y}, v{x+1}", f"v_cvt_pk_bf16_f32 v{x}, v{x+1}, v{y}", f"v_lshrrev_b32 v{x+1}, 16, v{x+1}",
                             f"ds_write_b64 v{TR[0]}, {v(x,2)} offset:{256*jj}"]
            if st == 19 and j == 5:
                assert not valu
                A("s_waitcnt lgkmcnt(0)")
                A("s_barrier")
                valu = [f"ds_read_b64 {v(6,2)}, v{TR[2]}"] + [f"ds_read_b64 {a(CFA+2*k,2)}, v{TR[1]} offset:{256*k}" for k in range(6)] + \
                       [f"ds_read_b64 {v((6, T, T+2, T+4)[i],2)}, v{TR[2]} offset:{128*i}" for i in range(1, 4)]
            wf = a(WF + 4 * (n % 4), 4)
            if kb == 0 and not cfg.get("gu_nocs"):
                A(f"v_mfma_f32_16x16x32_bf16 {a(CS(j),4)}, {a(ONE,4)}, {wf}, {a(CS(j),4) if st else 0}")
                if ex: ex.pop(0)()
            for i in range(4):
                acc = v(ACC + 24 * i + 4 * j, 4)
                A(f"v_mfma_f32_16x16x32_bf16 {acc}, {wf}, {a(HF+16*(st%2)+4*i,4)}, {acc if st else 0}")
                k = 3
                if ex: ex.pop(0)(); k = 1
                for _ in range(k):
                    if valu:
                        x = valu.pop(0); A(x)
                        if x.startswith("ds_"): lq.append("x")
            assert not ex
        if st == 18:
            A(f"s_mul_i32 s{sT0}, s{sFH}, 1536")
            A(f"s_add_u32 s{sT0}, s{sT0}, {L_CF}")
            A(f"v_and_b32 v{TR[1]}, 31, v0")
            A(f"v_lshlrev_b32 v{TR[1]}, 3, v{TR[1]}")
            A(f"v_add_u32 v{TR[1]}, s{sT0}, v{TR[1]}")
            A(f"s_lshl_b32 s{sT1}, s{sTH}, 7")
            A(f"s_add_u32 s{sT0}, s{sT0}, s{sT1}")
            A(f"v_and_b32 v{TR[2]}, 15, v0")
            A(f"v_lshlrev_b32 v{TR[2]}, 3, v{TR[2]}")
            A(f"v_add_u32 v{TR[0]}, s{sT0}, v{TR[2]}")
            A(f"s_lshl_b32 s{sT0}, s{sTH}, 9")
            A(f"s_add_u32 s{sT0}, s{sT0}, {L_MB}")
            A(f"v_add_u32 v{TR[2]}, s{sT0}, v{TR[2]}")
            A("s_mov_b32 exec_lo, 0")
            A(f"v_mov_b32 v{TR[2]}, {L_ZERO}")
            A("s_mov_b32 exec_lo, -1")
    MBR = (6, T, T + 2, T + 4)
    assert not valu
    def corr(i): return [f"v_mfma_f32_16x16x16_bf16 {v(ACC+24*i+4*j,4)}, {a(CFA+2*j,2)}, {v(MBR[i],2)}, {v(ACC+24*i+4*j,4)}" for j in range(6)]
    if cfg.get("gts"):
        A("s_waitcnt lgkmcnt(0)")
        for c in range(9): A(f"s_sub_u32 s{(91,92,93,94,95,96,86,88,89)[c]}, s{60+2*c}, s90")
    stamp(A, cfg, 8)
    A(f"s_and_b32 s{sB}, s{sTOK16}, -8")
    A(f"s_lshl_b32 s{sT0}, s{sTH}, 2")
    A(f"s_add_u32 s{sB}, s{sB}, s{sT0}")
    A(f"s_mul_i32 s{sB}, s{sB}, {192*256}")
    A(f"s_mul_i32 s{sT0}, s{sJ}, {12*256}")
    A(f"s_add_u32 s{sB}, s{sB}, s{sT0}")
    A(f"s_mul_i32 s{sT0}, s{sFH}, {6*256}")
    A(f"s_add_u32 s{sB}, s{sB}, s{sT0}")
    A(f"s_add_u32 s{sB}, s{sB}, {hex(WS_HID)}")
    A("s_waitcnt lgkmcnt(3)")
    for x in corr(0): A(x)
    A("s_waitcnt lgkmcnt(0)")
    def gu_epi(sc):
        for i in range(4):
            r = ACC + 24 * i
            cm = corr(i + 1) if i < 3 else []
            L = []
            for jt in range(3):
                g = r + 8 * jt
                L += [f"v_max_f32 v{g+b}, 0, v{g+b}" for b in range(4)]
                if i < 3: L += [f"v_mul_f32 v{g+b}, v{g+b}, v{g+4+b}" for b in range(4)]
                else: L += [f"v_pk_mul_f32 {v(g+b,2)}, {v(g+b,2)}, {v(g+4+b,2)}" for b in (0, 2)]
            e = ACC + 48 * (i // 2) + 20
            L += [f"v_cvt_pk_bf16_f32 v{r}, v{r}, v{r+1}", f"v_cvt_pk_bf16_f32 v{r+1}, v{r+2}, v{r+3}",
                  f"v_cvt_pk_bf16_f32 v{r+2}, v{r+8}, v{r+9}", f"v_cvt_pk_bf16_f32 v{r+3}, v{r+10}, v{r+11}",
                  f"v_cvt_pk_bf16_f32 v{e+2*(i%2)}, v{r+16}, v{r+17}", f"v_cvt_pk_bf16_f32 v{e+2*(i%2)+1}, v{r+18}, v{r+19}",
                  f"v_permlane16_swap_b32 v{r}, v{r+2}", f"v_permlane16_swap_b32 v{r+1}, v{r+3}",
                  f"s_add_u32 s{sT2}, s{sB}, {i*192*256}",
                  f"buffer_store_dwordx4 {v(r,4)}, v{VST}, s[{SWS}:{SWS+3}], s{sT2} offen {sc}"]
            if i % 2:
                L += [f"v_permlane16_swap_b32 v{e}, v{e+2}", f"v_permlane16_swap_b32 v{e+1}, v{e+3}",
                      f"s_add_u32 s{sT2}, s{sB}, {(i-1)*192*256}",
                      f"buffer_store_dwordx4 {v(e,4)}, v{VST+1}, s[{SWS}:{SWS+3}], s{sT2} offen offset:1024 {sc}"]
            for k, x in enumerate(L):
                if k % 3 == 0 and cm: A(cm.pop(0))
                A(x)
    if cfg.get("wt", 2) & 2:
        gu_epi("sc1")
    else:
        A(f"s_cmp_lg_u32 s{sFAST}, 0")
        A("s_nop 4")
        A("s_cbranch_scc0 L_gu_epi_slow")
        gu_epi("")
    A.label("L_gu_epi_done")
    for op in wd3: emit(op)
    stamp(A, cfg, 9)
    A("s_branch L_gu_done")
    if not cfg.get("wt", 2) & 2:
        A.label("L_gu_epi_slow")
        gu_epi("sc1")
        A("s_branch L_gu_epi_done")

    A.label("L_gu_loader")
    WDL = cfg.get("wdl", "late")
    wo_tail(2)
    STV = 72
    A(f"v_and_b32 v3, 15, v0")
    A(f"v_lshlrev_b32 v3, 3, v3")
    A(f"v_lshl_add_u32 v3, v{G1}, 11, v3")
    A(f"v_lshl_add_u32 v3, v{Gh}, 10, v3")
    A(f"s_lshl_b32 s{sB}, s{sGT}, 11")
    A(f"s_add_u32 s{sB}, s{sB}, {hex(WS_ST2)}")
    A(f"s_waitcnt vmcnt({EW[2]})")
    readback(A, [(M8, [f"buffer_load_dword v7, v{vHP}, s[{SWS}:{SWS+3}], 0 offen"])])
    A("s_barrier")
    wdl = [op for stp in range(2, 8) for op in load_wd_ops(stp)][sum(EW):]
    WPL = cfg.get("wpl", [0,0,0,0,0,0,0,0,7,8,10,0])
    assert sum(WPL) == 30 - sum(EW)
    for _ in range(WPL[0]): emit(wdl.pop(0))

    A("s_barrier")
    ops = []
    for op in h_dma_ops(0)[2:] + h_dma_ops(1): emit(op)
    ops += [("h", 0)] * 2 + [("h", 1)] * 4
    if cfg.get("st_ld", 0) == -1:
        for i in range(8): A(f"buffer_load_dwordx2 {v(STV+2*i,2)}, v3, s[{SWS}:{SWS+3}], s{sB} offen offset:{128*i} sc1")
        ops += ["st"] * 8
    A(f"s_setprio {cfg.get('lprio', 0)}")
    for c in range(10):
        need = [("h", c)] + ([("w", c)] if c >= 4 else [])
        A(f"s_waitcnt vmcnt({len(ops) - 1 - max(i for i, o in enumerate(ops) if o in need)})")
        A("s_barrier")
        vops = []
        if c + 2 < 10:
            vops += h_dma_ops(c + 2); ops += [("h", c + 2)] * 4
        wn = c + 2 if LATE else c + 3
        if 4 <= wn < 10:
            vops += gu_dma_ops(wn); ops += [("w", wn)] * 6
        if c == cfg.get("st_ld", 0):
            vops += [[f"buffer_load_dwordx2 {v(STV+2*i,2)}, v3, s[{SWS}:{SWS+3}], s{sB} offen offset:{128*i} sc1"] for i in range(8)]
            ops += ["st"] * 8
        for _ in range(WPL[c + 1]):
            vops.append(wdl.pop(0)); ops.append("d")
        for op in vops:
            if cfg.get("noadv"): op = op[:3]
            if cfg.get("nowdl") and "a[" in op[-1] + op[1]: continue
            emit(op)
        if c == cfg.get('st_at', 8):
            A(f"s_waitcnt vmcnt({min(63, len(ops) - 1 - max(i for i, o in enumerate(ops) if o == 'st'))})")
            A(f"s_setprio {cfg.get('sprio', 3)}")
            for i in range(1, 8):
                A(f"v_add_f32 v{STV}, v{STV}, v{STV+2*i}")
                A(f"v_add_f32 v{STV+1}, v{STV+1}, v{STV+2*i+1}")
            for r in (STV, STV + 1):
                A(f"v_mov_b32 v{STV+2}, v{r}")
                A(f"v_permlane32_swap_b32 v{r}, v{STV+2}")
                A(f"v_add_f32 v{r}, v{r}, v{STV+2}")
            mean, rs = STV, STV + 1
            A(f"v_mul_f32 v{mean}, {fhex(1/640)}, v{mean}")
            A(f"v_mul_f32 v{rs}, {fhex(1/640)}, v{rs}")
            A(f"v_fma_f32 v{rs}, -v{mean}, v{mean}, v{rs}")
            A(f"v_max_f32 v{rs}, 0, v{rs}")
            A(f"v_add_f32 v{rs}, {fhex(1e-5)}, v{rs}")
            A(f"v_rcp_f32 v{rs}, v{rs}")
            A(f"v_cvt_pk_bf16_f32 v{STV+2}, -v{mean}, -v{mean}")
            A(f"v_and_b32 v{STV+3}, 0xffff0000, v{STV+2}")
            A(f"v_sub_f32 v{STV+3}, -v{mean}, v{STV+3}")
            A(f"v_cvt_pk_bf16_f32 v{STV+3}, v{STV+3}, 0")
            A(f"v_and_b32 v{STV+4}, 31, v0")
            A(f"s_lshl_b32 s{sT0}, s{sLW}, 5")
            A(f"v_add_u32 v{STV+4}, s{sT0}, v{STV+4}")
            A(f"v_lshlrev_b32 v{STV+5}, 3, v{STV+4}")
            A(f"v_lshlrev_b32 v{STV+4}, 2, v{STV+4}")
            A(f"v_add_u32 v{STV+5}, {L_MB}, v{STV+5}")
            A(f"v_add_u32 v{STV+4}, {L_RS}, v{STV+4}")
            A(f"ds_write_b64 v{STV+5}, {v(STV+2,2)}")
            A(f"ds_write_b32 v{STV+4}, v{rs}")
            A(f"v_mov_b32 v{STV+6}, 0")
            A(f"ds_write_b32 v{STV+4}, v{STV+6} offset:512")
            A("s_setprio 0")
        if c == cfg.get('st_at', 8): A("s_waitcnt lgkmcnt(0)")
    A("s_barrier")
    for op in wdl: emit(op)
    if cfg.get("wbl2", 0) & 1:
        A(f"s_add_u32 s{sT0}, s{sM}, s{sWAVE}")
        A(f"s_cmp_lg_u32 s{sT0}, 4")
        A("s_cbranch_scc1 L_nowb1")
        A("buffer_wbl2 sc1")
        A.label("L_nowb1")
    A("s_setprio 0")
    A.label("L_gu_done")

    NBD = cfg.get("nbd", 6)
    BF, ACC = 16, 72
    vXP, vXS, RA, vRS = 1, 2, 5, T + 7
    sBT = (sKSRC, sVSRC, sKBASE, sVBASE)
    vPW = (T + 2, T + 3, T + 4, None, T + 5, T + 6, T, T + 1)
    A(f"s_lshl_b32 s{sT1}, s{sWDRAW}, 10")
    A(f"s_add_u32 s{sT1}, s{sT1}, {hex(WS_HID)}")
    for k in range(4):
        A(f"s_xor_b32 s{sT0}, s{sLW}, {3-k}")
        A(f"s_add_u32 s{sBT[k]}, s{sT0}, s{sTOK16}")
        A(f"s_mul_i32 s{sBT[k]}, s{sBT[k]}, {192*256}")
        A(f"s_add_u32 s{sBT[k]}, s{sBT[k]}, s{sT1}")
        A(f"s_mul_i32 s{sT0}, s{sT0}, 5120")
        A(f"s_add_u32 s{sT0}, s{sT0}, {(6-k)*20480}")
        if k < 2:
            A(f"v_add_u32 v{vPW[4+k]}, s{sT0}, v{R.L16}")
            A(f"v_subrev_u32 v{vPW[k]}, {4*20480}, v{vPW[4+k]}")
        else:
            A(f"s_mov_b32 s{97+k-2}, s{sT0}")
    A(f"s_and_b32 s{sT0}, s{sTOK16}, 7")
    A(f"s_add_u32 s{sT0}, s{sT0}, s{sLW}")
    A(f"s_lshl_b32 s{sT0}, s{sT0}, 6")
    A(f"s_add_u32 s{sT0}, s{sT0}, {L_RS}")
    A(f"v_and_b32 v{vRS}, 15, v0")
    A(f"v_lshlrev_b32 v{vRS}, 2, v{vRS}")
    A(f"v_add_u32 v{vRS}, s{sT0}, v{vRS}")
    A(f"ds_read_b32 v{vRS}, v{vRS}")
    addr_rowmajor(A, vXP, vXS, T)
    reduce_addr(A, 7, 0, RA)
    A("s_waitcnt lgkmcnt(0)")
    A(f"s_cmp_ge_u32 s{sWAVE}, 4")
    A("s_cbranch_scc1 L_dn_nw")
    A("s_waitcnt vmcnt(5)")
    A.label("L_dn_nw")
    sync(A, 2, cfg.get('p2', 0), True, 63)
    stamp(A, cfg, 10)
    BSL = lambda i: 16 + 4 * i if i < 6 else 60 + 4 * (i - 6)
    def dn_main(NS, NBD, sub):
        keep = [f for f in range(5) if FSUB(f) == sub]
        order = [f for f in range(5) if f not in keep] + keep
        def loadBd(q):
            k, st = divmod(q, NS)
            if st == 4: A(f"s_add_u32 s{sBT[k]}, s{sBT[k]}, 4096")
            A(f"buffer_load_dwordx4 {v(BSL(q%NBD),4)}, v{R.L16}, s[{SWS}:{SWS+3}], s{sBT[k]} offen offset:{(st%4)*1024} sc1")
        NI = min(NBD, cfg.get("nbi", 4))
        for q in range(NI): loadBd(q)
        issued = NI
        A(f"v_add_u32 v{vPW[6]}, s97, v{R.L16}")
        A(f"v_subrev_u32 v{vPW[2]}, {4*20480}, v{vPW[6]}")
        A(f"v_add_u32 v{vPW[7]}, s98, v{R.L16}")
        for q in range(NI, NBD): loadBd(q)
        issued = NBD
        pend = []
        for q in range(4 * NS):
            k, st = divmod(q, NS)
            A(f"s_waitcnt vmcnt({issued - 1 - q})")
            for f in order:
                acc = v(ACC + 20 * (k % 2) + 4 * f, 4)
                A(f"v_mfma_f32_16x16x32_bf16 {acc}, {WD(st, f)}, {v(BSL(q%NBD),4)}, {acc if st else 0}")
            if issued < 4 * NS:
                loadBd(issued); issued += 1
            for _ in range(2 if NS == 4 else 1):
                if pend: A(pend.pop(0))
            if st == NS - 1:
                assert not pend
                pend = [f"ds_write_b128 v{vPW[k if f in keep else 4+k]}, {v(ACC+20*(k%2)+4*f,4)} offset:{f*1024}" for f in order if k < 3 or f not in keep]
        for x in pend: A(x)
        stamp(A, cfg, 11)
        return [ACC + 20 + 4 * f for f in keep]
    def dn_tail(n, own):
        DD = 8
        A(f"v_mov_b32 v3, v{vRS}")
        A("s_waitcnt lgkmcnt(0)")
        A("s_barrier")
        reduce_sum(A, 7, DD, RA, n, own)
        for i in range(2 * n):
            r = own[i // 2] + 2 * (i % 2)
            A(f"v_accvgpr_read_b32 v{T+2}, a{A_RES(i)}")
            A(f"v_lshlrev_b32 v{T}, 16, v{T+2}")
            A(f"v_and_b32 v{T+1}, 0xffff0000, v{T+2}")
            A(f"v_fma_f32 v{r}, v{r}, v3, v{T}")
            A(f"v_fma_f32 v{r+1}, v{r+1}, v3, v{T+1}")
            A(f"v_cvt_pk_bf16_f32 v{D+i}, v{r}, v{r+1}")
            if i == 3: A(f"buffer_store_dwordx4 {v(D,4)}, v{vXP}, s[{SO}:{SO+3}], 0 offen {cfg.get('ost', '')}")
        if n == 3: A(f"buffer_store_dwordx2 {v(D+4,2)}, v{vXS}, s[{SO}:{SO+3}], 0 offen {cfg.get('ost', '')}")
    A(f"s_cmp_ge_u32 s{sWAVE}, 4")
    A("s_cbranch_scc1 L_dn_b")
    dn_tail(3, dn_main(4, cfg.get("nbd_c", 5), 0))
    A("s_branch L_dn_e")
    A.label("L_dn_b")
    A(f"s_setprio {cfg.get('dprio', 1)}")
    dn_tail(2, dn_main(8, cfg.get("nbd_l", 8), 1))
    A.label("L_dn_e")
    stamp(A, cfg, 12)
    if cfg.get("gts"):
        for c in range(9):
            A(f"s_mov_b32 s{60+2*c}, s{(91,92,93,94,95,96,86,88,89)[c]}")
            A(f"s_mov_b32 s{61+2*c}, s{(91,92,93,94,95,96,86,88,89)[c]}")
    stamp_flush(A, cfg, 13, 4, SWS, sWAVE, cfg.get('tswave', 0))
    if cfg.get("diag"):
        da, db = cfg["diag"]
        A("s_cmp_ge_u32 s2, 8" if cfg.get("fixed") else "s_cmp_lg_u32 s2, 16")
        A("s_cbranch_scc1 L_end")
        A(f"s_cmp_lg_u32 s{sWAVE}, 0")
        A("s_cbranch_scc1 L_end")
        if da == -1:
            A("v_mov_b32 v1, 0")
            A(f"s_mov_b32 s{sT0}, {hex(WS_TS)}")
            A(f"buffer_load_dword v2, v1, s[{SWS}:{SWS+3}], s{sT0} offen")
            A("s_waitcnt vmcnt(0)")
            A(f"v_readfirstlane_b32 s{sT0}, v2")
        else:
            A(f"s_mov_b32 s{sT0}, s{60+2*da}")
        if cfg.get("fixed"):
            A(f"s_add_u32 s{sT0}, s{sT0}, {cfg['fixed']}")
            if cfg.get("wb"):
                A("buffer_wbl2 sc1")
        else:
            A(f"s_sub_u32 s{sT0}, s{60+2*db}, s{sT0}")
            A(f"s_min_u32 s{sT0}, s{sT0}, 20000")
            A(f"s_lshl_b32 s{sT0}, s{sT0}, 2")
            A(f"s_add_u32 s{sT0}, s{sT0}, s{60+2*12}")
        A.label("L_spin")
        A("s_memrealtime s[56:57]")
        A("s_waitcnt lgkmcnt(0)")
        A(f"s_sub_u32 s{sT1}, s56, s{sT0}")
        A(f"s_cmp_lt_i32 s{sT1}, 0")
        A("s_cbranch_scc1 L_spin")
    A.label("L_end")
    A("s_endpgm")

    A.label("L_attn_slow")
    A(f"v_subrev_u32 v{R.VA}, {KV_BASE + 1280}, v{R.VA}")
    A(f"v_mov_b32 v{R.Q2+1}, 0")
    A(f"v_mov_b32 v{T}, 0xff800000")
    A(f"s_mov_b32 s{sT0}, s{sKBASE}")
    A(f"s_add_u32 s{sT1}, s{sKBASE}, {PAIR_STRIDE}")
    A.label("L_attn_slow1")
    A(f"buffer_load_dwordx4 {v(R.K1,4)}, v{R.F2S+1}, s[{SWS}:{SWS+3}], s{sT0} offen")
    A(f"buffer_load_dword v{R.K2}, v{R.F2S}, s[{SWS}:{SWS+3}], s{sT0} offen")
    A("s_waitcnt vmcnt(0)")
    A(f"v_mfma_f32_32x32x16_bf16 {v(S0,16)}, {v(R.K1,4)}, {v(R.Q1,4)}, 0")
    A(f"v_mfma_f32_32x32x8_bf16 {v(S0,16)}, {v(R.K2,2)}, {v(R.Q2,2)}, {v(S0,16)}")
    max16(A, T, S0, False)
    A(f"s_add_u32 s{sT0}, s{sT0}, 2560")
    A(f"s_cmp_lt_u32 s{sT0}, s{sT1}")
    A("s_cbranch_scc1 L_attn_slow1")
    xhalf_max(A, T, T+1)
    set_shift(A, T)
    for k in range(16): A(f"v_mov_b32 v{R.O+k}, 0")
    A(f"s_mov_b32 s{sT0}, s{sKBASE}")
    A(f"s_mov_b32 s{sT2}, s{sVBASE}")
    A.label("L_attn_slow2")
    A(f"buffer_load_dwordx4 {v(R.K1,4)}, v{R.F2S+1}, s[{SWS}:{SWS+3}], s{sT0} offen")
    A(f"buffer_load_dword v{R.K2}, v{R.F2S}, s[{SWS}:{SWS+3}], s{sT0} offen")
    A(f"s_mov_b64 exec, s[{sVMASK}:{sVMASK+1}]")
    A(f"buffer_load_dwordx4 {v(R.V1,4)}, v{R.VA}, s[{SWS}:{SWS+3}], s{sT2} offen")
    A(f"buffer_load_dwordx4 {v(R.V2,4)}, v{R.VA}, s[{SWS}:{SWS+3}], s{sT2} offen offset:640")
    A("s_mov_b64 exec, -1")
    A("s_waitcnt vmcnt(0)")
    A(f"v_mfma_f32_32x32x16_bf16 {v(S0,16)}, {v(R.K1,4)}, {v(R.Q1,4)}, 0")
    A(f"v_mfma_f32_32x32x8_bf16 {v(S0,16)}, {v(R.K2,2)}, {v(R.Q2,2)}, {v(S0,16)}")
    for k in range(16): A(f"v_exp_f32 v{S0+k}, v{S0+k}")
    for k in range(8): A(f"v_cvt_pk_bf16_f32 v{R.P+k}, v{S0+2*k}, v{S0+2*k+1}")
    A(f"v_mfma_f32_32x32x16_bf16 {v(R.O,16)}, {v(R.V1,4)}, {v(R.P,4)}, {v(R.O,16)}")
    A(f"v_mfma_f32_32x32x16_bf16 {v(R.O,16)}, {v(R.V2,4)}, {v(R.P+4,4)}, {v(R.O,16)}")
    A(f"s_add_u32 s{sT0}, s{sT0}, 2560")
    A(f"s_add_u32 s{sT2}, s{sT2}, 1280")
    A(f"s_cmp_lt_u32 s{sT0}, s{sT1}")
    A("s_nop 7")
    A("s_cbranch_scc1 L_attn_slow2")
    A(f"v_rcp_f32 v{T}, v{R.O+10}")
    norm()
    A("s_nop 1")
    A("s_branch L_attn_norm")
    A.label("L_code_end")
    return dict(name=name, grid=256, block=512, lds=163840, desc=kernel_desc(name, 256, NV, 102))
```

```python
from common import *

GU_SLOT = 24608
GU_UP = 12288 + 32
GU_MISC = 6 * GU_SLOT
NWS, H_BASE, NHS = 4, 4 * GU_SLOT, 3
PART_BASE = 4 * GU_SLOT
KV_SLOT = 20480
NKV = 3
KV_BASE = 163840 - NKV * KV_SLOT
NV = 112

class R:
    S = (16, 32); O = 48; P = 64; K1 = 72; K2 = 76; V1 = 80; V2 = 84; Q1 = 88; Q2 = 92
    KA = 1; K2A = 2; VA = 3; L16 = 4; F2S = 5; L4 = 7; T = 8; TCH = 94
    GV = 96
    XRES = 100

SX, SWS, SG_, SU, SO = 4, 8, 12, 16, 20
sWAVE, sG, sM, sT0, sT1, sT2, sC, sDELTA, sSLOT, sQT = 24, 25, 26, 27, 28, 29, 30, 31, 32, 33
sVMASK = 34
sKSRC, sVSRC, sKBASE, sVBASE, sFG, sTOK16, sJ, sFAST, sWOSRC, sWDSRC, sGSRC, sGM0, sFLAG, sB, sXCC, sLW = 36, 37, 38, 39, 40, 41, 42, 43, 44, 45, 46, 47, 48, 49, 50, 51
sTMP = 52
SWO_, SWD_ = 92, 96
sSTG, sWDRAW, sTO, sKQ, sB2, sGLIM, sC0 = 86, 87, 90, 95, 96, 99, 91
sHD, sKLIM, sFL0 = 97, 98, 100

def WD(step, f, n=4):
    if step == 7: return v(40 + 4 * f, n)
    return a({0: 100, 1: 120, 2: 80, 3: 60, 4: 40, 5: 20, 6: 0}[step] + 4 * f, n)
def A_RES(i): return 140 + i if i < 4 else 58 + (i - 4)

def set_shift(A, m):
    t0, t1, t2 = m + 1, m + 2, m + 3
    A(f"v_cvt_pk_bf16_f32 v{t0}, -v{m}, -v{m}")
    A(f"v_and_b32 v{t0}, 0xffff0000, v{t0}")
    A(f"v_sub_f32 v{t1}, -v{m}, v{t0}")
    A(f"v_cvt_pk_bf16_f32 v{t2}, v{t0}, v{t1}")
    A(f"v_and_b32 v{t0}, 0xffff0000, v{t2}")
    A(f"v_sub_f32 v{t1}, v{t1}, v{t0}")
    A(f"v_cvt_pk_bf16_f32 v{t1}, v{t1}, 0")
    A(f"v_cmp_gt_u32 vcc, 32, v0")
    A(f"v_cndmask_b32 v{R.Q2+1}, v{t1}, v{t2}, vcc")

def max16(A, dst, S, first):
    if first:
        A(f"v_max3_f32 v{dst}, v{S}, v{S+1}, v{S+2}")
        A(f"v_max_f32 v{dst}, v{dst}, v{S+3}")
        rng = range(4, 16, 2)
    else:
        rng = range(0, 16, 2)
    for i in rng: A(f"v_max3_f32 v{dst}, v{dst}, v{S+i}, v{S+i+1}")

def xhalf_max(A, m, t):
    A(f"v_mov_b32 v{t}, v{m}")
    A(f"v_permlane32_swap_b32 v{m}, v{t}")
    A(f"v_max_f32 v{m}, v{m}, v{t}")

def stores(A, lst, data=True):
    if data == "O" and CFG.get("hp", 1) or data and CFG.get("wt", 2) & 1:
        for x in lst: A(x + (" sc1" if x.startswith("buffer_") else ""))
        return
    L1, L2 = A.newlabel("stf"), A.newlabel("ste")
    A(f"s_cmp_lg_u32 s{sFAST}, 0")
    A(f"s_cbranch_scc1 {L1}")
    for x in lst: A(x + (" sc1" if x.startswith("buffer_") else ""))
    A(f"s_branch {L2}")
    A.label(L1)
    for x in lst: A(x)
    A.label(L2)

def readback(A, lst):
    if not CFG.get("rb", 0) & 1: return
    for mask, ops in lst:
        ops = [x + " sc1" for x in ops]
        A(f"s_mov_b32 exec_lo, {hex(mask & 0xffffffff)}")
        A(f"s_mov_b32 exec_hi, {hex(mask >> 32)}")
        for x in ops: A(x)
    A("s_mov_b64 exec, -1")

def sync(A, idx, poller, half, nleft, between=None, rb=None):
    T = R.T
    A(f"s_waitcnt vmcnt({nleft})")
    if rb: readback(A, rb)
    A("s_barrier")
    L, LP = A.newlabel("sy"), A.newlabel("poll")
    A(f"s_cmp_lg_u32 s{sWAVE}, {poller}")
    if between is not None:
        LB = A.newlabel("btw")
        A(f"s_cbranch_scc1 {LB}")
    else:
        A(f"s_cbranch_scc1 {L}")
    A(f"s_lshl_b32 s{sT0}, s{sM}, 2")
    A(f"s_add_u32 s{sT0}, s{sT0}, s{sFLAG}")
    A(f"v_mov_b32 v{T}, 1")
    A(f"v_mov_b32 v{T+1}, 0")
    A("s_mov_b64 exec, 1")
    if idx == 0 and CFG.get("hp", 1):
        A(f"buffer_store_dword v{T}, v{T+1}, s[{SWS}:{SWS+3}], s{sFL0} offen sc1")
    else:
        stores(A, [f"buffer_store_dword v{T}, v{T+1}, s[{SWS}:{SWS+3}], s{sT0} offen offset:{idx*128}"], data=False)
    if half:
        A(f"s_and_b32 s{sT0}, s{sM}, 2")
        A(f"s_lshl_b32 s{sT0}, 0x33333333, s{sT0}")
        A(f"s_mov_b32 exec_lo, s{sT0}")
    else:
        A("s_mov_b32 exec_lo, -1")
    X0 = idx == 0 and CFG.get("hp", 1)
    L32 = X0 and CFG.get("l32", 1)
    A(f"v_lshlrev_b32 v{T+1}, {7 if L32 else 2}, v0")
    A(f"s_mov_b32 s{sT1}, 0")
    if L32:
        A(f"s_lshl_b32 s{sT0}, s{sG}, 12")
        A(f"s_add_u32 s{sT0}, s{sT0}, {hex(WS_SYNC + 8192)}")
    A.label(LP)
    sl = CFG.get("sl0", 4) if X0 else CFG.get("sl1", 0)
    if sl: A(f"s_sleep {sl}")
    if L32: A(f"buffer_load_dword v{T}, v{T+1}, s[{SWS}:{SWS+3}], s{sT0} offen sc1")
    else: A(f"buffer_load_dword v{T}, v{T+1}, s[{SWS}:{SWS+3}], s{sFLAG} offen offset:{idx*128} sc1")
    A(f"s_add_u32 s{sT1}, s{sT1}, 1")
    A("s_waitcnt vmcnt(0)")
    A(f"v_cmp_eq_u32 vcc, 0, v{T}")
    A(f"s_cmp_lt_u32 s{sT1}, 0x40000")
    A(f"s_cselect_b64 vcc, vcc, 0")
    A(f"s_cbranch_vccnz {LP}")
    A("s_mov_b64 exec, -1")
    if between is not None:
        A("s_barrier")
        between()
        A(f"s_branch {L}")
        A.label(LB)
        between()
        A("s_barrier")
        A.label(L)
    else:
        A.label(L)
        A("s_barrier")

def addr_rowmajor(A, vp, vs, T):
    A(f"v_and_b32 v{T}, 15, v0")
    A(f"v_lshrrev_b32 v{T+1}, 4, v0")
    A(f"v_mul_u32_u24 v{T}, 1280, v{T}")
    A(f"s_add_u32 s{sT0}, s{sLW}, s{sTOK16}")
    A(f"s_mul_i32 s{sT0}, s{sT0}, {16*1280}")
    A(f"s_mul_i32 s{sT1}, s{sFG}, 160")
    A(f"s_add_u32 s{sT0}, s{sT0}, s{sT1}")
    A(f"v_add_u32 v{T}, s{sT0}, v{T}")
    A(f"v_lshl_add_u32 v{vp}, v{T+1}, 4, v{T}")
    A(f"v_lshl_add_u32 v{vs}, v{T+1}, 3, v{T}")
    A(f"v_add_u32 v{vs}, 128, v{vs}")
    A(f"s_and_b32 s{sT0}, s{sWAVE}, 4")
    A(f"s_lshl_b32 s{sT0}, s{sT0}, 4")
    A(f"v_add_u32 v{vp}, s{sT0}, v{vp}")

def reduce_addr(A, P, base, RA):
    A(f"s_mul_i32 s{sT0}, s{sLW}, 5120")
    A(f"s_and_b32 s{sT1}, s{sWAVE}, 4")
    A(f"s_lshl_b32 s{sT1}, s{sT1}, 9")
    A(f"s_add_u32 s{sT0}, s{sT0}, s{sT1}")
    A(f"s_add_u32 s{sT0}, s{sT0}, {base}")
    A(f"v_add_u32 v{RA}, s{sT0}, v{R.L16}")
    for k in range(1, (P + 2) // 3): A(f"v_add_u32 v{RA+k}, {3*20480*k}, v{RA}")

def reduce_sum(A, P, D, RA, n, own, mid=None):
    W = 4 * n
    for p in range(P):
        for e in range(n):
            A(f"ds_read_b128 {v(D+W*p+4*e,4)}, v{RA+p//3} offset:{(p%3)*20480 + (e*1024 if e < 2 else 4096)}")
    if mid: mid()
    for p in range(P):
        A(f"s_waitcnt lgkmcnt({min(15, n*(P-1-p))})")
        for e in range(n):
            for i in (0, 2): A(f"v_pk_add_f32 {v(own[e]+i,2)}, {v(own[e]+i,2)}, {v(D+W*p+4*e+i,2)}")

CFG = {}
def gu_dma_ops(c):
    ops = []
    for isup in range(2):
        sr = SU if isup else SG_
        for jj in range(3):
            ops.append([f"s_add_u32 m0, s{sGM0}, {(c%NWS)*GU_SLOT + isup*GU_UP + jj*1024}",
                        "s_nop 0",
                        f"buffer_load_dwordx4 v{R.GV+jj}, s[{sr}:{sr+3}], s{sGSRC} offen lds"])
    ops[-1] += [f"s_add_u32 s{sGSRC}, s{sGSRC}, {64*3072}", f"s_cmp_eq_u32 s{sGSRC}, s{sGLIM}", f"s_cselect_b32 s{sT0}, {640*3072}, 0", f"s_sub_u32 s{sGSRC}, s{sGSRC}, s{sT0}"]
    return ops
def load_wd_ops(step):
    return [[f"s_add_u32 s{sT0}, s{sWDSRC}, {step*5120 + f*1024}",
             f"buffer_load_dwordx4 {WD(step, f)}, v{R.L16}, s[{SWS}:{SWS+3}], s{sT0} offen sc1"] for f in range(5)]
def gu_dma(A, c, rows):
    A(f"s_add_u32 s{sT0}, s{sGSRC}, {c*64*3072}")
    for isup in range(2):
        sr = SU if isup else SG_
        for jj in range(3):
            A(f"s_add_u32 m0, s{sGM0}, {(c%NWS)*GU_SLOT + isup*GU_UP + jj*1024}")
            A(f"buffer_load_dwordx4 v{R.GV+jj}, s[{sr}:{sr+3}], s{sT0} offen lds")

def load_wd(A, step):
    for f in range(5):
        if f % 4 == 0: A(f"s_add_u32 s{sT0}, s{sWDSRC}, {step*5120 + f*1024}")
        A(f"buffer_load_dwordx4 {WD(step, f)}, v{R.L16}, s[{SWS}:{SWS+3}], s{sT0} offen offset:{(f%4)*1024}")

def cfg_touch_plan(cfg, gu_touch, out_touch, wd_touch, extra):
    plan = cfg.get("tplan", [[5,"gw"],[44,"h"],[50,"st"]])
    out = []
    for t, w in plan:
        if w in extra: out.append((t, extra[w]))
        elif w[0] == "g": out.append((t, gu_touch(int(w[1]))))
        else: out.append((t, {"o": out_touch(WS_O, 1280), "h": out_touch(WS_H, 1280), "hid": out_touch(WS_HID, 3072), "st": out_touch(WS_ST2, 128), "wd": wd_touch,
                                 "hid0": out_touch(WS_HID, 3072, 0, 8), "hid1": out_touch(WS_HID, 3072, 8, 8), "hid2": out_touch(WS_HID, 3072, 16, 8)}[w]))
    return out

def gen_main(A, cfg):
    name = "main_kernel"
    CFG.update(cfg)
    cfg = dict(cfg); cfg["_k2"] = 1
    MG = cfg.get("merge", 1)
    T = R.T
    if MG:
        A.label("L_main")
    else:
        kstart(A, name)
        A("s_cmp_ge_u32 s2, 256")
        A("s_cbranch_scc1 L_end")
    A(f"s_load_dwordx2 s[{SWS}:{SWS+1}], s[0:1], 72")
    A(f"s_load_dwordx2 s[{SX}:{SX+1}], s[0:1], 0")
    A(f"s_load_dwordx2 s[{SG_}:{SG_+1}], s[0:1], 32")
    A(f"s_load_dwordx2 s[{SU}:{SU+1}], s[0:1], 40")
    A(f"s_load_dwordx2 s[{SO}:{SO+1}], s[0:1], 16")
    A(f"s_load_dwordx2 s[92:93], s[0:1], 48")
    stamp(A, cfg, 0)
    if MG:
        A(f"s_mov_b32 s{sWAVE}, s3")
    else:
        A(f"v_lshrrev_b32 v{T}, 6, v0")
        A(f"v_and_b32 v0, 63, v0")
        A(f"v_readfirstlane_b32 s{sWAVE}, v{T}")
    A(f"s_and_b32 s{sG}, s2, 7")
    A(f"s_lshr_b32 s{sM}, s2, 3")
    HP = cfg.get("hp", 1)
    if HP:
        A(f"s_lshl_b32 s{sHD}, s{sG}, 2")
        A(f"s_lshr_b32 s{sT0}, s{sM}, 3")
        A(f"s_add_u32 s{sHD}, s{sHD}, s{sT0}")
        A(f"s_and_b32 s{sFL0}, s{sM}, 7")
    else:
        A(f"s_mov_b32 s{sHD}, s{sM}")
        A(f"s_mov_b32 s{sFL0}, s{sG}")
    A(f"s_lshr_b32 s{sT0}, s{sHD}, 1")
    A(f"s_mul_i32 s{sKBASE}, s{sT0}, {PAIR_STRIDE}")
    A(f"s_mul_i32 s{sVBASE}, s{sHD}, {VHEAD_STRIDE}")
    A(f"s_add_u32 s{sVBASE}, s{sVBASE}, {hex(WS_V)}")
    A(f"s_lshl_b32 s{sQT}, s{sFL0}, 3")
    A(f"s_add_u32 s{sQT}, s{sQT}, s{sWAVE}")
    A(f"s_and_b32 s{sT1}, s{sHD}, 1")
    A(f"v_lshlrev_b32 v{R.L16}, 4, v0")
    A(f"s_mul_i32 s{sT2}, s{sT1}, 1536")
    A(f"v_add_u32 v{R.F2S+1}, s{sT2}, v{R.L16}")
    A(f"v_and_b32 v{T}, 31, v0")
    A(f"v_lshrrev_b32 v{T+1}, 5, v0")
    A(f"v_lshlrev_b32 v{R.F2S}, 4, v{T}")
    A(f"v_lshl_add_u32 v{R.F2S}, v{T+1}, 2, v{R.F2S}")
    A(f"s_lshl_b32 s{sT1}, s{sT1}, 3")
    A(f"s_add_u32 s{sT1}, s{sT1}, 1024")
    A(f"v_add_u32 v{R.F2S}, s{sT1}, v{R.F2S}")
    A(f"s_mul_i32 s{sKSRC}, s{sWAVE}, 2560")
    A(f"s_add_u32 s{sKSRC}, s{sKSRC}, s{sKBASE}")
    A(f"s_mul_i32 s{sVSRC}, s{sWAVE}, 1280")
    A(f"s_mul_i32 s{sSLOT}, s{sWAVE}, 2560")
    A(f"v_lshlrev_b32 v{R.L4}, 2, v0")
    A(f"s_add_u32 s{sVSRC}, s{sVSRC}, s{sVBASE}")
    A(f"s_add_u32 s{sKLIM}, s{sKSRC}, {PAIR_STRIDE}")
    A(f"s_mul_i32 s{sT0}, s{sFL0}, {8*1280 if HP and cfg.get('krot', 0) else 0}")
    A(f"s_add_u32 s{sVSRC}, s{sVSRC}, s{sT0}")
    A(f"s_lshl_b32 s{sT0}, s{sT0}, 1")
    A(f"s_add_u32 s{sKSRC}, s{sKSRC}, s{sT0}")
    A(f"s_add_u32 s{sB2}, s{sKBASE}, s{sT0}")
    A("s_waitcnt lgkmcnt(0)")
    srd(A, SWS, SWS, WS_SIZE)
    KVF = cfg.get("kvflag", "sc1" if MG else "")
    def kv_ops(c):
        lds = KV_BASE + (c % NKV) * KV_SLOT
        return [
            [f"s_add_u32 m0, s{sSLOT}, {lds}", "s_nop 0",
             f"buffer_load_dwordx4 v{R.F2S+1}, s[{SWS}:{SWS+3}], s{sKSRC} offen {KVF} lds"],
            [f"s_add_u32 m0, s{sSLOT}, {lds+1024}", "s_nop 0",
             f"buffer_load_dword v{R.F2S}, s[{SWS}:{SWS+3}], s{sKSRC} offen {KVF} lds"],
            [f"s_add_u32 m0, s{sSLOT}, {lds+1280}", f"s_add_u32 s{sKSRC}, s{sKSRC}, {8*2560}",
             f"buffer_load_dwordx4 v{R.L16}, s[{SWS}:{SWS+3}], s{sVSRC} offen {KVF} lds"],
            [f"s_add_u32 m0, s{sSLOT}, {lds+2304}", f"s_add_u32 s{sT0}, s{sVSRC}, 1024",
             f"buffer_load_dword v{R.L4}, s[{SWS}:{SWS+3}], s{sT0} offen {KVF} lds",
             f"s_add_u32 s{sVSRC}, s{sVSRC}, {8*1280}"] +
            ([f"s_cmp_eq_u32 s{sKSRC}, s{sKLIM}", f"s_cselect_b32 s{sT0}, {VHEAD_STRIDE}, 0", f"s_sub_u32 s{sVSRC}, s{sVSRC}, s{sT0}",
              f"s_lshl_b32 s{sT0}, s{sT0}, 1", f"s_sub_u32 s{sKSRC}, s{sKSRC}, s{sT0}"] if HP and cfg.get('krot', 0) else [])]
    def emit(op):
        for x in op: A(x)
    PSP = cfg.get("psplit", 3)
    def first_loads():
        A(f"s_mul_i32 s{sT2}, s{sQT}, 2560")
        A(f"s_add_u32 s{sT2}, s{sT2}, s{sKBASE}")
        A(f"s_add_u32 s{sT2}, s{sT2}, {hex(WS_Q)}")
        A(f"buffer_load_dwordx4 {v(R.Q1,4)}, v{R.F2S+1}, s[{SWS}:{SWS+3}], s{sT2} offen {KVF}")
        A(f"buffer_load_dword v{R.Q2}, v{R.F2S}, s[{SWS}:{SWS+3}], s{sT2} offen {KVF}")
        A(f"buffer_load_dwordx4 {v(R.K1,4)}, v{R.F2S+1}, s[{SWS}:{SWS+3}], s{sB2} offen {KVF}")
        A(f"buffer_load_dword v{R.K2}, v{R.F2S}, s[{SWS}:{SWS+3}], s{sB2} offen {KVF}")
        if PSP:
            A(f"s_cmp_ge_u32 s{sWAVE}, {PSP}")
            A("s_cbranch_scc1 L_p0")
        for op in kv_ops(0): emit(op)
        A.label("L_p0")
    if not MG: first_loads()
    def gsignal():
        if not MG: return
        if cfg.get("gst") == 2: stamp(A, cfg, 0)
        A("s_waitcnt vmcnt(0)")
        A("s_barrier")
        if cfg.get("gst") == 3: stamp(A, cfg, 0)
        A(f"s_cmp_eq_u32 s{sWAVE}, {4 if cfg.get('lsw', 0) else 0}")
        A(f"s_cselect_b32 s94, s94, {hex(WS_SIZE)}")
        A("s_mov_b64 exec, 1")
        A(f"buffer_store_dword v{R.F2S}, v{R.L16}, s[{SWS}:{SWS+3}], s94 offen sc1")
        A("s_mov_b64 exec, -1")
    GP = cfg.get("gp", 3 if cfg.get("lsw", 0) else 4)
    GPOS = cfg.get("gpos", 1)
    if GPOS == 0: gsignal()
    A(f"s_lshl_b32 s{sFLAG}, s{sG}, 10")
    A(f"s_add_u32 s{sFLAG}, s{sFLAG}, {hex(WS_SYNC)}")
    A(f"s_getreg_b32 s{sXCC}, hwreg(HW_REG_XCC_ID, 0, 3)")
    A(f"s_mul_i32 s{sXCC}, s{sXCC}, 6")
    A(f"s_lshr_b32 s{sFG}, s{sM}, 2")
    A(f"s_and_b32 s{sT0}, s{sM}, 3")
    A(f"s_lshl_b32 s{sTOK16}, s{sG}, 4")
    A(f"s_lshl_b32 s{sT0}, s{sT0}, 2")
    A(f"s_add_u32 s{sTOK16}, s{sTOK16}, s{sT0}")
    A(f"s_lshl_b32 s{sJ}, s{sFG}, 1")
    A(f"s_and_b32 s{sT0}, s{sM}, 1")
    A(f"s_add_u32 s{sJ}, s{sJ}, s{sT0}")
    A(f"s_and_b32 s{sLW}, s{sWAVE}, 3")
    A(f"s_mul_i32 s{sWOSRC}, s{sFG}, {20*5120}")
    A(f"s_and_b32 s{sKQ}, s{sLW}, 1")
    A(f"s_lshl_b32 s{sKQ}, s{sKQ}, 1")
    A(f"s_lshr_b32 s{sT0}, s{sWAVE}, 2")
    A(f"s_add_u32 s{sKQ}, s{sKQ}, s{sT0}")
    if cfg.get("stag", 3) & 1:
        A(f"s_and_b32 s{sT0}, s{sFG}, 1")
        A(f"s_lshl_b32 s{sT0}, s{sT0}, 1")
        A(f"s_xor_b32 s{sKQ}, s{sKQ}, s{sT0}")
    A(f"s_mul_i32 s{sT0}, s{sKQ}, {5*5120}")
    A(f"s_add_u32 s{sWOSRC}, s{sWOSRC}, s{sT0}")
    A(f"s_add_u32 s{sWOSRC}, s{sWOSRC}, {hex(WS_WO)}")
    A(f"s_mul_i32 s{sWDSRC}, s{sFG}, {48*5120}")
    A(f"s_and_b32 s{sT0}, s{sFG}, {3 if cfg.get('stag', 3) & 2 else 0}")
    A(f"s_xor_b32 s{sT0}, s{sT0}, s{sLW}")
    A(f"s_mul_i32 s{sT0}, s{sT0}, 12")
    A(f"s_and_b32 s{sT1}, s{sWAVE}, 4")
    A(f"s_add_u32 s{sWDRAW}, s{sT0}, s{sT1}")
    A(f"s_mul_i32 s{sT0}, s{sWDRAW}, 5120")
    A(f"s_add_u32 s{sWDSRC}, s{sWDSRC}, s{sT0}")
    A(f"s_add_u32 s{sWDSRC}, s{sWDSRC}, {hex(WS_WD)}")
    A(f"s_mul_i32 s{sGSRC}, s{sLW}, {16*3072}")
    A(f"s_mul_i32 s{sT0}, s{sJ}, 192")
    A(f"s_add_u32 s{sGSRC}, s{sGSRC}, s{sT0}")
    A(f"s_mul_i32 s{sGM0}, s{sLW}, 3072")
    if cfg.get("stag", 3) & 4:
        A(f"s_bfe_u32 s{sT0}, s{sM}, 0x10001")
        A(f"s_mul_i32 s{sT0}, s{sT0}, {cfg.get('gth', 5)}")
        A(f"s_mul_i32 s{sC0}, s{sJ}, {cfg.get('gja', 1)}")
        A(f"s_add_u32 s{sC0}, s{sC0}, s{sT0}")
        A(f"s_mul_i32 s{sT0}, s{sC0}, 6554")
        A(f"s_lshr_b32 s{sT0}, s{sT0}, 16")
        A(f"s_mul_i32 s{sT0}, s{sT0}, 10")
        A(f"s_sub_u32 s{sC0}, s{sC0}, s{sT0}")
    else:
        A(f"s_mov_b32 s{sC0}, 0")
    A(f"s_add_u32 s{sGLIM}, s{sGSRC}, {640*3072}")
    A(f"s_mul_i32 s{sT0}, s{sC0}, {64*3072}")
    A(f"s_add_u32 s{sGSRC}, s{sGSRC}, s{sT0}")
    srd(A, SX, SX, X_BYTES); srd(A, SG_, SG_, 640 * 1536 * 2); srd(A, SU, SU, 640 * 1536 * 2)
    if GPOS == 1: gsignal()
    A(f"v_add_u32 v{R.KA}, {KV_BASE}, v{R.L16}")
    A(f"v_add_u32 v{R.K2A}, {KV_BASE + 1024}, v{R.L4}")
    r, kh, aa, hf, b, i_, d1, d2 = T, T+1, T+2, T+3, T+4, T+5, T+6, T+7
    A(f"v_lshrrev_b32 v{aa}, 3, v{r}")
    A(f"v_bfe_u32 v{hf}, v{r}, 2, 1")
    A(f"v_and_b32 v{b}, 3, v{r}")
    A(f"v_lshl_add_u32 v{i_}, v{aa}, 2, v{b}")
    A(f"v_lshl_add_u32 v{d1}, v{hf}, 3, v{i_}")
    A(f"v_lshl_add_u32 v{d2}, v{hf}, 1, v{i_}")
    A(f"v_add_u32 v{d2}, 8, v{d2}")
    A(f"v_cmp_gt_u32 vcc, 8, v{i_}")
    A(f"v_cndmask_b32 v{d1}, v{d2}, v{d1}, vcc")
    A(f"v_min_u32 v{d1}, 19, v{d1}")
    A(f"v_mul_u32_u24 v{R.VA}, 320, v{kh}")
    A(f"v_lshl_add_u32 v{R.VA}, v{d1}, 4, v{R.VA}")
    A(f"v_add_u32 v{R.VA}, {KV_BASE + 1280}, v{R.VA}")
    A(f"v_cmp_eq_u32 vcc, 10, v{i_}")
    A(f"v_mov_b32 v{d2}, 0x3f803f80")
    for k in range(8): A(f"v_cndmask_b32 v{R.V1+k}, 0, v{d2}, vcc")
    A(f"v_cmp_gt_u32 vcc, 32, v0")
    A(f"v_mov_b32 v{d1}, 0x3f80")
    A(f"v_cndmask_b32 v{R.K2+1}, v{d1}, v{d2}, vcc")
    A(f"v_mov_b32 v{R.Q2+1}, 0")
    for jj in range(3):
        A(f"v_add_u32 v{T}, {64*jj}, v0")
        A(f"v_mul_u32_u24 v{T+1}, 5462, v{T}")
        A(f"v_lshrrev_b32 v{T+1}, 16, v{T+1}")
        A(f"v_mul_u32_u24 v{R.GV+jj}, {3072-192}, v{T+1}")
        A(f"v_lshl_add_u32 v{R.GV+jj}, v{T}, 4, v{R.GV+jj}")
        A(f"v_and_b32 v{T+1}, 8, v{T+1}")
        A(f"v_lshlrev_b32 v{T+1}, 2, v{T+1}")
        A(f"v_xor_b32 v{R.GV+jj}, v{R.GV+jj}, v{T+1}")
    A(f"s_mov_b32 s{sVMASK}, 0x0033ffff")
    A(f"s_mov_b32 s{sVMASK+1}, 0x0033ffff")
    S0 = R.S[0]
    X = R.S[1]
    if GPOS == 2: gsignal()
    addr_rowmajor(A, R.XRES + 6, R.XRES + 7, X)
    A(f"v_lshlrev_b32 v{R.TCH}, 7, v0")
    A(f"v_mov_b32 v{R.TCH+1}, 0")
    A(f"s_lshl_b64 s[{sTMP}:{sTMP+1}], 1, s{sXCC}")
    A(f"v_mov_b32 v{R.XRES+8}, s{sTMP}")
    A(f"v_mov_b32 v{R.XRES+9}, s{sTMP+1}")
    A(f"s_cmp_ge_u32 s{sWAVE}, 4")
    A(f"s_cselect_b32 s{sTMP}, s{SU}, s{SG_}")
    A(f"s_cselect_b32 s{sTMP+1}, s{SU+1}, s{SG_+1}")
    A(f"s_mov_b32 s{sTMP+2}, {hex(640*1536*2)}")
    A(f"s_mov_b32 s{sTMP+3}, 0x20000")
    A(f"s_cselect_b32 s{sB}, {GU_UP}, 0")
    A(f"s_add_u32 s{sB}, s{sB}, s{sGM0}")
    A(f"s_and_b32 s{sC}, s{sM}, 3")
    A(f"s_lshl_b32 s{sDELTA}, s{sM}, 2")
    A(f"s_add_u32 s{sDELTA}, s{sDELTA}, s{sLW}")
    A(f"s_mul_i32 s{sDELTA}, s{sDELTA}, {12*128}")
    A(f"s_lshl_b32 s{sTO}, s{sG}, 5")
    A(f"s_add_u32 s{sTO}, s{sTO}, s{sM}")
    A(f"s_lshl_b32 s{sTO}, s{sTO}, 3")
    A(f"s_add_u32 s{sTO}, s{sTO}, s{sWAVE}")
    if cfg.get("ctouch", 1):
        code_touch_setup(A, 88, "L_attn_code")
        A(f"s_and_b32 s{sT0}, s{sTO}, 255")
        A(f"s_lshl_b32 s{sT0}, s{sT0}, 7")
        A(f"v_lshlrev_b32 v{X}, 15, v0")
        A(f"v_add_u32 v{X}, s{sT0}, v{X}")
        A(f"v_min_u32 v{R.GV+3}, L_code_end-L_attn_code-4, v{X}")

    A(f"s_mul_i32 s{sT0}, s{sQT}, {2*80*256}")
    A(f"s_lshr_b32 s{sT1}, s{sHD}, 3")
    A(f"s_mul_i32 s{sT1}, s{sT1}, {20*256}")
    A(f"s_add_u32 s{sT0}, s{sT0}, s{sT1}")
    A(f"s_add_u32 s{sT0}, s{sT0}, {hex(WS_O)}")
    L32 = cfg.get("l32", 1)
    A(f"s_lshl_b32 s{sFL0}, s{sFL0}, {12 if L32 else 10}")
    A(f"s_lshl_b32 s{sT2}, s{sHD}, {7 if L32 else 2}")
    A(f"s_add_u32 s{sFL0}, s{sFL0}, s{sT2}")
    A(f"s_add_u32 s{sFL0}, s{sFL0}, {hex(WS_SYNC + (8192 if L32 else 0))}")
    A(f"s_and_b32 s{sT2}, s{sHD}, 7")
    A(f"s_lshl_b32 s{sT1}, s{sT2}, 9")
    A(f"s_add_u32 s{sT1}, s{sT1}, s{sT0}")
    A(f"s_lshl_b32 s{sT2}, s{sT2}, 7")
    A(f"s_add_u32 s{sT0}, s{sT0}, s{sT2}")
    A(f"s_add_u32 s{sT0}, s{sT0}, {16*256}")
    A(f"v_and_b32 v{X}, 15, v0")
    A(f"v_bfe_u32 v{X+1}, v0, 4, 1")
    A(f"v_lshrrev_b32 v{X+2}, 5, v0")
    A(f"v_mul_u32_u24 v{X+1}, {80*256}, v{X+1}")
    A(f"v_lshl_add_u32 v{T+7}, v{X}, 3, v{X+1}")
    A(f"v_add_u32 v{T+7}, s{sT0}, v{T+7}")
    A(f"v_lshl_add_u32 v{T+6}, v{X}, 4, v{X+1}")
    A(f"v_lshl_add_u32 v{T+6}, v{X+2}, 8, v{T+6}")
    A(f"v_add_u32 v{T+6}, s{sT1}, v{T+6}")
    KP = cfg.get("kprep", 1)
    SP, pWO, pWD = SO, SO, 92
    sU, sPSRC, sPDST, sPLDS = sSTG, sKLIM, 101, 3
    VO, PF, TA, vT = R.XRES, X + 4, 8, X
    def prep_setup():
        A(f"s_lshl_b32 s{sU}, s{sWAVE}, 8")
        A(f"s_add_u32 s{sU}, s{sU}, s2")
        A(f"s_mul_i32 s{sPLDS}, s{sWAVE}, 5120")
        A(f"s_cmp_lt_u32 s{sU}, 544")
        A("s_cbranch_scc1 L_pp_real")
        srd(A, SP, pWO, 0)
        A(f"s_mov_b32 s{sPSRC}, 0")
        A(f"s_mov_b32 s{sPDST}, {hex(WS_SIZE)}")
        for jj in range(5): A(f"v_mov_b32 v{VO+jj}, 0")
        A("s_branch L_pp_ta")
        A.label("L_pp_real")
        for jj in range(5):
            A(f"v_add_u32 v{vT}, {64*jj}, v0")
            A(f"v_mul_u32_u24 v{PF+jj}, 6554, v{vT}")
            A(f"v_lshrrev_b32 v{PF+jj}, 16, v{PF+jj}")
            A(f"v_mul_u32_u24 v{vT+1}, 10, v{PF+jj}")
            A(f"v_sub_u32 v{vT}, v{vT}, v{vT+1}")
            A(f"v_lshlrev_b32 v{VO+jj}, 4, v{vT}")
        A(f"s_cmp_ge_u32 s{sU}, 384")
        A("s_cbranch_scc1 L_pp_pwo")
        srd(A, SP, pWD, 1536 * 640 * 2)
        A(f"s_mul_i32 s{sT0}, s{sU}, 1366")
        A(f"s_lshr_b32 s{sT0}, s{sT0}, 16")
        A(f"s_mul_i32 s{sT1}, s{sT0}, 48")
        A(f"s_sub_u32 s{sT1}, s{sU}, s{sT1}")
        A(f"s_mul_i32 s{sPSRC}, s{sT1}, {32*1280}")
        A(f"s_mul_i32 s{sT0}, s{sT0}, 160")
        A(f"s_add_u32 s{sPSRC}, s{sPSRC}, s{sT0}")
        A(f"s_mul_i32 s{sPDST}, s{sU}, 5120")
        A(f"s_add_u32 s{sPDST}, s{sPDST}, {hex(WS_WD)}")
        A("s_branch L_pp_pgo")
        A.label("L_pp_pwo")
        srd(A, SP, pWO, 640 * 640 * 2)
        A(f"s_sub_u32 s{sU}, s{sU}, 384")
        A(f"s_mul_i32 s{sT0}, s{sU}, 3277")
        A(f"s_lshr_b32 s{sT0}, s{sT0}, 16")
        A(f"s_mul_i32 s{sT1}, s{sT0}, 20")
        A(f"s_sub_u32 s{sT1}, s{sU}, s{sT1}")
        A(f"s_mul_i32 s{sPSRC}, s{sT0}, 160")
        A(f"s_mul_i32 s{sT0}, s{sT1}, 205")
        A(f"s_lshr_b32 s{sT0}, s{sT0}, 10")
        A(f"s_mul_i32 s{sT2}, s{sT0}, 5")
        A(f"s_sub_u32 s{sT1}, s{sT1}, s{sT2}")
        A(f"s_mul_i32 s{sT0}, s{sT0}, {160*1280}")
        A(f"s_add_u32 s{sPSRC}, s{sPSRC}, s{sT0}")
        A(f"s_mul_i32 s{sPDST}, s{sU}, 5120")
        A(f"s_add_u32 s{sPDST}, s{sPDST}, {hex(WS_WO)}")
        A(f"s_cmp_eq_u32 s{sT1}, 4")
        A("s_cbranch_scc1 L_pp_pleft")
        A(f"s_mul_i32 s{sT1}, s{sT1}, {40*1280}")
        A(f"s_add_u32 s{sPSRC}, s{sPSRC}, s{sT1}")
        for jj in range(5):
            A(f"v_lshrrev_b32 v{vT}, 4, v{PF+jj}")
            A(f"v_lshl_add_u32 v{PF+jj}, v{vT}, 2, v{PF+jj}")
        A("s_branch L_pp_pgo")
        A.label("L_pp_pleft")
        for jj in range(5):
            k = PF + jj
            A(f"v_lshrrev_b32 v{vT}, 2, v{k}")
            A(f"v_lshl_add_u32 v{k}, v{vT}, 4, v{k}")
            A(f"v_add_u32 v{k}, 16, v{k}")
        A.label("L_pp_pgo")
        for jj in range(5):
            A(f"v_mul_u32_u24 v{vT}, 1280, v{PF+jj}")
            A(f"v_add_u32 v{VO+jj}, v{VO+jj}, v{vT}")
        A.label("L_pp_ta")
        A(f"v_lshrrev_b32 v{vT}, 4, v0")
        A(f"v_bfe_u32 v{vT+1}, v0, 2, 2")
        A(f"v_lshl_add_u32 v{vT}, v{vT}, 3, v{vT+1}")
        A(f"v_mul_u32_u24 v{vT}, 160, v{vT}")
        A(f"v_add_u32 v{vT}, s{sPLDS}, v{vT}")
        A(f"v_and_b32 v{vT+1}, 3, v0")
        A(f"v_lshl_add_u32 v{TA}, v{vT+1}, 4, v{vT}")
        A(f"v_lshl_add_u32 v{TA+1}, v{vT+1}, 3, v{vT}")
    if KP: prep_setup()
    A(f"s_mov_b32 s92, {fhex(2.0**-40)}")
    A(f"s_mov_b32 s93, {fhex(2.0**64)}")
    JUNK = R.XRES + 11
    def gu_op(c, jj):
        return [f"s_add_u32 m0, s{sB}, {c*GU_SLOT + jj*1024}", "s_nop 0",
                f"buffer_load_dwordx4 v{R.GV+jj}, s[{sTMP}:{sTMP+3}], s{sGSRC} offen lds"] + ([f"s_add_u32 s{sGSRC}, s{sGSRC}, {64*3072}", f"s_cmp_eq_u32 s{sGSRC}, s{sGLIM}", f"s_cselect_b32 s{sT0}, {640*3072}, 0", f"s_sub_u32 s{sGSRC}, s{sGSRC}, s{sT0}"] if jj == 2 else [])
    def touch(n, srd_, pre):
        return pre + [f"s_bfm_b64 exec, {n}, 0", f"buffer_load_dword v{JUNK}, v{R.TCH}, s[{srd_}:{srd_+3}], s{sT0} offen", "s_mov_b64 exec, -1"]
    def gu_touch(c): return touch(12, sTMP, [f"s_add_u32 s{sT0}, s{sDELTA}, {c*64*3072}"])
    def out_touch(base, nbytes, l0=0, n=None):
        return touch(n or nbytes // 128, SWS, [f"s_mul_i32 s{sT0}, s{sTO}, {nbytes}", f"s_add_u32 s{sT0}, s{sT0}, {hex(base + l0*128)}",
                                          f"s_cmp_lg_u32 s{sFAST}, 0", f"s_cselect_b32 s{sT0}, s{sT0}, {hex(WS_SIZE)}"])
    sched = {t: [] for t in range(64)}
    trs = {}
    misc = {}
    vm = []
    def put(t, tag, op):
        while len(sched[t]) >= 3: t += 1
        sched[t].append((tag, op)); return t
    for i, op in enumerate(kv_ops(1)): put(i // 2, "kv1", op)
    for c in range(2, 8):
        for i, op in enumerate(kv_ops(c)): put(8 * (c - 2) + 6 + i // 2, f"kv{c}", op)
    pf = []
    def frag_op(src, i, dst):
        pre = [f"s_add_u32 s{sSTG}, s{src}, {i*1024}"] if i % 4 == 0 else []
        return pre + [f"buffer_load_dwordx4 {a(dst+4*i,4)}, v{R.L16}, s[{SWS}:{SWS+3}], s{sSTG} offen offset:{(i%4)*1024} sc1"]
    gl = [gu_op(c, jj) for c in range(4) for jj in range(3)]
    for i in range(10): pf.append(frag_op(sWDSRC, i, 100))
    for i in range(25): pf.append(frag_op(sWOSRC, i, 0))
    pchk = {}
    if KP:
        P0, P1, PFL, PLD, PCK = cfg.get("pp", [2, 8, 14, 25, 30])
        PFLAG = WS_SYNC + 40960
        for jj in range(5):
            put(P0 + jj // 2, "pd", [f"s_add_u32 m0, s{sPLDS}, {jj*1024}", "s_nop 0", f"buffer_load_dwordx4 v{VO+jj}, s[{SP}:{SP+3}], s{sPSRC} offen lds"])
        tr = [f"ds_read_b64_tr_b16 {a(4*f+2*uu,2)}, v{TA+(f==4)} offset:{4*uu*160 + tile_col_imm(f)}" for f in range(5) for uu in range(2)]
        trs[P1] = ("pd", tr[:5]); trs[P1 + 1] = (None, tr[5:])
        for f in range(5):
            put(P1 + 2 + f // 3, "ps", [f"s_add_u32 s{sT0}, s{sPDST}, {f*1024}", f"buffer_store_dwordx4 {a(4*f,4)}, v{R.L16}, s[{SWS}:{SWS+3}], s{sT0} offen sc1"])
        put(PFL, "pf", [f"s_lshl_b32 s{sT0}, s{sG}, 5", f"s_add_u32 s{sT0}, s{sT0}, s{sM}", f"s_lshl_b32 s{sT0}, s{sT0}, 2", f"s_add_u32 s{sT0}, s{sT0}, {hex(PFLAG)}",
                        f"s_cmp_eq_u32 s{sWAVE}, 0", f"s_cselect_b32 s{sT0}, s{sT0}, {hex(WS_SIZE)}", "s_mov_b64 exec, 1",
                        f"buffer_store_dword v{R.K2+1}, v{R.TCH+1}, s[{SWS}:{SWS+3}], s{sT0} offen sc1", "s_mov_b64 exec, -1"])
        pld = f"buffer_load_dwordx4 {v(8,4)}, v{R.L16}, s[{SWS}:{SWS+3}], s{sPSRC} offen sc1"
        put(PLD, "pl", [f"s_mov_b32 s{sPSRC}, {hex(PFLAG)}", f"s_cmp_eq_u32 s{sWAVE}, 0", f"s_cselect_b32 s{sPSRC}, s{sPSRC}, {hex(WS_SIZE)}", pld])
        for i, op in enumerate(gl): put(PFL + 2 + i * (PCK - PFL - 2) // 12, "pf", op)
        free = [t for t in range(PCK, 64) if t % 8 < cfg.get('pfm', 8) or t > 48]
        for i, op in enumerate(pf): put(PCK + i * (cfg.get("pfend", 60) - PCK) // 35, "pf", op)
    else:
        pf += gl
        free = [t for t in range(cfg.get('pf0', 2), 64) if t % 8 < cfg.get('pfm', 6) or t > 48]
        for i, op in enumerate(pf): put(free[i], "pf", op)
    put(0, "at", ["s_cmp_eq_u32 s%d, 0" % sWAVE, f"s_cselect_b32 s{sT0}, s{sFLAG}, {hex(WS_SIZE)}", "s_mov_b64 exec, 1",
                  f"buffer_atomic_add_x2 {v(R.XRES+8,2)}, v{R.TCH+1}, s[{SWS}:{SWS+3}], s{sT0} offen offset:512 sc1", "s_mov_b64 exec, -1"])
    put(12, "pf", [f"buffer_load_dwordx4 {v(R.XRES,4)}, v{R.XRES+6}, s[{SX}:{SX+3}], 0 offen"])
    put(16, "pf", [f"buffer_load_dwordx2 {v(R.XRES+4,2)}, v{R.XRES+7}, s[{SX}:{SX+3}], 0 offen"])
    put(cfg.get("xcc_ld", 10), "xcc", [f"buffer_load_dwordx2 {v(R.XRES+8,2)}, v{R.TCH+1}, s[{SWS}:{SWS+3}], s{sFLAG} offen offset:512 sc1"])
    misc[cfg.get('xcc_rd', 23)] = ("xcc", [f"v_readfirstlane_b32 s{sFAST-1}, v{R.XRES+8}" , f"v_readfirstlane_b32 s{sFAST}, v{R.XRES+9}"])
    gwarm = touch(15, sTMP, [f"s_lshr_b32 s{sT0}, s{sTO}, 3", f"s_lshl_b32 s{sT0}, s{sT0}, 2", f"s_add_u32 s{sT0}, s{sT0}, s{sLW}", f"s_mul_i32 s{sT0}, s{sT0}, {15*128}"])
    if cfg.get("gwarm_at", -1) >= 0: put(cfg.get("gwarm_at", -1), "pf", gwarm)
    wd01_touch = touch(20, SWS, [f"s_mul_i32 s{sT0}, s{sC}, 2560", f"s_add_u32 s{sT0}, s{sT0}, s{sWDSRC}"])
    wo_touch = touch(25, SWS, [f"s_lshr_b32 s{sT0}, s{sWAVE}, 2", f"s_lshl_b32 s{sT1}, s{sC}, 1", f"s_add_u32 s{sT0}, s{sT0}, s{sT1}",
                               f"s_mul_i32 s{sT0}, s{sT0}, 3200", f"s_add_u32 s{sT0}, s{sT0}, s{sWOSRC}"])
    gw2 = touch(6, sTMP, [f"s_lshr_b32 s{sT0}, s{sTO}, 3", f"s_lshl_b32 s{sT0}, s{sT0}, 2", f"s_add_u32 s{sT0}, s{sT0}, s{sLW}", f"s_mul_i32 s{sT0}, s{sT0}, {6*128}",
                          f"s_add_u32 s{sT0}, s{sT0}, {6*64*3072}"])
    def gwp(k, n):
        return touch(n, sTMP, [f"s_lshr_b32 s{sT0}, s{sTO}, 3", f"s_lshl_b32 s{sT0}, s{sT0}, 2", f"s_add_u32 s{sT0}, s{sT0}, s{sLW}", f"s_mul_i32 s{sT0}, s{sT0}, {n*128}",
                               f"s_add_u32 s{sT0}, s{sT0}, {k*n*1024*128}"])
    extra = {"p0": gwp(0, 5), "p1": gwp(1, 5), "p2": gwp(2, 5), "q0": gwp(0, 3), "q1": gwp(1, 3), "q2": gwp(2, 3), "q3": gwp(3, 3), "q4": gwp(4, 3), "wd01": wd01_touch, "wo": wo_touch, "gw2": gw2, "gw": gwarm}
    def wdt(k): return touch(20, SWS, [f"s_lshl_b32 s{sT0}, s{sM}, 3", f"s_add_u32 s{sT0}, s{sT0}, s{sWAVE}", f"s_mul_i32 s{sT0}, s{sT0}, {60*128}", f"s_add_u32 s{sT0}, s{sT0}, {WS_WD + k*20*128}"])
    extra.update({"d0": wdt(0), "d1": wdt(1), "d2": wdt(2)})
    wd_touch = None
    for t, op in cfg_touch_plan(cfg, gu_touch, out_touch, wd_touch, extra): put(t, "pf", op)
    HIDT = None
    if cfg.get("tlb", 0) & 2:
        put(20, "pf", ["s_mov_b64 exec, 1", f"buffer_load_dword v{JUNK}, v{R.XRES+6}, s[{SO}:{SO+3}], 0 offen", "s_mov_b64 exec, -1"])
    if cfg.get("ctouch", 1):
        for t in cfg.get("ct_at", [1, 52]):
            put(t, "pf", ["s_mov_b64 exec, 3", f"global_load_dword v{JUNK}, v{R.GV+3}, s[88:89]", "s_mov_b64 exec, -1"])

    if MG:
        A(f"s_lshr_b32 s{sT0}, s{sHD}, 1")
        A(f"s_mul_i32 s{sT0}, s{sT0}, 5")
        A(f"s_and_b32 s{sT1}, s{sHD}, 1")
        A(f"s_lshl_b32 s{sT1}, s{sT1}, 1")
        A(f"s_add_u32 s{sT0}, s{sT0}, s{sT1}")
        A(f"s_add_u32 s{sT1}, s{sT0}, 2")
        A(f"s_lshr_b32 s{sT0}, s{sT0}, 4")
        A(f"s_lshr_b32 s{sT1}, s{sT1}, 4")
        G32 = cfg.get("g32", 1)
        if G32:
            A(f"v_mov_b32 v{X+1}, s{sT0}")
            A(f"v_mov_b32 v{X+2}, s{sT1}")
            A(f"v_and_b32 v{X+3}, 16, v0")
            A(f"v_cmp_eq_u32 vcc, 0, v{X+3}")
            A(f"v_cndmask_b32 v{X}, v{X+2}, v{X+1}, vcc")
            A(f"v_lshrrev_b32 v{X+3}, 5, v0")
            A(f"v_mul_u32_u24 v{X+3}, 5, v{X+3}")
            A(f"v_add3_u32 v{X}, v{X}, v{X+3}, 5")
            A(f"v_and_b32 v{X+3}, 15, v0")
            A(f"v_lshl_add_u32 v{X}, v{X}, 4, v{X+3}")
            A(f"v_lshlrev_b32 v{X}, 7, v{X}")
            A(f"v_and_b32 v{X+3}, 2, v0")
            A(f"v_cmp_eq_u32 vcc, 0, v{X+3}")
            A(f"v_cndmask_b32 v{X+1}, v{X+2}, v{X+1}, vcc")
            A(f"s_lshr_b32 s{sT0}, s{sQT}, 3")
            A(f"s_lshl_b32 s{sT0}, s{sT0}, 1")
            A(f"v_and_b32 v{X+3}, 1, v0")
            A(f"v_add_u32 v{X+3}, s{sT0}, v{X+3}")
            A(f"v_lshl_add_u32 v{X+1}, v{X+1}, 4, v{X+3}")
            A(f"v_lshlrev_b32 v{X+1}, 7, v{X+1}")
            A("s_mov_b64 s[84:85], -1")
        else:
            A(f"s_lshl_b32 s{sT0}, s{sT0}, 2")
            A(f"s_lshl_b32 s{sT1}, s{sT1}, 2")
            A(f"s_lshl_b32 s{sT0}, 15, s{sT0}")
            A(f"s_lshl_b32 s{sT1}, 15, s{sT1}")
            A(f"s_or_b32 s56, s{sT0}, s{sT1}")
            A("s_mov_b32 s57, 0")
            A("s_lshl_b64 s[58:59], s[56:57], 20")
            A("s_or_b64 s[58:59], s[58:59], s[56:57]")
            A("s_lshl_b64 s[56:57], s[56:57], 40")
            A("s_or_b64 s[58:59], s[58:59], s[56:57]")
            A(f"v_lshrrev_b32 v{X}, 2, v0")
            A(f"v_and_b32 v{X+1}, 3, v0")
            A(f"v_lshlrev_b32 v{X}, 7, v{X}")
            A(f"v_lshl_add_u32 v{X}, v{X+1}, 4, v{X}")
            A("s_mov_b64 s[84:85], s[58:59]")
        A(f"s_cmp_lg_u32 s{sWAVE}, {GP}")
        A("s_cbranch_scc1 L_gs_done")
        A("s_mov_b64 exec, s[84:85]")
        A(f"s_mov_b32 s{sT1}, 0")
        A(f"s_mov_b32 s{sT0}, {hex(WS_GF)}")
        A.label("L_gs_poll")
        A(f"s_sleep {cfg.get('slg', 4)}")
        if G32:
            A(f"buffer_load_dword v{X+4}, v{X}, s[{SWS}:{SWS+3}], s{sT0} offen sc1")
            A(f"buffer_load_dword v{X+5}, v{X+1}, s[{SWS}:{SWS+3}], s{sT0} offen sc1")
        else:
            A(f"buffer_load_dwordx4 {v(X+4,4)}, v{X}, s[{SWS}:{SWS+3}], s{sT0} offen sc1")
        A(f"s_add_u32 s{sT1}, s{sT1}, 1")
        A("s_waitcnt vmcnt(0)")
        A(f"v_min_u32 v{X+4}, v{X+4}, v{X+5}")
        if not G32: A(f"v_min3_u32 v{X+4}, v{X+4}, v{X+6}, v{X+7}")
        A(f"v_cmp_eq_u32 vcc, 0, v{X+4}")
        A(f"s_cmp_lt_u32 s{sT1}, 0x40000")
        A("s_cselect_b64 vcc, vcc, 0")
        A("s_cbranch_vccnz L_gs_poll")
        A("s_mov_b64 exec, -1")
        A.label("L_gs_done")
        A("s_barrier")
        if cfg.get("gst") == 1: stamp(A, cfg, 0)
        first_loads()
    A(f"s_mov_b32 s94, {fhex(2.0**127)}")
    if PSP:
        A(f"s_cmp_lt_u32 s{sWAVE}, {PSP}")
        A("s_cbranch_scc1 L_p1")
        A("s_waitcnt vmcnt(0)")
        for op in kv_ops(0): emit(op)
        A.label("L_p1")
    A("s_waitcnt vmcnt(4)")
    A(f"v_mfma_f32_32x32x16_bf16 {v(S0,16)}, {v(R.K1,4)}, {v(R.Q1,4)}, 0")
    A(f"v_mfma_f32_32x32x8_bf16 {v(S0,16)}, {v(R.K2,2)}, {v(R.Q2,2)}, {v(S0,16)}")
    max16(A, R.P, S0, True)
    xhalf_max(A, R.P, R.P+1)
    set_shift(A, R.P)
    A(f"v_mfma_f32_32x32x16_bf16 {v(S0,16)}, {v(R.K1,4)}, {v(R.Q1,4)}, 0")
    A(f"v_mfma_f32_32x32x8_bf16 {v(S0,16)}, {v(R.K2,2)}, {v(R.Q2,2)}, {v(S0,16)}")
    def toff(t): return ((t // 8) % 3) * KV_SLOT + (t % 8) * 2560
    def tdelta(t): return 0
    if PSP:
        A(f"s_cmp_ge_u32 s{sWAVE}, {PSP}")
        A("s_nop 1")
        A("s_cbranch_scc1 L_p2")
    A("s_waitcnt vmcnt(0)")
    A.label("L_p2")
    A("s_barrier")
    vm += ["kv0"] * 4
    A(f"ds_read_b128 {v(R.K1,4)}, v{R.KA} offset:{toff(1)}")
    A(f"ds_read_b32 v{R.K2}, v{R.K2A} offset:{toff(1)}")
    A(f"s_mov_b64 exec, s[{sVMASK}:{sVMASK+1}]")
    A(f"ds_read_b128 {v(R.V1,4)}, v{R.VA}")
    A("s_mov_b64 exec, -1")
    stamp(A, cfg, 1)
    PRIO = cfg.get("prio", {6: 3, 2: 2, 4: 1, 5: 0})
    A("s_setprio 3")
    A.label("L_attn_code")
    def vwait(tag): A(f"s_waitcnt vmcnt({len(vm) - 1 - max(i for i, x in enumerate(vm) if x == tag)})")
    for t in range(64):
        cur, nxt = R.S[t % 2], R.S[(t + 1) % 2]
        def E(i): A(f"v_exp_f32 v{cur+i}, v{cur+i}")
        def C(k): A(f"v_cvt_pk_bf16_f32 v{R.P+k}, v{cur+2*k}, v{cur+2*k+1}")
        ops_t = list(sched[t])
        def V():
            if ops_t:
                tag, op = ops_t.pop(0); emit(op); vm.append(tag)
        tr = []
        if t in trs: tr = list(trs[t][1])
        def L(n):
            for _ in range(n):
                if tr: A(tr.pop(0))
        if PSP and t == PSP - 2:
            vwait("kv0")
            A("s_barrier")
        if KP and t == PCK:
            A(f"s_cmp_lg_u32 s{sWAVE}, 0")
            A("s_cbranch_scc1 L_pck_done")
            vwait("pl")
            A(f"s_mov_b32 s{sT1}, 0")
            A.label("L_pck")
            A("v_min_u32 v8, v8, v9")
            A("v_min3_u32 v8, v8, v10, v11")
            A("v_cmp_eq_u32 vcc, 0, v8")
            A(f"s_add_u32 s{sT1}, s{sT1}, 1")
            A(f"s_cmp_lt_u32 s{sT1}, 0x40000")
            A("s_cselect_b64 vcc, vcc, 0")
            A("s_cbranch_vccz L_pck_done")
            A("s_sleep 4")
            A(pld)
            A("s_waitcnt vmcnt(0)")
            A("s_branch L_pck")
            A.label("L_pck_done")
        if KP and t == PFL: vwait("ps")
        if t % 8 == 6 and t < 56:
            vwait(f"kv{t//8+1}")
            A("s_barrier")
        if cfg.get("ats") and t % 8 == 6: A(f"s_memtime s[{64+2*(t//8)}:{65+2*(t//8)}]")
        if t < 56 and t % 8 in PRIO: A(f"s_setprio {PRIO[t % 8]}")
        if t >= 56 and (t - 2) % 8 in PRIO and t > 56: A(f"s_setprio {PRIO[(t - 2) % 8]}")
        if t < 63:
            A(f"s_waitcnt lgkmcnt({2 if t else 1})")
            A(f"v_mfma_f32_32x32x16_bf16 {v(nxt,16)}, {v(R.K1,4)}, {v(R.Q1,4)}, 0")
        E(0); E(1); V(); E(2); C(0); E(3)
        A("s_waitcnt lgkmcnt(0)")
        if t: A(f"v_mfma_f32_32x32x16_bf16 {v(R.O,16)}, {v(R.V2,4)}, {v(R.P+4,4)}, {v(R.O,16)}")
        if t in trs and trs[t][0]: vwait(trs[t][0])
        if t in misc:
            vwait(misc[t][0])
            A(f"s_mov_b32 s{sT1}, s{sFAST-1}")
            emit(misc[t][1])
            A(f"s_lshr_b64 s[{sFAST-1}:{sFAST}], s[{sFAST-1}:{sFAST}], s{sXCC}")
            A(f"s_and_b32 s{sFAST}, s{sFAST-1}, 63")
            A(f"s_mov_b32 s{sFAST-1}, s{sT1}")
            A(f"s_cmp_eq_u32 s{sFAST}, 32")
            A(f"s_cselect_b32 s{sFAST}, {0 if cfg.get('noFast') else 1}, 0")
        L(2); E(4); C(1); L(2); E(5); V(); E(6); L(1); C(2); E(7)
        if t < 63: A(f"v_mfma_f32_32x32x8_bf16 {v(nxt,16)}, {v(R.K2,2)}, {v(R.Q2,2)}, {v(nxt,16)}")
        if t < 62:
            if tdelta(t + 2):
                A(f"v_add_u32 v{R.KA}, {tdelta(t+2)}, v{R.KA}")
                A(f"v_add_u32 v{R.K2A}, {tdelta(t+2)}, v{R.K2A}")
            A(f"ds_read_b128 {v(R.K1,4)}, v{R.KA} offset:{toff(t+2)}")
            A(f"ds_read_b32 v{R.K2}, v{R.K2A} offset:{toff(t+2)}")
        E(8); C(3); E(9); V(); E(10); C(4); E(11)
        A(f"v_mfma_f32_32x32x16_bf16 {v(R.O,16)}, {v(R.V1,4)}, {v(R.P,4)}, {v(R.O,16) if t else 0}")
        A(f"s_mov_b64 exec, s[{sVMASK}:{sVMASK+1}]")
        A(f"ds_read_b128 {v(R.V2,4)}, v{R.VA} offset:{toff(t) + 640}")
        if t < 63:
            if tdelta(t + 1): A(f"v_add_u32 v{R.VA}, {tdelta(t+1)}, v{R.VA}")
            A(f"ds_read_b128 {v(R.V1,4)}, v{R.VA} offset:{toff(t+1)}")
        A("s_mov_b64 exec, -1")
        E(12); C(5); E(13); E(14); E(15); C(6); C(7)
        assert not ops_t and not tr
    A("s_waitcnt lgkmcnt(0)")
    A(f"v_mfma_f32_32x32x16_bf16 {v(R.O,16)}, {v(R.V2,4)}, {v(R.P+4,4)}, {v(R.O,16)}")
    A.label("L_post_attn")
    if cfg.get("ats"):
        for c in range(11): A(f"s_sub_u32 s{65+2*c}, s{64+2*c}, s63")
        A("v_mov_b32 v78, v0")
        A("v_mov_b32 v110, v2")
        A("v_mov_b32 v109, v3")
        stamp_flush(A, cfg, 13, 17, SWS, sWAVE, 0)
        A("s_mov_b64 exec, -1")
        A("v_mov_b32 v0, v78")
        A("v_mov_b32 v2, v110")
        A("v_mov_b32 v3, v109")
    A("s_setprio 0")
    stamp(A, cfg, 2)
    N = R.S[0]
    A(f"v_rcp_f32 v{T}, v{R.O+10}")
    A(f"v_max3_f32 v{T+1}, abs(v{R.O}), abs(v{R.O+1}), abs(v{R.O+2})")
    A(f"v_cmp_le_f32 vcc, s92, v{R.O+10}")
    A(f"v_cmp_ge_f32 s[{sTMP}:{sTMP+1}], s93, v{R.O+10}")
    for k in (3, 5, 7): A(f"v_max3_f32 v{T+1}, v{T+1}, abs(v{R.O+k}), abs(v{R.O+k+1})")
    A(f"v_max_f32_e64 v{T+1}, v{T+1}, abs(v{R.O+9})")
    A(f"s_and_b64 vcc, vcc, s[{sTMP}:{sTMP+1}]")
    A(f"v_cmp_ge_f32 s[{sTMP+2}:{sTMP+3}], s94, v{T+1}")
    def norm():
        for k in (8, 9, 0, 1, 2, 3, 4, 5, 6, 7): A(f"v_mul_f32 v{N+k}, v{T}, v{R.O+k}")
    norm()
    A(f"s_and_b64 vcc, vcc, s[{sTMP+2}:{sTMP+3}]")
    A(f"s_cmp_eq_u64 vcc, -1" if not cfg.get("force_slow") else "s_cmp_eq_u32 s2, -1")
    A("s_cbranch_scc0 L_attn_slow")
    A.label("L_attn_norm")
    A(f"v_cvt_pk_bf16_f32 v{N+10}, v{N+8}, v{N+9}")
    A(f"v_cvt_pk_bf16_f32 v{N+11}, v{N+8}, v{N+9}")
    for k in range(4): A(f"v_cvt_pk_bf16_f32 v{N+k}, v{N+2*k}, v{N+2*k+1}")
    A(f"v_permlane32_swap_b32 v{N+10}, v{N+11}")
    stores(A, [f"buffer_store_dwordx4 {v(N,4)}, v{T+6}, s[{SWS}:{SWS+3}], 0 offen",
               "s_mov_b32 exec_hi, 0",
               f"buffer_store_dwordx2 {v(N+10,2)}, v{T+7}, s[{SWS}:{SWS+3}], 0 offen",
               "s_mov_b32 exec_hi, -1"], data="O")
    A(f"v_and_b32 v{T+4}, 15, v0")
    A(f"v_lshrrev_b32 v{T+3}, 5, v0")
    A(f"v_lshlrev_b32 v{T+1}, 4, v{T+4}")
    A(f"v_lshl_add_u32 v{T+1}, v{T+3}, 8, v{T+1}")
    A(f"v_lshrrev_b32 v{T+5}, 4, v0")
    A(f"v_lshlrev_b32 v{T+5}, 8, v{T+5}")
    A(f"v_lshl_add_u32 v7, v{T+4}, 3, v{T+5}")
    A(f"v_add_u32 v7, 4096, v7")

    BF, ACC = 16, 56
    vHP, vHS, vPW, RA = 108, 109, 3, 5
    A(f"s_lshr_b32 s{sT2}, s{sWAVE}, 2")
    A(f"s_mul_i32 s{sT1}, s{sKQ}, {20*256}")
    A(f"s_add_u32 s{sT1}, s{sT1}, {hex(WS_O)}")
    A(f"s_add_u32 s{sB2}, s{sLW}, s{sTOK16}")
    A(f"s_xor_b32 s{sB}, s{sB2}, 1")
    A(f"s_mul_i32 s{sB}, s{sB}, {80*256}")
    A(f"s_add_u32 s{sB}, s{sB}, s{sT1}")
    A(f"s_mul_i32 s{sB2}, s{sB2}, {80*256}")
    A(f"s_add_u32 s{sB2}, s{sB2}, s{sT1}")
    A(f"s_xor_b32 s{sT0}, s{sLW}, 1")
    A(f"s_mul_i32 s{sT0}, s{sT0}, 5120")
    A(f"s_add_u32 s{sT0}, s{sT0}, {PART_BASE}")
    A(f"v_add_u32 v{vPW}, s{sT0}, v{R.L16}")
    A(f"s_mul_i32 s{sT0}, s{sLW}, 5120")
    A(f"s_add_u32 s{sT0}, s{sT0}, {PART_BASE}")
    A(f"v_add_u32 v6, s{sT0}, v{R.L16}")
    A(f"s_add_u32 s{sT0}, s{sLW}, s{sTOK16}")
    A(f"s_lshl_b32 s{sC}, s{sT0}, 11")
    A(f"s_mul_i32 s{sT0}, s{sT0}, {80*256}")
    A(f"s_mul_i32 s{sT1}, s{sFG}, 2560")
    A(f"s_add_u32 s{sT0}, s{sT0}, s{sT1}")
    A(f"s_add_u32 s{sT0}, s{sT0}, {hex(WS_H)}")
    A(f"v_add_u32 v{T+1}, 2048, v{T+1}")
    A(f"v_add_u32 v{vHS}, s{sT0}, v{T+1}")
    A(f"s_lshl_b32 s{sT1}, s{sT2}, 10")
    A(f"s_add_u32 s{sT0}, s{sT0}, s{sT1}")
    A(f"v_add_u32 v{vHP}, s{sT0}, v{R.L16}")
    A(f"s_lshl_b32 s{sT1}, s{sFG}, 1")
    A(f"s_add_u32 s{sT1}, s{sT1}, s{sT2}")
    A(f"s_lshl_b32 s{sT1}, s{sT1}, 7")
    A(f"s_add_u32 s{sC}, s{sC}, s{sT1}")
    A(f"s_add_u32 s{sC}, s{sC}, {hex(WS_ST2)}")
    reduce_addr(A, 3, PART_BASE, RA)
    sGT = sQT
    A(f"s_and_b32 s{sGT}, s{sTOK16}, -8")
    A(f"s_lshl_b32 s{sT0}, s{sLW}, 1")
    A(f"s_add_u32 s{sGT}, s{sGT}, s{sT0}")
    sHSRC, sHM0 = sKBASE, sVBASE
    A(f"s_mul_i32 s{sHSRC}, s{sGT}, {80*256}")
    A(f"s_add_u32 s{sHSRC}, s{sHSRC}, {hex(WS_H)}")
    A(f"s_lshl_b32 s{sHM0}, s{sLW}, 12")
    A(f"s_add_u32 s{sTO}, s{sHSRC}, {80*256}")
    A(f"s_lshl_b32 s{sT0}, s{sC0}, 11")
    A(f"s_add_u32 s{sHSRC}, s{sHSRC}, s{sT0}")
    stamp(A, cfg, 3)
    M8 = 0x0101010101010101
    sync(A, 0, 0, False, 0, rb=[(M8, [f"buffer_load_dword v{JUNK}, v{T+6}, s[{SWS}:{SWS+3}], 0 offen"]),
                                (0x00010001, [f"buffer_load_dword v{JUNK}, v{T+7}, s[{SWS}:{SWS+3}], 0 offen"])])
    stamp(A, cfg, 4)
    def wo_load(q, BF=BF):
        i, st = divmod(q, 5)
        if st < 4: A(f"buffer_load_dwordx4 {v(BF+20*i+4*st,4)}, v{R.L16}, s[{SWS}:{SWS+3}], s{sB2 if i else sB} offen offset:{st*1024} {cfg.get('wold', 'sc1')}")
        else:
            for e in range(2): A(f"buffer_load_dwordx2 {v(BF+20*i+16+2*e,2)}, v7, s[{SWS}:{SWS+3}], s{sB2 if i else sB} offen offset:{128*e} {cfg.get('wold', 'sc1')}")
        return [q] * (2 if st == 4 else 1)
    WL0 = cfg.get("wl0", 4)
    wq0 = []
    for q in range(WL0): wq0 += wo_load(q)
    if cfg.get("wts"): A("s_memtime s[72:73]")
    EW = cfg.get("ew", [4, 1, 0])
    FSUB = lambda f: 1 if f in (2, 3) else 0
    def wo_main(sub, ACC=ACC, BF=BF, vPW=vPW):
        keep = [f for f in range(5) if FSUB(f) == sub]
        order = [f for f in range(5) if f not in keep] + keep
        wq = list(wq0); nq = WL0
        for i in range(2):
            for st in range(5):
                A(f"s_waitcnt vmcnt({len(wq) - 1 - max(k for k, x in enumerate(wq) if x == 5*i+st)})")
                for _ in range(cfg.get("wlr", 1)):
                    if nq < 10: wq += wo_load(nq); nq += 1
                if cfg.get("wts") and (5 * i + st) in (0, 2, 4, 5, 7, 9): A(f"s_memtime s[{74+2*(0,2,4,5,7,9).index(5*i+st)}:{75+2*(0,2,4,5,7,9).index(5*i+st)}]")
                for f in order:
                    acc = v(ACC + 20 * i + 4 * f, 4)
                    A(f"v_mfma_f32_16x16x32_bf16 {acc}, {a(20*st+4*f,4)}, {v(BF+20*i+4*st,4)}, {acc if st else 0}")
                if i == 1:
                    f = order[st]
                    A(f"ds_write_b128 v{vPW}, {v(ACC+4*f,4)} offset:{(1 if FSUB(f) == sub else 2)*20480 + f*1024}")
        for f in order:
            if f not in keep: A(f"ds_write_b128 v6, {v(ACC+20+4*f,4)} offset:{f*1024}")
        for op in (load_wd_ops(2) + load_wd_ops(3))[:EW[0]]: emit(op)
        stamp(A, cfg, 5)
        if cfg.get("wts"):
            for k in range(7): A(f"s_sub_u32 s{73+2*k}, s{72+2*k}, s69")
            A("s_sub_u32 s71, s71, s69")
            A("v_mov_b32 v110, v0")
            A("v_mov_b32 v1, v3")
            stamp_flush(A, cfg, 13, 17, SWS, sWAVE, cfg.get("tswave", 0))
            A("s_mov_b64 exec, -1")
            A("v_mov_b32 v0, v110")
            A("v_mov_b32 v3, v1")
        return [ACC + 20 + 4 * f for f in keep]
    D = 16
    TRA, VB, VST = 1, 2, 3
    G1, Gh, rho, c0, c1 = T+2, T+3, T+4, T+5, T+6
    def wo_tail(n):
        own = wo_main(3 - n)
        XF = 56
        A("s_waitcnt lgkmcnt(0)")
        A("s_barrier")
        def mid():
            for op in (load_wd_ops(2) + load_wd_ops(3))[EW[0]:EW[0]+EW[1]]: emit(op)
            for i in range(2 * n):
                A(f"v_lshlrev_b32 v{XF+2*i}, 16, v{R.XRES+i}")
                A(f"v_and_b32 v{XF+2*i+1}, 0xffff0000, v{R.XRES+i}")
            for i in range(2 * n): A(f"v_pk_add_f32 {v(own[i//2]+2*(i%2),2)}, {v(own[i//2]+2*(i%2),2)}, {v(XF+2*i,2)}")
            A(f"v_mov_b32 v{T+2}, 0x3f803f80")
            A(f"v_lshlrev_b32 v{T+3}, 3, v0")
        reduce_sum(A, 3, D, RA, n, own, mid)
        src = lambda i: own[i // 2] + 2 * (i % 2)
        for i in range(4): A(f"v_cvt_pk_bf16_f32 v{D+i}, v{src(i)}, v{src(i)+1}")
        stores(A, [f"buffer_store_dwordx4 {v(D,4)}, v{vHP}, s[{SWS}:{SWS+3}], 0 offen"])
        if n == 3:
            E = D + 12
            for i in range(4): A(f"v_cvt_pk_bf16_f32 v{E+i}, v{src(4+i%2)}, v{src(4+i%2)+1}")
            for i in (4, 5): A(f"v_cvt_pk_bf16_f32 v{D+i}, v{src(i)}, v{src(i)+1}")
            A(f"v_permlane16_swap_b32 v{E}, v{E+2}")
            A(f"v_permlane16_swap_b32 v{E+1}, v{E+3}")
            stores(A, ["s_mov_b32 exec_lo, 0xffff", "s_mov_b32 exec_hi, 0xffff",
                       f"buffer_store_dwordx4 {v(E,4)}, v{vHS}, s[{SWS}:{SWS+3}], 0 offen", "s_mov_b64 exec, -1"])
        sm, sq = D + 8, D + 9
        for i in range(2 * n):
            A(f"v_dot2_f32_bf16 v{sm}, v{D+i}, v{T+2}, {'v%d' % sm if i else 0}")
            A(f"v_dot2_f32_bf16 v{sq}, v{D+i}, v{D+i}, {'v%d' % sq if i else 0}")
        for i in range(3): A(f"v_accvgpr_write_b32 a{A_RES(i)}, v{D+i}")
        for op in ("v_permlane16_swap_b32", "v_permlane32_swap_b32"):
            A(f"v_mov_b32 v{T}, v{sm}")
            A(f"v_mov_b32 v{T+1}, v{sq}")
            A(f"{op} v{sm}, v{T}")
            A(f"{op} v{sq}, v{T+1}")
            A(f"v_pk_add_f32 {v(sm,2)}, {v(sm,2)}, {v(T,2)}")
        A("s_mov_b64 exec, 0xffff")
        stores(A, [f"buffer_store_dwordx2 {v(sm,2)}, v{T+3}, s[{SWS}:{SWS+3}], s{sC} offen"])
        A("s_mov_b64 exec, -1")
        for op in (load_wd_ops(2) + load_wd_ops(3))[EW[0]+EW[1]:sum(EW)]: emit(op)
        for i in range(3, 2 * n): A(f"v_accvgpr_write_b32 a{A_RES(i)}, v{D+i}")
        A(f"v_bfe_u32 v{G1}, v0, 4, 1")
        A(f"v_lshrrev_b32 v{Gh}, 5, v0")
    def h_dma_ops(c):
        return [[f"s_add_u32 m0, s{sHM0}, {H_BASE + (c%NHS)*16384 + k*1024}", f"s_add_u32 s{sT0}, s{sHSRC}, {(k//2)*80*256 + (k%2)*1024}",
                 f"buffer_load_dwordx4 v{R.L16}, s[{SWS}:{SWS+3}], s{sT0} offen sc1 lds"] +
                ([f"s_add_u32 s{sHSRC}, s{sHSRC}, 2048", f"s_cmp_eq_u32 s{sHSRC}, s{sTO}", f"s_cselect_b32 s{sT0}, {80*256}, 0",
                  f"s_sub_u32 s{sHSRC}, s{sHSRC}, s{sT0}"] if k == 3 else []) for k in range(4)]
    A(f"s_cmp_ge_u32 s{sWAVE}, 4")
    A("s_cbranch_scc1 L_gu_loader")
    wo_tail(3)

    L_CF = GU_MISC
    L_MB = GU_MISC + 3072
    L_RS = GU_MISC + 4096
    L_ZERO = GU_MISC + 4608
    ACC = 16
    HF, WF, ONE = 0, 32, 48
    CS = lambda j: 52 if j == 0 else 56 + 4 * j
    TR = (1, 2, 3)
    TRX, VB, VST = (5, 6, 7), T + 4, T + 6
    sTH, sFH = sKSRC, sVSRC
    A(f"s_and_b32 s{sTH}, s{sWAVE}, 1")
    A(f"s_lshr_b32 s{sFH}, s{sWAVE}, 1")
    A(f"v_lshrrev_b32 v{T}, 4, v0")
    A(f"v_bfe_u32 v{T+1}, v0, 2, 2")
    A(f"v_lshl_add_u32 v{T}, v{T}, 3, v{T+1}")
    A(f"v_mul_u32_u24 v{T}, 192, v{T}")
    A(f"v_and_b32 v{T+1}, 3, v0")
    A(f"v_lshl_add_u32 v{T}, v{T+1}, 3, v{T}")
    A(f"s_mul_i32 s{sT1}, s{sTH}, {32*192}")
    for jt in range(3):
        A(f"s_mul_i32 s{sT0}, s{sFH}, 3")
        A(f"s_add_u32 s{sT0}, s{sT0}, {jt}")
        A(f"v_xor_b32 v{T+1}, s{sT0}, v{G1}")
        A(f"v_lshl_add_u32 v{T+1}, v{T+1}, 5, v{T}")
        A(f"v_add_u32 v{TR[jt]}, s{sT1}, v{T+1}")
        A(f"v_subrev_u32 v{TRX[jt]}, s{sT1}, v{T+1}")
    A(f"v_mov_b32 v{T}, 0x3f803f80")
    for i in range(4): A(f"v_accvgpr_write_b32 a{ONE+i}, v{T}")
    A(f"s_mul_i32 s{sT0}, s{sTH}, {8192 + 1024}")
    A(f"s_add_u32 s{sT0}, s{sT0}, {H_BASE}")
    A(f"v_add_u32 v{VB}, s{sT0}, v{R.L16}")
    A(f"s_mul_i32 s{sT0}, s{sTH}, {8192 - 1024}")
    A(f"s_add_u32 s{sT0}, s{sT0}, {H_BASE}")
    A(f"v_add_u32 v{VB+1}, s{sT0}, v{R.L16}")
    A(f"v_and_b32 v{T}, 15, v0")
    A(f"v_lshlrev_b32 v{T}, 4, v{T}")
    A(f"v_lshl_add_u32 v{T}, v{Gh}, 8, v{T}")
    A(f"v_lshl_add_u32 v{VST}, v{G1}, 9, v{T}")
    A(f"v_mul_u32_u24 v{T+1}, {192*256}, v{G1}")
    A(f"v_add3_u32 v{VST+1}, v{T}, v{T+1}, 0")
    lq = []
    def wread(n, us=(0, 1)):
        st, j = divmod(n, 6)
        kb = st % 2
        for u in us:
            A(f"ds_read_b64_tr_b16 {a(WF+4*(n%4)+2*u,2)}, v{(TRX if kb else TR)[j//2]} offset:{(32*kb+4*u)*192 + (j%2)*GU_UP}"); lq.append(("W", n))
    def hread(st, i):
        c, kb = divmod(st, 2)
        A(f"ds_read_b128 {a(HF+16*(st%2)+4*i,4)}, v{VB+kb} offset:{(c%NHS)*16384 + i*2048 + kb*1024}"); lq.append(("H", st, i))
    for n in range(3): wread(n)
    stamp(A, cfg, 6)
    sync(A, 1, 0, True, EW[2], rb=[(M8, [f"buffer_load_dword v{T+2}, v{vHP}, s[{SWS}:{SWS+3}], 0 offen"]),
                               (0x0000010100000101, [f"buffer_load_dword v{T+2}, v{vHS}, s[{SWS}:{SWS+3}], 0 offen"])])
    stamp(A, cfg, 7)
    if cfg.get("gts"): A("s_mov_b32 s90, s75")
    for op in h_dma_ops(0)[:2]: emit(op)
    A("s_waitcnt vmcnt(0)")
    A("s_barrier")
    for i in range(4): hread(0, i)
    wd3 = (load_wd_ops(2) + load_wd_ops(3))[sum(EW):]
    assert sum(EW) == 5
    def lwait(tags): A(f"s_waitcnt lgkmcnt({min(15, len(lq) - 1 - max(i for i, x in enumerate(lq) if x in tags))})")
    CFA, MBA = HF, HF + 12
    valu = []
    LATE = cfg.get('wlate', 1)
    for st in range(20):
        c, kb = divmod(st, 2)
        for j in range(6):
            n = 6 * st + j
            bar = kb == 1 and j == 3 and st < 19
            if bar:
                if LATE: lwait([("W", n)])
                else: A("s_waitcnt lgkmcnt(0)")
                if cfg.get("gts") == 2: A(f"s_memtime s[{60+2*c}:{61+2*c}]")
                A("s_barrier")
                if cfg.get("gts") == 1: A(f"s_memtime s[{60+2*c}:{61+2*c}]")
                d = GU_SLOT if (c + 1) % NWS else -(NWS - 1) * GU_SLOT
                for r in TR: A(f"v_add_u32 v{r}, {d & 0xffffffff}, v{r}")
            elif LATE or not (kb == 1 and j > 3 and st < 19):
                lwait([("W", n)] + ([("H", st, 3)] if j == 0 else []))
            if kb == 0 and j == 0 and st:
                d = GU_SLOT if c % NWS else -(NWS - 1) * GU_SLOT
                for r in TRX: A(f"v_add_u32 v{r}, {d & 0xffffffff}, v{r}")
            ex = []
            if n + 3 < 120: ex += [lambda n=n: wread(n + 3, (0,)), lambda n=n: wread(n + 3, (1,))]
            if st < 19:
                hs = {0: {1: (0,), 2: (1,), 3: (2,), 4: (3,)}, 1: {3: (0, 1), 4: (2, 3)}}[kb].get(j, ())
                for i in hs: ex.append(lambda i=i: hread(st + 1, i))
            if st == 19 and j == 0:
                for jj in range(6):
                    x = T + 2 * (jj % 2); y = T + 4
                    valu += [f"v_accvgpr_read_b32 v{y}, a{CS(jj)}", f"v_cvt_pk_bf16_f32 v{x+1}, v{y}, v{y}", f"v_and_b32 v{x+1}, 0xffff0000, v{x+1}",
                             f"v_sub_f32 v{y}, v{y}, v{x+1}", f"v_cvt_pk_bf16_f32 v{x}, v{x+1}, v{y}", f"v_lshrrev_b32 v{x+1}, 16, v{x+1}",
                             f"ds_write_b64 v{TR[0]}, {v(x,2)} offset:{256*jj}"]
            if st == 19 and j == 5:
                assert not valu
                A("s_waitcnt lgkmcnt(0)")
                A("s_barrier")
                valu = [f"ds_read_b64 {v(6,2)}, v{TR[2]}"] + [f"ds_read_b64 {a(CFA+2*k,2)}, v{TR[1]} offset:{256*k}" for k in range(6)] + \
                       [f"ds_read_b64 {v((6, T, T+2, T+4)[i],2)}, v{TR[2]} offset:{128*i}" for i in range(1, 4)]
            wf = a(WF + 4 * (n % 4), 4)
            if kb == 0 and not cfg.get("gu_nocs"):
                A(f"v_mfma_f32_16x16x32_bf16 {a(CS(j),4)}, {a(ONE,4)}, {wf}, {a(CS(j),4) if st else 0}")
                if ex: ex.pop(0)()
            for i in range(4):
                acc = v(ACC + 24 * i + 4 * j, 4)
                A(f"v_mfma_f32_16x16x32_bf16 {acc}, {wf}, {a(HF+16*(st%2)+4*i,4)}, {acc if st else 0}")
                k = 3
                if ex: ex.pop(0)(); k = 1
                for _ in range(k):
                    if valu:
                        x = valu.pop(0); A(x)
                        if x.startswith("ds_"): lq.append("x")
            assert not ex
        if st == 18:
            A(f"s_mul_i32 s{sT0}, s{sFH}, 1536")
            A(f"s_add_u32 s{sT0}, s{sT0}, {L_CF}")
            A(f"v_and_b32 v{TR[1]}, 31, v0")
            A(f"v_lshlrev_b32 v{TR[1]}, 3, v{TR[1]}")
            A(f"v_add_u32 v{TR[1]}, s{sT0}, v{TR[1]}")
            A(f"s_lshl_b32 s{sT1}, s{sTH}, 7")
            A(f"s_add_u32 s{sT0}, s{sT0}, s{sT1}")
            A(f"v_and_b32 v{TR[2]}, 15, v0")
            A(f"v_lshlrev_b32 v{TR[2]}, 3, v{TR[2]}")
            A(f"v_add_u32 v{TR[0]}, s{sT0}, v{TR[2]}")
            A(f"s_lshl_b32 s{sT0}, s{sTH}, 9")
            A(f"s_add_u32 s{sT0}, s{sT0}, {L_MB}")
            A(f"v_add_u32 v{TR[2]}, s{sT0}, v{TR[2]}")
            A("s_mov_b32 exec_lo, 0")
            A(f"v_mov_b32 v{TR[2]}, {L_ZERO}")
            A("s_mov_b32 exec_lo, -1")
    MBR = (6, T, T + 2, T + 4)
    assert not valu
    def corr(i): return [f"v_mfma_f32_16x16x16_bf16 {v(ACC+24*i+4*j,4)}, {a(CFA+2*j,2)}, {v(MBR[i],2)}, {v(ACC+24*i+4*j,4)}" for j in range(6)]
    if cfg.get("gts"):
        A("s_waitcnt lgkmcnt(0)")
        for c in range(9): A(f"s_sub_u32 s{(91,92,93,94,95,96,86,88,89)[c]}, s{60+2*c}, s90")
    stamp(A, cfg, 8)
    A(f"s_and_b32 s{sB}, s{sTOK16}, -8")
    A(f"s_lshl_b32 s{sT0}, s{sTH}, 2")
    A(f"s_add_u32 s{sB}, s{sB}, s{sT0}")
    A(f"s_mul_i32 s{sB}, s{sB}, {192*256}")
    A(f"s_mul_i32 s{sT0}, s{sJ}, {12*256}")
    A(f"s_add_u32 s{sB}, s{sB}, s{sT0}")
    A(f"s_mul_i32 s{sT0}, s{sFH}, {6*256}")
    A(f"s_add_u32 s{sB}, s{sB}, s{sT0}")
    A(f"s_add_u32 s{sB}, s{sB}, {hex(WS_HID)}")
    A("s_waitcnt lgkmcnt(3)")
    for x in corr(0): A(x)
    A("s_waitcnt lgkmcnt(0)")
    def gu_epi(sc):
        for i in range(4):
            r = ACC + 24 * i
            cm = corr(i + 1) if i < 3 else []
            L = []
            for jt in range(3):
                g = r + 8 * jt
                L += [f"v_max_f32 v{g+b}, 0, v{g+b}" for b in range(4)]
                if i < 3: L += [f"v_mul_f32 v{g+b}, v{g+b}, v{g+4+b}" for b in range(4)]
                else: L += [f"v_pk_mul_f32 {v(g+b,2)}, {v(g+b,2)}, {v(g+4+b,2)}" for b in (0, 2)]
            e = ACC + 48 * (i // 2) + 20
            L += [f"v_cvt_pk_bf16_f32 v{r}, v{r}, v{r+1}", f"v_cvt_pk_bf16_f32 v{r+1}, v{r+2}, v{r+3}",
                  f"v_cvt_pk_bf16_f32 v{r+2}, v{r+8}, v{r+9}", f"v_cvt_pk_bf16_f32 v{r+3}, v{r+10}, v{r+11}",
                  f"v_cvt_pk_bf16_f32 v{e+2*(i%2)}, v{r+16}, v{r+17}", f"v_cvt_pk_bf16_f32 v{e+2*(i%2)+1}, v{r+18}, v{r+19}",
                  f"v_permlane16_swap_b32 v{r}, v{r+2}", f"v_permlane16_swap_b32 v{r+1}, v{r+3}",
                  f"s_add_u32 s{sT2}, s{sB}, {i*192*256}",
                  f"buffer_store_dwordx4 {v(r,4)}, v{VST}, s[{SWS}:{SWS+3}], s{sT2} offen {sc}"]
            if i % 2:
                L += [f"v_permlane16_swap_b32 v{e}, v{e+2}", f"v_permlane16_swap_b32 v{e+1}, v{e+3}",
                      f"s_add_u32 s{sT2}, s{sB}, {(i-1)*192*256}",
                      f"buffer_store_dwordx4 {v(e,4)}, v{VST+1}, s[{SWS}:{SWS+3}], s{sT2} offen offset:1024 {sc}"]
            for k, x in enumerate(L):
                if k % 3 == 0 and cm: A(cm.pop(0))
                A(x)
    if cfg.get("wt", 2) & 2:
        gu_epi("sc1")
    else:
        A(f"s_cmp_lg_u32 s{sFAST}, 0")
        A("s_nop 4")
        A("s_cbranch_scc0 L_gu_epi_slow")
        gu_epi("")
    A.label("L_gu_epi_done")
    for op in wd3: emit(op)
    stamp(A, cfg, 9)
    A("s_branch L_gu_done")
    if not cfg.get("wt", 2) & 2:
        A.label("L_gu_epi_slow")
        gu_epi("sc1")
        A("s_branch L_gu_epi_done")

    A.label("L_gu_loader")
    WDL = cfg.get("wdl", "late")
    wo_tail(2)
    STV = 72
    A(f"v_and_b32 v3, 15, v0")
    A(f"v_lshlrev_b32 v3, 3, v3")
    A(f"v_lshl_add_u32 v3, v{G1}, 11, v3")
    A(f"v_lshl_add_u32 v3, v{Gh}, 10, v3")
    A(f"s_lshl_b32 s{sB}, s{sGT}, 11")
    A(f"s_add_u32 s{sB}, s{sB}, {hex(WS_ST2)}")
    A(f"s_waitcnt vmcnt({EW[2]})")
    readback(A, [(M8, [f"buffer_load_dword v7, v{vHP}, s[{SWS}:{SWS+3}], 0 offen"])])
    A("s_barrier")
    wdl = [op for stp in range(2, 8) for op in load_wd_ops(stp)][sum(EW):]
    WPL = cfg.get("wpl", [0,0,5,0,0,0,0,0,2,8,10,0])
    assert sum(WPL) == 30 - sum(EW)
    for _ in range(WPL[0]): emit(wdl.pop(0))

    A("s_barrier")
    ops = []
    for op in h_dma_ops(0)[2:] + h_dma_ops(1): emit(op)
    ops += [("h", 0)] * 2 + [("h", 1)] * 4
    if cfg.get("st_ld", 0) == -1:
        for i in range(8): A(f"buffer_load_dwordx2 {v(STV+2*i,2)}, v3, s[{SWS}:{SWS+3}], s{sB} offen offset:{128*i} sc1")
        ops += ["st"] * 8
    A(f"s_setprio {cfg.get('lprio', 0)}")
    for c in range(10):
        need = [("h", c)] + ([("w", c)] if c >= 4 else [])
        A(f"s_waitcnt vmcnt({len(ops) - 1 - max(i for i, o in enumerate(ops) if o in need)})")
        A("s_barrier")
        vops = []
        if c + 2 < 10:
            vops += h_dma_ops(c + 2); ops += [("h", c + 2)] * 4
        wn = c + 2 if LATE else c + 3
        if 4 <= wn < 10:
            vops += gu_dma_ops(wn); ops += [("w", wn)] * 6
        if c == cfg.get("st_ld", 0):
            vops += [[f"buffer_load_dwordx2 {v(STV+2*i,2)}, v3, s[{SWS}:{SWS+3}], s{sB} offen offset:{128*i} sc1"] for i in range(8)]
            ops += ["st"] * 8
        for _ in range(WPL[c + 1]):
            vops.append(wdl.pop(0)); ops.append("d")
        for op in vops:
            if cfg.get("noadv"): op = op[:3]
            if cfg.get("nowdl") and "a[" in op[-1] + op[1]: continue
            emit(op)
        if c == cfg.get('st_at', 8):
            A(f"s_waitcnt vmcnt({min(63, len(ops) - 1 - max(i for i, o in enumerate(ops) if o == 'st'))})")
            A(f"s_setprio {cfg.get('sprio', 3)}")
            for i in range(1, 8):
                A(f"v_add_f32 v{STV}, v{STV}, v{STV+2*i}")
                A(f"v_add_f32 v{STV+1}, v{STV+1}, v{STV+2*i+1}")
            for r in (STV, STV + 1):
                A(f"v_mov_b32 v{STV+2}, v{r}")
                A(f"v_permlane32_swap_b32 v{r}, v{STV+2}")
                A(f"v_add_f32 v{r}, v{r}, v{STV+2}")
            mean, rs = STV, STV + 1
            A(f"v_mul_f32 v{mean}, {fhex(1/640)}, v{mean}")
            A(f"v_mul_f32 v{rs}, {fhex(1/640)}, v{rs}")
            A(f"v_fma_f32 v{rs}, -v{mean}, v{mean}, v{rs}")
            A(f"v_max_f32 v{rs}, 0, v{rs}")
            A(f"v_add_f32 v{rs}, {fhex(1e-5)}, v{rs}")
            A(f"v_rcp_f32 v{rs}, v{rs}")
            A(f"v_cvt_pk_bf16_f32 v{STV+2}, -v{mean}, -v{mean}")
            A(f"v_and_b32 v{STV+3}, 0xffff0000, v{STV+2}")
            A(f"v_sub_f32 v{STV+3}, -v{mean}, v{STV+3}")
            A(f"v_cvt_pk_bf16_f32 v{STV+3}, v{STV+3}, 0")
            A(f"v_and_b32 v{STV+4}, 31, v0")
            A(f"s_lshl_b32 s{sT0}, s{sLW}, 5")
            A(f"v_add_u32 v{STV+4}, s{sT0}, v{STV+4}")
            A(f"v_lshlrev_b32 v{STV+5}, 3, v{STV+4}")
            A(f"v_lshlrev_b32 v{STV+4}, 2, v{STV+4}")
            A(f"v_add_u32 v{STV+5}, {L_MB}, v{STV+5}")
            A(f"v_add_u32 v{STV+4}, {L_RS}, v{STV+4}")
            A(f"ds_write_b64 v{STV+5}, {v(STV+2,2)}")
            A(f"ds_write_b32 v{STV+4}, v{rs}")
            A(f"v_mov_b32 v{STV+6}, 0")
            A(f"ds_write_b32 v{STV+4}, v{STV+6} offset:512")
            A("s_setprio 0")
        if c == cfg.get('st_at', 8): A("s_waitcnt lgkmcnt(0)")
    A("s_barrier")
    for op in wdl: emit(op)
    if cfg.get("wbl2", 0) & 1:
        A(f"s_add_u32 s{sT0}, s{sM}, s{sWAVE}")
        A(f"s_cmp_lg_u32 s{sT0}, 4")
        A("s_cbranch_scc1 L_nowb1")
        A("buffer_wbl2 sc1")
        A.label("L_nowb1")
    A("s_setprio 0")
    A.label("L_gu_done")

    NBD = cfg.get("nbd", 6)
    BF, ACC = 16, 72
    vXP, vXS, RA, vRS = 1, 2, 5, T + 7
    sBT = (sKSRC, sVSRC, sKBASE, sVBASE)
    vPW = (T + 2, T + 3, T + 4, None, T + 5, T + 6, T, T + 1)
    A(f"s_lshl_b32 s{sT1}, s{sWDRAW}, 10")
    A(f"s_add_u32 s{sT1}, s{sT1}, {hex(WS_HID)}")
    for k in range(4):
        A(f"s_xor_b32 s{sT0}, s{sLW}, {3-k}")
        A(f"s_add_u32 s{sBT[k]}, s{sT0}, s{sTOK16}")
        A(f"s_mul_i32 s{sBT[k]}, s{sBT[k]}, {192*256}")
        A(f"s_add_u32 s{sBT[k]}, s{sBT[k]}, s{sT1}")
        A(f"s_mul_i32 s{sT0}, s{sT0}, 5120")
        A(f"s_add_u32 s{sT0}, s{sT0}, {(6-k)*20480}")
        if k < 2:
            A(f"v_add_u32 v{vPW[4+k]}, s{sT0}, v{R.L16}")
            A(f"v_subrev_u32 v{vPW[k]}, {4*20480}, v{vPW[4+k]}")
        else:
            A(f"s_mov_b32 s{97+k-2}, s{sT0}")
    A(f"s_and_b32 s{sT0}, s{sTOK16}, 7")
    A(f"s_add_u32 s{sT0}, s{sT0}, s{sLW}")
    A(f"s_lshl_b32 s{sT0}, s{sT0}, 6")
    A(f"s_add_u32 s{sT0}, s{sT0}, {L_RS}")
    A(f"v_and_b32 v{vRS}, 15, v0")
    A(f"v_lshlrev_b32 v{vRS}, 2, v{vRS}")
    A(f"v_add_u32 v{vRS}, s{sT0}, v{vRS}")
    A(f"ds_read_b32 v{vRS}, v{vRS}")
    A(f"s_load_dwordx2 s[{SO}:{SO+1}], s[0:1], 56")
    addr_rowmajor(A, vXP, vXS, T)
    reduce_addr(A, 7, 0, RA)
    A("s_waitcnt lgkmcnt(0)")
    srd(A, SO, SO, X_BYTES)
    A(f"s_cmp_ge_u32 s{sWAVE}, 4")
    A("s_cbranch_scc1 L_dn_nw")
    A("s_waitcnt vmcnt(5)")
    A.label("L_dn_nw")
    sync(A, 2, cfg.get('p2', 0), True, 63)
    stamp(A, cfg, 10)
    BSL = lambda i: 16 + 4 * i if i < 6 else 60 + 4 * (i - 6)
    def dn_main(NS, NBD, sub):
        keep = [f for f in range(5) if FSUB(f) == sub]
        order = [f for f in range(5) if f not in keep] + keep
        def loadBd(q):
            k, st = divmod(q, NS)
            if st == 4: A(f"s_add_u32 s{sBT[k]}, s{sBT[k]}, 4096")
            A(f"buffer_load_dwordx4 {v(BSL(q%NBD),4)}, v{R.L16}, s[{SWS}:{SWS+3}], s{sBT[k]} offen offset:{(st%4)*1024} sc1")
        NI = min(NBD, cfg.get("nbi", 4))
        for q in range(NI): loadBd(q)
        issued = NI
        A(f"v_add_u32 v{vPW[6]}, s97, v{R.L16}")
        A(f"v_subrev_u32 v{vPW[2]}, {4*20480}, v{vPW[6]}")
        A(f"v_add_u32 v{vPW[7]}, s98, v{R.L16}")
        for q in range(NI, NBD): loadBd(q)
        issued = NBD
        pend = []
        for q in range(4 * NS):
            k, st = divmod(q, NS)
            A(f"s_waitcnt vmcnt({issued - 1 - q})")
            for f in order:
                acc = v(ACC + 20 * (k % 2) + 4 * f, 4)
                A(f"v_mfma_f32_16x16x32_bf16 {acc}, {WD(st, f)}, {v(BSL(q%NBD),4)}, {acc if st else 0}")
            if issued < 4 * NS:
                loadBd(issued); issued += 1
            for _ in range(2 if NS == 4 else 1):
                if pend: A(pend.pop(0))
            if st == NS - 1:
                assert not pend
                pend = [f"ds_write_b128 v{vPW[k if f in keep else 4+k]}, {v(ACC+20*(k%2)+4*f,4)} offset:{f*1024}" for f in order if k < 3 or f not in keep]
        for x in pend: A(x)
        stamp(A, cfg, 11)
        return [ACC + 20 + 4 * f for f in keep]
    def dn_tail(n, own):
        DD = 8
        A(f"v_mov_b32 v3, v{vRS}")
        A("s_waitcnt lgkmcnt(0)")
        A("s_barrier")
        reduce_sum(A, 7, DD, RA, n, own)
        for i in range(2 * n):
            r = own[i // 2] + 2 * (i % 2)
            A(f"v_accvgpr_read_b32 v{T+2}, a{A_RES(i)}")
            A(f"v_lshlrev_b32 v{T}, 16, v{T+2}")
            A(f"v_and_b32 v{T+1}, 0xffff0000, v{T+2}")
            A(f"v_fma_f32 v{r}, v{r}, v3, v{T}")
            A(f"v_fma_f32 v{r+1}, v{r+1}, v3, v{T+1}")
            A(f"v_cvt_pk_bf16_f32 v{D+i}, v{r}, v{r+1}")
            if i == 3: A(f"buffer_store_dwordx4 {v(D,4)}, v{vXP}, s[{SO}:{SO+3}], 0 offen {cfg.get('ost', '')}")
        if n == 3: A(f"buffer_store_dwordx2 {v(D+4,2)}, v{vXS}, s[{SO}:{SO+3}], 0 offen {cfg.get('ost', '')}")
    A(f"s_cmp_ge_u32 s{sWAVE}, 4")
    A("s_cbranch_scc1 L_dn_b")
    dn_tail(3, dn_main(4, cfg.get("nbd_c", 5), 0))
    A("s_branch L_dn_e")
    A.label("L_dn_b")
    A(f"s_setprio {cfg.get('dprio', 1)}")
    dn_tail(2, dn_main(8, cfg.get("nbd_l", 8), 1))
    A.label("L_dn_e")
    stamp(A, cfg, 12)
    if cfg.get("gts"):
        for c in range(9):
            A(f"s_mov_b32 s{60+2*c}, s{(91,92,93,94,95,96,86,88,89)[c]}")
            A(f"s_mov_b32 s{61+2*c}, s{(91,92,93,94,95,96,86,88,89)[c]}")
    stamp_flush(A, cfg, 13, 4, SWS, sWAVE, cfg.get('tswave', 0))
    if cfg.get("diag"):
        da, db = cfg["diag"]
        A("s_cmp_ge_u32 s2, 8" if cfg.get("fixed") else "s_cmp_lg_u32 s2, 16")
        A("s_cbranch_scc1 L_end")
        A(f"s_cmp_lg_u32 s{sWAVE}, 0")
        A("s_cbranch_scc1 L_end")
        if da == -1:
            A("v_mov_b32 v1, 0")
            A(f"s_mov_b32 s{sT0}, {hex(WS_TS)}")
            A(f"buffer_load_dword v2, v1, s[{SWS}:{SWS+3}], s{sT0} offen")
            A("s_waitcnt vmcnt(0)")
            A(f"v_readfirstlane_b32 s{sT0}, v2")
        else:
            A(f"s_mov_b32 s{sT0}, s{60+2*da}")
        if cfg.get("fixed"):
            A(f"s_add_u32 s{sT0}, s{sT0}, {cfg['fixed']}")
            if cfg.get("wb"):
                A("buffer_wbl2 sc1")
        else:
            A(f"s_sub_u32 s{sT0}, s{60+2*db}, s{sT0}")
            A(f"s_min_u32 s{sT0}, s{sT0}, 20000")
            A(f"s_lshl_b32 s{sT0}, s{sT0}, 2")
            A(f"s_add_u32 s{sT0}, s{sT0}, s{60+2*12}")
        A.label("L_spin")
        A("s_memrealtime s[56:57]")
        A("s_waitcnt lgkmcnt(0)")
        A(f"s_sub_u32 s{sT1}, s56, s{sT0}")
        A(f"s_cmp_lt_i32 s{sT1}, 0")
        A("s_cbranch_scc1 L_spin")
    A.label("L_end")
    A("s_endpgm")

    A.label("L_attn_slow")
    A(f"v_subrev_u32 v{R.VA}, {KV_BASE + 1280}, v{R.VA}")
    A(f"v_mov_b32 v{R.Q2+1}, 0")
    A(f"v_mov_b32 v{T}, 0xff800000")
    A(f"s_mov_b32 s{sT0}, s{sKBASE}")
    A(f"s_add_u32 s{sT1}, s{sKBASE}, {PAIR_STRIDE}")
    A.label("L_attn_slow1")
    A(f"buffer_load_dwordx4 {v(R.K1,4)}, v{R.F2S+1}, s[{SWS}:{SWS+3}], s{sT0} offen {KVF}")
    A(f"buffer_load_dword v{R.K2}, v{R.F2S}, s[{SWS}:{SWS+3}], s{sT0} offen {KVF}")
    A("s_waitcnt vmcnt(0)")
    A(f"v_mfma_f32_32x32x16_bf16 {v(S0,16)}, {v(R.K1,4)}, {v(R.Q1,4)}, 0")
    A(f"v_mfma_f32_32x32x8_bf16 {v(S0,16)}, {v(R.K2,2)}, {v(R.Q2,2)}, {v(S0,16)}")
    max16(A, T, S0, False)
    A(f"s_add_u32 s{sT0}, s{sT0}, 2560")
    A(f"s_cmp_lt_u32 s{sT0}, s{sT1}")
    A("s_cbranch_scc1 L_attn_slow1")
    xhalf_max(A, T, T+1)
    set_shift(A, T)
    for k in range(16): A(f"v_mov_b32 v{R.O+k}, 0")
    A(f"s_mov_b32 s{sT0}, s{sKBASE}")
    A(f"s_mov_b32 s{sT2}, s{sVBASE}")
    A.label("L_attn_slow2")
    A(f"buffer_load_dwordx4 {v(R.K1,4)}, v{R.F2S+1}, s[{SWS}:{SWS+3}], s{sT0} offen {KVF}")
    A(f"buffer_load_dword v{R.K2}, v{R.F2S}, s[{SWS}:{SWS+3}], s{sT0} offen {KVF}")
    A(f"s_mov_b64 exec, s[{sVMASK}:{sVMASK+1}]")
    A(f"buffer_load_dwordx4 {v(R.V1,4)}, v{R.VA}, s[{SWS}:{SWS+3}], s{sT2} offen {KVF}")
    A(f"buffer_load_dwordx4 {v(R.V2,4)}, v{R.VA}, s[{SWS}:{SWS+3}], s{sT2} offen offset:640 {KVF}")
    A("s_mov_b64 exec, -1")
    A("s_waitcnt vmcnt(0)")
    A(f"v_mfma_f32_32x32x16_bf16 {v(S0,16)}, {v(R.K1,4)}, {v(R.Q1,4)}, 0")
    A(f"v_mfma_f32_32x32x8_bf16 {v(S0,16)}, {v(R.K2,2)}, {v(R.Q2,2)}, {v(S0,16)}")
    for k in range(16): A(f"v_exp_f32 v{S0+k}, v{S0+k}")
    for k in range(8): A(f"v_cvt_pk_bf16_f32 v{R.P+k}, v{S0+2*k}, v{S0+2*k+1}")
    A(f"v_mfma_f32_32x32x16_bf16 {v(R.O,16)}, {v(R.V1,4)}, {v(R.P,4)}, {v(R.O,16)}")
    A(f"v_mfma_f32_32x32x16_bf16 {v(R.O,16)}, {v(R.V2,4)}, {v(R.P+4,4)}, {v(R.O,16)}")
    A(f"s_add_u32 s{sT0}, s{sT0}, 2560")
    A(f"s_add_u32 s{sT2}, s{sT2}, 1280")
    A(f"s_cmp_lt_u32 s{sT0}, s{sT1}")
    A("s_nop 7")
    A("s_cbranch_scc1 L_attn_slow2")
    A(f"v_rcp_f32 v{T}, v{R.O+10}")
    norm()
    A("s_nop 1")
    A("s_branch L_attn_norm")
    A.label("L_code_end")
    if MG: return None
    return dict(name=name, grid=256, block=512, lds=163840, desc=kernel_desc(name, 256, NV, 102))
```

```python
from common import *

def gen_qkv(A, cfg):
    MG = cfg.get("merge", 1)
    name = "sequential_preLN__softmax_full_mha__glu_gated_reglu__prompt_kernel" if MG else "qkv_kernel"
    kstart(A, name)
    A.label("L_k1_start")
    SX, SW, SWS, SP, SD = 4, 8, 12, 36, 48
    sWAVE, sTB, sFG, sXO, sXLIM, sWO, sT0, sT1, sT2, sM0 = 16, 17, 18, 19, 20, 21, 22, 23, 24, 25
    sTILE, sBASE, sQS, sC0, sID = 26, 27, 28, 30, 31
    vTR = 4
    vT = 8
    SLOT = 32768
    CSL = SLOT
    STL = SLOT + 2048
    A("s_cmp_ge_u32 s2, 256")
    A("s_cbranch_scc1 L_qkv_end")
    A("s_load_dwordx4 s[4:7], s[0:1], 0")
    A("s_load_dwordx4 s[48:51], s[0:1], 64")
    A("s_load_dwordx2 s[32:33], s[0:1], 16")
    A("s_load_dwordx2 s[34:35], s[0:1], 48")
    stamp(A, cfg, 0)
    if cfg.get("diag"): A("s_memrealtime s[56:57]")
    A(f"v_lshrrev_b32 v{vT}, 6, v0")
    A(f"s_cmp_lt_u32 s2, 16")
    A(f"v_readfirstlane_b32 s{sWAVE}, v{vT}")
    A(f"v_readfirstlane_b32 s3, v{vT}")
    A("s_cbranch_scc1 L_qkv_helper")
    A(f"v_and_b32 v0, 63, v0")
    if cfg.get("lsw", 0): A(f"s_xor_b32 s{sWAVE}, s{sWAVE}, 4")
    A(f"s_sub_u32 s{sID}, s2, 16")
    A(f"s_and_b32 s{sT0}, s{sID}, 7")
    A(f"s_lshr_b32 s{sT1}, s{sID}, 3")
    A(f"s_lshr_b32 s{sT2}, s{sT0}, 2")
    A(f"s_mul_i32 s{sT2}, s{sT2}, 30")
    A(f"s_add_u32 s{sT1}, s{sT1}, s{sT2}")
    A(f"s_lshr_b32 s{sFG}, s{sT1}, 2")
    A(f"s_and_b32 s{sT1}, s{sT1}, 3")
    A(f"s_and_b32 s{sT2}, s{sT0}, 3")
    A(f"s_lshl_b32 s{sT2}, s{sT2}, 2")
    A(f"s_add_u32 s{sTB}, s{sT2}, s{sT1}")
    A(f"s_cmp_ge_u32 s{sWAVE}, 4")
    if cfg.get("ctouch", 2) == 2:
        A("s_cbranch_scc1 L_qkv_noct")
        code_touch_setup(A, 46, "L_k1_start", True)
        A(f"s_lshr_b32 s{sT1}, s{sID}, 3")
        A(f"s_lshl_b32 s{sT1}, s{sT1}, 2")
        A(f"s_add_u32 s{sT1}, s{sT1}, s{sWAVE}")
        A(f"s_lshl_b32 s{sT1}, s{sT1}, 7")
        A(f"v_mul_u32_u24 v{vT+1}, {120*128}, v0")
        A(f"v_add_u32 v{vT+1}, s{sT1}, v{vT+1}")
        A(f"v_min_u32 v{vT+1}, L_code_end-L_k1_start-4, v{vT+1}")
        A("s_mov_b64 exec, 31")
        A(f"global_load_dword v{vT+7}, v{vT+1}, s[46:47]")
        A("s_mov_b64 exec, -1")
        A("s_branch L_qkv_compute")
        A.label("L_qkv_noct")
        i_split = len(A.items)
        A.label("L_qkv_compute")
    elif cfg.get("lfirst", 1):
        A("s_cbranch_scc0 L_qkv_compute")
        i_split = len(A.items)
        A.label("L_qkv_compute")
    else:
        A("s_cbranch_scc1 L_qkv_loader")

    def rebase(c):
        def base(c): return ((c % 5) // 2) * 2 * SLOT
        return (base(c) - base(c - 1) if c else 0), (c % 5) * SLOT - base(c)

    STF = cfg.get("qkv_st", "sc1")
    HS = 1
    ACC, vBA, vADR, vSA, MB, RS = 16, 2, 80, 84, 88, 96
    FR, ONE, CSA = 0, 64, 68
    VO, PF, L16 = 16, 24, 2
    sU, sPSRC, sPDST, sPLDS = 40, 41, 42, 43
    def prep_setup():
        A(f"s_mul_i32 s{sU}, s{sWAVE}, 240")
        A(f"s_add_u32 s{sU}, s{sU}, s{sID}")
        A(f"v_lshlrev_b32 v{L16}, 4, v0")
        A(f"s_lshl_b32 s{sPLDS}, s{sWAVE}, 13")
        for jj in range(5):
            A(f"v_add_u32 v{vT}, {64*jj}, v0")
            A(f"v_mul_u32_u24 v{PF+jj}, 6554, v{vT}")
            A(f"v_lshrrev_b32 v{PF+jj}, 16, v{PF+jj}")
            A(f"v_mul_u32_u24 v{vT+1}, 10, v{PF+jj}")
            A(f"v_sub_u32 v{vT}, v{vT}, v{vT+1}")
            A(f"v_lshlrev_b32 v{VO+jj}, 4, v{vT}")
        A(f"s_cmp_ge_u32 s{sU}, 384")
        A("s_cbranch_scc1 L_qkv_pwo")
        srd(A, SP, 34, 1536 * 640 * 2)
        A(f"s_mul_i32 s{sT0}, s{sU}, 1366")
        A(f"s_lshr_b32 s{sT0}, s{sT0}, 16")
        A(f"s_mul_i32 s{sT1}, s{sT0}, 48")
        A(f"s_sub_u32 s{sT1}, s{sU}, s{sT1}")
        A(f"s_mul_i32 s{sPSRC}, s{sT1}, {32*1280}")
        A(f"s_mul_i32 s{sT0}, s{sT0}, 160")
        A(f"s_add_u32 s{sPSRC}, s{sPSRC}, s{sT0}")
        A(f"s_mul_i32 s{sPDST}, s{sU}, 5120")
        A(f"s_add_u32 s{sPDST}, s{sPDST}, {hex(WS_WD)}")
        A("s_branch L_qkv_pgo")
        A.label("L_qkv_pwo")
        srd(A, SP, 32, 640 * 640 * 2)
        A(f"s_sub_u32 s{sU}, s{sU}, 384")
        A(f"s_mul_i32 s{sT0}, s{sU}, 3277")
        A(f"s_lshr_b32 s{sT0}, s{sT0}, 16")
        A(f"s_mul_i32 s{sT1}, s{sT0}, 20")
        A(f"s_sub_u32 s{sT1}, s{sU}, s{sT1}")
        A(f"s_mul_i32 s{sPSRC}, s{sT0}, 160")
        A(f"s_mul_i32 s{sT0}, s{sT1}, 205")
        A(f"s_lshr_b32 s{sT0}, s{sT0}, 10")
        A(f"s_mul_i32 s{sT2}, s{sT0}, 5")
        A(f"s_sub_u32 s{sT1}, s{sT1}, s{sT2}")
        A(f"s_mul_i32 s{sT0}, s{sT0}, {160*1280}")
        A(f"s_add_u32 s{sPSRC}, s{sPSRC}, s{sT0}")
        A(f"s_mul_i32 s{sPDST}, s{sU}, 5120")
        A(f"s_add_u32 s{sPDST}, s{sPDST}, {hex(WS_WO)}")
        A(f"s_cmp_ge_u32 s{sU}, 160")
        A(f"s_cselect_b32 s{sPDST}, {hex(WS_SIZE)}, s{sPDST}")
        A(f"s_cselect_b32 s{SP+2}, 0, s{SP+2}")
        A(f"s_cmp_eq_u32 s{sT1}, 4")
        A("s_cbranch_scc1 L_qkv_pleft")
        A(f"s_mul_i32 s{sT1}, s{sT1}, {40*1280}")
        A(f"s_add_u32 s{sPSRC}, s{sPSRC}, s{sT1}")
        for jj in range(5):
            A(f"v_lshrrev_b32 v{vT}, 4, v{PF+jj}")
            A(f"v_lshl_add_u32 v{PF+jj}, v{vT}, 2, v{PF+jj}")
        A("s_branch L_qkv_pgo")
        A.label("L_qkv_pleft")
        for jj in range(5):
            k = PF + jj
            A(f"v_lshrrev_b32 v{vT}, 2, v{k}")
            A(f"v_lshl_add_u32 v{k}, v{vT}, 4, v{k}")
            A(f"v_add_u32 v{k}, 16, v{k}")
        A.label("L_qkv_pgo")
        for jj in range(5):
            A(f"v_mul_u32_u24 v{vT}, 1280, v{PF+jj}")
            A(f"v_add_u32 v{VO+jj}, v{VO+jj}, v{vT}")
        A(f"v_lshrrev_b32 v{vT}, 4, v0")
        A(f"v_bfe_u32 v{vT+1}, v0, 2, 2")
        A(f"v_lshl_add_u32 v{vT}, v{vT}, 3, v{vT+1}")
        A(f"v_mul_u32_u24 v{vT}, 160, v{vT}")
        A(f"v_add_u32 v{vT}, s{sPLDS}, v{vT}")
        A(f"v_and_b32 v{vT+1}, 3, v0")
        A(f"v_lshl_add_u32 v{VO+5}, v{vT+1}, 4, v{vT}")
        A(f"v_lshl_add_u32 v{VO+6}, v{vT+1}, 3, v{vT}")
    sJ0, sJ1 = 44, 45
    A(f"s_and_b32 s{sT0}, s{sWAVE}, 1")
    A(f"s_mov_b32 s{sJ0}, s{sWAVE}")
    A(f"s_xor_b32 s{sJ1}, s{sWAVE}, 1")
    A(f"s_lshl_b32 s{sTILE}, s{sTB}, 1")
    A(f"s_add_u32 s{sTILE}, s{sTILE}, s{sT0}")
    A(f"s_lshl_b32 s{sTILE}, s{sTILE}, 1")
    l15, g4, rho, t0, t1, t2 = vT, vT+1, vT+2, vT+3, vT+4, vT+5
    A(f"v_and_b32 v{l15}, 15, v0")
    A(f"v_lshrrev_b32 v{g4}, 4, v0")
    A(f"v_bfe_u32 v{rho}, v0, 2, 2")
    A(f"s_lshl_b32 s{sT1}, s{sT0}, 13")
    A(f"s_add_u32 s{sT1}, s{sT1}, 16384")
    A(f"v_bfe_u32 v{t0}, v0, 1, 3")
    A(f"v_xor_b32 v{t0}, v{t0}, v{g4}")
    A(f"v_lshlrev_b32 v{t1}, 7, v{l15}")
    A(f"v_lshl_add_u32 v{t1}, v{t0}, 4, v{t1}")
    A(f"v_add_u32 v{vBA}, s{sT1}, v{t1}")
    A(f"v_xor_b32 v{vBA+1}, 64, v{vBA}")
    A(f"v_lshl_add_u32 v{t0}, v{g4}, 3, v{rho}")
    A(f"v_lshlrev_b32 v{t0}, 8, v{t0}")
    A(f"v_bfe_u32 v{t1}, v0, 4, 1")
    A(f"v_lshl_add_u32 v{t0}, v{t1}, 5, v{t0}")
    A(f"v_and_b32 v{t1}, 3, v0")
    A(f"v_lshl_add_u32 v{t0}, v{t1}, 3, v{t0}")
    for jj in range(2):
        A(f"v_xor_b32 v{vTR+2*jj}, s{sJ0+jj}, v{rho}")
        A(f"v_lshl_add_u32 v{vTR+2*jj}, v{vTR+2*jj}, 6, v{t0}")
        A(f"v_xor_b32 v{vTR+2*jj+1}, 32, v{vTR+2*jj}")
    A(f"v_mov_b32 v{t0}, 0x3f803f80")
    for i in range(4): A(f"v_accvgpr_write_b32 a{ONE+i}, v{t0}")
    A(f"s_lshl_b32 s{sXO}, s{sTB}, 11")
    A(f"s_add_u32 s{sXO}, s{sXO}, {hex(WS_ST1)}")
    A(f"s_lshl_b32 s{sT0}, s{sT0}, 6")
    A(f"v_add_u32 v{t0}, s{sT0}, v{l15}")
    A(f"v_lshlrev_b32 v{vSA}, 3, v{t0}")
    A(f"v_cmp_gt_u32 vcc, 16, v0")
    A(f"v_mov_b32 v{t1}, 0x7f000000")
    A(f"v_cndmask_b32 v{vSA}, v{t1}, v{vSA}, vcc")
    A(f"v_lshlrev_b32 v{vSA+1}, 2, v{t0}")
    A(f"v_lshlrev_b32 v{t0}, 2, v{g4}")
    A(f"v_add_u32 v{t0}, s{sT0}, v{t0}")
    A(f"v_lshlrev_b32 v{vSA+2}, 2, v{t0}")
    if MG:
        A(f"v_lshlrev_b32 v{vSA+3}, 4, v{l15}")
        A(f"s_mov_b32 s{sXLIM}, 0")
    else:
        A(f"v_mov_b32 v{vSA+3}, 0")
        A(f"s_lshl_b32 s{sXLIM}, s{sTB}, 4")
    A("s_waitcnt lgkmcnt(0)")
    srd(A, SWS, 50, WS_SIZE)
    if cfg.get("diag"):
        A(f"s_cmp_eq_u32 s2, 16")
        A(f"s_mov_b32 s{sT0}, {hex(WS_TS)}")
        A(f"s_cselect_b32 s{sT0}, s{sT0}, {hex(WS_SIZE)}")
        A(f"v_mov_b32 v{t0}, s56")
        A(f"buffer_store_dword v{t0}, v{vSA+3}, s[{SWS}:{SWS+3}], s{sT0} offen")
    srd(A, SD, SD, 256)
    A(f"s_cmp_ge_u32 s{sFG}, 10")
    A("s_cbranch_scc1 L_qkv_V")

    def mainloop(isV):
        q = []
        def reads(st):
            c, kb = divmod(st, 2)
            _, so = rebase(c)
            b = FR + 32 * (st % 2)
            W = lambda j: [(f"ds_read_b64_tr_b16 {a(b+4*j+2*u,2)}, v{vTR+j} offset:{so + (32*kb+4*u)*256}", (st, f"W{j}")) for u in range(2)]
            X = lambda i: [(f"ds_read_b128 {a(b+16+4*i,4)}, v{vBA+kb} offset:{so + 2048*i}", (st, f"X{i}"))]
            return W(0) + X(0) + X(1) + X(2) + X(3) + W(1) + W(2) + W(3)
        def issue(r): A(r[0]); q.append(r[1])
        def wait(tag): A(f"s_waitcnt lgkmcnt({min(15, len(q) - 1 - max(i for i, x in enumerate(q) if x == tag))})")
        if cfg.get("lsw", 0): A("s_setprio 1")
        A("s_barrier")
        for r in reads(0): issue(r)
        stamp(A, cfg, 1)
        for st in range(20):
            nxt = st + 1 < 20
            if st % 2 == 1 and nxt:
                A("s_barrier")
                if cfg.get("qts"): A(f"s_memtime s[{70+2*(st//2)}:{71+2*(st//2)}]")
                d, _ = rebase((st + 1) // 2)
                if d:
                    for r in (vTR, vTR + 1, vTR + 2, vTR + 3, vBA, vBA + 1): A(f"v_add_u32 v{r}, {d & 0xffffffff}, v{r}")
            rs = reads(st + 1) if nxt else []
            b = FR + 32 * (st % 2)
            for j in range(4):
                if j == 0: wait((st, "X3"))
                if j == 1: wait((st, "W3"))
                for i in range(4):
                    wf = a(b + 4 * j, 4); xf = a(b + 16 + 4 * i, 4); acc = v(ACC + 16 * i + 4 * j, 4); c = acc if st else "0"
                    if isV: A(f"v_mfma_f32_16x16x32_bf16 {acc}, {xf}, {wf}, {c}")
                    else:   A(f"v_mfma_f32_16x16x32_bf16 {acc}, {wf}, {xf}, {c}")
                    if rs: issue(rs.pop(0))
                if j >= 2: A(f"v_mfma_f32_16x16x32_bf16 {a(CSA+4*(j-2),4)}, {a(ONE,4)}, {a(b+4*(j-2),4)}, {a(CSA+4*(j-2),4) if st else 0}")
            if st == cfg.get("q_fl", 14):
                A(f"buffer_load_dword v{vT}, v{vSA+3}, s[{SD}:{SD+3}], s{sXLIM} offen sc1")
            if st == cfg.get("q_fc", 18):
                LP, LD = A.newlabel("qp"), A.newlabel("qd")
                A(f"s_mov_b32 s{sT1}, 0")
                A.label(LP)
                A("s_waitcnt vmcnt(0)")
                A(f"v_cmp_eq_u32 vcc, 0, v{vT}")
                A(f"s_add_u32 s{sT1}, s{sT1}, 1")
                A(f"s_cmp_lt_u32 s{sT1}, 0x40000")
                A(f"s_cselect_b64 vcc, vcc, 0")
                A(f"s_cbranch_vccz {LD}")
                A("s_sleep 4")
                A(f"buffer_load_dword v{vT}, v{vSA+3}, s[{SD}:{SD+3}], s{sXLIM} offen sc1")
                A(f"s_branch {LP}")
                A.label(LD)
                for i in range(4): A(f"buffer_load_dwordx2 {v(MB+2*i,2)}, v{vSA}, s[{SWS}:{SWS+3}], s{sXO} offen offset:{128*i} sc1")
                for i in range(4):
                    if isV: A(f"buffer_load_dwordx4 {v(RS+4*i,4)}, v{vSA+2}, s[{SWS}:{SWS+3}], s{sXO} offen offset:{1024 + 64*i} sc1")
                    else:   A(f"buffer_load_dword v{RS+2*i}, v{vSA+1}, s[{SWS}:{SWS+3}], s{sXO} offen offset:{1024 + 64*i} sc1")
        stamp(A, cfg, 2)

    def correction(isV):
        CF = vT
        A(f"s_lshl_b32 s{sT0}, s{sJ0}, 10")
        A(f"s_lshl_b32 s{sT1}, s{sJ1}, 10")
        A(f"v_lshlrev_b32 v{vTR}, 4, v0")
        A(f"v_add_u32 v{vTR+1}, s{sT1}, v{vTR}")
        A(f"v_add_u32 v{vTR}, s{sT0}, v{vTR}")
        for e in range(2):
            cs, hi = vTR + 2, vTR + 3
            A(f"v_accvgpr_read_b32 v{cs}, a{CSA+4*e}")
            A(f"v_cvt_pk_bf16_f32 v{hi}, v{cs}, v{cs}")
            A(f"v_and_b32 v{hi}, 0xffff0000, v{hi}")
            A(f"v_sub_f32 v{cs}, v{cs}, v{hi}")
            A(f"v_cvt_pk_bf16_f32 v{CF+2*e}, v{hi}, v{cs}")
            A(f"v_lshrrev_b32 v{CF+2*e+1}, 16, v{hi}")
        A(f"ds_write_b128 v{vTR}, {v(CF,4)} offset:{CSL}")
        def corr(j):
            for i in range(4):
                mb = v(MB + 2 * i, 2); cf = v(CF + 2 * j, 2); acc = v(ACC + 16 * i + 4 * j, 4)
                if isV: A(f"v_mfma_f32_16x16x16_bf16 {acc}, {mb}, {cf}, {acc}")
                else:   A(f"v_mfma_f32_16x16x16_bf16 {acc}, {cf}, {mb}, {acc}")
        A("s_waitcnt vmcnt(0) lgkmcnt(0)")
        A("s_barrier")
        A(f"ds_read_b128 {v(CF+4,4)}, v{vTR+1} offset:{CSL}")
        corr(0); corr(1)
        A("s_waitcnt lgkmcnt(0)")
        corr(2); corr(3)

    A(f"s_cmp_ge_u32 s{sFG}, 5")
    A(f"s_cselect_b32 s{sT1}, 5, 0")
    A(f"s_cselect_b32 s{sBASE}, {hex(WS_K)}, {hex(WS_Q)}")
    A(f"s_cselect_b32 s{sQS}, 1.0, {fhex(QSCALE)}")
    A(f"s_sub_u32 s{sT1}, s{sFG}, s{sT1}")
    A(f"s_lshl_b32 s{sT1}, s{sT1}, 4")
    A(f"s_mul_i32 s{sT2}, s{sTILE}, 2560")
    A(f"s_add_u32 s{sBASE}, s{sBASE}, s{sT2}")
    A(f"v_bfe_u32 v{t2}, v0, 4, 1")
    A(f"v_lshrrev_b32 v{t0}, 5, v0")
    A(f"v_lshl_add_u32 v{t2}, v{t2}, 1, v{t0}")
    A(f"v_add_u32 v{t2}, s{sT1}, v{t2}")
    A(f"v_lshlrev_b32 v{l15}, 4, v{l15}")
    A(f"s_mov_b32 s{sT2}, {PAIR_STRIDE - 2560}")
    for jj in range(2):
        A(f"s_lshl_b32 s{sT0}, s{sJ0 + jj}, 2")
        A(f"v_add_u32 v{t0}, s{sT0}, v{t2}")
        A(f"v_mul_u32_u24 v{t1}, 205, v{t0}")
        A(f"v_lshrrev_b32 v{t1}, 10, v{t1}")
        A(f"v_mul_lo_u32 v{t1}, s{sT2}, v{t1}")
        A(f"v_lshl_add_u32 v{t0}, v{t0}, 9, v{l15}")
        A(f"v_add_u32 v{vADR+jj}, v{t0}, v{t1}")
    mainloop(False)
    correction(False)
    for i in range(4):
        A(f"v_mul_f32 v{RS+2*i}, s{sQS}, v{RS+2*i}")
        A(f"v_mov_b32 v{RS+2*i+1}, v{RS+2*i}")
    for jj in range(2):
        for i in range(4):
            r = ACC + 16 * i + 8 * jj
            for b in range(0, 8, 2): A(f"v_pk_mul_f32 {v(r+b,2)}, {v(r+b,2)}, {v(RS+2*i,2)}")
            for b in range(4): A(f"v_cvt_pk_bf16_f32 v{r+b}, v{r+2*b}, v{r+2*b+1}")
            if i or jj: A(pend)
            A(f"v_permlane16_swap_b32 v{r}, v{r+2}")
            A(f"v_permlane16_swap_b32 v{r+1}, v{r+3}")
            pend = f"buffer_store_dwordx4 {v(r,4)}, v{vADR+jj}, s[{SWS}:{SWS+3}], s{sBASE} offen offset:{2560*(i>>1) + 256*(i&1)} {STF}"
    A(pend)
    A("s_branch L_qkv_fin")

    A.label("L_qkv_V")
    A(f"s_mul_i32 s{sBASE}, s{sTILE}, 1280")
    A(f"s_add_u32 s{sBASE}, s{sBASE}, {hex(WS_V)}")
    A(f"s_sub_u32 s{sT1}, s{sFG}, 10")
    A(f"s_lshl_b32 s{sT1}, s{sT1}, 7")
    A(f"v_mul_u32_u24 v{t2}, 320, v{g4}")
    A(f"v_add_u32 v{l15}, s{sT1}, v{l15}")
    A(f"s_mov_b32 s{sT2}, {VHEAD_STRIDE - 320}")
    for j in range(4):
        A(f"s_lshl_b32 s{sT0}, s{sJ0 + j//2}, 5")
        A(f"s_add_u32 s{sT0}, s{sT0}, {16*(j%2)}")
        A(f"v_add_u32 v{t0}, s{sT0}, v{l15}")
        A(f"v_mul_u32_u24 v{t1}, 3277, v{t0}")
        A(f"v_lshrrev_b32 v{t1}, 16, v{t1}")
        A(f"v_mul_lo_u32 v{t1}, s{sT2}, v{t1}")
        A(f"v_lshl_add_u32 v{t0}, v{t0}, 4, v{t2}")
        A(f"v_add_u32 v{vADR+j}, v{t0}, v{t1}")
    mainloop(True)
    correction(True)
    for j in range(4):
        for m in range(2):
            r0, r1 = ACC + 32 * m + 4 * j, ACC + 32 * m + 16 + 4 * j
            for b in (0, 2):
                A(f"v_pk_mul_f32 {v(r0+b,2)}, {v(r0+b,2)}, {v(RS+8*m+b,2)}")
                A(f"v_pk_mul_f32 {v(r1+b,2)}, {v(r1+b,2)}, {v(RS+8*m+4+b,2)}")
            A(f"v_cvt_pk_bf16_f32 v{r0}, v{r0}, v{r0+1}")
            A(f"v_cvt_pk_bf16_f32 v{r0+1}, v{r0+2}, v{r0+3}")
            A(f"v_cvt_pk_bf16_f32 v{r0+2}, v{r1}, v{r1+1}")
            A(f"v_cvt_pk_bf16_f32 v{r0+3}, v{r1+2}, v{r1+3}")
            if j or m: A(pend)
            A(f"v_permlane32_swap_b32 v{r0}, v{r0+2}")
            A(f"v_permlane32_swap_b32 v{r0+1}, v{r0+3}")
            pend = f"buffer_store_dwordx4 {v(r0,4)}, v{vADR+j}, s[{SWS}:{SWS+3}], s{sBASE} offen offset:{1280*m} {STF}"
    A(pend)
    A.label("L_qkv_fin")
    if cfg.get("endwait"): A("s_waitcnt vmcnt(0)")
    stamp(A, cfg, 3)
    if cfg.get("qts"):
        for c in range(9): A(f"s_mov_b32 s{71+2*c}, s{70+2*c}")
        A("s_mov_b32 s68, 0")
        A("s_mov_b32 s69, 0")
        stamp_flush(A, cfg, 14, 17, SWS, sWAVE, 0)
        A("s_mov_b64 exec, -1")
    if MG:
        if cfg.get("stamps"):
            A("v_mov_b32 v1, v0")
            stamp_flush(A, cfg, 4, 0, SWS, sWAVE, 0)
            A("s_mov_b64 exec, -1")
            A("v_mov_b32 v0, v1")
        G32 = cfg.get("g32", 1)
        A(f"s_lshl_b32 s94, s{sFG}, {11 if G32 else 7}")
        A(f"s_lshl_b32 s{sT0}, s{sTB}, {7 if G32 else 2}")
        A(f"s_add_u32 s94, s94, s{sT0}")
        A(f"s_add_u32 s94, s94, {hex(WS_GF)}")
        A("s_branch L_main")
    else:
        stamp_flush(A, cfg, 4, 0, SWS, sWAVE, 0)
        A("s_endpgm")

    i_l0 = len(A.items)
    A.label("L_qkv_loader")
    vWOFF, vXOFF = 4, 6
    sWLIM = 44
    if cfg.get("rot", 1):
        A(f"s_lshl_b32 s{sT0}, s{sT0}, 2")
        A(f"s_lshr_b32 s{sC0}, 0x30858530, s{sT0}")
        A(f"s_and_b32 s{sC0}, s{sC0}, 15")
        if cfg.get("rab", [0, 1]):
            ra, rb = cfg.get("rab", [0, 1])
            A(f"s_and_b32 s{sT0}, s{sTB}, 3")
            A(f"s_mul_i32 s{sT0}, s{sT0}, {ra}")
            A(f"s_add_u32 s{sC0}, s{sC0}, s{sT0}")
            A(f"s_and_b32 s{sT0}, s{sFG}, {cfg.get('rmask', 1)}")
            A(f"s_mul_i32 s{sT0}, s{sT0}, {rb}")
            A(f"s_add_u32 s{sC0}, s{sC0}, s{sT0}")
            A(f"s_mul_i32 s{sT0}, s{sC0}, 6554")
            A(f"s_lshr_b32 s{sT0}, s{sT0}, 16")
            A(f"s_mul_i32 s{sT0}, s{sT0}, 10")
            A(f"s_sub_u32 s{sC0}, s{sC0}, s{sT0}")
    else:
        A(f"s_mov_b32 s{sC0}, 0")
    A(f"s_sub_u32 s{sWAVE}, s{sWAVE}, 4")
    A(f"v_and_b32 v{vT}, 15, v0")
    A(f"v_lshrrev_b32 v{vT+1}, 4, v0")
    A(f"v_lshlrev_b32 v{vT+2}, 2, v{vT+1}")
    A(f"v_xor_b32 v{vT+2}, v{vT+2}, v{vT}")
    A(f"v_mul_u32_u24 v{vWOFF}, 3840, v{vT+1}")
    A(f"v_lshl_add_u32 v{vWOFF}, v{vT+2}, 4, v{vWOFF}")
    A(f"v_xor_b32 v{vWOFF+1}, 32, v{vWOFF}")
    A(f"v_and_b32 v{vT}, 7, v0")
    A(f"v_xor_b32 v{vT}, v{vT}, v{vT+1}")
    A(f"v_lshrrev_b32 v{vT+2}, 3, v0")
    A(f"v_mul_u32_u24 v{vT+2}, 1280, v{vT+2}")
    A(f"v_lshl_add_u32 v{vXOFF}, v{vT}, 4, v{vT+2}")
    A(f"v_xor_b32 v{vXOFF+1}, 64, v{vXOFF}")
    A(f"s_lshl_b32 s{sWO}, s{sFG}, 8")
    A(f"s_mul_i32 s{sT0}, s{sWAVE}, {16*3840}")
    A(f"s_add_u32 s{sWO}, s{sWO}, s{sT0}")
    A(f"s_add_u32 s{sWLIM}, s{sWO}, {640*3840}")
    A(f"s_mul_i32 s{sT0}, s{sC0}, {64*3840}")
    A(f"s_add_u32 s{sWO}, s{sWO}, s{sT0}")
    A(f"s_lshl_b32 s{sXO}, s{sTB}, 2")
    A(f"s_add_u32 s{sXO}, s{sXO}, s{sWAVE}")
    A(f"s_mul_i32 s{sXO}, s{sXO}, {32*1280}")
    A(f"s_lshl_b32 s{sT0}, s{sC0}, 7")
    A(f"s_add_u32 s{sXO}, s{sXO}, s{sT0}")
    A(f"s_lshl_b32 s{sM0}, s{sWAVE}, 12")
    A("s_waitcnt lgkmcnt(0)")
    srd(A, SW, 6, 640 * 1920 * 2)
    srd(A, SX, SX, X_BYTES)
    def dma_ops(c):
        ops = []
        for j in range(4):
            ops.append([f"s_add_u32 m0, s{sM0}, {(c%5)*SLOT + j*1024}", f"s_add_u32 s{sT0}, s{sWO}, {4*j*3840}",
                        f"buffer_load_dwordx4 v{vWOFF+(j>>1)}, s[{SW}:{SW+3}], s{sT0} offen lds"])
            ops.append([f"s_add_u32 m0, s{sM0}, {(c%5)*SLOT + 16384 + j*1024}", f"s_add_u32 s{sT0}, s{sXO}, {8*j*1280}",
                        f"buffer_load_dwordx4 v{vXOFF+(j%2)}, s[{SX}:{SX+3}], s{sT0} offen lds"])
        ops[-1] += [f"s_add_u32 s{sWO}, s{sWO}, {64*3840}", f"s_add_u32 s{sXO}, s{sXO}, 128",
                    f"s_cmp_eq_u32 s{sWO}, s{sWLIM}", f"s_cselect_b32 s{sT0}, {640*3840}, 0", f"s_cselect_b32 s{sT1}, 1280, 0",
                    f"s_sub_u32 s{sWO}, s{sWO}, s{sT0}", f"s_sub_u32 s{sXO}, s{sXO}, s{sT1}"]
        return ops
    def emit(op):
        for x in op:
            if cfg.get("q_nodma") and x.startswith("buffer_"): continue
            A(x)
    IW = cfg.get("iw", 2)
    for c in range(IW):
        for op in dma_ops(c): emit(op)
    srd(A, SWS, 50, WS_SIZE)
    if not cfg.get("kprep", 1): prep_setup()
    ops = [("w", c) for c in range(IW) for _ in range(8)]
    nw = IW
    def wait_for(tag):
        last = max(i for i, o in enumerate(ops) if o == tag)
        A(f"s_waitcnt vmcnt({len(ops) - 1 - last})")
    for c in range(10):
        wait_for(("w", c))
        A("s_barrier")
        for k in range(2 if c in cfg.get("extra_at", []) else 1):
            if nw < 10 and nw <= max(c + 3, 4) and (nw != 4 or c >= 2 or not cfg.get('k1prep', 0)):
                for op in dma_ops(nw): emit(op)
                ops += [("w", nw)] * 8; nw += 1
        if c == cfg.get("prep_i", 7) and not cfg.get("kprep", 1):
            for jj in range(5):
                A(f"s_add_u32 m0, s{sPLDS}, {jj*1024}")
                A(f"buffer_load_dwordx4 v{VO+jj}, s[{SP}:{SP+3}], s{sPSRC} offen lds")
            ops += [("p", 0)] * 5
    if cfg.get("prep_late", 1): A("s_barrier")
    A("s_waitcnt vmcnt(0)")
    for f in range(0 if cfg.get("kprep", 1) else 5):
        for u in range(2):
            A(f"ds_read_b64_tr_b16 {v(PF+4*f+2*u,2)}, v{VO+5+(f==4)} offset:{4*u*160 + tile_col_imm(f)}")
    A("s_waitcnt lgkmcnt(0)")
    for f in range(0 if cfg.get("kprep", 1) else 5):
        A(f"s_add_u32 s{sT0}, s{sPDST}, {f*1024}")
        A(f"buffer_store_dwordx4 {v(PF+4*f,4)}, v{L16}, s[{SWS}:{SWS+3}], s{sT0} offen {STF}")
    if MG:
        A(f"s_mov_b32 s94, {hex(WS_SIZE)}")
        A("s_branch L_main")
    else:
        A("s_endpgm")

    if cfg.get("lfirst", 1):
        seg = A.items[i_l0:]
        del A.items[i_l0:]
        A.items[i_split:i_split] = seg
    A.label("L_qkv_helper")
    XD = 16
    if cfg.get("ctouch", 2) == 1:
        code_touch_setup(A, 46, "L_k1_start", True)
        A(f"v_lshlrev_b32 v{vT+1}, 7, v0")
        A(f"v_min_u32 v{vT+1}, L_code_end-L_k1_start-4, v{vT+1}")
        A(f"global_load_dword v{vT+7}, v{vT+1}, s[46:47]")
    A(f"v_and_b32 v0, 63, v0")
    if HS:
        A(f"s_and_b32 s{sTB}, s2, 3")
        A(f"s_lshl_b32 s{sTB}, s{sTB}, 2")
        A(f"s_bfe_u32 s{sT0}, s2, 0x10002")
        A(f"s_lshl_b32 s{sT0}, s{sT0}, 1")
        A(f"s_add_u32 s{sTB}, s{sTB}, s{sT0}")
        A(f"s_lshr_b32 s{sT0}, s2, 3")
        A(f"s_add_u32 s{sTB}, s{sTB}, s{sT0}")
        A(f"s_lshl_b32 s{sXO}, s{sTB}, 3")
        A(f"s_add_u32 s{sXO}, s{sXO}, s{sWAVE}")
        A(f"s_mul_i32 s{sXO}, s{sXO}, {16*1280}")
        A(f"s_add_u32 s{sXLIM}, s{sXO}, {8*1280}")
        A(f"v_lshrrev_b32 v2, 3, v0")
        A(f"v_and_b32 v3, 7, v0")
        A(f"v_mul_u32_u24 v1, 1280, v2")
        A(f"v_lshl_add_u32 v1, v3, 4, v1")
        A("s_waitcnt lgkmcnt(0)")
        srd(A, SX, SX, X_BYTES)
        for g in range(2):
            for k in range(10):
                A(f"buffer_load_dwordx4 {v(XD+40*g+4*k,4)}, v1, s[{SX}:{SX+3}], s{sXLIM if g else sXO} offen offset:{128*k}")
        srd(A, SWS, 50, WS_SIZE)
        srd(A, SD, SD, 256)
        A(f"v_mov_b32 v4, 0x3f803f80")
        A(f"s_lshl_b32 s{sT0}, s{sWAVE}, 4")
        A(f"v_add_u32 v2, s{sT0}, v2")
        A(f"v_lshlrev_b32 v5, 3, v2")
        A(f"v_lshlrev_b32 v6, 2, v2")
        A(f"s_lshl_b32 s{sBASE}, s{sTB}, 11")
        A(f"s_add_u32 s{sBASE}, s{sBASE}, {hex(WS_ST1)}")
        A(f"s_mov_b32 s{sT1}, 0x01010101")
        for g in range(2):
            sm, sq = vT, vT + 1
            for k in range(10):
                A(f"s_waitcnt vmcnt({19 - (10*g+k) + (2 if g else 0)})")
                for i in range(4):
                    r = XD + 40 * g + 4 * k + i
                    first = (k == 0 and i == 0)
                    A(f"v_dot2_f32_bf16 v{sm}, v{r}, v4, {0 if first else 'v%d' % sm}")
                    A(f"v_dot2_f32_bf16 v{sq}, v{r}, v{r}, {0 if first else 'v%d' % sq}")
            for dpp in ("quad_perm:[1,0,3,2]", "quad_perm:[2,3,0,1]", "row_half_mirror"):
                A(f"v_add_f32_dpp v{sm}, v{sm}, v{sm} {dpp} row_mask:0xf bank_mask:0xf")
                A(f"v_add_f32_dpp v{sq}, v{sq}, v{sq} {dpp} row_mask:0xf bank_mask:0xf")
            A(f"v_mul_f32 v{sm}, {fhex(1/640)}, v{sm}")
            A(f"v_mul_f32 v{sq}, {fhex(1/640)}, v{sq}")
            A(f"v_fma_f32 v{sq}, -v{sm}, v{sm}, v{sq}")
            A(f"v_max_f32 v{sq}, 0, v{sq}")
            A(f"v_add_f32 v{sq}, {fhex(1e-5)}, v{sq}")
            A(f"v_rsq_f32 v{vT+4}, v{sq}")
            A(f"v_cvt_pk_bf16_f32 v{vT+2}, -v{sm}, -v{sm}")
            A(f"v_and_b32 v{vT+3}, 0xffff0000, v{vT+2}")
            A(f"v_sub_f32 v{vT+3}, -v{sm}, v{vT+3}")
            A(f"v_cvt_pk_bf16_f32 v{vT+3}, v{vT+3}, 0")
            A(f"s_mov_b32 exec_lo, s{sT1}")
            A(f"s_mov_b32 exec_hi, s{sT1}")
            A(f"buffer_store_dwordx2 {v(vT+2,2)}, v5, s[{SWS}:{SWS+3}], s{sBASE} offen offset:{64*g} sc1")
            A(f"buffer_store_dword v{vT+4}, v6, s[{SWS}:{SWS+3}], s{sBASE} offen offset:{1024 + 32*g} sc1")
            A("s_mov_b64 exec, -1")
        A(f"s_lshl_b32 s{sT0}, s{sWAVE}, 10")
        A(f"s_lshl_b32 s{sT2}, s2, 13")
        A(f"s_add_u32 s{sT0}, s{sT0}, s{sT2}")
        A(f"s_add_u32 s{sT0}, s{sT0}, {hex(WS_SYNC)}")
        A(f"s_cmp_lt_u32 s2, 10")
        A(f"s_cselect_b32 s{sT0}, s{sT0}, {hex(WS_SIZE)}")
        for i in range(4): A(f"v_mov_b32 v{XD+i}, 0")
        A(f"v_lshlrev_b32 v1, 4, v0")
        A(f"buffer_store_dwordx4 {v(XD,4)}, v1, s[{SWS}:{SWS+3}], s{sT0} offen sc1")
        A("s_waitcnt vmcnt(0)")
        A("s_barrier")
        A(f"s_lshl_b32 s{sT0}, s{sTB}, 4")
        A(f"s_cmp_eq_u32 s{sWAVE}, 0")
        A(f"s_cselect_b32 s{sT0}, s{sT0}, 256")
        A(f"v_mov_b32 v2, 1")
        A(f"v_mov_b32 v3, 0")
        A("s_mov_b64 exec, 1")
        A(f"buffer_store_dword v2, v3, s[{SD}:{SD+3}], s{sT0} offen sc1")
        A("s_mov_b64 exec, -1")
    else:
        A("s_waitcnt lgkmcnt(0)")
        srd(A, SWS, 50, WS_SIZE)
    if cfg.get("ptouch", 0):
        srd(A, SP, 34, 1536 * 640 * 2)
        srd(A, SW, 32, 640 * 640 * 2)
        A(f"s_lshl_b32 s{sT0}, s2, 3")
        A(f"s_add_u32 s{sT0}, s{sT0}, s{sWAVE}")
        A(f"s_mul_i32 s{sT1}, s{sT0}, {50*128}")
        A(f"s_mul_i32 s{sT0}, s{sT0}, {120*128}")
        A(f"v_lshlrev_b32 v1, 7, v0")
        A("s_bfm_b64 exec, 60, 0")
        A(f"buffer_load_dword v4, v1, s[{SP}:{SP+3}], s{sT0} offen")
        A(f"s_add_u32 s{sT0}, s{sT0}, {60*128}")
        A(f"buffer_load_dword v4, v1, s[{SP}:{SP+3}], s{sT0} offen")
        A("s_bfm_b64 exec, 50, 0")
        A(f"buffer_load_dword v4, v1, s[{SW}:{SW+3}], s{sT1} offen")
        A("s_mov_b64 exec, -1")
    if cfg.get("tlbw", 1):
        A("s_load_dwordx4 s[40:43], s[0:1], 32")
        A("s_load_dwordx2 s[52:53], s[0:1], 56")
        A(f"v_lshlrev_b32 v1, 18, v0")
        A(f"s_cmp_lg_u32 s{sWAVE}, 0")
        A("s_cbranch_scc1 L_qkv_notlb")
        if not MG:
            A(f"buffer_load_dword v4, v1, s[{SWS}:{SWS+3}], 0 offen")
            A(f"s_mov_b32 s{sT0}, 0x1000000")
            A("s_bfm_b64 exec, 24, 0")
            A(f"buffer_load_dword v4, v1, s[{SWS}:{SWS+3}], s{sT0} offen")
            A("s_mov_b64 exec, -1")
        A("s_waitcnt lgkmcnt(0)")
        for p, nb in ((40, 640*1536*2), (42, 640*1536*2), (52, X_BYTES), (32, 640*640*2), (34, 640*1536*2)):
            srd(A, SP, p, nb)
            A(f"buffer_load_dword v4, v1, s[{SP}:{SP+3}], 0 offen")
        A.label("L_qkv_notlb")
        A("s_waitcnt lgkmcnt(0)")
    if cfg.get("gtouch", 0):
        A("s_load_dwordx4 s[40:43], s[0:1], 32")
        A(f"s_lshl_b32 s{sT0}, s2, 3")
        A(f"s_add_u32 s{sT0}, s{sT0}, s{sWAVE}")
        A(f"s_mul_i32 s{sT0}, s{sT0}, {120*128}")
        A(f"s_add_u32 s{sT1}, s{sT0}, {60*128}")
        A(f"v_lshlrev_b32 v1, 7, v0")
        A("s_waitcnt lgkmcnt(0)")
        srd(A, SP, 40, 1536 * 640 * 2)
        srd(A, SW, 42, 1536 * 640 * 2)
        if cfg["gtouch"] == 2: A("s_waitcnt vmcnt(0)")
        A("s_bfm_b64 exec, 60, 0")
        for sr in (SP, SW):
            for so in (sT0, sT1):
                A(f"buffer_load_dword v4, v1, s[{sr}:{sr+3}], s{so} offen")
        A("s_mov_b64 exec, -1")
    stamp(A, cfg, 1)
    stamp(A, cfg, 2)
    if cfg.get("zfill", 0):
        for i in range(4): A(f"v_mov_b32 v{XD+i}, 0")
        A(f"v_lshlrev_b32 v1, 4, v0")
        A(f"s_lshl_b32 s{sT0}, s2, 3")
        A(f"s_add_u32 s{sT0}, s{sT0}, s{sWAVE}")
        A(f"s_lshl_b32 s{sT1}, s{sT0}, 11")
        A(f"s_add_u32 s{sT1}, s{sT1}, {hex(WS_ST2)}")
        A(f"s_mul_i32 s{sT0}, s{sT0}, 40960")
        A(f"s_add_u32 s{sT0}, s{sT0}, {hex(WS_O)}")
        for k in range(40):
            if k % 4 == 0 and k: A(f"s_add_u32 s{sT0}, s{sT0}, 4096")
            A(f"buffer_store_dwordx4 {v(XD,4)}, v1, s[{SWS}:{SWS+3}], s{sT0} offen offset:{(k%4)*1024} sc1")
        for k in range(2): A(f"buffer_store_dwordx4 {v(XD,4)}, v1, s[{SWS}:{SWS+3}], s{sT1} offen offset:{k*1024} sc1")
    if MG:
        A(f"s_cmp_lg_u32 s{sWAVE}, 0")
        A("s_cbranch_scc1 L_h_join")
        A("v_and_b32 v1, 15, v0")
        A("v_lshlrev_b32 v1, 4, v1")
        A(f"s_mov_b32 s{sT1}, 0")
        A.label("L_h_poll")
        A("s_sleep 8")
        A(f"buffer_load_dword v2, v1, s[{SD}:{SD+3}], 0 offen sc1")
        A(f"s_add_u32 s{sT1}, s{sT1}, 1")
        A("s_waitcnt vmcnt(0)")
        A("v_cmp_eq_u32 vcc, 0, v2")
        A(f"s_cmp_lt_u32 s{sT1}, 0x40000")
        A("s_cselect_b64 vcc, vcc, 0")
        A("s_cbranch_vccnz L_h_poll")
        A.label("L_h_join")
        A(f"s_mov_b32 s94, {hex(WS_SIZE)}")
        A("s_branch L_main")
    stamp(A, cfg, 3)
    stamp_flush(A, cfg, 4, 0, SWS, sWAVE, 0)
    A.label("L_qkv_end")
    A("s_endpgm")
    return dict(name=name, grid=256, block=512, lds=163840, desc=kernel_desc(name, 256 if MG else 192, 112, 102))
```

```python
import re

def v(n, k=1): return f"v{n}" if k == 1 else f"v[{n}:{n+k-1}]"
def a(n, k=1): return f"a{n}" if k == 1 else f"a[{n}:{n+k-1}]"
def s(n, k=1): return f"s{n}" if k == 1 else f"s[{n}:{n+k-1}]"

TRANS = ("v_exp_", "v_log_", "v_rcp_", "v_rsq_", "v_sqrt_", "v_sin_", "v_cos_")
_reg_re = re.compile(r"^(-|\|)?(?:abs\()?([vas])(?:(\d+)|\[(\d+):(\d+)\])\)?\|?$")

def regs_of(op):
    op = op.strip()
    if op == "vcc": return {("s", "vcc")}
    if op in ("vcc_lo", "vcc_hi"): return {("s", "vcc")}
    if op in ("exec", "exec_lo", "exec_hi"): return {("s", "exec")}
    if op == "m0": return {("s", "m0")}
    m = _reg_re.match(op)
    if not m: return set()
    t = m.group(2)
    if m.group(3) is not None: return {(t, int(m.group(3)))}
    return {(t, i) for i in range(int(m.group(4)), int(m.group(5)) + 1)}

def mfma_passes(op):
    if "4x4x4" in op: return 2
    if "16x16x32" in op or "16x16x16" in op: return 4
    if "32x32x16" in op or "32x32x8" in op or "32x32x32" in op: return 8
    raise ValueError(op)

class Ins:
    def __init__(self, text):
        self.text = text
        t = text.split(";")[0].strip()
        self.op = t.split()[0] if t else ""
        rest = t[len(self.op):].strip()
        ops = [x.strip() for x in rest.split(",")] if rest else []
        mods = []
        if ops:
            parts = ops[-1].split()
            ops[-1] = parts[0] if parts else ""
            mods = parts[1:]
        self.mods = mods
        op = self.op
        self.is_mfma = op.startswith(("v_mfma", "v_smfmac"))
        self.is_valu = op.startswith("v_") and not self.is_mfma
        self.is_trans = op.startswith(TRANS)
        self.is_dot = op.startswith("v_dot")
        self.is_vmem = op.startswith(("buffer_", "global_"))
        self.is_ds = op.startswith("ds_")
        self.is_salu = op.startswith("s_")
        self.is_dpp = "_dpp" in op or any(m.startswith(("row_", "quad_perm", "wave_")) for m in mods)
        self.is_perm = op.startswith("v_permlane")
        self.is_lds_dma = self.is_vmem and "lds" in mods
        self.states = 1
        if op == "s_nop": self.states = int(ops[0], 0) + 1
        R = [regs_of(o) for o in ops]
        self.w = set(); self.r = set(); self.srcc = set(); self.ab = set(); self.stdata = set()
        if self.is_mfma:
            self.w = R[0]; self.ab = R[1] | R[2]; self.srcc = R[3]
            if op.startswith("v_smfmac"):
                self.ab |= R[3]; self.srcc = set(R[0])
            self.r = self.ab | self.srcc
            self.passes = mfma_passes(op)
        elif self.is_valu:
            if op == "v_nop": pass
            elif self.is_perm:
                self.w = R[0] | R[1]; self.r = R[0] | R[1]
            else:
                self.w = set(R[0]); rs = R[1:]
                if "_co_" in op or op.startswith(("v_div_scale", "v_mad_u64")):
                    self.w |= R[1]; rs = R[2:]
                for x in rs: self.r |= x
                if op.startswith(("v_fmac", "v_dot2c", "v_pk_fmac", "v_writelane")) or "UNUSED_PRESERVE" in t or self.is_dpp: self.r |= R[0]
                if op.startswith("v_cmpx"): self.w |= {("s", "exec")}
        elif self.is_vmem:
            if "_load" in op and not self.is_lds_dma:
                self.w = R[0]
                for x in R[1:]: self.r |= x
            else:
                for x in R: self.r |= x
                if self.is_lds_dma: self.r |= {("s", "m0")}
                if "store" in op and ("x3" in op or "x4" in op):
                    self.stdata = R[0] if op.startswith("buffer_") else R[1]
                if "atomic" in op and "sc0" in mods: self.w = R[0]
        elif self.is_ds:
            if op.startswith(("ds_read", "ds_bpermute", "ds_permute", "ds_swizzle")):
                self.w = R[0]
                for x in R[1:]: self.r |= x
            else:
                for x in R: self.r |= x
        elif self.is_salu:
            if op.startswith(("s_cmp", "s_cbranch", "s_branch", "s_waitcnt", "s_barrier", "s_nop", "s_setprio", "s_sleep", "s_endpgm", "s_bitcmp")):
                for x in R: self.r |= x
            else:
                if R: self.w = set(R[0])
                for x in R[1:]: self.r |= x
                if "saveexec" in op: self.w |= {("s", "exec")}

def isv(x): return x[0] in ("v", "a")

def need(p, c):
    n = 0
    pw_v = {x for x in p.w if isv(x)}
    pw_s = {x for x in p.w if x[0] == "s"}
    if p.is_valu:
        if c.is_mfma and (pw_v & c.r): n = max(n, 3 if p.is_dot else 2)
        if p.is_trans and (c.is_valu and not c.is_trans) and (pw_v & c.r): n = max(n, 1)
        if p.is_trans and (c.is_mfma) and (pw_v & c.r): n = max(n, 2)
        if c.is_perm and (pw_v & c.r): n = max(n, 2)
        if c.is_dpp and (pw_v & c.r): n = max(n, 2)
        if c.op.startswith(("v_readlane", "v_readfirstlane")) and (pw_v & c.r): n = max(n, 1)
        if c.is_vmem and (pw_s & c.r): n = max(n, 5)
        if c.is_valu and (pw_s & c.r):
            n = max(n, 4 if c.op.startswith(("v_readlane", "v_writelane")) else 2)
        if c.is_salu and (pw_s & c.r): n = max(n, 1)
        if ("s", "exec") in pw_s:
            if c.is_mfma or c.is_perm or c.op.startswith(("v_readlane", "v_readfirstlane", "v_writelane")): n = max(n, 4)
            if c.is_dpp: n = max(n, 5)
        if p.is_dot and (c.is_valu or c.is_vmem or c.is_ds) and (pw_v & (c.r | c.w)):
            if not (c.op == p.op): n = max(n, 3)
            else:
                n = max(n, 0)
        if "sdwa" in p.op and c.is_valu and (pw_v & (c.r | c.w)): n = max(n, 1)
    if p.is_mfma:
        k = {2: 0, 4: 1, 8: 2, 16: 3}[p.passes]
        if c.is_mfma:
            if pw_v & c.ab: n = max(n, [5, 8, 12, 20][k])
            if pw_v & c.srcc:
                if c.srcc == p.w and c.passes == p.passes: n = max(n, [2, 0, 0, 0][k])
                else: n = max(n, [4, 6, 10, 18][k])
            elif pw_v & c.w:
                n = max(n, [4, 6, 10, 18][k])
        elif (c.is_valu or c.is_vmem or c.is_ds) and (pw_v & (c.r | c.w)):
            n = max(n, [5, 8, 12, 20][k])
        if c.is_valu and (p.srcc & c.w): n = max(n, [1, 3, 7, 15][k])
    if p.stdata and (p.stdata & c.w): n = max(n, 2 if c.is_valu else 1)
    if p.is_salu and ("s", "m0") in pw_s and c.is_lds_dma: n = max(n, 1)
    return n

class Asm:
    def __init__(self):
        self.items = []
        self.uid = 0
    def __call__(self, text):
        for line in text.split("\n"):
            line = line.strip()
            if not line: continue
            if line.startswith(";"): self.items.append(("t", "    " + line))
            elif line.startswith("."): self.items.append(("t", line))
            elif line.endswith(":"): self.items.append(("l", line[:-1]))
            else: self.items.append(("i", Ins(line)))
    def label(self, name): self.items.append(("l", name))
    def newlabel(self, base):
        self.uid += 1
        return f"L_{base}_{self.uid}"
    def raw(self, text): self.items.append(("t", text))

    @staticmethod
    def _lack(hist, c):
        lack = 0; dist = 0
        for p in reversed(hist):
            nd = need(p, c)
            if nd > dist: lack = max(lack, nd - dist)
            dist += p.states
            if dist >= 20: break
        return lack

    def finalize(self):
        out = []; hist = []
        for kind, x in self.items:
            if kind == "i":
                lack = self._lack(hist, x)
                while lack > 0:
                    n = min(lack, 16)
                    nop = Ins(f"s_nop {n-1}")
                    out.append(("i", nop)); hist.append(nop); lack -= n
                out.append(("i", x)); hist.append(x)
                if x.op in ("s_branch", "s_endpgm"): hist = []
                hist = hist[-24:]
            else:
                out.append((kind, x))
        labels = {x: i for i, (k, x) in enumerate(out) if k == "l"}
        for i, (k, x) in enumerate(out):
            if k == "i" and x.op.startswith(("s_cbranch", "s_branch")):
                tgt = x.text.split()[1]
                if tgt not in labels: raise ValueError("unknown label " + tgt)
                h = []
                j = i
                while j >= 0 and len(h) < 24:
                    if out[j][0] == "i":
                        if j != i and out[j][1].op in ("s_branch", "s_endpgm"): break
                        h.insert(0, out[j][1])
                    j -= 1
                j = labels[tgt]; cnt = 0
                while j < len(out) and cnt < 20:
                    if out[j][0] == "i":
                        c = out[j][1]
                        lack = self._lack(h, c)
                        if lack > 0:
                            raise ValueError(f"hazard across branch '{x.text}' -> '{c.text}' lacks {lack}")
                        h.append(c); cnt += c.states
                        if c.op in ("s_branch", "s_endpgm"): break
                    j += 1
        lines = []
        for k, x in out:
            if k == "i": lines.append("    " + x.text)
            elif k == "l": lines.append(x + ":")
            else: lines.append(x)
        return "\n".join(lines) + "\n"

def kernel_desc(name, nvgpr, accum_offset, nsgpr=100):
    return f""".amdhsa_kernel {name}
  .amdhsa_next_free_vgpr {nvgpr}
  .amdhsa_next_free_sgpr {nsgpr}
  .amdhsa_accum_offset {accum_offset}
  .amdhsa_group_segment_fixed_size 0
  .amdhsa_kernarg_size 80
  .amdhsa_user_sgpr_count 2
  .amdhsa_user_sgpr_kernarg_segment_ptr 1
  .amdhsa_system_sgpr_workgroup_id_x 1
  .amdhsa_float_denorm_mode_32 3
  .amdhsa_float_denorm_mode_16_64 3
.end_amdhsa_kernel
"""
```

```python
from common import *

GU_SLOT = 24608
GU_UP = 12288 + 32
GU_MISC = 6 * GU_SLOT
NWS, H_BASE, NHS = 4, 4 * GU_SLOT, 3
PART_BASE = 4 * GU_SLOT
KV_SLOT = 20480
NKV = 3
KV_BASE = 163840 - NKV * KV_SLOT
NV = 112

class R:
    S = (16, 32); O = 48; P = 64; K1 = 72; K2 = 76; V1 = 80; V2 = 84; Q1 = 88; Q2 = 92
    KA = 1; K2A = 2; VA = 3; L16 = 4; F2S = 5; L4 = 7; T = 8; TCH = 94
    GV = 96
    XRES = 100

SX, SWS, SG_, SU, SO = 4, 8, 12, 16, 20
sWAVE, sG, sM, sT0, sT1, sT2, sC, sDELTA, sSLOT, sQT = 24, 25, 26, 27, 28, 29, 30, 31, 32, 33
sVMASK = 34
sKSRC, sVSRC, sKBASE, sVBASE, sFG, sTOK16, sJ, sFAST, sWOSRC, sWDSRC, sGSRC, sGM0, sFLAG, sB, sXCC, sLW = 36, 37, 38, 39, 40, 41, 42, 43, 44, 45, 46, 47, 48, 49, 50, 51
sTMP = 52
SWO_, SWD_ = 92, 96
sSTG, sWDRAW, sTO, sKQ, sB2, sGLIM, sC0 = 86, 87, 90, 95, 96, 99, 91
sHD, sKLIM, sFL0 = 97, 98, 100

def WD(step, f, n=4):
    if step == 7: return v(40 + 4 * f, n)
    return a({0: 100, 1: 120, 2: 80, 3: 60, 4: 40, 5: 20, 6: 0}[step] + 4 * f, n)
def A_RES(i): return 140 + i if i < 4 else 58 + (i - 4)

def set_shift(A, m):
    t0, t1, t2 = m + 1, m + 2, m + 3
    A(f"v_cvt_pk_bf16_f32 v{t0}, -v{m}, -v{m}")
    A(f"v_and_b32 v{t0}, 0xffff0000, v{t0}")
    A(f"v_sub_f32 v{t1}, -v{m}, v{t0}")
    A(f"v_cvt_pk_bf16_f32 v{t2}, v{t0}, v{t1}")
    A(f"v_and_b32 v{t0}, 0xffff0000, v{t2}")
    A(f"v_sub_f32 v{t1}, v{t1}, v{t0}")
    A(f"v_cvt_pk_bf16_f32 v{t1}, v{t1}, 0")
    A(f"v_cmp_gt_u32 vcc, 32, v0")
    A(f"v_cndmask_b32 v{R.Q2+1}, v{t1}, v{t2}, vcc")

def max16(A, dst, S, first):
    if first:
        A(f"v_max3_f32 v{dst}, v{S}, v{S+1}, v{S+2}")
        A(f"v_max_f32 v{dst}, v{dst}, v{S+3}")
        rng = range(4, 16, 2)
    else:
        rng = range(0, 16, 2)
    for i in rng: A(f"v_max3_f32 v{dst}, v{dst}, v{S+i}, v{S+i+1}")

def xhalf_max(A, m, t):
    A(f"v_mov_b32 v{t}, v{m}")
    A(f"v_permlane32_swap_b32 v{m}, v{t}")
    A(f"v_max_f32 v{m}, v{m}, v{t}")

def stores(A, lst, data=True):
    if data == "O" and CFG.get("hp", 1) or data and CFG.get("wt", 2) & 1:
        for x in lst: A(x + (" sc1" if x.startswith("buffer_") else ""))
        return
    L1, L2 = A.newlabel("stf"), A.newlabel("ste")
    A(f"s_cmp_lg_u32 s{sFAST}, 0")
    A(f"s_cbranch_scc1 {L1}")
    for x in lst: A(x + (" sc1" if x.startswith("buffer_") else ""))
    A(f"s_branch {L2}")
    A.label(L1)
    for x in lst: A(x)
    A.label(L2)

def readback(A, lst):
    if not CFG.get("rb", 0) & 1: return
    for mask, ops in lst:
        ops = [x + " sc1" for x in ops]
        A(f"s_mov_b32 exec_lo, {hex(mask & 0xffffffff)}")
        A(f"s_mov_b32 exec_hi, {hex(mask >> 32)}")
        for x in ops: A(x)
    A("s_mov_b64 exec, -1")

def sync(A, idx, poller, half, nleft, between=None, rb=None):
    T = R.T
    A(f"s_waitcnt vmcnt({nleft})")
    if rb: readback(A, rb)
    A("s_barrier")
    L, LP = A.newlabel("sy"), A.newlabel("poll")
    A(f"s_cmp_lg_u32 s{sWAVE}, {poller}")
    if between is not None:
        LB = A.newlabel("btw")
        A(f"s_cbranch_scc1 {LB}")
    else:
        A(f"s_cbranch_scc1 {L}")
    A(f"s_lshl_b32 s{sT0}, s{sM}, 2")
    A(f"s_add_u32 s{sT0}, s{sT0}, s{sFLAG}")
    A(f"v_mov_b32 v{T}, 1")
    A(f"v_mov_b32 v{T+1}, 0")
    A("s_mov_b64 exec, 1")
    if idx == 0 and CFG.get("hp", 1):
        A(f"buffer_store_dword v{T}, v{T+1}, s[{SWS}:{SWS+3}], s{sFL0} offen sc1")
    else:
        stores(A, [f"buffer_store_dword v{T}, v{T+1}, s[{SWS}:{SWS+3}], s{sT0} offen offset:{idx*128}"], data=False)
    if half:
        A(f"s_and_b32 s{sT0}, s{sM}, 2")
        A(f"s_lshl_b32 s{sT0}, 0x33333333, s{sT0}")
        A(f"s_mov_b32 exec_lo, s{sT0}")
    else:
        A("s_mov_b32 exec_lo, -1")
    X0 = idx == 0 and CFG.get("hp", 1)
    L32 = X0 and CFG.get("l32", 1)
    A(f"v_lshlrev_b32 v{T+1}, {7 if L32 else 2}, v0")
    A(f"s_mov_b32 s{sT1}, 0")
    if L32:
        A(f"s_lshl_b32 s{sT0}, s{sG}, 12")
        A(f"s_add_u32 s{sT0}, s{sT0}, {hex(WS_SYNC + 8192)}")
    A.label(LP)
    sl = CFG.get("sl0", 4) if X0 else CFG.get("sl1", 0)
    if sl: A(f"s_sleep {sl}")
    if L32: A(f"buffer_load_dword v{T}, v{T+1}, s[{SWS}:{SWS+3}], s{sT0} offen sc1")
    else: A(f"buffer_load_dword v{T}, v{T+1}, s[{SWS}:{SWS+3}], s{sFLAG} offen offset:{idx*128} sc1")
    A(f"s_add_u32 s{sT1}, s{sT1}, 1")
    A("s_waitcnt vmcnt(0)")
    A(f"v_cmp_eq_u32 vcc, 0, v{T}")
    A(f"s_cmp_lt_u32 s{sT1}, 0x40000")
    A(f"s_cselect_b64 vcc, vcc, 0")
    A(f"s_cbranch_vccnz {LP}")
    A("s_mov_b64 exec, -1")
    if between is not None:
        A("s_barrier")
        between()
        A(f"s_branch {L}")
        A.label(LB)
        between()
        A("s_barrier")
        A.label(L)
    else:
        A.label(L)
        A("s_barrier")

def addr_rowmajor(A, vp, vs, T):
    A(f"v_and_b32 v{T}, 15, v0")
    A(f"v_lshrrev_b32 v{T+1}, 4, v0")
    A(f"v_mul_u32_u24 v{T}, 1280, v{T}")
    A(f"s_add_u32 s{sT0}, s{sLW}, s{sTOK16}")
    A(f"s_mul_i32 s{sT0}, s{sT0}, {16*1280}")
    A(f"s_mul_i32 s{sT1}, s{sFG}, 160")
    A(f"s_add_u32 s{sT0}, s{sT0}, s{sT1}")
    A(f"v_add_u32 v{T}, s{sT0}, v{T}")
    A(f"v_lshl_add_u32 v{vp}, v{T+1}, 4, v{T}")
    A(f"v_lshl_add_u32 v{vs}, v{T+1}, 3, v{T}")
    A(f"v_add_u32 v{vs}, 128, v{vs}")
    A(f"s_and_b32 s{sT0}, s{sWAVE}, 4")
    A(f"s_lshl_b32 s{sT0}, s{sT0}, 4")
    A(f"v_add_u32 v{vp}, s{sT0}, v{vp}")

def reduce_addr(A, P, base, RA):
    A(f"s_mul_i32 s{sT0}, s{sLW}, 5120")
    A(f"s_and_b32 s{sT1}, s{sWAVE}, 4")
    A(f"s_lshl_b32 s{sT1}, s{sT1}, 9")
    A(f"s_add_u32 s{sT0}, s{sT0}, s{sT1}")
    A(f"s_add_u32 s{sT0}, s{sT0}, {base}")
    A(f"v_add_u32 v{RA}, s{sT0}, v{R.L16}")
    for k in range(1, (P + 2) // 3): A(f"v_add_u32 v{RA+k}, {3*20480*k}, v{RA}")

def reduce_sum(A, P, D, RA, n, own, mid=None):
    W = 4 * n
    for p in range(P):
        for e in range(n):
            A(f"ds_read_b128 {v(D+W*p+4*e,4)}, v{RA+p//3} offset:{(p%3)*20480 + (e*1024 if e < 2 else 4096)}")
    if mid: mid()
    for p in range(P):
        A(f"s_waitcnt lgkmcnt({min(15, n*(P-1-p))})")
        for e in range(n):
            for i in (0, 2): A(f"v_pk_add_f32 {v(own[e]+i,2)}, {v(own[e]+i,2)}, {v(D+W*p+4*e+i,2)}")

CFG = {}
def gu_dma_ops(c):
    ops = []
    for isup in range(2):
        sr = SU if isup else SG_
        for jj in range(3):
            ops.append([f"s_add_u32 m0, s{sGM0}, {(c%NWS)*GU_SLOT + isup*GU_UP + jj*1024}",
                        "s_nop 0",
                        f"buffer_load_dwordx4 v{R.GV+jj}, s[{sr}:{sr+3}], s{sGSRC} offen lds"])
    ops[-1] += [f"s_add_u32 s{sGSRC}, s{sGSRC}, {64*3072}", f"s_cmp_eq_u32 s{sGSRC}, s{sGLIM}", f"s_cselect_b32 s{sT0}, {640*3072}, 0", f"s_sub_u32 s{sGSRC}, s{sGSRC}, s{sT0}"]
    return ops
def load_wd_ops(step):
    return [[f"s_add_u32 s{sT0}, s{sWDSRC}, {step*5120 + f*1024}",
             f"buffer_load_dwordx4 {WD(step, f)}, v{R.L16}, s[{SWS}:{SWS+3}], s{sT0} offen sc1"] for f in range(5)]
def gu_dma(A, c, rows):
    A(f"s_add_u32 s{sT0}, s{sGSRC}, {c*64*3072}")
    for isup in range(2):
        sr = SU if isup else SG_
        for jj in range(3):
            A(f"s_add_u32 m0, s{sGM0}, {(c%NWS)*GU_SLOT + isup*GU_UP + jj*1024}")
            A(f"buffer_load_dwordx4 v{R.GV+jj}, s[{sr}:{sr+3}], s{sT0} offen lds")

def load_wd(A, step):
    for f in range(5):
        if f % 4 == 0: A(f"s_add_u32 s{sT0}, s{sWDSRC}, {step*5120 + f*1024}")
        A(f"buffer_load_dwordx4 {WD(step, f)}, v{R.L16}, s[{SWS}:{SWS+3}], s{sT0} offen offset:{(f%4)*1024}")

def cfg_touch_plan(cfg, gu_touch, out_touch, wd_touch, extra):
    plan = cfg.get("tplan", [[5,"gw"],[44,"h"],[50,"st"]])
    out = []
    for t, w in plan:
        if w in extra: out.append((t, extra[w]))
        elif w[0] == "g": out.append((t, gu_touch(int(w[1]))))
        else: out.append((t, {"o": out_touch(WS_O, 1280), "h": out_touch(WS_H, 1280), "hid": out_touch(WS_HID, 3072), "st": out_touch(WS_ST2, 128), "wd": wd_touch,
                                 "hid0": out_touch(WS_HID, 3072, 0, 8), "hid1": out_touch(WS_HID, 3072, 8, 8), "hid2": out_touch(WS_HID, 3072, 16, 8)}[w]))
    return out

def gen_main(A, cfg):
    name = "main_kernel"
    CFG.update(cfg)
    cfg = dict(cfg); cfg["_k2"] = 1
    MG = cfg.get("merge", 1)
    T = R.T
    if MG:
        A.label("L_main")
    else:
        kstart(A, name)
        A("s_cmp_ge_u32 s2, 256")
        A("s_cbranch_scc1 L_end")
    A(f"s_load_dwordx2 s[{SWS}:{SWS+1}], s[0:1], 72")
    A(f"s_load_dwordx2 s[{SX}:{SX+1}], s[0:1], 0")
    A(f"s_load_dwordx2 s[{SG_}:{SG_+1}], s[0:1], 32")
    A(f"s_load_dwordx2 s[{SU}:{SU+1}], s[0:1], 40")
    A(f"s_load_dwordx2 s[{SO}:{SO+1}], s[0:1], 16")
    A(f"s_load_dwordx2 s[92:93], s[0:1], 48")
    stamp(A, cfg, 0)
    if MG:
        A(f"s_mov_b32 s{sWAVE}, s3")
    else:
        A(f"v_lshrrev_b32 v{T}, 6, v0")
        A(f"v_and_b32 v0, 63, v0")
        A(f"v_readfirstlane_b32 s{sWAVE}, v{T}")
    A(f"s_and_b32 s{sG}, s2, 7")
    A(f"s_lshr_b32 s{sM}, s2, 3")
    HP = cfg.get("hp", 1)
    if HP:
        A(f"s_lshl_b32 s{sHD}, s{sG}, 2")
        A(f"s_lshr_b32 s{sT0}, s{sM}, 3")
        A(f"s_add_u32 s{sHD}, s{sHD}, s{sT0}")
        A(f"s_and_b32 s{sFL0}, s{sM}, 7")
    else:
        A(f"s_mov_b32 s{sHD}, s{sM}")
        A(f"s_mov_b32 s{sFL0}, s{sG}")
    A(f"s_lshr_b32 s{sT0}, s{sHD}, 1")
    A(f"s_mul_i32 s{sKBASE}, s{sT0}, {PAIR_STRIDE}")
    A(f"s_mul_i32 s{sVBASE}, s{sHD}, {VHEAD_STRIDE}")
    A(f"s_add_u32 s{sVBASE}, s{sVBASE}, {hex(WS_V)}")
    A(f"s_lshl_b32 s{sQT}, s{sFL0}, 3")
    A(f"s_add_u32 s{sQT}, s{sQT}, s{sWAVE}")
    A(f"s_and_b32 s{sT1}, s{sHD}, 1")
    A(f"v_lshlrev_b32 v{R.L16}, 4, v0")
    A(f"s_mul_i32 s{sT2}, s{sT1}, 1536")
    A(f"v_add_u32 v{R.F2S+1}, s{sT2}, v{R.L16}")
    A(f"v_and_b32 v{T}, 31, v0")
    A(f"v_lshrrev_b32 v{T+1}, 5, v0")
    A(f"v_lshlrev_b32 v{R.F2S}, 4, v{T}")
    A(f"v_lshl_add_u32 v{R.F2S}, v{T+1}, 2, v{R.F2S}")
    A(f"s_lshl_b32 s{sT1}, s{sT1}, 3")
    A(f"s_add_u32 s{sT1}, s{sT1}, 1024")
    A(f"v_add_u32 v{R.F2S}, s{sT1}, v{R.F2S}")
    A(f"s_mul_i32 s{sKSRC}, s{sWAVE}, 2560")
    A(f"s_add_u32 s{sKSRC}, s{sKSRC}, s{sKBASE}")
    A(f"s_mul_i32 s{sVSRC}, s{sWAVE}, 1280")
    A(f"s_mul_i32 s{sSLOT}, s{sWAVE}, 2560")
    A(f"v_lshlrev_b32 v{R.L4}, 2, v0")
    A(f"s_add_u32 s{sVSRC}, s{sVSRC}, s{sVBASE}")
    A(f"s_add_u32 s{sKLIM}, s{sKSRC}, {PAIR_STRIDE}")
    A(f"s_mul_i32 s{sT0}, s{sFL0}, {8*1280 if HP and cfg.get('krot', 0) else 0}")
    A(f"s_add_u32 s{sVSRC}, s{sVSRC}, s{sT0}")
    A(f"s_lshl_b32 s{sT0}, s{sT0}, 1")
    A(f"s_add_u32 s{sKSRC}, s{sKSRC}, s{sT0}")
    A(f"s_add_u32 s{sB2}, s{sKBASE}, s{sT0}")
    A("s_waitcnt lgkmcnt(0)")
    srd(A, SWS, SWS, WS_SIZE)
    KVF = cfg.get("kvflag", "sc1" if MG else "")
    def kv_ops(c):
        lds = KV_BASE + (c % NKV) * KV_SLOT
        return [
            [f"s_add_u32 m0, s{sSLOT}, {lds}", "s_nop 0",
             f"buffer_load_dwordx4 v{R.F2S+1}, s[{SWS}:{SWS+3}], s{sKSRC} offen {KVF} lds"],
            [f"s_add_u32 m0, s{sSLOT}, {lds+1024}", "s_nop 0",
             f"buffer_load_dword v{R.F2S}, s[{SWS}:{SWS+3}], s{sKSRC} offen {KVF} lds"],
            [f"s_add_u32 m0, s{sSLOT}, {lds+1280}", f"s_add_u32 s{sKSRC}, s{sKSRC}, {8*2560}",
             f"buffer_load_dwordx4 v{R.L16}, s[{SWS}:{SWS+3}], s{sVSRC} offen {KVF} lds"],
            [f"s_add_u32 m0, s{sSLOT}, {lds+2304}", f"s_add_u32 s{sT0}, s{sVSRC}, 1024",
             f"buffer_load_dword v{R.L4}, s[{SWS}:{SWS+3}], s{sT0} offen {KVF} lds",
             f"s_add_u32 s{sVSRC}, s{sVSRC}, {8*1280}"] +
            ([f"s_cmp_eq_u32 s{sKSRC}, s{sKLIM}", f"s_cselect_b32 s{sT0}, {VHEAD_STRIDE}, 0", f"s_sub_u32 s{sVSRC}, s{sVSRC}, s{sT0}",
              f"s_lshl_b32 s{sT0}, s{sT0}, 1", f"s_sub_u32 s{sKSRC}, s{sKSRC}, s{sT0}"] if HP and cfg.get('krot', 0) else [])]
    def emit(op):
        for x in op: A(x)
    PSP = cfg.get("psplit", 3)
    def first_loads():
        A(f"s_mul_i32 s{sT2}, s{sQT}, 2560")
        A(f"s_add_u32 s{sT2}, s{sT2}, s{sKBASE}")
        A(f"s_add_u32 s{sT2}, s{sT2}, {hex(WS_Q)}")
        A(f"buffer_load_dwordx4 {v(R.Q1,4)}, v{R.F2S+1}, s[{SWS}:{SWS+3}], s{sT2} offen {KVF}")
        A(f"buffer_load_dword v{R.Q2}, v{R.F2S}, s[{SWS}:{SWS+3}], s{sT2} offen {KVF}")
        A(f"buffer_load_dwordx4 {v(R.K1,4)}, v{R.F2S+1}, s[{SWS}:{SWS+3}], s{sB2} offen {KVF}")
        A(f"buffer_load_dword v{R.K2}, v{R.F2S}, s[{SWS}:{SWS+3}], s{sB2} offen {KVF}")
        if PSP:
            A(f"s_cmp_ge_u32 s{sWAVE}, {PSP}")
            A("s_cbranch_scc1 L_p0")
        for op in kv_ops(0): emit(op)
        A.label("L_p0")
    if not MG: first_loads()
    def gsignal():
        if not MG: return
        if cfg.get("gst") == 2: stamp(A, cfg, 0)
        A("s_waitcnt vmcnt(0)")
        A("s_barrier")
        if cfg.get("gst") == 3: stamp(A, cfg, 0)
        A(f"s_cmp_eq_u32 s{sWAVE}, {4 if cfg.get('lsw', 0) else 0}")
        A(f"s_cselect_b32 s94, s94, {hex(WS_SIZE)}")
        A("s_mov_b64 exec, 1")
        A(f"buffer_store_dword v{R.F2S}, v{R.L16}, s[{SWS}:{SWS+3}], s94 offen sc1")
        A("s_mov_b64 exec, -1")
    GP = cfg.get("gp", 3 if cfg.get("lsw", 0) else 4)
    GPOS = cfg.get("gpos", 1)
    if GPOS == 0: gsignal()
    A(f"s_lshl_b32 s{sFLAG}, s{sG}, 10")
    A(f"s_add_u32 s{sFLAG}, s{sFLAG}, {hex(WS_SYNC)}")
    A(f"s_getreg_b32 s{sXCC}, hwreg(HW_REG_XCC_ID, 0, 3)")
    A(f"s_mul_i32 s{sXCC}, s{sXCC}, 6")
    A(f"s_lshr_b32 s{sFG}, s{sM}, 2")
    A(f"s_and_b32 s{sT0}, s{sM}, 3")
    A(f"s_lshl_b32 s{sTOK16}, s{sG}, 4")
    A(f"s_lshl_b32 s{sT0}, s{sT0}, 2")
    A(f"s_add_u32 s{sTOK16}, s{sTOK16}, s{sT0}")
    A(f"s_lshl_b32 s{sJ}, s{sFG}, 1")
    A(f"s_and_b32 s{sT0}, s{sM}, 1")
    A(f"s_add_u32 s{sJ}, s{sJ}, s{sT0}")
    A(f"s_and_b32 s{sLW}, s{sWAVE}, 3")
    A(f"s_mul_i32 s{sWOSRC}, s{sFG}, {20*5120}")
    A(f"s_and_b32 s{sKQ}, s{sLW}, 1")
    A(f"s_lshl_b32 s{sKQ}, s{sKQ}, 1")
    A(f"s_lshr_b32 s{sT0}, s{sWAVE}, 2")
    A(f"s_add_u32 s{sKQ}, s{sKQ}, s{sT0}")
    if cfg.get("stag", 3) & 1:
        A(f"s_and_b32 s{sT0}, s{sFG}, 1")
        A(f"s_lshl_b32 s{sT0}, s{sT0}, 1")
        A(f"s_xor_b32 s{sKQ}, s{sKQ}, s{sT0}")
    A(f"s_mul_i32 s{sT0}, s{sKQ}, {5*5120}")
    A(f"s_add_u32 s{sWOSRC}, s{sWOSRC}, s{sT0}")
    A(f"s_add_u32 s{sWOSRC}, s{sWOSRC}, {hex(WS_WO)}")
    A(f"s_mul_i32 s{sWDSRC}, s{sFG}, {48*5120}")
    A(f"s_and_b32 s{sT0}, s{sFG}, {3 if cfg.get('stag', 3) & 2 else 0}")
    A(f"s_xor_b32 s{sT0}, s{sT0}, s{sLW}")
    A(f"s_mul_i32 s{sT0}, s{sT0}, 12")
    A(f"s_and_b32 s{sT1}, s{sWAVE}, 4")
    A(f"s_add_u32 s{sWDRAW}, s{sT0}, s{sT1}")
    A(f"s_mul_i32 s{sT0}, s{sWDRAW}, 5120")
    A(f"s_add_u32 s{sWDSRC}, s{sWDSRC}, s{sT0}")
    A(f"s_add_u32 s{sWDSRC}, s{sWDSRC}, {hex(WS_WD)}")
    A(f"s_mul_i32 s{sGSRC}, s{sLW}, {16*3072}")
    A(f"s_mul_i32 s{sT0}, s{sJ}, 192")
    A(f"s_add_u32 s{sGSRC}, s{sGSRC}, s{sT0}")
    A(f"s_mul_i32 s{sGM0}, s{sLW}, 3072")
    if cfg.get("stag", 3) & 4:
        A(f"s_bfe_u32 s{sT0}, s{sM}, 0x10001")
        A(f"s_mul_i32 s{sT0}, s{sT0}, {cfg.get('gth', 5)}")
        A(f"s_mul_i32 s{sC0}, s{sJ}, {cfg.get('gja', 1)}")
        A(f"s_add_u32 s{sC0}, s{sC0}, s{sT0}")
        A(f"s_mul_i32 s{sT0}, s{sC0}, 6554")
        A(f"s_lshr_b32 s{sT0}, s{sT0}, 16")
        A(f"s_mul_i32 s{sT0}, s{sT0}, 10")
        A(f"s_sub_u32 s{sC0}, s{sC0}, s{sT0}")
    else:
        A(f"s_mov_b32 s{sC0}, 0")
    A(f"s_add_u32 s{sGLIM}, s{sGSRC}, {640*3072}")
    A(f"s_mul_i32 s{sT0}, s{sC0}, {64*3072}")
    A(f"s_add_u32 s{sGSRC}, s{sGSRC}, s{sT0}")
    srd(A, SX, SX, X_BYTES); srd(A, SG_, SG_, 640 * 1536 * 2); srd(A, SU, SU, 640 * 1536 * 2)
    if GPOS == 1: gsignal()
    A(f"v_add_u32 v{R.KA}, {KV_BASE}, v{R.L16}")
    A(f"v_add_u32 v{R.K2A}, {KV_BASE + 1024}, v{R.L4}")
    r, kh, aa, hf, b, i_, d1, d2 = T, T+1, T+2, T+3, T+4, T+5, T+6, T+7
    A(f"v_lshrrev_b32 v{aa}, 3, v{r}")
    A(f"v_bfe_u32 v{hf}, v{r}, 2, 1")
    A(f"v_and_b32 v{b}, 3, v{r}")
    A(f"v_lshl_add_u32 v{i_}, v{aa}, 2, v{b}")
    A(f"v_lshl_add_u32 v{d1}, v{hf}, 3, v{i_}")
    A(f"v_lshl_add_u32 v{d2}, v{hf}, 1, v{i_}")
    A(f"v_add_u32 v{d2}, 8, v{d2}")
    A(f"v_cmp_gt_u32 vcc, 8, v{i_}")
    A(f"v_cndmask_b32 v{d1}, v{d2}, v{d1}, vcc")
    A(f"v_min_u32 v{d1}, 19, v{d1}")
    A(f"v_mul_u32_u24 v{R.VA}, 320, v{kh}")
    A(f"v_lshl_add_u32 v{R.VA}, v{d1}, 4, v{R.VA}")
    A(f"v_add_u32 v{R.VA}, {KV_BASE + 1280}, v{R.VA}")
    A(f"v_cmp_eq_u32 vcc, 10, v{i_}")
    A(f"v_mov_b32 v{d2}, 0x3f803f80")
    for k in range(8): A(f"v_cndmask_b32 v{R.V1+k}, 0, v{d2}, vcc")
    A(f"v_cmp_gt_u32 vcc, 32, v0")
    A(f"v_mov_b32 v{d1}, 0x3f80")
    A(f"v_cndmask_b32 v{R.K2+1}, v{d1}, v{d2}, vcc")
    A(f"v_mov_b32 v{R.Q2+1}, 0")
    for jj in range(3):
        A(f"v_add_u32 v{T}, {64*jj}, v0")
        A(f"v_mul_u32_u24 v{T+1}, 5462, v{T}")
        A(f"v_lshrrev_b32 v{T+1}, 16, v{T+1}")
        A(f"v_mul_u32_u24 v{R.GV+jj}, {3072-192}, v{T+1}")
        A(f"v_lshl_add_u32 v{R.GV+jj}, v{T}, 4, v{R.GV+jj}")
        A(f"v_and_b32 v{T+1}, 8, v{T+1}")
        A(f"v_lshlrev_b32 v{T+1}, 2, v{T+1}")
        A(f"v_xor_b32 v{R.GV+jj}, v{R.GV+jj}, v{T+1}")
    A(f"s_mov_b32 s{sVMASK}, 0x0033ffff")
    A(f"s_mov_b32 s{sVMASK+1}, 0x0033ffff")
    S0 = R.S[0]
    X = R.S[1]
    if GPOS == 2: gsignal()
    addr_rowmajor(A, R.XRES + 6, R.XRES + 7, X)
    A(f"v_lshlrev_b32 v{R.TCH}, 7, v0")
    A(f"v_mov_b32 v{R.TCH+1}, 0")
    A(f"s_lshl_b64 s[{sTMP}:{sTMP+1}], 1, s{sXCC}")
    A(f"v_mov_b32 v{R.XRES+8}, s{sTMP}")
    A(f"v_mov_b32 v{R.XRES+9}, s{sTMP+1}")
    A(f"s_cmp_ge_u32 s{sWAVE}, 4")
    A(f"s_cselect_b32 s{sTMP}, s{SU}, s{SG_}")
    A(f"s_cselect_b32 s{sTMP+1}, s{SU+1}, s{SG_+1}")
    A(f"s_mov_b32 s{sTMP+2}, {hex(640*1536*2)}")
    A(f"s_mov_b32 s{sTMP+3}, 0x20000")
    A(f"s_cselect_b32 s{sB}, {GU_UP}, 0")
    A(f"s_add_u32 s{sB}, s{sB}, s{sGM0}")
    A(f"s_and_b32 s{sC}, s{sM}, 3")
    A(f"s_lshl_b32 s{sDELTA}, s{sM}, 2")
    A(f"s_add_u32 s{sDELTA}, s{sDELTA}, s{sLW}")
    A(f"s_mul_i32 s{sDELTA}, s{sDELTA}, {12*128}")
    A(f"s_lshl_b32 s{sTO}, s{sG}, 5")
    A(f"s_add_u32 s{sTO}, s{sTO}, s{sM}")
    A(f"s_lshl_b32 s{sTO}, s{sTO}, 3")
    A(f"s_add_u32 s{sTO}, s{sTO}, s{sWAVE}")
    if cfg.get("ctouch", 1):
        code_touch_setup(A, 88, "L_attn_code")
        A(f"s_and_b32 s{sT0}, s{sTO}, 255")
        A(f"s_lshl_b32 s{sT0}, s{sT0}, 7")
        A(f"v_lshlrev_b32 v{X}, 15, v0")
        A(f"v_add_u32 v{X}, s{sT0}, v{X}")
        A(f"v_min_u32 v{R.GV+3}, L_code_end-L_attn_code-4, v{X}")

    A(f"s_mul_i32 s{sT0}, s{sQT}, {2*80*256}")
    A(f"s_lshr_b32 s{sT1}, s{sHD}, 3")
    A(f"s_mul_i32 s{sT1}, s{sT1}, {20*256}")
    A(f"s_add_u32 s{sT0}, s{sT0}, s{sT1}")
    A(f"s_add_u32 s{sT0}, s{sT0}, {hex(WS_O)}")
    L32 = cfg.get("l32", 1)
    A(f"s_lshl_b32 s{sFL0}, s{sFL0}, {12 if L32 else 10}")
    A(f"s_lshl_b32 s{sT2}, s{sHD}, {7 if L32 else 2}")
    A(f"s_add_u32 s{sFL0}, s{sFL0}, s{sT2}")
    A(f"s_add_u32 s{sFL0}, s{sFL0}, {hex(WS_SYNC + (8192 if L32 else 0))}")
    A(f"s_and_b32 s{sT2}, s{sHD}, 7")
    A(f"s_lshl_b32 s{sT1}, s{sT2}, 9")
    A(f"s_add_u32 s{sT1}, s{sT1}, s{sT0}")
    A(f"s_lshl_b32 s{sT2}, s{sT2}, 7")
    A(f"s_add_u32 s{sT0}, s{sT0}, s{sT2}")
    A(f"s_add_u32 s{sT0}, s{sT0}, {16*256}")
    A(f"v_and_b32 v{X}, 15, v0")
    A(f"v_bfe_u32 v{X+1}, v0, 4, 1")
    A(f"v_lshrrev_b32 v{X+2}, 5, v0")
    A(f"v_mul_u32_u24 v{X+1}, {80*256}, v{X+1}")
    A(f"v_lshl_add_u32 v{T+7}, v{X}, 3, v{X+1}")
    A(f"v_add_u32 v{T+7}, s{sT0}, v{T+7}")
    A(f"v_lshl_add_u32 v{T+6}, v{X}, 4, v{X+1}")
    A(f"v_lshl_add_u32 v{T+6}, v{X+2}, 8, v{T+6}")
    A(f"v_add_u32 v{T+6}, s{sT1}, v{T+6}")
    SP_ = cfg.get("sp", 1)
    PV2 = f"v_smfmac_f32_32x32x32_bf16 {v(R.O,16)}, {v(R.V2,4)}, {v(R.P,8)}, v79" if SP_ else \
          f"v_mfma_f32_32x32x16_bf16 {v(R.O,16)}, {v(R.V2,4)}, {v(R.P+4,4)}, {v(R.O,16)}"
    if SP_:
        A("v_mov_b32 v79, 0xdddddddd")
        for k in range(16): A(f"v_mov_b32 v{R.O+k}, 0")
    KP = cfg.get("kprep", 1)
    SP, pWO, pWD = SO, SO, 92
    sU, sPSRC, sPDST, sPLDS = sSTG, sKLIM, 101, 3
    VO, PF, TA, vT = R.XRES, X + 4, 8, X
    def prep_setup():
        A(f"s_lshl_b32 s{sU}, s{sWAVE}, 8")
        A(f"s_add_u32 s{sU}, s{sU}, s2")
        A(f"s_mul_i32 s{sPLDS}, s{sWAVE}, 5120")
        A(f"s_cmp_lt_u32 s{sU}, 544")
        A("s_cbranch_scc1 L_pp_real")
        srd(A, SP, pWO, 0)
        A(f"s_mov_b32 s{sPSRC}, 0")
        A(f"s_mov_b32 s{sPDST}, {hex(WS_SIZE)}")
        for jj in range(5): A(f"v_mov_b32 v{VO+jj}, 0")
        A("s_branch L_pp_ta")
        A.label("L_pp_real")
        for jj in range(5):
            A(f"v_add_u32 v{vT}, {64*jj}, v0")
            A(f"v_mul_u32_u24 v{PF+jj}, 6554, v{vT}")
            A(f"v_lshrrev_b32 v{PF+jj}, 16, v{PF+jj}")
            A(f"v_mul_u32_u24 v{vT+1}, 10, v{PF+jj}")
            A(f"v_sub_u32 v{vT}, v{vT}, v{vT+1}")
            A(f"v_lshlrev_b32 v{VO+jj}, 4, v{vT}")
        A(f"s_cmp_ge_u32 s{sU}, 384")
        A("s_cbranch_scc1 L_pp_pwo")
        srd(A, SP, pWD, 1536 * 640 * 2)
        A(f"s_mul_i32 s{sT0}, s{sU}, 1366")
        A(f"s_lshr_b32 s{sT0}, s{sT0}, 16")
        A(f"s_mul_i32 s{sT1}, s{sT0}, 48")
        A(f"s_sub_u32 s{sT1}, s{sU}, s{sT1}")
        A(f"s_mul_i32 s{sPSRC}, s{sT1}, {32*1280}")
        A(f"s_mul_i32 s{sT0}, s{sT0}, 160")
        A(f"s_add_u32 s{sPSRC}, s{sPSRC}, s{sT0}")
        A(f"s_mul_i32 s{sPDST}, s{sU}, 5120")
        A(f"s_add_u32 s{sPDST}, s{sPDST}, {hex(WS_WD)}")
        A("s_branch L_pp_pgo")
        A.label("L_pp_pwo")
        srd(A, SP, pWO, 640 * 640 * 2)
        A(f"s_sub_u32 s{sU}, s{sU}, 384")
        A(f"s_mul_i32 s{sT0}, s{sU}, 3277")
        A(f"s_lshr_b32 s{sT0}, s{sT0}, 16")
        A(f"s_mul_i32 s{sT1}, s{sT0}, 20")
        A(f"s_sub_u32 s{sT1}, s{sU}, s{sT1}")
        A(f"s_mul_i32 s{sPSRC}, s{sT0}, 160")
        A(f"s_mul_i32 s{sT0}, s{sT1}, 205")
        A(f"s_lshr_b32 s{sT0}, s{sT0}, 10")
        A(f"s_mul_i32 s{sT2}, s{sT0}, 5")
        A(f"s_sub_u32 s{sT1}, s{sT1}, s{sT2}")
        A(f"s_mul_i32 s{sT0}, s{sT0}, {160*1280}")
        A(f"s_add_u32 s{sPSRC}, s{sPSRC}, s{sT0}")
        A(f"s_mul_i32 s{sPDST}, s{sU}, 5120")
        A(f"s_add_u32 s{sPDST}, s{sPDST}, {hex(WS_WO)}")
        A(f"s_cmp_eq_u32 s{sT1}, 4")
        A("s_cbranch_scc1 L_pp_pleft")
        A(f"s_mul_i32 s{sT1}, s{sT1}, {40*1280}")
        A(f"s_add_u32 s{sPSRC}, s{sPSRC}, s{sT1}")
        for jj in range(5):
            A(f"v_lshrrev_b32 v{vT}, 4, v{PF+jj}")
            A(f"v_lshl_add_u32 v{PF+jj}, v{vT}, 2, v{PF+jj}")
        A("s_branch L_pp_pgo")
        A.label("L_pp_pleft")
        for jj in range(5):
            k = PF + jj
            A(f"v_lshrrev_b32 v{vT}, 2, v{k}")
            A(f"v_lshl_add_u32 v{k}, v{vT}, 4, v{k}")
            A(f"v_add_u32 v{k}, 16, v{k}")
        A.label("L_pp_pgo")
        for jj in range(5):
            A(f"v_mul_u32_u24 v{vT}, 1280, v{PF+jj}")
            A(f"v_add_u32 v{VO+jj}, v{VO+jj}, v{vT}")
        A.label("L_pp_ta")
        A(f"v_lshrrev_b32 v{vT}, 4, v0")
        A(f"v_bfe_u32 v{vT+1}, v0, 2, 2")
        A(f"v_lshl_add_u32 v{vT}, v{vT}, 3, v{vT+1}")
        A(f"v_mul_u32_u24 v{vT}, 160, v{vT}")
        A(f"v_add_u32 v{vT}, s{sPLDS}, v{vT}")
        A(f"v_and_b32 v{vT+1}, 3, v0")
        A(f"v_lshl_add_u32 v{TA}, v{vT+1}, 4, v{vT}")
        A(f"v_lshl_add_u32 v{TA+1}, v{vT+1}, 3, v{vT}")
    if KP: prep_setup()
    A(f"s_mov_b32 s92, {fhex(2.0**-40)}")
    A(f"s_mov_b32 s93, {fhex(2.0**64)}")
    JUNK = R.XRES + 11
    def gu_op(c, jj):
        return [f"s_add_u32 m0, s{sB}, {c*GU_SLOT + jj*1024}", "s_nop 0",
                f"buffer_load_dwordx4 v{R.GV+jj}, s[{sTMP}:{sTMP+3}], s{sGSRC} offen lds"] + ([f"s_add_u32 s{sGSRC}, s{sGSRC}, {64*3072}", f"s_cmp_eq_u32 s{sGSRC}, s{sGLIM}", f"s_cselect_b32 s{sT0}, {640*3072}, 0", f"s_sub_u32 s{sGSRC}, s{sGSRC}, s{sT0}"] if jj == 2 else [])
    def touch(n, srd_, pre):
        return pre + [f"s_bfm_b64 exec, {n}, 0", f"buffer_load_dword v{JUNK}, v{R.TCH}, s[{srd_}:{srd_+3}], s{sT0} offen", "s_mov_b64 exec, -1"]
    def gu_touch(c): return touch(12, sTMP, [f"s_add_u32 s{sT0}, s{sDELTA}, {c*64*3072}"])
    def out_touch(base, nbytes, l0=0, n=None):
        return touch(n or nbytes // 128, SWS, [f"s_mul_i32 s{sT0}, s{sTO}, {nbytes}", f"s_add_u32 s{sT0}, s{sT0}, {hex(base + l0*128)}",
                                          f"s_cmp_lg_u32 s{sFAST}, 0", f"s_cselect_b32 s{sT0}, s{sT0}, {hex(WS_SIZE)}"])
    sched = {t: [] for t in range(64)}
    trs = {}
    misc = {}
    vm = []
    def put(t, tag, op):
        while len(sched[t]) >= 3: t += 1
        sched[t].append((tag, op)); return t
    for i, op in enumerate(kv_ops(1)): put(i // 2, "kv1", op)
    for c in range(2, 8):
        for i, op in enumerate(kv_ops(c)): put(8 * (c - 2) + 6 + i // 2, f"kv{c}", op)
    pf = []
    def frag_op(src, i, dst):
        pre = [f"s_add_u32 s{sSTG}, s{src}, {i*1024}"] if i % 4 == 0 else []
        return pre + [f"buffer_load_dwordx4 {a(dst+4*i,4)}, v{R.L16}, s[{SWS}:{SWS+3}], s{sSTG} offen offset:{(i%4)*1024} sc1"]
    gl = [gu_op(c, jj) for c in range(4) for jj in range(3)]
    for i in range(10): pf.append(frag_op(sWDSRC, i, 100))
    WROT = cfg.get("stag", 3) & 8
    for i in range(25):
        st, f = divmod(i, 5)
        if f == 0:
            pre = [f"s_bfe_u32 s{sSTG}, s{sFG}, 0x20001", f"s_xor_b32 s{sSTG}, s{sSTG}, {st}", f"s_mul_i32 s{sSTG}, s{sSTG}, 5120",
                   f"s_add_u32 s{sSTG}, s{sSTG}, s{sWOSRC}"] if st < 4 and WROT else [f"s_add_u32 s{sSTG}, s{sWOSRC}, {st*5120}"]
        else: pre = [f"s_add_u32 s{sSTG}, s{sSTG}, 4096"] if f == 4 else []
        pf.append(pre + [f"buffer_load_dwordx4 {a(4*i,4)}, v{R.L16}, s[{SWS}:{SWS+3}], s{sSTG} offen offset:{(f%4)*1024} sc1"])
    pchk = {}
    if KP:
        P0, P1, PFL, PLD, PCK = cfg.get("pp", [2, 8, 14, 25, 30])
        PFLAG = WS_SYNC + 40960
        for jj in range(5):
            put(P0 + jj // 2, "pd", [f"s_add_u32 m0, s{sPLDS}, {jj*1024}", "s_nop 0", f"buffer_load_dwordx4 v{VO+jj}, s[{SP}:{SP+3}], s{sPSRC} offen lds"])
        tr = [f"ds_read_b64_tr_b16 {a(4*f+2*uu,2)}, v{TA+(f==4)} offset:{4*uu*160 + tile_col_imm(f)}" for f in range(5) for uu in range(2)]
        trs[P1] = ("pd", tr[:5]); trs[P1 + 1] = (None, tr[5:])
        for f in range(5):
            put(P1 + 2 + f // 3, "ps", [f"s_add_u32 s{sT0}, s{sPDST}, {f*1024}", f"buffer_store_dwordx4 {a(4*f,4)}, v{R.L16}, s[{SWS}:{SWS+3}], s{sT0} offen sc1"])
        put(PFL, "pf", [f"s_lshl_b32 s{sT0}, s{sG}, 5", f"s_add_u32 s{sT0}, s{sT0}, s{sM}", f"s_lshl_b32 s{sT0}, s{sT0}, 2", f"s_add_u32 s{sT0}, s{sT0}, {hex(PFLAG)}",
                        f"s_cmp_eq_u32 s{sWAVE}, 0", f"s_cselect_b32 s{sT0}, s{sT0}, {hex(WS_SIZE)}", "s_mov_b64 exec, 1",
                        f"buffer_store_dword v{R.K2+1}, v{R.TCH+1}, s[{SWS}:{SWS+3}], s{sT0} offen sc1", "s_mov_b64 exec, -1"])
        pld = f"buffer_load_dwordx4 {v(8,4)}, v{R.L16}, s[{SWS}:{SWS+3}], s{sPSRC} offen sc1"
        put(PLD, "pl", [f"s_mov_b32 s{sPSRC}, {hex(PFLAG)}", f"s_cmp_eq_u32 s{sWAVE}, 0", f"s_cselect_b32 s{sPSRC}, s{sPSRC}, {hex(WS_SIZE)}", pld])
        for i, op in enumerate(gl): put(PFL + 2 + i * (PCK - PFL - 2) // 12, "pf", op)
        free = [t for t in range(PCK, 64) if t % 8 < cfg.get('pfm', 8) or t > 48]
        for i, op in enumerate(pf): put(PCK + i * (cfg.get("pfend", 60) - PCK) // 35, "pf", op)
    else:
        pf += gl
        free = [t for t in range(cfg.get('pf0', 2), 64) if t % 8 < cfg.get('pfm', 6) or t > 48]
        for i, op in enumerate(pf): put(free[i], "pf", op)
    put(0, "at", ["s_cmp_eq_u32 s%d, 0" % sWAVE, f"s_cselect_b32 s{sT0}, s{sFLAG}, {hex(WS_SIZE)}", "s_mov_b64 exec, 1",
                  f"buffer_atomic_add_x2 {v(R.XRES+8,2)}, v{R.TCH+1}, s[{SWS}:{SWS+3}], s{sT0} offen offset:512 sc1", "s_mov_b64 exec, -1"])
    put(12, "pf", [f"buffer_load_dwordx4 {v(R.XRES,4)}, v{R.XRES+6}, s[{SX}:{SX+3}], 0 offen"])
    put(16, "pf", [f"buffer_load_dwordx2 {v(R.XRES+4,2)}, v{R.XRES+7}, s[{SX}:{SX+3}], 0 offen"])
    put(cfg.get("xcc_ld", 10), "xcc", [f"buffer_load_dwordx2 {v(R.XRES+8,2)}, v{R.TCH+1}, s[{SWS}:{SWS+3}], s{sFLAG} offen offset:512 sc1"])
    misc[cfg.get('xcc_rd', 23)] = ("xcc", [f"v_readfirstlane_b32 s{sFAST-1}, v{R.XRES+8}" , f"v_readfirstlane_b32 s{sFAST}, v{R.XRES+9}"])
    gwarm = touch(15, sTMP, [f"s_lshr_b32 s{sT0}, s{sTO}, 3", f"s_lshl_b32 s{sT0}, s{sT0}, 2", f"s_add_u32 s{sT0}, s{sT0}, s{sLW}", f"s_mul_i32 s{sT0}, s{sT0}, {15*128}"])
    if cfg.get("gwarm_at", -1) >= 0: put(cfg.get("gwarm_at", -1), "pf", gwarm)
    wd01_touch = touch(20, SWS, [f"s_mul_i32 s{sT0}, s{sC}, 2560", f"s_add_u32 s{sT0}, s{sT0}, s{sWDSRC}"])
    wo_touch = touch(25, SWS, [f"s_lshr_b32 s{sT0}, s{sWAVE}, 2", f"s_lshl_b32 s{sT1}, s{sC}, 1", f"s_add_u32 s{sT0}, s{sT0}, s{sT1}",
                               f"s_mul_i32 s{sT0}, s{sT0}, 3200", f"s_add_u32 s{sT0}, s{sT0}, s{sWOSRC}"])
    gw2 = touch(6, sTMP, [f"s_lshr_b32 s{sT0}, s{sTO}, 3", f"s_lshl_b32 s{sT0}, s{sT0}, 2", f"s_add_u32 s{sT0}, s{sT0}, s{sLW}", f"s_mul_i32 s{sT0}, s{sT0}, {6*128}",
                          f"s_add_u32 s{sT0}, s{sT0}, {6*64*3072}"])
    def gwp(k, n):
        return touch(n, sTMP, [f"s_lshr_b32 s{sT0}, s{sTO}, 3", f"s_lshl_b32 s{sT0}, s{sT0}, 2", f"s_add_u32 s{sT0}, s{sT0}, s{sLW}", f"s_mul_i32 s{sT0}, s{sT0}, {n*128}",
                               f"s_add_u32 s{sT0}, s{sT0}, {k*n*1024*128}"])
    extra = {"p0": gwp(0, 5), "p1": gwp(1, 5), "p2": gwp(2, 5), "q0": gwp(0, 3), "q1": gwp(1, 3), "q2": gwp(2, 3), "q3": gwp(3, 3), "q4": gwp(4, 3), "wd01": wd01_touch, "wo": wo_touch, "gw2": gw2, "gw": gwarm}
    def wdt(k): return touch(20, SWS, [f"s_lshl_b32 s{sT0}, s{sM}, 3", f"s_add_u32 s{sT0}, s{sT0}, s{sWAVE}", f"s_mul_i32 s{sT0}, s{sT0}, {60*128}", f"s_add_u32 s{sT0}, s{sT0}, {WS_WD + k*20*128}"])
    extra.update({"d0": wdt(0), "d1": wdt(1), "d2": wdt(2)})
    wd_touch = None
    for t, op in cfg_touch_plan(cfg, gu_touch, out_touch, wd_touch, extra): put(t, "pf", op)
    HIDT = None
    if cfg.get("tlb", 0) & 2:
        put(20, "pf", ["s_mov_b64 exec, 1", f"buffer_load_dword v{JUNK}, v{R.XRES+6}, s[{SO}:{SO+3}], 0 offen", "s_mov_b64 exec, -1"])
    if cfg.get("ctouch", 1):
        for t in cfg.get("ct_at", [1, 52]):
            put(t, "pf", ["s_mov_b64 exec, 3", f"global_load_dword v{JUNK}, v{R.GV+3}, s[88:89]", "s_mov_b64 exec, -1"])

    if MG:
        A(f"s_lshr_b32 s{sT0}, s{sHD}, 1")
        A(f"s_mul_i32 s{sT0}, s{sT0}, 5")
        A(f"s_and_b32 s{sT1}, s{sHD}, 1")
        A(f"s_lshl_b32 s{sT1}, s{sT1}, 1")
        A(f"s_add_u32 s{sT0}, s{sT0}, s{sT1}")
        A(f"s_add_u32 s{sT1}, s{sT0}, 2")
        A(f"s_lshr_b32 s{sT0}, s{sT0}, 4")
        A(f"s_lshr_b32 s{sT1}, s{sT1}, 4")
        G32 = cfg.get("g32", 1)
        if G32:
            A(f"v_mov_b32 v{X+1}, s{sT0}")
            A(f"v_mov_b32 v{X+2}, s{sT1}")
            A(f"v_and_b32 v{X+3}, 16, v0")
            A(f"v_cmp_eq_u32 vcc, 0, v{X+3}")
            A(f"v_cndmask_b32 v{X}, v{X+2}, v{X+1}, vcc")
            A(f"v_lshrrev_b32 v{X+3}, 5, v0")
            A(f"v_mul_u32_u24 v{X+3}, 5, v{X+3}")
            A(f"v_add3_u32 v{X}, v{X}, v{X+3}, 5")
            A(f"v_and_b32 v{X+3}, 15, v0")
            A(f"v_lshl_add_u32 v{X}, v{X}, 4, v{X+3}")
            A(f"v_lshlrev_b32 v{X}, 7, v{X}")
            A(f"v_and_b32 v{X+3}, 2, v0")
            A(f"v_cmp_eq_u32 vcc, 0, v{X+3}")
            A(f"v_cndmask_b32 v{X+1}, v{X+2}, v{X+1}, vcc")
            A(f"s_lshr_b32 s{sT0}, s{sQT}, 3")
            A(f"s_lshl_b32 s{sT0}, s{sT0}, 1")
            A(f"v_and_b32 v{X+3}, 1, v0")
            A(f"v_add_u32 v{X+3}, s{sT0}, v{X+3}")
            A(f"v_lshl_add_u32 v{X+1}, v{X+1}, 4, v{X+3}")
            A(f"v_lshlrev_b32 v{X+1}, 7, v{X+1}")
            A("s_mov_b64 s[84:85], -1")
        else:
            A(f"s_lshl_b32 s{sT0}, s{sT0}, 2")
            A(f"s_lshl_b32 s{sT1}, s{sT1}, 2")
            A(f"s_lshl_b32 s{sT0}, 15, s{sT0}")
            A(f"s_lshl_b32 s{sT1}, 15, s{sT1}")
            A(f"s_or_b32 s56, s{sT0}, s{sT1}")
            A("s_mov_b32 s57, 0")
            A("s_lshl_b64 s[58:59], s[56:57], 20")
            A("s_or_b64 s[58:59], s[58:59], s[56:57]")
            A("s_lshl_b64 s[56:57], s[56:57], 40")
            A("s_or_b64 s[58:59], s[58:59], s[56:57]")
            A(f"v_lshrrev_b32 v{X}, 2, v0")
            A(f"v_and_b32 v{X+1}, 3, v0")
            A(f"v_lshlrev_b32 v{X}, 7, v{X}")
            A(f"v_lshl_add_u32 v{X}, v{X+1}, 4, v{X}")
            A("s_mov_b64 s[84:85], s[58:59]")
        A(f"s_cmp_lg_u32 s{sWAVE}, {GP}")
        A("s_cbranch_scc1 L_gs_done")
        A("s_mov_b64 exec, s[84:85]")
        A(f"s_mov_b32 s{sT1}, 0")
        A(f"s_mov_b32 s{sT0}, {hex(WS_GF)}")
        A.label("L_gs_poll")
        A(f"s_sleep {cfg.get('slg', 4)}")
        if G32:
            A(f"buffer_load_dword v{X+4}, v{X}, s[{SWS}:{SWS+3}], s{sT0} offen sc1")
            A(f"buffer_load_dword v{X+5}, v{X+1}, s[{SWS}:{SWS+3}], s{sT0} offen sc1")
        else:
            A(f"buffer_load_dwordx4 {v(X+4,4)}, v{X}, s[{SWS}:{SWS+3}], s{sT0} offen sc1")
        A(f"s_add_u32 s{sT1}, s{sT1}, 1")
        A("s_waitcnt vmcnt(0)")
        A(f"v_min_u32 v{X+4}, v{X+4}, v{X+5}")
        if not G32: A(f"v_min3_u32 v{X+4}, v{X+4}, v{X+6}, v{X+7}")
        A(f"v_cmp_eq_u32 vcc, 0, v{X+4}")
        A(f"s_cmp_lt_u32 s{sT1}, 0x40000")
        A("s_cselect_b64 vcc, vcc, 0")
        A("s_cbranch_vccnz L_gs_poll")
        A("s_mov_b64 exec, -1")
        A.label("L_gs_done")
        A("s_barrier")
        if cfg.get("gst") == 1: stamp(A, cfg, 0)
        first_loads()
    A(f"s_mov_b32 s94, {fhex(2.0**127)}")
    if PSP:
        A(f"s_cmp_lt_u32 s{sWAVE}, {PSP}")
        A("s_cbranch_scc1 L_p1")
        A("s_waitcnt vmcnt(0)")
        for op in kv_ops(0): emit(op)
        A.label("L_p1")
    A("s_waitcnt vmcnt(4)")
    A(f"v_mfma_f32_32x32x16_bf16 {v(S0,16)}, {v(R.K1,4)}, {v(R.Q1,4)}, 0")
    A(f"v_mfma_f32_32x32x8_bf16 {v(S0,16)}, {v(R.K2,2)}, {v(R.Q2,2)}, {v(S0,16)}")
    max16(A, R.P, S0, True)
    xhalf_max(A, R.P, R.P+1)
    set_shift(A, R.P)
    A(f"v_mfma_f32_32x32x16_bf16 {v(S0,16)}, {v(R.K1,4)}, {v(R.Q1,4)}, 0")
    A(f"v_mfma_f32_32x32x8_bf16 {v(S0,16)}, {v(R.K2,2)}, {v(R.Q2,2)}, {v(S0,16)}")
    def toff(t): return ((t // 8) % 3) * KV_SLOT + (t % 8) * 2560
    def tdelta(t): return 0
    if PSP:
        A(f"s_cmp_ge_u32 s{sWAVE}, {PSP}")
        A("s_nop 1")
        A("s_cbranch_scc1 L_p2")
    A("s_waitcnt vmcnt(0)")
    A.label("L_p2")
    A("s_barrier")
    vm += ["kv0"] * 4
    A(f"ds_read_b128 {v(R.K1,4)}, v{R.KA} offset:{toff(1)}")
    A(f"ds_read_b32 v{R.K2}, v{R.K2A} offset:{toff(1)}")
    A(f"s_mov_b64 exec, s[{sVMASK}:{sVMASK+1}]")
    A(f"ds_read_b128 {v(R.V1,4)}, v{R.VA}")
    A("s_mov_b64 exec, -1")
    stamp(A, cfg, 1)
    PRIO = cfg.get("prio", {6: 3, 2: 2, 4: 1, 5: 0})
    A("s_setprio 3")
    A.label("L_attn_code")
    def vwait(tag): A(f"s_waitcnt vmcnt({len(vm) - 1 - max(i for i, x in enumerate(vm) if x == tag)})")
    for t in range(64):
        cur, nxt = R.S[t % 2], R.S[(t + 1) % 2]
        def E(i): A(f"v_exp_f32 v{R.P+i-8 if SP_ and i >= 8 else cur+i}, v{cur+i}")
        def C(k):
            if not SP_: A(f"v_cvt_pk_bf16_f32 v{R.P+k}, v{cur+2*k}, v{cur+2*k+1}")
        ops_t = list(sched[t])
        def V():
            if ops_t:
                tag, op = ops_t.pop(0); emit(op); vm.append(tag)
        tr = []
        if t in trs: tr = list(trs[t][1])
        def L(n):
            for _ in range(n):
                if tr: A(tr.pop(0))
        if PSP and t == PSP - 2:
            vwait("kv0")
            A("s_barrier")
        if KP and t == PCK:
            A(f"s_cmp_lg_u32 s{sWAVE}, 0")
            A("s_cbranch_scc1 L_pck_done")
            vwait("pl")
            A(f"s_mov_b32 s{sT1}, 0")
            A.label("L_pck")
            A("v_min_u32 v8, v8, v9")
            A("v_min3_u32 v8, v8, v10, v11")
            A("v_cmp_eq_u32 vcc, 0, v8")
            A(f"s_add_u32 s{sT1}, s{sT1}, 1")
            A(f"s_cmp_lt_u32 s{sT1}, 0x40000")
            A("s_cselect_b64 vcc, vcc, 0")
            A("s_cbranch_vccz L_pck_done")
            A("s_sleep 4")
            A(pld)
            A("s_waitcnt vmcnt(0)")
            A("s_branch L_pck")
            A.label("L_pck_done")
        if KP and t == PFL: vwait("ps")
        if t % 8 == 6 and t < 56:
            vwait(f"kv{t//8+1}")
            A("s_barrier")
        if cfg.get("ats") and t % 8 == 6: A(f"s_memtime s[{64+2*(t//8)}:{65+2*(t//8)}]")
        if t < 56 and t % 8 in PRIO: A(f"s_setprio {PRIO[t % 8]}")
        if t >= 56 and (t - 2) % 8 in PRIO and t > 56: A(f"s_setprio {PRIO[(t - 2) % 8]}")
        if t < 63:
            A(f"s_waitcnt lgkmcnt({2 if t else 1})")
            A(f"v_mfma_f32_32x32x16_bf16 {v(nxt,16)}, {v(R.K1,4)}, {v(R.Q1,4)}, 0")
        E(0); E(1); V(); E(2); C(0); E(3)
        A("s_waitcnt lgkmcnt(0)")
        if t: A(PV2)
        if t in trs and trs[t][0]: vwait(trs[t][0])
        if t in misc:
            vwait(misc[t][0])
            A(f"s_mov_b32 s{sT1}, s{sFAST-1}")
            emit(misc[t][1])
            A(f"s_lshr_b64 s[{sFAST-1}:{sFAST}], s[{sFAST-1}:{sFAST}], s{sXCC}")
            A(f"s_and_b32 s{sFAST}, s{sFAST-1}, 63")
            A(f"s_mov_b32 s{sFAST-1}, s{sT1}")
            A(f"s_cmp_eq_u32 s{sFAST}, 32")
            A(f"s_cselect_b32 s{sFAST}, {0 if cfg.get('noFast') else 1}, 0")
        L(2); E(4); C(1); L(2); E(5); V(); E(6); L(1); C(2); E(7)
        if t < 63: A(f"v_mfma_f32_32x32x8_bf16 {v(nxt,16)}, {v(R.K2,2)}, {v(R.Q2,2)}, {v(nxt,16)}")
        if t < 62:
            if tdelta(t + 2):
                A(f"v_add_u32 v{R.KA}, {tdelta(t+2)}, v{R.KA}")
                A(f"v_add_u32 v{R.K2A}, {tdelta(t+2)}, v{R.K2A}")
            A(f"ds_read_b128 {v(R.K1,4)}, v{R.KA} offset:{toff(t+2)}")
            A(f"ds_read_b32 v{R.K2}, v{R.K2A} offset:{toff(t+2)}")
        E(8); C(3); E(9); V(); E(10); C(4); E(11)
        if SP_: A(f"v_smfmac_f32_32x32x32_bf16 {v(R.O,16)}, {v(R.V1,4)}, {v(cur,8)}, v79")
        else: A(f"v_mfma_f32_32x32x16_bf16 {v(R.O,16)}, {v(R.V1,4)}, {v(R.P,4)}, {v(R.O,16) if t else 0}")
        A(f"s_mov_b64 exec, s[{sVMASK}:{sVMASK+1}]")
        A(f"ds_read_b128 {v(R.V2,4)}, v{R.VA} offset:{toff(t) + 640}")
        if t < 63:
            if tdelta(t + 1): A(f"v_add_u32 v{R.VA}, {tdelta(t+1)}, v{R.VA}")
            A(f"ds_read_b128 {v(R.V1,4)}, v{R.VA} offset:{toff(t+1)}")
        A("s_mov_b64 exec, -1")
        E(12); C(5); E(13); E(14); E(15); C(6); C(7)
        assert not ops_t and not tr
    A("s_waitcnt lgkmcnt(0)")
    A(PV2)
    A.label("L_post_attn")
    if cfg.get("ats"):
        for c in range(11): A(f"s_sub_u32 s{65+2*c}, s{64+2*c}, s63")
        A("v_mov_b32 v78, v0")
        A("v_mov_b32 v110, v2")
        A("v_mov_b32 v109, v3")
        stamp_flush(A, cfg, 13, 17, SWS, sWAVE, 0)
        A("s_mov_b64 exec, -1")
        A("v_mov_b32 v0, v78")
        A("v_mov_b32 v2, v110")
        A("v_mov_b32 v3, v109")
    A("s_setprio 0")
    stamp(A, cfg, 2)
    N = R.S[0]
    A(f"v_rcp_f32 v{T}, v{R.O+10}")
    A(f"v_max3_f32 v{T+1}, abs(v{R.O}), abs(v{R.O+1}), abs(v{R.O+2})")
    A(f"v_cmp_le_f32 vcc, s92, v{R.O+10}")
    A(f"v_cmp_ge_f32 s[{sTMP}:{sTMP+1}], s93, v{R.O+10}")
    for k in (3, 5, 7): A(f"v_max3_f32 v{T+1}, v{T+1}, abs(v{R.O+k}), abs(v{R.O+k+1})")
    A(f"v_max_f32_e64 v{T+1}, v{T+1}, abs(v{R.O+9})")
    A(f"s_and_b64 vcc, vcc, s[{sTMP}:{sTMP+1}]")
    A(f"v_cmp_ge_f32 s[{sTMP+2}:{sTMP+3}], s94, v{T+1}")
    def norm():
        for k in (8, 9, 0, 1, 2, 3, 4, 5, 6, 7): A(f"v_mul_f32 v{N+k}, v{T}, v{R.O+k}")
    norm()
    A(f"s_and_b64 vcc, vcc, s[{sTMP+2}:{sTMP+3}]")
    A(f"s_cmp_eq_u64 vcc, -1" if not cfg.get("force_slow") else "s_cmp_eq_u32 s2, -1")
    A("s_cbranch_scc0 L_attn_slow")
    A.label("L_attn_norm")
    A(f"v_cvt_pk_bf16_f32 v{N+10}, v{N+8}, v{N+9}")
    A(f"v_cvt_pk_bf16_f32 v{N+11}, v{N+8}, v{N+9}")
    for k in range(4): A(f"v_cvt_pk_bf16_f32 v{N+k}, v{N+2*k}, v{N+2*k+1}")
    A(f"v_permlane32_swap_b32 v{N+10}, v{N+11}")
    stores(A, [f"buffer_store_dwordx4 {v(N,4)}, v{T+6}, s[{SWS}:{SWS+3}], 0 offen",
               "s_mov_b32 exec_hi, 0",
               f"buffer_store_dwordx2 {v(N+10,2)}, v{T+7}, s[{SWS}:{SWS+3}], 0 offen",
               "s_mov_b32 exec_hi, -1"], data="O")
    A(f"v_and_b32 v{T+4}, 15, v0")
    A(f"v_lshrrev_b32 v{T+3}, 5, v0")
    A(f"v_lshlrev_b32 v{T+1}, 4, v{T+4}")
    A(f"v_lshl_add_u32 v{T+1}, v{T+3}, 8, v{T+1}")
    A(f"v_lshrrev_b32 v{T+5}, 4, v0")
    A(f"v_lshlrev_b32 v{T+5}, 8, v{T+5}")
    A(f"v_lshl_add_u32 v7, v{T+4}, 3, v{T+5}")
    A(f"v_add_u32 v7, 4096, v7")

    BF, ACC = 16, 56
    vHP, vHS, vPW, RA = 108, 109, 3, 5
    A(f"s_lshr_b32 s{sT2}, s{sWAVE}, 2")
    A(f"s_mul_i32 s{sT1}, s{sKQ}, {20*256}")
    A(f"s_add_u32 s{sT1}, s{sT1}, {hex(WS_O)}")
    A(f"s_add_u32 s{sB2}, s{sLW}, s{sTOK16}")
    A(f"s_xor_b32 s{sB}, s{sB2}, 1")
    A(f"s_mul_i32 s{sB}, s{sB}, {80*256}")
    A(f"s_add_u32 s{sB}, s{sB}, s{sT1}")
    A(f"s_mul_i32 s{sB2}, s{sB2}, {80*256}")
    A(f"s_add_u32 s{sB2}, s{sB2}, s{sT1}")
    A(f"s_xor_b32 s{sT0}, s{sLW}, 1")
    A(f"s_mul_i32 s{sT0}, s{sT0}, 5120")
    A(f"s_add_u32 s{sT0}, s{sT0}, {PART_BASE}")
    A(f"v_add_u32 v{vPW}, s{sT0}, v{R.L16}")
    A(f"s_mul_i32 s{sT0}, s{sLW}, 5120")
    A(f"s_add_u32 s{sT0}, s{sT0}, {PART_BASE}")
    A(f"v_add_u32 v6, s{sT0}, v{R.L16}")
    A(f"s_add_u32 s{sT0}, s{sLW}, s{sTOK16}")
    A(f"s_lshl_b32 s{sC}, s{sT0}, 11")
    A(f"s_mul_i32 s{sT0}, s{sT0}, {80*256}")
    A(f"s_mul_i32 s{sT1}, s{sFG}, 2560")
    A(f"s_add_u32 s{sT0}, s{sT0}, s{sT1}")
    A(f"s_add_u32 s{sT0}, s{sT0}, {hex(WS_H)}")
    A(f"v_add_u32 v{T+1}, 2048, v{T+1}")
    A(f"v_add_u32 v{vHS}, s{sT0}, v{T+1}")
    A(f"s_lshl_b32 s{sT1}, s{sT2}, 10")
    A(f"s_add_u32 s{sT0}, s{sT0}, s{sT1}")
    A(f"v_add_u32 v{vHP}, s{sT0}, v{R.L16}")
    A(f"s_lshl_b32 s{sT1}, s{sFG}, 1")
    A(f"s_add_u32 s{sT1}, s{sT1}, s{sT2}")
    A(f"s_lshl_b32 s{sT1}, s{sT1}, 7")
    A(f"s_add_u32 s{sC}, s{sC}, s{sT1}")
    A(f"s_add_u32 s{sC}, s{sC}, {hex(WS_ST2)}")
    reduce_addr(A, 3, PART_BASE, RA)
    sGT = sQT
    A(f"s_and_b32 s{sGT}, s{sTOK16}, -8")
    A(f"s_lshl_b32 s{sT0}, s{sLW}, 1")
    A(f"s_add_u32 s{sGT}, s{sGT}, s{sT0}")
    sHSRC, sHM0 = sKBASE, sVBASE
    A(f"s_mul_i32 s{sHSRC}, s{sGT}, {80*256}")
    A(f"s_add_u32 s{sHSRC}, s{sHSRC}, {hex(WS_H)}")
    A(f"s_lshl_b32 s{sHM0}, s{sLW}, 12")
    A(f"s_add_u32 s{sTO}, s{sHSRC}, {80*256}")
    A(f"s_lshl_b32 s{sT0}, s{sC0}, 11")
    A(f"s_add_u32 s{sHSRC}, s{sHSRC}, s{sT0}")
    VS = (T + 2, T + 3, T + 4, T + 5)
    for st in range(4):
        A(f"s_bfe_u32 s{sT0}, s{sFG}, {'0x20001' if WROT else '0x00001'}")
        A(f"s_xor_b32 s{sT0}, s{sT0}, {st}")
        A(f"s_lshl_b32 s{sT0}, s{sT0}, 10")
        A(f"v_add_u32 v{VS[st]}, s{sT0}, v{R.L16}")
    stamp(A, cfg, 3)
    M8 = 0x0101010101010101
    sync(A, 0, 0, False, 0, rb=[(M8, [f"buffer_load_dword v{JUNK}, v{T+6}, s[{SWS}:{SWS+3}], 0 offen"]),
                                (0x00010001, [f"buffer_load_dword v{JUNK}, v{T+7}, s[{SWS}:{SWS+3}], 0 offen"])])
    stamp(A, cfg, 4)
    def wo_load(q, BF=BF):
        i, st = divmod(q, 5)
        st = (st + 4) % 5
        if st < 4: A(f"buffer_load_dwordx4 {v(BF+20*i+4*st,4)}, v{VS[st]}, s[{SWS}:{SWS+3}], s{sB2 if i else sB} offen {cfg.get('wold', 'sc1')}")
        else:
            for e in range(2): A(f"buffer_load_dwordx2 {v(BF+20*i+16+2*e,2)}, v7, s[{SWS}:{SWS+3}], s{sB2 if i else sB} offen offset:{128*e} {cfg.get('wold', 'sc1')}")
        return [q] * (2 if st == 4 else 1)
    WL0 = cfg.get("wl0", 4)
    wq0 = []
    for q in range(WL0): wq0 += wo_load(q)
    if cfg.get("wts"): A("s_memtime s[72:73]")
    EW = cfg.get("ew", [4, 1, 0])
    FSUB = lambda f: 1 if f in (2, 3) else 0
    def wo_main(sub, ACC=ACC, BF=BF, vPW=vPW):
        keep = [f for f in range(5) if FSUB(f) == sub]
        order = [f for f in range(5) if f not in keep] + keep
        wq = list(wq0); nq = WL0
        for i in range(2):
            for st in range(5):
                A(f"s_waitcnt vmcnt({len(wq) - 1 - max(k for k, x in enumerate(wq) if x == 5*i+st)})")
                for _ in range(cfg.get("wlr", 1)):
                    if nq < 10: wq += wo_load(nq); nq += 1
                if cfg.get("wts") and (5 * i + st) in (0, 2, 4, 5, 7, 9): A(f"s_memtime s[{74+2*(0,2,4,5,7,9).index(5*i+st)}:{75+2*(0,2,4,5,7,9).index(5*i+st)}]")
                for f in order:
                    acc = v(ACC + 20 * i + 4 * f, 4)
                    sx = (st + 4) % 5
                    A(f"v_mfma_f32_16x16x32_bf16 {acc}, {a(20*sx+4*f,4)}, {v(BF+20*i+4*sx,4)}, {acc if st else 0}")
                if i == 1:
                    f = order[st]
                    A(f"ds_write_b128 v{vPW}, {v(ACC+4*f,4)} offset:{(1 if FSUB(f) == sub else 2)*20480 + f*1024}")
        for f in order:
            if f not in keep: A(f"ds_write_b128 v6, {v(ACC+20+4*f,4)} offset:{f*1024}")
        for op in (load_wd_ops(2) + load_wd_ops(3))[:EW[0]]: emit(op)
        stamp(A, cfg, 5)
        if cfg.get("wts"):
            for k in range(7): A(f"s_sub_u32 s{73+2*k}, s{72+2*k}, s69")
            A("s_sub_u32 s71, s71, s69")
            A("v_mov_b32 v110, v0")
            A("v_mov_b32 v1, v3")
            stamp_flush(A, cfg, 13, 17, SWS, sWAVE, cfg.get("tswave", 0))
            A("s_mov_b64 exec, -1")
            A("v_mov_b32 v0, v110")
            A("v_mov_b32 v3, v1")
        return [ACC + 20 + 4 * f for f in keep]
    D = 16
    TRA, VB, VST = 1, 2, 3
    G1, Gh, rho, c0, c1 = T+2, T+3, T+4, T+5, T+6
    def wo_tail(n):
        own = wo_main(3 - n)
        XF = 56
        A("s_waitcnt lgkmcnt(0)")
        A("s_barrier")
        def mid():
            for op in (load_wd_ops(2) + load_wd_ops(3))[EW[0]:EW[0]+EW[1]]: emit(op)
            for i in range(2 * n):
                A(f"v_lshlrev_b32 v{XF+2*i}, 16, v{R.XRES+i}")
                A(f"v_and_b32 v{XF+2*i+1}, 0xffff0000, v{R.XRES+i}")
            for i in range(2 * n): A(f"v_pk_add_f32 {v(own[i//2]+2*(i%2),2)}, {v(own[i//2]+2*(i%2),2)}, {v(XF+2*i,2)}")
            A(f"v_mov_b32 v{T+2}, 0x3f803f80")
            A(f"v_lshlrev_b32 v{T+3}, 3, v0")
        reduce_sum(A, 3, D, RA, n, own, mid)
        src = lambda i: own[i // 2] + 2 * (i % 2)
        for i in range(4): A(f"v_cvt_pk_bf16_f32 v{D+i}, v{src(i)}, v{src(i)+1}")
        stores(A, [f"buffer_store_dwordx4 {v(D,4)}, v{vHP}, s[{SWS}:{SWS+3}], 0 offen"])
        if n == 3:
            E = D + 12
            for i in range(4): A(f"v_cvt_pk_bf16_f32 v{E+i}, v{src(4+i%2)}, v{src(4+i%2)+1}")
            for i in (4, 5): A(f"v_cvt_pk_bf16_f32 v{D+i}, v{src(i)}, v{src(i)+1}")
            A(f"v_permlane16_swap_b32 v{E}, v{E+2}")
            A(f"v_permlane16_swap_b32 v{E+1}, v{E+3}")
            stores(A, ["s_mov_b32 exec_lo, 0xffff", "s_mov_b32 exec_hi, 0xffff",
                       f"buffer_store_dwordx4 {v(E,4)}, v{vHS}, s[{SWS}:{SWS+3}], 0 offen", "s_mov_b64 exec, -1"])
        sm, sq = D + 8, D + 9
        for i in range(2 * n):
            A(f"v_dot2_f32_bf16 v{sm}, v{D+i}, v{T+2}, {'v%d' % sm if i else 0}")
            A(f"v_dot2_f32_bf16 v{sq}, v{D+i}, v{D+i}, {'v%d' % sq if i else 0}")
        for i in range(3): A(f"v_accvgpr_write_b32 a{A_RES(i)}, v{D+i}")
        for op in ("v_permlane16_swap_b32", "v_permlane32_swap_b32"):
            A(f"v_mov_b32 v{T}, v{sm}")
            A(f"v_mov_b32 v{T+1}, v{sq}")
            A(f"{op} v{sm}, v{T}")
            A(f"{op} v{sq}, v{T+1}")
            A(f"v_pk_add_f32 {v(sm,2)}, {v(sm,2)}, {v(T,2)}")
        A("s_mov_b64 exec, 0xffff")
        stores(A, [f"buffer_store_dwordx2 {v(sm,2)}, v{T+3}, s[{SWS}:{SWS+3}], s{sC} offen"])
        A("s_mov_b64 exec, -1")
        for op in (load_wd_ops(2) + load_wd_ops(3))[EW[0]+EW[1]:sum(EW)]: emit(op)
        for i in range(3, 2 * n): A(f"v_accvgpr_write_b32 a{A_RES(i)}, v{D+i}")
        A(f"v_bfe_u32 v{G1}, v0, 4, 1")
        A(f"v_lshrrev_b32 v{Gh}, 5, v0")
    def h_dma_ops(c):
        return [[f"s_add_u32 m0, s{sHM0}, {H_BASE + (c%NHS)*16384 + k*1024}", f"s_add_u32 s{sT0}, s{sHSRC}, {(k//2)*80*256 + (k%2)*1024}",
                 f"buffer_load_dwordx4 v{R.L16}, s[{SWS}:{SWS+3}], s{sT0} offen sc1 lds"] +
                ([f"s_add_u32 s{sHSRC}, s{sHSRC}, 2048", f"s_cmp_eq_u32 s{sHSRC}, s{sTO}", f"s_cselect_b32 s{sT0}, {80*256}, 0",
                  f"s_sub_u32 s{sHSRC}, s{sHSRC}, s{sT0}"] if k == 3 else []) for k in range(4)]
    A(f"s_cmp_ge_u32 s{sWAVE}, 4")
    A("s_cbranch_scc1 L_gu_loader")
    wo_tail(3)

    L_CF = GU_MISC
    L_MB = GU_MISC + 3072
    L_RS = GU_MISC + 4096
    L_ZERO = GU_MISC + 4608
    ACC = 16
    HF, WF, ONE = 0, 32, 48
    CS = lambda j: 52 if j == 0 else 56 + 4 * j
    TR = (1, 2, 3)
    TRX, VB, VST = (5, 6, 7), T + 4, T + 6
    sTH, sFH = sKSRC, sVSRC
    A(f"s_and_b32 s{sTH}, s{sWAVE}, 1")
    A(f"s_lshr_b32 s{sFH}, s{sWAVE}, 1")
    A(f"v_lshrrev_b32 v{T}, 4, v0")
    A(f"v_bfe_u32 v{T+1}, v0, 2, 2")
    A(f"v_lshl_add_u32 v{T}, v{T}, 3, v{T+1}")
    A(f"v_mul_u32_u24 v{T}, 192, v{T}")
    A(f"v_and_b32 v{T+1}, 3, v0")
    A(f"v_lshl_add_u32 v{T}, v{T+1}, 3, v{T}")
    A(f"s_mul_i32 s{sT1}, s{sTH}, {32*192}")
    for jt in range(3):
        A(f"s_mul_i32 s{sT0}, s{sFH}, 3")
        A(f"s_add_u32 s{sT0}, s{sT0}, {jt}")
        A(f"v_xor_b32 v{T+1}, s{sT0}, v{G1}")
        A(f"v_lshl_add_u32 v{T+1}, v{T+1}, 5, v{T}")
        A(f"v_add_u32 v{TR[jt]}, s{sT1}, v{T+1}")
        A(f"v_subrev_u32 v{TRX[jt]}, s{sT1}, v{T+1}")
    A(f"v_mov_b32 v{T}, 0x3f803f80")
    for i in range(4): A(f"v_accvgpr_write_b32 a{ONE+i}, v{T}")
    A(f"s_mul_i32 s{sT0}, s{sTH}, {8192 + 1024}")
    A(f"s_add_u32 s{sT0}, s{sT0}, {H_BASE}")
    A(f"v_add_u32 v{VB}, s{sT0}, v{R.L16}")
    A(f"s_mul_i32 s{sT0}, s{sTH}, {8192 - 1024}")
    A(f"s_add_u32 s{sT0}, s{sT0}, {H_BASE}")
    A(f"v_add_u32 v{VB+1}, s{sT0}, v{R.L16}")
    A(f"v_and_b32 v{T}, 15, v0")
    A(f"v_lshlrev_b32 v{T}, 4, v{T}")
    A(f"v_lshl_add_u32 v{T}, v{Gh}, 8, v{T}")
    A(f"v_lshl_add_u32 v{VST}, v{G1}, 9, v{T}")
    A(f"v_mul_u32_u24 v{T+1}, {192*256}, v{G1}")
    A(f"v_add3_u32 v{VST+1}, v{T}, v{T+1}, 0")
    lq = []
    def wread(n, us=(0, 1)):
        st, j = divmod(n, 6)
        kb = st % 2
        for u in us:
            A(f"ds_read_b64_tr_b16 {a(WF+4*(n%4)+2*u,2)}, v{(TRX if kb else TR)[j//2]} offset:{(32*kb+4*u)*192 + (j%2)*GU_UP}"); lq.append(("W", n))
    def hread(st, i):
        c, kb = divmod(st, 2)
        A(f"ds_read_b128 {a(HF+16*(st%2)+4*i,4)}, v{VB+kb} offset:{(c%NHS)*16384 + i*2048 + kb*1024}"); lq.append(("H", st, i))
    for n in range(3): wread(n)
    stamp(A, cfg, 6)
    sync(A, 1, 0, True, EW[2], rb=[(M8, [f"buffer_load_dword v{T+2}, v{vHP}, s[{SWS}:{SWS+3}], 0 offen"]),
                               (0x0000010100000101, [f"buffer_load_dword v{T+2}, v{vHS}, s[{SWS}:{SWS+3}], 0 offen"])])
    stamp(A, cfg, 7)
    if cfg.get("gts"): A("s_mov_b32 s90, s75")
    for op in h_dma_ops(0)[:2]: emit(op)
    A("s_waitcnt vmcnt(0)")
    A("s_barrier")
    for i in range(4): hread(0, i)
    wd3 = (load_wd_ops(2) + load_wd_ops(3))[sum(EW):]
    assert sum(EW) == 5
    def lwait(tags): A(f"s_waitcnt lgkmcnt({min(15, len(lq) - 1 - max(i for i, x in enumerate(lq) if x in tags))})")
    CFA, MBA = HF, HF + 12
    valu = []
    LATE = cfg.get('wlate', 1)
    for st in range(20):
        c, kb = divmod(st, 2)
        for j in range(6):
            n = 6 * st + j
            bar = kb == 1 and j == 3 and st < 19
            if bar:
                if LATE: lwait([("W", n)])
                else: A("s_waitcnt lgkmcnt(0)")
                if cfg.get("gts") == 2: A(f"s_memtime s[{60+2*c}:{61+2*c}]")
                A("s_barrier")
                if cfg.get("gts") == 1: A(f"s_memtime s[{60+2*c}:{61+2*c}]")
                d = GU_SLOT if (c + 1) % NWS else -(NWS - 1) * GU_SLOT
                for r in TR: A(f"v_add_u32 v{r}, {d & 0xffffffff}, v{r}")
            elif LATE or not (kb == 1 and j > 3 and st < 19):
                lwait([("W", n)] + ([("H", st, 3)] if j == 0 else []))
            if kb == 0 and j == 0 and st:
                d = GU_SLOT if c % NWS else -(NWS - 1) * GU_SLOT
                for r in TRX: A(f"v_add_u32 v{r}, {d & 0xffffffff}, v{r}")
            ex = []
            if n + 3 < 120: ex += [lambda n=n: wread(n + 3, (0,)), lambda n=n: wread(n + 3, (1,))]
            if st < 19:
                hs = {0: {1: (0,), 2: (1,), 3: (2,), 4: (3,)}, 1: {3: (0, 1), 4: (2, 3)}}[kb].get(j, ())
                for i in hs: ex.append(lambda i=i: hread(st + 1, i))
            if st == 19 and j == 0:
                for jj in range(6):
                    x = T + 2 * (jj % 2); y = T + 4
                    valu += [f"v_accvgpr_read_b32 v{y}, a{CS(jj)}", f"v_cvt_pk_bf16_f32 v{x+1}, v{y}, v{y}", f"v_and_b32 v{x+1}, 0xffff0000, v{x+1}",
                             f"v_sub_f32 v{y}, v{y}, v{x+1}", f"v_cvt_pk_bf16_f32 v{x}, v{x+1}, v{y}", f"v_lshrrev_b32 v{x+1}, 16, v{x+1}",
                             f"ds_write_b64 v{TR[0]}, {v(x,2)} offset:{256*jj}"]
            if st == 19 and j == 5:
                assert not valu
                A("s_waitcnt lgkmcnt(0)")
                A("s_barrier")
                valu = [f"ds_read_b64 {v(6,2)}, v{TR[2]}"] + [f"ds_read_b64 {a(CFA+2*k,2)}, v{TR[1]} offset:{256*k}" for k in range(6)] + \
                       [f"ds_read_b64 {v((6, T, T+2, T+4)[i],2)}, v{TR[2]} offset:{128*i}" for i in range(1, 4)]
            wf = a(WF + 4 * (n % 4), 4)
            if kb == 0 and not cfg.get("gu_nocs"):
                A(f"v_mfma_f32_16x16x32_bf16 {a(CS(j),4)}, {a(ONE,4)}, {wf}, {a(CS(j),4) if st else 0}")
                if ex: ex.pop(0)()
            for i in range(4):
                acc = v(ACC + 24 * i + 4 * j, 4)
                A(f"v_mfma_f32_16x16x32_bf16 {acc}, {wf}, {a(HF+16*(st%2)+4*i,4)}, {acc if st else 0}")
                k = 3
                if ex: ex.pop(0)(); k = 1
                for _ in range(k):
                    if valu:
                        x = valu.pop(0); A(x)
                        if x.startswith("ds_"): lq.append("x")
            assert not ex
        if st == 18:
            A(f"s_mul_i32 s{sT0}, s{sFH}, 1536")
            A(f"s_add_u32 s{sT0}, s{sT0}, {L_CF}")
            A(f"v_and_b32 v{TR[1]}, 31, v0")
            A(f"v_lshlrev_b32 v{TR[1]}, 3, v{TR[1]}")
            A(f"v_add_u32 v{TR[1]}, s{sT0}, v{TR[1]}")
            A(f"s_lshl_b32 s{sT1}, s{sTH}, 7")
            A(f"s_add_u32 s{sT0}, s{sT0}, s{sT1}")
            A(f"v_and_b32 v{TR[2]}, 15, v0")
            A(f"v_lshlrev_b32 v{TR[2]}, 3, v{TR[2]}")
            A(f"v_add_u32 v{TR[0]}, s{sT0}, v{TR[2]}")
            A(f"s_lshl_b32 s{sT0}, s{sTH}, 9")
            A(f"s_add_u32 s{sT0}, s{sT0}, {L_MB}")
            A(f"v_add_u32 v{TR[2]}, s{sT0}, v{TR[2]}")
            A("s_mov_b32 exec_lo, 0")
            A(f"v_mov_b32 v{TR[2]}, {L_ZERO}")
            A("s_mov_b32 exec_lo, -1")
    MBR = (6, T, T + 2, T + 4)
    assert not valu
    def corr(i): return [f"v_mfma_f32_16x16x16_bf16 {v(ACC+24*i+4*j,4)}, {a(CFA+2*j,2)}, {v(MBR[i],2)}, {v(ACC+24*i+4*j,4)}" for j in range(6)]
    if cfg.get("gts"):
        A("s_waitcnt lgkmcnt(0)")
        for c in range(9): A(f"s_sub_u32 s{(91,92,93,94,95,96,86,88,89)[c]}, s{60+2*c}, s90")
    stamp(A, cfg, 8)
    A(f"s_and_b32 s{sB}, s{sTOK16}, -8")
    A(f"s_lshl_b32 s{sT0}, s{sTH}, 2")
    A(f"s_add_u32 s{sB}, s{sB}, s{sT0}")
    A(f"s_mul_i32 s{sB}, s{sB}, {192*256}")
    A(f"s_mul_i32 s{sT0}, s{sJ}, {12*256}")
    A(f"s_add_u32 s{sB}, s{sB}, s{sT0}")
    A(f"s_mul_i32 s{sT0}, s{sFH}, {6*256}")
    A(f"s_add_u32 s{sB}, s{sB}, s{sT0}")
    A(f"s_add_u32 s{sB}, s{sB}, {hex(WS_HID)}")
    A("s_waitcnt lgkmcnt(3)")
    for x in corr(0): A(x)
    A("s_waitcnt lgkmcnt(0)")
    def gu_epi(sc):
        for i in range(4):
            r = ACC + 24 * i
            cm = corr(i + 1) if i < 3 else []
            L = []
            for jt in range(3):
                g = r + 8 * jt
                L += [f"v_max_f32 v{g+b}, 0, v{g+b}" for b in range(4)]
                if i < 3: L += [f"v_mul_f32 v{g+b}, v{g+b}, v{g+4+b}" for b in range(4)]
                else: L += [f"v_pk_mul_f32 {v(g+b,2)}, {v(g+b,2)}, {v(g+4+b,2)}" for b in (0, 2)]
            e = ACC + 48 * (i // 2) + 20
            L += [f"v_cvt_pk_bf16_f32 v{r}, v{r}, v{r+1}", f"v_cvt_pk_bf16_f32 v{r+1}, v{r+2}, v{r+3}",
                  f"v_cvt_pk_bf16_f32 v{r+2}, v{r+8}, v{r+9}", f"v_cvt_pk_bf16_f32 v{r+3}, v{r+10}, v{r+11}",
                  f"v_cvt_pk_bf16_f32 v{e+2*(i%2)}, v{r+16}, v{r+17}", f"v_cvt_pk_bf16_f32 v{e+2*(i%2)+1}, v{r+18}, v{r+19}",
                  f"v_permlane16_swap_b32 v{r}, v{r+2}", f"v_permlane16_swap_b32 v{r+1}, v{r+3}",
                  f"s_add_u32 s{sT2}, s{sB}, {i*192*256}",
                  f"buffer_store_dwordx4 {v(r,4)}, v{VST}, s[{SWS}:{SWS+3}], s{sT2} offen {sc}"]
            if i % 2:
                L += [f"v_permlane16_swap_b32 v{e}, v{e+2}", f"v_permlane16_swap_b32 v{e+1}, v{e+3}",
                      f"s_add_u32 s{sT2}, s{sB}, {(i-1)*192*256}",
                      f"buffer_store_dwordx4 {v(e,4)}, v{VST+1}, s[{SWS}:{SWS+3}], s{sT2} offen offset:1024 {sc}"]
            for k, x in enumerate(L):
                if k % 3 == 0 and cm: A(cm.pop(0))
                A(x)
    if cfg.get("wt", 2) & 2:
        gu_epi("sc1")
    else:
        A(f"s_cmp_lg_u32 s{sFAST}, 0")
        A("s_nop 4")
        A("s_cbranch_scc0 L_gu_epi_slow")
        gu_epi("")
    A.label("L_gu_epi_done")
    for op in wd3: emit(op)
    stamp(A, cfg, 9)
    A("s_branch L_gu_done")
    if not cfg.get("wt", 2) & 2:
        A.label("L_gu_epi_slow")
        gu_epi("sc1")
        A("s_branch L_gu_epi_done")

    A.label("L_gu_loader")
    WDL = cfg.get("wdl", "late")
    wo_tail(2)
    STV = 72
    A(f"v_and_b32 v3, 15, v0")
    A(f"v_lshlrev_b32 v3, 3, v3")
    A(f"v_lshl_add_u32 v3, v{G1}, 11, v3")
    A(f"v_lshl_add_u32 v3, v{Gh}, 10, v3")
    A(f"s_lshl_b32 s{sB}, s{sGT}, 11")
    A(f"s_add_u32 s{sB}, s{sB}, {hex(WS_ST2)}")
    A(f"s_waitcnt vmcnt({EW[2]})")
    readback(A, [(M8, [f"buffer_load_dword v7, v{vHP}, s[{SWS}:{SWS+3}], 0 offen"])])
    A("s_barrier")
    wdl = [op for stp in range(2, 8) for op in load_wd_ops(stp)][sum(EW):]
    WPL = cfg.get("wpl", [0,0,5,0,0,0,0,0,2,8,10,0])
    assert sum(WPL) == 30 - sum(EW)
    for _ in range(WPL[0]): emit(wdl.pop(0))

    A("s_barrier")
    ops = []
    for op in h_dma_ops(0)[2:] + h_dma_ops(1): emit(op)
    ops += [("h", 0)] * 2 + [("h", 1)] * 4
    if cfg.get("st_ld", 0) == -1:
        for i in range(8): A(f"buffer_load_dwordx2 {v(STV+2*i,2)}, v3, s[{SWS}:{SWS+3}], s{sB} offen offset:{128*i} sc1")
        ops += ["st"] * 8
    A(f"s_setprio {cfg.get('lprio', 0)}")
    for c in range(10):
        need = [("h", c)] + ([("w", c)] if c >= 4 else [])
        A(f"s_waitcnt vmcnt({len(ops) - 1 - max(i for i, o in enumerate(ops) if o in need)})")
        A("s_barrier")
        vops = []
        if c + 2 < 10:
            vops += h_dma_ops(c + 2); ops += [("h", c + 2)] * 4
        wn = c + 2 if LATE else c + 3
        if 4 <= wn < 10:
            vops += gu_dma_ops(wn); ops += [("w", wn)] * 6
        if c == cfg.get("st_ld", 0):
            vops += [[f"buffer_load_dwordx2 {v(STV+2*i,2)}, v3, s[{SWS}:{SWS+3}], s{sB} offen offset:{128*i} sc1"] for i in range(8)]
            ops += ["st"] * 8
        for _ in range(WPL[c + 1]):
            vops.append(wdl.pop(0)); ops.append("d")
        for op in vops:
            if cfg.get("noadv"): op = op[:3]
            if cfg.get("nowdl") and "a[" in op[-1] + op[1]: continue
            emit(op)
        if c == cfg.get('st_at', 8):
            A(f"s_waitcnt vmcnt({min(63, len(ops) - 1 - max(i for i, o in enumerate(ops) if o == 'st'))})")
            A(f"s_setprio {cfg.get('sprio', 3)}")
            for i in range(1, 8):
                A(f"v_add_f32 v{STV}, v{STV}, v{STV+2*i}")
                A(f"v_add_f32 v{STV+1}, v{STV+1}, v{STV+2*i+1}")
            for r in (STV, STV + 1):
                A(f"v_mov_b32 v{STV+2}, v{r}")
                A(f"v_permlane32_swap_b32 v{r}, v{STV+2}")
                A(f"v_add_f32 v{r}, v{r}, v{STV+2}")
            mean, rs = STV, STV + 1
            A(f"v_mul_f32 v{mean}, {fhex(1/640)}, v{mean}")
            A(f"v_mul_f32 v{rs}, {fhex(1/640)}, v{rs}")
            A(f"v_fma_f32 v{rs}, -v{mean}, v{mean}, v{rs}")
            A(f"v_max_f32 v{rs}, 0, v{rs}")
            A(f"v_add_f32 v{rs}, {fhex(1e-5)}, v{rs}")
            A(f"v_rcp_f32 v{rs}, v{rs}")
            A(f"v_cvt_pk_bf16_f32 v{STV+2}, -v{mean}, -v{mean}")
            A(f"v_and_b32 v{STV+3}, 0xffff0000, v{STV+2}")
            A(f"v_sub_f32 v{STV+3}, -v{mean}, v{STV+3}")
            A(f"v_cvt_pk_bf16_f32 v{STV+3}, v{STV+3}, 0")
            A(f"v_and_b32 v{STV+4}, 31, v0")
            A(f"s_lshl_b32 s{sT0}, s{sLW}, 5")
            A(f"v_add_u32 v{STV+4}, s{sT0}, v{STV+4}")
            A(f"v_lshlrev_b32 v{STV+5}, 3, v{STV+4}")
            A(f"v_lshlrev_b32 v{STV+4}, 2, v{STV+4}")
            A(f"v_add_u32 v{STV+5}, {L_MB}, v{STV+5}")
            A(f"v_add_u32 v{STV+4}, {L_RS}, v{STV+4}")
            A(f"ds_write_b64 v{STV+5}, {v(STV+2,2)}")
            A(f"ds_write_b32 v{STV+4}, v{rs}")
            A(f"v_mov_b32 v{STV+6}, 0")
            A(f"ds_write_b32 v{STV+4}, v{STV+6} offset:512")
            A("s_setprio 0")
        if c == cfg.get('st_at', 8): A("s_waitcnt lgkmcnt(0)")
    A("s_barrier")
    for op in wdl: emit(op)
    if cfg.get("wbl2", 0) & 1:
        A(f"s_add_u32 s{sT0}, s{sM}, s{sWAVE}")
        A(f"s_cmp_lg_u32 s{sT0}, 4")
        A("s_cbranch_scc1 L_nowb1")
        A("buffer_wbl2 sc1")
        A.label("L_nowb1")
    A("s_setprio 0")
    A.label("L_gu_done")

    NBD = cfg.get("nbd", 6)
    BF, ACC = 16, 72
    vXP, vXS, RA, vRS = 1, 2, 5, T + 7
    sBT = (sKSRC, sVSRC, sKBASE, sVBASE)
    vPW = (T + 2, T + 3, T + 4, None, T + 5, T + 6, T, T + 1)
    A(f"s_lshl_b32 s{sT1}, s{sWDRAW}, 10")
    A(f"s_add_u32 s{sT1}, s{sT1}, {hex(WS_HID)}")
    for k in range(4):
        A(f"s_xor_b32 s{sT0}, s{sLW}, {3-k}")
        A(f"s_add_u32 s{sBT[k]}, s{sT0}, s{sTOK16}")
        A(f"s_mul_i32 s{sBT[k]}, s{sBT[k]}, {192*256}")
        A(f"s_add_u32 s{sBT[k]}, s{sBT[k]}, s{sT1}")
        A(f"s_mul_i32 s{sT0}, s{sT0}, 5120")
        A(f"s_add_u32 s{sT0}, s{sT0}, {(6-k)*20480}")
        if k < 2:
            A(f"v_add_u32 v{vPW[4+k]}, s{sT0}, v{R.L16}")
            A(f"v_subrev_u32 v{vPW[k]}, {4*20480}, v{vPW[4+k]}")
        else:
            A(f"s_mov_b32 s{97+k-2}, s{sT0}")
    A(f"s_and_b32 s{sT0}, s{sTOK16}, 7")
    A(f"s_add_u32 s{sT0}, s{sT0}, s{sLW}")
    A(f"s_lshl_b32 s{sT0}, s{sT0}, 6")
    A(f"s_add_u32 s{sT0}, s{sT0}, {L_RS}")
    A(f"v_and_b32 v{vRS}, 15, v0")
    A(f"v_lshlrev_b32 v{vRS}, 2, v{vRS}")
    A(f"v_add_u32 v{vRS}, s{sT0}, v{vRS}")
    A(f"ds_read_b32 v{vRS}, v{vRS}")
    A(f"s_load_dwordx2 s[{SO}:{SO+1}], s[0:1], 56")
    addr_rowmajor(A, vXP, vXS, T)
    reduce_addr(A, 7, 0, RA)
    A("s_waitcnt lgkmcnt(0)")
    srd(A, SO, SO, X_BYTES)
    A(f"s_cmp_ge_u32 s{sWAVE}, 4")
    A("s_cbranch_scc1 L_dn_nw")
    A("s_waitcnt vmcnt(5)")
    A.label("L_dn_nw")
    sync(A, 2, cfg.get('p2', 0), True, 63)
    stamp(A, cfg, 10)
    BSL = lambda i: 16 + 4 * i if i < 6 else 60 + 4 * (i - 6)
    def dn_main(NS, NBD, sub):
        keep = [f for f in range(5) if FSUB(f) == sub]
        order = [f for f in range(5) if f not in keep] + keep
        def loadBd(q):
            k, st = divmod(q, NS)
            if st == 4: A(f"s_add_u32 s{sBT[k]}, s{sBT[k]}, 4096")
            A(f"buffer_load_dwordx4 {v(BSL(q%NBD),4)}, v{R.L16}, s[{SWS}:{SWS+3}], s{sBT[k]} offen offset:{(st%4)*1024} sc1")
        NI = min(NBD, cfg.get("nbi", 4))
        for q in range(NI): loadBd(q)
        issued = NI
        A(f"v_add_u32 v{vPW[6]}, s97, v{R.L16}")
        A(f"v_subrev_u32 v{vPW[2]}, {4*20480}, v{vPW[6]}")
        A(f"v_add_u32 v{vPW[7]}, s98, v{R.L16}")
        for q in range(NI, NBD): loadBd(q)
        issued = NBD
        pend = []
        for q in range(4 * NS):
            k, st = divmod(q, NS)
            A(f"s_waitcnt vmcnt({issued - 1 - q})")
            for f in order:
                acc = v(ACC + 20 * (k % 2) + 4 * f, 4)
                A(f"v_mfma_f32_16x16x32_bf16 {acc}, {WD(st, f)}, {v(BSL(q%NBD),4)}, {acc if st else 0}")
            if issued < 4 * NS:
                loadBd(issued); issued += 1
            for _ in range(2 if NS == 4 else 1):
                if pend: A(pend.pop(0))
            if st == NS - 1:
                assert not pend
                pend = [f"ds_write_b128 v{vPW[k if f in keep else 4+k]}, {v(ACC+20*(k%2)+4*f,4)} offset:{f*1024}" for f in order if k < 3 or f not in keep]
        for x in pend: A(x)
        stamp(A, cfg, 11)
        return [ACC + 20 + 4 * f for f in keep]
    def dn_tail(n, own):
        DD = 8
        A(f"v_mov_b32 v3, v{vRS}")
        A("s_waitcnt lgkmcnt(0)")
        A("s_barrier")
        reduce_sum(A, 7, DD, RA, n, own)
        for i in range(2 * n):
            r = own[i // 2] + 2 * (i % 2)
            A(f"v_accvgpr_read_b32 v{T+2}, a{A_RES(i)}")
            A(f"v_lshlrev_b32 v{T}, 16, v{T+2}")
            A(f"v_and_b32 v{T+1}, 0xffff0000, v{T+2}")
            A(f"v_fma_f32 v{r}, v{r}, v3, v{T}")
            A(f"v_fma_f32 v{r+1}, v{r+1}, v3, v{T+1}")
            A(f"v_cvt_pk_bf16_f32 v{D+i}, v{r}, v{r+1}")
            if i == 3: A(f"buffer_store_dwordx4 {v(D,4)}, v{vXP}, s[{SO}:{SO+3}], 0 offen {cfg.get('ost', '')}")
        if n == 3: A(f"buffer_store_dwordx2 {v(D+4,2)}, v{vXS}, s[{SO}:{SO+3}], 0 offen {cfg.get('ost', '')}")
    A(f"s_cmp_ge_u32 s{sWAVE}, 4")
    A("s_cbranch_scc1 L_dn_b")
    dn_tail(3, dn_main(4, cfg.get("nbd_c", 5), 0))
    A("s_branch L_dn_e")
    A.label("L_dn_b")
    A(f"s_setprio {cfg.get('dprio', 1)}")
    dn_tail(2, dn_main(8, cfg.get("nbd_l", 8), 1))
    A.label("L_dn_e")
    stamp(A, cfg, 12)
    if cfg.get("gts"):
        for c in range(9):
            A(f"s_mov_b32 s{60+2*c}, s{(91,92,93,94,95,96,86,88,89)[c]}")
            A(f"s_mov_b32 s{61+2*c}, s{(91,92,93,94,95,96,86,88,89)[c]}")
    stamp_flush(A, cfg, 13, 4, SWS, sWAVE, cfg.get('tswave', 0))
    if cfg.get("diag"):
        da, db = cfg["diag"]
        A("s_cmp_ge_u32 s2, 8" if cfg.get("fixed") else "s_cmp_lg_u32 s2, 16")
        A("s_cbranch_scc1 L_end")
        A(f"s_cmp_lg_u32 s{sWAVE}, 0")
        A("s_cbranch_scc1 L_end")
        if da == -1:
            A("v_mov_b32 v1, 0")
            A(f"s_mov_b32 s{sT0}, {hex(WS_TS)}")
            A(f"buffer_load_dword v2, v1, s[{SWS}:{SWS+3}], s{sT0} offen")
            A("s_waitcnt vmcnt(0)")
            A(f"v_readfirstlane_b32 s{sT0}, v2")
        else:
            A(f"s_mov_b32 s{sT0}, s{60+2*da}")
        if cfg.get("fixed"):
            A(f"s_add_u32 s{sT0}, s{sT0}, {cfg['fixed']}")
            if cfg.get("wb"):
                A("buffer_wbl2 sc1")
        else:
            A(f"s_sub_u32 s{sT0}, s{60+2*db}, s{sT0}")
            A(f"s_min_u32 s{sT0}, s{sT0}, 20000")
            A(f"s_lshl_b32 s{sT0}, s{sT0}, 2")
            A(f"s_add_u32 s{sT0}, s{sT0}, s{60+2*12}")
        A.label("L_spin")
        A("s_memrealtime s[56:57]")
        A("s_waitcnt lgkmcnt(0)")
        A(f"s_sub_u32 s{sT1}, s56, s{sT0}")
        A(f"s_cmp_lt_i32 s{sT1}, 0")
        A("s_cbranch_scc1 L_spin")
    A.label("L_end")
    A("s_endpgm")

    A.label("L_attn_slow")
    A(f"v_subrev_u32 v{R.VA}, {KV_BASE + 1280}, v{R.VA}")
    A(f"v_mov_b32 v{R.Q2+1}, 0")
    A(f"v_mov_b32 v{T}, 0xff800000")
    A(f"s_mov_b32 s{sT0}, s{sKBASE}")
    A(f"s_add_u32 s{sT1}, s{sKBASE}, {PAIR_STRIDE}")
    A.label("L_attn_slow1")
    A(f"buffer_load_dwordx4 {v(R.K1,4)}, v{R.F2S+1}, s[{SWS}:{SWS+3}], s{sT0} offen {KVF}")
    A(f"buffer_load_dword v{R.K2}, v{R.F2S}, s[{SWS}:{SWS+3}], s{sT0} offen {KVF}")
    A("s_waitcnt vmcnt(0)")
    A(f"v_mfma_f32_32x32x16_bf16 {v(S0,16)}, {v(R.K1,4)}, {v(R.Q1,4)}, 0")
    A(f"v_mfma_f32_32x32x8_bf16 {v(S0,16)}, {v(R.K2,2)}, {v(R.Q2,2)}, {v(S0,16)}")
    max16(A, T, S0, False)
    A(f"s_add_u32 s{sT0}, s{sT0}, 2560")
    A(f"s_cmp_lt_u32 s{sT0}, s{sT1}")
    A("s_cbranch_scc1 L_attn_slow1")
    xhalf_max(A, T, T+1)
    set_shift(A, T)
    for k in range(16): A(f"v_mov_b32 v{R.O+k}, 0")
    A(f"s_mov_b32 s{sT0}, s{sKBASE}")
    A(f"s_mov_b32 s{sT2}, s{sVBASE}")
    A.label("L_attn_slow2")
    A(f"buffer_load_dwordx4 {v(R.K1,4)}, v{R.F2S+1}, s[{SWS}:{SWS+3}], s{sT0} offen {KVF}")
    A(f"buffer_load_dword v{R.K2}, v{R.F2S}, s[{SWS}:{SWS+3}], s{sT0} offen {KVF}")
    A(f"s_mov_b64 exec, s[{sVMASK}:{sVMASK+1}]")
    A(f"buffer_load_dwordx4 {v(R.V1,4)}, v{R.VA}, s[{SWS}:{SWS+3}], s{sT2} offen {KVF}")
    A(f"buffer_load_dwordx4 {v(R.V2,4)}, v{R.VA}, s[{SWS}:{SWS+3}], s{sT2} offen offset:640 {KVF}")
    A("s_mov_b64 exec, -1")
    A("s_waitcnt vmcnt(0)")
    A(f"v_mfma_f32_32x32x16_bf16 {v(S0,16)}, {v(R.K1,4)}, {v(R.Q1,4)}, 0")
    A(f"v_mfma_f32_32x32x8_bf16 {v(S0,16)}, {v(R.K2,2)}, {v(R.Q2,2)}, {v(S0,16)}")
    for k in range(16): A(f"v_exp_f32 v{S0+k}, v{S0+k}")
    if SP_:
        A(f"v_smfmac_f32_32x32x32_bf16 {v(R.O,16)}, {v(R.V1,4)}, {v(S0,8)}, v79")
        A(f"v_smfmac_f32_32x32x32_bf16 {v(R.O,16)}, {v(R.V2,4)}, {v(S0+8,8)}, v79")
    else:
        for k in range(8): A(f"v_cvt_pk_bf16_f32 v{R.P+k}, v{S0+2*k}, v{S0+2*k+1}")
        A(f"v_mfma_f32_32x32x16_bf16 {v(R.O,16)}, {v(R.V1,4)}, {v(R.P,4)}, {v(R.O,16)}")
        A(f"v_mfma_f32_32x32x16_bf16 {v(R.O,16)}, {v(R.V2,4)}, {v(R.P+4,4)}, {v(R.O,16)}")
    A(f"s_add_u32 s{sT0}, s{sT0}, 2560")
    A(f"s_add_u32 s{sT2}, s{sT2}, 1280")
    A(f"s_cmp_lt_u32 s{sT0}, s{sT1}")
    A("s_nop 7")
    A("s_cbranch_scc1 L_attn_slow2")
    A(f"v_rcp_f32 v{T}, v{R.O+10}")
    norm()
    A("s_nop 1")
    A("s_branch L_attn_norm")
    A.label("L_code_end")
    if MG: return None
    return dict(name=name, grid=256, block=512, lds=163840, desc=kernel_desc(name, 256, NV, 102))
```

```python
from common import *

def gen_qkv(A, cfg):
    MG = cfg.get("merge", 1)
    name = "sequential_preLN__softmax_full_mha__glu_gated_reglu__prompt_kernel" if MG else "qkv_kernel"
    kstart(A, name)
    A.label("L_k1_start")
    SX, SW, SWS, SP, SD = 4, 8, 12, 36, 48
    sWAVE, sTB, sFG, sXO, sXLIM, sWO, sT0, sT1, sT2, sM0 = 16, 17, 18, 19, 20, 21, 22, 23, 24, 25
    sTILE, sBASE, sQS, sC0, sID = 26, 27, 28, 30, 31
    vTR = 4
    vT = 8
    SLOT = 32768
    CSL = SLOT
    STL = SLOT + 2048
    A("s_cmp_ge_u32 s2, 256")
    A("s_cbranch_scc1 L_qkv_end")
    A("s_load_dwordx4 s[4:7], s[0:1], 0")
    A("s_load_dwordx4 s[48:51], s[0:1], 64")
    A("s_load_dwordx2 s[32:33], s[0:1], 16")
    A("s_load_dwordx2 s[34:35], s[0:1], 48")
    stamp(A, cfg, 0)
    if cfg.get("diag"): A("s_memrealtime s[56:57]")
    A(f"v_lshrrev_b32 v{vT}, 6, v0")
    A(f"s_cmp_lt_u32 s2, 16")
    A(f"v_readfirstlane_b32 s{sWAVE}, v{vT}")
    A(f"v_readfirstlane_b32 s3, v{vT}")
    A("s_cbranch_scc1 L_qkv_helper")
    A(f"v_and_b32 v0, 63, v0")
    if cfg.get("lsw", 0): A(f"s_xor_b32 s{sWAVE}, s{sWAVE}, 4")
    A(f"s_sub_u32 s{sID}, s2, 16")
    A(f"s_and_b32 s{sT0}, s{sID}, 7")
    A(f"s_lshr_b32 s{sT1}, s{sID}, 3")
    A(f"s_lshr_b32 s{sT2}, s{sT0}, 2")
    A(f"s_mul_i32 s{sT2}, s{sT2}, 30")
    A(f"s_add_u32 s{sT1}, s{sT1}, s{sT2}")
    A(f"s_lshr_b32 s{sFG}, s{sT1}, 2")
    A(f"s_and_b32 s{sT1}, s{sT1}, 3")
    A(f"s_and_b32 s{sT2}, s{sT0}, 3")
    A(f"s_lshl_b32 s{sT2}, s{sT2}, 2")
    A(f"s_add_u32 s{sTB}, s{sT2}, s{sT1}")
    A(f"s_cmp_ge_u32 s{sWAVE}, 4")
    if cfg.get("ctouch", 2) == 2:
        A("s_cbranch_scc1 L_qkv_noct")
        code_touch_setup(A, 46, "L_k1_start", True)
        A(f"s_lshr_b32 s{sT1}, s{sID}, 3")
        A(f"s_lshl_b32 s{sT1}, s{sT1}, 2")
        A(f"s_add_u32 s{sT1}, s{sT1}, s{sWAVE}")
        A(f"s_lshl_b32 s{sT1}, s{sT1}, 7")
        A(f"v_mul_u32_u24 v{vT+1}, {120*128}, v0")
        A(f"v_add_u32 v{vT+1}, s{sT1}, v{vT+1}")
        A(f"v_min_u32 v{vT+1}, L_code_end-L_k1_start-4, v{vT+1}")
        A("s_mov_b64 exec, 31")
        A(f"global_load_dword v{vT+7}, v{vT+1}, s[46:47]")
        A("s_mov_b64 exec, -1")
        A("s_branch L_qkv_compute")
        A.label("L_qkv_noct")
        i_split = len(A.items)
        A.label("L_qkv_compute")
    elif cfg.get("lfirst", 1):
        A("s_cbranch_scc0 L_qkv_compute")
        i_split = len(A.items)
        A.label("L_qkv_compute")
    else:
        A("s_cbranch_scc1 L_qkv_loader")

    def rebase(c):
        def base(c): return ((c % 5) // 2) * 2 * SLOT
        return (base(c) - base(c - 1) if c else 0), (c % 5) * SLOT - base(c)

    STF = cfg.get("qkv_st", "sc1")
    HS = 1
    ACC, vBA, vADR, vSA, MB, RS = 16, 2, 80, 84, 88, 96
    FR, ONE, CSA = 0, 64, 68
    VO, PF, L16 = 16, 24, 2
    sU, sPSRC, sPDST, sPLDS = 40, 41, 42, 43
    def prep_setup():
        A(f"s_mul_i32 s{sU}, s{sWAVE}, 240")
        A(f"s_add_u32 s{sU}, s{sU}, s{sID}")
        A(f"v_lshlrev_b32 v{L16}, 4, v0")
        A(f"s_lshl_b32 s{sPLDS}, s{sWAVE}, 13")
        for jj in range(5):
            A(f"v_add_u32 v{vT}, {64*jj}, v0")
            A(f"v_mul_u32_u24 v{PF+jj}, 6554, v{vT}")
            A(f"v_lshrrev_b32 v{PF+jj}, 16, v{PF+jj}")
            A(f"v_mul_u32_u24 v{vT+1}, 10, v{PF+jj}")
            A(f"v_sub_u32 v{vT}, v{vT}, v{vT+1}")
            A(f"v_lshlrev_b32 v{VO+jj}, 4, v{vT}")
        A(f"s_cmp_ge_u32 s{sU}, 384")
        A("s_cbranch_scc1 L_qkv_pwo")
        srd(A, SP, 34, 1536 * 640 * 2)
        A(f"s_mul_i32 s{sT0}, s{sU}, 1366")
        A(f"s_lshr_b32 s{sT0}, s{sT0}, 16")
        A(f"s_mul_i32 s{sT1}, s{sT0}, 48")
        A(f"s_sub_u32 s{sT1}, s{sU}, s{sT1}")
        A(f"s_mul_i32 s{sPSRC}, s{sT1}, {32*1280}")
        A(f"s_mul_i32 s{sT0}, s{sT0}, 160")
        A(f"s_add_u32 s{sPSRC}, s{sPSRC}, s{sT0}")
        A(f"s_mul_i32 s{sPDST}, s{sU}, 5120")
        A(f"s_add_u32 s{sPDST}, s{sPDST}, {hex(WS_WD)}")
        A("s_branch L_qkv_pgo")
        A.label("L_qkv_pwo")
        srd(A, SP, 32, 640 * 640 * 2)
        A(f"s_sub_u32 s{sU}, s{sU}, 384")
        A(f"s_mul_i32 s{sT0}, s{sU}, 3277")
        A(f"s_lshr_b32 s{sT0}, s{sT0}, 16")
        A(f"s_mul_i32 s{sT1}, s{sT0}, 20")
        A(f"s_sub_u32 s{sT1}, s{sU}, s{sT1}")
        A(f"s_mul_i32 s{sPSRC}, s{sT0}, 160")
        A(f"s_mul_i32 s{sT0}, s{sT1}, 205")
        A(f"s_lshr_b32 s{sT0}, s{sT0}, 10")
        A(f"s_mul_i32 s{sT2}, s{sT0}, 5")
        A(f"s_sub_u32 s{sT1}, s{sT1}, s{sT2}")
        A(f"s_mul_i32 s{sT0}, s{sT0}, {160*1280}")
        A(f"s_add_u32 s{sPSRC}, s{sPSRC}, s{sT0}")
        A(f"s_mul_i32 s{sPDST}, s{sU}, 5120")
        A(f"s_add_u32 s{sPDST}, s{sPDST}, {hex(WS_WO)}")
        A(f"s_cmp_ge_u32 s{sU}, 160")
        A(f"s_cselect_b32 s{sPDST}, {hex(WS_SIZE)}, s{sPDST}")
        A(f"s_cselect_b32 s{SP+2}, 0, s{SP+2}")
        A(f"s_cmp_eq_u32 s{sT1}, 4")
        A("s_cbranch_scc1 L_qkv_pleft")
        A(f"s_mul_i32 s{sT1}, s{sT1}, {40*1280}")
        A(f"s_add_u32 s{sPSRC}, s{sPSRC}, s{sT1}")
        for jj in range(5):
            A(f"v_lshrrev_b32 v{vT}, 4, v{PF+jj}")
            A(f"v_lshl_add_u32 v{PF+jj}, v{vT}, 2, v{PF+jj}")
        A("s_branch L_qkv_pgo")
        A.label("L_qkv_pleft")
        for jj in range(5):
            k = PF + jj
            A(f"v_lshrrev_b32 v{vT}, 2, v{k}")
            A(f"v_lshl_add_u32 v{k}, v{vT}, 4, v{k}")
            A(f"v_add_u32 v{k}, 16, v{k}")
        A.label("L_qkv_pgo")
        for jj in range(5):
            A(f"v_mul_u32_u24 v{vT}, 1280, v{PF+jj}")
            A(f"v_add_u32 v{VO+jj}, v{VO+jj}, v{vT}")
        A(f"v_lshrrev_b32 v{vT}, 4, v0")
        A(f"v_bfe_u32 v{vT+1}, v0, 2, 2")
        A(f"v_lshl_add_u32 v{vT}, v{vT}, 3, v{vT+1}")
        A(f"v_mul_u32_u24 v{vT}, 160, v{vT}")
        A(f"v_add_u32 v{vT}, s{sPLDS}, v{vT}")
        A(f"v_and_b32 v{vT+1}, 3, v0")
        A(f"v_lshl_add_u32 v{VO+5}, v{vT+1}, 4, v{vT}")
        A(f"v_lshl_add_u32 v{VO+6}, v{vT+1}, 3, v{vT}")
    sJ0, sJ1 = 44, 45
    A(f"s_and_b32 s{sT0}, s{sWAVE}, 1")
    A(f"s_mov_b32 s{sJ0}, s{sWAVE}")
    A(f"s_xor_b32 s{sJ1}, s{sWAVE}, 1")
    A(f"s_lshl_b32 s{sTILE}, s{sTB}, 1")
    A(f"s_add_u32 s{sTILE}, s{sTILE}, s{sT0}")
    A(f"s_lshl_b32 s{sTILE}, s{sTILE}, 1")
    l15, g4, rho, t0, t1, t2 = vT, vT+1, vT+2, vT+3, vT+4, vT+5
    A(f"v_and_b32 v{l15}, 15, v0")
    A(f"v_lshrrev_b32 v{g4}, 4, v0")
    A(f"v_bfe_u32 v{rho}, v0, 2, 2")
    A(f"s_lshl_b32 s{sT1}, s{sT0}, 13")
    A(f"s_add_u32 s{sT1}, s{sT1}, 16384")
    A(f"v_bfe_u32 v{t0}, v0, 1, 3")
    A(f"v_xor_b32 v{t0}, v{t0}, v{g4}")
    A(f"v_lshlrev_b32 v{t1}, 7, v{l15}")
    A(f"v_lshl_add_u32 v{t1}, v{t0}, 4, v{t1}")
    A(f"v_add_u32 v{vBA}, s{sT1}, v{t1}")
    A(f"v_xor_b32 v{vBA+1}, 64, v{vBA}")
    A(f"v_lshl_add_u32 v{t0}, v{g4}, 3, v{rho}")
    A(f"v_lshlrev_b32 v{t0}, 8, v{t0}")
    A(f"v_bfe_u32 v{t1}, v0, 4, 1")
    A(f"v_lshl_add_u32 v{t0}, v{t1}, 5, v{t0}")
    A(f"v_and_b32 v{t1}, 3, v0")
    A(f"v_lshl_add_u32 v{t0}, v{t1}, 3, v{t0}")
    for jj in range(2):
        A(f"v_xor_b32 v{vTR+2*jj}, s{sJ0+jj}, v{rho}")
        A(f"v_lshl_add_u32 v{vTR+2*jj}, v{vTR+2*jj}, 6, v{t0}")
        A(f"v_xor_b32 v{vTR+2*jj+1}, 32, v{vTR+2*jj}")
    A(f"v_mov_b32 v{t0}, 0x3f803f80")
    for i in range(4): A(f"v_accvgpr_write_b32 a{ONE+i}, v{t0}")
    A(f"s_lshl_b32 s{sXO}, s{sTB}, 11")
    A(f"s_add_u32 s{sXO}, s{sXO}, {hex(WS_ST1)}")
    A(f"s_lshl_b32 s{sT0}, s{sT0}, 6")
    A(f"v_add_u32 v{t0}, s{sT0}, v{l15}")
    A(f"v_lshlrev_b32 v{vSA}, 3, v{t0}")
    A(f"v_cmp_gt_u32 vcc, 16, v0")
    A(f"v_mov_b32 v{t1}, 0x7f000000")
    A(f"v_cndmask_b32 v{vSA}, v{t1}, v{vSA}, vcc")
    A(f"v_lshlrev_b32 v{vSA+1}, 2, v{t0}")
    A(f"v_lshlrev_b32 v{t0}, 2, v{g4}")
    A(f"v_add_u32 v{t0}, s{sT0}, v{t0}")
    A(f"v_lshlrev_b32 v{vSA+2}, 2, v{t0}")
    if MG:
        A(f"v_lshlrev_b32 v{vSA+3}, 4, v{l15}")
        A(f"s_mov_b32 s{sXLIM}, 0")
    else:
        A(f"v_mov_b32 v{vSA+3}, 0")
        A(f"s_lshl_b32 s{sXLIM}, s{sTB}, 4")
    A("s_waitcnt lgkmcnt(0)")
    srd(A, SWS, 50, WS_SIZE)
    if cfg.get("diag"):
        A(f"s_cmp_eq_u32 s2, 16")
        A(f"s_mov_b32 s{sT0}, {hex(WS_TS)}")
        A(f"s_cselect_b32 s{sT0}, s{sT0}, {hex(WS_SIZE)}")
        A(f"v_mov_b32 v{t0}, s56")
        A(f"buffer_store_dword v{t0}, v{vSA+3}, s[{SWS}:{SWS+3}], s{sT0} offen")
    srd(A, SD, SD, 256)
    A(f"s_cmp_ge_u32 s{sFG}, 10")
    A("s_cbranch_scc1 L_qkv_V")

    def mainloop(isV):
        q = []
        def reads(st):
            c, kb = divmod(st, 2)
            _, so = rebase(c)
            b = FR + 32 * (st % 2)
            W = lambda j: [(f"ds_read_b64_tr_b16 {a(b+4*j+2*u,2)}, v{vTR+j} offset:{so + (32*kb+4*u)*256}", (st, f"W{j}")) for u in range(2)]
            X = lambda i: [(f"ds_read_b128 {a(b+16+4*i,4)}, v{vBA+kb} offset:{so + 2048*i}", (st, f"X{i}"))]
            return W(0) + X(0) + X(1) + X(2) + X(3) + W(1) + W(2) + W(3)
        def issue(r): A(r[0]); q.append(r[1])
        def wait(tag): A(f"s_waitcnt lgkmcnt({min(15, len(q) - 1 - max(i for i, x in enumerate(q) if x == tag))})")
        if cfg.get("lsw", 0): A("s_setprio 1")
        A("s_barrier")
        for r in reads(0): issue(r)
        stamp(A, cfg, 1)
        for st in range(20):
            nxt = st + 1 < 20
            if st % 2 == 1 and nxt:
                A("s_barrier")
                if cfg.get("qts"): A(f"s_memtime s[{70+2*(st//2)}:{71+2*(st//2)}]")
                d, _ = rebase((st + 1) // 2)
                if d:
                    for r in (vTR, vTR + 1, vTR + 2, vTR + 3, vBA, vBA + 1): A(f"v_add_u32 v{r}, {d & 0xffffffff}, v{r}")
            rs = reads(st + 1) if nxt else []
            b = FR + 32 * (st % 2)
            valu = []
            for j in range(4):
                if j == 0: wait((st, "W3" if st == 19 else "X3"))
                if j == 1 and st < 19: wait((st, "W3"))
                if st == 19 and j == 0:
                    for e in range(2): A(f"v_mfma_f32_16x16x32_bf16 {a(CSA+4*e,4)}, {a(ONE,4)}, {a(b+4*e,4)}, {a(CSA+4*e,4)}")
                    valu = [f"s_lshl_b32 s{sT0}, s{sJ0}, 10", f"s_lshl_b32 s{sT1}, s{sJ1}, 10", f"v_lshlrev_b32 v{vTR}, 4, v0",
                            f"v_add_u32 v{vTR+1}, s{sT1}, v{vTR}", f"v_add_u32 v{vTR}, s{sT0}, v{vTR}", "s_nop 0"]
                    for e in range(2):
                        cs, hi = vTR + 2, vTR + 3
                        valu += [f"v_accvgpr_read_b32 v{cs}, a{CSA+4*e}", f"v_cvt_pk_bf16_f32 v{hi}, v{cs}, v{cs}", f"v_and_b32 v{hi}, 0xffff0000, v{hi}",
                                 f"v_sub_f32 v{cs}, v{cs}, v{hi}", f"v_cvt_pk_bf16_f32 v{vT+2*e}, v{hi}, v{cs}", f"v_lshrrev_b32 v{vT+2*e+1}, 16, v{hi}"]
                    valu += [f"ds_write_b128 v{vTR}, {v(vT,4)} offset:{CSL}"]
                if st == 19 and j == 3:
                    assert not valu
                    A("s_waitcnt lgkmcnt(0)")
                    A("s_barrier")
                    A(f"ds_read_b128 {v(vT+4,4)}, v{vTR+1} offset:{CSL}")
                for i in range(4):
                    wf = a(b + 4 * j, 4); xf = a(b + 16 + 4 * i, 4); acc = v(ACC + 16 * i + 4 * j, 4); c = acc if st else "0"
                    if isV: A(f"v_mfma_f32_16x16x32_bf16 {acc}, {xf}, {wf}, {c}")
                    else:   A(f"v_mfma_f32_16x16x32_bf16 {acc}, {wf}, {xf}, {c}")
                    if rs: issue(rs.pop(0))
                    for _ in range(2):
                        if valu: A(valu.pop(0))
                if j >= 2 and st < 19: A(f"v_mfma_f32_16x16x32_bf16 {a(CSA+4*(j-2),4)}, {a(ONE,4)}, {a(b+4*(j-2),4)}, {a(CSA+4*(j-2),4) if st else 0}")
            if st == cfg.get("q_fl", 14):
                A(f"buffer_load_dword v{vT}, v{vSA+3}, s[{SD}:{SD+3}], s{sXLIM} offen sc1")
            if st == cfg.get("q_fc", 17):
                LP, LD = A.newlabel("qp"), A.newlabel("qd")
                A(f"s_mov_b32 s{sT1}, 0")
                A.label(LP)
                A("s_waitcnt vmcnt(0)")
                A(f"v_cmp_eq_u32 vcc, 0, v{vT}")
                A(f"s_add_u32 s{sT1}, s{sT1}, 1")
                A(f"s_cmp_lt_u32 s{sT1}, 0x40000")
                A(f"s_cselect_b64 vcc, vcc, 0")
                A(f"s_cbranch_vccz {LD}")
                A("s_sleep 4")
                A(f"buffer_load_dword v{vT}, v{vSA+3}, s[{SD}:{SD+3}], s{sXLIM} offen sc1")
                A(f"s_branch {LP}")
                A.label(LD)
                for i in range(4): A(f"buffer_load_dwordx2 {v(MB+2*i,2)}, v{vSA}, s[{SWS}:{SWS+3}], s{sXO} offen offset:{128*i} sc1")
                for i in range(4):
                    if isV: A(f"buffer_load_dwordx4 {v(RS+4*i,4)}, v{vSA+2}, s[{SWS}:{SWS+3}], s{sXO} offen offset:{1024 + 64*i} sc1")
                    else:   A(f"buffer_load_dword v{RS+2*i}, v{vSA+1}, s[{SWS}:{SWS+3}], s{sXO} offen offset:{1024 + 64*i} sc1")
        stamp(A, cfg, 2)

    def corr(isV, i, j):
        mb = v(MB + 2 * i, 2); cf = v(vT + 2 * j, 2); acc = v(ACC + 16 * i + 4 * j, 4)
        return f"v_mfma_f32_16x16x16_bf16 {acc}, {mb}, {cf}, {acc}" if isV else f"v_mfma_f32_16x16x16_bf16 {acc}, {cf}, {mb}, {acc}"
    def epilogue(isV, groups):
        A("s_waitcnt vmcnt(0) lgkmcnt(0)")
        for g in groups[:3]:
            for (i, j) in g[0]: A(corr(isV, i, j))
        pend = None
        for k, (tl, L, st) in enumerate(groups):
            cm = [corr(isV, i, j) for (i, j) in groups[k + 3][0]] if k + 3 < len(groups) else []
            for n, x in enumerate(L):
                if n % 5 == 0 and cm: A(cm.pop(0))
                if x is None:
                    if pend: A(pend)
                else: A(x)
            pend = st
        A(pend)

    A(f"s_cmp_ge_u32 s{sFG}, 5")
    A(f"s_cselect_b32 s{sT1}, 5, 0")
    A(f"s_cselect_b32 s{sBASE}, {hex(WS_K)}, {hex(WS_Q)}")
    A(f"s_cselect_b32 s{sQS}, 1.0, {fhex(QSCALE)}")
    A(f"s_sub_u32 s{sT1}, s{sFG}, s{sT1}")
    A(f"s_lshl_b32 s{sT1}, s{sT1}, 4")
    A(f"s_mul_i32 s{sT2}, s{sTILE}, 2560")
    A(f"s_add_u32 s{sBASE}, s{sBASE}, s{sT2}")
    A(f"v_bfe_u32 v{t2}, v0, 4, 1")
    A(f"v_lshrrev_b32 v{t0}, 5, v0")
    A(f"v_lshl_add_u32 v{t2}, v{t2}, 1, v{t0}")
    A(f"v_add_u32 v{t2}, s{sT1}, v{t2}")
    A(f"v_lshlrev_b32 v{l15}, 4, v{l15}")
    A(f"s_mov_b32 s{sT2}, {PAIR_STRIDE - 2560}")
    for jj in range(2):
        A(f"s_lshl_b32 s{sT0}, s{sJ0 + jj}, 2")
        A(f"v_add_u32 v{t0}, s{sT0}, v{t2}")
        A(f"v_mul_u32_u24 v{t1}, 205, v{t0}")
        A(f"v_lshrrev_b32 v{t1}, 10, v{t1}")
        A(f"v_mul_lo_u32 v{t1}, s{sT2}, v{t1}")
        A(f"v_lshl_add_u32 v{t0}, v{t0}, 9, v{l15}")
        A(f"v_add_u32 v{vADR+jj}, v{t0}, v{t1}")
    mainloop(False)
    groups = []
    for jj in range(2):
        for i in range(4):
            r = ACC + 16 * i + 8 * jj
            L = [f"v_mul_f32 v{RS+2*i}, s{sQS}, v{RS+2*i}", f"v_mov_b32 v{RS+2*i+1}, v{RS+2*i}"] if jj == 0 else []
            if len(groups) < 6: L += [f"v_mul_f32 v{r+b}, v{RS+2*i}, v{r+b}" for b in range(8)]
            else: L += [f"v_pk_mul_f32 {v(r+b,2)}, {v(r+b,2)}, {v(RS+2*i,2)}" for b in range(0, 8, 2)]
            L += [f"v_cvt_pk_bf16_f32 v{r+b}, v{r+2*b}, v{r+2*b+1}" for b in range(4)]
            L += [None, f"v_permlane16_swap_b32 v{r}, v{r+2}", f"v_permlane16_swap_b32 v{r+1}, v{r+3}"]
            groups.append(([(i, 2*jj), (i, 2*jj+1)], L,
                           f"buffer_store_dwordx4 {v(r,4)}, v{vADR+jj}, s[{SWS}:{SWS+3}], s{sBASE} offen offset:{2560*(i>>1) + 256*(i&1)} {STF}"))
    epilogue(False, groups)
    A("s_branch L_qkv_fin")

    A.label("L_qkv_V")
    A(f"s_mul_i32 s{sBASE}, s{sTILE}, 1280")
    A(f"s_add_u32 s{sBASE}, s{sBASE}, {hex(WS_V)}")
    A(f"s_sub_u32 s{sT1}, s{sFG}, 10")
    A(f"s_lshl_b32 s{sT1}, s{sT1}, 7")
    if cfg.get("sp", 1):
        A(f"v_bfe_u32 v{t2}, v0, 4, 1")
        A(f"v_lshrrev_b32 v{t0}, 5, v0")
        A(f"v_lshl_add_u32 v{t2}, v{t2}, 1, v{t0}")
        A(f"v_mul_u32_u24 v{t2}, 320, v{t2}")
    else:
        A(f"v_mul_u32_u24 v{t2}, 320, v{g4}")
    VSW = "v_permlane16_swap_b32" if cfg.get("sp", 1) else "v_permlane32_swap_b32"
    A(f"v_add_u32 v{l15}, s{sT1}, v{l15}")
    A(f"s_mov_b32 s{sT2}, {VHEAD_STRIDE - 320}")
    for j in range(4):
        A(f"s_lshl_b32 s{sT0}, s{sJ0 + j//2}, 5")
        A(f"s_add_u32 s{sT0}, s{sT0}, {16*(j%2)}")
        A(f"v_add_u32 v{t0}, s{sT0}, v{l15}")
        A(f"v_mul_u32_u24 v{t1}, 3277, v{t0}")
        A(f"v_lshrrev_b32 v{t1}, 16, v{t1}")
        A(f"v_mul_lo_u32 v{t1}, s{sT2}, v{t1}")
        A(f"v_lshl_add_u32 v{t0}, v{t0}, 4, v{t2}")
        A(f"v_add_u32 v{vADR+j}, v{t0}, v{t1}")
    mainloop(True)
    groups = []
    for j in range(4):
        for m in range(2):
            r0, r1 = ACC + 32 * m + 4 * j, ACC + 32 * m + 16 + 4 * j
            if len(groups) < 6:
                L = [f"v_mul_f32 v{r0+b}, v{RS+8*m+b}, v{r0+b}" for b in range(4)] + [f"v_mul_f32 v{r1+b}, v{RS+8*m+4+b}, v{r1+b}" for b in range(4)]
            else:
                L = [f"v_pk_mul_f32 {v(r0+b,2)}, {v(r0+b,2)}, {v(RS+8*m+b,2)}" for b in (0, 2)] + [f"v_pk_mul_f32 {v(r1+b,2)}, {v(r1+b,2)}, {v(RS+8*m+4+b,2)}" for b in (0, 2)]
            L += [f"v_cvt_pk_bf16_f32 v{r0}, v{r0}, v{r0+1}", f"v_cvt_pk_bf16_f32 v{r0+1}, v{r0+2}, v{r0+3}",
                  f"v_cvt_pk_bf16_f32 v{r0+2}, v{r1}, v{r1+1}", f"v_cvt_pk_bf16_f32 v{r0+3}, v{r1+2}, v{r1+3}",
                  None, f"{VSW} v{r0}, v{r0+2}", f"{VSW} v{r0+1}, v{r0+3}"]
            groups.append(([(2*m, j), (2*m+1, j)], L,
                           f"buffer_store_dwordx4 {v(r0,4)}, v{vADR+j}, s[{SWS}:{SWS+3}], s{sBASE} offen offset:{1280*m} {STF}"))
    epilogue(True, groups)
    A.label("L_qkv_fin")
    if cfg.get("endwait"): A("s_waitcnt vmcnt(0)")
    stamp(A, cfg, 3)
    if cfg.get("qts"):
        for c in range(9): A(f"s_mov_b32 s{71+2*c}, s{70+2*c}")
        A("s_mov_b32 s68, 0")
        A("s_mov_b32 s69, 0")
        stamp_flush(A, cfg, 14, 17, SWS, sWAVE, 0)
        A("s_mov_b64 exec, -1")
    if MG:
        if cfg.get("stamps"):
            A("v_mov_b32 v1, v0")
            stamp_flush(A, cfg, 4, 0, SWS, sWAVE, 0)
            A("s_mov_b64 exec, -1")
            A("v_mov_b32 v0, v1")
        G32 = cfg.get("g32", 1)
        A(f"s_lshl_b32 s94, s{sFG}, {11 if G32 else 7}")
        A(f"s_lshl_b32 s{sT0}, s{sTB}, {7 if G32 else 2}")
        A(f"s_add_u32 s94, s94, s{sT0}")
        A(f"s_add_u32 s94, s94, {hex(WS_GF)}")
        A("s_branch L_main")
    else:
        stamp_flush(A, cfg, 4, 0, SWS, sWAVE, 0)
        A("s_endpgm")

    i_l0 = len(A.items)
    A.label("L_qkv_loader")
    vWOFF, vXOFF = 4, 6
    sWLIM = 44
    if cfg.get("rot", 1):
        A(f"s_lshl_b32 s{sT0}, s{sT0}, 2")
        A(f"s_lshr_b32 s{sC0}, 0x30858530, s{sT0}")
        A(f"s_and_b32 s{sC0}, s{sC0}, 15")
        if cfg.get("rab", []):
            ra, rb = cfg.get("rab", [])
            A(f"s_and_b32 s{sT0}, s{sTB}, 3")
            A(f"s_mul_i32 s{sT0}, s{sT0}, {ra}")
            A(f"s_add_u32 s{sC0}, s{sC0}, s{sT0}")
            A(f"s_and_b32 s{sT0}, s{sFG}, {cfg.get('rmask', 1)}")
            A(f"s_mul_i32 s{sT0}, s{sT0}, {rb}")
            A(f"s_add_u32 s{sC0}, s{sC0}, s{sT0}")
            A(f"s_mul_i32 s{sT0}, s{sC0}, 6554")
            A(f"s_lshr_b32 s{sT0}, s{sT0}, 16")
            A(f"s_mul_i32 s{sT0}, s{sT0}, 10")
            A(f"s_sub_u32 s{sC0}, s{sC0}, s{sT0}")
    else:
        A(f"s_mov_b32 s{sC0}, 0")
    A(f"s_sub_u32 s{sWAVE}, s{sWAVE}, 4")
    A(f"v_and_b32 v{vT}, 15, v0")
    A(f"v_lshrrev_b32 v{vT+1}, 4, v0")
    A(f"v_lshlrev_b32 v{vT+2}, 2, v{vT+1}")
    A(f"v_xor_b32 v{vT+2}, v{vT+2}, v{vT}")
    A(f"v_mul_u32_u24 v{vWOFF}, 3840, v{vT+1}")
    A(f"v_lshl_add_u32 v{vWOFF}, v{vT+2}, 4, v{vWOFF}")
    A(f"v_xor_b32 v{vWOFF+1}, 32, v{vWOFF}")
    A(f"v_and_b32 v{vT}, 7, v0")
    A(f"v_xor_b32 v{vT}, v{vT}, v{vT+1}")
    A(f"v_lshrrev_b32 v{vT+2}, 3, v0")
    A(f"v_mul_u32_u24 v{vT+2}, 1280, v{vT+2}")
    A(f"v_lshl_add_u32 v{vXOFF}, v{vT}, 4, v{vT+2}")
    A(f"v_xor_b32 v{vXOFF+1}, 64, v{vXOFF}")
    A(f"s_lshl_b32 s{sWO}, s{sFG}, 8")
    A(f"s_mul_i32 s{sT0}, s{sWAVE}, {16*3840}")
    A(f"s_add_u32 s{sWO}, s{sWO}, s{sT0}")
    A(f"s_add_u32 s{sWLIM}, s{sWO}, {640*3840}")
    A(f"s_mul_i32 s{sT0}, s{sC0}, {64*3840}")
    A(f"s_add_u32 s{sWO}, s{sWO}, s{sT0}")
    A(f"s_lshl_b32 s{sXO}, s{sTB}, 2")
    A(f"s_add_u32 s{sXO}, s{sXO}, s{sWAVE}")
    A(f"s_mul_i32 s{sXO}, s{sXO}, {32*1280}")
    A(f"s_lshl_b32 s{sT0}, s{sC0}, 7")
    A(f"s_add_u32 s{sXO}, s{sXO}, s{sT0}")
    A(f"s_lshl_b32 s{sM0}, s{sWAVE}, 12")
    A("s_waitcnt lgkmcnt(0)")
    srd(A, SW, 6, 640 * 1920 * 2)
    srd(A, SX, SX, X_BYTES)
    def dma_ops(c):
        ops = []
        for j in range(4):
            ops.append([f"s_add_u32 m0, s{sM0}, {(c%5)*SLOT + j*1024}", f"s_add_u32 s{sT0}, s{sWO}, {4*j*3840}",
                        f"buffer_load_dwordx4 v{vWOFF+(j>>1)}, s[{SW}:{SW+3}], s{sT0} offen lds"])
            ops.append([f"s_add_u32 m0, s{sM0}, {(c%5)*SLOT + 16384 + j*1024}", f"s_add_u32 s{sT0}, s{sXO}, {8*j*1280}",
                        f"buffer_load_dwordx4 v{vXOFF+(j%2)}, s[{SX}:{SX+3}], s{sT0} offen lds"])
        ops[-1] += [f"s_add_u32 s{sWO}, s{sWO}, {64*3840}", f"s_add_u32 s{sXO}, s{sXO}, 128",
                    f"s_cmp_eq_u32 s{sWO}, s{sWLIM}", f"s_cselect_b32 s{sT0}, {640*3840}, 0", f"s_cselect_b32 s{sT1}, 1280, 0",
                    f"s_sub_u32 s{sWO}, s{sWO}, s{sT0}", f"s_sub_u32 s{sXO}, s{sXO}, s{sT1}"]
        return ops
    def emit(op):
        for x in op:
            if cfg.get("q_nodma") and x.startswith("buffer_"): continue
            A(x)
    IW = cfg.get("iw", 2)
    for c in range(IW):
        for op in dma_ops(c): emit(op)
    srd(A, SWS, 50, WS_SIZE)
    if not cfg.get("kprep", 1): prep_setup()
    ops = [("w", c) for c in range(IW) for _ in range(8)]
    nw = IW
    def wait_for(tag):
        last = max(i for i, o in enumerate(ops) if o == tag)
        A(f"s_waitcnt vmcnt({len(ops) - 1 - last})")
    for c in range(10):
        wait_for(("w", c))
        A("s_barrier")
        for k in range(2 if c in cfg.get("extra_at", []) else 1):
            if nw < 10 and nw <= max(c + 3, 4) and (nw != 4 or c >= 2 or not cfg.get('k1prep', 0)):
                for op in dma_ops(nw): emit(op)
                ops += [("w", nw)] * 8; nw += 1
        if c == cfg.get("prep_i", 7) and not cfg.get("kprep", 1):
            for jj in range(5):
                A(f"s_add_u32 m0, s{sPLDS}, {jj*1024}")
                A(f"buffer_load_dwordx4 v{VO+jj}, s[{SP}:{SP+3}], s{sPSRC} offen lds")
            ops += [("p", 0)] * 5
    if cfg.get("prep_late", 1): A("s_barrier")
    A("s_waitcnt vmcnt(0)")
    for f in range(0 if cfg.get("kprep", 1) else 5):
        for u in range(2):
            A(f"ds_read_b64_tr_b16 {v(PF+4*f+2*u,2)}, v{VO+5+(f==4)} offset:{4*u*160 + tile_col_imm(f)}")
    A("s_waitcnt lgkmcnt(0)")
    for f in range(0 if cfg.get("kprep", 1) else 5):
        A(f"s_add_u32 s{sT0}, s{sPDST}, {f*1024}")
        A(f"buffer_store_dwordx4 {v(PF+4*f,4)}, v{L16}, s[{SWS}:{SWS+3}], s{sT0} offen {STF}")
    if MG:
        A(f"s_mov_b32 s94, {hex(WS_SIZE)}")
        A("s_branch L_main")
    else:
        A("s_endpgm")

    if cfg.get("lfirst", 1):
        seg = A.items[i_l0:]
        del A.items[i_l0:]
        A.items[i_split:i_split] = seg
    A.label("L_qkv_helper")
    XD = 16
    if cfg.get("ctouch", 2) == 1:
        code_touch_setup(A, 46, "L_k1_start", True)
        A(f"v_lshlrev_b32 v{vT+1}, 7, v0")
        A(f"v_min_u32 v{vT+1}, L_code_end-L_k1_start-4, v{vT+1}")
        A(f"global_load_dword v{vT+7}, v{vT+1}, s[46:47]")
    A(f"v_and_b32 v0, 63, v0")
    if HS:
        A(f"s_and_b32 s{sTB}, s2, 3")
        A(f"s_lshl_b32 s{sTB}, s{sTB}, 2")
        A(f"s_bfe_u32 s{sT0}, s2, 0x10002")
        A(f"s_lshl_b32 s{sT0}, s{sT0}, 1")
        A(f"s_add_u32 s{sTB}, s{sTB}, s{sT0}")
        A(f"s_lshr_b32 s{sT0}, s2, 3")
        A(f"s_add_u32 s{sTB}, s{sTB}, s{sT0}")
        A(f"s_lshl_b32 s{sXO}, s{sTB}, 3")
        A(f"s_add_u32 s{sXO}, s{sXO}, s{sWAVE}")
        A(f"s_mul_i32 s{sXO}, s{sXO}, {16*1280}")
        A(f"s_add_u32 s{sXLIM}, s{sXO}, {8*1280}")
        A(f"v_lshrrev_b32 v2, 3, v0")
        A(f"v_and_b32 v3, 7, v0")
        A(f"v_mul_u32_u24 v1, 1280, v2")
        A(f"v_lshl_add_u32 v1, v3, 4, v1")
        A("s_waitcnt lgkmcnt(0)")
        srd(A, SX, SX, X_BYTES)
        for g in range(2):
            for k in range(10):
                A(f"buffer_load_dwordx4 {v(XD+40*g+4*k,4)}, v1, s[{SX}:{SX+3}], s{sXLIM if g else sXO} offen offset:{128*k}")
        srd(A, SWS, 50, WS_SIZE)
        srd(A, SD, SD, 256)
        A(f"v_mov_b32 v4, 0x3f803f80")
        A(f"s_lshl_b32 s{sT0}, s{sWAVE}, 4")
        A(f"v_add_u32 v2, s{sT0}, v2")
        A(f"v_lshlrev_b32 v5, 3, v2")
        A(f"v_lshlrev_b32 v6, 2, v2")
        A(f"s_lshl_b32 s{sBASE}, s{sTB}, 11")
        A(f"s_add_u32 s{sBASE}, s{sBASE}, {hex(WS_ST1)}")
        A(f"s_mov_b32 s{sT1}, 0x01010101")
        for g in range(2):
            sm, sq = vT, vT + 1
            for k in range(10):
                A(f"s_waitcnt vmcnt({19 - (10*g+k) + (2 if g else 0)})")
                for i in range(4):
                    r = XD + 40 * g + 4 * k + i
                    first = (k == 0 and i == 0)
                    A(f"v_dot2_f32_bf16 v{sm}, v{r}, v4, {0 if first else 'v%d' % sm}")
                    A(f"v_dot2_f32_bf16 v{sq}, v{r}, v{r}, {0 if first else 'v%d' % sq}")
            for dpp in ("quad_perm:[1,0,3,2]", "quad_perm:[2,3,0,1]", "row_half_mirror"):
                A(f"v_add_f32_dpp v{sm}, v{sm}, v{sm} {dpp} row_mask:0xf bank_mask:0xf")
                A(f"v_add_f32_dpp v{sq}, v{sq}, v{sq} {dpp} row_mask:0xf bank_mask:0xf")
            A(f"v_mul_f32 v{sm}, {fhex(1/640)}, v{sm}")
            A(f"v_mul_f32 v{sq}, {fhex(1/640)}, v{sq}")
            A(f"v_fma_f32 v{sq}, -v{sm}, v{sm}, v{sq}")
            A(f"v_max_f32 v{sq}, 0, v{sq}")
            A(f"v_add_f32 v{sq}, {fhex(1e-5)}, v{sq}")
            A(f"v_rsq_f32 v{vT+4}, v{sq}")
            A(f"v_cvt_pk_bf16_f32 v{vT+2}, -v{sm}, -v{sm}")
            A(f"v_and_b32 v{vT+3}, 0xffff0000, v{vT+2}")
            A(f"v_sub_f32 v{vT+3}, -v{sm}, v{vT+3}")
            A(f"v_cvt_pk_bf16_f32 v{vT+3}, v{vT+3}, 0")
            A(f"s_mov_b32 exec_lo, s{sT1}")
            A(f"s_mov_b32 exec_hi, s{sT1}")
            A(f"buffer_store_dwordx2 {v(vT+2,2)}, v5, s[{SWS}:{SWS+3}], s{sBASE} offen offset:{64*g} sc1")
            A(f"buffer_store_dword v{vT+4}, v6, s[{SWS}:{SWS+3}], s{sBASE} offen offset:{1024 + 32*g} sc1")
            A("s_mov_b64 exec, -1")
        A(f"s_lshl_b32 s{sT0}, s{sWAVE}, 10")
        A(f"s_lshl_b32 s{sT2}, s2, 13")
        A(f"s_add_u32 s{sT0}, s{sT0}, s{sT2}")
        A(f"s_add_u32 s{sT0}, s{sT0}, {hex(WS_SYNC)}")
        A(f"s_cmp_lt_u32 s2, 10")
        A(f"s_cselect_b32 s{sT0}, s{sT0}, {hex(WS_SIZE)}")
        for i in range(4): A(f"v_mov_b32 v{XD+i}, 0")
        A(f"v_lshlrev_b32 v1, 4, v0")
        A(f"buffer_store_dwordx4 {v(XD,4)}, v1, s[{SWS}:{SWS+3}], s{sT0} offen sc1")
        A("s_waitcnt vmcnt(0)")
        A("s_barrier")
        A(f"s_lshl_b32 s{sT0}, s{sTB}, 4")
        A(f"s_cmp_eq_u32 s{sWAVE}, 0")
        A(f"s_cselect_b32 s{sT0}, s{sT0}, 256")
        A(f"v_mov_b32 v2, 1")
        A(f"v_mov_b32 v3, 0")
        A("s_mov_b64 exec, 1")
        A(f"buffer_store_dword v2, v3, s[{SD}:{SD+3}], s{sT0} offen sc1")
        A("s_mov_b64 exec, -1")
    else:
        A("s_waitcnt lgkmcnt(0)")
        srd(A, SWS, 50, WS_SIZE)
    if cfg.get("ptouch", 0):
        srd(A, SP, 34, 1536 * 640 * 2)
        srd(A, SW, 32, 640 * 640 * 2)
        A(f"s_lshl_b32 s{sT0}, s2, 3")
        A(f"s_add_u32 s{sT0}, s{sT0}, s{sWAVE}")
        A(f"s_mul_i32 s{sT1}, s{sT0}, {50*128}")
        A(f"s_mul_i32 s{sT0}, s{sT0}, {120*128}")
        A(f"v_lshlrev_b32 v1, 7, v0")
        A("s_bfm_b64 exec, 60, 0")
        A(f"buffer_load_dword v4, v1, s[{SP}:{SP+3}], s{sT0} offen")
        A(f"s_add_u32 s{sT0}, s{sT0}, {60*128}")
        A(f"buffer_load_dword v4, v1, s[{SP}:{SP+3}], s{sT0} offen")
        A("s_bfm_b64 exec, 50, 0")
        A(f"buffer_load_dword v4, v1, s[{SW}:{SW+3}], s{sT1} offen")
        A("s_mov_b64 exec, -1")
    if cfg.get("tlbw", 1):
        A("s_load_dwordx4 s[40:43], s[0:1], 32")
        A("s_load_dwordx2 s[52:53], s[0:1], 56")
        A(f"v_lshlrev_b32 v1, 18, v0")
        A(f"s_cmp_lg_u32 s{sWAVE}, 0")
        A("s_cbranch_scc1 L_qkv_notlb")
        if not MG:
            A(f"buffer_load_dword v4, v1, s[{SWS}:{SWS+3}], 0 offen")
            A(f"s_mov_b32 s{sT0}, 0x1000000")
            A("s_bfm_b64 exec, 24, 0")
            A(f"buffer_load_dword v4, v1, s[{SWS}:{SWS+3}], s{sT0} offen")
            A("s_mov_b64 exec, -1")
        A("s_waitcnt lgkmcnt(0)")
        for p, nb in ((40, 640*1536*2), (42, 640*1536*2), (52, X_BYTES), (32, 640*640*2), (34, 640*1536*2)):
            srd(A, SP, p, nb)
            A(f"buffer_load_dword v4, v1, s[{SP}:{SP+3}], 0 offen")
        A.label("L_qkv_notlb")
        A("s_waitcnt lgkmcnt(0)")
    if cfg.get("gtouch", 0):
        A("s_load_dwordx4 s[40:43], s[0:1], 32")
        A(f"s_lshl_b32 s{sT0}, s2, 3")
        A(f"s_add_u32 s{sT0}, s{sT0}, s{sWAVE}")
        A(f"s_mul_i32 s{sT0}, s{sT0}, {120*128}")
        A(f"s_add_u32 s{sT1}, s{sT0}, {60*128}")
        A(f"v_lshlrev_b32 v1, 7, v0")
        A("s_waitcnt lgkmcnt(0)")
        srd(A, SP, 40, 1536 * 640 * 2)
        srd(A, SW, 42, 1536 * 640 * 2)
        if cfg["gtouch"] == 2: A("s_waitcnt vmcnt(0)")
        A("s_bfm_b64 exec, 60, 0")
        for sr in (SP, SW):
            for so in (sT0, sT1):
                A(f"buffer_load_dword v4, v1, s[{sr}:{sr+3}], s{so} offen")
        A("s_mov_b64 exec, -1")
    stamp(A, cfg, 1)
    stamp(A, cfg, 2)
    if cfg.get("zfill", 0):
        for i in range(4): A(f"v_mov_b32 v{XD+i}, 0")
        A(f"v_lshlrev_b32 v1, 4, v0")
        A(f"s_lshl_b32 s{sT0}, s2, 3")
        A(f"s_add_u32 s{sT0}, s{sT0}, s{sWAVE}")
        A(f"s_lshl_b32 s{sT1}, s{sT0}, 11")
        A(f"s_add_u32 s{sT1}, s{sT1}, {hex(WS_ST2)}")
        A(f"s_mul_i32 s{sT0}, s{sT0}, 40960")
        A(f"s_add_u32 s{sT0}, s{sT0}, {hex(WS_O)}")
        for k in range(40):
            if k % 4 == 0 and k: A(f"s_add_u32 s{sT0}, s{sT0}, 4096")
            A(f"buffer_store_dwordx4 {v(XD,4)}, v1, s[{SWS}:{SWS+3}], s{sT0} offen offset:{(k%4)*1024} sc1")
        for k in range(2): A(f"buffer_store_dwordx4 {v(XD,4)}, v1, s[{SWS}:{SWS+3}], s{sT1} offen offset:{k*1024} sc1")
    if MG:
        A(f"s_cmp_lg_u32 s{sWAVE}, 0")
        A("s_cbranch_scc1 L_h_join")
        A("v_and_b32 v1, 15, v0")
        A("v_lshlrev_b32 v1, 4, v1")
        A(f"s_mov_b32 s{sT1}, 0")
        A.label("L_h_poll")
        A("s_sleep 8")
        A(f"buffer_load_dword v2, v1, s[{SD}:{SD+3}], 0 offen sc1")
        A(f"s_add_u32 s{sT1}, s{sT1}, 1")
        A("s_waitcnt vmcnt(0)")
        A("v_cmp_eq_u32 vcc, 0, v2")
        A(f"s_cmp_lt_u32 s{sT1}, 0x40000")
        A("s_cselect_b64 vcc, vcc, 0")
        A("s_cbranch_vccnz L_h_poll")
        A.label("L_h_join")
        A(f"s_mov_b32 s94, {hex(WS_SIZE)}")
        A("s_branch L_main")
    stamp(A, cfg, 3)
    stamp_flush(A, cfg, 4, 0, SWS, sWAVE, 0)
    A.label("L_qkv_end")
    A("s_endpgm")
    return dict(name=name, grid=256, block=512, lds=163840, desc=kernel_desc(name, 256 if MG else 192, 112, 102))
```

```python
from common import *

GU_SLOT = 24608
GU_UP = 12288 + 32
GU_MISC = 6 * GU_SLOT
NWS, H_BASE, NHS = 4, 4 * GU_SLOT, 3
PART_BASE = 4 * GU_SLOT
KV_SLOT = 20480
NKV = 3
KV_BASE = 163840 - NKV * KV_SLOT
NV = 112

class R:
    S = (16, 32); O = 48; P = 64; K1 = 72; K2 = 76; V1 = 80; V2 = 84; Q1 = 88; Q2 = 92
    KA = 1; K2A = 2; VA = 3; L16 = 4; F2S = 5; L4 = 7; T = 8; TCH = 94
    GV = 96
    XRES = 100

SX, SWS, SG_, SU, SO = 4, 8, 12, 16, 20
sWAVE, sG, sM, sT0, sT1, sT2, sC, sDELTA, sSLOT, sQT = 24, 25, 26, 27, 28, 29, 30, 31, 32, 33
sVMASK = 34
sKSRC, sVSRC, sKBASE, sVBASE, sFG, sTOK16, sJ, sFAST, sWOSRC, sWDSRC, sGSRC, sGM0, sFLAG, sB, sXCC, sLW = 36, 37, 38, 39, 40, 41, 42, 43, 44, 45, 46, 47, 48, 49, 50, 51
sTMP = 52
SWO_, SWD_ = 92, 96
sSTG, sWDRAW, sTO, sKQ, sB2, sGLIM, sC0 = 86, 87, 90, 95, 96, 99, 91
sHD, sKLIM, sFL0 = 97, 98, 100

def WD(step, f, n=4):
    if step == 7: return v(40 + 4 * f, n)
    return a({0: 100, 1: 120, 2: 80, 3: 60, 4: 40, 5: 20, 6: 0}[step] + 4 * f, n)
def A_RES(i): return 140 + i if i < 4 else 58 + (i - 4)

def set_shift(A, m):
    t0, t1, t2 = m + 1, m + 2, m + 3
    A(f"v_cvt_pk_bf16_f32 v{t0}, -v{m}, -v{m}")
    A(f"v_and_b32 v{t0}, 0xffff0000, v{t0}")
    A(f"v_sub_f32 v{t1}, -v{m}, v{t0}")
    A(f"v_cvt_pk_bf16_f32 v{t2}, v{t0}, v{t1}")
    A(f"v_and_b32 v{t0}, 0xffff0000, v{t2}")
    A(f"v_sub_f32 v{t1}, v{t1}, v{t0}")
    A(f"v_cvt_pk_bf16_f32 v{t1}, v{t1}, 0")
    A(f"v_cmp_gt_u32 vcc, 32, v0")
    A(f"v_cndmask_b32 v{R.Q2+1}, v{t1}, v{t2}, vcc")

def max16(A, dst, S, first):
    if first:
        A(f"v_max3_f32 v{dst}, v{S}, v{S+1}, v{S+2}")
        A(f"v_max_f32 v{dst}, v{dst}, v{S+3}")
        rng = range(4, 16, 2)
    else:
        rng = range(0, 16, 2)
    for i in rng: A(f"v_max3_f32 v{dst}, v{dst}, v{S+i}, v{S+i+1}")

def xhalf_max(A, m, t):
    A(f"v_mov_b32 v{t}, v{m}")
    A(f"v_permlane32_swap_b32 v{m}, v{t}")
    A(f"v_max_f32 v{m}, v{m}, v{t}")

def stores(A, lst, data=True):
    if data == "O" and CFG.get("hp", 1) or data and CFG.get("wt", 2) & 1:
        for x in lst: A(x + (" sc1" if x.startswith("buffer_") else ""))
        return
    L1, L2 = A.newlabel("stf"), A.newlabel("ste")
    A(f"s_cmp_lg_u32 s{sFAST}, 0")
    A(f"s_cbranch_scc1 {L1}")
    for x in lst: A(x + (" sc1" if x.startswith("buffer_") else ""))
    A(f"s_branch {L2}")
    A.label(L1)
    for x in lst: A(x)
    A.label(L2)

def readback(A, lst):
    if not CFG.get("rb", 0) & 1: return
    for mask, ops in lst:
        ops = [x + " sc1" for x in ops]
        A(f"s_mov_b32 exec_lo, {hex(mask & 0xffffffff)}")
        A(f"s_mov_b32 exec_hi, {hex(mask >> 32)}")
        for x in ops: A(x)
    A("s_mov_b64 exec, -1")

def sync(A, idx, poller, half, nleft, between=None, rb=None):
    T = R.T
    A(f"s_waitcnt vmcnt({nleft})")
    if rb: readback(A, rb)
    A("s_barrier")
    L, LP = A.newlabel("sy"), A.newlabel("poll")
    A(f"s_cmp_lg_u32 s{sWAVE}, {poller}")
    if between is not None:
        LB = A.newlabel("btw")
        A(f"s_cbranch_scc1 {LB}")
    else:
        A(f"s_cbranch_scc1 {L}")
    A(f"s_lshl_b32 s{sT0}, s{sM}, 2")
    A(f"s_add_u32 s{sT0}, s{sT0}, s{sFLAG}")
    A(f"v_mov_b32 v{T}, 1")
    A(f"v_mov_b32 v{T+1}, 0")
    A("s_mov_b64 exec, 1")
    if idx == 0 and CFG.get("hp", 1):
        A(f"buffer_store_dword v{T}, v{T+1}, s[{SWS}:{SWS+3}], s{sFL0} offen sc1")
    else:
        stores(A, [f"buffer_store_dword v{T}, v{T+1}, s[{SWS}:{SWS+3}], s{sT0} offen offset:{idx*128}"], data=False)
    if half:
        A(f"s_and_b32 s{sT0}, s{sM}, 2")
        A(f"s_lshl_b32 s{sT0}, 0x33333333, s{sT0}")
        A(f"s_mov_b32 exec_lo, s{sT0}")
    else:
        A("s_mov_b32 exec_lo, -1")
    X0 = idx == 0 and CFG.get("hp", 1)
    L32 = X0 and CFG.get("l32", 1)
    A(f"v_lshlrev_b32 v{T+1}, {7 if L32 else 2}, v0")
    A(f"s_mov_b32 s{sT1}, 0")
    if L32:
        A(f"s_lshl_b32 s{sT0}, s{sG}, 12")
        A(f"s_add_u32 s{sT0}, s{sT0}, {hex(WS_SYNC + 8192)}")
    A.label(LP)
    sl = CFG.get("sl0", 4) if X0 else CFG.get("sl1", 0)
    if sl: A(f"s_sleep {sl}")
    if L32: A(f"buffer_load_dword v{T}, v{T+1}, s[{SWS}:{SWS+3}], s{sT0} offen sc1")
    else: A(f"buffer_load_dword v{T}, v{T+1}, s[{SWS}:{SWS+3}], s{sFLAG} offen offset:{idx*128} sc1")
    A(f"s_add_u32 s{sT1}, s{sT1}, 1")
    A("s_waitcnt vmcnt(0)")
    A(f"v_cmp_eq_u32 vcc, 0, v{T}")
    A(f"s_cmp_lt_u32 s{sT1}, 0x40000")
    A(f"s_cselect_b64 vcc, vcc, 0")
    A(f"s_cbranch_vccnz {LP}")
    A("s_mov_b64 exec, -1")
    if between is not None:
        A("s_barrier")
        between()
        A(f"s_branch {L}")
        A.label(LB)
        between()
        A("s_barrier")
        A.label(L)
    else:
        A.label(L)
        A("s_barrier")

def addr_rowmajor(A, vp, vs, T, quad=False):
    if quad:
        A(f"v_lshrrev_b32 v{T}, 2, v0")
        A(f"v_and_b32 v{T+1}, 3, v0")
    else:
        A(f"v_and_b32 v{T}, 15, v0")
        A(f"v_lshrrev_b32 v{T+1}, 4, v0")
    A(f"v_mul_u32_u24 v{T}, 1280, v{T}")
    A(f"s_add_u32 s{sT0}, s{sLW}, s{sTOK16}")
    A(f"s_mul_i32 s{sT0}, s{sT0}, {16*1280}")
    A(f"s_mul_i32 s{sT1}, s{sFG}, 160")
    A(f"s_add_u32 s{sT0}, s{sT0}, s{sT1}")
    A(f"v_add_u32 v{T}, s{sT0}, v{T}")
    A(f"v_lshl_add_u32 v{vp}, v{T+1}, 4, v{T}")
    A(f"v_lshl_add_u32 v{vs}, v{T+1}, 3, v{T}")
    A(f"v_add_u32 v{vs}, 128, v{vs}")
    A(f"s_and_b32 s{sT0}, s{sWAVE}, 4")
    A(f"s_lshl_b32 s{sT0}, s{sT0}, 4")
    A(f"v_add_u32 v{vp}, s{sT0}, v{vp}")

def reduce_addr(A, P, base, RA):
    A(f"s_mul_i32 s{sT0}, s{sLW}, 5120")
    A(f"s_and_b32 s{sT1}, s{sWAVE}, 4")
    A(f"s_lshl_b32 s{sT1}, s{sT1}, 9")
    A(f"s_add_u32 s{sT0}, s{sT0}, s{sT1}")
    A(f"s_add_u32 s{sT0}, s{sT0}, {base}")
    A(f"v_add_u32 v{RA}, s{sT0}, v{R.L16}")
    for k in range(1, (P + 2) // 3): A(f"v_add_u32 v{RA+k}, {3*20480*k}, v{RA}")

def reduce_sum(A, P, D, RA, n, own, mid=None):
    W = 4 * n
    for p in range(P):
        for e in range(n):
            A(f"ds_read_b128 {v(D+W*p+4*e,4)}, v{RA+p//3} offset:{(p%3)*20480 + (e*1024 if e < 2 else 4096)}")
    if mid: mid()
    for p in range(P):
        A(f"s_waitcnt lgkmcnt({min(15, n*(P-1-p))})")
        for e in range(n):
            for i in (0, 2): A(f"v_pk_add_f32 {v(own[e]+i,2)}, {v(own[e]+i,2)}, {v(D+W*p+4*e+i,2)}")

CFG = {}
def gu_dma_ops(c):
    ops = []
    for isup in range(2):
        sr = SU if isup else SG_
        for jj in range(3):
            ops.append([f"s_add_u32 m0, s{sGM0}, {(c%NWS)*GU_SLOT + isup*GU_UP + jj*1024}",
                        "s_nop 0",
                        f"buffer_load_dwordx4 v{R.GV+jj}, s[{sr}:{sr+3}], s{sGSRC} offen lds"])
    ops[-1] += [f"s_add_u32 s{sGSRC}, s{sGSRC}, {64*3072}", f"s_cmp_eq_u32 s{sGSRC}, s{sGLIM}", f"s_cselect_b32 s{sT0}, {640*3072}, 0", f"s_sub_u32 s{sGSRC}, s{sGSRC}, s{sT0}"]
    return ops
def load_wd_ops(step):
    return [[f"s_add_u32 s{sT0}, s{sWDSRC}, {step*5120 + f*1024}",
             f"buffer_load_dwordx4 {WD(step, f)}, v{R.L16}, s[{SWS}:{SWS+3}], s{sT0} offen sc1"] for f in range(5)]
def gu_dma(A, c, rows):
    A(f"s_add_u32 s{sT0}, s{sGSRC}, {c*64*3072}")
    for isup in range(2):
        sr = SU if isup else SG_
        for jj in range(3):
            A(f"s_add_u32 m0, s{sGM0}, {(c%NWS)*GU_SLOT + isup*GU_UP + jj*1024}")
            A(f"buffer_load_dwordx4 v{R.GV+jj}, s[{sr}:{sr+3}], s{sT0} offen lds")

def load_wd(A, step):
    for f in range(5):
        if f % 4 == 0: A(f"s_add_u32 s{sT0}, s{sWDSRC}, {step*5120 + f*1024}")
        A(f"buffer_load_dwordx4 {WD(step, f)}, v{R.L16}, s[{SWS}:{SWS+3}], s{sT0} offen offset:{(f%4)*1024}")

def cfg_touch_plan(cfg, gu_touch, out_touch, wd_touch, extra):
    plan = cfg.get("tplan", [[5,"gw"],[44,"h"],[50,"st"]])
    out = []
    for t, w in plan:
        if w in extra: out.append((t, extra[w]))
        elif w[0] == "g": out.append((t, gu_touch(int(w[1]))))
        else: out.append((t, {"o": out_touch(WS_O, 1280), "h": out_touch(WS_H, 1280), "hid": out_touch(WS_HID, 3072), "st": out_touch(WS_ST2, 128), "wd": wd_touch,
                                 "hid0": out_touch(WS_HID, 3072, 0, 8), "hid1": out_touch(WS_HID, 3072, 8, 8), "hid2": out_touch(WS_HID, 3072, 16, 8)}[w]))
    return out

def gen_main(A, cfg):
    name = "main_kernel"
    CFG.update(cfg)
    cfg = dict(cfg); cfg["_k2"] = 1
    MG = cfg.get("merge", 1)
    T = R.T
    if MG:
        A.label("L_main")
    else:
        kstart(A, name)
        A("s_cmp_ge_u32 s2, 256")
        A("s_cbranch_scc1 L_end")
    A(f"s_load_dwordx2 s[{SWS}:{SWS+1}], s[0:1], 72")
    A(f"s_load_dwordx2 s[{SX}:{SX+1}], s[0:1], 0")
    A(f"s_load_dwordx2 s[{SG_}:{SG_+1}], s[0:1], 32")
    A(f"s_load_dwordx2 s[{SU}:{SU+1}], s[0:1], 40")
    A(f"s_load_dwordx2 s[{SO}:{SO+1}], s[0:1], 16")
    A(f"s_load_dwordx2 s[92:93], s[0:1], 48")
    stamp(A, cfg, 0)
    if MG:
        A(f"s_mov_b32 s{sWAVE}, s3")
    else:
        A(f"v_lshrrev_b32 v{T}, 6, v0")
        A(f"v_and_b32 v0, 63, v0")
        A(f"v_readfirstlane_b32 s{sWAVE}, v{T}")
    A(f"s_and_b32 s{sG}, s2, 7")
    A(f"s_lshr_b32 s{sM}, s2, 3")
    HP = cfg.get("hp", 1)
    if HP:
        A(f"s_lshl_b32 s{sHD}, s{sG}, 2")
        A(f"s_lshr_b32 s{sT0}, s{sM}, 3")
        A(f"s_add_u32 s{sHD}, s{sHD}, s{sT0}")
        A(f"s_and_b32 s{sFL0}, s{sM}, 7")
    else:
        A(f"s_mov_b32 s{sHD}, s{sM}")
        A(f"s_mov_b32 s{sFL0}, s{sG}")
    A(f"s_lshr_b32 s{sT0}, s{sHD}, 1")
    A(f"s_mul_i32 s{sKBASE}, s{sT0}, {PAIR_STRIDE}")
    A(f"s_mul_i32 s{sVBASE}, s{sHD}, {VHEAD_STRIDE}")
    A(f"s_add_u32 s{sVBASE}, s{sVBASE}, {hex(WS_V)}")
    A(f"s_lshl_b32 s{sQT}, s{sFL0}, 3")
    A(f"s_add_u32 s{sQT}, s{sQT}, s{sWAVE}")
    A(f"s_and_b32 s{sT1}, s{sHD}, 1")
    A(f"v_lshlrev_b32 v{R.L16}, 4, v0")
    A(f"s_mul_i32 s{sT2}, s{sT1}, 1536")
    A(f"v_add_u32 v{R.F2S+1}, s{sT2}, v{R.L16}")
    A(f"v_and_b32 v{T}, 31, v0")
    A(f"v_lshrrev_b32 v{T+1}, 5, v0")
    A(f"v_lshlrev_b32 v{R.F2S}, 4, v{T}")
    A(f"v_lshl_add_u32 v{R.F2S}, v{T+1}, 2, v{R.F2S}")
    A(f"s_lshl_b32 s{sT1}, s{sT1}, 3")
    A(f"s_add_u32 s{sT1}, s{sT1}, 1024")
    A(f"v_add_u32 v{R.F2S}, s{sT1}, v{R.F2S}")
    A(f"s_mul_i32 s{sKSRC}, s{sWAVE}, 2560")
    A(f"s_add_u32 s{sKSRC}, s{sKSRC}, s{sKBASE}")
    A(f"s_mul_i32 s{sVSRC}, s{sWAVE}, 1280")
    A(f"s_mul_i32 s{sSLOT}, s{sWAVE}, 2560")
    A(f"v_lshlrev_b32 v{R.L4}, 2, v0")
    A(f"s_add_u32 s{sVSRC}, s{sVSRC}, s{sVBASE}")
    A(f"s_add_u32 s{sKLIM}, s{sKSRC}, {PAIR_STRIDE}")
    A(f"s_mul_i32 s{sT0}, s{sFL0}, {8*1280 if HP and cfg.get('krot', 0) else 0}")
    A(f"s_add_u32 s{sVSRC}, s{sVSRC}, s{sT0}")
    A(f"s_lshl_b32 s{sT0}, s{sT0}, 1")
    A(f"s_add_u32 s{sKSRC}, s{sKSRC}, s{sT0}")
    A(f"s_add_u32 s{sB2}, s{sKBASE}, s{sT0}")
    A("s_waitcnt lgkmcnt(0)")
    srd(A, SWS, SWS, WS_SIZE)
    KVF = cfg.get("kvflag", "sc1" if MG else "")
    def kv_ops(c):
        lds = KV_BASE + (c % NKV) * KV_SLOT
        return [
            [f"s_add_u32 m0, s{sSLOT}, {lds}", "s_nop 0",
             f"buffer_load_dwordx4 v{R.F2S+1}, s[{SWS}:{SWS+3}], s{sKSRC} offen {KVF} lds"],
            [f"s_add_u32 m0, s{sSLOT}, {lds+1024}", "s_nop 0",
             f"buffer_load_dword v{R.F2S}, s[{SWS}:{SWS+3}], s{sKSRC} offen {KVF} lds"],
            [f"s_add_u32 m0, s{sSLOT}, {lds+1280}", f"s_add_u32 s{sKSRC}, s{sKSRC}, {8*2560}",
             f"buffer_load_dwordx4 v{R.L16}, s[{SWS}:{SWS+3}], s{sVSRC} offen {KVF} lds"],
            [f"s_add_u32 m0, s{sSLOT}, {lds+2304}", f"s_add_u32 s{sT0}, s{sVSRC}, 1024",
             f"buffer_load_dword v{R.L4}, s[{SWS}:{SWS+3}], s{sT0} offen {KVF} lds",
             f"s_add_u32 s{sVSRC}, s{sVSRC}, {8*1280}"] +
            ([f"s_cmp_eq_u32 s{sKSRC}, s{sKLIM}", f"s_cselect_b32 s{sT0}, {VHEAD_STRIDE}, 0", f"s_sub_u32 s{sVSRC}, s{sVSRC}, s{sT0}",
              f"s_lshl_b32 s{sT0}, s{sT0}, 1", f"s_sub_u32 s{sKSRC}, s{sKSRC}, s{sT0}"] if HP and cfg.get('krot', 0) else [])]
    def emit(op):
        for x in op: A(x)
    PSP = cfg.get("psplit", 3)
    def first_loads():
        A(f"s_mul_i32 s{sT2}, s{sQT}, 2560")
        A(f"s_add_u32 s{sT2}, s{sT2}, s{sKBASE}")
        A(f"s_add_u32 s{sT2}, s{sT2}, {hex(WS_Q)}")
        A(f"buffer_load_dwordx4 {v(R.Q1,4)}, v{R.F2S+1}, s[{SWS}:{SWS+3}], s{sT2} offen {KVF}")
        A(f"buffer_load_dword v{R.Q2}, v{R.F2S}, s[{SWS}:{SWS+3}], s{sT2} offen {KVF}")
        A(f"buffer_load_dwordx4 {v(R.K1,4)}, v{R.F2S+1}, s[{SWS}:{SWS+3}], s{sB2} offen {KVF}")
        A(f"buffer_load_dword v{R.K2}, v{R.F2S}, s[{SWS}:{SWS+3}], s{sB2} offen {KVF}")
        if PSP:
            A(f"s_cmp_ge_u32 s{sWAVE}, {PSP}")
            A("s_cbranch_scc1 L_p0")
        for op in kv_ops(0): emit(op)
        A.label("L_p0")
    if not MG: first_loads()
    def gsignal():
        if not MG: return
        if cfg.get("gst") == 2: stamp(A, cfg, 0)
        A("s_waitcnt vmcnt(0)")
        A("s_barrier")
        if cfg.get("gst") == 3: stamp(A, cfg, 0)
        A(f"s_cmp_eq_u32 s{sWAVE}, {4 if cfg.get('lsw', 0) else 0}")
        A(f"s_cselect_b32 s94, s94, {hex(WS_SIZE)}")
        A("s_mov_b64 exec, 1")
        A(f"buffer_store_dword v{R.F2S}, v{R.L16}, s[{SWS}:{SWS+3}], s94 offen sc1")
        A("s_mov_b64 exec, -1")
    GP = cfg.get("gp", 3 if cfg.get("lsw", 0) else 4)
    GPOS = cfg.get("gpos", 1)
    if GPOS == 0: gsignal()
    A(f"s_lshl_b32 s{sFLAG}, s{sG}, 10")
    A(f"s_add_u32 s{sFLAG}, s{sFLAG}, {hex(WS_SYNC)}")
    A(f"s_getreg_b32 s{sXCC}, hwreg(HW_REG_XCC_ID, 0, 3)")
    A(f"s_mul_i32 s{sXCC}, s{sXCC}, 6")
    A(f"s_lshr_b32 s{sFG}, s{sM}, 2")
    A(f"s_and_b32 s{sT0}, s{sM}, 3")
    A(f"s_lshl_b32 s{sTOK16}, s{sG}, 4")
    A(f"s_lshl_b32 s{sT0}, s{sT0}, 2")
    A(f"s_add_u32 s{sTOK16}, s{sTOK16}, s{sT0}")
    A(f"s_lshl_b32 s{sJ}, s{sFG}, 1")
    A(f"s_and_b32 s{sT0}, s{sM}, 1")
    A(f"s_add_u32 s{sJ}, s{sJ}, s{sT0}")
    A(f"s_and_b32 s{sLW}, s{sWAVE}, 3")
    A(f"s_mul_i32 s{sWOSRC}, s{sFG}, {20*5120}")
    A(f"s_and_b32 s{sKQ}, s{sLW}, 1")
    A(f"s_lshl_b32 s{sKQ}, s{sKQ}, 1")
    A(f"s_lshr_b32 s{sT0}, s{sWAVE}, 2")
    A(f"s_add_u32 s{sKQ}, s{sKQ}, s{sT0}")
    if cfg.get("stag", 3) & 1:
        A(f"s_and_b32 s{sT0}, s{sFG}, 1")
        A(f"s_lshl_b32 s{sT0}, s{sT0}, 1")
        A(f"s_xor_b32 s{sKQ}, s{sKQ}, s{sT0}")
    A(f"s_mul_i32 s{sT0}, s{sKQ}, {5*5120}")
    A(f"s_add_u32 s{sWOSRC}, s{sWOSRC}, s{sT0}")
    A(f"s_add_u32 s{sWOSRC}, s{sWOSRC}, {hex(WS_WO)}")
    A(f"s_mul_i32 s{sWDSRC}, s{sFG}, {48*5120}")
    A(f"s_and_b32 s{sT0}, s{sFG}, {3 if cfg.get('stag', 3) & 2 else 0}")
    A(f"s_xor_b32 s{sT0}, s{sT0}, s{sLW}")
    A(f"s_mul_i32 s{sT0}, s{sT0}, 12")
    A(f"s_and_b32 s{sT1}, s{sWAVE}, 4")
    A(f"s_add_u32 s{sWDRAW}, s{sT0}, s{sT1}")
    A(f"s_mul_i32 s{sT0}, s{sWDRAW}, 5120")
    A(f"s_add_u32 s{sWDSRC}, s{sWDSRC}, s{sT0}")
    A(f"s_add_u32 s{sWDSRC}, s{sWDSRC}, {hex(WS_WD)}")
    A(f"s_mul_i32 s{sGSRC}, s{sLW}, {16*3072}")
    A(f"s_mul_i32 s{sT0}, s{sJ}, 192")
    A(f"s_add_u32 s{sGSRC}, s{sGSRC}, s{sT0}")
    A(f"s_mul_i32 s{sGM0}, s{sLW}, 3072")
    if cfg.get("stag", 3) & 4:
        A(f"s_bfe_u32 s{sT0}, s{sM}, 0x10001")
        A(f"s_mul_i32 s{sT0}, s{sT0}, {cfg.get('gth', 5)}")
        A(f"s_mul_i32 s{sC0}, s{sJ}, {cfg.get('gja', 1)}")
        A(f"s_add_u32 s{sC0}, s{sC0}, s{sT0}")
        A(f"s_mul_i32 s{sT0}, s{sC0}, 6554")
        A(f"s_lshr_b32 s{sT0}, s{sT0}, 16")
        A(f"s_mul_i32 s{sT0}, s{sT0}, 10")
        A(f"s_sub_u32 s{sC0}, s{sC0}, s{sT0}")
    else:
        A(f"s_mov_b32 s{sC0}, 0")
    A(f"s_add_u32 s{sGLIM}, s{sGSRC}, {640*3072}")
    A(f"s_mul_i32 s{sT0}, s{sC0}, {64*3072}")
    A(f"s_add_u32 s{sGSRC}, s{sGSRC}, s{sT0}")
    srd(A, SX, SX, X_BYTES); srd(A, SG_, SG_, 640 * 1536 * 2); srd(A, SU, SU, 640 * 1536 * 2)
    if GPOS == 1: gsignal()
    A(f"v_add_u32 v{R.KA}, {KV_BASE}, v{R.L16}")
    A(f"v_add_u32 v{R.K2A}, {KV_BASE + 1024}, v{R.L4}")
    r, kh, aa, hf, b, i_, d1, d2 = T, T+1, T+2, T+3, T+4, T+5, T+6, T+7
    A(f"v_lshrrev_b32 v{aa}, 3, v{r}")
    A(f"v_bfe_u32 v{hf}, v{r}, 2, 1")
    A(f"v_and_b32 v{b}, 3, v{r}")
    A(f"v_lshl_add_u32 v{i_}, v{aa}, 2, v{b}")
    A(f"v_lshl_add_u32 v{d1}, v{hf}, 3, v{i_}")
    A(f"v_lshl_add_u32 v{d2}, v{hf}, 1, v{i_}")
    A(f"v_add_u32 v{d2}, 8, v{d2}")
    A(f"v_cmp_gt_u32 vcc, 8, v{i_}")
    A(f"v_cndmask_b32 v{d1}, v{d2}, v{d1}, vcc")
    A(f"v_min_u32 v{d1}, 19, v{d1}")
    A(f"v_mul_u32_u24 v{R.VA}, 320, v{kh}")
    A(f"v_lshl_add_u32 v{R.VA}, v{d1}, 4, v{R.VA}")
    A(f"v_add_u32 v{R.VA}, {KV_BASE + 1280}, v{R.VA}")
    A(f"v_cmp_eq_u32 vcc, 10, v{i_}")
    A(f"v_mov_b32 v{d2}, 0x3f803f80")
    for k in range(8): A(f"v_cndmask_b32 v{R.V1+k}, 0, v{d2}, vcc")
    A(f"v_cmp_gt_u32 vcc, 32, v0")
    A(f"v_mov_b32 v{d1}, 0x3f80")
    A(f"v_cndmask_b32 v{R.K2+1}, v{d1}, v{d2}, vcc")
    A(f"v_mov_b32 v{R.Q2+1}, 0")
    for jj in range(3):
        A(f"v_add_u32 v{T}, {64*jj}, v0")
        A(f"v_mul_u32_u24 v{T+1}, 5462, v{T}")
        A(f"v_lshrrev_b32 v{T+1}, 16, v{T+1}")
        A(f"v_mul_u32_u24 v{R.GV+jj}, {3072-192}, v{T+1}")
        A(f"v_lshl_add_u32 v{R.GV+jj}, v{T}, 4, v{R.GV+jj}")
        A(f"v_and_b32 v{T+1}, 8, v{T+1}")
        A(f"v_lshlrev_b32 v{T+1}, 2, v{T+1}")
        A(f"v_xor_b32 v{R.GV+jj}, v{R.GV+jj}, v{T+1}")
    A(f"s_mov_b32 s{sVMASK}, 0x0033ffff")
    A(f"s_mov_b32 s{sVMASK+1}, 0x0033ffff")
    S0 = R.S[0]
    X = R.S[1]
    if GPOS == 2: gsignal()
    addr_rowmajor(A, R.XRES + 6, R.XRES + 7, X)
    A(f"v_lshlrev_b32 v{R.TCH}, 7, v0")
    A(f"v_mov_b32 v{R.TCH+1}, 0")
    A(f"s_lshl_b64 s[{sTMP}:{sTMP+1}], 1, s{sXCC}")
    A(f"v_mov_b32 v{R.XRES+8}, s{sTMP}")
    A(f"v_mov_b32 v{R.XRES+9}, s{sTMP+1}")
    A(f"s_cmp_ge_u32 s{sWAVE}, 4")
    A(f"s_cselect_b32 s{sTMP}, s{SU}, s{SG_}")
    A(f"s_cselect_b32 s{sTMP+1}, s{SU+1}, s{SG_+1}")
    A(f"s_mov_b32 s{sTMP+2}, {hex(640*1536*2)}")
    A(f"s_mov_b32 s{sTMP+3}, 0x20000")
    A(f"s_cselect_b32 s{sB}, {GU_UP}, 0")
    A(f"s_add_u32 s{sB}, s{sB}, s{sGM0}")
    A(f"s_and_b32 s{sC}, s{sM}, 3")
    A(f"s_lshl_b32 s{sDELTA}, s{sM}, 2")
    A(f"s_add_u32 s{sDELTA}, s{sDELTA}, s{sLW}")
    A(f"s_mul_i32 s{sDELTA}, s{sDELTA}, {12*128}")
    A(f"s_lshl_b32 s{sTO}, s{sG}, 5")
    A(f"s_add_u32 s{sTO}, s{sTO}, s{sM}")
    A(f"s_lshl_b32 s{sTO}, s{sTO}, 3")
    A(f"s_add_u32 s{sTO}, s{sTO}, s{sWAVE}")
    if cfg.get("ctouch", 1):
        code_touch_setup(A, 88, "L_attn_code")
        A(f"s_and_b32 s{sT0}, s{sTO}, 255")
        A(f"s_lshl_b32 s{sT0}, s{sT0}, 7")
        A(f"v_lshlrev_b32 v{X}, 15, v0")
        A(f"v_add_u32 v{X}, s{sT0}, v{X}")
        A(f"v_min_u32 v{R.GV+3}, L_code_end-L_attn_code-4, v{X}")

    A(f"s_mul_i32 s{sT0}, s{sQT}, {2*80*256}")
    A(f"s_lshr_b32 s{sT1}, s{sHD}, 3")
    A(f"s_mul_i32 s{sT1}, s{sT1}, {20*256}")
    A(f"s_add_u32 s{sT0}, s{sT0}, s{sT1}")
    A(f"s_add_u32 s{sT0}, s{sT0}, {hex(WS_O)}")
    L32 = cfg.get("l32", 1)
    A(f"s_lshl_b32 s{sFL0}, s{sFL0}, {12 if L32 else 10}")
    A(f"s_lshl_b32 s{sT2}, s{sHD}, {7 if L32 else 2}")
    A(f"s_add_u32 s{sFL0}, s{sFL0}, s{sT2}")
    A(f"s_add_u32 s{sFL0}, s{sFL0}, {hex(WS_SYNC + (8192 if L32 else 0))}")
    A(f"s_and_b32 s{sT2}, s{sHD}, 7")
    A(f"s_lshl_b32 s{sT1}, s{sT2}, 9")
    A(f"s_add_u32 s{sT1}, s{sT1}, s{sT0}")
    A(f"s_lshl_b32 s{sT2}, s{sT2}, 7")
    A(f"s_add_u32 s{sT0}, s{sT0}, s{sT2}")
    A(f"s_add_u32 s{sT0}, s{sT0}, {16*256}")
    A(f"v_and_b32 v{X}, 15, v0")
    A(f"v_bfe_u32 v{X+1}, v0, 4, 1")
    A(f"v_lshrrev_b32 v{X+2}, 5, v0")
    A(f"v_mul_u32_u24 v{X+1}, {80*256}, v{X+1}")
    A(f"v_lshl_add_u32 v{T+7}, v{X}, 3, v{X+1}")
    A(f"v_add_u32 v{T+7}, s{sT0}, v{T+7}")
    A(f"v_lshl_add_u32 v{T+6}, v{X}, 4, v{X+1}")
    A(f"v_lshl_add_u32 v{T+6}, v{X+2}, 8, v{T+6}")
    A(f"v_add_u32 v{T+6}, s{sT1}, v{T+6}")
    SP_ = cfg.get("sp", 1)
    PV2 = f"v_smfmac_f32_32x32x32_bf16 {v(R.O,16)}, {v(R.V2,4)}, {v(R.P,8)}, v79" if SP_ else \
          f"v_mfma_f32_32x32x16_bf16 {v(R.O,16)}, {v(R.V2,4)}, {v(R.P+4,4)}, {v(R.O,16)}"
    if SP_:
        A("v_mov_b32 v79, 0xdddddddd")
        for k in range(16): A(f"v_mov_b32 v{R.O+k}, 0")
    KP = cfg.get("kprep", 1)
    SP, pWO, pWD = SO, SO, 92
    sU, sPSRC, sPDST, sPLDS = sSTG, sKLIM, 101, 3
    VO, PF, TA, vT = R.XRES, X + 4, 8, X
    def prep_setup():
        A(f"s_lshl_b32 s{sU}, s{sWAVE}, 8")
        A(f"s_add_u32 s{sU}, s{sU}, s2")
        A(f"s_mul_i32 s{sPLDS}, s{sWAVE}, 5120")
        A(f"s_cmp_lt_u32 s{sU}, 544")
        A("s_cbranch_scc1 L_pp_real")
        srd(A, SP, pWO, 0)
        A(f"s_mov_b32 s{sPSRC}, 0")
        A(f"s_mov_b32 s{sPDST}, {hex(WS_SIZE)}")
        for jj in range(5): A(f"v_mov_b32 v{VO+jj}, 0")
        A("s_branch L_pp_ta")
        A.label("L_pp_real")
        for jj in range(5):
            A(f"v_add_u32 v{vT}, {64*jj}, v0")
            A(f"v_mul_u32_u24 v{PF+jj}, 6554, v{vT}")
            A(f"v_lshrrev_b32 v{PF+jj}, 16, v{PF+jj}")
            A(f"v_mul_u32_u24 v{vT+1}, 10, v{PF+jj}")
            A(f"v_sub_u32 v{vT}, v{vT}, v{vT+1}")
            A(f"v_lshlrev_b32 v{VO+jj}, 4, v{vT}")
        A(f"s_cmp_ge_u32 s{sU}, 384")
        A("s_cbranch_scc1 L_pp_pwo")
        srd(A, SP, pWD, 1536 * 640 * 2)
        A(f"s_mul_i32 s{sT0}, s{sU}, 1366")
        A(f"s_lshr_b32 s{sT0}, s{sT0}, 16")
        A(f"s_mul_i32 s{sT1}, s{sT0}, 48")
        A(f"s_sub_u32 s{sT1}, s{sU}, s{sT1}")
        A(f"s_mul_i32 s{sPSRC}, s{sT1}, {32*1280}")
        A(f"s_mul_i32 s{sT0}, s{sT0}, 160")
        A(f"s_add_u32 s{sPSRC}, s{sPSRC}, s{sT0}")
        A(f"s_mul_i32 s{sPDST}, s{sU}, 5120")
        A(f"s_add_u32 s{sPDST}, s{sPDST}, {hex(WS_WD)}")
        A("s_branch L_pp_pgo")
        A.label("L_pp_pwo")
        srd(A, SP, pWO, 640 * 640 * 2)
        A(f"s_sub_u32 s{sU}, s{sU}, 384")
        A(f"s_mul_i32 s{sT0}, s{sU}, 3277")
        A(f"s_lshr_b32 s{sT0}, s{sT0}, 16")
        A(f"s_mul_i32 s{sT1}, s{sT0}, 20")
        A(f"s_sub_u32 s{sT1}, s{sU}, s{sT1}")
        A(f"s_mul_i32 s{sPSRC}, s{sT0}, 160")
        A(f"s_mul_i32 s{sT0}, s{sT1}, 205")
        A(f"s_lshr_b32 s{sT0}, s{sT0}, 10")
        A(f"s_mul_i32 s{sT2}, s{sT0}, 5")
        A(f"s_sub_u32 s{sT1}, s{sT1}, s{sT2}")
        A(f"s_mul_i32 s{sT0}, s{sT0}, {160*1280}")
        A(f"s_add_u32 s{sPSRC}, s{sPSRC}, s{sT0}")
        A(f"s_mul_i32 s{sPDST}, s{sU}, 5120")
        A(f"s_add_u32 s{sPDST}, s{sPDST}, {hex(WS_WO)}")
        A(f"s_cmp_eq_u32 s{sT1}, 4")
        A("s_cbranch_scc1 L_pp_pleft")
        A(f"s_mul_i32 s{sT1}, s{sT1}, {40*1280}")
        A(f"s_add_u32 s{sPSRC}, s{sPSRC}, s{sT1}")
        for jj in range(5):
            A(f"v_lshrrev_b32 v{vT}, 4, v{PF+jj}")
            A(f"v_lshl_add_u32 v{PF+jj}, v{vT}, 2, v{PF+jj}")
        A("s_branch L_pp_pgo")
        A.label("L_pp_pleft")
        for jj in range(5):
            k = PF + jj
            A(f"v_lshrrev_b32 v{vT}, 2, v{k}")
            A(f"v_lshl_add_u32 v{k}, v{vT}, 4, v{k}")
            A(f"v_add_u32 v{k}, 16, v{k}")
        A.label("L_pp_pgo")
        for jj in range(5):
            A(f"v_mul_u32_u24 v{vT}, 1280, v{PF+jj}")
            A(f"v_add_u32 v{VO+jj}, v{VO+jj}, v{vT}")
        A.label("L_pp_ta")
        A(f"v_lshrrev_b32 v{vT}, 4, v0")
        A(f"v_bfe_u32 v{vT+1}, v0, 2, 2")
        A(f"v_lshl_add_u32 v{vT}, v{vT}, 3, v{vT+1}")
        A(f"v_mul_u32_u24 v{vT}, 160, v{vT}")
        A(f"v_add_u32 v{vT}, s{sPLDS}, v{vT}")
        A(f"v_and_b32 v{vT+1}, 3, v0")
        A(f"v_lshl_add_u32 v{TA}, v{vT+1}, 4, v{vT}")
        A(f"v_lshl_add_u32 v{TA+1}, v{vT+1}, 3, v{vT}")
    if KP: prep_setup()
    A(f"s_mov_b32 s92, {fhex(2.0**-40)}")
    A(f"s_mov_b32 s93, {fhex(2.0**64)}")
    JUNK = R.XRES + 11
    def gu_op(c, jj):
        return [f"s_add_u32 m0, s{sB}, {c*GU_SLOT + jj*1024}", "s_nop 0",
                f"buffer_load_dwordx4 v{R.GV+jj}, s[{sTMP}:{sTMP+3}], s{sGSRC} offen lds"] + ([f"s_add_u32 s{sGSRC}, s{sGSRC}, {64*3072}", f"s_cmp_eq_u32 s{sGSRC}, s{sGLIM}", f"s_cselect_b32 s{sT0}, {640*3072}, 0", f"s_sub_u32 s{sGSRC}, s{sGSRC}, s{sT0}"] if jj == 2 else [])
    def touch(n, srd_, pre):
        return pre + [f"s_bfm_b64 exec, {n}, 0", f"buffer_load_dword v{JUNK}, v{R.TCH}, s[{srd_}:{srd_+3}], s{sT0} offen", "s_mov_b64 exec, -1"]
    def gu_touch(c): return touch(12, sTMP, [f"s_add_u32 s{sT0}, s{sDELTA}, {c*64*3072}"])
    def out_touch(base, nbytes, l0=0, n=None):
        return touch(n or nbytes // 128, SWS, [f"s_mul_i32 s{sT0}, s{sTO}, {nbytes}", f"s_add_u32 s{sT0}, s{sT0}, {hex(base + l0*128)}",
                                          f"s_cmp_lg_u32 s{sFAST}, 0", f"s_cselect_b32 s{sT0}, s{sT0}, {hex(WS_SIZE)}"])
    sched = {t: [] for t in range(64)}
    trs = {}
    misc = {}
    vm = []
    def put(t, tag, op):
        while len(sched[t]) >= 3: t += 1
        sched[t].append((tag, op)); return t
    for i, op in enumerate(kv_ops(1)): put(i // 2, "kv1", op)
    for c in range(2, 8):
        for i, op in enumerate(kv_ops(c)): put(8 * (c - 2) + 6 + i // 2, f"kv{c}", op)
    pf = []
    def frag_op(src, i, dst):
        pre = [f"s_add_u32 s{sSTG}, s{src}, {i*1024}"] if i % 4 == 0 else []
        return pre + [f"buffer_load_dwordx4 {a(dst+4*i,4)}, v{R.L16}, s[{SWS}:{SWS+3}], s{sSTG} offen offset:{(i%4)*1024} sc1"]
    gl = [gu_op(c, jj) for c in range(4) for jj in range(3)]
    for i in range(10): pf.append(frag_op(sWDSRC, i, 100))
    WROT = cfg.get("stag", 3) & 8
    for i in range(25):
        st, f = divmod(i, 5)
        if f == 0:
            pre = [f"s_bfe_u32 s{sSTG}, s{sFG}, 0x20001", f"s_xor_b32 s{sSTG}, s{sSTG}, {st}", f"s_mul_i32 s{sSTG}, s{sSTG}, 5120",
                   f"s_add_u32 s{sSTG}, s{sSTG}, s{sWOSRC}"] if st < 4 and WROT else [f"s_add_u32 s{sSTG}, s{sWOSRC}, {st*5120}"]
        else: pre = [f"s_add_u32 s{sSTG}, s{sSTG}, 4096"] if f == 4 else []
        pf.append(pre + [f"buffer_load_dwordx4 {a(4*i,4)}, v{R.L16}, s[{SWS}:{SWS+3}], s{sSTG} offen offset:{(f%4)*1024} sc1"])
    pchk = {}
    if KP:
        P0, P1, PFL, PLD, PCK = cfg.get("pp", [2, 8, 14, 25, 30])
        PFLAG = WS_SYNC + 40960
        for jj in range(5):
            put(P0 + jj // 2, "pd", [f"s_add_u32 m0, s{sPLDS}, {jj*1024}", "s_nop 0", f"buffer_load_dwordx4 v{VO+jj}, s[{SP}:{SP+3}], s{sPSRC} offen lds"])
        tr = [f"ds_read_b64_tr_b16 {a(4*f+2*uu,2)}, v{TA+(f==4)} offset:{4*uu*160 + tile_col_imm(f)}" for f in range(5) for uu in range(2)]
        trs[P1] = ("pd", tr[:5]); trs[P1 + 1] = (None, tr[5:])
        for f in range(5):
            put(P1 + 2 + f // 3, "ps", [f"s_add_u32 s{sT0}, s{sPDST}, {f*1024}", f"buffer_store_dwordx4 {a(4*f,4)}, v{R.L16}, s[{SWS}:{SWS+3}], s{sT0} offen sc1"])
        put(PFL, "pf", [f"s_lshl_b32 s{sT0}, s{sG}, 5", f"s_add_u32 s{sT0}, s{sT0}, s{sM}", f"s_lshl_b32 s{sT0}, s{sT0}, 2", f"s_add_u32 s{sT0}, s{sT0}, {hex(PFLAG)}",
                        f"s_cmp_eq_u32 s{sWAVE}, 0", f"s_cselect_b32 s{sT0}, s{sT0}, {hex(WS_SIZE)}", "s_mov_b64 exec, 1",
                        f"buffer_store_dword v{R.K2+1}, v{R.TCH+1}, s[{SWS}:{SWS+3}], s{sT0} offen sc1", "s_mov_b64 exec, -1"])
        pld = f"buffer_load_dwordx4 {v(8,4)}, v{R.L16}, s[{SWS}:{SWS+3}], s{sPSRC} offen sc1"
        put(PLD, "pl", [f"s_mov_b32 s{sPSRC}, {hex(PFLAG)}", f"s_cmp_eq_u32 s{sWAVE}, 0", f"s_cselect_b32 s{sPSRC}, s{sPSRC}, {hex(WS_SIZE)}", pld])
        for i, op in enumerate(gl): put(PFL + 2 + i * (PCK - PFL - 2) // 12, "pf", op)
        free = [t for t in range(PCK, 64) if t % 8 < cfg.get('pfm', 8) or t > 48]
        for i, op in enumerate(pf): put(PCK + i * (cfg.get("pfend", 60) - PCK) // 35, "pf", op)
    else:
        pf += gl
        free = [t for t in range(cfg.get('pf0', 2), 64) if t % 8 < cfg.get('pfm', 6) or t > 48]
        for i, op in enumerate(pf): put(free[i], "pf", op)
    put(0, "at", ["s_cmp_eq_u32 s%d, 0" % sWAVE, f"s_cselect_b32 s{sT0}, s{sFLAG}, {hex(WS_SIZE)}", "s_mov_b64 exec, 1",
                  f"buffer_atomic_add_x2 {v(R.XRES+8,2)}, v{R.TCH+1}, s[{SWS}:{SWS+3}], s{sT0} offen offset:512 sc1", "s_mov_b64 exec, -1"])
    put(12, "pf", [f"buffer_load_dwordx4 {v(R.XRES,4)}, v{R.XRES+6}, s[{SX}:{SX+3}], 0 offen"])
    put(16, "pf", [f"buffer_load_dwordx2 {v(R.XRES+4,2)}, v{R.XRES+7}, s[{SX}:{SX+3}], 0 offen"])
    put(cfg.get("xcc_ld", 10), "xcc", [f"buffer_load_dwordx2 {v(R.XRES+8,2)}, v{R.TCH+1}, s[{SWS}:{SWS+3}], s{sFLAG} offen offset:512 sc1"])
    misc[cfg.get('xcc_rd', 23)] = ("xcc", [f"v_readfirstlane_b32 s{sFAST-1}, v{R.XRES+8}" , f"v_readfirstlane_b32 s{sFAST}, v{R.XRES+9}"])
    gwarm = touch(15, sTMP, [f"s_lshr_b32 s{sT0}, s{sTO}, 3", f"s_lshl_b32 s{sT0}, s{sT0}, 2", f"s_add_u32 s{sT0}, s{sT0}, s{sLW}", f"s_mul_i32 s{sT0}, s{sT0}, {15*128}"])
    if cfg.get("gwarm_at", -1) >= 0: put(cfg.get("gwarm_at", -1), "pf", gwarm)
    wd01_touch = touch(20, SWS, [f"s_mul_i32 s{sT0}, s{sC}, 2560", f"s_add_u32 s{sT0}, s{sT0}, s{sWDSRC}"])
    wo_touch = touch(25, SWS, [f"s_lshr_b32 s{sT0}, s{sWAVE}, 2", f"s_lshl_b32 s{sT1}, s{sC}, 1", f"s_add_u32 s{sT0}, s{sT0}, s{sT1}",
                               f"s_mul_i32 s{sT0}, s{sT0}, 3200", f"s_add_u32 s{sT0}, s{sT0}, s{sWOSRC}"])
    gw2 = touch(6, sTMP, [f"s_lshr_b32 s{sT0}, s{sTO}, 3", f"s_lshl_b32 s{sT0}, s{sT0}, 2", f"s_add_u32 s{sT0}, s{sT0}, s{sLW}", f"s_mul_i32 s{sT0}, s{sT0}, {6*128}",
                          f"s_add_u32 s{sT0}, s{sT0}, {6*64*3072}"])
    def gwp(k, n):
        return touch(n, sTMP, [f"s_lshr_b32 s{sT0}, s{sTO}, 3", f"s_lshl_b32 s{sT0}, s{sT0}, 2", f"s_add_u32 s{sT0}, s{sT0}, s{sLW}", f"s_mul_i32 s{sT0}, s{sT0}, {n*128}",
                               f"s_add_u32 s{sT0}, s{sT0}, {k*n*1024*128}"])
    extra = {"p0": gwp(0, 5), "p1": gwp(1, 5), "p2": gwp(2, 5), "q0": gwp(0, 3), "q1": gwp(1, 3), "q2": gwp(2, 3), "q3": gwp(3, 3), "q4": gwp(4, 3), "wd01": wd01_touch, "wo": wo_touch, "gw2": gw2, "gw": gwarm}
    def wdt(k): return touch(20, SWS, [f"s_lshl_b32 s{sT0}, s{sM}, 3", f"s_add_u32 s{sT0}, s{sT0}, s{sWAVE}", f"s_mul_i32 s{sT0}, s{sT0}, {60*128}", f"s_add_u32 s{sT0}, s{sT0}, {WS_WD + k*20*128}"])
    extra.update({"d0": wdt(0), "d1": wdt(1), "d2": wdt(2)})
    wd_touch = None
    for t, op in cfg_touch_plan(cfg, gu_touch, out_touch, wd_touch, extra): put(t, "pf", op)
    HIDT = None
    if cfg.get("tlb", 0) & 2:
        put(20, "pf", ["s_mov_b64 exec, 1", f"buffer_load_dword v{JUNK}, v{R.XRES+6}, s[{SO}:{SO+3}], 0 offen", "s_mov_b64 exec, -1"])
    if cfg.get("ctouch", 1):
        for t in cfg.get("ct_at", [1, 52]):
            put(t, "pf", ["s_mov_b64 exec, 3", f"global_load_dword v{JUNK}, v{R.GV+3}, s[88:89]", "s_mov_b64 exec, -1"])

    if MG:
        A(f"s_lshr_b32 s{sT0}, s{sHD}, 1")
        A(f"s_mul_i32 s{sT0}, s{sT0}, 5")
        A(f"s_and_b32 s{sT1}, s{sHD}, 1")
        A(f"s_lshl_b32 s{sT1}, s{sT1}, 1")
        A(f"s_add_u32 s{sT0}, s{sT0}, s{sT1}")
        A(f"s_add_u32 s{sT1}, s{sT0}, 2")
        A(f"s_lshr_b32 s{sT0}, s{sT0}, 4")
        A(f"s_lshr_b32 s{sT1}, s{sT1}, 4")
        G32 = cfg.get("g32", 1)
        if G32:
            A(f"v_mov_b32 v{X+1}, s{sT0}")
            A(f"v_mov_b32 v{X+2}, s{sT1}")
            A(f"v_and_b32 v{X+3}, 16, v0")
            A(f"v_cmp_eq_u32 vcc, 0, v{X+3}")
            A(f"v_cndmask_b32 v{X}, v{X+2}, v{X+1}, vcc")
            A(f"v_lshrrev_b32 v{X+3}, 5, v0")
            A(f"v_mul_u32_u24 v{X+3}, 5, v{X+3}")
            A(f"v_add3_u32 v{X}, v{X}, v{X+3}, 5")
            A(f"v_and_b32 v{X+3}, 15, v0")
            A(f"v_lshl_add_u32 v{X}, v{X}, 4, v{X+3}")
            A(f"v_lshlrev_b32 v{X}, 7, v{X}")
            A(f"v_and_b32 v{X+3}, 2, v0")
            A(f"v_cmp_eq_u32 vcc, 0, v{X+3}")
            A(f"v_cndmask_b32 v{X+1}, v{X+2}, v{X+1}, vcc")
            A(f"s_lshr_b32 s{sT0}, s{sQT}, 3")
            A(f"s_lshl_b32 s{sT0}, s{sT0}, 1")
            A(f"v_and_b32 v{X+3}, 1, v0")
            A(f"v_add_u32 v{X+3}, s{sT0}, v{X+3}")
            A(f"v_lshl_add_u32 v{X+1}, v{X+1}, 4, v{X+3}")
            A(f"v_lshlrev_b32 v{X+1}, 7, v{X+1}")
            A("s_mov_b64 s[84:85], -1")
        else:
            A(f"s_lshl_b32 s{sT0}, s{sT0}, 2")
            A(f"s_lshl_b32 s{sT1}, s{sT1}, 2")
            A(f"s_lshl_b32 s{sT0}, 15, s{sT0}")
            A(f"s_lshl_b32 s{sT1}, 15, s{sT1}")
            A(f"s_or_b32 s56, s{sT0}, s{sT1}")
            A("s_mov_b32 s57, 0")
            A("s_lshl_b64 s[58:59], s[56:57], 20")
            A("s_or_b64 s[58:59], s[58:59], s[56:57]")
            A("s_lshl_b64 s[56:57], s[56:57], 40")
            A("s_or_b64 s[58:59], s[58:59], s[56:57]")
            A(f"v_lshrrev_b32 v{X}, 2, v0")
            A(f"v_and_b32 v{X+1}, 3, v0")
            A(f"v_lshlrev_b32 v{X}, 7, v{X}")
            A(f"v_lshl_add_u32 v{X}, v{X+1}, 4, v{X}")
            A("s_mov_b64 s[84:85], s[58:59]")
        A(f"s_cmp_lg_u32 s{sWAVE}, {GP}")
        A("s_cbranch_scc1 L_gs_done")
        A("s_mov_b64 exec, s[84:85]")
        A(f"s_mov_b32 s{sT1}, 0")
        A(f"s_mov_b32 s{sT0}, {hex(WS_GF)}")
        A.label("L_gs_poll")
        A(f"s_sleep {cfg.get('slg', 4)}")
        if G32:
            A(f"buffer_load_dword v{X+4}, v{X}, s[{SWS}:{SWS+3}], s{sT0} offen sc1")
            A(f"buffer_load_dword v{X+5}, v{X+1}, s[{SWS}:{SWS+3}], s{sT0} offen sc1")
        else:
            A(f"buffer_load_dwordx4 {v(X+4,4)}, v{X}, s[{SWS}:{SWS+3}], s{sT0} offen sc1")
        A(f"s_add_u32 s{sT1}, s{sT1}, 1")
        A("s_waitcnt vmcnt(0)")
        A(f"v_min_u32 v{X+4}, v{X+4}, v{X+5}")
        if not G32: A(f"v_min3_u32 v{X+4}, v{X+4}, v{X+6}, v{X+7}")
        A(f"v_cmp_eq_u32 vcc, 0, v{X+4}")
        A(f"s_cmp_lt_u32 s{sT1}, 0x40000")
        A("s_cselect_b64 vcc, vcc, 0")
        A("s_cbranch_vccnz L_gs_poll")
        A("s_mov_b64 exec, -1")
        A.label("L_gs_done")
        A("s_barrier")
        if cfg.get("gst") == 1: stamp(A, cfg, 0)
        first_loads()
    A(f"s_mov_b32 s94, {fhex(2.0**127)}")
    if PSP:
        A(f"s_cmp_lt_u32 s{sWAVE}, {PSP}")
        A("s_cbranch_scc1 L_p1")
        A("s_waitcnt vmcnt(0)")
        for op in kv_ops(0): emit(op)
        A.label("L_p1")
    A("s_waitcnt vmcnt(4)")
    A(f"v_mfma_f32_32x32x16_bf16 {v(S0,16)}, {v(R.K1,4)}, {v(R.Q1,4)}, 0")
    A(f"v_mfma_f32_32x32x8_bf16 {v(S0,16)}, {v(R.K2,2)}, {v(R.Q2,2)}, {v(S0,16)}")
    max16(A, R.P, S0, True)
    xhalf_max(A, R.P, R.P+1)
    set_shift(A, R.P)
    A(f"v_mfma_f32_32x32x16_bf16 {v(S0,16)}, {v(R.K1,4)}, {v(R.Q1,4)}, 0")
    A(f"v_mfma_f32_32x32x8_bf16 {v(S0,16)}, {v(R.K2,2)}, {v(R.Q2,2)}, {v(S0,16)}")
    def toff(t): return ((t // 8) % 3) * KV_SLOT + (t % 8) * 2560
    def tdelta(t): return 0
    if PSP:
        A(f"s_cmp_ge_u32 s{sWAVE}, {PSP}")
        A("s_nop 1")
        A("s_cbranch_scc1 L_p2")
    A("s_waitcnt vmcnt(0)")
    A.label("L_p2")
    A("s_barrier")
    vm += ["kv0"] * 4
    A(f"ds_read_b128 {v(R.K1,4)}, v{R.KA} offset:{toff(1)}")
    A(f"ds_read_b32 v{R.K2}, v{R.K2A} offset:{toff(1)}")
    A(f"s_mov_b64 exec, s[{sVMASK}:{sVMASK+1}]")
    A(f"ds_read_b128 {v(R.V1,4)}, v{R.VA}")
    A("s_mov_b64 exec, -1")
    stamp(A, cfg, 1)
    PRIO = cfg.get("prio", {6: 3, 1: 2, 3: 1, 5: 0})
    A("s_setprio 3")
    A.label("L_attn_code")
    def vwait(tag): A(f"s_waitcnt vmcnt({len(vm) - 1 - max(i for i, x in enumerate(vm) if x == tag)})")
    for t in range(64):
        cur, nxt = R.S[t % 2], R.S[(t + 1) % 2]
        def E(i): A(f"v_exp_f32 v{R.P+i-8 if SP_ and i >= 8 else cur+i}, v{cur+i}")
        def C(k):
            if not SP_: A(f"v_cvt_pk_bf16_f32 v{R.P+k}, v{cur+2*k}, v{cur+2*k+1}")
        ops_t = list(sched[t])
        def V():
            if ops_t:
                tag, op = ops_t.pop(0); emit(op); vm.append(tag)
        tr = []
        if t in trs: tr = list(trs[t][1])
        def L(n):
            for _ in range(n):
                if tr: A(tr.pop(0))
        if PSP and t == PSP - 2:
            vwait("kv0")
            A("s_barrier")
        if KP and t == PCK:
            A(f"s_cmp_lg_u32 s{sWAVE}, 0")
            A("s_cbranch_scc1 L_pck_done")
            vwait("pl")
            A(f"s_mov_b32 s{sT1}, 0")
            A.label("L_pck")
            A("v_min_u32 v8, v8, v9")
            A("v_min3_u32 v8, v8, v10, v11")
            A("v_cmp_eq_u32 vcc, 0, v8")
            A(f"s_add_u32 s{sT1}, s{sT1}, 1")
            A(f"s_cmp_lt_u32 s{sT1}, 0x40000")
            A("s_cselect_b64 vcc, vcc, 0")
            A("s_cbranch_vccz L_pck_done")
            A("s_sleep 4")
            A(pld)
            A("s_waitcnt vmcnt(0)")
            A("s_branch L_pck")
            A.label("L_pck_done")
        if KP and t == PFL: vwait("ps")
        if t % 8 == 6 and t < 56:
            vwait(f"kv{t//8+1}")
            A("s_barrier")
        if cfg.get("ats") and t % 8 == 6: A(f"s_memtime s[{64+2*(t//8)}:{65+2*(t//8)}]")
        if t < 56 and t % 8 in PRIO: A(f"s_setprio {PRIO[t % 8]}")
        if t >= 56 and (t - 2) % 8 in PRIO and t > 56: A(f"s_setprio {PRIO[(t - 2) % 8]}")
        if t < 63:
            A(f"s_waitcnt lgkmcnt({2 if t else 1})")
            A(f"v_mfma_f32_32x32x16_bf16 {v(nxt,16)}, {v(R.K1,4)}, {v(R.Q1,4)}, 0")
        E(0); E(1); V(); E(2); C(0); E(3)
        A("s_waitcnt lgkmcnt(0)")
        if t: A(PV2)
        if t in trs and trs[t][0]: vwait(trs[t][0])
        if t in misc:
            vwait(misc[t][0])
            A(f"s_mov_b32 s{sT1}, s{sFAST-1}")
            emit(misc[t][1])
            A(f"s_lshr_b64 s[{sFAST-1}:{sFAST}], s[{sFAST-1}:{sFAST}], s{sXCC}")
            A(f"s_and_b32 s{sFAST}, s{sFAST-1}, 63")
            A(f"s_mov_b32 s{sFAST-1}, s{sT1}")
            A(f"s_cmp_eq_u32 s{sFAST}, 32")
            A(f"s_cselect_b32 s{sFAST}, {0 if cfg.get('noFast') else 1}, 0")
        L(2); E(4); C(1); L(2); E(5); V(); E(6); L(1); C(2); E(7)
        if t < 63: A(f"v_mfma_f32_32x32x8_bf16 {v(nxt,16)}, {v(R.K2,2)}, {v(R.Q2,2)}, {v(nxt,16)}")
        if t < 62:
            if tdelta(t + 2):
                A(f"v_add_u32 v{R.KA}, {tdelta(t+2)}, v{R.KA}")
                A(f"v_add_u32 v{R.K2A}, {tdelta(t+2)}, v{R.K2A}")
            A(f"ds_read_b128 {v(R.K1,4)}, v{R.KA} offset:{toff(t+2)}")
            A(f"ds_read_b32 v{R.K2}, v{R.K2A} offset:{toff(t+2)}")
        E(8); C(3); E(9); V(); E(10); C(4); E(11)
        if SP_: A(f"v_smfmac_f32_32x32x32_bf16 {v(R.O,16)}, {v(R.V1,4)}, {v(cur,8)}, v79")
        else: A(f"v_mfma_f32_32x32x16_bf16 {v(R.O,16)}, {v(R.V1,4)}, {v(R.P,4)}, {v(R.O,16) if t else 0}")
        A(f"s_mov_b64 exec, s[{sVMASK}:{sVMASK+1}]")
        A(f"ds_read_b128 {v(R.V2,4)}, v{R.VA} offset:{toff(t) + 640}")
        if t < 63:
            if tdelta(t + 1): A(f"v_add_u32 v{R.VA}, {tdelta(t+1)}, v{R.VA}")
            A(f"ds_read_b128 {v(R.V1,4)}, v{R.VA} offset:{toff(t+1)}")
        A("s_mov_b64 exec, -1")
        E(12); C(5); E(13); E(14); E(15); C(6); C(7)
        assert not ops_t and not tr
    A("s_waitcnt lgkmcnt(0)")
    A(PV2)
    A.label("L_post_attn")
    if cfg.get("ats"):
        for c in range(11): A(f"s_sub_u32 s{65+2*c}, s{64+2*c}, s63")
        A("v_mov_b32 v78, v0")
        A("v_mov_b32 v110, v2")
        A("v_mov_b32 v109, v3")
        stamp_flush(A, cfg, 13, 17, SWS, sWAVE, 0)
        A("s_mov_b64 exec, -1")
        A("v_mov_b32 v0, v78")
        A("v_mov_b32 v2, v110")
        A("v_mov_b32 v3, v109")
    A("s_setprio 0")
    stamp(A, cfg, 2)
    N = R.S[0]
    A(f"v_rcp_f32 v{T}, v{R.O+10}")
    A(f"v_max3_f32 v{T+1}, abs(v{R.O}), abs(v{R.O+1}), abs(v{R.O+2})")
    A(f"v_cmp_le_f32 vcc, s92, v{R.O+10}")
    A(f"v_cmp_ge_f32 s[{sTMP}:{sTMP+1}], s93, v{R.O+10}")
    for k in (3, 5, 7): A(f"v_max3_f32 v{T+1}, v{T+1}, abs(v{R.O+k}), abs(v{R.O+k+1})")
    A(f"v_max_f32_e64 v{T+1}, v{T+1}, abs(v{R.O+9})")
    A(f"s_and_b64 vcc, vcc, s[{sTMP}:{sTMP+1}]")
    A(f"v_cmp_ge_f32 s[{sTMP+2}:{sTMP+3}], s94, v{T+1}")
    def norm():
        for k in (8, 9, 0, 1, 2, 3, 4, 5, 6, 7): A(f"v_mul_f32 v{N+k}, v{T}, v{R.O+k}")
    norm()
    A(f"s_and_b64 vcc, vcc, s[{sTMP+2}:{sTMP+3}]")
    A(f"s_cmp_eq_u64 vcc, -1" if not cfg.get("force_slow") else "s_cmp_eq_u32 s2, -1")
    A("s_cbranch_scc0 L_attn_slow")
    A.label("L_attn_norm")
    A(f"v_cvt_pk_bf16_f32 v{N+10}, v{N+8}, v{N+9}")
    A(f"v_cvt_pk_bf16_f32 v{N+11}, v{N+8}, v{N+9}")
    for k in range(4): A(f"v_cvt_pk_bf16_f32 v{N+k}, v{N+2*k}, v{N+2*k+1}")
    A(f"v_permlane32_swap_b32 v{N+10}, v{N+11}")
    stores(A, [f"buffer_store_dwordx4 {v(N,4)}, v{T+6}, s[{SWS}:{SWS+3}], 0 offen",
               "s_mov_b32 exec_hi, 0",
               f"buffer_store_dwordx2 {v(N+10,2)}, v{T+7}, s[{SWS}:{SWS+3}], 0 offen",
               "s_mov_b32 exec_hi, -1"], data="O")
    A(f"v_and_b32 v{T+4}, 15, v0")
    A(f"v_lshrrev_b32 v{T+3}, 5, v0")
    A(f"v_lshlrev_b32 v{T+1}, 4, v{T+4}")
    A(f"v_lshl_add_u32 v{T+1}, v{T+3}, 8, v{T+1}")
    A(f"v_lshrrev_b32 v{T+5}, 4, v0")
    A(f"v_lshlrev_b32 v{T+5}, 8, v{T+5}")
    A(f"v_lshl_add_u32 v7, v{T+4}, 3, v{T+5}")
    A(f"v_add_u32 v7, 4096, v7")

    BF, ACC = 16, 56
    vHP, vHS, vPW, RA = 108, 109, 3, 5
    A(f"s_lshr_b32 s{sT2}, s{sWAVE}, 2")
    A(f"s_mul_i32 s{sT1}, s{sKQ}, {20*256}")
    A(f"s_add_u32 s{sT1}, s{sT1}, {hex(WS_O)}")
    A(f"s_add_u32 s{sB2}, s{sLW}, s{sTOK16}")
    A(f"s_xor_b32 s{sB}, s{sB2}, 1")
    A(f"s_mul_i32 s{sB}, s{sB}, {80*256}")
    A(f"s_add_u32 s{sB}, s{sB}, s{sT1}")
    A(f"s_mul_i32 s{sB2}, s{sB2}, {80*256}")
    A(f"s_add_u32 s{sB2}, s{sB2}, s{sT1}")
    A(f"s_xor_b32 s{sT0}, s{sLW}, 1")
    A(f"s_mul_i32 s{sT0}, s{sT0}, 5120")
    A(f"s_add_u32 s{sT0}, s{sT0}, {PART_BASE}")
    A(f"v_add_u32 v{vPW}, s{sT0}, v{R.L16}")
    A(f"s_mul_i32 s{sT0}, s{sLW}, 5120")
    A(f"s_add_u32 s{sT0}, s{sT0}, {PART_BASE}")
    A(f"v_add_u32 v6, s{sT0}, v{R.L16}")
    A(f"s_add_u32 s{sT0}, s{sLW}, s{sTOK16}")
    A(f"s_lshl_b32 s{sC}, s{sT0}, 11")
    A(f"s_mul_i32 s{sT0}, s{sT0}, {80*256}")
    A(f"s_mul_i32 s{sT1}, s{sFG}, 2560")
    A(f"s_add_u32 s{sT0}, s{sT0}, s{sT1}")
    A(f"s_add_u32 s{sT0}, s{sT0}, {hex(WS_H)}")
    A(f"v_add_u32 v{T+1}, 2048, v{T+1}")
    A(f"v_add_u32 v{vHS}, s{sT0}, v{T+1}")
    A(f"s_lshl_b32 s{sT1}, s{sT2}, 10")
    A(f"s_add_u32 s{sT0}, s{sT0}, s{sT1}")
    A(f"v_add_u32 v{vHP}, s{sT0}, v{R.L16}")
    A(f"s_lshl_b32 s{sT1}, s{sFG}, 1")
    A(f"s_add_u32 s{sT1}, s{sT1}, s{sT2}")
    A(f"s_lshl_b32 s{sT1}, s{sT1}, 7")
    A(f"s_add_u32 s{sC}, s{sC}, s{sT1}")
    A(f"s_add_u32 s{sC}, s{sC}, {hex(WS_ST2)}")
    reduce_addr(A, 3, PART_BASE, RA)
    sGT = sQT
    A(f"s_and_b32 s{sGT}, s{sTOK16}, -8")
    A(f"s_lshl_b32 s{sT0}, s{sLW}, 1")
    A(f"s_add_u32 s{sGT}, s{sGT}, s{sT0}")
    sHSRC, sHM0 = sKBASE, sVBASE
    A(f"s_mul_i32 s{sHSRC}, s{sGT}, {80*256}")
    A(f"s_add_u32 s{sHSRC}, s{sHSRC}, {hex(WS_H)}")
    A(f"s_lshl_b32 s{sHM0}, s{sLW}, 12")
    A(f"s_add_u32 s{sTO}, s{sHSRC}, {80*256}")
    A(f"s_lshl_b32 s{sT0}, s{sC0}, 11")
    A(f"s_add_u32 s{sHSRC}, s{sHSRC}, s{sT0}")
    VS = (T + 2, T + 3, T + 4, T + 5)
    for st in range(4):
        A(f"s_bfe_u32 s{sT0}, s{sFG}, {'0x20001' if WROT else '0x00001'}")
        A(f"s_xor_b32 s{sT0}, s{sT0}, {st}")
        A(f"s_lshl_b32 s{sT0}, s{sT0}, 10")
        A(f"v_add_u32 v{VS[st]}, s{sT0}, v{R.L16}")
    stamp(A, cfg, 3)
    M8 = 0x0101010101010101
    sync(A, 0, 0, False, 0, rb=[(M8, [f"buffer_load_dword v{JUNK}, v{T+6}, s[{SWS}:{SWS+3}], 0 offen"]),
                                (0x00010001, [f"buffer_load_dword v{JUNK}, v{T+7}, s[{SWS}:{SWS+3}], 0 offen"])])
    stamp(A, cfg, 4)
    def wo_load(q, BF=BF):
        i, st = divmod(q, 5)
        st = (st + 4) % 5
        if st < 4: A(f"buffer_load_dwordx4 {v(BF+20*i+4*st,4)}, v{VS[st]}, s[{SWS}:{SWS+3}], s{sB2 if i else sB} offen {cfg.get('wold', 'sc1')}")
        else:
            for e in range(2): A(f"buffer_load_dwordx2 {v(BF+20*i+16+2*e,2)}, v7, s[{SWS}:{SWS+3}], s{sB2 if i else sB} offen offset:{128*e} {cfg.get('wold', 'sc1')}")
        return [q] * (2 if st == 4 else 1)
    WL0 = cfg.get("wl0", 4)
    wq0 = []
    for q in range(WL0): wq0 += wo_load(q)
    if cfg.get("wts"): A("s_memtime s[72:73]")
    EW = cfg.get("ew", [4, 1, 0])
    FSUB = lambda f: 1 if f in (2, 3) else 0
    def wo_main(sub, ACC=ACC, BF=BF, vPW=vPW):
        keep = [f for f in range(5) if FSUB(f) == sub]
        order = [f for f in range(5) if f not in keep] + keep
        wq = list(wq0); nq = WL0
        for i in range(2):
            for st in range(5):
                A(f"s_waitcnt vmcnt({len(wq) - 1 - max(k for k, x in enumerate(wq) if x == 5*i+st)})")
                for _ in range(cfg.get("wlr", 1)):
                    if nq < 10: wq += wo_load(nq); nq += 1
                if cfg.get("wts") and (5 * i + st) in (0, 2, 4, 5, 7, 9): A(f"s_memtime s[{74+2*(0,2,4,5,7,9).index(5*i+st)}:{75+2*(0,2,4,5,7,9).index(5*i+st)}]")
                for f in order:
                    acc = v(ACC + 20 * i + 4 * f, 4)
                    sx = (st + 4) % 5
                    A(f"v_mfma_f32_16x16x32_bf16 {acc}, {a(20*sx+4*f,4)}, {v(BF+20*i+4*sx,4)}, {acc if st else 0}")
                if i == 1:
                    f = order[st]
                    A(f"ds_write_b128 v{vPW}, {v(ACC+4*f,4)} offset:{(1 if FSUB(f) == sub else 2)*20480 + f*1024}")
        for f in order:
            if f not in keep: A(f"ds_write_b128 v6, {v(ACC+20+4*f,4)} offset:{f*1024}")
        for op in (load_wd_ops(2) + load_wd_ops(3))[:EW[0]]: emit(op)
        stamp(A, cfg, 5)
        if cfg.get("wts"):
            for k in range(7): A(f"s_sub_u32 s{73+2*k}, s{72+2*k}, s69")
            A("s_sub_u32 s71, s71, s69")
            A("v_mov_b32 v110, v0")
            A("v_mov_b32 v1, v3")
            stamp_flush(A, cfg, 13, 17, SWS, sWAVE, cfg.get("tswave", 0))
            A("s_mov_b64 exec, -1")
            A("v_mov_b32 v0, v110")
            A("v_mov_b32 v3, v1")
        return [ACC + 20 + 4 * f for f in keep]
    D = 16
    TRA, VB, VST = 1, 2, 3
    G1, Gh, rho, c0, c1 = T+2, T+3, T+4, T+5, T+6
    def wo_tail(n):
        own = wo_main(3 - n)
        XF = 56
        A("s_waitcnt lgkmcnt(0)")
        A("s_barrier")
        def mid():
            for op in (load_wd_ops(2) + load_wd_ops(3))[EW[0]:EW[0]+EW[1]]: emit(op)
            for i in range(2 * n):
                A(f"v_lshlrev_b32 v{XF+2*i}, 16, v{R.XRES+i}")
                A(f"v_and_b32 v{XF+2*i+1}, 0xffff0000, v{R.XRES+i}")
            for i in range(2 * n): A(f"v_pk_add_f32 {v(own[i//2]+2*(i%2),2)}, {v(own[i//2]+2*(i%2),2)}, {v(XF+2*i,2)}")
            A(f"v_mov_b32 v{T+2}, 0x3f803f80")
            A(f"v_lshlrev_b32 v{T+3}, 3, v0")
        reduce_sum(A, 3, D, RA, n, own, mid)
        src = lambda i: own[i // 2] + 2 * (i % 2)
        for i in range(4): A(f"v_cvt_pk_bf16_f32 v{D+i}, v{src(i)}, v{src(i)+1}")
        stores(A, [f"buffer_store_dwordx4 {v(D,4)}, v{vHP}, s[{SWS}:{SWS+3}], 0 offen"])
        if n == 3:
            E = D + 12
            for i in range(4): A(f"v_cvt_pk_bf16_f32 v{E+i}, v{src(4+i%2)}, v{src(4+i%2)+1}")
            for i in (4, 5): A(f"v_cvt_pk_bf16_f32 v{D+i}, v{src(i)}, v{src(i)+1}")
            A(f"v_permlane16_swap_b32 v{E}, v{E+2}")
            A(f"v_permlane16_swap_b32 v{E+1}, v{E+3}")
            stores(A, ["s_mov_b32 exec_lo, 0xffff", "s_mov_b32 exec_hi, 0xffff",
                       f"buffer_store_dwordx4 {v(E,4)}, v{vHS}, s[{SWS}:{SWS+3}], 0 offen", "s_mov_b64 exec, -1"])
        sm, sq = D + 8, D + 9
        for i in range(2 * n):
            A(f"v_dot2_f32_bf16 v{sm}, v{D+i}, v{T+2}, {'v%d' % sm if i else 0}")
            A(f"v_dot2_f32_bf16 v{sq}, v{D+i}, v{D+i}, {'v%d' % sq if i else 0}")
        for i in range(3): A(f"v_accvgpr_write_b32 a{A_RES(i)}, v{D+i}")
        for op in ("v_permlane16_swap_b32", "v_permlane32_swap_b32"):
            A(f"v_mov_b32 v{T}, v{sm}")
            A(f"v_mov_b32 v{T+1}, v{sq}")
            A(f"{op} v{sm}, v{T}")
            A(f"{op} v{sq}, v{T+1}")
            A(f"v_pk_add_f32 {v(sm,2)}, {v(sm,2)}, {v(T,2)}")
        A("s_mov_b64 exec, 0xffff")
        stores(A, [f"buffer_store_dwordx2 {v(sm,2)}, v{T+3}, s[{SWS}:{SWS+3}], s{sC} offen"])
        A("s_mov_b64 exec, -1")
        for op in (load_wd_ops(2) + load_wd_ops(3))[EW[0]+EW[1]:sum(EW)]: emit(op)
        for i in range(3, 2 * n): A(f"v_accvgpr_write_b32 a{A_RES(i)}, v{D+i}")
        A(f"v_bfe_u32 v{G1}, v0, 4, 1")
        A(f"v_lshrrev_b32 v{Gh}, 5, v0")
    def h_dma_ops(c):
        return [[f"s_add_u32 m0, s{sHM0}, {H_BASE + (c%NHS)*16384 + k*1024}", f"s_add_u32 s{sT0}, s{sHSRC}, {(k//2)*80*256 + (k%2)*1024}",
                 f"buffer_load_dwordx4 v{R.L16}, s[{SWS}:{SWS+3}], s{sT0} offen sc1 lds"] +
                ([f"s_add_u32 s{sHSRC}, s{sHSRC}, 2048", f"s_cmp_eq_u32 s{sHSRC}, s{sTO}", f"s_cselect_b32 s{sT0}, {80*256}, 0",
                  f"s_sub_u32 s{sHSRC}, s{sHSRC}, s{sT0}"] if k == 3 else []) for k in range(4)]
    A(f"s_cmp_ge_u32 s{sWAVE}, 4")
    A("s_cbranch_scc1 L_gu_loader")
    wo_tail(3)

    L_CF = GU_MISC
    L_MB = GU_MISC + 3072
    L_RS = GU_MISC + 4096
    L_ZERO = GU_MISC + 4608
    ACC = 16
    HF, WF, ONE = 0, 32, 48
    CS = lambda j: 52 if j == 0 else 56 + 4 * j
    TR = (1, 2, 3)
    TRX, VB, VST = (5, 6, 7), T + 4, T + 6
    sTH, sFH = sKSRC, sVSRC
    A(f"s_and_b32 s{sTH}, s{sWAVE}, 1")
    A(f"s_lshr_b32 s{sFH}, s{sWAVE}, 1")
    A(f"v_lshrrev_b32 v{T}, 4, v0")
    A(f"v_bfe_u32 v{T+1}, v0, 2, 2")
    A(f"v_lshl_add_u32 v{T}, v{T}, 3, v{T+1}")
    A(f"v_mul_u32_u24 v{T}, 192, v{T}")
    A(f"v_and_b32 v{T+1}, 3, v0")
    A(f"v_lshl_add_u32 v{T}, v{T+1}, 3, v{T}")
    A(f"s_mul_i32 s{sT1}, s{sTH}, {32*192}")
    for jt in range(3):
        A(f"s_mul_i32 s{sT0}, s{sFH}, 3")
        A(f"s_add_u32 s{sT0}, s{sT0}, {jt}")
        A(f"v_xor_b32 v{T+1}, s{sT0}, v{G1}")
        A(f"v_lshl_add_u32 v{T+1}, v{T+1}, 5, v{T}")
        A(f"v_add_u32 v{TR[jt]}, s{sT1}, v{T+1}")
        A(f"v_subrev_u32 v{TRX[jt]}, s{sT1}, v{T+1}")
    A(f"v_mov_b32 v{T}, 0x3f803f80")
    for i in range(4): A(f"v_accvgpr_write_b32 a{ONE+i}, v{T}")
    A(f"s_mul_i32 s{sT0}, s{sTH}, {8192 + 1024}")
    A(f"s_add_u32 s{sT0}, s{sT0}, {H_BASE}")
    A(f"v_add_u32 v{VB}, s{sT0}, v{R.L16}")
    A(f"s_mul_i32 s{sT0}, s{sTH}, {8192 - 1024}")
    A(f"s_add_u32 s{sT0}, s{sT0}, {H_BASE}")
    A(f"v_add_u32 v{VB+1}, s{sT0}, v{R.L16}")
    A(f"v_and_b32 v{T}, 15, v0")
    A(f"v_lshlrev_b32 v{T}, 4, v{T}")
    A(f"v_lshl_add_u32 v{T}, v{Gh}, 8, v{T}")
    A(f"v_lshl_add_u32 v{VST}, v{G1}, 9, v{T}")
    A(f"v_mul_u32_u24 v{T+1}, {192*256}, v{G1}")
    A(f"v_add3_u32 v{VST+1}, v{T}, v{T+1}, 0")
    lq = []
    def wread(n, us=(0, 1)):
        st, j = divmod(n, 6)
        kb = st % 2
        for u in us:
            A(f"ds_read_b64_tr_b16 {a(WF+4*(n%4)+2*u,2)}, v{(TRX if kb else TR)[j//2]} offset:{(32*kb+4*u)*192 + (j%2)*GU_UP}"); lq.append(("W", n))
    def hread(st, i):
        c, kb = divmod(st, 2)
        A(f"ds_read_b128 {a(HF+16*(st%2)+4*i,4)}, v{VB+kb} offset:{(c%NHS)*16384 + i*2048 + kb*1024}"); lq.append(("H", st, i))
    for n in range(3): wread(n)
    stamp(A, cfg, 6)
    sync(A, 1, 0, True, EW[2], rb=[(M8, [f"buffer_load_dword v{T+2}, v{vHP}, s[{SWS}:{SWS+3}], 0 offen"]),
                               (0x0000010100000101, [f"buffer_load_dword v{T+2}, v{vHS}, s[{SWS}:{SWS+3}], 0 offen"])])
    stamp(A, cfg, 7)
    if cfg.get("gts"): A("s_mov_b32 s90, s75")
    for op in h_dma_ops(0)[:2]: emit(op)
    NPRE = cfg.get("npre", 2)
    def pre_read(k):
        c, j = divmod(k, 6)
        if c == 2 and j % 2 == 0: A(f"v_add_u32 v{T+j//2}, {2*GU_SLOT}, v{TR[j//2]}")
        for u in range(2):
            A(f"ds_read_b64_tr_b16 {a(HF+4*(k%8)+2*u,2)}, v{TR[j//2] if c < 2 else T + j//2} offset:{(c%2)*GU_SLOT + 4*u*192 + (j%2)*GU_UP}")
    for k in range(min(6, 6 * NPRE)): pre_read(k)
    for k in range(6 * NPRE):
        if k + 6 < 6 * NPRE: pre_read(k + 6)
        A(f"s_waitcnt lgkmcnt({2 * min(6, 6 * NPRE - 1 - k)})")
        A(f"v_mfma_f32_16x16x32_bf16 {a(CS(k%6),4)}, {a(ONE,4)}, {a(HF+4*(k%8),4)}, {a(CS(k%6),4) if k >= 6 else 0}")
    A("s_waitcnt vmcnt(0)")
    A("s_barrier")
    for i in range(4): hread(0, i)
    wd3 = (load_wd_ops(2) + load_wd_ops(3))[sum(EW):]
    assert sum(EW) == 5
    def lwait(tags): A(f"s_waitcnt lgkmcnt({min(15, len(lq) - 1 - max(i for i, x in enumerate(lq) if x in tags))})")
    CFA, MBA = HF, HF + 12
    valu = []
    LATE = cfg.get('wlate', 1)
    for st in range(20):
        c, kb = divmod(st, 2)
        for j in range(6):
            n = 6 * st + j
            bar = kb == 1 and j == 3 and st < 19
            if bar:
                if LATE: lwait([("W", n)])
                else: A("s_waitcnt lgkmcnt(0)")
                if cfg.get("gts") == 2: A(f"s_memtime s[{60+2*c}:{61+2*c}]")
                A("s_barrier")
                if cfg.get("gts") == 1: A(f"s_memtime s[{60+2*c}:{61+2*c}]")
                d = GU_SLOT if (c + 1) % NWS else -(NWS - 1) * GU_SLOT
                for r in TR: A(f"v_add_u32 v{r}, {d & 0xffffffff}, v{r}")
            elif LATE or not (kb == 1 and j > 3 and st < 19):
                lwait([("W", n)] + ([("H", st, 3)] if j == 0 else []))
            if kb == 0 and j == 0 and st:
                d = GU_SLOT if c % NWS else -(NWS - 1) * GU_SLOT
                for r in TRX: A(f"v_add_u32 v{r}, {d & 0xffffffff}, v{r}")
            ex = []
            if n + 3 < 120: ex += [lambda n=n: wread(n + 3, (0,)), lambda n=n: wread(n + 3, (1,))]
            if st < 19:
                hs = {0: {1: (0,), 2: (1,), 3: (2,), 4: (3,)}, 1: {3: (0, 1), 4: (2, 3)}}[kb].get(j, ())
                for i in hs: ex.append(lambda i=i: hread(st + 1, i))
            if st == 19 and j == 0:
                for jj in range(6):
                    x = T + 2 * (jj % 2); y = T + 4
                    valu += [f"v_accvgpr_read_b32 v{y}, a{CS(jj)}", f"v_cvt_pk_bf16_f32 v{x+1}, v{y}, v{y}", f"v_and_b32 v{x+1}, 0xffff0000, v{x+1}",
                             f"v_sub_f32 v{y}, v{y}, v{x+1}", f"v_cvt_pk_bf16_f32 v{x}, v{x+1}, v{y}", f"v_lshrrev_b32 v{x+1}, 16, v{x+1}",
                             f"ds_write_b64 v{TR[0]}, {v(x,2)} offset:{256*jj}"]
            if st == 19 and j == 5:
                assert not valu
                A("s_waitcnt lgkmcnt(0)")
                A("s_barrier")
                valu = [f"ds_read_b64 {v(6,2)}, v{TR[2]}"] + [f"ds_read_b64 {a(CFA+2*k,2)}, v{TR[1]} offset:{256*k}" for k in range(6)] + \
                       [f"ds_read_b64 {v((6, T, T+2, T+4)[i],2)}, v{TR[2]} offset:{128*i}" for i in range(1, 4)]
            wf = a(WF + 4 * (n % 4), 4)
            if kb == 0 and c >= NPRE and not cfg.get("gu_nocs"):
                A(f"v_mfma_f32_16x16x32_bf16 {a(CS(j),4)}, {a(ONE,4)}, {wf}, {a(CS(j),4) if st else 0}")
                if ex: ex.pop(0)()
            for i in range(4):
                acc = v(ACC + 24 * i + 4 * j, 4)
                A(f"v_mfma_f32_16x16x32_bf16 {acc}, {wf}, {a(HF+16*(st%2)+4*i,4)}, {acc if st else 0}")
                k = 3
                if ex: ex.pop(0)(); k = 1
                for _ in range(k):
                    if valu:
                        x = valu.pop(0); A(x)
                        if x.startswith("ds_"): lq.append("x")
            assert not ex
        if st == 18:
            A(f"s_mul_i32 s{sT0}, s{sFH}, 1536")
            A(f"s_add_u32 s{sT0}, s{sT0}, {L_CF}")
            A(f"v_and_b32 v{TR[1]}, 31, v0")
            A(f"v_lshlrev_b32 v{TR[1]}, 3, v{TR[1]}")
            A(f"v_add_u32 v{TR[1]}, s{sT0}, v{TR[1]}")
            A(f"s_lshl_b32 s{sT1}, s{sTH}, 7")
            A(f"s_add_u32 s{sT0}, s{sT0}, s{sT1}")
            A(f"v_and_b32 v{TR[2]}, 15, v0")
            A(f"v_lshlrev_b32 v{TR[2]}, 3, v{TR[2]}")
            A(f"v_add_u32 v{TR[0]}, s{sT0}, v{TR[2]}")
            A(f"s_lshl_b32 s{sT0}, s{sTH}, 9")
            A(f"s_add_u32 s{sT0}, s{sT0}, {L_MB}")
            A(f"v_add_u32 v{TR[2]}, s{sT0}, v{TR[2]}")
            A("s_mov_b32 exec_lo, 0")
            A(f"v_mov_b32 v{TR[2]}, {L_ZERO}")
            A("s_mov_b32 exec_lo, -1")
    MBR = (6, T, T + 2, T + 4)
    assert not valu
    def corr(i): return [f"v_mfma_f32_16x16x16_bf16 {v(ACC+24*i+4*j,4)}, {a(CFA+2*j,2)}, {v(MBR[i],2)}, {v(ACC+24*i+4*j,4)}" for j in range(6)]
    if cfg.get("gts"):
        A("s_waitcnt lgkmcnt(0)")
        for c in range(9): A(f"s_sub_u32 s{(91,92,93,94,95,96,86,88,89)[c]}, s{60+2*c}, s90")
    stamp(A, cfg, 8)
    A(f"s_and_b32 s{sB}, s{sTOK16}, -8")
    A(f"s_lshl_b32 s{sT0}, s{sTH}, 2")
    A(f"s_add_u32 s{sB}, s{sB}, s{sT0}")
    A(f"s_mul_i32 s{sB}, s{sB}, {192*256}")
    A(f"s_mul_i32 s{sT0}, s{sJ}, {12*256}")
    A(f"s_add_u32 s{sB}, s{sB}, s{sT0}")
    A(f"s_mul_i32 s{sT0}, s{sFH}, {6*256}")
    A(f"s_add_u32 s{sB}, s{sB}, s{sT0}")
    A(f"s_add_u32 s{sB}, s{sB}, {hex(WS_HID)}")
    A("s_waitcnt lgkmcnt(3)")
    for x in corr(0): A(x)
    A("s_waitcnt lgkmcnt(0)")
    def gu_epi(sc):
        for i in range(4):
            r = ACC + 24 * i
            cm = corr(i + 1) if i < 3 else []
            L = []
            for jt in range(3):
                g = r + 8 * jt
                L += [f"v_max_f32 v{g+b}, 0, v{g+b}" for b in range(4)]
                if i < 3: L += [f"v_mul_f32 v{g+b}, v{g+b}, v{g+4+b}" for b in range(4)]
                else: L += [f"v_pk_mul_f32 {v(g+b,2)}, {v(g+b,2)}, {v(g+4+b,2)}" for b in (0, 2)]
            e = ACC + 48 * (i // 2) + 20
            L += [f"v_cvt_pk_bf16_f32 v{r}, v{r}, v{r+1}", f"v_cvt_pk_bf16_f32 v{r+1}, v{r+2}, v{r+3}",
                  f"v_cvt_pk_bf16_f32 v{r+2}, v{r+8}, v{r+9}", f"v_cvt_pk_bf16_f32 v{r+3}, v{r+10}, v{r+11}",
                  f"v_cvt_pk_bf16_f32 v{e+2*(i%2)}, v{r+16}, v{r+17}", f"v_cvt_pk_bf16_f32 v{e+2*(i%2)+1}, v{r+18}, v{r+19}",
                  f"v_permlane16_swap_b32 v{r}, v{r+2}", f"v_permlane16_swap_b32 v{r+1}, v{r+3}",
                  f"s_add_u32 s{sT2}, s{sB}, {i*192*256}",
                  f"buffer_store_dwordx4 {v(r,4)}, v{VST}, s[{SWS}:{SWS+3}], s{sT2} offen {sc}"]
            if i % 2:
                L += [f"v_permlane16_swap_b32 v{e}, v{e+2}", f"v_permlane16_swap_b32 v{e+1}, v{e+3}",
                      f"s_add_u32 s{sT2}, s{sB}, {(i-1)*192*256}",
                      f"buffer_store_dwordx4 {v(e,4)}, v{VST+1}, s[{SWS}:{SWS+3}], s{sT2} offen offset:1024 {sc}"]
            for k, x in enumerate(L):
                if k % 3 == 0 and cm: A(cm.pop(0))
                A(x)
    if cfg.get("wt", 2) & 2:
        gu_epi("sc1")
    else:
        A(f"s_cmp_lg_u32 s{sFAST}, 0")
        A("s_nop 4")
        A("s_cbranch_scc0 L_gu_epi_slow")
        gu_epi("")
    A.label("L_gu_epi_done")
    for op in wd3: emit(op)
    stamp(A, cfg, 9)
    A("s_branch L_gu_done")
    if not cfg.get("wt", 2) & 2:
        A.label("L_gu_epi_slow")
        gu_epi("sc1")
        A("s_branch L_gu_epi_done")

    A.label("L_gu_loader")
    WDL = cfg.get("wdl", "late")
    wo_tail(2)
    STV = 72
    A(f"v_and_b32 v3, 15, v0")
    A(f"v_lshlrev_b32 v3, 3, v3")
    A(f"v_lshl_add_u32 v3, v{G1}, 11, v3")
    A(f"v_lshl_add_u32 v3, v{Gh}, 10, v3")
    A(f"s_lshl_b32 s{sB}, s{sGT}, 11")
    A(f"s_add_u32 s{sB}, s{sB}, {hex(WS_ST2)}")
    A(f"s_waitcnt vmcnt({EW[2]})")
    readback(A, [(M8, [f"buffer_load_dword v7, v{vHP}, s[{SWS}:{SWS+3}], 0 offen"])])
    A("s_barrier")
    wdl = [op for stp in range(2, 8) for op in load_wd_ops(stp)][sum(EW):]
    WPL = cfg.get("wpl", [0,0,5,0,0,0,0,0,2,8,10,0])
    assert sum(WPL) == 30 - sum(EW)
    for _ in range(WPL[0]): emit(wdl.pop(0))

    A("s_barrier")
    ops = []
    for op in h_dma_ops(0)[2:] + h_dma_ops(1): emit(op)
    ops += [("h", 0)] * 2 + [("h", 1)] * 4
    if cfg.get("st_ld", 0) == -1:
        for i in range(8): A(f"buffer_load_dwordx2 {v(STV+2*i,2)}, v3, s[{SWS}:{SWS+3}], s{sB} offen offset:{128*i} sc1")
        ops += ["st"] * 8
    A(f"s_setprio {cfg.get('lprio', 0)}")
    for c in range(10):
        need = [("h", c)] + ([("w", c)] if c >= 4 else [])
        A(f"s_waitcnt vmcnt({len(ops) - 1 - max(i for i, o in enumerate(ops) if o in need)})")
        A("s_barrier")
        vops = []
        if c + 2 < 10:
            vops += h_dma_ops(c + 2); ops += [("h", c + 2)] * 4
        wn = c + 2 if LATE else c + 3
        if 4 <= wn < 10:
            vops += gu_dma_ops(wn); ops += [("w", wn)] * 6
        if c == cfg.get("st_ld", 0):
            vops += [[f"buffer_load_dwordx2 {v(STV+2*i,2)}, v3, s[{SWS}:{SWS+3}], s{sB} offen offset:{128*i} sc1"] for i in range(8)]
            ops += ["st"] * 8
        for _ in range(WPL[c + 1]):
            vops.append(wdl.pop(0)); ops.append("d")
        for op in vops:
            if cfg.get("noadv"): op = op[:3]
            if cfg.get("nowdl") and "a[" in op[-1] + op[1]: continue
            emit(op)
        if c == cfg.get('st_at', 8):
            A(f"s_waitcnt vmcnt({min(63, len(ops) - 1 - max(i for i, o in enumerate(ops) if o == 'st'))})")
            A(f"s_setprio {cfg.get('sprio', 3)}")
            for i in range(1, 8):
                A(f"v_add_f32 v{STV}, v{STV}, v{STV+2*i}")
                A(f"v_add_f32 v{STV+1}, v{STV+1}, v{STV+2*i+1}")
            for r in (STV, STV + 1):
                A(f"v_mov_b32 v{STV+2}, v{r}")
                A(f"v_permlane32_swap_b32 v{r}, v{STV+2}")
                A(f"v_add_f32 v{r}, v{r}, v{STV+2}")
            mean, rs = STV, STV + 1
            A(f"v_mul_f32 v{mean}, {fhex(1/640)}, v{mean}")
            A(f"v_mul_f32 v{rs}, {fhex(1/640)}, v{rs}")
            A(f"v_fma_f32 v{rs}, -v{mean}, v{mean}, v{rs}")
            A(f"v_max_f32 v{rs}, 0, v{rs}")
            A(f"v_add_f32 v{rs}, {fhex(1e-5)}, v{rs}")
            A(f"v_rcp_f32 v{rs}, v{rs}")
            A(f"v_cvt_pk_bf16_f32 v{STV+2}, -v{mean}, -v{mean}")
            A(f"v_and_b32 v{STV+3}, 0xffff0000, v{STV+2}")
            A(f"v_sub_f32 v{STV+3}, -v{mean}, v{STV+3}")
            A(f"v_cvt_pk_bf16_f32 v{STV+3}, v{STV+3}, 0")
            A(f"v_and_b32 v{STV+4}, 31, v0")
            A(f"s_lshl_b32 s{sT0}, s{sLW}, 5")
            A(f"v_add_u32 v{STV+4}, s{sT0}, v{STV+4}")
            A(f"v_lshlrev_b32 v{STV+5}, 3, v{STV+4}")
            A(f"v_lshlrev_b32 v{STV+4}, 2, v{STV+4}")
            A(f"v_add_u32 v{STV+5}, {L_MB}, v{STV+5}")
            A(f"v_add_u32 v{STV+4}, {L_RS}, v{STV+4}")
            A(f"ds_write_b64 v{STV+5}, {v(STV+2,2)}")
            A(f"ds_write_b32 v{STV+4}, v{rs}")
            A(f"v_mov_b32 v{STV+6}, 0")
            A(f"ds_write_b32 v{STV+4}, v{STV+6} offset:512")
            A("s_setprio 0")
        if c == cfg.get('st_at', 8): A("s_waitcnt lgkmcnt(0)")
    A("s_barrier")
    for op in wdl: emit(op)
    if cfg.get("wbl2", 0) & 1:
        A(f"s_add_u32 s{sT0}, s{sM}, s{sWAVE}")
        A(f"s_cmp_lg_u32 s{sT0}, 4")
        A("s_cbranch_scc1 L_nowb1")
        A("buffer_wbl2 sc1")
        A.label("L_nowb1")
    A("s_setprio 0")
    A.label("L_gu_done")

    NBD = cfg.get("nbd", 6)
    BF, ACC = 16, 72
    vXP, vXS, RA, vRS = 1, 2, 5, T + 7
    sBT = (sKSRC, sVSRC, sKBASE, sVBASE)
    vPW = (T + 2, T + 3, T + 4, None, T + 5, T + 6, T, T + 1)
    A(f"s_lshl_b32 s{sT1}, s{sWDRAW}, 10")
    A(f"s_add_u32 s{sT1}, s{sT1}, {hex(WS_HID)}")
    for k in range(4):
        A(f"s_xor_b32 s{sT0}, s{sLW}, {3-k}")
        A(f"s_add_u32 s{sBT[k]}, s{sT0}, s{sTOK16}")
        A(f"s_mul_i32 s{sBT[k]}, s{sBT[k]}, {192*256}")
        A(f"s_add_u32 s{sBT[k]}, s{sBT[k]}, s{sT1}")
        A(f"s_mul_i32 s{sT0}, s{sT0}, 5120")
        A(f"s_add_u32 s{sT0}, s{sT0}, {(6-k)*20480}")
        if k < 2:
            A(f"v_add_u32 v{vPW[4+k]}, s{sT0}, v{R.L16}")
            A(f"v_subrev_u32 v{vPW[k]}, {4*20480}, v{vPW[4+k]}")
        else:
            A(f"s_mov_b32 s{97+k-2}, s{sT0}")
    A(f"s_and_b32 s{sT0}, s{sTOK16}, 7")
    A(f"s_add_u32 s{sT0}, s{sT0}, s{sLW}")
    A(f"s_lshl_b32 s{sT0}, s{sT0}, 6")
    A(f"s_add_u32 s{sT0}, s{sT0}, {L_RS}")
    A(f"v_and_b32 v{vRS}, 15, v0")
    A(f"v_lshlrev_b32 v{vRS}, 2, v{vRS}")
    A(f"v_add_u32 v{vRS}, s{sT0}, v{vRS}")
    A(f"ds_read_b32 v{vRS}, v{vRS}")
    A(f"s_load_dwordx2 s[{SO}:{SO+1}], s[0:1], 56")
    QD = cfg.get('quad', 1)
    addr_rowmajor(A, vXP, vXS, T, QD)
    reduce_addr(A, 7, 0, RA)
    A("s_waitcnt lgkmcnt(0)")
    srd(A, SO, SO, X_BYTES)
    A(f"s_cmp_ge_u32 s{sWAVE}, 4")
    A("s_cbranch_scc1 L_dn_nw")
    A("s_waitcnt vmcnt(5)")
    A.label("L_dn_nw")
    sync(A, 2, cfg.get('p2', 0), True, 63)
    stamp(A, cfg, 10)
    BSL = lambda i: 16 + 4 * i if i < 6 else 60 + 4 * (i - 6)
    def dn_main(NS, NBD, sub):
        keep = [f for f in range(5) if FSUB(f) == sub]
        order = [f for f in range(5) if f not in keep] + keep
        def loadBd(q):
            k, st = divmod(q, NS)
            if st == 4: A(f"s_add_u32 s{sBT[k]}, s{sBT[k]}, 4096")
            A(f"buffer_load_dwordx4 {v(BSL(q%NBD),4)}, v{R.L16}, s[{SWS}:{SWS+3}], s{sBT[k]} offen offset:{(st%4)*1024} sc1")
        NI = min(NBD, cfg.get("nbi", 4))
        for q in range(NI): loadBd(q)
        issued = NI
        A(f"v_add_u32 v{vPW[6]}, s97, v{R.L16}")
        A(f"v_subrev_u32 v{vPW[2]}, {4*20480}, v{vPW[6]}")
        A(f"v_add_u32 v{vPW[7]}, s98, v{R.L16}")
        for q in range(NI, NBD): loadBd(q)
        issued = NBD
        pend = []
        for q in range(4 * NS):
            k, st = divmod(q, NS)
            A(f"s_waitcnt vmcnt({issued - 1 - q})")
            for f in order:
                acc = v(ACC + 20 * (k % 2) + 4 * f, 4)
                A(f"v_mfma_f32_16x16x32_bf16 {acc}, {WD(st, f)}, {v(BSL(q%NBD),4)}, {acc if st else 0}")
            if issued < 4 * NS:
                loadBd(issued); issued += 1
            for _ in range(2 if NS == 4 else 1):
                if pend: A(pend.pop(0))
            if st == NS - 1:
                assert not pend
                pend = [f"ds_write_b128 v{vPW[k if f in keep else 4+k]}, {v(ACC+20*(k%2)+4*f,4)} offset:{f*1024}" for f in order if k < 3 or f not in keep]
        for x in pend: A(x)
        stamp(A, cfg, 11)
        return [ACC + 20 + 4 * f for f in keep]
    def dn_tail(n, own):
        DD = 8
        A(f"v_mov_b32 v3, v{vRS}")
        A("s_waitcnt lgkmcnt(0)")
        A("s_barrier")
        def mid():
            if QD:
                A(f"v_and_b32 v{R.L16}, 3, v0")
                A(f"v_lshlrev_b32 v{R.L16}, 6, v{R.L16}")
                A(f"v_and_or_b32 v{R.L16}, v0, 60, v{R.L16}")
        reduce_sum(A, 7, DD, RA, n, own, mid)
        for i in range(2 * n):
            r = own[i // 2] + 2 * (i % 2)
            A(f"v_accvgpr_read_b32 v{T+2}, a{A_RES(i)}")
            A(f"v_lshlrev_b32 v{T}, 16, v{T+2}")
            A(f"v_and_b32 v{T+1}, 0xffff0000, v{T+2}")
            A(f"v_fma_f32 v{r}, v{r}, v3, v{T}")
            A(f"v_fma_f32 v{r+1}, v{r+1}, v3, v{T+1}")
            A(f"v_cvt_pk_bf16_f32 v{D+i}, v{r}, v{r+1}")
            if QD: A(f"ds_bpermute_b32 v{D+i}, v{R.L16}, v{D+i}")
            if i == 3 and not QD: A(f"buffer_store_dwordx4 {v(D,4)}, v{vXP}, s[{SO}:{SO+3}], 0 offen {cfg.get('ost', '')}")
        if QD:
            A(f"s_waitcnt lgkmcnt({2*n-4})")
            A(f"buffer_store_dwordx4 {v(D,4)}, v{vXP}, s[{SO}:{SO+3}], 0 offen {cfg.get('ost', '')}")
            A("s_waitcnt lgkmcnt(0)")
        if n == 3: A(f"buffer_store_dwordx2 {v(D+4,2)}, v{vXS}, s[{SO}:{SO+3}], 0 offen {cfg.get('ost', '')}")
    A(f"s_cmp_ge_u32 s{sWAVE}, 4")
    A("s_cbranch_scc1 L_dn_b")
    dn_tail(3, dn_main(4, cfg.get("nbd_c", 5), 0))
    A("s_branch L_dn_e")
    A.label("L_dn_b")
    A(f"s_setprio {cfg.get('dprio', 1)}")
    dn_tail(2, dn_main(8, cfg.get("nbd_l", 8), 1))
    A.label("L_dn_e")
    stamp(A, cfg, 12)
    if cfg.get("gts"):
        for c in range(9):
            A(f"s_mov_b32 s{60+2*c}, s{(91,92,93,94,95,96,86,88,89)[c]}")
            A(f"s_mov_b32 s{61+2*c}, s{(91,92,93,94,95,96,86,88,89)[c]}")
    stamp_flush(A, cfg, 13, 4, SWS, sWAVE, cfg.get('tswave', 0))
    if cfg.get("diag"):
        da, db = cfg["diag"]
        A("s_cmp_ge_u32 s2, 8" if cfg.get("fixed") else "s_cmp_lg_u32 s2, 16")
        A("s_cbranch_scc1 L_end")
        A(f"s_cmp_lg_u32 s{sWAVE}, 0")
        A("s_cbranch_scc1 L_end")
        if da == -1:
            A("v_mov_b32 v1, 0")
            A(f"s_mov_b32 s{sT0}, {hex(WS_TS)}")
            A(f"buffer_load_dword v2, v1, s[{SWS}:{SWS+3}], s{sT0} offen")
            A("s_waitcnt vmcnt(0)")
            A(f"v_readfirstlane_b32 s{sT0}, v2")
        else:
            A(f"s_mov_b32 s{sT0}, s{60+2*da}")
        if cfg.get("fixed"):
            A(f"s_add_u32 s{sT0}, s{sT0}, {cfg['fixed']}")
            if cfg.get("wb"):
                A("buffer_wbl2 sc1")
        else:
            A(f"s_sub_u32 s{sT0}, s{60+2*db}, s{sT0}")
            A(f"s_min_u32 s{sT0}, s{sT0}, 20000")
            A(f"s_lshl_b32 s{sT0}, s{sT0}, 2")
            A(f"s_add_u32 s{sT0}, s{sT0}, s{60+2*12}")
        A.label("L_spin")
        A("s_memrealtime s[56:57]")
        A("s_waitcnt lgkmcnt(0)")
        A(f"s_sub_u32 s{sT1}, s56, s{sT0}")
        A(f"s_cmp_lt_i32 s{sT1}, 0")
        A("s_cbranch_scc1 L_spin")
    A.label("L_end")
    A("s_endpgm")

    A.label("L_attn_slow")
    A(f"v_subrev_u32 v{R.VA}, {KV_BASE + 1280}, v{R.VA}")
    A(f"v_mov_b32 v{R.Q2+1}, 0")
    A(f"v_mov_b32 v{T}, 0xff800000")
    A(f"s_mov_b32 s{sT0}, s{sKBASE}")
    A(f"s_add_u32 s{sT1}, s{sKBASE}, {PAIR_STRIDE}")
    A.label("L_attn_slow1")
    A(f"buffer_load_dwordx4 {v(R.K1,4)}, v{R.F2S+1}, s[{SWS}:{SWS+3}], s{sT0} offen {KVF}")
    A(f"buffer_load_dword v{R.K2}, v{R.F2S}, s[{SWS}:{SWS+3}], s{sT0} offen {KVF}")
    A("s_waitcnt vmcnt(0)")
    A(f"v_mfma_f32_32x32x16_bf16 {v(S0,16)}, {v(R.K1,4)}, {v(R.Q1,4)}, 0")
    A(f"v_mfma_f32_32x32x8_bf16 {v(S0,16)}, {v(R.K2,2)}, {v(R.Q2,2)}, {v(S0,16)}")
    max16(A, T, S0, False)
    A(f"s_add_u32 s{sT0}, s{sT0}, 2560")
    A(f"s_cmp_lt_u32 s{sT0}, s{sT1}")
    A("s_cbranch_scc1 L_attn_slow1")
    xhalf_max(A, T, T+1)
    set_shift(A, T)
    for k in range(16): A(f"v_mov_b32 v{R.O+k}, 0")
    A(f"s_mov_b32 s{sT0}, s{sKBASE}")
    A(f"s_mov_b32 s{sT2}, s{sVBASE}")
    A.label("L_attn_slow2")
    A(f"buffer_load_dwordx4 {v(R.K1,4)}, v{R.F2S+1}, s[{SWS}:{SWS+3}], s{sT0} offen {KVF}")
    A(f"buffer_load_dword v{R.K2}, v{R.F2S}, s[{SWS}:{SWS+3}], s{sT0} offen {KVF}")
    A(f"s_mov_b64 exec, s[{sVMASK}:{sVMASK+1}]")
    A(f"buffer_load_dwordx4 {v(R.V1,4)}, v{R.VA}, s[{SWS}:{SWS+3}], s{sT2} offen {KVF}")
    A(f"buffer_load_dwordx4 {v(R.V2,4)}, v{R.VA}, s[{SWS}:{SWS+3}], s{sT2} offen offset:640 {KVF}")
    A("s_mov_b64 exec, -1")
    A("s_waitcnt vmcnt(0)")
    A(f"v_mfma_f32_32x32x16_bf16 {v(S0,16)}, {v(R.K1,4)}, {v(R.Q1,4)}, 0")
    A(f"v_mfma_f32_32x32x8_bf16 {v(S0,16)}, {v(R.K2,2)}, {v(R.Q2,2)}, {v(S0,16)}")
    for k in range(16): A(f"v_exp_f32 v{S0+k}, v{S0+k}")
    if SP_:
        A(f"v_smfmac_f32_32x32x32_bf16 {v(R.O,16)}, {v(R.V1,4)}, {v(S0,8)}, v79")
        A(f"v_smfmac_f32_32x32x32_bf16 {v(R.O,16)}, {v(R.V2,4)}, {v(S0+8,8)}, v79")
    else:
        for k in range(8): A(f"v_cvt_pk_bf16_f32 v{R.P+k}, v{S0+2*k}, v{S0+2*k+1}")
        A(f"v_mfma_f32_32x32x16_bf16 {v(R.O,16)}, {v(R.V1,4)}, {v(R.P,4)}, {v(R.O,16)}")
        A(f"v_mfma_f32_32x32x16_bf16 {v(R.O,16)}, {v(R.V2,4)}, {v(R.P+4,4)}, {v(R.O,16)}")
    A(f"s_add_u32 s{sT0}, s{sT0}, 2560")
    A(f"s_add_u32 s{sT2}, s{sT2}, 1280")
    A(f"s_cmp_lt_u32 s{sT0}, s{sT1}")
    A("s_nop 7")
    A("s_cbranch_scc1 L_attn_slow2")
    A(f"v_rcp_f32 v{T}, v{R.O+10}")
    norm()
    A("s_nop 1")
    A("s_branch L_attn_norm")
    A.label("L_code_end")
    if MG: return None
    return dict(name=name, grid=256, block=512, lds=163840, desc=kernel_desc(name, 256, NV, 102))
```
